```python
import torch

def _softmax(x, axis=-1):
    return torch.softmax(x, dim=axis)
def _gelu(x):
    return torch.nn.functional.gelu(x, approximate="tanh")
def _silu(x):
    return torch.nn.functional.silu(x)
def _sigmoid(x):
    return torch.sigmoid(x)
def _layernorm(x, axis=-1, eps=1e-5):
    m = x.mean(dim=axis, keepdim=True)
    v = x.var(dim=axis, keepdim=True, unbiased=False)
    return (x - m) / torch.sqrt(v + eps)
def _scatter_add(tgt, idx, src, axis=0):
    return tgt.clone().index_add_(axis, idx, src)
def _segment_sum(src, seg, n):
    out = torch.zeros((n,) + src.shape[1:], dtype=src.dtype)
    return out.index_add_(0, seg, src)
def _pad(x, pw):
    flat = tuple(v for pair in reversed(pw) for v in pair)
    return torch.nn.functional.pad(x, flat)

kernel_name = 'recurrent_scan__mha_block__glu_gated_reglu__prompt'

def setup_inputs():

    _w = (lambda a: (lambda t: t.to(torch.bfloat16) if t.is_floating_point() else t)(torch.as_tensor(a)))
    def _A_setup():
        B, S, D, H = 1, 2048, 576, 32
        return {
            "x": _w((lambda *s: torch.randn(*s, dtype=torch.bfloat16) * 0.05)(B, S, D)),
            "wqkv": _w((lambda *s: torch.randn(*s, dtype=torch.bfloat16) * 0.2)(D, 3 * D)),
            "wo": _w((lambda *s: torch.randn(*s, dtype=torch.bfloat16) * 0.2)(D, D)),
        }
    _A_in = _A_setup()

    def _B_setup():
        B, S, D, F = 1, 2048, 576, 4608
        return {
            "x": _w((lambda *s: torch.randn(*s, dtype=torch.bfloat16) * 0.05)(B, S, D)),
            "W_gate": _w((lambda *s: torch.randn(*s, dtype=torch.bfloat16) * 0.1)(D, F) * (2.0 / D) ** 0.5),
            "W_up": _w((lambda *s: torch.randn(*s, dtype=torch.bfloat16) * 0.1)(D, F) * (2.0 / D) ** 0.5),
            "W_down": _w((lambda *s: torch.randn(*s, dtype=torch.bfloat16) * 0.1)(F, D) * (1.0 / F) ** 0.5),
        }
    _B_in = _B_setup()

    return {
        "A_x": _A_in["x"],
        "A_wqkv": _A_in["wqkv"],
        "A_wo": _A_in["wo"],
        "B_x": _B_in["x"],
        "B_W_gate": _B_in["W_gate"],
        "B_W_up": _B_in["W_up"],
        "B_W_down": _B_in["W_down"],
    }

def reference(A_x, A_wqkv, A_wo, B_x, B_W_gate, B_W_up, B_W_down):
    def _A_ref(x, wqkv, wo):
        B, S, D = x.shape
        H = 32
        Dh = D // H
        qkv = (lambda x, *d: x.permute(*d))((x @ wqkv).reshape(B, S, 3, H, Dh), 2, 0, 3, 1, 4)
        q, k, v = qkv[0], qkv[1], qkv[2]
        scores = torch.einsum("bhqd,bhkd->bhqk", q, k) * (Dh ** -0.5)
        p = _softmax(scores, axis=-1)
        o = torch.einsum("bhqk,bhkd->bhqd", p, v)
        return (lambda x, *d: x.permute(*d))(o, 0, 2, 1, 3).reshape(B, S, D) @ wo

    def _B_ref(x, W_gate, W_up, W_down):
        gate = torch.einsum("bsd,df->bsf", x, W_gate)
        up = torch.einsum("bsd,df->bsf", x, W_up)
        gate = gate * (lambda x, dt: x.to(dt))(gate > 0, gate.dtype)
        h = gate * up
        return torch.einsum("bsf,fd->bsd", h, W_down)

    x = A_x
    xn = _layernorm(x, axis=-1)
    s = _A_ref(xn, A_wqkv, A_wo)
    g = _silu(_B_ref(xn, B_W_gate, B_W_up, B_W_down))
    return x + s * g
```

```python
import re

class R:
    __slots__=('k','b','n')
    def __init__(s,k,b,n=1): s.k=k; s.b=b; s.n=n
    def __str__(s): return f'{s.k}{s.b}' if s.n==1 else f'{s.k}[{s.b}:{s.b+s.n-1}]'
    __repr__=__str__
    def regs(s): return [f'{s.k}{i}' for i in range(s.b,s.b+s.n)]
    def __getitem__(s,i):
        if isinstance(i,slice):
            a=i.start or 0; e=s.n if i.stop is None else i.stop
            assert 0<=a<e<=s.n,(s,i)
            return R(s.k,s.b+a,e-a)
        assert 0<=i<s.n,(s,i)
        return R(s.k,s.b+i,1)
def V(b,n=1): return R('v',b,n)
def A(b,n=1): return R('a',b,n)
def S(b,n=1): return R('s',b,n)

def regs_of(*ops):
    out=[]
    for o in ops:
        if isinstance(o,R): out+=o.regs()
        elif isinstance(o,str):
            m=o.strip('-|')
            if m in ('vcc','m0','exec','scc'): out.append(m)
            else:
                mm=re.fullmatch(r'([vas])(\d+)',m)
                if mm: out.append(m)
    return out

class I:
    __slots__=('text','kind','rd','wr','passes','meta')
    def __init__(s,text,kind,rd=(),wr=(),passes=0,**meta):
        s.text=text; s.kind=kind; s.rd=list(rd); s.wr=list(wr); s.passes=passes; s.meta=meta
    def __repr__(s): return s.text

def fmt(o):
    if isinstance(o,float): return repr(o)
    if isinstance(o,int): return str(o) if -16<=o<=64 else hex(o&0xffffffff)
    return str(o)

TRANS=('v_exp_f32','v_rcp_f32','v_rsq_f32','v_sqrt_f32','v_log_f32')
def valu(op,dst,*src,mods='',rmw=False):
    kind='trans' if op.replace('_e64','') in TRANS else ('dot' if op.startswith('v_dot') else 'valu')
    rd=regs_of(*src); wr=regs_of(dst)
    if rmw: rd+=wr
    if op.startswith('v_cndmask') and len(src)==2: rd.append('vcc'); src=src+('vcc',)
    t=f'{op} {fmt(dst)}, '+', '.join(fmt(x) for x in src)+(' '+mods if mods else '')
    m={}
    if kind=='dot': m['dotc']=regs_of(src[2]); m['op']=op
    if op.startswith('v_readfirstlane') or op.startswith('v_readlane'): m['lane_read']=True
    return I(t,kind,rd,wr,**m)
def swap(op,a,b): return I(f'{op} {a}, {b}','valu',regs_of(a,b),regs_of(a,b),perm=True)
def salu(op,dst,*src):
    wr=regs_of(dst)
    if op.startswith('s_cmp') or op.startswith('s_bitcmp'):
        return I(f'{op} {fmt(dst)}, '+', '.join(fmt(x) for x in src),'salu',regs_of(dst,*src),['carry'],scc=True)
    i=I(f'{op} {fmt(dst)}, '+', '.join(fmt(x) for x in src),'salu',regs_of(*src),wr)
    i.meta['scc']=not (op.startswith('s_mov') or op.startswith('s_mul_i32') or op.startswith('s_cselect'))
    return i
def raw(text,kind='misc',rd=(),wr=(),**m): return I(text,kind,rd,wr,**m)
def label(n): return I(n+':','label')
def mfma(op,d,a,b,c,passes):
    return I(f'{op} {d}, {a}, {b}, {fmt(c)}','mfma',regs_of(a,b,c),regs_of(d),passes,ab=regs_of(a,b),c=regs_of(c),d=str(d),cstr=str(c))
def m16(d,a,b,c): return mfma('v_mfma_f32_16x16x32_bf16',d,a,b,c,4)
def m32(d,a,b,c): return mfma('v_mfma_f32_32x32x16_bf16',d,a,b,c,8)
def m32x8(d,a,b,c): return mfma('v_mfma_f32_32x32x8_bf16',d,a,b,c,8)
def smf(d,a,b,idx):
    return I(f'v_smfmac_f32_32x32x32_bf16 {d}, {a}, {b}, {idx}','mfma',regs_of(a,b,idx,d),regs_of(d),8,ab=regs_of(a,b,idx),c=regs_of(d),d=str(d),cstr=str(d))
def dsr(op,d,addr,off=0,src=None,private=False):
    assert 0<=off<65536,off
    return I(f'{op} {d}, {addr}'+(f' offset:{off}' if off else ''),'dsr',regs_of(addr),regs_of(d),src=src,private=private)
def dsw(op,addr,data,off=0):
    return I(f'{op} {addr}, {data}'+(f' offset:{off}' if off else ''),'dsw',regs_of(addr,data),[])
def bload(d,voff,srd,soff,off=0,flags='',tag=None):
    n=d.n; op={1:'buffer_load_dword',2:'buffer_load_dwordx2',4:'buffer_load_dwordx4'}[n]
    assert 0<=off<4096
    return I(f'{op} {d}, {voff}, {srd}, {fmt(soff)} offen'+(f' offset:{off}' if off else '')+(' '+flags if flags else ''),'vld',regs_of(voff,srd,soff),regs_of(d),tag=tag)
def bstore(d,voff,srd,soff,off=0,flags='',tag=None):
    n=d.n; op={1:'buffer_store_dword',2:'buffer_store_dwordx2',4:'buffer_store_dwordx4'}[n]
    assert 0<=off<4096
    return I(f'{op} {d}, {voff}, {srd}, {fmt(soff)} offen'+(f' offset:{off}' if off else '')+(' '+flags if flags else ''),'vst',regs_of(d,voff,srd,soff),[],tag=tag,wide=regs_of(d) if n>2 else [])
def batomic(d,voff,srd,soff,off=0):
    return I(f'buffer_atomic_add {d}, {voff}, {srd}, {fmt(soff)} offen'+(f' offset:{off}' if off else ''),'vst',regs_of(d,voff,srd,soff),[],tag=None,wide=[])
def dma(voff,srd,soff,off=0,flags='',tag=None,dst=None,private=False):
    assert 0<=off<4096
    return I(f'buffer_load_dwordx4 {voff}, {srd}, {fmt(soff)} offen'+(f' offset:{off}' if off else '')+(' '+flags if flags else '')+' lds','dma',regs_of(voff,srd,soff,'m0'),[],tag=tag,dst=dst,private=private)
def gdma(voff,base,off=0,flags='',tag=None,dst=None,private=False):
    assert -4096<=off<4096
    return I(f'global_load_lds_dwordx4 {voff}, {base}'+(f' offset:{off}' if off else '')+(' '+flags if flags else ''),'dma',regs_of(voff,base,'m0'),[],tag=tag,dst=dst,private=private)
def gload(d,voff,base,off=0,flags='',tag=None):
    op={1:'global_load_dword',2:'global_load_dwordx2',4:'global_load_dwordx4'}[d.n]
    assert -4096<=off<4096
    return I(f'{op} {d}, {voff}, {base}'+(f' offset:{off}' if off else '')+(' '+flags if flags else ''),'vld',regs_of(voff,base),regs_of(d),tag=tag)
def gstore(d,voff,base,off=0,flags='',tag=None):
    op={1:'global_store_dword',2:'global_store_dwordx2',4:'global_store_dwordx4'}[d.n]
    assert -4096<=off<4096
    return I(f'{op} {voff}, {d}, {base}'+(f' offset:{off}' if off else '')+(' '+flags if flags else ''),'vst',regs_of(d,voff,base),[],tag=tag,wide=regs_of(d) if d.n>2 else [])
def base_add(dst,src,off):
    a=salu('s_add_u32',dst[0],src[0],off); b=salu('s_addc_u32',dst[1],src[1],0)
    b.rd.append('carry'); a.wr.append('carry')
    return [a,b]
def waitfor(lg=(),lgall=False,vm=(),vmtags=(),vmall=False):
    return I('WAIT','waitfor',lg=set(regs_of(*lg)),lgall=lgall,vm=set(regs_of(*vm)),vmtags=set(vmtags),vmall=vmall)
def barrier(): return I('s_barrier','barrier')

VALUK=('valu','trans','dot')
def finalize(ins, verbose=True, name=''):
    out=[]; lgq=[]; vmq=[]
    lastw={}
    lastc={}
    lastst={}
    stats=dict(auto_wait=0,nops=0,nopstates=0,maxvm=0,maxlg=0)
    pos=0
    nbar=0
    blk_read={}
    dma_done={}
    tag_pending={}
    blk_owner={}
    lastscc=[None]
    def emit(i,states=1):
        nonlocal pos
        out.append(i); pos+=states
    def do_wait(nlg,nvm):
        parts=[]
        if nvm is not None:
            assert nvm<=63
            parts.append(f'vmcnt({nvm})')
            while len(vmq)>nvm:
                e=vmq.pop(0); t=e.meta.get('tag')
                if e.kind=='dma' and t is not None:
                    tag_pending[t]-=1
                    if tag_pending[t]==0: dma_done[t]=nbar
        if nlg is not None:
            nlg=min(nlg,15)
            parts.append(f'lgkmcnt({nlg})')
            while len(lgq)>nlg:
                e=lgq.pop(0); e.meta['done']=nbar
        if parts: emit(I('s_waitcnt '+' '.join(parts),'wait'))
    def need(q,pred):
        last=-1
        for k,e in enumerate(q):
            if pred(e): last=k
        return None if last<0 else len(q)-1-last
    for i in ins:
        k=i.kind
        if k=='label' or k=='comment': out.append(i); continue
        if k=='reset':
            continue
        if k=='waitfor':
            m=i.meta
            nlg=need(lgq,lambda e:m['lgall'] or any(r in m['lg'] for r in e.wr))
            nvm=need(vmq,lambda e:m['vmall'] or any(r in m['vm'] for r in e.wr) or (e.meta.get('tag') in m['vmtags']))
            do_wait(nlg,nvm); continue
        touched=set(i.rd)|set(i.wr)
        nlg=need(lgq,lambda e:any(r in touched for r in e.wr))
        nvm=need(vmq,lambda e:any((r in touched) and not (i.meta.get('tag')=='pf' and e.meta.get('tag')=='pf') for r in e.wr))
        if nlg is not None or nvm is not None:
            stats['auto_wait']+=1
            if verbose: print(f'[{name}] auto wait lg={nlg} vm={nvm} before: {i.text}')
            do_wait(nlg,nvm)
        if k in ('dsr','dsw') and len(lgq)>=15:
            stats['lgfull']=stats.get('lgfull',0)+1
            do_wait(11,None)
        req=0; why=None
        def chk(ppos,n,w):
            nonlocal req,why
            d=n-(pos-ppos-1)
            if d>req: req=d; why=w
        isv=k in VALUK
        for r in i.rd:
            if r not in lastw: continue
            p,w=lastw[r]
            if w.kind=='mfma':
                big={4:8,8:12,16:20}[w.passes]
                if k=='mfma':
                    if r in i.meta['ab']: chk(p,big,'mfma->ab')
                    elif i.meta['cstr']==w.meta['d'] and i.passes==w.passes: pass
                    else: chk(p,w.passes+2,'mfma->c')
                else: chk(p,big,'mfma->rd')
            elif w.kind in VALUK:
                if k=='mfma': chk(p,2,'valu->mfma')
                if w.kind=='trans' and isv and k!='trans': chk(p,1,'trans')
                if w.kind=='dot':
                    if k=='dot' and i.meta['op']==w.meta['op'] and r in i.meta['dotc'] and i.rd.count(r)==1: pass
                    else: chk(p,3,'dot')
                if i.meta.get('perm'): chk(p,2,'perm')
                if i.meta.get('lane_read') and r[0]=='v' and r!='vcc': chk(p,1,'readlane')
                if r[0]=='s' or r=='vcc':
                    if isv: chk(p,2,'vsgpr->valu')
                    elif k in ('vld','vst','dma'): chk(p,5,'vsgpr->vmem')
                    else: chk(p,1,'vsgpr->salu')
            elif w.kind=='salu' and r=='m0' and k=='dma': chk(p,1,'m0')
        for r in i.wr:
            if r in lastw:
                p,w=lastw[r]
                if w.kind=='mfma':
                    if k=='mfma':
                        if not (i.meta['d']==w.meta['d'] and i.passes==w.passes): chk(p,w.passes+2,'mfma waw')
                    else: chk(p,{4:8,8:12,16:20}[w.passes],'mfma->wr')
                elif w.kind=='dot' and not (k=='dot' and i.meta['op']==w.meta['op']): chk(p,3,'dot waw')
            if r in lastc and isv: chk(lastc[r][0],lastc[r][1]-1,'c war')
            if r in lastst: chk(lastst[r],2,'store war')
        if req>0:
            stats['nops']+=1; stats['nopstates']+=req
            if verbose>1: print(f'[{name}] nop {req} ({why}) before: {i.text}')
            while req>0:
                n=min(req,16); emit(I(f's_nop {n-1}','nop'),n); req-=n
        if k=='dsr' and i.meta.get('src') is not None:
            tag,blks=i.meta['src']
            assert tag in dma_done and tag_pending[tag]==0, f'read of unfinished {tag}: {i.text}'
            if not i.meta['private']: assert dma_done[tag]<nbar, f'read of {tag} without barrier: {i.text}'
            for b in blks:
                assert blk_owner.get(b)==tag or i.meta['private'], f'block {b} owner {blk_owner.get(b)} != {tag}'
                blk_read.setdefault(b,[]).append(i)
        if k=='dma':
            t=i.meta.get('tag')
            if t is not None: tag_pending[t]=tag_pending.get(t,0)+1
            for b in (i.meta.get('dst') or ()):
                if blk_owner.get(b)!=t:
                    for e in blk_read.get(b,()):
                        assert 'done' in e.meta and (e.meta['done']<nbar or i.meta['private']), f'dma {t} overwrites block {b} still read: {e.text}'
                    blk_read[b]=[]
                    blk_owner[b]=t
        if 'carry' in i.rd: assert lastscc[0] is lastw['carry'][1], f'scc clobbered before {i.text} by {lastscc[0]}'
        if i.meta.get('scc'): lastscc[0]=i
        ppos=pos
        emit(i)
        if k=='barrier': nbar+=1
        if k in ('dsr','dsw'):
            lgq.append(i); stats['maxlg']=max(stats['maxlg'],len(lgq))
        if k in ('vld','vst','dma'):
            vmq.append(i); stats['maxvm']=max(stats['maxvm'],len(vmq))
            assert len(vmq)<=63, 'vmcnt overflow'
        for r in i.wr:
            lastw[r]=(ppos,i); lastc.pop(r,None)
        if k=='mfma':
            for r in i.meta['c']: lastc[r]=(ppos,i.passes)
        if k=='vst':
            for r in i.meta['wide']: lastst[r]=ppos
    if verbose: print(f'[{name}]',stats,'ninstr',len(out))
    return out

def check_order(ins):
    def deps(lst):
        lw={}; d={}
        for i in lst:
            d[id(i)]=(tuple(lw.get(r) for r in i.rd if r!='carry'),tuple(lw.get(r) for r in i.wr if r!='carry'))
            for r in i.wr: lw[r]=id(i)
        return d
    a=deps(ins); b=deps(sorted(ins,key=lambda i:i.meta['seq']))
    byid={id(i):i for i in ins}
    bad=0
    for i in ins:
        if a[id(i)]!=b[id(i)]:
            bad+=1
            if bad<10:
                print('ORDER VIOLATION',i.meta['seq'],i.text)
                for x,y in zip(a[id(i)][0]+a[id(i)][1],b[id(i)][0]+b[id(i)][1]):
                    if x!=y: print('    got',byid.get(x),'want',byid.get(y)); break
    assert bad==0, f'{bad} order violations'
```

```python
import sys, struct, contextlib
from asmlib import *

OPT=dict(stop='', stamps=0, pf=1, dmagap=4, look=13, stgap=24, n0=12, v=1, forcefb=0, astgap=7, f2bar=3, f2poll=60, f2chk=66, dbgout=0)
for a in sys.argv[2:]:
    k,v=a.split('='); OPT[k]=int(v) if v.lstrip('-').isdigit() else v
NAME='recurrent_scan__mha_block__glu_gated_reglu__prompt_kernel'

WS_QKV=0; SL=81920
WS_P=0x800000; WS_PX=0x2800000; WS_O=0x2C00000; WS_OX=0x2E00000; WS_F3=0x2E40000; WS_R2=0x2E60000; WS_STAMP=0x2F00000
OOB=0x80000000
LDS_OOB=0x30000
def f32(x): return struct.unpack('<I',struct.pack('<f',x))[0]
QSCALE=18**-0.5*1.4426950408889634
MARGIN=80.0

sX,sWQ,sWO,sWG,sWU,sWD,sOUT,sDBG,sWS=[S(4+4*n,4) for n in range(9)]
sW,sW1K,sI,sJ,sH,sIDX,sT0,sT1,sSO,sSO2=[S(40+n) for n in range(10)]
sLO,sHI,sONES,sW7K,sW5K=[S(50+n) for n in range(5)]
sSC=[S(55),S(56),S(57)]
sW18K,sJ1,sXC,sM8,sT2,sT3=[S(58+n) for n in range(6)]
sJ128,sJH=S(3),S(94); sSO3=S(95)
sBD,sBL,sPC=S(96,2),S(98,2),S(100,2)
nstamp=[0]
def stamp(name):
    if not OPT['stamps']: return
    n=nstamp[0]; nstamp[0]+=1
    assert n<15
    e(raw(f'{"s_memrealtime" if OPT["stamps"]==1 else "s_memtime"} s[{64+2*n}:{65+2*n}]','misc'))
    print('stamp',n,name)

vL=V(0)
vT=[V(1+n) for n in range(8)]
vR=[V(9),V(10)]
vM=[V(11),V(12)]
vPF=V(13)
vGF,vGH,vDF,vDH=[V(14+n) for n in range(4)]
vTR=[[V(18+3*q+n) for n in range(3)] for q in range(4)]
vQK=[V(30+n) for n in range(7)]
vQM=[V(37+n) for n in range(3)]; vQE=[V(40+n) for n in range(3)]
vSM,vSE0,vSE1,vSCX=[V(43+n) for n in range(4)]
vPS,vPX=V(47),V(48)
vF1,vONE=V(49),V(50)
vPG,vF3,vPOLL=V(51),V(52),V(53)
vCT=[V(248+n) for n in range(8)]
XC1=V(56,72)
BANK=[V(128,64),V(192,64)]
XC0=A(0,72); HH=A(72,72); FR=A(144,64)
vKM,vKE=V(30),V(31); vVA=[V(32+n) for n in range(4)]
vKV,vWO,vWOE,vWX,vWXE=[V(36+n) for n in range(5)]
vPL,vPLX,vOL,vOLX,vOS,vOSX=[V(41+n) for n in range(6)]
vIDX,vF3L=V(54),V(55)
vXO,vXOX,vR2,vZ=V(11),V(12),V(9),V(10)
QE=[V(14,2),V(16,2)]
QM=[A(0,4),A(4,4)]
OO=[A(8,16),A(24,16)]
KM=[A(40+4*n,4) for n in range(3)]; KE=[A(52+2*n,2) for n in range(3)]
VV=[A(208,8),A(216,8)]
XR=A(224,10)
PART=[A(60+4*n,4) for n in range(32)]
PARTX=[A(188+2*n,2) for n in range(10)]+[A(236+2*n,2) for n in range(6)]
SB=[V(176+16*n,16) for n in range(5)]

P=[]
cur=[-10**6,0]
sink=[None]
def setseq(i,gap=None):
    if 'seq' not in i.meta:
        cur[1]+=1; i.meta['seq']=(cur[0] if gap is None else gap,cur[1])
    return i
def e(*x):
    for i in x:
        if sink[0] is not None: sink[0].append(i)
        else: P.append(setseq(i)); i.meta['at']=cur[0]
@contextlib.contextmanager
def collect():
    o=[]; old=sink[0]; sink[0]=o
    yield o
    sink[0]=old
fifo=dict(dma=[],st=[],ld=[],ctr=[],epi=[],low=[])
def push(q,after,ops,logical=None):
    for o in ops: fifo[q].append((after,setseq(o,logical)))
def masked(dst,val,cmpop,a,b,tmp):
    e(valu(cmpop,'vcc',a,b), valu('v_mov_b32',tmp,OOB), valu('v_cndmask_b32',dst,tmp,val))

def prologue():
    e(salu('s_cmp_ge_u32',S(2),256), raw('s_cbranch_scc0 L_go','misc'), raw('s_endpgm','misc'), label('L_go'))
    stamp('start')
    for srd,off in ((sX,0),(sWG,32),(sWU,40),(sWQ,8),(sWO,16),(sWD,48),(sOUT,56),(sDBG,64),(sWS,72)):
        e(raw(f's_load_dwordx2 {srd[0:2]}, s[0:1], {off}','misc'))
    e(valu('v_lshrrev_b32',vT[0],6,V(0)), valu('v_and_b32',vL,63,V(0)))
    e(valu('v_readfirstlane_b32',sW,vT[0]))
    e(salu('s_and_b32',sXC,S(2),7), salu('s_lshr_b32',sIDX,S(2),3))
    e(salu('s_lshr_b32',sM8,sIDX,2), salu('s_lshl_b32',sI,sM8,1), salu('s_and_b32',sT2,sXC,1), salu('s_add_u32',sI,sI,sT2))
    e(salu('s_mul_i32',sW18K,sW,18432))
    vx0,vx1,row,t=vT[0],vT[1],vT[2],vT[3]
    e(salu('s_lshl_b32',sT2,sI,2), salu('s_add_u32',sT2,sT2,sW), salu('s_lshl_b32',sT2,sT2,5))
    e(valu('v_lshrrev_b32',row,3,vL), valu('v_lshrrev_b32',t,4,vL), valu('v_and_b32',vx0,7,vL), valu('v_xor_b32',vx0,vx0,t),
      valu('v_xor_b32',vx1,4,vx0), valu('v_add_u32',t,sT2,row), valu('v_mul_u32_u24',t,1152,t),
      valu('v_lshl_add_u32',vx0,vx0,4,t), valu('v_lshl_add_u32',vx1,vx1,4,t), valu('v_add_u32',vx1,8*1152-1024,vx1))
    e(salu('s_lshr_b32',sJ,sXC,1), salu('s_lshl_b32',sJ,sJ,2), salu('s_and_b32',sT2,sIDX,3), salu('s_add_u32',sJ,sJ,sT2))
    e(salu('s_lshl_b32',sH,sXC,2), salu('s_add_u32',sH,sH,sT2), salu('s_and_b32',sJ1,sJ,1))
    e(salu('s_lshl_b32',sW1K,sW,10), salu('s_mul_i32',sW7K,sW,7168), salu('s_mul_i32',sW5K,sW,5120))
    for srd,n in ((sX,2048*1152),(sWQ,576*3456),(sWO,576*1152),(sWG,576*9216),(sWU,576*9216),(sWD,4608*1152),(sOUT,2048*1152),(sDBG,256),(sWS,0x10000000)):
        e(salu('s_mov_b32',srd[2],n), salu('s_mov_b32',srd[3],0x20000))
    e(salu('s_mov_b32',sLO,0x3f80), salu('s_mov_b32',sHI,0x3f800000), salu('s_mov_b32',sONES,0x3f803f80))
    e(salu('s_lshl_b32',sJ128,sJ1,7), salu('s_lshl_b32',sJH,sJ1,9), salu('s_sub_u32',sJH,512,sJH))
    e(salu('s_lshl_b32',sT0,sM8,2), salu('s_add_u32',sT0,sT0,sW), salu('s_mul_i32',sT0,sT0,18*9216), salu('s_mul_i32',sT1,sJ,576), salu('s_and_b32',sT1,sT1,-128), salu('s_add_u32',sT0,sT0,sT1),
      valu('v_mul_u32_u24',t,9216,vL), valu('v_add_u32',t,sT0,t))
    masked(vPG,t,'v_cmp_gt_u32',18,vL,row)
    e(raw('s_waitcnt lgkmcnt(0)','misc'))
def xdma(tt,l):
    base=sX[0:2] if tt==0 else sBL
    return [salu('s_add_u32','m0',sW18K,tt*73728+l*1920), gdma(vT[0],base,l*128,tag=('x',tt,l),private=True), gdma(vT[1],base,l*128+1024,tag=('x',tt,l),private=True)]
def pf_gu(c):
    if not OPT['pf']: return []
    if c<4: return [bload(vPF,vPG,s,sJ128,c*128,tag='pf') for s in (sWG,sWU)]
    return [bload(vPF,vPG,s,sJH,0,tag='pf') for s in (sWG,sWU)]

def lane_rp(rp,p,t):
    e(valu('v_lshrrev_b32',rp,3,vL), valu('v_and_b32',t,6,rp), valu('v_and_b32',p,7,vL), valu('v_xor_b32',p,p,t))
def addr_early():
    rp,p,t,u,kA=vT[2],vT[3],vT[4],vT[5],vT[6]
    lane_rp(rp,p,t)
    e(salu('s_and_b32',sT0,sW,1), salu('s_lshl_b32',sT0,sT0,4), salu('s_lshr_b32',sT1,sW,1), salu('s_lshl_b32',sT1,sT1,2), salu('s_add_u32',sT0,sT0,sT1))
    e(valu('v_and_b32',t,4,rp), valu('v_add_u32',kA,rp,t), valu('v_add_u32',kA,sT0,kA))
    e(salu('s_mul_i32',sT1,sJ,288), salu('s_lshl_b32',sT2,sJ1,5), salu('s_add_u32',sT2,sT2,sT1))
    e(salu('s_lshl_b32',sT3,sJ1,8), salu('s_sub_u32',sT3,256,sT3), salu('s_add_u32',sT3,sT3,sT1))
    e(salu('s_lshl_b32',sT0,sT2,1), valu('v_mul_u32_u24',t,9216,kA), valu('v_lshl_add_u32',t,p,4,t), valu('v_add_u32',vGF,sT0,t))
    e(salu('s_lshl_b32',sT0,sT3,1), valu('v_lshrrev_b32',t,2,p), valu('v_lshl_add_u32',t,t,5,kA), valu('v_mul_u32_u24',t,9216,t),
      valu('v_and_b32',u,3,p), valu('v_lshl_add_u32',t,u,4,t), valu('v_add_u32',vGH,sT0,t))
    e(salu('s_lshl_b32',sT0,sW,3), valu('v_add_u32',t,sT0,rp), valu('v_add_u32',u,sT2,t), valu('v_mul_u32_u24',u,1152,u), valu('v_lshl_add_u32',vDF,p,4,u),
      valu('v_add_u32',u,sT3,t), valu('v_mul_u32_u24',u,1152,u), valu('v_lshl_add_u32',vDH,p,4,u))
    g,r4,c,b=vT[2],vT[3],vT[6],vT[7]
    e(valu('v_bfe_u32',r4,vL,2,3), valu('v_and_b32',c,3,vL), valu('v_lshrrev_b32',g,5,vL),
      valu('v_lshlrev_b32',b,10,g), valu('v_lshl_add_u32',b,r4,7,b), valu('v_lshl_add_u32',b,c,3,b), valu('v_lshrrev_b32',t,1,r4))
    for q in range(4):
        e(valu('v_xor_b32',u,q,t), valu('v_lshl_add_u32',vTR[q][0],u,5,b), valu('v_add_u32',vTR[q][1],0x10000,vTR[q][0]), valu('v_add_u32',vTR[q][2],0x20000,vTR[q][0]))
    e(salu('s_mul_i32',sT0,sJ,216), salu('s_and_b32',sT0,sT0,-16), salu('s_mul_i32',sT1,sW,32*3456), salu('s_add_u32',sT0,sT0,sT1))
    for q in range(7):
        pp,rr,k=vT[2],vT[3],vT[6]
        e(valu('v_add_u32',pp,64*q,vL), valu('v_mul_u32_u24',rr,4682,pp), valu('v_lshrrev_b32',rr,16,rr),
          valu('v_mul_u32_u24',t,14,rr), valu('v_sub_u32',pp,pp,t),
          valu('v_and_b32',t,12,rr), valu('v_and_b32',k,3,rr), valu('v_lshl_add_u32',k,t,1,k), valu('v_lshrrev_b32',t,4,rr), valu('v_lshl_add_u32',k,t,2,k),
          valu('v_mul_u32_u24',k,3456,k), valu('v_lshl_add_u32',k,pp,4,k), valu('v_add_u32',vQK[q],sT0,k))
        if q%4: e(valu('v_subrev_u32',vQK[q],1024*(q%4),vQK[q]))
def extpos(dst,key,t):
    e(valu('v_and_b32',dst,7,key), valu('v_bfe_u32',t,key,4,1), valu('v_lshl_add_u32',dst,t,3,dst),
      valu('v_bfe_u32',t,key,3,1), valu('v_xor_b32',t,1,t), valu('v_lshl_add_u32',dst,t,4,dst))
def addr_mid():
    t,u,c=vT[4],vT[5],vT[6]
    e(valu('v_and_b32',c,3,vL), salu('s_lshl_b32',sT0,sJ1,3), valu('v_lshrrev_b32',t,2,vL), valu('v_mul_u32_u24',t,224,t), valu('v_add_u32',t,sT0,t),
      valu('v_lshl_add_u32',vQM[0],c,3,t), valu('v_mul_u32_u24',u,72,c), valu('v_add3_u32',vQE[0],t,u,32))
    for n in (1,2): e(valu('v_add_u32',vQM[n],n*0x10000,vQM[0]), valu('v_add_u32',vQE[n],n*0x10000,vQE[0]))
def addr_mid2():
    t,u,key,hf=vT[4],vT[5],vT[2],vT[3]
    e(salu('s_lshl_b32',sT0,sI,2), salu('s_add_u32',sT0,sT0,sW), salu('s_mul_i32',sT0,sT0,1280), salu('s_mul_i32',sT1,sJ,6*SL), salu('s_add_u32',sT0,sT0,sT1))
    e(valu('v_and_b32',key,31,vL), valu('v_lshrrev_b32',hf,5,vL), valu('v_lshlrev_b32',t,2,hf), valu('v_xor_b32',t,t,vL), valu('v_lshlrev_b32',t,4,t), valu('v_add_u32',vSM,sT0,t))
    extpos(u,key,t)
    e(valu('v_lshlrev_b32',u,3,u), valu('v_add_u32',u,sT0,u), valu('v_add_u32',u,1024,u), valu('v_mul_u32_u24',t,4*SL,hf), valu('v_add_u32',vSE0,u,t),
      valu('v_lshl_add_u32',vSE1,hf,31,u))
    e(salu('s_mul_i32',sT0,sJ,6), valu('v_lshrrev_b32',t,4,vL), valu('v_lshl_add_u32',t,t,1,sT0), valu('v_mov_b32',u,f32(QSCALE)), valu('v_cmp_gt_u32','vcc',32,t), valu('v_cndmask_b32',vSCX,1.0,u))
    for p_ in range(3): e(valu('v_readlane_b32',sSC[p_],vSCX,16*p_))
    e(salu('s_lshl_b32',sT0,sI,2), salu('s_add_u32',sT0,sT0,sW), salu('s_lshl_b32',sT1,sT0,9), salu('s_add_u32',sT1,sT1,sJ), salu('s_lshl_b32',sT1,sT1,10),
      valu('v_lshl_add_u32',vPS,vL,4,sT1),
      salu('s_lshl_b32',sT1,sT0,7), salu('s_add_u32',sT1,sT1,sJ), salu('s_lshl_b32',sT1,sT1,9), valu('v_lshl_add_u32',vPX,vL,3,sT1))
    e(valu('v_add_u32',t,sW,vL), valu('v_lshlrev_b32',vF1,12,t), valu('v_mov_b32',vONE,1))
    e(salu('s_lshl_b32',sT1,sM8,2), salu('s_add_u32',sT1,sT1,sW), salu('s_lshl_b32',sT1,sT1,5), salu('s_add_u32',sT1,sT1,sH), salu('s_lshl_b32',sT1,sT1,7), salu('s_add_u32',sT1,sT1,WS_F3),
      valu('v_mov_b32',t,sT1))
    masked(vF3,t,'v_cmp_eq_u32',0,vL,u)
    e(valu('v_mov_b32',t,0), bstore(t,vF3,sWS,0,flags='sc1',tag='qkvst'))
    e(valu('v_and_b32',key,16,vL), valu('v_cmp_eq_u32','vcc',0,key), valu('v_cndmask_b32',hf,vR[1],vR[0]), valu('v_mul_f32',hf,hf,hf),
      salu('s_lshl_b32',sT0,sT0,7), salu('s_add_u32',sT0,sT0,WS_R2), valu('v_lshl_add_u32',key,vL,2,sT0), salu('s_lshl_b32',sT1,sJ,6), valu('v_add_u32',t,sT1,vL))
    masked(key,key,'v_cmp_gt_u32',32,t,u)
    e(bstore(hf,key,sWS,0,flags='sc1',tag='qkvst'))
def pf_q_ops():
    if not OPT['pf']: return
    t,u,r=vT[4],vT[5],vT[6]
    e(valu('v_mul_u32_u24',t,3641,vL), valu('v_lshrrev_b32',t,16,t), valu('v_mul_u32_u24',u,18,t), valu('v_sub_u32',u,vL,u), valu('v_mul_u32_u24',u,3456,u), valu('v_lshl_add_u32',u,t,7,u),
      salu('s_lshl_b32',sT0,sM8,2), salu('s_add_u32',sT0,sT0,sW), salu('s_mul_i32',sT0,sT0,18*3456), salu('s_mul_i32',sT1,sJ,216), salu('s_and_b32',sT1,sT1,-128), salu('s_add_u32',sT0,sT0,sT1),
      valu('v_add_u32',u,sT0,u))
    masked(u,u,'v_cmp_gt_u32',54,vL,r)
    e(bload(vPF,u,sWQ,0,tag='pf'))
def pf_d_ops():
    if not OPT['pf']: return
    t,u,r=vT[4],vT[5],vT[6]
    e(salu('s_lshl_b32',sT0,sM8,2), salu('s_add_u32',sT0,sT0,sW), salu('s_mul_i32',sT0,sT0,81*128), salu('s_mul_i32',sT1,sJ,288*1152), salu('s_add_u32',sT0,sT0,sT1),
      valu('v_lshl_add_u32',t,vL,7,sT0), valu('v_add_u32',u,8192,t))
    masked(u,u,'v_cmp_gt_u32',17,vL,r)
    e(bload(vPF,t,sWD,0,tag='pf'), bload(vPF,u,sWD,0,tag='pf'))
def pf_code():
    if not OPT['pf']: return
    t=vT[4]; a=V(6,2)
    e(raw('s_getpc_b64 s[100:101]','salu',[],['s100','s101']), label('L_pc'),
      salu('s_lshl_b32',sT0,sIDX,2), salu('s_add_u32',sT0,sT0,sW), valu('v_and_b32',t,7,vL), valu('v_lshl_add_u32',t,t,7,sT0), valu('v_lshlrev_b32',t,7,t),
      raw(f'v_min_u32 {t}, L_codeend-L_pc-4, {t}','valu',t.regs(),t.regs()),
      valu('v_mov_b32',a[1],sPC[1]), raw(f'v_add_co_u32 {a[0]}, vcc, {sPC[0]}, {t}','valu',t.regs()+['s100'],a[0].regs()+['vcc']),
      raw(f'v_addc_co_u32 {a[1]}, vcc, 0, {a[1]}, vcc','valu',a[1].regs()+['vcc'],a[1].regs()+['vcc']),
      I(f'global_load_dword {vPF}, {a}, off','vld',a.regs(),vPF.regs(),tag='pf'))

def stats_ops(src,s,acc):
    o=[]
    for d in range(4):
        x=src[4*s+d]
        first=(s==0 and d<2)
        o.append(valu('v_dot2_f32_bf16',acc[d&1],x,sONES,0 if first else acc[d&1]))
        o.append(valu('v_dot2_f32_bf16',acc[2+(d&1)],x,x,0 if first else acc[2+(d&1)]))
    return o
def stats_final(tt,acc):
    a,b=acc[0],acc[2]
    o=[valu('v_add_f32',a,acc[0],acc[1]), valu('v_add_f32',b,acc[2],acc[3])]
    for op in ('v_permlane16_swap_b32','v_permlane32_swap_b32'):
        o+=[valu('v_mov_b32',acc[1],a), valu('v_mov_b32',acc[3],b), swap(op,a,acc[1]), swap(op,b,acc[3]),
            valu('v_add_f32',a,a,acc[1]), valu('v_add_f32',b,b,acc[3])]
    o+=[valu('v_mul_f32',a,f32(1/576),a), valu('v_mul_f32',b,f32(1/576),b), valu('v_fma_f32',b,'-'+str(a),a,b), valu('v_max_f32',b,0,b),
        valu('v_cvt_pk_bf16_f32',a,b,a), valu('v_and_b32',vM[tt],0xffff0000,a)]
    o2=[valu('v_lshlrev_b32',b,16,a),
        valu('v_add_f32',b,f32(1e-5),b), valu('v_cvt_pk_bf16_f32',b,b,b), valu('v_lshlrev_b32',b,16,b),
        valu('v_sqrt_f32',b,b), valu('v_cvt_pk_bf16_f32',b,b,b), valu('v_lshlrev_b32',b,16,b), valu('v_rcp_f32',vR[tt],b)]
    return o,o2
def centre_ops(src,s,tt,dstA=None,plain=False):
    o=[]
    for d in range(4):
        x=src[4*s+d]
        if plain:
            o+=[valu('v_lshlrev_b32',vCT[0],16,x), valu('v_and_b32',x,0xffff0000,x), valu('v_sub_f32',vCT[0],vCT[0],vM[tt]), valu('v_sub_f32',x,x,vM[tt]), valu('v_cvt_pk_bf16_f32',x,vCT[0],x)]
            continue
        o.append(valu('v_dot2_f32_bf16',vCT[2*d],x,sLO,vM[tt],mods='neg_lo:[0,0,1]'))
        o.append(valu('v_dot2_f32_bf16',vCT[2*d+1],x,sHI,vM[tt],mods='neg_lo:[0,0,1]'))
    if plain: return o
    for d in range(4):
        o.append(valu('v_cvt_pk_bf16_f32',src[4*s+d],vCT[2*d],vCT[2*d+1]))
    if dstA is not None:
        for d in range(4): o.append(valu('v_accvgpr_write_b32',dstA[4*s+d],src[4*s+d]))
    return o

class Item:
    def __init__(s,name,n,mk): s.name=name; s.n=n; s.mk=mk; s.addr=None; s.first=None; s.last=None
    def blks(s): return list(range(s.addr//4096,s.addr//4096+s.n))
def blk_item(name,voff,srd,soff,buf=False):
    def mk(it):
        o=[salu('s_add_u32','m0',sW1K,it.addr)]
        if buf: return o+[salu('s_mov_b32',sSO,soff), dma(voff,srd,sSO,tag=it.name,dst=it.blks())]
        return o+base_add(sBD,srd,soff)+[gdma(voff,sBD,tag=it.name,dst=it.blks())]
    return Item(name,1,mk)
def qkv_item(a):
    def mk(it):
        o=[salu('s_mov_b32',sSO,a*128*3456)] if a==4 else base_add(sBD,sWQ,a*128*3456)
        for q in range(7):
            if q%4==0: o.append(salu('s_add_u32','m0',sW7K,it.addr+q*1024))
            if a==4: o.append(dma(vQK[q],sWQ,sSO,(q%4)*1024,tag=it.name,dst=it.blks()))
            else: o.append(gdma(vQK[q],sBD,(q%4)*1024,tag=it.name,dst=it.blks()))
        return o
    return Item(('q',a),7,mk)
def kv_item(sg):
    def mk(it):
        o=[]
        for q in range(5):
            if q%4==0: o+=[salu('s_add_u32','m0',sW5K,it.addr+q*1024)]+base_add(sBD,sWS,WS_QKV+sg*10240+q*1024)
            o.append(gdma(vKV,sBD,(q%4)*1024,flags='sc1',tag=it.name,dst=it.blks())); o[-1].rd.append('ok_f1')
        return o
    return Item(('kv',sg),5,mk)

class Group:
    def __init__(s): s.m=[]; s.rd=[]; s.bar=False; s.fr=[]
frp=[0]
def newfrag():
    f=FR[frp[0]:frp[0]+4]; frp[0]=(frp[0]+4)%FR.n; return f
def tr_read(f,u,it,seg):
    return dsr('ds_read_b64_tr_b16',f[2*u:2*u+2],vTR[seg][it.addr>>16],(it.addr&0xffff)+u*2048,src=(it.name,it.blks()))
def xc(tt,s): return (XC0 if tt==0 else XC1)[4*s:4*s+4]
def hfrag(k,tt): return HH[8*k+4*tt:8*k+4*tt+4]

items=[]; groups=[]; events=[]
def mm_group(srcs,accs,bfun,bar=False):
    g=Group(); g.bar=bar
    for it,seg,k in srcs:
        f=newfrag(); g.fr.append(f)
        for u in range(2): g.rd.append((it,lambda it,f=f,u=u,seg=seg: tr_read(f,u,it,seg)))
    for tt in range(2):
        for (it,seg,k),f in zip(srcs,g.fr):
            g.m.append(m16(accs[tt],f,bfun(k,tt),0 if k==0 else accs[tt]))
    groups.append(g); return len(groups)-1

def h_epilogue(bank,q,kout,half):
    gt=[bank[16*q+4*tt:16*q+4*tt+4] for tt in range(2)]; up=[bank[16*q+8+4*tt:16*q+12+4*tt] for tt in range(2)]
    o=[]
    for tt in range(2):
        for r in range(4): o.append(valu('v_max_f32',gt[tt][r],0,gt[tt][r]))
    for tt in range(2):
        for r in range(4): o.append(valu('v_mul_f32',up[tt][r],gt[tt][r],up[tt][r]))
        for d in range(2): o.append(valu('v_cvt_pk_bf16_f32',gt[tt][d],up[tt][2*d],up[tt][2*d+1]))
        for d in range(2): o.append(valu('v_accvgpr_write_b32',hfrag(kout,tt)[2*half+d],gt[tt][d]))
    return o
def build_chunk(c,bank):
    for st in range(6):
        G=[blk_item(('g',c,3*st+n),vGF,sWG,(3*st+n)*32*9216+c*128) for n in range(3)]
        U=[blk_item(('u',c,3*st+n),vGF,sWU,(3*st+n)*32*9216+c*128) for n in range(3)]
        items.extend(G+U)
        for q in range(4):
            mm_group([(G[n],q,3*st+n) for n in range(3)],[bank[16*q+4*tt:16*q+4*tt+4] for tt in range(2)],lambda k,tt:xc(tt,k),bar=(q==0))
            gi=mm_group([(U[n],q,3*st+n) for n in range(3)],[bank[16*q+8+4*tt:16*q+12+4*tt] for tt in range(2)],lambda k,tt:xc(tt,k))
            if st==5: events.append((gi,h_epilogue(bank,q,2*c+(q>>1),q&1)))
def build_half(bank):
    for st in range(3):
        G=[blk_item(('gh',3*st+n),vGH,sWG,(3*st+n)*64*9216) for n in range(3)]
        U=[blk_item(('uh',3*st+n),vGH,sWU,(3*st+n)*64*9216) for n in range(3)]
        items.extend(G+U)
        first=True
        for q in range(2):
            for M,o in ((G,0),(U,8)):
                for hh in range(2):
                    ks=[6*st+3*hh+n for n in range(3)]
                    gi=mm_group([(M[(k-6*st)>>1],2*(k&1)+q,k) for k in ks],[bank[16*q+o+4*tt:16*q+o+4+4*tt] for tt in range(2)],lambda k,tt:xc(tt,k),bar=first)
                    first=False
            if st==2: events.append((gi,h_epilogue(bank,q,8,q)))
def build_qkv(bank):
    for a in range(5):
        it=qkv_item(a); items.append(it)
        first=True
        for k0 in range(0,4 if a<4 else 2,2):
            for t in range(7):
                g=Group(); g.bar=first; first=False
                for kk in (k0,k0+1):
                    f=newfrag(); g.fr.append(f)
                    for u in range(2):
                        def rd(it,f=f,u=u,kk=kk,t=t):
                            ad=it.addr+kk*7168+u*3584+(0 if t==6 else 72*(t>>1)+40*(t&1))
                            return dsr('ds_read_b64_tr_b16',f[2*u:2*u+2],(vQE if t==6 else vQM)[ad>>16],ad&0xffff,src=(it.name,it.blks()))
                        g.rd.append((it,rd))
                for tt in range(2):
                    acc=bank[8*t+4*tt:8*t+4*tt+4]
                    for n,kk in enumerate((k0,k0+1)):
                        k=4*a+kk
                        g.m.append(m16(acc,g.fr[n],xc(tt,k),0 if k==0 else acc))
                groups.append(g)
                if a==4: events.append((len(groups)-1,qkv_epilogue(bank,t)))
def st_pair(o,data,voff,soff,tag):
    a=salu('s_mov_b32',sSO2,soff); b=bstore(data,voff,sWS,sSO2,flags='sc1',tag=tag)
    dep=[x for x in o if x.kind=='valu'][-1]
    a.meta['q']='st'; b.meta['q']='st'; b.meta['dep']=dep
    o+=[a,b]
def qkv_epilogue(bank,t):
    o=[]
    sc=[bank[56],bank[57]]
    if t==6: o+=[valu('v_mul_f32',sc[tt],vSCX,vR[tt]) for tt in range(2)]
    elif t%2==0: o+=[valu('v_mul_f32',sc[tt],sSC[t>>1],vR[tt]) for tt in range(2)]
    a=bank[8*t:8*t+8]
    for tt in range(2):
        for r in range(4): o.append(valu('v_mul_f32',a[4*tt+r],sc[tt],a[4*tt+r]))
    if t<6:
        o+=[valu('v_cvt_pk_bf16_f32',a[0],a[0],a[1]), valu('v_cvt_pk_bf16_f32',a[1],a[2],a[3]), valu('v_cvt_pk_bf16_f32',a[2],a[4],a[5]), valu('v_cvt_pk_bf16_f32',a[3],a[6],a[7]),
            swap('v_permlane16_swap_b32',a[0],a[2]), swap('v_permlane16_swap_b32',a[1],a[3])]
        st_pair(o,a[0:4],vSM,WS_QKV+t*SL,'qkvst')
    else:
        o+=[valu('v_cvt_pk_bf16_f32',a[0],a[0],a[1]), valu('v_cvt_pk_bf16_f32',a[2],a[2],a[3]), valu('v_cvt_pk_bf16_f32',a[4],a[4],a[5]), valu('v_cvt_pk_bf16_f32',a[6],a[6],a[7])]
        o+=[valu('v_mov_b32',a[n],sONES) for n in (1,3,5,7)]
        o+=[swap('v_permlane16_swap_b32',a[0],a[4]), swap('v_permlane16_swap_b32',a[2],a[6])]
        for n,(vo,sl) in enumerate(((vSE0,0),(vSE0,1),(vSE1,2),(vSE1,3))):
            st_pair(o,a[2*n:2*n+2],vo,WS_QKV+sl*SL,'qkvst')
    return o
pool=[0]
def build_down():
    ntr=0
    for c in range(9):
        acc=V(192 if c==0 else 128+32*((c+1)%2),32)
        for tr in range(3):
            B=[blk_item(('d',c,k),vDF if k<8 else vDH,sWD,(k*32*1152 if k<8 else 0)+c*128) for k in range(3*tr,3*tr+3)]
            items.extend(B)
            for q in range(4):
                gi=mm_group([(B[n],q,3*tr+n) for n in range(3)],[acc[16*tt+4*q:16*tt+4*q+4] for tt in range(2)],hfrag,bar=(q==0 and ntr%2==0))
                if tr==2 and q%2==1:
                    o=[]
                    for tt in range(2):
                        a=acc[16*tt+4*(q-1):16*tt+4*(q-1)+8]
                        d4=XC1[pool[0]:pool[0]+4]; pool[0]=(pool[0]+4)%72
                        o+=[valu('v_cvt_pk_bf16_f32',d4[d],a[2*d],a[2*d+1]) for d in range(4)]
                        if c<8: st_pair(o,d4,vPS,WS_P+(tt*16+c*2+(q>>1))*16384,'pst')
                        else:
                            for z in range(2): st_pair(o,d4[2*z:2*z+2],vPX,WS_PX+(tt*4+q-1+z)*8192,'pst')
                    events.append((gi,o))
            ntr+=1

marks={}
def build_ffn():
    marks['c0']=len(groups); build_chunk(0,BANK[0])
    marks['c1']=len(groups); build_chunk(1,BANK[1])
    marks['qkv']=len(groups); build_qkv(BANK[0])
    marks['c2']=len(groups); build_chunk(2,BANK[1])
    marks['c3']=len(groups); build_chunk(3,BANK[0])
    marks['half']=len(groups); build_half(V(224,32))
    marks['down']=len(groups); build_down()

NB=40; LATE=10**9
def plan():
    L=OPT['look']
    n=0; bars=[]
    for g in groups:
        g.start=n
        if g.bar: bars.append(n-L)
        for k,(it,_) in enumerate(g.rd):
            if it.first is None: it.first=n+k-L
            it.last=n-1
        n+=len(g.m)
    free={b:(-3000 if b>=36 else (-2000 if b<18 else -L)) for b in range(NB)}
    ptr=36
    for it in items:
        if ptr+it.n>NB: ptr=0
        it.addr=ptr*4096
        it.early=max(free[b] for b in it.blks())
        assert it.early<LATE
        it.bar=max(b for b in bars if b<=it.first)
        nxt=[b for b in bars if b>it.last]
        for b in it.blks(): free[b]=nxt[0] if nxt else LATE
        ptr=(ptr+it.n)%NB
    return n,bars,free

VM=('dma','vld','vst')
SC=('salu','waitfor','misc','label')
lastvm=dict(any=-100,st=-100)
def head(nm,gap):
    q=fifo[nm]
    if not q or q[0][0]>gap: return None
    return q[0][1]
def vm_ready(gap,mingap,stgap):
    if gap-lastvm['any']<mingap: return None
    for nm in ('dma','ld','st','low'):
        x=head(nm,gap)
        if x is None or x.kind not in VM: continue
        if nm=='st':
            d=x.meta.get('dep')
            if gap-lastvm['st']<stgap or (d is not None and d.meta.get('at',LATE)>gap-2): continue
        return nm
    return None
def take(nm,gap):
    x=fifo[nm].pop(0)[1]
    if x.kind in VM:
        lastvm['any']=gap
        if nm=='st': lastvm['st']=gap
    e(x)
    while x.meta.get('glue'):
        x=fifo[nm].pop(0)[1]; e(x)
    return x
def pull(gap,scalar):
    order=('dma','ld','st','ctr','epi','low')
    if scalar:
        for nm in order:
            x=head(nm,gap)
            if x is not None and 'carry' in x.rd: take(nm,gap); return True
    for nm in order:
        x=head(nm,gap)
        if x is None or x.kind in VM: continue
        if (x.kind in SC)!=scalar: continue
        take(nm,gap); return True
    return False

bar_extra={}
def emit_backbone(bars,gapstamps):
    L=OPT['look']
    reads=[(it,f,g.start-0.5) for g in groups for it,f in g.rd]
    ev={}
    for gi,ops in events: ev.setdefault(gi,[]).append(ops)
    bar_items={}
    for it in items: bar_items.setdefault(it.bar,[]).append(it.name)
    barset=set(bars); issue={}
    fixed={}
    for gi,g in enumerate(groups):
        for k in range(len(g.m)):
            gap=g.start+k; fx=[]
            w_lg=groups[gi+1].fr if (k==len(g.m)-1 and gi+1<len(groups)) else []
            w_vm=(bar_items.get(gap+1,[])+bar_extra.get(gap+1,[])) if gap+1 in barset else []
            if gap in barset: fx.append(barrier())
            if w_lg or w_vm: fx.append(waitfor(lg=w_lg,vmtags=w_vm))
            fixed[gap]=fx
    ri=[L]
    def rd():
        it,f,lg=reads[ri[0]]; ri[0]+=1; e(setseq(f(it),lg))
    planned=None
    for gi,g in enumerate(groups):
        for k,m in enumerate(g.m):
            gap=g.start+k; cur[0]=gap
            e(m)
            if gap in gapstamps: stamp(gapstamps[gap])
            if planned:
                x=take(planned,gap); planned=None
                if x.kind=='dma': issue[x.meta['tag']]=gap
                continue
            fx=fixed[gap]
            if fx: e(fx.pop(0))
            else: pull(gap,True)
            if ri[0]<len(reads) and ri[0]<=gap+L: rd()
            if fx: e(fx.pop(0)); continue
            if ri[0]<len(reads) and ri[0]<=gap+L: rd(); continue
            if gap+1 in fixed and not fixed[gap+1]: planned=vm_ready(gap+1,OPT['dmagap'],OPT['stgap'] if gap>=groups[marks['down']].start else 8)
            if planned:
                if ri[0]<len(reads) and reads[ri[0]][0].bar<=gap: rd()
                continue
            if not pull(gap,False): pull(gap,True)
        for ops in ev.get(gi,[]):
            for o in ops: push(o.meta.get('q','epi'),gap+4,[o])
    sl=[(it.bar-issue[it.name],it.name) for it in items if it.name in issue]
    sl.sort(); print('min dma slack (gaps):',sl[:6])
    print('left after backbone:',{k:len(v) for k,v in fifo.items()})

OUT=[]
def spin(name,load,expect):
    a=valu('v_cmp_ne_u32','vcc',expect,vPOLL); a.meta['glue']=True
    b=raw(f's_cbranch_vccnz L_spin_{name}','misc',['vcc']); b.meta['glue']=True
    c=label(f'L_back_{name}')
    cnt=vT[7]
    OUT.extend([f'L_spin_{name}:', f'v_mov_b32 {cnt}, 0x40000', f'L_spinl_{name}:', load.text, 's_waitcnt vmcnt(0)', f'v_cmp_ne_u32 vcc, {fmt(expect)}, {vPOLL}', 's_nop 1',
        f's_cbranch_vccz L_back_{name}', f'v_subrev_u32 {cnt}, 1, {cnt}', f'v_cmp_ne_u32 vcc, 0, {cnt}', 's_sleep 1', f's_cbranch_vccnz L_spinl_{name}', f's_branch L_back_{name}'])
    a.wr.append(cnt.regs()[0]); a.wr.append('ok_'+name)
    return [a,b,c]

def addr_att(WB):
    t,u,key,hf,p,rp=vT[0],vT[1],vT[2],vT[3],vT[4],vT[5]
    vQL,vQX=vT[6],vPF
    e(valu('v_and_b32',key,31,vL), valu('v_lshrrev_b32',hf,5,vL), valu('v_lshlrev_b32',t,2,hf), valu('v_xor_b32',t,t,vL), valu('v_lshlrev_b32',vKM,4,t))
    extpos(u,key,t)
    e(valu('v_lshlrev_b32',vKE,3,u), valu('v_add_u32',vKE,1024,vKE))
    e(salu('s_lshr_b32',sT0,sW,1), salu('s_lshl_b32',sT0,sT0,5), salu('s_add_u32',sT0,sT0,sH), salu('s_add_u32',sT0,sT0,32), salu('s_mul_i32',sT0,sT0,SL),
      salu('s_and_b32',sT1,sW,1), salu('s_mul_i32',sT1,sT1,5120), salu('s_add_u32',sT0,sT0,sT1), valu('v_lshl_add_u32',vKV,vL,4,sT0))
    e(valu('v_mov_b32',vZ,0), valu('v_mov_b32',vIDX,0xdddd))
def qk_loads(WB):
    t,u,hf=vT[0],vT[1],vT[3]
    e(valu('v_lshrrev_b32',hf,5,vL), valu('v_lshl_add_u32',u,hf,31,vKE))
    e(salu('s_lshl_b32',sT0,sM8,2), salu('s_add_u32',sT0,sT0,sW), salu('s_mul_i32',sT0,sT0,2560), salu('s_mul_i32',sT1,sH,SL), salu('s_add_u32',sSO3,sT0,sT1))
    for x in range(2): e(bload(QM[x],vKM,sWS,sSO3,x*1280,flags='sc1'))
    e(bload(QE[0][0],u,sWS,sSO3,0,flags='sc1'), bload(vT[2],u,sWS,sSO3,1280,flags='sc1'))
    e(salu('s_add_u32',sSO3,sT1,32*SL))
    for x in range(2): e(bload(KM[x],vKM,sWS,sSO3,x*1280,flags='sc1'), bload(KE[x],u,sWS,sSO3,x*1280,flags='sc1'))
    e(valu('v_add_u32',vKM,WB,vKM), valu('v_mul_u32_u24',t,LDS_OOB,hf), valu('v_add3_u32',vKE,vKE,t,vZ), valu('v_add_u32',vKE,WB,vKE))
    c,r,k,x=vT[4],vT[5],vT[6],vT[1]
    e(valu('v_and_b32',c,3,vL), valu('v_bfe_u32',r,vL,2,2), valu('v_lshl_add_u32',r,hf,3,r))
    for n in range(4):
        uu,y=n>>1,n&1
        e(valu('v_add_u32',k,16*uu+4*y,r))
        extpos(x,k,t)
        e(valu('v_lshlrev_b32',x,3,x), valu('v_min_u32',t,1,c), valu('v_mul_u32_u24',t,LDS_OOB+64,t), valu('v_xor_b32',x,x,t), valu('v_add_u32',x,1024,x))
        e(valu('v_lshrrev_b32',t,1,c), valu('v_mul_u32_u24',t,36,t), valu('v_xor_b32',k,k,t), valu('v_lshlrev_b32',k,4,k), valu('v_and_b32',t,1,c), valu('v_lshl_add_u32',k,t,3,k))
        e(valu('v_and_b32',t,16,vL), valu('v_cmp_eq_u32','vcc',0,t), valu('v_cndmask_b32',k,x,k), valu('v_add_u32',vVA[n],WB,k))
    for x in range(2):
        for r in range(16): e(valu('v_accvgpr_write_b32',OO[x][r],0))
def addr_fin():
    t,u,p,rp,a,b=vT[0],vT[1],vT[4],vT[5],vT[6],vT[3]
    lane_rp(rp,p,t)
    e(salu('s_and_b32',sT0,sW,1), salu('s_lshr_b32',sT1,sW,1), salu('s_mul_i32',sT2,sT0,20), salu('s_lshl_b32',sT3,sT1,3), salu('s_add_u32',sT2,sT2,sT3), valu('v_add_u32',a,sT2,rp),
      salu('s_mul_i32',sT2,sT0,144), salu('s_mul_i32',sT3,sT1,36), salu('s_add_u32',sT2,sT2,sT3), salu('s_add_u32',sT2,sT2,16),
      valu('v_lshrrev_b32',t,2,rp), valu('v_mul_u32_u24',t,72,t), valu('v_and_b32',b,3,rp), valu('v_add3_u32',b,b,t,sT2))
    e(salu('s_and_b32',sT0,sIDX,7), salu('s_lshl_b32',sT1,sT0,7), valu('v_lshl_add_u32',u,p,4,sT1),
      valu('v_mul_u32_u24',t,1152,a), valu('v_add_u32',vWO,t,u), valu('v_mul_u32_u24',t,1152,b), valu('v_add_u32',vWOE,t,u))
    e(salu('s_lshr_b32',sT2,sT0,1), salu('s_lshl_b32',sT2,sT2,5), salu('s_add_u32',sT2,sT2,1024), valu('v_and_b32',u,1,p), valu('v_lshl_add_u32',u,u,4,sT2), valu('v_lshrrev_b32',p,1,p),
      valu('v_mul_u32_u24',t,36,p), valu('v_add_u32',t,t,a), valu('v_mul_u32_u24',t,1152,t), valu('v_add_u32',vWX,t,u),
      valu('v_mul_u32_u24',t,288,p), valu('v_add_u32',t,t,b), valu('v_mul_u32_u24',t,1152,t), valu('v_add_u32',vWXE,t,u))
    e(salu('s_lshr_b32',sT3,sIDX,3), salu('s_lshl_b32',sT3,sT3,2), salu('s_add_u32',sT3,sT3,sW), salu('s_lshl_b32',sSO3,sXC,4), salu('s_add_u32',sT3,sT3,sSO3))
    tk,g=vT[4],vT[5]
    e(valu('v_and_b32',tk,15,vL), valu('v_lshrrev_b32',g,4,vL))
    e(salu('s_lshl_b32',sSO3,sT3,3), salu('s_add_u32',sSO3,sSO3,sT0), salu('s_lshl_b32',sSO3,sSO3,15), valu('v_lshl_add_u32',vPL,vL,4,sSO3))
    e(salu('s_xor_b32',sSC[0],sW,sT0), salu('s_lshl_b32',sSC[0],sSC[0],31))
    e(salu('s_lshl_b32',sSO3,sT3,2), salu('s_lshr_b32',sSC[1],sT0,1), salu('s_add_u32',sSO3,sSO3,sSC[1]), salu('s_lshl_b32',sSO3,sSO3,13), salu('s_or_b32',sSO3,sSO3,sSC[0]), valu('v_lshl_add_u32',vPLX,vL,3,sSO3))
    e(salu('s_lshl_b32',sSO3,sT3,4), valu('v_add_u32',a,sSO3,tk), valu('v_lshlrev_b32',b,2,a), valu('v_mul_u32_u24',a,1152,a), valu('v_lshl_add_u32',a,g,3,a),
      valu('v_add_u32',vXO,sT1,a), salu('s_or_b32',sT2,sT2,sSC[0]), valu('v_add_u32',vXOX,sT2,a))
    e(salu('s_mov_b32',sSO3,WS_R2), bload(vR2,b,sWS,sSO3,flags='sc1'))
    for q in range(4): e(bload(XR[2*q:2*q+2],vXO,sX,0,32*q))
    e(bload(XR[8:10],vXOX,sX,0))
    e(salu('s_and_b32',sSO3,sT3,1), salu('s_lshl_b32',sSO3,sSO3,4), valu('v_add_u32',a,sSO3,tk), salu('s_lshr_b32',sSC[1],sT3,1),
      salu('s_lshl_b32',sSO3,sSC[1],10), valu('v_lshl_add_u32',t,a,4,sSO3), valu('v_and_b32',u,1,g), valu('v_lshl_add_u32',t,u,9,t), valu('v_lshrrev_b32',u,1,g), valu('v_lshl_add_u32',vOL,u,16,t),
      salu('s_lshl_b32',sSO3,sSC[1],12), valu('v_lshl_add_u32',t,a,2,sSO3), valu('v_lshl_add_u32',vOLX,g,9,t))
    e(salu('s_lshr_b32',sSO3,sT3,2), salu('s_lshl_b32',sSO3,sSO3,12), salu('s_add_u32',sSO3,sSO3,WS_F3), valu('v_and_b32',t,31,vL), valu('v_lshl_add_u32',vF3L,t,7,sSO3))
    e(salu('s_lshr_b32',sSC[1],sT3,3), salu('s_lshl_b32',sSC[1],sSC[1],2), salu('s_lshl_b32',sSC[2],sI,2))
    e(salu('s_lshl_b32',sT0,sM8,2), salu('s_add_u32',sT0,sT0,sW), salu('s_lshl_b32',sT1,sT0,11), salu('s_lshl_b32',sT2,sH,16), salu('s_add_u32',sT1,sT1,sT2), salu('s_add_u32',sT1,sT1,WS_O),
      valu('v_lshl_add_u32',vOS,vL,4,sT1),
      salu('s_lshl_b32',sT1,sT0,13), salu('s_lshl_b32',sT2,sH,7), salu('s_add_u32',sT1,sT1,sT2), salu('s_add_u32',sT1,sT1,WS_OX),
      valu('v_lshl_add_u32',t,t,2,sT1), valu('v_lshrrev_b32',u,5,vL), valu('v_lshl_add_u32',vOSX,u,12,t))

def max_ops(x,srcs,m,first=True):
    o=[]
    regs=[s[r] for s in srcs for r in range(16)]
    if first: o.append(valu('v_max3_f32',m,regs[0],regs[1],regs[2])); rest=regs[3:]
    else: rest=regs
    while len(rest)>=2: o.append(valu('v_max3_f32',m,m,rest[0],rest[1])); rest=rest[2:]
    if rest: o.append(valu('v_max_f32',m,m,rest[0]))
    return o
def set_shift(x,m,t,margin):
    return [valu('v_mov_b32',t,m), swap('v_permlane32_swap_b32',m,t), valu('v_max_f32',m,m,t), valu('v_sub_f32',m,f32(-margin) if margin else 0,m),
            valu('v_cvt_pk_bf16_f32',t,m,m), valu('v_lshlrev_b32',t,16,t), valu('v_sub_f32',t,m,t), valu('v_cvt_pk_bf16_f32',t,m,t),
            valu('v_cmp_gt_u32','vcc',32,vL), valu('v_cndmask_b32',QE[x][1],0,t)]

def attention(g0,kv,WB,wo_items):
    base=g0+100
    def kread(tau):
        it=kv[tau>>3]; off=it.addr-WB+(tau&7)*1280; src=(it.name,it.blks())
        return [dsr('ds_read_b128',KM[tau%3],vKM,off,src=src), dsr('ds_read_b64',KE[tau%3],vKE,off,src=src)]
    def vread(tau,n):
        it=kv[tau>>3]; off=it.addr-WB+10240+(tau&7)*1280
        return dsr('ds_read_b64_tr_b16',VV[tau&1][2*n:2*n+2],vVA[n],off,src=(it.name,it.blks()))
    def E(n,buf=None): return m32x8(buf or SB[n%3],KE[(n>>1)%3],QE[n&1],0)
    def M(n,buf=None): b=buf or SB[n%3]; return m32(b,KM[(n>>1)%3],QM[n&1],b)
    def PV(n,h): return smf(OO[n&1],VV[(n>>1)&1][4*h:4*h+4],SB[n%3][8*h:8*h+8],vIDX)
    def flush(n,names=('ctr','epi','low','dma','ld')):
        k=0
        while k<n:
            for nm in names:
                x=head(nm,cur[0])
                if x is not None: take(nm,cur[0]); break
            else: return
            k+=1
    cur[0]=g0
    flush(1000,('low',))
    e(valu('v_mov_b32',QE[1][0],vT[2]), valu('v_mov_b32',QE[0][1],0), valu('v_mov_b32',QE[1][1],0))
    e(waitfor(vm=QM+KM[:2]+KE[:2]+[QE[0]],vmtags=[kv[0].name],lgall=True), barrier())
    cur[0]=g0+10
    bufs=[SB[1],SB[2],SB[3],SB[4]]
    for k,n in enumerate((0,2,1,3)):
        e(E(n,bufs[k])); flush(5,('epi',)); e(M(n,bufs[k]));
        e(vread(0,k)); flush(4,('epi',))
    flush(1000,('epi',))
    mx=[vT[0],vT[1]]
    e(*max_ops(0,bufs[0:2],mx[0])); e(*set_shift(0,mx[0],vT[3],MARGIN))
    e(*max_ops(1,bufs[2:4],mx[1])[:4])
    e(E(0)); e(*max_ops(1,bufs[2:4],mx[1])[4:10]); e(M(0)); e(*max_ops(1,bufs[2:4],mx[1])[10:]); e(*set_shift(1,mx[1],vT[3],MARGIN))
    stamp('att')
    barx={OPT['f2bar']:['pst'],7:[it.name for it in wo_items]}
    for n in range(128):
        tau=n>>1
        ms=[E(n+1) if n<127 else None, M(n+1) if n<127 else None, PV(n-1,1) if n>0 else None, PV(n,0)]
        if n&1: rds=[vread(tau+1,k) if tau+1<64 else None for k in range(4)]
        else: rds=(kread(tau+2) if tau+2<64 else [None,None])+[None,None]
        sg=(n+5)//16 if (n+5)%16==0 and n+5<128 else None
        for k in range(4):
            gap=base+4*n+k; cur[0]=gap
            if ms[k] is not None: e(ms[k])
            nsc={0:0,1:1,2:2,3:2}[k]
            fx=(k==1 and n%2==0) or (k==2 and sg is not None)
            vmn=vm_ready(gap,2,OPT['astgap']) if (not fx and ms[k] is not None) else None
            if vmn: take(vmn,gap)
            else:
                if k==1 and n%2==0: e(waitfor(lg=[VV[tau&1],KM[(tau+1)%3],KE[(tau+1)%3]])); nsc-=1
                if k==2 and sg is not None:
                    e(waitfor(vmtags=[kv[sg].name]+barx.get(sg,[])), barrier()); nsc-=2
                    if sg==OPT['f2bar']:
                        assert not fifo['st'], 'partial stores not finished'
                        push('dma',gap,[batomic(vONE,vF1,sDBG,sSC[2],64)])
                    if sg+1<8: push('dma',gap,kv[sg+1].mk(kv[sg+1]))
                    for it in wo_items[5*(sg-1):5*sg]: push('dma',gap,it.mk(it))
                while nsc>0 and pull(gap,True): nsc-=1
            if rds[k] is not None: e(rds[k])
            x=head('ld',gap)
            if x is not None and x.kind=='valu': take('ld',gap)
            for r in range(4): e(valu('v_exp_f32',SB[n%3][4*k+r],SB[n%3][4*k+r]))
        if n==OPT['f2poll']:
            ld=bload(vPOLL,vZ,sDBG,sSC[1],64,flags='sc1')
            push('ld',gap,[ld])
            t0=base+4*OPT['f2chk']
            push('ld',t0,[waitfor(vm=[vPOLL])]+spin('f2',ld,16))
            ops=[]
            for k in range(32):
                if k%8==0: ops+=base_add(sBL,sWS,WS_P+k*1024+4096)
                ops.append(gload(PART[k],vPL,sBL,(k%8)*1024-4096,flags='sc1'))
                if k%2==1:
                    z=k>>1
                    if z%8==0: ops.append(salu('s_mov_b32',sSO3,WS_PX+z*512))
                    ops.append(bload(PARTX[z],vPLX,sWS,sSO3,(z%8)*512,flags='sc1'))
            nl=0
            for o in ops:
                push('ld',t0+int(nl*OPT.get('ldgap',4)),[o])
                if o.kind=='vld': nl+=1
    cur[0]=base+600
    e(PV(127,1))
    print('left after attention:',{k:len(v) for k,v in fifo.items()})
    flush(1000,('dma','ld','st','low'))

def fallback(kv,WB):
    global P
    save=P; P=[]
    pb=kv[5].addr
    a=[V(128+n) for n in range(6)]; vo=V(134); mx=[V(135),V(136)]; t=V(137)
    e(label('L_fb'), raw('s_waitcnt vmcnt(0) lgkmcnt(0)','misc'), raw('s_nop 15','misc'))
    for d,s in zip(a,[vKM,vKE]+vVA): e(valu('v_add_u32',d,sW5K,s))
    e(valu('v_lshlrev_b32',vo,4,vL), valu('v_mov_b32',QE[0][1],0), valu('v_mov_b32',QE[1][1],0), valu('v_mov_b32',mx[0],0xff800000), valu('v_mov_b32',mx[1],0xff800000))
    off=pb-WB
    for ps in range(2):
        e(salu('s_add_u32',sT0,sH,32), salu('s_mul_i32',sT0,sT0,SL), salu('s_add_u32',sT1,sT0,32*SL), salu('s_mov_b32',sT2,64), label(f'L_fbl{ps}'))
        e(salu('s_add_u32','m0',sW5K,pb), dma(vo,sWS,sT0,0,flags='sc1'), dma(vo,sWS,sT0,1024,flags='sc1'))
        if ps: e(salu('s_add_u32','m0',sW5K,pb+2560), dma(vo,sWS,sT1,0,flags='sc1'), dma(vo,sWS,sT1,1024,flags='sc1'))
        e(waitfor(vmall=True), dsr('ds_read_b128',KM[0],a[0],off), dsr('ds_read_b64',KE[0],a[1],off))
        if ps:
            for n in range(4): e(dsr('ds_read_b64_tr_b16',VV[0][2*n:2*n+2],a[2+n],off+2560))
        e(waitfor(lgall=True))
        for x in range(2): e(m32x8(SB[x],KE[0],QE[x],0), m32(SB[x],KM[0],QM[x],SB[x]))
        for x in range(2):
            if ps==0: e(*max_ops(x,[SB[x]],mx[x],first=False))
            else:
                for r in range(16): e(valu('v_exp_f32',SB[x][r],SB[x][r]))
                for h in range(2): e(smf(OO[x],VV[0][4*h:4*h+4],SB[x][8*h:8*h+8],vIDX))
        e(raw('s_nop 15','misc'), salu('s_add_u32',sT0,sT0,1280), salu('s_add_u32',sT1,sT1,1280), salu('s_sub_u32',sT2,sT2,1), salu('s_cmp_lg_u32',sT2,0), raw(f's_cbranch_scc1 L_fbl{ps}','misc'))
        if ps==0:
            for x in range(2):
                e(*set_shift(x,mx[x],t,0.0))
                for r in range(16): e(valu('v_accvgpr_write_b32',OO[x][r],0))
    for x in range(2):
        for r in range(11): e(valu('v_accvgpr_read_b32',SB[x][r],OO[x][r]))
    e(raw('s_nop 3','misc'), raw('s_branch L_fb_ret','misc'))
    OUT.extend(i.text for i in finalize(P,verbose=0,name='fb'))
    P=save

def final(g0,wo_main,wo_x):
    cur[0]=g0
    T=[SB[0],SB[1]]
    SA=V(56,20); DN=V(76,20); SEL=V(96,8); tmp=V(104,8)
    m,g,x0,x1=tmp[0],tmp[1],SEL[2],SEL[3]
    e(valu('v_bfe_u32',m,vL,2,2), valu('v_lshrrev_b32',g,4,vL), valu('v_cmp_eq_u32','vcc',m,g), valu('v_and_b32',m,1,vL), valu('v_lshlrev_b32',m,4,m), valu('v_lshlrev_b32',m,m,sLO),
      valu('v_cndmask_b32',m,0,m), valu('v_and_b32',g,2,vL), valu('v_cmp_eq_u32','vcc',0,g), valu('v_mov_b32',SEL[0],0), valu('v_mov_b32',SEL[1],0),
      valu('v_cndmask_b32',x0,0,m), valu('v_sub_u32',x1,m,x0))
    for x in range(2):
        for r in range(11): e(valu('v_accvgpr_read_b32',T[x][r],OO[x][r]))
    for x in range(2):
        s=tmp[2+x]
        e(valu('v_add_f32_e64',s,f'|{T[x][0]}|',f'|{T[x][1]}|'))
        for r in range(2,10): e(valu('v_add_f32_e64',s,s,f'|{T[x][r]}|'))
    e(valu('v_min_f32',tmp[4],tmp[2],tmp[3]), valu('v_add_f32',tmp[2],tmp[2],tmp[3]), valu('v_add_f32',tmp[3],T[0][10],T[1][10]), valu('v_add_f32',tmp[2],tmp[2],tmp[3]),
      valu('v_cmp_nle_f32','vcc',f32(2.0**-100),tmp[4]), raw('s_cbranch_vccnz L_fb','misc',['vcc']),
      valu('v_cmp_nge_f32','vcc',f32(2.0**126) if not OPT['forcefb'] else f32(-1.0),tmp[2]), raw('s_cbranch_vccnz L_fb','misc',['vcc']), label('L_fb_ret'))
    e(swap('v_permlane32_swap_b32',T[0][10],T[1][10]), valu('v_rcp_f32',tmp[2],T[0][10]), valu('v_mov_b32',tmp[3],tmp[2]), swap('v_permlane32_swap_b32',tmp[2],tmp[3]))
    for x in range(2):
        for r in range(10): e(valu('v_mul_f32',T[x][r],tmp[2+x],T[x][r]))
        for d in range(5): e(valu('v_cvt_pk_bf16_f32',T[x][d],T[x][2*d],T[x][2*d+1]))
        e(gstore(T[x][0:4],vOS,sWS[0:2],x*1024,flags='sc1',tag='ost'))
    e(swap('v_permlane32_swap_b32',T[0][4],T[1][4]), gstore(T[0][4],vOSX,sWS[0:2],flags='sc1',tag='ost'))
    stamp('o stored')
    e(valu('v_mov_b32',SEL[4],x0), valu('v_mov_b32',SEL[5],x1), valu('v_mov_b32',SEL[6],0), valu('v_mov_b32',SEL[7],0))
    pool_=[V(112+4*n,4) for n in range(16)]+[V(208+4*n,4) for n in range(12)]+[V(176+4*n,4) for n in range(8)]
    npre=len(pool_)
    pool_+=[A(72+4*n,4) for n in range(38)]+[A(236+4*n,4) for n in range(5)]
    frs=[]; rds=[]
    for s in range(18):
        for q in range(5):
            f=pool_[len(frs)%len(pool_)]; frs.append(f)
            for u in range(2): rds.append(tr_read(f,u,wo_main[s],q) if q<4 else tr_read(f,u,wo_x[s>>2],s&3))
    red=[]
    for pr in range(2):
        for z in range(2):
            d=DN[8*pr+4*z:8*pr+4*z+4]
            for j in range(16): red.append(m16(d,SEL[4:8] if z==0 else SEL[0:4],PART[16*pr+j],0 if j==0 else d))
    for z in range(8): red.append(m16(DN[16:20],SEL[2:6],R('a',PARTX[2*z].b,4),0 if z==0 else DN[16:20]))
    e(waitfor(vm=PART+PARTX))
    ri=0
    nflag=OPT.get('flagat',30)
    for k,mm in enumerate(red):
        e(mm)
        if k==nflag: e(waitfor(vmall=True), bstore(vONE,vF3,sWS,0,flags='sc1')); stamp('flag')
        if k%4==3: e(waitfor(lg=frs[:max(0,ri//2-3)]))
        if ri<2*npre: e(rds[ri]); ri+=1
    pl=bload(vPOLL,vF3L,sWS,0,flags='sc1')
    e(pl)
    while ri<2*len(pool_):
        if ri%4==0: e(waitfor(lg=frs[:max(0,ri//2-4)]))
        e(rds[ri]); ri+=1
    for r in range(20): e(valu('v_mul_f32',DN[r],vR2,DN[r]))
    for r0 in range(0,20,8):
        rr=range(r0,min(20,r0+8))
        for r in rr: e(valu('v_mul_f32',tmp[r-r0],f32(-1.4426950408889634),DN[r]))
        for r in rr: e(valu('v_exp_f32',tmp[r-r0],tmp[r-r0]))
        for r in rr: e(valu('v_add_f32',tmp[r-r0],1.0,tmp[r-r0]))
        for r in rr: e(valu('v_rcp_f32',tmp[r-r0],tmp[r-r0]))
        for r in rr: e(valu('v_mul_f32',DN[r],tmp[r-r0],DN[r]))
    XV=V(96,10)
    for d in range(10): e(valu('v_accvgpr_read_b32',XV[d],XR[d]))
    e(*base_add(sBL,sWS,WS_OX), *base_add(sBD,sWS,WS_O))
    ofs=[V(30+n) for n in range(11)]+[V(14+n) for n in range(4)]
    for s in range(1,16): e(valu('v_add_u32',ofs[s-1],s*131072,vOL))
    stamp('ready')
    e(waitfor(vm=[vPOLL]), *spin('f3',pl,1))
    stamp('seen')
    OF=[A(4*s,4) for s in range(18)]
    for s in range(16): e(gload(OF[s],vOL if s==0 else ofs[s-1],sBD,flags='sc1'))
    for s in range(2):
        for r in range(4): e(gload(OF[16+s][r],vOLX,sBL,s*2048+r*128,flags='sc1'))
    k=0
    for s in range(18):
        e(waitfor(vm=[OF[s]],lg=frs[5*s:5*s+5]))
        for q in range(5):
            e(m16(SA[4*q:4*q+4],frs[k],OF[s],0 if s==0 else SA[4*q:4*q+4])); k+=1
            if ri<len(rds) and ri//2-len(pool_)<k-1: e(rds[ri]); ri+=1
    stamp('mm done')
    for q in range(5):
        for d in range(2):
            lo,hi=tmp[2+2*d],tmp[3+2*d]; x=XV[2*q+d]
            e(valu('v_lshlrev_b32',lo,16,x), valu('v_and_b32',hi,0xffff0000,x))
        for d in range(2):
            lo,hi=tmp[2+2*d],tmp[3+2*d]; r=4*q+2*d
            e(valu('v_fmac_f32',lo,SA[r],DN[r],rmw=True), valu('v_fmac_f32',hi,SA[r+1],DN[r+1],rmw=True), valu('v_cvt_pk_bf16_f32',SA[4*q+d],lo,hi))
        e(bstore(SA[4*q:4*q+2],vXO if q<4 else vXOX,sOUT,0,32*q if q<4 else 0))

def main():
    build_ffn()
    ngaps,bars,free=plan()
    L=OPT['look']
    best=None
    for a0 in range(0,26):
        fr=sorted((max(free[b] for b in range(a0+5*k,a0+5*k+5)),k) for k in range(3))
        key=(fr[0][0],fr[1][0])
        if best is None or key<best[0]: best=(key,a0,[k for _,k in fr])
    _,a0,order=best; WB=a0*4096
    print('attention window',best,'ngaps',ngaps)
    kv=[kv_item(s) for s in range(8)]
    for s,it in enumerate(kv): it.addr=(a0+5*order[s%3])*4096
    rest=[b for b in range(NB) if not a0<=b<a0+15]
    wo_main=[blk_item(('wo',s),vWO if s<16 else vWOE,sWO,36*s*1152 if s<16 else 288*(s-16)*1152) for s in range(18)]
    wo_x=[blk_item(('wx',n),vWX if n<4 else vWXE,sWO,144*n*1152 if n<4 else 0,buf=(n==4)) for n in range(5)]
    for it,b in zip(wo_main+wo_x,rest): it.addr=b*4096

    prologue()
    for l in range(9): e(*xdma(0,l))
    e(*pf_gu(0)); e(*base_add(sBL,sX,18432))
    with collect() as ao:
        pf_code(); addr_early()
        xr=[vM[1],vR[1]]; t,u=vT[2],vT[3]
        e(valu('v_and_b32',t,15,vL), valu('v_lshrrev_b32',u,1,t), valu('v_lshlrev_b32',t,7,t), valu('v_add_u32',t,sW18K,t),
          valu('v_lshrrev_b32',xr[0],4,vL), valu('v_xor_b32',xr[0],xr[0],u), valu('v_xor_b32',xr[1],4,xr[0]),
          valu('v_lshl_add_u32',xr[0],xr[0],4,t), valu('v_lshl_add_u32',xr[1],xr[1],4,t))
    per=len(ao)//9+1
    for l in range(9):
        e(*ao[l*per:(l+1)*per]); e(*xdma(1,l))
    pre0=[it for it in items if it.early==-3000]; pre1=[it for it in items if it.early==-2000]
    dq=[it.mk(it) for it in pre0]
    def some(n):
        for _ in range(n):
            if dq: e(*dq.pop(0))
    X0=V(128,72); acc=[vT[4],vT[5],vT[6],vT[7]]
    def xread(tt,dst,l):
        return [waitfor(vmtags=[('x',tt,l)])]+[dsr('ds_read_b128',dst[4*s:4*s+4],xr[s&1],l*2048,src=(('x',tt,l),list(range(18*tt,18*tt+18))),private=True) for s in (2*l,2*l+1)]
    for l in range(9):
        e(*xread(0,X0,l))
        if l>0: e(waitfor(lg=[X0[8*l-8:8*l]]), *stats_ops(X0,2*l-2,acc), *stats_ops(X0,2*l-1,acc))
        if l%2==1: some(1)
    e(waitfor(lgall=True), barrier())
    stamp('x0 read')
    e(valu('v_add_u32',xr[0],73728,xr[0]), valu('v_add_u32',xr[1],73728,xr[1]))
    dq+=[it.mk(it) for it in pre1]
    e(*stats_ops(X0,16,acc)); some(1); e(*stats_ops(X0,17,acc)); some(1)
    a,b=stats_final(0,acc); e(*a,*b); e(*pf_gu(1))
    for l in range(9):
        e(*xread(1,XC1,l))
        e(*centre_ops(X0,2*l,0,XC0)); some(1); e(*centre_ops(X0,2*l+1,0,XC0))
        e(waitfor(lg=[XC1[8*l:8*l+8]]), *stats_ops(XC1,2*l,acc), *stats_ops(XC1,2*l+1,acc))
    e(waitfor(lgall=True,vmtags=[it.name for it in items if it.bar==-L]), barrier())
    stamp('x1 read')
    a,b=stats_final(1,acc); e(*a)
    reads=[r for g in groups for r in g.rd]
    for s in range(OPT['n0']):
        e(*centre_ops(XC1,s,1))
        if s==OPT['n0']-3:
            for it,f in reads[:L]: e(f(it))
    e(waitfor(lg=groups[0].fr))
    for s in range(OPT['n0'],18): push('ctr',0,centre_ops(XC1,s,1,plain=True))
    push('ctr',0,b)
    for o in dq: push('dma',-1,o)
    for it in items:
        if it.early>-2000: push('dma',it.early,it.mk(it))
    st=lambda k:groups[marks[k]].start
    def low(gap,f,*a):
        with collect() as o: f(*a)
        push('low',gap,o,gap)
    low(st('c0')+200,pf_q_ops); low(st('c0')+200,addr_mid); low(st('c1')+100,addr_mid2)
    push('low',st('c1')+200,pf_gu(2),st('c1')+200); push('low',st('qkv')+150,pf_gu(3),st('qkv')+150); push('low',st('c2')+150,pf_gu(4),st('c2')+150)
    b1=[b for b in bars if b>st('c3')+60][0]
    bar_extra[b1]=['qkvst']
    low(st('c3'),pf_d_ops)
    push('low',b1,[batomic(vONE,vF1,sDBG,0)],b1)
    if OPT['stop']!='down':
        d0=st('down')
        low(d0+60,addr_att,WB)
        ld=bload(vPOLL,vZ,sDBG,0,flags='sc1')
        push('low',d0+60,[ld],d0+60)
        push('low',d0+200,[waitfor(vm=[vPOLL])]+spin('f1',ld,256),d0+200)
        low(d0+200,addr_fin); low(d0+200,qk_loads,WB)
        for s in range(2):
            early=max(free[b] for b in kv[s].blks())
            assert early>d0+300
            push('dma',early if early<LATE else ngaps+10,kv[s].mk(kv[s]),ngaps-1)
    emit_backbone(bars,{groups[v].start:k for k,v in marks.items() if k in ('c0','qkv','down')})
    stamp('down end')
    if OPT['stop']=='down':
        for nm in ('epi','st','low','dma'):
            for af,o in fifo[nm]: e(o)
    else:
        attention(ngaps,kv,WB,wo_main+wo_x)
        stamp('att end')
        final(ngaps+1000,wo_main,wo_x)
        fallback(kv,WB)
    finish()

def finish():
    cur[0]=10**7
    if OPT['stamps']:
        e(raw('s_waitcnt lgkmcnt(0)','misc'), waitfor(vmall=True))
        stamp('drained'); e(raw('s_waitcnt lgkmcnt(0)','misc'))
        n=nstamp[0]
        if OPT['dbgout']:
            e(salu('s_sub_u32',sT0,S(2),OPT['dbgout']-1), salu('s_add_u32',sT0,sT0,sW), valu('v_add_u32',V(1),sT0,vL), valu('v_lshlrev_b32',V(1),12,V(1)))
            for k in range(1,n): e(salu('s_sub_u32',sT1,S(64+2*k),S(64)), valu('v_mov_b32',V(2),sT1), bstore(V(2),V(1),sDBG,0,4*k))
        else:
            e(salu('s_lshl_b32',sT0,S(2),2), salu('s_add_u32',sT0,sT0,sW), salu('s_lshl_b32',sT0,sT0,6), salu('s_add_u32',sT0,sT0,WS_STAMP))
            masked(V(1),vL,'v_cmp_eq_u32',0,vL,V(2))
            for k in range(n): e(valu('v_mov_b32',V(2),S(64+2*k)), bstore(V(2),V(1),sWS,sT0,4*k))
    check_order(P)
    out=finalize(P,verbose=OPT['v'],name='main')
    hdr=open('recurrent_scan__mha_block__glu_gated_reglu__prompt.s.ref').read().split('; Override launch')[0]
    txt=hdr+'; @launch grid=(256,1,1) block=(256,1,1) lds=163840\n.amdgcn_target "amdgcn-amd-amdhsa--gfx950"\n.text\n'
    txt+=f'.globl {NAME}\n.p2align 8\n.type {NAME},@function\n{NAME}:\n'
    txt+='\n'.join(i.text for i in out)+'\ns_endpgm\nL_codeend:\n'+'\n'.join(OUT)+'\ns_endpgm\n'
    txt+=f'''.section .rodata,"a"
.p2align 6
.amdhsa_kernel {NAME}
  .amdhsa_next_free_vgpr 512
  .amdhsa_next_free_sgpr 102
  .amdhsa_accum_offset 256
  .amdhsa_group_segment_fixed_size 0
  .amdhsa_kernarg_size 80
  .amdhsa_user_sgpr_count 2
  .amdhsa_user_sgpr_kernarg_segment_ptr 1
  .amdhsa_system_sgpr_workgroup_id_x 1
  .amdhsa_float_denorm_mode_32 3
.end_amdhsa_kernel
'''
    open(sys.argv[1],'w').write(txt)
    print('bytes',len(txt))
main()
```

```python
import sys, struct, contextlib
from asmlib import *

OPT=dict(stop='', stamps=0, pf=1, dmagap=4, look=13, stgap=24, n0=12, v=1, forcefb=0, astgap=7, f2bar=3, f2poll=60, f2chk=66, dbgout=0)
for a in sys.argv[2:]:
    k,v=a.split('='); OPT[k]=int(v) if v.lstrip('-').isdigit() else v
NAME='recurrent_scan__mha_block__glu_gated_reglu__prompt_kernel'

WS_QKV=0; SL=81920
WS_P=0x800000; WS_PX=0x2800000; WS_O=0x2C00000; WS_OX=0x2E00000; WS_F3=0x2E40000; WS_R2=0x2E60000; WS_STAMP=0x2F00000
OOB=0x80000000
LDS_OOB=0x30000
def f32(x): return struct.unpack('<I',struct.pack('<f',x))[0]
QSCALE=18**-0.5*1.4426950408889634
MARGIN=80.0

sX,sWQ,sWO,sWG,sWU,sWD,sOUT,sDBG,sWS=[S(4+4*n,4) for n in range(9)]
sW,sW1K,sI,sJ,sH,sIDX,sT0,sT1,sSO,sSO2=[S(40+n) for n in range(10)]
sLO,sHI,sONES,sW7K,sW5K=[S(50+n) for n in range(5)]
sSC=[S(55),S(56),S(57)]
sW18K,sJ1,sXC,sM8,sT2,sT3=[S(58+n) for n in range(6)]
sJ128,sJH=S(3),S(94); sSO3=S(95)
sBD,sBL,sPC=S(96,2),S(98,2),S(100,2)
nstamp=[0]
def stamp(name):
    if not OPT['stamps']: return
    n=nstamp[0]; nstamp[0]+=1
    assert n<15
    e(raw(f'{"s_memrealtime" if OPT["stamps"]==1 else "s_memtime"} s[{64+2*n}:{65+2*n}]','misc'))
    print('stamp',n,name)

vL=V(0)
vT=[V(1+n) for n in range(8)]
vR=[V(9),V(10)]
vM=[V(11),V(12)]
vPF=V(13)
vGF,vGH,vDF,vDH=[V(14+n) for n in range(4)]
vTR=[[V(18+3*q+n) for n in range(3)] for q in range(4)]
vQK=[V(30+n) for n in range(7)]
vQM=[V(37+n) for n in range(3)]; vQE=[V(40+n) for n in range(3)]
vSM,vSE0,vSE1,vSCX=[V(43+n) for n in range(4)]
vPS,vPX=V(47),V(48)
vF1,vONE=V(49),V(50)
vPG,vF3,vPOLL=V(51),V(52),V(53)
vCT=[V(248+n) for n in range(8)]
XC1=V(56,72)
BANK=[V(128,64),V(192,64)]
XC0=A(0,72); HH=A(72,72); FR=A(144,64)
vKM,vKE=V(30),V(31); vVA=[V(32+n) for n in range(4)]
vKV,vWO,vWOE,vWX,vWXE=[V(36+n) for n in range(5)]
vPL,vPLX,vOL,vOLX,vOS,vOSX=[V(41+n) for n in range(6)]
vIDX,vF3L=V(54),V(55)
vXO,vXOX,vR2,vZ=V(11),V(12),V(9),V(10)
QE=[V(14,2),V(16,2)]
QM=[A(0,4),A(4,4)]
OO=[A(8,16),A(24,16)]
KM=[A(40+4*n,4) for n in range(3)]; KE=[A(52+2*n,2) for n in range(3)]
VV=[A(208,8),A(216,8)]
XR=A(224,10)
PART=[A(60+4*n,4) for n in range(32)]
PARTX=[A(188+2*n,2) for n in range(10)]+[A(236+2*n,2) for n in range(6)]
SB=[V(176+16*n,16) for n in range(5)]

P=[]
cur=[-10**6,0]
sink=[None]
def setseq(i,gap=None):
    if 'seq' not in i.meta:
        cur[1]+=1; i.meta['seq']=(cur[0] if gap is None else gap,cur[1])
    return i
def e(*x):
    for i in x:
        if sink[0] is not None: sink[0].append(i)
        else: P.append(setseq(i)); i.meta['at']=cur[0]
@contextlib.contextmanager
def collect():
    o=[]; old=sink[0]; sink[0]=o
    yield o
    sink[0]=old
fifo=dict(dma=[],st=[],ld=[],ctr=[],epi=[],low=[])
def push(q,after,ops,logical=None):
    for o in ops: fifo[q].append((after,setseq(o,logical)))
def masked(dst,val,cmpop,a,b,tmp):
    e(valu(cmpop,'vcc',a,b), valu('v_mov_b32',tmp,OOB), valu('v_cndmask_b32',dst,tmp,val))

def prologue():
    e(salu('s_cmp_ge_u32',S(2),256), raw('s_cbranch_scc0 L_go','misc'), raw('s_endpgm','misc'), label('L_go'))
    stamp('start')
    for srd,off in ((sX,0),(sWG,32),(sWU,40),(sWQ,8),(sWO,16),(sWD,48),(sOUT,56),(sDBG,64),(sWS,72)):
        e(raw(f's_load_dwordx2 {srd[0:2]}, s[0:1], {off}','misc'))
    e(valu('v_lshrrev_b32',vT[0],6,V(0)), valu('v_and_b32',vL,63,V(0)))
    e(valu('v_readfirstlane_b32',sW,vT[0]))
    e(salu('s_and_b32',sXC,S(2),7), salu('s_lshr_b32',sIDX,S(2),3))
    e(salu('s_lshr_b32',sM8,sIDX,2), salu('s_lshl_b32',sI,sM8,1), salu('s_and_b32',sT2,sXC,1), salu('s_add_u32',sI,sI,sT2))
    e(salu('s_mul_i32',sW18K,sW,18432))
    vx0,vx1,row,t=vT[0],vT[1],vT[2],vT[3]
    e(salu('s_lshl_b32',sT2,sI,2), salu('s_add_u32',sT2,sT2,sW), salu('s_lshl_b32',sT2,sT2,5))
    e(valu('v_lshrrev_b32',row,3,vL), valu('v_lshrrev_b32',t,4,vL), valu('v_and_b32',vx0,7,vL), valu('v_xor_b32',vx0,vx0,t),
      valu('v_xor_b32',vx1,4,vx0), valu('v_add_u32',t,sT2,row), valu('v_mul_u32_u24',t,1152,t),
      valu('v_lshl_add_u32',vx0,vx0,4,t), valu('v_lshl_add_u32',vx1,vx1,4,t), valu('v_add_u32',vx1,8*1152-1024,vx1))
    e(salu('s_lshr_b32',sJ,sXC,1), salu('s_lshl_b32',sJ,sJ,2), salu('s_and_b32',sT2,sIDX,3), salu('s_add_u32',sJ,sJ,sT2))
    e(salu('s_lshl_b32',sH,sXC,2), salu('s_add_u32',sH,sH,sT2), salu('s_and_b32',sJ1,sJ,1))
    e(salu('s_lshl_b32',sW1K,sW,10), salu('s_mul_i32',sW7K,sW,7168), salu('s_mul_i32',sW5K,sW,5120))
    for srd,n in ((sX,2048*1152),(sWQ,576*3456),(sWO,576*1152),(sWG,576*9216),(sWU,576*9216),(sWD,4608*1152),(sOUT,2048*1152),(sDBG,256),(sWS,0x10000000)):
        e(salu('s_mov_b32',srd[2],n), salu('s_mov_b32',srd[3],0x20000))
    e(salu('s_mov_b32',sLO,0x3f80), salu('s_mov_b32',sHI,0x3f800000), salu('s_mov_b32',sONES,0x3f803f80))
    e(salu('s_lshl_b32',sJ128,sJ1,7), salu('s_lshl_b32',sJH,sJ1,9), salu('s_sub_u32',sJH,512,sJH))
    e(salu('s_lshl_b32',sT0,sM8,2), salu('s_add_u32',sT0,sT0,sW), salu('s_mul_i32',sT0,sT0,18*9216), salu('s_mul_i32',sT1,sJ,576), salu('s_and_b32',sT1,sT1,-128), salu('s_add_u32',sT0,sT0,sT1),
      valu('v_mul_u32_u24',t,9216,vL), valu('v_add_u32',t,sT0,t))
    masked(vPG,t,'v_cmp_gt_u32',18,vL,row)
    e(raw('s_waitcnt lgkmcnt(0)','misc'))
def xdma(tt,l):
    base=sX[0:2] if tt==0 else sBL
    return [salu('s_add_u32','m0',sW18K,tt*73728+l*1920), gdma(vT[0],base,l*128,tag=('x',tt,l),private=True), gdma(vT[1],base,l*128+1024,tag=('x',tt,l),private=True)]
def pf_gu(c):
    if not OPT['pf']: return []
    if c<4: return [bload(vPF,vPG,s,sJ128,c*128,tag='pf') for s in (sWG,sWU)]
    return [bload(vPF,vPG,s,sJH,0,tag='pf') for s in (sWG,sWU)]

def lane_rp(rp,p,t):
    e(valu('v_lshrrev_b32',rp,3,vL), valu('v_and_b32',t,6,rp), valu('v_and_b32',p,7,vL), valu('v_xor_b32',p,p,t))
def addr_early():
    rp,p,t,u,kA=vT[2],vT[3],vT[4],vT[5],vT[6]
    lane_rp(rp,p,t)
    e(salu('s_and_b32',sT0,sW,1), salu('s_lshl_b32',sT0,sT0,4), salu('s_lshr_b32',sT1,sW,1), salu('s_lshl_b32',sT1,sT1,2), salu('s_add_u32',sT0,sT0,sT1))
    e(valu('v_and_b32',t,4,rp), valu('v_add_u32',kA,rp,t), valu('v_add_u32',kA,sT0,kA))
    e(salu('s_mul_i32',sT1,sJ,288), salu('s_lshl_b32',sT2,sJ1,5), salu('s_add_u32',sT2,sT2,sT1))
    e(salu('s_lshl_b32',sT3,sJ1,8), salu('s_sub_u32',sT3,256,sT3), salu('s_add_u32',sT3,sT3,sT1))
    e(salu('s_lshl_b32',sT0,sT2,1), valu('v_mul_u32_u24',t,9216,kA), valu('v_lshl_add_u32',t,p,4,t), valu('v_add_u32',vGF,sT0,t))
    e(salu('s_lshl_b32',sT0,sT3,1), valu('v_lshrrev_b32',t,2,p), valu('v_lshl_add_u32',t,t,5,kA), valu('v_mul_u32_u24',t,9216,t),
      valu('v_and_b32',u,3,p), valu('v_lshl_add_u32',t,u,4,t), valu('v_add_u32',vGH,sT0,t))
    e(salu('s_lshl_b32',sT0,sW,3), valu('v_add_u32',t,sT0,rp), valu('v_add_u32',u,sT2,t), valu('v_mul_u32_u24',u,1152,u), valu('v_lshl_add_u32',vDF,p,4,u),
      valu('v_add_u32',u,sT3,t), valu('v_mul_u32_u24',u,1152,u), valu('v_lshl_add_u32',vDH,p,4,u))
    g,r4,c,b=vT[2],vT[3],vT[6],vT[7]
    e(valu('v_bfe_u32',r4,vL,2,3), valu('v_and_b32',c,3,vL), valu('v_lshrrev_b32',g,5,vL),
      valu('v_lshlrev_b32',b,10,g), valu('v_lshl_add_u32',b,r4,7,b), valu('v_lshl_add_u32',b,c,3,b), valu('v_lshrrev_b32',t,1,r4))
    for q in range(4):
        e(valu('v_xor_b32',u,q,t), valu('v_lshl_add_u32',vTR[q][0],u,5,b), valu('v_add_u32',vTR[q][1],0x10000,vTR[q][0]), valu('v_add_u32',vTR[q][2],0x20000,vTR[q][0]))
    e(salu('s_mul_i32',sT0,sJ,216), salu('s_and_b32',sT0,sT0,-16), salu('s_mul_i32',sT1,sW,32*3456), salu('s_add_u32',sT0,sT0,sT1))
    for q in range(7):
        pp,rr,k=vT[2],vT[3],vT[6]
        e(valu('v_add_u32',pp,64*q,vL), valu('v_mul_u32_u24',rr,4682,pp), valu('v_lshrrev_b32',rr,16,rr),
          valu('v_mul_u32_u24',t,14,rr), valu('v_sub_u32',pp,pp,t),
          valu('v_and_b32',t,12,rr), valu('v_and_b32',k,3,rr), valu('v_lshl_add_u32',k,t,1,k), valu('v_lshrrev_b32',t,4,rr), valu('v_lshl_add_u32',k,t,2,k),
          valu('v_mul_u32_u24',k,3456,k), valu('v_lshl_add_u32',k,pp,4,k), valu('v_add_u32',vQK[q],sT0,k))
        if q%4: e(valu('v_subrev_u32',vQK[q],1024*(q%4),vQK[q]))
def extpos(dst,key,t):
    e(valu('v_and_b32',dst,7,key), valu('v_bfe_u32',t,key,4,1), valu('v_lshl_add_u32',dst,t,3,dst),
      valu('v_bfe_u32',t,key,3,1), valu('v_xor_b32',t,1,t), valu('v_lshl_add_u32',dst,t,4,dst))
def addr_mid():
    t,u,c=vT[4],vT[5],vT[6]
    e(valu('v_and_b32',c,3,vL), salu('s_lshl_b32',sT0,sJ1,3), valu('v_lshrrev_b32',t,2,vL), valu('v_mul_u32_u24',t,224,t), valu('v_add_u32',t,sT0,t),
      valu('v_lshl_add_u32',vQM[0],c,3,t), valu('v_mul_u32_u24',u,72,c), valu('v_add3_u32',vQE[0],t,u,32))
    for n in (1,2): e(valu('v_add_u32',vQM[n],n*0x10000,vQM[0]), valu('v_add_u32',vQE[n],n*0x10000,vQE[0]))
def addr_mid2():
    t,u,key,hf=vT[4],vT[5],vT[2],vT[3]
    e(salu('s_lshl_b32',sT0,sI,2), salu('s_add_u32',sT0,sT0,sW), salu('s_mul_i32',sT0,sT0,1280), salu('s_mul_i32',sT1,sJ,6*SL), salu('s_add_u32',sT0,sT0,sT1))
    e(valu('v_and_b32',key,31,vL), valu('v_lshrrev_b32',hf,5,vL), valu('v_lshlrev_b32',t,2,hf), valu('v_xor_b32',t,t,vL), valu('v_lshlrev_b32',t,4,t), valu('v_add_u32',vSM,sT0,t))
    extpos(u,key,t)
    e(valu('v_lshlrev_b32',u,3,u), valu('v_add_u32',u,sT0,u), valu('v_add_u32',u,1024,u), valu('v_mul_u32_u24',t,4*SL,hf), valu('v_add_u32',vSE0,u,t),
      valu('v_lshl_add_u32',vSE1,hf,31,u))
    e(salu('s_mul_i32',sT0,sJ,6), valu('v_lshrrev_b32',t,4,vL), valu('v_lshl_add_u32',t,t,1,sT0), valu('v_mov_b32',u,f32(QSCALE)), valu('v_cmp_gt_u32','vcc',32,t), valu('v_cndmask_b32',vSCX,1.0,u))
    for p_ in range(3): e(valu('v_readlane_b32',sSC[p_],vSCX,16*p_))
    e(salu('s_lshl_b32',sT0,sI,2), salu('s_add_u32',sT0,sT0,sW), salu('s_lshl_b32',sT1,sT0,9), salu('s_add_u32',sT1,sT1,sJ), salu('s_lshl_b32',sT1,sT1,10),
      valu('v_lshl_add_u32',vPS,vL,4,sT1),
      salu('s_lshl_b32',sT1,sT0,7), salu('s_add_u32',sT1,sT1,sJ), salu('s_lshl_b32',sT1,sT1,9), valu('v_lshl_add_u32',vPX,vL,3,sT1))
    e(valu('v_add_u32',t,sW,vL), valu('v_lshlrev_b32',vF1,12,t), valu('v_mov_b32',vONE,1))
    e(salu('s_lshl_b32',sT1,sM8,2), salu('s_add_u32',sT1,sT1,sW), salu('s_lshl_b32',sT1,sT1,5), salu('s_add_u32',sT1,sT1,sH), salu('s_lshl_b32',sT1,sT1,7), salu('s_add_u32',sT1,sT1,WS_F3),
      valu('v_mov_b32',t,sT1))
    masked(vF3,t,'v_cmp_eq_u32',0,vL,u)
    e(valu('v_mov_b32',t,0), bstore(t,vF3,sWS,0,flags='sc1',tag='qkvst'))
    e(valu('v_and_b32',key,16,vL), valu('v_cmp_eq_u32','vcc',0,key), valu('v_cndmask_b32',hf,vR[1],vR[0]), valu('v_mul_f32',hf,hf,hf),
      salu('s_lshl_b32',sT0,sT0,7), salu('s_add_u32',sT0,sT0,WS_R2), valu('v_lshl_add_u32',key,vL,2,sT0), salu('s_lshl_b32',sT1,sJ,6), valu('v_add_u32',t,sT1,vL))
    masked(key,key,'v_cmp_gt_u32',32,t,u)
    e(bstore(hf,key,sWS,0,flags='sc1',tag='qkvst'))
def pf_q_ops():
    if not OPT['pf']: return
    t,u,r=vT[4],vT[5],vT[6]
    e(valu('v_mul_u32_u24',t,3641,vL), valu('v_lshrrev_b32',t,16,t), valu('v_mul_u32_u24',u,18,t), valu('v_sub_u32',u,vL,u), valu('v_mul_u32_u24',u,3456,u), valu('v_lshl_add_u32',u,t,7,u),
      salu('s_lshl_b32',sT0,sM8,2), salu('s_add_u32',sT0,sT0,sW), salu('s_mul_i32',sT0,sT0,18*3456), salu('s_mul_i32',sT1,sJ,216), salu('s_and_b32',sT1,sT1,-128), salu('s_add_u32',sT0,sT0,sT1),
      valu('v_add_u32',u,sT0,u))
    masked(u,u,'v_cmp_gt_u32',54,vL,r)
    e(bload(vPF,u,sWQ,0,tag='pf'))
def pf_d_ops():
    if not OPT['pf']: return
    t,u,r=vT[4],vT[5],vT[6]
    e(salu('s_lshl_b32',sT0,sM8,2), salu('s_add_u32',sT0,sT0,sW), salu('s_mul_i32',sT0,sT0,81*128), salu('s_mul_i32',sT1,sJ,288*1152), salu('s_add_u32',sT0,sT0,sT1),
      valu('v_lshl_add_u32',t,vL,7,sT0), valu('v_add_u32',u,8192,t))
    masked(u,u,'v_cmp_gt_u32',17,vL,r)
    e(bload(vPF,t,sWD,0,tag='pf'), bload(vPF,u,sWD,0,tag='pf'))
def pf_code():
    if not OPT['pf']: return
    t=vT[4]; a=V(6,2)
    e(raw('s_getpc_b64 s[100:101]','salu',[],['s100','s101']), label('L_pc'),
      salu('s_lshl_b32',sT0,sIDX,2), salu('s_add_u32',sT0,sT0,sW), valu('v_and_b32',t,7,vL), valu('v_lshl_add_u32',t,t,7,sT0), valu('v_lshlrev_b32',t,7,t),
      raw(f'v_min_u32 {t}, L_codeend-L_pc-4, {t}','valu',t.regs(),t.regs()),
      valu('v_mov_b32',a[1],sPC[1]), raw(f'v_add_co_u32 {a[0]}, vcc, {sPC[0]}, {t}','valu',t.regs()+['s100'],a[0].regs()+['vcc']),
      raw(f'v_addc_co_u32 {a[1]}, vcc, 0, {a[1]}, vcc','valu',a[1].regs()+['vcc'],a[1].regs()+['vcc']),
      I(f'global_load_dword {vPF}, {a}, off','vld',a.regs(),vPF.regs(),tag='pf'))

def stats_ops(src,s,acc):
    o=[]
    for d in range(4):
        x=src[4*s+d]
        first=(s==0 and d<2)
        o.append(valu('v_dot2_f32_bf16',acc[d&1],x,sONES,0 if first else acc[d&1]))
        o.append(valu('v_dot2_f32_bf16',acc[2+(d&1)],x,x,0 if first else acc[2+(d&1)]))
    return o
def stats_final(tt,acc):
    a,b=acc[0],acc[2]
    o=[valu('v_add_f32',a,acc[0],acc[1]), valu('v_add_f32',b,acc[2],acc[3])]
    for op in ('v_permlane16_swap_b32','v_permlane32_swap_b32'):
        o+=[valu('v_mov_b32',acc[1],a), valu('v_mov_b32',acc[3],b), swap(op,a,acc[1]), swap(op,b,acc[3]),
            valu('v_add_f32',a,a,acc[1]), valu('v_add_f32',b,b,acc[3])]
    o+=[valu('v_mul_f32',a,f32(1/576),a), valu('v_mul_f32',b,f32(1/576),b), valu('v_fma_f32',b,'-'+str(a),a,b), valu('v_max_f32',b,0,b),
        valu('v_cvt_pk_bf16_f32',a,b,a), valu('v_and_b32',vM[tt],0xffff0000,a)]
    o2=[valu('v_lshlrev_b32',b,16,a),
        valu('v_add_f32',b,f32(1e-5),b), valu('v_cvt_pk_bf16_f32',b,b,b), valu('v_lshlrev_b32',b,16,b),
        valu('v_sqrt_f32',b,b), valu('v_cvt_pk_bf16_f32',b,b,b), valu('v_lshlrev_b32',b,16,b), valu('v_rcp_f32',vR[tt],b)]
    return o,o2
def centre_ops(src,s,tt,dstA=None,plain=False):
    o=[]
    for d in range(4):
        x=src[4*s+d]
        if plain:
            o+=[valu('v_lshlrev_b32',vCT[0],16,x), valu('v_and_b32',x,0xffff0000,x), valu('v_sub_f32',vCT[0],vCT[0],vM[tt]), valu('v_sub_f32',x,x,vM[tt]), valu('v_cvt_pk_bf16_f32',x,vCT[0],x)]
            continue
        o.append(valu('v_dot2_f32_bf16',vCT[2*d],x,sLO,vM[tt],mods='neg_lo:[0,0,1]'))
        o.append(valu('v_dot2_f32_bf16',vCT[2*d+1],x,sHI,vM[tt],mods='neg_lo:[0,0,1]'))
    if plain: return o
    for d in range(4):
        o.append(valu('v_cvt_pk_bf16_f32',src[4*s+d],vCT[2*d],vCT[2*d+1]))
    if dstA is not None:
        for d in range(4): o.append(valu('v_accvgpr_write_b32',dstA[4*s+d],src[4*s+d]))
    return o

class Item:
    def __init__(s,name,n,mk): s.name=name; s.n=n; s.mk=mk; s.addr=None; s.first=None; s.last=None
    def blks(s): return list(range(s.addr//4096,s.addr//4096+s.n))
def blk_item(name,voff,srd,soff,buf=False):
    def mk(it):
        o=[salu('s_add_u32','m0',sW1K,it.addr)]
        if buf: return o+[salu('s_mov_b32',sSO,soff), dma(voff,srd,sSO,tag=it.name,dst=it.blks())]
        return o+base_add(sBD,srd,soff)+[gdma(voff,sBD,tag=it.name,dst=it.blks())]
    return Item(name,1,mk)
def qkv_item(a):
    def mk(it):
        o=[salu('s_mov_b32',sSO,a*128*3456)] if a==4 else base_add(sBD,sWQ,a*128*3456)
        for q in range(7):
            if q%4==0: o.append(salu('s_add_u32','m0',sW7K,it.addr+q*1024))
            if a==4: o.append(dma(vQK[q],sWQ,sSO,(q%4)*1024,tag=it.name,dst=it.blks()))
            else: o.append(gdma(vQK[q],sBD,(q%4)*1024,tag=it.name,dst=it.blks()))
        return o
    return Item(('q',a),7,mk)
def kv_item(sg):
    def mk(it):
        o=[]
        for q in range(5):
            if q%4==0: o+=[salu('s_add_u32','m0',sW5K,it.addr+q*1024)]+base_add(sBD,sWS,WS_QKV+sg*10240+q*1024)
            o.append(gdma(vKV,sBD,(q%4)*1024,flags='sc1',tag=it.name,dst=it.blks())); o[-1].rd.append('ok_f1')
        return o
    return Item(('kv',sg),5,mk)

class Group:
    def __init__(s): s.m=[]; s.rd=[]; s.bar=False; s.fr=[]
frp=[0]
def newfrag():
    f=FR[frp[0]:frp[0]+4]; frp[0]=(frp[0]+4)%FR.n; return f
def tr_read(f,u,it,seg):
    return dsr('ds_read_b64_tr_b16',f[2*u:2*u+2],vTR[seg][it.addr>>16],(it.addr&0xffff)+u*2048,src=(it.name,it.blks()))
def xc(tt,s): return (XC0 if tt==0 else XC1)[4*s:4*s+4]
def hfrag(k,tt): return HH[8*k+4*tt:8*k+4*tt+4]

items=[]; groups=[]; events=[]
def mm_group(srcs,accs,bfun,bar=False):
    g=Group(); g.bar=bar
    for it,seg,k in srcs:
        f=newfrag(); g.fr.append(f)
        for u in range(2): g.rd.append((it,lambda it,f=f,u=u,seg=seg: tr_read(f,u,it,seg)))
    for tt in range(2):
        for (it,seg,k),f in zip(srcs,g.fr):
            g.m.append(m16(accs[tt],f,bfun(k,tt),0 if k==0 else accs[tt]))
    groups.append(g); return len(groups)-1

def h_epilogue(bank,q,kout,half):
    gt=[bank[16*q+4*tt:16*q+4*tt+4] for tt in range(2)]; up=[bank[16*q+8+4*tt:16*q+12+4*tt] for tt in range(2)]
    o=[]
    for tt in range(2):
        for r in range(4): o.append(valu('v_max_f32',gt[tt][r],0,gt[tt][r]))
    for tt in range(2):
        for r in range(4): o.append(valu('v_mul_f32',up[tt][r],gt[tt][r],up[tt][r]))
        for d in range(2): o.append(valu('v_cvt_pk_bf16_f32',gt[tt][d],up[tt][2*d],up[tt][2*d+1]))
        for d in range(2): o.append(valu('v_accvgpr_write_b32',hfrag(kout,tt)[2*half+d],gt[tt][d]))
    return o
def build_chunk(c,bank):
    for st in range(6):
        G=[blk_item(('g',c,3*st+n),vGF,sWG,(3*st+n)*32*9216+c*128) for n in range(3)]
        U=[blk_item(('u',c,3*st+n),vGF,sWU,(3*st+n)*32*9216+c*128) for n in range(3)]
        items.extend(G+U)
        for q in range(4):
            mm_group([(G[n],q,3*st+n) for n in range(3)],[bank[16*q+4*tt:16*q+4*tt+4] for tt in range(2)],lambda k,tt:xc(tt,k),bar=(q==0))
            gi=mm_group([(U[n],q,3*st+n) for n in range(3)],[bank[16*q+8+4*tt:16*q+12+4*tt] for tt in range(2)],lambda k,tt:xc(tt,k))
            if st==5: events.append((gi,h_epilogue(bank,q,2*c+(q>>1),q&1)))
def build_half(bank):
    for st in range(3):
        G=[blk_item(('gh',3*st+n),vGH,sWG,(3*st+n)*64*9216) for n in range(3)]
        U=[blk_item(('uh',3*st+n),vGH,sWU,(3*st+n)*64*9216) for n in range(3)]
        items.extend(G+U)
        first=True
        for q in range(2):
            for M,o in ((G,0),(U,8)):
                for hh in range(2):
                    ks=[6*st+3*hh+n for n in range(3)]
                    gi=mm_group([(M[(k-6*st)>>1],2*(k&1)+q,k) for k in ks],[bank[16*q+o+4*tt:16*q+o+4+4*tt] for tt in range(2)],lambda k,tt:xc(tt,k),bar=first)
                    first=False
            if st==2: events.append((gi,h_epilogue(bank,q,8,q)))
def build_qkv(bank):
    for a in range(5):
        it=qkv_item(a); items.append(it)
        first=True
        for k0 in range(0,4 if a<4 else 2,2):
            for t in range(7):
                g=Group(); g.bar=first; first=False
                for kk in (k0,k0+1):
                    f=newfrag(); g.fr.append(f)
                    for u in range(2):
                        def rd(it,f=f,u=u,kk=kk,t=t):
                            ad=it.addr+kk*7168+u*3584+(0 if t==6 else 72*(t>>1)+40*(t&1))
                            return dsr('ds_read_b64_tr_b16',f[2*u:2*u+2],(vQE if t==6 else vQM)[ad>>16],ad&0xffff,src=(it.name,it.blks()))
                        g.rd.append((it,rd))
                for tt in range(2):
                    acc=bank[8*t+4*tt:8*t+4*tt+4]
                    for n,kk in enumerate((k0,k0+1)):
                        k=4*a+kk
                        g.m.append(m16(acc,g.fr[n],xc(tt,k),0 if k==0 else acc))
                groups.append(g)
                if a==4: events.append((len(groups)-1,qkv_epilogue(bank,t)))
def st_pair(o,data,voff,soff,tag):
    a=salu('s_mov_b32',sSO2,soff); b=bstore(data,voff,sWS,sSO2,flags='sc1',tag=tag)
    dep=[x for x in o if x.kind=='valu'][-1]
    a.meta['q']='st'; b.meta['q']='st'; b.meta['dep']=dep
    o+=[a,b]
def qkv_epilogue(bank,t):
    o=[]
    sc=[bank[56],bank[57]]
    if t==6: o+=[valu('v_mul_f32',sc[tt],vSCX,vR[tt]) for tt in range(2)]
    elif t%2==0: o+=[valu('v_mul_f32',sc[tt],sSC[t>>1],vR[tt]) for tt in range(2)]
    a=bank[8*t:8*t+8]
    for tt in range(2):
        for r in range(4): o.append(valu('v_mul_f32',a[4*tt+r],sc[tt],a[4*tt+r]))
    if t<6:
        o+=[valu('v_cvt_pk_bf16_f32',a[0],a[0],a[1]), valu('v_cvt_pk_bf16_f32',a[1],a[2],a[3]), valu('v_cvt_pk_bf16_f32',a[2],a[4],a[5]), valu('v_cvt_pk_bf16_f32',a[3],a[6],a[7]),
            swap('v_permlane16_swap_b32',a[0],a[2]), swap('v_permlane16_swap_b32',a[1],a[3])]
        st_pair(o,a[0:4],vSM,WS_QKV+t*SL,'qkvst')
    else:
        o+=[valu('v_cvt_pk_bf16_f32',a[0],a[0],a[1]), valu('v_cvt_pk_bf16_f32',a[2],a[2],a[3]), valu('v_cvt_pk_bf16_f32',a[4],a[4],a[5]), valu('v_cvt_pk_bf16_f32',a[6],a[6],a[7])]
        o+=[valu('v_mov_b32',a[n],sONES) for n in (1,3,5,7)]
        o+=[swap('v_permlane16_swap_b32',a[0],a[4]), swap('v_permlane16_swap_b32',a[2],a[6])]
        for n,(vo,sl) in enumerate(((vSE0,0),(vSE0,1),(vSE1,2),(vSE1,3))):
            st_pair(o,a[2*n:2*n+2],vo,WS_QKV+sl*SL,'qkvst')
    return o
pool=[0]
def build_down():
    ntr=0
    for c in range(9):
        acc=V(192 if c==0 else 128+32*((c+1)%2),32)
        for tr in range(3):
            B=[blk_item(('d',c,k),vDF if k<8 else vDH,sWD,(k*32*1152 if k<8 else 0)+c*128) for k in range(3*tr,3*tr+3)]
            items.extend(B)
            for q in range(4):
                gi=mm_group([(B[n],q,3*tr+n) for n in range(3)],[acc[16*tt+4*q:16*tt+4*q+4] for tt in range(2)],hfrag,bar=(q==0 and ntr%2==0))
                if tr==2 and q%2==1:
                    o=[]
                    for tt in range(2):
                        a=acc[16*tt+4*(q-1):16*tt+4*(q-1)+8]
                        d4=XC1[pool[0]:pool[0]+4]; pool[0]=(pool[0]+4)%72
                        o+=[valu('v_cvt_pk_bf16_f32',d4[d],a[2*d],a[2*d+1]) for d in range(4)]
                        if c<8: st_pair(o,d4,vPS,WS_P+(tt*16+c*2+(q>>1))*16384,'pst')
                        else:
                            for z in range(2): st_pair(o,d4[2*z:2*z+2],vPX,WS_PX+(tt*4+q-1+z)*8192,'pst')
                    events.append((gi,o))
            ntr+=1

marks={}
def build_ffn():
    marks['c0']=len(groups); build_chunk(0,BANK[0])
    marks['c1']=len(groups); build_chunk(1,BANK[1])
    marks['qkv']=len(groups); build_qkv(BANK[0])
    marks['c2']=len(groups); build_chunk(2,BANK[1])
    marks['c3']=len(groups); build_chunk(3,BANK[0])
    marks['half']=len(groups); build_half(V(224,32))
    marks['down']=len(groups); build_down()

NB=40; LATE=10**9
def plan():
    L=OPT['look']
    n=0; bars=[]
    for g in groups:
        g.start=n
        if g.bar: bars.append(n-L)
        for k,(it,_) in enumerate(g.rd):
            if it.first is None: it.first=n+k-L
            it.last=n-1
        n+=len(g.m)
    free={b:(-3000 if b>=36 else (-2000 if b<18 else -L)) for b in range(NB)}
    ptr=36
    for it in items:
        if ptr+it.n>NB: ptr=0
        it.addr=ptr*4096
        it.early=max(free[b] for b in it.blks())
        assert it.early<LATE
        it.bar=max(b for b in bars if b<=it.first)
        nxt=[b for b in bars if b>it.last]
        for b in it.blks(): free[b]=nxt[0] if nxt else LATE
        ptr=(ptr+it.n)%NB
    return n,bars,free

VM=('dma','vld','vst')
SC=('salu','waitfor','misc','label')
lastvm=dict(any=-100,st=-100)
def head(nm,gap):
    q=fifo[nm]
    if not q or q[0][0]>gap: return None
    return q[0][1]
def vm_ready(gap,mingap,stgap):
    if gap-lastvm['any']<mingap: return None
    for nm in ('dma','ld','st','low'):
        x=head(nm,gap)
        if x is None or x.kind not in VM: continue
        if nm=='st':
            d=x.meta.get('dep')
            if gap-lastvm['st']<stgap or (d is not None and d.meta.get('at',LATE)>gap-2): continue
        return nm
    return None
def take(nm,gap):
    x=fifo[nm].pop(0)[1]
    if x.kind in VM:
        lastvm['any']=gap
        if nm=='st': lastvm['st']=gap
    e(x)
    while x.meta.get('glue'):
        x=fifo[nm].pop(0)[1]; e(x)
    return x
def pull(gap,scalar):
    order=('dma','ld','st','ctr','epi','low')
    if scalar:
        for nm in order:
            x=head(nm,gap)
            if x is not None and 'carry' in x.rd: take(nm,gap); return True
    for nm in order:
        x=head(nm,gap)
        if x is None or x.kind in VM: continue
        if (x.kind in SC)!=scalar: continue
        take(nm,gap); return True
    return False

bar_extra={}
def emit_backbone(bars,gapstamps):
    L=OPT['look']
    reads=[(it,f,g.start-0.5) for g in groups for it,f in g.rd]
    ev={}
    for gi,ops in events: ev.setdefault(gi,[]).append(ops)
    bar_items={}
    for it in items: bar_items.setdefault(it.bar,[]).append(it.name)
    barset=set(bars); issue={}
    fixed={}
    for gi,g in enumerate(groups):
        for k in range(len(g.m)):
            gap=g.start+k; fx=[]
            w_lg=groups[gi+1].fr if (k==len(g.m)-1 and gi+1<len(groups)) else []
            w_vm=(bar_items.get(gap+1,[])+bar_extra.get(gap+1,[])) if gap+1 in barset else []
            if gap in barset: fx.append(barrier())
            if w_lg or w_vm: fx.append(waitfor(lg=w_lg,vmtags=w_vm))
            fixed[gap]=fx
    ri=[L]
    def rd():
        it,f,lg=reads[ri[0]]; ri[0]+=1; e(setseq(f(it),lg))
    planned=None
    for gi,g in enumerate(groups):
        for k,m in enumerate(g.m):
            gap=g.start+k; cur[0]=gap
            e(m)
            if gap in gapstamps: stamp(gapstamps[gap])
            if planned:
                x=take(planned,gap); planned=None
                if x.kind=='dma': issue[x.meta['tag']]=gap
                continue
            fx=fixed[gap]
            if fx: e(fx.pop(0))
            else: pull(gap,True)
            if ri[0]<len(reads) and ri[0]<=gap+L: rd()
            if fx: e(fx.pop(0)); continue
            if ri[0]<len(reads) and ri[0]<=gap+L: rd(); continue
            if gap+1 in fixed and not fixed[gap+1]: planned=vm_ready(gap+1,OPT['dmagap'],OPT['stgap'] if gap>=groups[marks['down']].start else 8)
            if planned:
                if ri[0]<len(reads) and reads[ri[0]][0].bar<=gap: rd()
                continue
            if not pull(gap,False): pull(gap,True)
        for ops in ev.get(gi,[]):
            for o in ops: push(o.meta.get('q','epi'),gap+4,[o])
    sl=[(it.bar-issue[it.name],it.name) for it in items if it.name in issue]
    sl.sort(); print('min dma slack (gaps):',sl[:6])
    print('left after backbone:',{k:len(v) for k,v in fifo.items()})

OUT=[]
def spin(name,load,expect):
    a=valu('v_cmp_gt_u32','vcc',expect,vPOLL); a.meta['glue']=True
    b=raw(f's_cbranch_vccnz L_spin_{name}','misc',['vcc']); b.meta['glue']=True
    c=label(f'L_back_{name}')
    cnt=vT[7]
    OUT.extend([f'L_spin_{name}:', f'v_mov_b32 {cnt}, 0x40000', f'L_spinl_{name}:', load.text, 's_waitcnt vmcnt(0)', f'v_cmp_gt_u32 vcc, {fmt(expect)}, {vPOLL}', 's_nop 1',
        f's_cbranch_vccz L_back_{name}', f'v_subrev_u32 {cnt}, 1, {cnt}', f'v_cmp_ne_u32 vcc, 0, {cnt}', 's_sleep 1', f's_cbranch_vccnz L_spinl_{name}', f's_branch L_back_{name}'])
    a.wr.append(cnt.regs()[0]); a.wr.append('ok_'+name)
    return [a,b,c]

def addr_att(WB):
    t,u,key,hf,p,rp=vT[0],vT[1],vT[2],vT[3],vT[4],vT[5]
    vQL,vQX=vT[6],vPF
    e(valu('v_and_b32',key,31,vL), valu('v_lshrrev_b32',hf,5,vL), valu('v_lshlrev_b32',t,2,hf), valu('v_xor_b32',t,t,vL), valu('v_lshlrev_b32',vKM,4,t))
    extpos(u,key,t)
    e(valu('v_lshlrev_b32',vKE,3,u), valu('v_add_u32',vKE,1024,vKE))
    e(salu('s_lshr_b32',sT0,sW,1), salu('s_lshl_b32',sT0,sT0,5), salu('s_add_u32',sT0,sT0,sH), salu('s_add_u32',sT0,sT0,32), salu('s_mul_i32',sT0,sT0,SL),
      salu('s_and_b32',sT1,sW,1), salu('s_mul_i32',sT1,sT1,5120), salu('s_add_u32',sT0,sT0,sT1), valu('v_lshl_add_u32',vKV,vL,4,sT0))
    e(valu('v_mov_b32',vZ,0), valu('v_mov_b32',vIDX,0xdddd))
def qk_loads(WB):
    t,u,hf=vT[0],vT[1],vT[3]
    e(valu('v_lshrrev_b32',hf,5,vL), valu('v_lshl_add_u32',u,hf,31,vKE))
    e(salu('s_lshl_b32',sT0,sM8,2), salu('s_add_u32',sT0,sT0,sW), salu('s_mul_i32',sT0,sT0,2560), salu('s_mul_i32',sT1,sH,SL), salu('s_add_u32',sSO3,sT0,sT1))
    for x in range(2): e(bload(QM[x],vKM,sWS,sSO3,x*1280,flags='sc1'))
    e(bload(QE[0][0],u,sWS,sSO3,0,flags='sc1'), bload(vT[2],u,sWS,sSO3,1280,flags='sc1'))
    e(salu('s_add_u32',sSO3,sT1,32*SL))
    for x in range(2): e(bload(KM[x],vKM,sWS,sSO3,x*1280,flags='sc1'), bload(KE[x],u,sWS,sSO3,x*1280,flags='sc1'))
    e(valu('v_add_u32',vKM,WB,vKM), valu('v_mul_u32_u24',t,LDS_OOB,hf), valu('v_add3_u32',vKE,vKE,t,vZ), valu('v_add_u32',vKE,WB,vKE))
    c,r,k,x=vT[4],vT[5],vT[6],vT[1]
    e(valu('v_and_b32',c,3,vL), valu('v_bfe_u32',r,vL,2,2), valu('v_lshl_add_u32',r,hf,3,r))
    for n in range(4):
        uu,y=n>>1,n&1
        e(valu('v_add_u32',k,16*uu+4*y,r))
        extpos(x,k,t)
        e(valu('v_lshlrev_b32',x,3,x), valu('v_min_u32',t,1,c), valu('v_mul_u32_u24',t,LDS_OOB+64,t), valu('v_xor_b32',x,x,t), valu('v_add_u32',x,1024,x))
        e(valu('v_lshrrev_b32',t,1,c), valu('v_mul_u32_u24',t,36,t), valu('v_xor_b32',k,k,t), valu('v_lshlrev_b32',k,4,k), valu('v_and_b32',t,1,c), valu('v_lshl_add_u32',k,t,3,k))
        e(valu('v_and_b32',t,16,vL), valu('v_cmp_eq_u32','vcc',0,t), valu('v_cndmask_b32',k,x,k), valu('v_add_u32',vVA[n],WB,k))
    for x in range(2):
        for r in range(16): e(valu('v_accvgpr_write_b32',OO[x][r],0))
def addr_fin():
    t,u,p,rp,a,b=vT[0],vT[1],vT[4],vT[5],vT[6],vT[3]
    lane_rp(rp,p,t)
    e(salu('s_and_b32',sT0,sW,1), salu('s_lshr_b32',sT1,sW,1), salu('s_mul_i32',sT2,sT0,20), salu('s_lshl_b32',sT3,sT1,3), salu('s_add_u32',sT2,sT2,sT3), valu('v_add_u32',a,sT2,rp),
      salu('s_mul_i32',sT2,sT0,144), salu('s_mul_i32',sT3,sT1,36), salu('s_add_u32',sT2,sT2,sT3), salu('s_add_u32',sT2,sT2,16),
      valu('v_lshrrev_b32',t,2,rp), valu('v_mul_u32_u24',t,72,t), valu('v_and_b32',b,3,rp), valu('v_add3_u32',b,b,t,sT2))
    e(salu('s_and_b32',sT0,sIDX,7), salu('s_lshl_b32',sT1,sT0,7), valu('v_lshl_add_u32',u,p,4,sT1),
      valu('v_mul_u32_u24',t,1152,a), valu('v_add_u32',vWO,t,u), valu('v_mul_u32_u24',t,1152,b), valu('v_add_u32',vWOE,t,u))
    e(salu('s_lshr_b32',sT2,sT0,1), salu('s_lshl_b32',sT2,sT2,5), salu('s_add_u32',sT2,sT2,1024), valu('v_and_b32',u,1,p), valu('v_lshl_add_u32',u,u,4,sT2), valu('v_lshrrev_b32',p,1,p),
      valu('v_mul_u32_u24',t,36,p), valu('v_add_u32',t,t,a), valu('v_mul_u32_u24',t,1152,t), valu('v_add_u32',vWX,t,u),
      valu('v_mul_u32_u24',t,288,p), valu('v_add_u32',t,t,b), valu('v_mul_u32_u24',t,1152,t), valu('v_add_u32',vWXE,t,u))
    e(salu('s_lshr_b32',sT3,sIDX,3), salu('s_lshl_b32',sT3,sT3,2), salu('s_add_u32',sT3,sT3,sW), salu('s_lshl_b32',sSO3,sXC,4), salu('s_add_u32',sT3,sT3,sSO3))
    tk,g=vT[4],vT[5]
    e(valu('v_and_b32',tk,15,vL), valu('v_lshrrev_b32',g,4,vL))
    e(salu('s_lshl_b32',sSO3,sT3,3), salu('s_add_u32',sSO3,sSO3,sT0), salu('s_lshl_b32',sSO3,sSO3,15), valu('v_lshl_add_u32',vPL,vL,4,sSO3))
    e(salu('s_xor_b32',sSC[0],sW,sT0), salu('s_lshl_b32',sSC[0],sSC[0],31))
    e(salu('s_lshl_b32',sSO3,sT3,2), salu('s_lshr_b32',sSC[1],sT0,1), salu('s_add_u32',sSO3,sSO3,sSC[1]), salu('s_lshl_b32',sSO3,sSO3,13), salu('s_or_b32',sSO3,sSO3,sSC[0]), valu('v_lshl_add_u32',vPLX,vL,3,sSO3))
    e(salu('s_lshl_b32',sSO3,sT3,4), valu('v_add_u32',a,sSO3,tk), valu('v_lshlrev_b32',b,2,a), valu('v_mul_u32_u24',a,1152,a), valu('v_lshl_add_u32',a,g,3,a),
      valu('v_add_u32',vXO,sT1,a), salu('s_or_b32',sT2,sT2,sSC[0]), valu('v_add_u32',vXOX,sT2,a))
    e(salu('s_mov_b32',sSO3,WS_R2), bload(vR2,b,sWS,sSO3,flags='sc1'))
    for q in range(4): e(bload(XR[2*q:2*q+2],vXO,sX,0,32*q))
    e(bload(XR[8:10],vXOX,sX,0))
    e(salu('s_and_b32',sSO3,sT3,1), salu('s_lshl_b32',sSO3,sSO3,4), valu('v_add_u32',a,sSO3,tk), salu('s_lshr_b32',sSC[1],sT3,1),
      salu('s_lshl_b32',sSO3,sSC[1],10), valu('v_lshl_add_u32',t,a,4,sSO3), valu('v_and_b32',u,1,g), valu('v_lshl_add_u32',t,u,9,t), valu('v_lshrrev_b32',u,1,g), valu('v_lshl_add_u32',vOL,u,16,t),
      salu('s_lshl_b32',sSO3,sSC[1],12), valu('v_lshl_add_u32',t,a,2,sSO3), valu('v_lshl_add_u32',vOLX,g,9,t))
    e(salu('s_lshr_b32',sSO3,sT3,2), salu('s_lshl_b32',sSO3,sSO3,12), salu('s_add_u32',sSO3,sSO3,WS_F3), valu('v_and_b32',t,31,vL), valu('v_lshl_add_u32',vF3L,t,7,sSO3))
    e(salu('s_lshr_b32',sSC[1],sT3,3), salu('s_lshl_b32',sSC[1],sSC[1],2), salu('s_lshl_b32',sSC[2],sI,2))
    e(salu('s_lshl_b32',sT0,sM8,2), salu('s_add_u32',sT0,sT0,sW), salu('s_lshl_b32',sT1,sT0,11), salu('s_lshl_b32',sT2,sH,16), salu('s_add_u32',sT1,sT1,sT2), salu('s_add_u32',sT1,sT1,WS_O),
      valu('v_lshl_add_u32',vOS,vL,4,sT1),
      salu('s_lshl_b32',sT1,sT0,13), salu('s_lshl_b32',sT2,sH,7), salu('s_add_u32',sT1,sT1,sT2), salu('s_add_u32',sT1,sT1,WS_OX),
      valu('v_lshl_add_u32',t,t,2,sT1), valu('v_lshrrev_b32',u,5,vL), valu('v_lshl_add_u32',vOSX,u,12,t))

def max_ops(x,srcs,m,first=True):
    o=[]
    regs=[s[r] for s in srcs for r in range(16)]
    if first: o.append(valu('v_max3_f32',m,regs[0],regs[1],regs[2])); rest=regs[3:]
    else: rest=regs
    while len(rest)>=2: o.append(valu('v_max3_f32',m,m,rest[0],rest[1])); rest=rest[2:]
    if rest: o.append(valu('v_max_f32',m,m,rest[0]))
    return o
def set_shift(x,m,t,margin):
    return [valu('v_mov_b32',t,m), swap('v_permlane32_swap_b32',m,t), valu('v_max_f32',m,m,t), valu('v_sub_f32',m,f32(-margin) if margin else 0,m),
            valu('v_cvt_pk_bf16_f32',t,m,m), valu('v_lshlrev_b32',t,16,t), valu('v_sub_f32',t,m,t), valu('v_cvt_pk_bf16_f32',t,m,t),
            valu('v_cmp_gt_u32','vcc',32,vL), valu('v_cndmask_b32',QE[x][1],0,t)]

def attention(g0,kv,WB,wo_items):
    base=g0+100
    def kread(tau):
        it=kv[tau>>3]; off=it.addr-WB+(tau&7)*1280; src=(it.name,it.blks())
        return [dsr('ds_read_b128',KM[tau%3],vKM,off,src=src), dsr('ds_read_b64',KE[tau%3],vKE,off,src=src)]
    def vread(tau,n):
        it=kv[tau>>3]; off=it.addr-WB+10240+(tau&7)*1280
        return dsr('ds_read_b64_tr_b16',VV[tau&1][2*n:2*n+2],vVA[n],off,src=(it.name,it.blks()))
    def E(n,buf=None): return m32x8(buf or SB[n%3],KE[(n>>1)%3],QE[n&1],0)
    def M(n,buf=None): b=buf or SB[n%3]; return m32(b,KM[(n>>1)%3],QM[n&1],b)
    def PV(n,h): return smf(OO[n&1],VV[(n>>1)&1][4*h:4*h+4],SB[n%3][8*h:8*h+8],vIDX)
    def flush(n,names=('ctr','epi','low','dma','ld')):
        k=0
        while k<n:
            for nm in names:
                x=head(nm,cur[0])
                if x is not None: take(nm,cur[0]); break
            else: return
            k+=1
    cur[0]=g0
    flush(1000,('low',))
    e(valu('v_mov_b32',QE[1][0],vT[2]), valu('v_mov_b32',QE[0][1],0), valu('v_mov_b32',QE[1][1],0))
    e(waitfor(vm=QM+KM[:2]+KE[:2]+[QE[0]],vmtags=[kv[0].name],lgall=True), barrier())
    cur[0]=g0+10
    bufs=[SB[1],SB[2],SB[3],SB[4]]
    for k,n in enumerate((0,2,1,3)):
        e(E(n,bufs[k])); flush(5,('epi',)); e(M(n,bufs[k]));
        e(vread(0,k)); flush(4,('epi',))
    flush(1000,('epi',))
    mx=[vT[0],vT[1]]
    e(*max_ops(0,bufs[0:2],mx[0])); e(*set_shift(0,mx[0],vT[3],MARGIN))
    e(*max_ops(1,bufs[2:4],mx[1])[:4])
    e(E(0)); e(*max_ops(1,bufs[2:4],mx[1])[4:10]); e(M(0)); e(*max_ops(1,bufs[2:4],mx[1])[10:]); e(*set_shift(1,mx[1],vT[3],MARGIN))
    stamp('att')
    barx={OPT['f2bar']:['pst'],7:[it.name for it in wo_items]}
    for n in range(128):
        tau=n>>1
        ms=[E(n+1) if n<127 else None, M(n+1) if n<127 else None, PV(n-1,1) if n>0 else None, PV(n,0)]
        if n&1: rds=[vread(tau+1,k) if tau+1<64 else None for k in range(4)]
        else: rds=(kread(tau+2) if tau+2<64 else [None,None])+[None,None]
        sg=(n+5)//16 if (n+5)%16==0 and n+5<128 else None
        for k in range(4):
            gap=base+4*n+k; cur[0]=gap
            if ms[k] is not None: e(ms[k])
            nsc={0:0,1:1,2:2,3:2}[k]
            fx=(k==1 and n%2==0) or (k==2 and sg is not None)
            vmn=vm_ready(gap,2,OPT['astgap']) if (not fx and ms[k] is not None) else None
            if vmn: take(vmn,gap)
            else:
                if k==1 and n%2==0: e(waitfor(lg=[VV[tau&1],KM[(tau+1)%3],KE[(tau+1)%3]])); nsc-=1
                if k==2 and sg is not None:
                    e(waitfor(vmtags=[kv[sg].name]+barx.get(sg,[])), barrier()); nsc-=2
                    if sg==OPT['f2bar']:
                        assert not fifo['st'], 'partial stores not finished'
                        push('dma',gap,[batomic(vONE,vF1,sDBG,sSC[2],64)])
                    if sg+1<8: push('dma',gap,kv[sg+1].mk(kv[sg+1]))
                    for it in wo_items[5*(sg-1):5*sg]: push('dma',gap,it.mk(it))
                while nsc>0 and pull(gap,True): nsc-=1
            if rds[k] is not None: e(rds[k])
            x=head('ld',gap)
            if x is not None and x.kind=='valu': take('ld',gap)
            for r in range(4): e(valu('v_exp_f32',SB[n%3][4*k+r],SB[n%3][4*k+r]))
        if n==OPT['f2poll']:
            ld=bload(vPOLL,vZ,sDBG,sSC[1],64,flags='sc1')
            push('ld',gap,[ld])
            t0=base+4*OPT['f2chk']
            push('ld',t0,[waitfor(vm=[vPOLL])]+spin('f2',ld,16))
            ops=[]
            for k in range(32):
                if k%8==0: ops+=base_add(sBL,sWS,WS_P+k*1024+4096)
                ops.append(gload(PART[k],vPL,sBL,(k%8)*1024-4096,flags='sc1'))
                if k%2==1:
                    z=k>>1
                    if z%8==0: ops.append(salu('s_mov_b32',sSO3,WS_PX+z*512))
                    ops.append(bload(PARTX[z],vPLX,sWS,sSO3,(z%8)*512,flags='sc1'))
            nl=0
            for o in ops:
                push('ld',t0+int(nl*OPT.get('ldgap',4)),[o])
                if o.kind=='vld': nl+=1
    cur[0]=base+600
    e(PV(127,1))
    print('left after attention:',{k:len(v) for k,v in fifo.items()})
    flush(1000,('dma','ld','st','low'))

def fallback(kv,WB):
    global P
    save=P; P=[]
    pb=kv[5].addr
    a=[V(128+n) for n in range(6)]; vo=V(134); mx=[V(135),V(136)]; t=V(137)
    e(label('L_fb'), raw('s_waitcnt vmcnt(0) lgkmcnt(0)','misc'), raw('s_nop 15','misc'))
    for d,s in zip(a,[vKM,vKE]+vVA): e(valu('v_add_u32',d,sW5K,s))
    e(valu('v_lshlrev_b32',vo,4,vL), valu('v_mov_b32',QE[0][1],0), valu('v_mov_b32',QE[1][1],0), valu('v_mov_b32',mx[0],0xff800000), valu('v_mov_b32',mx[1],0xff800000))
    off=pb-WB
    for ps in range(2):
        e(salu('s_add_u32',sT0,sH,32), salu('s_mul_i32',sT0,sT0,SL), salu('s_add_u32',sT1,sT0,32*SL), salu('s_mov_b32',sT2,64), label(f'L_fbl{ps}'))
        e(salu('s_add_u32','m0',sW5K,pb), dma(vo,sWS,sT0,0,flags='sc1'), dma(vo,sWS,sT0,1024,flags='sc1'))
        if ps: e(salu('s_add_u32','m0',sW5K,pb+2560), dma(vo,sWS,sT1,0,flags='sc1'), dma(vo,sWS,sT1,1024,flags='sc1'))
        e(waitfor(vmall=True), dsr('ds_read_b128',KM[0],a[0],off), dsr('ds_read_b64',KE[0],a[1],off))
        if ps:
            for n in range(4): e(dsr('ds_read_b64_tr_b16',VV[0][2*n:2*n+2],a[2+n],off+2560))
        e(waitfor(lgall=True))
        for x in range(2): e(m32x8(SB[x],KE[0],QE[x],0), m32(SB[x],KM[0],QM[x],SB[x]))
        for x in range(2):
            if ps==0: e(*max_ops(x,[SB[x]],mx[x],first=False))
            else:
                for r in range(16): e(valu('v_exp_f32',SB[x][r],SB[x][r]))
                for h in range(2): e(smf(OO[x],VV[0][4*h:4*h+4],SB[x][8*h:8*h+8],vIDX))
        e(raw('s_nop 15','misc'), salu('s_add_u32',sT0,sT0,1280), salu('s_add_u32',sT1,sT1,1280), salu('s_sub_u32',sT2,sT2,1), salu('s_cmp_lg_u32',sT2,0), raw(f's_cbranch_scc1 L_fbl{ps}','misc'))
        if ps==0:
            for x in range(2):
                e(*set_shift(x,mx[x],t,0.0))
                for r in range(16): e(valu('v_accvgpr_write_b32',OO[x][r],0))
    for x in range(2):
        for r in range(11): e(valu('v_accvgpr_read_b32',SB[x][r],OO[x][r]))
    e(raw('s_nop 3','misc'), raw('s_branch L_fb_ret','misc'))
    OUT.extend(i.text for i in finalize(P,verbose=0,name='fb'))
    P=save

def final(g0,wo_main,wo_x):
    cur[0]=g0
    T=[SB[0],SB[1]]
    SA=V(56,20); DN=V(76,20); SEL=V(96,8); tmp=V(104,8)
    m,g,x0,x1=tmp[0],tmp[1],SEL[2],SEL[3]
    e(valu('v_bfe_u32',m,vL,2,2), valu('v_lshrrev_b32',g,4,vL), valu('v_cmp_eq_u32','vcc',m,g), valu('v_and_b32',m,1,vL), valu('v_lshlrev_b32',m,4,m), valu('v_lshlrev_b32',m,m,sLO),
      valu('v_cndmask_b32',m,0,m), valu('v_and_b32',g,2,vL), valu('v_cmp_eq_u32','vcc',0,g), valu('v_mov_b32',SEL[0],0), valu('v_mov_b32',SEL[1],0),
      valu('v_cndmask_b32',x0,0,m), valu('v_sub_u32',x1,m,x0))
    for x in range(2):
        for r in range(11): e(valu('v_accvgpr_read_b32',T[x][r],OO[x][r]))
    for x in range(2):
        s=tmp[2+x]
        e(valu('v_add_f32_e64',s,f'|{T[x][0]}|',f'|{T[x][1]}|'))
        for r in range(2,10): e(valu('v_add_f32_e64',s,s,f'|{T[x][r]}|'))
    e(valu('v_min_f32',tmp[4],tmp[2],tmp[3]), valu('v_add_f32',tmp[2],tmp[2],tmp[3]), valu('v_add_f32',tmp[3],T[0][10],T[1][10]), valu('v_add_f32',tmp[2],tmp[2],tmp[3]),
      valu('v_cmp_nle_f32','vcc',f32(2.0**-100),tmp[4]), raw('s_cbranch_vccnz L_fb','misc',['vcc']),
      valu('v_cmp_nge_f32','vcc',f32(2.0**126) if not OPT['forcefb'] else f32(-1.0),tmp[2]), raw('s_cbranch_vccnz L_fb','misc',['vcc']), label('L_fb_ret'))
    e(swap('v_permlane32_swap_b32',T[0][10],T[1][10]), valu('v_rcp_f32',tmp[2],T[0][10]), valu('v_mov_b32',tmp[3],tmp[2]), swap('v_permlane32_swap_b32',tmp[2],tmp[3]))
    for x in range(2):
        for r in range(10): e(valu('v_mul_f32',T[x][r],tmp[2+x],T[x][r]))
        for d in range(5): e(valu('v_cvt_pk_bf16_f32',T[x][d],T[x][2*d],T[x][2*d+1]))
        e(gstore(T[x][0:4],vOS,sWS[0:2],x*1024,flags='sc1',tag='ost'))
    e(swap('v_permlane32_swap_b32',T[0][4],T[1][4]), gstore(T[0][4],vOSX,sWS[0:2],flags='sc1',tag='ost'))
    stamp('o stored')
    e(valu('v_mov_b32',SEL[4],x0), valu('v_mov_b32',SEL[5],x1), valu('v_mov_b32',SEL[6],0), valu('v_mov_b32',SEL[7],0))
    pool_=[V(112+4*n,4) for n in range(16)]+[V(208+4*n,4) for n in range(12)]+[V(176+4*n,4) for n in range(8)]
    npre=len(pool_)
    pool_+=[A(72+4*n,4) for n in range(38)]+[A(236+4*n,4) for n in range(5)]
    frs=[]; rds=[]
    for s in range(18):
        for q in range(5):
            f=pool_[len(frs)%len(pool_)]; frs.append(f)
            for u in range(2): rds.append(tr_read(f,u,wo_main[s],q) if q<4 else tr_read(f,u,wo_x[s>>2],s&3))
    red=[]
    for pr in range(2):
        for z in range(2):
            d=DN[8*pr+4*z:8*pr+4*z+4]
            for j in range(16): red.append(m16(d,SEL[4:8] if z==0 else SEL[0:4],PART[16*pr+j],0 if j==0 else d))
    for z in range(8): red.append(m16(DN[16:20],SEL[2:6],R('a',PARTX[2*z].b,4),0 if z==0 else DN[16:20]))
    e(waitfor(vm=PART+PARTX))
    ri=0
    nflag=OPT.get('flagat',30)
    for k,mm in enumerate(red):
        e(mm)
        if k==nflag: e(waitfor(vmall=True), bstore(vONE,vF3,sWS,0,flags='sc1')); stamp('flag')
        if k%4==3: e(waitfor(lg=frs[:max(0,ri//2-3)]))
        if ri<2*npre: e(rds[ri]); ri+=1
    pl=bload(vPOLL,vF3L,sWS,0,flags='sc1')
    e(pl)
    while ri<2*len(pool_):
        if ri%4==0: e(waitfor(lg=frs[:max(0,ri//2-4)]))
        e(rds[ri]); ri+=1
    for r in range(20): e(valu('v_mul_f32',DN[r],vR2,DN[r]))
    for r0 in range(0,20,8):
        rr=range(r0,min(20,r0+8))
        for r in rr: e(valu('v_mul_f32',tmp[r-r0],f32(-1.4426950408889634),DN[r]))
        for r in rr: e(valu('v_exp_f32',tmp[r-r0],tmp[r-r0]))
        for r in rr: e(valu('v_add_f32',tmp[r-r0],1.0,tmp[r-r0]))
        for r in rr: e(valu('v_rcp_f32',tmp[r-r0],tmp[r-r0]))
        for r in rr: e(valu('v_mul_f32',DN[r],tmp[r-r0],DN[r]))
    XV=V(96,10)
    for d in range(10): e(valu('v_accvgpr_read_b32',XV[d],XR[d]))
    e(*base_add(sBL,sWS,WS_OX), *base_add(sBD,sWS,WS_O))
    ofs=[V(30+n) for n in range(11)]+[V(14+n) for n in range(4)]
    for s in range(1,16): e(valu('v_add_u32',ofs[s-1],s*131072,vOL))
    stamp('ready')
    e(waitfor(vm=[vPOLL]), *spin('f3',pl,1))
    stamp('seen')
    OF=[A(4*s,4) for s in range(18)]
    for s in range(16): e(gload(OF[s],vOL if s==0 else ofs[s-1],sBD,flags='sc1'))
    for s in range(2):
        for r in range(4): e(gload(OF[16+s][r],vOLX,sBL,s*2048+r*128,flags='sc1'))
    k=0
    for s in range(18):
        e(waitfor(vm=[OF[s]],lg=frs[5*s:5*s+5]))
        for q in range(5):
            e(m16(SA[4*q:4*q+4],frs[k],OF[s],0 if s==0 else SA[4*q:4*q+4])); k+=1
            if ri<len(rds) and ri//2-len(pool_)<k-1: e(rds[ri]); ri+=1
    stamp('mm done')
    for q in range(5):
        for d in range(2):
            lo,hi=tmp[2+2*d],tmp[3+2*d]; x=XV[2*q+d]
            e(valu('v_lshlrev_b32',lo,16,x), valu('v_and_b32',hi,0xffff0000,x))
        for d in range(2):
            lo,hi=tmp[2+2*d],tmp[3+2*d]; r=4*q+2*d
            e(valu('v_fmac_f32',lo,SA[r],DN[r],rmw=True), valu('v_fmac_f32',hi,SA[r+1],DN[r+1],rmw=True), valu('v_cvt_pk_bf16_f32',SA[4*q+d],lo,hi))
        e(bstore(SA[4*q:4*q+2],vXO if q<4 else vXOX,sOUT,0,32*q if q<4 else 0))

def main():
    build_ffn()
    ngaps,bars,free=plan()
    L=OPT['look']
    best=None
    for a0 in range(0,26):
        fr=sorted((max(free[b] for b in range(a0+5*k,a0+5*k+5)),k) for k in range(3))
        key=(fr[0][0],fr[1][0])
        if best is None or key<best[0]: best=(key,a0,[k for _,k in fr])
    _,a0,order=best; WB=a0*4096
    print('attention window',best,'ngaps',ngaps)
    kv=[kv_item(s) for s in range(8)]
    for s,it in enumerate(kv): it.addr=(a0+5*order[s%3])*4096
    rest=[b for b in range(NB) if not a0<=b<a0+15]
    wo_main=[blk_item(('wo',s),vWO if s<16 else vWOE,sWO,36*s*1152 if s<16 else 288*(s-16)*1152) for s in range(18)]
    wo_x=[blk_item(('wx',n),vWX if n<4 else vWXE,sWO,144*n*1152 if n<4 else 0,buf=(n==4)) for n in range(5)]
    for it,b in zip(wo_main+wo_x,rest): it.addr=b*4096

    prologue()
    for l in range(9): e(*xdma(0,l))
    e(*pf_gu(0)); e(*base_add(sBL,sX,18432))
    with collect() as ao:
        pf_code(); addr_early()
        xr=[vM[1],vR[1]]; t,u=vT[2],vT[3]
        e(valu('v_and_b32',t,15,vL), valu('v_lshrrev_b32',u,1,t), valu('v_lshlrev_b32',t,7,t), valu('v_add_u32',t,sW18K,t),
          valu('v_lshrrev_b32',xr[0],4,vL), valu('v_xor_b32',xr[0],xr[0],u), valu('v_xor_b32',xr[1],4,xr[0]),
          valu('v_lshl_add_u32',xr[0],xr[0],4,t), valu('v_lshl_add_u32',xr[1],xr[1],4,t))
    per=len(ao)//9+1
    for l in range(9):
        e(*ao[l*per:(l+1)*per]); e(*xdma(1,l))
    pre0=[it for it in items if it.early==-3000]; pre1=[it for it in items if it.early==-2000]
    dq=[it.mk(it) for it in pre0]
    def some(n):
        for _ in range(n):
            if dq: e(*dq.pop(0))
    X0=V(128,72); acc=[vT[4],vT[5],vT[6],vT[7]]
    def xread(tt,dst,l):
        return [waitfor(vmtags=[('x',tt,l)])]+[dsr('ds_read_b128',dst[4*s:4*s+4],xr[s&1],l*2048,src=(('x',tt,l),list(range(18*tt,18*tt+18))),private=True) for s in (2*l,2*l+1)]
    for l in range(9):
        e(*xread(0,X0,l))
        if l>0: e(waitfor(lg=[X0[8*l-8:8*l]]), *stats_ops(X0,2*l-2,acc), *stats_ops(X0,2*l-1,acc))
        if l%2==1: some(1)
    e(waitfor(lgall=True), barrier())
    stamp('x0 read')
    e(valu('v_add_u32',xr[0],73728,xr[0]), valu('v_add_u32',xr[1],73728,xr[1]))
    dq+=[it.mk(it) for it in pre1]
    e(*stats_ops(X0,16,acc)); some(1); e(*stats_ops(X0,17,acc)); some(1)
    a,b=stats_final(0,acc); e(*a,*b); e(*pf_gu(1))
    for l in range(9):
        e(*xread(1,XC1,l))
        e(*centre_ops(X0,2*l,0,XC0)); some(1); e(*centre_ops(X0,2*l+1,0,XC0))
        e(waitfor(lg=[XC1[8*l:8*l+8]]), *stats_ops(XC1,2*l,acc), *stats_ops(XC1,2*l+1,acc))
    e(waitfor(lgall=True,vmtags=[it.name for it in items if it.bar==-L]), barrier())
    stamp('x1 read')
    a,b=stats_final(1,acc); e(*a)
    reads=[r for g in groups for r in g.rd]
    for s in range(OPT['n0']):
        e(*centre_ops(XC1,s,1))
        if s==OPT['n0']-3:
            for it,f in reads[:L]: e(f(it))
    e(waitfor(lg=groups[0].fr))
    for s in range(OPT['n0'],18): push('ctr',0,centre_ops(XC1,s,1,plain=True))
    push('ctr',0,b)
    for o in dq: push('dma',-1,o)
    for it in items:
        if it.early>-2000: push('dma',it.early,it.mk(it))
    st=lambda k:groups[marks[k]].start
    def low(gap,f,*a):
        with collect() as o: f(*a)
        push('low',gap,o,gap)
    low(st('c0')+200,pf_q_ops); low(st('c0')+200,addr_mid); low(st('c1')+100,addr_mid2)
    push('low',st('c1')+200,pf_gu(2),st('c1')+200); push('low',st('qkv')+150,pf_gu(3),st('qkv')+150); push('low',st('c2')+150,pf_gu(4),st('c2')+150)
    b1=[b for b in bars if b>st('c3')+60][0]
    bar_extra[b1]=['qkvst']
    low(st('c3'),pf_d_ops)
    push('low',b1,[batomic(vONE,vF1,sDBG,0)],b1)
    if OPT['stop']!='down':
        d0=st('down')
        low(d0+60,addr_att,WB)
        ld=bload(vPOLL,vZ,sDBG,0,flags='sc1')
        push('low',d0+60,[ld],d0+60)
        push('low',d0+200,[waitfor(vm=[vPOLL])]+spin('f1',ld,256),d0+200)
        low(d0+200,addr_fin); low(d0+200,qk_loads,WB)
        for s in range(2):
            early=max(free[b] for b in kv[s].blks())
            assert early>d0+300
            push('dma',early if early<LATE else ngaps+10,kv[s].mk(kv[s]),ngaps-1)
    emit_backbone(bars,{groups[v].start:k for k,v in marks.items() if k in ('c0','qkv','down')})
    stamp('down end')
    if OPT['stop']=='down':
        for nm in ('epi','st','low','dma'):
            for af,o in fifo[nm]: e(o)
    else:
        attention(ngaps,kv,WB,wo_main+wo_x)
        stamp('att end')
        final(ngaps+1000,wo_main,wo_x)
        fallback(kv,WB)
    finish()

def finish():
    cur[0]=10**7
    if OPT['stamps']:
        e(raw('s_waitcnt lgkmcnt(0)','misc'), waitfor(vmall=True))
        stamp('drained'); e(raw('s_waitcnt lgkmcnt(0)','misc'))
        n=nstamp[0]
        if 'padto' in OPT:
            k=OPT['padto']
            if 'padwg' in OPT: e(salu('s_cmp_eq_u32',S(2),OPT['padwg']), raw('s_cbranch_scc1 L_pad0','misc'), raw('s_endpgm','misc'), label('L_pad0'))
            e(salu('s_add_u32',sT0,S(64+2*k),10000), label('L_pad'), raw('s_memrealtime s[98:99]','misc'), raw('s_waitcnt lgkmcnt(0)','misc'), salu('s_sub_u32',sT1,S(98),sT0), salu('s_cmp_lt_i32',sT1,0), raw('s_cbranch_scc1 L_pad','misc'))
        elif OPT['dbgout']:
            e(salu('s_sub_u32',sT0,S(2),OPT['dbgout']-1), salu('s_add_u32',sT0,sT0,sW), valu('v_add_u32',V(1),sT0,vL), valu('v_lshlrev_b32',V(1),12,V(1)))
            for k in range(1,n): e(salu('s_sub_u32',sT1,S(64+2*k),S(64)), valu('v_mov_b32',V(2),sT1), bstore(V(2),V(1),sDBG,0,4*k))
        else:
            e(salu('s_lshl_b32',sT0,S(2),2), salu('s_add_u32',sT0,sT0,sW), salu('s_lshl_b32',sT0,sT0,6), salu('s_add_u32',sT0,sT0,WS_STAMP))
            masked(V(1),vL,'v_cmp_eq_u32',0,vL,V(2))
            for k in range(n): e(valu('v_mov_b32',V(2),S(64+2*k)), bstore(V(2),V(1),sWS,sT0,4*k))
    check_order(P)
    out=finalize(P,verbose=OPT['v'],name='main')
    hdr=open('recurrent_scan__mha_block__glu_gated_reglu__prompt.s.ref').read().split('; Override launch')[0]
    txt=hdr+'; @launch grid=(256,1,1) block=(256,1,1) lds=163840\n.amdgcn_target "amdgcn-amd-amdhsa--gfx950"\n.text\n'
    txt+=f'.globl {NAME}\n.p2align 8\n.type {NAME},@function\n{NAME}:\n'
    txt+='\n'.join(i.text for i in out)+'\ns_endpgm\nL_codeend:\n'+'\n'.join(OUT)+'\ns_endpgm\n'
    txt+=f'''.section .rodata,"a"
.p2align 6
.amdhsa_kernel {NAME}
  .amdhsa_next_free_vgpr 512
  .amdhsa_next_free_sgpr 102
  .amdhsa_accum_offset 256
  .amdhsa_group_segment_fixed_size 0
  .amdhsa_kernarg_size 80
  .amdhsa_user_sgpr_count 2
  .amdhsa_user_sgpr_kernarg_segment_ptr 1
  .amdhsa_system_sgpr_workgroup_id_x 1
  .amdhsa_float_denorm_mode_32 3
.end_amdhsa_kernel
'''
    open(sys.argv[1],'w').write(txt)
    print('bytes',len(txt))
main()
```

```python
import sys, struct, contextlib
from asmlib import *

OPT=dict(stop='', stamps=0, pf=1, dmagap=3, look=13, stgap=20, n0=14, v=1, forcefb=0, astgap=6, f2lag=10, f2poll=40, f2chk=46, ldgap=6, dbgout=0, f1poll=220, qstgap=20, back=96, pfc=1, bartr=0)
for a in sys.argv[2:]:
    k,v=a.split('='); OPT[k]=int(v) if v.lstrip('-').isdigit() else v
NAME='recurrent_scan__mha_block__glu_gated_reglu__prompt_kernel'

WS_QKV=0; SL=81920
WS_P=0x800000; WS_PX=0x2800000; WS_O=0x2C00000; WS_OX=0x2E00000; WS_F3=0x2E40000; WS_R2=0x2E60000; WS_F2=0x2E80000; WS_STAMP=0x2F00000
OOB=0x80000000
LDS_OOB=0x30000
def f32(x): return struct.unpack('<I',struct.pack('<f',x))[0]
QSCALE=18**-0.5*1.4426950408889634
MARGIN=80.0

sX,sWQ,sWO,sWG,sWU,sWD,sOUT,sDBG,sWS=[S(4+4*n,4) for n in range(9)]
sW,sW1K,sI,sJ,sH,sIDX,sT0,sT1,sSO,sSO2=[S(40+n) for n in range(10)]
sLO,sHI,sONES,sW7K,sW5K=[S(50+n) for n in range(5)]
sSC=[S(55),S(56),S(57)]
sW18K,sJ1,sXC,sM8,sT2,sT3=[S(58+n) for n in range(6)]
sJ128,sJH=S(3),S(94); sSO3=S(95)
sBD,sBL,sPC=S(96,2),S(98,2),S(100,2)
nstamp=[0]
def stamp(name,fine=False):
    if not OPT['stamps']: return
    if ('gst' in OPT or 'ast' in OPT or 'pst' in OPT) and not fine and name!='start': return
    n=nstamp[0]; nstamp[0]+=1
    assert n<15
    e(raw(f'{"s_memrealtime" if OPT["stamps"]==1 else "s_memtime"} s[{64+2*n}:{65+2*n}]','misc'))
    print('stamp',n,name)

vL=V(0)
vT=[V(1+n) for n in range(8)]
vR=[V(9),V(10)]
vM=[V(11),V(12)]
vPF=V(13)
vGF,vGH,vDF,vDH=[V(14+n) for n in range(4)]
vTR=[[V(18+3*q+n) for n in range(3)] for q in range(4)]
vQK=[V(30+n) for n in range(7)]
vQM=[V(37+n) for n in range(3)]; vQE=[V(40+n) for n in range(3)]
vSM,vSE0,vSE1,vSCX=[V(43+n) for n in range(4)]
vPS,vPX=V(47),V(48)
vF1,vONE=V(49),V(50)
vPG,vF3,vPOLL=V(51),V(52),V(53)
vCT=[V(160+n) for n in range(8)]
XC1=V(56,72)
BANK=[V(128,64),V(192,64)]
XC0=A(0,72); HH=A(72,72); FR=A(144,64)
vKM,vKE=V(30),V(31); vVA=[V(32+n) for n in range(4)]
vKV,vWO,vWOE,vWX,vWXE=[V(36+n) for n in range(5)]
vPL,vPLX,vOL,vOLX,vOS,vOSX=[V(41+n) for n in range(6)]
vIDX,vF3L=V(54),V(55)
vXO,vXOX,vR2,vZ=V(11),V(12),V(9),V(10)
QE=[V(14,2),V(16,2)]
QM=[A(0,4),A(4,4)]
OO=[A(8,16),A(24,16)]
KM=[A(40+4*n,4) for n in range(3)]; KE=[A(52+2*n,2) for n in range(3)]
VV=[A(208,8),A(216,8)]
XR=A(224,10)
PART=[A(60+4*n,4) for n in range(32)]
PARTX=[A(188+2*n,2) for n in range(10)]+[A(236+2*n,2) for n in range(6)]
SB=[V(176+16*n,16) for n in range(5)]

P=[]
cur=[-10**6,0]
sink=[None]
def setseq(i,gap=None):
    if 'seq' not in i.meta:
        cur[1]+=1; i.meta['seq']=(cur[0] if gap is None else gap,cur[1])
    return i
def e(*x):
    for i in x:
        if sink[0] is not None: sink[0].append(i)
        else: P.append(setseq(i)); i.meta['at']=cur[0]
@contextlib.contextmanager
def collect():
    o=[]; old=sink[0]; sink[0]=o
    yield o
    sink[0]=old
fifo=dict(dma=[],st=[],ld=[],ctr=[],epi=[],low=[])
def push(q,after,ops,logical=None):
    for o in ops: fifo[q].append((after,setseq(o,logical)))
def masked(dst,val,cmpop,a,b,tmp):
    e(valu(cmpop,'vcc',a,b), valu('v_mov_b32',tmp,OOB), valu('v_cndmask_b32',dst,tmp,val))

def prologue():
    e(salu('s_cmp_ge_u32',S(2),256), raw('s_cbranch_scc0 L_go','misc'), raw('s_endpgm','misc'), label('L_go'))
    e(raw(f's_load_dwordx2 {sX[0:2]}, s[0:1], 0','misc'))
    stamp('start')
    e(valu('v_lshrrev_b32',vT[0],6,V(0)), valu('v_and_b32',vL,63,V(0)))
    e(valu('v_readfirstlane_b32',sW,vT[0]))
    e(salu('s_and_b32',sXC,S(2),7), salu('s_lshr_b32',sIDX,S(2),3))
    e(salu('s_lshr_b32',sM8,sIDX,2), salu('s_lshl_b32',sI,sM8,1), salu('s_and_b32',sT2,sXC,1), salu('s_add_u32',sI,sI,sT2))
    e(salu('s_mul_i32',sW18K,sW,18432))
    vx0,vx1,row,t=vT[0],vT[1],vT[2],vT[3]
    e(salu('s_lshl_b32',sT2,sI,2), salu('s_add_u32',sT2,sT2,sW), salu('s_lshl_b32',sT2,sT2,5))
    e(valu('v_lshrrev_b32',row,3,vL), valu('v_lshrrev_b32',t,4,vL), valu('v_and_b32',vx0,7,vL), valu('v_xor_b32',vx0,vx0,t),
      valu('v_xor_b32',vx1,4,vx0), valu('v_add_u32',t,sT2,row), valu('v_mul_u32_u24',t,1152,t),
      valu('v_lshl_add_u32',vx0,vx0,4,t), valu('v_lshl_add_u32',vx1,vx1,4,t), valu('v_add_u32',vx1,8*1152-1024,vx1))
    e(raw('s_waitcnt lgkmcnt(0)','misc'))
def prologue2():
    for srd,off in ((sWG,32),(sWU,40),(sWQ,8),(sWO,16),(sWD,48),(sOUT,56),(sDBG,64),(sWS,72)):
        e(raw(f's_load_dwordx2 {srd[0:2]}, s[0:1], {off}','misc'))
    e(*base_add(sBL,sX,18432))
    e(salu('s_lshr_b32',sJ,sXC,1), salu('s_lshl_b32',sJ,sJ,2), salu('s_and_b32',sT2,sIDX,3), salu('s_add_u32',sJ,sJ,sT2))
    e(salu('s_lshl_b32',sH,sXC,2), salu('s_add_u32',sH,sH,sT2), salu('s_and_b32',sJ1,sJ,1))
    e(salu('s_lshl_b32',sW1K,sW,10), salu('s_mul_i32',sW7K,sW,7168), salu('s_mul_i32',sW5K,sW,5120))
    for srd,n in ((sX,2048*1152),(sWQ,576*3456),(sWO,576*1152),(sWG,576*9216),(sWU,576*9216),(sWD,4608*1152),(sOUT,2048*1152),(sDBG,256),(sWS,0x10000000)):
        e(salu('s_mov_b32',srd[2],n), salu('s_mov_b32',srd[3],0x20000))
    e(salu('s_mov_b32',sLO,0x3f80), salu('s_mov_b32',sHI,0x3f800000), salu('s_mov_b32',sONES,0x3f803f80))
def addr_pf():
    if not OPT['pf']: return
    row,t=vT[2],vT[3]
    e(salu('s_lshl_b32',sJ128,sJ1,7), salu('s_lshl_b32',sJH,sJ1,9), salu('s_sub_u32',sJH,512,sJH))
    e(salu('s_lshl_b32',sT0,sM8,2), salu('s_add_u32',sT0,sT0,sW), salu('s_mul_i32',sT0,sT0,18*9216), salu('s_mul_i32',sT1,sJ,576), salu('s_and_b32',sT1,sT1,-128), salu('s_add_u32',sT0,sT0,sT1),
      valu('v_mul_u32_u24',t,9216,vL), valu('v_add_u32',t,sT0,t))
    masked(vPG,t,'v_cmp_gt_u32',18,vL,row)
def cost(i,c): i.meta['cost']=c; return i
def xdma(tt,l):
    base=sX[0:2] if tt==0 else sBL
    return [salu('s_add_u32','m0',sW18K,tt*73728+l*1920), gdma(vT[0],base,l*128,tag=('x',tt,l),private=True), gdma(vT[1],base,l*128+1024,tag=('x',tt,l),private=True)]
def pf_gu(c):
    if not OPT['pf']: return []
    if c<4: return [cost(bload(vPF,vPG,s,sJ128,c*128,tag='pf'),200) for s in (sWG,sWU)]
    return [cost(bload(vPF,vPG,s,sJH,0,tag='pf'),200) for s in (sWG,sWU)]

def lane_rp(rp,p,t):
    e(valu('v_lshrrev_b32',rp,3,vL), valu('v_and_b32',t,6,rp), valu('v_and_b32',p,7,vL), valu('v_xor_b32',p,p,t))
def addr_early():
    rp,p,t,u,kA=vT[2],vT[3],vT[4],vT[5],vT[6]
    lane_rp(rp,p,t)
    e(salu('s_and_b32',sT0,sW,1), salu('s_lshl_b32',sT0,sT0,4), salu('s_lshr_b32',sT1,sW,1), salu('s_lshl_b32',sT1,sT1,2), salu('s_add_u32',sT0,sT0,sT1))
    e(valu('v_and_b32',t,4,rp), valu('v_add_u32',kA,rp,t), valu('v_add_u32',kA,sT0,kA))
    e(salu('s_mul_i32',sT1,sJ,288), salu('s_lshl_b32',sT2,sJ1,5), salu('s_add_u32',sT2,sT2,sT1))
    e(salu('s_lshl_b32',sT3,sJ1,8), salu('s_sub_u32',sT3,256,sT3), salu('s_add_u32',sT3,sT3,sT1))
    e(salu('s_lshl_b32',sT0,sT2,1), valu('v_mul_u32_u24',t,9216,kA), valu('v_lshl_add_u32',t,p,4,t), valu('v_add_u32',vGF,sT0,t))
    e(salu('s_lshl_b32',sT0,sT3,1), valu('v_lshrrev_b32',t,2,p), valu('v_lshl_add_u32',t,t,5,kA), valu('v_mul_u32_u24',t,9216,t),
      valu('v_and_b32',u,3,p), valu('v_lshl_add_u32',t,u,4,t), valu('v_add_u32',vGH,sT0,t))
    e(salu('s_lshl_b32',sT0,sW,3), valu('v_add_u32',t,sT0,rp), valu('v_add_u32',u,sT2,t), valu('v_mul_u32_u24',u,1152,u), valu('v_lshl_add_u32',vDF,p,4,u),
      valu('v_add_u32',u,sT3,t), valu('v_mul_u32_u24',u,1152,u), valu('v_lshl_add_u32',vDH,p,4,u))
    g,r4,c,b=vT[2],vT[3],vT[6],vT[7]
    e(valu('v_bfe_u32',r4,vL,2,3), valu('v_and_b32',c,3,vL), valu('v_lshrrev_b32',g,5,vL),
      valu('v_lshlrev_b32',b,10,g), valu('v_lshl_add_u32',b,r4,7,b), valu('v_lshl_add_u32',b,c,3,b), valu('v_lshrrev_b32',t,1,r4))
    for q in range(4):
        e(valu('v_xor_b32',u,q,t), valu('v_lshl_add_u32',vTR[q][0],u,5,b), valu('v_add_u32',vTR[q][1],0x10000,vTR[q][0]), valu('v_add_u32',vTR[q][2],0x20000,vTR[q][0]))
def addr_qk():
    t=vT[4]
    e(salu('s_mul_i32',sT0,sJ,216), salu('s_and_b32',sT0,sT0,-16), salu('s_mul_i32',sT1,sW,32*3456), salu('s_add_u32',sT0,sT0,sT1))
    for q in range(7):
        pp,rr,k=vT[2],vT[3],vT[6]
        e(valu('v_add_u32',pp,64*q,vL), valu('v_mul_u32_u24',rr,4682,pp), valu('v_lshrrev_b32',rr,16,rr),
          valu('v_mul_u32_u24',t,14,rr), valu('v_sub_u32',pp,pp,t),
          valu('v_and_b32',t,12,rr), valu('v_and_b32',k,3,rr), valu('v_lshl_add_u32',k,t,1,k), valu('v_lshrrev_b32',t,4,rr), valu('v_lshl_add_u32',k,t,2,k),
          valu('v_mul_u32_u24',k,3456,k), valu('v_lshl_add_u32',k,pp,4,k), valu('v_add_u32',vQK[q],sT0,k))
        if q%4: e(valu('v_subrev_u32',vQK[q],1024*(q%4),vQK[q]))
def extpos(dst,key,t):
    e(valu('v_and_b32',dst,7,key), valu('v_bfe_u32',t,key,4,1), valu('v_lshl_add_u32',dst,t,3,dst),
      valu('v_bfe_u32',t,key,3,1), valu('v_xor_b32',t,1,t), valu('v_lshl_add_u32',dst,t,4,dst))
def addr_mid():
    t,u,c=vT[4],vT[5],vT[6]
    e(valu('v_and_b32',c,3,vL), salu('s_lshl_b32',sT0,sJ1,3), valu('v_lshrrev_b32',t,2,vL), valu('v_mul_u32_u24',t,224,t), valu('v_add_u32',t,sT0,t),
      valu('v_lshl_add_u32',vQM[0],c,3,t), valu('v_mul_u32_u24',u,72,c), valu('v_add3_u32',vQE[0],t,u,32))
    for n in (1,2): e(valu('v_add_u32',vQM[n],n*0x10000,vQM[0]), valu('v_add_u32',vQE[n],n*0x10000,vQE[0]))
def addr_mid2():
    t,u,key,hf=vT[4],vT[5],vT[2],vT[3]
    e(salu('s_lshl_b32',sT0,sI,2), salu('s_add_u32',sT0,sT0,sW), salu('s_mul_i32',sT0,sT0,1280), salu('s_mul_i32',sT1,sJ,6*SL), salu('s_add_u32',sT0,sT0,sT1))
    e(valu('v_and_b32',key,31,vL), valu('v_lshrrev_b32',hf,5,vL), valu('v_lshlrev_b32',t,2,hf), valu('v_xor_b32',t,t,vL), valu('v_lshlrev_b32',t,4,t), valu('v_add_u32',vSM,sT0,t))
    extpos(u,key,t)
    e(valu('v_lshlrev_b32',u,3,u), valu('v_add_u32',u,sT0,u), valu('v_add_u32',u,1024,u), valu('v_mul_u32_u24',t,4*SL,hf), valu('v_add_u32',vSE0,u,t),
      valu('v_lshl_add_u32',vSE1,hf,31,u))
    e(salu('s_mul_i32',sT0,sJ,6), valu('v_lshrrev_b32',t,4,vL), valu('v_lshl_add_u32',t,t,1,sT0), valu('v_mov_b32',u,f32(QSCALE)), valu('v_cmp_gt_u32','vcc',32,t), valu('v_cndmask_b32',vSCX,1.0,u))
    for p_ in range(3): e(valu('v_readlane_b32',sSC[p_],vSCX,16*p_))
    e(salu('s_lshl_b32',sT0,sI,2), salu('s_add_u32',sT0,sT0,sW), salu('s_lshl_b32',sT1,sT0,9), salu('s_add_u32',sT1,sT1,sJ), salu('s_lshl_b32',sT1,sT1,10),
      valu('v_lshl_add_u32',vPS,vL,4,sT1),
      salu('s_lshl_b32',sT1,sT0,7), salu('s_add_u32',sT1,sT1,sJ), salu('s_lshl_b32',sT1,sT1,9), valu('v_lshl_add_u32',vPX,vL,3,sT1))
    e(valu('v_mov_b32',vONE,1))
    e(salu('s_lshl_b32',sT1,sT0,4), salu('s_add_u32',sT1,sT1,sJ), salu('s_lshl_b32',sT1,sT1,7), salu('s_add_u32',sT1,sT1,WS_F2), valu('v_mov_b32',t,sT1))
    masked(vF1,t,'v_cmp_eq_u32',0,vL,u)
    e(salu('s_lshl_b32',sT1,sM8,2), salu('s_add_u32',sT1,sT1,sW), salu('s_lshl_b32',sT1,sT1,5), salu('s_add_u32',sT1,sT1,sH), salu('s_lshl_b32',sT1,sT1,7), salu('s_add_u32',sT1,sT1,WS_F3),
      valu('v_mov_b32',t,sT1))
    masked(vF3,t,'v_cmp_eq_u32',0,vL,u)
    e(valu('v_mov_b32',t,0), bstore(t,vF3,sWS,0,flags='sc1',tag='qkvst'), bstore(t,vF1,sWS,0,flags='sc1',tag='qkvst'))
    e(valu('v_and_b32',key,16,vL), valu('v_cmp_eq_u32','vcc',0,key), valu('v_cndmask_b32',hf,vR[1],vR[0]), valu('v_mul_f32',hf,hf,hf),
      salu('s_lshl_b32',sT0,sT0,7), salu('s_add_u32',sT0,sT0,WS_R2), valu('v_lshl_add_u32',key,vL,2,sT0), salu('s_lshl_b32',sT1,sJ,6), valu('v_add_u32',t,sT1,vL))
    masked(key,key,'v_cmp_gt_u32',32,t,u)
    e(bstore(hf,key,sWS,0,flags='sc1',tag='qkvst'))
def pf_q_ops():
    if not OPT['pf']: return
    t,u,r=vT[4],vT[5],vT[6]
    e(valu('v_mul_u32_u24',t,3641,vL), valu('v_lshrrev_b32',t,16,t), valu('v_mul_u32_u24',u,18,t), valu('v_sub_u32',u,vL,u), valu('v_mul_u32_u24',u,3456,u), valu('v_lshl_add_u32',u,t,7,u),
      salu('s_lshl_b32',sT0,sM8,2), salu('s_add_u32',sT0,sT0,sW), salu('s_mul_i32',sT0,sT0,18*3456), salu('s_mul_i32',sT1,sJ,216), salu('s_and_b32',sT1,sT1,-128), salu('s_add_u32',sT0,sT0,sT1),
      valu('v_add_u32',u,sT0,u))
    masked(u,u,'v_cmp_gt_u32',54,vL,r)
    e(cost(bload(vPF,u,sWQ,0,tag='pf'),500))
def pf_d_ops():
    if not OPT['pf']: return
    t,u,r=vT[4],vT[5],vT[6]
    e(salu('s_lshl_b32',sT0,sM8,2), salu('s_add_u32',sT0,sT0,sW), salu('s_mul_i32',sT0,sT0,81*128), salu('s_mul_i32',sT1,sJ,288*1152), salu('s_add_u32',sT0,sT0,sT1),
      valu('v_lshl_add_u32',t,vL,7,sT0), valu('v_add_u32',u,8192,t))
    masked(u,u,'v_cmp_gt_u32',17,vL,r)
    e(cost(bload(vPF,t,sWD,0,tag='pf'),600), cost(bload(vPF,u,sWD,0,tag='pf'),200))
def pf_code():
    if not OPT['pfc']: return
    t=vT[4]; a=V(6,2)
    e(raw('s_getpc_b64 s[100:101]','salu',[],['s100','s101']), label('L_pc'),
      salu('s_lshl_b32',sT0,sIDX,2), salu('s_add_u32',sT0,sT0,sW), valu('v_and_b32',t,7,vL), valu('v_lshl_add_u32',t,t,7,sT0), valu('v_lshlrev_b32',t,7,t),
      raw(f'v_min_u32 {t}, L_codeend-L_pc-4, {t}','valu',t.regs(),t.regs()),
      valu('v_mov_b32',a[1],sPC[1]), raw(f'v_add_co_u32 {a[0]}, vcc, {sPC[0]}, {t}','valu',t.regs()+['s100'],a[0].regs()+['vcc']),
      raw(f'v_addc_co_u32 {a[1]}, vcc, 0, {a[1]}, vcc','valu',a[1].regs()+['vcc'],a[1].regs()+['vcc']),
      raw('s_mov_b64 exec, 63','salu'), I(f'global_load_dword {vPF}, {a}, off','vld',a.regs(),vPF.regs(),tag='pf'), raw('s_mov_b64 exec, -1','salu'))

def stats_ops(f,first,acc):
    o=[]
    for d in range(4):
        z=first and d<2
        o.append(valu('v_dot2_f32_bf16',acc[d&1],f[d],sONES,0 if z else acc[d&1]))
        o.append(valu('v_dot2_f32_bf16',acc[2+(d&1)],f[d],f[d],0 if z else acc[2+(d&1)]))
    return o
def stats_final(tt,acc):
    a,b=acc[0],acc[2]
    o=[valu('v_add_f32',a,acc[0],acc[1]), valu('v_add_f32',b,acc[2],acc[3])]
    for op in ('v_permlane16_swap_b32','v_permlane32_swap_b32'):
        o+=[valu('v_mov_b32',acc[1],a), valu('v_mov_b32',acc[3],b), swap(op,a,acc[1]), swap(op,b,acc[3]),
            valu('v_add_f32',a,a,acc[1]), valu('v_add_f32',b,b,acc[3])]
    o+=[valu('v_mul_f32',a,f32(1/576),a), valu('v_mul_f32',b,f32(1/576),b), valu('v_fma_f32',b,'-'+str(a),a,b), valu('v_max_f32',b,0,b),
        valu('v_cvt_pk_bf16_f32',a,b,a), valu('v_and_b32',vM[tt],0xffff0000,a)]
    o2=[valu('v_lshlrev_b32',b,16,a),
        valu('v_add_f32',b,f32(1e-5),b), valu('v_cvt_pk_bf16_f32',b,b,b), valu('v_lshlrev_b32',b,16,b),
        valu('v_sqrt_f32',b,b), valu('v_cvt_pk_bf16_f32',b,b,b), valu('v_lshlrev_b32',b,16,b), valu('v_rcp_f32',vR[tt],b)]
    return o,o2
def centre_ops(f,tt,plain=False):
    o=[]
    for d in range(4):
        x=f[d]
        if plain:
            t=V(252)
            o+=[valu('v_lshlrev_b32',t,16,x), valu('v_and_b32',x,0xffff0000,x), valu('v_sub_f32',t,t,vM[tt]), valu('v_sub_f32',x,x,vM[tt]), valu('v_cvt_pk_bf16_f32',x,t,x)]
            continue
        o.append(valu('v_dot2_f32_bf16',vCT[2*d],x,sLO,vM[tt],mods='neg_lo:[0,0,1]'))
        o.append(valu('v_dot2_f32_bf16',vCT[2*d+1],x,sHI,vM[tt],mods='neg_lo:[0,0,1]'))
    if plain: return o
    for d in range(4): o.append(valu('v_cvt_pk_bf16_f32',f[d],vCT[2*d],vCT[2*d+1]))
    return o
def to_acc(s): return [valu('v_accvgpr_write_b32',XC0[4*s+d],X0[s][d]) for d in range(4)]

class Item:
    def __init__(s,name,n,mk): s.name=name; s.n=n; s.mk=mk; s.addr=None; s.first=None; s.last=None
    def blks(s): return list(range(s.addr//4096,s.addr//4096+s.n))
def blk_item(name,voff,srd,soff,buf=False,c=80):
    def mk(it):
        o=[salu('s_add_u32','m0',sW1K,it.addr)]
        if buf: return o+[salu('s_mov_b32',sSO,soff), cost(dma(voff,srd,sSO,tag=it.name,dst=it.blks()),c)]
        return o+base_add(sBD,srd,soff)+[cost(gdma(voff,sBD,tag=it.name,dst=it.blks()),c)]
    return Item(name,1,mk)
def qkv_item(a):
    def mk(it):
        o=[salu('s_mov_b32',sSO,a*128*3456)] if a==4 else base_add(sBD,sWQ,a*128*3456)
        for q in range(7):
            if q%4==0: o.append(salu('s_add_u32','m0',sW7K,it.addr+q*1024))
            if a==4: o.append(dma(vQK[q],sWQ,sSO,(q%4)*1024,tag=it.name,dst=it.blks()))
            else: o.append(cost(gdma(vQK[q],sBD,(q%4)*1024,tag=it.name,dst=it.blks()),120))
        return o
    return Item(('q',a),7,mk)
def kv_item(sg):
    def mk(it):
        o=[]
        for q in range(5):
            if q%4==0: o+=[salu('s_add_u32','m0',sW5K,it.addr+q*1024)]+base_add(sBD,sWS,WS_QKV+sg*10240+q*1024)
            o.append(gdma(vKV,sBD,(q%4)*1024,flags='sc1',tag=it.name,dst=it.blks())); o[-1].rd.append('ok_f1')
        return o
    return Item(('kv',sg),5,mk)

class Group:
    def __init__(s): s.m=[]; s.rd=[]; s.bar=False; s.fr=[]
frp=[0]
def newfrag():
    f=FR[frp[0]:frp[0]+4]; frp[0]=(frp[0]+4)%FR.n; return f
def tr_read(f,u,it,seg):
    return dsr('ds_read_b64_tr_b16',f[2*u:2*u+2],vTR[seg][it.addr>>16],(it.addr&0xffff)+u*2048,src=(it.name,it.blks()))
def xc(tt,s): return (XC0 if tt==0 else XC1)[4*s:4*s+4]
def hfrag(k,tt): return HH[8*k+4*tt:8*k+4*tt+4]

items=[]; groups=[]; events=[]
def mm_group(srcs,accs,bfun,bar=False):
    g=Group(); g.bar=bar
    for it,seg,k in srcs:
        f=newfrag(); g.fr.append(f)
        for u in range(2): g.rd.append((it,lambda it,f=f,u=u,seg=seg: tr_read(f,u,it,seg)))
    for tt in range(2):
        for (it,seg,k),f in zip(srcs,g.fr):
            g.m.append(m16(accs[tt],f,bfun(k,tt),0 if k==0 else accs[tt]))
    groups.append(g); return len(groups)-1

def h_epilogue(bank,q,kout,half):
    gt=[bank[16*q+4*tt:16*q+4*tt+4] for tt in range(2)]; up=[bank[16*q+8+4*tt:16*q+12+4*tt] for tt in range(2)]
    o=[]
    for tt in range(2):
        for r in range(4): o.append(valu('v_max_f32',gt[tt][r],0,gt[tt][r]))
    for tt in range(2):
        for r in range(4): o.append(valu('v_mul_f32',up[tt][r],gt[tt][r],up[tt][r]))
        for d in range(2): o.append(valu('v_cvt_pk_bf16_f32',gt[tt][d],up[tt][2*d],up[tt][2*d+1]))
        for d in range(2): o.append(valu('v_accvgpr_write_b32',hfrag(kout,tt)[2*half+d],gt[tt][d]))
    return o
NV0=15
X0=[V(192+4*s,4) for s in range(NV0)]+[V(128+4*s,4) for s in range(18-NV0)]
def build_chunk(c,bank):
    xf=lambda k,tt: X0[k] if (c==0 and tt==0 and k<NV0) else xc(tt,k)
    for st in range(6):
        G=[blk_item(('g',c,3*st+n),vGF,sWG,(3*st+n)*32*9216+c*128) for n in range(3)]
        U=[blk_item(('u',c,3*st+n),vGF,sWU,(3*st+n)*32*9216+c*128) for n in range(3)]
        items.extend(G+U)
        for q in range(4):
            mm_group([(G[n],q,3*st+n) for n in range(3)],[bank[16*q+4*tt:16*q+4*tt+4] for tt in range(2)],xf,bar=(q==0))
        for q in range(4):
            gi=mm_group([(U[n],q,3*st+n) for n in range(3)],[bank[16*q+8+4*tt:16*q+12+4*tt] for tt in range(2)],xf,bar=(q==0 and (OPT['bartr'] or (c==0 and st<2))))
            if st==5: events.append((gi,h_epilogue(bank,q,2*c+(q>>1),q&1)))
def build_half(bank):
    for st in range(3):
        G=[blk_item(('gh',3*st+n),vGH,sWG,(3*st+n)*64*9216,c=150) for n in range(3)]
        U=[blk_item(('uh',3*st+n),vGH,sWU,(3*st+n)*64*9216,c=150) for n in range(3)]
        items.extend(G+U)
        seq=[(G,0,0),(G,0,1),(U,8,0),(U,8,1)] if st<2 else [(G,0,0),(U,8,0),(G,0,1),(U,8,1)]
        for z,(M,o,q) in enumerate(seq):
            for hh in range(2):
                ks=[6*st+3*hh+n for n in range(3)]
                gi=mm_group([(M[(k-6*st)>>1],2*(k&1)+q,k) for k in ks],[bank[16*q+o+4*tt:16*q+o+4+4*tt] for tt in range(2)],lambda k,tt:xc(tt,k),bar=(hh==0 and (z==0 or (z==2 and st<2 and OPT['bartr']))))
            if st==2 and o==8: events.append((gi,h_epilogue(bank,q,8,q)))
def build_qkv(bank):
    for a in range(5):
        it=qkv_item(a); items.append(it)
        first=True
        for k0 in range(0,4 if a<4 else 2,2):
            for t in range(7):
                g=Group(); g.bar=first; first=False
                for kk in (k0,k0+1):
                    f=newfrag(); g.fr.append(f)
                    for u in range(2):
                        def rd(it,f=f,u=u,kk=kk,t=t):
                            ad=it.addr+kk*7168+u*3584+(0 if t==6 else 72*(t>>1)+40*(t&1))
                            return dsr('ds_read_b64_tr_b16',f[2*u:2*u+2],(vQE if t==6 else vQM)[ad>>16],ad&0xffff,src=(it.name,it.blks()))
                        g.rd.append((it,rd))
                for tt in range(2):
                    acc=bank[8*t+4*tt:8*t+4*tt+4]
                    for n,kk in enumerate((k0,k0+1)):
                        k=4*a+kk
                        g.m.append(m16(acc,g.fr[n],xc(tt,k),0 if k==0 else acc))
                groups.append(g)
                if a==4: events.append((len(groups)-1,qkv_epilogue(bank,t)))
def st_pair(o,data,voff,soff,tag):
    a=salu('s_mov_b32',sSO2,soff); b=bstore(data,voff,sWS,sSO2,flags='sc1',tag=tag)
    dep=[x for x in o if x.kind=='valu'][-1]
    a.meta['q']='st'; b.meta['q']='st'; b.meta['dep']=dep
    o+=[a,b]
def qkv_epilogue(bank,t):
    o=[]
    sc=[bank[56],bank[57]]
    if t==6: o+=[valu('v_mul_f32',sc[tt],vSCX,vR[tt]) for tt in range(2)]
    elif t%2==0: o+=[valu('v_mul_f32',sc[tt],sSC[t>>1],vR[tt]) for tt in range(2)]
    a=bank[8*t:8*t+8]
    for tt in range(2):
        for r in range(4): o.append(valu('v_mul_f32',a[4*tt+r],sc[tt],a[4*tt+r]))
    if t<6:
        o+=[valu('v_cvt_pk_bf16_f32',a[0],a[0],a[1]), valu('v_cvt_pk_bf16_f32',a[1],a[2],a[3]), valu('v_cvt_pk_bf16_f32',a[2],a[4],a[5]), valu('v_cvt_pk_bf16_f32',a[3],a[6],a[7]),
            swap('v_permlane16_swap_b32',a[0],a[2]), swap('v_permlane16_swap_b32',a[1],a[3])]
        st_pair(o,a[0:4],vSM,WS_QKV+t*SL,'qkvst')
    else:
        o+=[valu('v_cvt_pk_bf16_f32',a[0],a[0],a[1]), valu('v_cvt_pk_bf16_f32',a[2],a[2],a[3]), valu('v_cvt_pk_bf16_f32',a[4],a[4],a[5]), valu('v_cvt_pk_bf16_f32',a[6],a[6],a[7])]
        o+=[valu('v_mov_b32',a[n],sONES) for n in (1,3,5,7)]
        o+=[swap('v_permlane16_swap_b32',a[0],a[4]), swap('v_permlane16_swap_b32',a[2],a[6])]
        for n,(vo,sl) in enumerate(((vSE0,0),(vSE0,1),(vSE1,2),(vSE1,3))):
            st_pair(o,a[2*n:2*n+2],vo,WS_QKV+sl*SL,'qkvst')
    return o
pool=[0]
def build_down():
    ntr=0
    for c,tr in [(0,0),(0,1),(1,0),(1,1),(0,2),(1,2)]+[(c,tr) for c in range(2,9) for tr in range(3)]:
        acc=V(192 if c==0 else 128+32*((c+1)%2),32)
        if True:
            B=[blk_item(('d',c,k),vDF if k<8 else vDH,sWD,(k*32*1152 if k<8 else 0)+c*128) for k in range(3*tr,3*tr+3)]
            items.extend(B)
            for q in range(4):
                gi=mm_group([(B[n],q,3*tr+n) for n in range(3)],[acc[16*tt+4*q:16*tt+4*q+4] for tt in range(2)],hfrag,bar=(q==0 and (ntr%2==0 or OPT['bartr'])))
                if tr==2 and q%2==1:
                    o=[]
                    for tt in range(2):
                        a=acc[16*tt+4*(q-1):16*tt+4*(q-1)+8]
                        d4=XC1[pool[0]:pool[0]+4]; pool[0]=(pool[0]+4)%72
                        o+=[valu('v_cvt_pk_bf16_f32',d4[d],a[2*d],a[2*d+1]) for d in range(4)]
                        if c<8: st_pair(o,d4,vPS,WS_P+(tt*16+c*2+(q>>1))*16384,'pst')
                        else:
                            for z in range(2): st_pair(o,d4[2*z:2*z+2],vPX,WS_PX+(tt*4+q-1+z)*8192,'pst')
                    events.append((gi,o))
            ntr+=1

marks={}
def build_ffn():
    marks['c0']=len(groups); build_chunk(0,BANK[0])
    marks['c1']=len(groups); build_chunk(1,BANK[1])
    marks['c2']=len(groups); build_chunk(2,BANK[0])
    marks['qkv']=len(groups); build_qkv(BANK[1])
    marks['c3']=len(groups); build_chunk(3,BANK[0])
    marks['half']=len(groups); build_half(V(224,32))
    marks['down']=len(groups); build_down()

NB=40; LATE=10**9
def plan():
    L=OPT['look']
    n=0; bars=[]
    for g in groups:
        g.start=n
        if g.bar: bars.append(n-L)
        for k,(it,_) in enumerate(g.rd):
            if it.first is None: it.first=n+k-L
            it.last=n-1
        n+=len(g.m)
    free={b:(-3000 if b>=36 else (-2000 if b<18 else -L)) for b in range(NB)}
    ptr=36
    for it in items:
        if ptr+it.n>NB: ptr=0
        it.addr=ptr*4096
        it.early=max(free[b] for b in it.blks())
        assert it.early<LATE
        it.bar=max(b for b in bars if b<=it.first)
        nxt=[b for b in bars if b>it.last]
        for b in it.blks(): free[b]=nxt[0] if nxt else LATE
        ptr=(ptr+it.n)%NB
    return n,bars,free

VM=('dma','vld','vst')
SC=('salu','waitfor','misc','label')
lastvm=dict(any=-100,st=-100)
def head(nm,gap):
    q=fifo[nm]
    if not q or q[0][0]>gap: return None
    x=q[0][1]; sq=x.meta['seq']; rd=set(x.rd)-{'carry'}; wr=set(x.wr)-{'carry'}
    for n2,q2 in fifo.items():
        if n2==nm: continue
        for _,y in q2:
            if y.meta['seq']>sq: break
            if rd&set(y.wr) or wr&set(y.rd) or wr&set(y.wr): return None
    return x
pipe=[0,16]
def vm_ready(gap,mingap,stgap):
    if gap-lastvm['any']<mingap: return None
    if pipe[0]-gap*pipe[1]>OPT['back']: return None
    for nm in ('st','ld','low','dma'):
        x=head(nm,gap)
        if x is None or x.kind not in VM: continue
        if nm=='st':
            d=x.meta.get('dep')
            if gap-lastvm['st']<stgap or (d is not None and d.meta.get('at',LATE)>gap-2): continue
        return nm
    return None
def take(nm,gap):
    x=fifo[nm].pop(0)[1]
    if x.kind in VM:
        lastvm['any']=gap
        pipe[0]=max(pipe[0],gap*pipe[1])+x.meta.get('cost',80)
        if nm=='st': lastvm['st']=gap
    e(x)
    while x.meta.get('glue'):
        x=fifo[nm].pop(0)[1]; e(x)
    return x
def pull(gap,scalar):
    order=('dma','st','ctr','epi','ld','low')
    if scalar:
        for nm in order:
            x=head(nm,gap)
            if x is not None and 'carry' in x.rd: take(nm,gap); return True
    for nm in order:
        x=head(nm,gap)
        if x is None or x.kind in VM: continue
        if (x.kind in SC)!=scalar: continue
        take(nm,gap); return True
    return False

bar_extra={}
def emit_backbone(bars,gapstamps):
    L=OPT['look']
    reads=[(it,f,g.start-0.5) for g in groups for it,f in g.rd]
    ev={}
    for gi,ops in events: ev.setdefault(gi,[]).append(ops)
    bar_items={}
    for it in items: bar_items.setdefault(it.bar,[]).append(it.name)
    barset=set(bars); issue={}
    fixed={}
    for gi,g in enumerate(groups):
        for k in range(len(g.m)):
            gap=g.start+k; fx=[]
            w_lg=groups[gi+1].fr if (k==len(g.m)-1 and gi+1<len(groups)) else []
            w_vm=(bar_items.get(gap+1,[])+bar_extra.get(gap+1,[])) if gap+1 in barset else []
            if gap in barset: fx.append(barrier())
            if w_lg or w_vm: fx.append(waitfor(lg=w_lg,vmtags=w_vm))
            fixed[gap]=fx
    ri=[L]
    def rd():
        it,f,lg=reads[ri[0]]; ri[0]+=1; e(setseq(f(it),lg))
    planned=None
    for gi,g in enumerate(groups):
        for k,m in enumerate(g.m):
            gap=g.start+k; cur[0]=gap
            e(m)
            if gap in gapstamps: stamp(gapstamps[gap])
            if 'gst' in OPT and gap in range(*map(int,OPT['gst'].split(':'))): stamp(f'gap{gap}',True)
            if planned:
                x=take(planned,gap); planned=None
                if x.kind=='dma': issue[x.meta['tag']]=gap
                continue
            fx=fixed[gap]
            if fx: e(fx.pop(0))
            else: pull(gap,True)
            if ri[0]<len(reads) and ri[0]<=gap+L: rd()
            if fx: e(fx.pop(0)); continue
            if ri[0]<len(reads) and ri[0]<=gap+L: rd(); continue
            if gap+1 in fixed and not fixed[gap+1]: planned=vm_ready(gap+1,OPT['dmagap'],OPT['stgap'] if gap>=groups[marks['down']].start else OPT['qstgap'])
            if planned:
                if ri[0]<len(reads) and reads[ri[0]][0].bar<=gap: rd()
                continue
            if not pull(gap,False): pull(gap,True)
        for ops in ev.get(gi,[]):
            for o in ops: push(o.meta.get('q','epi'),gap+4,[o])
    sl=[(it.bar-issue[it.name],it.name) for it in items if it.name in issue]
    sl.sort(); print('min dma slack (gaps):',sl[:6])
    print('left after backbone:',{k:len(v) for k,v in fifo.items()})

OUT=[]
def spin(name,load,expect):
    a=valu('v_cmp_gt_u32','vcc',expect,vPOLL); a.meta['glue']=True
    b=raw(f's_cbranch_vccnz L_spin_{name}','misc',['vcc']); b.meta['glue']=True
    c=label(f'L_back_{name}')
    cnt=vT[7]
    OUT.extend([f'L_spin_{name}:', f'v_mov_b32 {cnt}, 0x40000', f'L_spinl_{name}:', load.text, 's_waitcnt vmcnt(0)', f'v_cmp_gt_u32 vcc, {fmt(expect)}, {vPOLL}', 's_nop 1',
        f's_cbranch_vccz L_back_{name}', f'v_subrev_u32 {cnt}, 1, {cnt}', f'v_cmp_ne_u32 vcc, 0, {cnt}', 's_sleep 1', f's_cbranch_vccnz L_spinl_{name}', f's_branch L_back_{name}'])
    a.wr.append(cnt.regs()[0]); a.wr.append('ok_'+name)
    return [a,b,c]

def addr_att(WB):
    t,u,key,hf,p,rp=vT[0],vT[1],vT[2],vT[3],vT[4],vT[5]
    vQL,vQX=vT[6],vPF
    e(valu('v_and_b32',key,31,vL), valu('v_lshrrev_b32',hf,5,vL), valu('v_lshlrev_b32',t,2,hf), valu('v_xor_b32',t,t,vL), valu('v_lshlrev_b32',vKM,4,t))
    extpos(u,key,t)
    e(valu('v_lshlrev_b32',vKE,3,u), valu('v_add_u32',vKE,1024,vKE))
    e(salu('s_lshr_b32',sT0,sW,1), salu('s_lshl_b32',sT0,sT0,5), salu('s_add_u32',sT0,sT0,sH), salu('s_add_u32',sT0,sT0,32), salu('s_mul_i32',sT0,sT0,SL),
      salu('s_and_b32',sT1,sW,1), salu('s_mul_i32',sT1,sT1,5120), salu('s_add_u32',sT0,sT0,sT1), valu('v_lshl_add_u32',vKV,vL,4,sT0))
    e(valu('v_and_b32',vZ,1,vL), valu('v_lshlrev_b32',vZ,7,vZ), valu('v_mov_b32',vIDX,0xdddd))
def qk_loads(WB):
    t,u,hf=vT[0],vT[1],vT[3]
    e(salu('s_mov_b32',sSO3,WS_R2), cost(bload(vR2,vR2,sWS,sSO3,flags='sc1'),40))
    e(valu('v_lshrrev_b32',hf,5,vL), valu('v_lshl_add_u32',u,hf,31,vKE))
    e(salu('s_lshl_b32',sT0,sM8,2), salu('s_add_u32',sT0,sT0,sW), salu('s_mul_i32',sT0,sT0,2560), salu('s_mul_i32',sT1,sH,SL), salu('s_add_u32',sSO3,sT0,sT1))
    for x in range(2): e(bload(QM[x],vKM,sWS,sSO3,x*1280,flags='sc1'))
    e(cost(bload(QE[0][0],u,sWS,sSO3,0,flags='sc1'),40), cost(bload(vT[2],u,sWS,sSO3,1280,flags='sc1'),40))
    e(salu('s_add_u32',sSO3,sT1,32*SL))
    for x in range(2): e(bload(KM[x],vKM,sWS,sSO3,x*1280,flags='sc1'), cost(bload(KE[x],u,sWS,sSO3,x*1280,flags='sc1'),40))
    e(valu('v_add_u32',vKM,WB,vKM), valu('v_mul_u32_u24',t,LDS_OOB,hf), valu('v_add_u32',vKE,vKE,t), valu('v_add_u32',vKE,WB,vKE))
    for x in range(2):
        for r in range(16): e(valu('v_accvgpr_write_b32',OO[x][r],0))
def addr_lds(WB):
    t,hf=vT[0],vT[3]
    e(valu('v_lshrrev_b32',hf,5,vL))
    c,r,k,x=vT[4],vT[5],vT[6],vT[1]
    e(valu('v_and_b32',c,3,vL), valu('v_bfe_u32',r,vL,2,2), valu('v_lshl_add_u32',r,hf,3,r))
    for n in range(4):
        uu,y=n>>1,n&1
        e(valu('v_add_u32',k,16*uu+4*y,r))
        extpos(x,k,t)
        e(valu('v_lshlrev_b32',x,3,x), valu('v_min_u32',t,1,c), valu('v_mul_u32_u24',t,LDS_OOB+64,t), valu('v_xor_b32',x,x,t), valu('v_add_u32',x,1024,x))
        e(valu('v_lshrrev_b32',t,1,c), valu('v_mul_u32_u24',t,36,t), valu('v_xor_b32',k,k,t), valu('v_lshlrev_b32',k,4,k), valu('v_and_b32',t,1,c), valu('v_lshl_add_u32',k,t,3,k))
        e(valu('v_and_b32',t,16,vL), valu('v_cmp_eq_u32','vcc',0,t), valu('v_cndmask_b32',k,x,k), valu('v_add_u32',vVA[n],WB,k))
def addr_fin():
    t,u,p,rp,a,b=vT[0],vT[1],vT[4],vT[5],vT[6],vT[3]
    lane_rp(rp,p,t)
    e(salu('s_and_b32',sT0,sW,1), salu('s_lshr_b32',sT1,sW,1), salu('s_mul_i32',sT2,sT0,20), salu('s_lshl_b32',sT3,sT1,3), salu('s_add_u32',sT2,sT2,sT3), valu('v_add_u32',a,sT2,rp),
      salu('s_mul_i32',sT2,sT0,144), salu('s_mul_i32',sT3,sT1,36), salu('s_add_u32',sT2,sT2,sT3), salu('s_add_u32',sT2,sT2,16),
      valu('v_lshrrev_b32',t,2,rp), valu('v_mul_u32_u24',t,72,t), valu('v_and_b32',b,3,rp), valu('v_add3_u32',b,b,t,sT2))
    e(salu('s_and_b32',sT0,sIDX,7), salu('s_lshl_b32',sT1,sT0,7), valu('v_lshl_add_u32',u,p,4,sT1),
      valu('v_mul_u32_u24',t,1152,a), valu('v_add_u32',vWO,t,u), valu('v_mul_u32_u24',t,1152,b), valu('v_add_u32',vWOE,t,u))
    e(salu('s_lshr_b32',sT2,sT0,1), salu('s_lshl_b32',sT2,sT2,5), salu('s_add_u32',sT2,sT2,1024), valu('v_and_b32',u,1,p), valu('v_lshl_add_u32',u,u,4,sT2), valu('v_lshrrev_b32',p,1,p),
      valu('v_mul_u32_u24',t,36,p), valu('v_add_u32',t,t,a), valu('v_mul_u32_u24',t,1152,t), valu('v_add_u32',vWX,t,u),
      valu('v_mul_u32_u24',t,288,p), valu('v_add_u32',t,t,b), valu('v_mul_u32_u24',t,1152,t), valu('v_add_u32',vWXE,t,u))
    e(salu('s_lshr_b32',sT3,sIDX,3), salu('s_lshl_b32',sT3,sT3,2), salu('s_add_u32',sT3,sT3,sW), salu('s_lshl_b32',sSO3,sXC,4), salu('s_add_u32',sT3,sT3,sSO3))
    tk,g=vT[4],vT[5]
    e(valu('v_and_b32',tk,15,vL), valu('v_lshrrev_b32',g,4,vL))
    e(salu('s_lshl_b32',sSO3,sT3,3), salu('s_add_u32',sSO3,sSO3,sT0), salu('s_lshl_b32',sSO3,sSO3,15), valu('v_lshl_add_u32',vPL,vL,4,sSO3))
    e(salu('s_xor_b32',sSC[0],sW,sT0), salu('s_lshl_b32',sSC[0],sSC[0],31))
    e(salu('s_lshl_b32',sSO3,sT3,2), salu('s_lshr_b32',sSC[1],sT0,1), salu('s_add_u32',sSO3,sSO3,sSC[1]), salu('s_lshl_b32',sSO3,sSO3,13), salu('s_or_b32',sSO3,sSO3,sSC[0]), valu('v_lshl_add_u32',vPLX,vL,3,sSO3))
    e(salu('s_lshl_b32',sSO3,sT3,4), valu('v_add_u32',a,sSO3,tk), valu('v_lshlrev_b32',vR2,2,a), valu('v_mul_u32_u24',a,1152,a), valu('v_lshl_add_u32',a,g,3,a),
      valu('v_add_u32',vXO,sT1,a), salu('s_or_b32',sT2,sT2,sSC[0]), valu('v_add_u32',vXOX,sT2,a))
    for q in range(4): e(cost(bload(XR[2*q:2*q+2],vXO,sX,0,32*q),260))
    e(cost(bload(XR[8:10],vXOX,sX,0),200))
    e(salu('s_and_b32',sSO3,sT3,1), salu('s_lshl_b32',sSO3,sSO3,4), valu('v_add_u32',a,sSO3,tk), salu('s_lshr_b32',sSC[1],sT3,1),
      salu('s_lshl_b32',sSO3,sSC[1],10), valu('v_lshl_add_u32',t,a,4,sSO3), valu('v_and_b32',u,1,g), valu('v_lshl_add_u32',t,u,9,t), valu('v_lshrrev_b32',u,1,g), valu('v_lshl_add_u32',vOL,u,16,t),
      salu('s_lshl_b32',sSO3,sSC[1],12), valu('v_lshl_add_u32',t,a,2,sSO3), valu('v_lshl_add_u32',vOLX,g,9,t))
    e(salu('s_lshr_b32',sSO3,sT3,2), salu('s_lshl_b32',sSO3,sSO3,12), salu('s_add_u32',sSO3,sSO3,WS_F3), valu('v_and_b32',t,31,vL), valu('v_lshl_add_u32',vF3L,t,7,sSO3))
    e(salu('s_lshr_b32',sSO3,sT3,1), salu('s_lshl_b32',sSO3,sSO3,11), salu('s_add_u32',sSO3,sSO3,WS_F2), valu('v_lshl_add_u32',vPG,tk,7,sSO3))
    e(salu('s_lshl_b32',sT0,sM8,2), salu('s_add_u32',sT0,sT0,sW), salu('s_lshl_b32',sT1,sT0,11), salu('s_lshl_b32',sT2,sH,16), salu('s_add_u32',sT1,sT1,sT2), salu('s_add_u32',sT1,sT1,WS_O),
      valu('v_lshl_add_u32',vOS,vL,4,sT1),
      salu('s_lshl_b32',sT1,sT0,13), salu('s_lshl_b32',sT2,sH,7), salu('s_add_u32',sT1,sT1,sT2), salu('s_add_u32',sT1,sT1,WS_OX),
      valu('v_lshl_add_u32',t,t,2,sT1), valu('v_lshrrev_b32',u,5,vL), valu('v_lshl_add_u32',vOSX,u,12,t))

def max_ops(x,srcs,m,first=True):
    o=[]
    regs=[s[r] for s in srcs for r in range(16)]
    if first: o.append(valu('v_max3_f32',m,regs[0],regs[1],regs[2])); rest=regs[3:]
    else: rest=regs
    while len(rest)>=2: o.append(valu('v_max3_f32',m,m,rest[0],rest[1])); rest=rest[2:]
    if rest: o.append(valu('v_max_f32',m,m,rest[0]))
    return o
def set_shift(x,m,t,margin):
    return [valu('v_mov_b32',t,m), swap('v_permlane32_swap_b32',m,t), valu('v_max_f32',m,m,t), valu('v_sub_f32',m,f32(-margin) if margin else 0,m),
            valu('v_cvt_pk_bf16_f32',t,m,m), valu('v_lshlrev_b32',t,16,t), valu('v_sub_f32',t,m,t), valu('v_cvt_pk_bf16_f32',t,m,t),
            valu('v_cmp_gt_u32','vcc',32,vL), valu('v_cndmask_b32',QE[x][1],0,t)]

def attention(g0,kv,WB,wo_items):
    base=g0+100
    pipe[0]=0; pipe[1]=44
    def kread(tau):
        it=kv[tau>>3]; off=it.addr-WB+(tau&7)*1280; src=(it.name,it.blks())
        return [dsr('ds_read_b128',KM[tau%3],vKM,off,src=src), dsr('ds_read_b64',KE[tau%3],vKE,off,src=src)]
    def vread(tau,n):
        it=kv[tau>>3]; off=it.addr-WB+10240+(tau&7)*1280
        return dsr('ds_read_b64_tr_b16',VV[tau&1][2*n:2*n+2],vVA[n],off,src=(it.name,it.blks()))
    def E(n,buf=None): return m32x8(buf or SB[n%3],KE[(n>>1)%3],QE[n&1],0)
    def M(n,buf=None): b=buf or SB[n%3]; return m32(b,KM[(n>>1)%3],QM[n&1],b)
    def PV(n,h): return smf(OO[n&1],VV[(n>>1)&1][4*h:4*h+4],SB[n%3][8*h:8*h+8],vIDX)
    def flush(n,names=('ctr','epi','low','dma','ld')):
        k=0
        while k<n:
            for nm in names:
                x=head(nm,cur[0])
                if x is not None: take(nm,cur[0]); break
            else: return
            k+=1
    cur[0]=g0
    flush(1000,('low','ld'))
    e(valu('v_mov_b32',QE[1][0],vT[2]), valu('v_mov_b32',QE[0][1],0), valu('v_mov_b32',QE[1][1],0))
    e(waitfor(vm=QM+KM[:2]+KE[:2]+[QE[0]],vmtags=[kv[0].name],lgall=True), barrier())
    cur[0]=g0+10
    bufs=[SB[1],SB[2],SB[3],SB[4]]
    for k,n in enumerate((0,2,1,3)):
        e(E(n,bufs[k])); flush(5,('epi',)); e(M(n,bufs[k]));
        e(vread(0,k)); flush(4,('epi',))
    flush(1000,('epi',))
    mx=[vT[0],vT[1]]
    e(*max_ops(0,bufs[0:2],mx[0])); e(*set_shift(0,mx[0],vT[3],MARGIN))
    e(*max_ops(1,bufs[2:4],mx[1])[:4])
    e(E(0)); e(*max_ops(1,bufs[2:4],mx[1])[4:10]); e(M(0)); e(*max_ops(1,bufs[2:4],mx[1])[10:]); e(*set_shift(1,mx[1],vT[3],MARGIN))
    stamp('att')
    barx={7:[it.name for it in wo_items]}; f2done=[False]
    for n in range(128):
        tau=n>>1
        if 'ast' in OPT and n in range(*map(int,OPT['ast'].split(':'))): stamp(f'slot{n}',True)
        ms=[E(n+1) if n<127 else None, M(n+1) if n<127 else None, PV(n-1,1) if n>0 else None, PV(n,0)]
        if n&1: rds=[vread(tau+1,k) if tau+1<64 else None for k in range(4)]
        else: rds=(kread(tau+2) if tau+2<64 else [None,None])+[None,None]
        sg=(n+5)//16 if (n+5)%16==0 and n+5<128 else None
        for k in range(4):
            gap=base+4*n+k; cur[0]=gap
            if ms[k] is not None: e(ms[k])
            nsc={0:0,1:1,2:2,3:2}[k]
            fx=(k==1 and n%2==0) or (k==2 and sg is not None)
            vmn=vm_ready(gap,2,OPT['astgap']) if (not fx and ms[k] is not None) else None
            if vmn: take(vmn,gap)
            else:
                if k==1 and n%2==0: e(waitfor(lg=[VV[tau&1],KM[(tau+1)%3],KE[(tau+1)%3]])); nsc-=1
                if k==2 and sg is not None:
                    e(waitfor(vmtags=[kv[sg].name]+barx.get(sg,[])), barrier()); nsc-=2
                    if sg+1<8: push('dma',gap,kv[sg+1].mk(kv[sg+1]))
                    for it in wo_items[5*(sg-1):5*sg]: push('dma',gap,it.mk(it))
                while nsc>0 and pull(gap,True): nsc-=1
            if rds[k] is not None: e(rds[k])
            x=head('ld',gap)
            if x is not None and x.kind=='valu': take('ld',gap)
            for r in range(4): e(valu('v_exp_f32',SB[n%3][4*k+r],SB[n%3][4*k+r]))
        if not fifo['st'] and not f2done[0]:
            f2done[0]=True; print('partial stores end at slot',n)
            push('st',gap+4*OPT['f2lag'],[waitfor(vmtags=['pst']), bstore(vONE,vF1,sWS,0,flags='sc1')])
        if n==OPT['f2poll']:
            ld=bload(vPOLL,vPG,sWS,0,flags='sc1')
            push('ld',gap,[ld])
            t0=base+4*OPT['f2chk']
            push('ld',t0,[waitfor(vm=[vPOLL])]+spin('f2',ld,1))
            ops=[]
            for k in range(32):
                if k%8==0: ops+=base_add(sBL,sWS,WS_P+k*1024+4096)
                ops.append(gload(PART[k],vPL,sBL,(k%8)*1024-4096,flags='sc1'))
                if k%2==1:
                    z=k>>1
                    if z%8==0: ops.append(salu('s_mov_b32',sSO3,WS_PX+z*512))
                    ops.append(bload(PARTX[z],vPLX,sWS,sSO3,(z%8)*512,flags='sc1'))
            nl=0
            for o in ops:
                push('ld',t0+int(nl*OPT['ldgap']),[o])
                if o.kind=='vld': nl+=1
    cur[0]=base+600
    e(PV(127,1))
    print('left after attention:',{k:len(v) for k,v in fifo.items()})
    flush(1000,('dma','ld','st','low'))

def fallback(kv,WB):
    global P
    save=P; P=[]
    pb=kv[5].addr
    a=[V(128+n) for n in range(6)]; vo=V(134); mx=[V(135),V(136)]; t=V(137)
    e(label('L_fb'), raw('s_waitcnt vmcnt(0) lgkmcnt(0)','misc'), raw('s_nop 15','misc'))
    for d,s in zip(a,[vKM,vKE]+vVA): e(valu('v_add_u32',d,sW5K,s))
    e(valu('v_lshlrev_b32',vo,4,vL), valu('v_mov_b32',QE[0][1],0), valu('v_mov_b32',QE[1][1],0), valu('v_mov_b32',mx[0],0xff800000), valu('v_mov_b32',mx[1],0xff800000))
    off=pb-WB
    for ps in range(2):
        e(salu('s_add_u32',sT0,sH,32), salu('s_mul_i32',sT0,sT0,SL), salu('s_add_u32',sT1,sT0,32*SL), salu('s_mov_b32',sT2,64), label(f'L_fbl{ps}'))
        e(salu('s_add_u32','m0',sW5K,pb), dma(vo,sWS,sT0,0,flags='sc1'), dma(vo,sWS,sT0,1024,flags='sc1'))
        if ps: e(salu('s_add_u32','m0',sW5K,pb+2560), dma(vo,sWS,sT1,0,flags='sc1'), dma(vo,sWS,sT1,1024,flags='sc1'))
        e(waitfor(vmall=True), dsr('ds_read_b128',KM[0],a[0],off), dsr('ds_read_b64',KE[0],a[1],off))
        if ps:
            for n in range(4): e(dsr('ds_read_b64_tr_b16',VV[0][2*n:2*n+2],a[2+n],off+2560))
        e(waitfor(lgall=True))
        for x in range(2): e(m32x8(SB[x],KE[0],QE[x],0), m32(SB[x],KM[0],QM[x],SB[x]))
        for x in range(2):
            if ps==0: e(*max_ops(x,[SB[x]],mx[x],first=False))
            else:
                for r in range(16): e(valu('v_exp_f32',SB[x][r],SB[x][r]))
                for h in range(2): e(smf(OO[x],VV[0][4*h:4*h+4],SB[x][8*h:8*h+8],vIDX))
        e(raw('s_nop 15','misc'), salu('s_add_u32',sT0,sT0,1280), salu('s_add_u32',sT1,sT1,1280), salu('s_sub_u32',sT2,sT2,1), salu('s_cmp_lg_u32',sT2,0), raw(f's_cbranch_scc1 L_fbl{ps}','misc'))
        if ps==0:
            for x in range(2):
                e(*set_shift(x,mx[x],t,0.0))
                for r in range(16): e(valu('v_accvgpr_write_b32',OO[x][r],0))
    for x in range(2):
        for r in range(11): e(valu('v_accvgpr_read_b32',SB[x][r],OO[x][r]))
    e(raw('s_nop 3','misc'), raw('s_branch L_fb_ret','misc'))
    OUT.extend(i.text for i in finalize(P,verbose=0,name='fb'))
    P=save

def final(g0,wo_main,wo_x):
    cur[0]=g0
    T=[SB[0],SB[1]]
    SA=V(56,20); DN=V(76,20); SEL=V(96,8); tmp=V(104,8)
    m,g,x0,x1=tmp[0],tmp[1],SEL[2],SEL[3]
    e(valu('v_bfe_u32',m,vL,2,2), valu('v_lshrrev_b32',g,4,vL), valu('v_cmp_eq_u32','vcc',m,g), valu('v_and_b32',m,1,vL), valu('v_lshlrev_b32',m,4,m), valu('v_lshlrev_b32',m,m,sLO),
      valu('v_cndmask_b32',m,0,m), valu('v_and_b32',g,2,vL), valu('v_cmp_eq_u32','vcc',0,g), valu('v_mov_b32',SEL[0],0), valu('v_mov_b32',SEL[1],0),
      valu('v_cndmask_b32',x0,0,m), valu('v_sub_u32',x1,m,x0))
    for x in range(2):
        for r in range(11): e(valu('v_accvgpr_read_b32',T[x][r],OO[x][r]))
    for x in range(2):
        s=tmp[2+x]
        e(valu('v_add_f32_e64',s,f'|{T[x][0]}|',f'|{T[x][1]}|'))
        for r in range(2,10): e(valu('v_add_f32_e64',s,s,f'|{T[x][r]}|'))
    e(valu('v_min_f32',tmp[4],tmp[2],tmp[3]), valu('v_add_f32',tmp[2],tmp[2],tmp[3]), valu('v_add_f32',tmp[3],T[0][10],T[1][10]), valu('v_add_f32',tmp[2],tmp[2],tmp[3]),
      valu('v_cmp_nle_f32','vcc',f32(2.0**-100),tmp[4]), raw('s_cbranch_vccnz L_fb','misc',['vcc']),
      valu('v_cmp_nge_f32','vcc',f32(2.0**126) if not OPT['forcefb'] else f32(-1.0),tmp[2]), raw('s_cbranch_vccnz L_fb','misc',['vcc']), label('L_fb_ret'))
    e(swap('v_permlane32_swap_b32',T[0][10],T[1][10]), valu('v_rcp_f32',tmp[2],T[0][10]), valu('v_mov_b32',tmp[3],tmp[2]), swap('v_permlane32_swap_b32',tmp[2],tmp[3]))
    for x in range(2):
        for r in range(10): e(valu('v_mul_f32',T[x][r],tmp[2+x],T[x][r]))
        for d in range(5): e(valu('v_cvt_pk_bf16_f32',T[x][d],T[x][2*d],T[x][2*d+1]))
        e(gstore(T[x][0:4],vOS,sWS[0:2],x*1024,flags='sc1',tag='ost'))
    e(swap('v_permlane32_swap_b32',T[0][4],T[1][4]), gstore(T[0][4],vOSX,sWS[0:2],flags='sc1',tag='ost'))
    stamp('o stored')
    e(valu('v_mov_b32',SEL[4],x0), valu('v_mov_b32',SEL[5],x1), valu('v_mov_b32',SEL[6],0), valu('v_mov_b32',SEL[7],0))
    pool_=[V(112+4*n,4) for n in range(16)]+[V(208+4*n,4) for n in range(12)]+[V(176+4*n,4) for n in range(8)]
    npre=len(pool_)
    pool_+=[A(72+4*n,4) for n in range(38)]+[A(236+4*n,4) for n in range(5)]
    frs=[]; rds=[]
    for s in range(18):
        for q in range(5):
            f=pool_[len(frs)%len(pool_)]; frs.append(f)
            for u in range(2): rds.append(tr_read(f,u,wo_main[s],q) if q<4 else tr_read(f,u,wo_x[s>>2],s&3))
    red=[]
    for pr in range(2):
        for z in range(2):
            d=DN[8*pr+4*z:8*pr+4*z+4]
            for j in range(16): red.append(m16(d,SEL[4:8] if z==0 else SEL[0:4],PART[16*pr+j],0 if j==0 else d))
    for z in range(8): red.append(m16(DN[16:20],SEL[2:6],R('a',PARTX[2*z].b,4),0 if z==0 else DN[16:20]))
    e(waitfor(vm=PART+PARTX))
    ri=0
    nflag=OPT.get('flagat',30)
    for k,mm in enumerate(red):
        e(mm)
        if k==nflag: e(waitfor(vmall=True), bstore(vONE,vF3,sWS,0,flags='sc1')); stamp('flag')
        if k%4==3: e(waitfor(lg=frs[:max(0,ri//2-3)]))
        if ri<2*npre: e(rds[ri]); ri+=1
    pl=bload(vPOLL,vF3L,sWS,0,flags='sc1')
    e(pl)
    while ri<2*len(pool_):
        if ri%4==0: e(waitfor(lg=frs[:max(0,ri//2-4)]))
        e(rds[ri]); ri+=1
    for r in range(20): e(valu('v_mul_f32',DN[r],vR2,DN[r]))
    for r0 in range(0,20,8):
        rr=range(r0,min(20,r0+8))
        for r in rr: e(valu('v_mul_f32',tmp[r-r0],f32(-1.4426950408889634),DN[r]))
        for r in rr: e(valu('v_exp_f32',tmp[r-r0],tmp[r-r0]))
        for r in rr: e(valu('v_add_f32',tmp[r-r0],1.0,tmp[r-r0]))
        for r in rr: e(valu('v_rcp_f32',tmp[r-r0],tmp[r-r0]))
        for r in rr: e(valu('v_mul_f32',DN[r],tmp[r-r0],DN[r]))
    XV=V(96,10)
    for d in range(10): e(valu('v_accvgpr_read_b32',XV[d],XR[d]))
    e(*base_add(sBL,sWS,WS_OX), *base_add(sBD,sWS,WS_O))
    ofs=[V(30+n) for n in range(11)]+[V(14+n) for n in range(4)]
    for s in range(1,16): e(valu('v_add_u32',ofs[s-1],s*131072,vOL))
    stamp('ready')
    e(waitfor(vm=[vPOLL]), *spin('f3',pl,1))
    stamp('seen')
    OF=[A(4*s,4) for s in range(18)]
    for s in range(16): e(gload(OF[s],vOL if s==0 else ofs[s-1],sBD,flags='sc1'))
    for s in range(2):
        for r in range(4): e(gload(OF[16+s][r],vOLX,sBL,s*2048+r*128,flags='sc1'))
    k=0
    for s in range(18):
        e(waitfor(vm=[OF[s]],lg=frs[5*s:5*s+5]))
        for q in range(5):
            e(m16(SA[4*q:4*q+4],frs[k],OF[s],0 if s==0 else SA[4*q:4*q+4])); k+=1
            if ri<len(rds) and ri//2-len(pool_)<k-1: e(rds[ri]); ri+=1
    stamp('mm done')
    for q in range(5):
        for d in range(2):
            lo,hi=tmp[2+2*d],tmp[3+2*d]; x=XV[2*q+d]
            e(valu('v_lshlrev_b32',lo,16,x), valu('v_and_b32',hi,0xffff0000,x))
        for d in range(2):
            lo,hi=tmp[2+2*d],tmp[3+2*d]; r=4*q+2*d
            e(valu('v_fmac_f32',lo,SA[r],DN[r],rmw=True), valu('v_fmac_f32',hi,SA[r+1],DN[r+1],rmw=True), valu('v_cvt_pk_bf16_f32',SA[4*q+d],lo,hi))
        e(bstore(SA[4*q:4*q+2],vXO if q<4 else vXOX,sOUT,0,32*q if q<4 else 0))

def main():
    build_ffn()
    ngaps,bars,free=plan()
    L=OPT['look']
    best=None
    for a0 in range(0,26):
        fr=sorted((max(free[b] for b in range(a0+5*k,a0+5*k+5)),k) for k in range(3))
        key=(fr[0][0],fr[1][0])
        if best is None or key<best[0]: best=(key,a0,[k for _,k in fr])
    _,a0,order=best; WB=a0*4096
    print('attention window',best,'ngaps',ngaps,{k:groups[v].start for k,v in marks.items()})
    kv=[kv_item(s) for s in range(8)]
    for s,it in enumerate(kv): it.addr=(a0+5*order[s%3])*4096
    rest=[b for b in range(NB) if not a0<=b<a0+15]
    wo_main=[blk_item(('wo',s),vWO if s<16 else vWOE,sWO,36*s*1152 if s<16 else 288*(s-16)*1152) for s in range(18)]
    wo_x=[blk_item(('wx',n),vWX if n<4 else vWXE,sWO,144*n*1152 if n<4 else 0,buf=(n==4),c=320) for n in range(5)]
    for it,b in zip(wo_main+wo_x,rest): it.addr=b*4096

    def pst(name):
        if 'pst' in OPT: stamp(name,True)
    prologue(); pst('karg')
    pre0=[it for it in items if it.early==-3000]; pre1=[it for it in items if it.early==-2000]
    dq=[xdma(tt,l) for tt in range(2) for l in range(9)]+[it.mk(it) for it in pre0+pre1]
    def vm_with(fill):
        if not dq: e(*fill); return
        o=dq.pop(0); sc=[x for x in o if x.kind=='salu']
        e(*sc); e(*fill); e(*[x for x in o if x.kind!='salu'])
    for l in range(OPT.get('x0n',6)): vm_with([])
    pst('x0 issued')
    prologue2()
    xr=[vM[1],vR[1]]; t,u=vT[2],vT[3]
    e(valu('v_and_b32',t,15,vL), valu('v_lshrrev_b32',u,1,t), valu('v_lshlrev_b32',t,7,t), valu('v_add_u32',t,sW18K,t),
      valu('v_lshrrev_b32',xr[0],4,vL), valu('v_xor_b32',xr[0],xr[0],u), valu('v_xor_b32',xr[1],4,xr[0]),
      valu('v_lshl_add_u32',xr[0],xr[0],4,t), valu('v_lshl_add_u32',xr[1],xr[1],4,t))
    addr_early(); pf_code()
    e(raw('s_waitcnt lgkmcnt(0)','misc'))
    pst('addr')
    acc=[vT[4],vT[5],vT[6],vT[7]]
    X1=[XC1[4*s:4*s+4] for s in range(18)]
    def xread(tt,dst,l):
        return [waitfor(vmtags=[('x',tt,l)])]+[dsr('ds_read_b128',dst[s],xr[s&1],l*2048,src=(('x',tt,l),list(range(18*tt,18*tt+18))),private=True) for s in (2*l,2*l+1)]
    for l in range(9):
        e(*xread(0,X0,l))
        vm_with([waitfor(lg=X0[2*l-2:2*l])]+stats_ops(X0[2*l-2],l==1,acc)+stats_ops(X0[2*l-1],False,acc) if l else [])
        if l in (0,4,8): pst(f'x0 rd {l}')
    e(waitfor(lgall=True), barrier())
    stamp('x0 read')
    e(valu('v_add_u32',xr[0],73728,xr[0]), valu('v_add_u32',xr[1],73728,xr[1]))
    vm_with(stats_ops(X0[16],False,acc)+stats_ops(X0[17],False,acc))
    a,b=stats_final(0,acc); vm_with(a+b); pst('stat0')
    for l in range(9):
        e(*xread(1,X1,l))
        vm_with(centre_ops(X0[2*l],0))
        c2=centre_ops(X0[2*l+1],0)
        if l>=1: vm_with(c2)
        else: e(*c2)
        e(waitfor(lg=X1[2*l:2*l+2]), *stats_ops(X1[2*l],l==0,acc), *stats_ops(X1[2*l+1],False,acc))
        if l in (3,8): pst(f'x1 rd {l}')
    a,b=stats_final(1,acc); e(*a)
    for s_ in range(NV0,18): e(*to_acc(s_))
    reads=[r for g in groups for r in g.rd]
    for s_ in range(OPT['n0']):
        if s_%2: vm_with(centre_ops(X1[s_],1))
        else: e(*centre_ops(X1[s_],1))
        if s_==OPT['n0']-3:
            e(waitfor(lgall=True,vmtags=[it.name for it in items if it.bar==-L]), barrier())
            stamp('x1 read'); pst('bar1')
            for it,f in reads[:L]: e(f(it))
    e(waitfor(lg=groups[0].fr)); pst('go')
    for s_ in range(OPT['n0'],18): push('ctr',0,centre_ops(X1[s_],1,plain=True))
    for s_ in range(NV0): push('ctr',0,to_acc(s_))
    push('ctr',0,b)
    for o in dq: push('dma',-1,o)
    mx_=-1
    for it in items:
        mx_=max(mx_,it.early)
        if it.early>-2000: push('dma',it.early,it.mk(it),mx_)
    st=lambda k:groups[marks[k]].start
    def low(gap,f,*a):
        with collect() as o: f(*a)
        push('low',gap,o,gap)
    low(st('c0')+200,addr_pf); push('low',st('c0')+200,pf_gu(2),st('c0')+200)
    low(st('c1'),addr_qk); low(st('c1'),pf_q_ops); low(st('c2'),addr_mid); low(st('c2'),addr_mid2)
    push('low',st('c2')+200,pf_gu(3),st('c2')+200); push('low',st('c3'),pf_gu(4),st('c3'))
    b1=[b for b in bars if b>st('half')+20][0]
    bar_extra[b1]=['qkvst']
    low(st('c3')+100,pf_d_ops)
    ar=[salu('s_and_b32',sJH,S(2),1), salu('s_lshl_b32',sJH,sJH,7), salu('s_mov_b32',sJ128,1), salu('s_cmp_lg_u32',sW,0), raw('s_cbranch_scc1 L_arr','misc'),
        raw(f's_atomic_add {sJ128}, {sDBG[0:2]}, {sJH}','misc',sJ128.regs()+sJH.regs()), label('L_arr')]
    for x in ar[3:6]: x.meta['glue']=True
    push('low',b1,ar,b1)
    if OPT['stop']!='down':
        d0=st('down')
        low(b1,addr_att,WB); low(b1,addr_lds,WB); low(d0,addr_fin)
        ld=bload(vPOLL,vZ,sDBG,0,flags='sc1')
        push('ld',d0+OPT['f1poll'],[ld],d0+OPT['f1poll'])
        with collect() as o: qk_loads(WB)
        push('ld',d0+OPT['f1poll']+80,[waitfor(vm=[vPOLL])]+spin('f1',ld,128)+o,d0+OPT['f1poll']+80)
        for s in range(2):
            early=max(free[b] for b in kv[s].blks())
            assert early>d0+300
            push('dma',early if early<LATE else ngaps+10,kv[s].mk(kv[s]),ngaps-1)
    emit_backbone(bars,{groups[v].start:k for k,v in marks.items() if k in ('c0','qkv','down')})
    stamp('down end')
    if OPT['stop']=='down':
        for nm in ('epi','st','low','dma'):
            for af,o in fifo[nm]: e(o)
    else:
        attention(ngaps,kv,WB,wo_main+wo_x)
        stamp('att end')
        final(ngaps+1000,wo_main,wo_x)
        fallback(kv,WB)
    finish()

def finish():
    cur[0]=10**7
    if OPT['stamps']:
        e(raw('s_waitcnt lgkmcnt(0)','misc'), waitfor(vmall=True))
        stamp('drained'); e(raw('s_waitcnt lgkmcnt(0)','misc'))
        n=nstamp[0]
        if 'padto' in OPT:
            k=OPT['padto']
            if 'padwg' in OPT: e(salu('s_cmp_eq_u32',S(2),OPT['padwg']), raw('s_cbranch_scc1 L_pad0','misc'), raw('s_endpgm','misc'), label('L_pad0'))
            e(salu('s_add_u32',sT0,S(64+2*k),10000), label('L_pad'), raw('s_memrealtime s[98:99]','misc'), raw('s_waitcnt lgkmcnt(0)','misc'), salu('s_sub_u32',sT1,S(98),sT0), salu('s_cmp_lt_i32',sT1,0), raw('s_cbranch_scc1 L_pad','misc'))
        elif OPT['dbgout']:
            e(salu('s_sub_u32',sT0,S(2),OPT['dbgout']-1), salu('s_add_u32',sT0,sT0,sW), valu('v_add_u32',V(1),sT0,vL), valu('v_lshlrev_b32',V(1),12,V(1)))
            for k in range(1,n): e(salu('s_sub_u32',sT1,S(64+2*k),S(64)), valu('v_mov_b32',V(2),sT1), bstore(V(2),V(1),sDBG,0,4*k))
        else:
            e(salu('s_lshl_b32',sT0,S(2),2), salu('s_add_u32',sT0,sT0,sW), salu('s_lshl_b32',sT0,sT0,6), salu('s_add_u32',sT0,sT0,WS_STAMP))
            masked(V(1),vL,'v_cmp_eq_u32',0,vL,V(2))
            for k in range(n): e(valu('v_mov_b32',V(2),S(64+2*k)), bstore(V(2),V(1),sWS,sT0,4*k))
    check_order(P)
    out=finalize(P,verbose=OPT['v'],name='main')
    hdr=open('recurrent_scan__mha_block__glu_gated_reglu__prompt.s.ref').read().split('; Override launch')[0]
    txt=hdr+'; @launch grid=(256,1,1) block=(256,1,1) lds=163840\n.amdgcn_target "amdgcn-amd-amdhsa--gfx950"\n.text\n'
    txt+=f'.globl {NAME}\n.p2align 8\n.type {NAME},@function\n{NAME}:\n'
    txt+='\n'.join(i.text for i in out)+'\ns_endpgm\nL_codeend:\n'+'\n'.join(OUT)+'\ns_endpgm\n'
    txt+=f'''.section .rodata,"a"
.p2align 6
.amdhsa_kernel {NAME}
  .amdhsa_next_free_vgpr 512
  .amdhsa_next_free_sgpr 102
  .amdhsa_accum_offset 256
  .amdhsa_group_segment_fixed_size 0
  .amdhsa_kernarg_size 80
  .amdhsa_user_sgpr_count 2
  .amdhsa_user_sgpr_kernarg_segment_ptr 1
  .amdhsa_system_sgpr_workgroup_id_x 1
  .amdhsa_float_denorm_mode_32 3
.end_amdhsa_kernel
'''
    open(sys.argv[1],'w').write(txt)
    print('bytes',len(txt))
main()
```

```python
import sys, struct, contextlib
from asmlib import *

OPT=dict(stop='', stamps=0, pf=1, dmagap=3, look=13, stgap=20, n0=14, v=1, forcefb=0, astgap=6, f2lag=10, f2poll=54, f2chk=60, ldgap=5, dbgout=0, pfx=1, pfcost=160, pfgap=48, pf0=0, touch=1, x0n=3, nblk=14, f1poll=220, qstgap=20, back=96, pfc=1, bartr=0)
for a in sys.argv[2:]:
    k,v=a.split('='); OPT[k]=int(v) if v.lstrip('-').isdigit() else v
NAME='recurrent_scan__mha_block__glu_gated_reglu__prompt_kernel'

WS_QKV=0; SL=81920
WS_P=0x800000; WS_PX=0x2800000; WS_O=0x2C00000; WS_OX=0x2E00000; WS_F3=0x2E40000; WS_R2=0x2E60000; WS_F2=0x2E80000; WS_STAMP=0x2F00000
OOB=0x80000000
LDS_OOB=0x30000
def f32(x): return struct.unpack('<I',struct.pack('<f',x))[0]
QSCALE=18**-0.5*1.4426950408889634
MARGIN=80.0

sX,sWQ,sWO,sWG,sWU,sWD,sOUT,sDBG,sWS=[S(4+4*n,4) for n in range(9)]
sW,sW1K,sI,sJ,sH,sIDX,sT0,sT1,sSO,sSO2=[S(40+n) for n in range(10)]
sLO,sHI,sONES,sW7K,sW5K=[S(50+n) for n in range(5)]
sSC=[S(55),S(56),S(57)]
sW18K,sJ1,sXC,sM8,sT2,sT3=[S(58+n) for n in range(6)]
sJ128,sJH=S(3),S(94); sSO3=S(95)
sBD,sBL,sPC=S(96,2),S(98,2),S(100,2)
nstamp=[0]
def stamp(name,fine=False):
    if not OPT['stamps']: return
    if ('gst' in OPT or 'ast' in OPT or 'pst' in OPT) and not fine and name!='start': return
    n=nstamp[0]; nstamp[0]+=1
    assert n<64
    r=64+2*(n%8)
    if n>=8: e(raw(f'v_writelane_b32 v13, s{r}, {n-8}','misc'))
    e(raw(f'{"s_memrealtime" if OPT["stamps"]==1 else "s_memtime"} s[{r}:{r+1}]','misc'))
    print('stamp',n,name)

vL=V(0)
vT=[V(1+n) for n in range(8)]
vR=[V(9),V(10)]
vM=[V(11),V(12)]
vPF=A(255)
vST=V(13)
vGF,vGH,vDF,vDH=[V(14+n) for n in range(4)]
vTR=[[V(18+3*q+n) for n in range(3)] for q in range(4)]
vQK=[V(30+n) for n in range(7)]
vQM=[V(37+n) for n in range(3)]; vQE=[V(40+n) for n in range(3)]
vSM,vSE0,vSE1,vSCX=[V(43+n) for n in range(4)]
vPS,vPX=V(47),V(48)
vF1,vONE=V(49),V(50)
vPG,vF3,vPOLL=V(51),V(52),V(53)
vX=[V(168+n) for n in range(4)]
XC1=V(56,72)
BANK=[V(128,64),V(192,64)]
XC0=A(0,72); HH=A(72,72); FR=A(144,64)
vKM,vKE=V(30),V(31); vVA=[V(32+n) for n in range(4)]
vKV,vWO,vWOE,vWX,vWXE=[V(36+n) for n in range(5)]
vPL,vPLX,vOL,vOLX,vOS,vOSX=[V(41+n) for n in range(6)]
vIDX,vF3L=V(54),V(55)
vXO,vXOX,vR2,vZ=V(11),V(12),V(9),V(10)
QE=[V(14,2),V(16,2)]
QM=[A(0,4),A(4,4)]
OO=[A(208,16),A(224,16)]
KM=[A(40+4*n,4) for n in range(3)]; KE=[A(52+2*n,2) for n in range(3)]
VV=[A(8,8),A(16,8)]
XR=A(240,10)
PART=[A(60+4*n,4) for n in range(32)]
PARTX=[A(188+2*n,2) for n in range(10)]+[A(24+2*n,2) for n in range(6)]
SB=[V(176+16*n,16) for n in range(5)]

P=[]
cur=[-10**6,0]
sink=[None]
def setseq(i,gap=None):
    if 'seq' not in i.meta:
        cur[1]+=1; i.meta['seq']=(cur[0] if gap is None else gap,cur[1])
    return i
def e(*x):
    for i in x:
        if sink[0] is not None: sink[0].append(i)
        else: P.append(setseq(i)); i.meta['at']=cur[0]
@contextlib.contextmanager
def collect():
    o=[]; old=sink[0]; sink[0]=o
    yield o
    sink[0]=old
fifo=dict(dma=[],st=[],ld=[],ctr=[],epi=[],low=[])
def push(q,after,ops,logical=None):
    for o in ops: fifo[q].append((after,setseq(o,logical)))
def masked(dst,val,cmpop,a,b,tmp):
    e(valu(cmpop,'vcc',a,b), valu('v_mov_b32',tmp,OOB), valu('v_cndmask_b32',dst,tmp,val))

def prologue():
    e(salu('s_cmp_ge_u32',S(2),256), raw('s_cbranch_scc0 L_go','misc'), raw('s_endpgm','misc'), label('L_go'))
    for srd,off in ((sX,0),(sWG,32),(sWU,40)): e(raw(f's_load_dwordx2 {srd[0:2]}, s[0:1], {off}','misc'))
    stamp('start')
    e(valu('v_lshrrev_b32',vT[0],6,V(0)), valu('v_and_b32',vL,63,V(0)))
    e(valu('v_readfirstlane_b32',sW,vT[0]))
    e(salu('s_and_b32',sXC,S(2),7), salu('s_lshr_b32',sIDX,S(2),3))
    e(salu('s_lshr_b32',sM8,sIDX,2), salu('s_lshl_b32',sI,sM8,1), salu('s_and_b32',sT2,sXC,1), salu('s_add_u32',sI,sI,sT2))
    e(salu('s_mul_i32',sW18K,sW,18432))
    vx0,vx1,row,t=vX[0],vX[1],vT[2],vT[3]
    e(salu('s_lshl_b32',sT2,sI,2), salu('s_add_u32',sT2,sT2,sW), salu('s_lshl_b32',sT2,sT2,5))
    e(valu('v_lshrrev_b32',row,3,vL), valu('v_lshrrev_b32',t,4,vL), valu('v_and_b32',vx0,7,vL), valu('v_xor_b32',vx0,vx0,t),
      valu('v_xor_b32',vx1,4,vx0), valu('v_add_u32',t,sT2,row), valu('v_mul_u32_u24',t,1152,t),
      valu('v_lshl_add_u32',vX[2],vx0,4,t), valu('v_lshl_add_u32',vX[3],vx1,4,t), valu('v_add_u32',vX[3],8*1152-1024,vX[3]),
      valu('v_add_u32',vx0,1920,vX[2]), valu('v_add_u32',vx1,1920,vX[3]))
    e(salu('s_lshr_b32',sJ,sXC,1), salu('s_lshl_b32',sJ,sJ,2), salu('s_and_b32',sT3,sIDX,3), salu('s_add_u32',sJ,sJ,sT3), salu('s_and_b32',sJ1,sJ,1))
    if OPT['pfx']:
        px,pg=vT[4],vT[5]
        e(salu('s_lshl_b32',sT0,S(2),2), salu('s_add_u32',sT0,sT0,sW), salu('s_mul_i32',sT0,sT0,18*128), valu('v_lshl_add_u32',px,vL,7,sT0),
          salu('s_mul_i32',sT0,sT2,9*9216//32), salu('s_mul_i32',sT1,sJ,576), salu('s_add_u32',sT0,sT0,sT1), salu('s_lshl_b32',sT1,sJ1,6), salu('s_add_u32',sT0,sT0,sT1),
          valu('v_mul_u32_u24',pg,9216,vL), valu('v_add_u32',pg,sT0,pg))
    e(raw('s_waitcnt lgkmcnt(0)','misc'))
    if OPT['pfx']: e(raw('s_mov_b64 exec, 0x3ffff','salu'), gload(vPF,px,sX[0:2],tag='pf'), raw('s_mov_b64 exec, -1','salu'))
    a=salu('s_sub_u32',sBD[0],sX[0],1920); b=salu('s_subb_u32',sBD[1],sX[1],0)
    e(a,b)
def pf_c0():
    if OPT['pfx']: e(raw('s_mov_b64 exec, 0x1ff','salu'), gload(vPF,vT[5],sWG[0:2],tag='pf'), gload(vPF,vT[5],sWU[0:2],tag='pf'), raw('s_mov_b64 exec, -1','salu'))
def prologue2():
    for srd,off in ((sWQ,8),(sWO,16),(sWD,48),(sOUT,56),(sDBG,64),(sWS,72)):
        e(raw(f's_load_dwordx2 {srd[0:2]}, s[0:1], {off}','misc'))
    e(*base_add(sBL,sX,18432-1920))
    e(salu('s_lshl_b32',sH,sXC,2), salu('s_add_u32',sH,sH,sT3))
    e(salu('s_lshl_b32',sW1K,sW,10), salu('s_mul_i32',sW7K,sW,7168), salu('s_mul_i32',sW5K,sW,5120))
    for srd,n in ((sX,2048*1152),(sWQ,576*3456),(sWO,576*1152),(sWG,576*9216),(sWU,576*9216),(sWD,4608*1152),(sOUT,2048*1152),(sDBG,256),(sWS,0x10000000)):
        e(salu('s_mov_b32',srd[2],n), salu('s_mov_b32',srd[3],0x20000))
    e(salu('s_mov_b32',sLO,0x3f80), salu('s_mov_b32',sHI,0x3f800000), salu('s_mov_b32',sONES,0x3f803f80))
def addr_pf():
    row,t=vT[2],vT[3]
    e(salu('s_lshl_b32',sT0,S(2),2), salu('s_add_u32',sT0,sT0,sW), salu('s_lshl_b32',sT0,sT0,11), valu('v_lshl_add_u32',t,vL,7,sT0))
    masked(vPG,t,'v_cmp_gt_u32',16,vL,row)
def pf_lin(srd,ev):
    if not OPT['pf']: return []
    return [salu('s_mov_b32',sSO3,ev<<21), cost(bload(vPF,vPG,srd,sSO3,tag='pf'),OPT['pfcost'])]
def cost(i,c): i.meta['cost']=c; return i
def xdma(tt,l):
    base=sBD if tt==0 else sBL
    o=[salu('s_add_u32','m0',sW18K,tt*73728+l*1920)]
    for z in range(4 if l<8 else 2): o.append(gdma(vX[z],base,l*128+z*1024,tag=('x',tt,l+(z>>1)),private=True))
    return o
def sel_ops(x0,x1,m,g):
    return [valu('v_bfe_u32',m,vL,2,2), valu('v_lshrrev_b32',g,4,vL), valu('v_cmp_eq_u32','vcc',m,g), valu('v_and_b32',m,1,vL), valu('v_lshlrev_b32',m,4,m), valu('v_lshlrev_b32',m,m,sLO),
      valu('v_cndmask_b32',m,0,m), valu('v_and_b32',g,2,vL), valu('v_cmp_eq_u32','vcc',0,g), valu('v_mov_b32',x1,m), valu('v_mov_b32',g,m),
      valu('v_cndmask_b32',x0,0,m), valu('v_sub_u32',x1,m,x0)]
ntouch=[0]
def touch():
    if not OPT['touch']: return []
    k=ntouch[0]; ntouch[0]+=1
    o=[raw('s_mov_b64 exec, 0','salu')]
    for w in range(3): o+=[salu('s_cmp_eq_u32',sW,w), raw(f's_cbranch_scc1 L_pg{4*k+w}','misc')]
    o+=[raw(f's_branch L_pg{4*k+3}','misc'), label(f'L_tr{k}'), raw('s_mov_b64 exec, -1','salu')]
    for x in o[:-1]: x.meta['glue']=True
    return o

def lane_rp(rp,p,t):
    e(valu('v_lshrrev_b32',rp,3,vL), valu('v_and_b32',t,6,rp), valu('v_and_b32',p,7,vL), valu('v_xor_b32',p,p,t))
def addr_early():
    rp,p,t,u,kA=vT[2],vT[3],vT[4],vT[5],vT[6]
    lane_rp(rp,p,t)
    e(salu('s_and_b32',sT0,sW,1), salu('s_lshl_b32',sT0,sT0,4), salu('s_lshr_b32',sT1,sW,1), salu('s_lshl_b32',sT1,sT1,2), salu('s_add_u32',sT0,sT0,sT1))
    e(valu('v_and_b32',t,4,rp), valu('v_add_u32',kA,rp,t), valu('v_add_u32',kA,sT0,kA))
    e(salu('s_mul_i32',sT1,sJ,288), salu('s_lshl_b32',sT2,sJ1,5), salu('s_add_u32',sT2,sT2,sT1))
    e(salu('s_lshl_b32',sT3,sJ1,8), salu('s_sub_u32',sT3,256,sT3), salu('s_add_u32',sT3,sT3,sT1))
    e(salu('s_lshl_b32',sT0,sT2,1), valu('v_mul_u32_u24',t,9216,kA), valu('v_lshl_add_u32',t,p,4,t), valu('v_add_u32',vGF,sT0,t))
    e(salu('s_lshl_b32',sT0,sT3,1), valu('v_lshrrev_b32',t,2,p), valu('v_lshl_add_u32',t,t,5,kA), valu('v_mul_u32_u24',t,9216,t),
      valu('v_and_b32',u,3,p), valu('v_lshl_add_u32',t,u,4,t), valu('v_add_u32',vGH,sT0,t))
    e(salu('s_lshl_b32',sT0,sW,3), valu('v_add_u32',t,sT0,rp), valu('v_add_u32',u,sT2,t), valu('v_mul_u32_u24',u,1152,u), valu('v_lshl_add_u32',vDF,p,4,u),
      valu('v_add_u32',u,sT3,t), valu('v_mul_u32_u24',u,1152,u), valu('v_lshl_add_u32',vDH,p,4,u))
    g,r4,c,b=vT[2],vT[3],vT[6],vT[7]
    e(valu('v_bfe_u32',r4,vL,2,3), valu('v_and_b32',c,3,vL), valu('v_lshrrev_b32',g,5,vL),
      valu('v_lshlrev_b32',b,10,g), valu('v_lshl_add_u32',b,r4,7,b), valu('v_lshl_add_u32',b,c,3,b), valu('v_lshrrev_b32',t,1,r4))
    for q in range(4):
        e(valu('v_xor_b32',u,q,t), valu('v_lshl_add_u32',vTR[q][0],u,5,b), valu('v_add_u32',vTR[q][1],0x10000,vTR[q][0]), valu('v_add_u32',vTR[q][2],0x20000,vTR[q][0]))
def addr_qk():
    t=vT[4]
    e(salu('s_mul_i32',sT0,sJ,216), salu('s_and_b32',sT0,sT0,-16), salu('s_mul_i32',sT1,sW,32*3456), salu('s_add_u32',sT0,sT0,sT1))
    for q in range(7):
        pp,rr,k=vT[2],vT[3],vT[6]
        e(valu('v_add_u32',pp,64*q,vL), valu('v_mul_u32_u24',rr,4682,pp), valu('v_lshrrev_b32',rr,16,rr),
          valu('v_mul_u32_u24',t,14,rr), valu('v_sub_u32',pp,pp,t),
          valu('v_and_b32',t,12,rr), valu('v_and_b32',k,3,rr), valu('v_lshl_add_u32',k,t,1,k), valu('v_lshrrev_b32',t,4,rr), valu('v_lshl_add_u32',k,t,2,k),
          valu('v_mul_u32_u24',k,3456,k), valu('v_lshl_add_u32',k,pp,4,k), valu('v_add_u32',vQK[q],sT0,k))
        if q%4: e(valu('v_subrev_u32',vQK[q],1024*(q%4),vQK[q]))
def extpos(dst,key,t):
    e(valu('v_and_b32',dst,7,key), valu('v_bfe_u32',t,key,4,1), valu('v_lshl_add_u32',dst,t,3,dst),
      valu('v_bfe_u32',t,key,3,1), valu('v_xor_b32',t,1,t), valu('v_lshl_add_u32',dst,t,4,dst))
def addr_mid():
    t,u,c=vT[4],vT[5],vT[6]
    e(valu('v_and_b32',c,3,vL), salu('s_lshl_b32',sT0,sJ1,3), valu('v_lshrrev_b32',t,2,vL), valu('v_mul_u32_u24',t,224,t), valu('v_add_u32',t,sT0,t),
      valu('v_lshl_add_u32',vQM[0],c,3,t), valu('v_mul_u32_u24',u,72,c), valu('v_add3_u32',vQE[0],t,u,32))
    for n in (1,2): e(valu('v_add_u32',vQM[n],n*0x10000,vQM[0]), valu('v_add_u32',vQE[n],n*0x10000,vQE[0]))
def addr_mid2():
    t,u,key,hf=vT[4],vT[5],vT[2],vT[3]
    e(salu('s_lshl_b32',sT0,sI,2), salu('s_add_u32',sT0,sT0,sW), salu('s_mul_i32',sT0,sT0,1280), salu('s_mul_i32',sT1,sJ,6*SL), salu('s_add_u32',sT0,sT0,sT1))
    e(valu('v_and_b32',key,31,vL), valu('v_lshrrev_b32',hf,5,vL), valu('v_lshlrev_b32',t,2,hf), valu('v_xor_b32',t,t,vL), valu('v_lshlrev_b32',t,4,t), valu('v_add_u32',vSM,sT0,t))
    extpos(u,key,t)
    e(valu('v_lshlrev_b32',u,3,u), valu('v_add_u32',u,sT0,u), valu('v_add_u32',u,1024,u), valu('v_mul_u32_u24',t,4*SL,hf), valu('v_add_u32',vSE0,u,t),
      valu('v_lshl_add_u32',vSE1,hf,31,u))
    e(salu('s_mul_i32',sT0,sJ,6), valu('v_lshrrev_b32',t,4,vL), valu('v_lshl_add_u32',t,t,1,sT0), valu('v_mov_b32',u,f32(QSCALE)), valu('v_cmp_gt_u32','vcc',32,t), valu('v_cndmask_b32',vSCX,1.0,u))
    for p_ in range(3): e(valu('v_readlane_b32',sSC[p_],vSCX,16*p_))
    e(salu('s_lshl_b32',sT0,sI,2), salu('s_add_u32',sT0,sT0,sW), salu('s_lshl_b32',sT1,sT0,9), salu('s_add_u32',sT1,sT1,sJ), salu('s_lshl_b32',sT1,sT1,10),
      valu('v_lshl_add_u32',vPS,vL,4,sT1),
      salu('s_lshl_b32',sT1,sT0,7), salu('s_add_u32',sT1,sT1,sJ), salu('s_lshl_b32',sT1,sT1,9), valu('v_lshl_add_u32',vPX,vL,3,sT1))
    e(valu('v_mov_b32',vONE,1))
    e(salu('s_lshl_b32',sT1,sT0,4), salu('s_add_u32',sT1,sT1,sJ), salu('s_lshl_b32',sT1,sT1,7), salu('s_add_u32',sT1,sT1,WS_F2), valu('v_mov_b32',t,sT1))
    masked(vF1,t,'v_cmp_eq_u32',0,vL,u)
    e(salu('s_lshl_b32',sT1,sM8,2), salu('s_add_u32',sT1,sT1,sW), salu('s_lshl_b32',sT1,sT1,5), salu('s_add_u32',sT1,sT1,sH), salu('s_lshl_b32',sT1,sT1,7), salu('s_add_u32',sT1,sT1,WS_F3),
      valu('v_mov_b32',t,sT1))
    masked(vF3,t,'v_cmp_eq_u32',0,vL,u)
    e(valu('v_mov_b32',t,0), bstore(t,vF3,sWS,0,flags='sc1',tag='qkvst'), bstore(t,vF1,sWS,0,flags='sc1',tag='qkvst'))
    e(valu('v_and_b32',key,16,vL), valu('v_cmp_eq_u32','vcc',0,key), valu('v_cndmask_b32',hf,vR[1],vR[0]), valu('v_mul_f32',hf,hf,hf),
      salu('s_lshl_b32',sT0,sT0,7), salu('s_add_u32',sT0,sT0,WS_R2), valu('v_lshl_add_u32',key,vL,2,sT0), salu('s_lshl_b32',sT1,sJ,6), valu('v_add_u32',t,sT1,vL))
    masked(key,key,'v_cmp_gt_u32',32,t,u)
    e(bstore(hf,key,sWS,0,flags='sc1',tag='qkvst'))
def pf_code():
    if not OPT['pfc']: return
    t=vT[4]; a=V(6,2)
    e(raw('s_getpc_b64 s[100:101]','salu',[],['s100','s101']), label('L_pc'),
      salu('s_lshl_b32',sT0,sIDX,2), salu('s_add_u32',sT0,sT0,sW), valu('v_and_b32',t,7,vL), valu('v_lshl_add_u32',t,t,7,sT0), valu('v_lshlrev_b32',t,7,t),
      raw(f'v_min_u32 {t}, L_codeend-L_pc-4, {t}','valu',t.regs(),t.regs()),
      valu('v_mov_b32',a[1],sPC[1]), raw(f'v_add_co_u32 {a[0]}, vcc, {sPC[0]}, {t}','valu',t.regs()+['s100'],a[0].regs()+['vcc']),
      raw(f'v_addc_co_u32 {a[1]}, vcc, 0, {a[1]}, vcc','valu',a[1].regs()+['vcc'],a[1].regs()+['vcc']),
      raw('s_mov_b64 exec, 63','salu'), I(f'global_load_dword {vPF}, {a}, off','vld',a.regs(),vPF.regs(),tag='pf'), raw('s_mov_b64 exec, -1','salu'))

GR=[V(38,4),V(42,4)]; MEAN=[V(46),V(47)]
def var_ops(tt):
    d=GR[tt]; t=vT[4]; b=d[0]
    e(valu('v_and_b32',t,1,vL), valu('v_cmp_eq_u32','vcc',0,t), valu('v_and_b32',t,2,vL), valu('v_cndmask_b32',d[0],d[1],d[0]), valu('v_cndmask_b32',d[2],d[3],d[2]),
      valu('v_cmp_eq_u32','vcc',0,t), valu('v_bfe_u32',t,vL,2,2), valu('v_cndmask_b32',d[0],d[2],d[0]), valu('v_lshrrev_b32',d[1],4,vL), valu('v_cmp_eq_u32','vcc',t,d[1]),
      valu('v_cndmask_b32',b,0,b))
    for op in ('v_permlane16_swap_b32','v_permlane32_swap_b32'): e(valu('v_mov_b32',d[1],b), swap(op,b,d[1]), valu('v_add_f32',b,b,d[1]))
    e(valu('v_mul_f32',b,f32(1/576),b), valu('v_fma_f32',b,'-'+str(MEAN[tt]),MEAN[tt],b), valu('v_max_f32',b,0,b), valu('v_cvt_pk_bf16_f32',b,b,b), valu('v_lshlrev_b32',b,16,b),
      valu('v_add_f32',b,f32(1e-5),b), valu('v_cvt_pk_bf16_f32',b,b,b), valu('v_lshlrev_b32',b,16,b),
      valu('v_sqrt_f32',b,b), valu('v_cvt_pk_bf16_f32',b,b,b), valu('v_lshlrev_b32',b,16,b), valu('v_rcp_f32',vR[tt],b))
def centre_ops(f,tt):
    o=[]; t=V(252)
    for d in range(4):
        x=f[d]
        o+=[valu('v_lshlrev_b32',t,16,x), valu('v_and_b32',x,0xffff0000,x), valu('v_sub_f32',t,t,vM[tt]), valu('v_sub_f32',x,x,vM[tt]), valu('v_cvt_pk_bf16_f32',x,t,x)]
    return o
def to_acc(s): return [valu('v_accvgpr_write_b32',XC0[4*s+d],X0[s][d]) for d in range(4)]

class Item:
    def __init__(s,name,n,mk): s.name=name; s.n=n; s.mk=mk; s.addr=None; s.first=None; s.last=None
    def blks(s): return list(range(s.addr//4096,s.addr//4096+s.n))
def blk_item(name,voff,srd,soff,buf=False,c=80):
    def mk(it):
        o=[salu('s_add_u32','m0',sW1K,it.addr)]
        if buf: return o+[salu('s_mov_b32',sSO,soff), cost(dma(voff,srd,sSO,tag=it.name,dst=it.blks()),c)]
        return o+base_add(sBD,srd,soff)+[cost(gdma(voff,sBD,tag=it.name,dst=it.blks()),c)]
    return Item(name,1,mk)
def qkv_item(a):
    def mk(it):
        o=[salu('s_mov_b32',sSO,a*128*3456)] if a==4 else base_add(sBD,sWQ,a*128*3456)
        for q in range(7):
            if q%4==0: o.append(salu('s_add_u32','m0',sW7K,it.addr+q*1024))
            if a==4: o.append(dma(vQK[q],sWQ,sSO,(q%4)*1024,tag=it.name,dst=it.blks()))
            else: o.append(cost(gdma(vQK[q],sBD,(q%4)*1024,tag=it.name,dst=it.blks()),120))
        return o
    return Item(('q',a),7,mk)
def kv_item(sg):
    def mk(it):
        o=[]
        for q in range(5):
            if q%4==0: o+=[salu('s_add_u32','m0',sW5K,it.addr+q*1024)]+base_add(sBD,sWS,WS_QKV+sg*10240+q*1024)
            o.append(gdma(vKV,sBD,(q%4)*1024,flags='sc1',tag=it.name,dst=it.blks())); o[-1].rd.append('ok_f1')
        return o
    return Item(('kv',sg),5,mk)

class Group:
    def __init__(s): s.m=[]; s.rd=[]; s.bar=False; s.fr=[]
frp=[0]
def newfrag():
    f=FR[frp[0]:frp[0]+4]; frp[0]=(frp[0]+4)%FR.n; return f
def tr_read(f,u,it,seg):
    return dsr('ds_read_b64_tr_b16',f[2*u:2*u+2],vTR[seg][it.addr>>16],(it.addr&0xffff)+u*2048,src=(it.name,it.blks()))
def xc(tt,s): return (XC0 if tt==0 else XC1)[4*s:4*s+4]
def hfrag(k,tt): return HH[8*k+4*tt:8*k+4*tt+4]

items=[]; groups=[]; events=[]
def mm_group(srcs,accs,bfun,bar=False):
    g=Group(); g.bar=bar
    for it,seg,k in srcs:
        f=newfrag(); g.fr.append(f)
        for u in range(2): g.rd.append((it,lambda it,f=f,u=u,seg=seg: tr_read(f,u,it,seg)))
    for tt in range(2):
        for (it,seg,k),f in zip(srcs,g.fr):
            g.m.append(m16(accs[tt],f,bfun(k,tt),0 if k==0 else accs[tt]))
    groups.append(g); return len(groups)-1

def h_epilogue(bank,q,kout,half):
    gt=[bank[16*q+4*tt:16*q+4*tt+4] for tt in range(2)]; up=[bank[16*q+8+4*tt:16*q+12+4*tt] for tt in range(2)]
    o=[]
    for tt in range(2):
        for r in range(4): o.append(valu('v_max_f32',gt[tt][r],0,gt[tt][r]))
    for tt in range(2):
        for r in range(4): o.append(valu('v_mul_f32',up[tt][r],gt[tt][r],up[tt][r]))
        for d in range(2): o.append(valu('v_cvt_pk_bf16_f32',gt[tt][d],up[tt][2*d],up[tt][2*d+1]))
        for d in range(2): o.append(valu('v_accvgpr_write_b32',hfrag(kout,tt)[2*half+d],gt[tt][d]))
    return o
NV0=15
X0=[V(192+4*s,4) for s in range(NV0)]+[V(128+4*s,4) for s in range(18-NV0)]
def build_chunk(c,bank):
    xf=lambda k,tt: X0[k] if (c==0 and tt==0 and k<NV0) else xc(tt,k)
    for st in range(6):
        G=[blk_item(('g',c,3*st+n),vGF,sWG,(3*st+n)*32*9216+c*128) for n in range(3)]
        U=[blk_item(('u',c,3*st+n),vGF,sWU,(3*st+n)*32*9216+c*128) for n in range(3)]
        items.extend(G+U)
        for q in range(4):
            mm_group([(G[n],q,3*st+n) for n in range(3)],[bank[16*q+4*tt:16*q+4*tt+4] for tt in range(2)],xf,bar=(q==0))
        for q in range(4):
            gi=mm_group([(U[n],q,3*st+n) for n in range(3)],[bank[16*q+8+4*tt:16*q+12+4*tt] for tt in range(2)],xf,bar=(q==0 and (OPT['bartr'] or (c==0 and st<2))))
            if st==5: events.append((gi,h_epilogue(bank,q,2*c+(q>>1),q&1)))
def build_half(bank):
    for st in range(3):
        G=[blk_item(('gh',3*st+n),vGH,sWG,(3*st+n)*64*9216,c=150) for n in range(3)]
        U=[blk_item(('uh',3*st+n),vGH,sWU,(3*st+n)*64*9216,c=150) for n in range(3)]
        items.extend(G+U)
        seq=[(G,0,0),(G,0,1),(U,8,0),(U,8,1)] if st<2 else [(G,0,0),(U,8,0),(G,0,1),(U,8,1)]
        for z,(M,o,q) in enumerate(seq):
            for hh in range(2):
                ks=[6*st+3*hh+n for n in range(3)]
                gi=mm_group([(M[(k-6*st)>>1],2*(k&1)+q,k) for k in ks],[bank[16*q+o+4*tt:16*q+o+4+4*tt] for tt in range(2)],lambda k,tt:xc(tt,k),bar=(hh==0 and (z==0 or (z==2 and st<2 and OPT['bartr']))))
            if st==2 and o==8: events.append((gi,h_epilogue(bank,q,8,q)))
def build_qkv(bank):
    for a in range(5):
        it=qkv_item(a); items.append(it)
        first=True
        for k0 in range(0,4 if a<4 else 2,2):
            for t in range(7):
                g=Group(); g.bar=first; first=False
                for kk in (k0,k0+1):
                    f=newfrag(); g.fr.append(f)
                    for u in range(2):
                        def rd(it,f=f,u=u,kk=kk,t=t):
                            ad=it.addr+kk*7168+u*3584+(0 if t==6 else 72*(t>>1)+40*(t&1))
                            return dsr('ds_read_b64_tr_b16',f[2*u:2*u+2],(vQE if t==6 else vQM)[ad>>16],ad&0xffff,src=(it.name,it.blks()))
                        g.rd.append((it,rd))
                for tt in range(2):
                    acc=bank[8*t+4*tt:8*t+4*tt+4]
                    for n,kk in enumerate((k0,k0+1)):
                        k=4*a+kk
                        g.m.append(m16(acc,g.fr[n],xc(tt,k),0 if k==0 else acc))
                groups.append(g)
                if a==4: events.append((len(groups)-1,qkv_epilogue(bank,t)))
def st_pair(o,data,voff,soff,tag):
    a=salu('s_mov_b32',sSO2,soff); b=bstore(data,voff,sWS,sSO2,flags='sc1',tag=tag)
    dep=[x for x in o if x.kind=='valu'][-1]
    a.meta['q']='st'; b.meta['q']='st'; b.meta['dep']=dep
    o+=[a,b]
def qkv_epilogue(bank,t):
    o=[]
    sc=[bank[56],bank[57]]
    if t==6: o+=[valu('v_mul_f32',sc[tt],vSCX,vR[tt]) for tt in range(2)]
    elif t%2==0: o+=[valu('v_mul_f32',sc[tt],sSC[t>>1],vR[tt]) for tt in range(2)]
    a=bank[8*t:8*t+8]
    for tt in range(2):
        for r in range(4): o.append(valu('v_mul_f32',a[4*tt+r],sc[tt],a[4*tt+r]))
    if t<6:
        o+=[valu('v_cvt_pk_bf16_f32',a[0],a[0],a[1]), valu('v_cvt_pk_bf16_f32',a[1],a[2],a[3]), valu('v_cvt_pk_bf16_f32',a[2],a[4],a[5]), valu('v_cvt_pk_bf16_f32',a[3],a[6],a[7]),
            swap('v_permlane16_swap_b32',a[0],a[2]), swap('v_permlane16_swap_b32',a[1],a[3])]
        st_pair(o,a[0:4],vSM,WS_QKV+t*SL,'qkvst')
    else:
        o+=[valu('v_cvt_pk_bf16_f32',a[0],a[0],a[1]), valu('v_cvt_pk_bf16_f32',a[2],a[2],a[3]), valu('v_cvt_pk_bf16_f32',a[4],a[4],a[5]), valu('v_cvt_pk_bf16_f32',a[6],a[6],a[7])]
        o+=[valu('v_mov_b32',a[n],sONES) for n in (1,3,5,7)]
        o+=[swap('v_permlane16_swap_b32',a[0],a[4]), swap('v_permlane16_swap_b32',a[2],a[6])]
        for n,(vo,sl) in enumerate(((vSE0,0),(vSE0,1),(vSE1,2),(vSE1,3))):
            st_pair(o,a[2*n:2*n+2],vo,WS_QKV+sl*SL,'qkvst')
    return o
pool=[0]
def build_down():
    ntr=0
    for c,tr in [(0,0),(0,1),(1,0),(1,1),(0,2),(1,2)]+[(c,tr) for c in range(2,9) for tr in range(3)]:
        acc=V(192 if c==0 else 128+32*((c+1)%2),32)
        if True:
            B=[blk_item(('d',c,k),vDF if k<8 else vDH,sWD,(k*32*1152 if k<8 else 0)+c*128) for k in range(3*tr,3*tr+3)]
            items.extend(B)
            for q in range(4):
                gi=mm_group([(B[n],q,3*tr+n) for n in range(3)],[acc[16*tt+4*q:16*tt+4*q+4] for tt in range(2)],hfrag,bar=(q==0 and (ntr%2==0 or OPT['bartr'])))
                if tr==2 and q%2==1:
                    o=[]
                    for tt in range(2):
                        a=acc[16*tt+4*(q-1):16*tt+4*(q-1)+8]
                        d4=XC1[pool[0]:pool[0]+4]; pool[0]=(pool[0]+4)%72
                        o+=[valu('v_cvt_pk_bf16_f32',d4[d],a[2*d],a[2*d+1]) for d in range(4)]
                        if c<8: st_pair(o,d4,vPS,WS_P+(tt*16+c*2+(q>>1))*16384,'pst')
                        else:
                            for z in range(2): st_pair(o,d4[2*z:2*z+2],vPX,WS_PX+(tt*4+q-1+z)*8192,'pst')
                    events.append((gi,o))
            ntr+=1

marks={}
def build_ffn():
    marks['c0']=len(groups); build_chunk(0,BANK[0])
    marks['c1']=len(groups); build_chunk(1,BANK[1])
    marks['qkv']=len(groups); build_qkv(BANK[0])
    marks['c2']=len(groups); build_chunk(2,BANK[1])
    marks['c3']=len(groups); build_chunk(3,BANK[0])
    marks['half']=len(groups); build_half(V(224,32))
    marks['down']=len(groups); build_down()

NB=40; LATE=10**9
def plan():
    L=OPT['look']
    n=0; bars=[]
    for g in groups:
        g.start=n
        if g.bar: bars.append(n-L)
        for k,(it,_) in enumerate(g.rd):
            if it.first is None: it.first=n+k-L
            it.last=n-1
        n+=len(g.m)
    free={b:(-3000 if b>=36 else (-2000 if b<18 else -L)) for b in range(NB)}
    ptr=36
    for it in items:
        if ptr+it.n>NB: ptr=0
        it.addr=ptr*4096
        it.early=max(free[b] for b in it.blks())
        assert it.early<LATE
        it.bar=max(b for b in bars if b<=it.first)
        nxt=[b for b in bars if b>it.last]
        for b in it.blks(): free[b]=nxt[0] if nxt else LATE
        ptr=(ptr+it.n)%NB
    return n,bars,free

VM=('dma','vld','vst')
SC=('salu','waitfor','misc','label')
lastvm=dict(any=-100,st=-100)
def head(nm,gap):
    q=fifo[nm]
    if not q or q[0][0]>gap: return None
    x=q[0][1]; sq=x.meta['seq']; rd=set(x.rd)-{'carry'}; wr=set(x.wr)-{'carry'}
    for n2,q2 in fifo.items():
        if n2==nm: continue
        for _,y in q2:
            if y.meta['seq']>sq: break
            if rd&set(y.wr) or wr&set(y.rd) or wr&set(y.wr): return None
    return x
pipe=[0,16]
def vm_ready(gap,mingap,stgap,order=('st','ld','low','dma')):
    if gap-lastvm['any']<mingap: return None
    if pipe[0]-gap*pipe[1]>OPT['back']: return None
    for nm in order:
        x=head(nm,gap)
        if x is None or x.kind not in VM: continue
        if nm=='st':
            d=x.meta.get('dep')
            if gap-lastvm['st']<stgap or (d is not None and d.meta.get('at',LATE)>gap-2): continue
        return nm
    return None
def take(nm,gap):
    x=fifo[nm].pop(0)[1]
    if x.kind in VM:
        lastvm['any']=gap
        pipe[0]=max(pipe[0],gap*pipe[1])+x.meta.get('cost',80)
        if nm=='st': lastvm['st']=gap
    e(x)
    while x.meta.get('glue'):
        x=fifo[nm].pop(0)[1]; e(x)
    return x
def pull(gap,scalar):
    order=('dma','st','ctr','epi','ld','low')
    if scalar:
        for nm in order:
            x=head(nm,gap)
            if x is not None and 'carry' in x.rd: take(nm,gap); return True
    for nm in order:
        x=head(nm,gap)
        if x is None or x.kind in VM: continue
        if (x.kind in SC)!=scalar: continue
        take(nm,gap); return True
    return False

bar_extra={}
def emit_backbone(bars,gapstamps):
    L=OPT['look']
    reads=[(it,f,g.start-0.5) for g in groups for it,f in g.rd]
    ev={}
    for gi,ops in events: ev.setdefault(gi,[]).append(ops)
    bar_items={}
    for it in items: bar_items.setdefault(it.bar,[]).append(it.name)
    barset=set(bars); issue={}
    fixed={}
    for gi,g in enumerate(groups):
        for k in range(len(g.m)):
            gap=g.start+k; fx=[]
            w_lg=groups[gi+1].fr if (k==len(g.m)-1 and gi+1<len(groups)) else []
            w_vm=(bar_items.get(gap+1,[])+bar_extra.get(gap+1,[])) if gap+1 in barset else []
            if gap in barset: fx.append(barrier())
            if w_lg or w_vm: fx.append(waitfor(lg=w_lg,vmtags=w_vm))
            fixed[gap]=fx
    ri=[L]
    def rd():
        it,f,lg=reads[ri[0]]; ri[0]+=1; e(setseq(f(it),lg))
    planned=None
    for gi,g in enumerate(groups):
        for k,m in enumerate(g.m):
            gap=g.start+k; cur[0]=gap
            e(m)
            if gap in gapstamps: stamp(gapstamps[gap])
            if 'gst' in OPT and gap in range(*map(int,OPT['gst'].split(':'))): stamp(f'gap{gap}',True)
            if planned:
                x=take(planned,gap); planned=None
                if x.kind=='dma': issue[x.meta['tag']]=gap
                continue
            fx=fixed[gap]
            if fx: e(fx.pop(0))
            else: pull(gap,True)
            if ri[0]<len(reads) and ri[0]<=gap+L: rd()
            if fx: e(fx.pop(0)); continue
            if ri[0]<len(reads) and ri[0]<=gap+L: rd(); continue
            if gap+1 in fixed and not fixed[gap+1]: planned=vm_ready(gap+1,OPT['dmagap'],OPT['stgap'] if gap>=groups[marks['down']].start else OPT['qstgap'])
            if planned:
                if ri[0]<len(reads) and reads[ri[0]][0].bar<=gap: rd()
                continue
            if not pull(gap,False): pull(gap,True)
        for ops in ev.get(gi,[]):
            for o in ops: push(o.meta.get('q','epi'),gap+4,[o])
    sl=[(it.bar-issue[it.name],it.name) for it in items if it.name in issue]
    sl.sort(); print('min dma slack (gaps):',sl[:6])
    print('left after backbone:',{k:len(v) for k,v in fifo.items()})

OUT=[]
def spin(name,load,expect):
    a=valu('v_cmp_gt_u32','vcc',expect,vPOLL); a.meta['glue']=True
    b=raw(f's_cbranch_vccnz L_spin_{name}','misc',['vcc']); b.meta['glue']=True
    c=label(f'L_back_{name}')
    cnt=vT[7]
    OUT.extend([f'L_spin_{name}:', f'v_mov_b32 {cnt}, 0x40000', f'L_spinl_{name}:', load.text, 's_waitcnt vmcnt(0)', f'v_cmp_gt_u32 vcc, {fmt(expect)}, {vPOLL}', 's_nop 1',
        f's_cbranch_vccz L_back_{name}', f'v_subrev_u32 {cnt}, 1, {cnt}', f'v_cmp_ne_u32 vcc, 0, {cnt}', 's_sleep 1', f's_cbranch_vccnz L_spinl_{name}', f's_branch L_back_{name}'])
    a.wr.append(cnt.regs()[0]); a.wr.append('ok_'+name)
    return [a,b,c]

def addr_att(WB):
    t,u,key,hf,p,rp=vT[0],vT[1],vT[2],vT[3],vT[4],vT[5]
    e(valu('v_and_b32',key,31,vL), valu('v_lshrrev_b32',hf,5,vL), valu('v_lshlrev_b32',t,2,hf), valu('v_xor_b32',t,t,vL), valu('v_lshlrev_b32',vKM,4,t))
    extpos(u,key,t)
    e(valu('v_lshlrev_b32',vKE,3,u), valu('v_add_u32',vKE,1024,vKE))
    e(salu('s_lshr_b32',sT0,sW,1), salu('s_lshl_b32',sT0,sT0,5), salu('s_add_u32',sT0,sT0,sH), salu('s_add_u32',sT0,sT0,32), salu('s_mul_i32',sT0,sT0,SL),
      salu('s_and_b32',sT1,sW,1), salu('s_mul_i32',sT1,sT1,5120), salu('s_add_u32',sT0,sT0,sT1), valu('v_lshl_add_u32',vKV,vL,4,sT0))
    e(valu('v_mov_b32',vIDX,0xdddd))
def addr_z(): e(valu('v_and_b32',vZ,1,vL), valu('v_lshlrev_b32',vZ,7,vZ))
def qk_loads(WB):
    t,u,hf=vT[0],vT[1],vT[3]
    e(salu('s_mov_b32',sSO3,WS_R2), cost(bload(vR2,vR2,sWS,sSO3,flags='sc1'),40))
    e(valu('v_lshrrev_b32',hf,5,vL), valu('v_lshl_add_u32',u,hf,31,vKE))
    e(salu('s_lshl_b32',sT0,sM8,2), salu('s_add_u32',sT0,sT0,sW), salu('s_mul_i32',sT0,sT0,2560), salu('s_mul_i32',sT1,sH,SL), salu('s_add_u32',sSO3,sT0,sT1))
    for x in range(2): e(bload(QM[x],vKM,sWS,sSO3,x*1280,flags='sc1'))
    e(cost(bload(QE[0][0],u,sWS,sSO3,0,flags='sc1'),40), cost(bload(vT[2],u,sWS,sSO3,1280,flags='sc1'),40))
    e(salu('s_add_u32',sSO3,sT1,32*SL))
    for x in range(2): e(bload(KM[x],vKM,sWS,sSO3,x*1280,flags='sc1'), cost(bload(KE[x],u,sWS,sSO3,x*1280,flags='sc1'),40))
    e(valu('v_add_u32',vKM,WB,vKM), valu('v_mul_u32_u24',t,LDS_OOB,hf), valu('v_add_u32',vKE,vKE,t), valu('v_add_u32',vKE,WB,vKE))
def zero_o():
    for x in range(2):
        for r in range(16): e(valu('v_accvgpr_write_b32',OO[x][r],0))
def addr_lds(WB):
    t,hf=vT[0],vT[3]
    e(valu('v_lshrrev_b32',hf,5,vL))
    c,r,k,x=vT[4],vT[5],vT[6],vT[1]
    e(valu('v_and_b32',c,3,vL), valu('v_bfe_u32',r,vL,2,2), valu('v_lshl_add_u32',r,hf,3,r))
    for n in range(4):
        uu,y=n>>1,n&1
        e(valu('v_add_u32',k,16*uu+4*y,r))
        extpos(x,k,t)
        e(valu('v_lshlrev_b32',x,3,x), valu('v_min_u32',t,1,c), valu('v_mul_u32_u24',t,LDS_OOB+64,t), valu('v_xor_b32',x,x,t), valu('v_add_u32',x,1024,x))
        e(valu('v_lshrrev_b32',t,1,c), valu('v_mul_u32_u24',t,36,t), valu('v_xor_b32',k,k,t), valu('v_lshlrev_b32',k,4,k), valu('v_and_b32',t,1,c), valu('v_lshl_add_u32',k,t,3,k))
        e(valu('v_and_b32',t,16,vL), valu('v_cmp_eq_u32','vcc',0,t), valu('v_cndmask_b32',k,x,k), valu('v_add_u32',vVA[n],WB,k))
def addr_fin():
    t,u,p,rp,a,b=vT[0],vT[1],vT[4],vT[5],vT[6],vT[3]
    lane_rp(rp,p,t)
    e(salu('s_and_b32',sT0,sW,1), salu('s_lshr_b32',sT1,sW,1), salu('s_mul_i32',sT2,sT0,20), salu('s_lshl_b32',sT3,sT1,3), salu('s_add_u32',sT2,sT2,sT3), valu('v_add_u32',a,sT2,rp),
      salu('s_mul_i32',sT2,sT0,144), salu('s_mul_i32',sT3,sT1,36), salu('s_add_u32',sT2,sT2,sT3), salu('s_add_u32',sT2,sT2,16),
      valu('v_lshrrev_b32',t,2,rp), valu('v_mul_u32_u24',t,72,t), valu('v_and_b32',b,3,rp), valu('v_add3_u32',b,b,t,sT2))
    e(salu('s_and_b32',sT0,sIDX,7), salu('s_lshl_b32',sT1,sT0,7), valu('v_lshl_add_u32',u,p,4,sT1),
      valu('v_mul_u32_u24',t,1152,a), valu('v_add_u32',vWO,t,u), valu('v_mul_u32_u24',t,1152,b), valu('v_add_u32',vWOE,t,u))
    e(salu('s_lshr_b32',sT2,sT0,1), salu('s_lshl_b32',sT2,sT2,5), salu('s_add_u32',sT2,sT2,1024), valu('v_and_b32',u,1,p), valu('v_lshl_add_u32',u,u,4,sT2), valu('v_lshrrev_b32',p,1,p),
      valu('v_mul_u32_u24',t,36,p), valu('v_add_u32',t,t,a), valu('v_mul_u32_u24',t,1152,t), valu('v_add_u32',vWX,t,u),
      valu('v_mul_u32_u24',t,288,p), valu('v_add_u32',t,t,b), valu('v_mul_u32_u24',t,1152,t), valu('v_add_u32',vWXE,t,u))
    e(salu('s_lshr_b32',sT3,sIDX,3), salu('s_lshl_b32',sT3,sT3,2), salu('s_add_u32',sT3,sT3,sW), salu('s_lshl_b32',sSO3,sXC,4), salu('s_add_u32',sT3,sT3,sSO3))
    tk,g=vT[4],vT[5]
    e(valu('v_and_b32',tk,15,vL), valu('v_lshrrev_b32',g,4,vL))
    e(salu('s_lshl_b32',sSO3,sT3,3), salu('s_add_u32',sSO3,sSO3,sT0), salu('s_lshl_b32',sSO3,sSO3,15), valu('v_lshl_add_u32',vPL,vL,4,sSO3))
    e(salu('s_xor_b32',sSC[0],sW,sT0), salu('s_lshl_b32',sSC[0],sSC[0],31))
    e(salu('s_lshl_b32',sSO3,sT3,2), salu('s_lshr_b32',sSC[1],sT0,1), salu('s_add_u32',sSO3,sSO3,sSC[1]), salu('s_lshl_b32',sSO3,sSO3,13), salu('s_or_b32',sSO3,sSO3,sSC[0]), valu('v_lshl_add_u32',vPLX,vL,3,sSO3))
    e(salu('s_lshl_b32',sSO3,sT3,4), valu('v_add_u32',a,sSO3,tk), valu('v_lshlrev_b32',vR2,2,a), valu('v_mul_u32_u24',a,1152,a), valu('v_lshl_add_u32',a,g,3,a),
      valu('v_add_u32',vXO,sT1,a), salu('s_or_b32',sT2,sT2,sSC[0]), valu('v_add_u32',vXOX,sT2,a))
    for q in range(4): e(cost(bload(XR[2*q:2*q+2],vXO,sX,0,32*q),260))
    e(cost(bload(XR[8:10],vXOX,sX,0),200))
    e(salu('s_and_b32',sSO3,sT3,1), salu('s_lshl_b32',sSO3,sSO3,4), valu('v_add_u32',a,sSO3,tk), salu('s_lshr_b32',sSC[1],sT3,1),
      salu('s_lshl_b32',sSO3,sSC[1],10), valu('v_lshl_add_u32',t,a,4,sSO3), valu('v_and_b32',u,1,g), valu('v_lshl_add_u32',t,u,9,t), valu('v_lshrrev_b32',u,1,g), valu('v_lshl_add_u32',vOL,u,16,t),
      salu('s_lshl_b32',sSO3,sSC[1],12), valu('v_lshl_add_u32',t,a,2,sSO3), valu('v_lshl_add_u32',vOLX,g,9,t))
    e(salu('s_lshr_b32',sSO3,sT3,2), salu('s_lshl_b32',sSO3,sSO3,12), salu('s_add_u32',sSO3,sSO3,WS_F3), valu('v_and_b32',t,31,vL), valu('v_lshl_add_u32',vF3L,t,7,sSO3))
    e(salu('s_lshr_b32',sSO3,sT3,1), salu('s_lshl_b32',sSO3,sSO3,11), salu('s_add_u32',sSO3,sSO3,WS_F2), valu('v_lshl_add_u32',vPG,tk,7,sSO3))
    e(salu('s_lshl_b32',sT0,sM8,2), salu('s_add_u32',sT0,sT0,sW), salu('s_lshl_b32',sT1,sT0,11), salu('s_lshl_b32',sT2,sH,16), salu('s_add_u32',sT1,sT1,sT2), salu('s_add_u32',sT1,sT1,WS_O),
      valu('v_lshl_add_u32',vOS,vL,4,sT1),
      salu('s_lshl_b32',sT1,sT0,13), salu('s_lshl_b32',sT2,sH,7), salu('s_add_u32',sT1,sT1,sT2), salu('s_add_u32',sT1,sT1,WS_OX),
      valu('v_lshl_add_u32',t,t,2,sT1), valu('v_lshrrev_b32',u,5,vL), valu('v_lshl_add_u32',vOSX,u,12,t))

def max_ops(x,srcs,m,first=True):
    o=[]
    regs=[s[r] for s in srcs for r in range(16)]
    if first: o.append(valu('v_max3_f32',m,regs[0],regs[1],regs[2])); rest=regs[3:]
    else: rest=regs
    while len(rest)>=2: o.append(valu('v_max3_f32',m,m,rest[0],rest[1])); rest=rest[2:]
    if rest: o.append(valu('v_max_f32',m,m,rest[0]))
    return o
def set_shift(x,m,t,margin):
    return [valu('v_mov_b32',t,m), swap('v_permlane32_swap_b32',m,t), valu('v_max_f32',m,m,t), valu('v_sub_f32',m,f32(-margin) if margin else 0,m),
            valu('v_cvt_pk_bf16_f32',t,m,m), valu('v_lshlrev_b32',t,16,t), valu('v_sub_f32',t,m,t), valu('v_cvt_pk_bf16_f32',t,m,t),
            valu('v_cmp_gt_u32','vcc',32,vL), valu('v_cndmask_b32',QE[x][1],0,t)]

def attention(g0,kv,WB,wo_items):
    base=g0+100
    pipe[0]=0; pipe[1]=44
    def kread(tau):
        it=kv[tau>>3]; off=it.addr-WB+(tau&7)*1280; src=(it.name,it.blks())
        return [dsr('ds_read_b128',KM[tau%3],vKM,off,src=src), dsr('ds_read_b64',KE[tau%3],vKE,off,src=src)]
    def vread(tau,n):
        it=kv[tau>>3]; off=it.addr-WB+10240+(tau&7)*1280
        return dsr('ds_read_b64_tr_b16',VV[tau&1][2*n:2*n+2],vVA[n],off,src=(it.name,it.blks()))
    def E(n,buf=None): return m32x8(buf or SB[n%3],KE[(n>>1)%3],QE[n&1],0)
    def M(n,buf=None): b=buf or SB[n%3]; return m32(b,KM[(n>>1)%3],QM[n&1],b)
    def PV(n,h): return smf(OO[n&1],VV[(n>>1)&1][4*h:4*h+4],SB[n%3][8*h:8*h+8],vIDX)
    def flush(n,names=('ctr','epi','low','dma','ld')):
        k=0
        while k<n:
            for nm in names:
                x=head(nm,cur[0])
                if x is not None: take(nm,cur[0]); break
            else: return
            k+=1
    cur[0]=g0
    flush(1000,('low','ld'))
    e(valu('v_mov_b32',QE[1][0],vT[2]), valu('v_mov_b32',QE[0][1],0), valu('v_mov_b32',QE[1][1],0))
    e(waitfor(vm=QM+KM[:2]+KE[:2]+[QE[0]],vmtags=[kv[0].name],lgall=True), barrier())
    cur[0]=g0+10
    bufs=[SB[1],SB[2],SB[3],SB[4]]
    for k,n in enumerate((0,2,1,3)):
        e(E(n,bufs[k])); flush(5,('epi',)); e(M(n,bufs[k]));
        e(vread(0,k)); flush(4,('epi',))
    flush(1000,('epi',))
    mx=[vT[0],vT[1]]
    e(*max_ops(0,bufs[0:2],mx[0])); e(*set_shift(0,mx[0],vT[3],MARGIN))
    e(*max_ops(1,bufs[2:4],mx[1])[:4])
    e(E(0)); e(*max_ops(1,bufs[2:4],mx[1])[4:10]); e(M(0)); e(*max_ops(1,bufs[2:4],mx[1])[10:]); e(*set_shift(1,mx[1],vT[3],MARGIN))
    stamp('att')
    barx={7:[it.name for it in wo_items]}; f2done=[False]; wcut=[0,4,14,23,23,23,23,23]
    for n in range(128):
        tau=n>>1
        if 'ast' in OPT and n in range(*map(int,OPT['ast'].split(':'))): stamp(f'slot{n}',True)
        ms=[E(n+1) if n<127 else None, M(n+1) if n<127 else None, PV(n-1,1) if n>0 else None, PV(n,0)]
        if n&1: rds=[None]+[vread(tau+1,k) if tau+1<64 else None for k in range(1,4)]
        else: rds=[None]+(kread(tau+2) if tau+2<64 else [None,None])+[vread(tau+1,0) if tau+1<64 else None]
        sg=(n+5)//16 if (n+5)%16==0 and n+5<128 else None
        for k in range(4):
            gap=base+4*n+k; cur[0]=gap
            if ms[k] is not None: e(ms[k])
            nsc={0:0,1:1,2:2,3:2}[k]
            fx=(k==1 and n%2==0) or (k==2 and sg is not None)
            vmn=vm_ready(gap,1,OPT['astgap'],('st','dma','ld','low')) if (not fx and k>0 and ms[k] is not None) else None
            if vmn: take(vmn,gap)
            else:
                if k==1 and n%2==0: e(waitfor(lg=[VV[tau&1],KM[(tau+1)%3],KE[(tau+1)%3]])); nsc-=1
                if k==2 and sg is not None:
                    e(waitfor(vmtags=[kv[sg].name]+barx.get(sg,[])), barrier()); nsc-=2
                    if sg+1<8: push('dma',gap,kv[sg+1].mk(kv[sg+1]))
                    for it in wo_items[wcut[sg-1]:wcut[sg]]: push('dma',gap,it.mk(it))
                while nsc>0 and pull(gap,True): nsc-=1
            if rds[k] is not None: e(rds[k])
            x=head('ld',gap)
            if x is not None and x.kind=='valu': take('ld',gap)
            for r in range(4): e(valu('v_exp_f32',SB[n%3][4*k+r],SB[n%3][4*k+r]))
        if not fifo['st'] and not f2done[0]:
            f2done[0]=True; print('partial stores end at slot',n)
            push('st',gap+4*OPT['f2lag'],[waitfor(vmtags=['pst']), bstore(vONE,vF1,sWS,0,flags='sc1')])
        if n==OPT['f2poll']:
            ld=bload(vPOLL,vPG,sWS,0,flags='sc1')
            push('ld',gap,[ld])
            t0=base+4*OPT['f2chk']
            push('ld',t0,[waitfor(vm=[vPOLL])]+spin('f2',ld,1))
            ops=[]
            for k in range(32):
                if k%8==0: ops+=base_add(sBL,sWS,WS_P+k*1024+4096)
                ops.append(gload(PART[k],vPL,sBL,(k%8)*1024-4096,flags='sc1'))
                if k%2==1:
                    z=k>>1
                    if z%8==0: ops.append(salu('s_mov_b32',sSO3,WS_PX+z*512))
                    ops.append(bload(PARTX[z],vPLX,sWS,sSO3,(z%8)*512,flags='sc1'))
            nl=0
            for o in ops:
                push('ld',t0+int(nl*OPT['ldgap']),[o])
                if o.kind=='vld': nl+=1
    cur[0]=base+600
    e(PV(127,1))
    print('left after attention:',{k:len(v) for k,v in fifo.items()})
    flush(1000,('dma','ld','st','low'))

def fallback(kv,WB):
    global P
    save=P; P=[]
    pb=kv[5].addr
    a=[V(128+n) for n in range(6)]; vo=V(134); mx=[V(135),V(136)]; t=V(137)
    e(label('L_fb'), raw('s_waitcnt vmcnt(0) lgkmcnt(0)','misc'), raw('s_nop 15','misc'))
    for d,s in zip(a,[vKM,vKE]+vVA): e(valu('v_add_u32',d,sW5K,s))
    e(valu('v_lshlrev_b32',vo,4,vL), valu('v_mov_b32',QE[0][1],0), valu('v_mov_b32',QE[1][1],0), valu('v_mov_b32',mx[0],0xff800000), valu('v_mov_b32',mx[1],0xff800000))
    off=pb-WB
    for ps in range(2):
        e(salu('s_add_u32',sT0,sH,32), salu('s_mul_i32',sT0,sT0,SL), salu('s_add_u32',sT1,sT0,32*SL), salu('s_mov_b32',sT2,64), label(f'L_fbl{ps}'))
        e(salu('s_add_u32','m0',sW5K,pb), dma(vo,sWS,sT0,0,flags='sc1'), dma(vo,sWS,sT0,1024,flags='sc1'))
        if ps: e(salu('s_add_u32','m0',sW5K,pb+2560), dma(vo,sWS,sT1,0,flags='sc1'), dma(vo,sWS,sT1,1024,flags='sc1'))
        e(waitfor(vmall=True), dsr('ds_read_b128',KM[0],a[0],off), dsr('ds_read_b64',KE[0],a[1],off))
        if ps:
            for n in range(4): e(dsr('ds_read_b64_tr_b16',VV[0][2*n:2*n+2],a[2+n],off+2560))
        e(waitfor(lgall=True))
        for x in range(2): e(m32x8(SB[x],KE[0],QE[x],0), m32(SB[x],KM[0],QM[x],SB[x]))
        for x in range(2):
            if ps==0: e(*max_ops(x,[SB[x]],mx[x],first=False))
            else:
                for r in range(16): e(valu('v_exp_f32',SB[x][r],SB[x][r]))
                for h in range(2): e(smf(OO[x],VV[0][4*h:4*h+4],SB[x][8*h:8*h+8],vIDX))
        e(raw('s_nop 15','misc'), salu('s_add_u32',sT0,sT0,1280), salu('s_add_u32',sT1,sT1,1280), salu('s_sub_u32',sT2,sT2,1), salu('s_cmp_lg_u32',sT2,0), raw(f's_cbranch_scc1 L_fbl{ps}','misc'))
        if ps==0:
            for x in range(2):
                e(*set_shift(x,mx[x],t,0.0))
                for r in range(16): e(valu('v_accvgpr_write_b32',OO[x][r],0))
    for x in range(2):
        for r in range(11): e(valu('v_accvgpr_read_b32',SB[x][r],OO[x][r]))
    e(raw('s_nop 3','misc'), raw('s_branch L_fb_ret','misc'))
    OUT.extend(i.text for i in finalize(P,verbose=0,name='fb'))
    P=save

def final(g0,wo_main,wo_x):
    cur[0]=g0
    T=[SB[0],SB[1]]
    SA=V(56,20); DN=V(76,20); SEL=V(96,8); tmp=V(104,8)
    m,g,x0,x1=tmp[0],tmp[1],SEL[2],SEL[3]
    e(*sel_ops(x0,x1,m,g))
    for x in range(2):
        for r in range(11): e(valu('v_accvgpr_read_b32',T[x][r],OO[x][r]))
    for x in range(2):
        s=tmp[2+x]
        e(valu('v_add_f32_e64',s,f'|{T[x][0]}|',f'|{T[x][1]}|'))
        for r in range(2,10): e(valu('v_add_f32_e64',s,s,f'|{T[x][r]}|'))
    e(valu('v_min_f32',tmp[4],tmp[2],tmp[3]), valu('v_add_f32',tmp[2],tmp[2],tmp[3]), valu('v_add_f32',tmp[3],T[0][10],T[1][10]), valu('v_add_f32',tmp[2],tmp[2],tmp[3]),
      valu('v_cmp_nle_f32','vcc',f32(2.0**-100),tmp[4]), raw('s_cbranch_vccnz L_fb','misc',['vcc']),
      valu('v_cmp_nge_f32','vcc',f32(2.0**126) if not OPT['forcefb'] else f32(-1.0),tmp[2]), raw('s_cbranch_vccnz L_fb','misc',['vcc']), label('L_fb_ret'))
    e(swap('v_permlane32_swap_b32',T[0][10],T[1][10]), valu('v_rcp_f32',tmp[2],T[0][10]), valu('v_mov_b32',tmp[3],tmp[2]), swap('v_permlane32_swap_b32',tmp[2],tmp[3]))
    for x in range(2):
        for r in range(10): e(valu('v_mul_f32',T[x][r],tmp[2+x],T[x][r]))
        for d in range(5): e(valu('v_cvt_pk_bf16_f32',T[x][d],T[x][2*d],T[x][2*d+1]))
        e(gstore(T[x][0:4],vOS,sWS[0:2],x*1024,flags='sc1',tag='ost'))
    e(swap('v_permlane32_swap_b32',T[0][4],T[1][4]), gstore(T[0][4],vOSX,sWS[0:2],flags='sc1',tag='ost'))
    stamp('o stored')
    e(valu('v_mov_b32',SEL[0],0), valu('v_mov_b32',SEL[1],0), valu('v_mov_b32',SEL[4],x0), valu('v_mov_b32',SEL[5],x1), valu('v_mov_b32',SEL[6],0), valu('v_mov_b32',SEL[7],0))
    pool_=[V(112+4*n,4) for n in range(16)]+[V(208+4*n,4) for n in range(12)]+[V(176+4*n,4) for n in range(8)]
    npre=len(pool_)
    pool_+=[A(72+4*n,4) for n in range(42)]
    frs=[]; rds=[]
    for s in range(18):
        for q in range(5):
            f=pool_[len(frs)%len(pool_)]; frs.append(f)
            for u in range(2): rds.append(tr_read(f,u,wo_main[s],q) if q<4 else tr_read(f,u,wo_x[s>>2],s&3))
    red=[]
    for pr in range(2):
        for z in range(2):
            d=DN[8*pr+4*z:8*pr+4*z+4]
            for j in range(16): red.append(m16(d,SEL[4:8] if z==0 else SEL[0:4],PART[16*pr+j],0 if j==0 else d))
    for z in range(8): red.append(m16(DN[16:20],SEL[2:6],R('a',PARTX[2*z].b,4),0 if z==0 else DN[16:20]))
    e(waitfor(vm=PART+PARTX))
    ri=0
    nflag=OPT.get('flagat',30)
    for k,mm in enumerate(red):
        e(mm)
        if k==nflag: e(waitfor(vmall=True), bstore(vONE,vF3,sWS,0,flags='sc1')); stamp('flag')
        if k%4==3: e(waitfor(lg=frs[:max(0,ri//2-3)]))
        if ri<2*npre: e(rds[ri]); ri+=1
    pl=bload(vPOLL,vF3L,sWS,0,flags='sc1')
    e(pl)
    while ri<2*len(pool_):
        if ri%4==0: e(waitfor(lg=frs[:max(0,ri//2-4)]))
        e(rds[ri]); ri+=1
    for r in range(20): e(valu('v_mul_f32',DN[r],vR2,DN[r]))
    for r0 in range(0,20,8):
        rr=range(r0,min(20,r0+8))
        for r in rr: e(valu('v_mul_f32',tmp[r-r0],f32(-1.4426950408889634),DN[r]))
        for r in rr: e(valu('v_exp_f32',tmp[r-r0],tmp[r-r0]))
        for r in rr: e(valu('v_add_f32',tmp[r-r0],1.0,tmp[r-r0]))
        for r in rr: e(valu('v_rcp_f32',tmp[r-r0],tmp[r-r0]))
        for r in rr: e(valu('v_mul_f32',DN[r],tmp[r-r0],DN[r]))
    XV=V(96,10)
    for d in range(10): e(valu('v_accvgpr_read_b32',XV[d],XR[d]))
    e(*base_add(sBL,sWS,WS_OX), *base_add(sBD,sWS,WS_O))
    ofs=[V(30+n) for n in range(11)]+[V(14+n) for n in range(4)]
    for s in range(1,16): e(valu('v_add_u32',ofs[s-1],s*131072,vOL))
    stamp('ready')
    e(waitfor(vm=[vPOLL]), *spin('f3',pl,1))
    stamp('seen')
    OF=[A(4*s,4) for s in range(18)]
    for s in range(16): e(gload(OF[s],vOL if s==0 else ofs[s-1],sBD,flags='sc1'))
    for s in range(2):
        for r in range(4): e(gload(OF[16+s][r],vOLX,sBL,s*2048+r*128,flags='sc1'))
    k=0
    for s in range(18):
        e(waitfor(vm=[OF[s]],lg=frs[5*s:5*s+5]))
        for q in range(5):
            e(m16(SA[4*q:4*q+4],frs[k],OF[s],0 if s==0 else SA[4*q:4*q+4])); k+=1
            if ri<len(rds) and ri//2-len(pool_)<k-1: e(rds[ri]); ri+=1
    stamp('mm done')
    for q in range(5):
        for d in range(2):
            lo,hi=tmp[2+2*d],tmp[3+2*d]; x=XV[2*q+d]
            e(valu('v_lshlrev_b32',lo,16,x), valu('v_and_b32',hi,0xffff0000,x))
        for d in range(2):
            lo,hi=tmp[2+2*d],tmp[3+2*d]; r=4*q+2*d
            e(valu('v_fmac_f32',lo,SA[r],DN[r],rmw=True), valu('v_fmac_f32',hi,SA[r+1],DN[r+1],rmw=True), valu('v_cvt_pk_bf16_f32',SA[4*q+d],lo,hi))
        e(bstore(SA[4*q:4*q+2],vXO if q<4 else vXOX,sOUT,0,32*q if q<4 else 0))

def main():
    build_ffn()
    ngaps,bars,free=plan()
    L=OPT['look']
    best=None
    for a0 in range(0,26):
        fr=sorted((max(free[b] for b in range(a0+5*k,a0+5*k+5)),k) for k in range(3))
        key=(fr[0][0],fr[1][0])
        if best is None or key<best[0]: best=(key,a0,[k for _,k in fr])
    _,a0,order=best; WB=a0*4096
    print('attention window',best,'ngaps',ngaps,{k:groups[v].start for k,v in marks.items()})
    kv=[kv_item(s) for s in range(8)]
    for s,it in enumerate(kv): it.addr=(a0+5*order[s%3])*4096
    rest=[b for b in range(NB) if not a0<=b<a0+15]
    wo_main=[blk_item(('wo',s),vWO if s<16 else vWOE,sWO,36*s*1152 if s<16 else 288*(s-16)*1152) for s in range(18)]
    wo_x=[blk_item(('wx',n),vWX if n<4 else vWXE,sWO,144*n*1152 if n<4 else 0,buf=(n==4),c=320) for n in range(5)]
    for it,b in zip(wo_main+wo_x,rest): it.addr=b*4096

    def pst(name):
        if 'pst' in OPT: stamp(name,True)
    prologue(); pst('karg')
    pre0=[it for it in items if it.early==-3000]; pre1=[it for it in items if it.early==-2000]
    dq=[xdma(tt,l) for tt in range(2) for l in range(0,9,2)]+[it.mk(it) for it in pre0+pre1]
    pfl=[(sWG,0),(sWU,0),(sWG,1),(sWU,1),(sWG,2),(sWU,2),(sWQ,0),(sWD,0),(sWD,1),(sWD,2),(sWO,0)]
    e(*dq.pop(0)); pf_c0()
    pst('x0 issued')
    xr=[vM[0],vR[1]]; t,u=vT[2],vT[3]
    DT=[V(140+8*n,8) for n in range(3)]; CM=V(164,4); SUM=V(172,4); ONE4=V(176,4); SEL=V(180,6)
    pf_code(); prologue2()
    with collect() as ao:
        e(valu('v_and_b32',t,15,vL), valu('v_lshrrev_b32',u,1,t), valu('v_lshlrev_b32',t,7,t), valu('v_add_u32',t,sW18K,t),
          valu('v_lshrrev_b32',xr[0],4,vL), valu('v_xor_b32',xr[0],xr[0],u), valu('v_xor_b32',xr[1],4,xr[0]),
          valu('v_lshl_add_u32',xr[0],xr[0],4,t), valu('v_lshl_add_u32',xr[1],xr[1],4,t))
        e(*sel_ops(SEL[0],SEL[1],t,u), valu('v_mov_b32',SEL[2],0), valu('v_mov_b32',SEL[3],0), valu('v_mov_b32',SEL[4],SEL[0]), valu('v_mov_b32',SEL[5],SEL[1]))
        for d in range(4): e(valu('v_mov_b32',ONE4[d],sONES))
        addr_early(); addr_pf(); addr_qk()
    cuts=[int(len(ao)*float(x)) for x in str(OPT.get('xcut','0.0,0.4,0.8')).split(',')]
    for k,x in enumerate(ao):
        while cuts and cuts[0]==k: cuts.pop(0); e(*dq.pop(0)); pst('grp')
        e(x)
    nx=len([o for o in dq if o[-1].meta['tag'][0]=='x'])
    for k in range(OPT.get('pfpre',0)):
        o=pf_lin(*pfl.pop(0))
        if o: dq.insert(nx+OPT.get('pfpos',6)+k,o)
    e(raw('s_waitcnt lgkmcnt(0)','misc'))
    pst('addr')
    R0=[XC0[4*s_:4*s_+4] for s_ in range(18)]; X1=[XC1[4*s_:4*s_+4] for s_ in range(18)]
    def xread(tt,dst,l):
        return [waitfor(vmtags=[('x',tt,l)])]+[dsr('ds_read_b128',dst[s],xr[s&1],l*2048,src=(('x',tt,l),list(range(18*tt,18*tt+18))),private=True) for s in (2*l,2*l+1)]
    cq=[]; nm=[0]; nblk=[0]
    def mm(m,extra=()):
        e(m); nm[0]+=1
        if extra: e(*extra); return
        k=0
        while cq and k<2 and cq[0][0]<=nm[0]-3: e(cq.pop(0)[1]); k+=1
    def stats(tt,fr,l,nvm,lim=99):
        ms=[]
        for s_ in (2*l,2*l+1): ms+=[m16(SUM,ONE4,fr[s_],0 if s_==0 else SUM), m16(GR[tt],fr[s_],fr[s_],0 if s_==0 else GR[tt])]
        for h in range(2):
            o=[]
            if dq and h<nvm and nblk[0]<min(lim,OPT['nblk']):
                o=dq.pop(0)
                if o[-1].meta['tag'][0] not in 'xp': nblk[0]+=1
            mm(ms[2*h],[x for x in o if x.kind=='salu']); mm(ms[2*h+1],[x for x in o if x.kind!='salu'])
    nc=[0]
    def centre(src,dst,after=(),ex=((),())):
        d=DT[nc[0]%3]; nc[0]+=1
        while any(set(c.rd)&set(d.regs()) for _,c in cq): e(cq.pop(0)[1])
        for h in range(2):
            mm(m16(d[4*h:4*h+4],SEL[2*h:2*h+4],src,CM),ex[h])
            for z in range(2): cq.append((nm[0],valu('v_cvt_pk_bf16_f32',dst[2*h+z],d[4*h+2*z],d[4*h+2*z+1])))
        for x in after: cq.append((nm[0],x))
    def mean(tt):
        dst=vM[1] if tt else t
        e(valu('v_mul_f32',MEAN[tt],f32(1/576),SUM[0]), valu('v_cvt_pk_bf16_f32',dst,MEAN[tt],MEAN[tt]), valu('v_lshlrev_b32',dst,16,dst))
        for d in range(4): e(valu('v_xor_b32',CM[d],0x80000000,dst))
    for l in range(10):
        if l<9: e(*xread(0,R0,l))
        if l==0: e(*dq.pop(0))
        if l>0:
            e(waitfor(lg=R0[2*l-2:2*l])); stats(0,R0,l-1,int(str(OPT.get('w1','x011010101'))[l]),len(pre0))
        if str(l) in str(OPT.get('tch','x1468')): e(*touch())
        if l in (0,4,8): pst(f'x0 rd {l}')
    e(barrier())
    stamp('x0 read')
    e(raw('s_branch L_main','misc'), I('.p2align 12','comment'), label('L_main'))
    e(valu('v_add_u32',xr[0],73728,xr[0]), valu('v_add_u32',xr[1],73728,xr[1]))
    e(*xread(1,X1,0)); mean(0); pst('stat0')
    for l in range(9):
        for s_ in (2*l,2*l+1): centre(R0[s_],X0[s_],to_acc(s_) if s_>=NV0 else ())
        if l<8: e(*xread(1,X1,l+1))
        e(waitfor(lg=X1[2*l:2*l+2])); stats(1,X1,l,int(str(OPT.get('w2','x222222222'))[l+1]))
        if l in (3,8): pst(f'x1 rd {l}')
    while cq: e(cq.pop(0)[1])
    mean(1)
    reads=[f(it) for g in groups[:4] for it,f in g.rd][:L]
    n0=OPT['n0']
    for s_ in range(n0):
        ex=((),())
        if s_==n0-8: ex=((waitfor(vmtags=[it.name for it in items if it.bar==-L]), barrier()),()); stamp('x1 read'); pst('bar1')
        centre(X1[s_],X1[s_],ex=ex)
        if s_>n0-8:
            for z in range(2):
                if reads: e(reads.pop(0))
    assert not reads
    while cq: e(cq.pop(0)[1])
    e(waitfor(lg=groups[0].fr)); pst('go')
    for s_ in range(n0,18): push('ctr',0,centre_ops(X1[s_],1))
    for s_ in range(NV0): push('ctr',0,to_acc(s_))
    for o in dq: push('dma',-1,o)
    mx_=-1
    for it in items:
        mx_=max(mx_,it.early)
        if it.early>-2000: push('dma',it.early,it.mk(it),mx_)
    st=lambda k:groups[marks[k]].start
    def low(gap,f,*a):
        with collect() as o: f(*a)
        push('low',gap,o,gap)
    low(st('c0')+200,var_ops,0); low(st('c0')+200,var_ops,1)
    while OPT['touch'] and ntouch[0]<5:
        g_=max(60,ntouch[0]*700-OPT.get('tlead',500)); push('ctr',min(g_,ngaps-150),touch(),min(g_,ngaps-150))
    low(st('c1'),addr_mid); low(st('c1'),addr_mid2); low(st('qkv'),zero_o)
    low(st('c2'),addr_att,WB); low(st('c2'),addr_lds,WB)
    for k,(srd,ev) in enumerate(pfl): push('ld',OPT['pf0']+k*OPT['pfgap'],pf_lin(srd,ev),OPT['pf0']+k*OPT['pfgap'])
    b1=[b for b in bars if b>st('c3')+60][0]
    bar_extra[b1]=['qkvst']
    ar=[salu('s_and_b32',sJH,S(2),1), salu('s_lshl_b32',sJH,sJH,7), salu('s_mov_b32',sJ128,1), salu('s_cmp_lg_u32',sW,0), raw('s_cbranch_scc1 L_arr','misc'),
        raw(f's_atomic_add {sJ128}, {sDBG[0:2]}, {sJH}','misc',sJ128.regs()+sJH.regs()), label('L_arr')]
    for x in ar[3:6]: x.meta['glue']=True
    push('low',b1,ar,b1)
    if OPT['stop']!='down':
        d0=st('down')
        low(b1,addr_z); low(b1,addr_fin); pass
        ld=bload(vPOLL,vZ,sDBG,0,flags='sc1')
        push('ld',d0+OPT['f1poll'],[ld],d0+OPT['f1poll'])
        with collect() as o: qk_loads(WB)
        push('ld',d0+OPT['f1poll']+80,[waitfor(vm=[vPOLL])]+spin('f1',ld,128)+o,d0+OPT['f1poll']+80)
        for s in range(2):
            early=max(free[b] for b in kv[s].blks())
            assert early>d0+300
            push('dma',early if early<LATE else ngaps+10,kv[s].mk(kv[s]),ngaps-1)
    emit_backbone(bars,{groups[v].start:k for k,v in marks.items() if k in ('c0','qkv','down')})
    stamp('down end')
    if OPT['stop']=='down':
        for nm in ('epi','st','low','dma'):
            for af,o in fifo[nm]: e(o)
    else:
        attention(ngaps,kv,WB,wo_main+wo_x)
        stamp('att end')
        final(ngaps+1000,wo_main,wo_x)
        fallback(kv,WB)
    finish()

def sizes(lines):
    import subprocess, re
    uniq=sorted(set(lines))
    src='.amdgcn_target "amdgcn-amd-amdhsa--gfx950"\n.text\nLX:\n'+'\n'.join(re.sub(r'L_codeend-L_pc-4','0x12345',re.sub(r'(s_branch|s_cbranch\w+) \w+',r'\1 0',u)) for u in uniq)+'\n'
    open('_sz.s','w').write(src)
    r=subprocess.run(['llvm-mc','-triple=amdgcn-amd-amdhsa','-mcpu=gfx950','-show-encoding','_sz.s'],capture_output=True,text=True)
    assert r.returncode==0,r.stderr[:2000]
    enc=re.findall(r'encoding: \[([^\]]*)\]',r.stdout)
    assert len(enc)==len(uniq),(len(enc),len(uniq))
    return {u:len(x.split(',')) for u,x in zip(uniq,enc)}
def page_stubs(out):
    sz=sizes([i.text for i in out if i.kind not in ('label','comment')])
    k0=[k for k,i in enumerate(out) if i.text=='L_main:'][0]
    print('entry part bytes',sum(sz.get(i.text,0) for i in out[:k0]))
    res=out[:k0+1]; off=0; pg=0; prev=None
    npg=4*ntouch[0]
    for k in range(k0+1,len(out)):
        i=out[k]
        if pg<npg and off>=4096*pg and not (prev is not None and prev.meta.get('glue')):
            good=prev is not None and prev.kind=='mfma' and i.kind in ('dsr','valu','trans')
            if good or off-4096*pg>=40 or pg==0:
                res+=[label(f'L_pg{pg}'), raw(f's_cbranch_execz L_tr{pg//4}')]; off+=4; pg+=1
        res.append(i); off+=sz.get(i.text,0)
        if i.kind not in ('label','comment'): prev=i
    print('main part bytes',off,'pages touched',pg,'of',-(-off//4096))
    while pg<npg: OUT.extend([f'L_pg{pg}:',f's_branch L_tr{pg//4}']); pg+=1
    return res
def finish():
    cur[0]=10**7
    if OPT['stamps']:
        e(raw('s_waitcnt lgkmcnt(0)','misc'), waitfor(vmall=True))
        stamp('drained'); e(raw('s_waitcnt lgkmcnt(0)','misc'))
        n=nstamp[0]
        for k in range(max(0,n-8),n): e(raw(f'v_writelane_b32 v13, s{64+2*(k%8)}, {k}','misc'))
        if 'padto' in OPT:
            e(raw('s_nop 1','misc'), raw(f'v_readlane_b32 s46, v13, {OPT["padto"]}','misc'), raw('s_nop 3','misc'))
            e(salu('s_add_u32',sT0,sT0,10000), label('L_pad'), raw('s_memrealtime s[98:99]','misc'), raw('s_waitcnt lgkmcnt(0)','misc'), salu('s_sub_u32',sT1,S(98),sT0), salu('s_cmp_lt_i32',sT1,0), raw('s_cbranch_scc1 L_pad','misc'))
        else:
            e(salu('s_lshl_b32',sT0,S(2),2), salu('s_add_u32',sT0,sT0,sW), salu('s_lshl_b32',sT0,sT0,8), salu('s_add_u32',sT0,sT0,WS_STAMP))
            e(valu('v_lshlrev_b32',V(1),2,vL), bstore(vST,V(1),sWS,sT0))
    check_order(P)
    out=finalize(P,verbose=OPT['v'],name='main')
    out=page_stubs(out)
    hdr=open('recurrent_scan__mha_block__glu_gated_reglu__prompt.s.ref').read().split('; Override launch')[0]
    txt=hdr+'; @launch grid=(256,1,1) block=(256,1,1) lds=163840\n.amdgcn_target "amdgcn-amd-amdhsa--gfx950"\n.text\n'
    txt+=f'.globl {NAME}\n.p2align 12\n.p2align 8\n.type {NAME},@function\n{NAME}:\n'
    txt+='\n'.join(i.text for i in out)+'\ns_endpgm\nL_codeend:\n'+'\n'.join(OUT)+'\ns_endpgm\n'
    txt+=f'''.section .rodata,"a"
.p2align 6
.amdhsa_kernel {NAME}
  .amdhsa_next_free_vgpr 512
  .amdhsa_next_free_sgpr 102
  .amdhsa_accum_offset 256
  .amdhsa_group_segment_fixed_size 0
  .amdhsa_kernarg_size 80
  .amdhsa_user_sgpr_count 2
  .amdhsa_user_sgpr_kernarg_segment_ptr 1
  .amdhsa_system_sgpr_workgroup_id_x 1
  .amdhsa_float_denorm_mode_32 3
.end_amdhsa_kernel
'''
    open(sys.argv[1],'w').write(txt)
    print('bytes',len(txt))
main()
```

```python
import sys, struct, contextlib
from asmlib import *

OPT=dict(stop='', stamps=0, pf=1, dmagap=3, look=13, stgap=20, n0=14, v=1, forcefb=0, astgap=6, f2lag=10, f2poll=54, f2chk=60, ldgap=5, dbgout=0, apre=60, x1n=2, afill=16, tlb=1, pfpos=6, pft='20,150,400,640,860,1000,1080,1160', swp=1, pfcost=160, pfgap=48, pf0=0, touch=1, x0n=3, nblk=14, f1poll=220, qstgap=20, back=96, pfc=1, bartr=0)
for a in sys.argv[2:]:
    k,v=a.split('='); OPT[k]=int(v) if v.lstrip('-').isdigit() else v
NAME='recurrent_scan__mha_block__glu_gated_reglu__prompt_kernel'

WS_QKV=0; SL=81920
WS_P=0x800000; WS_PX=0x2800000; WS_O=0x2C00000; WS_OX=0x2E00000; WS_F3=0x2E40000; WS_R2=0x2E60000; WS_F2=0x2E80000; WS_STAMP=0x2F00000
OOB=0x80000000
LDS_OOB=0x30000
def f32(x): return struct.unpack('<I',struct.pack('<f',x))[0]
QSCALE=18**-0.5*1.4426950408889634
MARGIN=80.0

sX,sWQ,sWO,sWG,sWU,sWD,sOUT,sDBG,sWS=[S(4+4*n,4) for n in range(9)]
sW,sW1K,sI,sJ,sH,sIDX,sT0,sT1,sSO,sSO2=[S(40+n) for n in range(10)]
sLO,sHI,sONES,sW7K,sW5K=[S(50+n) for n in range(5)]
sSC=[S(55),S(56),S(57)]
sW18K,sJ1,sXC,sM8,sT2,sT3=[S(58+n) for n in range(6)]
sJ128,sJH=S(3),S(94); sSO3=S(95); sXP,sXX=S(92),S(93)
sBD,sBL,sPC=S(96,2),S(98,2),S(100,2)
nstamp=[0]
def stamp(name,fine=False):
    if not OPT['stamps']: return
    if ('gst' in OPT or 'ast' in OPT or 'pst' in OPT) and not fine and name!='start': return
    n=nstamp[0]; nstamp[0]+=1
    assert n<64
    r=64+2*(n%8)
    if n>=8: e(raw(f'v_writelane_b32 v13, s{r}, {n-8}','misc'))
    e(raw(f'{"s_memrealtime" if OPT["stamps"]==1 else "s_memtime"} s[{r}:{r+1}]','misc'))
    print('stamp',n,name)

vL=V(0)
vT=[V(1+n) for n in range(8)]
vR=[V(9),V(10)]
vM=[V(11),V(12)]
vPF=A(255)
vST=V(13)
vGF,vGH,vDF,vDH=[V(14+n) for n in range(4)]
vTR=[[V(18+3*q+n) for n in range(3)] for q in range(4)]
vQK=[V(30+n) for n in range(7)]
vQM=[V(37+n) for n in range(3)]; vQE=[V(40+n) for n in range(3)]
vSM,vSE0,vSE1,vSCX=[V(43+n) for n in range(4)]
vPS,vPX=V(47),V(48)
vF1,vONE=V(49),V(50)
vPG,vF3,vPOLL=V(51),V(52),V(53)
vX=[V(168+n) for n in range(4)]
XC1=V(56,72)
BANK=[V(128,64),V(192,64)]
XC0=A(0,72); HH=A(72,72); FR=A(144,64)
vKM,vKE=V(30),V(31); vVA=[V(32+n) for n in range(4)]
vKV,vWO,vWOE,vWX,vWXE=[V(36+n) for n in range(5)]
vPL,vPLX,vOL,vOLX,vOS,vOSX=[V(41+n) for n in range(6)]
vIDX,vF3L=V(54),V(55)
vXO,vXOX,vR2,vZ=V(11),V(12),V(9),V(10)
QE=[V(14,2),V(16,2)]
QM=[A(0,4),A(4,4)]
OO=[A(208,16),A(224,16)]
KM=[A(40+4*n,4) for n in range(3)]; KE=[A(52+2*n,2) for n in range(3)]
VV=[A(8,8),A(16,8)]
XR=A(240,10)
PART=[A(60+4*n,4) for n in range(32)]
PARTX=[A(188+2*n,2) for n in range(10)]+[A(24+2*n,2) for n in range(6)]
SB=[V(176+16*n,16) for n in range(5)]

P=[]
cur=[-10**6,0]
sink=[None]
def setseq(i,gap=None):
    if 'seq' not in i.meta:
        cur[1]+=1; i.meta['seq']=(cur[0] if gap is None else gap,cur[1])
    return i
def e(*x):
    for i in x:
        if sink[0] is not None: sink[0].append(i)
        else: P.append(setseq(i)); i.meta['at']=cur[0]
@contextlib.contextmanager
def collect():
    o=[]; old=sink[0]; sink[0]=o
    yield o
    sink[0]=old
fifo=dict(dma=[],st=[],ld=[],ctr=[],epi=[],low=[])
def push(q,after,ops,logical=None):
    for o in ops: fifo[q].append((after,setseq(o,logical)))
def masked(dst,val,cmpop,a,b,tmp):
    e(valu(cmpop,'vcc',a,b), valu('v_mov_b32',tmp,OOB), valu('v_cndmask_b32',dst,tmp,val))

def prologue():
    e(salu('s_cmp_ge_u32',S(2),256), raw('s_cbranch_scc0 L_go','misc'), raw('s_endpgm','misc'), label('L_go'))
    for srd,off in ((sX,0),(sWG,32),(sWU,40),(sWQ,8),(sWO,16),(sWD,48),(sOUT,56),(sDBG,64),(sWS,72)): e(raw(f's_load_dwordx2 {srd[0:2]}, s[0:1], {off}','misc'))
    stamp('start')
    e(valu('v_lshrrev_b32',vT[0],6,V(0)), valu('v_and_b32',vL,63,V(0)))
    e(salu('s_and_b32',sXC,S(2),7), salu('s_lshr_b32',sIDX,S(2),3))
    pf_code()
    e(valu('v_readfirstlane_b32',sW,vT[0]))
    e(salu('s_lshr_b32',sM8,sIDX,2), salu('s_lshl_b32',sI,sM8,1), salu('s_and_b32',sT2,sXC,1), salu('s_add_u32',sI,sI,sT2))
    e(salu('s_mul_i32',sW18K,sW,18432))
    vx0,vx1,row,t=vX[0],vX[1],vT[2],vT[3]
    e(salu('s_lshl_b32',sT2,sI,2), salu('s_add_u32',sT2,sT2,sW), salu('s_lshl_b32',sT2,sT2,5))
    e(valu('v_lshrrev_b32',row,3,vL), valu('v_lshrrev_b32',t,4,vL), valu('v_and_b32',vx0,7,vL), valu('v_xor_b32',vx0,vx0,t),
      valu('v_xor_b32',vx1,4,vx0), valu('v_add_u32',t,sT2,row), valu('v_mul_u32_u24',t,1152,t),
      valu('v_lshl_add_u32',vX[2],vx0,4,t), valu('v_lshl_add_u32',vX[3],vx1,4,t), valu('v_add_u32',vX[3],8*1152-1024,vX[3]),
      valu('v_add_u32',vx0,1920,vX[2]), valu('v_add_u32',vx1,1920,vX[3]))
    e(salu('s_lshr_b32',sJ,sXC,1), salu('s_lshl_b32',sJ,sJ,2), salu('s_and_b32',sT3,sIDX,3), salu('s_add_u32',sJ,sJ,sT3), salu('s_and_b32',sJ1,sJ,1))
    e(salu('s_mul_i32',sSO2,sJ1,18432*OPT['swp']))
    e(raw('s_waitcnt lgkmcnt(0)','misc'))
    e(salu('s_sub_u32',sBL[0],sX[0],1920), salu('s_subb_u32',sBL[1],sX[1],0), salu('s_add_u32',sBD[0],sBL[0],sSO2), salu('s_addc_u32',sBD[1],sBL[1],0))
def prologue2():
    if OPT['tlb']:
        e(salu('s_mov_b32',sT0,2<<20), salu('s_mov_b32',sT1,4<<20))
        for srd,n in ((sWG,3),(sWU,3),(sWQ,1),(sWD,3),(sWO,1),(sWS,1),(sOUT,2)):
            for k in range(n): e(raw(f's_load_dword s80, {srd[0:2]}, {["0",sT0,sT1][k]}','misc'))
    e(salu('s_sub_u32',sSO2,18432,sSO2), salu('s_add_u32',sBL[0],sBL[0],sSO2), salu('s_addc_u32',sBL[1],sBL[1],0))
    e(salu('s_mul_i32',sXP,sJ1,OPT['swp']<<18), salu('s_mul_i32',sXX,sJ1,OPT['swp']<<15))
    e(salu('s_lshl_b32',sH,sXC,2), salu('s_add_u32',sH,sH,sT3))
    e(salu('s_lshl_b32',sW1K,sW,10), salu('s_mul_i32',sW7K,sW,7168), salu('s_mul_i32',sW5K,sW,5120))
    for srd,n in ((sX,2048*1152),(sWQ,576*3456),(sWO,576*1152),(sWG,576*9216),(sWU,576*9216),(sWD,4608*1152),(sOUT,2048*1152),(sDBG,256),(sWS,0x10000000)):
        e(salu('s_mov_b32',srd[2],n), salu('s_mov_b32',srd[3],0x20000))
    e(salu('s_mov_b32',sLO,0x3f80), salu('s_mov_b32',sHI,0x3f800000), salu('s_mov_b32',sONES,0x3f803f80))
def addr_pf():
    row,t=vT[2],vT[3]
    e(salu('s_lshl_b32',sJ128,sJ1,7), salu('s_lshl_b32',sJH,sJ1,9), salu('s_sub_u32',sJH,512,sJH))
    e(salu('s_lshl_b32',sT0,sI,2), salu('s_add_u32',sT0,sT0,sW), salu('s_mul_i32',sT0,sT0,9*9216), salu('s_mul_i32',sT1,sJ,576), salu('s_and_b32',sT1,sT1,-128), salu('s_add_u32',sT0,sT0,sT1),
      valu('v_mul_u32_u24',t,9216,vL), valu('v_add_u32',t,sT0,t))
    masked(vPG,t,'v_cmp_gt_u32',9,vL,row)
    u=row
    e(valu('v_mul_u32_u24',t,7282,vL), valu('v_lshrrev_b32',t,16,t), valu('v_mul_u32_u24',u,9,t), valu('v_sub_u32',u,vL,u), valu('v_mul_u32_u24',u,3456,u), valu('v_lshl_add_u32',u,t,7,u),
      salu('s_lshl_b32',sT0,sI,2), salu('s_add_u32',sT0,sT0,sW), salu('s_mul_i32',sT0,sT0,9*3456), salu('s_mul_i32',sT1,sJ,216), salu('s_and_b32',sT1,sT1,-128), salu('s_add_u32',sT0,sT0,sT1),
      valu('v_add_u32',u,sT0,u))
    masked(vPOLL,u,'v_cmp_gt_u32',27,vL,t)
def pf_gu(c):
    if not OPT['pf']: return []
    return [cost(bload(vPF,vPG,s,sJ128 if c<4 else sJH,c*128 if c<4 else 0,tag='pf'),90) for s in (sWG,sWU)]
def pf_q(): return [cost(bload(vPF,vPOLL,sWQ,0,tag='pf'),270)] if OPT['pf'] else []
def addr_pfd():
    t,u=vT[4],vT[5]
    e(salu('s_lshl_b32',sT0,sI,2), salu('s_add_u32',sT0,sT0,sW), salu('s_mul_i32',sT0,sT0,81*64), salu('s_and_b32',sT0,sT0,-128), salu('s_mul_i32',sT1,sJ,288*1152), salu('s_add_u32',sT0,sT0,sT1),
      valu('v_lshl_add_u32',t,vL,7,sT0))
    masked(vPOLL,t,'v_cmp_gt_u32',14,vL,u)
def pf_d(k): return [cost(bload(vPF,vPOLL,sWD,0,k*14*128,tag='pf'),140)] if OPT['pf'] else []
def pf_o():
    if not OPT['pf']: return
    t,u=vT[4],vT[5]
    e(salu('s_lshl_b32',sT0,S(2),2), salu('s_add_u32',sT0,sT0,sW), salu('s_mul_i32',sT0,sT0,6*128), valu('v_lshl_add_u32',t,vL,7,sT0))
    masked(t,t,'v_cmp_gt_u32',6,vL,u)
    e(cost(bload(vPF,t,sWO,0,tag='pf'),60))
def cost(i,c): i.meta['cost']=c; return i
def xdma(tt,l):
    base=sBD if tt==0 else sBL
    o=[salu('s_add_u32','m0',sW18K,tt*73728+l*1920)] if l%2==0 else []
    for z in range(2): o.append(gdma(vX[2*(l&1)+z],base,(l&~1)*128+(2*(l&1)+z)*1024,tag=('x',tt,l),private=True))
    return o
def sel_ops(x0,x1,m,g):
    return [valu('v_bfe_u32',m,vL,2,2), valu('v_lshrrev_b32',g,4,vL), valu('v_cmp_eq_u32','vcc',m,g), valu('v_and_b32',m,1,vL), valu('v_lshlrev_b32',m,4,m), valu('v_lshlrev_b32',m,m,sLO),
      valu('v_cndmask_b32',m,0,m), valu('v_and_b32',g,2,vL), valu('v_cmp_eq_u32','vcc',0,g), valu('v_mov_b32',x1,m), valu('v_mov_b32',g,m),
      valu('v_cndmask_b32',x0,0,m), valu('v_sub_u32',x1,m,x0)]
ntouch=[0]
def touch():
    if not OPT['touch']: return []
    k=ntouch[0]; ntouch[0]+=1
    o=[raw('s_mov_b64 exec, 0','salu')]
    for w in range(3): o+=[salu('s_cmp_eq_u32',sW,w), raw(f's_cbranch_scc1 L_pg{4*k+w}','misc')]
    o+=[raw(f's_branch L_pg{4*k+3}','misc'), label(f'L_tr{k}'), raw('s_mov_b64 exec, -1','salu')]
    for x in o[:-1]: x.meta['glue']=True
    return o

def lane_rp(rp,p,t):
    e(valu('v_lshrrev_b32',rp,3,vL), valu('v_and_b32',t,6,rp), valu('v_and_b32',p,7,vL), valu('v_xor_b32',p,p,t))
def addr_early():
    rp,p,t,u,kA=vT[2],vT[3],vT[4],vT[5],vT[6]
    lane_rp(rp,p,t)
    e(salu('s_and_b32',sT0,sW,1), salu('s_lshl_b32',sT0,sT0,4), salu('s_lshr_b32',sT1,sW,1), salu('s_lshl_b32',sT1,sT1,2), salu('s_add_u32',sT0,sT0,sT1))
    e(valu('v_and_b32',t,4,rp), valu('v_add_u32',kA,rp,t), valu('v_add_u32',kA,sT0,kA))
    e(salu('s_mul_i32',sT1,sJ,288), salu('s_lshl_b32',sT2,sJ1,5), salu('s_add_u32',sT2,sT2,sT1))
    e(salu('s_lshl_b32',sT3,sJ1,8), salu('s_sub_u32',sT3,256,sT3), salu('s_add_u32',sT3,sT3,sT1))
    e(salu('s_lshl_b32',sT0,sT2,1), valu('v_mul_u32_u24',t,9216,kA), valu('v_lshl_add_u32',t,p,4,t), valu('v_add_u32',vGF,sT0,t))
    e(salu('s_lshl_b32',sT0,sT3,1), valu('v_lshrrev_b32',t,2,p), valu('v_lshl_add_u32',t,t,5,kA), valu('v_mul_u32_u24',t,9216,t),
      valu('v_and_b32',u,3,p), valu('v_lshl_add_u32',t,u,4,t), valu('v_add_u32',vGH,sT0,t))
    e(salu('s_lshl_b32',sT0,sW,3), valu('v_add_u32',t,sT0,rp), valu('v_add_u32',u,sT2,t), valu('v_mul_u32_u24',u,1152,u), valu('v_lshl_add_u32',vDF,p,4,u),
      valu('v_add_u32',u,sT3,t), valu('v_mul_u32_u24',u,1152,u), valu('v_lshl_add_u32',vDH,p,4,u))
    g,r4,c,b=vT[2],vT[3],vT[6],vT[7]
    e(valu('v_bfe_u32',r4,vL,2,3), valu('v_and_b32',c,3,vL), valu('v_lshrrev_b32',g,5,vL),
      valu('v_lshlrev_b32',b,10,g), valu('v_lshl_add_u32',b,r4,7,b), valu('v_lshl_add_u32',b,c,3,b), valu('v_lshrrev_b32',t,1,r4))
    for q in range(4):
        e(valu('v_xor_b32',u,q,t), valu('v_lshl_add_u32',vTR[q][0],u,5,b), valu('v_add_u32',vTR[q][1],0x10000,vTR[q][0]), valu('v_add_u32',vTR[q][2],0x20000,vTR[q][0]))
def addr_qk():
    t=vT[4]
    e(salu('s_mul_i32',sT0,sJ,216), salu('s_and_b32',sT0,sT0,-16), salu('s_mul_i32',sT1,sW,32*3456), salu('s_add_u32',sT0,sT0,sT1))
    for q in range(7):
        pp,rr,k=vT[2],vT[3],vT[6]
        e(valu('v_add_u32',pp,64*q,vL), valu('v_mul_u32_u24',rr,4682,pp), valu('v_lshrrev_b32',rr,16,rr),
          valu('v_mul_u32_u24',t,14,rr), valu('v_sub_u32',pp,pp,t),
          valu('v_and_b32',t,12,rr), valu('v_and_b32',k,3,rr), valu('v_lshl_add_u32',k,t,1,k), valu('v_lshrrev_b32',t,4,rr), valu('v_lshl_add_u32',k,t,2,k),
          valu('v_mul_u32_u24',k,3456,k), valu('v_lshl_add_u32',k,pp,4,k), valu('v_add_u32',vQK[q],sT0,k))
        if q%4: e(valu('v_subrev_u32',vQK[q],1024*(q%4),vQK[q]))
def extpos(dst,key,t):
    e(valu('v_and_b32',dst,7,key), valu('v_bfe_u32',t,key,4,1), valu('v_lshl_add_u32',dst,t,3,dst),
      valu('v_bfe_u32',t,key,3,1), valu('v_xor_b32',t,1,t), valu('v_lshl_add_u32',dst,t,4,dst))
def addr_mid():
    t,u,c=vT[4],vT[5],vT[6]
    e(valu('v_and_b32',c,3,vL), salu('s_lshl_b32',sT0,sJ1,3), valu('v_lshrrev_b32',t,2,vL), valu('v_mul_u32_u24',t,224,t), valu('v_add_u32',t,sT0,t),
      valu('v_lshl_add_u32',vQM[0],c,3,t), valu('v_mul_u32_u24',u,72,c), valu('v_add3_u32',vQE[0],t,u,32))
    for n in (1,2): e(valu('v_add_u32',vQM[n],n*0x10000,vQM[0]), valu('v_add_u32',vQE[n],n*0x10000,vQE[0]))
def addr_mid2():
    t,u,key,hf=vT[4],vT[5],vT[2],vT[3]
    e(salu('s_lshl_b32',sT0,sI,2), salu('s_add_u32',sT0,sT0,sW), salu('s_mul_i32',sT0,sT0,1280), salu('s_mul_i32',sT1,sJ,6*SL), salu('s_add_u32',sT0,sT0,sT1))
    e(salu('s_lshr_b32',sT1,sXX,11), valu('v_xor_b32',u,sT1,vL), valu('v_and_b32',key,31,u), valu('v_lshrrev_b32',hf,5,vL), valu('v_lshlrev_b32',t,2,hf), valu('v_xor_b32',t,t,u), valu('v_lshlrev_b32',t,4,t), valu('v_add_u32',vSM,sT0,t))
    extpos(u,key,t)
    e(valu('v_lshlrev_b32',u,3,u), valu('v_add_u32',u,sT0,u), valu('v_add_u32',u,1024,u), valu('v_mul_u32_u24',t,4*SL,hf), valu('v_add_u32',vSE0,u,t),
      valu('v_lshl_add_u32',vSE1,hf,31,u))
    e(salu('s_mul_i32',sT0,sJ,6), valu('v_lshrrev_b32',t,4,vL), valu('v_lshl_add_u32',t,t,1,sT0), valu('v_mov_b32',u,f32(QSCALE)), valu('v_cmp_gt_u32','vcc',32,t), valu('v_cndmask_b32',vSCX,1.0,u))
    for p_ in range(3): e(valu('v_readlane_b32',sSC[p_],vSCX,16*p_))
    e(salu('s_lshl_b32',sT0,sI,2), salu('s_add_u32',sT0,sT0,sW), salu('s_lshl_b32',sT1,sT0,9), salu('s_add_u32',sT1,sT1,sJ), salu('s_lshl_b32',sT1,sT1,10),
      valu('v_lshl_add_u32',vPS,vL,4,sT1),
      salu('s_lshl_b32',sT1,sT0,7), salu('s_add_u32',sT1,sT1,sJ), salu('s_lshl_b32',sT1,sT1,9), valu('v_lshl_add_u32',vPX,vL,3,sT1))
    e(valu('v_mov_b32',vONE,1))
    e(salu('s_lshl_b32',sT1,sT0,4), salu('s_add_u32',sT1,sT1,sJ), salu('s_lshl_b32',sT1,sT1,7), salu('s_add_u32',sT1,sT1,WS_F2), valu('v_mov_b32',t,sT1))
    masked(vF1,t,'v_cmp_eq_u32',0,vL,u)
    e(salu('s_lshl_b32',sT1,sM8,2), salu('s_add_u32',sT1,sT1,sW), salu('s_lshl_b32',sT1,sT1,5), salu('s_add_u32',sT1,sT1,sH), salu('s_lshl_b32',sT1,sT1,7), salu('s_add_u32',sT1,sT1,WS_F3),
      valu('v_mov_b32',t,sT1))
    masked(vF3,t,'v_cmp_eq_u32',0,vL,u)
    e(valu('v_mov_b32',t,0), bstore(t,vF3,sWS,0,flags='sc1',tag='qkvst'), bstore(t,vF1,sWS,0,flags='sc1',tag='qkvst'))
    e(valu('v_and_b32',key,16,vL), valu('v_cmp_eq_u32','vcc',0,key), valu('v_cndmask_b32',hf,vR[1],vR[0]), valu('v_mul_f32',hf,hf,hf),
      salu('s_lshl_b32',sT0,sT0,7), salu('s_add_u32',sT0,sT0,WS_R2), valu('v_lshl_add_u32',key,vL,2,sT0), salu('s_lshl_b32',sT1,sJ,6), valu('v_add_u32',t,sT1,vL))
    masked(key,key,'v_cmp_gt_u32',32,t,u)
    e(bstore(hf,key,sWS,0,flags='sc1',tag='qkvst'))
def pf_code():
    if not OPT['pfc']: return
    t=vT[4]; a=V(6,2)
    e(raw('s_getpc_b64 s[100:101]','salu',[],['s100','s101']), label('L_pc'),
      salu('s_lshl_b32',sT0,sIDX,2), valu('v_add_u32',t,sT0,vT[0]), valu('v_lshl_add_u32',t,vL,7,t), valu('v_lshlrev_b32',t,7,t),
      raw(f'v_min_u32 {t}, L_codeend-L_pc-4, {t}','valu',t.regs(),t.regs()),
      raw(f'v_add_co_u32 {a[0]}, vcc, {sPC[0]}, {t}','valu',t.regs()+['s100'],a[0].regs()+['vcc']), valu('v_mov_b32',a[1],sPC[1]), raw('s_mov_b64 exec, 63','salu'),
      raw(f'v_addc_co_u32 {a[1]}, vcc, 0, {a[1]}, vcc','valu',a[1].regs()+['vcc'],a[1].regs()+['vcc']),
      I(f'global_load_dword {vPF}, {a}, off','vld',a.regs(),vPF.regs(),tag='pf'), raw('s_mov_b64 exec, -1','salu'))

GR=[V(38,4),V(42,4)]; MEAN=[V(46),V(47)]
def var_ops(tt):
    d=GR[tt]; t=vT[4]; b=d[0]
    e(valu('v_and_b32',t,1,vL), valu('v_cmp_eq_u32','vcc',0,t), valu('v_and_b32',t,2,vL), valu('v_cndmask_b32',d[0],d[1],d[0]), valu('v_cndmask_b32',d[2],d[3],d[2]),
      valu('v_cmp_eq_u32','vcc',0,t), valu('v_bfe_u32',t,vL,2,2), valu('v_cndmask_b32',d[0],d[2],d[0]), valu('v_lshrrev_b32',d[1],4,vL), valu('v_cmp_eq_u32','vcc',t,d[1]),
      valu('v_cndmask_b32',b,0,b))
    for op in ('v_permlane16_swap_b32','v_permlane32_swap_b32'): e(valu('v_mov_b32',d[1],b), swap(op,b,d[1]), valu('v_add_f32',b,b,d[1]))
    e(valu('v_mul_f32',b,f32(1/576),b), valu('v_fma_f32',b,'-'+str(MEAN[tt]),MEAN[tt],b), valu('v_max_f32',b,0,b), valu('v_cvt_pk_bf16_f32',b,b,b), valu('v_lshlrev_b32',b,16,b),
      valu('v_add_f32',b,f32(1e-5),b), valu('v_cvt_pk_bf16_f32',b,b,b), valu('v_lshlrev_b32',b,16,b),
      valu('v_sqrt_f32',b,b), valu('v_cvt_pk_bf16_f32',b,b,b), valu('v_lshlrev_b32',b,16,b), valu('v_rcp_f32',vR[tt],b))
def centre_ops(f,tt):
    o=[]; t=V(252)
    for d in range(4):
        x=f[d]
        o+=[valu('v_lshlrev_b32',t,16,x), valu('v_and_b32',x,0xffff0000,x), valu('v_sub_f32',t,t,vM[tt]), valu('v_sub_f32',x,x,vM[tt]), valu('v_cvt_pk_bf16_f32',x,t,x)]
    return o
def to_acc(s): return [valu('v_accvgpr_write_b32',XC0[4*s+d],X0[s][d]) for d in range(4)]

class Item:
    def __init__(s,name,n,mk): s.name=name; s.n=n; s.mk=mk; s.addr=None; s.first=None; s.last=None
    def blks(s): return list(range(s.addr//4096,s.addr//4096+s.n))
def blk_item(name,voff,srd,soff,buf=False,c=80):
    def mk(it):
        o=[salu('s_add_u32','m0',sW1K,it.addr)]
        if buf: return o+[salu('s_mov_b32',sSO,soff), cost(dma(voff,srd,sSO,tag=it.name,dst=it.blks()),c)]
        return o+base_add(sBD,srd,soff)+[cost(gdma(voff,sBD,tag=it.name,dst=it.blks()),c)]
    return Item(name,1,mk)
def qkv_item(a):
    def mk(it):
        o=[salu('s_mov_b32',sSO,a*128*3456)] if a==4 else base_add(sBD,sWQ,a*128*3456)
        for q in range(7):
            if q%4==0: o.append(salu('s_add_u32','m0',sW7K,it.addr+q*1024))
            if a==4: o.append(dma(vQK[q],sWQ,sSO,(q%4)*1024,tag=it.name,dst=it.blks()))
            else: o.append(cost(gdma(vQK[q],sBD,(q%4)*1024,tag=it.name,dst=it.blks()),120))
        return o
    return Item(('q',a),7,mk)
def kv_item(sg):
    def mk(it):
        o=[]
        for q in range(5):
            if q%4==0: o+=[salu('s_add_u32','m0',sW5K,it.addr+q*1024)]+base_add(sBD,sWS,WS_QKV+sg*10240+q*1024)
            o.append(gdma(vKV,sBD,(q%4)*1024,flags='sc1',tag=it.name,dst=it.blks())); o[-1].rd.append('ok_f1')
        return o
    return Item(('kv',sg),5,mk)

class Group:
    def __init__(s): s.m=[]; s.rd=[]; s.bar=False; s.fr=[]
frp=[0]
def newfrag():
    f=FR[frp[0]:frp[0]+4]; frp[0]=(frp[0]+4)%FR.n; return f
def tr_read(f,u,it,seg):
    return dsr('ds_read_b64_tr_b16',f[2*u:2*u+2],vTR[seg][it.addr>>16],(it.addr&0xffff)+u*2048,src=(it.name,it.blks()))
def xc(tt,s): return (XC0 if tt==0 else XC1)[4*s:4*s+4]
def hfrag(k,tt): return HH[8*k+4*tt:8*k+4*tt+4]

items=[]; groups=[]; events=[]
def mm_group(srcs,accs,bfun,bar=False):
    g=Group(); g.bar=bar
    for it,seg,k in srcs:
        f=newfrag(); g.fr.append(f)
        for u in range(2): g.rd.append((it,lambda it,f=f,u=u,seg=seg: tr_read(f,u,it,seg)))
    for tt in range(2):
        for (it,seg,k),f in zip(srcs,g.fr):
            g.m.append(m16(accs[tt],f,bfun(k,tt),0 if k==0 else accs[tt]))
    groups.append(g); return len(groups)-1

def h_epilogue(bank,q,kout,half):
    gt=[bank[16*q+4*tt:16*q+4*tt+4] for tt in range(2)]; up=[bank[16*q+8+4*tt:16*q+12+4*tt] for tt in range(2)]
    o=[]
    for tt in range(2):
        for r in range(4): o.append(valu('v_max_f32',gt[tt][r],0,gt[tt][r]))
    for tt in range(2):
        for r in range(4): o.append(valu('v_mul_f32',up[tt][r],gt[tt][r],up[tt][r]))
        for d in range(2): o.append(valu('v_cvt_pk_bf16_f32',gt[tt][d],up[tt][2*d],up[tt][2*d+1]))
        for d in range(2): o.append(valu('v_accvgpr_write_b32',hfrag(kout,tt)[2*half+d],gt[tt][d]))
    return o
NV0=15
X0=[V(192+4*s,4) for s in range(NV0)]+[V(128+4*s,4) for s in range(18-NV0)]
def build_chunk(c,bank):
    xf=lambda k,tt: X0[k] if (c==0 and tt==0 and k<NV0) else xc(tt,k)
    for st in range(6):
        G=[blk_item(('g',c,3*st+n),vGF,sWG,(3*st+n)*32*9216+c*128) for n in range(3)]
        U=[blk_item(('u',c,3*st+n),vGF,sWU,(3*st+n)*32*9216+c*128) for n in range(3)]
        items.extend(G+U)
        for q in range(4):
            mm_group([(G[n],q,3*st+n) for n in range(3)],[bank[16*q+4*tt:16*q+4*tt+4] for tt in range(2)],xf,bar=(q==0))
        for q in range(4):
            gi=mm_group([(U[n],q,3*st+n) for n in range(3)],[bank[16*q+8+4*tt:16*q+12+4*tt] for tt in range(2)],xf,bar=(q==0 and (OPT['bartr'] or (c==0 and st<2))))
            if st==5: events.append((gi,h_epilogue(bank,q,2*c+(q>>1),q&1)))
def build_half(bank):
    for st in range(3):
        G=[blk_item(('gh',3*st+n),vGH,sWG,(3*st+n)*64*9216,c=150) for n in range(3)]
        U=[blk_item(('uh',3*st+n),vGH,sWU,(3*st+n)*64*9216,c=150) for n in range(3)]
        items.extend(G+U)
        seq=[(G,0,0),(G,0,1),(U,8,0),(U,8,1)] if st<2 else [(G,0,0),(U,8,0),(G,0,1),(U,8,1)]
        for z,(M,o,q) in enumerate(seq):
            for hh in range(2):
                ks=[6*st+3*hh+n for n in range(3)]
                gi=mm_group([(M[(k-6*st)>>1],2*(k&1)+q,k) for k in ks],[bank[16*q+o+4*tt:16*q+o+4+4*tt] for tt in range(2)],lambda k,tt:xc(tt,k),bar=(hh==0 and (z==0 or (z==2 and st<2 and OPT['bartr']))))
            if st==2 and o==8: events.append((gi,h_epilogue(bank,q,8,q)))
def build_qkv(bank):
    for a in range(5):
        it=qkv_item(a); items.append(it)
        first=True
        for k0 in range(0,4 if a<4 else 2,2):
            for t in range(7):
                g=Group(); g.bar=first; first=False
                for kk in (k0,k0+1):
                    f=newfrag(); g.fr.append(f)
                    for u in range(2):
                        def rd(it,f=f,u=u,kk=kk,t=t):
                            ad=it.addr+kk*7168+u*3584+(0 if t==6 else 72*(t>>1)+40*(t&1))
                            return dsr('ds_read_b64_tr_b16',f[2*u:2*u+2],(vQE if t==6 else vQM)[ad>>16],ad&0xffff,src=(it.name,it.blks()))
                        g.rd.append((it,rd))
                for tt in range(2):
                    acc=bank[8*t+4*tt:8*t+4*tt+4]
                    for n,kk in enumerate((k0,k0+1)):
                        k=4*a+kk
                        g.m.append(m16(acc,g.fr[n],xc(tt,k),0 if k==0 else acc))
                groups.append(g)
                if a==4: events.append((len(groups)-1,qkv_epilogue(bank,t)))
def st_pair(o,data,voff,soff,tag,x=None):
    a=salu('s_mov_b32',sSO2,soff) if x is None else salu('s_xor_b32',sSO2,x,soff); b=bstore(data,voff,sWS,sSO2,flags='sc1',tag=tag)
    dep=[x for x in o if x.kind=='valu'][-1]
    a.meta['q']='st'; b.meta['q']='st'; b.meta['dep']=dep
    o+=[a,b]
def qkv_epilogue(bank,t):
    o=[]
    sc=[bank[56],bank[57]]
    if t==6: o+=[valu('v_mul_f32',sc[tt],vSCX,vR[tt]) for tt in range(2)]
    elif t%2==0: o+=[valu('v_mul_f32',sc[tt],sSC[t>>1],vR[tt]) for tt in range(2)]
    a=bank[8*t:8*t+8]
    for tt in range(2):
        for r in range(4): o.append(valu('v_mul_f32',a[4*tt+r],sc[tt],a[4*tt+r]))
    if t<6:
        o+=[valu('v_cvt_pk_bf16_f32',a[0],a[0],a[1]), valu('v_cvt_pk_bf16_f32',a[1],a[2],a[3]), valu('v_cvt_pk_bf16_f32',a[2],a[4],a[5]), valu('v_cvt_pk_bf16_f32',a[3],a[6],a[7]),
            swap('v_permlane16_swap_b32',a[0],a[2]), swap('v_permlane16_swap_b32',a[1],a[3])]
        st_pair(o,a[0:4],vSM,WS_QKV+t*SL,'qkvst')
    else:
        o+=[valu('v_cvt_pk_bf16_f32',a[0],a[0],a[1]), valu('v_cvt_pk_bf16_f32',a[2],a[2],a[3]), valu('v_cvt_pk_bf16_f32',a[4],a[4],a[5]), valu('v_cvt_pk_bf16_f32',a[6],a[6],a[7])]
        o+=[valu('v_mov_b32',a[n],sONES) for n in (1,3,5,7)]
        o+=[swap('v_permlane16_swap_b32',a[0],a[4]), swap('v_permlane16_swap_b32',a[2],a[6])]
        for n,(vo,sl) in enumerate(((vSE0,0),(vSE0,1),(vSE1,2),(vSE1,3))):
            st_pair(o,a[2*n:2*n+2],vo,WS_QKV+sl*SL,'qkvst')
    return o
pool=[0]
def build_down():
    ntr=0
    for c,tr in [(0,0),(0,1),(1,0),(1,1),(0,2),(1,2)]+[(c,tr) for c in range(2,9) for tr in range(3)]:
        acc=V(192 if c==0 else 128+32*((c+1)%2),32)
        if True:
            B=[blk_item(('d',c,k),vDF if k<8 else vDH,sWD,(k*32*1152 if k<8 else 0)+c*128) for k in range(3*tr,3*tr+3)]
            items.extend(B)
            for q in range(4):
                gi=mm_group([(B[n],q,3*tr+n) for n in range(3)],[acc[16*tt+4*q:16*tt+4*q+4] for tt in range(2)],hfrag,bar=(q==0 and (ntr%2==0 or OPT['bartr'])))
                if tr==2 and q%2==1:
                    o=[]
                    for tt in range(2):
                        a=acc[16*tt+4*(q-1):16*tt+4*(q-1)+8]
                        d4=XC1[pool[0]:pool[0]+4]; pool[0]=(pool[0]+4)%72
                        o+=[valu('v_cvt_pk_bf16_f32',d4[d],a[2*d],a[2*d+1]) for d in range(4)]
                        if c<8: st_pair(o,d4,vPS,WS_P+(tt*16+c*2+(q>>1))*16384,'pst',sXP)
                        else:
                            for z in range(2): st_pair(o,d4[2*z:2*z+2],vPX,WS_PX+(tt*4+q-1+z)*8192,'pst',sXX)
                    events.append((gi,o))
            ntr+=1

marks={}
def build_ffn():
    marks['c0']=len(groups); build_chunk(0,BANK[0])
    marks['c1']=len(groups); build_chunk(1,BANK[1])
    marks['qkv']=len(groups); build_qkv(BANK[0])
    marks['c2']=len(groups); build_chunk(2,BANK[1])
    marks['c3']=len(groups); build_chunk(3,BANK[0])
    marks['half']=len(groups); build_half(V(224,32))
    marks['down']=len(groups); build_down()

NB=40; LATE=10**9
def plan():
    L=OPT['look']
    n=0; bars=[]
    for g in groups:
        g.start=n
        if g.bar: bars.append(n-L)
        for k,(it,_) in enumerate(g.rd):
            if it.first is None: it.first=n+k-L
            it.last=n-1
        n+=len(g.m)
    free={b:(-3000 if b>=36 else (-2000 if b<18 else -L)) for b in range(NB)}
    ptr=36
    for it in items:
        if ptr+it.n>NB: ptr=0
        it.addr=ptr*4096
        it.early=max(free[b] for b in it.blks())
        assert it.early<LATE
        it.bar=max(b for b in bars if b<=it.first)
        nxt=[b for b in bars if b>it.last]
        for b in it.blks(): free[b]=nxt[0] if nxt else LATE
        ptr=(ptr+it.n)%NB
    return n,bars,free

VM=('dma','vld','vst')
SC=('salu','waitfor','misc','label')
lastvm=dict(any=-100,st=-100)
def head(nm,gap):
    q=fifo[nm]
    if not q or q[0][0]>gap: return None
    x=q[0][1]; sq=x.meta['seq']; rd=set(x.rd)-{'carry'}; wr=set(x.wr)-{'carry'}
    for n2,q2 in fifo.items():
        if n2==nm: continue
        for _,y in q2:
            if y.meta['seq']>sq: break
            if rd&set(y.wr) or wr&set(y.rd) or wr&set(y.wr): return None
    return x
pipe=[0,16]
def vm_ready(gap,mingap,stgap,order=('st','ld','low','dma')):
    if gap-lastvm['any']<mingap: return None
    if pipe[0]-gap*pipe[1]>OPT['back']: return None
    for nm in order:
        x=head(nm,gap)
        if x is None or x.kind not in VM: continue
        if nm=='st':
            d=x.meta.get('dep')
            if gap-lastvm['st']<stgap or (d is not None and d.meta.get('at',LATE)>gap-2): continue
        return nm
    return None
def take(nm,gap):
    x=fifo[nm].pop(0)[1]
    if x.kind in VM:
        lastvm['any']=gap
        pipe[0]=max(pipe[0],gap*pipe[1])+x.meta.get('cost',80)
        if nm=='st': lastvm['st']=gap
    e(x)
    while x.meta.get('glue'):
        x=fifo[nm].pop(0)[1]; e(x)
    return x
def pull(gap,scalar):
    order=('dma','st','ctr','epi','ld','low')
    if scalar:
        for nm in order:
            x=head(nm,gap)
            if x is not None and 'carry' in x.rd: take(nm,gap); return True
    for nm in order:
        x=head(nm,gap)
        if x is None or x.kind in VM: continue
        if (x.kind in SC)!=scalar: continue
        take(nm,gap); return True
    return False

bar_extra={}
def emit_backbone(bars,gapstamps):
    L=OPT['look']
    reads=[(it,f,g.start-0.5) for g in groups for it,f in g.rd]
    ev={}
    for gi,ops in events: ev.setdefault(gi,[]).append(ops)
    bar_items={}
    for it in items: bar_items.setdefault(it.bar,[]).append(it.name)
    barset=set(bars); issue={}
    fixed={}
    for gi,g in enumerate(groups):
        for k in range(len(g.m)):
            gap=g.start+k; fx=[]
            w_lg=groups[gi+1].fr if (k==len(g.m)-1 and gi+1<len(groups)) else []
            w_vm=(bar_items.get(gap+1,[])+bar_extra.get(gap+1,[])) if gap+1 in barset else []
            if gap in barset: fx.append(barrier())
            if w_lg or w_vm: fx.append(waitfor(lg=w_lg,vmtags=w_vm))
            fixed[gap]=fx
    ri=[L]
    def rd():
        it,f,lg=reads[ri[0]]; ri[0]+=1; e(setseq(f(it),lg))
    planned=None
    for gi,g in enumerate(groups):
        for k,m in enumerate(g.m):
            gap=g.start+k; cur[0]=gap
            e(m)
            if gap in gapstamps: stamp(gapstamps[gap])
            if 'gst' in OPT and gap in range(*map(int,OPT['gst'].split(':'))): stamp(f'gap{gap}',True)
            if planned:
                x=take(planned,gap); planned=None
                if x.kind=='dma': issue[x.meta['tag']]=gap
                continue
            fx=fixed[gap]
            if fx: e(fx.pop(0))
            else: pull(gap,True)
            if ri[0]<len(reads) and ri[0]<=gap+L: rd()
            if fx: e(fx.pop(0)); continue
            if ri[0]<len(reads) and ri[0]<=gap+L: rd(); continue
            if gap+1 in fixed and not fixed[gap+1]: planned=vm_ready(gap+1,OPT['dmagap'],OPT['stgap'] if gap>=groups[marks['down']].start else OPT['qstgap'])
            if planned:
                if ri[0]<len(reads) and reads[ri[0]][0].bar<=gap: rd()
                continue
            if not pull(gap,False): pull(gap,True)
        for ops in ev.get(gi,[]):
            for o in ops: push(o.meta.get('q','epi'),gap+4,[o])
    sl=[(it.bar-issue[it.name],it.name) for it in items if it.name in issue]
    sl.sort(); print('min dma slack (gaps):',sl[:6])
    print('left after backbone:',{k:len(v) for k,v in fifo.items()})

OUT=[]
def spin(name,load,expect):
    a=valu('v_cmp_gt_u32','vcc',expect,vPOLL); a.meta['glue']=True
    b=raw(f's_cbranch_vccnz L_spin_{name}','misc',['vcc']); b.meta['glue']=True
    c=label(f'L_back_{name}')
    cnt=vT[7]
    OUT.extend([f'L_spin_{name}:', f'v_mov_b32 {cnt}, 0x40000', f'L_spinl_{name}:', load.text, 's_waitcnt vmcnt(0)', f'v_cmp_gt_u32 vcc, {fmt(expect)}, {vPOLL}', 's_nop 1',
        f's_cbranch_vccz L_back_{name}', f'v_subrev_u32 {cnt}, 1, {cnt}', f'v_cmp_ne_u32 vcc, 0, {cnt}', 's_sleep 1', f's_cbranch_vccnz L_spinl_{name}', f's_branch L_back_{name}'])
    a.wr.append(cnt.regs()[0]); a.wr.append('ok_'+name)
    return [a,b,c]

def addr_att(WB):
    t,u,key,hf,p,rp=vT[0],vT[1],vT[2],vT[3],vT[4],vT[5]
    e(valu('v_and_b32',key,31,vL), valu('v_lshrrev_b32',hf,5,vL), valu('v_lshlrev_b32',t,2,hf), valu('v_xor_b32',t,t,vL), valu('v_lshlrev_b32',vKM,4,t))
    extpos(u,key,t)
    e(valu('v_lshlrev_b32',vKE,3,u), valu('v_add_u32',vKE,1024,vKE))
    e(salu('s_lshr_b32',sT0,sW,1), salu('s_lshl_b32',sT0,sT0,5), salu('s_add_u32',sT0,sT0,sH), salu('s_add_u32',sT0,sT0,32), salu('s_mul_i32',sT0,sT0,SL),
      salu('s_and_b32',sT1,sW,1), salu('s_mul_i32',sT1,sT1,5120), salu('s_add_u32',sT0,sT0,sT1), valu('v_lshl_add_u32',vKV,vL,4,sT0))
    e(valu('v_mov_b32',vIDX,0xdddd))
def addr_z(): e(valu('v_and_b32',vZ,1,vL), valu('v_lshlrev_b32',vZ,7,vZ))
def qk_loads(WB):
    t,u,hf=vT[0],vT[1],vT[3]
    e(salu('s_mov_b32',sSO3,WS_R2), cost(bload(vR2,vR2,sWS,sSO3,flags='sc1'),40))
    e(valu('v_lshrrev_b32',hf,5,vL), valu('v_lshl_add_u32',u,hf,31,vKE))
    e(salu('s_lshl_b32',sT0,sM8,2), salu('s_add_u32',sT0,sT0,sW), salu('s_mul_i32',sT0,sT0,2560), salu('s_mul_i32',sT1,sH,SL), salu('s_add_u32',sSO3,sT0,sT1))
    for x in range(2): e(bload(QM[x],vKM,sWS,sSO3,x*1280,flags='sc1'))
    e(cost(bload(QE[0][0],u,sWS,sSO3,0,flags='sc1'),40), cost(bload(vT[2],u,sWS,sSO3,1280,flags='sc1'),40))
    e(salu('s_add_u32',sSO3,sT1,32*SL))
    for x in range(2): e(bload(KM[x],vKM,sWS,sSO3,x*1280,flags='sc1'), cost(bload(KE[x],u,sWS,sSO3,x*1280,flags='sc1'),40))
    e(valu('v_add_u32',vKM,WB,vKM), valu('v_mul_u32_u24',t,LDS_OOB,hf), valu('v_add_u32',vKE,vKE,t), valu('v_add_u32',vKE,WB,vKE))
def zero_o():
    for x in range(2):
        for r in range(16): e(valu('v_accvgpr_write_b32',OO[x][r],0))
def addr_lds(WB):
    t,hf=vT[0],vT[3]
    e(valu('v_lshrrev_b32',hf,5,vL))
    c,r,k,x=vT[4],vT[5],vT[6],vT[1]
    e(valu('v_and_b32',c,3,vL), valu('v_bfe_u32',r,vL,2,2), valu('v_lshl_add_u32',r,hf,3,r))
    for n in range(4):
        uu,y=n>>1,n&1
        e(valu('v_add_u32',k,16*uu+4*y,r))
        extpos(x,k,t)
        e(valu('v_lshlrev_b32',x,3,x), valu('v_min_u32',t,1,c), valu('v_mul_u32_u24',t,LDS_OOB+64,t), valu('v_xor_b32',x,x,t), valu('v_add_u32',x,1024,x))
        e(valu('v_lshrrev_b32',t,1,c), valu('v_mul_u32_u24',t,36,t), valu('v_xor_b32',k,k,t), valu('v_lshlrev_b32',k,4,k), valu('v_and_b32',t,1,c), valu('v_lshl_add_u32',k,t,3,k))
        e(valu('v_and_b32',t,16,vL), valu('v_cmp_eq_u32','vcc',0,t), valu('v_cndmask_b32',k,x,k), valu('v_add_u32',vVA[n],WB,k))
def addr_fin():
    t,u,p,rp,a,b=vT[0],vT[1],vT[4],vT[5],vT[6],vT[3]
    lane_rp(rp,p,t)
    e(salu('s_and_b32',sT0,sW,1), salu('s_lshr_b32',sT1,sW,1), salu('s_mul_i32',sT2,sT0,20), salu('s_lshl_b32',sT3,sT1,3), salu('s_add_u32',sT2,sT2,sT3), valu('v_add_u32',a,sT2,rp),
      salu('s_mul_i32',sT2,sT0,144), salu('s_mul_i32',sT3,sT1,36), salu('s_add_u32',sT2,sT2,sT3), salu('s_add_u32',sT2,sT2,16),
      valu('v_lshrrev_b32',t,2,rp), valu('v_mul_u32_u24',t,72,t), valu('v_and_b32',b,3,rp), valu('v_add3_u32',b,b,t,sT2))
    e(salu('s_and_b32',sT0,sIDX,7), salu('s_lshl_b32',sT1,sT0,7), valu('v_lshl_add_u32',u,p,4,sT1),
      valu('v_mul_u32_u24',t,1152,a), valu('v_add_u32',vWO,t,u), valu('v_mul_u32_u24',t,1152,b), valu('v_add_u32',vWOE,t,u))
    e(salu('s_lshr_b32',sT2,sT0,1), salu('s_lshl_b32',sT2,sT2,5), salu('s_add_u32',sT2,sT2,1024), valu('v_and_b32',u,1,p), valu('v_lshl_add_u32',u,u,4,sT2), valu('v_lshrrev_b32',p,1,p),
      valu('v_mul_u32_u24',t,36,p), valu('v_add_u32',t,t,a), valu('v_mul_u32_u24',t,1152,t), valu('v_add_u32',vWX,t,u),
      valu('v_mul_u32_u24',t,288,p), valu('v_add_u32',t,t,b), valu('v_mul_u32_u24',t,1152,t), valu('v_add_u32',vWXE,t,u))
    e(salu('s_lshr_b32',sT3,sIDX,3), salu('s_lshl_b32',sT3,sT3,2), salu('s_add_u32',sT3,sT3,sW), salu('s_lshl_b32',sSO3,sXC,4), salu('s_add_u32',sT3,sT3,sSO3))
    tk,g=vT[4],vT[5]
    e(valu('v_and_b32',tk,15,vL), valu('v_lshrrev_b32',g,4,vL))
    e(salu('s_lshl_b32',sSO3,sT3,3), salu('s_add_u32',sSO3,sSO3,sT0), salu('s_lshl_b32',sSO3,sSO3,15), valu('v_lshl_add_u32',vPL,vL,4,sSO3))
    e(salu('s_xor_b32',sSC[0],sW,sT0), salu('s_lshl_b32',sSC[0],sSC[0],31))
    e(salu('s_lshl_b32',sSO3,sT3,2), salu('s_lshr_b32',sSC[1],sT0,1), salu('s_add_u32',sSO3,sSO3,sSC[1]), salu('s_lshl_b32',sSO3,sSO3,13), salu('s_or_b32',sSO3,sSO3,sSC[0]), valu('v_lshl_add_u32',vPLX,vL,3,sSO3))
    e(salu('s_lshl_b32',sSO3,sT3,4), valu('v_add_u32',a,sSO3,tk), valu('v_lshlrev_b32',vR2,2,a), valu('v_mul_u32_u24',a,1152,a), valu('v_lshl_add_u32',a,g,3,a),
      valu('v_add_u32',vXO,sT1,a), salu('s_or_b32',sT2,sT2,sSC[0]), valu('v_add_u32',vXOX,sT2,a))
    for q in range(4): e(cost(bload(XR[2*q:2*q+2],vXO,sX,0,32*q),260))
    e(cost(bload(XR[8:10],vXOX,sX,0),200))
    e(salu('s_and_b32',sSO3,sT3,1), salu('s_lshl_b32',sSO3,sSO3,4), valu('v_add_u32',a,sSO3,tk), salu('s_lshr_b32',sSC[1],sT3,1),
      salu('s_lshl_b32',sSO3,sSC[1],10), valu('v_lshl_add_u32',t,a,4,sSO3), valu('v_and_b32',u,1,g), valu('v_lshl_add_u32',t,u,9,t), valu('v_lshrrev_b32',u,1,g), valu('v_lshl_add_u32',vOL,u,16,t),
      salu('s_lshl_b32',sSO3,sSC[1],12), valu('v_lshl_add_u32',t,a,2,sSO3), valu('v_lshl_add_u32',vOLX,g,9,t))
    e(salu('s_lshr_b32',sSO3,sT3,2), salu('s_lshl_b32',sSO3,sSO3,12), salu('s_add_u32',sSO3,sSO3,WS_F3), valu('v_and_b32',t,31,vL), valu('v_lshl_add_u32',vF3L,t,7,sSO3))
    e(salu('s_lshr_b32',sSO3,sT3,1), salu('s_lshl_b32',sSO3,sSO3,11), salu('s_add_u32',sSO3,sSO3,WS_F2), valu('v_lshl_add_u32',vPG,tk,7,sSO3))
    e(salu('s_lshl_b32',sT0,sM8,2), salu('s_add_u32',sT0,sT0,sW), salu('s_lshl_b32',sT1,sT0,11), salu('s_lshl_b32',sT2,sH,16), salu('s_add_u32',sT1,sT1,sT2), salu('s_add_u32',sT1,sT1,WS_O),
      valu('v_lshl_add_u32',vOS,vL,4,sT1),
      salu('s_lshl_b32',sT1,sT0,13), salu('s_lshl_b32',sT2,sH,7), salu('s_add_u32',sT1,sT1,sT2), salu('s_add_u32',sT1,sT1,WS_OX),
      valu('v_lshl_add_u32',t,t,2,sT1), valu('v_lshrrev_b32',u,5,vL), valu('v_lshl_add_u32',vOSX,u,12,t))

def max_ops(x,srcs,m,first=True):
    o=[]
    regs=[s[r] for s in srcs for r in range(16)]
    if first: o.append(valu('v_max3_f32',m,regs[0],regs[1],regs[2])); rest=regs[3:]
    else: rest=regs
    while len(rest)>=2: o.append(valu('v_max3_f32',m,m,rest[0],rest[1])); rest=rest[2:]
    if rest: o.append(valu('v_max_f32',m,m,rest[0]))
    return o
def set_shift(x,m,t,margin):
    return [valu('v_mov_b32',t,m), swap('v_permlane32_swap_b32',m,t), valu('v_max_f32',m,m,t), valu('v_sub_f32',m,f32(-margin) if margin else 0,m),
            valu('v_cvt_pk_bf16_f32',t,m,m), valu('v_lshlrev_b32',t,16,t), valu('v_sub_f32',t,m,t), valu('v_cvt_pk_bf16_f32',t,m,t),
            valu('v_cmp_gt_u32','vcc',32,vL), valu('v_cndmask_b32',QE[x][1],0,t)]

def attention(g0,kv,WB,wo_items):
    base=g0+100
    pipe[0]=0; pipe[1]=44
    def kread(tau):
        it=kv[tau>>3]; off=it.addr-WB+(tau&7)*1280; src=(it.name,it.blks())
        return [dsr('ds_read_b128',KM[tau%3],vKM,off,src=src), dsr('ds_read_b64',KE[tau%3],vKE,off,src=src)]
    def vread(tau,n):
        it=kv[tau>>3]; off=it.addr-WB+10240+(tau&7)*1280
        return dsr('ds_read_b64_tr_b16',VV[tau&1][2*n:2*n+2],vVA[n],off,src=(it.name,it.blks()))
    def E(n,buf=None): return m32x8(buf or SB[n%3],KE[(n>>1)%3],QE[n&1],0)
    def M(n,buf=None): b=buf or SB[n%3]; return m32(b,KM[(n>>1)%3],QM[n&1],b)
    def PV(n,h): return smf(OO[n&1],VV[(n>>1)&1][4*h:4*h+4],SB[n%3][8*h:8*h+8],vIDX)
    def flush(n,names=('ctr','epi','low','dma','ld')):
        k=0
        while k<n:
            for nm in names:
                x=head(nm,cur[0])
                if x is not None: take(nm,cur[0]); break
            else: return
            k+=1
    cur[0]=g0
    flush(1000,('low','ld'))
    e(valu('v_mov_b32',QE[1][0],vT[2]), valu('v_mov_b32',QE[0][1],0), valu('v_mov_b32',QE[1][1],0))
    e(waitfor(vm=QM+KM[:2]+KE[:2]+[QE[0]],vmtags=[kv[0].name],lgall=True), barrier())
    cur[0]=g0+10
    bufs=[SB[1],SB[2],SB[3],SB[4]]
    for k,n in enumerate((0,2,1,3)):
        e(E(n,bufs[k])); flush(5,('epi',)); e(M(n,bufs[k]));
        e(vread(0,k)); flush(4,('epi',))
    flush(1000,('epi',))
    mx=[vT[0],vT[1]]
    e(*max_ops(0,bufs[0:2],mx[0])); e(*set_shift(0,mx[0],vT[3],MARGIN))
    e(*max_ops(1,bufs[2:4],mx[1])[:4])
    e(E(0)); e(*max_ops(1,bufs[2:4],mx[1])[4:10]); e(M(0)); e(*max_ops(1,bufs[2:4],mx[1])[10:]); e(*set_shift(1,mx[1],vT[3],MARGIN))
    stamp('att')
    barx={7:[it.name for it in wo_items]}; f2done=[False]; wcut=[0,4,14,23,23,23,23,23]
    for n in range(128):
        tau=n>>1
        if 'ast' in OPT and n in range(*map(int,OPT['ast'].split(':'))): stamp(f'slot{n}',True)
        ms=[E(n+1) if n<127 else None, M(n+1) if n<127 else None, PV(n-1,1) if n>0 else None, PV(n,0)]
        if n&1: rds=[None]+[vread(tau+1,k) if tau+1<64 else None for k in range(1,4)]
        else: rds=[None]+(kread(tau+2) if tau+2<64 else [None,None])+[vread(tau+1,0) if tau+1<64 else None]
        sg=(n+5)//16 if (n+5)%16==0 and n+5<128 else None
        for k in range(4):
            gap=base+4*n+k; cur[0]=gap
            if ms[k] is not None: e(ms[k])
            nsc={0:0,1:1,2:2,3:2}[k]
            fx=(k==1 and n%2==0) or (k==2 and sg is not None)
            vmn=vm_ready(gap,1,OPT['astgap'],('st','dma','ld','low')) if (not fx and k>0 and ms[k] is not None) else None
            if vmn: take(vmn,gap)
            else:
                if k==1 and n%2==0: e(waitfor(lg=[VV[tau&1],KM[(tau+1)%3],KE[(tau+1)%3]])); nsc-=1
                if k==2 and sg is not None:
                    e(waitfor(vmtags=[kv[sg].name]+barx.get(sg,[])), barrier()); nsc-=2
                    if sg+1<8: push('dma',gap,kv[sg+1].mk(kv[sg+1]))
                    for it in wo_items[wcut[sg-1]:wcut[sg]]: push('dma',gap,it.mk(it))
                while nsc>0 and pull(gap,True): nsc-=1
            if rds[k] is not None: e(rds[k])
            x=head('ld',gap)
            if x is not None and x.kind=='valu': take('ld',gap)
            for r in range(4): e(valu('v_exp_f32',SB[n%3][4*k+r],SB[n%3][4*k+r]))
        if not fifo['st'] and not f2done[0]:
            f2done[0]=True; print('partial stores end at slot',n)
            push('st',gap+4*OPT['f2lag'],[waitfor(vmtags=['pst']), bstore(vONE,vF1,sWS,0,flags='sc1')])
        if n==OPT['f2poll']:
            ld=bload(vPOLL,vPG,sWS,0,flags='sc1')
            push('ld',gap,[ld])
            t0=base+4*OPT['f2chk']
            push('ld',t0,[waitfor(vm=[vPOLL])]+spin('f2',ld,1))
            ops=[]
            for k in range(32):
                if k%8==0: ops+=base_add(sBL,sWS,WS_P+k*1024+4096)
                ops.append(gload(PART[k],vPL,sBL,(k%8)*1024-4096,flags='sc1'))
                if k%2==1:
                    z=k>>1
                    if z%8==0: ops.append(salu('s_mov_b32',sSO3,WS_PX+z*512))
                    ops.append(bload(PARTX[z],vPLX,sWS,sSO3,(z%8)*512,flags='sc1'))
            nl=0
            for o in ops:
                push('ld',t0+int(nl*OPT['ldgap']),[o])
                if o.kind=='vld': nl+=1
    cur[0]=base+600
    e(PV(127,1))
    print('left after attention:',{k:len(v) for k,v in fifo.items()})
    flush(1000,('dma','ld','st','low'))

def fallback(kv,WB):
    global P
    save=P; P=[]
    pb=kv[5].addr
    a=[V(128+n) for n in range(6)]; vo=V(134); mx=[V(135),V(136)]; t=V(137)
    e(label('L_fb'), raw('s_waitcnt vmcnt(0) lgkmcnt(0)','misc'), raw('s_nop 15','misc'))
    for d,s in zip(a,[vKM,vKE]+vVA): e(valu('v_add_u32',d,sW5K,s))
    e(valu('v_lshlrev_b32',vo,4,vL), valu('v_mov_b32',QE[0][1],0), valu('v_mov_b32',QE[1][1],0), valu('v_mov_b32',mx[0],0xff800000), valu('v_mov_b32',mx[1],0xff800000))
    off=pb-WB
    for ps in range(2):
        e(salu('s_add_u32',sT0,sH,32), salu('s_mul_i32',sT0,sT0,SL), salu('s_add_u32',sT1,sT0,32*SL), salu('s_mov_b32',sT2,64), label(f'L_fbl{ps}'))
        e(salu('s_add_u32','m0',sW5K,pb), dma(vo,sWS,sT0,0,flags='sc1'), dma(vo,sWS,sT0,1024,flags='sc1'))
        if ps: e(salu('s_add_u32','m0',sW5K,pb+2560), dma(vo,sWS,sT1,0,flags='sc1'), dma(vo,sWS,sT1,1024,flags='sc1'))
        e(waitfor(vmall=True), dsr('ds_read_b128',KM[0],a[0],off), dsr('ds_read_b64',KE[0],a[1],off))
        if ps:
            for n in range(4): e(dsr('ds_read_b64_tr_b16',VV[0][2*n:2*n+2],a[2+n],off+2560))
        e(waitfor(lgall=True))
        for x in range(2): e(m32x8(SB[x],KE[0],QE[x],0), m32(SB[x],KM[0],QM[x],SB[x]))
        for x in range(2):
            if ps==0: e(*max_ops(x,[SB[x]],mx[x],first=False))
            else:
                for r in range(16): e(valu('v_exp_f32',SB[x][r],SB[x][r]))
                for h in range(2): e(smf(OO[x],VV[0][4*h:4*h+4],SB[x][8*h:8*h+8],vIDX))
        e(raw('s_nop 15','misc'), salu('s_add_u32',sT0,sT0,1280), salu('s_add_u32',sT1,sT1,1280), salu('s_sub_u32',sT2,sT2,1), salu('s_cmp_lg_u32',sT2,0), raw(f's_cbranch_scc1 L_fbl{ps}','misc'))
        if ps==0:
            for x in range(2):
                e(*set_shift(x,mx[x],t,0.0))
                for r in range(16): e(valu('v_accvgpr_write_b32',OO[x][r],0))
    for x in range(2):
        for r in range(11): e(valu('v_accvgpr_read_b32',SB[x][r],OO[x][r]))
    e(raw('s_nop 3','misc'), raw('s_branch L_fb_ret','misc'))
    OUT.extend(i.text for i in finalize(P,verbose=0,name='fb'))
    P=save

def final(g0,wo_main,wo_x):
    cur[0]=g0
    T=[SB[0],SB[1]]
    SA=V(56,20); DN=V(76,20); SEL=V(96,8); tmp=V(104,8)
    m,g,x0,x1=tmp[0],tmp[1],SEL[2],SEL[3]
    e(*sel_ops(x0,x1,m,g))
    for x in range(2):
        for r in range(11): e(valu('v_accvgpr_read_b32',T[x][r],OO[x][r]))
    for x in range(2):
        s=tmp[2+x]
        e(valu('v_add_f32_e64',s,f'|{T[x][0]}|',f'|{T[x][1]}|'))
        for r in range(2,10): e(valu('v_add_f32_e64',s,s,f'|{T[x][r]}|'))
    e(valu('v_min_f32',tmp[4],tmp[2],tmp[3]), valu('v_add_f32',tmp[2],tmp[2],tmp[3]), valu('v_add_f32',tmp[3],T[0][10],T[1][10]), valu('v_add_f32',tmp[2],tmp[2],tmp[3]),
      valu('v_cmp_nle_f32','vcc',f32(2.0**-100),tmp[4]), raw('s_cbranch_vccnz L_fb','misc',['vcc']),
      valu('v_cmp_nge_f32','vcc',f32(2.0**126) if not OPT['forcefb'] else f32(-1.0),tmp[2]), raw('s_cbranch_vccnz L_fb','misc',['vcc']), label('L_fb_ret'))
    e(swap('v_permlane32_swap_b32',T[0][10],T[1][10]), valu('v_rcp_f32',tmp[2],T[0][10]), valu('v_mov_b32',tmp[3],tmp[2]), swap('v_permlane32_swap_b32',tmp[2],tmp[3]))
    for x in range(2):
        for r in range(10): e(valu('v_mul_f32',T[x][r],tmp[2+x],T[x][r]))
        for d in range(5): e(valu('v_cvt_pk_bf16_f32',T[x][d],T[x][2*d],T[x][2*d+1]))
        e(gstore(T[x][0:4],vOS,sWS[0:2],x*1024,flags='sc1',tag='ost'))
    e(swap('v_permlane32_swap_b32',T[0][4],T[1][4]), gstore(T[0][4],vOSX,sWS[0:2],flags='sc1',tag='ost'))
    stamp('o stored')
    e(valu('v_mov_b32',SEL[0],0), valu('v_mov_b32',SEL[1],0), valu('v_mov_b32',SEL[4],x0), valu('v_mov_b32',SEL[5],x1), valu('v_mov_b32',SEL[6],0), valu('v_mov_b32',SEL[7],0))
    pool_=[V(112+4*n,4) for n in range(16)]+[V(208+4*n,4) for n in range(12)]+[V(176+4*n,4) for n in range(8)]
    npre=len(pool_)
    pool_+=[A(72+4*n,4) for n in range(42)]
    frs=[]; rds=[]
    for s in range(18):
        for q in range(5):
            f=pool_[len(frs)%len(pool_)]; frs.append(f)
            for u in range(2): rds.append(tr_read(f,u,wo_main[s],q) if q<4 else tr_read(f,u,wo_x[s>>2],s&3))
    red=[]
    for pr in range(2):
        for z in range(2):
            d=DN[8*pr+4*z:8*pr+4*z+4]
            for j in range(16): red.append(m16(d,SEL[4:8] if z==0 else SEL[0:4],PART[16*pr+j],0 if j==0 else d))
    for z in range(8): red.append(m16(DN[16:20],SEL[2:6],R('a',PARTX[2*z].b,4),0 if z==0 else DN[16:20]))
    e(waitfor(vm=PART+PARTX))
    ri=0
    nflag=OPT.get('flagat',30)
    for k,mm in enumerate(red):
        e(mm)
        if k==nflag: e(waitfor(vmall=True), bstore(vONE,vF3,sWS,0,flags='sc1')); stamp('flag')
        if k%4==3: e(waitfor(lg=frs[:max(0,ri//2-3)]))
        if ri<2*npre: e(rds[ri]); ri+=1
    pl=bload(vPOLL,vF3L,sWS,0,flags='sc1')
    e(pl)
    while ri<2*len(pool_):
        if ri%4==0: e(waitfor(lg=frs[:max(0,ri//2-4)]))
        e(rds[ri]); ri+=1
    for r in range(20): e(valu('v_mul_f32',DN[r],vR2,DN[r]))
    for r0 in range(0,20,8):
        rr=range(r0,min(20,r0+8))
        for r in rr: e(valu('v_mul_f32',tmp[r-r0],f32(-1.4426950408889634),DN[r]))
        for r in rr: e(valu('v_exp_f32',tmp[r-r0],tmp[r-r0]))
        for r in rr: e(valu('v_add_f32',tmp[r-r0],1.0,tmp[r-r0]))
        for r in rr: e(valu('v_rcp_f32',tmp[r-r0],tmp[r-r0]))
        for r in rr: e(valu('v_mul_f32',DN[r],tmp[r-r0],DN[r]))
    XV=V(96,10)
    for d in range(10): e(valu('v_accvgpr_read_b32',XV[d],XR[d]))
    e(*base_add(sBL,sWS,WS_OX), *base_add(sBD,sWS,WS_O))
    ofs=[V(30+n) for n in range(11)]+[V(14+n) for n in range(4)]
    for s in range(1,16): e(valu('v_add_u32',ofs[s-1],s*131072,vOL))
    stamp('ready')
    e(waitfor(vm=[vPOLL]), *spin('f3',pl,1))
    stamp('seen')
    OF=[A(4*s,4) for s in range(18)]
    for s in range(16): e(gload(OF[s],vOL if s==0 else ofs[s-1],sBD,flags='sc1'))
    for s in range(2):
        for r in range(4): e(gload(OF[16+s][r],vOLX,sBL,s*2048+r*128,flags='sc1'))
    k=0
    for s in range(18):
        e(waitfor(vm=[OF[s]],lg=frs[5*s:5*s+5]))
        for q in range(5):
            e(m16(SA[4*q:4*q+4],frs[k],OF[s],0 if s==0 else SA[4*q:4*q+4])); k+=1
            if ri<len(rds) and ri//2-len(pool_)<k-1: e(rds[ri]); ri+=1
    stamp('mm done')
    for q in range(5):
        for d in range(2):
            lo,hi=tmp[2+2*d],tmp[3+2*d]; x=XV[2*q+d]
            e(valu('v_lshlrev_b32',lo,16,x), valu('v_and_b32',hi,0xffff0000,x))
        for d in range(2):
            lo,hi=tmp[2+2*d],tmp[3+2*d]; r=4*q+2*d
            e(valu('v_fmac_f32',lo,SA[r],DN[r],rmw=True), valu('v_fmac_f32',hi,SA[r+1],DN[r+1],rmw=True), valu('v_cvt_pk_bf16_f32',SA[4*q+d],lo,hi))
        e(bstore(SA[4*q:4*q+2],vXO if q<4 else vXOX,sOUT,0,32*q if q<4 else 0))

def main():
    build_ffn()
    ngaps,bars,free=plan()
    L=OPT['look']
    best=None
    for a0 in range(0,26):
        fr=sorted((max(free[b] for b in range(a0+5*k,a0+5*k+5)),k) for k in range(3))
        key=(fr[0][0],fr[1][0])
        if best is None or key<best[0]: best=(key,a0,[k for _,k in fr])
    _,a0,order=best; WB=a0*4096
    print('attention window',best,'ngaps',ngaps,{k:groups[v].start for k,v in marks.items()})
    kv=[kv_item(s) for s in range(8)]
    for s,it in enumerate(kv): it.addr=(a0+5*order[s%3])*4096
    rest=[b for b in range(NB) if not a0<=b<a0+15]
    wo_main=[blk_item(('wo',s),vWO if s<16 else vWOE,sWO,36*s*1152 if s<16 else 288*(s-16)*1152) for s in range(18)]
    wo_x=[blk_item(('wx',n),vWX if n<4 else vWXE,sWO,144*n*1152 if n<4 else 0,buf=(n==4),c=320) for n in range(5)]
    for it,b in zip(wo_main+wo_x,rest): it.addr=b*4096

    def pst(name):
        if 'pst' in OPT: stamp(name,True)
    prologue(); pst('karg')
    pre0=[it for it in items if it.early==-3000]; pre1=[it for it in items if it.early==-2000]
    dq=[xdma(tt,l) for tt in range(2) for l in range(9)]+[it.mk(it) for it in pre0+pre1]
    for _ in range(OPT['x0n']): e(*dq.pop(0))
    pst('x0 issued')
    xr=[vM[0],vR[1]]; t,u=vT[2],vT[3]
    DT=[V(140+8*n,8) for n in range(3)]; CM=V(164,4); SUM=V(172,4); ONE4=V(176,4); SEL=V(180,6)
    prologue2()
    e(valu('v_and_b32',t,15,vL), valu('v_lshrrev_b32',u,1,t), valu('v_lshlrev_b32',t,7,t), valu('v_add_u32',t,sW18K,t),
      valu('v_lshrrev_b32',xr[0],4,vL), valu('v_xor_b32',xr[0],xr[0],u), valu('v_xor_b32',xr[1],4,xr[0]),
      valu('v_lshl_add_u32',xr[0],xr[0],4,t), valu('v_lshl_add_u32',xr[1],xr[1],4,t))
    for d in range(4): e(valu('v_mov_b32',ONE4[d],sONES))
    with collect() as ao:
        e(*sel_ops(SEL[0],SEL[1],t,u), valu('v_mov_b32',SEL[2],0), valu('v_mov_b32',SEL[3],0), valu('v_mov_b32',SEL[4],SEL[0]), valu('v_mov_b32',SEL[5],SEL[1]))
        addr_early(); addr_pf(); addr_qk()
    for _ in range(OPT['apre']): e(ao.pop(0))
    pst('pre')
    for _ in range(OPT['x1n']): e(*dq.pop(0))
    nx=len([o for o in dq if o[-1].meta['tag'][0]=='x'])
    if OPT['pf'] and OPT['pfpos']>=0: dq.insert(nx+OPT['pfpos'],pf_gu(0))
    e(raw('s_waitcnt lgkmcnt(0)','misc'))
    pst('addr')
    R0=[XC0[4*s_:4*s_+4] for s_ in range(18)]; X1=[XC1[4*s_:4*s_+4] for s_ in range(18)]
    def xread(tt,dst,l):
        return [waitfor(vmtags=[('x',tt,l)])]+[dsr('ds_read_b128',dst[s],xr[s&1],l*2048,src=(('x',tt,l),list(range(18*tt,18*tt+18))),private=True) for s in (2*l,2*l+1)]
    cq=[]; nm=[0]; nblk=[0]
    def mm(m,extra=()):
        e(m); nm[0]+=1
        if extra: e(*extra); return
        k=0
        while cq and k<2 and cq[0][0]<=nm[0]-3: e(cq.pop(0)[1]); k+=1
        while ao and k<2: e(ao.pop(0)); k+=1
    def stats(tt,fr,l,nvm,lim=99):
        ms=[]
        for s_ in (2*l,2*l+1): ms+=[m16(SUM,ONE4,fr[s_],0 if s_==0 else SUM), m16(GR[tt],fr[s_],fr[s_],0 if s_==0 else GR[tt])]
        for h in range(2):
            o=[]
            if dq and h<nvm and nblk[0]<min(lim,OPT['nblk']):
                o=dq.pop(0)
                if o[-1].meta['tag'][0] not in 'xp': nblk[0]+=1
            mm(ms[2*h],[x for x in o if x.kind=='salu']); mm(ms[2*h+1],[x for x in o if x.kind!='salu'])
    nc=[0]
    def centre(src,dst,after=(),ex=((),())):
        d=DT[nc[0]%3]; nc[0]+=1
        while any(set(c.rd)&set(d.regs()) for _,c in cq): e(cq.pop(0)[1])
        for h in range(2):
            mm(m16(d[4*h:4*h+4],SEL[2*h:2*h+4],src,CM),ex[h])
            for z in range(2): cq.append((nm[0],valu('v_cvt_pk_bf16_f32',dst[2*h+z],d[4*h+2*z],d[4*h+2*z+1])))
        for x in after: cq.append((nm[0],x))
    def mean(tt):
        dst=vM[1] if tt else t
        e(valu('v_mul_f32',MEAN[tt],f32(1/576),SUM[0]), valu('v_cvt_pk_bf16_f32',dst,MEAN[tt],MEAN[tt]), valu('v_lshlrev_b32',dst,16,dst))
        for d in range(4): e(valu('v_xor_b32',CM[d],0x80000000,dst))
    for l in range(10):
        if l<9: e(*xread(0,R0,l))
        if l==0: e(*dq.pop(0))
        for _ in range(OPT['afill'] if l<9 else 999):
            if ao: e(ao.pop(0))
        if l>0:
            e(waitfor(lg=R0[2*l-2:2*l])); stats(0,R0,l-1,int(str(OPT.get('w1','x111111111'))[l]),len(pre0))
        if str(l) in str(OPT.get('tch','x1468')): e(*touch())
        if l in (0,4,8): pst(f'x0 rd {l}')
    e(barrier())
    stamp('x0 read')
    e(raw('s_branch L_main','misc'), I('.p2align 12','comment'), label('L_main'))
    e(valu('v_add_u32',xr[0],73728,xr[0]), valu('v_add_u32',xr[1],73728,xr[1]))
    e(*xread(1,X1,0)); mean(0); pst('stat0')
    for l in range(9):
        for s_ in (2*l,2*l+1): centre(R0[s_],X0[s_],to_acc(s_) if s_>=NV0 else ())
        if l<8: e(*xread(1,X1,l+1))
        e(waitfor(lg=X1[2*l:2*l+2])); stats(1,X1,l,int(str(OPT.get('w2','x111122222'))[l+1]))
        if l in (3,8): pst(f'x1 rd {l}')
    while cq: e(cq.pop(0)[1])
    mean(1)
    reads=[f(it) for g in groups[:4] for it,f in g.rd][:L]
    n0=OPT['n0']
    for s_ in range(n0):
        ex=((),())
        if s_==n0-8: ex=((waitfor(vmtags=[it.name for it in items if it.bar==-L]), barrier()),()); stamp('x1 read'); pst('bar1')
        centre(X1[s_],X1[s_],ex=ex)
        if s_>n0-8:
            for z in range(2):
                if reads: e(reads.pop(0))
    assert not reads
    while cq: e(cq.pop(0)[1])
    e(waitfor(lg=groups[0].fr)); pst('go')
    for s_ in range(n0,18): push('ctr',0,centre_ops(X1[s_],1))
    for s_ in range(NV0): push('ctr',0,to_acc(s_))
    for o in dq: push('dma',-1,o)
    mx_=-1
    for it in items:
        mx_=max(mx_,it.early)
        if it.early>-2000: push('dma',it.early,it.mk(it),mx_)
    st=lambda k:groups[marks[k]].start
    def low(gap,f,*a):
        with collect() as o: f(*a)
        push('low',gap,o,gap)
    low(st('c0')+200,var_ops,0); low(st('c0')+200,var_ops,1)
    while OPT['touch'] and ntouch[0]<5:
        g_=max(60,ntouch[0]*700-OPT.get('tlead',500)); push('ctr',min(g_,ngaps-150),touch(),min(g_,ngaps-150))
    low(st('c1'),addr_mid); low(st('c1'),addr_mid2); low(st('qkv'),zero_o)
    low(st('c2'),addr_att,WB); low(st('c2'),addr_lds,WB)
    pt=[int(x) for x in OPT['pft'].split(',')]
    with collect() as od: addr_pfd()
    for g_,o in zip(pt,[pf_gu(1),pf_q(),pf_gu(2),pf_gu(3),pf_gu(4),od+pf_d(0),pf_d(1),pf_d(2)]): push('ld',g_,o,g_)
    low(st('c3'),pf_o)
    b1=[b for b in bars if b>st('c3')+60][0]
    bar_extra[b1]=['qkvst']
    ar=[salu('s_and_b32',sJH,S(2),1), salu('s_lshl_b32',sJH,sJH,7), salu('s_mov_b32',sJ128,1), salu('s_cmp_lg_u32',sW,0), raw('s_cbranch_scc1 L_arr','misc'),
        raw(f's_atomic_add {sJ128}, {sDBG[0:2]}, {sJH}','misc',sJ128.regs()+sJH.regs()), label('L_arr')]
    for x in ar[3:6]: x.meta['glue']=True
    push('low',b1,ar,b1)
    if OPT['stop']!='down':
        d0=st('down')
        low(b1,addr_z); low(b1,addr_fin); pass
        ld=bload(vPOLL,vZ,sDBG,0,flags='sc1')
        push('ld',d0+OPT['f1poll'],[ld],d0+OPT['f1poll'])
        with collect() as o: qk_loads(WB)
        push('ld',d0+OPT['f1poll']+80,[waitfor(vm=[vPOLL])]+spin('f1',ld,128)+o,d0+OPT['f1poll']+80)
        for s in range(2):
            early=max(free[b] for b in kv[s].blks())
            assert early>d0+300
            push('dma',early if early<LATE else ngaps+10,kv[s].mk(kv[s]),ngaps-1)
    emit_backbone(bars,{groups[v].start:k for k,v in marks.items() if k in ('c0','qkv','down')})
    stamp('down end')
    if OPT['stop']=='down':
        for nm in ('epi','st','low','dma'):
            for af,o in fifo[nm]: e(o)
    else:
        attention(ngaps,kv,WB,wo_main+wo_x)
        stamp('att end')
        final(ngaps+1000,wo_main,wo_x)
        fallback(kv,WB)
    finish()

def sizes(lines):
    import subprocess, re
    uniq=sorted(set(lines))
    src='.amdgcn_target "amdgcn-amd-amdhsa--gfx950"\n.text\nLX:\n'+'\n'.join(re.sub(r'L_codeend-L_pc-4','0x12345',re.sub(r'(s_branch|s_cbranch\w+) \w+',r'\1 0',u)) for u in uniq)+'\n'
    open('_sz.s','w').write(src)
    r=subprocess.run(['llvm-mc','-triple=amdgcn-amd-amdhsa','-mcpu=gfx950','-show-encoding','_sz.s'],capture_output=True,text=True)
    assert r.returncode==0,r.stderr[:2000]
    enc=re.findall(r'encoding: \[([^\]]*)\]',r.stdout)
    assert len(enc)==len(uniq),(len(enc),len(uniq))
    return {u:len(x.split(',')) for u,x in zip(uniq,enc)}
def page_stubs(out):
    sz=sizes([i.text for i in out if i.kind not in ('label','comment')])
    k0=[k for k,i in enumerate(out) if i.text=='L_main:'][0]
    print('entry part bytes',sum(sz.get(i.text,0) for i in out[:k0]))
    res=out[:k0+1]; off=0; pg=0; prev=None
    npg=4*ntouch[0]
    for k in range(k0+1,len(out)):
        i=out[k]
        if pg<npg and off>=4096*pg and not (prev is not None and prev.meta.get('glue')):
            good=prev is not None and prev.kind=='mfma' and i.kind in ('dsr','valu','trans')
            if good or off-4096*pg>=40 or pg==0:
                res+=[label(f'L_pg{pg}'), raw(f's_cbranch_execz L_tr{pg//4}')]; off+=4; pg+=1
        res.append(i); off+=sz.get(i.text,0)
        if i.kind not in ('label','comment'): prev=i
    print('main part bytes',off,'pages touched',pg,'of',-(-off//4096))
    while pg<npg: OUT.extend([f'L_pg{pg}:',f's_branch L_tr{pg//4}']); pg+=1
    return res
def finish():
    cur[0]=10**7
    if OPT['stamps']:
        e(raw('s_waitcnt lgkmcnt(0)','misc'), waitfor(vmall=True))
        stamp('drained'); e(raw('s_waitcnt lgkmcnt(0)','misc'))
        n=nstamp[0]
        for k in range(max(0,n-8),n): e(raw(f'v_writelane_b32 v13, s{64+2*(k%8)}, {k}','misc'))
        if 'padto' in OPT:
            e(raw('s_nop 1','misc'), raw(f'v_readlane_b32 s46, v13, {OPT["padto"]}','misc'), raw('s_nop 3','misc'))
            e(salu('s_add_u32',sT0,sT0,10000), label('L_pad'), raw('s_memrealtime s[98:99]','misc'), raw('s_waitcnt lgkmcnt(0)','misc'), salu('s_sub_u32',sT1,S(98),sT0), salu('s_cmp_lt_i32',sT1,0), raw('s_cbranch_scc1 L_pad','misc'))
        else:
            e(salu('s_lshl_b32',sT0,S(2),2), salu('s_add_u32',sT0,sT0,sW), salu('s_lshl_b32',sT0,sT0,8), salu('s_add_u32',sT0,sT0,WS_STAMP))
            e(valu('v_lshlrev_b32',V(1),2,vL), bstore(vST,V(1),sWS,sT0))
    check_order(P)
    out=finalize(P,verbose=OPT['v'],name='main')
    out=page_stubs(out)
    hdr=open('recurrent_scan__mha_block__glu_gated_reglu__prompt.s.ref').read().split('; Override launch')[0]
    txt=hdr+'; @launch grid=(256,1,1) block=(256,1,1) lds=163840\n.amdgcn_target "amdgcn-amd-amdhsa--gfx950"\n.text\n'
    txt+=f'.globl {NAME}\n.p2align 12\n.p2align 8\n.type {NAME},@function\n{NAME}:\n'
    txt+='\n'.join(i.text for i in out)+'\ns_endpgm\nL_codeend:\n'+'\n'.join(OUT)+'\ns_endpgm\n'
    txt+=f'''.section .rodata,"a"
.p2align 6
.amdhsa_kernel {NAME}
  .amdhsa_next_free_vgpr 512
  .amdhsa_next_free_sgpr 102
  .amdhsa_accum_offset 256
  .amdhsa_group_segment_fixed_size 0
  .amdhsa_kernarg_size 80
  .amdhsa_user_sgpr_count 2
  .amdhsa_user_sgpr_kernarg_segment_ptr 1
  .amdhsa_system_sgpr_workgroup_id_x 1
  .amdhsa_float_denorm_mode_32 3
.end_amdhsa_kernel
'''
    open(sys.argv[1],'w').write(txt)
    print('bytes',len(txt))
main()
```

```python
import re

class R:
    __slots__=('k','b','n')
    def __init__(s,k,b,n=1): s.k=k; s.b=b; s.n=n
    def __str__(s): return f'{s.k}{s.b}' if s.n==1 else f'{s.k}[{s.b}:{s.b+s.n-1}]'
    __repr__=__str__
    def regs(s): return [f'{s.k}{i}' for i in range(s.b,s.b+s.n)]
    def __getitem__(s,i):
        if isinstance(i,slice):
            a=i.start or 0; e=s.n if i.stop is None else i.stop
            assert 0<=a<e<=s.n,(s,i)
            return R(s.k,s.b+a,e-a)
        assert 0<=i<s.n,(s,i)
        return R(s.k,s.b+i,1)
def V(b,n=1): return R('v',b,n)
def A(b,n=1): return R('a',b,n)
def S(b,n=1): return R('s',b,n)

def regs_of(*ops):
    out=[]
    for o in ops:
        if isinstance(o,R): out+=o.regs()
        elif isinstance(o,str):
            m=o.strip('-|')
            if m in ('vcc','m0','exec','scc'): out.append(m)
            else:
                mm=re.fullmatch(r'([vas])(\d+)',m)
                if mm: out.append(m)
    return out

class I:
    __slots__=('text','kind','rd','wr','passes','meta')
    def __init__(s,text,kind,rd=(),wr=(),passes=0,**meta):
        s.text=text; s.kind=kind; s.rd=list(rd); s.wr=list(wr); s.passes=passes; s.meta=meta
    def __repr__(s): return s.text

def fmt(o):
    if isinstance(o,float): return repr(o)
    if isinstance(o,int): return str(o) if -16<=o<=64 else hex(o&0xffffffff)
    return str(o)

TRANS=('v_exp_f32','v_rcp_f32','v_rsq_f32','v_sqrt_f32','v_log_f32')
def valu(op,dst,*src,mods='',rmw=False):
    kind='trans' if op.replace('_e64','') in TRANS else ('dot' if op.startswith('v_dot') else 'valu')
    rd=regs_of(*src); wr=regs_of(dst)
    if rmw: rd+=wr
    if op.startswith('v_cndmask') and len(src)==2: rd.append('vcc'); src=src+('vcc',)
    t=f'{op} {fmt(dst)}, '+', '.join(fmt(x) for x in src)+(' '+mods if mods else '')
    m={}
    if kind=='dot': m['dotc']=regs_of(src[2]); m['op']=op
    if op.startswith('v_readfirstlane') or op.startswith('v_readlane'): m['lane_read']=True
    return I(t,kind,rd,wr,**m)
def swap(op,a,b): return I(f'{op} {a}, {b}','valu',regs_of(a,b),regs_of(a,b),perm=True)
def salu(op,dst,*src):
    wr=regs_of(dst)
    if op.startswith('s_cmp') or op.startswith('s_bitcmp'):
        return I(f'{op} {fmt(dst)}, '+', '.join(fmt(x) for x in src),'salu',regs_of(dst,*src),['carry'],scc=True)
    i=I(f'{op} {fmt(dst)}, '+', '.join(fmt(x) for x in src),'salu',regs_of(*src),wr)
    i.meta['scc']=not (op.startswith('s_mov') or op.startswith('s_mul_i32') or op.startswith('s_cselect'))
    return i
def raw(text,kind='misc',rd=(),wr=(),**m): return I(text,kind,rd,wr,**m)
def label(n): return I(n+':','label')
def mfma(op,d,a,b,c,passes):
    return I(f'{op} {d}, {a}, {b}, {fmt(c)}','mfma',regs_of(a,b,c),regs_of(d),passes,ab=regs_of(a,b),c=regs_of(c),d=str(d),cstr=str(c))
def m16(d,a,b,c): return mfma('v_mfma_f32_16x16x32_bf16',d,a,b,c,4)
def m32(d,a,b,c): return mfma('v_mfma_f32_32x32x16_bf16',d,a,b,c,8)
def m32x8(d,a,b,c): return mfma('v_mfma_f32_32x32x8_bf16',d,a,b,c,8)
def smf(d,a,b,idx):
    return I(f'v_smfmac_f32_32x32x32_bf16 {d}, {a}, {b}, {idx}','mfma',regs_of(a,b,idx,d),regs_of(d),8,ab=regs_of(a,b,idx),c=regs_of(d),d=str(d),cstr=str(d))
def dsr(op,d,addr,off=0,src=None,private=False):
    assert 0<=off<65536,off
    return I(f'{op} {d}, {addr}'+(f' offset:{off}' if off else ''),'dsr',regs_of(addr),regs_of(d),src=src,private=private)
def dsw(op,addr,data,off=0):
    return I(f'{op} {addr}, {data}'+(f' offset:{off}' if off else ''),'dsw',regs_of(addr,data),[])
def bload(d,voff,srd,soff,off=0,flags='',tag=None):
    n=d.n; op={1:'buffer_load_dword',2:'buffer_load_dwordx2',4:'buffer_load_dwordx4'}[n]
    assert 0<=off<4096
    return I(f'{op} {d}, {voff}, {srd}, {fmt(soff)} offen'+(f' offset:{off}' if off else '')+(' '+flags if flags else ''),'vld',regs_of(voff,srd,soff),regs_of(d),tag=tag)
def bstore(d,voff,srd,soff,off=0,flags='',tag=None):
    n=d.n; op={1:'buffer_store_dword',2:'buffer_store_dwordx2',4:'buffer_store_dwordx4'}[n]
    assert 0<=off<4096
    return I(f'{op} {d}, {voff}, {srd}, {fmt(soff)} offen'+(f' offset:{off}' if off else '')+(' '+flags if flags else ''),'vst',regs_of(d,voff,srd,soff),[],tag=tag,wide=regs_of(d) if n>2 else [])
def batomic(d,voff,srd,soff,off=0):
    return I(f'buffer_atomic_add {d}, {voff}, {srd}, {fmt(soff)} offen'+(f' offset:{off}' if off else ''),'vst',regs_of(d,voff,srd,soff),[],tag=None,wide=[])
def dma(voff,srd,soff,off=0,flags='',tag=None,dst=None,private=False):
    assert 0<=off<4096
    return I(f'buffer_load_dwordx4 {voff}, {srd}, {fmt(soff)} offen'+(f' offset:{off}' if off else '')+(' '+flags if flags else '')+' lds','dma',regs_of(voff,srd,soff,'m0'),[],tag=tag,dst=dst,private=private)
def gdma(voff,base,off=0,flags='',tag=None,dst=None,private=False):
    assert -4096<=off<4096
    return I(f'global_load_lds_dwordx4 {voff}, {base}'+(f' offset:{off}' if off else '')+(' '+flags if flags else ''),'dma',regs_of(voff,base,'m0'),[],tag=tag,dst=dst,private=private)
def gload(d,voff,base,off=0,flags='',tag=None):
    op={1:'global_load_dword',2:'global_load_dwordx2',4:'global_load_dwordx4'}[d.n]
    assert -4096<=off<4096
    return I(f'{op} {d}, {voff}, {base}'+(f' offset:{off}' if off else '')+(' '+flags if flags else ''),'vld',regs_of(voff,base),regs_of(d),tag=tag)
def gstore(d,voff,base,off=0,flags='',tag=None):
    op={1:'global_store_dword',2:'global_store_dwordx2',4:'global_store_dwordx4'}[d.n]
    assert -4096<=off<4096
    return I(f'{op} {voff}, {d}, {base}'+(f' offset:{off}' if off else '')+(' '+flags if flags else ''),'vst',regs_of(d,voff,base),[],tag=tag,wide=regs_of(d) if d.n>2 else [])
def base_add(dst,src,off):
    a=salu('s_add_u32',dst[0],src[0],off); b=salu('s_addc_u32',dst[1],src[1],0)
    b.rd.append('carry'); a.wr.append('carry')
    return [a,b]
def waitfor(lg=(),lgall=False,vm=(),vmtags=(),vmall=False):
    return I('WAIT','waitfor',lg=set(regs_of(*lg)),lgall=lgall,vm=set(regs_of(*vm)),vmtags=set(vmtags),vmall=vmall)
def barrier(): return I('s_barrier','barrier')

VALUK=('valu','trans','dot')
def finalize(ins, verbose=True, name=''):
    out=[]; lgq=[]; vmq=[]
    lastw={}
    lastc={}
    lastst={}
    stats=dict(auto_wait=0,nops=0,nopstates=0,maxvm=0,maxlg=0)
    pos=0
    nbar=0
    blk_read={}
    dma_done={}
    tag_pending={}
    blk_owner={}
    lastscc=[None]
    def emit(i,states=1):
        nonlocal pos
        out.append(i); pos+=states
    def do_wait(nlg,nvm):
        parts=[]
        if nvm is not None:
            assert nvm<=63
            parts.append(f'vmcnt({nvm})')
            while len(vmq)>nvm:
                e=vmq.pop(0); t=e.meta.get('tag')
                if e.kind=='dma' and t is not None:
                    tag_pending[t]-=1
                    if tag_pending[t]==0: dma_done[t]=nbar
        if nlg is not None:
            nlg=min(nlg,15)
            parts.append(f'lgkmcnt({nlg})')
            while len(lgq)>nlg:
                e=lgq.pop(0); e.meta['done']=nbar
        if parts: emit(I('s_waitcnt '+' '.join(parts),'wait'))
    def need(q,pred):
        last=-1
        for k,e in enumerate(q):
            if pred(e): last=k
        return None if last<0 else len(q)-1-last
    for i in ins:
        k=i.kind
        if k=='label' or k=='comment': out.append(i); continue
        if k=='reset':
            continue
        if k=='waitfor':
            m=i.meta
            nlg=need(lgq,lambda e:m['lgall'] or any(r in m['lg'] for r in e.wr))
            nvm=need(vmq,lambda e:m['vmall'] or any(r in m['vm'] for r in e.wr) or (e.meta.get('tag') in m['vmtags']))
            do_wait(nlg,nvm); continue
        touched=set(i.rd)|set(i.wr)
        nlg=need(lgq,lambda e:any(r in touched for r in e.wr))
        nvm=need(vmq,lambda e:any((r in touched) and not (i.meta.get('tag')=='pf' and e.meta.get('tag')=='pf') for r in e.wr))
        if nlg is not None or nvm is not None:
            stats['auto_wait']+=1
            if verbose: print(f'[{name}] auto wait lg={nlg} vm={nvm} before: {i.text}')
            do_wait(nlg,nvm)
        if k in ('dsr','dsw') and len(lgq)>=15:
            stats['lgfull']=stats.get('lgfull',0)+1
            do_wait(11,None)
        req=0; why=None
        def chk(ppos,n,w):
            nonlocal req,why
            d=n-(pos-ppos-1)
            if d>req: req=d; why=w
        isv=k in VALUK
        for r in i.rd:
            if r not in lastw: continue
            p,w=lastw[r]
            if w.kind=='mfma':
                big={4:8,8:12,16:20}[w.passes]
                if k=='mfma':
                    if r in i.meta['ab']: chk(p,big,'mfma->ab')
                    elif i.meta['cstr']==w.meta['d'] and i.passes==w.passes: pass
                    else: chk(p,w.passes+2,'mfma->c')
                else: chk(p,big,'mfma->rd')
            elif w.kind in VALUK:
                if k=='mfma': chk(p,2,'valu->mfma')
                if w.kind=='trans' and isv and k!='trans': chk(p,1,'trans')
                if w.kind=='dot':
                    if k=='dot' and i.meta['op']==w.meta['op'] and r in i.meta['dotc'] and i.rd.count(r)==1: pass
                    else: chk(p,3,'dot')
                if i.meta.get('perm'): chk(p,2,'perm')
                if i.meta.get('lane_read') and r[0]=='v' and r!='vcc': chk(p,1,'readlane')
                if r[0]=='s' or r=='vcc':
                    if isv: chk(p,2,'vsgpr->valu')
                    elif k in ('vld','vst','dma'): chk(p,5,'vsgpr->vmem')
                    else: chk(p,1,'vsgpr->salu')
            elif w.kind=='salu' and r=='m0' and k=='dma': chk(p,1,'m0')
        for r in i.wr:
            if r in lastw:
                p,w=lastw[r]
                if w.kind=='mfma':
                    if k=='mfma':
                        if not (i.meta['d']==w.meta['d'] and i.passes==w.passes): chk(p,w.passes+2,'mfma waw')
                    else: chk(p,{4:8,8:12,16:20}[w.passes],'mfma->wr')
                elif w.kind=='dot' and not (k=='dot' and i.meta['op']==w.meta['op']): chk(p,3,'dot waw')
            if r in lastc and isv: chk(lastc[r][0],lastc[r][1]-1,'c war')
            if r in lastst: chk(lastst[r],2,'store war')
        if req>0:
            stats['nops']+=1; stats['nopstates']+=req
            if verbose>1: print(f'[{name}] nop {req} ({why}) before: {i.text}')
            while req>0:
                n=min(req,16); emit(I(f's_nop {n-1}','nop'),n); req-=n
        if k=='dsr' and i.meta.get('src') is not None:
            tag,blks=i.meta['src']
            assert tag in dma_done and tag_pending[tag]==0, f'read of unfinished {tag}: {i.text}'
            if not i.meta.get('private'): assert dma_done[tag]<nbar, f'read of {tag} without barrier: {i.text}'
            for b in blks:
                assert blk_owner.get(b)==tag or i.meta.get('private'), f'block {b} owner {blk_owner.get(b)} != {tag}'
                blk_read.setdefault(b,[]).append(i)
        if k=='dma':
            t=i.meta.get('tag')
            if t is not None: tag_pending[t]=tag_pending.get(t,0)+1
            for b in (i.meta.get('dst') or ()):
                if blk_owner.get(b)!=t:
                    for e in blk_read.get(b,()):
                        assert 'done' in e.meta and (e.meta['done']<nbar or i.meta.get('private')), f'dma {t} overwrites block {b} still read: {e.text}'
                    blk_read[b]=[]
                    blk_owner[b]=t
        if 'carry' in i.rd: assert lastscc[0] is lastw['carry'][1], f'scc clobbered before {i.text} by {lastscc[0]}'
        if i.meta.get('scc'): lastscc[0]=i
        ppos=pos
        emit(i)
        if k=='barrier': nbar+=1
        if k in ('dsr','dsw'):
            lgq.append(i); stats['maxlg']=max(stats['maxlg'],len(lgq))
        if k in ('vld','vst','dma'):
            vmq.append(i); stats['maxvm']=max(stats['maxvm'],len(vmq))
            assert len(vmq)<=63, 'vmcnt overflow'
        for r in i.wr:
            lastw[r]=(ppos,i); lastc.pop(r,None)
        if k=='mfma':
            for r in i.meta['c']: lastc[r]=(ppos,i.passes)
        if k=='vst':
            for r in i.meta['wide']: lastst[r]=ppos
    if verbose: print(f'[{name}]',stats,'ninstr',len(out))
    return out

def check_order(ins):
    def deps(lst):
        lw={}; d={}
        for i in lst:
            d[id(i)]=(tuple(lw.get(r) for r in i.rd if r!='carry'),tuple(lw.get(r) for r in i.wr if r!='carry'))
            for r in i.wr: lw[r]=id(i)
        return d
    a=deps(ins); b=deps(sorted(ins,key=lambda i:i.meta['seq']))
    byid={id(i):i for i in ins}
    bad=0
    for i in ins:
        if a[id(i)]!=b[id(i)]:
            bad+=1
            if bad<10:
                print('ORDER VIOLATION',i.meta['seq'],i.text)
                for x,y in zip(a[id(i)][0]+a[id(i)][1],b[id(i)][0]+b[id(i)][1]):
                    if x!=y: print('    got',byid.get(x),'want',byid.get(y)); break
    assert bad==0, f'{bad} order violations'
```

```python
import sys, struct, contextlib
from asmlib import *

OPT=dict(stop='', stamps=0, pf=1, dmagap=3, look=13, stgap=20, n0=14, v=1, forcefb=0, astgap=6, f2lag=10, f2poll=54, f2chk=60, ldgap=5, dbgout=0, flagat=60, pollat=42, forceredo=0, lp1=20, lp2=70, nol=10, fsh=2, npoll=2, psleep=3, wopre=110, fillmm=40, ofl='', apre=60, x1n=2, afill=16, tlb=0, pfpos=6, pft='20,150,400,640,860,1000,1080,1160', swp=1, pfcost=160, pfgap=48, pf0=0, touch=1, x0n=3, nblk=14, f1poll=220, qstgap=20, back=96, pfc=1, bartr=0)
for a in sys.argv[2:]:
    k,v=a.split('='); OPT[k]=int(v) if v.lstrip('-').isdigit() else v
NAME='recurrent_scan__mha_block__glu_gated_reglu__prompt_kernel'

WS_QKV=0; SL=81920
WS_P=0x800000; WS_PX=0x2800000; WS_O=0x2C00000; WS_OX=0x2E00000; WS_F3=0x2E40000; WS_R2=0x2E60000; WS_F2=0x2E80000; WS_STAMP=0x2F00000
OOB=0x80000000
LDS_OOB=0x30000
def f32(x): return struct.unpack('<I',struct.pack('<f',x))[0]
QSCALE=18**-0.5*1.4426950408889634
MARGIN=80.0

sX,sWQ,sWO,sWG,sWU,sWD,sOUT,sDBG,sWS=[S(4+4*n,4) for n in range(9)]
sW,sW1K,sI,sJ,sH,sIDX,sT0,sT1,sSO,sSO2=[S(40+n) for n in range(10)]
sLO,sHI,sONES,sW7K,sW5K=[S(50+n) for n in range(5)]
sSC=[S(55),S(56),S(57)]
sW18K,sJ1,sXC,sM8,sT2,sT3=[S(58+n) for n in range(6)]
sJ128,sJH=S(3),S(94); sSO3=S(95); sXP,sXX=S(92),S(93)
sBD,sBL,sPC=S(96,2),S(98,2),S(100,2)
nstamp=[0]
def stamp(name,fine=False):
    if not OPT['stamps']: return
    if ('gst' in OPT or 'ast' in OPT or 'pst' in OPT) and not fine and name!='start': return
    n=nstamp[0]; nstamp[0]+=1
    assert n<64
    r=64+2*(n%8)
    if n>=8: e(raw(f'v_writelane_b32 v13, s{r}, {n-8}','misc'))
    e(raw(f'{"s_memrealtime" if OPT["stamps"]==1 else "s_memtime"} s[{r}:{r+1}]','misc'))
    print('stamp',n,name)

vL=V(0)
vT=[V(1+n) for n in range(8)]
vR=[V(9),V(10)]
vM=[V(11),V(12)]
vPF=A(255)
vST=V(13)
vGF,vGH,vDF,vDH=[V(14+n) for n in range(4)]
vTR=[[V(18+3*q+n) for n in range(3)] for q in range(4)]
vQK=[V(30+n) for n in range(7)]
vQM=[V(37+n) for n in range(3)]; vQE=[V(40+n) for n in range(3)]
vSM,vSE0,vSE1,vSCX=[V(43+n) for n in range(4)]
vPS,vPX=V(47),V(48)
vF1,vONE=V(49),V(50)
vPG,vF3,vPOLL=V(51),V(52),V(53)
vX=[V(168+n) for n in range(4)]
XC1=V(56,72)
BANK=[V(128,64),V(192,64)]
XC0=A(0,72); HH=A(72,72); FR=A(144,64)
vKM,vKE=V(30),V(31); vVA=[V(32+n) for n in range(4)]
vKV,vWO,vWOE,vWX,vWXE=[V(36+n) for n in range(5)]
vPL,vPLX,vOL,vOLX,vOS,vOSX=[V(41+n) for n in range(6)]
vIDX,vF3L=V(54),V(55)
vXO,vXOX,vR2,vZ=V(11),V(12),V(9),V(10)
QE=[V(14,2),V(16,2)]
QM=[A(0,4),A(4,4)]
OO=[V(128,16),V(144,16)]; SELA=A(208,8)
sOB=[S(80+2*n,2) for n in range(4)]
KM=[A(40+4*n,4) for n in range(3)]; KE=[A(52+2*n,2) for n in range(3)]
VV=[A(8,8),A(16,8)]
XR=A(240,10)
PART=[A(60+4*n,4) for n in range(32)]
PARTX=[A(188+2*n,2) for n in range(10)]+[A(24+2*n,2) for n in range(6)]
SB=[V(176+16*n,16) for n in range(5)]

P=[]
cur=[-10**6,0]
sink=[None]
def setseq(i,gap=None):
    if 'seq' not in i.meta:
        cur[1]+=1; i.meta['seq']=(cur[0] if gap is None else gap,cur[1])
    return i
def e(*x):
    for i in x:
        if sink[0] is not None: sink[0].append(i)
        else: P.append(setseq(i)); i.meta['at']=cur[0]
@contextlib.contextmanager
def collect():
    o=[]; old=sink[0]; sink[0]=o
    yield o
    sink[0]=old
fifo=dict(dma=[],st=[],ld=[],ctr=[],epi=[],low=[])
def push(q,after,ops,logical=None):
    for o in ops: fifo[q].append((after,setseq(o,logical)))
def masked(dst,val,cmpop,a,b,tmp):
    e(valu(cmpop,'vcc',a,b), valu('v_mov_b32',tmp,OOB), valu('v_cndmask_b32',dst,tmp,val))

def prologue():
    e(salu('s_cmp_ge_u32',S(2),256), raw('s_cbranch_scc0 L_go','misc'), raw('s_endpgm','misc'), label('L_go'))
    for srd,off in ((sX,0),(sWG,32),(sWU,40),(sWQ,8),(sWO,16),(sWD,48),(sOUT,56),(sDBG,64),(sWS,72)): e(raw(f's_load_dwordx2 {srd[0:2]}, s[0:1], {off}','misc'))
    stamp('start')
    e(valu('v_lshrrev_b32',vT[0],6,V(0)), valu('v_and_b32',vL,63,V(0)))
    e(salu('s_and_b32',sXC,S(2),7), salu('s_lshr_b32',sIDX,S(2),3))
    pf_code()
    e(valu('v_readfirstlane_b32',sW,vT[0]))
    e(salu('s_lshr_b32',sM8,sIDX,2), salu('s_lshl_b32',sI,sM8,1), salu('s_and_b32',sT2,sXC,1), salu('s_add_u32',sI,sI,sT2))
    e(salu('s_mul_i32',sW18K,sW,18432))
    vx0,vx1,row,t=vX[0],vX[1],vT[2],vT[3]
    e(salu('s_lshl_b32',sT2,sI,2), salu('s_add_u32',sT2,sT2,sW), salu('s_lshl_b32',sT2,sT2,5))
    e(valu('v_lshrrev_b32',row,3,vL), valu('v_lshrrev_b32',t,4,vL), valu('v_and_b32',vx0,7,vL), valu('v_xor_b32',vx0,vx0,t),
      valu('v_xor_b32',vx1,4,vx0), valu('v_add_u32',t,sT2,row), valu('v_mul_u32_u24',t,1152,t),
      valu('v_lshl_add_u32',vX[2],vx0,4,t), valu('v_lshl_add_u32',vX[3],vx1,4,t), valu('v_add_u32',vX[3],8*1152-1024,vX[3]),
      valu('v_add_u32',vx0,1920,vX[2]), valu('v_add_u32',vx1,1920,vX[3]))
    e(salu('s_lshr_b32',sJ,sXC,1), salu('s_lshl_b32',sJ,sJ,2), salu('s_and_b32',sT3,sIDX,3), salu('s_add_u32',sJ,sJ,sT3), salu('s_and_b32',sJ1,sJ,1))
    e(salu('s_mul_i32',sSO2,sJ1,18432*OPT['swp']))
    e(raw('s_waitcnt lgkmcnt(0)','misc'))
    e(salu('s_sub_u32',sBL[0],sX[0],1920), salu('s_subb_u32',sBL[1],sX[1],0), salu('s_add_u32',sBD[0],sBL[0],sSO2), salu('s_addc_u32',sBD[1],sBL[1],0))
def prologue2():
    if OPT['tlb']:
        e(salu('s_mov_b32',sT0,2<<20), salu('s_mov_b32',sT1,4<<20))
        for srd,n in ((sWG,3),(sWU,3),(sWQ,1),(sWD,3),(sWO,1),(sWS,1),(sOUT,2)):
            for k in range(n): e(raw(f's_load_dword s80, {srd[0:2]}, {["0",sT0,sT1][k]}','misc'))
    e(salu('s_sub_u32',sSO2,18432,sSO2), salu('s_add_u32',sBL[0],sBL[0],sSO2), salu('s_addc_u32',sBL[1],sBL[1],0))
    e(salu('s_mul_i32',sXP,sJ1,OPT['swp']<<18), salu('s_mul_i32',sXX,sJ1,OPT['swp']<<15))
    e(salu('s_lshl_b32',sH,sXC,2), salu('s_add_u32',sH,sH,sT3))
    e(salu('s_lshl_b32',sW1K,sW,10), salu('s_mul_i32',sW7K,sW,7168), salu('s_mul_i32',sW5K,sW,5120))
    for srd,n in ((sX,2048*1152),(sWQ,576*3456),(sWO,576*1152),(sWG,576*9216),(sWU,576*9216),(sWD,4608*1152),(sOUT,2048*1152),(sDBG,256),(sWS,0x10000000)):
        e(salu('s_mov_b32',srd[2],n), salu('s_mov_b32',srd[3],0x20000))
    e(salu('s_mov_b32',sLO,0x3f80), salu('s_mov_b32',sHI,0x3f800000), salu('s_mov_b32',sONES,0x3f803f80))
def addr_pf():
    row,t=vT[2],vT[3]
    e(salu('s_lshl_b32',sJ128,sJ1,7), salu('s_lshl_b32',sJH,sJ1,9), salu('s_sub_u32',sJH,512,sJH))
    e(salu('s_lshl_b32',sT0,sI,2), salu('s_add_u32',sT0,sT0,sW), salu('s_mul_i32',sT0,sT0,9*9216), salu('s_mul_i32',sT1,sJ,576), salu('s_and_b32',sT1,sT1,-128), salu('s_add_u32',sT0,sT0,sT1),
      valu('v_mul_u32_u24',t,9216,vL), valu('v_add_u32',t,sT0,t))
    masked(vPG,t,'v_cmp_gt_u32',9,vL,row)
    u=row
    e(valu('v_mul_u32_u24',t,7282,vL), valu('v_lshrrev_b32',t,16,t), valu('v_mul_u32_u24',u,9,t), valu('v_sub_u32',u,vL,u), valu('v_mul_u32_u24',u,3456,u), valu('v_lshl_add_u32',u,t,7,u),
      salu('s_lshl_b32',sT0,sI,2), salu('s_add_u32',sT0,sT0,sW), salu('s_mul_i32',sT0,sT0,9*3456), salu('s_mul_i32',sT1,sJ,216), salu('s_and_b32',sT1,sT1,-128), salu('s_add_u32',sT0,sT0,sT1),
      valu('v_add_u32',u,sT0,u))
    masked(vPOLL,u,'v_cmp_gt_u32',27,vL,t)
def pf_gu(c):
    if not OPT['pf']: return []
    return [cost(bload(vPF,vPG,s,sJ128 if c<4 else sJH,c*128 if c<4 else 0,tag='pf'),90) for s in (sWG,sWU)]
def pf_q(): return [cost(bload(vPF,vPOLL,sWQ,0,tag='pf'),270)] if OPT['pf'] else []
def addr_pfd():
    t,u=vT[4],vT[5]
    e(salu('s_lshl_b32',sT0,sI,2), salu('s_add_u32',sT0,sT0,sW), salu('s_mul_i32',sT0,sT0,81*64), salu('s_and_b32',sT0,sT0,-128), salu('s_mul_i32',sT1,sJ,288*1152), salu('s_add_u32',sT0,sT0,sT1),
      valu('v_lshl_add_u32',t,vL,7,sT0))
    masked(vPOLL,t,'v_cmp_gt_u32',14,vL,u)
def pf_d(k): return [cost(bload(vPF,vPOLL,sWD,0,k*14*128,tag='pf'),140)] if OPT['pf'] else []
def pf_o():
    if not OPT['pf']: return
    t,u=vT[4],vT[5]
    e(salu('s_lshl_b32',sT0,S(2),2), salu('s_add_u32',sT0,sT0,sW), salu('s_mul_i32',sT0,sT0,6*128), valu('v_lshl_add_u32',t,vL,7,sT0))
    masked(t,t,'v_cmp_gt_u32',6,vL,u)
    e(cost(bload(vPF,t,sWO,0,tag='pf'),60))
def cost(i,c): i.meta['cost']=c; return i
def xdma(tt,l):
    base=sBD if tt==0 else sBL
    o=[salu('s_add_u32','m0',sW18K,tt*73728+l*1920)] if l%2==0 else []
    for z in range(2): o.append(gdma(vX[2*(l&1)+z],base,(l&~1)*128+(2*(l&1)+z)*1024,tag=('x',tt,l),private=True))
    return o
def sel_ops(x0,x1,m,g):
    return [valu('v_bfe_u32',m,vL,2,2), valu('v_lshrrev_b32',g,4,vL), valu('v_cmp_eq_u32','vcc',m,g), valu('v_and_b32',m,1,vL), valu('v_lshlrev_b32',m,4,m), valu('v_lshlrev_b32',m,m,sLO),
      valu('v_cndmask_b32',m,0,m), valu('v_and_b32',g,2,vL), valu('v_cmp_eq_u32','vcc',0,g), valu('v_mov_b32',x1,m), valu('v_mov_b32',g,m),
      valu('v_cndmask_b32',x0,0,m), valu('v_sub_u32',x1,m,x0)]
ntouch=[0]
def touch():
    if not OPT['touch']: return []
    k=ntouch[0]; ntouch[0]+=1
    o=[raw('s_mov_b64 exec, 0','salu')]
    for w in range(3): o+=[salu('s_cmp_eq_u32',sW,w), raw(f's_cbranch_scc1 L_pg{4*k+w}','misc')]
    o+=[raw(f's_branch L_pg{4*k+3}','misc'), label(f'L_tr{k}'), raw('s_mov_b64 exec, -1','salu')]
    for x in o[:-1]: x.meta['glue']=True
    return o

def lane_rp(rp,p,t):
    e(valu('v_lshrrev_b32',rp,3,vL), valu('v_and_b32',t,6,rp), valu('v_and_b32',p,7,vL), valu('v_xor_b32',p,p,t))
def addr_early():
    rp,p,t,u,kA=vT[2],vT[3],vT[4],vT[5],vT[6]
    lane_rp(rp,p,t)
    e(salu('s_and_b32',sT0,sW,1), salu('s_lshl_b32',sT0,sT0,4), salu('s_lshr_b32',sT1,sW,1), salu('s_lshl_b32',sT1,sT1,2), salu('s_add_u32',sT0,sT0,sT1))
    e(valu('v_and_b32',t,4,rp), valu('v_add_u32',kA,rp,t), valu('v_add_u32',kA,sT0,kA))
    e(salu('s_mul_i32',sT1,sJ,288), salu('s_lshl_b32',sT2,sJ1,5), salu('s_add_u32',sT2,sT2,sT1))
    e(salu('s_lshl_b32',sT3,sJ1,8), salu('s_sub_u32',sT3,256,sT3), salu('s_add_u32',sT3,sT3,sT1))
    e(salu('s_lshl_b32',sT0,sT2,1), valu('v_mul_u32_u24',t,9216,kA), valu('v_lshl_add_u32',t,p,4,t), valu('v_add_u32',vGF,sT0,t))
    e(salu('s_lshl_b32',sT0,sT3,1), valu('v_lshrrev_b32',t,2,p), valu('v_lshl_add_u32',t,t,5,kA), valu('v_mul_u32_u24',t,9216,t),
      valu('v_and_b32',u,3,p), valu('v_lshl_add_u32',t,u,4,t), valu('v_add_u32',vGH,sT0,t))
    e(salu('s_lshl_b32',sT0,sW,3), valu('v_add_u32',t,sT0,rp), valu('v_add_u32',u,sT2,t), valu('v_mul_u32_u24',u,1152,u), valu('v_lshl_add_u32',vDF,p,4,u),
      valu('v_add_u32',u,sT3,t), valu('v_mul_u32_u24',u,1152,u), valu('v_lshl_add_u32',vDH,p,4,u))
    g,r4,c,b=vT[2],vT[3],vT[6],vT[7]
    e(valu('v_bfe_u32',r4,vL,2,3), valu('v_and_b32',c,3,vL), valu('v_lshrrev_b32',g,5,vL),
      valu('v_lshlrev_b32',b,10,g), valu('v_lshl_add_u32',b,r4,7,b), valu('v_lshl_add_u32',b,c,3,b), valu('v_lshrrev_b32',t,1,r4))
    for q in range(4):
        e(valu('v_xor_b32',u,q,t), valu('v_lshl_add_u32',vTR[q][0],u,5,b), valu('v_add_u32',vTR[q][1],0x10000,vTR[q][0]), valu('v_add_u32',vTR[q][2],0x20000,vTR[q][0]))
def addr_qk():
    t=vT[4]
    e(salu('s_mul_i32',sT0,sJ,216), salu('s_and_b32',sT0,sT0,-16), salu('s_mul_i32',sT1,sW,32*3456), salu('s_add_u32',sT0,sT0,sT1))
    for q in range(7):
        pp,rr,k=vT[2],vT[3],vT[6]
        e(valu('v_add_u32',pp,64*q,vL), valu('v_mul_u32_u24',rr,4682,pp), valu('v_lshrrev_b32',rr,16,rr),
          valu('v_mul_u32_u24',t,14,rr), valu('v_sub_u32',pp,pp,t),
          valu('v_and_b32',t,12,rr), valu('v_and_b32',k,3,rr), valu('v_lshl_add_u32',k,t,1,k), valu('v_lshrrev_b32',t,4,rr), valu('v_lshl_add_u32',k,t,2,k),
          valu('v_mul_u32_u24',k,3456,k), valu('v_lshl_add_u32',k,pp,4,k), valu('v_add_u32',vQK[q],sT0,k))
        if q%4: e(valu('v_subrev_u32',vQK[q],1024*(q%4),vQK[q]))
def extpos(dst,key,t):
    e(valu('v_and_b32',dst,7,key), valu('v_bfe_u32',t,key,4,1), valu('v_lshl_add_u32',dst,t,3,dst),
      valu('v_bfe_u32',t,key,3,1), valu('v_xor_b32',t,1,t), valu('v_lshl_add_u32',dst,t,4,dst))
def addr_mid():
    t,u,c=vT[4],vT[5],vT[6]
    e(valu('v_and_b32',c,3,vL), salu('s_lshl_b32',sT0,sJ1,3), valu('v_lshrrev_b32',t,2,vL), valu('v_mul_u32_u24',t,224,t), valu('v_add_u32',t,sT0,t),
      valu('v_lshl_add_u32',vQM[0],c,3,t), valu('v_mul_u32_u24',u,72,c), valu('v_add3_u32',vQE[0],t,u,32))
    for n in (1,2): e(valu('v_add_u32',vQM[n],n*0x10000,vQM[0]), valu('v_add_u32',vQE[n],n*0x10000,vQE[0]))
def addr_mid2():
    t,u,key,hf=vT[4],vT[5],vT[2],vT[3]
    e(salu('s_lshl_b32',sT0,sI,2), salu('s_add_u32',sT0,sT0,sW), salu('s_mul_i32',sT0,sT0,1280), salu('s_mul_i32',sT1,sJ,6*SL), salu('s_add_u32',sT0,sT0,sT1))
    e(salu('s_lshr_b32',sT1,sXX,11), valu('v_xor_b32',u,sT1,vL), valu('v_and_b32',key,31,u), valu('v_lshrrev_b32',hf,5,vL), valu('v_lshlrev_b32',t,2,hf), valu('v_xor_b32',t,t,u), valu('v_lshlrev_b32',t,4,t), valu('v_add_u32',vSM,sT0,t))
    extpos(u,key,t)
    e(valu('v_lshlrev_b32',u,3,u), valu('v_add_u32',u,sT0,u), valu('v_add_u32',u,1024,u), valu('v_mul_u32_u24',t,4*SL,hf), valu('v_add_u32',vSE0,u,t),
      valu('v_lshl_add_u32',vSE1,hf,31,u))
    e(salu('s_mul_i32',sT0,sJ,6), valu('v_lshrrev_b32',t,4,vL), valu('v_lshl_add_u32',t,t,1,sT0), valu('v_mov_b32',u,f32(QSCALE)), valu('v_cmp_gt_u32','vcc',32,t), valu('v_cndmask_b32',vSCX,1.0,u))
    for p_ in range(3): e(valu('v_readlane_b32',sSC[p_],vSCX,16*p_))
    e(salu('s_lshl_b32',sT0,sI,2), salu('s_add_u32',sT0,sT0,sW), salu('s_lshl_b32',sT1,sT0,9), salu('s_add_u32',sT1,sT1,sJ), salu('s_lshl_b32',sT1,sT1,10),
      valu('v_lshl_add_u32',vPS,vL,4,sT1),
      salu('s_lshl_b32',sT1,sT0,7), salu('s_add_u32',sT1,sT1,sJ), salu('s_lshl_b32',sT1,sT1,9), valu('v_lshl_add_u32',vPX,vL,3,sT1))
    e(valu('v_mov_b32',vONE,1))
    e(salu('s_lshl_b32',sT1,sT0,4), salu('s_add_u32',sT1,sT1,sJ), salu('s_lshl_b32',sT1,sT1,7), salu('s_add_u32',sT1,sT1,WS_F2), valu('v_mov_b32',t,sT1))
    masked(vF1,t,'v_cmp_eq_u32',0,vL,u)
    e(salu('s_lshl_b32',sT1,sM8,2), salu('s_add_u32',sT1,sT1,sW), salu('s_lshl_b32',sT1,sT1,3), salu('s_add_u32',sT1,sT1,sXC), salu('s_lshl_b32',sT1,sT1,9), salu('s_and_b32',sT2,sH,3), salu('s_lshl_b32',sT2,sT2,OPT['fsh']), salu('s_add_u32',sT1,sT1,sT2), salu('s_add_u32',sT1,sT1,WS_F3),
      valu('v_mov_b32',t,sT1))
    masked(vF3,t,'v_cmp_eq_u32',0,vL,u)
    e(valu('v_mov_b32',t,0), bstore(t,vF3,sWS,0,flags='sc1',tag='qkvst'), bstore(t,vF3,sWS,0,256,flags='sc1',tag='qkvst'), bstore(t,vF1,sWS,0,flags='sc1',tag='qkvst'))
    n4=V(2,4); a=vT[5]; b=vT[6]
    e(salu('s_lshl_b32',sT1,sM8,2), salu('s_add_u32',sT1,sT1,sW), salu('s_lshl_b32',sT2,sT1,6), salu('s_add_u32',sT2,sT2,sH), salu('s_lshl_b32',sT3,sT2,10), salu('s_add_u32',sT3,sT3,WS_O),
      valu('v_lshl_add_u32',a,vL,4,sT3), salu('s_lshl_b32',sT3,sT2,7), salu('s_add_u32',sT3,sT3,WS_OX), valu('v_and_b32',b,31,vL), valu('v_lshl_add_u32',b,b,2,sT3), valu('v_lshrrev_b32',n4[0],5,vL), valu('v_lshl_add_u32',b,n4[0],12,b))
    for d in range(4): e(valu('v_mov_b32',n4[d],-1))
    e(salu('s_mov_b32',sT3,32768), bstore(n4,a,sWS,0,flags='sc1',tag='qkvst'), bstore(n4,a,sWS,sT3,flags='sc1',tag='qkvst'), bstore(n4[0],b,sWS,0,flags='sc1',tag='qkvst'))
    e(valu('v_and_b32',key,16,vL), valu('v_cmp_eq_u32','vcc',0,key), valu('v_cndmask_b32',hf,vR[1],vR[0]), valu('v_mul_f32',hf,hf,hf),
      salu('s_lshl_b32',sT0,sT0,7), salu('s_add_u32',sT0,sT0,WS_R2), valu('v_lshl_add_u32',key,vL,2,sT0), salu('s_lshl_b32',sT1,sJ,6), valu('v_add_u32',t,sT1,vL))
    masked(key,key,'v_cmp_gt_u32',32,t,u)
    e(bstore(hf,key,sWS,0,flags='sc1',tag='qkvst'))
def pf_code():
    if not OPT['pfc']: return
    t=vT[4]; a=V(6,2)
    e(raw('s_getpc_b64 s[100:101]','salu',[],['s100','s101']), label('L_pc'),
      salu('s_lshl_b32',sT0,sIDX,2), valu('v_add_u32',t,sT0,vT[0]), valu('v_lshl_add_u32',t,vL,7,t), valu('v_lshlrev_b32',t,7,t),
      raw(f'v_min_u32 {t}, L_codeend-L_pc-4, {t}','valu',t.regs(),t.regs()),
      raw(f'v_add_co_u32 {a[0]}, vcc, {sPC[0]}, {t}','valu',t.regs()+['s100'],a[0].regs()+['vcc']), valu('v_mov_b32',a[1],sPC[1]), raw('s_mov_b64 exec, 63','salu'),
      raw(f'v_addc_co_u32 {a[1]}, vcc, 0, {a[1]}, vcc','valu',a[1].regs()+['vcc'],a[1].regs()+['vcc']),
      I(f'global_load_dword {vPF}, {a}, off','vld',a.regs(),vPF.regs(),tag='pf'), raw('s_mov_b64 exec, -1','salu'))

GR=[V(38,4),V(42,4)]; MEAN=[V(46),V(47)]
def var_ops(tt):
    d=GR[tt]; t=vT[4]; b=d[0]
    e(valu('v_and_b32',t,1,vL), valu('v_cmp_eq_u32','vcc',0,t), valu('v_and_b32',t,2,vL), valu('v_cndmask_b32',d[0],d[1],d[0]), valu('v_cndmask_b32',d[2],d[3],d[2]),
      valu('v_cmp_eq_u32','vcc',0,t), valu('v_bfe_u32',t,vL,2,2), valu('v_cndmask_b32',d[0],d[2],d[0]), valu('v_lshrrev_b32',d[1],4,vL), valu('v_cmp_eq_u32','vcc',t,d[1]),
      valu('v_cndmask_b32',b,0,b))
    for op in ('v_permlane16_swap_b32','v_permlane32_swap_b32'): e(valu('v_mov_b32',d[1],b), swap(op,b,d[1]), valu('v_add_f32',b,b,d[1]))
    e(valu('v_mul_f32',b,f32(1/576),b), valu('v_fma_f32',b,'-'+str(MEAN[tt]),MEAN[tt],b), valu('v_max_f32',b,0,b), valu('v_cvt_pk_bf16_f32',b,b,b), valu('v_lshlrev_b32',b,16,b),
      valu('v_add_f32',b,f32(1e-5),b), valu('v_cvt_pk_bf16_f32',b,b,b), valu('v_lshlrev_b32',b,16,b),
      valu('v_sqrt_f32',b,b), valu('v_cvt_pk_bf16_f32',b,b,b), valu('v_lshlrev_b32',b,16,b), valu('v_rcp_f32',vR[tt],b))
def centre_ops(f,tt):
    o=[]; t=V(252)
    for d in range(4):
        x=f[d]
        o+=[valu('v_lshlrev_b32',t,16,x), valu('v_and_b32',x,0xffff0000,x), valu('v_sub_f32',t,t,vM[tt]), valu('v_sub_f32',x,x,vM[tt]), valu('v_cvt_pk_bf16_f32',x,t,x)]
    return o
def to_acc(s): return [valu('v_accvgpr_write_b32',XC0[4*s+d],X0[s][d]) for d in range(4)]

class Item:
    def __init__(s,name,n,mk): s.name=name; s.n=n; s.mk=mk; s.addr=None; s.first=None; s.last=None
    def blks(s): return list(range(s.addr//4096,s.addr//4096+s.n))
def blk_item(name,voff,srd,soff,buf=False,c=80):
    def mk(it):
        o=[salu('s_add_u32','m0',sW1K,it.addr)]
        if buf: return o+[salu('s_mov_b32',sSO,soff), cost(dma(voff,srd,sSO,tag=it.name,dst=it.blks()),c)]
        return o+base_add(sBD,srd,soff)+[cost(gdma(voff,sBD,tag=it.name,dst=it.blks()),c)]
    return Item(name,1,mk)
def qkv_item(a):
    def mk(it):
        o=[salu('s_mov_b32',sSO,a*128*3456)] if a==4 else base_add(sBD,sWQ,a*128*3456)
        for q in range(7):
            if q%4==0: o.append(salu('s_add_u32','m0',sW7K,it.addr+q*1024))
            if a==4: o.append(dma(vQK[q],sWQ,sSO,(q%4)*1024,tag=it.name,dst=it.blks()))
            else: o.append(cost(gdma(vQK[q],sBD,(q%4)*1024,tag=it.name,dst=it.blks()),120))
        return o
    return Item(('q',a),7,mk)
def kv_item(sg):
    def mk(it):
        o=[]
        for q in range(5):
            if q%4==0: o+=[salu('s_add_u32','m0',sW5K,it.addr+q*1024)]+base_add(sBD,sWS,WS_QKV+sg*10240+q*1024)
            o.append(gdma(vKV,sBD,(q%4)*1024,flags='sc1',tag=it.name,dst=it.blks())); o[-1].rd.append('ok_f1')
        return o
    return Item(('kv',sg),5,mk)

class Group:
    def __init__(s): s.m=[]; s.rd=[]; s.bar=False; s.fr=[]
frp=[0]
def newfrag():
    f=FR[frp[0]:frp[0]+4]; frp[0]=(frp[0]+4)%FR.n; return f
def tr_read(f,u,it,seg):
    return dsr('ds_read_b64_tr_b16',f[2*u:2*u+2],vTR[seg][it.addr>>16],(it.addr&0xffff)+u*2048,src=(it.name,it.blks()))
def xc(tt,s): return (XC0 if tt==0 else XC1)[4*s:4*s+4]
def hfrag(k,tt): return HH[8*k+4*tt:8*k+4*tt+4]

items=[]; groups=[]; events=[]
def mm_group(srcs,accs,bfun,bar=False):
    g=Group(); g.bar=bar
    for it,seg,k in srcs:
        f=newfrag(); g.fr.append(f)
        for u in range(2): g.rd.append((it,lambda it,f=f,u=u,seg=seg: tr_read(f,u,it,seg)))
    for tt in range(2):
        for (it,seg,k),f in zip(srcs,g.fr):
            g.m.append(m16(accs[tt],f,bfun(k,tt),0 if k==0 else accs[tt]))
    groups.append(g); return len(groups)-1

def h_epilogue(bank,q,kout,half):
    gt=[bank[16*q+4*tt:16*q+4*tt+4] for tt in range(2)]; up=[bank[16*q+8+4*tt:16*q+12+4*tt] for tt in range(2)]
    o=[]
    for tt in range(2):
        for r in range(4): o.append(valu('v_max_f32',gt[tt][r],0,gt[tt][r]))
    for tt in range(2):
        for r in range(4): o.append(valu('v_mul_f32',up[tt][r],gt[tt][r],up[tt][r]))
        for d in range(2): o.append(valu('v_cvt_pk_bf16_f32',gt[tt][d],up[tt][2*d],up[tt][2*d+1]))
        for d in range(2): o.append(valu('v_accvgpr_write_b32',hfrag(kout,tt)[2*half+d],gt[tt][d]))
    return o
NV0=15
X0=[V(192+4*s,4) for s in range(NV0)]+[V(128+4*s,4) for s in range(18-NV0)]
def build_chunk(c,bank):
    xf=lambda k,tt: X0[k] if (c==0 and tt==0 and k<NV0) else xc(tt,k)
    for st in range(6):
        G=[blk_item(('g',c,3*st+n),vGF,sWG,(3*st+n)*32*9216+c*128) for n in range(3)]
        U=[blk_item(('u',c,3*st+n),vGF,sWU,(3*st+n)*32*9216+c*128) for n in range(3)]
        items.extend(G+U)
        for q in range(4):
            mm_group([(G[n],q,3*st+n) for n in range(3)],[bank[16*q+4*tt:16*q+4*tt+4] for tt in range(2)],xf,bar=(q==0))
        for q in range(4):
            gi=mm_group([(U[n],q,3*st+n) for n in range(3)],[bank[16*q+8+4*tt:16*q+12+4*tt] for tt in range(2)],xf,bar=(q==0 and (OPT['bartr'] or (c==0 and st<2))))
            if st==5: events.append((gi,h_epilogue(bank,q,2*c+(q>>1),q&1)))
def build_half(bank):
    for st in range(3):
        G=[blk_item(('gh',3*st+n),vGH,sWG,(3*st+n)*64*9216,c=150) for n in range(3)]
        U=[blk_item(('uh',3*st+n),vGH,sWU,(3*st+n)*64*9216,c=150) for n in range(3)]
        items.extend(G+U)
        seq=[(G,0,0),(G,0,1),(U,8,0),(U,8,1)] if st<2 else [(G,0,0),(U,8,0),(G,0,1),(U,8,1)]
        for z,(M,o,q) in enumerate(seq):
            for hh in range(2):
                ks=[6*st+3*hh+n for n in range(3)]
                gi=mm_group([(M[(k-6*st)>>1],2*(k&1)+q,k) for k in ks],[bank[16*q+o+4*tt:16*q+o+4+4*tt] for tt in range(2)],lambda k,tt:xc(tt,k),bar=(hh==0 and (z==0 or (z==2 and st<2 and OPT['bartr']))))
            if st==2 and o==8: events.append((gi,h_epilogue(bank,q,8,q)))
def build_qkv(bank):
    for a in range(5):
        it=qkv_item(a); items.append(it)
        first=True
        for k0 in range(0,4 if a<4 else 2,2):
            for t in range(7):
                g=Group(); g.bar=first; first=False
                for kk in (k0,k0+1):
                    f=newfrag(); g.fr.append(f)
                    for u in range(2):
                        def rd(it,f=f,u=u,kk=kk,t=t):
                            ad=it.addr+kk*7168+u*3584+(0 if t==6 else 72*(t>>1)+40*(t&1))
                            return dsr('ds_read_b64_tr_b16',f[2*u:2*u+2],(vQE if t==6 else vQM)[ad>>16],ad&0xffff,src=(it.name,it.blks()))
                        g.rd.append((it,rd))
                for tt in range(2):
                    acc=bank[8*t+4*tt:8*t+4*tt+4]
                    for n,kk in enumerate((k0,k0+1)):
                        k=4*a+kk
                        g.m.append(m16(acc,g.fr[n],xc(tt,k),0 if k==0 else acc))
                groups.append(g)
                if a==4: events.append((len(groups)-1,qkv_epilogue(bank,t)))
def st_pair(o,data,voff,soff,tag,x=None):
    a=salu('s_mov_b32',sSO2,soff) if x is None else salu('s_xor_b32',sSO2,x,soff); b=bstore(data,voff,sWS,sSO2,flags='sc1',tag=tag)
    dep=[x for x in o if x.kind=='valu'][-1]
    a.meta['q']='st'; b.meta['q']='st'; b.meta['dep']=dep
    o+=[a,b]
def qkv_epilogue(bank,t):
    o=[]
    sc=[bank[56],bank[57]]
    if t==6: o+=[valu('v_mul_f32',sc[tt],vSCX,vR[tt]) for tt in range(2)]
    elif t%2==0: o+=[valu('v_mul_f32',sc[tt],sSC[t>>1],vR[tt]) for tt in range(2)]
    a=bank[8*t:8*t+8]
    for tt in range(2):
        for r in range(4): o.append(valu('v_mul_f32',a[4*tt+r],sc[tt],a[4*tt+r]))
    if t<6:
        o+=[valu('v_cvt_pk_bf16_f32',a[0],a[0],a[1]), valu('v_cvt_pk_bf16_f32',a[1],a[2],a[3]), valu('v_cvt_pk_bf16_f32',a[2],a[4],a[5]), valu('v_cvt_pk_bf16_f32',a[3],a[6],a[7]),
            swap('v_permlane16_swap_b32',a[0],a[2]), swap('v_permlane16_swap_b32',a[1],a[3])]
        st_pair(o,a[0:4],vSM,WS_QKV+t*SL,'qkvst')
    else:
        o+=[valu('v_cvt_pk_bf16_f32',a[0],a[0],a[1]), valu('v_cvt_pk_bf16_f32',a[2],a[2],a[3]), valu('v_cvt_pk_bf16_f32',a[4],a[4],a[5]), valu('v_cvt_pk_bf16_f32',a[6],a[6],a[7])]
        o+=[valu('v_mov_b32',a[n],sONES) for n in (1,3,5,7)]
        o+=[swap('v_permlane16_swap_b32',a[0],a[4]), swap('v_permlane16_swap_b32',a[2],a[6])]
        for n,(vo,sl) in enumerate(((vSE0,0),(vSE0,1),(vSE1,2),(vSE1,3))):
            st_pair(o,a[2*n:2*n+2],vo,WS_QKV+sl*SL,'qkvst')
    return o
pool=[0]
def build_down():
    ntr=0
    for c,tr in [(0,0),(0,1),(1,0),(1,1),(0,2),(1,2)]+[(c,tr) for c in range(2,9) for tr in range(3)]:
        acc=V(192 if c==0 else 128+32*((c+1)%2),32)
        if True:
            B=[blk_item(('d',c,k),vDF if k<8 else vDH,sWD,(k*32*1152 if k<8 else 0)+c*128) for k in range(3*tr,3*tr+3)]
            items.extend(B)
            for q in range(4):
                gi=mm_group([(B[n],q,3*tr+n) for n in range(3)],[acc[16*tt+4*q:16*tt+4*q+4] for tt in range(2)],hfrag,bar=(q==0 and (ntr%2==0 or OPT['bartr'])))
                if tr==2 and q%2==1:
                    o=[]
                    for tt in range(2):
                        a=acc[16*tt+4*(q-1):16*tt+4*(q-1)+8]
                        d4=XC1[pool[0]:pool[0]+4]; pool[0]=(pool[0]+4)%72
                        o+=[valu('v_cvt_pk_bf16_f32',d4[d],a[2*d],a[2*d+1]) for d in range(4)]
                        if c<8: st_pair(o,d4,vPS,WS_P+(tt*16+c*2+(q>>1))*16384,'pst',sXP)
                        else:
                            for z in range(2): st_pair(o,d4[2*z:2*z+2],vPX,WS_PX+(tt*4+q-1+z)*8192,'pst',sXX)
                    events.append((gi,o))
            ntr+=1

marks={}
def build_ffn():
    marks['c0']=len(groups); build_chunk(0,BANK[0])
    marks['c1']=len(groups); build_chunk(1,BANK[1])
    marks['qkv']=len(groups); build_qkv(BANK[0])
    marks['c2']=len(groups); build_chunk(2,BANK[1])
    marks['c3']=len(groups); build_chunk(3,BANK[0])
    marks['half']=len(groups); build_half(V(224,32))
    marks['down']=len(groups); build_down()

NB=40; LATE=10**9
def plan():
    L=OPT['look']
    n=0; bars=[]
    for g in groups:
        g.start=n
        if g.bar: bars.append(n-L)
        for k,(it,_) in enumerate(g.rd):
            if it.first is None: it.first=n+k-L
            it.last=n-1
        n+=len(g.m)
    free={b:(-3000 if b>=36 else (-2000 if b<18 else -L)) for b in range(NB)}
    ptr=36
    for it in items:
        if ptr+it.n>NB: ptr=0
        it.addr=ptr*4096
        it.early=max(free[b] for b in it.blks())
        assert it.early<LATE
        it.bar=max(b for b in bars if b<=it.first)
        nxt=[b for b in bars if b>it.last]
        for b in it.blks(): free[b]=nxt[0] if nxt else LATE
        ptr=(ptr+it.n)%NB
    return n,bars,free

VM=('dma','vld','vst')
SC=('salu','waitfor','misc','label')
lastvm=dict(any=-100,st=-100)
def head(nm,gap):
    q=fifo[nm]
    if not q or q[0][0]>gap: return None
    x=q[0][1]; sq=x.meta['seq']; rd=set(x.rd)-{'carry'}; wr=set(x.wr)-{'carry'}
    for n2,q2 in fifo.items():
        if n2==nm: continue
        for _,y in q2:
            if y.meta['seq']>sq: break
            if rd&set(y.wr) or wr&set(y.rd) or wr&set(y.wr): return None
    return x
pipe=[0,16]
def vm_ready(gap,mingap,stgap,order=('st','ld','low','dma')):
    if gap-lastvm['any']<mingap: return None
    if pipe[0]-gap*pipe[1]>OPT['back']: return None
    for nm in order:
        x=head(nm,gap)
        if x is None or x.kind not in VM: continue
        if nm=='st':
            d=x.meta.get('dep')
            if gap-lastvm['st']<stgap or (d is not None and d.meta.get('at',LATE)>gap-2): continue
        return nm
    return None
def take(nm,gap):
    x=fifo[nm].pop(0)[1]
    if x.kind in VM:
        lastvm['any']=gap
        pipe[0]=max(pipe[0],gap*pipe[1])+x.meta.get('cost',80)
        if nm=='st': lastvm['st']=gap
    e(x)
    while x.meta.get('glue'):
        x=fifo[nm].pop(0)[1]; e(x)
    return x
def pull(gap,scalar):
    order=('dma','st','ctr','epi','ld','low')
    if scalar:
        for nm in order:
            x=head(nm,gap)
            if x is not None and 'carry' in x.rd: take(nm,gap); return True
    for nm in order:
        x=head(nm,gap)
        if x is None or x.kind in VM: continue
        if (x.kind in SC)!=scalar: continue
        take(nm,gap); return True
    return False

bar_extra={}
def emit_backbone(bars,gapstamps):
    L=OPT['look']
    reads=[(it,f,g.start-0.5) for g in groups for it,f in g.rd]
    ev={}
    for gi,ops in events: ev.setdefault(gi,[]).append(ops)
    bar_items={}
    for it in items: bar_items.setdefault(it.bar,[]).append(it.name)
    barset=set(bars); issue={}
    fixed={}
    for gi,g in enumerate(groups):
        for k in range(len(g.m)):
            gap=g.start+k; fx=[]
            w_lg=groups[gi+1].fr if (k==len(g.m)-1 and gi+1<len(groups)) else []
            w_vm=(bar_items.get(gap+1,[])+bar_extra.get(gap+1,[])) if gap+1 in barset else []
            if gap in barset: fx.append(barrier())
            if w_lg or w_vm: fx.append(waitfor(lg=w_lg,vmtags=w_vm))
            fixed[gap]=fx
    ri=[L]
    def rd():
        it,f,lg=reads[ri[0]]; ri[0]+=1; e(setseq(f(it),lg))
    planned=None
    for gi,g in enumerate(groups):
        for k,m in enumerate(g.m):
            gap=g.start+k; cur[0]=gap
            e(m)
            if gap in gapstamps: stamp(gapstamps[gap])
            if 'gst' in OPT and gap in range(*map(int,OPT['gst'].split(':'))): stamp(f'gap{gap}',True)
            if planned:
                x=take(planned,gap); planned=None
                if x.kind=='dma': issue[x.meta['tag']]=gap
                continue
            fx=fixed[gap]
            if fx: e(fx.pop(0))
            else: pull(gap,True)
            if ri[0]<len(reads) and ri[0]<=gap+L: rd()
            if fx: e(fx.pop(0)); continue
            if ri[0]<len(reads) and ri[0]<=gap+L: rd(); continue
            if gap+1 in fixed and not fixed[gap+1]: planned=vm_ready(gap+1,OPT['dmagap'],OPT['stgap'] if gap>=groups[marks['down']].start else OPT['qstgap'])
            if planned:
                if ri[0]<len(reads) and reads[ri[0]][0].bar<=gap: rd()
                continue
            if not pull(gap,False): pull(gap,True)
        for ops in ev.get(gi,[]):
            for o in ops: push(o.meta.get('q','epi'),gap+4,[o])
    sl=[(it.bar-issue[it.name],it.name) for it in items if it.name in issue]
    sl.sort(); print('min dma slack (gaps):',sl[:6])
    print('left after backbone:',{k:len(v) for k,v in fifo.items()})

OUT=[]
HOT=[]
def spin(name,load,expect):
    a=valu('v_cmp_gt_u32','vcc',expect,vPOLL); a.meta['glue']=True
    b=raw(f's_cbranch_vccnz L_spin_{name}','misc',['vcc']); b.meta['glue']=True
    c=label(f'L_back_{name}')
    cnt=vT[7]
    OUT.extend([f'L_spin_{name}:', f'v_mov_b32 {cnt}, 0x40000', f'L_spinl_{name}:', load.text, 's_waitcnt vmcnt(0)', f'v_cmp_gt_u32 vcc, {fmt(expect)}, {vPOLL}', 's_nop 1',
        f's_cbranch_vccz L_back_{name}', f'v_subrev_u32 {cnt}, 1, {cnt}', f'v_cmp_ne_u32 vcc, 0, {cnt}', 's_sleep 1', f's_cbranch_vccnz L_spinl_{name}', f's_branch L_back_{name}'])
    a.wr.append(cnt.regs()[0]); a.wr.append('ok_'+name)
    return [a,b,c]

def addr_att(WB):
    t,u,key,hf,p,rp=vT[0],vT[1],vT[2],vT[3],vT[4],vT[5]
    e(valu('v_and_b32',key,31,vL), valu('v_lshrrev_b32',hf,5,vL), valu('v_lshlrev_b32',t,2,hf), valu('v_xor_b32',t,t,vL), valu('v_lshlrev_b32',vKM,4,t))
    extpos(u,key,t)
    e(valu('v_lshlrev_b32',vKE,3,u), valu('v_add_u32',vKE,1024,vKE))
    e(salu('s_lshr_b32',sT0,sW,1), salu('s_lshl_b32',sT0,sT0,5), salu('s_add_u32',sT0,sT0,sH), salu('s_add_u32',sT0,sT0,32), salu('s_mul_i32',sT0,sT0,SL),
      salu('s_and_b32',sT1,sW,1), salu('s_mul_i32',sT1,sT1,5120), salu('s_add_u32',sT0,sT0,sT1), valu('v_lshl_add_u32',vKV,vL,4,sT0))
    e(valu('v_mov_b32',vIDX,0xdddd))
def addr_z(): e(valu('v_and_b32',vZ,1,vL), valu('v_lshlrev_b32',vZ,7,vZ))
def qk_loads(WB):
    t,u,hf=vT[0],vT[1],vT[3]
    e(salu('s_mov_b32',sSO3,WS_R2), cost(bload(vR2,vR2,sWS,sSO3,flags='sc1'),40))
    e(valu('v_lshrrev_b32',hf,5,vL), valu('v_lshl_add_u32',u,hf,31,vKE))
    e(salu('s_lshl_b32',sT0,sM8,2), salu('s_add_u32',sT0,sT0,sW), salu('s_mul_i32',sT0,sT0,2560), salu('s_mul_i32',sT1,sH,SL), salu('s_add_u32',sSO3,sT0,sT1))
    for x in range(2): e(bload(QM[x],vKM,sWS,sSO3,x*1280,flags='sc1'))
    e(cost(bload(QE[0][0],u,sWS,sSO3,0,flags='sc1'),40), cost(bload(vT[2],u,sWS,sSO3,1280,flags='sc1'),40))
    e(salu('s_add_u32',sSO3,sT1,32*SL))
    for x in range(2): e(bload(KM[x],vKM,sWS,sSO3,x*1280,flags='sc1'), cost(bload(KE[x],u,sWS,sSO3,x*1280,flags='sc1'),40))
    e(valu('v_add_u32',vKM,WB,vKM), valu('v_mul_u32_u24',t,LDS_OOB,hf), valu('v_add_u32',vKE,vKE,t), valu('v_add_u32',vKE,WB,vKE))
def zero_o():
    for x in range(2):
        for r in range(16): e(valu('v_mov_b32',OO[x][r],0))
def sel_acc():
    x0,x1,m,g=vT[0],vT[1],vT[4],vT[5]
    e(*sel_ops(x0,x1,m,g))
    for k,x in enumerate((0,0,x0,x1,x0,x1,0,0)): e(valu('v_accvgpr_write_b32',SELA[k],x))
def addr_lds(WB):
    t,hf=vT[0],vT[3]
    e(valu('v_lshrrev_b32',hf,5,vL))
    c,r,k,x=vT[4],vT[5],vT[6],vT[1]
    e(valu('v_and_b32',c,3,vL), valu('v_bfe_u32',r,vL,2,2), valu('v_lshl_add_u32',r,hf,3,r))
    for n in range(4):
        uu,y=n>>1,n&1
        e(valu('v_add_u32',k,16*uu+4*y,r))
        extpos(x,k,t)
        e(valu('v_lshlrev_b32',x,3,x), valu('v_min_u32',t,1,c), valu('v_mul_u32_u24',t,LDS_OOB+64,t), valu('v_xor_b32',x,x,t), valu('v_add_u32',x,1024,x))
        e(valu('v_lshrrev_b32',t,1,c), valu('v_mul_u32_u24',t,36,t), valu('v_xor_b32',k,k,t), valu('v_lshlrev_b32',k,4,k), valu('v_and_b32',t,1,c), valu('v_lshl_add_u32',k,t,3,k))
        e(valu('v_and_b32',t,16,vL), valu('v_cmp_eq_u32','vcc',0,t), valu('v_cndmask_b32',k,x,k), valu('v_add_u32',vVA[n],WB,k))
def addr_fin():
    t,u,p,rp,a,b=vT[0],vT[1],vT[4],vT[5],vT[6],vT[3]
    lane_rp(rp,p,t)
    e(salu('s_and_b32',sT0,sW,1), salu('s_lshr_b32',sT1,sW,1), salu('s_mul_i32',sT2,sT0,20), salu('s_lshl_b32',sT3,sT1,3), salu('s_add_u32',sT2,sT2,sT3), valu('v_add_u32',a,sT2,rp),
      salu('s_mul_i32',sT2,sT0,144), salu('s_mul_i32',sT3,sT1,36), salu('s_add_u32',sT2,sT2,sT3), salu('s_add_u32',sT2,sT2,16),
      valu('v_lshrrev_b32',t,2,rp), valu('v_mul_u32_u24',t,72,t), valu('v_and_b32',b,3,rp), valu('v_add3_u32',b,b,t,sT2))
    e(salu('s_and_b32',sT0,sIDX,7), salu('s_lshl_b32',sT1,sT0,7), valu('v_lshl_add_u32',u,p,4,sT1),
      valu('v_mul_u32_u24',t,1152,a), valu('v_add_u32',vWO,t,u), valu('v_mul_u32_u24',t,1152,b), valu('v_add_u32',vWOE,t,u))
    e(salu('s_lshr_b32',sT2,sT0,1), salu('s_lshl_b32',sT2,sT2,5), salu('s_add_u32',sT2,sT2,1024), valu('v_and_b32',u,1,p), valu('v_lshl_add_u32',u,u,4,sT2), valu('v_lshrrev_b32',p,1,p),
      valu('v_mul_u32_u24',t,36,p), valu('v_add_u32',t,t,a), valu('v_mul_u32_u24',t,1152,t), valu('v_add_u32',vWX,t,u),
      valu('v_mul_u32_u24',t,288,p), valu('v_add_u32',t,t,b), valu('v_mul_u32_u24',t,1152,t), valu('v_add_u32',vWXE,t,u))
    e(salu('s_lshr_b32',sT3,sIDX,3), salu('s_lshl_b32',sT3,sT3,2), salu('s_add_u32',sT3,sT3,sW), salu('s_lshl_b32',sSO3,sXC,4), salu('s_add_u32',sT3,sT3,sSO3))
    tk,g=vT[4],vT[5]
    e(valu('v_and_b32',tk,15,vL), valu('v_lshrrev_b32',g,4,vL))
    e(salu('s_lshl_b32',sSO3,sT3,3), salu('s_add_u32',sSO3,sSO3,sT0), salu('s_lshl_b32',sSO3,sSO3,15), valu('v_lshl_add_u32',vPL,vL,4,sSO3))
    e(salu('s_xor_b32',sSC[0],sW,sT0), salu('s_lshl_b32',sSC[0],sSC[0],31))
    e(salu('s_lshl_b32',sSO3,sT3,2), salu('s_lshr_b32',sSC[1],sT0,1), salu('s_add_u32',sSO3,sSO3,sSC[1]), salu('s_lshl_b32',sSO3,sSO3,13), salu('s_or_b32',sSO3,sSO3,sSC[0]), valu('v_lshl_add_u32',vPLX,vL,3,sSO3))
    e(salu('s_lshl_b32',sSO3,sT3,4), valu('v_add_u32',a,sSO3,tk), valu('v_lshlrev_b32',vR2,2,a), valu('v_mul_u32_u24',a,1152,a), valu('v_lshl_add_u32',a,g,3,a),
      valu('v_add_u32',vXO,sT1,a), salu('s_or_b32',sT2,sT2,sSC[0]), valu('v_add_u32',vXOX,sT2,a))
    for q in range(4): e(cost(bload(XR[2*q:2*q+2],vXO,sX,0,32*q),260))
    e(cost(bload(XR[8:10],vXOX,sX,0),200))
    e(salu('s_and_b32',sSO3,sT3,1), salu('s_lshl_b32',sSO3,sSO3,4), valu('v_add_u32',a,sSO3,tk), salu('s_lshr_b32',sSC[1],sT3,1),
      salu('s_lshl_b32',sSO3,sSC[1],15), valu('v_lshl_add_u32',t,a,4,sSO3), valu('v_lshl_add_u32',vOL,g,9,t),
      salu('s_lshl_b32',sSO3,sSC[1],12), valu('v_lshl_add_u32',t,a,2,sSO3), valu('v_lshl_add_u32',vOLX,g,9,t))
    e(salu('s_lshr_b32',sSO3,sT3,2), salu('s_lshl_b32',sSO3,sSO3,12), salu('s_add_u32',sSO3,sSO3,WS_F3), valu('v_bfe_u32',t,vL,2,3), valu('v_lshl_add_u32',t,t,9,sSO3), valu('v_and_b32',u,3,vL), valu('v_lshl_add_u32',vF3L,u,OPT['fsh'],t), valu('v_and_b32',t,31,vL))
    for n in range(4): e(*base_add(sOB[n],sWS,WS_O+8192*n+4096))
    e(*base_add(S(88,2),sWS,WS_O), *base_add(S(90,2),sWS,WS_O+32768))
    e(salu('s_lshr_b32',sSO3,sT3,1), salu('s_lshl_b32',sSO3,sSO3,11), salu('s_add_u32',sSO3,sSO3,WS_F2), valu('v_lshl_add_u32',vPG,tk,7,sSO3))
    e(salu('s_lshl_b32',sT0,sM8,2), salu('s_add_u32',sT0,sT0,sW), salu('s_lshl_b32',sT1,sT0,16), salu('s_lshl_b32',sT2,sH,10), salu('s_add_u32',sT1,sT1,sT2),
      valu('v_lshl_add_u32',vOS,vL,4,sT1),
      salu('s_lshl_b32',sT1,sT0,13), salu('s_lshl_b32',sT2,sH,7), salu('s_add_u32',sT1,sT1,sT2), salu('s_add_u32',sT1,sT1,WS_OX),
      valu('v_lshl_add_u32',t,t,2,sT1), valu('v_lshrrev_b32',u,5,vL), valu('v_lshl_add_u32',vOSX,u,12,t))

def max_ops(x,srcs,m,first=True):
    o=[]
    regs=[s[r] for s in srcs for r in range(16)]
    if first: o.append(valu('v_max3_f32',m,regs[0],regs[1],regs[2])); rest=regs[3:]
    else: rest=regs
    while len(rest)>=2: o.append(valu('v_max3_f32',m,m,rest[0],rest[1])); rest=rest[2:]
    if rest: o.append(valu('v_max_f32',m,m,rest[0]))
    return o
def set_shift(x,m,t,margin):
    return [valu('v_mov_b32',t,m), swap('v_permlane32_swap_b32',m,t), valu('v_max_f32',m,m,t), valu('v_sub_f32',m,f32(-margin) if margin else 0,m),
            valu('v_cvt_pk_bf16_f32',t,m,m), valu('v_lshlrev_b32',t,16,t), valu('v_sub_f32',t,m,t), valu('v_cvt_pk_bf16_f32',t,m,t),
            valu('v_cmp_gt_u32','vcc',32,vL), valu('v_cndmask_b32',QE[x][1],0,t)]

def attention(g0,kv,WB,wo_items):
    base=g0+100
    pipe[0]=0; pipe[1]=44
    def kread(tau):
        it=kv[tau>>3]; off=it.addr-WB+(tau&7)*1280; src=(it.name,it.blks())
        return [dsr('ds_read_b128',KM[tau%3],vKM,off,src=src), dsr('ds_read_b64',KE[tau%3],vKE,off,src=src)]
    def vread(tau,n):
        it=kv[tau>>3]; off=it.addr-WB+10240+(tau&7)*1280
        return dsr('ds_read_b64_tr_b16',VV[tau&1][2*n:2*n+2],vVA[n],off,src=(it.name,it.blks()))
    def E(n,buf=None): return m32x8(buf or SB[n%3],KE[(n>>1)%3],QE[n&1],0)
    def M(n,buf=None): b=buf or SB[n%3]; return m32(b,KM[(n>>1)%3],QM[n&1],b)
    def PV(n,h): return smf(OO[n&1],VV[(n>>1)&1][4*h:4*h+4],SB[n%3][8*h:8*h+8],vIDX)
    def flush(n,names=('ctr','epi','low','dma','ld')):
        k=0
        while k<n:
            for nm in names:
                x=head(nm,cur[0])
                if x is not None: take(nm,cur[0]); break
            else: return
            k+=1
    cur[0]=g0
    flush(1000,('low','ld'))
    e(valu('v_mov_b32',QE[1][0],vT[2]), valu('v_mov_b32',QE[0][1],0), valu('v_mov_b32',QE[1][1],0))
    e(waitfor(vm=QM+KM[:2]+KE[:2]+[QE[0]],vmtags=[kv[0].name],lgall=True), barrier())
    cur[0]=g0+10
    bufs=[SB[1],SB[2],SB[3],SB[4]]
    for k,n in enumerate((0,2,1,3)):
        e(E(n,bufs[k])); flush(5,('epi',)); e(M(n,bufs[k]));
        e(vread(0,k)); flush(4,('epi',))
    flush(1000,('epi',))
    mx=[vT[0],vT[1]]
    e(*max_ops(0,bufs[0:2],mx[0])); e(*set_shift(0,mx[0],vT[3],MARGIN))
    e(*max_ops(1,bufs[2:4],mx[1])[:4])
    e(E(0)); e(*max_ops(1,bufs[2:4],mx[1])[4:10]); e(M(0)); e(*max_ops(1,bufs[2:4],mx[1])[10:]); e(*set_shift(1,mx[1],vT[3],MARGIN))
    stamp('att')
    barx={7:[it.name for it in wo_items]}; f2done=[False]; wcut=[0,4,14,23,23,23,23,23]
    for n in range(128):
        tau=n>>1
        if 'ast' in OPT and n in range(*map(int,OPT['ast'].split(':'))): stamp(f'slot{n}',True)
        ms=[E(n+1) if n<127 else None, M(n+1) if n<127 else None, PV(n-1,1) if n>0 else None, PV(n,0)]
        if n&1: rds=[None]+[vread(tau+1,k) if tau+1<64 else None for k in range(1,4)]
        else: rds=[None]+(kread(tau+2) if tau+2<64 else [None,None])+[vread(tau+1,0) if tau+1<64 else None]
        sg=(n+5)//16 if (n+5)%16==0 and n+5<128 else None
        for k in range(4):
            gap=base+4*n+k; cur[0]=gap
            if ms[k] is not None: e(ms[k])
            nsc={0:0,1:1,2:2,3:2}[k]
            fx=(k==1 and n%2==0) or (k==2 and sg is not None)
            vmn=vm_ready(gap,1,OPT['astgap'],('st','dma','ld','low')) if (not fx and k>0 and ms[k] is not None) else None
            if vmn: take(vmn,gap)
            else:
                if k==1 and n%2==0: e(waitfor(lg=[VV[tau&1],KM[(tau+1)%3],KE[(tau+1)%3]])); nsc-=1
                if k==2 and sg is not None:
                    e(waitfor(vmtags=[kv[sg].name]+barx.get(sg,[])), barrier()); nsc-=2
                    if sg+1<8: push('dma',gap,kv[sg+1].mk(kv[sg+1]))
                    for it in wo_items[wcut[sg-1]:wcut[sg]]: push('dma',gap,it.mk(it))
                while nsc>0 and pull(gap,True): nsc-=1
            if rds[k] is not None: e(rds[k])
            x=head('ld',gap)
            if x is not None and x.kind=='valu': take('ld',gap)
            for r in range(4): e(valu('v_exp_f32',SB[n%3][4*k+r],SB[n%3][4*k+r]))
        if not fifo['st'] and not f2done[0]:
            f2done[0]=True; print('partial stores end at slot',n)
            push('st',gap+4*OPT['f2lag'],[waitfor(vmtags=['pst']), bstore(vONE,vF1,sWS,0,flags='sc1')])
        if n==OPT['f2poll']:
            ld=bload(vPOLL,vPG,sWS,0,flags='sc1')
            push('ld',gap,[ld])
            t0=base+4*OPT['f2chk']
            push('ld',t0,[waitfor(vm=[vPOLL])]+spin('f2',ld,1))
            ops=[]
            for k in range(32):
                if k%8==0: ops+=base_add(sBL,sWS,WS_P+k*1024+4096)
                ops.append(gload(PART[k],vPL,sBL,(k%8)*1024-4096,flags='sc1'))
                if k%2==1:
                    z=k>>1
                    if z%8==0: ops.append(salu('s_mov_b32',sSO3,WS_PX+z*512))
                    ops.append(bload(PARTX[z],vPLX,sWS,sSO3,(z%8)*512,flags='sc1'))
            nl=0
            for o in ops:
                push('ld',t0+int(nl*OPT['ldgap']),[o])
                if o.kind=='vld': nl+=1
    cur[0]=base+600
    e(PV(127,1))
    print('left after attention:',{k:len(v) for k,v in fifo.items()})
    flush(1000,('dma','ld','st','low'))

def fallback(kv,WB):
    global P
    save=P; P=[]
    pb=kv[5].addr
    a=[V(208+n) for n in range(6)]; vo=V(214); mx=[V(215),V(216)]; t=V(217)
    e(label('L_fb'), raw('s_waitcnt vmcnt(0) lgkmcnt(0)','misc'), raw('s_nop 15','misc'))
    for d,s in zip(a,[vKM,vKE]+vVA): e(valu('v_add_u32',d,sW5K,s))
    e(valu('v_lshlrev_b32',vo,4,vL), valu('v_mov_b32',QE[0][1],0), valu('v_mov_b32',QE[1][1],0), valu('v_mov_b32',mx[0],0xff800000), valu('v_mov_b32',mx[1],0xff800000))
    off=pb-WB
    for ps in range(2):
        e(salu('s_add_u32',sT0,sH,32), salu('s_mul_i32',sT0,sT0,SL), salu('s_add_u32',sT1,sT0,32*SL), salu('s_mov_b32',sT2,64), label(f'L_fbl{ps}'))
        e(salu('s_add_u32','m0',sW5K,pb), dma(vo,sWS,sT0,0,flags='sc1'), dma(vo,sWS,sT0,1024,flags='sc1'))
        if ps: e(salu('s_add_u32','m0',sW5K,pb+2560), dma(vo,sWS,sT1,0,flags='sc1'), dma(vo,sWS,sT1,1024,flags='sc1'))
        e(waitfor(vmall=True), dsr('ds_read_b128',KM[0],a[0],off), dsr('ds_read_b64',KE[0],a[1],off))
        if ps:
            for n in range(4): e(dsr('ds_read_b64_tr_b16',VV[0][2*n:2*n+2],a[2+n],off+2560))
        e(waitfor(lgall=True))
        for x in range(2): e(m32x8(SB[x],KE[0],QE[x],0), m32(SB[x],KM[0],QM[x],SB[x]))
        for x in range(2):
            if ps==0: e(*max_ops(x,[SB[x]],mx[x],first=False))
            else:
                for r in range(16): e(valu('v_exp_f32',SB[x][r],SB[x][r]))
                for h in range(2): e(smf(OO[x],VV[0][4*h:4*h+4],SB[x][8*h:8*h+8],vIDX))
        e(raw('s_nop 15','misc'), salu('s_add_u32',sT0,sT0,1280), salu('s_add_u32',sT1,sT1,1280), salu('s_sub_u32',sT2,sT2,1), salu('s_cmp_lg_u32',sT2,0), raw(f's_cbranch_scc1 L_fbl{ps}','misc'))
        if ps==0:
            for x in range(2):
                e(*set_shift(x,mx[x],t,0.0))
                for r in range(16): e(valu('v_mov_b32',OO[x][r],0))
    e(*norm_store(0,V(116,2)), *norm_store(1,V(116,2)), waitfor(vmall=True))
    e(raw('s_nop 3','misc'), raw('s_branch L_fb_ret','misc'))
    OUT.extend(i.text for i in finalize(P,verbose=0,name='fb'))
    P=save

TT=[SB[2],SB[3]]
def norm_store(x,t):
    O,T=OO[x],TT[x]
    o=[valu('v_rcp_f32',t[0],O[10]), valu('v_mov_b32',t[1],t[0]), swap('v_permlane32_swap_b32',t[0],t[1])]
    o+=[valu('v_mul_f32',T[r],t[0],O[r]) for r in range(10)]
    o+=[valu('v_cvt_pk_bf16_f32',T[d],T[2*d],T[2*d+1]) for d in range(4)]
    o+=[gstore(T[0:4],vOS,S(88+2*x,2),flags='sc1',tag='ost'), valu('v_cvt_pk_bf16_f32',T[8],T[8],T[9])]
    if x: o+=[swap('v_permlane32_swap_b32',TT[0][8],TT[1][8]), gstore(TT[0][8],vOSX,sWS[0:2],flags='sc1',tag='ost')]
    return o
def final(g0,wo_main,wo_x):
    cur[0]=g0
    SA=V(56,20); DN=V(76,20); XF=V(96,20); tmp=V(116,12)
    e(*norm_store(0,tmp), *norm_store(1,tmp))
    stamp('o stored')
    fill=[]
    for x in range(2):
        s=tmp[2+x]
        fill.append(valu('v_add_f32_e64',s,f'|{OO[x][0]}|',f'|{OO[x][1]}|'))
        for r in range(2,10): fill.append(valu('v_add_f32_e64',s,s,f'|{OO[x][r]}|'))
    fill+=[valu('v_min_f32',tmp[4],tmp[2],tmp[3]), valu('v_add_f32',tmp[2],tmp[2],tmp[3]), valu('v_add_f32',tmp[3],OO[0][10],OO[1][10]), valu('v_add_f32',tmp[2],tmp[2],tmp[3])]
    e(*fill, valu('v_cmp_nle_f32','vcc',f32(2.0**-100),tmp[4]), raw('s_cbranch_vccnz L_fb','misc',['vcc']),
      valu('v_cmp_nge_f32','vcc',f32(2.0**126) if not OPT['forcefb'] else f32(-1.0),tmp[2]), raw('s_cbranch_vccnz L_fb','misc',['vcc']), label('L_fb_ret'))
    e(bstore(vONE,vF3,sWS,0,flags='sc1'))
    stamp('flag')
    fill=[]; nchk=0
    def silu(q):
        d=DN[4*q:4*q+4]; t=tmp[4*(q&1):4*(q&1)+4]; o=[]
        for f in (lambda r:valu('v_mul_f32',d[r],vR2,d[r]), lambda r:valu('v_mul_f32',t[r],f32(-1.4426950408889634),d[r]), lambda r:valu('v_exp_f32',t[r],t[r]),
                  lambda r:valu('v_add_f32',t[r],1.0,t[r]), lambda r:valu('v_rcp_f32',t[r],t[r]), lambda r:valu('v_mul_f32',d[r],t[r],d[r])):
            o+=[f(r) for r in range(4)]
        return o
    for q in range(5): fill+=[(min(16*q+19,75),[x]) for x in silu(q)]
    for d in range(10): fill+=[(0,[x]) for x in (valu('v_accvgpr_read_b32',XF[2*d+1],XR[d]), valu('v_lshlrev_b32',XF[2*d],16,XF[2*d+1]), valu('v_and_b32',XF[2*d+1],0xffff0000,XF[2*d+1]))]
    g,u=tmp[8],tmp[9]
    fill+=[(0,[x]) for x in (valu('v_bfe_u32',g,vL,4,1), valu('v_mul_u32_u24',g,24,g), valu('v_add_u32',vXO,vXO,g))]
    pool_=[(V(160+4*n,4),0) for n in range(4)]+[(V(240+4*n,4),0) for n in range(4)]+[(A(216+4*n,4),0) for n in range(6)]
    pool_+=[(V(128+4*n,4),nchk) for n in range(8)]+[(V(176+4*n,4),nchk) for n in range(16)]
    pool_+=[(A(72+4*n,4),72) for n in range(34)]
    frs=[]; rds=[]
    for s in range(18):
        for q in range(5):
            f=pool_[len(frs)%len(pool_)][0]; frs.append(f)
            for u in range(2): rds.append(tr_read(f,u,wo_main[s],q) if q<4 else tr_read(f,u,wo_x[s>>2],s&3))
    red=[]
    for pr in range(2):
        for z in range(2):
            d=DN[8*pr+4*z:8*pr+4*z+4]
            for j in range(16): red.append(m16(d,SELA[4:8] if z==0 else SELA[0:4],PART[16*pr+j],0 if j==0 else d))
    for z in range(8): red.append(m16(DN[16:20],SELA[2:6],R('a',PARTX[2*z].b,4),0 if z==0 else DN[16:20]))
    e(waitfor(vm=PART+PARTX+[XR,vR2]))
    ri=0
    PL=[vPOLL,vT[0],vT[1]]
    poll=lambda k,off=0: bload(PL[k],vF3L,sWS,0,off,flags='sc1')
    for k,mm in enumerate(red):
        e(mm)
        if k==OPT['flagat']: e(waitfor(vmtags=['ost']), bstore(vONE,vF3,sWS,0,256,flags='sc1')); continue
        if k==OPT['pollat']: e(poll(0)); continue
        if k%4==3: e(waitfor(lg=frs[:max(0,ri//2-3)]))
        elif k==5: e(*base_add(sBL,sWS,WS_OX))
        if pool_[ri//2][1]<=k: e(rds[ri]); ri+=1
        for z,(af,o) in enumerate(fill):
            if af<=k: e(*o); fill.pop(z); break
    stamp('ready')
    OF=[A(4*s,4) for s in range(18)]
    oloads=lambda: [gload(OF[s],vOL,sOB[s>>2],(s&3)*2048-4096,flags='sc1') for s in range(16)]+[gload(OF[16+s][r],vOLX,sBL,s*2048+r*128,flags='sc1') for s in range(2) for r in range(4)]
    rest=[]
    while ri<OPT['wopre']:
        if ri%4==0: rest.append(waitfor(lg=frs[:max(0,ri//2-4)]))
        rest.append(rds[ri]); ri+=1
    while len(fill)>OPT['fillmm']: rest+=fill.pop(0)[1]
    def clone(o): return I(o.text,o.kind,o.rd,o.wr,o.passes,**{k:v for k,v in o.meta.items() if k!='src'})
    cnt=vT[7]
    def pollloop(nm,off,val=1):
        o=[valu('v_mov_b32',cnt,0x40000)]+[raw(poll(k,off).text) for k in range(OPT['npoll'])]+[label(nm)]
        for k in range(OPT['npoll']):
            o+=[raw(f's_waitcnt vmcnt({OPT["npoll"]-1})'), I(f'v_cmp_gt_u32 vcc, {val}, {PL[k]}','valu',[],['vcc']), raw(f's_cbranch_vccz {nm}ok','misc',['vcc']), raw(poll(k,off).text), raw(f's_sleep {OPT["psleep"]}')]
        return o+[valu('v_subrev_u32',cnt,1,cnt), valu('v_cmp_ne_u32','vcc',0,cnt), raw(f's_cbranch_vccnz {nm}','misc',['vcc']), label(nm+'ok')]
    with collect() as stp: stamp('ok')
    pl_=pollloop('L_f3',0); rc=[clone(o) for o in rest]; c1=int(len(rc)*OPT['lp1']/100); c2=int(len(rc)*OPT['lp2']/100)
    y=[label('L_late'), raw('s_waitcnt lgkmcnt(0)'), raw('s_nop 7')]+rc[:c1]+pl_[:2]+rc[c1:c2]+pl_[2:3]+rc[c2:]+[waitfor(lgall=True)]+pl_[3:]+[clone(o) for o in stp]+oloads()[:OPT['nol']]+[raw('s_branch L_join')]
    HOT.extend(finalize(y,verbose=0))
    e(waitfor(vm=[PL[0]]), valu('v_cmp_gt_u32','vcc',1,PL[0]), raw('s_cbranch_vccnz L_late','misc',['vcc']))
    ol=oloads()
    e(*stp, *ol[:OPT['nol']], *rest, label('L_join')); ol=ol[OPT['nol']:]
    stamp('seen')
    z=[label('L_redo'), raw('s_waitcnt vmcnt(0) lgkmcnt(0)'), raw('s_nop 7')]+pollloop('L_f4',256)+oloads()+[waitfor(vmall=True)]
    for s in range(18):
        fr=[V(128+4*q,4) for q in range(5)]
        for q in range(5):
            for u in range(2): z.append(clone(tr_read(fr[q],u,wo_main[s],q) if q<4 else tr_read(fr[q],u,wo_x[s>>2],s&3)))
        z.append(waitfor(lgall=True))
        z+=[m16(SA[4*q:4*q+4],fr[q],OF[s],0 if s==0 else SA[4*q:4*q+4]) for q in range(5)]
    z+=[raw('s_nop 15'), raw('s_branch L_redo_ret')]
    OUT.extend(i.text for i in finalize(z,verbose=0))
    k=0
    for s in range(18):
        assert ri>=10*s+10
        e(waitfor(vm=[OF[s]],lg=frs[5*s:5*s+5]))
        for q in range(5):
            e(m16(SA[4*q:4*q+4],frs[k],OF[s],0 if s==0 else SA[4*q:4*q+4])); k+=1
            if q==1 and ol: e(ol.pop(0)); continue
            for z in range(1 if fill else 2):
                if ri<len(rds) and ri//2-len(pool_)<k-1: e(rds[ri]); ri+=1
            if fill: e(*fill.pop(0)[1])
    stamp('mm done')
    e(valu('v_cmp_u_f32' if not OPT['forceredo'] else 'v_cmp_o_f32','vcc',SA[0],SA[0]), raw('s_cbranch_vccnz L_redo','misc',['vcc']), label('L_redo_ret'))
    for q in range(5):
        for r in range(4*q,4*q+4): e(valu('v_fmac_f32',XF[r],SA[r],DN[r],rmw=True))
        for d in range(2): e(valu('v_cvt_pk_bf16_f32',tmp[2*q+d],XF[4*q+2*d],XF[4*q+2*d+1]))
        if q in (2,4):
            b=2*q-4
            e(swap('v_permlane16_swap_b32',tmp[b],tmp[b+2]), swap('v_permlane16_swap_b32',tmp[b+1],tmp[b+3]), bstore(tmp[b:b+4],vXO,sOUT,0,16*b,flags=OPT['ofl']))
    e(bstore(tmp[8:10],vXOX,sOUT,0,flags=OPT['ofl']))

def main():
    build_ffn()
    ngaps,bars,free=plan()
    L=OPT['look']
    best=None
    for a0 in range(0,26):
        fr=sorted((max(free[b] for b in range(a0+5*k,a0+5*k+5)),k) for k in range(3))
        key=(fr[0][0],fr[1][0])
        if best is None or key<best[0]: best=(key,a0,[k for _,k in fr])
    _,a0,order=best; WB=a0*4096
    print('attention window',best,'ngaps',ngaps,{k:groups[v].start for k,v in marks.items()})
    kv=[kv_item(s) for s in range(8)]
    for s,it in enumerate(kv): it.addr=(a0+5*order[s%3])*4096
    rest=[b for b in range(NB) if not a0<=b<a0+15]
    wo_main=[blk_item(('wo',s),vWO if s<16 else vWOE,sWO,36*s*1152 if s<16 else 288*(s-16)*1152) for s in range(18)]
    wo_x=[blk_item(('wx',n),vWX if n<4 else vWXE,sWO,144*n*1152 if n<4 else 0,buf=(n==4),c=320) for n in range(5)]
    for it,b in zip(wo_main+wo_x,rest): it.addr=b*4096

    def pst(name):
        if 'pst' in OPT: stamp(name,True)
    prologue(); pst('karg')
    pre0=[it for it in items if it.early==-3000]; pre1=[it for it in items if it.early==-2000]
    dq=[xdma(tt,l) for tt in range(2) for l in range(9)]+[it.mk(it) for it in pre0+pre1]
    for _ in range(OPT['x0n']): e(*dq.pop(0))
    pst('x0 issued')
    xr=[vM[0],vR[1]]; t,u=vT[2],vT[3]
    DT=[V(140+8*n,8) for n in range(3)]; CM=V(164,4); SUM=V(172,4); ONE4=V(176,4); SEL=V(180,6)
    prologue2()
    e(valu('v_and_b32',t,15,vL), valu('v_lshrrev_b32',u,1,t), valu('v_lshlrev_b32',t,7,t), valu('v_add_u32',t,sW18K,t),
      valu('v_lshrrev_b32',xr[0],4,vL), valu('v_xor_b32',xr[0],xr[0],u), valu('v_xor_b32',xr[1],4,xr[0]),
      valu('v_lshl_add_u32',xr[0],xr[0],4,t), valu('v_lshl_add_u32',xr[1],xr[1],4,t))
    for d in range(4): e(valu('v_mov_b32',ONE4[d],sONES))
    with collect() as ao:
        e(*sel_ops(SEL[0],SEL[1],t,u), valu('v_mov_b32',SEL[2],0), valu('v_mov_b32',SEL[3],0), valu('v_mov_b32',SEL[4],SEL[0]), valu('v_mov_b32',SEL[5],SEL[1]))
        addr_early(); addr_pf(); addr_qk()
    for _ in range(OPT['apre']): e(ao.pop(0))
    pst('pre')
    for _ in range(OPT['x1n']): e(*dq.pop(0))
    nx=len([o for o in dq if o[-1].meta['tag'][0]=='x'])
    if OPT['pf'] and OPT['pfpos']>=0: dq.insert(nx+OPT['pfpos'],pf_gu(0))
    e(raw('s_waitcnt lgkmcnt(0)','misc'))
    pst('addr')
    R0=[XC0[4*s_:4*s_+4] for s_ in range(18)]; X1=[XC1[4*s_:4*s_+4] for s_ in range(18)]
    def xread(tt,dst,l):
        return [waitfor(vmtags=[('x',tt,l)])]+[dsr('ds_read_b128',dst[s],xr[s&1],l*2048,src=(('x',tt,l),list(range(18*tt,18*tt+18))),private=True) for s in (2*l,2*l+1)]
    cq=[]; nm=[0]; nblk=[0]
    def mm(m,extra=()):
        e(m); nm[0]+=1
        if extra: e(*extra); return
        k=0
        while cq and k<2 and cq[0][0]<=nm[0]-3: e(cq.pop(0)[1]); k+=1
        while ao and k<2: e(ao.pop(0)); k+=1
    def stats(tt,fr,l,nvm,lim=99):
        ms=[]
        for s_ in (2*l,2*l+1): ms+=[m16(SUM,ONE4,fr[s_],0 if s_==0 else SUM), m16(GR[tt],fr[s_],fr[s_],0 if s_==0 else GR[tt])]
        for h in range(2):
            o=[]
            if dq and h<nvm and nblk[0]<min(lim,OPT['nblk']):
                o=dq.pop(0)
                if o[-1].meta['tag'][0] not in 'xp': nblk[0]+=1
            mm(ms[2*h],[x for x in o if x.kind=='salu']); mm(ms[2*h+1],[x for x in o if x.kind!='salu'])
    nc=[0]
    def centre(src,dst,after=(),ex=((),())):
        d=DT[nc[0]%3]; nc[0]+=1
        while any(set(c.rd)&set(d.regs()) for _,c in cq): e(cq.pop(0)[1])
        for h in range(2):
            mm(m16(d[4*h:4*h+4],SEL[2*h:2*h+4],src,CM),ex[h])
            for z in range(2): cq.append((nm[0],valu('v_cvt_pk_bf16_f32',dst[2*h+z],d[4*h+2*z],d[4*h+2*z+1])))
        for x in after: cq.append((nm[0],x))
    def mean(tt):
        dst=vM[1] if tt else t
        e(valu('v_mul_f32',MEAN[tt],f32(1/576),SUM[0]), valu('v_cvt_pk_bf16_f32',dst,MEAN[tt],MEAN[tt]), valu('v_lshlrev_b32',dst,16,dst))
        for d in range(4): e(valu('v_xor_b32',CM[d],0x80000000,dst))
    for l in range(10):
        if l<9: e(*xread(0,R0,l))
        if l==0: e(*dq.pop(0))
        for _ in range(OPT['afill'] if l<9 else 999):
            if ao: e(ao.pop(0))
        if l>0:
            e(waitfor(lg=R0[2*l-2:2*l])); stats(0,R0,l-1,int(str(OPT.get('w1','x111111111'))[l]),len(pre0))
        if str(l) in str(OPT.get('tch','x1468')): e(*touch())
        if l in (0,4,8): pst(f'x0 rd {l}')
    e(barrier())
    stamp('x0 read')
    e(raw('s_branch L_main','misc'), I('.p2align 12','comment'), label('L_main'))
    e(valu('v_add_u32',xr[0],73728,xr[0]), valu('v_add_u32',xr[1],73728,xr[1]))
    e(*xread(1,X1,0)); mean(0); pst('stat0')
    for l in range(9):
        for s_ in (2*l,2*l+1): centre(R0[s_],X0[s_],to_acc(s_) if s_>=NV0 else ())
        if l<8: e(*xread(1,X1,l+1))
        e(waitfor(lg=X1[2*l:2*l+2])); stats(1,X1,l,int(str(OPT.get('w2','x111122222'))[l+1]))
        if l in (3,8): pst(f'x1 rd {l}')
    while cq: e(cq.pop(0)[1])
    mean(1)
    reads=[f(it) for g in groups[:4] for it,f in g.rd][:L]
    n0=OPT['n0']
    for s_ in range(n0):
        ex=((),())
        if s_==n0-8: ex=((waitfor(vmtags=[it.name for it in items if it.bar==-L]), barrier()),()); stamp('x1 read'); pst('bar1')
        centre(X1[s_],X1[s_],ex=ex)
        if s_>n0-8:
            for z in range(2):
                if reads: e(reads.pop(0))
    assert not reads
    while cq: e(cq.pop(0)[1])
    e(waitfor(lg=groups[0].fr)); pst('go')
    for s_ in range(n0,18): push('ctr',0,centre_ops(X1[s_],1))
    for s_ in range(NV0): push('ctr',0,to_acc(s_))
    for o in dq: push('dma',-1,o)
    mx_=-1
    for it in items:
        mx_=max(mx_,it.early)
        if it.early>-2000: push('dma',it.early,it.mk(it),mx_)
    st=lambda k:groups[marks[k]].start
    def low(gap,f,*a):
        with collect() as o: f(*a)
        push('low',gap,o,gap)
    low(st('c0')+200,var_ops,0); low(st('c0')+200,var_ops,1)
    while OPT['touch'] and ntouch[0]<5:
        g_=max(60,ntouch[0]*700-OPT.get('tlead',500)); push('ctr',min(g_,ngaps-150),touch(),min(g_,ngaps-150))
    low(st('c1'),addr_mid); low(st('c1'),addr_mid2); low(st('qkv'),sel_acc)
    low(st('c2'),addr_att,WB); low(st('c2'),addr_lds,WB)
    pt=[int(x) for x in OPT['pft'].split(',')]
    with collect() as od: addr_pfd()
    for g_,o in zip(pt,[pf_gu(1),pf_q(),pf_gu(2),pf_gu(3),pf_gu(4),od+pf_d(0),pf_d(1),pf_d(2)]): push('ld',g_,o,g_)
    low(st('c3'),pf_o)
    b1=[b for b in bars if b>st('c3')+60][0]
    bar_extra[b1]=['qkvst']
    ar=[salu('s_and_b32',sJH,S(2),1), salu('s_lshl_b32',sJH,sJH,7), salu('s_mov_b32',sJ128,1), salu('s_cmp_lg_u32',sW,0), raw('s_cbranch_scc1 L_arr','misc'),
        raw(f's_atomic_add {sJ128}, {sDBG[0:2]}, {sJH}','misc',sJ128.regs()+sJH.regs()), label('L_arr')]
    for x in ar[3:6]: x.meta['glue']=True
    push('low',b1,ar,b1)
    if OPT['stop']!='down':
        d0=st('down')
        low(b1,addr_z); low(b1,addr_fin); low(ngaps-66,zero_o)
        ld=bload(vPOLL,vZ,sDBG,0,flags='sc1')
        push('ld',d0+OPT['f1poll'],[ld],d0+OPT['f1poll'])
        with collect() as o: qk_loads(WB)
        push('ld',d0+OPT['f1poll']+80,[waitfor(vm=[vPOLL])]+spin('f1',ld,128)+o,d0+OPT['f1poll']+80)
        for s in range(2):
            early=max(free[b] for b in kv[s].blks())
            assert early>d0+300
            push('dma',early if early<LATE else ngaps+10,kv[s].mk(kv[s]),ngaps-1)
    emit_backbone(bars,{groups[v].start:k for k,v in marks.items() if k in ('c0','qkv','down')})
    stamp('down end')
    if OPT['stop']=='down':
        for nm in ('epi','st','low','dma'):
            for af,o in fifo[nm]: e(o)
    else:
        attention(ngaps,kv,WB,wo_main+wo_x)
        stamp('att end')
        final(ngaps+1000,wo_main,wo_x)
        fallback(kv,WB)
    finish()

def sizes(lines):
    import subprocess, re
    uniq=sorted(set(lines))
    src='.amdgcn_target "amdgcn-amd-amdhsa--gfx950"\n.text\nLX:\n'+'\n'.join(re.sub(r'L_codeend-L_pc-4','0x12345',re.sub(r'(s_branch|s_cbranch\w+) \w+',r'\1 0',u)) for u in uniq)+'\n'
    open('_sz.s','w').write(src)
    r=subprocess.run(['llvm-mc','-triple=amdgcn-amd-amdhsa','-mcpu=gfx950','-show-encoding','_sz.s'],capture_output=True,text=True)
    assert r.returncode==0,r.stderr[:2000]
    enc=re.findall(r'encoding: \[([^\]]*)\]',r.stdout)
    assert len(enc)==len(uniq),(len(enc),len(uniq))
    return {u:len(x.split(',')) for u,x in zip(uniq,enc)}
def page_stubs(out):
    sz=sizes([i.text for i in out if i.kind not in ('label','comment')])
    k0=[k for k,i in enumerate(out) if i.text=='L_main:'][0]
    print('entry part bytes',sum(sz.get(i.text,0) for i in out[:k0]))
    res=out[:k0+1]; off=0; pg=0; prev=None
    npg=4*ntouch[0]
    for k in range(k0+1,len(out)):
        i=out[k]
        if pg<npg and off>=4096*pg and not (prev is not None and prev.meta.get('glue')):
            good=prev is not None and prev.kind=='mfma' and i.kind in ('dsr','valu','trans')
            if good or off-4096*pg>=40 or pg==0:
                res+=[label(f'L_pg{pg}'), raw(f's_cbranch_execz L_tr{pg//4}')]; off+=4; pg+=1
        res.append(i); off+=sz.get(i.text,0)
        if i.kind not in ('label','comment'): prev=i
    print('main part bytes',off,'pages touched',pg,'of',-(-off//4096))
    while pg<npg: OUT.extend([f'L_pg{pg}:',f's_branch L_tr{pg//4}']); pg+=1
    return res
def finish():
    cur[0]=10**7
    if OPT['stamps']:
        e(raw('s_waitcnt lgkmcnt(0)','misc'), waitfor(vmall=True))
        stamp('drained'); e(raw('s_waitcnt lgkmcnt(0)','misc'))
        n=nstamp[0]
        for k in range(max(0,n-8),n): e(raw(f'v_writelane_b32 v13, s{64+2*(k%8)}, {k}','misc'))
        if 'padto' in OPT:
            e(raw('s_nop 1','misc'), raw(f'v_readlane_b32 s46, v13, {OPT["padto"]}','misc'), raw('s_nop 3','misc'))
            e(salu('s_add_u32',sT0,sT0,10000), label('L_pad'), raw('s_memrealtime s[98:99]','misc'), raw('s_waitcnt lgkmcnt(0)','misc'), salu('s_sub_u32',sT1,S(98),sT0), salu('s_cmp_lt_i32',sT1,0), raw('s_cbranch_scc1 L_pad','misc'))
        else:
            e(salu('s_lshl_b32',sT0,S(2),2), salu('s_add_u32',sT0,sT0,sW), salu('s_lshl_b32',sT0,sT0,8), salu('s_add_u32',sT0,sT0,WS_STAMP))
            e(valu('v_lshlrev_b32',V(1),2,vL), bstore(vST,V(1),sWS,sT0))
    check_order(P)
    out=finalize(P,verbose=OPT['v'],name='main')
    out=page_stubs(out+[raw('s_endpgm')]+HOT)
    hdr=open('recurrent_scan__mha_block__glu_gated_reglu__prompt.s.ref').read().split('; Override launch')[0]
    txt=hdr+'; @launch grid=(256,1,1) block=(256,1,1) lds=163840\n.amdgcn_target "amdgcn-amd-amdhsa--gfx950"\n.text\n'
    txt+=f'.globl {NAME}\n.p2align 12\n.p2align 8\n.type {NAME},@function\n{NAME}:\n'
    txt+='\n'.join(i.text for i in out)+'\nL_codeend:\n'+'\n'.join(OUT)+'\ns_endpgm\n'
    txt+=f'''.section .rodata,"a"
.p2align 6
.amdhsa_kernel {NAME}
  .amdhsa_next_free_vgpr 512
  .amdhsa_next_free_sgpr 102
  .amdhsa_accum_offset 256
  .amdhsa_group_segment_fixed_size 0
  .amdhsa_kernarg_size 80
  .amdhsa_user_sgpr_count 2
  .amdhsa_user_sgpr_kernarg_segment_ptr 1
  .amdhsa_system_sgpr_workgroup_id_x 1
  .amdhsa_float_denorm_mode_32 3
.end_amdhsa_kernel
'''
    open(sys.argv[1],'w').write(txt)
    print('bytes',len(txt))
main()
```

```python
import re

class R:
    __slots__=('k','b','n')
    def __init__(s,k,b,n=1): s.k=k; s.b=b; s.n=n
    def __str__(s): return f'{s.k}{s.b}' if s.n==1 else f'{s.k}[{s.b}:{s.b+s.n-1}]'
    __repr__=__str__
    def regs(s): return [f'{s.k}{i}' for i in range(s.b,s.b+s.n)]
    def __getitem__(s,i):
        if isinstance(i,slice):
            a=i.start or 0; e=s.n if i.stop is None else i.stop
            assert 0<=a<e<=s.n,(s,i)
            return R(s.k,s.b+a,e-a)
        assert 0<=i<s.n,(s,i)
        return R(s.k,s.b+i,1)
def V(b,n=1): return R('v',b,n)
def A(b,n=1): return R('a',b,n)
def S(b,n=1): return R('s',b,n)

def regs_of(*ops):
    out=[]
    for o in ops:
        if isinstance(o,R): out+=o.regs()
        elif isinstance(o,str):
            m=o.strip('-|')
            if m in ('vcc','m0','exec','scc'): out.append(m)
            else:
                mm=re.fullmatch(r'([vas])(\d+)',m)
                if mm: out.append(m)
    return out

class I:
    __slots__=('text','kind','rd','wr','passes','meta')
    def __init__(s,text,kind,rd=(),wr=(),passes=0,**meta):
        s.text=text; s.kind=kind; s.rd=list(rd); s.wr=list(wr); s.passes=passes; s.meta=meta
    def __repr__(s): return s.text

def fmt(o):
    if isinstance(o,float): return repr(o)
    if isinstance(o,int): return str(o) if -16<=o<=64 else hex(o&0xffffffff)
    return str(o)

TRANS=('v_exp_f32','v_rcp_f32','v_rsq_f32','v_sqrt_f32','v_log_f32')
def valu(op,dst,*src,mods='',rmw=False):
    kind='trans' if op.replace('_e64','') in TRANS else ('dot' if op.startswith('v_dot') else 'valu')
    rd=regs_of(*src); wr=regs_of(dst)
    if rmw: rd+=wr
    if op.startswith('v_cndmask') and len(src)==2: rd.append('vcc'); src=src+('vcc',)
    t=f'{op} {fmt(dst)}, '+', '.join(fmt(x) for x in src)+(' '+mods if mods else '')
    m={}
    if kind=='dot': m['dotc']=regs_of(src[2]); m['op']=op
    if op.startswith('v_readfirstlane') or op.startswith('v_readlane'): m['lane_read']=True
    return I(t,kind,rd,wr,**m)
def swap(op,a,b): return I(f'{op} {a}, {b}','valu',regs_of(a,b),regs_of(a,b),perm=True)
def salu(op,dst,*src):
    wr=regs_of(dst)
    if op.startswith('s_cmp') or op.startswith('s_bitcmp'):
        return I(f'{op} {fmt(dst)}, '+', '.join(fmt(x) for x in src),'salu',regs_of(dst,*src),['carry'],scc=True)
    i=I(f'{op} {fmt(dst)}, '+', '.join(fmt(x) for x in src),'salu',regs_of(*src),wr)
    i.meta['scc']=not (op.startswith('s_mov') or op.startswith('s_mul_i32') or op.startswith('s_cselect'))
    return i
def raw(text,kind='misc',rd=(),wr=(),**m): return I(text,kind,rd,wr,**m)
def label(n): return I(n+':','label')
def mfma(op,d,a,b,c,passes):
    return I(f'{op} {d}, {a}, {b}, {fmt(c)}','mfma',regs_of(a,b,c),regs_of(d),passes,ab=regs_of(a,b),c=regs_of(c),d=str(d),cstr=str(c))
def m16(d,a,b,c): return mfma('v_mfma_f32_16x16x32_bf16',d,a,b,c,4)
def m32(d,a,b,c): return mfma('v_mfma_f32_32x32x16_bf16',d,a,b,c,8)
def m32x8(d,a,b,c): return mfma('v_mfma_f32_32x32x8_bf16',d,a,b,c,8)
def m2b(d,a,b,c): return mfma('v_mfma_f32_32x32x4_2b_bf16',d,a,b,c,16)
def smf(d,a,b,idx):
    return I(f'v_smfmac_f32_32x32x32_bf16 {d}, {a}, {b}, {idx}','mfma',regs_of(a,b,idx,d),regs_of(d),8,ab=regs_of(a,b,idx),c=regs_of(d),d=str(d),cstr=str(d))
def dsr(op,d,addr,off=0,src=None,private=False):
    assert 0<=off<65536,off
    return I(f'{op} {d}, {addr}'+(f' offset:{off}' if off else ''),'dsr',regs_of(addr),regs_of(d),src=src,private=private)
def dsw(op,addr,data,off=0):
    return I(f'{op} {addr}, {data}'+(f' offset:{off}' if off else ''),'dsw',regs_of(addr,data),[])
def bload(d,voff,srd,soff,off=0,flags='',tag=None):
    n=d.n; op={1:'buffer_load_dword',2:'buffer_load_dwordx2',4:'buffer_load_dwordx4'}[n]
    assert 0<=off<4096
    return I(f'{op} {d}, {voff}, {srd}, {fmt(soff)} offen'+(f' offset:{off}' if off else '')+(' '+flags if flags else ''),'vld',regs_of(voff,srd,soff),regs_of(d),tag=tag)
def bstore(d,voff,srd,soff,off=0,flags='',tag=None):
    n=d.n; op={1:'buffer_store_dword',2:'buffer_store_dwordx2',4:'buffer_store_dwordx4'}[n]
    assert 0<=off<4096
    return I(f'{op} {d}, {voff}, {srd}, {fmt(soff)} offen'+(f' offset:{off}' if off else '')+(' '+flags if flags else ''),'vst',regs_of(d,voff,srd,soff),[],tag=tag,wide=regs_of(d) if n>2 else [])
def batomic(d,voff,srd,soff,off=0):
    return I(f'buffer_atomic_add {d}, {voff}, {srd}, {fmt(soff)} offen'+(f' offset:{off}' if off else ''),'vst',regs_of(d,voff,srd,soff),[],tag=None,wide=[])
def dma(voff,srd,soff,off=0,flags='',tag=None,dst=None,private=False):
    assert 0<=off<4096
    return I(f'buffer_load_dwordx4 {voff}, {srd}, {fmt(soff)} offen'+(f' offset:{off}' if off else '')+(' '+flags if flags else '')+' lds','dma',regs_of(voff,srd,soff,'m0'),[],tag=tag,dst=dst,private=private)
def gdma(voff,base,off=0,flags='',tag=None,dst=None,private=False):
    assert -4096<=off<4096
    return I(f'global_load_lds_dwordx4 {voff}, {base}'+(f' offset:{off}' if off else '')+(' '+flags if flags else ''),'dma',regs_of(voff,base,'m0'),[],tag=tag,dst=dst,private=private)
def gload(d,voff,base,off=0,flags='',tag=None):
    op={1:'global_load_dword',2:'global_load_dwordx2',4:'global_load_dwordx4'}[d.n]
    assert -4096<=off<4096
    return I(f'{op} {d}, {voff}, {base}'+(f' offset:{off}' if off else '')+(' '+flags if flags else ''),'vld',regs_of(voff,base),regs_of(d),tag=tag)
def gstore(d,voff,base,off=0,flags='',tag=None):
    op={1:'global_store_dword',2:'global_store_dwordx2',4:'global_store_dwordx4'}[d.n]
    assert -4096<=off<4096
    return I(f'{op} {voff}, {d}, {base}'+(f' offset:{off}' if off else '')+(' '+flags if flags else ''),'vst',regs_of(d,voff,base),[],tag=tag,wide=regs_of(d) if d.n>2 else [])
def base_add(dst,src,off):
    a=salu('s_add_u32',dst[0],src[0],off); b=salu('s_addc_u32',dst[1],src[1],0)
    b.rd.append('carry'); a.wr.append('carry')
    return [a,b]
def waitfor(lg=(),lgall=False,vm=(),vmtags=(),vmall=False):
    return I('WAIT','waitfor',lg=set(regs_of(*lg)),lgall=lgall,vm=set(regs_of(*vm)),vmtags=set(vmtags),vmall=vmall)
def barrier(): return I('s_barrier','barrier')

VALUK=('valu','trans','dot')
def finalize(ins, verbose=True, name=''):
    out=[]; lgq=[]; vmq=[]
    lastw={}
    lastc={}
    lastst={}
    stats=dict(auto_wait=0,nops=0,nopstates=0,maxvm=0,maxlg=0)
    pos=0
    nbar=0; nsig=0
    blk_read={}
    dma_done={}
    tag_pending={}
    blk_owner={}
    lastscc=[None]
    def emit(i,states=1):
        nonlocal pos
        out.append(i); pos+=states
    def do_wait(nlg,nvm):
        parts=[]
        if nvm is not None:
            assert nvm<=63
            parts.append(f'vmcnt({nvm})')
            while len(vmq)>nvm:
                e=vmq.pop(0); t=e.meta.get('tag')
                if e.kind=='dma' and t is not None:
                    tag_pending[t]-=1
                    if tag_pending[t]==0: dma_done[t]=nsig
        if nlg is not None:
            nlg=min(nlg,15)
            parts.append(f'lgkmcnt({nlg})')
            while len(lgq)>nlg:
                e=lgq.pop(0); e.meta['done']=nsig
        if parts: emit(I('s_waitcnt '+' '.join(parts),'wait'))
    def need(q,pred):
        last=-1
        for k,e in enumerate(q):
            if pred(e): last=k
        return None if last<0 else len(q)-1-last
    for i in ins:
        k=i.kind
        if k=='label' or k=='comment': out.append(i); continue
        if k=='reset':
            continue
        if k=='waitfor':
            m=i.meta
            nlg=need(lgq,lambda e:m['lgall'] or any(r in m['lg'] for r in e.wr))
            nvm=need(vmq,lambda e:m['vmall'] or any(r in m['vm'] for r in e.wr) or (e.meta.get('tag') in m['vmtags']))
            do_wait(nlg,nvm); continue
        touched=set(i.rd)|set(i.wr)
        nlg=need(lgq,lambda e:any(r in touched for r in e.wr))
        nvm=need(vmq,lambda e:any((r in touched) and not (i.meta.get('tag')=='pf' and e.meta.get('tag')=='pf') for r in e.wr))
        if nlg is not None or nvm is not None:
            stats['auto_wait']+=1
            if verbose: print(f'[{name}] auto wait lg={nlg} vm={nvm} before: {i.text}')
            do_wait(nlg,nvm)
        if k in ('dsr','dsw') and len(lgq)>=15:
            stats['lgfull']=stats.get('lgfull',0)+1
            do_wait(11,None)
        req=0; why=None
        def chk(ppos,n,w):
            nonlocal req,why
            d=n-(pos-ppos-1)
            if d>req: req=d; why=w
        isv=k in VALUK
        for r in i.rd:
            if r not in lastw: continue
            p,w=lastw[r]
            if w.kind=='mfma':
                big={4:8,8:12,16:20}[w.passes]
                if k=='mfma':
                    if r in i.meta['ab']: chk(p,big,'mfma->ab')
                    elif i.meta['cstr']==w.meta['d'] and i.passes==w.passes: pass
                    else: chk(p,w.passes+2,'mfma->c')
                else: chk(p,big,'mfma->rd')
            elif w.kind in VALUK:
                if k=='mfma': chk(p,2,'valu->mfma')
                if w.kind=='trans' and isv and k!='trans': chk(p,1,'trans')
                if w.kind=='dot':
                    if k=='dot' and i.meta['op']==w.meta['op'] and r in i.meta['dotc'] and i.rd.count(r)==1: pass
                    else: chk(p,3,'dot')
                if i.meta.get('perm'): chk(p,2,'perm')
                if i.meta.get('lane_read') and r[0]=='v' and r!='vcc': chk(p,1,'readlane')
                if r[0]=='s' or r=='vcc':
                    if isv: chk(p,2,'vsgpr->valu')
                    elif k in ('vld','vst','dma'): chk(p,5,'vsgpr->vmem')
                    else: chk(p,1,'vsgpr->salu')
            elif w.kind=='salu' and r=='m0' and k=='dma': chk(p,1,'m0')
        for r in i.wr:
            if r in lastw:
                p,w=lastw[r]
                if w.kind=='mfma':
                    if k=='mfma':
                        if not (i.meta['d']==w.meta['d'] and i.passes==w.passes): chk(p,w.passes+2,'mfma waw')
                    else: chk(p,{4:8,8:12,16:20}[w.passes],'mfma->wr')
                elif w.kind=='dot' and not (k=='dot' and i.meta['op']==w.meta['op']): chk(p,3,'dot waw')
            if r in lastc and isv: chk(lastc[r][0],lastc[r][1]-1,'c war')
            if r in lastst: chk(lastst[r],2,'store war')
        if req>0:
            stats['nops']+=1; stats['nopstates']+=req
            if verbose>1: print(f'[{name}] nop {req} ({why}) before: {i.text}')
            while req>0:
                n=min(req,16); emit(I(f's_nop {n-1}','nop'),n); req-=n
        if k=='dsr' and i.meta.get('src') is not None:
            tag,blks=i.meta['src']
            assert tag in dma_done and tag_pending[tag]==0, f'read of unfinished {tag}: {i.text}'
            if not i.meta.get('private'): assert dma_done[tag]<nbar, f'read of {tag} without barrier: {i.text}'
            for b in blks:
                assert blk_owner.get(b)==tag or i.meta.get('private'), f'block {b} owner {blk_owner.get(b)} != {tag}'
                blk_read.setdefault(b,[]).append(i)
        if k=='dma':
            t=i.meta.get('tag')
            if t is not None: tag_pending[t]=tag_pending.get(t,0)+1
            for b in (i.meta.get('dst') or ()):
                if blk_owner.get(b)!=t:
                    for e in blk_read.get(b,()):
                        assert 'done' in e.meta and (e.meta['done']<nbar or i.meta.get('private')), f'dma {t} overwrites block {b} still read: {e.text}'
                    blk_read[b]=[]
                    blk_owner[b]=t
        if 'carry' in i.rd: assert lastscc[0] is lastw['carry'][1], f'scc clobbered before {i.text} by {lastscc[0]}'
        if i.meta.get('scc'): lastscc[0]=i
        ppos=pos
        emit(i)
        if k=='barrier':
            assert nsig==nbar; nbar+=1; nsig+=1
        if i.meta.get('signal'): nsig+=1
        if i.meta.get('check'):
            nbar+=1; assert nbar==nsig
        if k in ('dsr','dsw'):
            lgq.append(i); stats['maxlg']=max(stats['maxlg'],len(lgq))
        if k in ('vld','vst','dma'):
            vmq.append(i); stats['maxvm']=max(stats['maxvm'],len(vmq))
            assert len(vmq)<=63, 'vmcnt overflow'
        for r in i.wr:
            lastw[r]=(ppos,i); lastc.pop(r,None)
        if k=='mfma':
            for r in i.meta['c']: lastc[r]=(ppos,i.passes)
        if k=='vst':
            for r in i.meta['wide']: lastst[r]=ppos
    if verbose: print(f'[{name}]',stats,'ninstr',len(out))
    return out

def check_order(ins):
    def deps(lst):
        lw={}; d={}
        for i in lst:
            d[id(i)]=(tuple(lw.get(r) for r in i.rd if r!='carry'),tuple(lw.get(r) for r in i.wr if r not in ('carry','vcc')))
            for r in i.wr: lw[r]=id(i)
        return d
    a=deps(ins); b=deps(sorted(ins,key=lambda i:i.meta['seq']))
    byid={id(i):i for i in ins}
    bad=0
    for i in ins:
        if a[id(i)]!=b[id(i)]:
            bad+=1
            if bad<10:
                print('ORDER VIOLATION',i.meta['seq'],i.text)
                for x,y in zip(a[id(i)][0]+a[id(i)][1],b[id(i)][0]+b[id(i)][1]):
                    if x!=y: print('    got',byid.get(x),'want',byid.get(y)); break
    assert bad==0, f'{bad} order violations'
```

```python
import sys, struct, contextlib
from asmlib import *

OPT=dict(stop='', stamps=0, pf=1, dmagap=4, look=13, split=0, stper=3, qstper=2, xat=1, stgap=8, n0=14, v=1, forcefb=0, astgap=6, f2lag=10, f2poll=58, f2chk=64, ldgap=4, dbgout=0, hat=26, chk0=0, px=0, wcut='0,3,8,13,18,23,23,23', wob=23, ldmin=4, at0=150, tat='1500,1990', flagat=60, pollat=56, forceredo=0, lp1=20, lp2=70, nol=10, fsh=2, npoll=2, psleep=3, wopre=110, fillmm=40, ofl='', apre=60, x1n=2, afill=16, tlb=0, pfpos=6, pft='100,190,280,740,740,1090,1090,1090', swp=1, pfx=400, chain=6, qch=4, c0ch=3, touch=1, x0n=3, nblk=14, f1poll=120, qstgap=4, back=48, pfc=1, bartr=0)
for a in sys.argv[2:]:
    k,v=a.split('='); OPT[k]=int(v) if v.lstrip('-').isdigit() else v
NAME='recurrent_scan__mha_block__glu_gated_reglu__prompt_kernel'

WS_QKV=0; SL=81920
WS_P=0x800000; WS_PX=0x2800000; WS_O=0x2C00000; WS_OX=0x2E00000; WS_F3=0x2E40000; WS_R2=0x2E60000; WS_F2=0x2E80000; WS_STAMP=0x2F00000
OOB=0x80000000
LDS_OOB=0x30000
def f32(x): return struct.unpack('<I',struct.pack('<f',x))[0]
QSCALE=18**-0.5*1.4426950408889634
MARGIN=80.0

sX,sWQ,sWO,sWG,sWU,sWD,sOUT,sDBG,sWS=[S(4+4*n,4) for n in range(9)]
sW,sW1K,sI,sJ,sH,sIDX,sT0,sT1,sSO,sSO2=[S(40+n) for n in range(10)]
sLO,sHI,sONES,sW7K,sW5K=[S(50+n) for n in range(5)]
sSC=[S(55),S(56),S(57)]
sW18K,sJ1,sXC,sM8,sT2,sT3=[S(58+n) for n in range(6)]
sJ128,sJH=S(3),S(94); sSO3=S(95); sXP,sXX=S(92),S(93)
sBD,sBL,sPC=S(96,2),S(98,2),S(100,2)
nstamp=[0]
def stamp(name,fine=False):
    if not OPT['stamps']: return
    if OPT.get('few') and name not in ('start','c0','down','down end','att end','drained'): return
    if ('gst' in OPT or 'ast' in OPT or 'pst' in OPT) and not fine and name!='start': return
    n=nstamp[0]; nstamp[0]+=1
    assert n<64
    r=64+2*(n%8)
    if n>=8: e(raw(f'v_writelane_b32 v13, s{r}, {n-8}','misc'))
    e(raw(f'{"s_memrealtime" if OPT["stamps"]==1 else "s_memtime"} s[{r}:{r+1}]','misc'))
    print('stamp',n,name)

vL=V(0)
vT=[V(1+n) for n in range(8)]
vR=[V(9),V(10)]
vM=[V(11),V(12)]
vPF=A(255)
vST=V(13)
vGF,vGH,vDF,vDH=[V(14+n) for n in range(4)]
vTR=[[V(18+3*q+n) for n in range(3)] for q in range(4)]
vQK=[V(30+n) for n in range(7)]
vQM=[V(37+n) for n in range(3)]; vQE=[V(40+n) for n in range(3)]
vSM,vSE0,vSE1,vSCX=[V(43+n) for n in range(4)]
vPS,vPX=V(47),V(48)
vF1,vONE=V(49),V(50)
vPG,vF3,vPOLL=V(51),V(52),V(53)
vX=[V(168+n) for n in range(4)]
XC1=V(56,72)
BANK=[V(128,64),V(192,64)]
XC0=A(0,72); HH=A(72,72); FR=A(144,64)
vKM,vKE=V(30),V(31); vVA=[V(32+n) for n in range(4)]
vKV,vWO,vWOE,vWX,vWXE=[V(36+n) for n in range(5)]
vPL,vPLX,vOL,vOLX,vOS,vOSX=[V(41+n) for n in range(6)]
vIDX,vF3L=V(54),V(55)
vXO,vXOX,vR2,vZ=V(11),V(12),V(9),V(10)
QE=V(14,2)
QM=[A(0,4),A(4,4)]
OO=[V(128,16),V(144,16)]; SELA=A(208,8)
sOB=[S(80+2*n,2) for n in range(4)]
KM=[A(40+4*n,4) for n in range(3)]; KE=[A(52+2*n,2) for n in range(3)]
VV=[A(8,8),A(16,8)]
XR=A(240,10)
PART=[A(60+4*n,4) for n in range(32)]
PARTX=[A(188+2*n,2) for n in range(10)]+[A(24+2*n,2) for n in range(6)]
SBB=[V(192,32),V(224,32),V(160,32)]

P=[]
cur=[-10**6,0]
sink=[None]
def setseq(i,gap=None):
    if 'seq' not in i.meta:
        cur[1]+=1; i.meta['seq']=(cur[0] if gap is None else gap,cur[1])
    return i
def e(*x):
    for i in x:
        if sink[0] is not None: sink[0].append(i)
        else: P.append(setseq(i)); i.meta['at']=cur[0]
@contextlib.contextmanager
def collect():
    o=[]; old=sink[0]; sink[0]=o
    yield o
    sink[0]=old
ARR=[]
fifo=dict(arr=[],dma=[],st=[],ld=[],ctr=[],epi=[],low=[])
def push(q,after,ops,logical=None):
    for o in ops: fifo[q].append((after,setseq(o,logical)))
def masked(dst,val,cmpop,a,b,tmp):
    e(valu(cmpop,'vcc',a,b), valu('v_mov_b32',tmp,OOB), valu('v_cndmask_b32',dst,tmp,val))

def prologue():
    e(salu('s_cmp_ge_u32',S(2),256), raw('s_cbranch_scc0 L_go','misc'), raw('s_endpgm','misc'), label('L_go'))
    for srd,off in ((sX,0),(sWG,32),(sWU,40),(sWQ,8),(sWO,16),(sWD,48),(sOUT,56),(sDBG,64),(sWS,72)): e(raw(f's_load_dwordx2 {srd[0:2]}, s[0:1], {off}','misc'))
    stamp('start')
    e(valu('v_lshrrev_b32',vT[0],6,V(0)), valu('v_and_b32',vL,63,V(0)))
    e(salu('s_and_b32',sXC,S(2),7), salu('s_lshr_b32',sIDX,S(2),3))
    pf_code()
    e(valu('v_readfirstlane_b32',sW,vT[0]))
    e(salu('s_lshr_b32',sM8,sIDX,2), salu('s_lshl_b32',sI,sM8,1), salu('s_and_b32',sT2,sXC,1), salu('s_add_u32',sI,sI,sT2))
    e(salu('s_mul_i32',sW18K,sW,18432))
    vx0,vx1,row,t=vX[0],vX[1],vT[2],vT[3]
    e(salu('s_lshl_b32',sT2,sI,2), salu('s_add_u32',sT2,sT2,sW), salu('s_lshl_b32',sT2,sT2,5))
    e(valu('v_lshrrev_b32',row,3,vL), valu('v_lshrrev_b32',t,4,vL), valu('v_and_b32',vx0,7,vL), valu('v_xor_b32',vx0,vx0,t),
      valu('v_xor_b32',vx1,4,vx0), valu('v_add_u32',t,sT2,row), valu('v_mul_u32_u24',t,1152,t),
      valu('v_lshl_add_u32',vX[2],vx0,4,t), valu('v_lshl_add_u32',vX[3],vx1,4,t), valu('v_add_u32',vX[3],8*1152-1024,vX[3]),
      valu('v_add_u32',vx0,1920,vX[2]), valu('v_add_u32',vx1,1920,vX[3]))
    e(salu('s_lshr_b32',sJ,sXC,1), salu('s_lshl_b32',sJ,sJ,2), salu('s_and_b32',sT3,sIDX,3), salu('s_add_u32',sJ,sJ,sT3), salu('s_and_b32',sJ1,sJ,1))
    e(salu('s_mul_i32',sSO2,sJ1,18432*OPT['swp']))
    if OPT['px']:
        n=OPT['px']
        e(salu('s_mul_i32',sT0,sT2,1152), salu('s_and_b32',sT1,sJ,288//n-1), salu('s_mul_i32',sT1,sT1,n*128), salu('s_add_u32',sT0,sT0,sT1), valu('v_lshl_add_u32',vT[4],vL,7,sT0))
    e(raw('s_waitcnt lgkmcnt(0)','misc'))
    if OPT['px']:
        n=OPT['px']
        m=(1<<min(n,36))-1
        e(raw(f's_mov_b32 exec_lo, {hex(m&0xffffffff)}','salu'), raw(f's_mov_b32 exec_hi, {m>>32}','salu'), gload(vPF,vT[4],sX[0:2],tag='pf'))
        if n==72: e(valu('v_add_u32',vT[4],36*128,vT[4]), gload(vPF,vT[4],sX[0:2],tag='pf'))
        e(raw('s_mov_b64 exec, -1','salu'))
    e(salu('s_sub_u32',sBL[0],sX[0],1920), salu('s_subb_u32',sBL[1],sX[1],0), salu('s_add_u32',sBD[0],sBL[0],sSO2), salu('s_addc_u32',sBD[1],sBL[1],0))
def prologue2():
    if OPT['tlb']:
        e(salu('s_mov_b32',sT0,2<<20), salu('s_mov_b32',sT1,4<<20))
        for srd,n in ((sWG,3),(sWU,3),(sWQ,1),(sWD,3),(sWO,1),(sWS,1),(sOUT,2)):
            for k in range(n): e(raw(f's_load_dword s80, {srd[0:2]}, {["0",sT0,sT1][k]}','misc'))
    e(salu('s_sub_u32',sSO2,18432,sSO2), salu('s_add_u32',sBL[0],sBL[0],sSO2), salu('s_addc_u32',sBL[1],sBL[1],0))
    e(salu('s_mul_i32',sXP,sJ1,OPT['swp']<<18), salu('s_mul_i32',sXX,sJ1,OPT['swp']<<15))
    e(salu('s_lshl_b32',sH,sXC,2), salu('s_add_u32',sH,sH,sT3))
    e(salu('s_lshl_b32',sW1K,sW,10), salu('s_mul_i32',sW7K,sW,7168), salu('s_mul_i32',sW5K,sW,5120))
    for srd,n in ((sX,2048*1152),(sWQ,576*3456),(sWO,576*1152),(sWG,576*9216),(sWU,576*9216),(sWD,4608*1152),(sOUT,2048*1152),(sDBG,256),(sWS,0x10000000)):
        e(salu('s_mov_b32',srd[2],n), salu('s_mov_b32',srd[3],0x20000))
    e(salu('s_mov_b32',sLO,0x3f80), salu('s_mov_b32',sHI,0x3f800000), salu('s_mov_b32',sONES,0x3f803f80))
def addr_pf():
    row,t=vT[2],vT[3]
    e(salu('s_lshl_b32',sJ128,sJ1,7), salu('s_lshl_b32',sJH,sJ1,9), salu('s_sub_u32',sJH,512,sJH))
    e(salu('s_lshl_b32',sT0,sI,2), salu('s_add_u32',sT0,sT0,sW), salu('s_mul_i32',sT0,sT0,9*9216), salu('s_mul_i32',sT1,sJ,576), salu('s_and_b32',sT1,sT1,-128), salu('s_add_u32',sT0,sT0,sT1),
      valu('v_mul_u32_u24',t,9216,vL), valu('v_add_u32',t,sT0,t))
    masked(vPG,t,'v_cmp_gt_u32',9,vL,row)
    u=row
    e(valu('v_mul_u32_u24',t,7282,vL), valu('v_lshrrev_b32',t,16,t), valu('v_mul_u32_u24',u,9,t), valu('v_sub_u32',u,vL,u), valu('v_mul_u32_u24',u,3456,u), valu('v_lshl_add_u32',u,t,7,u),
      salu('s_lshl_b32',sT0,sI,2), salu('s_add_u32',sT0,sT0,sW), salu('s_mul_i32',sT0,sT0,9*3456), salu('s_mul_i32',sT1,sJ,216), salu('s_and_b32',sT1,sT1,-128), salu('s_add_u32',sT0,sT0,sT1),
      valu('v_add_u32',u,sT0,u))
    masked(vPOLL,u,'v_cmp_gt_u32',27,vL,t)
def pf_gu(c):
    if not OPT['pf']: return []
    return [cost(bload(vPF,vPG,s,sJ128 if c<4 else sJH,c*128 if c<4 else 0,tag='pf'),90) for s in (sWG,sWU)]
def pf_q(): return [cost(bload(vPF,vPOLL,sWQ,0,tag='pf'),270)] if OPT['pf'] else []
def addr_pfd():
    t,u=vT[4],vT[5]
    e(salu('s_lshl_b32',sT0,sI,2), salu('s_add_u32',sT0,sT0,sW), salu('s_mul_i32',sT0,sT0,81*64), salu('s_and_b32',sT0,sT0,-128), salu('s_mul_i32',sT1,sJ,288*1152), salu('s_add_u32',sT0,sT0,sT1),
      valu('v_lshl_add_u32',t,vL,7,sT0))
    masked(vPOLL,t,'v_cmp_gt_u32',14,vL,u)
def pf_d(k): return [cost(bload(vPF,vPOLL,sWD,0,k*14*128,tag='pf'),140)] if OPT['pf'] else []
def pf_o():
    if not OPT['pf']: return
    t,u=vT[4],vT[5]
    e(salu('s_lshl_b32',sT0,S(2),2), salu('s_add_u32',sT0,sT0,sW), salu('s_mul_i32',sT0,sT0,6*128), valu('v_lshl_add_u32',t,vL,7,sT0))
    masked(t,t,'v_cmp_gt_u32',6,vL,u)
    e(cost(bload(vPF,t,sWO,0,tag='pf'),60))
def cost(i,c): i.meta['cost']=c; return i
def xdma(tt,l):
    base=sBD if tt==0 else sBL
    o=[salu('s_add_u32','m0',sW18K,tt*73728+l*1920)] if l%2==0 else []
    for z in range(2): o.append(gdma(vX[2*(l&1)+z],base,(l&~1)*128+(2*(l&1)+z)*1024,tag=('x',tt,l),private=True))
    return o
def sel_ops(x0,x1,m,g):
    return [valu('v_bfe_u32',m,vL,2,2), valu('v_lshrrev_b32',g,4,vL), valu('v_cmp_eq_u32','vcc',m,g), valu('v_and_b32',m,1,vL), valu('v_lshlrev_b32',m,4,m), valu('v_lshlrev_b32',m,m,sLO),
      valu('v_cndmask_b32',m,0,m), valu('v_and_b32',g,2,vL), valu('v_cmp_eq_u32','vcc',0,g), valu('v_mov_b32',x1,m), valu('v_mov_b32',g,m),
      valu('v_cndmask_b32',x0,0,m), valu('v_sub_u32',x1,m,x0)]
ntouch=[0]
def touch():
    if not OPT['touch']: return []
    k=ntouch[0]; ntouch[0]+=1
    o=[raw('s_mov_b64 exec, 0','salu')]
    for w in range(3): o+=[salu('s_cmp_eq_u32',sW,w), raw(f's_cbranch_scc1 L_pg{4*k+w}','misc')]
    o+=[raw(f's_branch L_pg{4*k+3}','misc'), label(f'L_tr{k}'), raw('s_mov_b64 exec, -1','salu')]
    for x in o[:-1]: x.meta['glue']=True
    return o

def lane_rp(rp,p,t):
    e(valu('v_lshrrev_b32',rp,3,vL), valu('v_and_b32',t,6,rp), valu('v_and_b32',p,7,vL), valu('v_xor_b32',p,p,t))
def addr_early():
    rp,p,t,u,kA=vT[2],vT[3],vT[4],vT[5],vT[6]
    lane_rp(rp,p,t)
    e(salu('s_and_b32',sT0,sW,1), salu('s_lshl_b32',sT0,sT0,4), salu('s_lshr_b32',sT1,sW,1), salu('s_lshl_b32',sT1,sT1,2), salu('s_add_u32',sT0,sT0,sT1))
    e(valu('v_and_b32',t,4,rp), valu('v_add_u32',kA,rp,t), valu('v_add_u32',kA,sT0,kA))
    e(salu('s_mul_i32',sT1,sJ,288), salu('s_lshl_b32',sT2,sJ1,5), salu('s_add_u32',sT2,sT2,sT1))
    e(salu('s_lshl_b32',sT3,sJ1,8), salu('s_sub_u32',sT3,256,sT3), salu('s_add_u32',sT3,sT3,sT1))
    e(salu('s_lshl_b32',sT0,sT2,1), valu('v_mul_u32_u24',t,9216,kA), valu('v_lshl_add_u32',t,p,4,t), valu('v_add_u32',vGF,sT0,t))
    e(salu('s_lshl_b32',sT0,sT3,1), valu('v_lshrrev_b32',t,2,p), valu('v_lshl_add_u32',t,t,5,kA), valu('v_mul_u32_u24',t,9216,t),
      valu('v_and_b32',u,3,p), valu('v_lshl_add_u32',t,u,4,t), valu('v_add_u32',vGH,sT0,t))
    e(salu('s_lshl_b32',sT0,sW,3), valu('v_add_u32',t,sT0,rp), valu('v_add_u32',u,sT2,t), valu('v_mul_u32_u24',u,1152,u), valu('v_lshl_add_u32',vDF,p,4,u),
      valu('v_add_u32',u,sT3,t), valu('v_mul_u32_u24',u,1152,u), valu('v_lshl_add_u32',vDH,p,4,u))
    g,r4,c,b=vT[2],vT[3],vT[6],vT[7]
    e(valu('v_bfe_u32',r4,vL,2,3), valu('v_and_b32',c,3,vL), valu('v_lshrrev_b32',g,5,vL),
      valu('v_lshlrev_b32',b,10,g), valu('v_lshl_add_u32',b,r4,7,b), valu('v_lshl_add_u32',b,c,3,b), valu('v_lshrrev_b32',t,1,r4))
    for q in range(4):
        e(valu('v_xor_b32',u,q,t), valu('v_lshl_add_u32',vTR[q][0],u,5,b), valu('v_add_u32',vTR[q][1],0x10000,vTR[q][0]), valu('v_add_u32',vTR[q][2],0x20000,vTR[q][0]))
def addr_qk():
    t=vT[4]
    e(salu('s_mul_i32',sT0,sJ,216), salu('s_and_b32',sT0,sT0,-16), salu('s_mul_i32',sT1,sW,32*3456), salu('s_add_u32',sT0,sT0,sT1))
    for q in range(7):
        pp,rr,k=vT[2],vT[3],vT[6]
        e(valu('v_add_u32',pp,64*q,vL), valu('v_mul_u32_u24',rr,4682,pp), valu('v_lshrrev_b32',rr,16,rr),
          valu('v_mul_u32_u24',t,14,rr), valu('v_sub_u32',pp,pp,t),
          valu('v_and_b32',t,12,rr), valu('v_and_b32',k,3,rr), valu('v_lshl_add_u32',k,t,1,k), valu('v_lshrrev_b32',t,4,rr), valu('v_lshl_add_u32',k,t,2,k),
          valu('v_mul_u32_u24',k,3456,k), valu('v_lshl_add_u32',k,pp,4,k), valu('v_add_u32',vQK[q],sT0,k))
        if q%4: e(valu('v_subrev_u32',vQK[q],1024*(q%4),vQK[q]))
def extpos(dst,key,t):
    e(valu('v_and_b32',dst,7,key), valu('v_bfe_u32',t,key,4,1), valu('v_lshl_add_u32',dst,t,3,dst),
      valu('v_bfe_u32',t,key,3,1), valu('v_xor_b32',t,1,t), valu('v_lshl_add_u32',dst,t,4,dst))
def addr_mid():
    t,u,c=vT[4],vT[5],vT[6]
    e(valu('v_and_b32',c,3,vL), salu('s_lshl_b32',sT0,sJ1,3), valu('v_lshrrev_b32',t,2,vL), valu('v_mul_u32_u24',t,224,t), valu('v_add_u32',t,sT0,t),
      valu('v_lshl_add_u32',vQM[0],c,3,t), valu('v_mul_u32_u24',u,72,c), valu('v_add3_u32',vQE[0],t,u,32))
    for n in (1,2): e(valu('v_add_u32',vQM[n],n*0x10000,vQM[0]), valu('v_add_u32',vQE[n],n*0x10000,vQE[0]))
def addr_mid2():
    t,u,key,hf=vT[4],vT[5],vT[2],vT[3]
    e(salu('s_lshl_b32',sT0,sI,2), salu('s_add_u32',sT0,sT0,sW), salu('s_mul_i32',sT0,sT0,1280), salu('s_mul_i32',sT1,sJ,6*SL), salu('s_add_u32',sT0,sT0,sT1))
    e(salu('s_lshr_b32',sT1,sXX,11), valu('v_xor_b32',u,sT1,vL), valu('v_and_b32',key,31,u), valu('v_lshrrev_b32',hf,5,vL), valu('v_lshlrev_b32',t,2,hf), valu('v_xor_b32',t,t,u), valu('v_lshlrev_b32',t,4,t), valu('v_add_u32',vSM,sT0,t))
    extpos(u,key,t)
    e(valu('v_lshlrev_b32',u,3,u), valu('v_add_u32',u,sT0,u), valu('v_add_u32',u,1024,u), valu('v_mul_u32_u24',t,4*SL,hf), valu('v_add_u32',vSE0,u,t),
      valu('v_lshl_add_u32',vSE1,hf,31,u))
    e(salu('s_mul_i32',sT0,sJ,6), valu('v_lshrrev_b32',t,4,vL), valu('v_lshl_add_u32',t,t,1,sT0), valu('v_mov_b32',u,f32(QSCALE)), valu('v_cmp_gt_u32','vcc',32,t), valu('v_cndmask_b32',vSCX,1.0,u))
    for p_ in range(3): e(valu('v_readlane_b32',sSC[p_],vSCX,16*p_))
    e(salu('s_lshl_b32',sT0,sI,2), salu('s_add_u32',sT0,sT0,sW), salu('s_lshl_b32',sT1,sT0,9), salu('s_add_u32',sT1,sT1,sJ), salu('s_lshl_b32',sT1,sT1,10),
      valu('v_lshl_add_u32',vPS,vL,4,sT1),
      salu('s_lshl_b32',sT1,sT0,7), salu('s_add_u32',sT1,sT1,sJ), salu('s_lshl_b32',sT1,sT1,9), valu('v_lshl_add_u32',vPX,vL,3,sT1))
    e(salu('s_lshl_b32',sT1,sT0,4), salu('s_add_u32',sT1,sT1,sJ), salu('s_lshl_b32',sT1,sT1,7), salu('s_add_u32',sT1,sT1,WS_F2), valu('v_mov_b32',t,sT1))
    masked(vF1,t,'v_cmp_eq_u32',0,vL,u)
    e(salu('s_lshl_b32',sT1,sM8,2), salu('s_add_u32',sT1,sT1,sW), salu('s_lshl_b32',sT1,sT1,3), salu('s_add_u32',sT1,sT1,sXC), salu('s_lshl_b32',sT1,sT1,9), salu('s_and_b32',sT2,sH,3), salu('s_lshl_b32',sT2,sT2,OPT['fsh']), salu('s_add_u32',sT1,sT1,sT2), salu('s_add_u32',sT1,sT1,WS_F3),
      valu('v_mov_b32',t,sT1))
    masked(vF3,t,'v_cmp_eq_u32',0,vL,u)
    e(valu('v_mov_b32',u,vF1), raw(f'v_writelane_b32 {u}, {sT1}, 1','valu',u.regs()+sT1.regs(),u.regs()),
      valu('v_mov_b32',t,0), cost(bstore(t,u,sWS,0,flags='sc1',tag='qkvst'),30))
    e(valu('v_and_b32',key,16,vL), valu('v_cmp_eq_u32','vcc',0,key), valu('v_cndmask_b32',hf,vR[1],vR[0]), valu('v_mul_f32',hf,hf,hf),
      salu('s_lshl_b32',sT0,sT0,7), salu('s_add_u32',sT0,sT0,WS_R2), valu('v_lshl_add_u32',key,vL,2,sT0), salu('s_lshl_b32',sT1,sJ,6), valu('v_add_u32',t,sT1,vL))
    masked(key,key,'v_cmp_gt_u32',32,t,u)
    e(bstore(hf,key,sWS,0,flags='sc1',tag='qkvst'))
def pf_code():
    if not OPT['pfc']: return
    t=vT[4]; a=V(6,2)
    e(raw('s_getpc_b64 s[100:101]','salu',[],['s100','s101']), label('L_pc'),
      salu('s_lshl_b32',sT0,sIDX,2), valu('v_add_u32',t,sT0,vT[0]), valu('v_lshl_add_u32',t,vL,7,t), valu('v_lshlrev_b32',t,7,t),
      raw(f'v_min_u32 {t}, L_codeend-L_pc-4, {t}','valu',t.regs(),t.regs()),
      raw(f'v_add_co_u32 {a[0]}, vcc, {sPC[0]}, {t}','valu',t.regs()+['s100'],a[0].regs()+['vcc']), valu('v_mov_b32',a[1],sPC[1]), raw('s_mov_b64 exec, 63','salu'),
      raw(f'v_addc_co_u32 {a[1]}, vcc, 0, {a[1]}, vcc','valu',a[1].regs()+['vcc'],a[1].regs()+['vcc']),
      I(f'global_load_dword {vPF}, {a}, off','vld',a.regs(),vPF.regs(),tag='pf'), raw('s_mov_b64 exec, -1','salu'))

GR=[V(38,4),V(42,4)]; MEAN=[V(46),V(47)]
def var_ops(tt):
    d=GR[tt]; t=vT[4]; b=d[0]
    e(valu('v_and_b32',t,1,vL), valu('v_cmp_eq_u32','vcc',0,t), valu('v_and_b32',t,2,vL), valu('v_cndmask_b32',d[0],d[1],d[0]), valu('v_cndmask_b32',d[2],d[3],d[2]),
      valu('v_cmp_eq_u32','vcc',0,t), valu('v_bfe_u32',t,vL,2,2), valu('v_cndmask_b32',d[0],d[2],d[0]), valu('v_lshrrev_b32',d[1],4,vL), valu('v_cmp_eq_u32','vcc',t,d[1]),
      valu('v_cndmask_b32',b,0,b))
    for op in ('v_permlane16_swap_b32','v_permlane32_swap_b32'): e(valu('v_mov_b32',d[1],b), swap(op,b,d[1]), valu('v_add_f32',b,b,d[1]))
    e(valu('v_mul_f32',b,f32(1/576),b), valu('v_fma_f32',b,'-'+str(MEAN[tt]),MEAN[tt],b), valu('v_max_f32',b,0,b), valu('v_cvt_pk_bf16_f32',b,b,b), valu('v_lshlrev_b32',b,16,b),
      valu('v_add_f32',b,f32(1e-5),b), valu('v_cvt_pk_bf16_f32',b,b,b), valu('v_lshlrev_b32',b,16,b),
      valu('v_sqrt_f32',b,b), valu('v_cvt_pk_bf16_f32',b,b,b), valu('v_lshlrev_b32',b,16,b), valu('v_rcp_f32',vR[tt],b))
def centre_ops(f,tt):
    o=[]; t=V(252)
    for d in range(4):
        x=f[d]
        o+=[valu('v_lshlrev_b32',t,16,x), valu('v_and_b32',x,0xffff0000,x), valu('v_sub_f32',t,t,vM[tt]), valu('v_sub_f32',x,x,vM[tt]), valu('v_cvt_pk_bf16_f32',x,t,x)]
    return o
def to_acc(s): return [valu('v_accvgpr_write_b32',XC0[4*s+d],X0[s][d]) for d in range(4)]

class Item:
    def __init__(s,name,n,mk): s.name=name; s.n=n; s.mk=mk; s.addr=None; s.first=None; s.last=None; s.pushed=False
    def blks(s): return list(range(s.addr//4096,s.addr//4096+s.n))
def blk_item(name,voff,srd,soff,buf=False,c=80):
    def mk(it):
        o=[salu('s_add_u32','m0',sW1K,it.addr)]
        if buf: return o+[salu('s_mov_b32',sSO,soff), cost(dma(voff,srd,sSO,tag=it.name,dst=it.blks()),c)]
        return o+base_add(sBD,srd,soff)+[cost(gdma(voff,sBD,tag=it.name,dst=it.blks()),c)]
    return Item(name,1,mk)
def qkv_item(a):
    def mk(it):
        o=[salu('s_mov_b32',sSO,a*128*3456)] if a==4 else base_add(sBD,sWQ,a*128*3456)
        for q in range(7):
            if q%4==0: o.append(salu('s_add_u32','m0',sW7K,it.addr+q*1024))
            if a==4: o.append(dma(vQK[q],sWQ,sSO,(q%4)*1024,tag=it.name,dst=it.blks()))
            else: o.append(cost(gdma(vQK[q],sBD,(q%4)*1024,tag=it.name,dst=it.blks()),120))
        return o
    return Item(('q',a),7,mk)
def kv_item(sg):
    def mk(it):
        o=[]
        for q in range(5):
            if q%4==0: o+=[salu('s_add_u32','m0',sW5K,it.addr+q*1024)]+base_add(sBD,sWS,WS_QKV+sg*10240+q*1024)
            o.append(gdma(vKV,sBD,(q%4)*1024,flags='sc1',tag=it.name,dst=it.blks())); o[-1].rd.append('ok_f1')
        return o
    return Item(('kv',sg),5,mk)

class Group:
    def __init__(s): s.m=[]; s.rd=[]; s.bar=False; s.fr=[]
frp=[0]
def newfrag():
    f=FR[frp[0]:frp[0]+4]; frp[0]=(frp[0]+4)%FR.n; return f
def tr_read(f,u,it,seg):
    return dsr('ds_read_b64_tr_b16',f[2*u:2*u+2],vTR[seg][it.addr>>16],(it.addr&0xffff)+u*2048,src=(it.name,it.blks()))
def xc(tt,s): return (XC0 if tt==0 else XC1)[4*s:4*s+4]
def hfrag(k,tt): return HH[8*k+4*tt:8*k+4*tt+4]

items=[]; groups=[]; events=[]
def mm_group(srcs,accs,bfun,bar=False):
    g=Group(); g.bar=bar
    for it,seg,k in srcs:
        f=newfrag(); g.fr.append(f)
        for u in range(2): g.rd.append((it,lambda it,f=f,u=u,seg=seg: tr_read(f,u,it,seg)))
    for tt in range(2):
        for (it,seg,k),f in zip(srcs,g.fr):
            g.m.append(m16(accs[tt],f,bfun(k,tt),0 if k==0 else accs[tt]))
    groups.append(g); return len(groups)-1

def h_epilogue(bank,q,kout,half):
    gt=[bank[16*q+4*tt:16*q+4*tt+4] for tt in range(2)]; up=[bank[16*q+8+4*tt:16*q+12+4*tt] for tt in range(2)]
    o=[]
    for tt in range(2):
        for r in range(4): o.append(valu('v_max_f32',gt[tt][r],0,gt[tt][r]))
    for tt in range(2):
        for r in range(4): o.append(valu('v_mul_f32',up[tt][r],gt[tt][r],up[tt][r]))
        for d in range(2): o.append(valu('v_cvt_pk_bf16_f32',gt[tt][d],up[tt][2*d],up[tt][2*d+1]))
        for d in range(2): o.append(valu('v_accvgpr_write_b32',hfrag(kout,tt)[2*half+d],gt[tt][d]))
    return o
NV0=15
X0=[V(192+4*s,4) for s in range(NV0)]+[V(128+4*s,4) for s in range(18-NV0)]
def build_chunk(c,bank):
    xf=lambda k,tt: X0[k] if (c==0 and tt==0 and k<NV0) else xc(tt,k)
    cuts=list(range(0,19,OPT['chain']))
    if c==0: cuts=list(range(0,19,3)) if OPT['c0ch']==3 else [0,3,6,12,15,18]
    for st,(k0,k1) in enumerate(zip(cuts,cuts[1:])):
        G=[blk_item(('g',c,k),vGF,sWG,k*32*9216+c*128) for k in range(k0,k1)]
        U=[blk_item(('u',c,k),vGF,sWU,k*32*9216+c*128) for k in range(k0,k1)]
        items.extend(G+U)
        for q in range(4):
            mm_group([(G[k-k0],q,k) for k in range(k0,k1)],[bank[16*q+4*tt:16*q+4*tt+4] for tt in range(2)],xf,bar=(q==0))
        for q in range(4):
            gi=mm_group([(U[k-k0],q,k) for k in range(k0,k1)],[bank[16*q+8+4*tt:16*q+12+4*tt] for tt in range(2)],xf,bar=(q==0 and (k1-k0>3 or OPT['bartr'] or (c==0 and st<OPT.get('bar0',2)))))
            if k1==18: events.append((gi,h_epilogue(bank,q,2*c+(q>>1),q&1)))
def build_half(bank):
    for st in range(3):
        G=[blk_item(('gh',3*st+n),vGH,sWG,(3*st+n)*64*9216,c=150) for n in range(3)]
        U=[blk_item(('uh',3*st+n),vGH,sWU,(3*st+n)*64*9216,c=150) for n in range(3)]
        items.extend(G+U)
        seq=[(G,0,0),(G,0,1),(U,8,0),(U,8,1)] if st<2 else [(G,0,0),(U,8,0),(G,0,1),(U,8,1)]
        for z,(M,o,q) in enumerate(seq):
            ch=OPT['chain']
            for hh in range(6//ch):
                ks=[6*st+ch*hh+n for n in range(ch)]
                gi=mm_group([(M[(k-6*st)>>1],2*(k&1)+q,k) for k in ks],[bank[16*q+o+4*tt:16*q+o+4+4*tt] for tt in range(2)],lambda k,tt:xc(tt,k),bar=(hh==0 and (z==0 or (z==2 and st<2 and OPT['bartr']))))
            if st==2 and o==8: events.append((gi,h_epilogue(bank,q,8,q)))
def build_qkv(bank):
    for a in range(5):
        it=qkv_item(a); items.append(it)
        first=True
        qc=OPT['qch'] if a<4 else 2
        for k0 in range(0,4 if a<4 else 2,qc):
            for t in range(7):
                g=Group(); g.bar=first; first=False
                for kk in range(k0,k0+qc):
                    f=newfrag(); g.fr.append(f)
                    for u in range(2):
                        def rd(it,f=f,u=u,kk=kk,t=t):
                            ad=it.addr+kk*7168+u*3584+(0 if t==6 else 72*(t>>1)+40*(t&1))
                            return dsr('ds_read_b64_tr_b16',f[2*u:2*u+2],(vQE if t==6 else vQM)[ad>>16],ad&0xffff,src=(it.name,it.blks()))
                        g.rd.append((it,rd))
                for tt in range(2):
                    acc=bank[8*t+4*tt:8*t+4*tt+4]
                    for n,kk in enumerate(range(k0,k0+qc)):
                        k=4*a+kk
                        g.m.append(m16(acc,g.fr[n],xc(tt,k),0 if k==0 else acc))
                groups.append(g)
                if a==4: events.append((len(groups)-1,qkv_epilogue(bank,t)))
def st_pair(o,data,voff,soff,tag,x=None):
    a=salu('s_mov_b32',sSO2,soff) if x is None else salu('s_xor_b32',sSO2,x,soff); b=bstore(data,voff,sWS,sSO2,flags='sc1',tag=tag)
    dep=[x for x in o if x.kind=='valu'][-1]
    a.meta['q']='st'; b.meta['q']='st'; b.meta['dep']=dep
    o+=[a,b]
def qkv_epilogue(bank,t):
    o=[]
    sc=[bank[56],bank[57]]
    if t==6: o+=[valu('v_mul_f32',sc[tt],vSCX,vR[tt]) for tt in range(2)]
    elif t%2==0: o+=[valu('v_mul_f32',sc[tt],sSC[t>>1],vR[tt]) for tt in range(2)]
    a=bank[8*t:8*t+8]
    for tt in range(2):
        for r in range(4): o.append(valu('v_mul_f32',a[4*tt+r],sc[tt],a[4*tt+r]))
    if t<6:
        o+=[valu('v_cvt_pk_bf16_f32',a[0],a[0],a[1]), valu('v_cvt_pk_bf16_f32',a[1],a[2],a[3]), valu('v_cvt_pk_bf16_f32',a[2],a[4],a[5]), valu('v_cvt_pk_bf16_f32',a[3],a[6],a[7]),
            swap('v_permlane16_swap_b32',a[0],a[2]), swap('v_permlane16_swap_b32',a[1],a[3])]
        st_pair(o,a[0:4],vSM,WS_QKV+t*SL,'qkvst')
    else:
        o+=[valu('v_cvt_pk_bf16_f32',a[0],a[0],a[1]), valu('v_cvt_pk_bf16_f32',a[2],a[2],a[3]), valu('v_cvt_pk_bf16_f32',a[4],a[4],a[5]), valu('v_cvt_pk_bf16_f32',a[6],a[6],a[7])]
        o+=[valu('v_mov_b32',a[n],sONES) for n in (1,3,5,7)]
        o+=[swap('v_permlane16_swap_b32',a[0],a[4]), swap('v_permlane16_swap_b32',a[2],a[6])]
        for n,(vo,sl) in enumerate(((vSE0,0),(vSE0,1),(vSE1,2),(vSE1,3))):
            st_pair(o,a[2*n:2*n+2],vo,WS_QKV+sl*SL,'qkvst')
    return o
pool=[0]
def build_down():
    ntr=0
    if OPT['chain']==3: seq=[(c,3*tr,3*tr+3) for c,tr in [(0,0),(0,1),(1,0),(1,1),(0,2),(1,2)]+[(c,tr) for c in range(2,9) for tr in range(3)]]
    else:
        seq=[(0,0,6),(1,0,6),(0,6,9),(1,6,9)]
        for c in range(2,9): seq+=[(c,0,6),(c,6,9)] if c%2==0 else [(c,0,3),(c,3,9)]
    for c,k0,k1 in seq:
        acc=V(192 if c==0 else 128+32*((c+1)%2),32)
        tr=2 if k1==9 else 0
        if True:
            B=[blk_item(('d',c,k),vDF if k<8 else vDH,sWD,(k*32*1152 if k<8 else 0)+c*128) for k in range(k0,k1)]
            items.extend(B)
            for q in range(4):
                gi=mm_group([(B[k-k0],q,k) for k in range(k0,k1)],[acc[16*tt+4*q:16*tt+4*q+4] for tt in range(2)],hfrag,bar=(q==0 and (ntr%2==0 or OPT['bartr'])))
                if tr==2 and q%2==1:
                    o=[]
                    for tt in range(2):
                        a=acc[16*tt+4*(q-1):16*tt+4*(q-1)+8]
                        d4=XC1[pool[0]:pool[0]+4]; pool[0]=(pool[0]+4)%72
                        o+=[valu('v_cvt_pk_bf16_f32',d4[d],a[2*d],a[2*d+1]) for d in range(4)]
                        if c<8: st_pair(o,d4,vPS,WS_P+(tt*16+c*2+(q>>1))*16384,'pst',sXP)
                        else:
                            for z in range(2): st_pair(o,d4[2*z:2*z+2],vPX,WS_PX+(tt*4+q-1+z)*8192,'pst',sXX)
                    events.append((gi,o))
            ntr+=(k1-k0)//3

marks={}
def build_ffn():
    marks['c0']=len(groups); build_chunk(0,BANK[0])
    marks['c1']=len(groups); build_chunk(1,BANK[1])
    marks['qkv']=len(groups); build_qkv(BANK[0])
    marks['c2']=len(groups); build_chunk(2,BANK[1])
    marks['c3']=len(groups); build_chunk(3,BANK[0])
    marks['half']=len(groups); build_half(V(224,32))
    marks['down']=len(groups); build_down()

NB=39 if OPT['split'] else 40; LATE=10**9
SIG=13 if OPT['split'] else 1
vCA,vCV=V(54),vT[7]
def plan():
    L=OPT['look']
    n=0; bars=[]
    for g in groups:
        g.start=n
        if g.bar: bars.append(n-L)
        for k,(it,_) in enumerate(g.rd):
            if it.first is None: it.first=n+k-L
            it.last=n-1+(0 if len(g.fr)<=3 else (k//4)*2)
        n+=len(g.m)
    free={b:(-3000 if b>=36 else (-2000 if b<18 else -L)) for b in range(NB)}
    ptr=36
    for it in items:
        if ptr+it.n>NB: ptr=0
        it.addr=ptr*4096
        it.early=max(free[b] for b in it.blks())
        assert it.early<LATE
        it.bar=max(b for b in bars if b<=it.first)
        nxt=[b for b in bars if b-SIG>=it.last]
        for b in it.blks(): free[b]=nxt[0] if nxt else LATE
        ptr=(ptr+it.n)%NB
    return n,bars,free

VM=('dma','vld','vst')
SC=('salu','waitfor','misc','label')
lastvm=dict(any=-100,st=-100)
def head(nm,gap):
    q=fifo[nm]
    if not q or q[0][0]>gap: return None
    x=q[0][1]
    if 'lag' in x.meta and x.meta['lag'][0].meta.get('at',LATE)+x.meta['lag'][1]>gap: return None
    sq=x.meta['seq']; rd=set(x.rd)-{'carry'}; wr=set(x.wr)-{'carry'}
    for n2,q2 in fifo.items():
        if n2==nm: continue
        for _,y in q2:
            if y.meta['seq']>sq: break
            if rd&set(y.wr) or wr&set(y.rd) or wr&set(y.wr): return None
    return x
pipe=[0,16]
def vm_ready(gap,mingap,stgap,order=('st','ld','low','dma')):
    if gap-lastvm['any']<mingap: return None
    if pipe[0]-gap*pipe[1]>OPT['back']: return None
    for nm in order:
        x=head(nm,gap)
        if x is None or x.kind not in VM: continue
        if nm=='st':
            d=x.meta.get('dep')
            if gap-lastvm['st']<stgap or (d is not None and d.meta.get('at',LATE)>gap-2): continue
        return nm
    return None
def take(nm,gap):
    x=fifo[nm].pop(0)[1]
    if x.kind in VM:
        lastvm['any']=gap
        pipe[0]=max(pipe[0],gap*pipe[1])+x.meta.get('cost',80)
        if nm=='st': lastvm['st']=gap
    e(x)
    nx=[y for _,y in fifo[nm][:6] if 'vcc' in y.rd or 'vcc' in y.wr]
    if nx and 'vcc' in nx[0].rd: vcc_open[0]=nm
    elif vcc_open[0]==nm: vcc_open[0]=None
    while x.meta.get('glue'):
        x=fifo[nm].pop(0)[1]; e(x)
    return x
vcc_lock=[LATE]; vcc_open=[None]
def pull(gap,scalar):
    order=('arr','dma','st','ctr','epi','ld','low')
    if scalar:
        for nm in order:
            x=head(nm,gap)
            if x is not None and 'carry' in x.rd: take(nm,gap); return True
    elif vcc_open[0]: order=(vcc_open[0],)+order
    for nm in order:
        x=head(nm,gap)
        if x is None or x.kind in VM: continue
        if (x.kind in SC)!=scalar: continue
        if 'vcc' in x.wr and not x.meta.get('glue') and vcc_lock[0]<OPT.get('vlock',22): continue
        take(nm,gap); return True
    return False

bar_extra={}
def emit_backbone(bars,gapstamps):
    L=OPT['look']
    reads=[(it,f,g.start-0.5) for g in groups for it,f in g.rd]
    ev={}
    for gi,ops in events: ev.setdefault(gi,[]).append(ops)
    bar_items={}
    for it in items: bar_items.setdefault(it.bar,[]).append(it.name)
    barset=set(bars); issue={}
    fixed={}; fixT={}
    nb=len([b for b in bars if b>=SIG and OPT['split']]); kb=0
    for gi,g in enumerate(groups):
        for k in range(len(g.m)):
            gap=g.start+k; fx=[]
            w_lg=list(groups[gi+1].fr) if (k==len(g.m)-1 and gi+1<len(groups)) else []
            if len(w_lg)>3: w_lg=w_lg[:2]
            if len(g.fr)>3 and k in (1,3): w_lg=g.fr[k+1:k+3]
            w_vm=[]
            for d in (1,SIG):
                b=gap+d
                if b in barset and d==(SIG if b>=SIG else 1): w_vm=bar_items.get(b,[])+bar_extra.get(b,[])
            if OPT['split']:
                if gap+SIG in barset: x=dsw('ds_sub_u32',vCA,vONE); x.meta['signal']=True; fixT[gap]=x
                if gap+7 in barset and gap+7>=SIG: assert gap not in fixT; fixT[gap]=dsr('ds_read_b32',vCV,vCA)
                if gap+1 in barset and gap+1>=SIG:
                    kb+=1; assert gap not in fixT
                    fixT[gap]=valu('v_cmp_lt_u32','vcc',4*(nb-kb),vCV); w_lg.append(vCV)
                    OUT.extend([f'L_sb{kb}:', f'ds_read_b32 {vCV}, {vCA}', 's_waitcnt lgkmcnt(0)', fixT[gap].text, 's_nop 0', f's_cbranch_vccnz L_sb{kb}', f's_branch L_sr{kb}'])
            if gap in barset:
                if OPT['split'] and gap>=SIG: fx.append([raw(f's_cbranch_vccnz L_sb{kb}','misc',['vcc'],check=True,glue=True), label(f'L_sr{kb}')])
                else: fx.append([barrier()])
            if w_lg or w_vm: fx.append([waitfor(lg=w_lg,vmtags=w_vm)])
            fixed[gap]=fx
    def stgap_at(gap):
        dn=gap>=groups[marks['down']].start
        iv=len([b for b in bars if b<=gap])
        if iv%OPT['stper' if dn else 'qstper']: return LATE
        return OPT['stgap' if dn else 'qstgap']
    ri=[L]
    def rd():
        it,f,lg=reads[ri[0]]; ri[0]+=1; e(setseq(f(it),lg))
    planned=None
    for gi,g in enumerate(groups):
        for k,m in enumerate(g.m):
            gap=g.start+k
            if gap-1 in extra:
                cur[0]=gap-0.7
                e(*extra[gap-1])
                if extra[gap-1][-1].kind=='mfma':
                    for _ in range(extra[gap-1][-1].passes-3): pull(gap-1,False)
            cur[0]=gap
            e(m)
            if gap in gapstamps: stamp(gapstamps[gap])
            if 'gst' in OPT and gap in range(*map(int,OPT['gst'].split(':'))): stamp(f'gap{gap}',True)
            if planned:
                x=take(planned,gap); planned=None
                if x.kind=='dma': issue[x.meta['tag']]=gap
                continue
            fx=fixed[gap]
            if fx: e(*fx.pop(0))
            else: pull(gap,True)
            if ri[0]<len(reads) and ri[0]<=gap+L: rd()
            used=False
            if fx: e(*fx.pop(0)); used=True
            if gap in fixT:
                e(fixT[gap]); used=True
                if fixT[gap].kind=='valu': continue
            lag=ri[0]<len(reads) and ri[0]<=gap+L
            if lag:
                if not used: rd()
                continue
            if gap+1 in fixed and not fixed[gap+1] and gap+1 not in fixT: planned=vm_ready(gap+1,OPT['dmagap'],stgap_at(gap+1))
            if used: continue
            if planned:
                if ri[0]<len(reads) and reads[ri[0]][0].bar<=gap: rd()
                continue
            vcc_lock[0]=min([b for b in bars if b>gap]+[LATE])-gap if OPT['split'] else LATE
            if not pull(gap,False): pull(gap,True)
        for ops in ev.get(gi,[]):
            for o in ops: push(o.meta.get('q','epi'),gap+4,[o])
    vcc_lock[0]=LATE
    sl=[(it.bar-SIG-issue[it.name],it.name) for it in items if it.name in issue]
    sl.sort(); print('min dma slack (gaps):',sl[:6])
    print('left after backbone:',{k:len(v) for k,v in fifo.items()})

OUT=[]
HOT=[]
def spin(name,load,expect,sleep=8):
    a=valu('v_cmp_gt_u32','vcc',expect,vPOLL); a.meta['glue']=True
    b=raw(f's_cbranch_vccnz L_spin_{name}','misc',['vcc']); b.meta['glue']=True
    c=label(f'L_back_{name}')
    cnt=vT[6]
    OUT.extend([f'L_spin_{name}:', f'v_mov_b32 {cnt}, 0x40000', f'L_spinl_{name}:', load.text, 's_waitcnt vmcnt(0)', f'v_cmp_gt_u32 vcc, {fmt(expect)}, {vPOLL}', 's_nop 1',
        f's_cbranch_vccz L_back_{name}', f'v_subrev_u32 {cnt}, 1, {cnt}', f'v_cmp_ne_u32 vcc, 0, {cnt}', f's_sleep {sleep}', f's_cbranch_vccnz L_spinl_{name}', f's_branch L_back_{name}'])
    a.wr.append(cnt.regs()[0]); a.wr.append('ok_'+name)
    return [a,b,c]

def addr_att(WB):
    t,u,key,hf,p,rp=vT[0],vT[1],vT[2],vT[3],vT[4],vT[5]
    e(valu('v_and_b32',key,31,vL), valu('v_lshrrev_b32',hf,5,vL), valu('v_lshlrev_b32',t,2,hf), valu('v_xor_b32',t,t,vL), valu('v_lshlrev_b32',vKM,4,t))
    extpos(u,key,t)
    e(valu('v_lshlrev_b32',vKE,3,u), valu('v_add_u32',vKE,1024,vKE))
    e(salu('s_lshr_b32',sT0,sW,1), salu('s_lshl_b32',sT0,sT0,5), salu('s_add_u32',sT0,sT0,sH), salu('s_add_u32',sT0,sT0,32), salu('s_mul_i32',sT0,sT0,SL),
      salu('s_and_b32',sT1,sW,1), salu('s_mul_i32',sT1,sT1,5120), salu('s_add_u32',sT0,sT0,sT1), valu('v_lshl_add_u32',vKV,vL,4,sT0))
def addr_z(): e(valu('v_and_b32',vZ,1,vL), valu('v_lshlrev_b32',vZ,7,vZ))
def qk_loads(WB):
    t,u,hf=vT[0],vT[1],vT[3]
    e(salu('s_mov_b32',sSO3,WS_R2), cost(bload(vR2,vR2,sWS,sSO3,flags='sc1'),40))
    e(valu('v_lshrrev_b32',hf,5,vL), valu('v_mul_u32_u24',u,1280,hf), valu('v_add_u32',u,u,vKE))
    e(salu('s_lshl_b32',sT0,sM8,2), salu('s_add_u32',sT0,sT0,sW), salu('s_mul_i32',sT0,sT0,2560), salu('s_mul_i32',sT1,sH,SL), salu('s_add_u32',sSO3,sT0,sT1))
    for x in range(2): e(bload(QM[x],vKM,sWS,sSO3,x*1280,flags='sc1'))
    e(cost(bload(QE[0],u,sWS,sSO3,0,flags='sc1'),40))
    e(salu('s_add_u32',sSO3,sT1,32*SL))
    for x in range(2): e(bload(KM[x],vKM,sWS,sSO3,x*1280,flags='sc1'), cost(bload(KE[x],vKE,sWS,sSO3,x*1280,flags='sc1'),40))
    e(valu('v_add_u32',vKM,WB,vKM), valu('v_add_u32',vKE,WB,vKE), valu('v_mov_b32',QE[1],0), valu('v_mov_b32',vIDX,0xdddd))
def zero_o():
    for x in range(2):
        for r in range(16): e(valu('v_mov_b32',OO[x][r],0))
def sel_acc():
    x0,x1,m,g=vT[0],vT[1],vT[4],vT[5]
    e(*sel_ops(x0,x1,m,g))
    for k,x in enumerate((0,0,x0,x1,x0,x1,0,0)): e(valu('v_accvgpr_write_b32',SELA[k],x))
def addr_lds(WB):
    t,hf=vT[0],vT[3]
    e(valu('v_lshrrev_b32',hf,5,vL))
    c,r,k,x=vT[4],vT[5],vT[6],vT[1]
    e(valu('v_and_b32',c,3,vL), valu('v_bfe_u32',r,vL,2,2), valu('v_lshl_add_u32',r,hf,3,r))
    for n in range(4):
        uu,y=n>>1,n&1
        e(valu('v_add_u32',k,16*uu+4*y,r))
        extpos(x,k,t)
        e(valu('v_lshlrev_b32',x,3,x), valu('v_min_u32',t,1,c), valu('v_mul_u32_u24',t,LDS_OOB+64,t), valu('v_xor_b32',x,x,t), valu('v_add_u32',x,1024,x))
        e(valu('v_lshrrev_b32',t,1,c), valu('v_mul_u32_u24',t,36,t), valu('v_xor_b32',k,k,t), valu('v_lshlrev_b32',k,4,k), valu('v_and_b32',t,1,c), valu('v_lshl_add_u32',k,t,3,k))
        e(valu('v_and_b32',t,16,vL), valu('v_cmp_eq_u32','vcc',0,t), valu('v_cndmask_b32',k,x,k), valu('v_add_u32',vVA[n],WB,k))
def x_loads(): return [cost(bload(XR[2*q:2*q+2],vXO,sX,0,32*q),260) for q in range(4)]+[cost(bload(XR[8:10],vXOX,sX,0),200)]
def addr_fin():
    t,u,p,rp,a,b=vT[0],vT[1],vT[4],vT[5],vT[6],vT[3]
    lane_rp(rp,p,t)
    e(salu('s_and_b32',sT0,sW,1), salu('s_lshr_b32',sT1,sW,1), salu('s_mul_i32',sT2,sT0,20), salu('s_lshl_b32',sT3,sT1,3), salu('s_add_u32',sT2,sT2,sT3), valu('v_add_u32',a,sT2,rp),
      salu('s_mul_i32',sT2,sT0,144), salu('s_mul_i32',sT3,sT1,36), salu('s_add_u32',sT2,sT2,sT3), salu('s_add_u32',sT2,sT2,16),
      valu('v_lshrrev_b32',t,2,rp), valu('v_mul_u32_u24',t,72,t), valu('v_and_b32',b,3,rp), valu('v_add3_u32',b,b,t,sT2))
    e(salu('s_and_b32',sT0,sIDX,7), salu('s_lshl_b32',sT1,sT0,7), valu('v_lshl_add_u32',u,p,4,sT1),
      valu('v_mul_u32_u24',t,1152,a), valu('v_add_u32',vWO,t,u), valu('v_mul_u32_u24',t,1152,b), valu('v_add_u32',vWOE,t,u))
    e(salu('s_lshr_b32',sT2,sT0,1), salu('s_lshl_b32',sT2,sT2,5), salu('s_add_u32',sT2,sT2,1024), valu('v_and_b32',u,1,p), valu('v_lshl_add_u32',u,u,4,sT2), valu('v_lshrrev_b32',p,1,p),
      valu('v_mul_u32_u24',t,36,p), valu('v_add_u32',t,t,a), valu('v_mul_u32_u24',t,1152,t), valu('v_add_u32',vWX,t,u),
      valu('v_mul_u32_u24',t,288,p), valu('v_add_u32',t,t,b), valu('v_mul_u32_u24',t,1152,t), valu('v_add_u32',vWXE,t,u))
    e(salu('s_lshr_b32',sT3,sIDX,3), salu('s_lshl_b32',sT3,sT3,2), salu('s_add_u32',sT3,sT3,sW), salu('s_lshl_b32',sSO3,sXC,4), salu('s_add_u32',sT3,sT3,sSO3))
    tk,g=vT[4],vT[5]
    e(valu('v_and_b32',tk,15,vL), valu('v_lshrrev_b32',g,4,vL))
    e(salu('s_lshl_b32',sSO3,sT3,3), salu('s_add_u32',sSO3,sSO3,sT0), salu('s_lshl_b32',sSO3,sSO3,15), valu('v_lshl_add_u32',vPL,vL,4,sSO3))
    e(salu('s_xor_b32',sSC[0],sW,sT0), salu('s_lshl_b32',sSC[0],sSC[0],31))
    e(salu('s_lshl_b32',sSO3,sT3,2), salu('s_lshr_b32',sSC[1],sT0,1), salu('s_add_u32',sSO3,sSO3,sSC[1]), salu('s_lshl_b32',sSO3,sSO3,13), salu('s_or_b32',sSO3,sSO3,sSC[0]), valu('v_lshl_add_u32',vPLX,vL,3,sSO3))
    e(salu('s_lshl_b32',sSO3,sT3,4), valu('v_add_u32',a,sSO3,tk), valu('v_lshlrev_b32',vR2,2,a), valu('v_mul_u32_u24',a,1152,a), valu('v_lshl_add_u32',a,g,3,a),
      valu('v_add_u32',vXO,sT1,a), salu('s_or_b32',sT2,sT2,sSC[0]), valu('v_add_u32',vXOX,sT2,a))
    if not OPT['xat']: e(*x_loads())
    e(salu('s_and_b32',sSO3,sT3,1), salu('s_lshl_b32',sSO3,sSO3,4), valu('v_add_u32',a,sSO3,tk), salu('s_lshr_b32',sSC[1],sT3,1),
      salu('s_lshl_b32',sSO3,sSC[1],15), valu('v_lshl_add_u32',t,a,4,sSO3), valu('v_lshl_add_u32',vOL,g,9,t),
      salu('s_lshl_b32',sSO3,sSC[1],12), valu('v_lshl_add_u32',t,a,2,sSO3), valu('v_lshl_add_u32',vOLX,g,9,t))
    e(salu('s_lshr_b32',sSO3,sT3,2), salu('s_lshl_b32',sSO3,sSO3,12), salu('s_add_u32',sSO3,sSO3,WS_F3), valu('v_bfe_u32',t,vL,2,3), valu('v_lshl_add_u32',t,t,9,sSO3), valu('v_and_b32',u,3,vL), valu('v_lshl_add_u32',vF3L,u,OPT['fsh'],t), valu('v_and_b32',t,31,vL))
    for n in range(4): e(*base_add(sOB[n],sWS,WS_O+8192*n+4096))
    e(*base_add(S(88,2),sWS,WS_O), *base_add(S(90,2),sWS,WS_O+32768))
    e(salu('s_lshr_b32',sSO3,sT3,1), salu('s_lshl_b32',sSO3,sSO3,11), salu('s_add_u32',sSO3,sSO3,WS_F2), valu('v_lshl_add_u32',vPG,tk,7,sSO3))
    e(salu('s_lshl_b32',sT0,sM8,2), salu('s_add_u32',sT0,sT0,sW), salu('s_lshl_b32',sT1,sT0,16), salu('s_lshl_b32',sT2,sH,10), salu('s_add_u32',sT1,sT1,sT2),
      valu('v_lshl_add_u32',vOS,vL,4,sT1),
      salu('s_lshl_b32',sT1,sT0,13), salu('s_lshl_b32',sT2,sH,7), salu('s_add_u32',sT1,sT1,sT2), salu('s_add_u32',sT1,sT1,WS_OX),
      valu('v_lshl_add_u32',t,t,2,sT1), valu('v_lshrrev_b32',u,5,vL), valu('v_lshl_add_u32',vOSX,u,12,t))

def max_ops(srcs,m,first=True):
    o=[]
    regs=[s[r] for s in srcs for r in range(16)]
    if first: o.append(valu('v_max3_f32',m,regs[0],regs[1],regs[2])); rest=regs[3:]
    else: rest=regs
    while len(rest)>=2: o.append(valu('v_max3_f32',m,m,rest[0],rest[1])); rest=rest[2:]
    if rest: o.append(valu('v_max_f32',m,m,rest[0]))
    return o
def set_shift(mx,margin):
    m,t=mx
    return [swap('v_permlane32_swap_b32',m,t), valu('v_max_f32',m,m,t), valu('v_sub_f32',m,f32(-margin) if margin else 0,m),
            valu('v_cvt_pk_bf16_f32',t,m,m), valu('v_lshlrev_b32',t,16,t), valu('v_sub_f32',t,m,t), valu('v_cvt_pk_bf16_f32',QE[1],m,t)]
def Bx(tau,buf=None): return m2b(buf or SBB[tau%3],KE[tau%3],QE,0)
def Mx(tau,x,buf=None): b=(buf or SBB[tau%3])[16*x:16*x+16]; return m32(b,KM[tau%3],QM[x],b)
def PV(tau,x,h,buf=None): return smf(OO[x],VV[tau&1][4*h:4*h+4],(buf or SBB[tau%3])[16*x+8*h:16*x+8*h+8],vIDX)
def vread(kv,WB,tau,n):
    it=kv[tau>>3]; off=it.addr-WB+10240+(tau&7)*1280
    return dsr('ds_read_b64_tr_b16',VV[tau&1][2*n:2*n+2],vVA[n],off,src=(it.name,it.blks()))
extra={}
def att_setup(ngaps,kv,WB):
    g=ngaps-OPT['at0']
    extra[g]=[waitfor(vm=QM+KM[:2]+KE[:2]+[QE[0]]), Bx(0)]; extra[g+2]=[Bx(1)]
    extra[g+8]=[Mx(0,0)]; extra[g+10]=[Mx(1,0)]; extra[g+12]=[Mx(0,1)]; extra[g+14]=[Mx(1,1)]
    mx=[vT[0],vT[1]]
    for x in range(2): push('ctr',g+17+4*x,max_ops([SBB[0][16*x:16*x+16],SBB[1][16*x:16*x+16]],mx[x]),g+16)
    push('ctr',g+21,set_shift(mx,MARGIN),g+16)
    extra[ngaps-18]=[Bx(0)]; extra[ngaps-9]=[Mx(0,0)]+[vread(kv,WB,0,n) for n in range(2)]; extra[ngaps-5]=[Mx(0,1)]+[vread(kv,WB,0,n) for n in range(2,4)]

def attention(g0,kv,WB,wo_items):
    base=g0+100
    pipe[0]=0; pipe[1]=44
    def kread(tau):
        it=kv[tau>>3]; off=it.addr-WB+(tau&7)*1280; src=(it.name,it.blks())
        return [dsr('ds_read_b128',KM[tau%3],vKM,off,src=src), dsr('ds_read_b64',KE[tau%3],vKE,off,src=src)]
    def flush(n,names=('ctr','epi','low','dma','ld')):
        k=0
        while k<n:
            for nm in names:
                x=head(nm,cur[0])
                if x is not None: take(nm,cur[0]); break
            else: return
            k+=1
    cur[0]=g0
    assert not fifo['ctr'] and not fifo['low'] and not fifo['ld']
    stamp('att')
    barx={7:[it.name for it in wo_items]}; f2done=[False]; wcut=[int(x) for x in OPT['wcut'].split(',')]
    for tau in range(64):
        n=2*tau; nx=tau<63; S=SBB[tau%3]
        if 'ast' in OPT and n in range(*map(int,OPT['ast'].split(':'))): stamp(f'slot{n}',True)
        ms=[Bx(tau+1) if nx else None, PV(tau-1,1,1) if tau else None, PV(tau,0,0), Mx(tau+1,0) if nx else None, PV(tau,0,1), Mx(tau+1,1) if nx else None, PV(tau,1,0)]
        km,ke=kread(tau+2) if tau+2<64 else (None,None)
        v=[vread(kv,WB,tau+1,z) if nx else None for z in range(4)]
        rds=[None,ke,v[0],v[1],km,v[2],v[3]]
        sg=(tau+3)//8 if (tau+3)%8==0 and tau+3<64 else None
        for k in range(7):
            gap=base+8*tau+(k+1 if k else 0); cur[0]=gap
            if tau==0 and k==1: flush(1000,('epi',)); e(waitfor(lg=[VV[0]]))
            if ms[k] is not None: e(ms[k])
            nsc=(0,2,2,1,2,1,2)[k]
            fx=k in (2,6) or (k==4 and sg is not None)
            vmn=vm_ready(gap,1,OPT['astgap'],('st','dma','ld','low')) if (not fx and k>0 and ms[k] is not None) else None
            if vmn: take(vmn,gap)
            else:
                if k==2: e(waitfor(lg=[VV[tau&1][4:8],KM[(tau+1)%3]])); nsc-=1
                if k==6: e(waitfor(lg=[VV[(tau+1)&1][0:4],KE[(tau+2)%3]])); nsc-=1
                if k==4 and sg is not None:
                    e(waitfor(vmtags=[kv[sg].name]+barx.get(sg,[])), barrier()); nsc-=2
                    if sg+1<8 and not kv[sg+1].pushed: push('dma',gap,kv[sg+1].mk(kv[sg+1]))
                    for it in [x for x in wo_items if not x.pushed][wcut[sg-1]:wcut[sg]]: push('dma',gap,it.mk(it))
                while nsc>0 and pull(gap,True): nsc-=1
            if rds[k] is not None: e(rds[k])
            x=head('ld',gap)
            if x is not None and x.kind=='valu': take('ld',gap)
            for r in (range(8) if k==0 else range(4*k+4,4*k+8)): e(valu('v_exp_f32',S[r],S[r]))
        if n==2 and OPT['xat']: push('ld',gap,x_loads())
        if not fifo['st'] and not f2done[0]:
            f2done[0]=True; print('partial stores end at slot',n)
            push('st',gap+4*OPT['f2lag'],[waitfor(vmtags=['pst']), bstore(vONE,vF1,sWS,0,flags='sc1')])
        if n==OPT['f2poll']:
            ld=bload(vPOLL,vPG,sWS,0,flags='sc1')
            push('st',gap,[ld])
            t0=base+4*OPT['f2chk']
            w_=waitfor(vm=[vPOLL]); w_.meta['lag']=(ld,4*(OPT['f2chk']-OPT['f2poll']))
            push('ld',t0,[w_]+spin('f2',ld,1))
            ops=[]
            for k in range(32):
                if k%8==0: ops+=base_add(sBL,sWS,WS_P+k*1024+4096)
                ops.append(gload(PART[k],vPL,sBL,(k%8)*1024-4096,flags='sc1'))
                if k%2==1:
                    z=k>>1
                    if z%8==0: ops.append(salu('s_mov_b32',sSO3,WS_PX+z*512))
                    ops.append(bload(PARTX[z],vPLX,sWS,sSO3,(z%8)*512,flags='sc1'))
            nl=0; prev=None
            for o in ops:
                if o.kind=='vld':
                    if prev is not None: o.meta['lag']=(prev,OPT['ldmin'])
                    prev=o
                push('ld',t0+int(nl*OPT['ldgap']),[o])
                if o.kind=='vld': nl+=1
    cur[0]=base+600
    e(PV(63,1,1))
    print('att vmem slots:',' '.join(f"{'kv' if i.meta.get('tag') and i.meta['tag'][0]=='kv' else i.kind[1]}{(i.meta['at']-base)//4}" for i in P if i.kind in VM and i.meta['at']>=base))
    print('left after attention:',{k:len(v) for k,v in fifo.items()})
    assert not any(fifo.values()), 'work left after attention'

def fallback(kv,WB):
    global P
    save=P; P=[]
    pb=kv[5].addr
    a=[V(192+n) for n in range(6)]; vo=V(198); mx=[V(199),V(200)]; S=SBB[2]
    e(label('L_fb'), raw('s_waitcnt vmcnt(0) lgkmcnt(0)','misc'), raw('s_nop 15','misc'))
    for d,s in zip(a,[vKM,vKE]+vVA): e(valu('v_add_u32',d,sW5K,s))
    e(valu('v_lshlrev_b32',vo,4,vL), valu('v_mov_b32',QE[1],0), valu('v_mov_b32',mx[0],0xff800000), valu('v_mov_b32',mx[1],0xff800000))
    off=pb-WB
    for ps in range(2):
        e(salu('s_add_u32',sT0,sH,32), salu('s_mul_i32',sT0,sT0,SL), salu('s_add_u32',sT1,sT0,32*SL), salu('s_mov_b32',sT2,64), label(f'L_fbl{ps}'))
        e(salu('s_add_u32','m0',sW5K,pb), dma(vo,sWS,sT0,0,flags='sc1'), dma(vo,sWS,sT0,1024,flags='sc1'))
        if ps: e(salu('s_add_u32','m0',sW5K,pb+2560), dma(vo,sWS,sT1,0,flags='sc1'), dma(vo,sWS,sT1,1024,flags='sc1'))
        e(waitfor(vmall=True), dsr('ds_read_b128',KM[0],a[0],off), dsr('ds_read_b64',KE[0],a[1],off))
        if ps:
            for n in range(4): e(dsr('ds_read_b64_tr_b16',VV[0][2*n:2*n+2],a[2+n],off+2560))
        e(waitfor(lgall=True))
        e(Bx(0,S), Mx(0,0,S), Mx(0,1,S))
        for x in range(2):
            if ps==0: e(*max_ops([S[16*x:16*x+16]],mx[x],first=False))
            else:
                for r in range(16): e(valu('v_exp_f32',S[16*x+r],S[16*x+r]))
                for h in range(2): e(PV(0,x,h,S))
        e(raw('s_nop 15','misc'), salu('s_add_u32',sT0,sT0,1280), salu('s_add_u32',sT1,sT1,1280), salu('s_sub_u32',sT2,sT2,1), salu('s_cmp_lg_u32',sT2,0), raw(f's_cbranch_scc1 L_fbl{ps}','misc'))
        if ps==0:
            e(*set_shift(mx,0.0)); zero_o()
    e(*norm_store(0,V(116,2)), *norm_store(1,V(116,2)), waitfor(vmall=True))
    e(raw('s_nop 3','misc'), raw('s_branch L_fb_ret','misc'))
    OUT.extend(i.text for i in finalize(P,verbose=0,name='fb'))
    P=save

TT=[V(224,16),V(240,16)]
def norm_store(x,t):
    O,T=OO[x],TT[x]
    o=[valu('v_rcp_f32',t[0],O[10]), valu('v_mov_b32',t[1],t[0]), swap('v_permlane32_swap_b32',t[0],t[1])]
    o+=[valu('v_mul_f32',T[r],t[0],O[r]) for r in range(10)]
    o+=[valu('v_cvt_pk_bf16_f32',T[d],T[2*d],T[2*d+1]) for d in range(4)]
    o+=[gstore(T[0:4],vOS,S(88+2*x,2),flags='sc1',tag='ost'), valu('v_cvt_pk_bf16_f32',T[8],T[8],T[9])]
    if x: o+=[swap('v_permlane32_swap_b32',TT[0][8],TT[1][8]), gstore(TT[0][8],vOSX,sWS[0:2],flags='sc1',tag='ost')]
    return o
def final(g0,wo_main,wo_x):
    cur[0]=g0
    SA=V(56,20); DN=V(76,20); XF=V(96,20); tmp=V(116,12)
    e(*norm_store(0,tmp), *norm_store(1,tmp))
    stamp('o stored')
    fill=[]
    for x in range(2):
        s=tmp[2+x]
        fill.append(valu('v_add_f32_e64',s,f'|{OO[x][0]}|',f'|{OO[x][1]}|'))
        for r in range(2,10): fill.append(valu('v_add_f32_e64',s,s,f'|{OO[x][r]}|'))
    fill+=[valu('v_min_f32',tmp[4],tmp[2],tmp[3]), valu('v_add_f32',tmp[2],tmp[2],tmp[3]), valu('v_add_f32',tmp[3],OO[0][10],OO[1][10]), valu('v_add_f32',tmp[2],tmp[2],tmp[3])]
    fill=[(0,[x]) for x in fill]
    fill+=[(0,[valu('v_cmp_nle_f32','vcc',f32(2.0**-100),tmp[4]), raw('s_cbranch_vccnz L_fb','misc',['vcc']),
      valu('v_cmp_nge_f32','vcc',f32(2.0**126) if not OPT['forcefb'] else f32(-1.0),tmp[2]), raw('s_cbranch_vccnz L_fb','misc',['vcc']), label('L_fb_ret')])]
    for _ in range(OPT['chk0']): e(*fill.pop(0)[1])
    nchk=len(fill)
    assert OPT['hat']>=nchk
    def silu(q):
        d=DN[4*q:4*q+4]; t=tmp[4*(q&1):4*(q&1)+4]; o=[]
        for f in (lambda r:valu('v_mul_f32',d[r],vR2,d[r]), lambda r:valu('v_mul_f32',t[r],f32(-1.4426950408889634),d[r]), lambda r:valu('v_exp_f32',t[r],t[r]),
                  lambda r:valu('v_add_f32',t[r],1.0,t[r]), lambda r:valu('v_rcp_f32',t[r],t[r]), lambda r:valu('v_mul_f32',d[r],t[r],d[r])):
            o+=[f(r) for r in range(4)]
        return o
    for q in range(5): fill+=[(min(16*q+19,75),[x]) for x in silu(q)]
    for d in range(10): fill+=[(0,[x]) for x in (valu('v_accvgpr_read_b32',XF[2*d+1],XR[d]), valu('v_lshlrev_b32',XF[2*d],16,XF[2*d+1]), valu('v_and_b32',XF[2*d+1],0xffff0000,XF[2*d+1]))]
    g,u=tmp[8],tmp[9]
    fill+=[(0,[x]) for x in (valu('v_bfe_u32',g,vL,4,1), valu('v_mul_u32_u24',g,24,g), valu('v_add_u32',vXO,vXO,g))]
    pool_=[(A(216+4*n,4),0) for n in range(6)]+[(V(204+4*n,4),0) for n in range(5)]+[(V(128+4*n,4),nchk) for n in range(19)]+[(V(224+4*n,4),nchk) for n in range(8)]
    pool_+=[(A(72+4*n,4),72) for n in range(34)]
    frs=[]; rds=[]
    for s in range(18):
        for q in range(5):
            f=pool_[len(frs)%len(pool_)][0]; frs.append(f)
            for u in range(2): rds.append(tr_read(f,u,wo_main[s],q) if q<4 else tr_read(f,u,wo_x[s>>2],s&3))
    red=[]
    for pr in range(2):
        for z in range(2):
            d=DN[8*pr+4*z:8*pr+4*z+4]
            for j in range(16): red.append(m16(d,SELA[4:8] if z==0 else SELA[0:4],PART[16*pr+j],0 if j==0 else d))
    for z in range(8): red.append(m16(DN[16:20],SELA[2:6],R('a',PARTX[2*z].b,4),0 if z==0 else DN[16:20]))
    e(waitfor(vm=PART+PARTX+[XR,vR2]))
    ri=0
    PL=[vPOLL,vT[0],vT[1]]
    poll=lambda k,off=0: bload(PL[k],vF3L,sWS,0,off,flags='sc1')
    for k,mm in enumerate(red):
        e(mm)
        if k==OPT['pollat']: e(poll(0)); continue
        if k==OPT['hat']: e(waitfor(vmtags=['ost']), bstore(vONE,vF3,sWS,0,flags='sc1')); stamp('flag'); continue
        if k%4==3: e(waitfor(lg=frs[:max(0,ri//2-3)]))
        elif k==5: e(*base_add(sBL,sWS,WS_OX))
        if pool_[ri//2][1]<=k: e(rds[ri]); ri+=1
        for z,(af,o) in enumerate(fill):
            if af<=k: e(*o); fill.pop(z); break
    stamp('ready')
    OF=[A(4*s,4) for s in range(18)]
    oloads=lambda: [gload(OF[s],vOL,sOB[s>>2],(s&3)*2048-4096,flags='sc1') for s in range(16)]+[gload(OF[16+s][r],vOLX,sBL,s*2048+r*128,flags='sc1') for s in range(2) for r in range(4)]
    rest=[]
    while ri<OPT['wopre']:
        if ri%4==0: rest.append(waitfor(lg=frs[:max(0,ri//2-4)]))
        rest.append(rds[ri]); ri+=1
    while len(fill)>OPT['fillmm']: rest+=fill.pop(0)[1]
    def clone(o): return I(o.text,o.kind,o.rd,o.wr,o.passes,**{k:v for k,v in o.meta.items() if k!='src'})
    cnt=vT[7]
    def pollloop(nm,off,val=1):
        o=[valu('v_mov_b32',cnt,0x40000)]+[raw(poll(k,off).text) for k in range(OPT['npoll'])]+[label(nm)]
        for k in range(OPT['npoll']):
            o+=[raw(f's_waitcnt vmcnt({OPT["npoll"]-1})'), I(f'v_cmp_gt_u32 vcc, {val}, {PL[k]}','valu',[],['vcc']), raw(f's_cbranch_vccz {nm}ok','misc',['vcc']), raw(poll(k,off).text), raw(f's_sleep {OPT["psleep"]}')]
        return o+[valu('v_subrev_u32',cnt,1,cnt), valu('v_cmp_ne_u32','vcc',0,cnt), raw(f's_cbranch_vccnz {nm}','misc',['vcc']), label(nm+'ok')]
    with collect() as stp: stamp('ok')
    pl_=pollloop('L_f3',0); rc=[clone(o) for o in rest]; c1=int(len(rc)*OPT['lp1']/100); c2=int(len(rc)*OPT['lp2']/100)
    y=[label('L_late'), raw('s_waitcnt lgkmcnt(0)'), raw('s_nop 7')]+rc[:c1]+pl_[:2]+rc[c1:c2]+pl_[2:3]+rc[c2:]+[waitfor(lgall=True)]+pl_[3:]+[clone(o) for o in stp]+oloads()[:OPT['nol']]+[raw('s_branch L_join')]
    HOT.extend(finalize(y,verbose=0))
    e(waitfor(vm=[PL[0]]), valu('v_cmp_gt_u32','vcc',1,PL[0]), raw('s_cbranch_vccnz L_late','misc',['vcc']))
    ol=oloads()
    e(*stp, *ol[:OPT['nol']], *rest, label('L_join')); ol=ol[OPT['nol']:]
    stamp('seen')
    k=0
    for s in range(18):
        assert ri>=10*s+10
        e(waitfor(vm=[OF[s]],lg=frs[5*s:5*s+5]))
        for q in range(5):
            e(m16(SA[4*q:4*q+4],frs[k],OF[s],0 if s==0 else SA[4*q:4*q+4])); k+=1
            if q==1 and ol: e(ol.pop(0)); continue
            for z in range(1 if fill else 2):
                if ri<len(rds) and ri//2-len(pool_)<k-1: e(rds[ri]); ri+=1
            if fill: e(*fill.pop(0)[1])
    stamp('mm done')
    for q in range(5):
        for r in range(4*q,4*q+4): e(valu('v_fmac_f32',XF[r],SA[r],DN[r],rmw=True))
        for d in range(2): e(valu('v_cvt_pk_bf16_f32',tmp[2*q+d],XF[4*q+2*d],XF[4*q+2*d+1]))
        if q in (2,4):
            b=2*q-4
            e(swap('v_permlane16_swap_b32',tmp[b],tmp[b+2]), swap('v_permlane16_swap_b32',tmp[b+1],tmp[b+3]), bstore(tmp[b:b+4],vXO,sOUT,0,16*b,flags=OPT['ofl']))
    e(bstore(tmp[8:10],vXOX,sOUT,0,flags=OPT['ofl']))

def main():
    build_ffn()
    ngaps,bars,free=plan()
    L=OPT['look']
    best=None
    for a0 in range(0,NB-14):
        fr=sorted((max(free[b] for b in range(a0+5*k,a0+5*k+5)),k) for k in range(3))
        key=(fr[0][0],fr[1][0])
        if best is None or key<best[0]: best=(key,a0,[k for _,k in fr])
    _,a0,order=best; WB=a0*4096
    print('attention window',best,'ngaps',ngaps,{k:groups[v].start for k,v in marks.items()})
    kv=[kv_item(s) for s in range(8)]
    for s,it in enumerate(kv): it.addr=(a0+5*order[s%3])*4096
    rest=sorted([b for b in range(NB) if not a0<=b<a0+15],key=lambda b:free[b])
    print('free',[free[b] for b in range(NB)])
    wo_main=[blk_item(('wo',s),vWO if s<16 else vWOE,sWO,36*s*1152 if s<16 else 288*(s-16)*1152) for s in range(18)]
    wo_x=[blk_item(('wx',n),vWX if n<4 else vWXE,sWO,144*n*1152 if n<4 else 0,buf=(n==4),c=320) for n in range(5)]
    for it,b in zip(wo_main+wo_x,rest): it.addr=b*4096

    def pst(name):
        if 'pst' in OPT: stamp(name,True)
    prologue(); pst('karg')
    pre0=[it for it in items if it.early==-3000]; pre1=[it for it in items if it.early==-2000]
    dq=[xdma(tt,l) for tt in range(2) for l in range(9)]+[it.mk(it) for it in pre0+pre1]
    for _ in range(OPT['x0n']): e(*dq.pop(0))
    pst('x0 issued')
    xr=[vM[0],vR[1]]; t,u=vT[2],vT[3]
    DT=[V(140+8*n,8) for n in range(3)]; CM=V(164,4); SUM=V(172,4); ONE4=V(176,4); SEL=V(180,6)
    prologue2()
    e(valu('v_and_b32',t,15,vL), valu('v_lshrrev_b32',u,1,t), valu('v_lshlrev_b32',t,7,t), valu('v_add_u32',t,sW18K,t),
      valu('v_lshrrev_b32',xr[0],4,vL), valu('v_xor_b32',xr[0],xr[0],u), valu('v_xor_b32',xr[1],4,xr[0]),
      valu('v_lshl_add_u32',xr[0],xr[0],4,t), valu('v_lshl_add_u32',xr[1],xr[1],4,t))
    for d in range(4): e(valu('v_mov_b32',ONE4[d],sONES))
    with collect() as ao:
        e(*sel_ops(SEL[0],SEL[1],t,u), valu('v_mov_b32',SEL[2],0), valu('v_mov_b32',SEL[3],0), valu('v_mov_b32',SEL[4],SEL[0]), valu('v_mov_b32',SEL[5],SEL[1]))
        addr_early(); addr_pf(); addr_qk()
        e(valu('v_mov_b32',vONE,1))
        if OPT['split']:
            e(valu('v_min_u32',vCA,1,vL), valu('v_mul_u32_u24',vCA,LDS_OOB-39*4096,vCA), valu('v_add_u32',vCA,39*4096,vCA), valu('v_mov_b32',t,4*len([b for b in bars if b>=SIG])), dsw('ds_write_b32',vCA,t))
    for _ in range(OPT['apre']): e(ao.pop(0))
    pst('pre')
    for _ in range(OPT['x1n']): e(*dq.pop(0))
    nx=len([o for o in dq if o[-1].meta['tag'][0]=='x'])
    if OPT['pf'] and OPT['pfpos']>=0: dq.insert(nx+OPT['pfpos'],pf_gu(0))
    e(raw('s_waitcnt lgkmcnt(0)','misc'))
    pst('addr')
    R0=[XC0[4*s_:4*s_+4] for s_ in range(18)]; X1=[XC1[4*s_:4*s_+4] for s_ in range(18)]
    def xread(tt,dst,l):
        return [waitfor(vmtags=[('x',tt,l)])]+[dsr('ds_read_b128',dst[s],xr[s&1],l*2048,src=(('x',tt,l),list(range(18*tt,18*tt+18))),private=True) for s in (2*l,2*l+1)]
    cq=[]; nm=[0]; nblk=[0]; pre_=[]
    def mm(m,extra=()):
        e(m); nm[0]+=1
        if pre_: e(pre_.pop(0))
        if extra: e(*extra); return
        k=0
        while cq and k<2 and cq[0][0]<=nm[0]-3: e(cq.pop(0)[1]); k+=1
        while ao and k<2: e(ao.pop(0)); k+=1
    def stats(tt,fr,l,nvm,lim=99):
        ms=[]
        for s_ in (2*l,2*l+1): ms+=[m16(SUM,ONE4,fr[s_],0 if s_==0 else SUM), m16(GR[tt],fr[s_],fr[s_],0 if s_==0 else GR[tt])]
        for h in range(2):
            o=[]
            if dq and h<nvm and nblk[0]<min(lim,OPT['nblk']):
                o=dq.pop(0)
                if o[-1].meta['tag'][0] not in 'xp': nblk[0]+=1
            mm(ms[2*h],[x for x in o if x.kind=='salu']); mm(ms[2*h+1],[x for x in o if x.kind!='salu'])
    nc=[0]
    def centre(src,dst,after=(),ex=((),())):
        d=DT[nc[0]%3]; nc[0]+=1
        while any(set(c.rd)&set(d.regs()) for _,c in cq): e(cq.pop(0)[1])
        for h in range(2):
            mm(m16(d[4*h:4*h+4],SEL[2*h:2*h+4],src,CM),ex[h])
            for z in range(2): cq.append((nm[0],valu('v_cvt_pk_bf16_f32',dst[2*h+z],d[4*h+2*z],d[4*h+2*z+1])))
        for x in after: cq.append((nm[0],x))
    def mean(tt):
        dst=vM[1] if tt else t
        e(valu('v_mul_f32',MEAN[tt],f32(1/576),SUM[0]), valu('v_cvt_pk_bf16_f32',dst,MEAN[tt],MEAN[tt]), valu('v_lshlrev_b32',dst,16,dst))
        for d in range(4): e(valu('v_xor_b32',CM[d],0x80000000,dst))
    for l in range(10):
        if l<9: e(*xread(0,R0,l))
        if l==0: e(*dq.pop(0))
        for _ in range(OPT['afill'] if l<9 else 999):
            if ao: e(ao.pop(0))
        if l>0:
            e(waitfor(lg=R0[2*l-2:2*l])); stats(0,R0,l-1,int(str(OPT.get('w1','x111111111'))[l]),len(pre0))
        if str(l) in str(OPT.get('tch','x147')): e(*touch())
        pst(f'x0 rd {l}')
    e(barrier())
    stamp('x0 read')
    e(raw('s_branch L_main','misc'), I('.p2align 12','comment'), label('L_main'))
    e(valu('v_add_u32',xr[0],73728,xr[0]), valu('v_add_u32',xr[1],73728,xr[1]))
    e(*xread(1,X1,0)); mean(0); pst('stat0')
    for l in range(9):
        for s_ in (2*l,2*l+1): centre(R0[s_],X0[s_],to_acc(s_) if s_>=NV0 else ())
        if l<8: e(*xread(1,X1,l+1))
        e(waitfor(lg=X1[2*l:2*l+2])); stats(1,X1,l,int(str(OPT.get('w2','x111122222'))[l+1]))
        pst(f'x1 rd {l}')
    while cq: e(cq.pop(0)[1])
    mean(1)
    reads=[f(it) for g in groups[:4] for it,f in g.rd][:L]
    n0=OPT['n0']
    for s_ in range(n0):
        ex=((),())
        if s_==n0-8: ex=((waitfor(vmtags=[it.name for it in items if it.bar==-L]), barrier()),()); stamp('x1 read'); pst('bar1')
        if s_>n0-8: pre_[:]=[reads.pop(0) for z in range(2) if reads]
        centre(X1[s_],X1[s_],ex=ex)
    assert not reads
    while cq: e(cq.pop(0)[1])
    e(waitfor(lg=groups[0].fr)); pst('go')
    for s_ in range(n0,18): push('ctr',0,centre_ops(X1[s_],1))
    for s_ in range(NV0): push('ctr',0,to_acc(s_))
    for o in dq: push('dma',-1,o)
    mx_=-1
    for it in items:
        mx_=max(mx_,it.early)
        if it.early>-2000: push('dma',it.early,it.mk(it),mx_)
    st=lambda k:groups[marks[k]].start
    def low(gap,f,*a):
        with collect() as o: f(*a)
        push('low',gap,o,gap)
    low(st('c0')+200,var_ops,0); low(st('c0')+200,var_ops,1)
    TCH=[(int(g_),touch()) for g_ in str(OPT['tat']).split(',')]
    low(st('c1'),addr_mid); low(st('c1'),addr_mid2); low(st('qkv'),sel_acc)
    low(st('c2')+200,addr_att,WB); low(st('c2')+200,addr_lds,WB)
    pt=[int(x) for x in OPT['pft'].split(',')]
    with collect() as od: addr_pfd()
    for k,(g_,o) in enumerate(zip(pt,[pf_gu(1),pf_q(),pf_gu(2),pf_gu(3),pf_gu(4),od+pf_d(0),pf_d(1),pf_d(2)])):
        if o and (k==7 or pt[k+1]!=g_): o[-1].meta['cost']+=OPT['pfx']
        push('ld',g_,o,g_)
    low(st('c3'),pf_o)
    b1=[b for b in bars if b>st('c3')+60][0]
    bar_extra[b1]=['qkvst']
    ar=[salu('s_and_b32',sJH,S(2),1), salu('s_lshl_b32',sJH,sJH,7), salu('s_mov_b32',sJ128,1), salu('s_cmp_lg_u32',sW,0), raw('s_cbranch_scc1 L_arr','misc'),
        raw(f's_atomic_add {sJ128}, {sDBG[0:2]}, {sJH}','misc',sJ128.regs()+sJH.regs()), label('L_arr')]
    for x in ar[3:6]: x.meta['glue']=True
    for g_,o in sorted(TCH+[(b1,ar)],key=lambda z:z[0]): push('arr',g_,o,g_)
    ARR.append(ar[5])
    if OPT['stop']!='down':
        d0=st('down')
        att_setup(ngaps,kv,WB); bar_extra[bars[-1]]=[kv[0].name]
        low(b1,addr_z); low(b1,addr_fin); low(ngaps-66,zero_o)
        ld=bload(vPOLL,vZ,sDBG,0,flags='sc1')
        push('ld',d0+OPT['f1poll'],[ld],d0+OPT['f1poll'])
        with collect() as o: qk_loads(WB)
        w_=waitfor(vm=[vPOLL]); w_.meta['lag']=(ld,100)
        push('ld',d0+OPT['f1poll'],[w_]+spin('f1',ld,128,40)+o,d0+OPT['f1poll'])
        for it in kv[:3]+(wo_main+wo_x)[:OPT['wob']]:
            early=max(free[b] for b in it.blks())
            assert early>d0+300
            if early<LATE: push('dma',early,it.mk(it),ngaps-1); it.pushed=True
    emit_backbone(bars,{groups[v].start:k for k,v in marks.items() if k in ('c0','qkv','down')})
    qs=[i.meta['at'] for i in P if i.meta.get('tag')=='qkvst']; assert len(qs)==12 and max(qs)<b1-SIG,(qs,b1)
    print('arrival at',ARR[0].meta['at'],'poll at',ld.meta['at'])
    stamp('down end')
    if OPT['stop']=='down':
        for nm in ('epi','st','low','dma'):
            for af,o in fifo[nm]: e(o)
    else:
        attention(ngaps,kv,WB,wo_main+wo_x)
        stamp('att end')
        final(ngaps+1000,wo_main,wo_x)
        fallback(kv,WB)
    finish()

def sizes(lines):
    import subprocess, re
    uniq=sorted(set(lines))
    src='.amdgcn_target "amdgcn-amd-amdhsa--gfx950"\n.text\nLX:\n'+'\n'.join(re.sub(r'L_codeend-L_pc-4','0x12345',re.sub(r'(s_branch|s_cbranch\w+) \w+',r'\1 0',u)) for u in uniq)+'\n'
    open('_sz.s','w').write(src)
    r=subprocess.run(['llvm-mc','-triple=amdgcn-amd-amdhsa','-mcpu=gfx950','-show-encoding','_sz.s'],capture_output=True,text=True)
    assert r.returncode==0,r.stderr[:2000]
    enc=re.findall(r'encoding: \[([^\]]*)\]',r.stdout)
    assert len(enc)==len(uniq),(len(enc),len(uniq))
    return {u:len(x.split(',')) for u,x in zip(uniq,enc)}
def page_stubs(out):
    sz=sizes([i.text for i in out if i.kind not in ('label','comment')])
    k0=[k for k,i in enumerate(out) if i.text=='L_main:'][0]
    print('entry part bytes',sum(sz.get(i.text,0) for i in out[:k0]))
    res=out[:k0+1]; off=0; pg=0; prev=None
    npg=4*ntouch[0]
    for k in range(k0+1,len(out)):
        i=out[k]
        if pg<npg and off>=4096*pg and not (prev is not None and prev.meta.get('glue')):
            good=prev is not None and prev.kind=='mfma' and i.kind in ('dsr','valu','trans')
            if good or off-4096*pg>=40 or pg==0:
                res+=[label(f'L_pg{pg}'), raw(f's_cbranch_execz L_tr{pg//4}')]; off+=4; pg+=1
        res.append(i); off+=sz.get(i.text,0)
        if i.kind not in ('label','comment'): prev=i
    print('main part bytes',off,'pages touched',pg,'of',-(-off//4096))
    while pg<npg: OUT.extend([f'L_pg{pg}:',f's_branch L_tr{pg//4}']); pg+=1
    return res
def finish():
    cur[0]=10**7
    if OPT['stamps']:
        e(raw('s_waitcnt lgkmcnt(0)','misc'), waitfor(vmall=True))
        stamp('drained'); e(raw('s_waitcnt lgkmcnt(0)','misc'))
        n=nstamp[0]
        for k in range(max(0,n-8),n): e(raw(f'v_writelane_b32 v13, s{64+2*(k%8)}, {k}','misc'))
        if 'padto' in OPT:
            e(raw('s_nop 1','misc'), raw(f'v_readlane_b32 s46, v13, {OPT["padto"]}','misc'), raw('s_nop 3','misc'))
            e(salu('s_add_u32',sT0,sT0,10000), label('L_pad'), raw('s_memrealtime s[98:99]','misc'), raw('s_waitcnt lgkmcnt(0)','misc'), salu('s_sub_u32',sT1,S(98),sT0), salu('s_cmp_lt_i32',sT1,0), raw('s_cbranch_scc1 L_pad','misc'))
        else:
            e(salu('s_lshl_b32',sT0,S(2),2), salu('s_add_u32',sT0,sT0,sW), salu('s_lshl_b32',sT0,sT0,8), salu('s_add_u32',sT0,sT0,WS_STAMP))
            e(valu('v_lshlrev_b32',V(1),2,vL), bstore(vST,V(1),sWS,sT0))
    check_order(P)
    out=finalize(P,verbose=OPT['v'],name='main')
    out=page_stubs(out+[raw('s_endpgm')]+HOT)
    hdr=open('recurrent_scan__mha_block__glu_gated_reglu__prompt.s.ref').read().split('; Override launch')[0]
    txt=hdr+'; @launch grid=(256,1,1) block=(256,1,1) lds=163840\n.amdgcn_target "amdgcn-amd-amdhsa--gfx950"\n.text\n'
    txt+=f'.globl {NAME}\n.p2align 12\n.p2align 8\n.type {NAME},@function\n{NAME}:\n'
    txt+='\n'.join(i.text for i in out)+'\n'+'\n'.join(OUT)+'\ns_endpgm\nL_codeend:\n'
    txt+=f'''.section .rodata,"a"
.p2align 6
.amdhsa_kernel {NAME}
  .amdhsa_next_free_vgpr 512
  .amdhsa_next_free_sgpr 102
  .amdhsa_accum_offset 256
  .amdhsa_group_segment_fixed_size 0
  .amdhsa_kernarg_size 80
  .amdhsa_user_sgpr_count 2
  .amdhsa_user_sgpr_kernarg_segment_ptr 1
  .amdhsa_system_sgpr_workgroup_id_x 1
  .amdhsa_float_denorm_mode_32 3
.end_amdhsa_kernel
'''
    open(sys.argv[1],'w').write(txt)
    print('bytes',len(txt))
main()
```

```python
import re

class R:
    __slots__=('k','b','n')
    def __init__(s,k,b,n=1): s.k=k; s.b=b; s.n=n
    def __str__(s): return f'{s.k}{s.b}' if s.n==1 else f'{s.k}[{s.b}:{s.b+s.n-1}]'
    __repr__=__str__
    def regs(s): return [f'{s.k}{i}' for i in range(s.b,s.b+s.n)]
    def __getitem__(s,i):
        if isinstance(i,slice):
            a=i.start or 0; e=s.n if i.stop is None else i.stop
            assert 0<=a<e<=s.n,(s,i)
            return R(s.k,s.b+a,e-a)
        assert 0<=i<s.n,(s,i)
        return R(s.k,s.b+i,1)
def V(b,n=1): return R('v',b,n)
def A(b,n=1): return R('a',b,n)
def S(b,n=1): return R('s',b,n)

def regs_of(*ops):
    out=[]
    for o in ops:
        if isinstance(o,R): out+=o.regs()
        elif isinstance(o,str):
            m=o.strip('-|')
            if m in ('vcc','m0','exec','scc'): out.append(m)
            else:
                mm=re.fullmatch(r'([vas])(\d+)',m)
                if mm: out.append(m)
    return out

class I:
    __slots__=('text','kind','rd','wr','passes','meta')
    def __init__(s,text,kind,rd=(),wr=(),passes=0,**meta):
        s.text=text; s.kind=kind; s.rd=list(rd); s.wr=list(wr); s.passes=passes; s.meta=meta
    def __repr__(s): return s.text

def fmt(o):
    if isinstance(o,float): return repr(o)
    if isinstance(o,int): return str(o) if -16<=o<=64 else hex(o&0xffffffff)
    return str(o)

TRANS=('v_exp_f32','v_rcp_f32','v_rsq_f32','v_sqrt_f32','v_log_f32')
def valu(op,dst,*src,mods='',rmw=False):
    kind='trans' if op.replace('_e64','') in TRANS else ('dot' if op.startswith('v_dot') else 'valu')
    rd=regs_of(*src); wr=regs_of(dst)
    if rmw: rd+=wr
    if op.startswith('v_cndmask') and len(src)==2: rd.append('vcc'); src=src+('vcc',)
    t=f'{op} {fmt(dst)}, '+', '.join(fmt(x) for x in src)+(' '+mods if mods else '')
    m={}
    if kind=='dot': m['dotc']=regs_of(src[2]); m['op']=op
    if op.startswith('v_readfirstlane') or op.startswith('v_readlane'): m['lane_read']=True
    return I(t,kind,rd,wr,**m)
def swap(op,a,b): return I(f'{op} {a}, {b}','valu',regs_of(a,b),regs_of(a,b),perm=True)
def salu(op,dst,*src):
    wr=regs_of(dst)
    if op.startswith('s_cmp') or op.startswith('s_bitcmp'):
        return I(f'{op} {fmt(dst)}, '+', '.join(fmt(x) for x in src),'salu',regs_of(dst,*src),['carry'],scc=True)
    i=I(f'{op} {fmt(dst)}, '+', '.join(fmt(x) for x in src),'salu',regs_of(*src),wr)
    i.meta['scc']=not (op.startswith('s_mov') or op.startswith('s_mul_i32') or op.startswith('s_cselect'))
    return i
def raw(text,kind='misc',rd=(),wr=(),**m): return I(text,kind,rd,wr,**m)
def label(n): return I(n+':','label')
def mfma(op,d,a,b,c,passes):
    return I(f'{op} {d}, {a}, {b}, {fmt(c)}','mfma',regs_of(a,b,c),regs_of(d),passes,ab=regs_of(a,b),c=regs_of(c),d=str(d),cstr=str(c))
def m16(d,a,b,c): return mfma('v_mfma_f32_16x16x32_bf16',d,a,b,c,4)
def m32(d,a,b,c): return mfma('v_mfma_f32_32x32x16_bf16',d,a,b,c,8)
def m32x8(d,a,b,c): return mfma('v_mfma_f32_32x32x8_bf16',d,a,b,c,8)
def m2b(d,a,b,c): return mfma('v_mfma_f32_32x32x4_2b_bf16',d,a,b,c,16)
def m4(d,a,b,c): return mfma('v_mfma_f32_4x4x4_16b_bf16',d,a,b,c,2)
def smf(d,a,b,idx):
    return I(f'v_smfmac_f32_32x32x32_bf16 {d}, {a}, {b}, {idx}','mfma',regs_of(a,b,idx,d),regs_of(d),8,ab=regs_of(a,b,idx),c=regs_of(d),d=str(d),cstr=str(d))
def dsr(op,d,addr,off=0,src=None,private=False):
    assert 0<=off<65536,off
    return I(f'{op} {d}, {addr}'+(f' offset:{off}' if off else ''),'dsr',regs_of(addr),regs_of(d),src=src,private=private)
def dsw(op,addr,data,off=0):
    return I(f'{op} {addr}, {data}'+(f' offset:{off}' if off else ''),'dsw',regs_of(addr,data),[])
def bload(d,voff,srd,soff,off=0,flags='',tag=None):
    n=d.n; op={1:'buffer_load_dword',2:'buffer_load_dwordx2',4:'buffer_load_dwordx4'}[n]
    assert 0<=off<4096
    return I(f'{op} {d}, {voff}, {srd}, {fmt(soff)} offen'+(f' offset:{off}' if off else '')+(' '+flags if flags else ''),'vld',regs_of(voff,srd,soff),regs_of(d),tag=tag)
def bstore(d,voff,srd,soff,off=0,flags='',tag=None):
    n=d.n; op={1:'buffer_store_dword',2:'buffer_store_dwordx2',4:'buffer_store_dwordx4'}[n]
    assert 0<=off<4096
    return I(f'{op} {d}, {voff}, {srd}, {fmt(soff)} offen'+(f' offset:{off}' if off else '')+(' '+flags if flags else ''),'vst',regs_of(d,voff,srd,soff),[],tag=tag,wide=regs_of(d) if n>2 else [])
def batomic(d,voff,srd,soff,off=0,op='add'):
    return I(f'buffer_atomic_{op} {d}, {voff}, {srd}, {fmt(soff)} offen'+(f' offset:{off}' if off else ''),'vst',regs_of(d,voff,srd,soff),[],tag=None,wide=[])
def dma(voff,srd,soff,off=0,flags='',tag=None,dst=None,private=False):
    assert 0<=off<4096
    return I(f'buffer_load_dwordx4 {voff}, {srd}, {fmt(soff)} offen'+(f' offset:{off}' if off else '')+(' '+flags if flags else '')+' lds','dma',regs_of(voff,srd,soff,'m0'),[],tag=tag,dst=dst,private=private)
def gdma(voff,base,off=0,flags='',tag=None,dst=None,private=False):
    assert -4096<=off<4096
    return I(f'global_load_lds_dwordx4 {voff}, {base}'+(f' offset:{off}' if off else '')+(' '+flags if flags else ''),'dma',regs_of(voff,base,'m0'),[],tag=tag,dst=dst,private=private)
def gload(d,voff,base,off=0,flags='',tag=None):
    op={1:'global_load_dword',2:'global_load_dwordx2',4:'global_load_dwordx4'}[d.n]
    assert -4096<=off<4096
    return I(f'{op} {d}, {voff}, {base}'+(f' offset:{off}' if off else '')+(' '+flags if flags else ''),'vld',regs_of(voff,base),regs_of(d),tag=tag)
def gstore(d,voff,base,off=0,flags='',tag=None):
    op={1:'global_store_dword',2:'global_store_dwordx2',4:'global_store_dwordx4'}[d.n]
    assert -4096<=off<4096
    return I(f'{op} {voff}, {d}, {base}'+(f' offset:{off}' if off else '')+(' '+flags if flags else ''),'vst',regs_of(d,voff,base),[],tag=tag,wide=regs_of(d) if d.n>2 else [])
def base_add(dst,src,off):
    a=salu('s_add_u32',dst[0],src[0],off); b=salu('s_addc_u32',dst[1],src[1],0)
    b.rd.append('carry'); a.wr.append('carry')
    return [a,b]
def waitfor(lg=(),lgall=False,vm=(),vmtags=(),vmall=False,lgforce=False):
    return I('WAIT','waitfor',lg=set(regs_of(*lg)),lgall=lgall,vm=set(regs_of(*vm)),vmtags=set(vmtags),vmall=vmall,lgforce=lgforce)
def barrier(): return I('s_barrier','barrier')

VALUK=('valu','trans','dot')
def finalize(ins, verbose=True, name=''):
    out=[]; lgq=[]; vmq=[]
    lastw={}
    lastc={}
    lastst={}
    stats=dict(auto_wait=0,nops=0,nopstates=0,maxvm=0,maxlg=0)
    pos=0
    nbar=0; nsig=0
    blk_read={}
    dma_done={}
    tag_pending={}
    blk_owner={}
    lastscc=[None]
    def emit(i,states=1):
        nonlocal pos
        out.append(i); pos+=states
    def do_wait(nlg,nvm):
        parts=[]
        if nvm is not None:
            assert nvm<=63
            parts.append(f'vmcnt({nvm})')
            while len(vmq)>nvm:
                e=vmq.pop(0); t=e.meta.get('tag')
                if e.kind=='dma' and t is not None:
                    tag_pending[t]-=1
                    if tag_pending[t]==0: dma_done[t]=nsig
        if nlg is not None:
            nlg=min(nlg,15)
            parts.append(f'lgkmcnt({nlg})')
            while len(lgq)>nlg:
                e=lgq.pop(0); e.meta['done']=nsig
        if parts: emit(I('s_waitcnt '+' '.join(parts),'wait'))
    def need(q,pred):
        last=-1
        for k,e in enumerate(q):
            if pred(e): last=k
        return None if last<0 else len(q)-1-last
    for i in ins:
        k=i.kind
        if k=='label' or k=='comment': out.append(i); continue
        if k=='reset':
            continue
        if k=='waitfor':
            m=i.meta
            nlg=need(lgq,lambda e:m['lgall'] or any(r in m['lg'] for r in e.wr))
            nvm=need(vmq,lambda e:m['vmall'] or any(r in m['vm'] for r in e.wr) or (e.meta.get('tag') in m['vmtags']))
            if m['lgforce']: nlg=0
            do_wait(nlg,nvm); continue
        touched=set(i.rd)|set(i.wr)
        nlg=need(lgq,lambda e:any(r in touched for r in e.wr))
        nvm=need(vmq,lambda e:any((r in touched) and not (i.meta.get('tag')=='pf' and e.meta.get('tag')=='pf') for r in e.wr))
        if nlg is not None or nvm is not None:
            stats['auto_wait']+=1
            if verbose: print(f'[{name}] auto wait lg={nlg} vm={nvm} before: {i.text}')
            do_wait(nlg,nvm)
        if k in ('dsr','dsw') and len(lgq)>=15:
            stats['lgfull']=stats.get('lgfull',0)+1
            do_wait(11,None)
        if k in ('vld','vst','dma') and len(vmq)>=62:
            stats['vmfull']=stats.get('vmfull',0)+1
            do_wait(None,36)
        req=0; why=None
        def chk(ppos,n,w):
            nonlocal req,why
            d=n-(pos-ppos-1)
            if d>req: req=d; why=w
        isv=k in VALUK
        for r in i.rd:
            if r not in lastw: continue
            p,w=lastw[r]
            if w.kind=='mfma':
                big={2:5,4:8,8:12,16:20}[w.passes]
                if k=='mfma':
                    if r in i.meta['ab']: chk(p,big,'mfma->ab')
                    elif i.meta['cstr']==w.meta['d'] and i.passes==w.passes: chk(p,2 if w.passes==2 else 0,'chain')
                    else: chk(p,w.passes+2,'mfma->c')
                else: chk(p,big,'mfma->rd')
            elif w.kind in VALUK:
                if k=='mfma': chk(p,2,'valu->mfma')
                if w.kind=='trans' and isv and k!='trans': chk(p,1,'trans')
                if w.kind=='dot':
                    if k=='dot' and i.meta['op']==w.meta['op'] and r in i.meta['dotc'] and i.rd.count(r)==1: pass
                    else: chk(p,3,'dot')
                if i.meta.get('perm'): chk(p,2,'perm')
                if i.meta.get('lane_read') and r[0]=='v' and r!='vcc': chk(p,1,'readlane')
                if r[0]=='s' or r=='vcc':
                    if isv: chk(p,2,'vsgpr->valu')
                    elif k in ('vld','vst','dma'): chk(p,5,'vsgpr->vmem')
                    else: chk(p,1,'vsgpr->salu')
            elif w.kind=='salu' and r=='m0' and k=='dma': chk(p,1,'m0')
        for r in i.wr:
            if r in lastw:
                p,w=lastw[r]
                if w.kind=='mfma':
                    if k=='mfma':
                        if not (i.meta['d']==w.meta['d'] and i.passes==w.passes): chk(p,w.passes+2,'mfma waw')
                    else: chk(p,{2:5,4:8,8:12,16:20}[w.passes],'mfma->wr')
                elif w.kind=='dot' and not (k=='dot' and i.meta['op']==w.meta['op']): chk(p,3,'dot waw')
            if r in lastc and isv: chk(lastc[r][0],lastc[r][1]-1,'c war')
            if r in lastst: chk(lastst[r],2,'store war')
        if req>0:
            stats['nops']+=1; stats['nopstates']+=req
            if verbose>1: print(f'[{name}] nop {req} ({why}) before: {i.text}')
            while req>0:
                n=min(req,16); emit(I(f's_nop {n-1}','nop'),n); req-=n
        if k=='dsr' and i.meta.get('src') is not None:
            tag,blks=i.meta['src']
            assert tag in dma_done and tag_pending[tag]==0, f'read of unfinished {tag}: {i.text}'
            if not i.meta.get('private'): assert dma_done[tag]<nbar, f'read of {tag} without barrier: {i.text}'
            for b in blks:
                assert blk_owner.get(b)==tag or i.meta.get('private'), f'block {b} owner {blk_owner.get(b)} != {tag}'
                blk_read.setdefault(b,[]).append(i)
        if k=='dma':
            t=i.meta.get('tag')
            if t is not None: tag_pending[t]=tag_pending.get(t,0)+1
            for b in (i.meta.get('dst') or ()):
                if blk_owner.get(b)!=t:
                    for e in blk_read.get(b,()):
                        assert 'done' in e.meta and (e.meta['done']<nbar or i.meta.get('private')), f'dma {t} overwrites block {b} still read: {e.text}'
                    blk_read[b]=[]
                    blk_owner[b]=t
        if 'carry' in i.rd: assert lastscc[0] is lastw['carry'][1], f'scc clobbered before {i.text} by {lastscc[0]}'
        if i.meta.get('scc'): lastscc[0]=i
        ppos=pos
        emit(i)
        if k=='barrier':
            assert nsig==nbar; nbar+=1; nsig+=1
        if i.meta.get('signal'): nsig+=1
        if i.meta.get('check'):
            nbar+=1; assert nbar==nsig
        if k in ('dsr','dsw'):
            lgq.append(i); stats['maxlg']=max(stats['maxlg'],len(lgq))
        if k in ('vld','vst','dma'):
            vmq.append(i); stats['maxvm']=max(stats['maxvm'],len(vmq))
            assert len(vmq)<=63, 'vmcnt overflow'
        for r in i.wr:
            lastw[r]=(ppos,i); lastc.pop(r,None)
        if k=='mfma':
            for r in i.meta['c']: lastc[r]=(ppos,i.passes)
        if k=='vst':
            for r in i.meta['wide']: lastst[r]=ppos
    if verbose: print(f'[{name}]',stats,'ninstr',len(out))
    return out

def check_order(ins):
    def deps(lst):
        lw={}; d={}
        for i in lst:
            d[id(i)]=(tuple(lw.get(r) for r in i.rd if r!='carry'),tuple(lw.get(r) for r in i.wr if r not in ('carry','vcc')))
            for r in i.wr: lw[r]=id(i)
        return d
    a=deps(ins); b=deps(sorted(ins,key=lambda i:i.meta['seq']))
    byid={id(i):i for i in ins}
    bad=0
    for i in ins:
        if a[id(i)]!=b[id(i)]:
            bad+=1
            if bad<10:
                print('ORDER VIOLATION',i.meta['seq'],i.text)
                for x,y in zip(a[id(i)][0]+a[id(i)][1],b[id(i)][0]+b[id(i)][1]):
                    if x!=y: print('    got',byid.get(x),'want',byid.get(y)); break
    assert bad==0, f'{bad} order violations'
```

```python
import sys, struct, contextlib
from asmlib import *

OPT=dict(stop='', stamps=0, pf=1, dmagap=3, look=14, split=0, stper=1, qstper=1, xat=1, stgap=24, n0=14, v=1, forcefb=0, astgap=6, f2lag=10, f2poll=58, f2chk=64, ldgap=4, dbgout=0, pfirst=0, rp=7, inl=0, pollat3=-1, mpoll='x', np2_=1, lgrp='6,3,3', ntail=3, ldel=0, warm=0, np2=1, xsh=9, gst_=4096, pfl='sc1', ffl='sc1', pevery=2, lookb=16, nlook=2, npc=2, pollat2=-1, frx=0, sprio=1, w3=1, snop=0, vmpat=0, hat=60, chk0=0, px=0, wcut='0,3,8,13,18,23,23,23', wob=23, ldmin=4, at0=150, tat='1500,1990', flagat=60, pollat=10, forceredo=0, lp1=20, lp2=70, nol=10, fsh=2, npoll=2, psleep=1, wopre=100, fillmm=20, rlead=100, rrate=120, ofl='', apre=60, x1n=2, afill=16, tlb=0, pfpos=6, pft='100,190,280,700,800,1060,1110,1112', swp=1, pfx=300, chain=6, qch=4, c0ch=3, touch=1, x0n=3, nblk=14, f1poll=120, qstgap=16, back=80, pfc=1, bartr=0)
for a in sys.argv[2:]:
    k,v=a.split('='); OPT[k]=int(v) if v.lstrip('-').isdigit() else v
NAME='recurrent_scan__mha_block__glu_gated_reglu__prompt_kernel'

WS_QKV=0; SL=81920
WS_P=0x800000; WS_PX=0x2800000; WS_O=0x2C00000; WS_OX=0x2E00000; WS_F3=0x2E40000; WS_R2=0x2E60000; WS_F2=0x2E80000; WS_STAMP=0x2F00000
OOB=0x80000000
LDS_OOB=0x30000
def f32(x): return struct.unpack('<I',struct.pack('<f',x))[0]
QSCALE=18**-0.5*1.4426950408889634
MARGIN=80.0

sX,sWQ,sWO,sWG,sWU,sWD,sOUT,sDBG,sWS=[S(4+4*n,4) for n in range(9)]
sW,sW1K,sI,sJ,sH,sIDX,sT0,sT1,sSO,sSO2=[S(40+n) for n in range(10)]
sLO,sHI,sONES,sW7K,sW5K=[S(50+n) for n in range(5)]
sSC=[S(55),S(56),S(57)]
sW18K,sJ1,sXC,sM8,sT2,sT3=[S(58+n) for n in range(6)]
sJ128,sJH=S(3),S(94); sSO3=S(95); sXP,sXX=S(92),S(93); sF3,sPV,sPV2=S(79),S(78),S(53)
sBD,sBL,sPC=S(96,2),S(98,2),S(100,2)
nstamp=[0]
def stamp(name,fine=False):
    if not OPT['stamps']: return
    if OPT.get('few') and name not in ('start','c0','down','down end','att end','drained'): return
    if ('gst' in OPT or 'ast' in OPT or 'pst' in OPT) and not fine and name!='start': return
    n=nstamp[0]; nstamp[0]+=1
    assert n<64
    r=64+2*(n%7)
    if n>=7: e(raw(f'v_writelane_b32 v13, s{r}, {n-7}','misc'))
    e(raw(f'{"s_memrealtime" if OPT["stamps"]==1 else "s_memtime"} s[{r}:{r+1}]','misc'))
    print('stamp',n,name)

vL=V(0)
vT=[V(1+n) for n in range(8)]
vR=[V(9),V(10)]
vM=[V(11),V(12)]
vPF=A(255)
vST=V(13)
vGF,vGH,vDF,vDH=[V(14+n) for n in range(4)]
vTR=[[V(18+3*q+n) for n in range(3)] for q in range(4)]
vQK=[V(30+n) for n in range(7)]
vQM=[V(37+n) for n in range(3)]; vQE=[V(40+n) for n in range(3)]
vSM,vSE0,vSE1,vSCX=[V(43+n) for n in range(4)]
vPS,vPX=V(47),V(48)
vF1,vONE=V(49),V(50)
vPG,vF3,vPOLL=V(51),V(52),V(53)
vX=[V(168+n) for n in range(4)]
XC1=V(56,72)
BANK=[V(128,64),V(192,64)]
XC0=A(0,72); HH=A(72,72); FR=A(144,64)
vKM,vKE=V(30),V(31); vVA=[V(32+n) for n in range(4)]
vKV,vWO,vWOE,vWX,vWXE=[V(36+n) for n in range(5)]
vPL,vPLX,vOL,vOLX,vOS,vOSX=[V(41+n) for n in range(6)]
vIDX,vF3L=V(54),V(55)
vXO,vXOX,vR2,vZ=V(11),V(12),V(9),V(10)
QE=V(14,2)
QM=[A(0,4),A(4,4)]
OO=[V(128,16),V(144,16)]
sOB=[S(80+2*n,2) for n in range(4)]
KM=[A(40+4*n,4) for n in range(3)]; KE=[A(52+2*n,2) for n in range(3)]
VV=[A(8,8),A(16,8)]
XR=A(240,10)
PART=[A(60+4*n,4) for n in range(32)]
PARTX=[A(188+2*n,2) for n in range(10)]+[A(24+2*n,2) for n in range(6)]
SBB=[V(192,32),V(224,32),V(160,32)]

P=[]
cur=[-10**6,0]
sink=[None]
def setseq(i,gap=None):
    if 'seq' not in i.meta:
        cur[1]+=1; i.meta['seq']=(cur[0] if gap is None else gap,cur[1])
    return i
def e(*x):
    for i in x:
        if sink[0] is not None: sink[0].append(i)
        else: P.append(setseq(i)); i.meta['at']=cur[0]
@contextlib.contextmanager
def collect():
    o=[]; old=sink[0]; sink[0]=o
    yield o
    sink[0]=old
ARR=[]
fifo=dict(arr=[],dma=[],st=[],ld=[],ctr=[],epi=[],low=[])
def push(q,after,ops,logical=None):
    for o in ops: fifo[q].append((after,setseq(o,logical)))
def masked(dst,val,cmpop,a,b,tmp):
    e(valu(cmpop,'vcc',a,b), valu('v_mov_b32',tmp,OOB), valu('v_cndmask_b32',dst,tmp,val))

def prologue():
    e(salu('s_cmp_ge_u32',S(2),256), raw('s_cbranch_scc0 L_go','misc'), raw('s_endpgm','misc'), label('L_go'))
    for srd,off in ((sX,0),(sWG,32),(sWU,40),(sWQ,8),(sWO,16),(sWD,48),(sOUT,56),(sDBG,64),(sWS,72)): e(raw(f's_load_dwordx2 {srd[0:2]}, s[0:1], {off}','misc'))
    stamp('start')
    e(valu('v_lshrrev_b32',vT[0],6,V(0)), valu('v_and_b32',vL,63,V(0)))
    e(salu('s_and_b32',sXC,S(2),7), salu('s_lshr_b32',sIDX,S(2),3))
    pf_code()
    e(valu('v_readfirstlane_b32',sW,vT[0]))
    e(salu('s_lshr_b32',sM8,sIDX,2), salu('s_lshl_b32',sI,sM8,1), salu('s_and_b32',sT2,sXC,1), salu('s_add_u32',sI,sI,sT2))
    e(salu('s_mul_i32',sW18K,sW,18432))
    vx0,vx1,row,t=vX[0],vX[1],vT[2],vT[3]
    e(salu('s_lshl_b32',sT2,sI,2), salu('s_add_u32',sT2,sT2,sW), salu('s_lshl_b32',sT2,sT2,5))
    e(valu('v_lshrrev_b32',row,3,vL), valu('v_lshrrev_b32',t,4,vL), valu('v_and_b32',vx0,7,vL), valu('v_xor_b32',vx0,vx0,t),
      valu('v_xor_b32',vx1,4,vx0), valu('v_add_u32',t,sT2,row), valu('v_mul_u32_u24',t,1152,t),
      valu('v_lshl_add_u32',vX[2],vx0,4,t), valu('v_lshl_add_u32',vX[3],vx1,4,t), valu('v_add_u32',vX[3],8*1152-1024,vX[3]),
      valu('v_add_u32',vx0,1920,vX[2]), valu('v_add_u32',vx1,1920,vX[3]))
    e(salu('s_lshr_b32',sJ,sXC,1), salu('s_lshl_b32',sJ,sJ,2), salu('s_and_b32',sT3,sIDX,3), salu('s_add_u32',sJ,sJ,sT3), salu('s_and_b32',sJ1,sJ,1))
    e(salu('s_mul_i32',sSO2,sJ1,18432*OPT['swp']))
    if OPT['px']:
        n=OPT['px']
        e(salu('s_mul_i32',sT0,sT2,1152), salu('s_and_b32',sT1,sJ,288//n-1), salu('s_mul_i32',sT1,sT1,n*128), salu('s_add_u32',sT0,sT0,sT1), valu('v_lshl_add_u32',vT[4],vL,7,sT0))
    e(raw('s_waitcnt lgkmcnt(0)','misc'))
    if OPT['px']:
        n=OPT['px']
        m=(1<<min(n,36))-1
        e(raw(f's_mov_b32 exec_lo, {hex(m&0xffffffff)}','salu'), raw(f's_mov_b32 exec_hi, {m>>32}','salu'), gload(vPF,vT[4],sX[0:2],tag='pf'))
        if n==72: e(valu('v_add_u32',vT[4],36*128,vT[4]), gload(vPF,vT[4],sX[0:2],tag='pf'))
        e(raw('s_mov_b64 exec, -1','salu'))
    e(salu('s_sub_u32',sBL[0],sX[0],1920), salu('s_subb_u32',sBL[1],sX[1],0), salu('s_add_u32',sBD[0],sBL[0],sSO2), salu('s_addc_u32',sBD[1],sBL[1],0))
def prologue2():
    if OPT['tlb']:
        e(salu('s_mov_b32',sT0,2<<20), salu('s_mov_b32',sT1,4<<20))
        for srd,n in ((sWG,3),(sWU,3),(sWQ,1),(sWD,3),(sWO,1),(sWS,1),(sOUT,2)):
            for k in range(n): e(raw(f's_load_dword s80, {srd[0:2]}, {["0",sT0,sT1][k]}','misc'))
    e(salu('s_sub_u32',sSO2,18432,sSO2), salu('s_add_u32',sBL[0],sBL[0],sSO2), salu('s_addc_u32',sBL[1],sBL[1],0))
    e(salu('s_mul_i32',sXP,sJ1,OPT['swp']<<18), salu('s_mul_i32',sXX,sJ1,OPT['swp']<<15))
    e(salu('s_lshl_b32',sH,sXC,2), salu('s_add_u32',sH,sH,sT3))
    e(salu('s_lshl_b32',sW1K,sW,10), salu('s_mul_i32',sW7K,sW,7168), salu('s_mul_i32',sW5K,sW,5120))
    for srd,n in ((sX,2048*1152),(sWQ,576*3456),(sWO,576*1152),(sWG,576*9216),(sWU,576*9216),(sWD,4608*1152),(sOUT,2048*1152),(sDBG,256),(sWS,0x10000000)):
        e(salu('s_mov_b32',srd[2],n), salu('s_mov_b32',srd[3],0x20000))
    e(salu('s_mov_b32',sLO,0x3f80), salu('s_mov_b32',sHI,0x3f800000), salu('s_mov_b32',sONES,0x3f803f80))
def addr_pf():
    row,t=vT[2],vT[3]
    e(salu('s_lshl_b32',sJ128,sJ1,7), salu('s_lshl_b32',sJH,sJ1,9), salu('s_sub_u32',sJH,512,sJH))
    e(salu('s_lshl_b32',sT0,sI,2), salu('s_add_u32',sT0,sT0,sW), salu('s_mul_i32',sT0,sT0,9*9216), salu('s_mul_i32',sT1,sJ,576), salu('s_and_b32',sT1,sT1,-128), salu('s_add_u32',sT0,sT0,sT1),
      valu('v_mul_u32_u24',t,9216,vL), valu('v_add_u32',t,sT0,t))
    masked(vPG,t,'v_cmp_gt_u32',9,vL,row)
    u=row
    e(valu('v_mul_u32_u24',t,7282,vL), valu('v_lshrrev_b32',t,16,t), valu('v_mul_u32_u24',u,9,t), valu('v_sub_u32',u,vL,u), valu('v_mul_u32_u24',u,3456,u), valu('v_lshl_add_u32',u,t,7,u),
      salu('s_lshl_b32',sT0,sI,2), salu('s_add_u32',sT0,sT0,sW), salu('s_mul_i32',sT0,sT0,9*3456), salu('s_mul_i32',sT1,sJ,216), salu('s_and_b32',sT1,sT1,-128), salu('s_add_u32',sT0,sT0,sT1),
      valu('v_add_u32',u,sT0,u))
    masked(vPOLL,u,'v_cmp_gt_u32',27,vL,t)
def pf_gu(c):
    if not OPT['pf']: return []
    return [cost(bload(vPF,vPG,s,sJ128 if c<4 else sJH,c*128 if c<4 else 0,tag='pf'),90) for s in (sWG,sWU)]
def pf_q(): return [cost(bload(vPF,vPOLL,sWQ,0,tag='pf'),270)] if OPT['pf'] else []
def addr_pfd():
    t,u=vPOLL,vT[7]; sT0,sT1=sSO3,S(78)
    e(salu('s_lshl_b32',sT0,sI,2), salu('s_add_u32',sT0,sT0,sW), salu('s_mul_i32',sT0,sT0,81*64), salu('s_and_b32',sT0,sT0,-128), salu('s_mul_i32',sT1,sJ,288*1152), salu('s_add_u32',sT0,sT0,sT1),
      valu('v_lshl_add_u32',t,vL,7,sT0))
    masked(vPOLL,t,'v_cmp_gt_u32',14,vL,u)
def pf_d(k): return [cost(bload(vPF,vPOLL,sWD,0,k*14*128,tag='pf'),140)] if OPT['pf'] else []
def pf_o():
    if not OPT['pf']: return
    t,u=vT[4],vT[5]
    e(salu('s_lshl_b32',sT0,S(2),2), salu('s_add_u32',sT0,sT0,sW), salu('s_mul_i32',sT0,sT0,6*128), valu('v_lshl_add_u32',t,vL,7,sT0))
    masked(t,t,'v_cmp_gt_u32',6,vL,u)
    e(cost(bload(vPF,t,sWO,0,tag='pf'),60))
def cost(i,c): i.meta['cost']=c; return i
def xdma(tt,l):
    base=sBD if tt==0 else sBL
    o=[salu('s_add_u32','m0',sW18K,tt*73728+l*1920)] if l%2==0 else []
    for z in range(2): o.append(gdma(vX[2*(l&1)+z],base,(l&~1)*128+(2*(l&1)+z)*1024,tag=('x',tt,l),private=True))
    return o
SELA=A(208,2)
def sel_ops(m,g):
    return [valu('v_and_b32',m,1,vL), valu('v_lshlrev_b32',m,4,m), valu('v_lshlrev_b32',m,m,sLO), valu('v_bfe_u32',g,vL,1,1), valu('v_mul_lo_u32',g,g,m), valu('v_sub_u32',m,m,g),
      valu('v_accvgpr_write_b32',SELA[0],m), valu('v_accvgpr_write_b32',SELA[1],g)]
ntouch=[0]
def touch():
    if not OPT['touch']: return []
    k=ntouch[0]; ntouch[0]+=1
    o=[raw('s_mov_b64 exec, 0','salu')]
    for w in range(3): o+=[salu('s_cmp_eq_u32',sW,w), raw(f's_cbranch_scc1 L_pg{4*k+w}','misc')]
    o+=[raw(f's_branch L_pg{4*k+3}','misc'), label(f'L_tr{k}'), raw('s_mov_b64 exec, -1','salu')]
    for x in o[:-1]: x.meta['glue']=True
    return o

def lane_rp(rp,p,t):
    e(valu('v_lshrrev_b32',rp,3,vL), valu('v_and_b32',t,6,rp), valu('v_and_b32',p,7,vL), valu('v_xor_b32',p,p,t))
def addr_early():
    rp,p,t,u,kA=vT[2],vT[3],vT[4],vT[5],vT[6]
    lane_rp(rp,p,t)
    e(salu('s_and_b32',sT0,sW,1), salu('s_lshl_b32',sT0,sT0,4), salu('s_lshr_b32',sT1,sW,1), salu('s_lshl_b32',sT1,sT1,2), salu('s_add_u32',sT0,sT0,sT1))
    e(valu('v_and_b32',t,4,rp), valu('v_add_u32',kA,rp,t), valu('v_add_u32',kA,sT0,kA))
    e(salu('s_mul_i32',sT1,sJ,288), salu('s_lshl_b32',sT2,sJ1,5), salu('s_add_u32',sT2,sT2,sT1))
    e(salu('s_lshl_b32',sT3,sJ1,8), salu('s_sub_u32',sT3,256,sT3), salu('s_add_u32',sT3,sT3,sT1))
    e(salu('s_lshl_b32',sT0,sT2,1), valu('v_mul_u32_u24',t,9216,kA), valu('v_lshl_add_u32',t,p,4,t), valu('v_add_u32',vGF,sT0,t))
    e(salu('s_lshl_b32',sT0,sT3,1), valu('v_lshrrev_b32',t,2,p), valu('v_lshl_add_u32',t,t,5,kA), valu('v_mul_u32_u24',t,9216,t),
      valu('v_and_b32',u,3,p), valu('v_lshl_add_u32',t,u,4,t), valu('v_add_u32',vGH,sT0,t))
    e(salu('s_lshl_b32',sT0,sW,3), valu('v_add_u32',t,sT0,rp), valu('v_add_u32',u,sT2,t), valu('v_mul_u32_u24',u,1152,u), valu('v_lshl_add_u32',vDF,p,4,u),
      valu('v_add_u32',u,sT3,t), valu('v_mul_u32_u24',u,1152,u), valu('v_lshl_add_u32',vDH,p,4,u))
    g,r4,c,b=vT[2],vT[3],vT[6],vT[7]
    e(valu('v_bfe_u32',r4,vL,2,3), valu('v_and_b32',c,3,vL), valu('v_lshrrev_b32',g,5,vL),
      valu('v_lshlrev_b32',b,10,g), valu('v_lshl_add_u32',b,r4,7,b), valu('v_lshl_add_u32',b,c,3,b), valu('v_lshrrev_b32',t,1,r4))
    for q in range(4):
        e(valu('v_xor_b32',u,q,t), valu('v_lshl_add_u32',vTR[q][0],u,5,b), valu('v_add_u32',vTR[q][1],0x10000,vTR[q][0]), valu('v_add_u32',vTR[q][2],0x20000,vTR[q][0]))
def addr_qk():
    t=vT[4]
    e(salu('s_mul_i32',sT0,sJ,216), salu('s_and_b32',sT0,sT0,-16), salu('s_mul_i32',sT1,sW,32*3456), salu('s_add_u32',sT0,sT0,sT1))
    for q in range(7):
        pp,rr,k=vT[2],vT[3],vT[6]
        e(valu('v_add_u32',pp,64*q,vL), valu('v_mul_u32_u24',rr,4682,pp), valu('v_lshrrev_b32',rr,16,rr),
          valu('v_mul_u32_u24',t,14,rr), valu('v_sub_u32',pp,pp,t),
          valu('v_and_b32',t,12,rr), valu('v_and_b32',k,3,rr), valu('v_lshl_add_u32',k,t,1,k), valu('v_lshrrev_b32',t,4,rr), valu('v_lshl_add_u32',k,t,2,k),
          valu('v_mul_u32_u24',k,3456,k), valu('v_lshl_add_u32',k,pp,4,k), valu('v_add_u32',vQK[q],sT0,k))
        if q%4: e(valu('v_subrev_u32',vQK[q],1024*(q%4),vQK[q]))
def extpos(dst,key,t):
    e(valu('v_and_b32',dst,7,key), valu('v_bfe_u32',t,key,4,1), valu('v_lshl_add_u32',dst,t,3,dst),
      valu('v_bfe_u32',t,key,3,1), valu('v_xor_b32',t,1,t), valu('v_lshl_add_u32',dst,t,4,dst))
def addr_mid():
    t,u,c=vT[4],vT[5],vT[6]
    e(valu('v_and_b32',c,3,vL), salu('s_lshl_b32',sT0,sJ1,3), valu('v_lshrrev_b32',t,2,vL), valu('v_mul_u32_u24',t,224,t), valu('v_add_u32',t,sT0,t),
      valu('v_lshl_add_u32',vQM[0],c,3,t), valu('v_mul_u32_u24',u,72,c), valu('v_add3_u32',vQE[0],t,u,32))
    for n in (1,2): e(valu('v_add_u32',vQM[n],n*0x10000,vQM[0]), valu('v_add_u32',vQE[n],n*0x10000,vQE[0]))
def addr_mid2():
    t,u,key,hf=vT[4],vT[5],vT[2],vT[3]
    e(salu('s_lshl_b32',sT0,sI,2), salu('s_add_u32',sT0,sT0,sW), salu('s_mul_i32',sT0,sT0,1280), salu('s_mul_i32',sT1,sJ,6*SL), salu('s_add_u32',sT0,sT0,sT1))
    e(salu('s_lshr_b32',sT1,sXX,11), valu('v_xor_b32',u,sT1,vL), valu('v_and_b32',key,31,u), valu('v_lshrrev_b32',hf,5,vL), valu('v_lshlrev_b32',t,2,hf), valu('v_xor_b32',t,t,u), valu('v_lshlrev_b32',t,4,t), valu('v_add_u32',vSM,sT0,t))
    extpos(u,key,t)
    e(valu('v_lshlrev_b32',u,3,u), valu('v_add_u32',u,sT0,u), valu('v_add_u32',u,1024,u), valu('v_mul_u32_u24',t,4*SL,hf), valu('v_add_u32',vSE0,u,t),
      valu('v_lshl_add_u32',vSE1,hf,31,u))
    e(salu('s_mul_i32',sT0,sJ,6), valu('v_lshrrev_b32',t,4,vL), valu('v_lshl_add_u32',t,t,1,sT0), valu('v_mov_b32',u,f32(QSCALE)), valu('v_cmp_gt_u32','vcc',32,t), valu('v_cndmask_b32',vSCX,1.0,u))
    for p_ in range(3): e(valu('v_readlane_b32',sSC[p_],vSCX,16*p_))
    e(salu('s_lshl_b32',sT0,sI,2), salu('s_add_u32',sT0,sT0,sW), salu('s_lshl_b32',sT1,sT0,9), salu('s_add_u32',sT1,sT1,sJ), salu('s_lshl_b32',sT1,sT1,10),
      valu('v_lshl_add_u32',vPS,vL,4,sT1),
      salu('s_lshl_b32',sT1,sT0,7), salu('s_add_u32',sT1,sT1,sJ), salu('s_lshl_b32',sT1,sT1,9), valu('v_lshl_add_u32',vPX,vL,3,sT1))
    e(salu('s_lshl_b32',sT1,sT0,4), salu('s_add_u32',sT1,sT1,sJ), salu('s_lshl_b32',sT1,sT1,7), salu('s_add_u32',sT1,sT1,WS_F2), valu('v_mov_b32',t,sT1))
    masked(vF1,t,'v_cmp_eq_u32',0,vL,u)
    e(salu('s_lshl_b32',sT1,sM8,2), salu('s_add_u32',sT1,sT1,sW), salu('s_lshl_b32',sT1,sT1,12), salu('s_add_u32',sT1,sT1,WS_F3), valu('v_lshl_add_u32',t,vL,9,sT1))
    masked(vF3,t,'v_cmp_gt_u32',8,vL,u)
    e(salu('s_lshl_b32',sT1,sXC,2), salu('s_lshr_b32',sT2,sIDX,3), salu('s_add_u32',sT1,sT1,sT2), salu('s_lshl_b32',sT1,sT1,1), salu('s_and_b32',sT2,sIDX,1), salu('s_add_u32',sT1,sT1,sT2),
      salu('s_lshl_b32',sT1,sT1,2), salu('s_add_u32',sT1,sT1,sW), salu('s_lshl_b32',sT1,sT1,9), salu('s_add_u32',sF3,sT1,WS_F3))
    e(valu('v_mov_b32',u,vF1), raw(f'v_writelane_b32 {u}, {sF3}, 1','valu',u.regs()+sF3.regs(),u.regs()),
      valu('v_mov_b32',t,0), cost(bstore(t,u,sWS,0,flags='sc1',tag='qkvst'),30))
    e(valu('v_and_b32',key,16,vL), valu('v_cmp_eq_u32','vcc',0,key), valu('v_cndmask_b32',hf,vR[1],vR[0]), valu('v_mul_f32',hf,hf,hf),
      salu('s_lshl_b32',sT0,sT0,7), salu('s_add_u32',sT0,sT0,WS_R2), valu('v_lshl_add_u32',key,vL,2,sT0), salu('s_lshl_b32',sT1,sJ,6), valu('v_add_u32',t,sT1,vL))
    masked(key,key,'v_cmp_gt_u32',32,t,u)
    e(bstore(hf,key,sWS,0,flags='sc1',tag='qkvst'))
def pf_code():
    if not OPT['pfc']: return
    t=vT[4]; a=V(6,2)
    e(raw('s_getpc_b64 s[100:101]','salu',[],['s100','s101']), label('L_pc'),
      salu('s_lshl_b32',sT0,sIDX,2), valu('v_add_u32',t,sT0,vT[0]), valu('v_lshl_add_u32',t,vL,7,t), valu('v_lshlrev_b32',t,7,t),
      raw(f'v_min_u32 {t}, L_codeend-L_pc-4, {t}','valu',t.regs(),t.regs()),
      raw(f'v_add_co_u32 {a[0]}, vcc, {sPC[0]}, {t}','valu',t.regs()+['s100'],a[0].regs()+['vcc']), valu('v_mov_b32',a[1],sPC[1]), raw('s_mov_b64 exec, 63','salu'),
      raw(f'v_addc_co_u32 {a[1]}, vcc, 0, {a[1]}, vcc','valu',a[1].regs()+['vcc'],a[1].regs()+['vcc']),
      I(f'global_load_dword {vPF}, {a}, off','vld',a.regs(),vPF.regs(),tag='pf'), raw('s_mov_b64 exec, -1','salu'))

GR=[V(38,4),V(42,4)]; MEAN=[V(46),V(47)]
def var_ops(tt):
    d=GR[tt]; t=vT[4]; b=d[0]
    e(valu('v_and_b32',t,1,vL), valu('v_cmp_eq_u32','vcc',0,t), valu('v_and_b32',t,2,vL), valu('v_cndmask_b32',d[0],d[1],d[0]), valu('v_cndmask_b32',d[2],d[3],d[2]),
      valu('v_cmp_eq_u32','vcc',0,t), valu('v_bfe_u32',t,vL,2,2), valu('v_cndmask_b32',d[0],d[2],d[0]), valu('v_lshrrev_b32',d[1],4,vL), valu('v_cmp_eq_u32','vcc',t,d[1]),
      valu('v_cndmask_b32',b,0,b))
    for op in ('v_permlane16_swap_b32','v_permlane32_swap_b32'): e(valu('v_mov_b32',d[1],b), swap(op,b,d[1]), valu('v_add_f32',b,b,d[1]))
    e(valu('v_mul_f32',b,f32(1/576),b), valu('v_fma_f32',b,'-'+str(MEAN[tt]),MEAN[tt],b), valu('v_max_f32',b,0,b), valu('v_cvt_pk_bf16_f32',b,b,b), valu('v_lshlrev_b32',b,16,b),
      valu('v_add_f32',b,f32(1e-5),b), valu('v_cvt_pk_bf16_f32',b,b,b), valu('v_lshlrev_b32',b,16,b),
      valu('v_sqrt_f32',b,b), valu('v_cvt_pk_bf16_f32',b,b,b), valu('v_lshlrev_b32',b,16,b), valu('v_rcp_f32',vR[tt],b))
def centre_ops(f,tt):
    o=[]; t=V(252)
    for d in range(4):
        x=f[d]
        o+=[valu('v_lshlrev_b32',t,16,x), valu('v_and_b32',x,0xffff0000,x), valu('v_sub_f32',t,t,vM[tt]), valu('v_sub_f32',x,x,vM[tt]), valu('v_cvt_pk_bf16_f32',x,t,x)]
    return o
def to_acc(s): return [valu('v_accvgpr_write_b32',XC0[4*s+d],X0[s][d]) for d in range(4)]

class Item:
    def __init__(s,name,n,mk): s.name=name; s.n=n; s.mk=mk; s.addr=None; s.first=None; s.last=None; s.pushed=False
    def blks(s): return list(range(s.addr//4096,s.addr//4096+s.n))
def blk_item(name,voff,srd,soff,buf=False,c=80):
    def mk(it):
        o=[salu('s_add_u32','m0',sW1K,it.addr)]
        if buf: return o+[salu('s_mov_b32',sSO,soff), cost(dma(voff,srd,sSO,tag=it.name,dst=it.blks()),c)]
        return o+base_add(sBD,srd,soff)+[cost(gdma(voff,sBD,tag=it.name,dst=it.blks()),c)]
    return Item(name,1,mk)
def qkv_item(a):
    def mk(it):
        o=[salu('s_mov_b32',sSO,a*128*3456)] if a==4 else base_add(sBD,sWQ,a*128*3456)
        for q in range(7):
            if q%4==0: o.append(salu('s_add_u32','m0',sW7K,it.addr+q*1024))
            if a==4: o.append(dma(vQK[q],sWQ,sSO,(q%4)*1024,tag=it.name,dst=it.blks()))
            else: o.append(cost(gdma(vQK[q],sBD,(q%4)*1024,tag=it.name,dst=it.blks()),120))
        return o
    return Item(('q',a),7,mk)
def kv_item(sg):
    def mk(it):
        o=[]
        for q in range(5):
            if q%4==0: o+=[salu('s_add_u32','m0',sW5K,it.addr+q*1024)]+base_add(sBD,sWS,WS_QKV+sg*10240+q*1024)
            o.append(gdma(vKV,sBD,(q%4)*1024,flags='sc1',tag=it.name,dst=it.blks())); o[-1].rd.append('ok_f1')
        return o
    return Item(('kv',sg),5,mk)

class Group:
    def __init__(s): s.m=[]; s.rd=[]; s.bar=False; s.fr=[]
frp=[0]
def newfrag():
    pl=[FR[4*n:4*n+4] for n in range(16)]+[A(216+4*n,4) for n in range(OPT['frx'])]
    f=pl[frp[0]]; frp[0]=(frp[0]+1)%len(pl); return f
def tr_read(f,u,it,seg):
    return dsr('ds_read_b64_tr_b16',f[2*u:2*u+2],vTR[seg][it.addr>>16],(it.addr&0xffff)+u*2048,src=(it.name,it.blks()))
def xc(tt,s): return (XC0 if tt==0 else XC1)[4*s:4*s+4]
def hfrag(k,tt): return HH[8*k+4*tt:8*k+4*tt+4]

items=[]; groups=[]; events=[]
def mm_group(srcs,accs,bfun,bar=False):
    g=Group(); g.bar=bar
    for it,seg,k in srcs:
        f=newfrag(); g.fr.append(f)
        for u in range(2): g.rd.append((it,lambda it,f=f,u=u,seg=seg: tr_read(f,u,it,seg)))
    for tt in range(2):
        for (it,seg,k),f in zip(srcs,g.fr):
            g.m.append(m16(accs[tt],f,bfun(k,tt),0 if k==0 else accs[tt]))
    groups.append(g); return len(groups)-1

def h_epilogue(bank,q,kout,half):
    gt=[bank[16*q+4*tt:16*q+4*tt+4] for tt in range(2)]; up=[bank[16*q+8+4*tt:16*q+12+4*tt] for tt in range(2)]
    o=[]
    for tt in range(2):
        for r in range(4): o.append(valu('v_max_f32',gt[tt][r],0,gt[tt][r]))
    for tt in range(2):
        for r in range(4): o.append(valu('v_mul_f32',up[tt][r],gt[tt][r],up[tt][r]))
        for d in range(2): o.append(valu('v_cvt_pk_bf16_f32',gt[tt][d],up[tt][2*d],up[tt][2*d+1]))
        for d in range(2): o.append(valu('v_accvgpr_write_b32',hfrag(kout,tt)[2*half+d],gt[tt][d]))
    return o
NV0=15
X0=[V(192+4*s,4) for s in range(NV0)]+[V(128+4*s,4) for s in range(18-NV0)]
def build_chunk(c,bank):
    xf=lambda k,tt: X0[k] if (c==0 and tt==0 and k<NV0) else xc(tt,k)
    cuts=list(range(0,19,OPT['chain']))
    if c==0: cuts=list(range(0,19,3)) if OPT['c0ch']==3 else [0,3,6,12,15,18]
    for st,(k0,k1) in enumerate(zip(cuts,cuts[1:])):
        G=[blk_item(('g',c,k),vGF,sWG,k*32*9216+c*128) for k in range(k0,k1)]
        U=[blk_item(('u',c,k),vGF,sWU,k*32*9216+c*128) for k in range(k0,k1)]
        items.extend(G+U)
        for q in range(4):
            mm_group([(G[k-k0],q,k) for k in range(k0,k1)],[bank[16*q+4*tt:16*q+4*tt+4] for tt in range(2)],xf,bar=(q==0))
        for q in range(4):
            gi=mm_group([(U[k-k0],q,k) for k in range(k0,k1)],[bank[16*q+8+4*tt:16*q+12+4*tt] for tt in range(2)],xf,bar=(q==0 and (k1-k0>3 or OPT['bartr'] or (c==0 and st<OPT.get('bar0',2)))))
            if k1==18: events.append((gi,h_epilogue(bank,q,2*c+(q>>1),q&1)))
def build_half(bank):
    for st in range(3):
        G=[blk_item(('gh',3*st+n),vGH,sWG,(3*st+n)*64*9216,c=150) for n in range(3)]
        U=[blk_item(('uh',3*st+n),vGH,sWU,(3*st+n)*64*9216,c=150) for n in range(3)]
        items.extend(G+U)
        seq=[(G,0,0),(G,0,1),(U,8,0),(U,8,1)] if st<2 else [(G,0,0),(U,8,0),(G,0,1),(U,8,1)]
        for z,(M,o,q) in enumerate(seq):
            ch=min(6,OPT['chain'])
            for hh in range(6//ch):
                ks=[6*st+ch*hh+n for n in range(ch)]
                gi=mm_group([(M[(k-6*st)>>1],2*(k&1)+q,k) for k in ks],[bank[16*q+o+4*tt:16*q+o+4+4*tt] for tt in range(2)],lambda k,tt:xc(tt,k),bar=(hh==0 and (z==0 or (z==2 and st<2 and OPT['bartr']))))
            if st==2 and o==8: events.append((gi,h_epilogue(bank,q,8,q)))
def build_qkv(bank):
    for a in range(5):
        it=qkv_item(a); items.append(it)
        first=True
        qc=OPT['qch'] if a<4 else 2
        for k0 in range(0,4 if a<4 else 2,qc):
            for t in range(7):
                g=Group(); g.bar=first; first=False
                for kk in range(k0,k0+qc):
                    f=newfrag(); g.fr.append(f)
                    for u in range(2):
                        def rd(it,f=f,u=u,kk=kk,t=t):
                            ad=it.addr+kk*7168+u*3584+(0 if t==6 else 72*(t>>1)+40*(t&1))
                            return dsr('ds_read_b64_tr_b16',f[2*u:2*u+2],(vQE if t==6 else vQM)[ad>>16],ad&0xffff,src=(it.name,it.blks()))
                        g.rd.append((it,rd))
                for tt in range(2):
                    acc=bank[8*t+4*tt:8*t+4*tt+4]
                    for n,kk in enumerate(range(k0,k0+qc)):
                        k=4*a+kk
                        g.m.append(m16(acc,g.fr[n],xc(tt,k),0 if k==0 else acc))
                groups.append(g)
                if a==4: events.append((len(groups)-1,qkv_epilogue(bank,t)))
def st_pair(o,data,voff,soff,tag,x=None):
    a=salu('s_mov_b32',sSO2,soff) if x is None else salu('s_xor_b32',sSO2,x,soff); b=bstore(data,voff,sWS,sSO2,flags='sc1',tag=tag)
    dep=[x for x in o if x.kind=='valu'][-1]
    a.meta['q']='st'; b.meta['q']='st'; b.meta['dep']=dep
    o+=[a,b]
def qkv_epilogue(bank,t):
    o=[]
    sc=[bank[56],bank[57]]
    if t==6: o+=[valu('v_mul_f32',sc[tt],vSCX,vR[tt]) for tt in range(2)]
    elif t%2==0: o+=[valu('v_mul_f32',sc[tt],sSC[t>>1],vR[tt]) for tt in range(2)]
    a=bank[8*t:8*t+8]
    for tt in range(2):
        for r in range(4): o.append(valu('v_mul_f32',a[4*tt+r],sc[tt],a[4*tt+r]))
    if t<6:
        o+=[valu('v_cvt_pk_bf16_f32',a[0],a[0],a[1]), valu('v_cvt_pk_bf16_f32',a[1],a[2],a[3]), valu('v_cvt_pk_bf16_f32',a[2],a[4],a[5]), valu('v_cvt_pk_bf16_f32',a[3],a[6],a[7]),
            swap('v_permlane16_swap_b32',a[0],a[2]), swap('v_permlane16_swap_b32',a[1],a[3])]
        st_pair(o,a[0:4],vSM,WS_QKV+t*SL,'qkvst')
    else:
        o+=[valu('v_cvt_pk_bf16_f32',a[0],a[0],a[1]), valu('v_cvt_pk_bf16_f32',a[2],a[2],a[3]), valu('v_cvt_pk_bf16_f32',a[4],a[4],a[5]), valu('v_cvt_pk_bf16_f32',a[6],a[6],a[7])]
        o+=[valu('v_mov_b32',a[n],sONES) for n in (1,3,5,7)]
        o+=[swap('v_permlane16_swap_b32',a[0],a[4]), swap('v_permlane16_swap_b32',a[2],a[6])]
        for n,(vo,sl) in enumerate(((vSE0,0),(vSE0,1),(vSE1,2),(vSE1,3))):
            st_pair(o,a[2*n:2*n+2],vo,WS_QKV+sl*SL,'qkvst')
    return o
pool=[0]
def build_down():
    ntr=0
    if OPT['chain']==3: seq=[(c,3*tr,3*tr+3) for c,tr in [(0,0),(0,1),(1,0),(1,1),(0,2),(1,2)]+[(c,tr) for c in range(2,9) for tr in range(3)]]
    else:
        seq=[(0,0,6),(1,0,6),(0,6,9),(1,6,9)]
        for c in range(2,9): seq+=[(c,0,9)] if OPT['chain']==9 and c<8 else ([(c,0,6),(c,6,9)] if c%2==0 else [(c,0,3),(c,3,9)])
    for c,k0,k1 in seq:
        acc=V(192 if c==0 else 128+32*((c+1)%2),32)
        tr=2 if k1==9 else 0
        if True:
            B=[blk_item(('d',c,k),vDF if k<8 else vDH,sWD,(k*32*1152 if k<8 else 0)+c*128) for k in range(k0,k1)]
            items.extend(B)
            for q in range(4):
                gi=mm_group([(B[k-k0],q,k) for k in range(k0,k1)],[acc[16*tt+4*q:16*tt+4*q+4] for tt in range(2)],hfrag,bar=(q==0 and (ntr%2==0 or k1-k0==9 or OPT['bartr'])))
                if tr==2 and q%2==1:
                    o=[]
                    for tt in range(2):
                        a=acc[16*tt+4*(q-1):16*tt+4*(q-1)+8]
                        d4=XC1[pool[0]:pool[0]+4]; pool[0]=(pool[0]+4)%72
                        o+=[valu('v_cvt_pk_bf16_f32',d4[d],a[2*d],a[2*d+1]) for d in range(4)]
                        if c<8: st_pair(o,d4,vPS,WS_P+(tt*16+c*2+(q>>1))*16384,'pst',sXP)
                        else:
                            for z in range(2): st_pair(o,d4[2*z:2*z+2],vPX,WS_PX+(tt*4+q-1+z)*8192,'pst',sXX)
                    events.append((gi,o))
            ntr+=(k1-k0)//3

marks={}
def build_ffn():
    marks['c0']=len(groups); build_chunk(0,BANK[0])
    marks['c1']=len(groups); build_chunk(1,BANK[1])
    marks['qkv']=len(groups); build_qkv(BANK[0])
    marks['c2']=len(groups); build_chunk(2,BANK[1])
    marks['c3']=len(groups); build_chunk(3,BANK[0])
    marks['half']=len(groups); build_half(V(224,32))
    marks['down']=len(groups); build_down()

NB=39 if OPT['split'] else 40; LATE=10**9
SIG=13 if OPT['split'] else 1
vCA,vCV=V(54),vT[7]
def plan():
    L=OPT['look']
    n=0; bars=[]
    for g in groups:
        g.start=n
        if g.bar: bars.append(n-L)
        for k,(it,_) in enumerate(g.rd):
            if it.first is None: it.first=n+k-L
            it.last=n-1+(0 if len(g.fr)<=3 else ((k//4)*2 if not OPT['w3'] else (k//6)*3))
        n+=len(g.m)
    free={b:(-3000 if b>=36 else (-2000 if b<18 else -L)) for b in range(NB)}
    ptr=36
    for it in items:
        if ptr+it.n>NB: ptr=0
        it.addr=ptr*4096
        it.early=max(free[b] for b in it.blks())
        assert it.early<LATE
        it.bar=max(b for b in bars if b<=it.first)
        nxt=[b for b in bars if b-SIG>=it.last]
        for b in it.blks(): free[b]=nxt[0] if nxt else LATE
        ptr=(ptr+it.n)%NB
    return n,bars,free

VM=('dma','vld','vst')
SC=('salu','waitfor','misc','label')
lastvm=dict(any=-100,st=-100)
def head(nm,gap):
    q=fifo[nm]
    if not q or q[0][0]>gap: return None
    x=q[0][1]
    if 'lag' in x.meta and x.meta['lag'][0].meta.get('at',LATE)+x.meta['lag'][1]>gap: return None
    sq=x.meta['seq']; rd=set(x.rd)-{'carry'}; wr=set(x.wr)-{'carry'}
    for n2,q2 in fifo.items():
        if n2==nm: continue
        for _,y in q2:
            if y.meta['seq']>sq: break
            if rd&set(y.wr) or wr&set(y.rd) or wr&set(y.wr): return None
    return x
pipe=[0,16]
def vm_ready(gap,mingap,stgap,order=('st','ld','low','dma')):
    if gap-lastvm['any']<mingap: return None
    if pipe[0]-gap*pipe[1]>OPT['back']: return None
    for nm in order:
        x=head(nm,gap)
        if x is None or x.kind not in VM: continue
        if nm=='st':
            d=x.meta.get('dep')
            if gap-lastvm['st']<stgap or (d is not None and d.meta.get('at',LATE)>gap-2): continue
        return nm
    return None
def take(nm,gap):
    x=fifo[nm].pop(0)[1]
    if x.kind in VM:
        lastvm['any']=gap
        pipe[0]=max(pipe[0],gap*pipe[1])+x.meta.get('cost',80)
        if nm=='st': lastvm['st']=gap
    e(x)
    nx=[y for _,y in fifo[nm][:6] if 'vcc' in y.rd or 'vcc' in y.wr]
    if nx and 'vcc' in nx[0].rd: vcc_open[0]=nm
    elif vcc_open[0]==nm: vcc_open[0]=None
    while x.meta.get('glue'):
        x=fifo[nm].pop(0)[1]; e(x)
    return x
vcc_lock=[LATE]; vcc_open=[None]
def pull(gap,scalar):
    order=('arr','st','ld','dma','ctr','epi','low') if scalar and OPT['sprio'] else ('arr','dma','st','ctr','epi','ld','low')
    if scalar:
        for nm in order:
            x=head(nm,gap)
            if x is not None and 'carry' in x.rd: take(nm,gap); return True
    elif vcc_open[0]: order=(vcc_open[0],)+order
    for nm in order:
        x=head(nm,gap)
        if x is None or x.kind in VM: continue
        if (x.kind in SC)!=scalar: continue
        if 'vcc' in x.wr and not x.meta.get('glue') and vcc_lock[0]<OPT.get('vlock',22): continue
        take(nm,gap); return True
    return False

bar_extra={}
def emit_backbone(bars,gapstamps):
    L=OPT['look']
    reads=[(it,f,g.start-0.5) for g in groups for it,f in g.rd]
    ev={}
    for gi,ops in events: ev.setdefault(gi,[]).append(ops)
    bar_items={}
    for it in items: bar_items.setdefault(it.bar,[]).append(it.name)
    barset=set(bars); issue={}
    fixed={}; fixT={}
    nb=len([b for b in bars if b>=SIG and OPT['split']]); kb=0
    for gi,g in enumerate(groups):
        for k in range(len(g.m)):
            gap=g.start+k; fx=[]
            w_lg=list(groups[gi+1].fr) if (k==len(g.m)-1 and gi+1<len(groups)) else []
            if len(w_lg)>3: w_lg=w_lg[:3 if OPT['w3'] else 2]
            if len(g.fr)>3 and not OPT['w3'] and k in (1,3): w_lg=g.fr[k+1:k+3]
            if len(g.fr)>3 and OPT['w3'] and k in (2,5) and k+1<len(g.fr): w_lg=g.fr[k+1:k+4]
            if len(g.fr)>6 and k in (9,13): w_lg=groups[gi+1].fr[:1+(k-9)//2] if gi+1<len(groups) else []
            w_vm=[]
            for d in (1,SIG):
                b=gap+d
                if b in barset and d==(SIG if b>=SIG else 1): w_vm=bar_items.get(b,[])+bar_extra.get(b,[])
            if OPT['split']:
                if gap+SIG in barset: x=dsw('ds_sub_u32',vCA,vONE); x.meta['signal']=True; fixT[gap]=x
                if gap+7 in barset and gap+7>=SIG: assert gap not in fixT; fixT[gap]=dsr('ds_read_b32',vCV,vCA)
                if gap+1 in barset and gap+1>=SIG:
                    kb+=1; assert gap not in fixT
                    fixT[gap]=valu('v_cmp_lt_u32','vcc',4*(nb-kb),vCV); w_lg.append(vCV)
                    OUT.extend([f'L_sb{kb}:', f'ds_read_b32 {vCV}, {vCA}', 's_waitcnt lgkmcnt(0)', fixT[gap].text, 's_nop 0', f's_cbranch_vccnz L_sb{kb}', f's_branch L_sr{kb}'])
            if gap in barset:
                if OPT['split'] and gap>=SIG: fx.append([raw(f's_cbranch_vccnz L_sb{kb}','misc',['vcc'],check=True,glue=True), label(f'L_sr{kb}')])
                else: fx.append([barrier()])
            if w_lg or w_vm: fx.append([waitfor(lg=w_lg,vmtags=w_vm)])
            fixed[gap]=fx
    def stgap_at(gap):
        dn=gap>=groups[marks['down']].start
        iv=len([b for b in bars if b<=gap])
        if iv%OPT['stper' if dn else 'qstper']: return LATE
        return OPT['stgap' if dn else 'qstgap']
    ri=[L]
    def rd():
        it,f,lg=reads[ri[0]]; ri[0]+=1; e(setseq(f(it),lg))
    planned=None
    for gi,g in enumerate(groups):
        for k,m in enumerate(g.m):
            gap=g.start+k
            if gap-1 in extra:
                cur[0]=gap-0.7
                e(*extra[gap-1])
                if extra[gap-1][-1].kind=='mfma':
                    for _ in range(extra[gap-1][-1].passes-3): pull(gap-1,False)
            cur[0]=gap
            e(m)
            if gap in gapstamps: stamp(gapstamps[gap])
            if 'gst' in OPT and gap in range(*map(int,OPT['gst'].split(':'))): stamp(f'gap{gap}',True)
            if planned:
                x=take(planned,gap); planned=None
                if x.kind=='dma': issue[x.meta['tag']]=gap
                continue
            fx=fixed[gap]
            if fx: e(*fx.pop(0))
            elif not pull(gap,True) and OPT['snop']: e(raw('s_nop 0','misc'))
            if ri[0]<len(reads) and ri[0]<=gap+L: rd()
            used=False
            if fx: e(*fx.pop(0)); used=True
            if gap in fixT:
                e(fixT[gap]); used=True
                if fixT[gap].kind=='valu': continue
            lag=ri[0]<len(reads) and ri[0]<=gap+L
            if lag:
                if not used: rd()
                continue
            if gap+1 in fixed and not fixed[gap+1] and gap+1 not in fixT: planned=vm_ready(gap+1,OPT['dmagap'],stgap_at(gap+1))
            if used: continue
            if planned:
                if OPT['vmpat']==0 and ri[0]<len(reads) and reads[ri[0]][0].bar<=gap: rd()
                if OPT['vmpat']==2: pull(gap,False)
                continue
            vcc_lock[0]=min([b for b in bars if b>gap]+[LATE])-gap if OPT['split'] else LATE
            if not pull(gap,False): pull(gap,True)
        for ops in ev.get(gi,[]):
            for o in ops: push(o.meta.get('q','epi'),gap+4,[o])
    vcc_lock[0]=LATE
    sl=[(it.bar-SIG-issue[it.name],it.name) for it in items if it.name in issue]
    sl.sort(); print('min dma slack (gaps):',sl[:6])
    print('left after backbone:',{k:len(v) for k,v in fifo.items()})

OUT=[]
HOT=[]
def spin(name,load,expect,sleep=8):
    a=valu('v_cmp_gt_u32','vcc',expect,vPOLL); a.meta['glue']=True
    b=raw(f's_cbranch_vccnz L_spin_{name}','misc',['vcc']); b.meta['glue']=True
    c=label(f'L_back_{name}')
    cnt=vT[6]
    OUT.extend([f'L_spin_{name}:', f'v_mov_b32 {cnt}, 0x40000', f'L_spinl_{name}:', load.text, 's_waitcnt vmcnt(0)', f'v_cmp_gt_u32 vcc, {fmt(expect)}, {vPOLL}', 's_nop 1',
        f's_cbranch_vccz L_back_{name}', f'v_subrev_u32 {cnt}, 1, {cnt}', f'v_cmp_ne_u32 vcc, 0, {cnt}', f's_sleep {sleep}', f's_cbranch_vccnz L_spinl_{name}', f's_branch L_back_{name}'])
    a.wr.append(cnt.regs()[0]); a.wr.append('ok_'+name)
    return [a,b,c]

def addr_att(WB):
    t,u,key,hf,p,rp=vT[0],vT[1],vT[2],vT[3],vT[4],vT[5]
    e(valu('v_and_b32',key,31,vL), valu('v_lshrrev_b32',hf,5,vL), valu('v_lshlrev_b32',t,2,hf), valu('v_xor_b32',t,t,vL), valu('v_lshlrev_b32',vKM,4,t))
    extpos(u,key,t)
    e(valu('v_lshlrev_b32',vKE,3,u), valu('v_add_u32',vKE,1024,vKE))
    e(salu('s_lshr_b32',sT0,sW,1), salu('s_lshl_b32',sT0,sT0,5), salu('s_add_u32',sT0,sT0,sH), salu('s_add_u32',sT0,sT0,32), salu('s_mul_i32',sT0,sT0,SL),
      salu('s_and_b32',sT1,sW,1), salu('s_mul_i32',sT1,sT1,5120), salu('s_add_u32',sT0,sT0,sT1), valu('v_lshl_add_u32',vKV,vL,4,sT0))
def addr_z(): e(valu('v_and_b32',vZ,1,vL), valu('v_lshlrev_b32',vZ,7,vZ))
def qk_loads(WB):
    t,u,hf=vT[0],vT[1],vT[3]
    e(salu('s_mov_b32',sSO3,WS_R2), cost(bload(vR2,vR2,sWS,sSO3,flags='sc1'),40))
    e(valu('v_lshrrev_b32',hf,5,vL), valu('v_mul_u32_u24',u,1280,hf), valu('v_add_u32',u,u,vKE))
    e(salu('s_lshl_b32',sT0,sM8,2), salu('s_add_u32',sT0,sT0,sW), salu('s_mul_i32',sT0,sT0,2560), salu('s_mul_i32',sT1,sH,SL), salu('s_add_u32',sSO3,sT0,sT1))
    for x in range(2): e(bload(QM[x],vKM,sWS,sSO3,x*1280,flags='sc1'))
    e(cost(bload(QE[0],u,sWS,sSO3,0,flags='sc1'),40))
    e(salu('s_add_u32',sSO3,sT1,32*SL))
    for x in range(2): e(bload(KM[x],vKM,sWS,sSO3,x*1280,flags='sc1'), cost(bload(KE[x],vKE,sWS,sSO3,x*1280,flags='sc1'),40))
    e(valu('v_add_u32',vKM,WB,vKM), valu('v_add_u32',vKE,WB,vKE), valu('v_mov_b32',QE[1],0), valu('v_mov_b32',vIDX,0xdddd))
def zero_o():
    for x in range(2):
        for r in range(16): e(valu('v_mov_b32',OO[x][r],0))
def extra_zero(ngaps):
    with collect() as o: zero_o()
    push('ctr',ngaps-66,o,ngaps-66)
def addr_lds(WB):
    t,hf=vT[0],vT[3]
    e(valu('v_lshrrev_b32',hf,5,vL))
    c,r,k,x=vT[4],vT[5],vT[6],vT[1]
    e(valu('v_and_b32',c,3,vL), valu('v_bfe_u32',r,vL,2,2), valu('v_lshl_add_u32',r,hf,3,r))
    for n in range(4):
        uu,y=n>>1,n&1
        e(valu('v_add_u32',k,16*uu+4*y,r))
        extpos(x,k,t)
        e(valu('v_lshlrev_b32',x,3,x), valu('v_min_u32',t,1,c), valu('v_mul_u32_u24',t,LDS_OOB+64,t), valu('v_xor_b32',x,x,t), valu('v_add_u32',x,1024,x))
        e(valu('v_lshrrev_b32',t,1,c), valu('v_mul_u32_u24',t,36,t), valu('v_xor_b32',k,k,t), valu('v_lshlrev_b32',k,4,k), valu('v_and_b32',t,1,c), valu('v_lshl_add_u32',k,t,3,k))
        e(valu('v_and_b32',t,16,vL), valu('v_cmp_eq_u32','vcc',0,t), valu('v_cndmask_b32',k,x,k), valu('v_add_u32',vVA[n],WB,k))
vOP,vSH,vINC=V(55),V(16),V(17)
def addr_op():
    t,u,g=vT[2],vT[4],vT[5]
    e(salu('s_lshl_b32',sT0,sXC,2), valu('v_lshlrev_b32',vINC,sT0,vONE), salu('s_mov_b32',sPV,0))
    if OPT['warm']: e(salu('s_and_b32',sT0,sIDX,7), salu('s_lshl_b32',sT0,sT0,2), salu('s_add_u32',sT0,sT0,sW),
      salu('s_lshl_b32',sT1,sXC,2), salu('s_lshr_b32',sT2,sIDX,3), salu('s_add_u32',sT1,sT1,sT2),
      salu('s_lshr_b32',sT2,sT0,4), salu('s_lshl_b32',sT2,sT2,15), salu('s_and_b32',sT3,sT0,15), salu('s_lshl_b32',sT3,sT3,8), salu('s_add_u32',sT2,sT2,sT3),
      salu('s_lshl_b32',sT3,sT1,16), salu('s_add_u32',sT2,sT2,sT3), salu('s_add_u32',sT2,sT2,WS_O),
      valu('v_lshrrev_b32',g,1,vL), valu('v_lshl_add_u32',t,g,12,sT2), valu('v_and_b32',u,1,vL), valu('v_lshl_add_u32',t,u,7,t),
      salu('s_bfe_u32',sT2,sT0,0x10002), salu('s_lshl_b32',sT2,sT2,12), salu('s_and_b32',sT3,sT0,3), salu('s_lshl_b32',sT3,sT3,7), salu('s_add_u32',sT2,sT2,sT3),
      salu('s_lshl_b32',sT3,sT1,13), salu('s_add_u32',sT2,sT2,sT3), salu('s_add_u32',sT2,sT2,WS_OX),
      valu('v_and_b32',u,7,vL), valu('v_lshl_add_u32',vOP,u,9,sT2), valu('v_cmp_gt_u32','vcc',16,vL), valu('v_cndmask_b32',vOP,vOP,t), valu('v_cndmask_b32',g,u,g),
      valu('v_lshl_add_u32',g,g,2,2), valu('v_cmp_gt_u32','vcc',24,vL), valu('v_cndmask_b32',vSH,3,g))
def x_loads(): return [cost(bload(XR[2*q:2*q+2],vXO,sX,0,32*q),260) for q in range(4)]+[cost(bload(XR[8:10],vXOX,sX,0),200)]
def addr_fin():
    t,u,p,rp,a,b=vT[0],vT[1],vT[4],vT[5],vT[6],vT[3]
    lane_rp(rp,p,t)
    e(salu('s_and_b32',sT0,sW,1), salu('s_lshr_b32',sT1,sW,1), salu('s_mul_i32',sT2,sT0,20), salu('s_lshl_b32',sT3,sT1,3), salu('s_add_u32',sT2,sT2,sT3), valu('v_add_u32',a,sT2,rp),
      salu('s_mul_i32',sT2,sT0,288), salu('s_mul_i32',sT3,sT1,36), salu('s_add_u32',sT2,sT2,sT3), salu('s_add_u32',sT2,sT2,16),
      valu('v_lshrrev_b32',t,2,rp), valu('v_mul_u32_u24',t,144,t), valu('v_and_b32',b,3,rp), valu('v_add3_u32',b,b,t,sT2))
    e(salu('s_and_b32',sT0,sIDX,7), salu('s_lshl_b32',sT1,sT0,7), valu('v_lshl_add_u32',u,p,4,sT1),
      valu('v_mul_u32_u24',t,1152,a), valu('v_add_u32',vWO,t,u), valu('v_mul_u32_u24',t,1152,b), valu('v_add_u32',vWOE,t,u))
    e(salu('s_lshr_b32',sT2,sT0,1), salu('s_lshl_b32',sT2,sT2,5), salu('s_add_u32',sT2,sT2,1024), valu('v_and_b32',u,1,p), valu('v_lshl_add_u32',u,u,4,sT2), valu('v_lshrrev_b32',p,1,p),
      valu('v_mul_u32_u24',t,36,p), valu('v_add_u32',t,t,a), valu('v_mul_u32_u24',t,1152,t), valu('v_add_u32',vWX,t,u),
      valu('v_mul_u32_u24',t,p,p), valu('v_mul_u32_u24',t,t,p), valu('v_mul_u32_u24',t,72,t), valu('v_add_u32',t,t,b), valu('v_mul_u32_u24',t,1152,t), valu('v_add_u32',vWXE,t,u))
    e(salu('s_lshr_b32',sT3,sIDX,3), salu('s_lshl_b32',sT3,sT3,2), salu('s_add_u32',sT3,sT3,sW), salu('s_lshl_b32',sSO3,sXC,4), salu('s_add_u32',sT3,sT3,sSO3))
    tk,g=vT[4],vT[5]
    e(valu('v_and_b32',tk,15,vL), valu('v_lshrrev_b32',g,4,vL))
    e(salu('s_lshl_b32',sSO3,sT3,3), salu('s_add_u32',sSO3,sSO3,sT0), salu('s_lshl_b32',sSO3,sSO3,15), valu('v_lshl_add_u32',vPL,vL,4,sSO3))
    e(salu('s_xor_b32',sSC[0],sW,sT0), salu('s_lshl_b32',sSC[0],sSC[0],31))
    e(salu('s_lshl_b32',sSO3,sT3,2), salu('s_lshr_b32',sSC[1],sT0,1), salu('s_add_u32',sSO3,sSO3,sSC[1]), salu('s_lshl_b32',sSO3,sSO3,13), salu('s_or_b32',sSO3,sSO3,sSC[0]), valu('v_lshl_add_u32',vPLX,vL,3,sSO3))
    e(salu('s_lshl_b32',sSO3,sT3,4), valu('v_add_u32',a,sSO3,tk), valu('v_lshlrev_b32',vR2,2,a), valu('v_mul_u32_u24',a,1152,a), valu('v_lshl_add_u32',a,g,3,a),
      valu('v_add_u32',vXO,sT1,a), salu('s_or_b32',sT2,sT2,sSC[0]), valu('v_add_u32',vXOX,sT2,a))
    if not OPT['xat']: e(*x_loads())
    e(salu('s_and_b32',sSO3,sT3,1), salu('s_lshl_b32',sSO3,sSO3,4), valu('v_add_u32',a,sSO3,tk), salu('s_lshr_b32',sSC[1],sT3,1),
      salu('s_lshl_b32',sSO3,sSC[1],15), valu('v_lshl_add_u32',t,a,4,sSO3), valu('v_lshl_add_u32',vOL,g,9,t),
      salu('s_lshl_b32',sSO3,sSC[1],12), valu('v_lshl_add_u32',t,a,2,sSO3), valu('v_lshl_add_u32',vOLX,g,10,t))
    e(valu('v_and_b32',t,31,vL))
    for n in range(4): e(*base_add(sOB[n],sWS,WS_O+8192*n+4096))
    e(*base_add(S(88,2),sWS,WS_O), *base_add(S(90,2),sWS,WS_O+32768))
    e(salu('s_lshr_b32',sSO3,sT3,1), salu('s_lshl_b32',sSO3,sSO3,11), salu('s_add_u32',sSO3,sSO3,WS_F2), valu('v_lshl_add_u32',vPG,tk,7,sSO3))
    e(salu('s_lshl_b32',sT0,sM8,2), salu('s_add_u32',sT0,sT0,sW), salu('s_lshl_b32',sT1,sT0,16), salu('s_lshl_b32',sT2,sH,10), salu('s_add_u32',sT1,sT1,sT2),
      valu('v_lshl_add_u32',vOS,vL,4,sT1),
      salu('s_lshl_b32',sT1,sT0,13), salu('s_lshl_b32',sT2,sH,7), salu('s_add_u32',sT1,sT1,sT2), salu('s_add_u32',sT1,sT1,WS_OX),
      valu('v_lshl_add_u32',t,t,2,sT1), valu('v_lshrrev_b32',u,5,vL), valu('v_lshl_add_u32',vOSX,u,12,t))

def max_ops(srcs,m,first=True):
    o=[]
    regs=[s[r] for s in srcs for r in range(16)]
    if first: o.append(valu('v_max3_f32',m,regs[0],regs[1],regs[2])); rest=regs[3:]
    else: rest=regs
    while len(rest)>=2: o.append(valu('v_max3_f32',m,m,rest[0],rest[1])); rest=rest[2:]
    if rest: o.append(valu('v_max_f32',m,m,rest[0]))
    return o
def set_shift(mx,margin):
    m,t=mx
    return [swap('v_permlane32_swap_b32',m,t), valu('v_max_f32',m,m,t), valu('v_sub_f32',m,f32(-margin) if margin else 0,m),
            valu('v_cvt_pk_bf16_f32',t,m,m), valu('v_lshlrev_b32',t,16,t), valu('v_sub_f32',t,m,t), valu('v_cvt_pk_bf16_f32',QE[1],m,t)]
def Bx(tau,buf=None): return m2b(buf or SBB[tau%3],KE[tau%3],QE,0)
def Mx(tau,x,buf=None): b=(buf or SBB[tau%3])[16*x:16*x+16]; return m32(b,KM[tau%3],QM[x],b)
def PV(tau,x,h,buf=None): return smf(OO[x],VV[tau&1][4*h:4*h+4],(buf or SBB[tau%3])[16*x+8*h:16*x+8*h+8],vIDX)
def vread(kv,WB,tau,n):
    it=kv[tau>>3]; off=it.addr-WB+10240+(tau&7)*1280
    return dsr('ds_read_b64_tr_b16',VV[tau&1][2*n:2*n+2],vVA[n],off,src=(it.name,it.blks()))
extra={}
def att_setup(ngaps,kv,WB):
    g=ngaps-OPT['at0']
    extra[g]=[waitfor(vm=QM+KM[:2]+KE[:2]+[QE[0]]), Bx(0)]; extra[g+2]=[Bx(1)]
    extra[g+8]=[Mx(0,0)]; extra[g+10]=[Mx(1,0)]; extra[g+12]=[Mx(0,1)]; extra[g+14]=[Mx(1,1)]
    mx=[vT[0],vT[1]]
    for x in range(2): push('ctr',g+17+4*x,max_ops([SBB[0][16*x:16*x+16],SBB[1][16*x:16*x+16]],mx[x]),g+16)
    push('ctr',g+21,set_shift(mx,MARGIN),g+16)
    extra[ngaps-18]=[Bx(0)]; extra[ngaps-9]=[Mx(0,0)]+[vread(kv,WB,0,n) for n in range(2)]; extra[ngaps-5]=[Mx(0,1)]+[vread(kv,WB,0,n) for n in range(2,4)]

def attention(g0,kv,WB,wo_items):
    base=g0+100
    pipe[0]=0; pipe[1]=44
    def kread(tau):
        it=kv[tau>>3]; off=it.addr-WB+(tau&7)*1280; src=(it.name,it.blks())
        return [dsr('ds_read_b128',KM[tau%3],vKM,off,src=src), dsr('ds_read_b64',KE[tau%3],vKE,off,src=src)]
    def flush(n,names=('ctr','epi','low','dma','ld')):
        k=0
        while k<n:
            for nm in names:
                x=head(nm,cur[0])
                if x is not None: take(nm,cur[0]); break
            else: return
            k+=1
    cur[0]=g0
    assert not fifo['ctr'] and not fifo['low'] and not fifo['ld']
    stamp('att')
    barx={7:[it.name for it in wo_items]}; f2done=[False]; wcut=[int(x) for x in OPT['wcut'].split(',')]
    for tau in range(64):
        n=2*tau; nx=tau<63; S=SBB[tau%3]
        if 'ast' in OPT and n in range(*map(int,OPT['ast'].split(':'))): stamp(f'slot{n}',True)
        ms=[Bx(tau+1) if nx else None, PV(tau-1,1,1) if tau else None, PV(tau,0,0), Mx(tau+1,0) if nx else None, PV(tau,0,1), Mx(tau+1,1) if nx else None, PV(tau,1,0)]
        km,ke=kread(tau+2) if tau+2<64 else (None,None)
        v=[vread(kv,WB,tau+1,z) if nx else None for z in range(4)]
        rds=[None,ke,v[0],v[1],km,v[2],v[3]]
        sg=(tau+3)//8 if (tau+3)%8==0 and tau+3<64 else None
        for k in range(7):
            gap=base+8*tau+(k+1 if k else 0); cur[0]=gap
            if tau==0 and k==1: flush(1000,('epi',)); e(waitfor(lg=[VV[0]]))
            if ms[k] is not None: e(ms[k])
            nsc=(0,2,2,1,2,1,2)[k]
            fx=k in (2,6) or (k==4 and sg is not None)
            vmn=vm_ready(gap,1,OPT['astgap'],('st','dma','ld','low')) if (not fx and k>0 and ms[k] is not None) else None
            if vmn: take(vmn,gap)
            else:
                if k==2: e(waitfor(lg=[VV[tau&1][4:8],KM[(tau+1)%3]])); nsc-=1
                if k==2 and tau==63 and OPT['warm']: e(*poll())
                if k==6: e(waitfor(lg=[VV[(tau+1)&1][0:4],KE[(tau+2)%3]])); nsc-=1
                if k==4 and sg is not None:
                    e(waitfor(vmtags=[kv[sg].name]+barx.get(sg,[])), barrier()); nsc-=2
                    if sg+1<8 and not kv[sg+1].pushed: push('dma',gap,kv[sg+1].mk(kv[sg+1]))
                    for it in [x for x in wo_items if not x.pushed][wcut[sg-1]:wcut[sg]]: push('dma',gap,it.mk(it))
                while nsc>0 and pull(gap,True): nsc-=1
            if rds[k] is not None: e(rds[k])
            x=head('ld',gap)
            if x is not None and x.kind=='valu': take('ld',gap)
            for r in (range(8) if k==0 else range(4*k+4,4*k+8)): e(valu('v_exp_f32',S[r],S[r]))
        if n==2 and OPT['xat']: push('ld',gap,x_loads())
        if not fifo['st'] and not f2done[0]:
            f2done[0]=True; print('partial stores end at slot',n)
            push('st',gap+4*OPT['f2lag'],[waitfor(vmtags=['pst']), bstore(vONE,vF1,sWS,0,flags='sc1')])
        if n==OPT['f2poll']:
            ld=bload(vPOLL,vPG,sWS,0,flags='sc1')
            push('st',gap,[ld])
            t0=base+4*OPT['f2chk']
            w_=waitfor(vm=[vPOLL]); w_.meta['lag']=(ld,4*(OPT['f2chk']-OPT['f2poll']))
            push('ld',t0,[w_]+spin('f2',ld,1))
            ops=[]
            for k in range(32):
                if k%8==0: ops+=base_add(sBL,sWS,WS_P+k*1024+4096)
                ops.append(gload(PART[k],vPL,sBL,(k%8)*1024-4096,flags='sc1'))
                if k%2==1:
                    z=k>>1
                    if z%8==0: ops.append(salu('s_mov_b32',sSO3,WS_PX+z*512))
                    ops.append(bload(PARTX[z],vPLX,sWS,sSO3,(z%8)*512,flags='sc1'))
            nl=0; prev=None
            for o in ops:
                if o.kind=='vld':
                    if prev is not None: o.meta['lag']=(prev,OPT['ldmin'])
                    prev=o
                push('ld',t0+int(nl*OPT['ldgap']),[o])
                if o.kind=='vld': nl+=1
    cur[0]=base+600
    e(PV(63,1,1))
    print('att vmem slots:',' '.join(f"{'kv' if i.meta.get('tag') and i.meta['tag'][0]=='kv' else i.kind[1]}{(i.meta['at']-base)//4}" for i in P if i.kind in VM and i.meta['at']>=base))
    print('left after attention:',{k:len(v) for k,v in fifo.items()})
    assert not any(fifo.values()), 'work left after attention'

def fallback(kv,WB):
    global P
    save=P; P=[]
    pb=kv[5].addr
    a=[V(192+n) for n in range(6)]; vo=V(198); mx=[V(199),V(200)]; S=SBB[2]
    e(label('L_fb'), raw('s_waitcnt vmcnt(0) lgkmcnt(0)','misc'), raw('s_nop 15','misc'))
    for d,s in zip(a,[vKM,vKE]+vVA): e(valu('v_add_u32',d,sW5K,s))
    e(valu('v_lshlrev_b32',vo,4,vL), valu('v_mov_b32',QE[1],0), valu('v_mov_b32',mx[0],0xff800000), valu('v_mov_b32',mx[1],0xff800000))
    off=pb-WB
    for ps in range(2):
        e(salu('s_add_u32',sT0,sH,32), salu('s_mul_i32',sT0,sT0,SL), salu('s_add_u32',sT1,sT0,32*SL), salu('s_mov_b32',sT2,64), label(f'L_fbl{ps}'))
        e(salu('s_add_u32','m0',sW5K,pb), dma(vo,sWS,sT0,0,flags='sc1'), dma(vo,sWS,sT0,1024,flags='sc1'))
        if ps: e(salu('s_add_u32','m0',sW5K,pb+2560), dma(vo,sWS,sT1,0,flags='sc1'), dma(vo,sWS,sT1,1024,flags='sc1'))
        e(waitfor(vmall=True), dsr('ds_read_b128',KM[0],a[0],off), dsr('ds_read_b64',KE[0],a[1],off))
        if ps:
            for n in range(4): e(dsr('ds_read_b64_tr_b16',VV[0][2*n:2*n+2],a[2+n],off+2560))
        e(waitfor(lgall=True))
        e(Bx(0,S), Mx(0,0,S), Mx(0,1,S))
        for x in range(2):
            if ps==0: e(*max_ops([S[16*x:16*x+16]],mx[x],first=False))
            else:
                for r in range(16): e(valu('v_exp_f32',S[16*x+r],S[16*x+r]))
                for h in range(2): e(PV(0,x,h,S))
        e(raw('s_nop 15','misc'), salu('s_add_u32',sT0,sT0,1280), salu('s_add_u32',sT1,sT1,1280), salu('s_sub_u32',sT2,sT2,1), salu('s_cmp_lg_u32',sT2,0), raw(f's_cbranch_scc1 L_fbl{ps}','misc'))
        if ps==0:
            e(*set_shift(mx,0.0)); zero_o()
    e(*norm_store(0,V(116,2)), *norm_store(1,V(116,2)), waitfor(vmall=True))
    e(raw('s_nop 3','misc'), raw('s_branch L_fb_ret','misc'))
    OUT.extend(i.text for i in finalize(P,verbose=0,name='fb'))
    P=save

TT=[V(224,16),V(240,16)]
FLAG_LDS=[0]
def norm_store(x,t):
    O,T=OO[x],TT[x]
    o=[valu('v_rcp_f32',t[0],O[10]), valu('v_mov_b32',t[1],t[0]), swap('v_permlane32_swap_b32',t[0],t[1])]
    o+=[valu('v_mul_f32',T[r],t[0],O[r]) for r in range(10)]
    o+=[valu('v_cvt_pk_bf16_f32',T[d],T[2*d],T[2*d+1]) for d in range(4)]
    o+=[gstore(T[0:4],vOS,S(88+2*x,2),flags='sc1',tag='ost'), valu('v_cvt_pk_bf16_f32',T[8],T[8],T[9])]
    if x: o+=[swap('v_permlane32_swap_b32',TT[0][8],TT[1][8]), gstore(TT[0][8],vOSX,sWS[0:2],flags='sc1',tag='ost')]
    return o
def poll(r=sPV): return [raw(f's_atomic_umax {r}, {sWS[0:2]}, {sF3} glc')]
def final(g0,wo_main,wo_x):
    cur[0]=g0
    SA=V(56,20); DN=V(76,20); XF=V(96,20); tmp=V(116,12)
    e(*norm_store(0,tmp), *norm_store(1,tmp))
    stamp('o stored')
    fill=[]
    for x in range(2):
        s=tmp[2+x]
        fill.append(valu('v_add_f32_e64',s,f'|{OO[x][0]}|',f'|{OO[x][1]}|'))
        for r in range(2,10): fill.append(valu('v_add_f32_e64',s,s,f'|{OO[x][r]}|'))
    fill+=[valu('v_min_f32',tmp[4],tmp[2],tmp[3]), valu('v_add_f32',tmp[2],tmp[2],tmp[3]), valu('v_add_f32',tmp[3],OO[0][10],OO[1][10]), valu('v_add_f32',tmp[2],tmp[2],tmp[3])]
    chk=[valu('v_cmp_nle_f32','vcc',f32(2.0**-100),tmp[4]), raw('s_cbranch_vccnz L_fb','misc',['vcc']),
      valu('v_cmp_nge_f32','vcc',f32(2.0**126) if not OPT['forcefb'] else f32(-1.0),tmp[2]), raw('s_cbranch_vccnz L_fb','misc',['vcc']), label('L_fb_ret')]
    pool_=[V(128+4*n,4) for n in range(32)]+[A(212+4*n,4) for n in range(7)]+[A(72+4*n,4) for n in range(34)]
    frs=[]; rds=[]
    order=[0,1,4,5,8,9,12,13,16,2,3,6,7,10,11,14,15,17]
    for s in order:
        for q in range(5):
            f=pool_[len(frs)%len(pool_)]; frs.append(f)
            for u in range(2): rds.append(tr_read(f,u,wo_main[s],q) if q<4 else tr_read(f,u,wo_x[s>>2],s&3))
    red=[]
    for j in range(16):
        for q in range(5):
            d=DN[4*q:4*q+4]
            red.append(m4(d,SELA,PART[16*(q>>1)+j][2*(q&1):2*(q&1)+2] if q<4 else PARTX[j],0 if j==0 else d))
    red+=[m4(XF[4*q:4*q+4],SELA,XR[2*q:2*q+2],0) for q in range(5)]
    e(waitfor(vm=PART+PARTX+[XR,vR2]))
    ri=0
    test=lambda: [waitfor(lgall=True,lgforce=True), salu('s_cmp_eq_u32',sPV,0x44444444)]
    def warm(r=sPV,tracked=False):
        if not OPT['warm']: return []
        t=vT[0]; ld=bload(vPF,t,sWS,0,flags='sc1',tag='pf')
        return [valu('v_lshrrev_b32',t,vSH,r), valu('v_not_b32',t,t), valu('v_lshl_add_u32',t,t,31,vOP), ld if tracked else raw(ld.text)]
    g,c2,ir=tmp[8],tmp[9],tmp[10]
    late_=[valu('v_mul_f32',c2,f32(-1.4426950408889634),vR2), valu('v_rcp_f32',ir,vR2),
           valu('v_bfe_u32',g,vL,4,1), valu('v_mul_u32_u24',g,24,g), valu('v_add_u32',vXO,vXO,g)]
    for k,mm in enumerate(red):
        e(mm)
        if k in (OPT['pollat'],OPT['pollat2'],OPT['pollat3']): e(*poll())
        if fill:
            e(fill.pop(0))
            if not fill: e(*chk, waitfor(lgall=True,lgforce=OPT['warm']), *warm(tracked=True), *base_add(sBL,sWS,WS_OX))
            continue
        if k==OPT['hat']: e(waitfor(vmtags=['ost']), batomic(vINC,vF3,sWS,0)); stamp('flag'); continue
        if k>=80: e(late_.pop(0)); continue
        if k%4==3: e(waitfor(lg=frs[:max(0,ri//2-4)]))
        e(rds[ri]); ri+=1
    assert ri<=2*39
    stamp('ready')
    EX=[V(30+n) for n in range(13)]+[V(45+n) for n in range(5)]+[V(14),V(15)]
    fill=[]
    for f in (lambda r:valu('v_mul_f32',EX[r],c2,DN[r]), lambda r:valu('v_exp_f32',EX[r],EX[r]), lambda r:valu('v_fma_f32',EX[r],EX[r],ir,ir),
              lambda r:valu('v_rcp_f32',EX[r],EX[r]), lambda r:valu('v_mul_f32',DN[r],EX[r],DN[r])):
        fill+=[(0,[f(r)]) for r in range(20)]
    OF=[A(4*s,4) for s in range(18)]
    def gate(name,mask):
        one=bin(mask).count('1')==1
        t=lambda: [salu('s_bitcmp1_b32',sPV,mask.bit_length()-1)] if one else [salu('s_and_b32',sT1,sPV,mask), salu('s_cmp_eq_u32',sT1,mask)]
        y=[label(f'L_w{name}')]+(poll() if OPT['pfirst'] else [])+[label(f'L_wl{name}'), raw('s_waitcnt lgkmcnt(0)')]+t()+[raw(f's_cbranch_scc1 L_g{name}')]+poll()
        y+=[salu('s_addk_i32',sT0,-1), salu('s_cmp_gt_i32',sT0,0), raw(f's_cbranch_scc1 L_wl{name}'), raw(f's_branch L_g{name}')]
        if OPT['inl']: return t()+[raw(f's_cbranch_scc1 L_g{name}')]+y[:-1]+[label(f'L_g{name}')]
        HOT.extend(finalize(y,verbose=0))
        return t()+[raw(f's_cbranch_scc0 L_w{name}',glue=True), label(f'L_g{name}')]
    ge=gate('e',0x04040404)
    ol=[]
    for n,s in enumerate(order):
        if s<16: ol.append((gate(s,4<<(2*s)) if n>8 and s%2==0 else [], gload(OF[n],vOL,sOB[s>>2],(s&3)*2048-4096,flags='sc1')))
        else: ol+=[([],gload(OF[n][r],vOLX,sBL,(s-16)*512+r*128,flags='sc1')) for r in range(4)]
    e(salu('s_mov_b32',sT0,0x80000), *ge)
    stamp('ok')
    lg_=[int(x) for x in str(OPT['lgrp']).split(',')]; assert sum(lg_)==12
    for _ in range(lg_.pop(0)): e(ol.pop(0)[1])
    if OPT['rp']&1: e(*poll())
    while ri<OPT['wopre']:
        if ri%4==0: e(waitfor(lg=frs[:max(0,ri//2-4)]))
        e(rds[ri]); ri+=1
    nf=len(fill)
    while len(fill)>OPT['fillmm']:
        e(*fill.pop(0)[1])
        if (nf-len(fill)) in (36,64) and lg_:
            for _ in range(lg_.pop(0)): e(ol.pop(0)[1])
            if OPT['rp']&(4>>len(lg_)): e(*poll())
    assert not lg_
    stamp('seen')
    def epi(q):
        o=[valu('v_fmac_f32',XF[r],SA[r],DN[r],rmw=True) for r in range(4*q,4*q+4)]
        o+=[valu('v_cvt_pk_bf16_f32',tmp[2*q+d],XF[4*q+2*d],XF[4*q+2*d+1]) for d in range(2)]
        return o
    def put(b): return [swap('v_permlane16_swap_b32',tmp[b],tmp[b+2]), swap('v_permlane16_swap_b32',tmp[b+1],tmp[b+3]), bstore(tmp[b:b+4],vXO,sOUT,0,16*b,flags=OPT['ofl'])]
    k=0; nt=OPT['ntail']
    for s in range(18-nt):
        assert ri>=10*s+10
        e(waitfor(vm=[OF[s]],lg=frs[5*s:max(5*s+5,ri//2-3)]))
        for q in range(5):
            e(m16(SA[4*q:4*q+4],frs[k],OF[s],0 if s==0 else SA[4*q:4*q+4])); k+=1
            if q==0 and ol and s>=OPT['ldel'] and ol[0][0]:
                e(*ol[0][0])
                if OPT.get('mst'): stamp(f'g{s}')
                continue
            if q==0 and s in (9,12) and OPT.get('mst'): stamp(f's{s}')
            if q==1 and ol and s>=OPT['ldel']: e(ol.pop(0)[1]); continue
            if q==3 and str(s) in str(OPT['mpoll']): e(*poll())
            n=0
            while n<(1 if ri>=min(180,OPT['rlead']+int(k*OPT['rrate']/100)) else 2) and ri<len(rds) and ri//2-len(pool_)<k-1: e(rds[ri]); ri+=1; n+=1
            while n<2 and fill: e(*fill.pop(0)[1]); n+=1
    assert not fill and not ol and ri==len(rds),(ri,len(fill))
    ep=[]
    for z,q in enumerate((4,0,1,2,3)):
        for s in range(18-nt,18):
            e(waitfor(vm=[OF[s]],lg=[frs[5*s+q]]), m16(SA[4*q:4*q+4],frs[5*s+q],OF[s],SA[4*q:4*q+4])); k+=1
            n=0
            while ep and n<2 and ep[0][0]<=k:
                o=ep.pop(0)[1]; e(o); n+=1 if o.kind!='vst' else 2
        o=epi(q)+([bstore(tmp[8:10],vXOX,sOUT,0,flags=OPT['ofl'])] if q==4 else put(2*q-2) if q&1 else [])
        ep+=[(k+3,x) for x in o]
    stamp('mm done')
    for _,o in ep: e(o)

def main():
    build_ffn()
    ngaps,bars,free=plan()
    L=OPT['look']
    best=None
    for a0 in range(0,NB-14):
        fr=sorted((max(free[b] for b in range(a0+5*k,a0+5*k+5)),k) for k in range(3))
        key=(fr[0][0],fr[1][0])
        if best is None or key<best[0]: best=(key,a0,[k for _,k in fr])
    _,a0,order=best; WB=a0*4096
    print('attention window',best,'ngaps',ngaps,{k:groups[v].start for k,v in marks.items()})
    kv=[kv_item(s) for s in range(8)]
    for s,it in enumerate(kv): it.addr=(a0+5*order[s%3])*4096
    rest=sorted([b for b in range(NB) if not a0<=b<a0+15],key=lambda b:free[b])
    print('free',[free[b] for b in range(NB)])
    wo_main=[blk_item(('wo',s),vWO if s<16 else vWOE,sWO,36*s*1152 if s<16 else 72*(s-16)*1152) for s in range(18)]
    wo_x=[blk_item(('wx',n),vWX if n<4 else vWXE,sWO,144*n*1152 if n<4 else 0,buf=(n==4),c=320) for n in range(5)]
    for it,b in zip(wo_main+wo_x,rest): it.addr=b*4096
    FLAG_LDS[0]=rest[23]*4096

    def pst(name):
        if 'pst' in OPT: stamp(name,True)
    prologue(); pst('karg')
    pre0=[it for it in items if it.early==-3000]; pre1=[it for it in items if it.early==-2000]
    dq=[xdma(tt,l) for tt in range(2) for l in range(9)]+[it.mk(it) for it in pre0+pre1]
    for _ in range(OPT['x0n']): e(*dq.pop(0))
    pst('x0 issued')
    xr=[vM[0],vR[1]]; t,u=vT[2],vT[3]
    DT=[V(140+8*n,8) for n in range(3)]; CM=V(164,4); SUM=V(172,4); ONE4=V(176,4)
    prologue2()
    e(valu('v_and_b32',t,15,vL), valu('v_lshrrev_b32',u,1,t), valu('v_lshlrev_b32',t,7,t), valu('v_add_u32',t,sW18K,t),
      valu('v_lshrrev_b32',xr[0],4,vL), valu('v_xor_b32',xr[0],xr[0],u), valu('v_xor_b32',xr[1],4,xr[0]),
      valu('v_lshl_add_u32',xr[0],xr[0],4,t), valu('v_lshl_add_u32',xr[1],xr[1],4,t))
    for d in range(4): e(valu('v_mov_b32',ONE4[d],sONES))
    with collect() as ao:
        e(*sel_ops(t,u))
        addr_early(); addr_pf(); addr_qk()
        e(valu('v_mov_b32',vONE,1))
        if OPT['split']:
            e(valu('v_min_u32',vCA,1,vL), valu('v_mul_u32_u24',vCA,LDS_OOB-39*4096,vCA), valu('v_add_u32',vCA,39*4096,vCA), valu('v_mov_b32',t,4*len([b for b in bars if b>=SIG])), dsw('ds_write_b32',vCA,t))
    for _ in range(OPT['apre']): e(ao.pop(0))
    pst('pre')
    for _ in range(OPT['x1n']): e(*dq.pop(0))
    nx=len([o for o in dq if o[-1].meta['tag'][0]=='x'])
    if OPT['pf'] and OPT['pfpos']>=0: dq.insert(nx+OPT['pfpos'],pf_gu(0))
    e(raw('s_waitcnt lgkmcnt(0)','misc'))
    pst('addr')
    R0=[XC0[4*s_:4*s_+4] for s_ in range(18)]; X1=[XC1[4*s_:4*s_+4] for s_ in range(18)]
    def xread(tt,dst,l):
        return [waitfor(vmtags=[('x',tt,l)])]+[dsr('ds_read_b128',dst[s],xr[s&1],l*2048,src=(('x',tt,l),list(range(18*tt,18*tt+18))),private=True) for s in (2*l,2*l+1)]
    cq=[]; nm=[0]; nblk=[0]; pre_=[]
    def mm(m,extra=()):
        e(m); nm[0]+=1
        if pre_: e(pre_.pop(0))
        if extra: e(*extra); return
        k=0
        while cq and k<2 and cq[0][0]<=nm[0]-2: e(cq.pop(0)[1]); k+=1
        while ao and k<2: e(ao.pop(0)); k+=1
    def stats(tt,fr,l,nvm,lim=99):
        ms=[]
        for s_ in (2*l,2*l+1): ms+=[m16(SUM,ONE4,fr[s_],0 if s_==0 else SUM), m16(GR[tt],fr[s_],fr[s_],0 if s_==0 else GR[tt])]
        for h in range(2):
            o=[]
            if dq and h<nvm and nblk[0]<min(lim,OPT['nblk']):
                o=dq.pop(0)
                if o[-1].meta['tag'][0] not in 'xp': nblk[0]+=1
            mm(ms[2*h],[x for x in o if x.kind=='salu']); mm(ms[2*h+1],[x for x in o if x.kind!='salu'])
    nc=[0]
    def centre(src,dst,after=(),ex=((),())):
        d=DT[nc[0]%3]; nc[0]+=1
        while any(set(c.rd)&set(d.regs()) for _,c in cq): e(cq.pop(0)[1])
        for h in range(2):
            mm(m4(d[4*h:4*h+4],SELA,src[2*h:2*h+2],CM),ex[h])
            for z in range(2): cq.append((nm[0],valu('v_cvt_pk_bf16_f32',dst[2*h+z],d[4*h+2*z],d[4*h+2*z+1])))
        for x in after: cq.append((nm[0],x))
    def mean(tt):
        dst=vM[1] if tt else t
        e(valu('v_mul_f32',MEAN[tt],f32(1/576),SUM[0]), valu('v_cvt_pk_bf16_f32',dst,MEAN[tt],MEAN[tt]), valu('v_lshlrev_b32',dst,16,dst))
        for d in range(4): e(valu('v_xor_b32',CM[d],0x80000000,dst))
    for l in range(10):
        if l<9: e(*xread(0,R0,l))
        if l==0: e(*dq.pop(0))
        for _ in range(OPT['afill'] if l<9 else 999):
            if ao: e(ao.pop(0))
        if l>0:
            e(waitfor(lg=R0[2*l-2:2*l])); stats(0,R0,l-1,int(str(OPT.get('w1','x111111111'))[l]),len(pre0))
        if str(l) in str(OPT.get('tch','x147')): e(*touch())
        pst(f'x0 rd {l}')
    e(barrier())
    stamp('x0 read')
    e(raw('s_branch L_main','misc'), I('.p2align 12','comment'), label('L_main'))
    e(valu('v_add_u32',xr[0],73728,xr[0]), valu('v_add_u32',xr[1],73728,xr[1]))
    e(*xread(1,X1,0)); mean(0); pst('stat0')
    for l in range(9):
        for s_ in (2*l,2*l+1): centre(R0[s_],X0[s_],to_acc(s_) if s_>=NV0 else ())
        if l<8: e(*xread(1,X1,l+1))
        e(waitfor(lg=X1[2*l:2*l+2])); stats(1,X1,l,int(str(OPT.get('w2','x111122222'))[l+1]))
        pst(f'x1 rd {l}')
    while cq: e(cq.pop(0)[1])
    mean(1)
    reads=[f(it) for g in groups[:4] for it,f in g.rd][:L]; nb_=(L+1)//2+1
    n0=OPT['n0']
    for s_ in range(n0):
        ex=((),())
        if s_==n0-nb_: ex=((waitfor(vmtags=[it.name for it in items if it.bar==-L]), barrier()),()); stamp('x1 read'); pst('bar1')
        if s_>n0-nb_: pre_[:]=[reads.pop(0) for z in range(2) if reads]
        centre(X1[s_],X1[s_],ex=ex)
    assert not reads
    while cq: e(cq.pop(0)[1])
    e(waitfor(lg=groups[0].fr)); pst('go')
    for s_ in range(n0,18): push('ctr',0,centre_ops(X1[s_],1))
    for s_ in range(NV0): push('ctr',0,to_acc(s_))
    for o in dq: push('dma',-1,o)
    mx_=-1
    for it in items:
        mx_=max(mx_,it.early)
        if it.early>-2000: push('dma',it.early,it.mk(it),mx_)
    st=lambda k:groups[marks[k]].start
    def low(gap,f,*a):
        with collect() as o: f(*a)
        push('low',gap,o,gap)
    low(st('c0')+200,var_ops,0); low(st('c0')+200,var_ops,1)
    TCH=[(int(g_),touch()) for g_ in str(OPT['tat']).split(',')]
    low(st('c1'),addr_mid); low(st('c1'),addr_mid2); low(st('qkv'),addr_pfd)
    low(st('c2')+200,addr_att,WB); low(st('c2')+200,addr_lds,WB)
    pt=[int(x) for x in OPT['pft'].split(',')]
    for k,(g_,o) in enumerate(zip(pt,[pf_gu(1),pf_q(),pf_gu(2),pf_gu(3),pf_gu(4),pf_d(0),pf_d(1),pf_d(2)])):
        if o and (k==7 or pt[k+1]!=g_): o[-1].meta['cost']+=OPT['pfx']
        push('ld',g_,o,g_)
    low(st('c3'),pf_o)
    b1=[b for b in bars if b>st('c3')+60][0]
    bar_extra[b1]=['qkvst']
    ar=[salu('s_and_b32',sJH,S(2),1), salu('s_lshl_b32',sJH,sJH,7), salu('s_mov_b32',sJ128,1), salu('s_cmp_lg_u32',sW,0), raw('s_cbranch_scc1 L_arr','misc'),
        raw(f's_atomic_add {sJ128}, {sDBG[0:2]}, {sJH}','misc',sJ128.regs()+sJH.regs()), label('L_arr')]
    for x in ar[3:6]: x.meta['glue']=True
    for g_,o in sorted(TCH+[(b1,ar)],key=lambda z:z[0]): push('arr',g_,o,g_)
    ARR.append(ar[5])
    if OPT['stop']!='down':
        d0=st('down')
        att_setup(ngaps,kv,WB); bar_extra[bars[-1]]=[kv[0].name]
        low(b1,addr_z); low(b1,addr_fin); low(d0+400,addr_op); extra_zero(ngaps)
        ld=bload(vPOLL,vZ,sDBG,0,flags='sc1')
        push('ld',d0+OPT['f1poll'],[ld],d0+OPT['f1poll'])
        with collect() as o: qk_loads(WB)
        w_=waitfor(vm=[vPOLL]); w_.meta['lag']=(ld,100)
        push('ld',d0+OPT['f1poll'],[w_]+spin('f1',ld,128,40)+o,d0+OPT['f1poll'])
        for it in kv[:3]+(wo_main+wo_x)[:OPT['wob']]:
            early=max(free[b] for b in it.blks())
            assert early>d0+300
            if early<LATE: push('dma',early,it.mk(it),ngaps-1); it.pushed=True
    emit_backbone(bars,{groups[v].start:k for k,v in marks.items() if k in ('c0','qkv','down')})
    qs=[i.meta['at'] for i in P if i.meta.get('tag')=='qkvst']; assert len(qs)==12 and max(qs)<b1-SIG,(qs,b1)
    print('arrival at',ARR[0].meta['at'],'poll at',ld.meta['at'])
    stamp('down end')
    if OPT['stop']=='down':
        for nm in ('epi','st','low','dma'):
            for af,o in fifo[nm]: e(o)
    else:
        attention(ngaps,kv,WB,wo_main+wo_x)
        stamp('att end')
        final(ngaps+1000,wo_main,wo_x)
        fallback(kv,WB)
    finish()

def sizes(lines):
    import subprocess, re
    uniq=sorted(set(lines))
    src='.amdgcn_target "amdgcn-amd-amdhsa--gfx950"\n.text\nLX:\n'+'\n'.join(re.sub(r'L_codeend-L_pc-4','0x12345',re.sub(r'(s_branch|s_cbranch\w+) \w+',r'\1 0',u)) for u in uniq)+'\n'
    open('_sz.s','w').write(src)
    r=subprocess.run(['llvm-mc','-triple=amdgcn-amd-amdhsa','-mcpu=gfx950','-show-encoding','_sz.s'],capture_output=True,text=True)
    assert r.returncode==0,r.stderr[:2000]
    enc=re.findall(r'encoding: \[([^\]]*)\]',r.stdout)
    assert len(enc)==len(uniq),(len(enc),len(uniq))
    return {u:len(x.split(',')) for u,x in zip(uniq,enc)}
def page_stubs(out):
    sz=sizes([i.text for i in out if i.kind not in ('label','comment')])
    k0=[k for k,i in enumerate(out) if i.text=='L_main:'][0]
    print('entry part bytes',sum(sz.get(i.text,0) for i in out[:k0]))
    res=out[:k0+1]; off=0; pg=0; prev=None; forced=False
    npg=4*ntouch[0]
    for k in range(k0+1,len(out)):
        i=out[k]
        if pg<npg and off>=4096*pg and not (prev is not None and prev.meta.get('glue')):
            good=prev is not None and prev.kind=='mfma' and i.kind in ('dsr','valu','trans')
            if good or off-4096*pg>=40 or pg==0 or forced:
                res+=[label(f'L_pg{pg}'), raw(f's_cbranch_execz L_tr{pg//4}')]; off+=4; pg+=1
        res.append(i); off+=sz.get(i.text,0)
        if i.text=='.p2align 12': off=-(-off//4096)*4096; forced=True; continue
        if i.kind not in ('label','comment'): prev=i
    print('main part bytes',off,'pages touched',pg,'of',-(-off//4096))
    while pg<npg: OUT.extend([f'L_pg{pg}:',f's_branch L_tr{pg//4}']); pg+=1
    return res
def finish():
    cur[0]=10**7
    if OPT['stamps']:
        e(raw('s_waitcnt lgkmcnt(0)','misc'), waitfor(vmall=True))
        stamp('drained'); e(raw('s_waitcnt lgkmcnt(0)','misc'))
        n=nstamp[0]
        for k in range(max(0,n-7),n): e(raw(f'v_writelane_b32 v13, s{64+2*(k%7)}, {k}','misc'))
        if 'padto' in OPT:
            e(raw('s_nop 1','misc'), raw(f'v_readlane_b32 s46, v13, {OPT["padto"]}','misc'), raw('s_nop 3','misc'))
            e(salu('s_add_u32',sT0,sT0,10000), label('L_pad'), raw('s_memrealtime s[98:99]','misc'), raw('s_waitcnt lgkmcnt(0)','misc'), salu('s_sub_u32',sT1,S(98),sT0), salu('s_cmp_lt_i32',sT1,0), raw('s_cbranch_scc1 L_pad','misc'))
        else:
            e(salu('s_lshl_b32',sT0,S(2),2), salu('s_add_u32',sT0,sT0,sW), salu('s_lshl_b32',sT0,sT0,8), salu('s_add_u32',sT0,sT0,WS_STAMP))
            e(valu('v_lshlrev_b32',V(1),2,vL), bstore(vST,V(1),sWS,sT0))
    check_order(P)
    out=finalize(P,verbose=OPT['v'],name='main')
    out=page_stubs(out+[raw('s_endpgm'),I('.p2align 12','comment')]+HOT)
    hdr=open('recurrent_scan__mha_block__glu_gated_reglu__prompt.s.ref').read().split('; Override launch')[0]
    txt=hdr+'; @launch grid=(256,1,1) block=(256,1,1) lds=163840\n.amdgcn_target "amdgcn-amd-amdhsa--gfx950"\n.text\n'
    txt+=f'.globl {NAME}\n.p2align 12\n.p2align 8\n.type {NAME},@function\n{NAME}:\n'
    txt+='\n'.join(i.text for i in out)+'\n'+'\n'.join(OUT)+'\ns_endpgm\nL_codeend:\n'
    txt+=f'''.section .rodata,"a"
.p2align 6
.amdhsa_kernel {NAME}
  .amdhsa_next_free_vgpr 512
  .amdhsa_next_free_sgpr 102
  .amdhsa_accum_offset 256
  .amdhsa_group_segment_fixed_size 0
  .amdhsa_kernarg_size 80
  .amdhsa_user_sgpr_count 2
  .amdhsa_user_sgpr_kernarg_segment_ptr 1
  .amdhsa_system_sgpr_workgroup_id_x 1
  .amdhsa_float_denorm_mode_32 3
.end_amdhsa_kernel
'''
    open(sys.argv[1],'w').write(txt)
    print('bytes',len(txt))
main()
```

```python
import sys, struct, contextlib
from asmlib import *

OPT=dict(stop='', stamps=0, pf=1, dmagap=3, look=14, split=0, stper=1, qstper=1, xat=1, stgap=29, n0=14, v=1, forcefb=0, astgap=6, f2lag=10, f2poll=58, f2chk=64, ldgap=4, dbgout=0, ke2=1, bint=4, apool=0, ap0=10, tatt=56, pfn=1, barl=4, brl=8, lgm=1, pfirst=0, rp=7, inl=0, pollat3=-1, mpoll='x', np2_=1, lgrp='6,3,3', ntail=3, ldel=0, warm=0, np2=1, xsh=9, gst_=4096, pfl='sc1', ffl='sc1', pevery=2, lookb=16, nlook=2, npc=2, pollat2=-1, frx=0, sprio=1, w3=1, snop=0, vmpat=0, hat=60, chk0=0, px=0, wcut='0,3,8,13,18,23,23,23', wob=23, ldmin=4, at0=200, tat=-1, flagat=60, pollat=10, forceredo=0, lp1=20, lp2=70, nol=10, fsh=2, npoll=2, psleep=1, wopre=100, fillmm=20, rlead=100, rrate=120, ofl='', apre=60, x1n=2, afill=16, tlb=0, pfpos=6, pft='100,190,280,700,800,1060,1110,1112', swp=1, pfx=300, chain=6, qch=4, c0ch=3, touch=1, x0n=3, nblk=14, f1poll=80, qstgap=24, back=80, pfc=1, bartr=0)
for a in sys.argv[2:]:
    k,v=a.split('='); OPT[k]=int(v) if v.lstrip('-').isdigit() else v
NAME='recurrent_scan__mha_block__glu_gated_reglu__prompt_kernel'

WS_QKV=0; SL=81920
WS_P=0x800000; WS_PX=0x2800000; WS_O=0x2C00000; WS_OX=0x2E00000; WS_F3=0x2E40000; WS_R2=0x2E60000; WS_F2=0x2E80000; WS_STAMP=0x2F00000
OOB=0x80000000
LDS_OOB=0x30000
def f32(x): return struct.unpack('<I',struct.pack('<f',x))[0]
QSCALE=18**-0.5*1.4426950408889634
MARGIN=80.0

sX,sWQ,sWO,sWG,sWU,sWD,sOUT,sDBG,sWS=[S(4+4*n,4) for n in range(9)]
sW,sW1K,sI,sJ,sH,sIDX,sT0,sT1,sSO,sSO2=[S(40+n) for n in range(10)]
sLO,sHI,sONES,sW7K,sW5K=[S(50+n) for n in range(5)]
sSC=[S(55),S(56),S(57)]
sW18K,sJ1,sXC,sM8,sT2,sT3=[S(58+n) for n in range(6)]
sJ128,sJH=S(3),S(94); sSO3=S(95); sXP,sXX=S(92),S(93); sF3,sPV,sPV2=S(79),S(78),S(53)
sBD,sBL,sPC=S(96,2),S(98,2),S(100,2)
nstamp=[0]
def stamp(name,fine=False):
    if not OPT['stamps']: return
    if OPT.get('few') and name not in ('start','c0','down','down end','att end','drained'): return
    if ('gst' in OPT or 'ast' in OPT or 'pst' in OPT) and not fine and name!='start': return
    n=nstamp[0]; nstamp[0]+=1
    assert n<64
    r=64+2*(n%7)
    if n>=7: e(raw(f'v_writelane_b32 v13, s{r}, {n-7}','misc'))
    e(raw(f'{"s_memrealtime" if OPT["stamps"]==1 else "s_memtime"} s[{r}:{r+1}]','misc'))
    print('stamp',n,name)

vL=V(0)
vT=[V(1+n) for n in range(8)]
vR=[V(9),V(10)]
vM=[V(11),V(12)]
vPF=A(255)
vST=V(13)
vGF,vGH,vDF,vDH=[V(14+n) for n in range(4)]
vTR=[[V(18+3*q+n) for n in range(3)] for q in range(4)]
vQK=[V(30+n) for n in range(7)]
vQM=[V(37+n) for n in range(3)]; vQE=[V(40+n) for n in range(3)]
vSM,vSE0,vSE1,vSCX=[V(43+n) for n in range(4)]
vPS,vPX=V(47),V(48)
vF1,vONE=V(49),V(50)
vPG,vF3,vPOLL=V(51),V(52),V(53)
vX=[V(168+n) for n in range(4)]
XC1=V(56,72)
BANK=[V(128,64),V(192,64)]
XC0=A(0,72); HH=A(72,72); FR=A(144,64)
vKM,vKE=V(30),V(31); vVA=[V(32+n) for n in range(4)]
vKV,vWO,vWOE,vWX,vWXE=[V(36+n) for n in range(5)]
vPL,vPLX,vOL,vOLX,vOS,vOSX=[V(41+n) for n in range(6)]
vIDX,vF3L=V(54),V(55)
vXO,vXOX,vR2,vZ=V(11),V(12),V(9),V(10)
QE=V(14,2)
QM=[A(0,4),A(4,4)]
OO=[V(128,16),V(144,16)]
sOB=[S(80+2*n,2) for n in range(4)]
KM=[A(40+4*n,4) for n in range(3)]; KE=[A(52,2),A(56,2),A(54,2),A(58,2)]; vKE1=V(16)
VV=[A(8,8),A(16,8)]
XR=A(240,10)
PART=[A(60+4*n,4) for n in range(32)]
PARTX=[A(188+2*n,2) for n in range(10)]+[A(24+2*n,2) for n in range(6)]
SBB=[V(192,32),V(224,32),V(160,32)]

P=[]
cur=[-10**6,0]
sink=[None]
def setseq(i,gap=None):
    if 'seq' not in i.meta:
        cur[1]+=1; i.meta['seq']=(cur[0] if gap is None else gap,cur[1])
    return i
def e(*x):
    for i in x:
        if sink[0] is not None: sink[0].append(i)
        else: P.append(setseq(i)); i.meta['at']=cur[0]
@contextlib.contextmanager
def collect():
    o=[]; old=sink[0]; sink[0]=o
    yield o
    sink[0]=old
ARR=[]
fifo=dict(arr=[],dma=[],st=[],ld=[],ctr=[],epi=[],low=[])
def push(q,after,ops,logical=None):
    for o in ops: fifo[q].append((after,setseq(o,logical)))
def masked(dst,val,cmpop,a,b,tmp):
    e(valu(cmpop,'vcc',a,b), valu('v_mov_b32',tmp,OOB), valu('v_cndmask_b32',dst,tmp,val))

def prologue():
    e(salu('s_cmp_ge_u32',S(2),256), raw('s_cbranch_scc0 L_go','misc'), raw('s_endpgm','misc'), label('L_go'))
    for srd,off in ((sX,0),(sWG,32),(sWU,40),(sWQ,8),(sWO,16),(sWD,48),(sOUT,56),(sDBG,64),(sWS,72)): e(raw(f's_load_dwordx2 {srd[0:2]}, s[0:1], {off}','misc'))
    stamp('start')
    e(valu('v_lshrrev_b32',vT[0],6,V(0)), valu('v_and_b32',vL,63,V(0)))
    e(salu('s_and_b32',sXC,S(2),7), salu('s_lshr_b32',sIDX,S(2),3))
    pf_code()
    e(valu('v_readfirstlane_b32',sW,vT[0]))
    lg=OPT['lgm']
    e(salu('s_lshr_b32',sM8,sIDX,2), salu('s_lshr_b32',sI,sIDX,lg+1), salu('s_lshl_b32',sI,sI,lg), salu('s_and_b32',sT2,sXC,(1<<lg)-1), salu('s_add_u32',sI,sI,sT2))
    e(salu('s_mul_i32',sW18K,sW,18432))
    vx0,vx1,row,t=vX[0],vX[1],vT[2],vT[3]
    e(salu('s_lshl_b32',sT2,sI,2), salu('s_add_u32',sT2,sT2,sW), salu('s_lshl_b32',sT2,sT2,5))
    e(valu('v_lshrrev_b32',row,3,vL), valu('v_lshrrev_b32',t,4,vL), valu('v_and_b32',vx0,7,vL), valu('v_xor_b32',vx0,vx0,t),
      valu('v_xor_b32',vx1,4,vx0), valu('v_add_u32',t,sT2,row), valu('v_mul_u32_u24',t,1152,t),
      valu('v_lshl_add_u32',vX[2],vx0,4,t), valu('v_lshl_add_u32',vX[3],vx1,4,t), valu('v_add_u32',vX[3],8*1152-1024,vX[3]),
      valu('v_add_u32',vx0,1920,vX[2]), valu('v_add_u32',vx1,1920,vX[3]))
    e(salu('s_lshr_b32',sJ,sXC,lg), salu('s_lshl_b32',sJ,sJ,lg+1), salu('s_and_b32',sT3,sIDX,(2<<lg)-1), salu('s_add_u32',sJ,sJ,sT3), salu('s_and_b32',sJ1,sJ,1))
    e(salu('s_mul_i32',sSO2,sJ1,18432*OPT['swp']))
    if OPT['px']:
        n=OPT['px']
        e(salu('s_mul_i32',sT0,sT2,1152), salu('s_and_b32',sT1,sJ,288//n-1), salu('s_mul_i32',sT1,sT1,n*128), salu('s_add_u32',sT0,sT0,sT1), valu('v_lshl_add_u32',vT[4],vL,7,sT0))
    e(raw('s_waitcnt lgkmcnt(0)','misc'))
    if OPT['px']:
        n=OPT['px']
        m=(1<<min(n,36))-1
        e(raw(f's_mov_b32 exec_lo, {hex(m&0xffffffff)}','salu'), raw(f's_mov_b32 exec_hi, {m>>32}','salu'), gload(vPF,vT[4],sX[0:2],tag='pf'))
        if n==72: e(valu('v_add_u32',vT[4],36*128,vT[4]), gload(vPF,vT[4],sX[0:2],tag='pf'))
        e(raw('s_mov_b64 exec, -1','salu'))
    e(salu('s_sub_u32',sBL[0],sX[0],1920), salu('s_subb_u32',sBL[1],sX[1],0), salu('s_add_u32',sBD[0],sBL[0],sSO2), salu('s_addc_u32',sBD[1],sBL[1],0))
def prologue2():
    if OPT['tlb']:
        e(salu('s_mov_b32',sT0,2<<20), salu('s_mov_b32',sT1,4<<20))
        for srd,n in ((sWG,3),(sWU,3),(sWQ,1),(sWD,3),(sWO,1),(sWS,1),(sOUT,2)):
            for k in range(n): e(raw(f's_load_dword s80, {srd[0:2]}, {["0",sT0,sT1][k]}','misc'))
    e(salu('s_sub_u32',sSO2,18432,sSO2), salu('s_add_u32',sBL[0],sBL[0],sSO2), salu('s_addc_u32',sBL[1],sBL[1],0))
    e(salu('s_mul_i32',sXP,sJ1,OPT['swp']<<18), salu('s_mul_i32',sXX,sJ1,OPT['swp']<<15))
    e(salu('s_lshl_b32',sH,sXC,2), salu('s_and_b32',sT3,sIDX,3), salu('s_add_u32',sH,sH,sT3))
    e(salu('s_lshl_b32',sW1K,sW,10), salu('s_mul_i32',sW7K,sW,7168), salu('s_mul_i32',sW5K,sW,5120))
    for srd,n in ((sX,2048*1152),(sWQ,576*3456),(sWO,576*1152),(sWG,576*9216),(sWU,576*9216),(sWD,4608*1152),(sOUT,2048*1152),(sDBG,256),(sWS,0x10000000)):
        e(salu('s_mov_b32',srd[2],n), salu('s_mov_b32',srd[3],0x20000))
    e(salu('s_mov_b32',sLO,0x3f80), salu('s_mov_b32',sHI,0x3f800000), salu('s_mov_b32',sONES,0x3f803f80))
def addr_pf():
    row,t=vT[2],vT[3]
    e(salu('s_lshl_b32',sJ128,sJ1,7), salu('s_lshl_b32',sJH,sJ1,9), salu('s_sub_u32',sJH,512,sJH))
    e(salu('s_lshl_b32',sT0,sI,2), salu('s_add_u32',sT0,sT0,sW), salu('s_mul_i32',sT0,sT0,9*9216), salu('s_mul_i32',sT1,sJ,576), salu('s_and_b32',sT1,sT1,-128), salu('s_add_u32',sT0,sT0,sT1),
      valu('v_mul_u32_u24',t,9216,vL), valu('v_add_u32',t,sT0,t))
    masked(vPG,t,'v_cmp_gt_u32',9,vL,row)
    u=row
    e(valu('v_mul_u32_u24',t,7282,vL), valu('v_lshrrev_b32',t,16,t), valu('v_mul_u32_u24',u,9,t), valu('v_sub_u32',u,vL,u), valu('v_mul_u32_u24',u,3456,u), valu('v_lshl_add_u32',u,t,7,u),
      salu('s_lshl_b32',sT0,sI,2), salu('s_add_u32',sT0,sT0,sW), salu('s_mul_i32',sT0,sT0,9*3456), salu('s_mul_i32',sT1,sJ,216), salu('s_and_b32',sT1,sT1,-128), salu('s_add_u32',sT0,sT0,sT1),
      valu('v_add_u32',u,sT0,u))
    masked(vPOLL,u,'v_cmp_gt_u32',27,vL,t)
def pf_gu(c):
    if not OPT['pf']: return []
    return [cost(bload(vPF,vPG,s,sJ128 if c<4 else sJH,c*128 if c<4 else 0,tag='pf'),90) for s in (sWG,sWU)]
def pf_q(): return [cost(bload(vPF,vPOLL,sWQ,0,tag='pf'),270)] if OPT['pf'] else []
def addr_pfd():
    t,u=vPOLL,vT[7]; sT0,sT1=sSO3,S(78)
    e(salu('s_lshl_b32',sT0,sI,2), salu('s_add_u32',sT0,sT0,sW), salu('s_mul_i32',sT0,sT0,81*64), salu('s_and_b32',sT0,sT0,-128), salu('s_mul_i32',sT1,sJ,288*1152), salu('s_add_u32',sT0,sT0,sT1),
      valu('v_lshl_add_u32',t,vL,7,sT0))
    masked(vPOLL,t,'v_cmp_gt_u32',14,vL,u)
def pf_d(k): return [cost(bload(vPF,vPOLL,sWD,0,k*14*128,tag='pf'),140)] if OPT['pf'] else []
def pf_o():
    if not OPT['pf']: return
    t,u=vT[4],vT[5]
    e(salu('s_lshl_b32',sT0,S(2),2), salu('s_add_u32',sT0,sT0,sW), salu('s_mul_i32',sT0,sT0,6*128), valu('v_lshl_add_u32',t,vL,7,sT0))
    masked(t,t,'v_cmp_gt_u32',6,vL,u)
    e(cost(bload(vPF,t,sWO,0,tag='pf'),60))
def cost(i,c): i.meta['cost']=c; return i
def xdma(tt,l):
    base=sBD if tt==0 else sBL
    o=[salu('s_add_u32','m0',sW18K,tt*73728+l*1920)] if l%2==0 else []
    for z in range(2): o.append(gdma(vX[2*(l&1)+z],base,(l&~1)*128+(2*(l&1)+z)*1024,tag=('x',tt,l),private=True))
    return o
SELA=A(208,2)
def sel_ops(m,g):
    return [valu('v_and_b32',m,1,vL), valu('v_lshlrev_b32',m,4,m), valu('v_lshlrev_b32',m,m,sLO), valu('v_bfe_u32',g,vL,1,1), valu('v_mul_lo_u32',g,g,m), valu('v_sub_u32',m,m,g),
      valu('v_accvgpr_write_b32',SELA[0],m), valu('v_accvgpr_write_b32',SELA[1],g)]
ntouch=[0]
def touch():
    if not OPT['touch']: return []
    k=ntouch[0]; ntouch[0]+=1
    o=[raw('s_mov_b64 exec, 0','salu')]
    for w in range(3): o+=[salu('s_cmp_eq_u32',sW,w), raw(f's_cbranch_scc1 L_pg{4*k+w}','misc')]
    o+=[raw(f's_branch L_pg{4*k+3}','misc'), label(f'L_tr{k}'), raw('s_mov_b64 exec, -1','salu')]
    for x in o[:-1]: x.meta['glue']=True
    return o

def lane_rp(rp,p,t):
    e(valu('v_lshrrev_b32',rp,3,vL), valu('v_and_b32',t,6,rp), valu('v_and_b32',p,7,vL), valu('v_xor_b32',p,p,t))
def addr_early():
    rp,p,t,u,kA=vT[2],vT[3],vT[4],vT[5],vT[6]
    lane_rp(rp,p,t)
    e(salu('s_and_b32',sT0,sW,1), salu('s_lshl_b32',sT0,sT0,4), salu('s_lshr_b32',sT1,sW,1), salu('s_lshl_b32',sT1,sT1,2), salu('s_add_u32',sT0,sT0,sT1))
    e(valu('v_and_b32',t,4,rp), valu('v_add_u32',kA,rp,t), valu('v_add_u32',kA,sT0,kA))
    e(salu('s_mul_i32',sT1,sJ,288), salu('s_lshl_b32',sT2,sJ1,5), salu('s_add_u32',sT2,sT2,sT1))
    e(salu('s_lshl_b32',sT3,sJ1,8), salu('s_sub_u32',sT3,256,sT3), salu('s_add_u32',sT3,sT3,sT1))
    e(salu('s_lshl_b32',sT0,sT2,1), valu('v_mul_u32_u24',t,9216,kA), valu('v_lshl_add_u32',t,p,4,t), valu('v_add_u32',vGF,sT0,t))
    e(salu('s_lshl_b32',sT0,sT3,1), valu('v_lshrrev_b32',t,2,p), valu('v_lshl_add_u32',t,t,5,kA), valu('v_mul_u32_u24',t,9216,t),
      valu('v_and_b32',u,3,p), valu('v_lshl_add_u32',t,u,4,t), valu('v_add_u32',vGH,sT0,t))
    e(salu('s_lshl_b32',sT0,sW,3), valu('v_add_u32',t,sT0,rp), valu('v_add_u32',u,sT2,t), valu('v_mul_u32_u24',u,1152,u), valu('v_lshl_add_u32',vDF,p,4,u),
      valu('v_add_u32',u,sT3,t), valu('v_mul_u32_u24',u,1152,u), valu('v_lshl_add_u32',vDH,p,4,u))
    g,r4,c,b=vT[2],vT[3],vT[6],vT[7]
    e(valu('v_bfe_u32',r4,vL,2,3), valu('v_and_b32',c,3,vL), valu('v_lshrrev_b32',g,5,vL),
      valu('v_lshlrev_b32',b,10,g), valu('v_lshl_add_u32',b,r4,7,b), valu('v_lshl_add_u32',b,c,3,b), valu('v_lshrrev_b32',t,1,r4))
    for q in range(4):
        e(valu('v_xor_b32',u,q,t), valu('v_lshl_add_u32',vTR[q][0],u,5,b), valu('v_add_u32',vTR[q][1],0x10000,vTR[q][0]), valu('v_add_u32',vTR[q][2],0x20000,vTR[q][0]))
def addr_qk():
    t=vT[4]
    e(salu('s_mul_i32',sT0,sJ,216), salu('s_and_b32',sT0,sT0,-16), salu('s_mul_i32',sT1,sW,32*3456), salu('s_add_u32',sT0,sT0,sT1))
    for q in range(7):
        pp,rr,k=vT[2],vT[3],vT[6]
        e(valu('v_add_u32',pp,64*q,vL), valu('v_mul_u32_u24',rr,4682,pp), valu('v_lshrrev_b32',rr,16,rr),
          valu('v_mul_u32_u24',t,14,rr), valu('v_sub_u32',pp,pp,t),
          valu('v_and_b32',t,12,rr), valu('v_and_b32',k,3,rr), valu('v_lshl_add_u32',k,t,1,k), valu('v_lshrrev_b32',t,4,rr), valu('v_lshl_add_u32',k,t,2,k),
          valu('v_mul_u32_u24',k,3456,k), valu('v_lshl_add_u32',k,pp,4,k), valu('v_add_u32',vQK[q],sT0,k))
        if q%4: e(valu('v_subrev_u32',vQK[q],1024*(q%4),vQK[q]))
def extpos(dst,key,t):
    e(valu('v_and_b32',dst,7,key), valu('v_bfe_u32',t,key,4,1), valu('v_lshl_add_u32',dst,t,3,dst),
      valu('v_bfe_u32',t,key,3,1), valu('v_xor_b32',t,1,t), valu('v_lshl_add_u32',dst,t,4,dst))
def addr_mid():
    t,u,c=vT[4],vT[5],vT[6]
    e(valu('v_and_b32',c,3,vL), salu('s_lshl_b32',sT0,sJ1,3), valu('v_lshrrev_b32',t,2,vL), valu('v_mul_u32_u24',t,224,t), valu('v_add_u32',t,sT0,t),
      valu('v_lshl_add_u32',vQM[0],c,3,t), valu('v_mul_u32_u24',u,72,c), valu('v_add3_u32',vQE[0],t,u,32))
    for n in (1,2): e(valu('v_add_u32',vQM[n],n*0x10000,vQM[0]), valu('v_add_u32',vQE[n],n*0x10000,vQE[0]))
def addr_mid2():
    t,u,key,hf=vT[4],vT[5],vT[2],vT[3]
    e(salu('s_lshl_b32',sT0,sI,2), salu('s_add_u32',sT0,sT0,sW), salu('s_mul_i32',sT0,sT0,1280), salu('s_mul_i32',sT1,sJ,6*SL), salu('s_add_u32',sT0,sT0,sT1))
    e(salu('s_lshr_b32',sT1,sXX,11), valu('v_xor_b32',u,sT1,vL), valu('v_and_b32',key,31,u), valu('v_lshrrev_b32',hf,5,vL), valu('v_lshlrev_b32',t,2,hf), valu('v_xor_b32',t,t,u), valu('v_lshlrev_b32',t,4,t), valu('v_add_u32',vSM,sT0,t))
    extpos(u,key,t)
    e(valu('v_lshlrev_b32',u,3,u), valu('v_add_u32',u,sT0,u), valu('v_add_u32',u,1024,u), valu('v_mul_u32_u24',t,4*SL,hf), valu('v_add_u32',vSE0,u,t),
      valu('v_lshl_add_u32',vSE1,hf,31,u))
    e(salu('s_mul_i32',sT0,sJ,6), valu('v_lshrrev_b32',t,4,vL), valu('v_lshl_add_u32',t,t,1,sT0), valu('v_mov_b32',u,f32(QSCALE)), valu('v_cmp_gt_u32','vcc',32,t), valu('v_cndmask_b32',vSCX,1.0,u))
    for p_ in range(3): e(valu('v_readlane_b32',sSC[p_],vSCX,16*p_))
    e(salu('s_lshl_b32',sT0,sI,2), salu('s_add_u32',sT0,sT0,sW), salu('s_lshl_b32',sT1,sT0,9), salu('s_add_u32',sT1,sT1,sJ), salu('s_lshl_b32',sT1,sT1,10),
      valu('v_lshl_add_u32',vPS,vL,4,sT1),
      salu('s_lshl_b32',sT1,sT0,7), salu('s_add_u32',sT1,sT1,sJ), salu('s_lshl_b32',sT1,sT1,9), valu('v_lshl_add_u32',vPX,vL,3,sT1))
    e(salu('s_lshl_b32',sT1,sT0,4), salu('s_add_u32',sT1,sT1,sJ), salu('s_lshl_b32',sT1,sT1,7), salu('s_add_u32',sT1,sT1,WS_F2), valu('v_mov_b32',t,sT1))
    masked(vF1,t,'v_cmp_eq_u32',0,vL,u)
    e(salu('s_lshl_b32',sT1,sM8,2), salu('s_add_u32',sT1,sT1,sW), salu('s_lshl_b32',sT1,sT1,12), salu('s_add_u32',sT1,sT1,WS_F3), valu('v_lshl_add_u32',t,vL,9,sT1))
    masked(vF3,t,'v_cmp_gt_u32',8,vL,u)
    e(salu('s_lshl_b32',sT1,sXC,2), salu('s_lshr_b32',sT2,sIDX,3), salu('s_add_u32',sT1,sT1,sT2), salu('s_lshl_b32',sT1,sT1,1), salu('s_and_b32',sT2,sIDX,1), salu('s_add_u32',sT1,sT1,sT2),
      salu('s_lshl_b32',sT1,sT1,2), salu('s_add_u32',sT1,sT1,sW), salu('s_lshl_b32',sT1,sT1,9), salu('s_add_u32',sF3,sT1,WS_F3))
    e(valu('v_mov_b32',u,vF1), raw(f'v_writelane_b32 {u}, {sF3}, 1','valu',u.regs()+sF3.regs(),u.regs()),
      valu('v_mov_b32',t,0), cost(bstore(t,u,sWS,0,flags='sc1',tag='qkvst'),30))
    e(valu('v_and_b32',key,16,vL), valu('v_cmp_eq_u32','vcc',0,key), valu('v_cndmask_b32',hf,vR[1],vR[0]), valu('v_mul_f32',hf,hf,hf),
      salu('s_lshl_b32',sT0,sT0,7), salu('s_add_u32',sT0,sT0,WS_R2), valu('v_lshl_add_u32',key,vL,2,sT0), salu('s_lshl_b32',sT1,sJ,6), valu('v_add_u32',t,sT1,vL))
    masked(key,key,'v_cmp_gt_u32',32,t,u)
    e(bstore(hf,key,sWS,0,flags='sc1',tag='qkvst'))
def pf_code():
    if not OPT['pfc']: return
    t=vT[4]; a=V(6,2)
    e(raw('s_getpc_b64 s[100:101]','salu',[],['s100','s101']), label('L_pc'),
      salu('s_lshl_b32',sT0,sIDX,2), valu('v_add_u32',t,sT0,vT[0]), valu('v_lshl_add_u32',t,vL,7,t), valu('v_lshlrev_b32',t,7,t),
      raw(f'v_min_u32 {t}, L_codeend-L_pc-4, {t}','valu',t.regs(),t.regs()),
      raw(f'v_add_co_u32 {a[0]}, vcc, {sPC[0]}, {t}','valu',t.regs()+['s100'],a[0].regs()+['vcc']), valu('v_mov_b32',a[1],sPC[1]), raw('s_mov_b64 exec, 63','salu'),
      raw(f'v_addc_co_u32 {a[1]}, vcc, 0, {a[1]}, vcc','valu',a[1].regs()+['vcc'],a[1].regs()+['vcc']),
      I(f'global_load_dword {vPF}, {a}, off','vld',a.regs(),vPF.regs(),tag='pf'), raw('s_mov_b64 exec, -1','salu'))

GR=[V(38,4),V(42,4)]; MEAN=[V(46),V(47)]
def var_ops(tt):
    d=GR[tt]; t=vT[4]; b=d[0]
    e(valu('v_and_b32',t,1,vL), valu('v_cmp_eq_u32','vcc',0,t), valu('v_and_b32',t,2,vL), valu('v_cndmask_b32',d[0],d[1],d[0]), valu('v_cndmask_b32',d[2],d[3],d[2]),
      valu('v_cmp_eq_u32','vcc',0,t), valu('v_bfe_u32',t,vL,2,2), valu('v_cndmask_b32',d[0],d[2],d[0]), valu('v_lshrrev_b32',d[1],4,vL), valu('v_cmp_eq_u32','vcc',t,d[1]),
      valu('v_cndmask_b32',b,0,b))
    for op in ('v_permlane16_swap_b32','v_permlane32_swap_b32'): e(valu('v_mov_b32',d[1],b), swap(op,b,d[1]), valu('v_add_f32',b,b,d[1]))
    e(valu('v_mul_f32',b,f32(1/576),b), valu('v_fma_f32',b,'-'+str(MEAN[tt]),MEAN[tt],b), valu('v_max_f32',b,0,b), valu('v_cvt_pk_bf16_f32',b,b,b), valu('v_lshlrev_b32',b,16,b),
      valu('v_add_f32',b,f32(1e-5),b), valu('v_cvt_pk_bf16_f32',b,b,b), valu('v_lshlrev_b32',b,16,b),
      valu('v_sqrt_f32',b,b), valu('v_cvt_pk_bf16_f32',b,b,b), valu('v_lshlrev_b32',b,16,b), valu('v_rcp_f32',vR[tt],b))
def centre_ops(f,tt):
    o=[]; t=V(252)
    for d in range(4):
        x=f[d]
        o+=[valu('v_lshlrev_b32',t,16,x), valu('v_and_b32',x,0xffff0000,x), valu('v_sub_f32',t,t,vM[tt]), valu('v_sub_f32',x,x,vM[tt]), valu('v_cvt_pk_bf16_f32',x,t,x)]
    return o
def to_acc(s): return [valu('v_accvgpr_write_b32',XC0[4*s+d],X0[s][d]) for d in range(4)]

class Item:
    def __init__(s,name,n,mk): s.name=name; s.n=n; s.mk=mk; s.addr=None; s.first=None; s.last=None; s.pushed=False
    def blks(s): return list(range(s.addr//4096,s.addr//4096+s.n))
def blk_item(name,voff,srd,soff,buf=False,c=80):
    def mk(it):
        o=[salu('s_add_u32','m0',sW1K,it.addr)]
        if buf: return o+[salu('s_mov_b32',sSO,soff), cost(dma(voff,srd,sSO,tag=it.name,dst=it.blks()),c)]
        return o+base_add(sBD,srd,soff)+[cost(gdma(voff,sBD,tag=it.name,dst=it.blks()),c)]
    return Item(name,1,mk)
def qkv_item(a):
    def mk(it):
        o=[salu('s_mov_b32',sSO,a*128*3456)] if a==4 else base_add(sBD,sWQ,a*128*3456)
        for q in range(7):
            if q%4==0: o.append(salu('s_add_u32','m0',sW7K,it.addr+q*1024))
            if a==4: o.append(dma(vQK[q],sWQ,sSO,(q%4)*1024,tag=it.name,dst=it.blks()))
            else: o.append(cost(gdma(vQK[q],sBD,(q%4)*1024,tag=it.name,dst=it.blks()),120))
        return o
    return Item(('q',a),7,mk)
def kv_item(sg):
    def mk(it):
        o=[]
        for q in range(5):
            if q%4==0: o+=[salu('s_add_u32','m0',sW5K,it.addr+q*1024)]+base_add(sBD,sWS,WS_QKV+sg*10240+q*1024)
            o.append(gdma(vKV,sBD,(q%4)*1024,flags='sc1',tag=it.name,dst=it.blks())); o[-1].rd.append('ok_f1')
        return o
    return Item(('kv',sg),5,mk)

class Group:
    def __init__(s): s.m=[]; s.rd=[]; s.bar=False; s.fr=[]
frp=[0]
def newfrag():
    pl=[FR[4*n:4*n+4] for n in range(16)]+[A(216+4*n,4) for n in range(OPT['frx'])]
    f=pl[frp[0]]; frp[0]=(frp[0]+1)%len(pl); return f
def tr_read(f,u,it,seg):
    return dsr('ds_read_b64_tr_b16',f[2*u:2*u+2],vTR[seg][it.addr>>16],(it.addr&0xffff)+u*2048,src=(it.name,it.blks()))
def xc(tt,s): return (XC0 if tt==0 else XC1)[4*s:4*s+4]
def hfrag(k,tt): return HH[8*k+4*tt:8*k+4*tt+4]

items=[]; groups=[]; events=[]
def mm_group(srcs,accs,bfun,bar=False):
    g=Group(); g.bar=bar
    for it,seg,k in srcs:
        f=newfrag(); g.fr.append(f)
        for u in range(2): g.rd.append((it,lambda it,f=f,u=u,seg=seg: tr_read(f,u,it,seg)))
    for tt in range(2):
        for (it,seg,k),f in zip(srcs,g.fr):
            g.m.append(m16(accs[tt],f,bfun(k,tt),0 if k==0 else accs[tt]))
    groups.append(g); return len(groups)-1

def h_epilogue(bank,q,kout,half):
    gt=[bank[16*q+4*tt:16*q+4*tt+4] for tt in range(2)]; up=[bank[16*q+8+4*tt:16*q+12+4*tt] for tt in range(2)]
    o=[]
    for tt in range(2):
        for r in range(4): o.append(valu('v_max_f32',gt[tt][r],0,gt[tt][r]))
    for tt in range(2):
        for r in range(4): o.append(valu('v_mul_f32',up[tt][r],gt[tt][r],up[tt][r]))
        for d in range(2): o.append(valu('v_cvt_pk_bf16_f32',gt[tt][d],up[tt][2*d],up[tt][2*d+1]))
        for d in range(2): o.append(valu('v_accvgpr_write_b32',hfrag(kout,tt)[2*half+d],gt[tt][d]))
    return o
NV0=15
X0=[V(192+4*s,4) for s in range(NV0)]+[V(128+4*s,4) for s in range(18-NV0)]
def build_chunk(c,bank):
    xf=lambda k,tt: X0[k] if (c==0 and tt==0 and k<NV0) else xc(tt,k)
    cuts=list(range(0,19,OPT['chain']))
    if c==0: cuts=list(range(0,19,3)) if OPT['c0ch']==3 else [0,3,6,12,15,18]
    for st,(k0,k1) in enumerate(zip(cuts,cuts[1:])):
        G=[blk_item(('g',c,k),vGF,sWG,k*32*9216+c*128) for k in range(k0,k1)]
        U=[blk_item(('u',c,k),vGF,sWU,k*32*9216+c*128) for k in range(k0,k1)]
        items.extend(G+U)
        for q in range(4):
            mm_group([(G[k-k0],q,k) for k in range(k0,k1)],[bank[16*q+4*tt:16*q+4*tt+4] for tt in range(2)],xf,bar=(q==0))
        for q in range(4):
            gi=mm_group([(U[k-k0],q,k) for k in range(k0,k1)],[bank[16*q+8+4*tt:16*q+12+4*tt] for tt in range(2)],xf,bar=(q==0 and (k1-k0>3 or OPT['bartr'] or (c==0 and st<OPT.get('bar0',2)))))
            if k1==18: events.append((gi,h_epilogue(bank,q,2*c+(q>>1),q&1)))
def build_half(bank):
    for st in range(3):
        G=[blk_item(('gh',3*st+n),vGH,sWG,(3*st+n)*64*9216,c=150) for n in range(3)]
        U=[blk_item(('uh',3*st+n),vGH,sWU,(3*st+n)*64*9216,c=150) for n in range(3)]
        items.extend(G+U)
        seq=[(G,0,0),(G,0,1),(U,8,0),(U,8,1)] if st<2 else [(G,0,0),(U,8,0),(G,0,1),(U,8,1)]
        for z,(M,o,q) in enumerate(seq):
            ch=min(6,OPT['chain'])
            for hh in range(6//ch):
                ks=[6*st+ch*hh+n for n in range(ch)]
                gi=mm_group([(M[(k-6*st)>>1],2*(k&1)+q,k) for k in ks],[bank[16*q+o+4*tt:16*q+o+4+4*tt] for tt in range(2)],lambda k,tt:xc(tt,k),bar=(hh==0 and (z==0 or (z==2 and st<2 and OPT['bartr']))))
            if st==2 and o==8: events.append((gi,h_epilogue(bank,q,8,q)))
def build_qkv(bank):
    for a in range(5):
        it=qkv_item(a); items.append(it)
        first=True
        qc=OPT['qch'] if a<4 else 2
        for k0 in range(0,4 if a<4 else 2,qc):
            for t in range(7):
                g=Group(); g.bar=first; first=False
                for kk in range(k0,k0+qc):
                    f=newfrag(); g.fr.append(f)
                    for u in range(2):
                        def rd(it,f=f,u=u,kk=kk,t=t):
                            ad=it.addr+kk*7168+u*3584+(0 if t==6 else 72*(t>>1)+40*(t&1))
                            return dsr('ds_read_b64_tr_b16',f[2*u:2*u+2],(vQE if t==6 else vQM)[ad>>16],ad&0xffff,src=(it.name,it.blks()))
                        g.rd.append((it,rd))
                for tt in range(2):
                    acc=bank[8*t+4*tt:8*t+4*tt+4]
                    for n,kk in enumerate(range(k0,k0+qc)):
                        k=4*a+kk
                        g.m.append(m16(acc,g.fr[n],xc(tt,k),0 if k==0 else acc))
                groups.append(g)
                if a==4: events.append((len(groups)-1,qkv_epilogue(bank,t)))
def st_pair(o,data,voff,soff,tag,x=None):
    a=salu('s_mov_b32',sSO2,soff) if x is None else salu('s_xor_b32',sSO2,x,soff); b=bstore(data,voff,sWS,sSO2,flags='sc1',tag=tag)
    dep=[x for x in o if x.kind=='valu'][-1]
    a.meta['q']='st'; b.meta['q']='st'; b.meta['dep']=dep
    o+=[a,b]
def qkv_epilogue(bank,t):
    o=[]
    sc=[bank[56],bank[57]]
    if t==6: o+=[valu('v_mul_f32',sc[tt],vSCX,vR[tt]) for tt in range(2)]
    elif t%2==0: o+=[valu('v_mul_f32',sc[tt],sSC[t>>1],vR[tt]) for tt in range(2)]
    a=bank[8*t:8*t+8]
    for tt in range(2):
        for r in range(4): o.append(valu('v_mul_f32',a[4*tt+r],sc[tt],a[4*tt+r]))
    if t<6:
        o+=[valu('v_cvt_pk_bf16_f32',a[0],a[0],a[1]), valu('v_cvt_pk_bf16_f32',a[1],a[2],a[3]), valu('v_cvt_pk_bf16_f32',a[2],a[4],a[5]), valu('v_cvt_pk_bf16_f32',a[3],a[6],a[7]),
            swap('v_permlane16_swap_b32',a[0],a[2]), swap('v_permlane16_swap_b32',a[1],a[3])]
        st_pair(o,a[0:4],vSM,WS_QKV+t*SL,'qkvst')
    else:
        o+=[valu('v_cvt_pk_bf16_f32',a[0],a[0],a[1]), valu('v_cvt_pk_bf16_f32',a[2],a[2],a[3]), valu('v_cvt_pk_bf16_f32',a[4],a[4],a[5]), valu('v_cvt_pk_bf16_f32',a[6],a[6],a[7])]
        o+=[valu('v_mov_b32',a[n],sONES) for n in (1,3,5,7)]
        o+=[swap('v_permlane16_swap_b32',a[0],a[4]), swap('v_permlane16_swap_b32',a[2],a[6])]
        for n,(vo,sl) in enumerate(((vSE0,0),(vSE0,1),(vSE1,2),(vSE1,3))):
            st_pair(o,a[2*n:2*n+2],vo,WS_QKV+sl*SL,'qkvst')
    return o
pool=[0]
def build_down():
    ntr=0
    if OPT['chain']==3: seq=[(c,3*tr,3*tr+3) for c,tr in [(0,0),(0,1),(1,0),(1,1),(0,2),(1,2)]+[(c,tr) for c in range(2,9) for tr in range(3)]]
    else:
        seq=[(0,0,6),(1,0,6),(0,6,9),(1,6,9)]
        for c in range(2,9): seq+=[(c,0,9)] if OPT['chain']==9 and c<8 else ([(c,0,6),(c,6,9)] if c%2==0 else [(c,0,3),(c,3,9)])
    for c,k0,k1 in seq:
        acc=V(192 if c==0 else 128+32*((c+1)%2),32)
        tr=2 if k1==9 else 0
        if True:
            B=[blk_item(('d',c,k),vDF if k<8 else vDH,sWD,(k*32*1152 if k<8 else 0)+c*128) for k in range(k0,k1)]
            items.extend(B)
            for q in range(4):
                gi=mm_group([(B[k-k0],q,k) for k in range(k0,k1)],[acc[16*tt+4*q:16*tt+4*q+4] for tt in range(2)],hfrag,bar=(q==0 and (ntr%OPT['bint']==0 or ntr==26 or k1-k0==9 or OPT['bartr'])))
                if tr==2 and q%2==1:
                    o=[]
                    for tt in range(2):
                        a=acc[16*tt+4*(q-1):16*tt+4*(q-1)+8]
                        pl=[XC1[4*n:4*n+4] for n in range(18)]; pa=([A(212+4*n,4) for n in range(7)]+[A(24+4*n,4) for n in range(4)]+[A(60+4*n,4) for n in range(3)])[:OPT['apool']]
                        n=pool[0]; pool[0]+=1; a0_=OPT['ap0']
                        if a0_<=n<a0_+len(pa):
                            d4=pa[n-a0_]
                            o+=[valu('v_cvt_pk_bf16_f32',a[d],a[2*d],a[2*d+1]) for d in range(4)]+[valu('v_accvgpr_write_b32',d4[d],a[d]) for d in range(4)]
                        else:
                            d4=pl[(n if n<a0_ else n-len(pa))%18]
                            o+=[valu('v_cvt_pk_bf16_f32',d4[d],a[2*d],a[2*d+1]) for d in range(4)]
                        if c<8: st_pair(o,d4,vPS,WS_P+(tt*16+c*2+(q>>1))*16384,'pst',sXP)
                        else:
                            for z in range(2): st_pair(o,d4[2*z:2*z+2],vPX,WS_PX+(tt*4+q-1+z)*8192,'pst',sXX)
                    events.append((gi,o))
            ntr+=(k1-k0)//3

marks={}
def build_ffn():
    marks['c0']=len(groups); build_chunk(0,BANK[0])
    marks['c1']=len(groups); build_chunk(1,BANK[1])
    marks['qkv']=len(groups); build_qkv(BANK[0])
    marks['c2']=len(groups); build_chunk(2,BANK[1])
    marks['c3']=len(groups); build_chunk(3,BANK[0])
    marks['half']=len(groups); build_half(V(224,32))
    marks['down']=len(groups); build_down()

NB=39 if OPT['split'] else 40; LATE=10**9
SIG=13 if OPT['split'] else 1
vCA,vCV=V(54),vT[7]
def plan():
    L=OPT['look']
    n=0; bars=[]
    for g in groups:
        g.start=n
        if g.bar: bars.append(n-L)
        for k,(it,_) in enumerate(g.rd):
            if it.first is None: it.first=n+k-L
            it.last=n-1+(0 if len(g.fr)<=3 else ((k//4)*2 if not OPT['w3'] else (k//6)*3))
        n+=len(g.m)
    free={b:(-3000 if b>=36 else (-2000 if b<18 else -L)) for b in range(NB)}
    ptr=36
    for it in items:
        if ptr+it.n>NB: ptr=0
        it.addr=ptr*4096
        it.early=max(free[b] for b in it.blks())
        assert it.early<LATE
        it.bar=max(b for b in bars if b<=it.first)
        nxt=[b for b in bars if b-SIG>=it.last]
        for b in it.blks(): free[b]=nxt[0] if nxt else LATE
        ptr=(ptr+it.n)%NB
    return n,bars,free

VM=('dma','vld','vst')
SC=('salu','waitfor','misc','label')
lastvm=dict(any=-100,st=-100)
def head(nm,gap):
    q=fifo[nm]
    if not q or q[0][0]>gap: return None
    x=q[0][1]
    if 'lag' in x.meta and x.meta['lag'][0].meta.get('at',LATE)+x.meta['lag'][1]>gap: return None
    sq=x.meta['seq']; rd=set(x.rd)-{'carry'}; wr=set(x.wr)-{'carry'}
    for n2,q2 in fifo.items():
        if n2==nm: continue
        for _,y in q2:
            if y.meta['seq']>sq: break
            if rd&set(y.wr) or wr&set(y.rd) or wr&set(y.wr): return None
    return x
pipe=[0,16]
def vm_ready(gap,mingap,stgap,order=('st','ld','low','dma')):
    if gap-lastvm['any']<mingap: return None
    if pipe[0]-gap*pipe[1]>OPT['back']: return None
    for nm in order:
        x=head(nm,gap)
        if x is None or x.kind not in VM: continue
        if nm=='st':
            d=x.meta.get('dep')
            if gap-lastvm['st']<stgap or (d is not None and d.meta.get('at',LATE)>gap-2): continue
        return nm
    return None
def take(nm,gap):
    x=fifo[nm].pop(0)[1]
    if x.kind in VM:
        lastvm['any']=gap
        pipe[0]=max(pipe[0],gap*pipe[1])+x.meta.get('cost',80)
        if nm=='st': lastvm['st']=gap
    e(x)
    nx=[y for _,y in fifo[nm][:6] if 'vcc' in y.rd or 'vcc' in y.wr]
    if nx and 'vcc' in nx[0].rd: vcc_open[0]=nm
    elif vcc_open[0]==nm: vcc_open[0]=None
    while x.meta.get('glue'):
        x=fifo[nm].pop(0)[1]; e(x)
    return x
vcc_lock=[LATE]; vcc_open=[None]
def pull(gap,scalar):
    order=('arr','st','ld','dma','ctr','epi','low') if scalar and OPT['sprio'] else ('arr','dma','st','ctr','epi','ld','low')
    if scalar:
        for nm in order:
            x=head(nm,gap)
            if x is not None and 'carry' in x.rd: take(nm,gap); return True
    elif vcc_open[0]: order=(vcc_open[0],)+order
    for nm in order:
        x=head(nm,gap)
        if x is None or x.kind in VM: continue
        if (x.kind in SC)!=scalar: continue
        if 'vcc' in x.wr and not x.meta.get('glue') and vcc_lock[0]<OPT.get('vlock',22): continue
        take(nm,gap); return True
    return False

bar_extra={}
def emit_backbone(bars,gapstamps):
    L=OPT['look']
    reads=[(it,f,g.start-0.5) for g in groups for it,f in g.rd]
    ev={}
    for gi,ops in events: ev.setdefault(gi,[]).append(ops)
    bar_items={}
    for it in items: bar_items.setdefault(it.bar,[]).append(it.name)
    barset=set(bars); issue={}
    fixed={}; fixT={}
    nb=len([b for b in bars if b>=SIG and OPT['split']]); kb=0
    for gi,g in enumerate(groups):
        for k in range(len(g.m)):
            gap=g.start+k; fx=[]
            w_lg=list(groups[gi+1].fr) if (k==len(g.m)-1 and gi+1<len(groups)) else []
            if len(w_lg)>3: w_lg=w_lg[:3 if OPT['w3'] else 2]
            if len(g.fr)>3 and not OPT['w3'] and k in (1,3): w_lg=g.fr[k+1:k+3]
            if len(g.fr)>3 and OPT['w3'] and k in (2,5) and k+1<len(g.fr): w_lg=g.fr[k+1:k+4]
            if len(g.fr)>6 and k in (9,13): w_lg=groups[gi+1].fr[:1+(k-9)//2] if gi+1<len(groups) else []
            w_vm=[]
            for d in (1,SIG):
                b=gap+d
                if b in barset and d==(SIG if b>=SIG else 1): w_vm=bar_items.get(b,[])+bar_extra.get(b,[])
            if OPT['split']:
                if gap+SIG in barset: x=dsw('ds_sub_u32',vCA,vONE); x.meta['signal']=True; fixT[gap]=x
                if gap+7 in barset and gap+7>=SIG: assert gap not in fixT; fixT[gap]=dsr('ds_read_b32',vCV,vCA)
                if gap+1 in barset and gap+1>=SIG:
                    kb+=1; assert gap not in fixT
                    fixT[gap]=valu('v_cmp_lt_u32','vcc',4*(nb-kb),vCV); w_lg.append(vCV)
                    OUT.extend([f'L_sb{kb}:', f'ds_read_b32 {vCV}, {vCA}', 's_waitcnt lgkmcnt(0)', fixT[gap].text, 's_nop 0', f's_cbranch_vccnz L_sb{kb}', f's_branch L_sr{kb}'])
            if gap in barset:
                if OPT['split'] and gap>=SIG: fx.append([raw(f's_cbranch_vccnz L_sb{kb}','misc',['vcc'],check=True,glue=True), label(f'L_sr{kb}')])
                else: fx.append([barrier()])
            if w_lg or w_vm: fx.append([waitfor(lg=w_lg,vmtags=w_vm)])
            fixed[gap]=fx
    def stgap_at(gap):
        dn=gap>=groups[marks['down']].start
        iv=len([b for b in bars if b<=gap])
        if iv%OPT['stper' if dn else 'qstper']: return LATE
        return OPT['stgap' if dn else 'qstgap']
    ri=[L]
    def rd():
        it,f,lg=reads[ri[0]]; ri[0]+=1; e(setseq(f(it),lg))
    planned=None
    for gi,g in enumerate(groups):
        for k,m in enumerate(g.m):
            gap=g.start+k
            if gap-1 in extra:
                cur[0]=gap-0.7
                e(*extra[gap-1])
                if extra[gap-1][-1].kind=='mfma':
                    for _ in range(extra[gap-1][-1].passes-3): pull(gap-1,False)
            cur[0]=gap
            e(m)
            if gap in gapstamps: stamp(gapstamps[gap])
            if 'gst' in OPT and gap in range(*map(int,OPT['gst'].split(':'))): stamp(f'gap{gap}',True)
            if planned:
                x=take(planned,gap); planned=None
                if x.kind=='dma': issue[x.meta['tag']]=gap
                continue
            fx=fixed[gap]
            if fx: e(*fx.pop(0))
            elif not pull(gap,True) and OPT['snop']: e(raw('s_nop 0','misc'))
            if ri[0]<len(reads) and ri[0]<=gap+L: rd()
            used=False
            if fx: e(*fx.pop(0)); used=True
            if gap in fixT:
                e(fixT[gap]); used=True
                if fixT[gap].kind=='valu': continue
            lag=ri[0]<len(reads) and ri[0]<=gap+L
            if lag:
                if not used: rd()
                continue
            if gap+1 in fixed and not fixed[gap+1] and gap+1 not in fixT: planned=vm_ready(gap+1,OPT['dmagap'],stgap_at(gap+1))
            if used: continue
            if planned:
                if OPT['vmpat']==0 and ri[0]<len(reads) and reads[ri[0]][0].bar<=gap: rd()
                if OPT['vmpat']==2: pull(gap,False)
                continue
            vcc_lock[0]=min([b for b in bars if b>gap]+[LATE])-gap if OPT['split'] else LATE
            if not pull(gap,False): pull(gap,True)
        for ops in ev.get(gi,[]):
            for o in ops: push(o.meta.get('q','epi'),gap+4,[o])
    vcc_lock[0]=LATE
    sl=[(it.bar-SIG-issue[it.name],it.name) for it in items if it.name in issue]
    sl.sort(); print('min dma slack (gaps):',sl[:6])
    print('left after backbone:',{k:len(v) for k,v in fifo.items()})

OUT=[]
HOT=[]
def spin(name,load,expect,sleep=8):
    a=valu('v_cmp_gt_u32','vcc',expect,vPOLL); a.meta['glue']=True
    b=raw(f's_cbranch_vccnz L_spin_{name}','misc',['vcc']); b.meta['glue']=True
    c=label(f'L_back_{name}')
    cnt=vT[6]
    OUT.extend([f'L_spin_{name}:', f'v_mov_b32 {cnt}, 0x40000', f'L_spinl_{name}:', load.text, 's_waitcnt vmcnt(0)', f'v_cmp_gt_u32 vcc, {fmt(expect)}, {vPOLL}', 's_nop 1',
        f's_cbranch_vccz L_back_{name}', f'v_subrev_u32 {cnt}, 1, {cnt}', f'v_cmp_ne_u32 vcc, 0, {cnt}', f's_sleep {sleep}', f's_cbranch_vccnz L_spinl_{name}', f's_branch L_back_{name}'])
    a.wr.append(cnt.regs()[0]); a.wr.append('ok_'+name)
    return [a,b,c]

def addr_att(WB):
    t,u,key,hf,p,rp=vT[0],vT[1],vT[2],vT[3],vT[4],vT[5]
    e(valu('v_and_b32',key,31,vL), valu('v_lshrrev_b32',hf,5,vL), valu('v_lshlrev_b32',t,2,hf), valu('v_xor_b32',t,t,vL), valu('v_lshlrev_b32',vKM,4,t))
    extpos(u,key,t)
    e(valu('v_lshlrev_b32',vKE,3,u), valu('v_add_u32',vKE,1024,vKE))
    e(salu('s_lshr_b32',sT0,sW,1), salu('s_lshl_b32',sT0,sT0,5), salu('s_add_u32',sT0,sT0,sH), salu('s_add_u32',sT0,sT0,32), salu('s_mul_i32',sT0,sT0,SL),
      salu('s_and_b32',sT1,sW,1), salu('s_mul_i32',sT1,sT1,5120), salu('s_add_u32',sT0,sT0,sT1), valu('v_lshl_add_u32',vKV,vL,4,sT0))
def addr_z(): e(valu('v_and_b32',vZ,1,vL), valu('v_lshlrev_b32',vZ,7,vZ))
def qk_loads(WB):
    t,u,hf=vT[0],vT[1],vT[3]
    e(salu('s_mov_b32',sSO3,WS_R2), cost(bload(vR2,vR2,sWS,sSO3,flags='sc1'),40))
    e(valu('v_lshrrev_b32',hf,5,vL), valu('v_mul_u32_u24',u,1280,hf), valu('v_add_u32',u,u,vKE))
    e(salu('s_lshl_b32',sT0,sM8,2), salu('s_add_u32',sT0,sT0,sW), salu('s_mul_i32',sT0,sT0,2560), salu('s_mul_i32',sT1,sH,SL), salu('s_add_u32',sSO3,sT0,sT1))
    for x in range(2): e(bload(QM[x],vKM,sWS,sSO3,x*1280,flags='sc1'))
    e(cost(bload(QE[0],u,sWS,sSO3,0,flags='sc1'),40))
    e(salu('s_add_u32',sSO3,sT1,32*SL))
    for x in range(2): e(bload(KM[x],vKM,sWS,sSO3,x*1280,flags='sc1'), cost(bload(KE[x],vKE,sWS,sSO3,x*1280,flags='sc1'),40))
    e(valu('v_add_u32',vKM,WB,vKM), valu('v_add_u32',vKE,WB,vKE), valu('v_mov_b32',QE[1],0), valu('v_mov_b32',vIDX,0xdddd))
def zero_o():
    for x in range(2):
        for r in range(16): e(valu('v_mov_b32',OO[x][r],0))
def extra_zero(ngaps):
    with collect() as o: zero_o()
    push('ctr',ngaps-66,o,ngaps-66)
def addr_lds(WB):
    t,hf=vT[0],vT[3]
    e(valu('v_lshrrev_b32',hf,5,vL))
    c,r,k,x=vT[4],vT[5],vT[6],vT[1]
    e(valu('v_and_b32',c,3,vL), valu('v_bfe_u32',r,vL,2,2), valu('v_lshl_add_u32',r,hf,3,r))
    for n in range(4):
        uu,y=n>>1,n&1
        e(valu('v_add_u32',k,16*uu+4*y,r))
        extpos(x,k,t)
        e(valu('v_lshlrev_b32',x,3,x), valu('v_min_u32',t,1,c), valu('v_mul_u32_u24',t,LDS_OOB+64,t), valu('v_xor_b32',x,x,t), valu('v_add_u32',x,1024,x))
        e(valu('v_lshrrev_b32',t,1,c), valu('v_mul_u32_u24',t,36,t), valu('v_xor_b32',k,k,t), valu('v_lshlrev_b32',k,4,k), valu('v_and_b32',t,1,c), valu('v_lshl_add_u32',k,t,3,k))
        e(valu('v_and_b32',t,16,vL), valu('v_cmp_eq_u32','vcc',0,t), valu('v_cndmask_b32',k,x,k), valu('v_add_u32',vVA[n],WB,k))
vOP,vSH,vINC=V(55),V(16),V(17)
def addr_op():
    t,u,g=vT[2],vT[4],vT[5]
    e(salu('s_lshl_b32',sT0,sXC,2), valu('v_lshlrev_b32',vINC,sT0,vONE), salu('s_mov_b32',sPV,0), valu('v_add_u32',vKE1,1280,vKE))
    if OPT['warm']: e(salu('s_and_b32',sT0,sIDX,7), salu('s_lshl_b32',sT0,sT0,2), salu('s_add_u32',sT0,sT0,sW),
      salu('s_lshl_b32',sT1,sXC,2), salu('s_lshr_b32',sT2,sIDX,3), salu('s_add_u32',sT1,sT1,sT2),
      salu('s_lshr_b32',sT2,sT0,4), salu('s_lshl_b32',sT2,sT2,15), salu('s_and_b32',sT3,sT0,15), salu('s_lshl_b32',sT3,sT3,8), salu('s_add_u32',sT2,sT2,sT3),
      salu('s_lshl_b32',sT3,sT1,16), salu('s_add_u32',sT2,sT2,sT3), salu('s_add_u32',sT2,sT2,WS_O),
      valu('v_lshrrev_b32',g,1,vL), valu('v_lshl_add_u32',t,g,12,sT2), valu('v_and_b32',u,1,vL), valu('v_lshl_add_u32',t,u,7,t),
      salu('s_bfe_u32',sT2,sT0,0x10002), salu('s_lshl_b32',sT2,sT2,12), salu('s_and_b32',sT3,sT0,3), salu('s_lshl_b32',sT3,sT3,7), salu('s_add_u32',sT2,sT2,sT3),
      salu('s_lshl_b32',sT3,sT1,13), salu('s_add_u32',sT2,sT2,sT3), salu('s_add_u32',sT2,sT2,WS_OX),
      valu('v_and_b32',u,7,vL), valu('v_lshl_add_u32',vOP,u,9,sT2), valu('v_cmp_gt_u32','vcc',16,vL), valu('v_cndmask_b32',vOP,vOP,t), valu('v_cndmask_b32',g,u,g),
      valu('v_lshl_add_u32',g,g,2,2), valu('v_cmp_gt_u32','vcc',24,vL), valu('v_cndmask_b32',vSH,3,g))
def x_loads(): return [cost(bload(XR[2*q:2*q+2],vXO,sX,0,32*q),260) for q in range(4)]+[cost(bload(XR[8:10],vXOX,sX,0),200)]
def addr_fin():
    t,u,p,rp,a,b=vT[0],vT[1],vT[4],vT[5],vT[6],vT[3]
    lane_rp(rp,p,t)
    e(salu('s_and_b32',sT0,sW,1), salu('s_lshr_b32',sT1,sW,1), salu('s_mul_i32',sT2,sT0,20), salu('s_lshl_b32',sT3,sT1,3), salu('s_add_u32',sT2,sT2,sT3), valu('v_add_u32',a,sT2,rp),
      salu('s_mul_i32',sT2,sT0,288), salu('s_mul_i32',sT3,sT1,36), salu('s_add_u32',sT2,sT2,sT3), salu('s_add_u32',sT2,sT2,16),
      valu('v_lshrrev_b32',t,2,rp), valu('v_mul_u32_u24',t,144,t), valu('v_and_b32',b,3,rp), valu('v_add3_u32',b,b,t,sT2))
    e(salu('s_and_b32',sT0,sIDX,7), salu('s_lshl_b32',sT1,sT0,7), valu('v_lshl_add_u32',u,p,4,sT1),
      valu('v_mul_u32_u24',t,1152,a), valu('v_add_u32',vWO,t,u), valu('v_mul_u32_u24',t,1152,b), valu('v_add_u32',vWOE,t,u))
    e(salu('s_lshr_b32',sT2,sT0,1), salu('s_lshl_b32',sT2,sT2,5), salu('s_add_u32',sT2,sT2,1024), valu('v_and_b32',u,1,p), valu('v_lshl_add_u32',u,u,4,sT2), valu('v_lshrrev_b32',p,1,p),
      valu('v_mul_u32_u24',t,36,p), valu('v_add_u32',t,t,a), valu('v_mul_u32_u24',t,1152,t), valu('v_add_u32',vWX,t,u),
      valu('v_mul_u32_u24',t,p,p), valu('v_mul_u32_u24',t,t,p), valu('v_mul_u32_u24',t,72,t), valu('v_add_u32',t,t,b), valu('v_mul_u32_u24',t,1152,t), valu('v_add_u32',vWXE,t,u))
    e(salu('s_lshr_b32',sT3,sIDX,3), salu('s_lshl_b32',sT3,sT3,2), salu('s_add_u32',sT3,sT3,sW), salu('s_lshl_b32',sSO3,sXC,4), salu('s_add_u32',sT3,sT3,sSO3))
    tk,g=vT[4],vT[5]
    e(valu('v_and_b32',tk,15,vL), valu('v_lshrrev_b32',g,4,vL))
    e(salu('s_lshl_b32',sSO3,sT3,3), salu('s_add_u32',sSO3,sSO3,sT0), salu('s_lshl_b32',sSO3,sSO3,15), valu('v_lshl_add_u32',vPL,vL,4,sSO3))
    e(salu('s_xor_b32',sSC[0],sW,sT0), salu('s_lshl_b32',sSC[0],sSC[0],31))
    e(salu('s_lshl_b32',sSO3,sT3,2), salu('s_lshr_b32',sSC[1],sT0,1), salu('s_add_u32',sSO3,sSO3,sSC[1]), salu('s_lshl_b32',sSO3,sSO3,13), salu('s_or_b32',sSO3,sSO3,sSC[0]), valu('v_lshl_add_u32',vPLX,vL,3,sSO3))
    e(salu('s_lshl_b32',sSO3,sT3,4), valu('v_add_u32',a,sSO3,tk), valu('v_lshlrev_b32',vR2,2,a), valu('v_mul_u32_u24',a,1152,a), valu('v_lshl_add_u32',a,g,3,a),
      valu('v_add_u32',vXO,sT1,a), salu('s_or_b32',sT2,sT2,sSC[0]), valu('v_add_u32',vXOX,sT2,a))
    if not OPT['xat']: e(*x_loads())
    e(salu('s_and_b32',sSO3,sT3,1), salu('s_lshl_b32',sSO3,sSO3,4), valu('v_add_u32',a,sSO3,tk), salu('s_lshr_b32',sSC[1],sT3,1),
      salu('s_lshl_b32',sSO3,sSC[1],15), valu('v_lshl_add_u32',t,a,4,sSO3), valu('v_lshl_add_u32',vOL,g,9,t),
      salu('s_lshl_b32',sSO3,sSC[1],12), valu('v_lshl_add_u32',t,a,2,sSO3), valu('v_lshl_add_u32',vOLX,g,10,t))
    e(valu('v_and_b32',t,31,vL))
    for n in range(4): e(*base_add(sOB[n],sWS,WS_O+8192*n+4096))
    e(*base_add(S(88,2),sWS,WS_O), *base_add(S(90,2),sWS,WS_O+32768))
    e(salu('s_lshr_b32',sSO3,sT3,1), salu('s_lshl_b32',sSO3,sSO3,11), salu('s_add_u32',sSO3,sSO3,WS_F2), valu('v_lshl_add_u32',vPG,tk,7,sSO3))
    e(salu('s_lshl_b32',sT0,sM8,2), salu('s_add_u32',sT0,sT0,sW), salu('s_lshl_b32',sT1,sT0,16), salu('s_lshl_b32',sT2,sH,10), salu('s_add_u32',sT1,sT1,sT2),
      valu('v_lshl_add_u32',vOS,vL,4,sT1),
      salu('s_lshl_b32',sT1,sT0,13), salu('s_lshl_b32',sT2,sH,7), salu('s_add_u32',sT1,sT1,sT2), salu('s_add_u32',sT1,sT1,WS_OX),
      valu('v_lshl_add_u32',t,t,2,sT1), valu('v_lshrrev_b32',u,5,vL), valu('v_lshl_add_u32',vOSX,u,12,t))

def max_ops(srcs,m,first=True):
    o=[]
    regs=[s[r] for s in srcs for r in range(16)]
    if first: o.append(valu('v_max3_f32',m,regs[0],regs[1],regs[2])); rest=regs[3:]
    else: rest=regs
    while len(rest)>=2: o.append(valu('v_max3_f32',m,m,rest[0],rest[1])); rest=rest[2:]
    if rest: o.append(valu('v_max_f32',m,m,rest[0]))
    return o
def set_shift(mx,margin):
    m,t=mx
    return [swap('v_permlane32_swap_b32',m,t), valu('v_max_f32',m,m,t), valu('v_sub_f32',m,f32(-margin) if margin else 0,m),
            valu('v_cvt_pk_bf16_f32',t,m,m), valu('v_lshlrev_b32',t,16,t), valu('v_sub_f32',t,m,t), valu('v_cvt_pk_bf16_f32',QE[1],m,t)]
def Bx(tau,buf=None): return m2b(buf or SBB[tau%3],KE[tau%4],QE,0)
def Mx(tau,x,buf=None): b=(buf or SBB[tau%3])[16*x:16*x+16]; return m32(b,KM[tau%3],QM[x],b)
def PV(tau,x,h,buf=None): return smf(OO[x],VV[tau&1][4*h:4*h+4],(buf or SBB[tau%3])[16*x+8*h:16*x+8*h+8],vIDX)
def vread(kv,WB,tau,n):
    it=kv[tau>>3]; off=it.addr-WB+10240+(tau&7)*1280
    return dsr('ds_read_b64_tr_b16',VV[tau&1][2*n:2*n+2],vVA[n],off,src=(it.name,it.blks()))
extra={}
def att_setup(ngaps,kv,WB):
    g=ngaps-OPT['at0']
    extra[g]=[waitfor(vm=QM+KM[:2]+KE[:2]+[QE[0]]), Bx(0)]; extra[g+2]=[Bx(1)]
    extra[g+8]=[Mx(0,0)]; extra[g+10]=[Mx(1,0)]; extra[g+12]=[Mx(0,1)]; extra[g+14]=[Mx(1,1)]
    mx=[vT[0],vT[1]]
    for x in range(2): push('ctr',g+17+4*x,max_ops([SBB[0][16*x:16*x+16],SBB[1][16*x:16*x+16]],mx[x]),g+16)
    push('ctr',g+21,set_shift(mx,MARGIN),g+16)
    extra[ngaps-18]=[Bx(0)]; extra[ngaps-9]=[Mx(0,0)]+[vread(kv,WB,0,n) for n in range(2)]; extra[ngaps-5]=[Mx(0,1)]+[vread(kv,WB,0,n) for n in range(2,4)]

def attention(g0,kv,WB,wo_items):
    base=g0+100
    pipe[0]=0; pipe[1]=44
    def kread(tau):
        it=kv[tau>>3]; off=it.addr-WB+(tau&7)*1280; src=(it.name,it.blks())
        if tau<4 or not OPT['ke2']: ke=dsr('ds_read_b64',KE[tau%4],vKE,off,src=src)
        elif tau&2: ke=None
        else:
            o=(off-1280*(tau&1))//512; d=A(KE[tau&1].b,4); a=vKE1 if tau&1 else vKE
            ke=I(f'ds_read2st64_b64 {d}, {a} offset0:{o} offset1:{o+5}','dsr',a.regs(),d.regs(),src=src,private=False)
        return [dsr('ds_read_b128',KM[tau%3],vKM,off,src=src), ke]
    def flush(n,names=('ctr','epi','low','dma','ld')):
        k=0
        while k<n:
            for nm in names:
                x=head(nm,cur[0])
                if x is not None: take(nm,cur[0]); break
            else: return
            k+=1
    cur[0]=g0
    assert not fifo['ctr'] and not fifo['low'] and not fifo['ld']
    stamp('att')
    barx={7:[it.name for it in wo_items]}; f2done=[False]; wcut=[int(x) for x in OPT['wcut'].split(',')]
    for tau in range(64):
        n=2*tau; nx=tau<63; S=SBB[tau%3]
        if 'ast' in OPT and n in range(*map(int,OPT['ast'].split(':'))): stamp(f'slot{n}',True)
        ms=[Bx(tau+1) if nx else None, PV(tau-1,1,1) if tau else None, PV(tau,0,0), Mx(tau+1,0) if nx else None, PV(tau,0,1), Mx(tau+1,1) if nx else None, PV(tau,1,0)]
        km,ke=kread(tau+2) if tau+2<64 else (None,None)
        v=[vread(kv,WB,tau+1,z) if nx else None for z in range(4)]
        rds=[None,ke,v[0],v[1],km,v[2],v[3]]
        sg=(tau+3)//8 if (tau+3)%8==0 and tau+3<64 else None
        for k in range(7):
            gap=base+8*tau+(k+1 if k else 0); cur[0]=gap
            if tau==0 and k==1: flush(1000,('epi',)); e(waitfor(lg=[VV[0]]))
            if ms[k] is not None: e(ms[k])
            nsc=(0,2,2,1,2,1,2)[k]
            fx=k in (2,6) or (k==4 and sg is not None)
            vmn=vm_ready(gap,1,OPT['astgap'],('st','dma','ld','low')) if (not fx and k>0 and ms[k] is not None) else None
            if vmn: take(vmn,gap)
            else:
                if k==2: e(waitfor(lg=[VV[tau&1][4:8],KM[(tau+1)%3]])); nsc-=1
                if k==2 and tau==63 and OPT['warm']: e(*poll())
                if k==6: e(waitfor(lg=[VV[(tau+1)&1][0:4],KE[(tau+2)%4]])); nsc-=1
                if k==4 and sg is not None:
                    e(waitfor(vmtags=[kv[sg].name]+barx.get(sg,[])), barrier()); nsc-=2
                    if sg+1<8 and not kv[sg+1].pushed: push('dma',gap,kv[sg+1].mk(kv[sg+1]))
                    for it in [x for x in wo_items if not x.pushed][wcut[sg-1]:wcut[sg]]: push('dma',gap,it.mk(it))
                while nsc>0 and pull(gap,True): nsc-=1
            if rds[k] is not None: e(rds[k])
            x=head('ld',gap)
            if x is not None and x.kind=='valu': take('ld',gap)
            for r in (range(8) if k==0 else range(4*k+4,4*k+8)): e(valu('v_exp_f32',S[r],S[r]))
        if n==OPT['tatt']: push('arr',gap,touch())
        if n==2 and OPT['xat']: push('ld',gap,x_loads())
        if not fifo['st'] and not f2done[0]:
            f2done[0]=True; print('partial stores end at slot',n)
            push('st',gap+4*OPT['f2lag'],[waitfor(vmtags=['pst']), bstore(vONE,vF1,sWS,0,flags='sc1')])
        if n==OPT['f2poll']:
            ld=bload(vPOLL,vPG,sWS,0,flags='sc1')
            push('st',gap,[ld])
            t0=base+4*OPT['f2chk']
            w_=waitfor(vm=[vPOLL]); w_.meta['lag']=(ld,4*(OPT['f2chk']-OPT['f2poll']))
            push('ld',t0,[w_]+spin('f2',ld,1))
            ops=[]
            for k in range(32):
                if k%8==0: ops+=base_add(sBL,sWS,WS_P+k*1024+4096)
                ops.append(gload(PART[k],vPL,sBL,(k%8)*1024-4096,flags='sc1'))
                if k%2==1:
                    z=k>>1
                    if z%8==0: ops.append(salu('s_mov_b32',sSO3,WS_PX+z*512))
                    ops.append(bload(PARTX[z],vPLX,sWS,sSO3,(z%8)*512,flags='sc1'))
            nl=0; prev=None
            for o in ops:
                if o.kind=='vld':
                    if prev is not None: o.meta['lag']=(prev,OPT['ldmin'])
                    prev=o
                push('ld',t0+int(nl*OPT['ldgap']),[o])
                if o.kind=='vld': nl+=1
    cur[0]=base+600
    e(PV(63,1,1))
    print('att vmem slots:',' '.join(f"{'kv' if i.meta.get('tag') and i.meta['tag'][0]=='kv' else i.kind[1]}{(i.meta['at']-base)//4}" for i in P if i.kind in VM and i.meta['at']>=base))
    print('left after attention:',{k:len(v) for k,v in fifo.items()})
    assert not any(fifo.values()), 'work left after attention'

def fallback(kv,WB):
    global P
    save=P; P=[]
    pb=kv[5].addr
    a=[V(192+n) for n in range(6)]; vo=V(198); mx=[V(199),V(200)]; S=SBB[2]
    e(label('L_fb'), raw('s_waitcnt vmcnt(0) lgkmcnt(0)','misc'), raw('s_nop 15','misc'))
    for d,s in zip(a,[vKM,vKE]+vVA): e(valu('v_add_u32',d,sW5K,s))
    e(valu('v_lshlrev_b32',vo,4,vL), valu('v_mov_b32',QE[1],0), valu('v_mov_b32',mx[0],0xff800000), valu('v_mov_b32',mx[1],0xff800000))
    off=pb-WB
    for ps in range(2):
        e(salu('s_add_u32',sT0,sH,32), salu('s_mul_i32',sT0,sT0,SL), salu('s_add_u32',sT1,sT0,32*SL), salu('s_mov_b32',sT2,64), label(f'L_fbl{ps}'))
        e(salu('s_add_u32','m0',sW5K,pb), dma(vo,sWS,sT0,0,flags='sc1'), dma(vo,sWS,sT0,1024,flags='sc1'))
        if ps: e(salu('s_add_u32','m0',sW5K,pb+2560), dma(vo,sWS,sT1,0,flags='sc1'), dma(vo,sWS,sT1,1024,flags='sc1'))
        e(waitfor(vmall=True), dsr('ds_read_b128',KM[0],a[0],off), dsr('ds_read_b64',KE[0],a[1],off))
        if ps:
            for n in range(4): e(dsr('ds_read_b64_tr_b16',VV[0][2*n:2*n+2],a[2+n],off+2560))
        e(waitfor(lgall=True))
        e(Bx(0,S), Mx(0,0,S), Mx(0,1,S))
        for x in range(2):
            if ps==0: e(*max_ops([S[16*x:16*x+16]],mx[x],first=False))
            else:
                for r in range(16): e(valu('v_exp_f32',S[16*x+r],S[16*x+r]))
                for h in range(2): e(PV(0,x,h,S))
        e(raw('s_nop 15','misc'), salu('s_add_u32',sT0,sT0,1280), salu('s_add_u32',sT1,sT1,1280), salu('s_sub_u32',sT2,sT2,1), salu('s_cmp_lg_u32',sT2,0), raw(f's_cbranch_scc1 L_fbl{ps}','misc'))
        if ps==0:
            e(*set_shift(mx,0.0)); zero_o()
    e(*norm_store(0,V(116,2)), *norm_store(1,V(116,2)), waitfor(vmall=True))
    e(raw('s_nop 3','misc'), raw('s_branch L_fb_ret','misc'))
    OUT.extend(i.text for i in finalize(P,verbose=0,name='fb'))
    P=save

TT=[V(224,16),V(240,16)]
FLAG_LDS=[0]
def norm_store(x,t):
    O,T=OO[x],TT[x]
    o=[valu('v_rcp_f32',t[0],O[10]), valu('v_mov_b32',t[1],t[0]), swap('v_permlane32_swap_b32',t[0],t[1])]
    o+=[valu('v_mul_f32',T[r],t[0],O[r]) for r in range(10)]
    o+=[valu('v_cvt_pk_bf16_f32',T[d],T[2*d],T[2*d+1]) for d in range(4)]
    o+=[gstore(T[0:4],vOS,S(88+2*x,2),flags='sc1',tag='ost'), valu('v_cvt_pk_bf16_f32',T[8],T[8],T[9])]
    if x: o+=[swap('v_permlane32_swap_b32',TT[0][8],TT[1][8]), gstore(TT[0][8],vOSX,sWS[0:2],flags='sc1',tag='ost')]
    return o
def poll(r=sPV): return [raw(f's_atomic_umax {r}, {sWS[0:2]}, {sF3} glc')]
def final(g0,wo_main,wo_x):
    cur[0]=g0
    SA=V(56,20); DN=V(76,20); XF=V(96,20); tmp=V(116,12)
    e(*norm_store(0,tmp), *norm_store(1,tmp))
    stamp('o stored')
    fill=[]
    for x in range(2):
        s=tmp[2+x]
        fill.append(valu('v_add_f32_e64',s,f'|{OO[x][0]}|',f'|{OO[x][1]}|'))
        for r in range(2,10): fill.append(valu('v_add_f32_e64',s,s,f'|{OO[x][r]}|'))
    fill+=[valu('v_min_f32',tmp[4],tmp[2],tmp[3]), valu('v_add_f32',tmp[2],tmp[2],tmp[3]), valu('v_add_f32',tmp[3],OO[0][10],OO[1][10]), valu('v_add_f32',tmp[2],tmp[2],tmp[3])]
    chk=[valu('v_cmp_nle_f32','vcc',f32(2.0**-100),tmp[4]), raw('s_cbranch_vccnz L_fb','misc',['vcc']),
      valu('v_cmp_nge_f32','vcc',f32(2.0**126) if not OPT['forcefb'] else f32(-1.0),tmp[2]), raw('s_cbranch_vccnz L_fb','misc',['vcc']), label('L_fb_ret')]
    pool_=[V(128+4*n,4) for n in range(32)]+[A(212+4*n,4) for n in range(7)]+[A(72+4*n,4) for n in range(34)]
    frs=[]; rds=[]
    order=[0,1,4,5,8,9,12,13,16,2,3,6,7,10,11,14,15,17]
    for s in order:
        for q in range(5):
            f=pool_[len(frs)%len(pool_)]; frs.append(f)
            for u in range(2): rds.append(tr_read(f,u,wo_main[s],q) if q<4 else tr_read(f,u,wo_x[s>>2],s&3))
    red=[]
    for j in range(16):
        for q in range(5):
            d=DN[4*q:4*q+4]
            red.append(m4(d,SELA,PART[16*(q>>1)+j][2*(q&1):2*(q&1)+2] if q<4 else PARTX[j],0 if j==0 else d))
    red+=[m4(XF[4*q:4*q+4],SELA,XR[2*q:2*q+2],0) for q in range(5)]
    e(waitfor(vm=PART+PARTX+[XR,vR2]))
    ri=0
    test=lambda: [waitfor(lgall=True,lgforce=True), salu('s_cmp_eq_u32',sPV,0x44444444)]
    def warm(r=sPV,tracked=False):
        if not OPT['warm']: return []
        t=vT[0]; ld=bload(vPF,t,sWS,0,flags='sc1',tag='pf')
        return [valu('v_lshrrev_b32',t,vSH,r), valu('v_not_b32',t,t), valu('v_lshl_add_u32',t,t,31,vOP), ld if tracked else raw(ld.text)]
    g,c2,ir=tmp[8],tmp[9],tmp[10]
    late_=[valu('v_mul_f32',c2,f32(-1.4426950408889634),vR2), valu('v_rcp_f32',ir,vR2),
           valu('v_bfe_u32',g,vL,4,1), valu('v_mul_u32_u24',g,24,g), valu('v_add_u32',vXO,vXO,g)]
    for k,mm in enumerate(red):
        e(mm)
        if k in (OPT['pollat'],OPT['pollat2'],OPT['pollat3']): e(*poll())
        if fill:
            e(fill.pop(0))
            if not fill: e(*chk, waitfor(lgall=True,lgforce=OPT['warm']), *warm(tracked=True), *base_add(sBL,sWS,WS_OX))
            continue
        if k==OPT['hat']: e(waitfor(vmtags=['ost']), batomic(vINC,vF3,sWS,0)); stamp('flag'); continue
        if k>=80: e(late_.pop(0)); continue
        if k%4==3: e(waitfor(lg=frs[:max(0,ri//2-4)]))
        e(rds[ri]); ri+=1
    assert ri<=2*39
    stamp('ready')
    EX=[V(30+n) for n in range(13)]+[V(45+n) for n in range(5)]+[V(14),V(15)]
    fill=[]
    for f in (lambda r:valu('v_mul_f32',EX[r],c2,DN[r]), lambda r:valu('v_exp_f32',EX[r],EX[r]), lambda r:valu('v_fma_f32',EX[r],EX[r],ir,ir),
              lambda r:valu('v_rcp_f32',EX[r],EX[r]), lambda r:valu('v_mul_f32',DN[r],EX[r],DN[r])):
        fill+=[(0,[f(r)]) for r in range(20)]
    OF=[A(4*s,4) for s in range(18)]
    def gate(name,mask):
        one=bin(mask).count('1')==1
        t=lambda: [salu('s_bitcmp1_b32',sPV,mask.bit_length()-1)] if one else [salu('s_and_b32',sT1,sPV,mask), salu('s_cmp_eq_u32',sT1,mask)]
        y=[label(f'L_w{name}')]+(poll() if OPT['pfirst'] else [])+[label(f'L_wl{name}'), raw('s_waitcnt lgkmcnt(0)')]+t()+[raw(f's_cbranch_scc1 L_g{name}')]+poll()
        y+=[salu('s_addk_i32',sT0,-1), salu('s_cmp_gt_i32',sT0,0), raw(f's_cbranch_scc1 L_wl{name}'), raw(f's_branch L_g{name}')]
        if OPT['inl']: return t()+[raw(f's_cbranch_scc1 L_g{name}')]+y[:-1]+[label(f'L_g{name}')]
        HOT.extend(finalize(y,verbose=0))
        return t()+[raw(f's_cbranch_scc0 L_w{name}',glue=True), label(f'L_g{name}')]
    ge=gate('e',0x04040404)
    ol=[]
    for n,s in enumerate(order):
        if s<16: ol.append((gate(s,4<<(2*s)) if n>8 and s%2==0 else [], gload(OF[n],vOL,sOB[s>>2],(s&3)*2048-4096,flags='sc1')))
        else: ol+=[([],gload(OF[n][r],vOLX,sBL,(s-16)*512+r*128,flags='sc1')) for r in range(4)]
    e(salu('s_mov_b32',sT0,0x80000), *ge)
    stamp('ok')
    lg_=[int(x) for x in str(OPT['lgrp']).split(',')]; assert sum(lg_)==12
    for _ in range(lg_.pop(0)): e(ol.pop(0)[1])
    if OPT['rp']&1: e(*poll())
    while ri<OPT['wopre']:
        if ri%4==0: e(waitfor(lg=frs[:max(0,ri//2-4)]))
        e(rds[ri]); ri+=1
    nf=len(fill)
    while len(fill)>OPT['fillmm']:
        e(*fill.pop(0)[1])
        if (nf-len(fill)) in (36,64) and lg_:
            for _ in range(lg_.pop(0)): e(ol.pop(0)[1])
            if OPT['rp']&(4>>len(lg_)): e(*poll())
    assert not lg_
    stamp('seen')
    def epi(q):
        o=[valu('v_fmac_f32',XF[r],SA[r],DN[r],rmw=True) for r in range(4*q,4*q+4)]
        o+=[valu('v_cvt_pk_bf16_f32',tmp[2*q+d],XF[4*q+2*d],XF[4*q+2*d+1]) for d in range(2)]
        return o
    def put(b): return [swap('v_permlane16_swap_b32',tmp[b],tmp[b+2]), swap('v_permlane16_swap_b32',tmp[b+1],tmp[b+3]), bstore(tmp[b:b+4],vXO,sOUT,0,16*b,flags=OPT['ofl'])]
    k=0; nt=OPT['ntail']
    for s in range(18-nt):
        assert ri>=10*s+10
        e(waitfor(vm=[OF[s]],lg=frs[5*s:max(5*s+5,ri//2-3)]))
        for q in range(5):
            e(m16(SA[4*q:4*q+4],frs[k],OF[s],0 if s==0 else SA[4*q:4*q+4])); k+=1
            if q==0 and ol and s>=OPT['ldel'] and ol[0][0]:
                e(*ol[0][0])
                if OPT.get('mst'): stamp(f'g{s}')
                continue
            if q==0 and s in (9,12) and OPT.get('mst'): stamp(f's{s}')
            if q==1 and ol and s>=OPT['ldel']: e(ol.pop(0)[1]); continue
            if q==3 and str(s) in str(OPT['mpoll']): e(*poll())
            n=0
            while n<(1 if ri>=min(180,OPT['rlead']+int(k*OPT['rrate']/100)) else 2) and ri<len(rds) and ri//2-len(pool_)<k-1: e(rds[ri]); ri+=1; n+=1
            while n<2 and fill: e(*fill.pop(0)[1]); n+=1
    assert not fill and not ol and ri==len(rds),(ri,len(fill))
    ep=[]
    for z,q in enumerate((4,0,1,2,3)):
        for s in range(18-nt,18):
            e(waitfor(vm=[OF[s]],lg=[frs[5*s+q]]), m16(SA[4*q:4*q+4],frs[5*s+q],OF[s],SA[4*q:4*q+4])); k+=1
            n=0
            while ep and n<2 and ep[0][0]<=k:
                o=ep.pop(0)[1]; e(o); n+=1 if o.kind!='vst' else 2
        o=epi(q)+([bstore(tmp[8:10],vXOX,sOUT,0,flags=OPT['ofl'])] if q==4 else put(2*q-2) if q&1 else [])
        ep+=[(k+3,x) for x in o]
    stamp('mm done')
    for _,o in ep: e(o)

def main():
    build_ffn()
    ngaps,bars,free=plan()
    L=OPT['look']
    best=None
    for a0 in range(0,NB-14):
        fr=sorted((max(free[b] for b in range(a0+5*k,a0+5*k+5)),k) for k in range(3))
        key=(fr[0][0],fr[1][0])
        if best is None or key<best[0]: best=(key,a0,[k for _,k in fr])
    _,a0,order=best; WB=a0*4096
    print('attention window',best,'ngaps',ngaps,{k:groups[v].start for k,v in marks.items()})
    kv=[kv_item(s) for s in range(8)]
    for s,it in enumerate(kv): it.addr=(a0+5*order[s%3])*4096
    rest=sorted([b for b in range(NB) if not a0<=b<a0+15],key=lambda b:free[b])
    print('free',[free[b] for b in range(NB)])
    wo_main=[blk_item(('wo',s),vWO if s<16 else vWOE,sWO,36*s*1152 if s<16 else 72*(s-16)*1152) for s in range(18)]
    wo_x=[blk_item(('wx',n),vWX if n<4 else vWXE,sWO,144*n*1152 if n<4 else 0,buf=(n==4),c=320) for n in range(5)]
    for it,b in zip(wo_main+wo_x,rest): it.addr=b*4096
    FLAG_LDS[0]=rest[23]*4096

    def pst(name):
        if 'pst' in OPT: stamp(name,True)
    prologue(); pst('karg')
    pre0=[it for it in items if it.early==-3000]; pre1=[it for it in items if it.early==-2000]
    dq=[xdma(tt,l) for tt in range(2) for l in range(9)]+[it.mk(it) for it in pre0+pre1]
    for _ in range(OPT['x0n']): e(*dq.pop(0))
    pst('x0 issued')
    xr=[vM[0],vR[1]]; t,u=vT[2],vT[3]
    DT=[V(140+8*n,8) for n in range(3)]; CM=V(164,4); SUM=V(172,4); ONE4=V(176,4)
    prologue2()
    e(valu('v_and_b32',t,15,vL), valu('v_lshrrev_b32',u,1,t), valu('v_lshlrev_b32',t,7,t), valu('v_add_u32',t,sW18K,t),
      valu('v_lshrrev_b32',xr[0],4,vL), valu('v_xor_b32',xr[0],xr[0],u), valu('v_xor_b32',xr[1],4,xr[0]),
      valu('v_lshl_add_u32',xr[0],xr[0],4,t), valu('v_lshl_add_u32',xr[1],xr[1],4,t))
    for d in range(4): e(valu('v_mov_b32',ONE4[d],sONES))
    with collect() as ao:
        e(*sel_ops(t,u))
        addr_pf(); addr_early(); addr_qk()
        e(valu('v_mov_b32',vONE,1))
        if OPT['split']:
            e(valu('v_min_u32',vCA,1,vL), valu('v_mul_u32_u24',vCA,LDS_OOB-39*4096,vCA), valu('v_add_u32',vCA,39*4096,vCA), valu('v_mov_b32',t,4*len([b for b in bars if b>=SIG])), dsw('ds_write_b32',vCA,t))
    for _ in range(OPT['apre']): e(ao.pop(0))
    pst('pre')
    for _ in range(OPT['x1n']): e(*dq.pop(0))
    nx=len([o for o in dq if o[-1].meta['tag'][0]=='x'])
    if OPT['pf']:
        o=pf_gu(0)+(pf_gu(1) if OPT['pfn']>1 else [])+(pf_q() if OPT['pfn']>2 else [])
        k=nx+OPT['pfpos']
        if OPT['pfpos']<0: dq[k-1]=dq[k-1][:-1]+o+dq[k-1][-1:]
        else: dq.insert(k,o)
    e(raw('s_waitcnt lgkmcnt(0)','misc'))
    pst('addr')
    R0=[XC0[4*s_:4*s_+4] for s_ in range(18)]; X1=[XC1[4*s_:4*s_+4] for s_ in range(18)]
    def xread(tt,dst,l):
        return [waitfor(vmtags=[('x',tt,l)])]+[dsr('ds_read_b128',dst[s],xr[s&1],l*2048,src=(('x',tt,l),list(range(18*tt,18*tt+18))),private=True) for s in (2*l,2*l+1)]
    cq=[]; nm=[0]; nblk=[0]; pre_=[]
    def mm(m,extra=()):
        e(m); nm[0]+=1
        if pre_: e(pre_.pop(0))
        if extra: e(*extra); return
        k=0
        while cq and k<2 and cq[0][0]<=nm[0]-2: e(cq.pop(0)[1]); k+=1
        while ao and k<2: e(ao.pop(0)); k+=1
    def stats(tt,fr,l,nvm,lim=99):
        ms=[]
        for s_ in (2*l,2*l+1): ms+=[m16(SUM,ONE4,fr[s_],0 if s_==0 else SUM), m16(GR[tt],fr[s_],fr[s_],0 if s_==0 else GR[tt])]
        for h in range(2):
            o=[]
            if dq and h<nvm and nblk[0]<min(lim,OPT['nblk']):
                o=dq.pop(0)
                if o[-1].meta['tag'][0] not in 'xp': nblk[0]+=1
            mm(ms[2*h],[x for x in o if x.kind=='salu']); mm(ms[2*h+1],[x for x in o if x.kind!='salu'])
    nc=[0]
    def centre(src,dst,after=(),ex=((),())):
        d=DT[nc[0]%3]; nc[0]+=1
        while any(set(c.rd)&set(d.regs()) for _,c in cq): e(cq.pop(0)[1])
        for h in range(2):
            mm(m4(d[4*h:4*h+4],SELA,src[2*h:2*h+2],CM),ex[h])
            for z in range(2): cq.append((nm[0],valu('v_cvt_pk_bf16_f32',dst[2*h+z],d[4*h+2*z],d[4*h+2*z+1])))
        for x in after: cq.append((nm[0],x))
    def mean(tt):
        dst=vM[1] if tt else t
        e(valu('v_mul_f32',MEAN[tt],f32(1/576),SUM[0]), valu('v_cvt_pk_bf16_f32',dst,MEAN[tt],MEAN[tt]), valu('v_lshlrev_b32',dst,16,dst))
        for d in range(4): e(valu('v_xor_b32',CM[d],0x80000000,dst))
    for l in range(10):
        if l<9: e(*xread(0,R0,l))
        if l==0: e(*dq.pop(0))
        for _ in range(OPT['afill'] if l<9 else 999):
            if ao: e(ao.pop(0))
        if l>0:
            e(waitfor(lg=R0[2*l-2:2*l])); stats(0,R0,l-1,int(str(OPT.get('w1','x111111111'))[l]),len(pre0))
        if str(l) in str(OPT.get('tch','x0246')): e(*touch())
        if l==OPT['brl']: e(raw('s_branch L_main','misc'), I('.p2align 12','comment'), label('L_main'))
        pst(f'x0 rd {l}')
    stamp('x0 read')
    e(valu('v_add_u32',xr[0],73728,xr[0]), valu('v_add_u32',xr[1],73728,xr[1]))
    e(*xread(1,X1,0)); mean(0); pst('stat0')
    for l in range(9):
        for s_ in (2*l,2*l+1): centre(R0[s_],X0[s_],to_acc(s_) if s_>=NV0 else ())
        if l<8: e(*xread(1,X1,l+1))
        if l==OPT['barl']: e(barrier())
        e(waitfor(lg=X1[2*l:2*l+2])); stats(1,X1,l,int(str(OPT.get('w2','x111122222'))[l+1]),99 if l>=OPT['barl'] else len(pre0))
        pst(f'x1 rd {l}')
    while cq: e(cq.pop(0)[1])
    mean(1)
    reads=[f(it) for g in groups[:4] for it,f in g.rd][:L]; nb_=(L+1)//2+1
    n0=OPT['n0']
    for s_ in range(n0):
        ex=((),())
        if s_==n0-nb_: ex=((waitfor(vmtags=[it.name for it in items if it.bar==-L]), barrier()),()); stamp('x1 read'); pst('bar1')
        if s_>n0-nb_: pre_[:]=[reads.pop(0) for z in range(2) if reads]
        centre(X1[s_],X1[s_],ex=ex)
    assert not reads
    while cq: e(cq.pop(0)[1])
    e(waitfor(lg=groups[0].fr)); pst('go')
    for s_ in range(n0,18): push('ctr',0,centre_ops(X1[s_],1))
    for s_ in range(NV0): push('ctr',0,to_acc(s_))
    for o in dq: push('dma',-1,o)
    mx_=-1
    for it in items:
        mx_=max(mx_,it.early)
        if it.early>-2000: push('dma',it.early,it.mk(it),mx_)
    st=lambda k:groups[marks[k]].start
    def low(gap,f,*a):
        with collect() as o: f(*a)
        push('low',gap,o,gap)
    low(st('c0')+200,var_ops,0); low(st('c0')+200,var_ops,1)
    TCH=[(int(g_),touch()) for g_ in str(OPT['tat']).split(',') if int(g_)>=0]
    low(st('c1'),addr_mid); low(st('c1'),addr_mid2); low(st('qkv'),addr_pfd)
    low(st('c2')+200,addr_att,WB); low(st('c2')+200,addr_lds,WB)
    pt=[int(x) for x in OPT['pft'].split(',')]
    for k,(g_,o) in enumerate(zip(pt,[pf_gu(1) if OPT['pfn']<2 else [],pf_q() if OPT['pfn']<3 else [],pf_gu(2),pf_gu(3),pf_gu(4),pf_d(0),pf_d(1),pf_d(2)])):
        if o and (k==7 or pt[k+1]!=g_): o[-1].meta['cost']+=OPT['pfx']
        push('ld',g_,o,g_)
    low(st('c3'),pf_o)
    b1=[b for b in bars if b>st('c3')+60][0]
    bar_extra[b1]=['qkvst']
    ar=[salu('s_and_b32',sJH,S(2),1), salu('s_lshl_b32',sJH,sJH,7), salu('s_mov_b32',sJ128,1), salu('s_cmp_lg_u32',sW,0), raw('s_cbranch_scc1 L_arr','misc'),
        raw(f's_atomic_add {sJ128}, {sDBG[0:2]}, {sJH}','misc',sJ128.regs()+sJH.regs()), label('L_arr')]
    for x in ar[3:6]: x.meta['glue']=True
    for g_,o in sorted(TCH+[(b1,ar)],key=lambda z:z[0]): push('arr',g_,o,g_)
    ARR.append(ar[5])
    if OPT['stop']!='down':
        d0=st('down')
        att_setup(ngaps,kv,WB); bar_extra[bars[-1]]=[kv[0].name]
        low(b1,addr_z); low(b1,addr_fin); low(d0+400,addr_op); extra_zero(ngaps)
        ld=bload(vPOLL,vZ,sDBG,0,flags='sc1')
        push('ld',d0+OPT['f1poll'],[ld],d0+OPT['f1poll'])
        with collect() as o: qk_loads(WB)
        w_=waitfor(vm=[vPOLL]); w_.meta['lag']=(ld,100)
        push('ld',d0+OPT['f1poll'],[w_]+spin('f1',ld,128,40)+o,d0+OPT['f1poll'])
        for it in kv[:3]+(wo_main+wo_x)[:OPT['wob']]:
            early=max(free[b] for b in it.blks())
            assert early>d0+300
            if early<LATE: push('dma',early,it.mk(it),ngaps-1); it.pushed=True
    emit_backbone(bars,{groups[v].start:k for k,v in marks.items() if k in ('c0','qkv','down')})
    qs=[i.meta['at'] for i in P if i.meta.get('tag')=='qkvst']; assert len(qs)==12 and max(qs)<b1-SIG,(qs,b1)
    print('arrival at',ARR[0].meta['at'],'poll at',ld.meta['at'])
    stamp('down end')
    if OPT['stop']=='down':
        for nm in ('epi','st','low','dma'):
            for af,o in fifo[nm]: e(o)
    else:
        attention(ngaps,kv,WB,wo_main+wo_x)
        stamp('att end')
        final(ngaps+1000,wo_main,wo_x)
        fallback(kv,WB)
    finish()

def sizes(lines):
    import subprocess, re
    uniq=sorted(set(lines))
    src='.amdgcn_target "amdgcn-amd-amdhsa--gfx950"\n.text\nLX:\n'+'\n'.join(re.sub(r'L_codeend-L_pc-4','0x12345',re.sub(r'(s_branch|s_cbranch\w+) \w+',r'\1 0',u)) for u in uniq)+'\n'
    open('_sz.s','w').write(src)
    r=subprocess.run(['llvm-mc','-triple=amdgcn-amd-amdhsa','-mcpu=gfx950','-show-encoding','_sz.s'],capture_output=True,text=True)
    assert r.returncode==0,r.stderr[:2000]
    enc=re.findall(r'encoding: \[([^\]]*)\]',r.stdout)
    assert len(enc)==len(uniq),(len(enc),len(uniq))
    return {u:len(x.split(',')) for u,x in zip(uniq,enc)}
PGAT=[]
def page_stubs(out):
    sz=sizes([i.text for i in out if i.kind not in ('label','comment')])
    k0=[k for k,i in enumerate(out) if i.text=='L_main:'][0]
    print('entry part bytes',sum(sz.get(i.text,0) for i in out[:k0]))
    res=out[:k0+1]; off=0; pg=0; prev=None; forced=False
    npg=4*ntouch[0]
    for k in range(k0+1,len(out)):
        i=out[k]
        if pg<npg and off>=4096*pg and not (prev is not None and prev.meta.get('glue')):
            good=prev is not None and prev.kind=='mfma' and i.kind in ('dsr','valu','trans')
            if good or off-4096*pg>=40 or pg==0 or forced:
                res+=[label(f'L_pg{pg}'), raw(f's_cbranch_execz L_tr{pg//4}')]; off+=4; PGAT.append((pg,i.meta.get('at'))); pg+=1
        res.append(i); off+=sz.get(i.text,0)
        if i.text=='.p2align 12': off=-(-off//4096)*4096; forced=True; continue
        if i.kind not in ('label','comment'): prev=i
    print('main part bytes',off,'pages touched',pg,'of',-(-off//4096))
    print('page starts',PGAT)
    while pg<npg: OUT.extend([f'L_pg{pg}:',f's_branch L_tr{pg//4}']); pg+=1
    return res
def finish():
    cur[0]=10**7
    if OPT['stamps']:
        e(raw('s_waitcnt lgkmcnt(0)','misc'), waitfor(vmall=True))
        stamp('drained'); e(raw('s_waitcnt lgkmcnt(0)','misc'))
        n=nstamp[0]
        for k in range(max(0,n-7),n): e(raw(f'v_writelane_b32 v13, s{64+2*(k%7)}, {k}','misc'))
        if 'padto' in OPT:
            e(raw('s_nop 1','misc'), raw(f'v_readlane_b32 s46, v13, {OPT["padto"]}','misc'), raw('s_nop 3','misc'))
            e(salu('s_add_u32',sT0,sT0,10000), label('L_pad'), raw('s_memrealtime s[98:99]','misc'), raw('s_waitcnt lgkmcnt(0)','misc'), salu('s_sub_u32',sT1,S(98),sT0), salu('s_cmp_lt_i32',sT1,0), raw('s_cbranch_scc1 L_pad','misc'))
        else:
            e(salu('s_lshl_b32',sT0,S(2),2), salu('s_add_u32',sT0,sT0,sW), salu('s_lshl_b32',sT0,sT0,8), salu('s_add_u32',sT0,sT0,WS_STAMP))
            e(valu('v_lshlrev_b32',V(1),2,vL), bstore(vST,V(1),sWS,sT0))
    check_order(P)
    out=finalize(P,verbose=OPT['v'],name='main')
    out=page_stubs(out+[raw('s_endpgm'),I('.p2align 12','comment')]+HOT)
    hdr=open('recurrent_scan__mha_block__glu_gated_reglu__prompt.s.ref').read().split('; Override launch')[0]
    txt=hdr+'; @launch grid=(256,1,1) block=(256,1,1) lds=163840\n.amdgcn_target "amdgcn-amd-amdhsa--gfx950"\n.text\n'
    txt+=f'.globl {NAME}\n.p2align 12\n.p2align 8\n.type {NAME},@function\n{NAME}:\n'
    txt+='\n'.join(i.text for i in out)+'\n'+'\n'.join(OUT)+'\ns_endpgm\nL_codeend:\n'
    txt+=f'''.section .rodata,"a"
.p2align 6
.amdhsa_kernel {NAME}
  .amdhsa_next_free_vgpr 512
  .amdhsa_next_free_sgpr 102
  .amdhsa_accum_offset 256
  .amdhsa_group_segment_fixed_size 0
  .amdhsa_kernarg_size 80
  .amdhsa_user_sgpr_count 2
  .amdhsa_user_sgpr_kernarg_segment_ptr 1
  .amdhsa_system_sgpr_workgroup_id_x 1
  .amdhsa_float_denorm_mode_32 3
.end_amdhsa_kernel
'''
    open(sys.argv[1],'w').write(txt)
    print('bytes',len(txt))
main()
```

```python
import sys, struct, contextlib
from asmlib import *

OPT=dict(stop='', stamps=0, pf=1, dmagap=3, look=14, split=0, stper=1, qstper=1, xat=1, stgap=29, n0=14, v=1, forcefb=0, astgap=6, f2lag=10, f2poll=58, f2chk=64, ldgap=4, dbgout=0, lc1=36, lc2=64, vp=0, f2sl=2, pfe=0, aint='x', ke2=1, bint=4, apool=0, ap0=10, tatt=56, pfn=1, barl=4, brl=8, lgm=1, pfirst=0, rp=7, inl=0, pollat3=-1, mpoll='x', np2_=1, lgrp='6,3,3', ntail=3, ldel=0, warm=0, np2=1, xsh=9, gst_=4096, pfl='sc1', ffl='sc1', pevery=2, lookb=16, nlook=2, npc=2, pollat2=-1, frx=0, sprio=1, w3=1, snop=0, vmpat=0, hat=60, chk0=0, px=0, wcut='0,3,8,13,18,23,23,23', wob=23, ldmin=4, at0=200, tat=-1, flagat=60, pollat=10, forceredo=0, lp1=20, lp2=70, nol=10, fsh=2, npoll=2, psleep=1, wopre=100, fillmm=20, rlead=100, rrate=120, ofl='', apre=60, x1n=2, afill=16, tlb=0, pfpos=6, pft='100,190,280,700,800,1060,1110,1112', swp=1, pfx=300, chain=6, qch=4, c0ch=3, touch=1, x0n=3, nblk=14, f1poll=80, qstgap=24, back=80, pfc=1, bartr=0)
for a in sys.argv[2:]:
    k,v=a.split('='); OPT[k]=int(v) if v.lstrip('-').isdigit() else v
NAME='recurrent_scan__mha_block__glu_gated_reglu__prompt_kernel'

WS_QKV=0; SL=81920
WS_P=0x800000; WS_PX=0x2800000; WS_O=0x2C00000; WS_OX=0x2E00000; WS_F3=0x2E40000; WS_R2=0x2E60000; WS_F2=0x2E80000; WS_STAMP=0x2F00000
OOB=0x80000000
LDS_OOB=0x30000
def f32(x): return struct.unpack('<I',struct.pack('<f',x))[0]
QSCALE=18**-0.5*1.4426950408889634
MARGIN=float(OPT.get('margin',90))

sX,sWQ,sWO,sWG,sWU,sWD,sOUT,sDBG,sWS=[S(4+4*n,4) for n in range(9)]
sW,sW1K,sI,sJ,sH,sIDX,sT0,sT1,sSO,sSO2=[S(40+n) for n in range(10)]
sLO,sHI,sONES,sW7K,sW5K=[S(50+n) for n in range(5)]
sSC=[S(55),S(56),S(57)]
sW18K,sJ1,sXC,sM8,sT2,sT3=[S(58+n) for n in range(6)]
sJ128,sJH=S(3),S(94); sSO3=S(95); sXP,sXX=S(92),S(93); sF3,sPV,sPV2=S(79),S(78),S(53)
sBD,sBL,sPC=S(96,2),S(98,2),S(100,2)
nstamp=[0]
def stamp(name,fine=False):
    if not OPT['stamps']: return
    if OPT.get('few') and name not in ('start','c0','down','down end','att end','drained'): return
    if ('gst' in OPT or 'ast' in OPT or 'pst' in OPT) and not fine and name!='start': return
    n=nstamp[0]; nstamp[0]+=1
    assert n<64
    r=64+2*(n%7)
    if n>=7: e(raw(f'v_writelane_b32 v13, s{r}, {n-7}','misc'))
    e(raw(f'{"s_memrealtime" if OPT["stamps"]==1 else "s_memtime"} s[{r}:{r+1}]','misc'))
    print('stamp',n,name)

vL=V(0)
vT=[V(1+n) for n in range(8)]
vR=[V(9),V(10)]
vM=[V(11),V(12)]
vPF=A(255)
vST=V(13)
vGF,vGH,vDF,vDH=[V(14+n) for n in range(4)]
vTR=[[V(18+3*q+n) for n in range(3)] for q in range(4)]
vQK=[V(30+n) for n in range(7)]
vQM=[V(37+n) for n in range(3)]; vQE=[V(40+n) for n in range(3)]
vSM,vSE0,vSE1,vSCX=[V(43+n) for n in range(4)]
vPS,vPX=V(47),V(48)
vF1,vONE=V(49),V(50)
vPG,vF3,vPOLL=V(51),V(52),V(53)
vX=[V(168+n) for n in range(4)]
XC1=V(56,72)
BANK=[V(128,64),V(192,64)]
XC0=A(0,72); HH=A(72,72); FR=A(144,64)
vKM,vKE=V(30),V(31); vVA=[V(32+n) for n in range(4)]
vKV,vWO,vWOE,vWX,vWXE=[V(36+n) for n in range(5)]
vPL,vPLX,vOL,vOLX,vOS,vOSX=[V(41+n) for n in range(6)]
vIDX,vF3L=V(54),V(55)
vXO,vXOX,vR2,vZ=V(11),V(12),V(9),V(10)
QE=V(14,2)
QM=[A(0,4),A(4,4)]
OO=[V(128,16),V(144,16)]
sOB=[S(80+2*n,2) for n in range(4)]
KM=[A(40+4*n,4) for n in range(3)]; KE=[A(52,2),A(56,2),A(54,2),A(58,2)]; vKE1=V(16)
VV=[A(8,8),A(16,8)]
XR=A(240,10)
PART=[A(60+4*n,4) for n in range(32)]
PARTX=[A(188+2*n,2) for n in range(10)]+[A(24+2*n,2) for n in range(6)]
SBB=[V(192,32),V(224,32),V(160,32)]

P=[]
cur=[-10**6,0]
sink=[None]
def setseq(i,gap=None):
    if 'seq' not in i.meta:
        cur[1]+=1; i.meta['seq']=(cur[0] if gap is None else gap,cur[1])
    return i
def e(*x):
    for i in x:
        if sink[0] is not None: sink[0].append(i)
        else: P.append(setseq(i)); i.meta['at']=cur[0]
@contextlib.contextmanager
def collect():
    o=[]; old=sink[0]; sink[0]=o
    yield o
    sink[0]=old
ARR=[]
fifo=dict(arr=[],dma=[],st=[],ld=[],ctr=[],epi=[],low=[])
def push(q,after,ops,logical=None):
    for o in ops: fifo[q].append((after,setseq(o,logical)))
def note(*t):
    for x in t: e(I('; '+x,'comment'))
def masked(dst,val,cmpop,a,b,tmp):
    e(valu(cmpop,'vcc',a,b), valu('v_mov_b32',tmp,OOB), valu('v_cndmask_b32',dst,tmp,val))

def prologue():
    e(salu('s_cmp_ge_u32',S(2),256), raw('s_cbranch_scc0 L_go','misc'), raw('s_endpgm','misc'), label('L_go'))
    for srd,off in ((sX,0),(sWG,32),(sWU,40),(sWQ,8),(sWO,16),(sWD,48),(sOUT,56),(sDBG,64),(sWS,72)): e(raw(f's_load_dwordx2 {srd[0:2]}, s[0:1], {off}','misc'))
    stamp('start')
    e(valu('v_lshrrev_b32',vT[0],6,V(0)), valu('v_and_b32',vL,63,V(0)))
    e(salu('s_and_b32',sXC,S(2),7), salu('s_lshr_b32',sIDX,S(2),3))
    pf_code()
    e(valu('v_readfirstlane_b32',sW,vT[0]))
    lg=OPT['lgm']
    e(salu('s_lshr_b32',sM8,sIDX,2), salu('s_lshr_b32',sI,sIDX,lg+1), salu('s_lshl_b32',sI,sI,lg), salu('s_and_b32',sT2,sXC,(1<<lg)-1), salu('s_add_u32',sI,sI,sT2))
    e(salu('s_mul_i32',sW18K,sW,18432))
    vx0,vx1,row,t=vX[0],vX[1],vT[2],vT[3]
    e(salu('s_lshl_b32',sT2,sI,2), salu('s_add_u32',sT2,sT2,sW), salu('s_lshl_b32',sT2,sT2,5))
    e(valu('v_lshrrev_b32',row,3,vL), valu('v_lshrrev_b32',t,4,vL), valu('v_and_b32',vx0,7,vL), valu('v_xor_b32',vx0,vx0,t),
      valu('v_xor_b32',vx1,4,vx0), valu('v_add_u32',t,sT2,row), valu('v_mul_u32_u24',t,1152,t),
      valu('v_lshl_add_u32',vX[2],vx0,4,t), valu('v_lshl_add_u32',vX[3],vx1,4,t), valu('v_add_u32',vX[3],8*1152-1024,vX[3]),
      valu('v_add_u32',vx0,1920,vX[2]), valu('v_add_u32',vx1,1920,vX[3]))
    e(salu('s_lshr_b32',sJ,sXC,lg), salu('s_lshl_b32',sJ,sJ,lg+1), salu('s_and_b32',sT3,sIDX,(2<<lg)-1), salu('s_add_u32',sJ,sJ,sT3), salu('s_and_b32',sJ1,sJ,1))
    e(salu('s_mul_i32',sSO2,sJ1,18432*OPT['swp']))
    if OPT['px']:
        n=OPT['px']
        e(salu('s_mul_i32',sT0,sT2,1152), salu('s_and_b32',sT1,sJ,288//n-1), salu('s_mul_i32',sT1,sT1,n*128), salu('s_add_u32',sT0,sT0,sT1), valu('v_lshl_add_u32',vT[4],vL,7,sT0))
    e(raw('s_waitcnt lgkmcnt(0)','misc'))
    if OPT['px']:
        n=OPT['px']
        m=(1<<min(n,36))-1
        e(raw(f's_mov_b32 exec_lo, {hex(m&0xffffffff)}','salu'), raw(f's_mov_b32 exec_hi, {m>>32}','salu'), gload(vPF,vT[4],sX[0:2],tag='pf'))
        if n==72: e(valu('v_add_u32',vT[4],36*128,vT[4]), gload(vPF,vT[4],sX[0:2],tag='pf'))
        e(raw('s_mov_b64 exec, -1','salu'))
    e(salu('s_sub_u32',sBL[0],sX[0],1920), salu('s_subb_u32',sBL[1],sX[1],0), salu('s_add_u32',sBD[0],sBL[0],sSO2), salu('s_addc_u32',sBD[1],sBL[1],0))
def prologue2():
    if OPT['tlb']:
        e(salu('s_mov_b32',sT0,2<<20), salu('s_mov_b32',sT1,4<<20))
        for srd,n in ((sWG,3),(sWU,3),(sWQ,1),(sWD,3),(sWO,1),(sWS,1),(sOUT,2)):
            for k in range(n): e(raw(f's_load_dword s80, {srd[0:2]}, {["0",sT0,sT1][k]}','misc'))
    e(salu('s_sub_u32',sSO2,18432,sSO2), salu('s_add_u32',sBL[0],sBL[0],sSO2), salu('s_addc_u32',sBL[1],sBL[1],0))
    e(salu('s_mul_i32',sXP,sJ1,OPT['swp']<<18), salu('s_mul_i32',sXX,sJ1,OPT['swp']<<15))
    e(salu('s_lshl_b32',sH,sXC,2), salu('s_and_b32',sT3,sIDX,3), salu('s_add_u32',sH,sH,sT3))
    e(salu('s_lshl_b32',sW1K,sW,10), salu('s_mul_i32',sW7K,sW,7168), salu('s_mul_i32',sW5K,sW,5120))
    for srd,n in ((sX,2048*1152),(sWQ,576*3456),(sWO,576*1152),(sWG,576*9216),(sWU,576*9216),(sWD,4608*1152),(sOUT,2048*1152),(sDBG,256),(sWS,0x10000000)):
        e(salu('s_mov_b32',srd[2],n), salu('s_mov_b32',srd[3],0x20000))
    e(salu('s_mov_b32',sLO,0x3f80), salu('s_mov_b32',sHI,0x3f800000), salu('s_mov_b32',sONES,0x3f803f80))
def pf_lane(t):
    if not OPT['pfe']: return vL
    e(salu('s_and_b32',sT1,sXC,1), salu('s_xor_b32',sT1,sT1,OPT['pfe']-1), salu('s_lshl_b32',sT1,sT1,6), valu('v_add_u32',t,sT1,vL)); return t
def addr_pf():
    row,t=vT[2],vT[3]; z=2 if OPT['pfe'] else 1; si=sM8 if OPT['pfe'] else sI
    ln=pf_lane(vT[4])
    e(salu('s_lshl_b32',sJ128,sJ1,7), salu('s_lshl_b32',sJH,sJ1,9), salu('s_sub_u32',sJH,512,sJH))
    e(salu('s_lshl_b32',sT0,si,2), salu('s_add_u32',sT0,sT0,sW), salu('s_mul_i32',sT0,sT0,z*9*9216), salu('s_mul_i32',sT1,sJ,576), salu('s_and_b32',sT1,sT1,-128), salu('s_add_u32',sT0,sT0,sT1),
      valu('v_mul_u32_u24',t,9216,vL), valu('v_add_u32',t,sT0,t))
    masked(vPG,t,'v_cmp_gt_u32',z*9,ln,row)
    u=row
    e(valu('v_mul_u32_u24',t,7282//z,vL), valu('v_lshrrev_b32',t,16,t), valu('v_mul_u32_u24',u,z*9,t), valu('v_sub_u32',u,vL,u), valu('v_mul_u32_u24',u,3456,u), valu('v_lshl_add_u32',u,t,7,u),
      salu('s_lshl_b32',sT0,si,2), salu('s_add_u32',sT0,sT0,sW), salu('s_mul_i32',sT0,sT0,z*9*3456), salu('s_mul_i32',sT1,sJ,216), salu('s_and_b32',sT1,sT1,-128), salu('s_add_u32',sT0,sT0,sT1),
      valu('v_add_u32',u,sT0,u))
    masked(vPOLL,u,'v_cmp_gt_u32',z*27,ln,t)
def pf_gu(c):
    if not OPT['pf']: return []
    return [cost(bload(vPF,vPG,s,sJ128 if c<4 else sJH,c*128 if c<4 else 0,tag='pf'),90) for s in (sWG,sWU)]
def pf_q(): return [cost(bload(vPF,vPOLL,sWQ,0,tag='pf'),270)] if OPT['pf'] else []
def addr_pfd():
    t,u=vPOLL,vT[7]; z=2 if OPT['pfe'] else 1; si=sM8 if OPT['pfe'] else sI
    ln=pf_lane(vT[4])
    e(salu('s_lshl_b32',sT0,si,2), salu('s_add_u32',sT0,sT0,sW), salu('s_mul_i32',sT0,sT0,z*81*64), salu('s_and_b32',sT0,sT0,-128), salu('s_mul_i32',sT1,sJ,288*1152), salu('s_add_u32',sT0,sT0,sT1),
      valu('v_mul_u32_u24',t,384,vL), valu('v_add_u32',t,sT0,t))
    masked(vPOLL,t,'v_cmp_gt_u32',14*z,ln,u)
def pf_d(k): return [cost(bload(vPF,vPOLL,sWD,0,k*128,tag='pf'),140)] if OPT['pf'] else []
def pf_o():
    if not OPT['pf']: return
    t,u=vT[4],vT[5]
    e(salu('s_lshl_b32',sT0,S(2),2), salu('s_add_u32',sT0,sT0,sW), salu('s_mul_i32',sT0,sT0,6*128), valu('v_lshl_add_u32',t,vL,7,sT0))
    masked(t,t,'v_cmp_gt_u32',6,vL,u)
    e(cost(bload(vPF,t,sWO,0,tag='pf'),60))
def cost(i,c): i.meta['cost']=c; return i
def xdma(tt,l):
    base=sBD if tt==0 else sBL
    o=[salu('s_add_u32','m0',sW18K,tt*73728+l*1920)] if l%2==0 else []
    for z in range(2): o.append(gdma(vX[2*(l&1)+z],base,(l&~1)*128+(2*(l&1)+z)*1024,tag=('x',tt,l),private=True))
    return o
SELA=A(208,2)
def sel_ops(m,g):
    return [valu('v_and_b32',m,1,vL), valu('v_lshlrev_b32',m,4,m), valu('v_lshlrev_b32',m,m,sLO), valu('v_bfe_u32',g,vL,1,1), valu('v_mul_lo_u32',g,g,m), valu('v_sub_u32',m,m,g),
      valu('v_accvgpr_write_b32',SELA[0],m), valu('v_accvgpr_write_b32',SELA[1],g)]
ntouch=[0]
def touch():
    if not OPT['touch']: return []
    k=ntouch[0]; ntouch[0]+=1
    o=[raw('s_mov_b64 exec, 0','salu')]
    for w in range(3): o+=[salu('s_cmp_eq_u32',sW,w), raw(f's_cbranch_scc1 L_pg{4*k+w}','misc')]
    o+=[raw(f's_branch L_pg{4*k+3}','misc'), label(f'L_tr{k}'), raw('s_mov_b64 exec, -1','salu')]
    for x in o[:-1]: x.meta['glue']=True
    return o

def lane_rp(rp,p,t):
    e(valu('v_lshrrev_b32',rp,3,vL), valu('v_and_b32',t,6,rp), valu('v_and_b32',p,7,vL), valu('v_xor_b32',p,p,t))
def addr_early():
    rp,p,t,u,kA=vT[2],vT[3],vT[4],vT[5],vT[6]
    lane_rp(rp,p,t)
    e(salu('s_and_b32',sT0,sW,1), salu('s_lshl_b32',sT0,sT0,4), salu('s_lshr_b32',sT1,sW,1), salu('s_lshl_b32',sT1,sT1,2), salu('s_add_u32',sT0,sT0,sT1))
    e(valu('v_and_b32',t,4,rp), valu('v_add_u32',kA,rp,t), valu('v_add_u32',kA,sT0,kA))
    e(salu('s_mul_i32',sT1,sJ,288), salu('s_lshl_b32',sT2,sJ1,5), salu('s_add_u32',sT2,sT2,sT1))
    e(salu('s_lshl_b32',sT3,sJ1,8), salu('s_sub_u32',sT3,256,sT3), salu('s_add_u32',sT3,sT3,sT1))
    e(salu('s_lshl_b32',sT0,sT2,1), valu('v_mul_u32_u24',t,9216,kA), valu('v_lshl_add_u32',t,p,4,t), valu('v_add_u32',vGF,sT0,t))
    e(salu('s_lshl_b32',sT0,sT3,1), valu('v_lshrrev_b32',t,2,p), valu('v_lshl_add_u32',t,t,5,kA), valu('v_mul_u32_u24',t,9216,t),
      valu('v_and_b32',u,3,p), valu('v_lshl_add_u32',t,u,4,t), valu('v_add_u32',vGH,sT0,t))
    e(salu('s_lshl_b32',sT0,sW,3), valu('v_add_u32',t,sT0,rp), valu('v_add_u32',u,sT2,t), valu('v_mul_u32_u24',u,1152,u), valu('v_lshl_add_u32',vDF,p,4,u),
      valu('v_add_u32',u,sT3,t), valu('v_mul_u32_u24',u,1152,u), valu('v_lshl_add_u32',vDH,p,4,u))
    g,r4,c,b=vT[2],vT[3],vT[6],vT[7]
    e(valu('v_bfe_u32',r4,vL,2,3), valu('v_and_b32',c,3,vL), valu('v_lshrrev_b32',g,5,vL),
      valu('v_lshlrev_b32',b,10,g), valu('v_lshl_add_u32',b,r4,7,b), valu('v_lshl_add_u32',b,c,3,b), valu('v_lshrrev_b32',t,1,r4))
    for q in range(4):
        e(valu('v_xor_b32',u,q,t), valu('v_lshl_add_u32',vTR[q][0],u,5,b), valu('v_add_u32',vTR[q][1],0x10000,vTR[q][0]), valu('v_add_u32',vTR[q][2],0x20000,vTR[q][0]))
def addr_qk():
    t=vT[4]
    e(salu('s_mul_i32',sT0,sJ,216), salu('s_and_b32',sT0,sT0,-16), salu('s_mul_i32',sT1,sW,32*3456), salu('s_add_u32',sT0,sT0,sT1))
    for q in range(7):
        pp,rr,k=vT[2],vT[3],vT[6]
        e(valu('v_add_u32',pp,64*q,vL), valu('v_mul_u32_u24',rr,4682,pp), valu('v_lshrrev_b32',rr,16,rr),
          valu('v_mul_u32_u24',t,14,rr), valu('v_sub_u32',pp,pp,t),
          valu('v_and_b32',t,12,rr), valu('v_and_b32',k,3,rr), valu('v_lshl_add_u32',k,t,1,k), valu('v_lshrrev_b32',t,4,rr), valu('v_lshl_add_u32',k,t,2,k),
          valu('v_mul_u32_u24',k,3456,k), valu('v_lshl_add_u32',k,pp,4,k), valu('v_add_u32',vQK[q],sT0,k))
        if q%4: e(valu('v_subrev_u32',vQK[q],1024*(q%4),vQK[q]))
def extpos(dst,key,t):
    e(valu('v_and_b32',dst,7,key), valu('v_bfe_u32',t,key,4,1), valu('v_lshl_add_u32',dst,t,3,dst),
      valu('v_bfe_u32',t,key,3,1), valu('v_xor_b32',t,1,t), valu('v_lshl_add_u32',dst,t,4,dst))
def addr_mid():
    t,u,c=vT[4],vT[5],vT[6]
    e(valu('v_and_b32',c,3,vL), salu('s_lshl_b32',sT0,sJ1,3), valu('v_lshrrev_b32',t,2,vL), valu('v_mul_u32_u24',t,224,t), valu('v_add_u32',t,sT0,t),
      valu('v_lshl_add_u32',vQM[0],c,3,t), valu('v_mul_u32_u24',u,72,c), valu('v_add3_u32',vQE[0],t,u,32))
    for n in (1,2): e(valu('v_add_u32',vQM[n],n*0x10000,vQM[0]), valu('v_add_u32',vQE[n],n*0x10000,vQE[0]))
def addr_mid2():
    t,u,key,hf=vT[4],vT[5],vT[2],vT[3]
    e(salu('s_lshl_b32',sT0,sI,2), salu('s_add_u32',sT0,sT0,sW), salu('s_mul_i32',sT0,sT0,1280), salu('s_mul_i32',sT1,sJ,6*SL), salu('s_add_u32',sT0,sT0,sT1))
    e(salu('s_lshr_b32',sT1,sXX,11), valu('v_xor_b32',u,sT1,vL), valu('v_and_b32',key,31,u), valu('v_lshrrev_b32',hf,5,vL), valu('v_lshlrev_b32',t,2,hf), valu('v_xor_b32',t,t,u), valu('v_lshlrev_b32',t,4,t), valu('v_add_u32',vSM,sT0,t))
    extpos(u,key,t)
    e(valu('v_lshlrev_b32',u,3,u), valu('v_add_u32',u,sT0,u), valu('v_add_u32',u,1024,u), valu('v_mul_u32_u24',t,4*SL,hf), valu('v_add_u32',vSE0,u,t),
      valu('v_lshl_add_u32',vSE1,hf,31,u))
    e(salu('s_mul_i32',sT0,sJ,6), valu('v_lshrrev_b32',t,4,vL), valu('v_lshl_add_u32',t,t,1,sT0), valu('v_mov_b32',u,f32(QSCALE)), valu('v_cmp_gt_u32','vcc',32,t), valu('v_cndmask_b32',vSCX,1.0,u))
    for p_ in range(3): e(valu('v_readlane_b32',sSC[p_],vSCX,16*p_))
    e(salu('s_lshl_b32',sT0,sI,2), salu('s_add_u32',sT0,sT0,sW), salu('s_lshl_b32',sT1,sT0,9), salu('s_add_u32',sT1,sT1,sJ), salu('s_lshl_b32',sT1,sT1,10),
      valu('v_lshl_add_u32',vPS,vL,4,sT1),
      salu('s_lshl_b32',sT1,sT0,7), salu('s_add_u32',sT1,sT1,sJ), salu('s_lshl_b32',sT1,sT1,9), valu('v_lshl_add_u32',vPX,vL,3,sT1))
    e(salu('s_lshl_b32',sT1,sT0,11), salu('s_add_u32',sT1,sT1,WS_F2), valu('v_lshl_add_u32',t,vL,9,sT1), salu('s_and_b32',sT3,sJ,3), salu('s_lshl_b32',sT3,sT3,9), salu('s_add_u32',sT3,sT3,sT1))
    masked(vF1,t,'v_cmp_gt_u32',4,vL,u)
    e(salu('s_lshl_b32',sT1,sM8,2), salu('s_add_u32',sT1,sT1,sW), salu('s_lshl_b32',sT1,sT1,12), salu('s_add_u32',sT1,sT1,WS_F3), valu('v_lshl_add_u32',t,vL,9,sT1))
    masked(vF3,t,'v_cmp_gt_u32',8,vL,u)
    e(salu('s_lshl_b32',sT1,sXC,2), salu('s_lshr_b32',sT2,sIDX,3), salu('s_add_u32',sT1,sT1,sT2), salu('s_lshl_b32',sT1,sT1,1), salu('s_and_b32',sT2,sIDX,1), salu('s_add_u32',sT1,sT1,sT2),
      salu('s_lshl_b32',sT1,sT1,2), salu('s_add_u32',sT1,sT1,sW), salu('s_lshl_b32',sT1,sT1,9), salu('s_add_u32',sF3,sT1,WS_F3))
    e(raw(f'v_writelane_b32 {u}, {sT3}, 0','valu',u.regs()+sT3.regs(),u.regs()), raw(f'v_writelane_b32 {u}, {sF3}, 1','valu',u.regs()+sF3.regs(),u.regs()),
      valu('v_sub_u32',t,1,vL), valu('v_lshlrev_b32',t,4,t), cost(bstore(t,u,sWS,0,flags='sc1',tag='qkvst'),30))
    e(valu('v_and_b32',key,16,vL), valu('v_cmp_eq_u32','vcc',0,key), valu('v_cndmask_b32',hf,vR[1],vR[0]), valu('v_mul_f32',hf,hf,hf),
      salu('s_lshl_b32',sT0,sT0,7), salu('s_add_u32',sT0,sT0,WS_R2), valu('v_lshl_add_u32',key,vL,2,sT0), salu('s_lshl_b32',sT1,sJ,6), valu('v_add_u32',t,sT1,vL))
    masked(key,key,'v_cmp_gt_u32',32,t,u)
    e(bstore(hf,key,sWS,0,flags='sc1',tag='qkvst'))
def pf_code():
    if not OPT['pfc']: return
    t=vT[4]; a=V(6,2)
    e(raw('s_getpc_b64 s[100:101]','salu',[],['s100','s101']), label('L_pc'),
      salu('s_lshl_b32',sT0,sIDX,2), valu('v_add_u32',t,sT0,vT[0]), valu('v_lshl_add_u32',t,vL,7,t), valu('v_lshlrev_b32',t,7,t),
      raw(f'v_min_u32 {t}, L_codeend-L_pc-4, {t}','valu',t.regs(),t.regs()),
      raw(f'v_add_co_u32 {a[0]}, vcc, {sPC[0]}, {t}','valu',t.regs()+['s100'],a[0].regs()+['vcc']), valu('v_mov_b32',a[1],sPC[1]), raw('s_mov_b64 exec, 63','salu'),
      raw(f'v_addc_co_u32 {a[1]}, vcc, 0, {a[1]}, vcc','valu',a[1].regs()+['vcc'],a[1].regs()+['vcc']),
      I(f'global_load_dword {vPF}, {a}, off','vld',a.regs(),vPF.regs(),tag='pf'), raw('s_mov_b64 exec, -1','salu'))

GR=[V(38,4),V(42,4)]; MEAN=[V(46),V(47)]
def var_ops(tt):
    d=GR[tt]; t=vT[4]; b=d[0]
    e(valu('v_and_b32',t,1,vL), valu('v_cmp_eq_u32','vcc',0,t), valu('v_and_b32',t,2,vL), valu('v_cndmask_b32',d[0],d[1],d[0]), valu('v_cndmask_b32',d[2],d[3],d[2]),
      valu('v_cmp_eq_u32','vcc',0,t), valu('v_bfe_u32',t,vL,2,2), valu('v_cndmask_b32',d[0],d[2],d[0]), valu('v_lshrrev_b32',d[1],4,vL), valu('v_cmp_eq_u32','vcc',t,d[1]),
      valu('v_cndmask_b32',b,0,b))
    for op in ('v_permlane16_swap_b32','v_permlane32_swap_b32'): e(valu('v_mov_b32',d[1],b), swap(op,b,d[1]), valu('v_add_f32',b,b,d[1]))
    e(valu('v_mul_f32',b,f32(1/576),b), valu('v_fma_f32',b,'-'+str(MEAN[tt]),MEAN[tt],b), valu('v_max_f32',b,0,b), valu('v_cvt_pk_bf16_f32',b,b,b), valu('v_lshlrev_b32',b,16,b),
      valu('v_add_f32',b,f32(1e-5),b), valu('v_cvt_pk_bf16_f32',b,b,b), valu('v_lshlrev_b32',b,16,b),
      valu('v_sqrt_f32',b,b), valu('v_cvt_pk_bf16_f32',b,b,b), valu('v_lshlrev_b32',b,16,b), valu('v_rcp_f32',vR[tt],b))
def centre_ops(f,tt):
    o=[]; t=V(252)
    for d in range(4):
        x=f[d]
        o+=[valu('v_lshlrev_b32',t,16,x), valu('v_and_b32',x,0xffff0000,x), valu('v_sub_f32',t,t,vM[tt]), valu('v_sub_f32',x,x,vM[tt]), valu('v_cvt_pk_bf16_f32',x,t,x)]
    return o
def to_acc(s): return [valu('v_accvgpr_write_b32',XC0[4*s+d],X0[s][d]) for d in range(4)]

class Item:
    def __init__(s,name,n,mk): s.name=name; s.n=n; s.mk=mk; s.addr=None; s.first=None; s.last=None; s.pushed=False
    def blks(s): return list(range(s.addr//4096,s.addr//4096+s.n))
def blk_item(name,voff,srd,soff,buf=False,c=80):
    def mk(it):
        o=[salu('s_add_u32','m0',sW1K,it.addr)]
        if buf: return o+[salu('s_mov_b32',sSO,soff), cost(dma(voff,srd,sSO,tag=it.name,dst=it.blks()),c)]
        return o+base_add(sBD,srd,soff)+[cost(gdma(voff,sBD,tag=it.name,dst=it.blks()),c)]
    return Item(name,1,mk)
def qkv_item(a):
    def mk(it):
        o=[salu('s_mov_b32',sSO,a*128*3456)] if a==4 else base_add(sBD,sWQ,a*128*3456)
        for q in range(7):
            if q%4==0: o.append(salu('s_add_u32','m0',sW7K,it.addr+q*1024))
            if a==4: o.append(dma(vQK[q],sWQ,sSO,(q%4)*1024,tag=it.name,dst=it.blks()))
            else: o.append(cost(gdma(vQK[q],sBD,(q%4)*1024,tag=it.name,dst=it.blks()),120))
        return o
    return Item(('q',a),7,mk)
def kv_item(sg):
    def mk(it):
        o=[]
        for q in range(5):
            if q%4==0: o+=[salu('s_add_u32','m0',sW5K,it.addr+q*1024)]+base_add(sBD,sWS,WS_QKV+sg*10240+q*1024)
            o.append(gdma(vKV,sBD,(q%4)*1024,flags='sc1',tag=it.name,dst=it.blks())); o[-1].rd.append('ok_f1')
        return o
    return Item(('kv',sg),5,mk)

class Group:
    def __init__(s): s.m=[]; s.rd=[]; s.bar=False; s.fr=[]
frp=[0]
def newfrag():
    pl=[FR[4*n:4*n+4] for n in range(16)]+[A(216+4*n,4) for n in range(OPT['frx'])]
    f=pl[frp[0]]; frp[0]=(frp[0]+1)%len(pl); return f
def tr_read(f,u,it,seg):
    return dsr('ds_read_b64_tr_b16',f[2*u:2*u+2],vTR[seg][it.addr>>16],(it.addr&0xffff)+u*2048,src=(it.name,it.blks()))
def xc(tt,s): return (XC0 if tt==0 else XC1)[4*s:4*s+4]
def hfrag(k,tt): return HH[8*k+4*tt:8*k+4*tt+4]

items=[]; groups=[]; events=[]
def mm_group(srcs,accs,bfun,bar=False):
    g=Group(); g.bar=bar
    for it,seg,k in srcs:
        f=newfrag(); g.fr.append(f)
        for u in range(2): g.rd.append((it,lambda it,f=f,u=u,seg=seg: tr_read(f,u,it,seg)))
    for tt in range(2):
        for (it,seg,k),f in zip(srcs,g.fr):
            g.m.append(m16(accs[tt],f,bfun(k,tt),0 if k==0 else accs[tt]))
    groups.append(g); return len(groups)-1

def h_epilogue(bank,q,kout,half):
    gt=[bank[16*q+4*tt:16*q+4*tt+4] for tt in range(2)]; up=[bank[16*q+8+4*tt:16*q+12+4*tt] for tt in range(2)]
    o=[]
    for tt in range(2):
        for r in range(4): o.append(valu('v_max_f32',gt[tt][r],0,gt[tt][r]))
    for tt in range(2):
        for r in range(4): o.append(valu('v_mul_f32',up[tt][r],gt[tt][r],up[tt][r]))
        for d in range(2): o.append(valu('v_cvt_pk_bf16_f32',gt[tt][d],up[tt][2*d],up[tt][2*d+1]))
        for d in range(2): o.append(valu('v_accvgpr_write_b32',hfrag(kout,tt)[2*half+d],gt[tt][d]))
    return o
NV0=15
X0=[V(192+4*s,4) for s in range(NV0)]+[V(128+4*s,4) for s in range(18-NV0)]
def build_chunk(c,bank):
    xf=lambda k,tt: X0[k] if (c==0 and tt==0 and k<NV0) else xc(tt,k)
    cuts=list(range(0,19,OPT['chain']))
    if c==0: cuts=list(range(0,19,3)) if OPT['c0ch']==3 else [0,3,6,12,15,18]
    for st,(k0,k1) in enumerate(zip(cuts,cuts[1:])):
        G=[blk_item(('g',c,k),vGF,sWG,k*32*9216+c*128) for k in range(k0,k1)]
        U=[blk_item(('u',c,k),vGF,sWU,k*32*9216+c*128) for k in range(k0,k1)]
        items.extend(G+U)
        for q in range(4):
            mm_group([(G[k-k0],q,k) for k in range(k0,k1)],[bank[16*q+4*tt:16*q+4*tt+4] for tt in range(2)],xf,bar=(q==0))
        for q in range(4):
            gi=mm_group([(U[k-k0],q,k) for k in range(k0,k1)],[bank[16*q+8+4*tt:16*q+12+4*tt] for tt in range(2)],xf,bar=(q==0 and ((k1-k0>3 and str(c) not in str(OPT['aint'])) or OPT['bartr'] or (c==0 and st<OPT.get('bar0',2)))))
            if k1==18: events.append((gi,h_epilogue(bank,q,2*c+(q>>1),q&1)))
def build_half(bank):
    for st in range(3):
        G=[blk_item(('gh',3*st+n),vGH,sWG,(3*st+n)*64*9216,c=150) for n in range(3)]
        U=[blk_item(('uh',3*st+n),vGH,sWU,(3*st+n)*64*9216,c=150) for n in range(3)]
        items.extend(G+U)
        seq=[(G,0,0),(G,0,1),(U,8,0),(U,8,1)] if st<2 else [(G,0,0),(U,8,0),(G,0,1),(U,8,1)]
        for z,(M,o,q) in enumerate(seq):
            ch=min(6,OPT['chain'])
            for hh in range(6//ch):
                ks=[6*st+ch*hh+n for n in range(ch)]
                gi=mm_group([(M[(k-6*st)>>1],2*(k&1)+q,k) for k in ks],[bank[16*q+o+4*tt:16*q+o+4+4*tt] for tt in range(2)],lambda k,tt:xc(tt,k),bar=(hh==0 and (z==0 or (z==2 and st<2 and OPT['bartr']))))
            if st==2 and o==8: events.append((gi,h_epilogue(bank,q,8,q)))
def build_qkv(bank):
    for a in range(5):
        it=qkv_item(a); items.append(it)
        first=True
        qc=OPT['qch'] if a<4 else 2
        for k0 in range(0,4 if a<4 else 2,qc):
            for t in range(7):
                g=Group(); g.bar=first; first=False
                for kk in range(k0,k0+qc):
                    f=newfrag(); g.fr.append(f)
                    for u in range(2):
                        def rd(it,f=f,u=u,kk=kk,t=t):
                            ad=it.addr+kk*7168+u*3584+(0 if t==6 else 72*(t>>1)+40*(t&1))
                            return dsr('ds_read_b64_tr_b16',f[2*u:2*u+2],(vQE if t==6 else vQM)[ad>>16],ad&0xffff,src=(it.name,it.blks()))
                        g.rd.append((it,rd))
                for tt in range(2):
                    acc=bank[8*t+4*tt:8*t+4*tt+4]
                    for n,kk in enumerate(range(k0,k0+qc)):
                        k=4*a+kk
                        g.m.append(m16(acc,g.fr[n],xc(tt,k),0 if k==0 else acc))
                groups.append(g)
                if a==4: events.append((len(groups)-1,qkv_epilogue(bank,t)))
def st_pair(o,data,voff,soff,tag,x=None):
    a=salu('s_mov_b32',sSO2,soff) if x is None else salu('s_xor_b32',sSO2,x,soff); b=bstore(data,voff,sWS,sSO2,flags='sc1',tag=tag)
    dep=[x for x in o if x.kind=='valu'][-1]
    a.meta['q']='st'; b.meta['q']='st'; b.meta['dep']=dep
    o+=[a,b]
def qkv_epilogue(bank,t):
    o=[]
    sc=[bank[56],bank[57]]
    if t==6: o+=[valu('v_mul_f32',sc[tt],vSCX,vR[tt]) for tt in range(2)]
    elif t%2==0: o+=[valu('v_mul_f32',sc[tt],sSC[t>>1],vR[tt]) for tt in range(2)]
    a=bank[8*t:8*t+8]
    for tt in range(2):
        for r in range(4): o.append(valu('v_mul_f32',a[4*tt+r],sc[tt],a[4*tt+r]))
    if t<6:
        o+=[valu('v_cvt_pk_bf16_f32',a[0],a[0],a[1]), valu('v_cvt_pk_bf16_f32',a[1],a[2],a[3]), valu('v_cvt_pk_bf16_f32',a[2],a[4],a[5]), valu('v_cvt_pk_bf16_f32',a[3],a[6],a[7]),
            swap('v_permlane16_swap_b32',a[0],a[2]), swap('v_permlane16_swap_b32',a[1],a[3])]
        st_pair(o,a[0:4],vSM,WS_QKV+t*SL,'qkvst')
    else:
        o+=[valu('v_cvt_pk_bf16_f32',a[0],a[0],a[1]), valu('v_cvt_pk_bf16_f32',a[2],a[2],a[3]), valu('v_cvt_pk_bf16_f32',a[4],a[4],a[5]), valu('v_cvt_pk_bf16_f32',a[6],a[6],a[7])]
        o+=[valu('v_mov_b32',a[n],sONES) for n in (1,3,5,7)]
        o+=[swap('v_permlane16_swap_b32',a[0],a[4]), swap('v_permlane16_swap_b32',a[2],a[6])]
        for n,(vo,sl) in enumerate(((vSE0,0),(vSE0,1),(vSE1,2),(vSE1,3))):
            st_pair(o,a[2*n:2*n+2],vo,WS_QKV+sl*SL,'qkvst')
    return o
pool=[0]
def build_down():
    ntr=0
    if OPT['chain']==3: seq=[(c,3*tr,3*tr+3) for c,tr in [(0,0),(0,1),(1,0),(1,1),(0,2),(1,2)]+[(c,tr) for c in range(2,9) for tr in range(3)]]
    else:
        seq=[(0,0,6),(1,0,6),(0,6,9),(1,6,9)]
        for c in range(2,9): seq+=[(c,0,9)] if OPT['chain']==9 and c<8 else ([(c,0,6),(c,6,9)] if c%2==0 else [(c,0,3),(c,3,9)])
    for c,k0,k1 in seq:
        acc=V(192 if c==0 else 128+32*((c+1)%2),32)
        tr=2 if k1==9 else 0
        if True:
            B=[blk_item(('d',c,k),vDF if k<8 else vDH,sWD,(k*32*1152 if k<8 else 0)+c*128) for k in range(k0,k1)]
            items.extend(B)
            for q in range(4):
                gi=mm_group([(B[k-k0],q,k) for k in range(k0,k1)],[acc[16*tt+4*q:16*tt+4*q+4] for tt in range(2)],hfrag,bar=(q==0 and (ntr%OPT['bint']==0 or ntr==26 or k1-k0==9 or OPT['bartr'])))
                if tr==2 and q%2==1:
                    o=[]
                    for tt in range(2):
                        a=acc[16*tt+4*(q-1):16*tt+4*(q-1)+8]
                        pl=[XC1[4*n:4*n+4] for n in range(18)]; pa=([A(212+4*n,4) for n in range(7)]+[A(24+4*n,4) for n in range(4)]+[A(60+4*n,4) for n in range(3)])[:OPT['apool']]
                        n=pool[0]; pool[0]+=1; a0_=OPT['ap0']
                        if a0_<=n<a0_+len(pa):
                            d4=pa[n-a0_]
                            o+=[valu('v_cvt_pk_bf16_f32',a[d],a[2*d],a[2*d+1]) for d in range(4)]+[valu('v_accvgpr_write_b32',d4[d],a[d]) for d in range(4)]
                        else:
                            d4=pl[(n if n<a0_ else n-len(pa))%18]
                            o+=[valu('v_cvt_pk_bf16_f32',d4[d],a[2*d],a[2*d+1]) for d in range(4)]
                        if c<8: st_pair(o,d4,vPS,WS_P+(tt*16+c*2+(q>>1))*16384,'pst',sXP)
                        else:
                            for z in range(2): st_pair(o,d4[2*z:2*z+2],vPX,WS_PX+(tt*4+q-1+z)*8192,'pst',sXX)
                    events.append((gi,o))
            ntr+=(k1-k0)//3

marks={}
def build_ffn():
    marks['c0']=len(groups); build_chunk(0,BANK[0])
    marks['c1']=len(groups); build_chunk(1,BANK[1])
    marks['qkv']=len(groups); build_qkv(BANK[0])
    marks['c2']=len(groups); build_chunk(2,BANK[1])
    marks['c3']=len(groups); build_chunk(3,BANK[0])
    marks['half']=len(groups); build_half(V(224,32))
    marks['down']=len(groups); build_down()

NB=39 if OPT['split'] else 40; LATE=10**9
SIG=13 if OPT['split'] else 1
vCA,vCV=V(54),vT[7]
def plan():
    L=OPT['look']
    n=0; bars=[]
    for g in groups:
        g.start=n
        if g.bar: bars.append(n-L)
        for k,(it,_) in enumerate(g.rd):
            if it.first is None: it.first=n+k-L
            it.last=n-1+(0 if len(g.fr)<=3 else ((k//4)*2 if not OPT['w3'] else (k//6)*3))
        n+=len(g.m)
    free={b:(-3000 if b>=36 else (-2000 if b<18 else -L)) for b in range(NB)}
    ptr=36
    for it in items:
        if ptr+it.n>NB: ptr=0
        it.addr=ptr*4096
        it.early=max(free[b] for b in it.blks())
        assert it.early<LATE
        it.bar=max(b for b in bars if b<=it.first)
        nxt=[b for b in bars if b-SIG>=it.last]
        for b in it.blks(): free[b]=nxt[0] if nxt else LATE
        ptr=(ptr+it.n)%NB
    return n,bars,free

VM=('dma','vld','vst')
SC=('salu','waitfor','misc','label')
lastvm=dict(any=-100,st=-100)
def head(nm,gap):
    q=fifo[nm]
    if not q or q[0][0]>gap: return None
    x=q[0][1]
    if 'lag' in x.meta and x.meta['lag'][0].meta.get('at',LATE)+x.meta['lag'][1]>gap: return None
    sq=x.meta['seq']; rd=set(x.rd)-{'carry'}; wr=set(x.wr)-{'carry'}
    for n2,q2 in fifo.items():
        if n2==nm: continue
        for _,y in q2:
            if y.meta['seq']>sq: break
            if rd&set(y.wr) or wr&set(y.rd) or wr&set(y.wr): return None
    return x
pipe=[0,16]
def vm_ready(gap,mingap,stgap,order=('st','ld','low','dma')):
    if gap-lastvm['any']<mingap: return None
    if pipe[0]-gap*pipe[1]>OPT['back']: return None
    for nm in order:
        x=head(nm,gap)
        if x is None or x.kind not in VM: continue
        if nm=='st':
            d=x.meta.get('dep')
            if gap-lastvm['st']<stgap or (d is not None and d.meta.get('at',LATE)>gap-2): continue
        return nm
    return None
def take(nm,gap):
    x=fifo[nm].pop(0)[1]
    if x.kind in VM:
        lastvm['any']=gap
        pipe[0]=max(pipe[0],gap*pipe[1])+x.meta.get('cost',80)
        if nm=='st': lastvm['st']=gap
    e(x)
    nx=[y for _,y in fifo[nm][:6] if 'vcc' in y.rd or 'vcc' in y.wr]
    if nx and 'vcc' in nx[0].rd: vcc_open[0]=nm
    elif vcc_open[0]==nm: vcc_open[0]=None
    while x.meta.get('glue'):
        x=fifo[nm].pop(0)[1]; e(x)
    return x
vcc_lock=[LATE]; vcc_open=[None]
def pull(gap,scalar):
    order=('arr','st','ld','dma','ctr','epi','low') if scalar and OPT['sprio'] else ('arr','dma','st','ctr','epi','ld','low')
    if scalar:
        for nm in order:
            x=head(nm,gap)
            if x is not None and 'carry' in x.rd: take(nm,gap); return True
    elif vcc_open[0]: order=(vcc_open[0],)+order
    for nm in order:
        x=head(nm,gap)
        if x is None or x.kind in VM: continue
        if (x.kind in SC)!=scalar: continue
        if 'vcc' in x.wr and not x.meta.get('glue') and vcc_lock[0]<OPT.get('vlock',22): continue
        take(nm,gap); return True
    return False

bar_extra={}; PH={}
def emit_backbone(bars,gapstamps):
    L=OPT['look']
    reads=[(it,f,g.start-0.5) for g in groups for it,f in g.rd]
    ev={}
    for gi,ops in events: ev.setdefault(gi,[]).append(ops)
    bar_items={}
    for it in items: bar_items.setdefault(it.bar,[]).append(it.name)
    barset=set(bars); issue={}
    fixed={}; fixT={}
    nb=len([b for b in bars if b>=SIG and OPT['split']]); kb=0
    for gi,g in enumerate(groups):
        for k in range(len(g.m)):
            gap=g.start+k; fx=[]
            w_lg=list(groups[gi+1].fr) if (k==len(g.m)-1 and gi+1<len(groups)) else []
            if len(w_lg)>3: w_lg=w_lg[:3 if OPT['w3'] else 2]
            if len(g.fr)>3 and not OPT['w3'] and k in (1,3): w_lg=g.fr[k+1:k+3]
            if len(g.fr)>3 and OPT['w3'] and k in (2,5) and k+1<len(g.fr): w_lg=g.fr[k+1:k+4]
            if len(g.fr)>6 and k in (9,13): w_lg=groups[gi+1].fr[:1+(k-9)//2] if gi+1<len(groups) else []
            w_vm=[]
            for d in (1,SIG):
                b=gap+d
                if b in barset and d==(SIG if b>=SIG else 1): w_vm=bar_items.get(b,[])+bar_extra.get(b,[])
            if OPT['split']:
                if gap+SIG in barset: x=dsw('ds_sub_u32',vCA,vONE); x.meta['signal']=True; fixT[gap]=x
                if gap+7 in barset and gap+7>=SIG: assert gap not in fixT; fixT[gap]=dsr('ds_read_b32',vCV,vCA)
                if gap+1 in barset and gap+1>=SIG:
                    kb+=1; assert gap not in fixT
                    fixT[gap]=valu('v_cmp_lt_u32','vcc',4*(nb-kb),vCV); w_lg.append(vCV)
                    OUT.extend([f'L_sb{kb}:', f'ds_read_b32 {vCV}, {vCA}', 's_waitcnt lgkmcnt(0)', fixT[gap].text, 's_nop 0', f's_cbranch_vccnz L_sb{kb}', f's_branch L_sr{kb}'])
            if gap in barset:
                if OPT['split'] and gap>=SIG: fx.append([raw(f's_cbranch_vccnz L_sb{kb}','misc',['vcc'],check=True,glue=True), label(f'L_sr{kb}')])
                else: fx.append([barrier()])
            if w_lg or w_vm: fx.append([waitfor(lg=w_lg,vmtags=w_vm)])
            fixed[gap]=fx
    def stgap_at(gap):
        dn=gap>=groups[marks['down']].start
        iv=len([b for b in bars if b<=gap])
        if iv%OPT['stper' if dn else 'qstper']: return LATE
        return OPT['stgap' if dn else 'qstgap']
    ri=[L]
    def rd():
        it,f,lg=reads[ri[0]]; ri[0]+=1; e(setseq(f(it),lg))
    planned=None
    for gi,g in enumerate(groups):
        for k,m in enumerate(g.m):
            gap=g.start+k
            if gap-1 in extra:
                cur[0]=gap-0.7
                e(*extra[gap-1])
                if extra[gap-1][-1].kind=='mfma':
                    for _ in range(extra[gap-1][-1].passes-3): pull(gap-1,False)
            cur[0]=gap
            e(m)
            if gap in gapstamps: stamp(gapstamps[gap])
            if gap in PH: note(PH[gap])
            if 'gst' in OPT and gap in range(*map(int,OPT['gst'].split(':'))): stamp(f'gap{gap}',True)
            if planned:
                x=take(planned,gap); planned=None
                if x.kind=='dma': issue[x.meta['tag']]=gap
                continue
            fx=fixed[gap]
            if fx: e(*fx.pop(0))
            elif not pull(gap,True) and OPT['snop']: e(raw('s_nop 0','misc'))
            if ri[0]<len(reads) and ri[0]<=gap+L: rd()
            used=False
            if fx: e(*fx.pop(0)); used=True
            if gap in fixT:
                e(fixT[gap]); used=True
                if fixT[gap].kind=='valu': continue
            lag=ri[0]<len(reads) and ri[0]<=gap+L
            if lag:
                if not used: rd()
                continue
            if gap+1 in fixed and not fixed[gap+1] and gap+1 not in fixT: planned=vm_ready(gap+1,OPT['dmagap'],stgap_at(gap+1))
            if used: continue
            if planned:
                if OPT['vmpat']==0 and ri[0]<len(reads) and reads[ri[0]][0].bar<=gap: rd()
                if OPT['vmpat']==2: pull(gap,False)
                continue
            vcc_lock[0]=min([b for b in bars if b>gap]+[LATE])-gap if OPT['split'] else LATE
            if not pull(gap,False): pull(gap,True)
        for ops in ev.get(gi,[]):
            for o in ops: push(o.meta.get('q','epi'),gap+4,[o])
    vcc_lock[0]=LATE
    sl=[(it.bar-SIG-issue[it.name],it.name) for it in items if it.name in issue]
    sl.sort(); print('min dma slack (gaps):',sl[:6])
    print('left after backbone:',{k:len(v) for k,v in fifo.items()})

OUT=[]
HOT=[]
def spin(name,load,expect,sleep=8,cmp='v_cmp_gt_u32',pre=[]):
    a=valu(cmp,'vcc',expect,vPOLL); a.meta['glue']=True
    b=raw(f's_cbranch_vccnz L_spin_{name}','misc',['vcc']); b.meta['glue']=True
    c=label(f'L_back_{name}')
    cnt=vT[6]
    OUT.extend([f'L_spin_{name}:', f'v_mov_b32 {cnt}, 0x40000', f'L_spinl_{name}:', *pre, load.text, 's_waitcnt vmcnt(0)', f'{cmp} vcc, {fmt(expect)}, {vPOLL}', 's_nop 1',
        f's_cbranch_vccz L_back_{name}', f'v_subrev_u32 {cnt}, 1, {cnt}', f'v_cmp_ne_u32 vcc, 0, {cnt}', f's_sleep {sleep}', f's_cbranch_vccnz L_spinl_{name}', f's_branch L_back_{name}'])
    a.wr.append(cnt.regs()[0]); a.wr.append('ok_'+name)
    return [a,b,c]

def addr_att(WB):
    t,u,key,hf,p,rp=vT[0],vT[1],vT[2],vT[3],vT[4],vT[5]
    e(valu('v_and_b32',key,31,vL), valu('v_lshrrev_b32',hf,5,vL), valu('v_lshlrev_b32',t,2,hf), valu('v_xor_b32',t,t,vL), valu('v_lshlrev_b32',vKM,4,t))
    extpos(u,key,t)
    e(valu('v_lshlrev_b32',vKE,3,u), valu('v_add_u32',vKE,1024,vKE))
    e(salu('s_lshr_b32',sT0,sW,1), salu('s_lshl_b32',sT0,sT0,5), salu('s_add_u32',sT0,sT0,sH), salu('s_add_u32',sT0,sT0,32), salu('s_mul_i32',sT0,sT0,SL),
      salu('s_and_b32',sT1,sW,1), salu('s_mul_i32',sT1,sT1,5120), salu('s_add_u32',sT0,sT0,sT1), valu('v_lshl_add_u32',vKV,vL,4,sT0))
def addr_z(): e(valu('v_and_b32',vZ,1,vL), valu('v_lshlrev_b32',vZ,7,vZ))
def qk_loads(WB):
    t,u,hf=vT[0],vT[1],vT[3]
    e(salu('s_mov_b32',sSO3,WS_R2), cost(bload(vR2,vR2,sWS,sSO3,flags='sc1'),40))
    e(valu('v_lshrrev_b32',hf,5,vL), valu('v_mul_u32_u24',u,1280,hf), valu('v_add_u32',u,u,vKE))
    e(salu('s_lshl_b32',sT0,sM8,2), salu('s_add_u32',sT0,sT0,sW), salu('s_mul_i32',sT0,sT0,2560), salu('s_mul_i32',sT1,sH,SL), salu('s_add_u32',sSO3,sT0,sT1))
    for x in range(2): e(bload(QM[x],vKM,sWS,sSO3,x*1280,flags='sc1'))
    e(cost(bload(QE[0],u,sWS,sSO3,0,flags='sc1'),40))
    e(salu('s_add_u32',sSO3,sT1,32*SL))
    for x in range(2): e(bload(KM[x],vKM,sWS,sSO3,x*1280,flags='sc1'), cost(bload(KE[x],vKE,sWS,sSO3,x*1280,flags='sc1'),40))
    e(valu('v_add_u32',vKM,WB,vKM), valu('v_add_u32',vKE,WB,vKE), valu('v_mov_b32',QE[1],0), valu('v_mov_b32',vIDX,0xdddd))
def zero_o():
    for x in range(2):
        for r in range(16): e(valu('v_mov_b32',OO[x][r],0))
def extra_zero(ngaps):
    with collect() as o: zero_o()
    push('ctr',ngaps-66,o,ngaps-66)
def addr_lds(WB):
    t,hf=vT[0],vT[3]
    e(valu('v_lshrrev_b32',hf,5,vL))
    c,r,k,x=vT[4],vT[5],vT[6],vT[1]
    e(valu('v_and_b32',c,3,vL), valu('v_bfe_u32',r,vL,2,2), valu('v_lshl_add_u32',r,hf,3,r))
    for n in range(4):
        uu,y=n>>1,n&1
        e(valu('v_add_u32',k,16*uu+4*y,r))
        extpos(x,k,t)
        e(valu('v_lshlrev_b32',x,3,x), valu('v_min_u32',t,1,c), valu('v_mul_u32_u24',t,LDS_OOB+64,t), valu('v_xor_b32',x,x,t), valu('v_add_u32',x,1024,x))
        e(valu('v_lshrrev_b32',t,1,c), valu('v_mul_u32_u24',t,36,t), valu('v_xor_b32',k,k,t), valu('v_lshlrev_b32',k,4,k), valu('v_and_b32',t,1,c), valu('v_lshl_add_u32',k,t,3,k))
        e(valu('v_and_b32',t,16,vL), valu('v_cmp_eq_u32','vcc',0,t), valu('v_cndmask_b32',k,x,k), valu('v_add_u32',vVA[n],WB,k))
vOP,vSH,vINC=V(55),V(16),V(17)
def addr_op():
    t,u,g=vT[2],vT[4],vT[5]
    e(salu('s_lshl_b32',sT0,sXC,2), valu('v_lshlrev_b32',vINC,sT0,vONE), salu('s_mov_b32',sPV,0), valu('v_add_u32',vKE1,1280,vKE))
    if OPT['vp']: e(valu('v_min_u32',vOP,1,vL), valu('v_lshl_add_u32',vOP,vOP,31,sF3))
    if OPT['warm']: e(salu('s_and_b32',sT0,sIDX,7), salu('s_lshl_b32',sT0,sT0,2), salu('s_add_u32',sT0,sT0,sW),
      salu('s_lshl_b32',sT1,sXC,2), salu('s_lshr_b32',sT2,sIDX,3), salu('s_add_u32',sT1,sT1,sT2),
      salu('s_lshr_b32',sT2,sT0,4), salu('s_lshl_b32',sT2,sT2,15), salu('s_and_b32',sT3,sT0,15), salu('s_lshl_b32',sT3,sT3,8), salu('s_add_u32',sT2,sT2,sT3),
      salu('s_lshl_b32',sT3,sT1,16), salu('s_add_u32',sT2,sT2,sT3), salu('s_add_u32',sT2,sT2,WS_O),
      valu('v_lshrrev_b32',g,1,vL), valu('v_lshl_add_u32',t,g,12,sT2), valu('v_and_b32',u,1,vL), valu('v_lshl_add_u32',t,u,7,t),
      salu('s_bfe_u32',sT2,sT0,0x10002), salu('s_lshl_b32',sT2,sT2,12), salu('s_and_b32',sT3,sT0,3), salu('s_lshl_b32',sT3,sT3,7), salu('s_add_u32',sT2,sT2,sT3),
      salu('s_lshl_b32',sT3,sT1,13), salu('s_add_u32',sT2,sT2,sT3), salu('s_add_u32',sT2,sT2,WS_OX),
      valu('v_and_b32',u,7,vL), valu('v_lshl_add_u32',vOP,u,9,sT2), valu('v_cmp_gt_u32','vcc',16,vL), valu('v_cndmask_b32',vOP,vOP,t), valu('v_cndmask_b32',g,u,g),
      valu('v_lshl_add_u32',g,g,2,2), valu('v_cmp_gt_u32','vcc',24,vL), valu('v_cndmask_b32',vSH,3,g))
def x_loads(): return [cost(bload(XR[2*q:2*q+2],vXO,sX,0,32*q),260) for q in range(4)]+[cost(bload(XR[8:10],vXOX,sX,0),200)]
def addr_fin():
    t,u,p,rp,a,b=vT[0],vT[1],vT[4],vT[5],vT[6],vT[3]
    lane_rp(rp,p,t)
    e(salu('s_and_b32',sT0,sW,1), salu('s_lshr_b32',sT1,sW,1), salu('s_mul_i32',sT2,sT0,20), salu('s_lshl_b32',sT3,sT1,3), salu('s_add_u32',sT2,sT2,sT3), valu('v_add_u32',a,sT2,rp),
      salu('s_mul_i32',sT2,sT0,288), salu('s_mul_i32',sT3,sT1,36), salu('s_add_u32',sT2,sT2,sT3), salu('s_add_u32',sT2,sT2,16),
      valu('v_lshrrev_b32',t,2,rp), valu('v_mul_u32_u24',t,144,t), valu('v_and_b32',b,3,rp), valu('v_add3_u32',b,b,t,sT2))
    e(salu('s_and_b32',sT0,sIDX,7), salu('s_lshl_b32',sT1,sT0,7), valu('v_lshl_add_u32',u,p,4,sT1),
      valu('v_mul_u32_u24',t,1152,a), valu('v_add_u32',vWO,t,u), valu('v_mul_u32_u24',t,1152,b), valu('v_add_u32',vWOE,t,u))
    e(salu('s_lshr_b32',sT2,sT0,1), salu('s_lshl_b32',sT2,sT2,5), salu('s_add_u32',sT2,sT2,1024), valu('v_and_b32',u,1,p), valu('v_lshl_add_u32',u,u,4,sT2), valu('v_lshrrev_b32',p,1,p),
      valu('v_mul_u32_u24',t,36,p), valu('v_add_u32',t,t,a), valu('v_mul_u32_u24',t,1152,t), valu('v_add_u32',vWX,t,u),
      valu('v_mul_u32_u24',t,p,p), valu('v_mul_u32_u24',t,t,p), valu('v_mul_u32_u24',t,72,t), valu('v_add_u32',t,t,b), valu('v_mul_u32_u24',t,1152,t), valu('v_add_u32',vWXE,t,u))
    e(salu('s_lshr_b32',sT3,sIDX,3), salu('s_lshl_b32',sT3,sT3,2), salu('s_add_u32',sT3,sT3,sW), salu('s_lshl_b32',sSO3,sXC,4), salu('s_add_u32',sT3,sT3,sSO3))
    tk,g=vT[4],vT[5]
    e(valu('v_and_b32',tk,15,vL), valu('v_lshrrev_b32',g,4,vL))
    e(salu('s_lshl_b32',sSO3,sT3,3), salu('s_add_u32',sSO3,sSO3,sT0), salu('s_lshl_b32',sSO3,sSO3,15), valu('v_lshl_add_u32',vPL,vL,4,sSO3))
    e(salu('s_xor_b32',sSC[0],sW,sT0), salu('s_lshl_b32',sSC[0],sSC[0],31))
    e(salu('s_lshl_b32',sSO3,sT3,2), salu('s_lshr_b32',sSC[1],sT0,1), salu('s_add_u32',sSO3,sSO3,sSC[1]), salu('s_lshl_b32',sSO3,sSO3,13), salu('s_or_b32',sSO3,sSO3,sSC[0]), valu('v_lshl_add_u32',vPLX,vL,3,sSO3))
    e(salu('s_lshl_b32',sSO3,sT3,4), valu('v_add_u32',a,sSO3,tk), valu('v_lshlrev_b32',vR2,2,a), valu('v_mul_u32_u24',a,1152,a), valu('v_lshl_add_u32',a,g,3,a),
      valu('v_add_u32',vXO,sT1,a), salu('s_or_b32',sT2,sT2,sSC[0]), valu('v_add_u32',vXOX,sT2,a))
    if not OPT['xat']: e(*x_loads())
    e(salu('s_and_b32',sSO3,sT3,1), salu('s_lshl_b32',sSO3,sSO3,4), valu('v_add_u32',a,sSO3,tk), salu('s_lshr_b32',sSC[1],sT3,1),
      salu('s_lshl_b32',sSO3,sSC[1],15), valu('v_lshl_add_u32',t,a,4,sSO3), valu('v_lshl_add_u32',vOL,g,9,t),
      salu('s_lshl_b32',sSO3,sSC[1],12), valu('v_lshl_add_u32',t,a,2,sSO3), valu('v_lshl_add_u32',vOLX,g,10,t))
    e(valu('v_and_b32',t,31,vL))
    for n in range(4): e(*base_add(sOB[n],sWS,WS_O+8192*n+4096))
    e(*base_add(S(88,2),sWS,WS_O), *base_add(S(90,2),sWS,WS_O+32768))
    e(salu('s_lshr_b32',sSO3,sT3,1), salu('s_lshl_b32',sSO3,sSO3,11), salu('s_add_u32',sSO3,sSO3,WS_F2), salu('s_and_b32',sSC[1],sIDX,3), salu('s_lshl_b32',sSC[1],sSC[1],9), salu('s_add_u32',sSO3,sSO3,sSC[1]),
      valu('v_min_u32',vPG,1,vL), valu('v_lshl_add_u32',vPG,vPG,31,sSO3))
    e(salu('s_lshl_b32',sT0,sM8,2), salu('s_add_u32',sT0,sT0,sW), salu('s_lshl_b32',sT1,sT0,16), salu('s_lshl_b32',sT2,sH,10), salu('s_add_u32',sT1,sT1,sT2),
      valu('v_lshl_add_u32',vOS,vL,4,sT1),
      salu('s_lshl_b32',sT1,sT0,13), salu('s_lshl_b32',sT2,sH,7), salu('s_add_u32',sT1,sT1,sT2), salu('s_add_u32',sT1,sT1,WS_OX),
      valu('v_lshl_add_u32',t,t,2,sT1), valu('v_lshrrev_b32',u,5,vL), valu('v_lshl_add_u32',vOSX,u,12,t))

def max_ops(srcs,m,first=True):
    o=[]
    regs=[s[r] for s in srcs for r in range(16)]
    if first: o.append(valu('v_max3_f32',m,regs[0],regs[1],regs[2])); rest=regs[3:]
    else: rest=regs
    while len(rest)>=2: o.append(valu('v_max3_f32',m,m,rest[0],rest[1])); rest=rest[2:]
    if rest: o.append(valu('v_max_f32',m,m,rest[0]))
    return o
def set_shift(mx,margin):
    m,t=mx
    return [swap('v_permlane32_swap_b32',m,t), valu('v_max_f32',m,m,t), valu('v_sub_f32',m,f32(-margin) if margin else 0,m),
            valu('v_cvt_pk_bf16_f32',t,m,m), valu('v_lshlrev_b32',t,16,t), valu('v_sub_f32',t,m,t), valu('v_cvt_pk_bf16_f32',QE[1],m,t)]
def Bx(tau,buf=None): return m2b(buf or SBB[tau%3],KE[tau%4],QE,0)
def Mx(tau,x,buf=None): b=(buf or SBB[tau%3])[16*x:16*x+16]; return m32(b,KM[tau%3],QM[x],b)
def PV(tau,x,h,buf=None): return smf(OO[x],VV[tau&1][4*h:4*h+4],(buf or SBB[tau%3])[16*x+8*h:16*x+8*h+8],vIDX)
def vread(kv,WB,tau,n):
    it=kv[tau>>3]; off=it.addr-WB+10240+(tau&7)*1280
    return dsr('ds_read_b64_tr_b16',VV[tau&1][2*n:2*n+2],vVA[n],off,src=(it.name,it.blks()))
extra={}
def att_setup(ngaps,kv,WB):
    g=ngaps-OPT['at0']
    extra[g]=[waitfor(vm=QM+KM[:2]+KE[:2]+[QE[0]]), Bx(0)]; extra[g+2]=[Bx(1)]
    extra[g+8]=[Mx(0,0)]; extra[g+10]=[Mx(1,0)]; extra[g+12]=[Mx(0,1)]; extra[g+14]=[Mx(1,1)]
    mx=[vT[0],vT[1]]
    for x in range(2): push('ctr',g+17+4*x,max_ops([SBB[0][16*x:16*x+16],SBB[1][16*x:16*x+16]],mx[x]),g+16)
    push('ctr',g+21,set_shift(mx,MARGIN),g+16)
    extra[ngaps-18]=[Bx(0)]; extra[ngaps-9]=[Mx(0,0)]+[vread(kv,WB,0,n) for n in range(2)]; extra[ngaps-5]=[Mx(0,1)]+[vread(kv,WB,0,n) for n in range(2,4)]

def attention(g0,kv,WB,wo_items):
    base=g0+100
    pipe[0]=0; pipe[1]=44
    def kread(tau):
        it=kv[tau>>3]; off=it.addr-WB+(tau&7)*1280; src=(it.name,it.blks())
        if tau<4 or not OPT['ke2']: ke=dsr('ds_read_b64',KE[tau%4],vKE,off,src=src)
        elif tau&2: ke=None
        else:
            o=(off-1280*(tau&1))//512; d=A(KE[tau&1].b,4); a=vKE1 if tau&1 else vKE
            ke=I(f'ds_read2st64_b64 {d}, {a} offset0:{o} offset1:{o+5}','dsr',a.regs(),d.regs(),src=src,private=False)
        return [dsr('ds_read_b128',KM[tau%3],vKM,off,src=src), ke]
    def flush(n,names=('ctr','epi','low','dma','ld')):
        k=0
        while k<n:
            for nm in names:
                x=head(nm,cur[0])
                if x is not None: take(nm,cur[0]); break
            else: return
            k+=1
    cur[0]=g0
    assert not fifo['ctr'] and not fifo['low'] and not fifo['ld']
    stamp('att'); note('---- attention')
    barx={7:[it.name for it in wo_items]}; f2done=[False]; wcut=[int(x) for x in OPT['wcut'].split(',')]
    for tau in range(64):
        n=2*tau; nx=tau<63; S=SBB[tau%3]
        if 'ast' in OPT and n in range(*map(int,OPT['ast'].split(':'))): stamp(f'slot{n}',True)
        ms=[Bx(tau+1) if nx else None, PV(tau-1,1,1) if tau else None, PV(tau,0,0), Mx(tau+1,0) if nx else None, PV(tau,0,1), Mx(tau+1,1) if nx else None, PV(tau,1,0)]
        km,ke=kread(tau+2) if tau+2<64 else (None,None)
        v=[vread(kv,WB,tau+1,z) if nx else None for z in range(4)]
        rds=[None,ke,v[0],v[1],km,v[2],v[3]]
        sg=(tau+3)//8 if (tau+3)%8==0 and tau+3<64 else None
        for k in range(7):
            gap=base+8*tau+(k+1 if k else 0); cur[0]=gap
            if tau==0 and k==1: flush(1000,('epi',)); e(waitfor(lg=[VV[0]]))
            if ms[k] is not None: e(ms[k])
            nsc=(0,2,2,1,2,1,2)[k]
            fx=k in (2,6) or (k==4 and sg is not None)
            vmn=vm_ready(gap,1,OPT['astgap'],('st','dma','ld','low')) if (not fx and k>0 and ms[k] is not None) else None
            if vmn: take(vmn,gap)
            else:
                if k==2: e(waitfor(lg=[VV[tau&1][4:8],KM[(tau+1)%3]])); nsc-=1
                if k==2 and tau==63 and OPT['warm']: e(*poll())
                if k==6: e(waitfor(lg=[VV[(tau+1)&1][0:4],KE[(tau+2)%4]])); nsc-=1
                if k==4 and sg is not None:
                    e(waitfor(vmtags=[kv[sg].name]+barx.get(sg,[])), barrier()); nsc-=2
                    if sg+1<8 and not kv[sg+1].pushed: push('dma',gap,kv[sg+1].mk(kv[sg+1]))
                    for it in [x for x in wo_items if not x.pushed][wcut[sg-1]:wcut[sg]]: push('dma',gap,it.mk(it))
                while nsc>0 and pull(gap,True): nsc-=1
            if rds[k] is not None: e(rds[k])
            x=head('ld',gap)
            if x is not None and x.kind=='valu': take('ld',gap)
            for r in (range(8) if k==0 else range(4*k+4,4*k+8)): e(valu('v_exp_f32',S[r],S[r]))
        if n==OPT['tatt']: push('arr',gap,touch())
        if n==2 and OPT['xat']: push('ld',gap,x_loads())
        if not fifo['st'] and not f2done[0]:
            f2done[0]=True; print('partial stores end at slot',n)
            push('st',gap+4*OPT['f2lag'],[waitfor(vmtags=['pst']), batomic(vONE,vF1,sWS,0,op='sub')])
        if n==OPT['f2poll']:
            ld=I(f'buffer_atomic_add {vPOLL}, {vPG}, {sWS}, 0 offen sc0','vld',vPOLL.regs()+vPG.regs(),vPOLL.regs(),tag=None)
            e(valu('v_mov_b32',vPOLL,0)); push('st',gap,[ld])
            t0=base+4*OPT['f2chk']
            w_=waitfor(vm=[vPOLL]); w_.meta['lag']=(ld,4*(OPT['f2chk']-OPT['f2poll']))
            push('ld',t0,[w_]+spin('f2',ld,0,OPT['f2sl'],'v_cmp_ne_u32',[f'v_mov_b32 {vPOLL}, 0']))
            ops=[]
            for k in range(32):
                if k%8==0: ops+=base_add(sBL,sWS,WS_P+k*1024+4096)
                ops.append(gload(PART[k],vPL,sBL,(k%8)*1024-4096,flags='sc1'))
                if k%2==1:
                    z=k>>1
                    if z%8==0: ops.append(salu('s_mov_b32',sSO3,WS_PX+z*512))
                    ops.append(bload(PARTX[z],vPLX,sWS,sSO3,(z%8)*512,flags='sc1'))
            nl=0; prev=None
            for o in ops:
                if o.kind=='vld':
                    if prev is not None: o.meta['lag']=(prev,OPT['ldmin'])
                    prev=o
                push('ld',t0+int(nl*OPT['ldgap']),[o])
                if o.kind=='vld': nl+=1
    cur[0]=base+600
    e(PV(63,1,1))
    print('att vmem slots:',' '.join(f"{'kv' if i.meta.get('tag') and i.meta['tag'][0]=='kv' else i.kind[1]}{(i.meta['at']-base)//4}" for i in P if i.kind in VM and i.meta['at']>=base))
    print('left after attention:',{k:len(v) for k,v in fifo.items()})
    assert not any(fifo.values()), 'work left after attention'

def fallback(kv,WB):
    global P
    save=P; P=[]
    pb=kv[5].addr
    a=[V(192+n) for n in range(6)]; vo=V(198); mx=[V(199),V(200)]; S=SBB[2]
    e(label('L_fb'), raw('s_waitcnt vmcnt(0) lgkmcnt(0)','misc'), raw('s_nop 15','misc'))
    for d,s in zip(a,[vKM,vKE]+vVA): e(valu('v_add_u32',d,sW5K,s))
    e(valu('v_lshlrev_b32',vo,4,vL), valu('v_mov_b32',QE[1],0), valu('v_mov_b32',mx[0],0xff800000), valu('v_mov_b32',mx[1],0xff800000))
    off=pb-WB
    for ps in range(2):
        e(salu('s_add_u32',sT0,sH,32), salu('s_mul_i32',sT0,sT0,SL), salu('s_add_u32',sT1,sT0,32*SL), salu('s_mov_b32',sT2,64), label(f'L_fbl{ps}'))
        e(salu('s_add_u32','m0',sW5K,pb), dma(vo,sWS,sT0,0,flags='sc1'), dma(vo,sWS,sT0,1024,flags='sc1'))
        if ps: e(salu('s_add_u32','m0',sW5K,pb+2560), dma(vo,sWS,sT1,0,flags='sc1'), dma(vo,sWS,sT1,1024,flags='sc1'))
        e(waitfor(vmall=True), dsr('ds_read_b128',KM[0],a[0],off), dsr('ds_read_b64',KE[0],a[1],off))
        if ps:
            for n in range(4): e(dsr('ds_read_b64_tr_b16',VV[0][2*n:2*n+2],a[2+n],off+2560))
        e(waitfor(lgall=True))
        e(Bx(0,S), Mx(0,0,S), Mx(0,1,S))
        for x in range(2):
            if ps==0: e(*max_ops([S[16*x:16*x+16]],mx[x],first=False))
            else:
                for r in range(16): e(valu('v_exp_f32',S[16*x+r],S[16*x+r]))
                for h in range(2): e(PV(0,x,h,S))
        e(raw('s_nop 15','misc'), salu('s_add_u32',sT0,sT0,1280), salu('s_add_u32',sT1,sT1,1280), salu('s_sub_u32',sT2,sT2,1), salu('s_cmp_lg_u32',sT2,0), raw(f's_cbranch_scc1 L_fbl{ps}','misc'))
        if ps==0:
            e(*set_shift(mx,0.0)); zero_o()
    e(*norm_store(0,V(116,2)), *norm_store(1,V(116,2)), waitfor(vmall=True))
    e(raw('s_nop 3','misc'), raw('s_branch L_fb_ret','misc'))
    OUT.extend(i.text for i in finalize(P,verbose=0,name='fb'))
    P=save

TT=[V(224,16),V(240,16)]
FLAG_LDS=[0]
def norm_store(x,t):
    O,T=OO[x],TT[x]
    o=[valu('v_rcp_f32',t[0],O[10]), valu('v_mov_b32',t[1],t[0]), swap('v_permlane32_swap_b32',t[0],t[1])]
    o+=[valu('v_mul_f32',T[r],t[0],O[r]) for r in range(10)]
    o+=[valu('v_cvt_pk_bf16_f32',T[d],T[2*d],T[2*d+1]) for d in range(4)]
    o+=[gstore(T[0:4],vOS,S(88+2*x,2),flags='sc1',tag='ost'), valu('v_cvt_pk_bf16_f32',T[8],T[8],T[9])]
    if x: o+=[swap('v_permlane32_swap_b32',TT[0][8],TT[1][8]), gstore(TT[0][8],vOSX,sWS[0:2],flags='sc1',tag='ost')]
    return o
def poll(r=sPV): return [raw(f's_atomic_umax {r}, {sWS[0:2]}, {sF3} glc')]
def final(g0,wo_main,wo_x):
    cur[0]=g0
    SA=V(56,20); DN=V(76,20); XF=V(96,20); tmp=V(116,12)
    e(*norm_store(0,tmp[0:2]), *norm_store(1,tmp[6:8]))
    stamp('o stored')
    fill=[]
    for x in range(2):
        s=tmp[2+x]
        fill.append(valu('v_add_f32_e64',s,f'|{OO[x][0]}|',f'|{OO[x][1]}|'))
        for r in range(2,10): fill.append(valu('v_add_f32_e64',s,s,f'|{OO[x][r]}|'))
    fill+=[valu('v_min_f32',tmp[4],tmp[2],tmp[3]), valu('v_add_f32',tmp[2],tmp[2],tmp[3]), valu('v_add_f32',tmp[3],OO[0][10],OO[1][10]), valu('v_add_f32',tmp[2],tmp[2],tmp[3]),
           valu('v_max_f32',tmp[0],tmp[0],tmp[6]), valu('v_fmac_f32',tmp[2],f32(2.0**(124-MARGIN)),tmp[0],rmw=True)]
    chk=[valu('v_cmp_nle_f32','vcc',f32(2.0**-103),tmp[4]), raw('s_cbranch_vccnz L_fb','misc',['vcc']),
      valu('v_cmp_nge_f32','vcc',f32(2.0**126) if not OPT['forcefb'] else f32(-1.0),tmp[2]), raw('s_cbranch_vccnz L_fb','misc',['vcc']), label('L_fb_ret')]
    pool_=[V(128+4*n,4) for n in range(32)]+[A(212+4*n,4) for n in range(7)]+[A(72+4*n,4) for n in range(34)]
    frs=[]; rds=[]
    order=[0,1,4,5,8,9,12,13,16,2,3,6,7,10,11,14,15,17]
    for s in order:
        for q in range(5):
            f=pool_[len(frs)%len(pool_)]; frs.append(f)
            for u in range(2): rds.append(tr_read(f,u,wo_main[s],q) if q<4 else tr_read(f,u,wo_x[s>>2],s&3))
    red=[]
    for j in range(16):
        for q in range(5):
            d=DN[4*q:4*q+4]
            red.append(m4(d,SELA,PART[16*(q>>1)+j][2*(q&1):2*(q&1)+2] if q<4 else PARTX[j],0 if j==0 else d))
    red+=[m4(XF[4*q:4*q+4],SELA,XR[2*q:2*q+2],0) for q in range(5)]
    e(waitfor(vm=PART+PARTX+[XR,vR2]))
    ri=0
    test=lambda: [waitfor(lgall=True,lgforce=True), salu('s_cmp_eq_u32',sPV,0x44444444)]
    def warm(r=sPV,tracked=False):
        if not OPT['warm']: return []
        t=vT[0]; ld=bload(vPF,t,sWS,0,flags='sc1',tag='pf')
        return [valu('v_lshrrev_b32',t,vSH,r), valu('v_not_b32',t,t), valu('v_lshl_add_u32',t,t,31,vOP), ld if tracked else raw(ld.text)]
    g,c2,ir=tmp[8],tmp[9],tmp[10]
    late_=[valu('v_mul_f32',c2,f32(-1.4426950408889634),vR2), valu('v_rcp_f32',ir,vR2),
           valu('v_bfe_u32',g,vL,4,1), valu('v_mul_u32_u24',g,24,g), valu('v_add_u32',vXO,vXO,g)]
    for k,mm in enumerate(red):
        e(mm)
        if k in (OPT['pollat'],OPT['pollat2'],OPT['pollat3']): e(*poll())
        if fill:
            e(fill.pop(0))
            if not fill: e(*chk, waitfor(lgall=True,lgforce=OPT['warm']), *warm(tracked=True), *base_add(sBL,sWS,WS_OX))
            continue
        if k==OPT['hat']: e(waitfor(vmtags=['ost']), batomic(vINC,vF3,sWS,0)); stamp('flag'); continue
        if k>=80: e(late_.pop(0)); continue
        if k%4==3: e(waitfor(lg=frs[:max(0,ri//2-4)]))
        e(rds[ri]); ri+=1
    assert ri<=2*39
    stamp('ready')
    EX=[V(30+n) for n in range(13)]+[V(45+n) for n in range(5)]+[V(14),V(15)]
    fill=[]
    for f in (lambda r:valu('v_mul_f32',EX[r],c2,DN[r]), lambda r:valu('v_exp_f32',EX[r],EX[r]), lambda r:valu('v_fma_f32',EX[r],EX[r],ir,ir),
              lambda r:valu('v_rcp_f32',EX[r],EX[r]), lambda r:valu('v_mul_f32',DN[r],EX[r],DN[r])):
        fill+=[(0,[f(r)]) for r in range(20)]
    OF=[A(4*s,4) for s in range(18)]
    def gate(name,mask):
        one=bin(mask).count('1')==1
        t=lambda: [salu('s_bitcmp1_b32',sPV,mask.bit_length()-1)] if one else [salu('s_and_b32',sT1,sPV,mask), salu('s_cmp_eq_u32',sT1,mask)]
        if OPT['vp']:
            n=OPT['vp']; PL=[vT[z] for z in range(n)]
            vp=lambda z: raw(f'buffer_atomic_umax {PL[z]}, {vOP}, {sWS}, 0 offen sc0')
            y=[label(f'L_w{name}'), vp(0), raw('s_waitcnt lgkmcnt(0)')]+t()+[raw(f's_cbranch_scc1 L_g{name}')]
            for z in range(1,n): y+=[raw(f's_sleep {OPT["psleep"]}'), vp(z)]
            y+=[label(f'L_wl{name}')]
            for z in range(n): y+=[raw(f's_waitcnt vmcnt({n-1})'), valu('v_readfirstlane_b32',sPV,PL[z])]+t()+[raw(f's_cbranch_scc1 L_g{name}'), vp(z)]
        else: y=[label(f'L_w{name}')]+(poll() if OPT['pfirst'] else [])+[label(f'L_wl{name}'), raw('s_waitcnt lgkmcnt(0)')]+t()+[raw(f's_cbranch_scc1 L_g{name}')]+poll()
        y+=[salu('s_addk_i32',sT0,-1), salu('s_cmp_gt_i32',sT0,0), raw(f's_cbranch_scc1 L_wl{name}'), raw(f's_branch L_g{name}')]
        if OPT['inl']: return t()+[raw(f's_cbranch_scc1 L_g{name}')]+y[:-1]+[label(f'L_g{name}')]
        HOT.extend(finalize(y,verbose=0))
        return t()+[raw(f's_cbranch_scc0 L_w{name}',glue=True), label(f'L_g{name}')]
    ge=gate('e',0x04040404)
    ol=[]
    for n,s in enumerate(order):
        if s<16: ol.append((gate(s,4<<(2*s)) if n>8 and s%2==0 else [], gload(OF[n],vOL,sOB[s>>2],(s&3)*2048-4096,flags='sc1')))
        else: ol+=[([],gload(OF[n][r],vOLX,sBL,(s-16)*512+r*128,flags='sc1')) for r in range(4)]
    for z in range(OPT['vp']): e(valu('v_mov_b32',vT[z],0))
    e(salu('s_mov_b32',sT0,0x80000), *ge)
    stamp('ok')
    lg_=[int(x) for x in str(OPT['lgrp']).split(',')]; assert sum(lg_)==12
    for _ in range(lg_.pop(0)): e(ol.pop(0)[1])
    if OPT['rp']&1: e(*poll())
    while ri<OPT['wopre']:
        if ri%4==0: e(waitfor(lg=frs[:max(0,ri//2-4)]))
        e(rds[ri]); ri+=1
    nf=len(fill)
    while len(fill)>OPT['fillmm']:
        e(*fill.pop(0)[1])
        if (nf-len(fill)) in (OPT['lc1'],OPT['lc2']) and lg_:
            for _ in range(lg_.pop(0)): e(ol.pop(0)[1])
            if OPT['rp']&(4>>len(lg_)): e(*poll())
    assert not lg_
    stamp('seen'); note('---- o @ wo, gate, residual')
    def epi(q):
        o=[valu('v_fmac_f32',XF[r],SA[r],DN[r],rmw=True) for r in range(4*q,4*q+4)]
        o+=[valu('v_cvt_pk_bf16_f32',tmp[2*q+d],XF[4*q+2*d],XF[4*q+2*d+1]) for d in range(2)]
        return o
    def put(b): return [swap('v_permlane16_swap_b32',tmp[b],tmp[b+2]), swap('v_permlane16_swap_b32',tmp[b+1],tmp[b+3]), bstore(tmp[b:b+4],vXO,sOUT,0,16*b,flags=OPT['ofl'])]
    k=0; nt=OPT['ntail']
    for s in range(18-nt):
        assert ri>=10*s+10
        e(waitfor(vm=[OF[s]],lg=frs[5*s:max(5*s+5,ri//2-3)]))
        for q in range(5):
            e(m16(SA[4*q:4*q+4],frs[k],OF[s],0 if s==0 else SA[4*q:4*q+4])); k+=1
            if q==0 and ol and s>=OPT['ldel'] and ol[0][0]:
                e(*ol[0][0])
                if OPT.get('mst'): stamp(f'g{s}')
                continue
            if q==0 and s in (9,12) and OPT.get('mst'): stamp(f's{s}')
            if q==1 and ol and s>=OPT['ldel']: e(ol.pop(0)[1]); continue
            if q==3 and str(s) in str(OPT['mpoll']): e(*poll())
            n=0
            while n<(1 if ri>=min(180,OPT['rlead']+int(k*OPT['rrate']/100)) else 2) and ri<len(rds) and ri//2-len(pool_)<k-1: e(rds[ri]); ri+=1; n+=1
            while n<2 and fill: e(*fill.pop(0)[1]); n+=1
    assert not fill and not ol and ri==len(rds),(ri,len(fill))
    ep=[]
    for z,q in enumerate((4,0,1,2,3)):
        for s in range(18-nt,18):
            e(waitfor(vm=[OF[s]],lg=[frs[5*s+q]]), m16(SA[4*q:4*q+4],frs[5*s+q],OF[s],SA[4*q:4*q+4])); k+=1
            n=0
            while ep and n<2 and ep[0][0]<=k:
                o=ep.pop(0)[1]; e(o); n+=1 if o.kind!='vst' else 2
        o=epi(q)+([bstore(tmp[8:10],vXOX,sOUT,0,flags=OPT['ofl'])] if q==4 else put(2*q-2) if q&1 else [])
        ep+=[(k+3,x) for x in o]
    stamp('mm done')
    for _,o in ep: e(o)

def main():
    build_ffn()
    ngaps,bars,free=plan()
    L=OPT['look']
    best=None
    for a0 in range(0,NB-14):
        fr=sorted((max(free[b] for b in range(a0+5*k,a0+5*k+5)),k) for k in range(3))
        key=(fr[0][0],fr[1][0])
        if best is None or key<best[0]: best=(key,a0,[k for _,k in fr])
    _,a0,order=best; WB=a0*4096
    print('attention window',best,'ngaps',ngaps,{k:groups[v].start for k,v in marks.items()})
    kv=[kv_item(s) for s in range(8)]
    for s,it in enumerate(kv): it.addr=(a0+5*order[s%3])*4096
    rest=sorted([b for b in range(NB) if not a0<=b<a0+15],key=lambda b:free[b])
    print('free',[free[b] for b in range(NB)])
    wo_main=[blk_item(('wo',s),vWO if s<16 else vWOE,sWO,36*s*1152 if s<16 else 72*(s-16)*1152) for s in range(18)]
    wo_x=[blk_item(('wx',n),vWX if n<4 else vWXE,sWO,144*n*1152 if n<4 else 0,buf=(n==4),c=320) for n in range(5)]
    for it,b in zip(wo_main+wo_x,rest): it.addr=b*4096
    FLAG_LDS[0]=rest[23]*4096

    def pst(name):
        if 'pst' in OPT: stamp(name,True)
    prologue(); pst('karg')
    pre0=[it for it in items if it.early==-3000]; pre1=[it for it in items if it.early==-2000]
    dq=[xdma(tt,l) for tt in range(2) for l in range(9)]+[it.mk(it) for it in pre0+pre1]
    for _ in range(OPT['x0n']): e(*dq.pop(0))
    pst('x0 issued')
    xr=[vM[0],vR[1]]; t,u=vT[2],vT[3]
    DT=[V(140+8*n,8) for n in range(3)]; CM=V(164,4); SUM=V(172,4); ONE4=V(176,4)
    prologue2()
    e(valu('v_and_b32',t,15,vL), valu('v_lshrrev_b32',u,1,t), valu('v_lshlrev_b32',t,7,t), valu('v_add_u32',t,sW18K,t),
      valu('v_lshrrev_b32',xr[0],4,vL), valu('v_xor_b32',xr[0],xr[0],u), valu('v_xor_b32',xr[1],4,xr[0]),
      valu('v_lshl_add_u32',xr[0],xr[0],4,t), valu('v_lshl_add_u32',xr[1],xr[1],4,t))
    for d in range(4): e(valu('v_mov_b32',ONE4[d],sONES))
    with collect() as ao:
        e(*sel_ops(t,u))
        addr_pf(); addr_early(); addr_qk()
        e(valu('v_mov_b32',vONE,1))
        if OPT['split']:
            e(valu('v_min_u32',vCA,1,vL), valu('v_mul_u32_u24',vCA,LDS_OOB-39*4096,vCA), valu('v_add_u32',vCA,39*4096,vCA), valu('v_mov_b32',t,4*len([b for b in bars if b>=SIG])), dsw('ds_write_b32',vCA,t))
    for _ in range(OPT['apre']): e(ao.pop(0))
    pst('pre')
    for _ in range(OPT['x1n']): e(*dq.pop(0))
    nx=len([o for o in dq if o[-1].meta['tag'][0]=='x'])
    if OPT['pf']:
        o=pf_gu(0)+(pf_gu(1) if OPT['pfn']>1 else [])+(pf_q() if OPT['pfn']>2 else [])
        k=nx+OPT['pfpos']
        if OPT['pfpos']<0: dq[k-1]=dq[k-1][:-1]+o+dq[k-1][-1:]
        else: dq.insert(k,o)
    e(raw('s_waitcnt lgkmcnt(0)','misc'))
    pst('addr')
    R0=[XC0[4*s_:4*s_+4] for s_ in range(18)]; X1=[XC1[4*s_:4*s_+4] for s_ in range(18)]
    def xread(tt,dst,l):
        return [waitfor(vmtags=[('x',tt,l)])]+[dsr('ds_read_b128',dst[s],xr[s&1],l*2048,src=(('x',tt,l),list(range(18*tt,18*tt+18))),private=True) for s in (2*l,2*l+1)]
    cq=[]; nm=[0]; nblk=[0]; pre_=[]
    def mm(m,extra=()):
        e(m); nm[0]+=1
        if pre_: e(pre_.pop(0))
        if extra: e(*extra); return
        k=0
        while cq and k<2 and cq[0][0]<=nm[0]-2: e(cq.pop(0)[1]); k+=1
        while ao and k<2: e(ao.pop(0)); k+=1
    def stats(tt,fr,l,nvm,lim=99):
        ms=[]
        for s_ in (2*l,2*l+1): ms+=[m16(SUM,ONE4,fr[s_],0 if s_==0 else SUM), m16(GR[tt],fr[s_],fr[s_],0 if s_==0 else GR[tt])]
        for h in range(2):
            o=[]
            if dq and h<nvm and nblk[0]<min(lim,OPT['nblk']):
                o=dq.pop(0)
                if o[-1].meta['tag'][0] not in 'xp': nblk[0]+=1
            mm(ms[2*h],[x for x in o if x.kind=='salu']); mm(ms[2*h+1],[x for x in o if x.kind!='salu'])
    nc=[0]
    def centre(src,dst,after=(),ex=((),())):
        d=DT[nc[0]%3]; nc[0]+=1
        while any(set(c.rd)&set(d.regs()) for _,c in cq): e(cq.pop(0)[1])
        for h in range(2):
            mm(m4(d[4*h:4*h+4],SELA,src[2*h:2*h+2],CM),ex[h])
            for z in range(2): cq.append((nm[0],valu('v_cvt_pk_bf16_f32',dst[2*h+z],d[4*h+2*z],d[4*h+2*z+1])))
        for x in after: cq.append((nm[0],x))
    def mean(tt):
        dst=vM[1] if tt else t
        e(valu('v_mul_f32',MEAN[tt],f32(1/576),SUM[0]), valu('v_cvt_pk_bf16_f32',dst,MEAN[tt],MEAN[tt]), valu('v_lshlrev_b32',dst,16,dst))
        for d in range(4): e(valu('v_xor_b32',CM[d],0x80000000,dst))
    for l in range(10):
        if l<9: e(*xread(0,R0,l))
        if l==0: e(*dq.pop(0))
        for _ in range(OPT['afill'] if l<9 else 999):
            if ao: e(ao.pop(0))
        if l>0:
            e(waitfor(lg=R0[2*l-2:2*l])); stats(0,R0,l-1,int(str(OPT.get('w1','x111111111'))[l]),len(pre0))
        if str(l) in str(OPT.get('tch','x0246')): e(*touch())
        if l==OPT['brl']: e(raw('s_branch L_main','misc'), I('.p2align 12','comment'), label('L_main'))
        pst(f'x0 rd {l}')
    stamp('x0 read')
    e(valu('v_add_u32',xr[0],73728,xr[0]), valu('v_add_u32',xr[1],73728,xr[1]))
    e(*xread(1,X1,0)); mean(0); pst('stat0')
    for l in range(9):
        for s_ in (2*l,2*l+1): centre(R0[s_],X0[s_],to_acc(s_) if s_>=NV0 else ())
        if l<8: e(*xread(1,X1,l+1))
        if l==OPT['barl']: e(barrier())
        e(waitfor(lg=X1[2*l:2*l+2])); stats(1,X1,l,int(str(OPT.get('w2','x111122222'))[l+1]),99 if l>=OPT['barl'] else len(pre0))
        pst(f'x1 rd {l}')
    while cq: e(cq.pop(0)[1])
    mean(1)
    reads=[f(it) for g in groups[:4] for it,f in g.rd][:L]; nb_=(L+1)//2+1
    n0=OPT['n0']
    for s_ in range(n0):
        ex=((),())
        if s_==n0-nb_: ex=((waitfor(vmtags=[it.name for it in items if it.bar==-L]), barrier()),()); stamp('x1 read'); pst('bar1')
        if s_>n0-nb_: pre_[:]=[reads.pop(0) for z in range(2) if reads]
        centre(X1[s_],X1[s_],ex=ex)
    assert not reads
    while cq: e(cq.pop(0)[1])
    e(waitfor(lg=groups[0].fr)); pst('go')
    for s_ in range(n0,18): push('ctr',0,centre_ops(X1[s_],1))
    for s_ in range(NV0): push('ctr',0,to_acc(s_))
    for o in dq: push('dma',-1,o)
    mx_=-1
    for it in items:
        mx_=max(mx_,it.early)
        if it.early>-2000: push('dma',it.early,it.mk(it),mx_)
    st=lambda k:groups[marks[k]].start
    def low(gap,f,*a):
        with collect() as o: f(*a)
        push('low',gap,o,gap)
    low(st('c0')+200,var_ops,0); low(st('c0')+200,var_ops,1)
    TCH=[(int(g_),touch()) for g_ in str(OPT['tat']).split(',') if int(g_)>=0]
    low(st('c1'),addr_mid); low(st('c1'),addr_mid2); low(st('qkv'),addr_pfd)
    low(st('c2')+200,addr_att,WB); low(st('c2')+200,addr_lds,WB)
    pt=[int(x) for x in OPT['pft'].split(',')]
    for k,(g_,o) in enumerate(zip(pt,[pf_gu(1) if OPT['pfn']<2 else [],pf_q() if OPT['pfn']<3 else [],pf_gu(2),pf_gu(3),pf_gu(4),pf_d(0),pf_d(1),pf_d(2)])):
        if o and (k==7 or pt[k+1]!=g_): o[-1].meta['cost']+=OPT['pfx']
        push('ld',g_,o,g_)
    low(st('c3'),pf_o)
    b1=[b for b in bars if b>st('c3')+60][0]
    bar_extra[b1]=['qkvst']
    ar=[salu('s_and_b32',sJH,S(2),1), salu('s_lshl_b32',sJH,sJH,7), salu('s_mov_b32',sJ128,1), salu('s_cmp_lg_u32',sW,0), raw('s_cbranch_scc1 L_arr','misc'),
        raw(f's_atomic_add {sJ128}, {sDBG[0:2]}, {sJH}','misc',sJ128.regs()+sJH.regs()), label('L_arr')]
    for x in ar[3:6]: x.meta['glue']=True
    for g_,o in sorted(TCH+[(b1,ar)],key=lambda z:z[0]): push('arr',g_,o,g_)
    ARR.append(ar[5])
    if OPT['stop']!='down':
        d0=st('down')
        att_setup(ngaps,kv,WB); bar_extra[bars[-1]]=[kv[0].name]
        low(b1,addr_z); low(b1,addr_fin); low(d0+400,addr_op); extra_zero(ngaps)
        ld=bload(vPOLL,vZ,sDBG,0,flags='sc1')
        push('ld',d0+OPT['f1poll'],[ld],d0+OPT['f1poll'])
        with collect() as o: qk_loads(WB)
        w_=waitfor(vm=[vPOLL]); w_.meta['lag']=(ld,100)
        push('ld',d0+OPT['f1poll'],[w_]+spin('f1',ld,128,40)+o,d0+OPT['f1poll'])
        for it in kv[:3]+(wo_main+wo_x)[:OPT['wob']]:
            early=max(free[b] for b in it.blks())
            assert early>d0+300
            if early<LATE: push('dma',early,it.mk(it),ngaps-1); it.pushed=True
    for k_,t_ in (('c0','gate/up columns 0..63'),('c1','gate/up columns 64..127'),('qkv','q, k, v'),('c2','gate/up columns 128..191'),('c3','gate/up columns 192..255'),('half','gate/up last 32 columns'),('down','down projection')): PH[st(k_)]='---- '+t_
    emit_backbone(bars,{groups[v].start:k for k,v in marks.items() if k in ('c0','qkv','down')})
    qs=[i.meta['at'] for i in P if i.meta.get('tag')=='qkvst']; assert len(qs)==12 and max(qs)<b1-SIG,(qs,b1)
    print('arrival at',ARR[0].meta['at'],'poll at',ld.meta['at'])
    stamp('down end')
    if OPT['stop']=='down':
        for nm in ('epi','st','low','dma'):
            for af,o in fifo[nm]: e(o)
    else:
        attention(ngaps,kv,WB,wo_main+wo_x)
        stamp('att end')
        final(ngaps+1000,wo_main,wo_x)
        fallback(kv,WB)
    finish()

def sizes(lines):
    import subprocess, re
    uniq=sorted(set(lines))
    src='.amdgcn_target "amdgcn-amd-amdhsa--gfx950"\n.text\nLX:\n'+'\n'.join(re.sub(r'L_codeend-L_pc-4','0x12345',re.sub(r'(s_branch|s_cbranch\w+) \w+',r'\1 0',u)) for u in uniq)+'\n'
    open('_sz.s','w').write(src)
    r=subprocess.run(['llvm-mc','-triple=amdgcn-amd-amdhsa','-mcpu=gfx950','-show-encoding','_sz.s'],capture_output=True,text=True)
    assert r.returncode==0,r.stderr[:2000]
    enc=re.findall(r'encoding: \[([^\]]*)\]',r.stdout)
    assert len(enc)==len(uniq),(len(enc),len(uniq))
    return {u:len(x.split(',')) for u,x in zip(uniq,enc)}
PGAT=[]
def page_stubs(out):
    sz=sizes([i.text for i in out if i.kind not in ('label','comment')])
    k0=[k for k,i in enumerate(out) if i.text=='L_main:'][0]
    print('entry part bytes',sum(sz.get(i.text,0) for i in out[:k0]))
    res=out[:k0+1]; off=0; pg=0; prev=None; forced=False
    npg=4*ntouch[0]
    for k in range(k0+1,len(out)):
        i=out[k]
        if pg<npg and off>=4096*pg and not (prev is not None and prev.meta.get('glue')):
            good=prev is not None and prev.kind=='mfma' and i.kind in ('dsr','valu','trans')
            if good or off-4096*pg>=40 or pg==0 or forced:
                res+=[label(f'L_pg{pg}'), raw(f's_cbranch_execz L_tr{pg//4}')]; off+=4; PGAT.append((pg,i.meta.get('at'))); pg+=1
        res.append(i); off+=sz.get(i.text,0)
        if i.text=='.p2align 12': off=-(-off//4096)*4096; forced=True; continue
        if i.kind not in ('label','comment'): prev=i
    print('main part bytes',off,'pages touched',pg,'of',-(-off//4096))
    print('page starts',PGAT)
    while pg<npg: OUT.extend([f'L_pg{pg}:',f's_branch L_tr{pg//4}']); pg+=1
    return res
DOC=""";
; out = x + (MHA(LN(x)) @ wo) * silu(ReGLU(LN(x)))      one persistent launch, one workgroup (4 waves, 512 registers) per CU
; The instruction stream is written out in full by a generator script; every wave runs the same stream.
;
; 1. LayerNorm: 128 rows per workgroup, 32 per wave, kept in registers as MFMA B operands. Row sums and sums of squares come
;    from MFMAs; the rows are centred, 1/sd is applied later (q,k,v when they are written, down before the gate).
; 2. gate/up (288 columns of F per workgroup), q,k,v (108 columns) and down (K = those 288 columns): weights stream through an
;    LDS ring (LDS-DMA, transposing reads). h = relu(gate)*up stays in registers; q,k,v and the bf16 partial sums of down go
;    to d_ws with write-through stores.
; 3. attention: one head x 256 queries per workgroup. S^T = K Q^T with the softmax shift folded in as two extra K slots;
;    P = exp2(S^T); O^T and the row sums accumulate through the sparse MFMA, which picks the upper halves of the fp32 P.
;    Shift = (maximum over the first 64 keys) + 90. Softmax does not depend on the shift unless something over- or
;    underflows, so the result is checked (row sum in [2^-92, 2^126], O finite and above 2^-103); a wave that fails the check
;    repeats its rows with the true maximum over all keys (L_fb).
; Hand-offs between workgroups: stores are drained (vmcnt) before a counter is touched; the counters in d_ws are reset by this
; launch before the d_debug counter that everyone passes first. Every wait is bounded.
"""
def finish():
    cur[0]=10**7
    if OPT['stamps']:
        e(raw('s_waitcnt lgkmcnt(0)','misc'), waitfor(vmall=True))
        stamp('drained'); e(raw('s_waitcnt lgkmcnt(0)','misc'))
        n=nstamp[0]
        for k in range(max(0,n-7),n): e(raw(f'v_writelane_b32 v13, s{64+2*(k%7)}, {k}','misc'))
        if 'padto' in OPT:
            e(raw('s_nop 1','misc'), raw(f'v_readlane_b32 s46, v13, {OPT["padto"]}','misc'), raw('s_nop 3','misc'))
            e(salu('s_add_u32',sT0,sT0,10000), label('L_pad'), raw('s_memrealtime s[98:99]','misc'), raw('s_waitcnt lgkmcnt(0)','misc'), salu('s_sub_u32',sT1,S(98),sT0), salu('s_cmp_lt_i32',sT1,0), raw('s_cbranch_scc1 L_pad','misc'))
        else:
            e(salu('s_lshl_b32',sT0,S(2),2), salu('s_add_u32',sT0,sT0,sW), salu('s_lshl_b32',sT0,sT0,8), salu('s_add_u32',sT0,sT0,WS_STAMP))
            e(valu('v_lshlrev_b32',V(1),2,vL), bstore(vST,V(1),sWS,sT0))
    check_order(P)
    out=finalize(P,verbose=OPT['v'],name='main')
    out=page_stubs(out+[raw('s_endpgm'),I('.p2align 12','comment')]+HOT)
    hdr=open('recurrent_scan__mha_block__glu_gated_reglu__prompt.s.ref').read().split('; Override launch')[0]
    txt=hdr+'; @launch grid=(256,1,1) block=(256,1,1) lds=163840\n'+DOC+'.amdgcn_target "amdgcn-amd-amdhsa--gfx950"\n.text\n'
    txt+=f'.globl {NAME}\n.p2align 12\n.p2align 8\n.type {NAME},@function\n{NAME}:\n'
    txt+='\n'.join(i.text for i in out)+'\n'+'\n'.join(OUT)+'\ns_endpgm\nL_codeend:\n'
    txt+=f'''.section .rodata,"a"
.p2align 6
.amdhsa_kernel {NAME}
  .amdhsa_next_free_vgpr 512
  .amdhsa_next_free_sgpr 102
  .amdhsa_accum_offset 256
  .amdhsa_group_segment_fixed_size 0
  .amdhsa_kernarg_size 80
  .amdhsa_user_sgpr_count 2
  .amdhsa_user_sgpr_kernarg_segment_ptr 1
  .amdhsa_system_sgpr_workgroup_id_x 1
  .amdhsa_float_denorm_mode_32 {OPT.get('dn',3)}
.end_amdhsa_kernel
'''
    open(sys.argv[1],'w').write(txt)
    print('bytes',len(txt))
main()
```

```python
import sys, struct, contextlib
from asmlib import *

OPT=dict(stop='', stamps=0, pf=1, dmagap=3, look=14, split=0, stper=1, qstper=1, xat=1, stgap=29, n0=14, v=1, forcefb=0, astgap=6, f2lag=10, f2poll=58, f2chk=64, ldgap=4, dbgout=0, balone=2, nosc=1, lc1=36, lc2=64, vp=0, f2sl=2, pfe=0, aint='x', ke2=1, bint=4, apool=0, ap0=10, tatt=56, pfn=1, barl=4, brl=8, lgm=1, pfirst=0, rp=7, inl=0, pollat3=-1, mpoll='x', np2_=1, lgrp='6,3,3', ntail=3, ldel=0, warm=0, np2=1, xsh=9, gst_=4096, pfl='sc1', ffl='sc1', pevery=2, lookb=16, nlook=2, npc=2, pollat2=-1, frx=0, sprio=1, w3=1, snop=0, vmpat=0, hat=60, chk0=0, px=0, wcut='0,3,8,13,18,23,23,23', wob=23, ldmin=4, at0=290, atd=29, tat=-1, flagat=60, pollat=10, forceredo=0, lp1=20, lp2=70, nol=10, fsh=2, npoll=2, psleep=1, wopre=100, fillmm=20, rlead=100, rrate=120, ofl='', apre=60, x1n=2, afill=16, tlb=0, pfpos=6, pft='100,190,280,700,800,1060,1110,1112', swp=1, pfx=300, chain=6, qch=4, c0ch=3, touch=1, x0n=3, nblk=14, f1poll=40, qstgap=24, back=80, pfc=1, bartr=0)
for a in sys.argv[2:]:
    k,v=a.split('='); OPT[k]=int(v) if v.lstrip('-').isdigit() else v
NAME='recurrent_scan__mha_block__glu_gated_reglu__prompt_kernel'

WS_QKV=0; SL=81920
WS_P=0x800000; WS_PX=0x2800000; WS_O=0x2C00000; WS_OX=0x2E00000; WS_F3=0x2E40000; WS_R2=0x2E60000; WS_F2=0x2E80000; WS_STAMP=0x2F00000
OOB=0x80000000
LDS_OOB=0x30000
def f32(x): return struct.unpack('<I',struct.pack('<f',x))[0]
QSCALE=18**-0.5*1.4426950408889634
MARGIN=float(OPT.get('margin',90))

sX,sWQ,sWO,sWG,sWU,sWD,sOUT,sDBG,sWS=[S(4+4*n,4) for n in range(9)]
sW,sW1K,sI,sJ,sH,sIDX,sT0,sT1,sSO,sSO2=[S(40+n) for n in range(10)]
sLO,sHI,sONES,sW7K,sW5K=[S(50+n) for n in range(5)]
sSC=[S(55),S(56),S(57)]
sW18K,sJ1,sXC,sM8,sT2,sT3=[S(58+n) for n in range(6)]
sJ128,sJH=S(3),S(94); sSO3=S(95); sXP,sXX=S(92),S(93); sF3,sPV,sPV2=S(79),S(78),S(53)
sBD,sBL,sPC=S(96,2),S(98,2),S(100,2)
nstamp=[0]
def stamp(name,fine=False):
    if not OPT['stamps']: return
    if OPT.get('few') and name not in ('start','c0','down','down end','att end','drained'): return
    if ('gst' in OPT or 'ast' in OPT or 'pst' in OPT) and not fine and name!='start': return
    n=nstamp[0]; nstamp[0]+=1
    assert n<64
    r=64+2*(n%7)
    if n>=7: e(raw(f'v_writelane_b32 v13, s{r}, {n-7}','misc'))
    e(raw(f'{"s_memrealtime" if OPT["stamps"]==1 else "s_memtime"} s[{r}:{r+1}]','misc'))
    print('stamp',n,name)

vL=V(0)
vT=[V(1+n) for n in range(8)]
vR=[V(9),V(10)]
vM=[V(11),V(12)]
vPF=A(255)
vST=V(13)
vGF,vGH,vDF,vDH=[V(14+n) for n in range(4)]
vTR=[[V(18+3*q+n) for n in range(3)] for q in range(4)]
vQK=[V(30+n) for n in range(7)]
vQM=[V(37+n) for n in range(3)]; vQE=[V(40+n) for n in range(3)]
vSM,vSE0,vSE1,vSCX=[V(43+n) for n in range(4)]
vPS,vPX=V(47),V(48)
vF1,vONE=V(49),V(50)
vPG,vF3,vPOLL=V(51),V(52),V(53)
vX=[V(168+n) for n in range(4)]
XC1=V(56,72)
BANK=[V(128,64),V(192,64)]
XC0=A(0,72); HH=A(72,72); FR=A(144,64)
vKM,vKE=V(30),V(31); vVA=[V(32+n) for n in range(4)]
vKV,vWO,vWOE,vWX,vWXE=[V(36+n) for n in range(5)]
vPL,vPLX,vOL,vOLX,vOS,vOSX=[V(41+n) for n in range(6)]
vIDX,vF3L=V(54),V(55)
vXO,vXOX,vR2,vZ=V(11),V(12),V(9),V(10)
QE=V(14,2)
QM=[A(0,4),A(4,4)]
OO=[V(128,16),V(144,16)]
sOB=[S(80+2*n,2) for n in range(4)]
KM=[A(40+4*n,4) for n in range(3)]; KE=[A(52,2),A(56,2),A(54,2),A(58,2)]; vKE1=V(16)
VV=[A(8,8),A(16,8)]
XR=A(240,10)
PART=[A(60+4*n,4) for n in range(32)]
PARTX=[A(188+2*n,2) for n in range(10)]+[A(24+2*n,2) for n in range(6)]
SBB=[V(192,32),V(224,32),V(160,32)]

P=[]
cur=[-10**6,0]
sink=[None]
def setseq(i,gap=None):
    if 'seq' not in i.meta:
        cur[1]+=1; i.meta['seq']=(cur[0] if gap is None else gap,cur[1])
    return i
def e(*x):
    for i in x:
        if sink[0] is not None: sink[0].append(i)
        else: P.append(setseq(i)); i.meta['at']=cur[0]
@contextlib.contextmanager
def collect():
    o=[]; old=sink[0]; sink[0]=o
    yield o
    sink[0]=old
ARR=[]
fifo=dict(arr=[],dma=[],st=[],ld=[],ctr=[],epi=[],low=[])
def push(q,after,ops,logical=None):
    for o in ops: fifo[q].append((after,setseq(o,logical)))
def note(*t):
    for x in t: e(I('; '+x,'comment'))
def masked(dst,val,cmpop,a,b,tmp):
    e(valu(cmpop,'vcc',a,b), valu('v_mov_b32',tmp,OOB), valu('v_cndmask_b32',dst,tmp,val))

def prologue():
    e(salu('s_cmp_ge_u32',S(2),256), raw('s_cbranch_scc0 L_go','misc'), raw('s_endpgm','misc'), label('L_go'))
    for srd,off in ((sX,0),(sWG,32),(sWU,40),(sWQ,8),(sWO,16),(sWD,48),(sOUT,56),(sDBG,64),(sWS,72)): e(raw(f's_load_dwordx2 {srd[0:2]}, s[0:1], {off}','misc'))
    stamp('start')
    e(valu('v_lshrrev_b32',vT[0],6,V(0)), valu('v_and_b32',vL,63,V(0)))
    e(salu('s_and_b32',sXC,S(2),7), salu('s_lshr_b32',sIDX,S(2),3))
    pf_code()
    e(valu('v_readfirstlane_b32',sW,vT[0]))
    lg=OPT['lgm']
    e(salu('s_lshr_b32',sM8,sIDX,2), salu('s_lshr_b32',sI,sIDX,lg+1), salu('s_lshl_b32',sI,sI,lg), salu('s_and_b32',sT2,sXC,(1<<lg)-1), salu('s_add_u32',sI,sI,sT2))
    e(salu('s_mul_i32',sW18K,sW,18432))
    vx0,vx1,row,t=vX[0],vX[1],vT[2],vT[3]
    e(salu('s_lshl_b32',sT2,sI,2), salu('s_add_u32',sT2,sT2,sW), salu('s_lshl_b32',sT2,sT2,5))
    e(valu('v_lshrrev_b32',row,3,vL), valu('v_lshrrev_b32',t,4,vL), valu('v_and_b32',vx0,7,vL), valu('v_xor_b32',vx0,vx0,t),
      valu('v_xor_b32',vx1,4,vx0), valu('v_add_u32',t,sT2,row), valu('v_mul_u32_u24',t,1152,t),
      valu('v_lshl_add_u32',vX[2],vx0,4,t), valu('v_lshl_add_u32',vX[3],vx1,4,t), valu('v_add_u32',vX[3],8*1152-1024,vX[3]),
      valu('v_add_u32',vx0,1920,vX[2]), valu('v_add_u32',vx1,1920,vX[3]))
    e(salu('s_lshr_b32',sJ,sXC,lg), salu('s_lshl_b32',sJ,sJ,lg+1), salu('s_and_b32',sT3,sIDX,(2<<lg)-1), salu('s_add_u32',sJ,sJ,sT3), salu('s_and_b32',sJ1,sJ,1))
    e(salu('s_mul_i32',sSO2,sJ1,18432*OPT['swp']))
    if OPT['px']:
        n=OPT['px']
        e(salu('s_mul_i32',sT0,sT2,1152), salu('s_and_b32',sT1,sJ,288//n-1), salu('s_mul_i32',sT1,sT1,n*128), salu('s_add_u32',sT0,sT0,sT1), valu('v_lshl_add_u32',vT[4],vL,7,sT0))
    e(raw('s_waitcnt lgkmcnt(0)','misc'))
    if OPT['px']:
        n=OPT['px']
        m=(1<<min(n,36))-1
        e(raw(f's_mov_b32 exec_lo, {hex(m&0xffffffff)}','salu'), raw(f's_mov_b32 exec_hi, {m>>32}','salu'), gload(vPF,vT[4],sX[0:2],tag='pf'))
        if n==72: e(valu('v_add_u32',vT[4],36*128,vT[4]), gload(vPF,vT[4],sX[0:2],tag='pf'))
        e(raw('s_mov_b64 exec, -1','salu'))
    e(salu('s_sub_u32',sBL[0],sX[0],1920), salu('s_subb_u32',sBL[1],sX[1],0), salu('s_add_u32',sBD[0],sBL[0],sSO2), salu('s_addc_u32',sBD[1],sBL[1],0))
def prologue2():
    if OPT['tlb']:
        e(salu('s_mov_b32',sT0,2<<20), salu('s_mov_b32',sT1,4<<20))
        for srd,n in ((sWG,3),(sWU,3),(sWQ,1),(sWD,3),(sWO,1),(sWS,1),(sOUT,2)):
            for k in range(n): e(raw(f's_load_dword s80, {srd[0:2]}, {["0",sT0,sT1][k]}','misc'))
    e(salu('s_sub_u32',sSO2,18432,sSO2), salu('s_add_u32',sBL[0],sBL[0],sSO2), salu('s_addc_u32',sBL[1],sBL[1],0))
    e(salu('s_mul_i32',sXP,sJ1,OPT['swp']<<18), salu('s_mul_i32',sXX,sJ1,OPT['swp']<<15))
    e(salu('s_lshl_b32',sH,sXC,2), salu('s_and_b32',sT3,sIDX,3), salu('s_add_u32',sH,sH,sT3))
    e(salu('s_lshl_b32',sW1K,sW,10), salu('s_mul_i32',sW7K,sW,7168), salu('s_mul_i32',sW5K,sW,5120))
    for srd,n in ((sX,2048*1152),(sWQ,576*3456),(sWO,576*1152),(sWG,576*9216),(sWU,576*9216),(sWD,4608*1152),(sOUT,2048*1152),(sDBG,256),(sWS,0x10000000)):
        e(salu('s_mov_b32',srd[2],n), salu('s_mov_b32',srd[3],0x20000))
    e(salu('s_mov_b32',sLO,0x3f80), salu('s_mov_b32',sHI,0x3f800000), salu('s_mov_b32',sONES,0x3f803f80))
def pf_lane(t):
    if not OPT['pfe']: return vL
    e(salu('s_and_b32',sT1,sXC,1), salu('s_xor_b32',sT1,sT1,OPT['pfe']-1), salu('s_lshl_b32',sT1,sT1,6), valu('v_add_u32',t,sT1,vL)); return t
def addr_pf():
    row,t=vT[2],vT[3]; z=2 if OPT['pfe'] else 1; si=sM8 if OPT['pfe'] else sI
    ln=pf_lane(vT[4])
    e(salu('s_lshl_b32',sJ128,sJ1,7), salu('s_lshl_b32',sJH,sJ1,9), salu('s_sub_u32',sJH,512,sJH))
    e(salu('s_lshl_b32',sT0,si,2), salu('s_add_u32',sT0,sT0,sW), salu('s_mul_i32',sT0,sT0,z*9*9216), salu('s_mul_i32',sT1,sJ,576), salu('s_and_b32',sT1,sT1,-128), salu('s_add_u32',sT0,sT0,sT1),
      valu('v_mul_u32_u24',t,9216,vL), valu('v_add_u32',t,sT0,t))
    masked(vPG,t,'v_cmp_gt_u32',z*9,ln,row)
    u=row
    e(valu('v_mul_u32_u24',t,7282//z,vL), valu('v_lshrrev_b32',t,16,t), valu('v_mul_u32_u24',u,z*9,t), valu('v_sub_u32',u,vL,u), valu('v_mul_u32_u24',u,3456,u), valu('v_lshl_add_u32',u,t,7,u),
      salu('s_lshl_b32',sT0,si,2), salu('s_add_u32',sT0,sT0,sW), salu('s_mul_i32',sT0,sT0,z*9*3456), salu('s_mul_i32',sT1,sJ,216), salu('s_and_b32',sT1,sT1,-128), salu('s_add_u32',sT0,sT0,sT1),
      valu('v_add_u32',u,sT0,u))
    masked(vPOLL,u,'v_cmp_gt_u32',z*27,ln,t)
def pf_gu(c):
    if not OPT['pf']: return []
    return [cost(bload(vPF,vPG,s,sJ128 if c<4 else sJH,c*128 if c<4 else 0,tag='pf'),90) for s in (sWG,sWU)]
def pf_q(): return [cost(bload(vPF,vPOLL,sWQ,0,tag='pf'),270)] if OPT['pf'] else []
def addr_pfd():
    t,u=vPOLL,vT[7]; z=2 if OPT['pfe'] else 1; si=sM8 if OPT['pfe'] else sI
    ln=pf_lane(vT[4])
    e(salu('s_lshl_b32',sT0,si,2), salu('s_add_u32',sT0,sT0,sW), salu('s_mul_i32',sT0,sT0,z*81*64), salu('s_and_b32',sT0,sT0,-128), salu('s_mul_i32',sT1,sJ,288*1152), salu('s_add_u32',sT0,sT0,sT1),
      valu('v_mul_u32_u24',t,384,vL), valu('v_add_u32',t,sT0,t))
    masked(vPOLL,t,'v_cmp_gt_u32',14*z,ln,u)
def pf_d(k): return [cost(bload(vPF,vPOLL,sWD,0,k*128,tag='pf'),140)] if OPT['pf'] else []
def pf_o():
    if not OPT['pf']: return
    t,u=vT[4],vT[5]
    e(salu('s_lshl_b32',sT0,S(2),2), salu('s_add_u32',sT0,sT0,sW), salu('s_mul_i32',sT0,sT0,6*128), valu('v_lshl_add_u32',t,vL,7,sT0))
    masked(t,t,'v_cmp_gt_u32',6,vL,u)
    e(cost(bload(vPF,t,sWO,0,tag='pf'),60))
def cost(i,c): i.meta['cost']=c; return i
def xdma(tt,l):
    base=sBD if tt==0 else sBL
    o=[salu('s_add_u32','m0',sW18K,tt*73728+l*1920)] if l%2==0 else []
    for z in range(2): o.append(gdma(vX[2*(l&1)+z],base,(l&~1)*128+(2*(l&1)+z)*1024,tag=('x',tt,l),private=True))
    return o
SELA=A(208,2)
def sel_ops(m,g):
    return [valu('v_and_b32',m,1,vL), valu('v_lshlrev_b32',m,4,m), valu('v_lshlrev_b32',m,m,sLO), valu('v_bfe_u32',g,vL,1,1), valu('v_mul_lo_u32',g,g,m), valu('v_sub_u32',m,m,g),
      valu('v_accvgpr_write_b32',SELA[0],m), valu('v_accvgpr_write_b32',SELA[1],g)]
ntouch=[0]
def touch():
    if not OPT['touch']: return []
    k=ntouch[0]; ntouch[0]+=1
    o=[raw('s_mov_b64 exec, 0','salu')]
    for w in range(3): o+=[salu('s_cmp_eq_u32',sW,w), raw(f's_cbranch_scc1 L_pg{4*k+w}','misc')]
    o+=[raw(f's_branch L_pg{4*k+3}','misc'), label(f'L_tr{k}'), raw('s_mov_b64 exec, -1','salu')]
    for x in o[:-1]: x.meta['glue']=True
    return o

def lane_rp(rp,p,t):
    e(valu('v_lshrrev_b32',rp,3,vL), valu('v_and_b32',t,6,rp), valu('v_and_b32',p,7,vL), valu('v_xor_b32',p,p,t))
def addr_early():
    rp,p,t,u,kA=vT[2],vT[3],vT[4],vT[5],vT[6]
    lane_rp(rp,p,t)
    e(salu('s_and_b32',sT0,sW,1), salu('s_lshl_b32',sT0,sT0,4), salu('s_lshr_b32',sT1,sW,1), salu('s_lshl_b32',sT1,sT1,2), salu('s_add_u32',sT0,sT0,sT1))
    e(valu('v_and_b32',t,4,rp), valu('v_add_u32',kA,rp,t), valu('v_add_u32',kA,sT0,kA))
    e(salu('s_mul_i32',sT1,sJ,288), salu('s_lshl_b32',sT2,sJ1,5), salu('s_add_u32',sT2,sT2,sT1))
    e(salu('s_lshl_b32',sT3,sJ1,8), salu('s_sub_u32',sT3,256,sT3), salu('s_add_u32',sT3,sT3,sT1))
    e(salu('s_lshl_b32',sT0,sT2,1), valu('v_mul_u32_u24',t,9216,kA), valu('v_lshl_add_u32',t,p,4,t), valu('v_add_u32',vGF,sT0,t))
    e(salu('s_lshl_b32',sT0,sT3,1), valu('v_lshrrev_b32',t,2,p), valu('v_lshl_add_u32',t,t,5,kA), valu('v_mul_u32_u24',t,9216,t),
      valu('v_and_b32',u,3,p), valu('v_lshl_add_u32',t,u,4,t), valu('v_add_u32',vGH,sT0,t))
    e(salu('s_lshl_b32',sT0,sW,3), valu('v_add_u32',t,sT0,rp), valu('v_add_u32',u,sT2,t), valu('v_mul_u32_u24',u,1152,u), valu('v_lshl_add_u32',vDF,p,4,u),
      valu('v_add_u32',u,sT3,t), valu('v_mul_u32_u24',u,1152,u), valu('v_lshl_add_u32',vDH,p,4,u))
    g,r4,c,b=vT[2],vT[3],vT[6],vT[7]
    e(valu('v_bfe_u32',r4,vL,2,3), valu('v_and_b32',c,3,vL), valu('v_lshrrev_b32',g,5,vL),
      valu('v_lshlrev_b32',b,10,g), valu('v_lshl_add_u32',b,r4,7,b), valu('v_lshl_add_u32',b,c,3,b), valu('v_lshrrev_b32',t,1,r4))
    for q in range(4):
        e(valu('v_xor_b32',u,q,t), valu('v_lshl_add_u32',vTR[q][0],u,5,b), valu('v_add_u32',vTR[q][1],0x10000,vTR[q][0]), valu('v_add_u32',vTR[q][2],0x20000,vTR[q][0]))
def addr_qk():
    t=vT[4]
    e(salu('s_mul_i32',sT0,sJ,216), salu('s_and_b32',sT0,sT0,-16), salu('s_mul_i32',sT1,sW,32*3456), salu('s_add_u32',sT0,sT0,sT1))
    for q in range(7):
        pp,rr,k=vT[2],vT[3],vT[6]
        e(valu('v_add_u32',pp,64*q,vL), valu('v_mul_u32_u24',rr,4682,pp), valu('v_lshrrev_b32',rr,16,rr),
          valu('v_mul_u32_u24',t,14,rr), valu('v_sub_u32',pp,pp,t),
          valu('v_and_b32',t,12,rr), valu('v_and_b32',k,3,rr), valu('v_lshl_add_u32',k,t,1,k), valu('v_lshrrev_b32',t,4,rr), valu('v_lshl_add_u32',k,t,2,k),
          valu('v_mul_u32_u24',k,3456,k), valu('v_lshl_add_u32',k,pp,4,k), valu('v_add_u32',vQK[q],sT0,k))
        if q%4: e(valu('v_subrev_u32',vQK[q],1024*(q%4),vQK[q]))
def extpos(dst,key,t):
    e(valu('v_and_b32',dst,7,key), valu('v_bfe_u32',t,key,4,1), valu('v_lshl_add_u32',dst,t,3,dst),
      valu('v_bfe_u32',t,key,3,1), valu('v_xor_b32',t,1,t), valu('v_lshl_add_u32',dst,t,4,dst))
def addr_mid():
    t,u,c=vT[4],vT[5],vT[6]
    e(valu('v_and_b32',c,3,vL), salu('s_lshl_b32',sT0,sJ1,3), valu('v_lshrrev_b32',t,2,vL), valu('v_mul_u32_u24',t,224,t), valu('v_add_u32',t,sT0,t),
      valu('v_lshl_add_u32',vQM[0],c,3,t), valu('v_mul_u32_u24',u,72,c), valu('v_add3_u32',vQE[0],t,u,32))
    for n in (1,2): e(valu('v_add_u32',vQM[n],n*0x10000,vQM[0]), valu('v_add_u32',vQE[n],n*0x10000,vQE[0]))
def addr_mid2():
    t,u,key,hf=vT[4],vT[5],vT[2],vT[3]
    e(salu('s_lshl_b32',sT0,sI,2), salu('s_add_u32',sT0,sT0,sW), salu('s_mul_i32',sT0,sT0,1280), salu('s_mul_i32',sT1,sJ,6*SL), salu('s_add_u32',sT0,sT0,sT1))
    e(salu('s_lshr_b32',sT1,sXX,11), valu('v_xor_b32',u,sT1,vL), valu('v_and_b32',key,31,u), valu('v_lshrrev_b32',hf,5,vL), valu('v_lshlrev_b32',t,2,hf), valu('v_xor_b32',t,t,u), valu('v_lshlrev_b32',t,4,t), valu('v_add_u32',vSM,sT0,t))
    extpos(u,key,t)
    e(valu('v_lshlrev_b32',u,3,u), valu('v_add_u32',u,sT0,u), valu('v_add_u32',u,1024,u), valu('v_mul_u32_u24',t,4*SL,hf), valu('v_add_u32',vSE0,u,t),
      valu('v_lshl_add_u32',vSE1,hf,31,u))
    e(salu('s_mul_i32',sT0,sJ,6), valu('v_lshrrev_b32',t,4,vL), valu('v_lshl_add_u32',t,t,1,sT0), valu('v_mov_b32',u,f32(QSCALE)), valu('v_cmp_gt_u32','vcc',32,t), valu('v_cndmask_b32',vSCX,1.0,u))
    for p_ in range(3): e(valu('v_readlane_b32',sSC[p_],vSCX,16*p_))
    e(salu('s_lshl_b32',sT0,sI,2), salu('s_add_u32',sT0,sT0,sW), salu('s_lshl_b32',sT1,sT0,9), salu('s_add_u32',sT1,sT1,sJ), salu('s_lshl_b32',sT1,sT1,10),
      valu('v_lshl_add_u32',vPS,vL,4,sT1),
      salu('s_lshl_b32',sT1,sT0,7), salu('s_add_u32',sT1,sT1,sJ), salu('s_lshl_b32',sT1,sT1,9), valu('v_lshl_add_u32',vPX,vL,3,sT1))
    e(salu('s_lshl_b32',sT1,sT0,11), salu('s_add_u32',sT1,sT1,WS_F2), valu('v_lshl_add_u32',t,vL,9,sT1), salu('s_and_b32',sT3,sJ,3), salu('s_lshl_b32',sT3,sT3,9), salu('s_add_u32',sT3,sT3,sT1))
    masked(vF1,t,'v_cmp_gt_u32',4,vL,u)
    e(salu('s_lshl_b32',sT1,sM8,2), salu('s_add_u32',sT1,sT1,sW), salu('s_lshl_b32',sT1,sT1,12), salu('s_add_u32',sT1,sT1,WS_F3), valu('v_lshl_add_u32',t,vL,9,sT1))
    masked(vF3,t,'v_cmp_gt_u32',8,vL,u)
    e(salu('s_lshl_b32',sT1,sXC,2), salu('s_lshr_b32',sT2,sIDX,3), salu('s_add_u32',sT1,sT1,sT2), salu('s_lshl_b32',sT1,sT1,1), salu('s_and_b32',sT2,sIDX,1), salu('s_add_u32',sT1,sT1,sT2),
      salu('s_lshl_b32',sT1,sT1,2), salu('s_add_u32',sT1,sT1,sW), salu('s_lshl_b32',sT1,sT1,9), salu('s_add_u32',sF3,sT1,WS_F3))
    e(raw(f'v_writelane_b32 {u}, {sT3}, 0','valu',u.regs()+sT3.regs(),u.regs()), raw(f'v_writelane_b32 {u}, {sF3}, 1','valu',u.regs()+sF3.regs(),u.regs()),
      valu('v_sub_u32',t,1,vL), valu('v_lshlrev_b32',t,4,t), cost(bstore(t,u,sWS,0,flags='sc1',tag='qkvst'),30))
    e(valu('v_and_b32',key,16,vL), valu('v_cmp_eq_u32','vcc',0,key), valu('v_cndmask_b32',hf,vR[1],vR[0]), valu('v_mul_f32',hf,hf,hf),
      salu('s_lshl_b32',sT0,sT0,7), salu('s_add_u32',sT0,sT0,WS_R2), valu('v_lshl_add_u32',key,vL,2,sT0), salu('s_lshl_b32',sT1,sJ,6), valu('v_add_u32',t,sT1,vL))
    masked(key,key,'v_cmp_gt_u32',32,t,u)
    e(bstore(hf,key,sWS,0,flags='sc1',tag='qkvst'))
def pf_code():
    if not OPT['pfc']: return
    t=vT[4]; a=V(6,2)
    e(raw('s_getpc_b64 s[100:101]','salu',[],['s100','s101']), label('L_pc'),
      salu('s_lshl_b32',sT0,sIDX,2), valu('v_add_u32',t,sT0,vT[0]), valu('v_lshl_add_u32',t,vL,7,t), valu('v_lshlrev_b32',t,7,t),
      raw(f'v_min_u32 {t}, L_codeend-L_pc-4, {t}','valu',t.regs(),t.regs()),
      raw(f'v_add_co_u32 {a[0]}, vcc, {sPC[0]}, {t}','valu',t.regs()+['s100'],a[0].regs()+['vcc']), valu('v_mov_b32',a[1],sPC[1]), raw('s_mov_b64 exec, 63','salu'),
      raw(f'v_addc_co_u32 {a[1]}, vcc, 0, {a[1]}, vcc','valu',a[1].regs()+['vcc'],a[1].regs()+['vcc']),
      I(f'global_load_dword {vPF}, {a}, off','vld',a.regs(),vPF.regs(),tag='pf'), raw('s_mov_b64 exec, -1','salu'))

GR=[V(38,4),V(42,4)]; MEAN=[V(46),V(47)]
def var_ops(tt):
    d=GR[tt]; t=vT[4]; b=d[0]
    e(valu('v_and_b32',t,1,vL), valu('v_cmp_eq_u32','vcc',0,t), valu('v_and_b32',t,2,vL), valu('v_cndmask_b32',d[0],d[1],d[0]), valu('v_cndmask_b32',d[2],d[3],d[2]),
      valu('v_cmp_eq_u32','vcc',0,t), valu('v_bfe_u32',t,vL,2,2), valu('v_cndmask_b32',d[0],d[2],d[0]), valu('v_lshrrev_b32',d[1],4,vL), valu('v_cmp_eq_u32','vcc',t,d[1]),
      valu('v_cndmask_b32',b,0,b))
    for op in ('v_permlane16_swap_b32','v_permlane32_swap_b32'): e(valu('v_mov_b32',d[1],b), swap(op,b,d[1]), valu('v_add_f32',b,b,d[1]))
    e(valu('v_mul_f32',b,f32(1/576),b), valu('v_fma_f32',b,'-'+str(MEAN[tt]),MEAN[tt],b), valu('v_max_f32',b,0,b), valu('v_cvt_pk_bf16_f32',b,b,b), valu('v_lshlrev_b32',b,16,b),
      valu('v_add_f32',b,f32(1e-5),b), valu('v_cvt_pk_bf16_f32',b,b,b), valu('v_lshlrev_b32',b,16,b),
      valu('v_sqrt_f32',b,b), valu('v_cvt_pk_bf16_f32',b,b,b), valu('v_lshlrev_b32',b,16,b), valu('v_rcp_f32',vR[tt],b))
def centre_ops(f,tt):
    o=[]; t=V(252)
    for d in range(4):
        x=f[d]
        o+=[valu('v_lshlrev_b32',t,16,x), valu('v_and_b32',x,0xffff0000,x), valu('v_sub_f32',t,t,vM[tt]), valu('v_sub_f32',x,x,vM[tt]), valu('v_cvt_pk_bf16_f32',x,t,x)]
    return o
def to_acc(s): return [valu('v_accvgpr_write_b32',XC0[4*s+d],X0[s][d]) for d in range(4)]

class Item:
    def __init__(s,name,n,mk): s.name=name; s.n=n; s.mk=mk; s.addr=None; s.first=None; s.last=None; s.pushed=False
    def blks(s): return list(range(s.addr//4096,s.addr//4096+s.n))
def blk_item(name,voff,srd,soff,buf=False,c=80):
    def mk(it):
        o=[salu('s_add_u32','m0',sW1K,it.addr)]
        if buf: return o+[salu('s_mov_b32',sSO,soff), cost(dma(voff,srd,sSO,tag=it.name,dst=it.blks()),c)]
        return o+base_add(sBD,srd,soff)+[cost(gdma(voff,sBD,tag=it.name,dst=it.blks()),c)]
    return Item(name,1,mk)
def qkv_item(a):
    def mk(it):
        o=[salu('s_mov_b32',sSO,a*128*3456)] if a==4 else base_add(sBD,sWQ,a*128*3456)
        for q in range(7):
            if q%4==0: o.append(salu('s_add_u32','m0',sW7K,it.addr+q*1024))
            if a==4: o.append(dma(vQK[q],sWQ,sSO,(q%4)*1024,tag=it.name,dst=it.blks()))
            else: o.append(cost(gdma(vQK[q],sBD,(q%4)*1024,tag=it.name,dst=it.blks()),120))
        return o
    return Item(('q',a),7,mk)
def kv_item(sg):
    def mk(it):
        o=[]
        for q in range(5):
            if q%4==0: o+=[salu('s_add_u32','m0',sW5K,it.addr+q*1024)]+base_add(sBD,sWS,WS_QKV+sg*10240+q*1024)
            o.append(gdma(vKV,sBD,(q%4)*1024,flags='sc1',tag=it.name,dst=it.blks())); o[-1].rd.append('ok_f1')
        return o
    return Item(('kv',sg),5,mk)

class Group:
    def __init__(s): s.m=[]; s.rd=[]; s.bar=False; s.fr=[]
frp=[0]
def newfrag():
    pl=[FR[4*n:4*n+4] for n in range(16)]+[A(216+4*n,4) for n in range(OPT['frx'])]
    f=pl[frp[0]]; frp[0]=(frp[0]+1)%len(pl); return f
def tr_read(f,u,it,seg):
    return dsr('ds_read_b64_tr_b16',f[2*u:2*u+2],vTR[seg][it.addr>>16],(it.addr&0xffff)+u*2048,src=(it.name,it.blks()))
def xc(tt,s): return (XC0 if tt==0 else XC1)[4*s:4*s+4]
def hfrag(k,tt): return HH[8*k+4*tt:8*k+4*tt+4]

items=[]; groups=[]; events=[]
def mm_group(srcs,accs,bfun,bar=False):
    g=Group(); g.bar=bar
    for it,seg,k in srcs:
        f=newfrag(); g.fr.append(f)
        for u in range(2): g.rd.append((it,lambda it,f=f,u=u,seg=seg: tr_read(f,u,it,seg)))
    for tt in range(2):
        for (it,seg,k),f in zip(srcs,g.fr):
            g.m.append(m16(accs[tt],f,bfun(k,tt),0 if k==0 else accs[tt]))
    groups.append(g); return len(groups)-1

def h_epilogue(bank,q,kout,half):
    gt=[bank[16*q+4*tt:16*q+4*tt+4] for tt in range(2)]; up=[bank[16*q+8+4*tt:16*q+12+4*tt] for tt in range(2)]
    o=[]
    for tt in range(2):
        for r in range(4): o.append(valu('v_max_f32',gt[tt][r],0,gt[tt][r]))
    for tt in range(2):
        for r in range(4): o.append(valu('v_mul_f32',up[tt][r],gt[tt][r],up[tt][r]))
        for d in range(2): o.append(valu('v_cvt_pk_bf16_f32',gt[tt][d],up[tt][2*d],up[tt][2*d+1]))
        for d in range(2): o.append(valu('v_accvgpr_write_b32',hfrag(kout,tt)[2*half+d],gt[tt][d]))
    return o
NV0=15
X0=[V(192+4*s,4) for s in range(NV0)]+[V(128+4*s,4) for s in range(18-NV0)]
def build_chunk(c,bank):
    xf=lambda k,tt: X0[k] if (c==0 and tt==0 and k<NV0) else xc(tt,k)
    cuts=list(range(0,19,OPT['chain']))
    if c==0: cuts=list(range(0,19,3)) if OPT['c0ch']==3 else [0,3,6,12,15,18]
    for st,(k0,k1) in enumerate(zip(cuts,cuts[1:])):
        G=[blk_item(('g',c,k),vGF,sWG,k*32*9216+c*128) for k in range(k0,k1)]
        U=[blk_item(('u',c,k),vGF,sWU,k*32*9216+c*128) for k in range(k0,k1)]
        items.extend(G+U)
        for q in range(4):
            mm_group([(G[k-k0],q,k) for k in range(k0,k1)],[bank[16*q+4*tt:16*q+4*tt+4] for tt in range(2)],xf,bar=(q==0))
        for q in range(4):
            gi=mm_group([(U[k-k0],q,k) for k in range(k0,k1)],[bank[16*q+8+4*tt:16*q+12+4*tt] for tt in range(2)],xf,bar=(q==0 and ((k1-k0>3 and str(c) not in str(OPT['aint'])) or OPT['bartr'] or (c==0 and st<OPT.get('bar0',2)))))
            if k1==18: events.append((gi,h_epilogue(bank,q,2*c+(q>>1),q&1)))
def build_half(bank):
    for st in range(3):
        G=[blk_item(('gh',3*st+n),vGH,sWG,(3*st+n)*64*9216,c=150) for n in range(3)]
        U=[blk_item(('uh',3*st+n),vGH,sWU,(3*st+n)*64*9216,c=150) for n in range(3)]
        items.extend(G+U)
        seq=[(G,0,0),(G,0,1),(U,8,0),(U,8,1)] if st<2 else [(G,0,0),(U,8,0),(G,0,1),(U,8,1)]
        for z,(M,o,q) in enumerate(seq):
            ch=min(6,OPT['chain'])
            for hh in range(6//ch):
                ks=[6*st+ch*hh+n for n in range(ch)]
                gi=mm_group([(M[(k-6*st)>>1],2*(k&1)+q,k) for k in ks],[bank[16*q+o+4*tt:16*q+o+4+4*tt] for tt in range(2)],lambda k,tt:xc(tt,k),bar=(hh==0 and (z==0 or (z==2 and st<2 and OPT['bartr']))))
            if st==2 and o==8: events.append((gi,h_epilogue(bank,q,8,q)))
def build_qkv(bank):
    for a in range(5):
        it=qkv_item(a); items.append(it)
        first=True
        qc=OPT['qch'] if a<4 else 2
        for k0 in range(0,4 if a<4 else 2,qc):
            for t in range(7):
                g=Group(); g.bar=first; first=False
                for kk in range(k0,k0+qc):
                    f=newfrag(); g.fr.append(f)
                    for u in range(2):
                        def rd(it,f=f,u=u,kk=kk,t=t):
                            ad=it.addr+kk*7168+u*3584+(0 if t==6 else 72*(t>>1)+40*(t&1))
                            return dsr('ds_read_b64_tr_b16',f[2*u:2*u+2],(vQE if t==6 else vQM)[ad>>16],ad&0xffff,src=(it.name,it.blks()))
                        g.rd.append((it,rd))
                for tt in range(2):
                    acc=bank[8*t+4*tt:8*t+4*tt+4]
                    for n,kk in enumerate(range(k0,k0+qc)):
                        k=4*a+kk
                        g.m.append(m16(acc,g.fr[n],xc(tt,k),0 if k==0 else acc))
                groups.append(g)
                if a==4: events.append((len(groups)-1,qkv_epilogue(bank,t)))
def st_pair(o,data,voff,soff,tag,x=None):
    a=salu('s_mov_b32',sSO2,soff) if x is None else salu('s_xor_b32',sSO2,x,soff); b=bstore(data,voff,sWS,sSO2,flags='sc1',tag=tag)
    dep=[x for x in o if x.kind=='valu'][-1]
    a.meta['q']='st'; b.meta['q']='st'; b.meta['dep']=dep
    o+=[a,b]
def qkv_epilogue(bank,t):
    o=[]
    sc=[bank[56],bank[57]]
    if t==6: o+=[valu('v_mul_f32',sc[tt],vSCX,vR[tt]) for tt in range(2)]
    elif t%2==0: o+=[valu('v_mul_f32',sc[tt],sSC[t>>1],vR[tt]) for tt in range(2)]
    a=bank[8*t:8*t+8]
    for tt in range(2):
        for r in range(4): o.append(valu('v_mul_f32',a[4*tt+r],sc[tt],a[4*tt+r]))
    if t<6:
        o+=[valu('v_cvt_pk_bf16_f32',a[0],a[0],a[1]), valu('v_cvt_pk_bf16_f32',a[1],a[2],a[3]), valu('v_cvt_pk_bf16_f32',a[2],a[4],a[5]), valu('v_cvt_pk_bf16_f32',a[3],a[6],a[7]),
            swap('v_permlane16_swap_b32',a[0],a[2]), swap('v_permlane16_swap_b32',a[1],a[3])]
        st_pair(o,a[0:4],vSM,WS_QKV+t*SL,'qkvst')
    else:
        o+=[valu('v_cvt_pk_bf16_f32',a[0],a[0],a[1]), valu('v_cvt_pk_bf16_f32',a[2],a[2],a[3]), valu('v_cvt_pk_bf16_f32',a[4],a[4],a[5]), valu('v_cvt_pk_bf16_f32',a[6],a[6],a[7])]
        o+=[valu('v_mov_b32',a[n],sONES) for n in (1,3,5,7)]
        o+=[swap('v_permlane16_swap_b32',a[0],a[4]), swap('v_permlane16_swap_b32',a[2],a[6])]
        for n,(vo,sl) in enumerate(((vSE0,0),(vSE0,1),(vSE1,2),(vSE1,3))):
            st_pair(o,a[2*n:2*n+2],vo,WS_QKV+sl*SL,'qkvst')
    return o
pool=[0]
def build_down():
    ntr=0
    if OPT['chain']==3: seq=[(c,3*tr,3*tr+3) for c,tr in [(0,0),(0,1),(1,0),(1,1),(0,2),(1,2)]+[(c,tr) for c in range(2,9) for tr in range(3)]]
    else:
        seq=[(0,0,6),(1,0,6),(0,6,9),(1,6,9)]
        for c in range(2,9): seq+=[(c,0,9)] if OPT['chain']==9 and c<8 else ([(c,0,6),(c,6,9)] if c%2==0 else [(c,0,3),(c,3,9)])
    for c,k0,k1 in seq:
        acc=V(192 if c==0 else 128+32*((c+1)%2),32)
        tr=2 if k1==9 else 0
        if True:
            B=[blk_item(('d',c,k),vDF if k<8 else vDH,sWD,(k*32*1152 if k<8 else 0)+c*128) for k in range(k0,k1)]
            items.extend(B)
            for q in range(4):
                gi=mm_group([(B[k-k0],q,k) for k in range(k0,k1)],[acc[16*tt+4*q:16*tt+4*q+4] for tt in range(2)],hfrag,bar=(q==0 and (ntr%OPT['bint']==0 or ntr==26 or k1-k0==9 or OPT['bartr'])))
                if tr==2 and q%2==1:
                    o=[]
                    for tt in range(2):
                        a=acc[16*tt+4*(q-1):16*tt+4*(q-1)+8]
                        pl=[XC1[4*n:4*n+4] for n in range(18)]; pa=([A(212+4*n,4) for n in range(7)]+[A(24+4*n,4) for n in range(4)]+[A(60+4*n,4) for n in range(3)])[:OPT['apool']]
                        n=pool[0]; pool[0]+=1; a0_=OPT['ap0']
                        if a0_<=n<a0_+len(pa):
                            d4=pa[n-a0_]
                            o+=[valu('v_cvt_pk_bf16_f32',a[d],a[2*d],a[2*d+1]) for d in range(4)]+[valu('v_accvgpr_write_b32',d4[d],a[d]) for d in range(4)]
                        else:
                            d4=pl[(n if n<a0_ else n-len(pa))%18]
                            o+=[valu('v_cvt_pk_bf16_f32',d4[d],a[2*d],a[2*d+1]) for d in range(4)]
                        if c<8: st_pair(o,d4,vPS,WS_P+(tt*16+c*2+(q>>1))*16384,'pst',sXP)
                        else:
                            for z in range(2): st_pair(o,d4[2*z:2*z+2],vPX,WS_PX+(tt*4+q-1+z)*8192,'pst',sXX)
                    events.append((gi,o))
            ntr+=(k1-k0)//3

marks={}
def build_ffn():
    marks['c0']=len(groups); build_chunk(0,BANK[0])
    marks['c1']=len(groups); build_chunk(1,BANK[1])
    marks['qkv']=len(groups); build_qkv(BANK[0])
    marks['c2']=len(groups); build_chunk(2,BANK[1])
    marks['c3']=len(groups); build_chunk(3,BANK[0])
    marks['half']=len(groups); build_half(V(224,32))
    marks['down']=len(groups); build_down()

NB=39 if OPT['split'] else 40; LATE=10**9
SIG=13 if OPT['split'] else 1
vCA,vCV=V(54),vT[7]
def plan():
    L=OPT['look']
    n=0; bars=[]
    for g in groups:
        g.start=n
        if g.bar: bars.append(n-L-(1 if n and OPT['balone']==2 else 0))
        for k,(it,_) in enumerate(g.rd):
            if it.first is None: it.first=n+k-L
            it.last=n-1+(0 if len(g.fr)<=3 else ((k//4)*2 if not OPT['w3'] else (k//6)*3))
        n+=len(g.m)
    free={b:(-3000 if b>=36 else (-2000 if b<18 else -L)) for b in range(NB)}
    ptr=36
    for it in items:
        if ptr+it.n>NB: ptr=0
        it.addr=ptr*4096
        it.early=max(free[b] for b in it.blks())
        assert it.early<LATE
        it.bar=max(b for b in bars if b<=it.first)
        nxt=[b for b in bars if b-SIG>=it.last]
        for b in it.blks(): free[b]=nxt[0] if nxt else LATE
        ptr=(ptr+it.n)%NB
    return n,bars,free

VM=('dma','vld','vst')
SC=('salu','waitfor','misc','label')
lastvm=dict(any=-100,st=-100)
def head(nm,gap):
    q=fifo[nm]
    if not q or q[0][0]>gap: return None
    x=q[0][1]
    if 'lag' in x.meta and x.meta['lag'][0].meta.get('at',LATE)+x.meta['lag'][1]>gap: return None
    sq=x.meta['seq']; rd=set(x.rd)-{'carry'}; wr=set(x.wr)-{'carry'}
    for n2,q2 in fifo.items():
        if n2==nm: continue
        for _,y in q2:
            if y.meta['seq']>sq: break
            if rd&set(y.wr) or wr&set(y.rd) or wr&set(y.wr): return None
    return x
pipe=[0,16]
def vm_ready(gap,mingap,stgap,order=('st','ld','low','dma')):
    if gap-lastvm['any']<mingap: return None
    if pipe[0]-gap*pipe[1]>OPT['back']: return None
    for nm in order:
        x=head(nm,gap)
        if x is None or x.kind not in VM: continue
        if nm=='st':
            d=x.meta.get('dep')
            if gap-lastvm['st']<stgap or (d is not None and d.meta.get('at',LATE)>gap-2): continue
        return nm
    return None
def take(nm,gap):
    x=fifo[nm].pop(0)[1]
    if x.kind in VM:
        lastvm['any']=gap
        pipe[0]=max(pipe[0],gap*pipe[1])+x.meta.get('cost',80)
        if nm=='st': lastvm['st']=gap
    e(x)
    nx=[y for _,y in fifo[nm][:6] if 'vcc' in y.rd or 'vcc' in y.wr]
    if nx and 'vcc' in nx[0].rd: vcc_open[0]=nm
    elif vcc_open[0]==nm: vcc_open[0]=None
    while x.meta.get('glue'):
        x=fifo[nm].pop(0)[1]; e(x)
    return x
vcc_lock=[LATE]; vcc_open=[None]
def pull(gap,scalar):
    order=('arr','st','ld','dma','ctr','epi','low') if scalar and OPT['sprio'] else ('arr','dma','st','ctr','epi','ld','low')
    if scalar:
        for nm in order:
            x=head(nm,gap)
            if x is not None and 'carry' in x.rd: take(nm,gap); return True
    elif vcc_open[0]: order=(vcc_open[0],)+order
    for nm in order:
        x=head(nm,gap)
        if x is None or x.kind in VM: continue
        if (x.kind in SC)!=scalar: continue
        if 'vcc' in x.wr and not x.meta.get('glue') and vcc_lock[0]<OPT.get('vlock',22): continue
        take(nm,gap); return True
    return False

bar_extra={}; PH={}
def emit_backbone(bars,gapstamps):
    L=OPT['look']
    reads=[(it,f,g.start-0.5) for g in groups for it,f in g.rd]
    ev={}
    for gi,ops in events: ev.setdefault(gi,[]).append(ops)
    bar_items={}
    for it in items: bar_items.setdefault(it.bar,[]).append(it.name)
    barset=set(bars); issue={}
    fixed={}; fixT={}
    nb=len([b for b in bars if b>=SIG and OPT['split']]); kb=0
    for gi,g in enumerate(groups):
        for k in range(len(g.m)):
            gap=g.start+k; fx=[]
            w_lg=list(groups[gi+1].fr) if (k==len(g.m)-1 and gi+1<len(groups)) else []
            if len(w_lg)>3: w_lg=w_lg[:3 if OPT['w3'] else 2]
            if len(g.fr)>3 and not OPT['w3'] and k in (1,3): w_lg=g.fr[k+1:k+3]
            if len(g.fr)>3 and OPT['w3'] and k in (2,5) and k+1<len(g.fr): w_lg=g.fr[k+1:k+4]
            if len(g.fr)>6 and k in (9,13): w_lg=groups[gi+1].fr[:1+(k-9)//2] if gi+1<len(groups) else []
            w_vm=[]
            for d in (1,SIG):
                b=gap+d
                if b in barset and d==(SIG if b>=SIG else 1): w_vm=bar_items.get(b,[])+bar_extra.get(b,[])
            if OPT['split']:
                if gap+SIG in barset: x=dsw('ds_sub_u32',vCA,vONE); x.meta['signal']=True; fixT[gap]=x
                if gap+7 in barset and gap+7>=SIG: assert gap not in fixT; fixT[gap]=dsr('ds_read_b32',vCV,vCA)
                if gap+1 in barset and gap+1>=SIG:
                    kb+=1; assert gap not in fixT
                    fixT[gap]=valu('v_cmp_lt_u32','vcc',4*(nb-kb),vCV); w_lg.append(vCV)
                    OUT.extend([f'L_sb{kb}:', f'ds_read_b32 {vCV}, {vCA}', 's_waitcnt lgkmcnt(0)', fixT[gap].text, 's_nop 0', f's_cbranch_vccnz L_sb{kb}', f's_branch L_sr{kb}'])
            if gap in barset:
                if OPT['split'] and gap>=SIG: fx.append([raw(f's_cbranch_vccnz L_sb{kb}','misc',['vcc'],check=True,glue=True), label(f'L_sr{kb}')])
                else: fx.append([barrier()])
            if w_lg or w_vm: fx.append([waitfor(lg=w_lg,vmtags=w_vm)])
            fixed[gap]=fx
    def stgap_at(gap):
        dn=gap>=groups[marks['down']].start
        iv=len([b for b in bars if b<=gap])
        if iv%OPT['stper' if dn else 'qstper']: return LATE
        if any(0<=g-gap<OPT['atd']*3//4 for g in extra): return LATE
        return OPT['stgap' if dn else 'qstgap']
    ri=[L]
    def rd():
        it,f,lg=reads[ri[0]]; ri[0]+=1; e(setseq(f(it),lg))
    planned=None
    for gi,g in enumerate(groups):
        for k,m in enumerate(g.m):
            gap=g.start+k
            if gap-1 in extra:
                cur[0]=gap-0.7
                e(*extra[gap-1])
                x=head('st',gap); n=extra[gap-1][-1].passes-3
                if x is not None and x.kind=='vst' and x.meta['dep'].meta.get('at',LATE)<gap-2: take('st',gap); n=0
                for _ in range(n): pull(gap-1,False)
            cur[0]=gap
            e(m)
            if gap in gapstamps: stamp(gapstamps[gap])
            if gap in PH: note(PH[gap])
            if 'gst' in OPT and gap in range(*map(int,OPT['gst'].split(':'))): stamp(f'gap{gap}',True)
            if planned:
                x=take(planned,gap); planned=None
                if x.kind=='dma': issue[x.meta['tag']]=gap
                continue
            fx=fixed[gap]
            nosc=OPT['nosc'] and P[-2].kind=='valu' and any(r=='vcc' or r[0]=='s' for r in P[-2].wr)
            if fx: e(*fx.pop(0))
            elif not nosc and not pull(gap,True) and OPT['snop']: e(raw('s_nop 0','misc'))
            if gap in barset and OPT['balone']==3 and not fx: continue
            if ri[0]<len(reads) and ri[0]<=gap+L: rd()
            elif ri[0]>=len(reads) and tail_reads: e(tail_reads.pop(0))
            used=False
            if gap in barset and OPT['balone'] and not fx: continue
            if gap+1 in barset and OPT['balone']==2 and not fx and len(fixed[gap+1])==1 and ri[0]<len(reads) and reads[ri[0]][0].bar<=gap: rd(); continue
            if fx: e(*fx.pop(0)); used=True
            if gap in fixT:
                e(fixT[gap]); used=True
                if fixT[gap].kind=='valu': continue
            lag=ri[0]<len(reads) and ri[0]<=gap+L
            if lag:
                if not used: rd()
                continue
            if gap+1 in fixed and not fixed[gap+1] and gap+1 not in fixT: planned=vm_ready(gap+1,OPT['dmagap'],stgap_at(gap+1))
            if used: continue
            if planned:
                if OPT['vmpat']==0 and ri[0]<len(reads) and reads[ri[0]][0].bar<=gap: rd()
                if OPT['vmpat']==2: pull(gap,False)
                continue
            vcc_lock[0]=min([b for b in bars if b>gap]+[LATE])-gap if OPT['split'] else LATE
            if not pull(gap,False) and not nosc: pull(gap,True)
        for ops in ev.get(gi,[]):
            for o in ops: push(o.meta.get('q','epi'),gap+4,[o])
    vcc_lock[0]=LATE
    sl=[(it.bar-SIG-issue[it.name],it.name) for it in items if it.name in issue]
    sl.sort(); print('min dma slack (gaps):',sl[:6])
    print('left after backbone:',{k:len(v) for k,v in fifo.items()})

OUT=[]
HOT=[]
def spin(name,load,expect,sleep=8,cmp='v_cmp_gt_u32',pre=[]):
    a=valu(cmp,'vcc',expect,vPOLL); a.meta['glue']=True
    b=raw(f's_cbranch_vccnz L_spin_{name}','misc',['vcc']); b.meta['glue']=True
    c=label(f'L_back_{name}')
    cnt=vT[6]
    OUT.extend([f'L_spin_{name}:', f'v_mov_b32 {cnt}, 0x40000', f'L_spinl_{name}:', *pre, load.text, 's_waitcnt vmcnt(0)', f'{cmp} vcc, {fmt(expect)}, {vPOLL}', 's_nop 1',
        f's_cbranch_vccz L_back_{name}', f'v_subrev_u32 {cnt}, 1, {cnt}', f'v_cmp_ne_u32 vcc, 0, {cnt}', f's_sleep {sleep}', f's_cbranch_vccnz L_spinl_{name}', f's_branch L_back_{name}'])
    a.wr.append(cnt.regs()[0]); a.wr.append('ok_'+name)
    return [a,b,c]

def addr_att(WB):
    t,u,key,hf,p,rp=vT[0],vT[1],vT[2],vT[3],vT[4],vT[5]
    e(valu('v_and_b32',key,31,vL), valu('v_lshrrev_b32',hf,5,vL), valu('v_lshlrev_b32',t,2,hf), valu('v_xor_b32',t,t,vL), valu('v_lshlrev_b32',vKM,4,t))
    extpos(u,key,t)
    e(valu('v_lshlrev_b32',vKE,3,u), valu('v_add_u32',vKE,1024,vKE))
    e(salu('s_lshr_b32',sT0,sW,1), salu('s_lshl_b32',sT0,sT0,5), salu('s_add_u32',sT0,sT0,sH), salu('s_add_u32',sT0,sT0,32), salu('s_mul_i32',sT0,sT0,SL),
      salu('s_and_b32',sT1,sW,1), salu('s_mul_i32',sT1,sT1,5120), salu('s_add_u32',sT0,sT0,sT1), valu('v_lshl_add_u32',vKV,vL,4,sT0))
def addr_z(): e(valu('v_and_b32',vZ,1,vL), valu('v_lshlrev_b32',vZ,7,vZ))
def qk_loads(WB):
    t,u,hf=vT[0],vT[1],vT[3]
    e(salu('s_mov_b32',sSO3,WS_R2), cost(bload(vR2,vR2,sWS,sSO3,flags='sc1'),40))
    e(valu('v_lshrrev_b32',hf,5,vL), valu('v_mul_u32_u24',u,1280,hf), valu('v_add_u32',u,u,vKE))
    e(salu('s_lshl_b32',sT0,sM8,2), salu('s_add_u32',sT0,sT0,sW), salu('s_mul_i32',sT0,sT0,2560), salu('s_mul_i32',sT1,sH,SL), salu('s_add_u32',sSO3,sT0,sT1))
    for x in range(2): e(bload(QM[x],vKM,sWS,sSO3,x*1280,flags='sc1'))
    e(cost(bload(QE[0],u,sWS,sSO3,0,flags='sc1'),40))
    e(salu('s_add_u32',sSO3,sT1,32*SL))
    for x in range(2): e(bload(KM[x],vKM,sWS,sSO3,x*1280,flags='sc1'), cost(bload(KE[x],vKE,sWS,sSO3,x*1280,flags='sc1'),40))
    e(valu('v_add_u32',vKM,WB,vKM), valu('v_add_u32',vKE,WB,vKE), valu('v_mov_b32',QE[1],0), valu('v_mov_b32',vIDX,0xdddd))
def zero_o():
    for x in range(2):
        for r in range(16): e(valu('v_mov_b32',OO[x][r],0))
def extra_zero(ngaps):
    with collect() as o: zero_o()
    push('ctr',ngaps-66,o,ngaps-66)
def addr_lds(WB):
    t,hf=vT[0],vT[3]
    e(valu('v_lshrrev_b32',hf,5,vL))
    c,r,k,x=vT[4],vT[5],vT[6],vT[1]
    e(valu('v_and_b32',c,3,vL), valu('v_bfe_u32',r,vL,2,2), valu('v_lshl_add_u32',r,hf,3,r))
    for n in range(4):
        uu,y=n>>1,n&1
        e(valu('v_add_u32',k,16*uu+4*y,r))
        extpos(x,k,t)
        e(valu('v_lshlrev_b32',x,3,x), valu('v_min_u32',t,1,c), valu('v_mul_u32_u24',t,LDS_OOB+64,t), valu('v_xor_b32',x,x,t), valu('v_add_u32',x,1024,x))
        e(valu('v_lshrrev_b32',t,1,c), valu('v_mul_u32_u24',t,36,t), valu('v_xor_b32',k,k,t), valu('v_lshlrev_b32',k,4,k), valu('v_and_b32',t,1,c), valu('v_lshl_add_u32',k,t,3,k))
        e(valu('v_and_b32',t,16,vL), valu('v_cmp_eq_u32','vcc',0,t), valu('v_cndmask_b32',k,x,k), valu('v_add_u32',vVA[n],WB,k))
vOP,vSH,vINC=V(55),V(16),V(17)
def addr_op():
    t,u,g=vT[2],vT[4],vT[5]
    e(salu('s_lshl_b32',sT0,sXC,2), valu('v_lshlrev_b32',vINC,sT0,vONE), salu('s_mov_b32',sPV,0), valu('v_add_u32',vKE1,1280,vKE))
    if OPT['vp']: e(valu('v_min_u32',vOP,1,vL), valu('v_lshl_add_u32',vOP,vOP,31,sF3))
    if OPT['warm']: e(salu('s_and_b32',sT0,sIDX,7), salu('s_lshl_b32',sT0,sT0,2), salu('s_add_u32',sT0,sT0,sW),
      salu('s_lshl_b32',sT1,sXC,2), salu('s_lshr_b32',sT2,sIDX,3), salu('s_add_u32',sT1,sT1,sT2),
      salu('s_lshr_b32',sT2,sT0,4), salu('s_lshl_b32',sT2,sT2,15), salu('s_and_b32',sT3,sT0,15), salu('s_lshl_b32',sT3,sT3,8), salu('s_add_u32',sT2,sT2,sT3),
      salu('s_lshl_b32',sT3,sT1,16), salu('s_add_u32',sT2,sT2,sT3), salu('s_add_u32',sT2,sT2,WS_O),
      valu('v_lshrrev_b32',g,1,vL), valu('v_lshl_add_u32',t,g,12,sT2), valu('v_and_b32',u,1,vL), valu('v_lshl_add_u32',t,u,7,t),
      salu('s_bfe_u32',sT2,sT0,0x10002), salu('s_lshl_b32',sT2,sT2,12), salu('s_and_b32',sT3,sT0,3), salu('s_lshl_b32',sT3,sT3,7), salu('s_add_u32',sT2,sT2,sT3),
      salu('s_lshl_b32',sT3,sT1,13), salu('s_add_u32',sT2,sT2,sT3), salu('s_add_u32',sT2,sT2,WS_OX),
      valu('v_and_b32',u,7,vL), valu('v_lshl_add_u32',vOP,u,9,sT2), valu('v_cmp_gt_u32','vcc',16,vL), valu('v_cndmask_b32',vOP,vOP,t), valu('v_cndmask_b32',g,u,g),
      valu('v_lshl_add_u32',g,g,2,2), valu('v_cmp_gt_u32','vcc',24,vL), valu('v_cndmask_b32',vSH,3,g))
def x_loads(): return [cost(bload(XR[2*q:2*q+2],vXO,sX,0,32*q),260) for q in range(4)]+[cost(bload(XR[8:10],vXOX,sX,0),200)]
def addr_fin():
    t,u,p,rp,a,b=vT[0],vT[1],vT[4],vT[5],vT[6],vT[3]
    lane_rp(rp,p,t)
    e(salu('s_and_b32',sT0,sW,1), salu('s_lshr_b32',sT1,sW,1), salu('s_mul_i32',sT2,sT0,20), salu('s_lshl_b32',sT3,sT1,3), salu('s_add_u32',sT2,sT2,sT3), valu('v_add_u32',a,sT2,rp),
      salu('s_mul_i32',sT2,sT0,288), salu('s_mul_i32',sT3,sT1,36), salu('s_add_u32',sT2,sT2,sT3), salu('s_add_u32',sT2,sT2,16),
      valu('v_lshrrev_b32',t,2,rp), valu('v_mul_u32_u24',t,144,t), valu('v_and_b32',b,3,rp), valu('v_add3_u32',b,b,t,sT2))
    e(salu('s_and_b32',sT0,sIDX,7), salu('s_lshl_b32',sT1,sT0,7), valu('v_lshl_add_u32',u,p,4,sT1),
      valu('v_mul_u32_u24',t,1152,a), valu('v_add_u32',vWO,t,u), valu('v_mul_u32_u24',t,1152,b), valu('v_add_u32',vWOE,t,u))
    e(salu('s_lshr_b32',sT2,sT0,1), salu('s_lshl_b32',sT2,sT2,5), salu('s_add_u32',sT2,sT2,1024), valu('v_and_b32',u,1,p), valu('v_lshl_add_u32',u,u,4,sT2), valu('v_lshrrev_b32',p,1,p),
      valu('v_mul_u32_u24',t,36,p), valu('v_add_u32',t,t,a), valu('v_mul_u32_u24',t,1152,t), valu('v_add_u32',vWX,t,u),
      valu('v_mul_u32_u24',t,p,p), valu('v_mul_u32_u24',t,t,p), valu('v_mul_u32_u24',t,72,t), valu('v_add_u32',t,t,b), valu('v_mul_u32_u24',t,1152,t), valu('v_add_u32',vWXE,t,u))
    e(salu('s_lshr_b32',sT3,sIDX,3), salu('s_lshl_b32',sT3,sT3,2), salu('s_add_u32',sT3,sT3,sW), salu('s_lshl_b32',sSO3,sXC,4), salu('s_add_u32',sT3,sT3,sSO3))
    tk,g=vT[4],vT[5]
    e(valu('v_and_b32',tk,15,vL), valu('v_lshrrev_b32',g,4,vL))
    e(salu('s_lshl_b32',sSO3,sT3,3), salu('s_add_u32',sSO3,sSO3,sT0), salu('s_lshl_b32',sSO3,sSO3,15), valu('v_lshl_add_u32',vPL,vL,4,sSO3))
    e(salu('s_xor_b32',sSC[0],sW,sT0), salu('s_lshl_b32',sSC[0],sSC[0],31))
    e(salu('s_lshl_b32',sSO3,sT3,2), salu('s_lshr_b32',sSC[1],sT0,1), salu('s_add_u32',sSO3,sSO3,sSC[1]), salu('s_lshl_b32',sSO3,sSO3,13), salu('s_or_b32',sSO3,sSO3,sSC[0]), valu('v_lshl_add_u32',vPLX,vL,3,sSO3))
    e(salu('s_lshl_b32',sSO3,sT3,4), valu('v_add_u32',a,sSO3,tk), valu('v_lshlrev_b32',vR2,2,a), valu('v_mul_u32_u24',a,1152,a), valu('v_lshl_add_u32',a,g,3,a),
      valu('v_add_u32',vXO,sT1,a), salu('s_or_b32',sT2,sT2,sSC[0]), valu('v_add_u32',vXOX,sT2,a))
    if not OPT['xat']: e(*x_loads())
    e(salu('s_and_b32',sSO3,sT3,1), salu('s_lshl_b32',sSO3,sSO3,4), valu('v_add_u32',a,sSO3,tk), salu('s_lshr_b32',sSC[1],sT3,1),
      salu('s_lshl_b32',sSO3,sSC[1],15), valu('v_lshl_add_u32',t,a,4,sSO3), valu('v_lshl_add_u32',vOL,g,9,t),
      salu('s_lshl_b32',sSO3,sSC[1],12), valu('v_lshl_add_u32',t,a,2,sSO3), valu('v_lshl_add_u32',vOLX,g,10,t))
    e(valu('v_and_b32',t,31,vL))
    for n in range(4): e(*base_add(sOB[n],sWS,WS_O+8192*n+4096))
    e(*base_add(S(88,2),sWS,WS_O), *base_add(S(90,2),sWS,WS_O+32768))
    e(salu('s_lshr_b32',sSO3,sT3,1), salu('s_lshl_b32',sSO3,sSO3,11), salu('s_add_u32',sSO3,sSO3,WS_F2), salu('s_and_b32',sSC[1],sIDX,3), salu('s_lshl_b32',sSC[1],sSC[1],9), salu('s_add_u32',sSO3,sSO3,sSC[1]),
      valu('v_min_u32',vPG,1,vL), valu('v_lshl_add_u32',vPG,vPG,31,sSO3))
    e(salu('s_lshl_b32',sT0,sM8,2), salu('s_add_u32',sT0,sT0,sW), salu('s_lshl_b32',sT1,sT0,16), salu('s_lshl_b32',sT2,sH,10), salu('s_add_u32',sT1,sT1,sT2),
      valu('v_lshl_add_u32',vOS,vL,4,sT1),
      salu('s_lshl_b32',sT1,sT0,13), salu('s_lshl_b32',sT2,sH,7), salu('s_add_u32',sT1,sT1,sT2), salu('s_add_u32',sT1,sT1,WS_OX),
      valu('v_lshl_add_u32',t,t,2,sT1), valu('v_lshrrev_b32',u,5,vL), valu('v_lshl_add_u32',vOSX,u,12,t))

def max_ops(srcs,m,first=True):
    o=[]
    regs=[s[r] for s in srcs for r in range(16)]
    if first: o.append(valu('v_max3_f32',m,regs[0],regs[1],regs[2])); rest=regs[3:]
    else: rest=regs
    while len(rest)>=2: o.append(valu('v_max3_f32',m,m,rest[0],rest[1])); rest=rest[2:]
    if rest: o.append(valu('v_max_f32',m,m,rest[0]))
    return o
def set_shift(mx,margin):
    m,t=mx
    return [swap('v_permlane32_swap_b32',m,t), valu('v_max_f32',m,m,t), valu('v_sub_f32',m,f32(-margin) if margin else 0,m),
            valu('v_cvt_pk_bf16_f32',t,m,m), valu('v_lshlrev_b32',t,16,t), valu('v_sub_f32',t,m,t), valu('v_cvt_pk_bf16_f32',QE[1],m,t)]
def Bx(tau,buf=None): return m2b(buf or SBB[tau%3],KE[tau%4],QE,0)
def Mx(tau,x,buf=None): b=(buf or SBB[tau%3])[16*x:16*x+16]; return m32(b,KM[tau%3],QM[x],b)
def PV(tau,x,h,buf=None): return smf(OO[x],VV[tau&1][4*h:4*h+4],(buf or SBB[tau%3])[16*x+8*h:16*x+8*h+8],vIDX)
def vread(kv,WB,tau,n):
    it=kv[tau>>3]; off=it.addr-WB+10240+(tau&7)*1280
    return dsr('ds_read_b64_tr_b16',VV[tau&1][2*n:2*n+2],vVA[n],off,src=(it.name,it.blks()))
extra={}
def att_setup(ngaps,kv,WB):
    g=ngaps-OPT['at0']; d=OPT['atd']
    for k,m in enumerate((Bx(0),Bx(1),Mx(0,0),Mx(1,0),Mx(0,1),Mx(1,1))): extra[g+k*d]=[m]
    extra[g].insert(0,waitfor(vm=QM+KM[:2]+KE[:2]+[QE[0]]))
    mx=[vT[0],vT[1]]
    for x in range(2): push('ctr',g+(3+2*x)*d+7,max_ops([SBB[0][16*x:16*x+16],SBB[1][16*x:16*x+16]],mx[x]),g+(3+2*x)*d+2)
    push('ctr',g+5*d+7,set_shift(mx,MARGIN),g+5*d+2)
    for k,m in enumerate((Bx(0),Mx(0,0),Mx(0,1))): extra[g+(7+k)*d]=[m]
    assert g+9*d<ngaps-8
    tail_reads.extend(vread(kv,WB,0,n) for n in range(4))
tail_reads=[]

def attention(g0,kv,WB,wo_items):
    base=g0+100
    pipe[0]=0; pipe[1]=44
    def kread(tau):
        it=kv[tau>>3]; off=it.addr-WB+(tau&7)*1280; src=(it.name,it.blks())
        if tau<4 or not OPT['ke2']: ke=dsr('ds_read_b64',KE[tau%4],vKE,off,src=src)
        elif tau&2: ke=None
        else:
            o=(off-1280*(tau&1))//512; d=A(KE[tau&1].b,4); a=vKE1 if tau&1 else vKE
            ke=I(f'ds_read2st64_b64 {d}, {a} offset0:{o} offset1:{o+5}','dsr',a.regs(),d.regs(),src=src,private=False)
        return [dsr('ds_read_b128',KM[tau%3],vKM,off,src=src), ke]
    def flush(n,names=('ctr','epi','low','dma','ld')):
        k=0
        while k<n:
            for nm in names:
                x=head(nm,cur[0])
                if x is not None: take(nm,cur[0]); break
            else: return
            k+=1
    cur[0]=g0
    assert not fifo['ctr'] and not fifo['low'] and not fifo['ld']
    stamp('att'); note('---- attention')
    barx={7:[it.name for it in wo_items]}; f2done=[False]; wcut=[int(x) for x in OPT['wcut'].split(',')]
    for tau in range(64):
        n=2*tau; nx=tau<63; S=SBB[tau%3]
        if 'ast' in OPT and n in range(*map(int,OPT['ast'].split(':'))): stamp(f'slot{n}',True)
        ms=[Bx(tau+1) if nx else None, PV(tau-1,1,1) if tau else None, PV(tau,0,0), Mx(tau+1,0) if nx else None, PV(tau,0,1), Mx(tau+1,1) if nx else None, PV(tau,1,0)]
        km,ke=kread(tau+2) if tau+2<64 else (None,None)
        v=[vread(kv,WB,tau+1,z) if nx else None for z in range(4)]
        rds=[None,ke,v[0],v[1],km,v[2],v[3]]
        sg=(tau+3)//8 if (tau+3)%8==0 and tau+3<64 else None
        for k in range(7):
            gap=base+8*tau+(k+1 if k else 0); cur[0]=gap
            if tau==0 and k==1: flush(1000,('epi',)); e(waitfor(lg=[VV[0]]))
            if ms[k] is not None: e(ms[k])
            nsc=(0,2,2,1,2,1,2)[k]
            fx=k in (2,6) or (k==4 and sg is not None)
            vmn=vm_ready(gap,1,OPT['astgap'],('st','dma','ld','low')) if (not fx and k>0 and ms[k] is not None) else None
            if vmn: take(vmn,gap)
            else:
                if k==2: e(waitfor(lg=[VV[tau&1][4:8],KM[(tau+1)%3]])); nsc-=1
                if k==2 and tau==63 and OPT['warm']: e(*poll())
                if k==6: e(waitfor(lg=[VV[(tau+1)&1][0:4],KE[(tau+2)%4]])); nsc-=1
                if k==4 and sg is not None:
                    e(waitfor(vmtags=[kv[sg].name]+barx.get(sg,[])), barrier()); nsc-=2
                    if sg+1<8 and not kv[sg+1].pushed: push('dma',gap,kv[sg+1].mk(kv[sg+1]))
                    for it in [x for x in wo_items if not x.pushed][wcut[sg-1]:wcut[sg]]: push('dma',gap,it.mk(it))
                while nsc>0 and pull(gap,True): nsc-=1
            if rds[k] is not None: e(rds[k])
            x=head('ld',gap)
            if x is not None and x.kind=='valu': take('ld',gap)
            for r in (range(8) if k==0 else range(4*k+4,4*k+8)): e(valu('v_exp_f32',S[r],S[r]))
        if n==OPT['tatt']: push('arr',gap,touch())
        if n==2 and OPT['xat']: push('ld',gap,x_loads())
        if not fifo['st'] and not f2done[0]:
            f2done[0]=True; print('partial stores end at slot',n)
            push('st',gap+4*OPT['f2lag'],[waitfor(vmtags=['pst']), batomic(vONE,vF1,sWS,0,op='sub')])
        if n==OPT['f2poll']:
            ld=I(f'buffer_atomic_add {vPOLL}, {vPG}, {sWS}, 0 offen sc0','vld',vPOLL.regs()+vPG.regs(),vPOLL.regs(),tag=None)
            e(valu('v_mov_b32',vPOLL,0)); push('st',gap,[ld])
            t0=base+4*OPT['f2chk']
            w_=waitfor(vm=[vPOLL]); w_.meta['lag']=(ld,4*(OPT['f2chk']-OPT['f2poll']))
            push('ld',t0,[w_]+spin('f2',ld,0,OPT['f2sl'],'v_cmp_ne_u32',[f'v_mov_b32 {vPOLL}, 0']))
            ops=[]
            for k in range(32):
                if k%8==0: ops+=base_add(sBL,sWS,WS_P+k*1024+4096)
                ops.append(gload(PART[k],vPL,sBL,(k%8)*1024-4096,flags='sc1'))
                if k%2==1:
                    z=k>>1
                    if z%8==0: ops.append(salu('s_mov_b32',sSO3,WS_PX+z*512))
                    ops.append(bload(PARTX[z],vPLX,sWS,sSO3,(z%8)*512,flags='sc1'))
            nl=0; prev=None
            for o in ops:
                if o.kind=='vld':
                    if prev is not None: o.meta['lag']=(prev,OPT['ldmin'])
                    prev=o
                push('ld',t0+int(nl*OPT['ldgap']),[o])
                if o.kind=='vld': nl+=1
    cur[0]=base+600
    e(PV(63,1,1))
    print('att vmem slots:',' '.join(f"{'kv' if i.meta.get('tag') and i.meta['tag'][0]=='kv' else i.kind[1]}{(i.meta['at']-base)//4}" for i in P if i.kind in VM and i.meta['at']>=base))
    print('left after attention:',{k:len(v) for k,v in fifo.items()})
    assert not any(fifo.values()), 'work left after attention'

def fallback(kv,WB):
    global P
    save=P; P=[]
    pb=kv[5].addr
    a=[V(192+n) for n in range(6)]; vo=V(198); mx=[V(199),V(200)]; S=SBB[2]
    e(label('L_fb'), raw('s_waitcnt vmcnt(0) lgkmcnt(0)','misc'), raw('s_nop 15','misc'))
    for d,s in zip(a,[vKM,vKE]+vVA): e(valu('v_add_u32',d,sW5K,s))
    e(valu('v_lshlrev_b32',vo,4,vL), valu('v_mov_b32',QE[1],0), valu('v_mov_b32',mx[0],0xff800000), valu('v_mov_b32',mx[1],0xff800000))
    off=pb-WB
    for ps in range(2):
        e(salu('s_add_u32',sT0,sH,32), salu('s_mul_i32',sT0,sT0,SL), salu('s_add_u32',sT1,sT0,32*SL), salu('s_mov_b32',sT2,64), label(f'L_fbl{ps}'))
        e(salu('s_add_u32','m0',sW5K,pb), dma(vo,sWS,sT0,0,flags='sc1'), dma(vo,sWS,sT0,1024,flags='sc1'))
        if ps: e(salu('s_add_u32','m0',sW5K,pb+2560), dma(vo,sWS,sT1,0,flags='sc1'), dma(vo,sWS,sT1,1024,flags='sc1'))
        e(waitfor(vmall=True), dsr('ds_read_b128',KM[0],a[0],off), dsr('ds_read_b64',KE[0],a[1],off))
        if ps:
            for n in range(4): e(dsr('ds_read_b64_tr_b16',VV[0][2*n:2*n+2],a[2+n],off+2560))
        e(waitfor(lgall=True))
        e(Bx(0,S), Mx(0,0,S), Mx(0,1,S))
        for x in range(2):
            if ps==0: e(*max_ops([S[16*x:16*x+16]],mx[x],first=False))
            else:
                for r in range(16): e(valu('v_exp_f32',S[16*x+r],S[16*x+r]))
                for h in range(2): e(PV(0,x,h,S))
        e(raw('s_nop 15','misc'), salu('s_add_u32',sT0,sT0,1280), salu('s_add_u32',sT1,sT1,1280), salu('s_sub_u32',sT2,sT2,1), salu('s_cmp_lg_u32',sT2,0), raw(f's_cbranch_scc1 L_fbl{ps}','misc'))
        if ps==0:
            e(*set_shift(mx,0.0)); zero_o()
    e(*norm_store(0,V(116,2)), *norm_store(1,V(116,2)), waitfor(vmall=True))
    e(raw('s_nop 3','misc'), raw('s_branch L_fb_ret','misc'))
    OUT.extend(i.text for i in finalize(P,verbose=0,name='fb'))
    P=save

TT=[V(224,16),V(240,16)]
FLAG_LDS=[0]
def norm_store(x,t):
    O,T=OO[x],TT[x]
    o=[valu('v_rcp_f32',t[0],O[10]), valu('v_mov_b32',t[1],t[0]), swap('v_permlane32_swap_b32',t[0],t[1])]
    o+=[valu('v_mul_f32',T[r],t[0],O[r]) for r in range(10)]
    o+=[valu('v_cvt_pk_bf16_f32',T[d],T[2*d],T[2*d+1]) for d in range(4)]
    o+=[gstore(T[0:4],vOS,S(88+2*x,2),flags='sc1',tag='ost'), valu('v_cvt_pk_bf16_f32',T[8],T[8],T[9])]
    if x: o+=[swap('v_permlane32_swap_b32',TT[0][8],TT[1][8]), gstore(TT[0][8],vOSX,sWS[0:2],flags='sc1',tag='ost')]
    return o
def poll(r=sPV): return [raw(f's_atomic_umax {r}, {sWS[0:2]}, {sF3} glc')]
def final(g0,wo_main,wo_x):
    cur[0]=g0
    SA=V(56,20); DN=V(76,20); XF=V(96,20); tmp=V(116,12)
    e(*norm_store(0,tmp[0:2]), *norm_store(1,tmp[6:8]))
    stamp('o stored')
    fill=[]
    for x in range(2):
        s=tmp[2+x]
        fill.append(valu('v_add_f32_e64',s,f'|{OO[x][0]}|',f'|{OO[x][1]}|'))
        for r in range(2,10): fill.append(valu('v_add_f32_e64',s,s,f'|{OO[x][r]}|'))
    fill+=[valu('v_min_f32',tmp[4],tmp[2],tmp[3]), valu('v_add_f32',tmp[2],tmp[2],tmp[3]), valu('v_add_f32',tmp[3],OO[0][10],OO[1][10]), valu('v_add_f32',tmp[2],tmp[2],tmp[3]),
           valu('v_max_f32',tmp[0],tmp[0],tmp[6]), valu('v_fmac_f32',tmp[2],f32(2.0**(124-MARGIN)),tmp[0],rmw=True)]
    chk=[valu('v_cmp_nle_f32','vcc',f32(2.0**-103),tmp[4]), raw('s_cbranch_vccnz L_fb','misc',['vcc']),
      valu('v_cmp_nge_f32','vcc',f32(2.0**126) if not OPT['forcefb'] else f32(-1.0),tmp[2]), raw('s_cbranch_vccnz L_fb','misc',['vcc']), label('L_fb_ret')]
    pool_=[V(128+4*n,4) for n in range(32)]+[A(212+4*n,4) for n in range(7)]+[A(72+4*n,4) for n in range(34)]
    frs=[]; rds=[]
    order=[0,1,4,5,8,9,12,13,16,2,3,6,7,10,11,14,15,17]
    for s in order:
        for q in range(5):
            f=pool_[len(frs)%len(pool_)]; frs.append(f)
            for u in range(2): rds.append(tr_read(f,u,wo_main[s],q) if q<4 else tr_read(f,u,wo_x[s>>2],s&3))
    red=[]
    for j in range(16):
        for q in range(5):
            d=DN[4*q:4*q+4]
            red.append(m4(d,SELA,PART[16*(q>>1)+j][2*(q&1):2*(q&1)+2] if q<4 else PARTX[j],0 if j==0 else d))
    red+=[m4(XF[4*q:4*q+4],SELA,XR[2*q:2*q+2],0) for q in range(5)]
    e(waitfor(vm=PART+PARTX+[XR,vR2]))
    ri=0
    test=lambda: [waitfor(lgall=True,lgforce=True), salu('s_cmp_eq_u32',sPV,0x44444444)]
    def warm(r=sPV,tracked=False):
        if not OPT['warm']: return []
        t=vT[0]; ld=bload(vPF,t,sWS,0,flags='sc1',tag='pf')
        return [valu('v_lshrrev_b32',t,vSH,r), valu('v_not_b32',t,t), valu('v_lshl_add_u32',t,t,31,vOP), ld if tracked else raw(ld.text)]
    g,c2,ir=tmp[8],tmp[9],tmp[10]
    late_=[valu('v_mul_f32',c2,f32(-1.4426950408889634),vR2), valu('v_rcp_f32',ir,vR2),
           valu('v_bfe_u32',g,vL,4,1), valu('v_mul_u32_u24',g,24,g), valu('v_add_u32',vXO,vXO,g)]
    for k,mm in enumerate(red):
        e(mm)
        if k in (OPT['pollat'],OPT['pollat2'],OPT['pollat3']): e(*poll())
        if fill:
            e(fill.pop(0))
            if not fill: e(*chk, waitfor(lgall=True,lgforce=OPT['warm']), *warm(tracked=True), *base_add(sBL,sWS,WS_OX))
            continue
        if k==OPT['hat']: e(waitfor(vmtags=['ost']), batomic(vINC,vF3,sWS,0)); stamp('flag'); continue
        if k>=80: e(late_.pop(0)); continue
        if k%4==3: e(waitfor(lg=frs[:max(0,ri//2-4)]))
        e(rds[ri]); ri+=1
    assert ri<=2*39
    stamp('ready')
    EX=[V(30+n) for n in range(13)]+[V(45+n) for n in range(5)]+[V(14),V(15)]
    fill=[]
    for f in (lambda r:valu('v_mul_f32',EX[r],c2,DN[r]), lambda r:valu('v_exp_f32',EX[r],EX[r]), lambda r:valu('v_fma_f32',EX[r],EX[r],ir,ir),
              lambda r:valu('v_rcp_f32',EX[r],EX[r]), lambda r:valu('v_mul_f32',DN[r],EX[r],DN[r])):
        fill+=[(0,[f(r)]) for r in range(20)]
    OF=[A(4*s,4) for s in range(18)]
    def gate(name,mask):
        one=bin(mask).count('1')==1
        t=lambda: [salu('s_bitcmp1_b32',sPV,mask.bit_length()-1)] if one else [salu('s_and_b32',sT1,sPV,mask), salu('s_cmp_eq_u32',sT1,mask)]
        if OPT['vp']:
            n=OPT['vp']; PL=[vT[z] for z in range(n)]
            vp=lambda z: raw(f'buffer_atomic_umax {PL[z]}, {vOP}, {sWS}, 0 offen sc0')
            y=[label(f'L_w{name}'), vp(0), raw('s_waitcnt lgkmcnt(0)')]+t()+[raw(f's_cbranch_scc1 L_g{name}')]
            for z in range(1,n): y+=[raw(f's_sleep {OPT["psleep"]}'), vp(z)]
            y+=[label(f'L_wl{name}')]
            for z in range(n): y+=[raw(f's_waitcnt vmcnt({n-1})'), valu('v_readfirstlane_b32',sPV,PL[z])]+t()+[raw(f's_cbranch_scc1 L_g{name}'), vp(z)]
        else: y=[label(f'L_w{name}')]+(poll() if OPT['pfirst'] else [])+[label(f'L_wl{name}'), raw('s_waitcnt lgkmcnt(0)')]+t()+[raw(f's_cbranch_scc1 L_g{name}')]+poll()
        y+=[salu('s_addk_i32',sT0,-1), salu('s_cmp_gt_i32',sT0,0), raw(f's_cbranch_scc1 L_wl{name}'), raw(f's_branch L_g{name}')]
        if OPT['inl']: return t()+[raw(f's_cbranch_scc1 L_g{name}')]+y[:-1]+[label(f'L_g{name}')]
        HOT.extend(finalize(y,verbose=0))
        return t()+[raw(f's_cbranch_scc0 L_w{name}',glue=True), label(f'L_g{name}')]
    ge=gate('e',0x04040404)
    ol=[]
    for n,s in enumerate(order):
        if s<16: ol.append((gate(s,4<<(2*s)) if n>8 and s%2==0 else [], gload(OF[n],vOL,sOB[s>>2],(s&3)*2048-4096,flags='sc1')))
        else: ol+=[([],gload(OF[n][r],vOLX,sBL,(s-16)*512+r*128,flags='sc1')) for r in range(4)]
    for z in range(OPT['vp']): e(valu('v_mov_b32',vT[z],0))
    e(salu('s_mov_b32',sT0,0x80000), *ge)
    stamp('ok')
    lg_=[int(x) for x in str(OPT['lgrp']).split(',')]; assert sum(lg_)==12
    for _ in range(lg_.pop(0)): e(ol.pop(0)[1])
    if OPT['rp']&1: e(*poll())
    while ri<OPT['wopre']:
        if ri%4==0: e(waitfor(lg=frs[:max(0,ri//2-4)]))
        e(rds[ri]); ri+=1
    nf=len(fill)
    while len(fill)>OPT['fillmm']:
        e(*fill.pop(0)[1])
        if (nf-len(fill)) in (OPT['lc1'],OPT['lc2']) and lg_:
            for _ in range(lg_.pop(0)): e(ol.pop(0)[1])
            if OPT['rp']&(4>>len(lg_)): e(*poll())
    assert not lg_
    stamp('seen'); note('---- o @ wo, gate, residual')
    def epi(q):
        o=[valu('v_fmac_f32',XF[r],SA[r],DN[r],rmw=True) for r in range(4*q,4*q+4)]
        o+=[valu('v_cvt_pk_bf16_f32',tmp[2*q+d],XF[4*q+2*d],XF[4*q+2*d+1]) for d in range(2)]
        return o
    def put(b): return [swap('v_permlane16_swap_b32',tmp[b],tmp[b+2]), swap('v_permlane16_swap_b32',tmp[b+1],tmp[b+3]), bstore(tmp[b:b+4],vXO,sOUT,0,16*b,flags=OPT['ofl'])]
    k=0; nt=OPT['ntail']
    for s in range(18-nt):
        assert ri>=10*s+10
        e(waitfor(vm=[OF[s]],lg=frs[5*s:max(5*s+5,ri//2-3)]))
        for q in range(5):
            e(m16(SA[4*q:4*q+4],frs[k],OF[s],0 if s==0 else SA[4*q:4*q+4])); k+=1
            if q==0 and ol and s>=OPT['ldel'] and ol[0][0]:
                e(*ol[0][0])
                if OPT.get('mst'): stamp(f'g{s}')
                continue
            if q==0 and s in (9,12) and OPT.get('mst'): stamp(f's{s}')
            if q==1 and ol and s>=OPT['ldel']: e(ol.pop(0)[1]); continue
            if q==3 and str(s) in str(OPT['mpoll']): e(*poll())
            n=0
            while n<(1 if ri>=min(180,OPT['rlead']+int(k*OPT['rrate']/100)) else 2) and ri<len(rds) and ri//2-len(pool_)<k-1: e(rds[ri]); ri+=1; n+=1
            while n<2 and fill: e(*fill.pop(0)[1]); n+=1
    assert not fill and not ol and ri==len(rds),(ri,len(fill))
    ep=[]
    for z,q in enumerate((4,0,1,2,3)):
        for s in range(18-nt,18):
            e(waitfor(vm=[OF[s]],lg=[frs[5*s+q]]), m16(SA[4*q:4*q+4],frs[5*s+q],OF[s],SA[4*q:4*q+4])); k+=1
            n=0
            while ep and n<2 and ep[0][0]<=k:
                o=ep.pop(0)[1]; e(o); n+=1 if o.kind!='vst' else 2
        o=epi(q)+([bstore(tmp[8:10],vXOX,sOUT,0,flags=OPT['ofl'])] if q==4 else put(2*q-2) if q&1 else [])
        ep+=[(k+3,x) for x in o]
    stamp('mm done')
    for _,o in ep: e(o)

def main():
    build_ffn()
    ngaps,bars,free=plan()
    L=OPT['look']
    best=None
    for a0 in range(0,NB-14):
        fr=sorted((max(free[b] for b in range(a0+5*k,a0+5*k+5)),k) for k in range(3))
        key=(fr[0][0],fr[1][0])
        if best is None or key<best[0]: best=(key,a0,[k for _,k in fr])
    _,a0,order=best; WB=a0*4096
    print('attention window',best,'ngaps',ngaps,{k:groups[v].start for k,v in marks.items()})
    kv=[kv_item(s) for s in range(8)]
    for s,it in enumerate(kv): it.addr=(a0+5*order[s%3])*4096
    rest=sorted([b for b in range(NB) if not a0<=b<a0+15],key=lambda b:free[b])
    print('free',[free[b] for b in range(NB)])
    wo_main=[blk_item(('wo',s),vWO if s<16 else vWOE,sWO,36*s*1152 if s<16 else 72*(s-16)*1152) for s in range(18)]
    wo_x=[blk_item(('wx',n),vWX if n<4 else vWXE,sWO,144*n*1152 if n<4 else 0,buf=(n==4),c=320) for n in range(5)]
    for it,b in zip(wo_main+wo_x,rest): it.addr=b*4096
    FLAG_LDS[0]=rest[23]*4096

    def pst(name):
        if 'pst' in OPT: stamp(name,True)
    prologue(); pst('karg')
    pre0=[it for it in items if it.early==-3000]; pre1=[it for it in items if it.early==-2000]
    dq=[xdma(tt,l) for tt in range(2) for l in range(9)]+[it.mk(it) for it in pre0+pre1]
    for _ in range(OPT['x0n']): e(*dq.pop(0))
    pst('x0 issued')
    xr=[vM[0],vR[1]]; t,u=vT[2],vT[3]
    DT=[V(140+8*n,8) for n in range(3)]; CM=V(164,4); SUM=V(172,4); ONE4=V(176,4)
    prologue2()
    e(valu('v_and_b32',t,15,vL), valu('v_lshrrev_b32',u,1,t), valu('v_lshlrev_b32',t,7,t), valu('v_add_u32',t,sW18K,t),
      valu('v_lshrrev_b32',xr[0],4,vL), valu('v_xor_b32',xr[0],xr[0],u), valu('v_xor_b32',xr[1],4,xr[0]),
      valu('v_lshl_add_u32',xr[0],xr[0],4,t), valu('v_lshl_add_u32',xr[1],xr[1],4,t))
    for d in range(4): e(valu('v_mov_b32',ONE4[d],sONES))
    with collect() as ao:
        e(*sel_ops(t,u))
        addr_pf(); addr_early(); addr_qk()
        e(valu('v_mov_b32',vONE,1))
        if OPT['split']:
            e(valu('v_min_u32',vCA,1,vL), valu('v_mul_u32_u24',vCA,LDS_OOB-39*4096,vCA), valu('v_add_u32',vCA,39*4096,vCA), valu('v_mov_b32',t,4*len([b for b in bars if b>=SIG])), dsw('ds_write_b32',vCA,t))
    for _ in range(OPT['apre']): e(ao.pop(0))
    pst('pre')
    for _ in range(OPT['x1n']): e(*dq.pop(0))
    nx=len([o for o in dq if o[-1].meta['tag'][0]=='x'])
    if OPT['pf']:
        o=pf_gu(0)+(pf_gu(1) if OPT['pfn']>1 else [])+(pf_q() if OPT['pfn']>2 else [])
        k=nx+OPT['pfpos']
        if OPT['pfpos']<0: dq[k-1]=dq[k-1][:-1]+o+dq[k-1][-1:]
        else: dq.insert(k,o)
    e(raw('s_waitcnt lgkmcnt(0)','misc'))
    pst('addr')
    R0=[XC0[4*s_:4*s_+4] for s_ in range(18)]; X1=[XC1[4*s_:4*s_+4] for s_ in range(18)]
    def xread(tt,dst,l):
        return [waitfor(vmtags=[('x',tt,l)])]+[dsr('ds_read_b128',dst[s],xr[s&1],l*2048,src=(('x',tt,l),list(range(18*tt,18*tt+18))),private=True) for s in (2*l,2*l+1)]
    cq=[]; nm=[0]; nblk=[0]; pre_=[]
    def mm(m,extra=()):
        e(m); nm[0]+=1
        if pre_: e(pre_.pop(0))
        if extra: e(*extra); return
        k=0
        while cq and k<2 and cq[0][0]<=nm[0]-2: e(cq.pop(0)[1]); k+=1
        while ao and k<2: e(ao.pop(0)); k+=1
    def stats(tt,fr,l,nvm,lim=99):
        ms=[]
        for s_ in (2*l,2*l+1): ms+=[m16(SUM,ONE4,fr[s_],0 if s_==0 else SUM), m16(GR[tt],fr[s_],fr[s_],0 if s_==0 else GR[tt])]
        for h in range(2):
            o=[]
            if dq and h<nvm and nblk[0]<min(lim,OPT['nblk']):
                o=dq.pop(0)
                if o[-1].meta['tag'][0] not in 'xp': nblk[0]+=1
            mm(ms[2*h],[x for x in o if x.kind=='salu']); mm(ms[2*h+1],[x for x in o if x.kind!='salu'])
    nc=[0]
    def centre(src,dst,after=(),ex=((),())):
        d=DT[nc[0]%3]; nc[0]+=1
        while any(set(c.rd)&set(d.regs()) for _,c in cq): e(cq.pop(0)[1])
        for h in range(2):
            mm(m4(d[4*h:4*h+4],SELA,src[2*h:2*h+2],CM),ex[h])
            for z in range(2): cq.append((nm[0],valu('v_cvt_pk_bf16_f32',dst[2*h+z],d[4*h+2*z],d[4*h+2*z+1])))
        for x in after: cq.append((nm[0],x))
    def mean(tt):
        dst=vM[1] if tt else t
        e(valu('v_mul_f32',MEAN[tt],f32(1/576),SUM[0]), valu('v_cvt_pk_bf16_f32',dst,MEAN[tt],MEAN[tt]), valu('v_lshlrev_b32',dst,16,dst))
        for d in range(4): e(valu('v_xor_b32',CM[d],0x80000000,dst))
    for l in range(10):
        if l<9: e(*xread(0,R0,l))
        if l==0: e(*dq.pop(0))
        for _ in range(OPT['afill'] if l<9 else 999):
            if ao: e(ao.pop(0))
        if l>0:
            e(waitfor(lg=R0[2*l-2:2*l])); stats(0,R0,l-1,int(str(OPT.get('w1','x111111111'))[l]),len(pre0))
        if str(l) in str(OPT.get('tch','x0246')): e(*touch())
        if l==OPT['brl']: e(raw('s_branch L_main','misc'), I('.p2align 12','comment'), label('L_main'))
        pst(f'x0 rd {l}')
    stamp('x0 read')
    e(valu('v_add_u32',xr[0],73728,xr[0]), valu('v_add_u32',xr[1],73728,xr[1]))
    e(*xread(1,X1,0)); mean(0); pst('stat0')
    for l in range(9):
        for s_ in (2*l,2*l+1): centre(R0[s_],X0[s_],to_acc(s_) if s_>=NV0 else ())
        if l<8: e(*xread(1,X1,l+1))
        if l==OPT['barl']: e(barrier())
        e(waitfor(lg=X1[2*l:2*l+2])); stats(1,X1,l,int(str(OPT.get('w2','x111122222'))[l+1]),99 if l>=OPT['barl'] else len(pre0))
        pst(f'x1 rd {l}')
    while cq: e(cq.pop(0)[1])
    mean(1)
    reads=[f(it) for g in groups[:4] for it,f in g.rd][:L]; nb_=(L+1)//2+1
    n0=OPT['n0']
    for s_ in range(n0):
        ex=((),())
        if s_==n0-nb_: ex=((waitfor(vmtags=[it.name for it in items if it.bar==-L]), barrier()),()); stamp('x1 read'); pst('bar1')
        if s_>n0-nb_: pre_[:]=[reads.pop(0) for z in range(2) if reads]
        centre(X1[s_],X1[s_],ex=ex)
    assert not reads
    while cq: e(cq.pop(0)[1])
    e(waitfor(lg=groups[0].fr)); pst('go')
    for s_ in range(n0,18): push('ctr',0,centre_ops(X1[s_],1))
    for s_ in range(NV0): push('ctr',0,to_acc(s_))
    for o in dq: push('dma',-1,o)
    mx_=-1
    for it in items:
        mx_=max(mx_,it.early)
        if it.early>-2000: push('dma',it.early,it.mk(it),mx_)
    st=lambda k:groups[marks[k]].start
    def low(gap,f,*a):
        with collect() as o: f(*a)
        push('low',gap,o,gap)
    low(st('c0')+200,var_ops,0); low(st('c0')+200,var_ops,1)
    TCH=[(int(g_),touch()) for g_ in str(OPT['tat']).split(',') if int(g_)>=0]
    low(st('c1'),addr_mid); low(st('c1'),addr_mid2); low(st('qkv'),addr_pfd)
    low(st('c2')+200,addr_att,WB); low(st('c2')+200,addr_lds,WB)
    pt=[int(x) for x in OPT['pft'].split(',')]
    for k,(g_,o) in enumerate(zip(pt,[pf_gu(1) if OPT['pfn']<2 else [],pf_q() if OPT['pfn']<3 else [],pf_gu(2),pf_gu(3),pf_gu(4),pf_d(0),pf_d(1),pf_d(2)])):
        if o and (k==7 or pt[k+1]!=g_): o[-1].meta['cost']+=OPT['pfx']
        push('ld',g_,o,g_)
    low(st('c3'),pf_o)
    b1=[b for b in bars if b>st('c3')+60][0]
    bar_extra[b1]=['qkvst']
    ar=[salu('s_and_b32',sJH,S(2),1), salu('s_lshl_b32',sJH,sJH,7), salu('s_mov_b32',sJ128,1), salu('s_cmp_lg_u32',sW,0), raw('s_cbranch_scc1 L_arr','misc'),
        raw(f's_atomic_add {sJ128}, {sDBG[0:2]}, {sJH}','misc',sJ128.regs()+sJH.regs()), label('L_arr')]
    for x in ar[3:6]: x.meta['glue']=True
    for g_,o in sorted(TCH+[(b1,ar)],key=lambda z:z[0]): push('arr',g_,o,g_)
    ARR.append(ar[5])
    if OPT['stop']!='down':
        d0=st('down')
        att_setup(ngaps,kv,WB); bar_extra[bars[-1]]=[kv[0].name]
        low(b1,addr_z); low(b1,addr_fin); low(d0+400,addr_op); extra_zero(ngaps)
        ld=bload(vPOLL,vZ,sDBG,0,flags='sc1')
        push('ld',d0+OPT['f1poll'],[ld],d0+OPT['f1poll'])
        with collect() as o: qk_loads(WB)
        w_=waitfor(vm=[vPOLL]); w_.meta['lag']=(ld,100)
        push('ld',d0+OPT['f1poll'],[w_]+spin('f1',ld,128,40)+o,d0+OPT['f1poll'])
        for it in kv[:3]+(wo_main+wo_x)[:OPT['wob']]:
            early=max(free[b] for b in it.blks())
            assert early>d0+300
            if early<LATE: push('dma',early,it.mk(it),ngaps-1); it.pushed=True
    for k_,t_ in (('c0','gate/up columns 0..63'),('c1','gate/up columns 64..127'),('qkv','q, k, v'),('c2','gate/up columns 128..191'),('c3','gate/up columns 192..255'),('half','gate/up last 32 columns'),('down','down projection')): PH[st(k_)]='---- '+t_
    emit_backbone(bars,{groups[v].start:k for k,v in marks.items() if k in ('c0','qkv','down')})
    qs=[i.meta['at'] for i in P if i.meta.get('tag')=='qkvst']; assert len(qs)==12 and max(qs)<b1-SIG,(qs,b1)
    print('arrival at',ARR[0].meta['at'],'poll at',ld.meta['at'])
    stamp('down end')
    if OPT['stop']=='down':
        for nm in ('epi','st','low','dma'):
            for af,o in fifo[nm]: e(o)
    else:
        attention(ngaps,kv,WB,wo_main+wo_x)
        stamp('att end')
        final(ngaps+1000,wo_main,wo_x)
        fallback(kv,WB)
    finish()

def sizes(lines):
    import subprocess, re
    uniq=sorted(set(lines))
    src='.amdgcn_target "amdgcn-amd-amdhsa--gfx950"\n.text\nLX:\n'+'\n'.join(re.sub(r'L_codeend-L_pc-4','0x12345',re.sub(r'(s_branch|s_cbranch\w+) \w+',r'\1 0',u)) for u in uniq)+'\n'
    open('_sz.s','w').write(src)
    r=subprocess.run(['llvm-mc','-triple=amdgcn-amd-amdhsa','-mcpu=gfx950','-show-encoding','_sz.s'],capture_output=True,text=True)
    assert r.returncode==0,r.stderr[:2000]
    enc=re.findall(r'encoding: \[([^\]]*)\]',r.stdout)
    assert len(enc)==len(uniq),(len(enc),len(uniq))
    return {u:len(x.split(',')) for u,x in zip(uniq,enc)}
PGAT=[]
def page_stubs(out):
    sz=sizes([i.text for i in out if i.kind not in ('label','comment')])
    k0=[k for k,i in enumerate(out) if i.text=='L_main:'][0]
    print('entry part bytes',sum(sz.get(i.text,0) for i in out[:k0]))
    res=out[:k0+1]; off=0; pg=0; prev=None; forced=False
    npg=4*ntouch[0]
    for k in range(k0+1,len(out)):
        i=out[k]
        if pg<npg and off>=4096*pg and not (prev is not None and prev.meta.get('glue')):
            good=prev is not None and prev.kind=='mfma' and i.kind in ('dsr','valu','trans')
            if good or off-4096*pg>=40 or pg==0 or forced:
                res+=[label(f'L_pg{pg}'), raw(f's_cbranch_execz L_tr{pg//4}')]; off+=4; PGAT.append((pg,i.meta.get('at'))); pg+=1
        res.append(i); off+=sz.get(i.text,0)
        if i.text=='.p2align 12': off=-(-off//4096)*4096; forced=True; continue
        if i.kind not in ('label','comment'): prev=i
    print('main part bytes',off,'pages touched',pg,'of',-(-off//4096))
    print('page starts',PGAT)
    while pg<npg: OUT.extend([f'L_pg{pg}:',f's_branch L_tr{pg//4}']); pg+=1
    return res
DOC=""";
; out = x + (MHA(LN(x)) @ wo) * silu(ReGLU(LN(x)))      one persistent launch, one workgroup (4 waves, 512 registers) per CU
; The instruction stream is written out in full by a generator script; every wave runs the same stream.
;
; 1. LayerNorm: 128 rows per workgroup, 32 per wave, kept in registers as MFMA B operands. Row sums and sums of squares come
;    from MFMAs; the rows are centred, 1/sd is applied later (q,k,v when they are written, down before the gate).
; 2. gate/up (288 columns of F per workgroup), q,k,v (108 columns) and down (K = those 288 columns): weights stream through an
;    LDS ring (LDS-DMA, transposing reads). h = relu(gate)*up stays in registers; q,k,v and the bf16 partial sums of down go
;    to d_ws with write-through stores.
; 3. attention: one head x 256 queries per workgroup. S^T = K Q^T with the softmax shift folded in as two extra K slots;
;    P = exp2(S^T); O^T and the row sums accumulate through the sparse MFMA, which picks the upper halves of the fp32 P.
;    Shift = (maximum over the first 64 keys) + 90. Softmax does not depend on the shift unless something over- or
;    underflows, so the result is checked (row sum in [2^-92, 2^126], O finite and above 2^-103); a wave that fails the check
;    repeats its rows with the true maximum over all keys (L_fb).
; Hand-offs between workgroups: stores are drained (vmcnt) before a counter is touched; the counters in d_ws are reset by this
; launch before the d_debug counter that everyone passes first. Every wait is bounded.
"""
def finish():
    cur[0]=10**7
    if OPT['stamps']:
        e(raw('s_waitcnt lgkmcnt(0)','misc'), waitfor(vmall=True))
        stamp('drained'); e(raw('s_waitcnt lgkmcnt(0)','misc'))
        n=nstamp[0]
        for k in range(max(0,n-7),n): e(raw(f'v_writelane_b32 v13, s{64+2*(k%7)}, {k}','misc'))
        if 'padto' in OPT:
            e(raw('s_nop 1','misc'), raw(f'v_readlane_b32 s46, v13, {OPT["padto"]}','misc'), raw('s_nop 3','misc'))
            e(salu('s_add_u32',sT0,sT0,10000), label('L_pad'), raw('s_memrealtime s[98:99]','misc'), raw('s_waitcnt lgkmcnt(0)','misc'), salu('s_sub_u32',sT1,S(98),sT0), salu('s_cmp_lt_i32',sT1,0), raw('s_cbranch_scc1 L_pad','misc'))
        else:
            e(salu('s_lshl_b32',sT0,S(2),2), salu('s_add_u32',sT0,sT0,sW), salu('s_lshl_b32',sT0,sT0,8), salu('s_add_u32',sT0,sT0,WS_STAMP))
            e(valu('v_lshlrev_b32',V(1),2,vL), bstore(vST,V(1),sWS,sT0))
    check_order(P)
    out=finalize(P,verbose=OPT['v'],name='main')
    out=page_stubs(out+[raw('s_endpgm'),I('.p2align 12','comment')]+HOT)
    hdr=open('recurrent_scan__mha_block__glu_gated_reglu__prompt.s.ref').read().split('; Override launch')[0]
    txt=hdr+'; @launch grid=(256,1,1) block=(256,1,1) lds=163840\n'+DOC+'.amdgcn_target "amdgcn-amd-amdhsa--gfx950"\n.text\n'
    txt+=f'.globl {NAME}\n.p2align 12\n.p2align 8\n.type {NAME},@function\n{NAME}:\n'
    txt+='\n'.join(i.text for i in out)+'\n'+'\n'.join(OUT)+'\ns_endpgm\nL_codeend:\n'
    txt+=f'''.section .rodata,"a"
.p2align 6
.amdhsa_kernel {NAME}
  .amdhsa_next_free_vgpr 512
  .amdhsa_next_free_sgpr 102
  .amdhsa_accum_offset 256
  .amdhsa_group_segment_fixed_size 0
  .amdhsa_kernarg_size 80
  .amdhsa_user_sgpr_count 2
  .amdhsa_user_sgpr_kernarg_segment_ptr 1
  .amdhsa_system_sgpr_workgroup_id_x 1
  .amdhsa_float_denorm_mode_32 {OPT.get('dn',3)}
.end_amdhsa_kernel
'''
    open(sys.argv[1],'w').write(txt)
    print('bytes',len(txt))
main()
```

```python
import re

class R:
    __slots__=('k','b','n','name')
    def __init__(s,k,b,n=1): s.k=k; s.b=b; s.n=n; s.name=None
    def __str__(s): return f'{s.k}{s.b}' if s.n==1 else f'{s.k}[{s.b}:{s.b+s.n-1}]'
    __repr__=__str__
    def regs(s): return [f'{s.k}{i}' for i in range(s.b,s.b+s.n)]
    def __getitem__(s,i):
        if isinstance(i,slice):
            a=i.start or 0; e=s.n if i.stop is None else i.stop
            assert 0<=a<e<=s.n,(s,i)
            return R(s.k,s.b+a,e-a)
        assert 0<=i<s.n,(s,i)
        return R(s.k,s.b+i,1)
def V(b,n=1): return R('v',b,n)
def A(b,n=1): return R('a',b,n)
def S(b,n=1): return R('s',b,n)

def regs_of(*ops):
    out=[]
    for o in ops:
        if isinstance(o,R): out+=o.regs()
        elif isinstance(o,str):
            m=o.strip('-|')
            if m in ('vcc','m0','exec','scc'): out.append(m)
            else:
                mm=re.fullmatch(r'([vas])(\d+)',m)
                if mm: out.append(m)
    return out

class I:
    __slots__=('text','kind','rd','wr','passes','meta')
    def __init__(s,text,kind,rd=(),wr=(),passes=0,**meta):
        s.text=text; s.kind=kind; s.rd=list(rd); s.wr=list(wr); s.passes=passes; s.meta=meta
    def __repr__(s): return s.text

def fmt(o):
    if isinstance(o,float): return repr(o)
    if isinstance(o,int): return str(o) if -16<=o<=64 else hex(o&0xffffffff)
    return str(o)

TRANS=('v_exp_f32','v_exp_legacy_f32','v_rcp_f32','v_rsq_f32','v_sqrt_f32','v_log_f32')
def valu(op,dst,*src,mods='',rmw=False):
    kind='trans' if op.replace('_e64','') in TRANS else ('dot' if op.startswith('v_dot') else 'valu')
    rd=regs_of(*src); wr=regs_of(dst)
    if rmw: rd+=wr
    if op.startswith('v_cndmask') and len(src)==2: rd.append('vcc'); src=src+('vcc',)
    t=f'{op} {fmt(dst)}, '+', '.join(fmt(x) for x in src)+(' '+mods if mods else '')
    m={'dname':getattr(dst,'name',None),'snames':[(str(x),x.name) for x in src if getattr(x,'name',None)]}
    if kind=='dot': m['dotc']=regs_of(src[2]); m['op']=op
    if op.startswith('v_readfirstlane') or op.startswith('v_readlane'): m['lane_read']=True
    return I(t,kind,rd,wr,**m)
def swap(op,a,b): return I(f'{op} {a}, {b}','valu',regs_of(a,b),regs_of(a,b),perm=True)
def salu(op,dst,*src):
    wr=regs_of(dst)
    if op.startswith('s_cmp') or op.startswith('s_bitcmp'):
        return I(f'{op} {fmt(dst)}, '+', '.join(fmt(x) for x in src),'salu',regs_of(dst,*src),['carry'],scc=True)
    i=I(f'{op} {fmt(dst)}, '+', '.join(fmt(x) for x in src),'salu',regs_of(*src),wr)
    i.meta['scc']=not (op.startswith('s_mov') or op.startswith('s_mul_i32') or op.startswith('s_cselect'))
    return i
def raw(text,kind='misc',rd=(),wr=(),**m): return I(text,kind,rd,wr,**m)
def label(n): return I(n+':','label')
def mfma(op,d,a,b,c,passes):
    return I(f'{op} {d}, {a}, {b}, {fmt(c)}','mfma',regs_of(a,b,c),regs_of(d),passes,ab=regs_of(a,b),c=regs_of(c),d=str(d),cstr=str(c))
def m16(d,a,b,c): return mfma('v_mfma_f32_16x16x32_bf16',d,a,b,c,4)
def m32(d,a,b,c): return mfma('v_mfma_f32_32x32x16_bf16',d,a,b,c,8)
def m32x8(d,a,b,c): return mfma('v_mfma_f32_32x32x8_bf16',d,a,b,c,8)
def m2b(d,a,b,c): return mfma('v_mfma_f32_32x32x4_2b_bf16',d,a,b,c,16)
def m4(d,a,b,c): return mfma('v_mfma_f32_4x4x4_16b_bf16',d,a,b,c,2)
def smf(d,a,b,idx):
    return I(f'v_smfmac_f32_32x32x32_bf16 {d}, {a}, {b}, {idx}','mfma',regs_of(a,b,idx,d),regs_of(d),8,ab=regs_of(a,b,idx),c=regs_of(d),d=str(d),cstr=str(d))
def dsr(op,d,addr,off=0,src=None,private=False):
    assert 0<=off<65536,off
    return I(f'{op} {d}, {addr}'+(f' offset:{off}' if off else ''),'dsr',regs_of(addr),regs_of(d),src=src,private=private)
def dsw(op,addr,data,off=0):
    return I(f'{op} {addr}, {data}'+(f' offset:{off}' if off else ''),'dsw',regs_of(addr,data),[])
def bload(d,voff,srd,soff,off=0,flags='',tag=None):
    n=d.n; op={1:'buffer_load_dword',2:'buffer_load_dwordx2',4:'buffer_load_dwordx4'}[n]
    assert 0<=off<4096
    return I(f'{op} {d}, {voff}, {srd}, {fmt(soff)} offen'+(f' offset:{off}' if off else '')+(' '+flags if flags else ''),'vld',regs_of(voff,srd,soff),regs_of(d),tag=tag)
def bstore(d,voff,srd,soff,off=0,flags='',tag=None):
    n=d.n; op={1:'buffer_store_dword',2:'buffer_store_dwordx2',4:'buffer_store_dwordx4'}[n]
    assert 0<=off<4096
    return I(f'{op} {d}, {voff}, {srd}, {fmt(soff)} offen'+(f' offset:{off}' if off else '')+(' '+flags if flags else ''),'vst',regs_of(d,voff,srd,soff),[],tag=tag,wide=regs_of(d) if n>2 else [])
def batomic(d,voff,srd,soff,off=0,op='add'):
    return I(f'buffer_atomic_{op} {d}, {voff}, {srd}, {fmt(soff)} offen'+(f' offset:{off}' if off else ''),'vst',regs_of(d,voff,srd,soff),[],tag=None,wide=[])
def dma(voff,srd,soff,off=0,flags='',tag=None,dst=None,private=False):
    assert 0<=off<4096
    return I(f'buffer_load_dwordx4 {voff}, {srd}, {fmt(soff)} offen'+(f' offset:{off}' if off else '')+(' '+flags if flags else '')+' lds','dma',regs_of(voff,srd,soff,'m0'),[],tag=tag,dst=dst,private=private)
def gdma(voff,base,off=0,flags='',tag=None,dst=None,private=False):
    assert -4096<=off<4096
    return I(f'global_load_lds_dwordx4 {voff}, {base}'+(f' offset:{off}' if off else '')+(' '+flags if flags else ''),'dma',regs_of(voff,base,'m0'),[],tag=tag,dst=dst,private=private)
def gload(d,voff,base,off=0,flags='',tag=None):
    op={1:'global_load_dword',2:'global_load_dwordx2',4:'global_load_dwordx4'}[d.n]
    assert -4096<=off<4096
    return I(f'{op} {d}, {voff}, {base}'+(f' offset:{off}' if off else '')+(' '+flags if flags else ''),'vld',regs_of(voff,base),regs_of(d),tag=tag)
def gstore(d,voff,base,off=0,flags='',tag=None):
    op={1:'global_store_dword',2:'global_store_dwordx2',4:'global_store_dwordx4'}[d.n]
    assert -4096<=off<4096
    return I(f'{op} {voff}, {d}, {base}'+(f' offset:{off}' if off else '')+(' '+flags if flags else ''),'vst',regs_of(d,voff,base),[],tag=tag,wide=regs_of(d) if d.n>2 else [])
def base_add(dst,src,off):
    a=salu('s_add_u32',dst[0],src[0],off); b=salu('s_addc_u32',dst[1],src[1],0)
    b.rd.append('carry'); a.wr.append('carry')
    return [a,b]
def waitfor(lg=(),lgall=False,vm=(),vmtags=(),vmall=False,lgforce=False):
    return I('WAIT','waitfor',lg=set(regs_of(*lg)),lgall=lgall,vm=set(regs_of(*vm)),vmtags=set(vmtags),vmall=vmall,lgforce=lgforce)
def barrier(): return I('s_barrier','barrier')

VALUK=('valu','trans','dot')
def finalize(ins, verbose=True, name=''):
    out=[]; lgq=[]; vmq=[]
    lastw={}
    lastc={}
    lastst={}
    stats=dict(auto_wait=0,nops=0,nopstates=0,maxvm=0,maxlg=0)
    pos=0
    nbar=0; nsig=0
    blk_read={}
    dma_done={}
    tag_pending={}
    blk_owner={}
    lastscc=[None]
    def emit(i,states=1):
        nonlocal pos
        out.append(i); pos+=states
    def do_wait(nlg,nvm):
        parts=[]
        if nvm is not None:
            assert nvm<=63
            parts.append(f'vmcnt({nvm})')
            while vmq and len([x for x in vmq[1:] if not x.meta.get('skip')])>=nvm:
                e=vmq.pop(0); t=e.meta.get('tag')
                if e.kind=='dma' and t is not None:
                    tag_pending[t]-=1
                    if tag_pending[t]==0: dma_done[t]=nsig
        if nlg is not None:
            nlg=min(nlg,15)
            parts.append(f'lgkmcnt({nlg})')
            while len(lgq)>nlg:
                e=lgq.pop(0); e.meta['done']=nsig
        if parts: emit(I('s_waitcnt '+' '.join(parts),'wait'))
    def need(q,pred):
        last=-1
        for k,e in enumerate(q):
            if pred(e): last=k
        return None if last<0 else len([e for e in q[last+1:] if not e.meta.get('skip')])
    for i in ins:
        k=i.kind
        if k=='label' or k=='comment': out.append(i); continue
        if k=='reset':
            continue
        if k=='waitfor':
            m=i.meta
            nlg=need(lgq,lambda e:m['lgall'] or any(r in m['lg'] for r in e.wr))
            nvm=need(vmq,lambda e:m['vmall'] or any(r in m['vm'] for r in e.wr) or (e.meta.get('tag') in m['vmtags']))
            if m['lgforce']: nlg=0
            do_wait(nlg,nvm); continue
        touched=set(i.rd)|set(i.wr)
        nlg=need(lgq,lambda e:any(r in touched for r in e.wr))
        nvm=need(vmq,lambda e:any((r in touched) and not (i.meta.get('tag')=='pf' and e.meta.get('tag')=='pf') for r in e.wr))
        if nlg is not None or nvm is not None:
            stats['auto_wait']+=1
            if verbose: print(f'[{name}] auto wait lg={nlg} vm={nvm} before: {i.text}')
            do_wait(nlg,nvm)
        if k in ('dsr','dsw') and len(lgq)>=15:
            stats['lgfull']=stats.get('lgfull',0)+1
            do_wait(11,None)
        if k in ('vld','vst','dma') and len(vmq)>=62:
            stats['vmfull']=stats.get('vmfull',0)+1
            do_wait(None,36)
        req=0; why=None
        def chk(ppos,n,w):
            nonlocal req,why
            d=n-(pos-ppos-1)
            if d>req: req=d; why=w
        isv=k in VALUK
        for r in i.rd:
            if r not in lastw: continue
            p,w=lastw[r]
            if w.kind=='mfma':
                big={2:5,4:8,8:12,16:20}[w.passes]
                if k=='mfma':
                    if r in i.meta['ab']: chk(p,big,'mfma->ab')
                    elif i.meta['cstr']==w.meta['d'] and i.passes==w.passes: chk(p,2 if w.passes==2 else 0,'chain')
                    else: chk(p,w.passes+2,'mfma->c')
                else: chk(p,big,'mfma->rd')
            elif w.kind in VALUK:
                if k=='mfma': chk(p,2,'valu->mfma')
                if w.kind=='trans' and isv and k!='trans': chk(p,1,'trans')
                if w.kind=='dot':
                    if k=='dot' and i.meta['op']==w.meta['op'] and r in i.meta['dotc'] and i.rd.count(r)==1: pass
                    else: chk(p,3,'dot')
                if i.meta.get('perm'): chk(p,2,'perm')
                if i.meta.get('lane_read') and r[0]=='v' and r!='vcc': chk(p,1,'readlane')
                if r[0]=='s' or r=='vcc':
                    if isv: chk(p,2,'vsgpr->valu')
                    elif k in ('vld','vst','dma'): chk(p,5,'vsgpr->vmem')
                    else: chk(p,1,'vsgpr->salu')
            elif w.kind=='salu' and r=='m0' and k=='dma': chk(p,1,'m0')
        for r in i.wr:
            if r in lastw:
                p,w=lastw[r]
                if w.kind=='mfma':
                    if k=='mfma':
                        if not (i.meta['d']==w.meta['d'] and i.passes==w.passes): chk(p,w.passes+2,'mfma waw')
                    else: chk(p,{2:5,4:8,8:12,16:20}[w.passes],'mfma->wr')
                elif w.kind=='dot' and not (k=='dot' and i.meta['op']==w.meta['op']): chk(p,3,'dot waw')
            if r in lastc and isv: chk(lastc[r][0],lastc[r][1]-1,'c war')
            if r in lastst: chk(lastst[r],2,'store war')
        if req>0:
            stats['nops']+=1; stats['nopstates']+=req
            if verbose>1: print(f'[{name}] nop {req} ({why}) before: {i.text}')
            while req>0:
                n=min(req,16); emit(I(f's_nop {n-1}','nop'),n); req-=n
        if k=='dsr' and i.meta.get('src') is not None:
            tag,blks=i.meta['src']
            assert tag in dma_done and tag_pending[tag]==0, f'read of unfinished {tag}: {i.text}'
            if not i.meta.get('private'): assert dma_done[tag]<nbar, f'read of {tag} without barrier: {i.text}'
            for b in blks:
                assert blk_owner.get(b)==tag or i.meta.get('private'), f'block {b} owner {blk_owner.get(b)} != {tag}'
                blk_read.setdefault(b,[]).append(i)
        if k=='dma':
            t=i.meta.get('tag')
            if t is not None: tag_pending[t]=tag_pending.get(t,0)+1
            for b in (i.meta.get('dst') or ()):
                if blk_owner.get(b)!=t:
                    for e in blk_read.get(b,()):
                        assert 'done' in e.meta and (e.meta['done']<nbar or i.meta.get('private')), f'dma {t} overwrites block {b} still read: {e.text}'
                    blk_read[b]=[]
                    blk_owner[b]=t
        if 'carry' in i.rd: assert lastscc[0] is lastw['carry'][1], f'scc clobbered before {i.text} by {lastscc[0]}'
        if i.meta.get('scc'): lastscc[0]=i
        ppos=pos
        emit(i,0 if i.meta.get('skip') else 1)
        if k=='barrier':
            assert nsig==nbar; nbar+=1; nsig+=1
        if i.meta.get('signal'): nsig+=1
        if i.meta.get('check'):
            nbar+=1; assert nbar==nsig
        if k in ('dsr','dsw'):
            lgq.append(i); stats['maxlg']=max(stats['maxlg'],len(lgq))
        if k in ('vld','vst','dma'):
            vmq.append(i); stats['maxvm']=max(stats['maxvm'],len(vmq))
            assert len(vmq)<=63, 'vmcnt overflow'
        for r in i.wr:
            lastw[r]=(ppos,i); lastc.pop(r,None)
        if k=='mfma':
            for r in i.meta['c']: lastc[r]=(ppos,i.passes)
        if k=='vst':
            for r in i.meta['wide']: lastst[r]=ppos
    if verbose: print(f'[{name}]',stats,'ninstr',len(out))
    return out

def check_order(ins):
    def deps(lst):
        lw={}; d={}
        for i in lst:
            d[id(i)]=(tuple(lw.get(r) for r in i.rd if r!='carry'),tuple(lw.get(r) for r in i.wr if r not in ('carry','vcc')))
            for r in i.wr: lw[r]=id(i)
        return d
    a=deps(ins); b=deps(sorted(ins,key=lambda i:i.meta['seq']))
    byid={id(i):i for i in ins}
    bad=0
    for i in ins:
        if a[id(i)]!=b[id(i)]:
            bad+=1
            if bad<10:
                print('ORDER VIOLATION',i.meta['seq'],i.text)
                for x,y in zip(a[id(i)][0]+a[id(i)][1],b[id(i)][0]+b[id(i)][1]):
                    if x!=y: print('    got',byid.get(x),'want',byid.get(y)); break
    assert bad==0, f'{bad} order violations'

def _wrap(fn,pos):
    def f(*a,**k):
        i=fn(*a,**k); r=a[pos]
        if getattr(r,'name',None): i.meta['snames']=[(str(r),r.name)]
        if fn.__name__ in ('bload','gload') : i.meta['dname']=getattr(a[0],'name',None)
        return i
    return f
dsr=_wrap(dsr,1); bload=_wrap(bload,1); bstore=_wrap(bstore,1); batomic=_wrap(batomic,1); dma=_wrap(dma,0); gdma=_wrap(gdma,0); gload=_wrap(gload,1); gstore=_wrap(gstore,1)
def check_roles(ins):
    role={}
    for i in ins:
        for r,n in i.meta.get('snames',()):
            assert role.get(r)==n, f'{i.text}: {r} read as {n} holds {role.get(r)}'
        for r in i.wr:
            if 'dname' in i.meta or r not in i.rd: role[r]=i.meta.get('dname')
```

```python
import sys, struct, contextlib
from asmlib import *

OPT=dict(stop='', stamps=0, pf=1, dmagap=3, look=14, split=0, stper=1, qstper=1, xat=1, stgap=29, n0=14, v=1, forcefb=0, astgap=6, f2lag=10, f2poll=58, f2chk=64, ldgap=4, dbgout=0, cage=3, exp='v_exp_f32', aord=0, flip=1, snake=1, balone=2, nosc=1, lc1=36, lc2=64, vp=0, f2sl=2, pfe=0, aint='x', ke2=1, bint=4, apool=0, ap0=10, tatt=56, pfn=1, barl=4, brl=8, lgm=1, pfirst=0, rp=7, inl=0, pollat3=-1, mpoll='x', np2_=1, lgrp='6,3,3', ntail=3, ldel=0, warm=0, np2=1, xsh=9, gst_=4096, pfl='sc1', ffl='sc1', pevery=2, lookb=16, nlook=2, npc=2, pollat2=-1, frx=0, sprio=1, w3=1, snop=0, vmpat=0, hat=60, chk0=0, px=0, wcut='0,3,8,13,18,23,23,23', wob=23, ldmin=4, at0=290, atd=29, tat=-1, flagat=60, pollat=10, forceredo=0, lp1=20, lp2=70, nol=10, fsh=2, npoll=2, psleep=1, wopre=100, fillmm=20, rlead=100, rrate=120, ofl='', apre=90, x1n=2, afill=14, tlb=0, pfpos=6, pft='100,190,280,700,800,1060,1110,1112', swp=1, pfx=300, chain=6, qch=4, c0ch=3, touch=1, x0n=3, nblk=14, f1poll=40, qstgap=24, back=80, pfc=1, bartr=0)
for a in sys.argv[2:]:
    k,v=a.split('='); OPT[k]=int(v) if v.lstrip('-').isdigit() else v
NAME='recurrent_scan__mha_block__glu_gated_reglu__prompt_kernel'

WS_QKV=0; SL=81920
WS_P=0x800000; WS_PX=0x2800000; WS_O=0x2C00000; WS_OX=0x2E00000; WS_F3=0x2E40000; WS_R2=0x2E60000; WS_F2=0x2E80000; WS_STAMP=0x2F00000
OOB=0x80000000
LDS_OOB=0x30000
def f32(x): return struct.unpack('<I',struct.pack('<f',x))[0]
QSCALE=18**-0.5*1.4426950408889634
MARGIN=float(OPT.get('margin',90))

sX,sWQ,sWO,sWG,sWU,sWD,sOUT,sDBG,sWS=[S(4+4*n,4) for n in range(9)]
sW,sW1K,sI,sJ,sH,sIDX,sT0,sT1,sSO,sSO2=[S(40+n) for n in range(10)]
sLO,sHI,sONES,sW7K,sW5K=[S(50+n) for n in range(5)]
sSC=[S(55),S(56),S(57)]
sW18K,sJ1,sXC,sM8,sT2,sT3=[S(58+n) for n in range(6)]
sJ128,sJH=S(3),S(94); sSO3=S(95); sXP,sXX=S(92),S(93); sF3,sPV,sPV2=S(79),S(78),S(53)
sBD,sBL,sPC=S(96,2),S(98,2),S(100,2)
nstamp=[0]
def stamp(name,fine=False):
    if not OPT['stamps']: return
    if OPT.get('few') and name not in ('start','c0','down','down end','att end','drained'): return
    if ('gst' in OPT or 'ast' in OPT or 'pst' in OPT) and not fine and name!='start': return
    n=nstamp[0]; nstamp[0]+=1
    assert n<64
    r=64+2*(n%7)
    if n>=7: e(raw(f'v_writelane_b32 v13, s{r}, {n-7}','misc'))
    e(raw(f'{"s_memrealtime" if OPT["stamps"]==1 else "s_memtime"} s[{r}:{r+1}]','misc'))
    print('stamp',n,name)

vL=V(0)
vT=[V(1+n) for n in range(8)]
vR=[V(9),V(10)]
vM=[V(11),V(12)]
vPF=A(255)
vST=V(13)
vGF,vGH,vDF,vDH=[V(14+n) for n in range(4)]
vTR=[[V(18+3*q+n) for n in range(3)] for q in range(4)]
vQK=[V(30+n) for n in range(7)]
vQM=[V(37+n) for n in range(3)]; vQE=[V(40+n) for n in range(3)]
vSM,vSE0,vSE1,vSCX=[V(43+n) for n in range(4)]
vPS,vPX=V(47),V(48)
vF1,vONE=V(49),V(50)
vPG,vF3,vPOLL=V(51),V(52),V(53)
vX=[V(168+n) for n in range(4)]
XC1=V(56,72)
BANK=[V(128,64),V(192,64)]
XC0=A(0,72); HH=A(72,72); FR=A(144,64)
vKM,vKE=V(30),V(31); vVA=[V(32+n) for n in range(4)]
vKV,vWO,vWOE,vWX,vWXE=[V(36+n) for n in range(5)]
vPL,vPLX,vOL,vOLX,vOS,vOSX=[V(41+n) for n in range(6)]
vIDX,vF3L=V(54),V(55)
vXO,vXOX,vR2,vZ=V(11),V(12),V(9),V(10)
QE=V(14,2)
QM=[A(0,4),A(4,4)]
OO=[V(128,16),V(144,16)]
sOB=[S(80+2*n,2) for n in range(4)]
KM=[A(40+4*n,4) for n in range(3)]; KE=[A(52,2),A(56,2),A(54,2),A(58,2)]; vKE1=V(16)
VV=[A(8,8),A(16,8)]
XR=A(240,10)
PART=[A(60+4*n,4) for n in range(32)]
PARTX=[A(188+2*n,2) for n in range(10)]+[A(24+2*n,2) for n in range(6)]
SBB=[V(192,32),V(224,32),V(160,32)]

P=[]
cur=[-10**6,0]
sink=[None]
def setseq(i,gap=None):
    if 'seq' not in i.meta:
        cur[1]+=1; i.meta['seq']=(cur[0] if gap is None else gap,cur[1])
    return i
def e(*x):
    for i in x:
        if sink[0] is not None: sink[0].append(i)
        else: P.append(setseq(i)); i.meta['at']=cur[0]
@contextlib.contextmanager
def collect():
    o=[]; old=sink[0]; sink[0]=o
    yield o
    sink[0]=old
ARR=[]
fifo=dict(arr=[],dma=[],st=[],ld=[],ctr=[],epi=[],low=[])
def push(q,after,ops,logical=None):
    for o in ops: fifo[q].append((after,setseq(o,logical)))
def note(*t):
    for x in t: e(I('; '+x,'comment'))
def masked(dst,val,cmpop,a,b,tmp):
    e(valu(cmpop,'vcc',a,b), valu('v_mov_b32',tmp,OOB), valu('v_cndmask_b32',dst,tmp,val))

def prologue():
    e(raw(f's_load_dwordx2 {sX[0:2]}, s[0:1], 0','misc'), salu('s_cmp_ge_u32',S(2),256), raw('s_cbranch_scc1 L_exit','misc'))
    stamp('start')
    e(valu('v_lshrrev_b32',vT[0],6,V(0)), valu('v_and_b32',vL,63,V(0)))
    e(salu('s_and_b32',sXC,S(2),7), salu('s_lshr_b32',sIDX,S(2),3))
    pf_code()
    e(valu('v_readfirstlane_b32',sW,vT[0]))
    lg=OPT['lgm']
    e(salu('s_lshr_b32',sM8,sIDX,2), salu('s_lshr_b32',sI,sIDX,lg+1), salu('s_lshl_b32',sI,sI,lg), salu('s_and_b32',sT2,sXC,(1<<lg)-1), salu('s_add_u32',sI,sI,sT2))
    e(salu('s_mul_i32',sW18K,sW,18432))
    vx0,vx1,row,t=vX[0],vX[1],vT[2],vT[3]
    e(salu('s_lshl_b32',sT2,sI,2), salu('s_add_u32',sT2,sT2,sW), salu('s_lshl_b32',sT2,sT2,5))
    e(valu('v_lshrrev_b32',row,3,vL), valu('v_lshrrev_b32',t,4,vL), valu('v_and_b32',vx0,7,vL), valu('v_xor_b32',vx0,vx0,t),
      valu('v_xor_b32',vx1,4,vx0), valu('v_add_u32',t,sT2,row), valu('v_mul_u32_u24',t,1152,t),
      valu('v_lshl_add_u32',vX[2],vx0,4,t), valu('v_lshl_add_u32',vX[3],vx1,4,t), valu('v_add_u32',vX[3],8*1152-1024,vX[3]),
      valu('v_add_u32',vx0,1920,vX[2]), valu('v_add_u32',vx1,1920,vX[3]))
    e(salu('s_lshr_b32',sJ,sXC,lg), salu('s_lshl_b32',sJ,sJ,lg+1), salu('s_and_b32',sT3,sIDX,(2<<lg)-1), salu('s_add_u32',sJ,sJ,sT3), salu('s_and_b32',sJ1,sJ,1))
    e(salu('s_mul_i32',sSO2,sJ1,18432*OPT['swp']))
    if OPT['px']:
        n=OPT['px']
        e(salu('s_mul_i32',sT0,sT2,1152), salu('s_and_b32',sT1,sJ,288//n-1), salu('s_mul_i32',sT1,sT1,n*128), salu('s_add_u32',sT0,sT0,sT1), valu('v_lshl_add_u32',vT[4],vL,7,sT0))
    e(raw('s_waitcnt lgkmcnt(0)','misc'))
    if OPT['px']:
        n=OPT['px']
        m=(1<<min(n,36))-1
        e(raw(f's_mov_b32 exec_lo, {hex(m&0xffffffff)}','salu'), raw(f's_mov_b32 exec_hi, {m>>32}','salu'), gload(vPF,vT[4],sX[0:2],tag='pf'))
        if n==72: e(valu('v_add_u32',vT[4],36*128,vT[4]), gload(vPF,vT[4],sX[0:2],tag='pf'))
        e(raw('s_mov_b64 exec, -1','salu'))
    e(salu('s_sub_u32',sBL[0],sX[0],1920), salu('s_subb_u32',sBL[1],sX[1],0), salu('s_add_u32',sBD[0],sBL[0],sSO2), salu('s_addc_u32',sBD[1],sBL[1],0))
def prologue2():
    for srd,off in ((sWG,32),(sWU,40),(sWQ,8),(sWO,16),(sWD,48),(sOUT,56),(sDBG,64),(sWS,72)): e(raw(f's_load_dwordx2 {srd[0:2]}, s[0:1], {off}','misc'))
    if OPT['tlb']:
        e(salu('s_mov_b32',sT0,2<<20), salu('s_mov_b32',sT1,4<<20))
        for srd,n in ((sWG,3),(sWU,3),(sWQ,1),(sWD,3),(sWO,1),(sWS,1),(sOUT,2)):
            for k in range(n): e(raw(f's_load_dword s80, {srd[0:2]}, {["0",sT0,sT1][k]}','misc'))
    e(salu('s_sub_u32',sSO2,18432,sSO2), salu('s_add_u32',sBL[0],sBL[0],sSO2), salu('s_addc_u32',sBL[1],sBL[1],0))
    e(salu('s_mul_i32',sXP,sJ1,OPT['swp']<<18), salu('s_mul_i32',sXX,sJ1,OPT['swp']<<15))
    e(salu('s_lshl_b32',sH,sXC,2), salu('s_and_b32',sT3,sIDX,3), salu('s_add_u32',sH,sH,sT3))
    e(salu('s_lshl_b32',sW1K,sW,10), salu('s_mul_i32',sW7K,sW,7168), salu('s_mul_i32',sW5K,sW,5120))
    for srd,n in ((sX,2048*1152),(sWQ,576*3456),(sWO,576*1152),(sWG,576*9216),(sWU,576*9216),(sWD,4608*1152),(sOUT,2048*1152),(sDBG,256),(sWS,0x10000000)):
        e(salu('s_mov_b32',srd[2],n), salu('s_mov_b32',srd[3],0x20000))
    e(salu('s_mov_b32',sLO,0x3f80), salu('s_mov_b32',sHI,0x3f800000), salu('s_mov_b32',sONES,0x3f803f80))
def pf_lane(t):
    if not OPT['pfe']: return vL
    e(salu('s_and_b32',sT1,sXC,1), salu('s_xor_b32',sT1,sT1,OPT['pfe']-1), salu('s_lshl_b32',sT1,sT1,6), valu('v_add_u32',t,sT1,vL)); return t
def addr_pf():
    row,t=vT[2],vT[3]; z=2 if OPT['pfe'] else 1; si=sM8 if OPT['pfe'] else sI
    ln=pf_lane(vT[4])
    e(salu('s_lshl_b32',sJ128,sJ1,7), salu('s_lshl_b32',sJH,sJ1,9), salu('s_sub_u32',sJH,512,sJH))
    e(salu('s_lshl_b32',sT0,si,2), salu('s_add_u32',sT0,sT0,sW), salu('s_mul_i32',sT0,sT0,z*9*9216), salu('s_mul_i32',sT1,sJ,576), salu('s_and_b32',sT1,sT1,-128), salu('s_add_u32',sT0,sT0,sT1),
      valu('v_mul_u32_u24',t,9216,vL), valu('v_add_u32',t,sT0,t))
    masked(vPG,t,'v_cmp_gt_u32',z*9,ln,row)
    u=row
    e(valu('v_mul_u32_u24',t,7282//z,vL), valu('v_lshrrev_b32',t,16,t), valu('v_mul_u32_u24',u,z*9,t), valu('v_sub_u32',u,vL,u), valu('v_mul_u32_u24',u,3456,u), valu('v_lshl_add_u32',u,t,7,u),
      salu('s_lshl_b32',sT0,si,2), salu('s_add_u32',sT0,sT0,sW), salu('s_mul_i32',sT0,sT0,z*9*3456), salu('s_mul_i32',sT1,sJ,216), salu('s_and_b32',sT1,sT1,-128), salu('s_add_u32',sT0,sT0,sT1),
      valu('v_add_u32',u,sT0,u))
    masked(vPOLL,u,'v_cmp_gt_u32',z*27,ln,t)
def pf_gu(c):
    if not OPT['pf']: return []
    return [cost(bload(vPF,vPG,s,sJ128 if c<4 else sJH,c*128 if c<4 else 0,tag='pf'),90) for s in (sWG,sWU)]
def pf_q(): return [cost(bload(vPF,vPOLL,sWQ,0,tag='pf'),270)] if OPT['pf'] else []
def addr_pfd():
    t,u=vPOLL,vT[7]; z=2 if OPT['pfe'] else 1; si=sM8 if OPT['pfe'] else sI
    ln=pf_lane(vT[4])
    e(salu('s_lshl_b32',sT0,si,2), salu('s_add_u32',sT0,sT0,sW), salu('s_mul_i32',sT0,sT0,z*81*64), salu('s_and_b32',sT0,sT0,-128), salu('s_mul_i32',sT1,sJ,288*1152), salu('s_add_u32',sT0,sT0,sT1),
      valu('v_mul_u32_u24',t,384,vL), valu('v_add_u32',t,sT0,t))
    masked(vPOLL,t,'v_cmp_gt_u32',14*z,ln,u)
def pf_d(k): return [cost(bload(vPF,vPOLL,sWD,0,k*128,tag='pf'),140)] if OPT['pf'] else []
def pf_o():
    if not OPT['pf']: return
    t,u=vT[4],vT[5]
    e(salu('s_lshl_b32',sT0,S(2),2), salu('s_add_u32',sT0,sT0,sW), salu('s_mul_i32',sT0,sT0,6*128), valu('v_lshl_add_u32',t,vL,7,sT0))
    masked(t,t,'v_cmp_gt_u32',6,vL,u)
    e(cost(bload(vPF,t,sWO,0,tag='pf'),60))
def cost(i,c): i.meta['cost']=c; return i
def xdma(tt,l):
    base=sBD if tt==0 else sBL
    o=[salu('s_add_u32','m0',sW18K,tt*73728+l*1920)] if l%2==0 else []
    for z in range(2): o.append(gdma(vX[2*(l&1)+z],base,(l&~1)*128+(2*(l&1)+z)*1024,tag=('x',tt,l),private=True))
    return o
SELA=A(208,2)
def sel_ops(m,g):
    return [valu('v_and_b32',m,1,vL), valu('v_lshlrev_b32',m,4,m), valu('v_lshlrev_b32',m,m,sLO), valu('v_bfe_u32',g,vL,1,1), valu('v_mul_lo_u32',g,g,m), valu('v_sub_u32',m,m,g),
      valu('v_accvgpr_write_b32',SELA[0],m), valu('v_accvgpr_write_b32',SELA[1],g)]
ntouch=[0]
def touch():
    if not OPT['touch']: return []
    k=ntouch[0]; ntouch[0]+=1
    o=[raw('s_mov_b64 exec, 0','salu')]
    for w in range(3): o+=[salu('s_cmp_eq_u32',sW,w), raw(f's_cbranch_scc1 L_pg{4*k+w}','misc')]
    o+=[raw(f's_branch L_pg{4*k+3}','misc'), label(f'L_tr{k}'), raw('s_mov_b64 exec, -1','salu')]
    for x in o[:-1]: x.meta['glue']=True
    return o

def lane_rp(rp,p,t):
    e(valu('v_lshrrev_b32',rp,3,vL), valu('v_and_b32',t,6,rp), valu('v_and_b32',p,7,vL), valu('v_xor_b32',p,p,t))
def addr_early():
    rp,p,t,u,kA=vT[2],vT[3],vT[4],vT[5],vT[6]
    lane_rp(rp,p,t)
    e(salu('s_and_b32',sT0,sW,1), salu('s_lshl_b32',sT0,sT0,4), salu('s_lshr_b32',sT1,sW,1), salu('s_lshl_b32',sT1,sT1,2), salu('s_add_u32',sT0,sT0,sT1))
    e(valu('v_and_b32',t,4,rp), valu('v_add_u32',kA,rp,t), valu('v_add_u32',kA,sT0,kA))
    e(salu('s_mul_i32',sT1,sJ,288), salu('s_lshl_b32',sT2,sJ1,5), salu('s_add_u32',sT2,sT2,sT1))
    e(salu('s_lshl_b32',sT3,sJ1,8), salu('s_sub_u32',sT3,256,sT3), salu('s_add_u32',sT3,sT3,sT1))
    e(salu('s_lshl_b32',sT0,sT2,1), valu('v_mul_u32_u24',t,9216,kA), valu('v_lshl_add_u32',t,p,4,t), valu('v_add_u32',vGF,sT0,t))
    e(salu('s_lshl_b32',sT0,sT3,1), valu('v_lshrrev_b32',t,2,p), valu('v_lshl_add_u32',t,t,5,kA), valu('v_mul_u32_u24',t,9216,t),
      valu('v_and_b32',u,3,p), valu('v_lshl_add_u32',t,u,4,t), valu('v_add_u32',vGH,sT0,t))
    e(salu('s_lshl_b32',sT0,sW,3), valu('v_add_u32',t,sT0,rp), valu('v_add_u32',u,sT2,t), valu('v_mul_u32_u24',u,1152,u), valu('v_lshl_add_u32',vDF,p,4,u),
      valu('v_add_u32',u,sT3,t), valu('v_mul_u32_u24',u,1152,u), valu('v_lshl_add_u32',vDH,p,4,u))
    g,r4,c,b=vT[2],vT[3],vT[6],vT[7]
    e(valu('v_bfe_u32',r4,vL,2,3), valu('v_and_b32',c,3,vL), valu('v_lshrrev_b32',g,5,vL),
      valu('v_lshlrev_b32',b,10,g), valu('v_lshl_add_u32',b,r4,7,b), valu('v_lshl_add_u32',b,c,3,b), valu('v_lshrrev_b32',t,1,r4))
    for q in range(4):
        e(valu('v_xor_b32',u,q,t), valu('v_lshl_add_u32',vTR[q][0],u,5,b), valu('v_add_u32',vTR[q][1],0x10000,vTR[q][0]), valu('v_add_u32',vTR[q][2],0x20000,vTR[q][0]))
def addr_qk():
    t=vT[4]
    e(salu('s_mul_i32',sT0,sJ,216), salu('s_and_b32',sT0,sT0,-16), salu('s_mul_i32',sT1,sW,32*3456), salu('s_add_u32',sT0,sT0,sT1))
    for q in range(7):
        pp,rr,k=vT[2],vT[3],vT[6]
        e(valu('v_add_u32',pp,64*q,vL), valu('v_mul_u32_u24',rr,4682,pp), valu('v_lshrrev_b32',rr,16,rr),
          valu('v_mul_u32_u24',t,14,rr), valu('v_sub_u32',pp,pp,t),
          valu('v_and_b32',t,12,rr), valu('v_and_b32',k,3,rr), valu('v_lshl_add_u32',k,t,1,k), valu('v_lshrrev_b32',t,4,rr), valu('v_lshl_add_u32',k,t,2,k),
          valu('v_mul_u32_u24',k,3456,k), valu('v_lshl_add_u32',k,pp,4,k), valu('v_add_u32',vQK[q],sT0,k))
        if q%4: e(valu('v_subrev_u32',vQK[q],1024*(q%4),vQK[q]))
def extpos(dst,key,t):
    e(valu('v_and_b32',dst,7,key), valu('v_bfe_u32',t,key,4,1), valu('v_lshl_add_u32',dst,t,3,dst),
      valu('v_bfe_u32',t,key,3,1), valu('v_xor_b32',t,1,t), valu('v_lshl_add_u32',dst,t,4,dst))
def addr_mid():
    t,u,c=vT[4],vT[5],vT[6]
    e(valu('v_and_b32',c,3,vL), salu('s_lshl_b32',sT0,sJ1,3), valu('v_lshrrev_b32',t,2,vL), valu('v_mul_u32_u24',t,224,t), valu('v_add_u32',t,sT0,t),
      valu('v_lshl_add_u32',vQM[0],c,3,t), valu('v_mul_u32_u24',u,72,c), valu('v_add3_u32',vQE[0],t,u,32))
    for n in (1,2): e(valu('v_add_u32',vQM[n],n*0x10000,vQM[0]), valu('v_add_u32',vQE[n],n*0x10000,vQE[0]))
def addr_mid2():
    t,u,key,hf=vT[4],vT[5],vT[2],vT[3]
    e(salu('s_lshl_b32',sT0,sI,2), salu('s_add_u32',sT0,sT0,sW), salu('s_mul_i32',sT0,sT0,1280), salu('s_mul_i32',sT1,sJ,6*SL), salu('s_add_u32',sT0,sT0,sT1))
    e(salu('s_lshr_b32',sT1,sXX,11), valu('v_xor_b32',u,sT1,vL), valu('v_and_b32',key,31,u), valu('v_lshrrev_b32',hf,5,vL), valu('v_lshlrev_b32',t,2,hf), valu('v_xor_b32',t,t,u), valu('v_lshlrev_b32',t,4,t), valu('v_add_u32',vSM,sT0,t))
    extpos(u,key,t)
    e(valu('v_lshlrev_b32',u,3,u), valu('v_add_u32',u,sT0,u), valu('v_add_u32',u,1024,u), valu('v_mul_u32_u24',t,4*SL,hf), valu('v_add_u32',vSE0,u,t),
      valu('v_lshl_add_u32',vSE1,hf,31,u))
    e(salu('s_mul_i32',sT0,sJ,6), valu('v_lshrrev_b32',t,4,vL), valu('v_lshl_add_u32',t,t,1,sT0), valu('v_mov_b32',u,f32(QSCALE)), valu('v_cmp_gt_u32','vcc',32,t), valu('v_cndmask_b32',vSCX,1.0,u))
    for p_ in range(3): e(valu('v_readlane_b32',sSC[p_],vSCX,16*p_))
    e(salu('s_lshl_b32',sT0,sI,2), salu('s_add_u32',sT0,sT0,sW), salu('s_lshl_b32',sT1,sT0,9), salu('s_add_u32',sT1,sT1,sJ), salu('s_lshl_b32',sT1,sT1,10),
      valu('v_lshl_add_u32',vPS,vL,4,sT1),
      salu('s_lshl_b32',sT1,sT0,7), salu('s_add_u32',sT1,sT1,sJ), salu('s_lshl_b32',sT1,sT1,9), valu('v_lshl_add_u32',vPX,vL,3,sT1))
    e(salu('s_lshl_b32',sT1,sT0,11), salu('s_add_u32',sT1,sT1,WS_F2), valu('v_lshl_add_u32',t,vL,9,sT1), salu('s_and_b32',sT3,sJ,3), salu('s_lshl_b32',sT3,sT3,9), salu('s_add_u32',sT3,sT3,sT1))
    masked(vF1,t,'v_cmp_gt_u32',4,vL,u)
    e(salu('s_lshl_b32',sT1,sM8,2), salu('s_add_u32',sT1,sT1,sW), salu('s_lshl_b32',sT1,sT1,12), salu('s_add_u32',sT1,sT1,WS_F3), valu('v_lshl_add_u32',t,vL,9,sT1))
    masked(vF3,t,'v_cmp_gt_u32',8,vL,u)
    e(salu('s_lshl_b32',sT1,sXC,2), salu('s_lshr_b32',sT2,sIDX,3), salu('s_add_u32',sT1,sT1,sT2), salu('s_lshl_b32',sT1,sT1,1), salu('s_and_b32',sT2,sIDX,1), salu('s_add_u32',sT1,sT1,sT2),
      salu('s_lshl_b32',sT1,sT1,2), salu('s_add_u32',sT1,sT1,sW), salu('s_lshl_b32',sT1,sT1,9), salu('s_add_u32',sF3,sT1,WS_F3))
    e(raw(f'v_writelane_b32 {u}, {sT3}, 0','valu',u.regs()+sT3.regs(),u.regs()), raw(f'v_writelane_b32 {u}, {sF3}, 1','valu',u.regs()+sF3.regs(),u.regs()),
      valu('v_sub_u32',t,1,vL), valu('v_lshlrev_b32',t,4,t), cost(bstore(t,u,sWS,0,flags='sc1',tag='qkvst'),30))
    e(valu('v_and_b32',key,16,vL), valu('v_cmp_eq_u32','vcc',0,key), valu('v_cndmask_b32',hf,vR[1],vR[0]), valu('v_mul_f32',hf,hf,hf),
      salu('s_lshl_b32',sT0,sT0,7), salu('s_add_u32',sT0,sT0,WS_R2), valu('v_lshl_add_u32',key,vL,2,sT0), salu('s_lshl_b32',sT1,sJ,6), valu('v_add_u32',t,sT1,vL))
    masked(key,key,'v_cmp_gt_u32',32,t,u)
    e(bstore(hf,key,sWS,0,flags='sc1',tag='qkvst'))
def pf_code():
    if not OPT['pfc']: return
    t=vT[4]; a=V(6,2)
    e(raw('s_getpc_b64 s[100:101]','salu',[],['s100','s101']), label('L_pc'),
      salu('s_lshl_b32',sT0,sIDX,2), valu('v_add_u32',t,sT0,vT[0]), valu('v_lshl_add_u32',t,vL,7,t), valu('v_lshlrev_b32',t,7,t),
      raw(f'v_min_u32 {t}, L_codeend-L_pc-4, {t}','valu',t.regs(),t.regs()),
      raw(f'v_add_co_u32 {a[0]}, vcc, {sPC[0]}, {t}','valu',t.regs()+['s100'],a[0].regs()+['vcc']), valu('v_mov_b32',a[1],sPC[1]), raw('s_mov_b64 exec, 63','salu'),
      raw(f'v_addc_co_u32 {a[1]}, vcc, 0, {a[1]}, vcc','valu',a[1].regs()+['vcc'],a[1].regs()+['vcc']),
      I(f'global_load_dword {vPF}, {a}, off','vld',a.regs(),vPF.regs(),tag='pf'), raw('s_mov_b64 exec, -1','salu'))

GR=[V(38,4),V(42,4)]; MEAN=[V(46),V(47)]
def var_ops(tt):
    d=GR[tt]; t=vT[4]; b=d[0]
    e(valu('v_and_b32',t,1,vL), valu('v_cmp_eq_u32','vcc',0,t), valu('v_and_b32',t,2,vL), valu('v_cndmask_b32',d[0],d[1],d[0]), valu('v_cndmask_b32',d[2],d[3],d[2]),
      valu('v_cmp_eq_u32','vcc',0,t), valu('v_bfe_u32',t,vL,2,2), valu('v_cndmask_b32',d[0],d[2],d[0]), valu('v_lshrrev_b32',d[1],4,vL), valu('v_cmp_eq_u32','vcc',t,d[1]),
      valu('v_cndmask_b32',b,0,b))
    for op in ('v_permlane16_swap_b32','v_permlane32_swap_b32'): e(valu('v_mov_b32',d[1],b), swap(op,b,d[1]), valu('v_add_f32',b,b,d[1]))
    e(valu('v_mul_f32',b,f32(1/576),b), valu('v_fma_f32',b,'-'+str(MEAN[tt]),MEAN[tt],b), valu('v_max_f32',b,0,b), valu('v_cvt_pk_bf16_f32',b,b,b), valu('v_lshlrev_b32',b,16,b),
      valu('v_add_f32',b,f32(1e-5),b), valu('v_cvt_pk_bf16_f32',b,b,b), valu('v_lshlrev_b32',b,16,b),
      valu('v_sqrt_f32',b,b), valu('v_cvt_pk_bf16_f32',b,b,b), valu('v_lshlrev_b32',b,16,b), valu('v_rcp_f32',vR[tt],b))
def centre_ops(f,tt):
    o=[]; t=V(252)
    for d in range(4):
        x=f[d]
        o+=[valu('v_lshlrev_b32',t,16,x), valu('v_and_b32',x,0xffff0000,x), valu('v_sub_f32',t,t,vM[tt]), valu('v_sub_f32',x,x,vM[tt]), valu('v_cvt_pk_bf16_f32',x,t,x)]
    return o
def to_acc(s): return [valu('v_accvgpr_write_b32',XC0[4*s+d],X0[s][d]) for d in range(4)]

class Item:
    def __init__(s,name,n,mk): s.name=name; s.n=n; s.mk=mk; s.addr=None; s.first=None; s.last=None; s.pushed=False
    def blks(s): return list(range(s.addr//4096,s.addr//4096+s.n))
def blk_item(name,voff,srd,soff,buf=False,c=80):
    def mk(it):
        o=[salu('s_add_u32','m0',sW1K,it.addr)]
        if buf: return o+[salu('s_mov_b32',sSO,soff), cost(dma(voff,srd,sSO,tag=it.name,dst=it.blks()),c)]
        return o+base_add(sBD,srd,soff)+[cost(gdma(voff,sBD,tag=it.name,dst=it.blks()),c)]
    return Item(name,1,mk)
def qkv_item(a):
    def mk(it):
        o=[salu('s_mov_b32',sSO,a*128*3456)] if a==4 else base_add(sBD,sWQ,a*128*3456)
        for q in range(7):
            if q%4==0: o.append(salu('s_add_u32','m0',sW7K,it.addr+q*1024))
            if a==4: o.append(dma(vQK[q],sWQ,sSO,(q%4)*1024,tag=it.name,dst=it.blks()))
            else: o.append(cost(gdma(vQK[q],sBD,(q%4)*1024,tag=it.name,dst=it.blks()),120))
        return o
    return Item(('q',a),7,mk)
def kv_item(sg):
    def mk(it):
        o=[]
        for q in range(5):
            if q%4==0: o+=[salu('s_add_u32','m0',sW5K,it.addr+q*1024)]+base_add(sBD,sWS,WS_QKV+sg*10240+q*1024)
            o.append(gdma(vKV,sBD,(q%4)*1024,flags='sc1',tag=it.name,dst=it.blks())); o[-1].rd.append('ok_f1')
        return o
    return Item(('kv',sg),5,mk)

class Group:
    def __init__(s): s.m=[]; s.rd=[]; s.bar=False; s.fr=[]
frp=[0]
def newfrag():
    pl=[FR[4*n:4*n+4] for n in range(16)]+[A(216+4*n,4) for n in range(OPT['frx'])]
    f=pl[frp[0]]; frp[0]=(frp[0]+1)%len(pl); return f
def tr_read(f,u,it,seg):
    return dsr('ds_read_b64_tr_b16',f[2*u:2*u+2],vTR[seg][it.addr>>16],(it.addr&0xffff)+u*2048,src=(it.name,it.blks()))
def xc(tt,s): return (XC0 if tt==0 else XC1)[4*s:4*s+4]
def hfrag(k,tt): return HH[8*k+4*tt:8*k+4*tt+4]

items=[]; groups=[]; events=[]
def chain_mm(g,ks,accs,bfun):
    t0=len(groups)&1 if OPT['snake'] else 0
    for z in range(2):
        tt=t0^z; o=list(zip(ks,g.fr))
        if z and OPT['snake']: o.reverse()
        for n,(k,f) in enumerate(o): g.m.append(m16(accs[tt],f,bfun(k,tt),0 if (ks[0]==0 and n==0) else accs[tt]))
def mm_group(srcs,accs,bfun,bar=False):
    g=Group(); g.bar=bar
    for it,seg,k in srcs:
        f=newfrag(); g.fr.append(f)
        for u in range(2): g.rd.append((it,lambda it,f=f,u=u,seg=seg: tr_read(f,u,it,seg)))
    chain_mm(g,[k for _,_,k in srcs],accs,bfun)
    groups.append(g); return len(groups)-1

def h_epilogue(bank,q,kout,half):
    gt=[bank[16*q+4*tt:16*q+4*tt+4] for tt in range(2)]; up=[bank[16*q+8+4*tt:16*q+12+4*tt] for tt in range(2)]
    o=[]
    for tt in range(2):
        for r in range(4): o.append(valu('v_max_f32',gt[tt][r],0,gt[tt][r]))
    for tt in range(2):
        for r in range(4): o.append(valu('v_mul_f32',up[tt][r],gt[tt][r],up[tt][r]))
        for d in range(2): o.append(valu('v_cvt_pk_bf16_f32',gt[tt][d],up[tt][2*d],up[tt][2*d+1]))
        for d in range(2): o.append(valu('v_accvgpr_write_b32',hfrag(kout,tt)[2*half+d],gt[tt][d]))
    return o
NV0=15
X0=[V(192+4*s,4) for s in range(NV0)]+[V(128+4*s,4) for s in range(18-NV0)]
def build_chunk(c,bank):
    xf=lambda k,tt: X0[k] if (c==0 and tt==0 and k<NV0) else xc(tt,k)
    cuts=list(range(0,19,OPT['chain']))
    if c==0: cuts=list(range(0,19,3)) if OPT['c0ch']==3 else [0,3,6,12,15,18]
    for st,(k0,k1) in enumerate(zip(cuts,cuts[1:])):
        G=[blk_item(('g',c,k),vGF,sWG,k*32*9216+c*128) for k in range(k0,k1)]
        U=[blk_item(('u',c,k),vGF,sWU,k*32*9216+c*128) for k in range(k0,k1)]
        flip=OPT['flip'] and (len(cuts)-2-st)%2==1
        items.extend(U+G if flip else G+U)
        for z,(M,o) in enumerate(((U,8),(G,0)) if flip else ((G,0),(U,8))):
            for n,q in enumerate(range(3,-1,-1) if flip else range(4)):
                b=(n==0) if z==0 else (n==0 and ((k1-k0>3 and str(c) not in str(OPT['aint'])) or OPT['bartr'] or (c==0 and st<OPT.get('bar0',2))))
                gi=mm_group([(M[k-k0],q,k) for k in range(k0,k1)],[bank[16*q+o+4*tt:16*q+o+4+4*tt] for tt in range(2)],xf,bar=b)
                if k1==18 and z: events.append((gi,h_epilogue(bank,q,2*c+(q>>1),q&1)))
def build_half(bank):
    for st in range(3):
        G=[blk_item(('gh',3*st+n),vGH,sWG,(3*st+n)*64*9216,c=150) for n in range(3)]
        U=[blk_item(('uh',3*st+n),vGH,sWU,(3*st+n)*64*9216,c=150) for n in range(3)]
        items.extend(G+U)
        seq=[(G,0,0),(G,0,1),(U,8,0),(U,8,1)] if st<2 else [(G,0,0),(U,8,0),(G,0,1),(U,8,1)]
        for z,(M,o,q) in enumerate(seq):
            ch=min(6,OPT['chain'])
            for hh in range(6//ch):
                ks=[6*st+ch*hh+n for n in range(ch)]
                gi=mm_group([(M[(k-6*st)>>1],2*(k&1)+q,k) for k in ks],[bank[16*q+o+4*tt:16*q+o+4+4*tt] for tt in range(2)],lambda k,tt:xc(tt,k),bar=(hh==0 and (z==0 or (z==2 and st<2 and OPT['bartr']))))
            if st==2 and o==8: events.append((gi,h_epilogue(bank,q,8,q)))
def build_qkv(bank):
    for a in range(5):
        it=qkv_item(a); items.append(it)
        first=True
        qc=OPT['qch'] if a<4 else 2
        for k0 in range(0,4 if a<4 else 2,qc):
            for t in (range(6,-1,-1) if OPT['flip'] and a%2 else range(7)):
                g=Group(); g.bar=first; first=False
                for kk in range(k0,k0+qc):
                    f=newfrag(); g.fr.append(f)
                    for u in range(2):
                        def rd(it,f=f,u=u,kk=kk,t=t):
                            ad=it.addr+kk*7168+u*3584+(0 if t==6 else 72*(t>>1)+40*(t&1))
                            return dsr('ds_read_b64_tr_b16',f[2*u:2*u+2],(vQE if t==6 else vQM)[ad>>16],ad&0xffff,src=(it.name,it.blks()))
                        g.rd.append((it,rd))
                chain_mm(g,[4*a+kk for kk in range(k0,k0+qc)],[bank[8*t+4*tt:8*t+4*tt+4] for tt in range(2)],lambda k,tt:xc(tt,k))
                groups.append(g)
                if a==4: events.append((len(groups)-1,qkv_epilogue(bank,t)))
def st_pair(o,data,voff,soff,tag,x=None):
    a=salu('s_mov_b32',sSO2,soff) if x is None else salu('s_xor_b32',sSO2,x,soff); b=bstore(data,voff,sWS,sSO2,flags='sc1',tag=tag)
    dep=[x for x in o if x.kind=='valu'][-1]
    a.meta['q']='st'; b.meta['q']='st'; b.meta['dep']=dep
    o+=[a,b]
def qkv_epilogue(bank,t):
    o=[]
    sc=[bank[56],bank[57]]
    if t==6: o+=[valu('v_mul_f32',sc[tt],vSCX,vR[tt]) for tt in range(2)]
    elif t%2==0: o+=[valu('v_mul_f32',sc[tt],sSC[t>>1],vR[tt]) for tt in range(2)]
    a=bank[8*t:8*t+8]
    for tt in range(2):
        for r in range(4): o.append(valu('v_mul_f32',a[4*tt+r],sc[tt],a[4*tt+r]))
    if t<6:
        o+=[valu('v_cvt_pk_bf16_f32',a[0],a[0],a[1]), valu('v_cvt_pk_bf16_f32',a[1],a[2],a[3]), valu('v_cvt_pk_bf16_f32',a[2],a[4],a[5]), valu('v_cvt_pk_bf16_f32',a[3],a[6],a[7]),
            swap('v_permlane16_swap_b32',a[0],a[2]), swap('v_permlane16_swap_b32',a[1],a[3])]
        st_pair(o,a[0:4],vSM,WS_QKV+t*SL,'qkvst')
    else:
        o+=[valu('v_cvt_pk_bf16_f32',a[0],a[0],a[1]), valu('v_cvt_pk_bf16_f32',a[2],a[2],a[3]), valu('v_cvt_pk_bf16_f32',a[4],a[4],a[5]), valu('v_cvt_pk_bf16_f32',a[6],a[6],a[7])]
        o+=[valu('v_mov_b32',a[n],sONES) for n in (1,3,5,7)]
        o+=[swap('v_permlane16_swap_b32',a[0],a[4]), swap('v_permlane16_swap_b32',a[2],a[6])]
        for n,(vo,sl) in enumerate(((vSE0,0),(vSE0,1),(vSE1,2),(vSE1,3))):
            st_pair(o,a[2*n:2*n+2],vo,WS_QKV+sl*SL,'qkvst')
    return o
pool=[0]
def build_down():
    ntr=0
    if OPT['chain']==3: seq=[(c,3*tr,3*tr+3) for c,tr in [(0,0),(0,1),(1,0),(1,1),(0,2),(1,2)]+[(c,tr) for c in range(2,9) for tr in range(3)]]
    else:
        seq=[(0,0,6),(1,0,6),(0,6,9),(1,6,9)]
        for c in range(2,9): seq+=[(c,0,9)] if OPT['chain']==9 and c<8 else ([(c,0,6),(c,6,9)] if c%2==0 else [(c,0,3),(c,3,9)])
    for c,k0,k1 in seq:
        acc=V(192 if c==0 else 128+32*((c+1)%2),32)
        tr=2 if k1==9 else 0
        if True:
            B=[blk_item(('d',c,k),vDF if k<8 else vDH,sWD,(k*32*1152 if k<8 else 0)+c*128) for k in range(k0,k1)]
            items.extend(B)
            for n,q in enumerate(range(3,-1,-1) if OPT['flip'] and k1<9 and c>1 else range(4)):
                gi=mm_group([(B[k-k0],q,k) for k in range(k0,k1)],[acc[16*tt+4*q:16*tt+4*q+4] for tt in range(2)],hfrag,bar=(n==0 and (ntr%OPT['bint']==0 or ntr==26 or k1-k0==9 or OPT['bartr'])))
                if tr==2 and q%2==1:
                    o=[]
                    for tt in range(2):
                        a=acc[16*tt+4*(q-1):16*tt+4*(q-1)+8]
                        pl=[XC1[4*n:4*n+4] for n in range(18)]; pa=([A(212+4*n,4) for n in range(7)]+[A(24+4*n,4) for n in range(4)]+[A(60+4*n,4) for n in range(3)])[:OPT['apool']]
                        n=pool[0]; pool[0]+=1; a0_=OPT['ap0']
                        if a0_<=n<a0_+len(pa):
                            d4=pa[n-a0_]
                            o+=[valu('v_cvt_pk_bf16_f32',a[d],a[2*d],a[2*d+1]) for d in range(4)]+[valu('v_accvgpr_write_b32',d4[d],a[d]) for d in range(4)]
                        else:
                            d4=pl[(n if n<a0_ else n-len(pa))%18]
                            o+=[valu('v_cvt_pk_bf16_f32',d4[d],a[2*d],a[2*d+1]) for d in range(4)]
                        if c<8: st_pair(o,d4,vPS,WS_P+(tt*16+c*2+(q>>1))*16384,'pst',sXP)
                        else:
                            for z in range(2): st_pair(o,d4[2*z:2*z+2],vPX,WS_PX+(tt*4+q-1+z)*8192,'pst',sXX)
                    events.append((gi,o))
            ntr+=(k1-k0)//3

marks={}
def build_ffn():
    marks['c0']=len(groups); build_chunk(0,BANK[0])
    marks['c1']=len(groups); build_chunk(1,BANK[1])
    marks['qkv']=len(groups); build_qkv(BANK[0])
    marks['c2']=len(groups); build_chunk(2,BANK[1])
    marks['c3']=len(groups); build_chunk(3,BANK[0])
    marks['half']=len(groups); build_half(V(224,32))
    marks['down']=len(groups); build_down()

NB=39 if OPT['split'] else 40; LATE=10**9
SIG=13 if OPT['split'] else 1
vCA,vCV=V(54),vT[7]
def plan():
    L=OPT['look']
    n=0; bars=[]
    for g in groups:
        g.start=n
        if g.bar: bars.append(n-L-(1 if n and OPT['balone']==2 else 0))
        for k,(it,_) in enumerate(g.rd):
            if it.first is None: it.first=n+k-L
            it.last=n-1+(0 if len(g.fr)<=3 else ((k//4)*2 if not OPT['w3'] else (k//6)*3))
        n+=len(g.m)
    free={b:(-3000 if b>=36 else (-2000 if b<18 else -L)) for b in range(NB)}
    ptr=36
    for it in items:
        if ptr+it.n>NB: ptr=0
        it.addr=ptr*4096
        it.early=max(free[b] for b in it.blks())
        assert it.early<LATE
        it.bar=max(b for b in bars if b<=it.first)
        nxt=[b for b in bars if b-SIG>=it.last]
        for b in it.blks(): free[b]=nxt[0] if nxt else LATE
        ptr=(ptr+it.n)%NB
    return n,bars,free

VM=('dma','vld','vst')
SC=('salu','waitfor','misc','label')
lastvm=dict(any=-100,st=-100)
def head(nm,gap):
    q=fifo[nm]
    if not q or q[0][0]>gap: return None
    x=q[0][1]
    if 'lag' in x.meta and x.meta['lag'][0].meta.get('at',LATE)+x.meta['lag'][1]>gap: return None
    sq=x.meta['seq']; rd=set(x.rd)-{'carry'}; wr=set(x.wr)-{'carry'}
    for n2,q2 in fifo.items():
        if n2==nm: continue
        for _,y in q2:
            if y.meta['seq']>sq: break
            if rd&set(y.wr) or wr&set(y.rd) or wr&set(y.wr): return None
    return x
pipe=[0,16]
def vm_ready(gap,mingap,stgap,order=('st','ld','low','dma')):
    if gap-lastvm['any']<mingap: return None
    if pipe[0]-gap*pipe[1]>OPT['back']: return None
    for nm in order:
        x=head(nm,gap)
        if x is None or x.kind not in VM: continue
        if nm=='st':
            d=x.meta.get('dep')
            if gap-lastvm['st']<stgap or (d is not None and d.meta.get('at',LATE)>gap-2): continue
        return nm
    return None
def take(nm,gap):
    x=fifo[nm].pop(0)[1]
    if x.kind in VM:
        lastvm['any']=gap
        pipe[0]=max(pipe[0],gap*pipe[1])+x.meta.get('cost',80)
        if nm=='st': lastvm['st']=gap
    e(x)
    nx=[y for _,y in fifo[nm][:6] if 'vcc' in y.rd or 'vcc' in y.wr]
    if nx and 'vcc' in nx[0].rd: vcc_open[0]=nm
    elif vcc_open[0]==nm: vcc_open[0]=None
    while x.meta.get('glue'):
        x=fifo[nm].pop(0)[1]; e(x)
    return x
vcc_lock=[LATE]; vcc_open=[None]
def pull(gap,scalar):
    order=('arr','st','ld','dma','ctr','epi','low') if scalar and OPT['sprio'] else ('arr','dma','st','ctr','epi','ld','low')
    if scalar:
        for nm in order:
            x=head(nm,gap)
            if x is not None and 'carry' in x.rd: take(nm,gap); return True
    elif vcc_open[0]: order=(vcc_open[0],)+order
    for nm in order:
        x=head(nm,gap)
        if x is None or x.kind in VM: continue
        if (x.kind in SC)!=scalar: continue
        if 'vcc' in x.wr and not x.meta.get('glue') and vcc_lock[0]<OPT.get('vlock',22): continue
        take(nm,gap); return True
    return False

bar_extra={}; PH={}
def emit_backbone(bars,gapstamps):
    L=OPT['look']
    reads=[(it,f,g.start-0.5) for g in groups for it,f in g.rd]
    ev={}
    for gi,ops in events: ev.setdefault(gi,[]).append(ops)
    bar_items={}
    for it in items: bar_items.setdefault(it.bar,[]).append(it.name)
    barset=set(bars); issue={}
    fixed={}; fixT={}
    nb=len([b for b in bars if b>=SIG and OPT['split']]); kb=0
    for gi,g in enumerate(groups):
        for k in range(len(g.m)):
            gap=g.start+k; fx=[]
            w_lg=list(groups[gi+1].fr) if (k==len(g.m)-1 and gi+1<len(groups)) else []
            if len(w_lg)>3: w_lg=w_lg[:3 if OPT['w3'] else 2]
            if len(g.fr)>3 and not OPT['w3'] and k in (1,3): w_lg=g.fr[k+1:k+3]
            if len(g.fr)>3 and OPT['w3'] and k in (2,5) and k+1<len(g.fr): w_lg=g.fr[k+1:k+4]
            if len(g.fr)>6 and k in (9,13): w_lg=groups[gi+1].fr[:1+(k-9)//2] if gi+1<len(groups) else []
            w_vm=[]
            for d in (1,SIG):
                b=gap+d
                if b in barset and d==(SIG if b>=SIG else 1): w_vm=bar_items.get(b,[])+bar_extra.get(b,[])
            if OPT['split']:
                if gap+SIG in barset: x=dsw('ds_sub_u32',vCA,vONE); x.meta['signal']=True; fixT[gap]=x
                if gap+7 in barset and gap+7>=SIG: assert gap not in fixT; fixT[gap]=dsr('ds_read_b32',vCV,vCA)
                if gap+1 in barset and gap+1>=SIG:
                    kb+=1; assert gap not in fixT
                    fixT[gap]=valu('v_cmp_lt_u32','vcc',4*(nb-kb),vCV); w_lg.append(vCV)
                    OUT.extend([f'L_sb{kb}:', f'ds_read_b32 {vCV}, {vCA}', 's_waitcnt lgkmcnt(0)', fixT[gap].text, 's_nop 0', f's_cbranch_vccnz L_sb{kb}', f's_branch L_sr{kb}'])
            if gap in barset:
                if OPT['split'] and gap>=SIG: fx.append([raw(f's_cbranch_vccnz L_sb{kb}','misc',['vcc'],check=True,glue=True), label(f'L_sr{kb}')])
                else: fx.append([barrier()])
            if w_lg or w_vm: fx.append([waitfor(lg=w_lg,vmtags=w_vm)])
            fixed[gap]=fx
    def stgap_at(gap):
        dn=gap>=groups[marks['down']].start
        iv=len([b for b in bars if b<=gap])
        if iv%OPT['stper' if dn else 'qstper']: return LATE
        if any(0<=g-gap<OPT['atd']*3//4 for g in extra): return LATE
        return OPT['stgap' if dn else 'qstgap']
    ri=[L]
    def rd():
        it,f,lg=reads[ri[0]]; ri[0]+=1; e(setseq(f(it),lg))
    planned=None
    for gi,g in enumerate(groups):
        for k,m in enumerate(g.m):
            gap=g.start+k
            if gap-1 in extra:
                cur[0]=gap-0.7
                e(*extra[gap-1])
                x=head('st',gap); n=extra[gap-1][-1].passes-3
                if x is not None and x.kind=='vst' and x.meta['dep'].meta.get('at',LATE)<gap-2: take('st',gap); n=0
                for _ in range(n): pull(gap-1,False)
            cur[0]=gap
            e(m)
            if gap in gapstamps: stamp(gapstamps[gap])
            if gap in PH: note(PH[gap])
            if 'gst' in OPT and gap in range(*map(int,OPT['gst'].split(':'))): stamp(f'gap{gap}',True)
            if planned:
                x=take(planned,gap); planned=None
                if x.kind=='dma': issue[x.meta['tag']]=gap
                continue
            fx=fixed[gap]
            nosc=OPT['nosc'] and P[-2].kind=='valu' and any(r=='vcc' or r[0]=='s' for r in P[-2].wr)
            if fx: e(*fx.pop(0))
            elif not nosc and not pull(gap,True) and OPT['snop']: e(raw('s_nop 0','misc'))
            if gap in barset and OPT['balone']==3 and not fx: continue
            if ri[0]<len(reads) and ri[0]<=gap+L: rd()
            elif ri[0]>=len(reads) and tail_reads: e(tail_reads.pop(0))
            used=False
            if gap in barset and OPT['balone'] and not fx: continue
            if gap+1 in barset and OPT['balone']==2 and not fx and len(fixed[gap+1])==1 and ri[0]<len(reads) and reads[ri[0]][0].bar<=gap: rd(); continue
            if fx: e(*fx.pop(0)); used=True
            if gap in fixT:
                e(fixT[gap]); used=True
                if fixT[gap].kind=='valu': continue
            lag=ri[0]<len(reads) and ri[0]<=gap+L
            if lag:
                if not used: rd()
                continue
            if gap+1 in fixed and not fixed[gap+1] and gap+1 not in fixT: planned=vm_ready(gap+1,OPT['dmagap'],stgap_at(gap+1))
            if used: continue
            if planned:
                if OPT['vmpat']==0 and ri[0]<len(reads) and reads[ri[0]][0].bar<=gap: rd()
                if OPT['vmpat']==2: pull(gap,False)
                continue
            vcc_lock[0]=min([b for b in bars if b>gap]+[LATE])-gap if OPT['split'] else LATE
            if not pull(gap,False) and not nosc: pull(gap,True)
        for ops in ev.get(gi,[]):
            for o in ops: push(o.meta.get('q','epi'),gap+4,[o])
    vcc_lock[0]=LATE
    sl=[(it.bar-SIG-issue[it.name],it.name) for it in items if it.name in issue]
    sl.sort(); print('min dma slack (gaps):',sl[:6])
    print('left after backbone:',{k:len(v) for k,v in fifo.items()})

OUT=[]
HOT=[]
def spin(name,load,expect,sleep=8,cmp='v_cmp_gt_u32',pre=[]):
    a=valu(cmp,'vcc',expect,vPOLL); a.meta['glue']=True
    b=raw(f's_cbranch_vccnz L_spin_{name}','misc',['vcc']); b.meta['glue']=True
    c=label(f'L_back_{name}')
    cnt=vT[6]
    OUT.extend([f'L_spin_{name}:', f'v_mov_b32 {cnt}, 0x40000', f'L_spinl_{name}:', *pre, load.text, 's_waitcnt vmcnt(0)', f'{cmp} vcc, {fmt(expect)}, {vPOLL}', 's_nop 1',
        f's_cbranch_vccz L_back_{name}', f'v_subrev_u32 {cnt}, 1, {cnt}', f'v_cmp_ne_u32 vcc, 0, {cnt}', f's_sleep {sleep}', f's_cbranch_vccnz L_spinl_{name}', f's_branch L_back_{name}'])
    a.wr.append(cnt.regs()[0]); a.wr.append('ok_'+name)
    return [a,b,c]

def addr_att(WB):
    t,u,key,hf,p,rp=vT[0],vT[1],vT[2],vT[3],vT[4],vT[5]
    e(valu('v_and_b32',key,31,vL), valu('v_lshrrev_b32',hf,5,vL), valu('v_lshlrev_b32',t,2,hf), valu('v_xor_b32',t,t,vL), valu('v_lshlrev_b32',vKM,4,t))
    extpos(u,key,t)
    e(valu('v_lshlrev_b32',vKE,3,u), valu('v_add_u32',vKE,1024,vKE))
    e(salu('s_lshr_b32',sT0,sW,1), salu('s_lshl_b32',sT0,sT0,5), salu('s_add_u32',sT0,sT0,sH), salu('s_add_u32',sT0,sT0,32), salu('s_mul_i32',sT0,sT0,SL),
      salu('s_and_b32',sT1,sW,1), salu('s_mul_i32',sT1,sT1,5120), salu('s_add_u32',sT0,sT0,sT1), valu('v_lshl_add_u32',vKV,vL,4,sT0))
def addr_z(): e(valu('v_and_b32',vZ,1,vL), valu('v_lshlrev_b32',vZ,7,vZ))
def qk_loads(WB):
    t,u,hf=vT[0],vT[1],vT[3]
    e(salu('s_mov_b32',sSO3,WS_R2), cost(bload(vR2,vR2,sWS,sSO3,flags='sc1'),40))
    e(valu('v_lshrrev_b32',hf,5,vL), valu('v_mul_u32_u24',u,1280,hf), valu('v_add_u32',u,u,vKE))
    e(salu('s_lshl_b32',sT0,sM8,2), salu('s_add_u32',sT0,sT0,sW), salu('s_mul_i32',sT0,sT0,2560), salu('s_mul_i32',sT1,sH,SL), salu('s_add_u32',sSO3,sT0,sT1))
    for x in range(2): e(bload(QM[x],vKM,sWS,sSO3,x*1280,flags='sc1'))
    e(cost(bload(QE[0],u,sWS,sSO3,0,flags='sc1'),40))
    e(salu('s_add_u32',sSO3,sT1,32*SL))
    for x in range(2): e(bload(KM[x],vKM,sWS,sSO3,x*1280,flags='sc1'), cost(bload(KE[x],vKE,sWS,sSO3,x*1280,flags='sc1'),40))
    e(valu('v_add_u32',vKM,WB,vKM), valu('v_add_u32',vKE,WB,vKE), valu('v_mov_b32',QE[1],0), valu('v_mov_b32',vIDX,0xdddd))
def zero_o():
    for x in range(2):
        for r in range(16): e(valu('v_mov_b32',OO[x][r],0))
def extra_zero(ngaps):
    with collect() as o: zero_o()
    push('ctr',ngaps-66,o,ngaps-66)
def addr_lds(WB):
    t,hf=vT[0],vT[3]
    e(valu('v_lshrrev_b32',hf,5,vL))
    c,r,k,x=vT[4],vT[5],vT[6],vT[1]
    e(valu('v_and_b32',c,3,vL), valu('v_bfe_u32',r,vL,2,2), valu('v_lshl_add_u32',r,hf,3,r))
    for n in range(4):
        uu,y=n>>1,n&1
        e(valu('v_add_u32',k,16*uu+4*y,r))
        extpos(x,k,t)
        e(valu('v_lshlrev_b32',x,3,x), valu('v_min_u32',t,1,c), valu('v_mul_u32_u24',t,LDS_OOB+64,t), valu('v_xor_b32',x,x,t), valu('v_add_u32',x,1024,x))
        e(valu('v_lshrrev_b32',t,1,c), valu('v_mul_u32_u24',t,36,t), valu('v_xor_b32',k,k,t), valu('v_lshlrev_b32',k,4,k), valu('v_and_b32',t,1,c), valu('v_lshl_add_u32',k,t,3,k))
        e(valu('v_and_b32',t,16,vL), valu('v_cmp_eq_u32','vcc',0,t), valu('v_cndmask_b32',k,x,k), valu('v_add_u32',vVA[n],WB,k))
vOP,vSH,vINC=V(55),V(16),V(17)
def addr_op():
    t,u,g=vT[2],vT[4],vT[5]
    e(salu('s_lshl_b32',sT0,sXC,2), valu('v_lshlrev_b32',vINC,sT0,vONE), salu('s_mov_b32',sPV,0), valu('v_add_u32',vKE1,1280,vKE))
    if OPT['vp']: e(valu('v_min_u32',vOP,1,vL), valu('v_lshl_add_u32',vOP,vOP,31,sF3))
    if OPT['warm']: e(salu('s_and_b32',sT0,sIDX,7), salu('s_lshl_b32',sT0,sT0,2), salu('s_add_u32',sT0,sT0,sW),
      salu('s_lshl_b32',sT1,sXC,2), salu('s_lshr_b32',sT2,sIDX,3), salu('s_add_u32',sT1,sT1,sT2),
      salu('s_lshr_b32',sT2,sT0,4), salu('s_lshl_b32',sT2,sT2,15), salu('s_and_b32',sT3,sT0,15), salu('s_lshl_b32',sT3,sT3,8), salu('s_add_u32',sT2,sT2,sT3),
      salu('s_lshl_b32',sT3,sT1,16), salu('s_add_u32',sT2,sT2,sT3), salu('s_add_u32',sT2,sT2,WS_O),
      valu('v_lshrrev_b32',g,1,vL), valu('v_lshl_add_u32',t,g,12,sT2), valu('v_and_b32',u,1,vL), valu('v_lshl_add_u32',t,u,7,t),
      salu('s_bfe_u32',sT2,sT0,0x10002), salu('s_lshl_b32',sT2,sT2,12), salu('s_and_b32',sT3,sT0,3), salu('s_lshl_b32',sT3,sT3,7), salu('s_add_u32',sT2,sT2,sT3),
      salu('s_lshl_b32',sT3,sT1,13), salu('s_add_u32',sT2,sT2,sT3), salu('s_add_u32',sT2,sT2,WS_OX),
      valu('v_and_b32',u,7,vL), valu('v_lshl_add_u32',vOP,u,9,sT2), valu('v_cmp_gt_u32','vcc',16,vL), valu('v_cndmask_b32',vOP,vOP,t), valu('v_cndmask_b32',g,u,g),
      valu('v_lshl_add_u32',g,g,2,2), valu('v_cmp_gt_u32','vcc',24,vL), valu('v_cndmask_b32',vSH,3,g))
def x_loads(): return [cost(bload(XR[2*q:2*q+2],vXO,sX,0,32*q),260) for q in range(4)]+[cost(bload(XR[8:10],vXOX,sX,0),200)]
def addr_fin():
    t,u,p,rp,a,b=vT[0],vT[1],vT[4],vT[5],vT[6],vT[3]
    lane_rp(rp,p,t)
    e(salu('s_and_b32',sT0,sW,1), salu('s_lshr_b32',sT1,sW,1), salu('s_mul_i32',sT2,sT0,20), salu('s_lshl_b32',sT3,sT1,3), salu('s_add_u32',sT2,sT2,sT3), valu('v_add_u32',a,sT2,rp),
      salu('s_mul_i32',sT2,sT0,288), salu('s_mul_i32',sT3,sT1,36), salu('s_add_u32',sT2,sT2,sT3), salu('s_add_u32',sT2,sT2,16),
      valu('v_lshrrev_b32',t,2,rp), valu('v_mul_u32_u24',t,144,t), valu('v_and_b32',b,3,rp), valu('v_add3_u32',b,b,t,sT2))
    e(salu('s_and_b32',sT0,sIDX,7), salu('s_lshl_b32',sT1,sT0,7), valu('v_lshl_add_u32',u,p,4,sT1),
      valu('v_mul_u32_u24',t,1152,a), valu('v_add_u32',vWO,t,u), valu('v_mul_u32_u24',t,1152,b), valu('v_add_u32',vWOE,t,u))
    e(salu('s_lshr_b32',sT2,sT0,1), salu('s_lshl_b32',sT2,sT2,5), salu('s_add_u32',sT2,sT2,1024), valu('v_and_b32',u,1,p), valu('v_lshl_add_u32',u,u,4,sT2), valu('v_lshrrev_b32',p,1,p),
      valu('v_mul_u32_u24',t,36,p), valu('v_add_u32',t,t,a), valu('v_mul_u32_u24',t,1152,t), valu('v_add_u32',vWX,t,u),
      valu('v_mul_u32_u24',t,p,p), valu('v_mul_u32_u24',t,t,p), valu('v_mul_u32_u24',t,72,t), valu('v_add_u32',t,t,b), valu('v_mul_u32_u24',t,1152,t), valu('v_add_u32',vWXE,t,u))
    e(salu('s_lshr_b32',sT3,sIDX,3), salu('s_lshl_b32',sT3,sT3,2), salu('s_add_u32',sT3,sT3,sW), salu('s_lshl_b32',sSO3,sXC,4), salu('s_add_u32',sT3,sT3,sSO3))
    tk,g=vT[4],vT[5]
    e(valu('v_and_b32',tk,15,vL), valu('v_lshrrev_b32',g,4,vL))
    e(salu('s_lshl_b32',sSO3,sT3,3), salu('s_add_u32',sSO3,sSO3,sT0), salu('s_lshl_b32',sSO3,sSO3,15), valu('v_lshl_add_u32',vPL,vL,4,sSO3))
    e(salu('s_xor_b32',sSC[0],sW,sT0), salu('s_lshl_b32',sSC[0],sSC[0],31))
    e(salu('s_lshl_b32',sSO3,sT3,2), salu('s_lshr_b32',sSC[1],sT0,1), salu('s_add_u32',sSO3,sSO3,sSC[1]), salu('s_lshl_b32',sSO3,sSO3,13), salu('s_or_b32',sSO3,sSO3,sSC[0]), valu('v_lshl_add_u32',vPLX,vL,3,sSO3))
    e(salu('s_lshl_b32',sSO3,sT3,4), valu('v_add_u32',a,sSO3,tk), valu('v_lshlrev_b32',vR2,2,a), valu('v_mul_u32_u24',a,1152,a), valu('v_lshl_add_u32',a,g,3,a),
      valu('v_add_u32',vXO,sT1,a), salu('s_or_b32',sT2,sT2,sSC[0]), valu('v_add_u32',vXOX,sT2,a))
    if not OPT['xat']: e(*x_loads())
    e(salu('s_and_b32',sSO3,sT3,1), salu('s_lshl_b32',sSO3,sSO3,4), valu('v_add_u32',a,sSO3,tk), salu('s_lshr_b32',sSC[1],sT3,1),
      salu('s_lshl_b32',sSO3,sSC[1],15), valu('v_lshl_add_u32',t,a,4,sSO3), valu('v_lshl_add_u32',vOL,g,9,t),
      salu('s_lshl_b32',sSO3,sSC[1],12), valu('v_lshl_add_u32',t,a,2,sSO3), valu('v_lshl_add_u32',vOLX,g,10,t))
    e(valu('v_and_b32',t,31,vL))
    for n in range(4): e(*base_add(sOB[n],sWS,WS_O+8192*n+4096))
    e(*base_add(S(88,2),sWS,WS_O), *base_add(S(90,2),sWS,WS_O+32768))
    e(salu('s_lshr_b32',sSO3,sT3,1), salu('s_lshl_b32',sSO3,sSO3,11), salu('s_add_u32',sSO3,sSO3,WS_F2), salu('s_and_b32',sSC[1],sIDX,3), salu('s_lshl_b32',sSC[1],sSC[1],9), salu('s_add_u32',sSO3,sSO3,sSC[1]),
      valu('v_min_u32',vPG,1,vL), valu('v_lshl_add_u32',vPG,vPG,31,sSO3))
    e(salu('s_lshl_b32',sT0,sM8,2), salu('s_add_u32',sT0,sT0,sW), salu('s_lshl_b32',sT1,sT0,16), salu('s_lshl_b32',sT2,sH,10), salu('s_add_u32',sT1,sT1,sT2),
      valu('v_lshl_add_u32',vOS,vL,4,sT1),
      salu('s_lshl_b32',sT1,sT0,13), salu('s_lshl_b32',sT2,sH,7), salu('s_add_u32',sT1,sT1,sT2), salu('s_add_u32',sT1,sT1,WS_OX),
      valu('v_lshl_add_u32',t,t,2,sT1), valu('v_lshrrev_b32',u,5,vL), valu('v_lshl_add_u32',vOSX,u,12,t))

def max_ops(srcs,m,first=True):
    o=[]
    regs=[s[r] for s in srcs for r in range(16)]
    if first: o.append(valu('v_max3_f32',m,regs[0],regs[1],regs[2])); rest=regs[3:]
    else: rest=regs
    while len(rest)>=2: o.append(valu('v_max3_f32',m,m,rest[0],rest[1])); rest=rest[2:]
    if rest: o.append(valu('v_max_f32',m,m,rest[0]))
    return o
def set_shift(mx,margin):
    m,t=mx
    return [swap('v_permlane32_swap_b32',m,t), valu('v_max_f32',m,m,t), valu('v_sub_f32',m,f32(-margin) if margin else 0,m),
            valu('v_cvt_pk_bf16_f32',t,m,m), valu('v_lshlrev_b32',t,16,t), valu('v_sub_f32',t,m,t), valu('v_cvt_pk_bf16_f32',QE[1],m,t)]
def Bx(tau,buf=None): return m2b(buf or SBB[tau%3],KE[tau%4],QE,0)
def Mx(tau,x,buf=None): b=(buf or SBB[tau%3])[16*x:16*x+16]; return m32(b,KM[tau%3],QM[x],b)
def PV(tau,x,h,buf=None): return smf(OO[x],VV[tau&1][4*h:4*h+4],(buf or SBB[tau%3])[16*x+8*h:16*x+8*h+8],vIDX)
def vread(kv,WB,tau,n):
    it=kv[tau>>3]; off=it.addr-WB+10240+(tau&7)*1280
    return dsr('ds_read_b64_tr_b16',VV[tau&1][2*n:2*n+2],vVA[n],off,src=(it.name,it.blks()))
extra={}
def att_setup(ngaps,kv,WB):
    g=ngaps-OPT['at0']; d=OPT['atd']
    for k,m in enumerate((Bx(0),Bx(1),Mx(0,0),Mx(1,0),Mx(0,1),Mx(1,1))): extra[g+k*d]=[m]
    extra[g].insert(0,waitfor(vm=QM+KM[:2]+KE[:2]+[QE[0]]))
    mx=[vT[0],vT[1]]
    for x in range(2): push('ctr',g+(3+2*x)*d+7,max_ops([SBB[0][16*x:16*x+16],SBB[1][16*x:16*x+16]],mx[x]),g+(3+2*x)*d+2)
    push('ctr',g+5*d+7,set_shift(mx,MARGIN),g+5*d+2)
    for k,m in enumerate((Bx(0),Mx(0,0),Mx(0,1))): extra[g+(7+k)*d]=[m]
    assert g+9*d<ngaps-8
    tail_reads.extend(vread(kv,WB,0,n) for n in range(4))
tail_reads=[]

def attention(g0,kv,WB,wo_items):
    base=g0+100
    pipe[0]=0; pipe[1]=44
    def kread(tau):
        it=kv[tau>>3]; off=it.addr-WB+(tau&7)*1280; src=(it.name,it.blks())
        if tau<4 or not OPT['ke2']: ke=dsr('ds_read_b64',KE[tau%4],vKE,off,src=src)
        elif tau&2: ke=None
        else:
            o=(off-1280*(tau&1))//512; d=A(KE[tau&1].b,4); a=vKE1 if tau&1 else vKE
            ke=I(f'ds_read2st64_b64 {d}, {a} offset0:{o} offset1:{o+5}','dsr',a.regs(),d.regs(),src=src,private=False)
        return [dsr('ds_read_b128',KM[tau%3],vKM,off,src=src), ke]
    def flush(n,names=('ctr','epi','low','dma','ld')):
        k=0
        while k<n:
            for nm in names:
                x=head(nm,cur[0])
                if x is not None: take(nm,cur[0]); break
            else: return
            k+=1
    cur[0]=g0
    assert not fifo['ctr'] and not fifo['low'] and not fifo['ld']
    stamp('att'); note('---- attention')
    barx={7:[it.name for it in wo_items]}; f2done=[False]; wcut=[int(x) for x in OPT['wcut'].split(',')]
    for tau in range(64):
        n=2*tau; nx=tau<63; S=SBB[tau%3]
        if 'ast' in OPT and n in range(*map(int,OPT['ast'].split(':'))): stamp(f'slot{n}',True)
        ms=[Bx(tau+1) if nx else None, PV(tau-1,1,1) if tau else None, PV(tau,0,0), Mx(tau+1,0) if nx else None, PV(tau,0,1), Mx(tau+1,1) if nx else None, PV(tau,1,0)]
        if OPT['aord']:
            h=OPT['aord']&1
            ms=[ms[0], PV(tau-1,1,h) if tau else None, PV(tau-1,1,1-h) if tau else None, ms[3], ms[5], PV(tau,0,0), PV(tau,0,1)]
            if not nx: ms[3:]=[PV(tau,0,0), PV(tau,0,1), None, PV(tau,1,0)]
        km,ke=kread(tau+2) if tau+2<64 else (None,None)
        v=[vread(kv,WB,tau+1,z) if nx else None for z in range(4)]
        rds=[None,ke,v[0],v[1],km,v[2],v[3]]
        sg=(tau+3)//8 if (tau+3)%8==0 and tau+3<64 else None
        for k in range(7):
            gap=base+8*tau+(k+1 if k else 0); cur[0]=gap
            if tau==0 and k==1: flush(1000,('epi',)); e(waitfor(lg=[VV[0]]))
            if ms[k] is not None: e(ms[k])
            nsc=(0,2,2,1,2,1,2)[k] if not OPT['aord'] else (0,2,2,1,1,2,2)[k]; kb=5 if OPT['aord'] else 4
            fx=k in (2,6) or (k==kb and sg is not None)
            vmn=vm_ready(gap,1,OPT['astgap'],('st','dma','ld','low')) if (not fx and k>0 and ms[k] is not None) else None
            if vmn: take(vmn,gap)
            else:
                if k==2: e(waitfor(lg=[VV[tau&1][4:8],KM[(tau+1)%3]])); nsc-=1
                if k==2 and tau==63 and OPT['warm']: e(*poll())
                if k==6: e(waitfor(lg=[VV[(tau+1)&1][0:4],KE[(tau+2)%4]])); nsc-=1
                if k==kb and sg is not None:
                    e(waitfor(vmtags=[kv[sg].name]+barx.get(sg,[])), barrier()); nsc-=2
                    if sg+1<8 and not kv[sg+1].pushed: push('dma',gap,kv[sg+1].mk(kv[sg+1]))
                    for it in [x for x in wo_items if not x.pushed][wcut[sg-1]:wcut[sg]]: push('dma',gap,it.mk(it))
                while nsc>0 and pull(gap,True): nsc-=1
            if rds[k] is not None: e(rds[k])
            x=head('ld',gap)
            if x is not None and x.kind=='valu': take('ld',gap)
            for r in (range(8) if k==0 else range(4*k+4,4*k+8)): e(valu(OPT['exp'],S[r],S[r]))
        if n==OPT['tatt']: push('arr',gap,touch())
        if n==2 and OPT['xat']: push('ld',gap,x_loads())
        if not fifo['st'] and not f2done[0]:
            f2done[0]=True; print('partial stores end at slot',n)
            push('st',gap+4*OPT['f2lag'],[waitfor(vmtags=['pst']), batomic(vONE,vF1,sWS,0,op='sub')])
        if n==OPT['f2poll']:
            ld=I(f'buffer_atomic_add {vPOLL}, {vPG}, {sWS}, 0 offen sc0','vld',vPOLL.regs()+vPG.regs(),vPOLL.regs(),tag=None)
            e(valu('v_mov_b32',vPOLL,0)); push('st',gap,[ld])
            t0=base+4*OPT['f2chk']
            w_=waitfor(vm=[vPOLL]); w_.meta['lag']=(ld,4*(OPT['f2chk']-OPT['f2poll']))
            push('ld',t0,[w_]+spin('f2',ld,0,OPT['f2sl'],'v_cmp_ne_u32',[f'v_mov_b32 {vPOLL}, 0']))
            ops=[]
            for k in range(32):
                if k%8==0: ops+=base_add(sBL,sWS,WS_P+k*1024+4096)
                ops.append(gload(PART[k],vPL,sBL,(k%8)*1024-4096,flags='sc1'))
                if k%2==1:
                    z=k>>1
                    if z%8==0: ops.append(salu('s_mov_b32',sSO3,WS_PX+z*512))
                    ops.append(bload(PARTX[z],vPLX,sWS,sSO3,(z%8)*512,flags='sc1'))
            nl=0; prev=None
            for o in ops:
                if o.kind=='vld':
                    if prev is not None: o.meta['lag']=(prev,OPT['ldmin'])
                    prev=o
                push('ld',t0+int(nl*OPT['ldgap']),[o])
                if o.kind=='vld': nl+=1
    cur[0]=base+600
    e(PV(63,1,1))
    print('att vmem slots:',' '.join(f"{'kv' if i.meta.get('tag') and i.meta['tag'][0]=='kv' else i.kind[1]}{(i.meta['at']-base)//4}" for i in P if i.kind in VM and i.meta['at']>=base))
    print('left after attention:',{k:len(v) for k,v in fifo.items()})
    assert not any(fifo.values()), 'work left after attention'

def fallback(kv,WB):
    global P
    save=P; P=[]
    pb=kv[5].addr
    a=[V(192+n) for n in range(6)]; vo=V(198); mx=[V(199),V(200)]; S=SBB[2]
    e(label('L_fb'), raw('s_waitcnt vmcnt(0) lgkmcnt(0)','misc'), raw('s_nop 15','misc'))
    for d,s in zip(a,[vKM,vKE]+vVA): e(valu('v_add_u32',d,sW5K,s))
    e(valu('v_lshlrev_b32',vo,4,vL), valu('v_mov_b32',QE[1],0), valu('v_mov_b32',mx[0],0xff800000), valu('v_mov_b32',mx[1],0xff800000))
    off=pb-WB
    for ps in range(2):
        e(salu('s_add_u32',sT0,sH,32), salu('s_mul_i32',sT0,sT0,SL), salu('s_add_u32',sT1,sT0,32*SL), salu('s_mov_b32',sT2,64), label(f'L_fbl{ps}'))
        e(salu('s_add_u32','m0',sW5K,pb), dma(vo,sWS,sT0,0,flags='sc1'), dma(vo,sWS,sT0,1024,flags='sc1'))
        if ps: e(salu('s_add_u32','m0',sW5K,pb+2560), dma(vo,sWS,sT1,0,flags='sc1'), dma(vo,sWS,sT1,1024,flags='sc1'))
        e(waitfor(vmall=True), dsr('ds_read_b128',KM[0],a[0],off), dsr('ds_read_b64',KE[0],a[1],off))
        if ps:
            for n in range(4): e(dsr('ds_read_b64_tr_b16',VV[0][2*n:2*n+2],a[2+n],off+2560))
        e(waitfor(lgall=True))
        e(Bx(0,S), Mx(0,0,S), Mx(0,1,S))
        for x in range(2):
            if ps==0: e(*max_ops([S[16*x:16*x+16]],mx[x],first=False))
            else:
                for r in range(16): e(valu('v_exp_f32',S[16*x+r],S[16*x+r]))
                for h in range(2): e(PV(0,x,h,S))
        e(raw('s_nop 15','misc'), salu('s_add_u32',sT0,sT0,1280), salu('s_add_u32',sT1,sT1,1280), salu('s_sub_u32',sT2,sT2,1), salu('s_cmp_lg_u32',sT2,0), raw(f's_cbranch_scc1 L_fbl{ps}','misc'))
        if ps==0:
            e(*set_shift(mx,0.0)); zero_o()
    e(*norm_store(0,V(116,2)), *norm_store(1,V(116,2)), waitfor(vmall=True))
    e(raw('s_nop 3','misc'), raw('s_branch L_fb_ret','misc'))
    OUT.extend(i.text for i in finalize(P,verbose=0,name='fb'))
    P=save

TT=[V(224,16),V(240,16)]
FLAG_LDS=[0]
def norm_store(x,t):
    O,T=OO[x],TT[x]
    o=[valu('v_rcp_f32',t[0],O[10]), valu('v_mov_b32',t[1],t[0]), swap('v_permlane32_swap_b32',t[0],t[1])]
    o+=[valu('v_mul_f32',T[r],t[0],O[r]) for r in range(10)]
    o+=[valu('v_cvt_pk_bf16_f32',T[d],T[2*d],T[2*d+1]) for d in range(4)]
    o+=[gstore(T[0:4],vOS,S(88+2*x,2),flags='sc1',tag='ost'), valu('v_cvt_pk_bf16_f32',T[8],T[8],T[9])]
    if x: o+=[swap('v_permlane32_swap_b32',TT[0][8],TT[1][8]), gstore(TT[0][8],vOSX,sWS[0:2],flags='sc1',tag='ost')]
    return o
def poll(r=sPV): return [raw(f's_atomic_umax {r}, {sWS[0:2]}, {sF3} glc')]
def final(g0,wo_main,wo_x):
    cur[0]=g0
    SA=V(56,20); DN=V(76,20); XF=V(96,20); tmp=V(116,12)
    e(*norm_store(0,tmp[0:2]), *norm_store(1,tmp[6:8]))
    stamp('o stored')
    fill=[]
    for x in range(2):
        s=tmp[2+x]
        fill.append(valu('v_add_f32_e64',s,f'|{OO[x][0]}|',f'|{OO[x][1]}|'))
        for r in range(2,10): fill.append(valu('v_add_f32_e64',s,s,f'|{OO[x][r]}|'))
    fill+=[valu('v_min_f32',tmp[4],tmp[2],tmp[3]), valu('v_add_f32',tmp[2],tmp[2],tmp[3]), valu('v_add_f32',tmp[3],OO[0][10],OO[1][10]), valu('v_add_f32',tmp[2],tmp[2],tmp[3]),
           valu('v_max_f32',tmp[0],tmp[0],tmp[6]), valu('v_fmac_f32',tmp[2],f32(2.0**(124-MARGIN)),tmp[0],rmw=True)]
    chk=[valu('v_cmp_nle_f32','vcc',f32(2.0**-103),tmp[4]), raw('s_cbranch_vccnz L_fb','misc',['vcc']),
      valu('v_cmp_nge_f32','vcc',f32(2.0**126) if not OPT['forcefb'] else f32(-1.0),tmp[2]), raw('s_cbranch_vccnz L_fb','misc',['vcc']), label('L_fb_ret')]
    pool_=[V(128+4*n,4) for n in range(32)]+[A(212+4*n,4) for n in range(7)]+[A(72+4*n,4) for n in range(34)]
    frs=[]; rds=[]
    order=[0,1,4,5,8,9,12,13,16,2,3,6,7,10,11,14,15,17]
    for s in order:
        for q in range(5):
            f=pool_[len(frs)%len(pool_)]; frs.append(f)
            for u in range(2): rds.append(tr_read(f,u,wo_main[s],q) if q<4 else tr_read(f,u,wo_x[s>>2],s&3))
    red=[]
    for j in range(16):
        for q in range(5):
            d=DN[4*q:4*q+4]
            red.append(m4(d,SELA,PART[16*(q>>1)+j][2*(q&1):2*(q&1)+2] if q<4 else PARTX[j],0 if j==0 else d))
    red+=[m4(XF[4*q:4*q+4],SELA,XR[2*q:2*q+2],0) for q in range(5)]
    e(waitfor(vm=PART+PARTX+[XR,vR2]))
    ri=0
    test=lambda: [waitfor(lgall=True,lgforce=True), salu('s_cmp_eq_u32',sPV,0x44444444)]
    def warm(r=sPV,tracked=False):
        if not OPT['warm']: return []
        t=vT[0]; ld=bload(vPF,t,sWS,0,flags='sc1',tag='pf')
        return [valu('v_lshrrev_b32',t,vSH,r), valu('v_not_b32',t,t), valu('v_lshl_add_u32',t,t,31,vOP), ld if tracked else raw(ld.text)]
    g,c2,ir=tmp[8],tmp[9],tmp[10]
    late_=[valu('v_mul_f32',c2,f32(-1.4426950408889634),vR2), valu('v_rcp_f32',ir,vR2),
           valu('v_bfe_u32',g,vL,4,1), valu('v_mul_u32_u24',g,24,g), valu('v_add_u32',vXO,vXO,g)]
    for k,mm in enumerate(red):
        e(mm)
        if k in (OPT['pollat'],OPT['pollat2'],OPT['pollat3']): e(*poll())
        if fill:
            e(fill.pop(0))
            if not fill: e(*chk, waitfor(lgall=True,lgforce=OPT['warm']), *warm(tracked=True), *base_add(sBL,sWS,WS_OX))
            continue
        if k==OPT['hat']: e(waitfor(vmtags=['ost']), batomic(vINC,vF3,sWS,0)); stamp('flag'); continue
        if k>=80: e(late_.pop(0)); continue
        if k%4==3: e(waitfor(lg=frs[:max(0,ri//2-4)]))
        e(rds[ri]); ri+=1
    assert ri<=2*39
    stamp('ready')
    EX=[V(30+n) for n in range(13)]+[V(45+n) for n in range(5)]+[V(14),V(15)]
    fill=[]
    for f in (lambda r:valu('v_mul_f32',EX[r],c2,DN[r]), lambda r:valu('v_exp_f32',EX[r],EX[r]), lambda r:valu('v_fma_f32',EX[r],EX[r],ir,ir),
              lambda r:valu('v_rcp_f32',EX[r],EX[r]), lambda r:valu('v_mul_f32',DN[r],EX[r],DN[r])):
        fill+=[(0,[f(r)]) for r in range(20)]
    OF=[A(4*s,4) for s in range(18)]
    def gate(name,mask):
        one=bin(mask).count('1')==1
        t=lambda: [salu('s_bitcmp1_b32',sPV,mask.bit_length()-1)] if one else [salu('s_and_b32',sT1,sPV,mask), salu('s_cmp_eq_u32',sT1,mask)]
        if OPT['vp']:
            n=OPT['vp']; PL=[vT[z] for z in range(n)]
            vp=lambda z: raw(f'buffer_atomic_umax {PL[z]}, {vOP}, {sWS}, 0 offen sc0')
            y=[label(f'L_w{name}'), vp(0), raw('s_waitcnt lgkmcnt(0)')]+t()+[raw(f's_cbranch_scc1 L_g{name}')]
            for z in range(1,n): y+=[raw(f's_sleep {OPT["psleep"]}'), vp(z)]
            y+=[label(f'L_wl{name}')]
            for z in range(n): y+=[raw(f's_waitcnt vmcnt({n-1})'), valu('v_readfirstlane_b32',sPV,PL[z])]+t()+[raw(f's_cbranch_scc1 L_g{name}'), vp(z)]
        else: y=[label(f'L_w{name}')]+(poll() if OPT['pfirst'] else [])+[label(f'L_wl{name}'), raw('s_waitcnt lgkmcnt(0)')]+t()+[raw(f's_cbranch_scc1 L_g{name}')]+poll()
        y+=[salu('s_addk_i32',sT0,-1), salu('s_cmp_gt_i32',sT0,0), raw(f's_cbranch_scc1 L_wl{name}'), raw(f's_branch L_g{name}')]
        if OPT['inl']: return t()+[raw(f's_cbranch_scc1 L_g{name}')]+y[:-1]+[label(f'L_g{name}')]
        HOT.extend(finalize(y,verbose=0))
        return t()+[raw(f's_cbranch_scc0 L_w{name}',glue=True), label(f'L_g{name}')]
    ge=gate('e',0x04040404)
    ol=[]
    for n,s in enumerate(order):
        if s<16: ol.append((gate(s,4<<(2*s)) if n>8 and s%2==0 else [], gload(OF[n],vOL,sOB[s>>2],(s&3)*2048-4096,flags='sc1')))
        else: ol+=[([],gload(OF[n][r],vOLX,sBL,(s-16)*512+r*128,flags='sc1')) for r in range(4)]
    for z in range(OPT['vp']): e(valu('v_mov_b32',vT[z],0))
    e(salu('s_mov_b32',sT0,0x80000), *ge)
    stamp('ok')
    lg_=[int(x) for x in str(OPT['lgrp']).split(',')]; assert sum(lg_)==12
    for _ in range(lg_.pop(0)): e(ol.pop(0)[1])
    if OPT['rp']&1: e(*poll())
    while ri<OPT['wopre']:
        if ri%4==0: e(waitfor(lg=frs[:max(0,ri//2-4)]))
        e(rds[ri]); ri+=1
    nf=len(fill)
    while len(fill)>OPT['fillmm']:
        e(*fill.pop(0)[1])
        if (nf-len(fill)) in (OPT['lc1'],OPT['lc2']) and lg_:
            for _ in range(lg_.pop(0)): e(ol.pop(0)[1])
            if OPT['rp']&(4>>len(lg_)): e(*poll())
    assert not lg_
    stamp('seen'); note('---- o @ wo, gate, residual')
    def epi(q):
        o=[valu('v_fmac_f32',XF[r],SA[r],DN[r],rmw=True) for r in range(4*q,4*q+4)]
        o+=[valu('v_cvt_pk_bf16_f32',tmp[2*q+d],XF[4*q+2*d],XF[4*q+2*d+1]) for d in range(2)]
        return o
    def put(b): return [swap('v_permlane16_swap_b32',tmp[b],tmp[b+2]), swap('v_permlane16_swap_b32',tmp[b+1],tmp[b+3]), bstore(tmp[b:b+4],vXO,sOUT,0,16*b,flags=OPT['ofl'])]
    k=0; nt=OPT['ntail']
    for s in range(18-nt):
        assert ri>=10*s+10
        e(waitfor(vm=[OF[s]],lg=frs[5*s:max(5*s+5,ri//2-3)]))
        for q in range(5):
            e(m16(SA[4*q:4*q+4],frs[k],OF[s],0 if s==0 else SA[4*q:4*q+4])); k+=1
            if q==0 and ol and s>=OPT['ldel'] and ol[0][0]:
                e(*ol[0][0])
                if OPT.get('mst'): stamp(f'g{s}')
                continue
            if q==0 and s in (9,12) and OPT.get('mst'): stamp(f's{s}')
            if q==1 and ol and s>=OPT['ldel']: e(ol.pop(0)[1]); continue
            if q==3 and str(s) in str(OPT['mpoll']): e(*poll())
            n=0
            while n<(1 if ri>=min(180,OPT['rlead']+int(k*OPT['rrate']/100)) else 2) and ri<len(rds) and ri//2-len(pool_)<k-1: e(rds[ri]); ri+=1; n+=1
            while n<2 and fill: e(*fill.pop(0)[1]); n+=1
    assert not fill and not ol and ri==len(rds),(ri,len(fill))
    ep=[]
    for z,q in enumerate((4,0,1,2,3)):
        for s in range(18-nt,18):
            e(waitfor(vm=[OF[s]],lg=[frs[5*s+q]]), m16(SA[4*q:4*q+4],frs[5*s+q],OF[s],SA[4*q:4*q+4])); k+=1
            n=0
            while ep and n<2 and ep[0][0]<=k:
                o=ep.pop(0)[1]; e(o); n+=1 if o.kind!='vst' else 2
        o=epi(q)+([bstore(tmp[8:10],vXOX,sOUT,0,flags=OPT['ofl'])] if q==4 else put(2*q-2) if q&1 else [])
        ep+=[(k+3,x) for x in o]
    stamp('mm done')
    for _,o in ep: e(o)

def name_regs():
    for k,v in list(globals().items()):
        if k[0]=='v' and k not in ('vT','vL','vPF','vST','vCV'):
            def nm(x,n):
                if isinstance(x,R): x.name=n
                elif isinstance(x,list):
                    for z,y in enumerate(x): nm(y,f'{n}{z}')
            nm(v,k)
def main():
    name_regs()
    build_ffn()
    ngaps,bars,free=plan()
    L=OPT['look']
    best=None
    for a0 in range(0,NB-14):
        fr=sorted((max(free[b] for b in range(a0+5*k,a0+5*k+5)),k) for k in range(3))
        key=(fr[0][0],fr[1][0])
        if best is None or key<best[0]: best=(key,a0,[k for _,k in fr])
    _,a0,order=best; WB=a0*4096
    print('attention window',best,'ngaps',ngaps,{k:groups[v].start for k,v in marks.items()})
    kv=[kv_item(s) for s in range(8)]
    for s,it in enumerate(kv): it.addr=(a0+5*order[s%3])*4096
    rest=sorted([b for b in range(NB) if not a0<=b<a0+15],key=lambda b:free[b])
    print('free',[free[b] for b in range(NB)])
    wo_main=[blk_item(('wo',s),vWO if s<16 else vWOE,sWO,36*s*1152 if s<16 else 72*(s-16)*1152) for s in range(18)]
    wo_x=[blk_item(('wx',n),vWX if n<4 else vWXE,sWO,144*n*1152 if n<4 else 0,buf=(n==4),c=320) for n in range(5)]
    for it,b in zip(wo_main+wo_x,rest): it.addr=b*4096
    FLAG_LDS[0]=rest[23]*4096

    def pst(name):
        if 'pst' in OPT: stamp(name,True)
    prologue(); pst('karg')
    pre0=[it for it in items if it.early==-3000]; pre1=[it for it in items if it.early==-2000]
    dq=[xdma(tt,l) for tt in range(2) for l in range(9)]+[it.mk(it) for it in pre0+pre1]
    for _ in range(OPT['x0n']): e(*dq.pop(0))
    pst('x0 issued')
    xr=[vM[0],vR[1]]; t,u=vT[2],vT[3]
    DT=[V(140+8*n,8) for n in range(3)]+[V(180,8)]; CM=V(164,4); SUM=V(172,4); ONE4=V(176,4)
    prologue2()
    e(valu('v_and_b32',t,15,vL), valu('v_lshrrev_b32',u,1,t), valu('v_lshlrev_b32',t,7,t), valu('v_add_u32',t,sW18K,t),
      valu('v_lshrrev_b32',xr[0],4,vL), valu('v_xor_b32',xr[0],xr[0],u), valu('v_xor_b32',xr[1],4,xr[0]),
      valu('v_lshl_add_u32',xr[0],xr[0],4,t), valu('v_lshl_add_u32',xr[1],xr[1],4,t))
    for d in range(4): e(valu('v_mov_b32',ONE4[d],sONES))
    with collect() as ao:
        e(*sel_ops(t,u))
        addr_pf(); addr_early(); addr_qk()
        e(valu('v_mov_b32',vONE,1))
        if OPT['split']:
            e(valu('v_min_u32',vCA,1,vL), valu('v_mul_u32_u24',vCA,LDS_OOB-39*4096,vCA), valu('v_add_u32',vCA,39*4096,vCA), valu('v_mov_b32',t,4*len([b for b in bars if b>=SIG])), dsw('ds_write_b32',vCA,t))
    for _ in range(OPT['apre']): e(ao.pop(0))
    pst('pre')
    for _ in range(OPT['x1n']): e(*dq.pop(0))
    nx=len([o for o in dq if o[-1].meta['tag'][0]=='x'])
    if OPT['pf']:
        o=pf_gu(0)+(pf_gu(1) if OPT['pfn']>1 else [])+(pf_q() if OPT['pfn']>2 else [])
        k=nx+OPT['pfpos']
        if OPT['pfpos']<0: dq[k-1]=dq[k-1][:-1]+o+dq[k-1][-1:]
        else: dq.insert(k,o)
    e(raw('s_waitcnt lgkmcnt(0)','misc'))
    pst('addr')
    R0=[XC0[4*s_:4*s_+4] for s_ in range(18)]; X1=[XC1[4*s_:4*s_+4] for s_ in range(18)]
    def xread(tt,dst,l):
        return [waitfor(vmtags=[('x',tt,l)])]+[dsr('ds_read_b128',dst[s],xr[s&1],l*2048,src=(('x',tt,l),list(range(18*tt,18*tt+18))),private=True) for s in (2*l,2*l+1)]
    cq=[]; nm=[0]; nblk=[0]; pre_=[]
    def mm(m,extra=()):
        e(m); nm[0]+=1
        if pre_: e(pre_.pop(0))
        if extra: e(*extra); return
        k=0
        while cq and k<2 and cq[0][0]<=nm[0]-OPT['cage']: e(cq.pop(0)[1]); k+=1
        while ao and k<2: e(ao.pop(0)); k+=1
    def stats(tt,fr,l,nvm,lim=99):
        ms=[]
        for s_ in (2*l,2*l+1): ms+=[m16(SUM,ONE4,fr[s_],0 if s_==0 else SUM), m16(GR[tt],fr[s_],fr[s_],0 if s_==0 else GR[tt])]
        for h in range(2):
            o=[]
            if dq and h<nvm and nblk[0]<min(lim,OPT['nblk']):
                o=dq.pop(0)
                if o[-1].meta['tag'][0] not in 'xp': nblk[0]+=1
            mm(ms[2*h],[x for x in o if x.kind=='salu']); mm(ms[2*h+1],[x for x in o if x.kind!='salu'])
    nc=[0]
    def centre(src,dst,after=(),ex=((),())):
        d=DT[nc[0]%4]; nc[0]+=1
        while any(set(c.rd)&set(d.regs()) for _,c in cq): e(cq.pop(0)[1])
        for h in range(2):
            mm(m4(d[4*h:4*h+4],SELA,src[2*h:2*h+2],CM),ex[h])
            for z in range(2): cq.append((nm[0],valu('v_cvt_pk_bf16_f32',dst[2*h+z],d[4*h+2*z],d[4*h+2*z+1])))
        for x in after: cq.append((nm[0],x))
    def mean(tt):
        dst=vM[1] if tt else t
        e(valu('v_mul_f32',MEAN[tt],f32(1/576),SUM[0]), valu('v_cvt_pk_bf16_f32',dst,MEAN[tt],MEAN[tt]), valu('v_lshlrev_b32',dst,16,dst))
        for d in range(4): e(valu('v_xor_b32',CM[d],0x80000000,dst))
    for l in range(10):
        if l<9: e(*xread(0,R0,l))
        if l==0: e(*dq.pop(0))
        for _ in range(OPT['afill'] if l<9 else 999):
            if ao: e(ao.pop(0))
        if l>0:
            e(waitfor(lg=R0[2*l-2:2*l])); stats(0,R0,l-1,int(str(OPT.get('w1','x111111111'))[l]),len(pre0))
        if str(l) in str(OPT.get('tch','x0246')): e(*touch())
        if l==OPT['brl']: e(raw('s_branch L_main','misc'), label('L_exit'), raw('s_endpgm'), I('.p2align 12','comment'), label('L_main'))
        pst(f'x0 rd {l}')
    stamp('x0 read')
    e(valu('v_add_u32',xr[0],73728,xr[0]), valu('v_add_u32',xr[1],73728,xr[1]))
    e(*xread(1,X1,0)); mean(0); pst('stat0')
    for l in range(9):
        for s_ in (2*l,2*l+1): centre(R0[s_],X0[s_],to_acc(s_) if s_>=NV0 else ())
        if l<8: e(*xread(1,X1,l+1))
        if l==OPT['barl']: e(barrier())
        e(waitfor(lg=X1[2*l:2*l+2])); stats(1,X1,l,int(str(OPT.get('w2','x111122222'))[l+1]),99 if l>=OPT['barl'] else len(pre0))
        pst(f'x1 rd {l}')
    while cq: e(cq.pop(0)[1])
    mean(1)
    reads=[f(it) for g in groups[:4] for it,f in g.rd][:L]; nb_=(L+1)//2+1
    n0=OPT['n0']
    for s_ in range(n0):
        ex=((),())
        if s_==n0-nb_: ex=((waitfor(vmtags=[it.name for it in items if it.bar==-L]), barrier()),()); stamp('x1 read'); pst('bar1')
        if s_>n0-nb_: pre_[:]=[reads.pop(0) for z in range(2) if reads]
        centre(X1[s_],X1[s_],ex=ex)
    assert not reads
    while cq: e(cq.pop(0)[1])
    e(waitfor(lg=groups[0].fr)); pst('go')
    for s_ in range(n0,18): push('ctr',0,centre_ops(X1[s_],1))
    for s_ in range(NV0): push('ctr',0,to_acc(s_))
    for o in dq: push('dma',-1,o)
    mx_=-1
    for it in items:
        mx_=max(mx_,it.early)
        if it.early>-2000: push('dma',it.early,it.mk(it),mx_)
    st=lambda k:groups[marks[k]].start
    def low(gap,f,*a):
        with collect() as o: f(*a)
        push('low',gap,o,gap)
    low(st('c0')+200,var_ops,0); low(st('c0')+200,var_ops,1)
    TCH=[(int(g_),touch()) for g_ in str(OPT['tat']).split(',') if int(g_)>=0]
    low(st('c1'),addr_mid); low(st('c1'),addr_mid2); low(st('qkv'),addr_pfd)
    low(st('c2')+200,addr_att,WB); low(st('c2')+200,addr_lds,WB)
    pt=[int(x) for x in OPT['pft'].split(',')]
    for k,(g_,o) in enumerate(zip(pt,[pf_gu(1) if OPT['pfn']<2 else [],pf_q() if OPT['pfn']<3 else [],pf_gu(2),pf_gu(3),pf_gu(4),pf_d(0),pf_d(1),pf_d(2)])):
        if o and (k==7 or pt[k+1]!=g_): o[-1].meta['cost']+=OPT['pfx']
        push('ld',g_,o,g_)
    low(st('c3'),pf_o)
    b1=[b for b in bars if b>st('c3')+60][0]
    bar_extra[b1]=['qkvst']
    ar=[salu('s_and_b32',sJH,S(2),1), salu('s_lshl_b32',sJH,sJH,7), salu('s_mov_b32',sJ128,1), salu('s_cmp_lg_u32',sW,0), raw('s_cbranch_scc1 L_arr','misc'),
        raw(f's_atomic_add {sJ128}, {sDBG[0:2]}, {sJH}','misc',sJ128.regs()+sJH.regs()), label('L_arr')]
    for x in ar[3:6]: x.meta['glue']=True
    for g_,o in sorted(TCH+[(b1,ar)],key=lambda z:z[0]): push('arr',g_,o,g_)
    ARR.append(ar[5])
    if OPT['stop']!='down':
        d0=st('down')
        att_setup(ngaps,kv,WB); bar_extra[bars[-1]]=[kv[0].name]
        low(b1,addr_z); low(b1,addr_fin); low(max(d0+400,mx_+1),addr_op); extra_zero(ngaps)
        ld=bload(vPOLL,vZ,sDBG,0,flags='sc1')
        push('ld',d0+OPT['f1poll'],[ld],d0+OPT['f1poll'])
        with collect() as o: qk_loads(WB)
        w_=waitfor(vm=[vPOLL]); w_.meta['lag']=(ld,100)
        push('ld',d0+OPT['f1poll'],[w_]+spin('f1',ld,128,40)+o,d0+OPT['f1poll'])
        for it in kv[:3]+(wo_main+wo_x)[:OPT['wob']]:
            early=max(free[b] for b in it.blks())
            assert early>d0+300
            if early<LATE: push('dma',early,it.mk(it),ngaps-1); it.pushed=True
    for k_,t_ in (('c0','gate/up columns 0..63'),('c1','gate/up columns 64..127'),('qkv','q, k, v'),('c2','gate/up columns 128..191'),('c3','gate/up columns 192..255'),('half','gate/up last 32 columns'),('down','down projection')): PH[st(k_)]='---- '+t_
    emit_backbone(bars,{groups[v].start:k for k,v in marks.items() if k in ('c0','qkv','down')})
    qs=[i.meta['at'] for i in P if i.meta.get('tag')=='qkvst']; assert len(qs)==12 and max(qs)<b1-SIG,(qs,b1)
    print('arrival at',ARR[0].meta['at'],'poll at',ld.meta['at'])
    stamp('down end')
    if OPT['stop']=='down':
        for nm in ('epi','st','low','dma'):
            for af,o in fifo[nm]: e(o)
    else:
        attention(ngaps,kv,WB,wo_main+wo_x)
        stamp('att end')
        final(ngaps+1000,wo_main,wo_x)
        fallback(kv,WB)
    finish()

def sizes(lines):
    import subprocess, re
    uniq=sorted(set(lines))
    src='.amdgcn_target "amdgcn-amd-amdhsa--gfx950"\n.text\nLX:\n'+'\n'.join(re.sub(r'L_codeend-L_pc-4','0x12345',re.sub(r'(s_branch|s_cbranch\w+) \w+',r'\1 0',u)) for u in uniq)+'\n'
    open('_sz.s','w').write(src)
    r=subprocess.run(['llvm-mc','-triple=amdgcn-amd-amdhsa','-mcpu=gfx950','-show-encoding','_sz.s'],capture_output=True,text=True)
    assert r.returncode==0,r.stderr[:2000]
    enc=re.findall(r'encoding: \[([^\]]*)\]',r.stdout)
    assert len(enc)==len(uniq),(len(enc),len(uniq))
    return {u:len(x.split(',')) for u,x in zip(uniq,enc)}
PGAT=[]
def page_stubs(out):
    sz=sizes([i.text for i in out if i.kind not in ('label','comment')])
    k0=[k for k,i in enumerate(out) if i.text=='L_main:'][0]
    print('entry part bytes',sum(sz.get(i.text,0) for i in out[:k0]))
    res=out[:k0+1]; off=0; pg=0; prev=None; forced=False
    npg=4*ntouch[0]
    for k in range(k0+1,len(out)):
        i=out[k]
        if pg<npg and off>=4096*pg and not (prev is not None and prev.meta.get('glue')):
            good=prev is not None and prev.kind=='mfma' and i.kind in ('dsr','valu','trans')
            if good or off-4096*pg>=40 or pg==0 or forced:
                res+=[label(f'L_pg{pg}'), raw(f's_cbranch_execz L_tr{pg//4}')]; off+=4; PGAT.append((pg,i.meta.get('at'))); pg+=1
        res.append(i); off+=sz.get(i.text,0)
        if i.text=='.p2align 12': off=-(-off//4096)*4096; forced=True; continue
        if i.kind not in ('label','comment'): prev=i
    print('main part bytes',off,'pages touched',pg,'of',-(-off//4096))
    print('page starts',PGAT)
    while pg<npg: OUT.extend([f'L_pg{pg}:',f's_branch L_tr{pg//4}']); pg+=1
    return res
DOC=""";
; out = x + (MHA(LN(x)) @ wo) * silu(ReGLU(LN(x)))      one persistent launch, one workgroup (4 waves, 512 registers) per CU
; The instruction stream is written out in full by a generator script; every wave runs the same stream.
;
; 1. LayerNorm: 128 rows per workgroup, 32 per wave, kept in registers as MFMA B operands. Row sums and sums of squares come
;    from MFMAs; the rows are centred, 1/sd is applied later (q,k,v when they are written, down before the gate).
; 2. gate/up (288 columns of F per workgroup), q,k,v (108 columns) and down (K = those 288 columns): weights stream through an
;    LDS ring (LDS-DMA, transposing reads). h = relu(gate)*up stays in registers; q,k,v and the bf16 partial sums of down go
;    to d_ws with write-through stores.
; 3. attention: one head x 256 queries per workgroup. S^T = K Q^T with the softmax shift folded in as two extra K slots;
;    P = exp2(S^T); O^T and the row sums accumulate through the sparse MFMA, which picks the upper halves of the fp32 P.
;    Shift = (maximum over the first 64 keys) + 90. Softmax does not depend on the shift unless something over- or
;    underflows, so the result is checked (row sum in [2^-92, 2^126], O finite and above 2^-103); a wave that fails the check
;    repeats its rows with the true maximum over all keys (L_fb).
; Hand-offs between workgroups: stores are drained (vmcnt) before a counter is touched; the counters in d_ws are reset by this
; launch before the d_debug counter that everyone passes first. Every wait is bounded.
"""
def finish():
    cur[0]=10**7
    if OPT['stamps']:
        e(raw('s_waitcnt lgkmcnt(0)','misc'), waitfor(vmall=True))
        stamp('drained'); e(raw('s_waitcnt lgkmcnt(0)','misc'))
        n=nstamp[0]
        for k in range(max(0,n-7),n): e(raw(f'v_writelane_b32 v13, s{64+2*(k%7)}, {k}','misc'))
        if 'padto' in OPT:
            e(raw('s_nop 1','misc'), raw(f'v_readlane_b32 s46, v13, {OPT["padto"]}','misc'), raw('s_nop 3','misc'))
            e(salu('s_add_u32',sT0,sT0,10000), label('L_pad'), raw('s_memrealtime s[98:99]','misc'), raw('s_waitcnt lgkmcnt(0)','misc'), salu('s_sub_u32',sT1,S(98),sT0), salu('s_cmp_lt_i32',sT1,0), raw('s_cbranch_scc1 L_pad','misc'))
        else:
            e(salu('s_lshl_b32',sT0,S(2),2), salu('s_add_u32',sT0,sT0,sW), salu('s_lshl_b32',sT0,sT0,8), salu('s_add_u32',sT0,sT0,WS_STAMP))
            e(valu('v_lshlrev_b32',V(1),2,vL), bstore(vST,V(1),sWS,sT0))
    check_order(P); check_roles(P)
    out=finalize(P,verbose=OPT['v'],name='main')
    out=page_stubs(out+[raw('s_endpgm'),I('.p2align 12','comment')]+HOT)
    hdr=open('recurrent_scan__mha_block__glu_gated_reglu__prompt.s.ref').read().split('; Override launch')[0]
    txt=hdr+'; @launch grid=(256,1,1) block=(256,1,1) lds=163840\n'+DOC+'.amdgcn_target "amdgcn-amd-amdhsa--gfx950"\n.text\n'
    txt+=f'.globl {NAME}\n.p2align 12\n.p2align 8\n.type {NAME},@function\n{NAME}:\n'
    txt+='\n'.join(i.text for i in out)+'\n'+'\n'.join(OUT)+'\ns_endpgm\nL_codeend:\n'
    txt+=f'''.section .rodata,"a"
.p2align 6
.amdhsa_kernel {NAME}
  .amdhsa_next_free_vgpr 512
  .amdhsa_next_free_sgpr 102
  .amdhsa_accum_offset 256
  .amdhsa_group_segment_fixed_size 0
  .amdhsa_kernarg_size 80
  .amdhsa_user_sgpr_count 2
  .amdhsa_user_sgpr_kernarg_segment_ptr 1
  .amdhsa_system_sgpr_workgroup_id_x 1
  .amdhsa_float_denorm_mode_32 {OPT.get('dn',3)}
.end_amdhsa_kernel
'''
    open(sys.argv[1],'w').write(txt)
    print('bytes',len(txt))
main()
```

```python
import sys, struct, contextlib
from asmlib import *

OPT=dict(stop='', stamps=0, pf=1, dmagap=3, look=14, split=0, stper=1, qstper=1, xat=1, stgap=29, n0=14, v=1, forcefb=0, astgap=6, f2lag=10, f2poll=58, f2chk=64, ldgap=4, dbgout=0, bl=22, cs=256, es=64, ts=2304, os=264, xs=33, sl=640, par=0, cage=3, exp='v_exp_f32', aord=0, flip=1, snake=1, balone=2, nosc=1, lc1=36, lc2=64, vp=0, f2sl=2, pfe=0, aint='x', ke2=1, bint=4, apool=0, ap0=10, tatt=50, pfn=1, barl=4, brl=8, lgm=1, pfirst=0, rp=7, inl=0, pollat3=-1, mpoll='x', np2_=1, lgrp='6,3,3', ntail=3, ldel=0, warm=0, np2=1, xsh=9, gst_=4096, pfl='sc1', ffl='sc1', pevery=2, lookb=16, nlook=2, npc=2, pollat2=-1, frx=0, sprio=1, w3=1, snop=0, vmpat=0, hat=60, chk0=0, px=0, wcut='0,3,8,13,18,23,23,23', wob=23, ldmin=4, at0=290, atd=29, tat=-1, flagat=60, pollat=10, forceredo=0, lp1=20, lp2=70, nol=10, fsh=2, npoll=2, psleep=1, wopre=100, fillmm=20, rlead=100, rrate=120, ofl='', apre=90, x1n=2, afill=14, tlb=0, pfpos=6, pft='100,190,280,700,800,1060,1110,1112', swp=1, pfx=300, chain=6, qch=4, c0ch=3, touch=1, x0n=3, nblk=14, f1poll=40, qstgap=24, back=80, pfc=1, bartr=0)
for a in sys.argv[2:]:
    k,v=a.split('='); OPT[k]=int(v) if v.lstrip('-').isdigit() else v
NAME='recurrent_scan__mha_block__glu_gated_reglu__prompt_kernel'

WS_QKV=0; SL=OPT['sl']*128
CS=OPT['cs']*128; TS=OPT['ts']*128; ES=OPT['es']*128; assert CS>=32768 and ES>=8192 and TS>=8*CS+4*ES
WS_P=0x3000000; WS_PX=WS_P+8*CS; WS_O=0x2800000; WS_OX=0x2C00000; OS=OPT['os']*128; XS=OPT['xs']*128; WS_F3=0x2E40000; WS_R2=0x2E60000; WS_F2=0x2E80000; WS_STAMP=0x2F00000
OOB=0x80000000
LDS_OOB=0x30000
def f32(x): return struct.unpack('<I',struct.pack('<f',x))[0]
QSCALE=18**-0.5*1.4426950408889634
MARGIN=float(OPT.get('margin',90))

sX,sWQ,sWO,sWG,sWU,sWD,sOUT,sDBG,sWS=[S(4+4*n,4) for n in range(9)]
sW,sW1K,sI,sJ,sH,sIDX,sT0,sT1,sSO,sSO2=[S(40+n) for n in range(10)]
sLO,sHI,sONES,sW7K,sW5K=[S(50+n) for n in range(5)]
sSC=[S(55),S(56),S(57)]
sW18K,sJ1,sXC,sM8,sT2,sT3=[S(58+n) for n in range(6)]
sJ128,sJH=S(3),S(94); sSO3=S(95); sXP,sXX=S(92),S(93); sF3,sPV,sPV2=S(79),S(78),S(53)
sBD,sBL,sPC=S(96,2),S(98,2),S(100,2)
nstamp=[0]
def stamp(name,fine=False):
    if not OPT['stamps']: return
    if OPT.get('few') and name not in ('start','c0','down','down end','att end','drained'): return
    if ('gst' in OPT or 'ast' in OPT or 'pst' in OPT) and not fine and name!='start': return
    n=nstamp[0]; nstamp[0]+=1
    assert n<64
    r=64+2*(n%7)
    if n>=7: e(raw(f'v_writelane_b32 v13, s{r}, {n-7}','misc'))
    e(raw(f'{"s_memrealtime" if OPT["stamps"]==1 else "s_memtime"} s[{r}:{r+1}]','misc'))
    print('stamp',n,name)

vL=V(0)
vT=[V(1+n) for n in range(8)]
vR=[V(9),V(10)]
vM=[V(11),V(12)]
vPF=A(255)
vST=V(13)
vGF,vGH,vDF,vDH=[V(14+n) for n in range(4)]
vTR=[[V(18+3*q+n) for n in range(3)] for q in range(4)]
vQK=[V(30+n) for n in range(7)]
vQM=[V(37+n) for n in range(3)]; vQE=[V(40+n) for n in range(3)]
vSM,vSE0,vSE1,vSCX=[V(43+n) for n in range(4)]
vPS,vPX=V(47),V(48)
vF1,vONE=V(49),V(50)
vPG,vF3,vPOLL=V(51),V(52),V(53)
vX=[V(168+n) for n in range(4)]
XC1=V(56,72)
BANK=[V(128,64),V(192,64)]
XC0=A(0,72); HH=A(72,72); FR=A(144,64)
vKM,vKE=V(30),V(31); vVA=[V(32+n) for n in range(4)]
vKV,vWO,vWOE,vWX,vWXE=[V(36+n) for n in range(5)]
vPL,vPLX,vOL,vOLX,vOS,vOSX=[V(41+n) for n in range(6)]
vIDX,vF3L=V(54),V(55)
vXO,vXOX,vR2,vZ=V(11),V(12),V(9),V(10)
QE=V(14,2)
QM=[A(0,4),A(4,4)]
OO=[V(128,16),V(144,16)]
sOB=[S(80+2*n,2) for n in range(4)]
KM=[A(40+4*n,4) for n in range(3)]; KE=[A(52,2),A(56,2),A(54,2),A(58,2)]; vKE1=V(16)
VV=[A(8,8),A(16,8)]
XR=A(240,10)
PART=[A(60+4*n,4) for n in range(32)]
PARTX=[A(188+2*n,2) for n in range(10)]+[A(24+2*n,2) for n in range(6)]
SBB=[V(192,32),V(224,32),V(160,32)]

P=[]
cur=[-10**6,0]
sink=[None]
def setseq(i,gap=None):
    if 'seq' not in i.meta:
        cur[1]+=1; i.meta['seq']=(cur[0] if gap is None else gap,cur[1])
    return i
def e(*x):
    for i in x:
        if sink[0] is not None: sink[0].append(i)
        else: P.append(setseq(i)); i.meta['at']=cur[0]
@contextlib.contextmanager
def collect():
    o=[]; old=sink[0]; sink[0]=o
    yield o
    sink[0]=old
ARR=[]
fifo=dict(arr=[],dma=[],st=[],ld=[],ctr=[],epi=[],low=[])
def push(q,after,ops,logical=None):
    for o in ops: fifo[q].append((after,setseq(o,logical)))
def note(*t):
    for x in t: e(I('; '+x,'comment'))
def masked(dst,val,cmpop,a,b,tmp):
    e(valu(cmpop,'vcc',a,b), valu('v_mov_b32',tmp,OOB), valu('v_cndmask_b32',dst,tmp,val))

def prologue():
    e(raw(f's_load_dwordx2 {sX[0:2]}, s[0:1], 0','misc'), salu('s_cmp_ge_u32',S(2),256), raw('s_cbranch_scc1 L_exit','misc'))
    stamp('start')
    e(valu('v_lshrrev_b32',vT[0],6,V(0)), valu('v_and_b32',vL,63,V(0)))
    e(salu('s_and_b32',sXC,S(2),7), salu('s_lshr_b32',sIDX,S(2),3))
    pf_code()
    e(valu('v_readfirstlane_b32',sW,vT[0]))
    lg=OPT['lgm']
    e(salu('s_lshr_b32',sM8,sIDX,2), salu('s_lshr_b32',sI,sIDX,lg+1), salu('s_lshl_b32',sI,sI,lg), salu('s_and_b32',sT2,sXC,(1<<lg)-1), salu('s_add_u32',sI,sI,sT2))
    e(salu('s_mul_i32',sW18K,sW,18432))
    vx0,vx1,row,t=vX[0],vX[1],vT[2],vT[3]
    e(salu('s_lshl_b32',sT2,sI,2), salu('s_add_u32',sT2,sT2,sW), salu('s_lshl_b32',sT2,sT2,5))
    e(valu('v_lshrrev_b32',row,3,vL), valu('v_lshrrev_b32',t,4,vL), valu('v_and_b32',vx0,7,vL), valu('v_xor_b32',vx0,vx0,t),
      valu('v_xor_b32',vx1,4,vx0), valu('v_add_u32',t,sT2,row), valu('v_mul_u32_u24',t,1152,t),
      valu('v_lshl_add_u32',vX[2],vx0,4,t), valu('v_lshl_add_u32',vX[3],vx1,4,t), valu('v_add_u32',vX[3],8*1152-1024,vX[3]),
      valu('v_add_u32',vx0,1920,vX[2]), valu('v_add_u32',vx1,1920,vX[3]))
    e(salu('s_lshr_b32',sJ,sXC,lg), salu('s_lshl_b32',sJ,sJ,lg+1), salu('s_and_b32',sT3,sIDX,(2<<lg)-1), salu('s_add_u32',sJ,sJ,sT3), salu('s_and_b32',sJ1,sJ,1))
    e(salu('s_mul_i32',sSO2,sJ1,18432*OPT['swp']))
    if OPT['px']:
        n=OPT['px']
        e(salu('s_mul_i32',sT0,sT2,1152), salu('s_and_b32',sT1,sJ,288//n-1), salu('s_mul_i32',sT1,sT1,n*128), salu('s_add_u32',sT0,sT0,sT1), valu('v_lshl_add_u32',vT[4],vL,7,sT0))
    e(raw('s_waitcnt lgkmcnt(0)','misc'))
    if OPT['px']:
        n=OPT['px']
        m=(1<<min(n,36))-1
        e(raw(f's_mov_b32 exec_lo, {hex(m&0xffffffff)}','salu'), raw(f's_mov_b32 exec_hi, {m>>32}','salu'), gload(vPF,vT[4],sX[0:2],tag='pf'))
        if n==72: e(valu('v_add_u32',vT[4],36*128,vT[4]), gload(vPF,vT[4],sX[0:2],tag='pf'))
        e(raw('s_mov_b64 exec, -1','salu'))
    e(salu('s_sub_u32',sBL[0],sX[0],1920), salu('s_subb_u32',sBL[1],sX[1],0), salu('s_add_u32',sBD[0],sBL[0],sSO2), salu('s_addc_u32',sBD[1],sBL[1],0))
def prologue2():
    for srd,off in ((sWG,32),(sWU,40),(sWQ,8),(sWO,16),(sWD,48),(sOUT,56),(sDBG,64),(sWS,72)): e(raw(f's_load_dwordx2 {srd[0:2]}, s[0:1], {off}','misc'))
    if OPT['tlb']:
        e(salu('s_mov_b32',sT0,2<<20), salu('s_mov_b32',sT1,4<<20))
        for srd,n in ((sWG,3),(sWU,3),(sWQ,1),(sWD,3),(sWO,1),(sWS,1),(sOUT,2)):
            for k in range(n): e(raw(f's_load_dword s80, {srd[0:2]}, {["0",sT0,sT1][k]}','misc'))
    e(salu('s_sub_u32',sSO2,18432,sSO2), salu('s_add_u32',sBL[0],sBL[0],sSO2), salu('s_addc_u32',sBL[1],sBL[1],0))
    e(salu('s_mul_i32',sXP,sJ1,OPT['swp']*TS), salu('s_sub_u32',sXX,TS,sXP))
    e(salu('s_lshl_b32',sH,sXC,2), salu('s_and_b32',sT3,sIDX,3), salu('s_add_u32',sH,sH,sT3))
    e(salu('s_lshl_b32',sW1K,sW,10), salu('s_mul_i32',sW7K,sW,7168), salu('s_mul_i32',sW5K,sW,5120))
    for srd,n in ((sX,2048*1152),(sWQ,576*3456),(sWO,576*1152),(sWG,576*9216),(sWU,576*9216),(sWD,4608*1152),(sOUT,2048*1152),(sDBG,256),(sWS,0x10000000)):
        e(salu('s_mov_b32',srd[2],n), salu('s_mov_b32',srd[3],0x20000))
    e(salu('s_mov_b32',sLO,0x3f80), salu('s_mov_b32',sHI,0x3f800000), salu('s_mov_b32',sONES,0x3f803f80))
def pf_lane(t):
    if not OPT['pfe']: return vL
    e(salu('s_and_b32',sT1,sXC,1), salu('s_xor_b32',sT1,sT1,OPT['pfe']-1), salu('s_lshl_b32',sT1,sT1,6), valu('v_add_u32',t,sT1,vL)); return t
def addr_pf():
    row,t=vT[2],vT[3]; z=2 if OPT['pfe'] else 1; si=sM8 if OPT['pfe'] else sI
    ln=pf_lane(vT[4])
    e(salu('s_lshl_b32',sJ128,sJ1,7), salu('s_lshl_b32',sJH,sJ1,9), salu('s_sub_u32',sJH,512,sJH))
    e(salu('s_lshl_b32',sT0,si,2), salu('s_add_u32',sT0,sT0,sW), salu('s_mul_i32',sT0,sT0,z*9*9216), salu('s_mul_i32',sT1,sJ,576), salu('s_and_b32',sT1,sT1,-128), salu('s_add_u32',sT0,sT0,sT1),
      valu('v_mul_u32_u24',t,9216,vL), valu('v_add_u32',t,sT0,t))
    masked(vPG,t,'v_cmp_gt_u32',z*9,ln,row)
    u=row
    e(valu('v_mul_u32_u24',t,7282//z,vL), valu('v_lshrrev_b32',t,16,t), valu('v_mul_u32_u24',u,z*9,t), valu('v_sub_u32',u,vL,u), valu('v_mul_u32_u24',u,3456,u), valu('v_lshl_add_u32',u,t,7,u),
      salu('s_lshl_b32',sT0,si,2), salu('s_add_u32',sT0,sT0,sW), salu('s_mul_i32',sT0,sT0,z*9*3456), salu('s_mul_i32',sT1,sJ,216), salu('s_and_b32',sT1,sT1,-128), salu('s_add_u32',sT0,sT0,sT1),
      valu('v_add_u32',u,sT0,u))
    masked(vPOLL,u,'v_cmp_gt_u32',z*27,ln,t)
def pf_gu(c):
    if not OPT['pf']: return []
    return [cost(bload(vPF,vPG,s,sJ128 if c<4 else sJH,c*128 if c<4 else 0,tag='pf'),90) for s in (sWG,sWU)]
def pf_q(): return [cost(bload(vPF,vPOLL,sWQ,0,tag='pf'),270)] if OPT['pf'] else []
def addr_pfd():
    t,u=vPOLL,vT[7]; z=2 if OPT['pfe'] else 1; si=sM8 if OPT['pfe'] else sI
    ln=pf_lane(vT[4])
    e(salu('s_lshl_b32',sT0,si,2), salu('s_add_u32',sT0,sT0,sW), salu('s_mul_i32',sT0,sT0,z*81*64), salu('s_and_b32',sT0,sT0,-128), salu('s_mul_i32',sT1,sJ,288*1152), salu('s_add_u32',sT0,sT0,sT1),
      valu('v_mul_u32_u24',t,384,vL), valu('v_add_u32',t,sT0,t))
    masked(vPOLL,t,'v_cmp_gt_u32',14*z,ln,u)
def pf_d(k): return [cost(bload(vPF,vPOLL,sWD,0,k*128,tag='pf'),140)] if OPT['pf'] else []
def pf_o():
    if not OPT['pf']: return
    t,u=vT[4],vT[5]
    e(salu('s_lshl_b32',sT0,S(2),2), salu('s_add_u32',sT0,sT0,sW), salu('s_mul_i32',sT0,sT0,6*128), valu('v_lshl_add_u32',t,vL,7,sT0))
    masked(t,t,'v_cmp_gt_u32',6,vL,u)
    e(cost(bload(vPF,t,sWO,0,tag='pf'),60))
def cost(i,c): i.meta['cost']=c; return i
def xdma(tt,l):
    base=sBD if tt==0 else sBL
    o=[salu('s_add_u32','m0',sW18K,tt*73728+l*1920)] if l%2==0 else []
    for z in range(2): o.append(gdma(vX[2*(l&1)+z],base,(l&~1)*128+(2*(l&1)+z)*1024,tag=('x',tt,l),private=True))
    return o
SELA=A(208,2)
def sel_ops(m,g):
    return [valu('v_and_b32',m,1,vL), valu('v_lshlrev_b32',m,4,m), valu('v_lshlrev_b32',m,m,sLO), valu('v_bfe_u32',g,vL,1,1), valu('v_mul_lo_u32',g,g,m), valu('v_sub_u32',m,m,g),
      valu('v_accvgpr_write_b32',SELA[0],m), valu('v_accvgpr_write_b32',SELA[1],g)]
ntouch=[0]
def touch():
    if not OPT['touch']: return []
    k=ntouch[0]; ntouch[0]+=1
    o=[raw('s_mov_b64 exec, 0','salu')]
    for w in range(3): o+=[salu('s_cmp_eq_u32',sW,w), raw(f's_cbranch_scc1 L_pg{4*k+w}','misc')]
    o+=[raw(f's_branch L_pg{4*k+3}','misc'), label(f'L_tr{k}'), raw('s_mov_b64 exec, -1','salu')]
    for x in o[:-1]: x.meta['glue']=True
    return o

def lane_rp(rp,p,t):
    e(valu('v_lshrrev_b32',rp,3,vL), valu('v_and_b32',t,6,rp), valu('v_and_b32',p,7,vL), valu('v_xor_b32',p,p,t))
def addr_early():
    rp,p,t,u,kA=vT[2],vT[3],vT[4],vT[5],vT[6]
    lane_rp(rp,p,t)
    e(salu('s_and_b32',sT0,sW,1), salu('s_lshl_b32',sT0,sT0,4), salu('s_lshr_b32',sT1,sW,1), salu('s_lshl_b32',sT1,sT1,2), salu('s_add_u32',sT0,sT0,sT1))
    e(valu('v_and_b32',t,4,rp), valu('v_add_u32',kA,rp,t), valu('v_add_u32',kA,sT0,kA))
    e(salu('s_mul_i32',sT1,sJ,288), salu('s_lshl_b32',sT2,sJ1,5), salu('s_add_u32',sT2,sT2,sT1))
    e(salu('s_lshl_b32',sT3,sJ1,8), salu('s_sub_u32',sT3,256,sT3), salu('s_add_u32',sT3,sT3,sT1))
    e(salu('s_lshl_b32',sT0,sT2,1), valu('v_mul_u32_u24',t,9216,kA), valu('v_lshl_add_u32',t,p,4,t), valu('v_add_u32',vGF,sT0,t))
    e(salu('s_lshl_b32',sT0,sT3,1), valu('v_lshrrev_b32',t,2,p), valu('v_lshl_add_u32',t,t,5,kA), valu('v_mul_u32_u24',t,9216,t),
      valu('v_and_b32',u,3,p), valu('v_lshl_add_u32',t,u,4,t), valu('v_add_u32',vGH,sT0,t))
    e(salu('s_lshl_b32',sT0,sW,3), valu('v_add_u32',t,sT0,rp), valu('v_add_u32',u,sT2,t), valu('v_mul_u32_u24',u,1152,u), valu('v_lshl_add_u32',vDF,p,4,u),
      valu('v_add_u32',u,sT3,t), valu('v_mul_u32_u24',u,1152,u), valu('v_lshl_add_u32',vDH,p,4,u))
    g,r4,c,b=vT[2],vT[3],vT[6],vT[7]
    e(valu('v_bfe_u32',r4,vL,2,3), valu('v_and_b32',c,3,vL), valu('v_lshrrev_b32',g,5,vL),
      valu('v_lshlrev_b32',b,10,g), valu('v_lshl_add_u32',b,r4,7,b), valu('v_lshl_add_u32',b,c,3,b), valu('v_lshrrev_b32',t,1,r4))
    for q in range(4):
        e(valu('v_xor_b32',u,q,t), valu('v_lshl_add_u32',vTR[q][0],u,5,b), valu('v_add_u32',vTR[q][1],0x10000,vTR[q][0]), valu('v_add_u32',vTR[q][2],0x20000,vTR[q][0]))
def addr_qk():
    t=vT[4]
    e(salu('s_mul_i32',sT0,sJ,216), salu('s_and_b32',sT0,sT0,-16), salu('s_mul_i32',sT1,sW,32*3456), salu('s_add_u32',sT0,sT0,sT1))
    for q in range(7):
        pp,rr,k=vT[2],vT[3],vT[6]
        e(valu('v_add_u32',pp,64*q,vL), valu('v_mul_u32_u24',rr,4682,pp), valu('v_lshrrev_b32',rr,16,rr),
          valu('v_mul_u32_u24',t,14,rr), valu('v_sub_u32',pp,pp,t),
          valu('v_and_b32',t,12,rr), valu('v_and_b32',k,3,rr), valu('v_lshl_add_u32',k,t,1,k), valu('v_lshrrev_b32',t,4,rr), valu('v_lshl_add_u32',k,t,2,k),
          valu('v_mul_u32_u24',k,3456,k), valu('v_lshl_add_u32',k,pp,4,k), valu('v_add_u32',vQK[q],sT0,k))
        if q%4: e(valu('v_subrev_u32',vQK[q],1024*(q%4),vQK[q]))
def extpos(dst,key,t):
    e(valu('v_and_b32',dst,7,key), valu('v_bfe_u32',t,key,4,1), valu('v_lshl_add_u32',dst,t,3,dst),
      valu('v_bfe_u32',t,key,3,1), valu('v_xor_b32',t,1,t), valu('v_lshl_add_u32',dst,t,4,dst))
def addr_mid():
    t,u,c=vT[4],vT[5],vT[6]
    e(valu('v_and_b32',c,3,vL), salu('s_lshl_b32',sT0,sJ1,3), valu('v_lshrrev_b32',t,2,vL), valu('v_mul_u32_u24',t,224,t), valu('v_add_u32',t,sT0,t),
      valu('v_lshl_add_u32',vQM[0],c,3,t), valu('v_mul_u32_u24',u,72,c), valu('v_add3_u32',vQE[0],t,u,32))
    for n in (1,2): e(valu('v_add_u32',vQM[n],n*0x10000,vQM[0]), valu('v_add_u32',vQE[n],n*0x10000,vQE[0]))
def grp_ops(d,t):
    if not OPT['par']: return [salu('s_lshl_b32',d,sXC,2), salu('s_lshr_b32',t,sIDX,3), salu('s_add_u32',d,d,t)]
    return [salu('s_and_b32',d,sXC,6), salu('s_lshr_b32',t,sIDX,4), salu('s_add_u32',d,d,t), salu('s_lshl_b32',d,d,1), salu('s_and_b32',t,sXC,1), salu('s_xor_b32',t,t,OPT['par']-1), salu('s_add_u32',d,d,t),
            salu('s_lshl_b32',d,d,1), salu('s_bfe_u32',t,sIDX,0x10003), salu('s_add_u32',d,d,t)]
def addr_mid2():
    t,u,key,hf=vT[4],vT[5],vT[2],vT[3]
    e(salu('s_lshl_b32',sT0,sI,2), salu('s_add_u32',sT0,sT0,sW), salu('s_mul_i32',sT0,sT0,1280), salu('s_mul_i32',sT1,sJ,6*SL), salu('s_add_u32',sT0,sT0,sT1))
    e(salu('s_mul_i32',sT1,sJ1,16*OPT['swp']), valu('v_xor_b32',u,sT1,vL), valu('v_and_b32',key,31,u), valu('v_lshrrev_b32',hf,5,vL), valu('v_lshlrev_b32',t,2,hf), valu('v_xor_b32',t,t,u), valu('v_lshlrev_b32',t,4,t), valu('v_add_u32',vSM,sT0,t))
    extpos(u,key,t)
    e(valu('v_lshlrev_b32',u,3,u), valu('v_add_u32',u,sT0,u), valu('v_add_u32',u,1024,u), valu('v_mul_u32_u24',t,4*SL,hf), valu('v_add_u32',vSE0,u,t),
      valu('v_lshl_add_u32',vSE1,hf,31,u))
    e(salu('s_mul_i32',sT0,sJ,6), valu('v_lshrrev_b32',t,4,vL), valu('v_lshl_add_u32',t,t,1,sT0), valu('v_mov_b32',u,f32(QSCALE)), valu('v_cmp_gt_u32','vcc',32,t), valu('v_cndmask_b32',vSCX,1.0,u))
    for p_ in range(3): e(valu('v_readlane_b32',sSC[p_],vSCX,16*p_))
    e(salu('s_lshl_b32',sT0,sI,2), salu('s_add_u32',sT0,sT0,sW), salu('s_mul_i32',sT2,sT0,2*TS), salu('s_lshl_b32',sT1,sJ,10), salu('s_add_u32',sT1,sT1,sT2),
      valu('v_lshl_add_u32',vPS,vL,4,sT1),
      salu('s_lshl_b32',sT1,sJ,9), salu('s_add_u32',sT1,sT1,sT2), valu('v_lshl_add_u32',vPX,vL,3,sT1))
    e(salu('s_lshl_b32',sT1,sT0,11), salu('s_add_u32',sT1,sT1,WS_F2), valu('v_lshl_add_u32',t,vL,9,sT1), salu('s_and_b32',sT3,sJ,3), salu('s_lshl_b32',sT3,sT3,9), salu('s_add_u32',sT3,sT3,sT1))
    masked(vF1,t,'v_cmp_gt_u32',4,vL,u)
    e(salu('s_lshl_b32',sT1,sM8,2), salu('s_add_u32',sT1,sT1,sW), salu('s_lshl_b32',sT1,sT1,12), salu('s_add_u32',sT1,sT1,WS_F3), valu('v_lshl_add_u32',t,vL,9,sT1))
    masked(vF3,t,'v_cmp_gt_u32',8,vL,u)
    e(*grp_ops(sT1,sT2), salu('s_lshl_b32',sT1,sT1,1), salu('s_and_b32',sT2,sIDX,1), salu('s_add_u32',sT1,sT1,sT2),
      salu('s_lshl_b32',sT1,sT1,2), salu('s_add_u32',sT1,sT1,sW), salu('s_lshl_b32',sT1,sT1,9), salu('s_add_u32',sF3,sT1,WS_F3))
    e(raw(f'v_writelane_b32 {u}, {sT3}, 0','valu',u.regs()+sT3.regs(),u.regs()), raw(f'v_writelane_b32 {u}, {sF3}, 1','valu',u.regs()+sF3.regs(),u.regs()),
      valu('v_sub_u32',t,1,vL), valu('v_lshlrev_b32',t,4,t), cost(bstore(t,u,sWS,0,flags='sc1',tag='qkvst'),30))
    e(valu('v_and_b32',key,16,vL), valu('v_cmp_eq_u32','vcc',0,key), valu('v_cndmask_b32',hf,vR[1],vR[0]), valu('v_mul_f32',hf,hf,hf),
      salu('s_lshl_b32',sT0,sT0,7), salu('s_add_u32',sT0,sT0,WS_R2), valu('v_lshl_add_u32',key,vL,2,sT0), salu('s_lshl_b32',sT1,sJ,6), valu('v_add_u32',t,sT1,vL))
    masked(key,key,'v_cmp_gt_u32',32,t,u)
    e(bstore(hf,key,sWS,0,flags='sc1',tag='qkvst'))
def pf_code():
    if not OPT['pfc']: return
    t=vT[4]; a=V(6,2)
    e(raw('s_getpc_b64 s[100:101]','salu',[],['s100','s101']), label('L_pc'),
      salu('s_lshl_b32',sT0,sIDX,2), valu('v_add_u32',t,sT0,vT[0]), valu('v_lshl_add_u32',t,vL,7,t), valu('v_lshlrev_b32',t,7,t),
      raw(f'v_min_u32 {t}, L_codeend-L_pc-4, {t}','valu',t.regs(),t.regs()),
      raw(f'v_add_co_u32 {a[0]}, vcc, {sPC[0]}, {t}','valu',t.regs()+['s100'],a[0].regs()+['vcc']), valu('v_mov_b32',a[1],sPC[1]), raw('s_mov_b64 exec, 63','salu'),
      raw(f'v_addc_co_u32 {a[1]}, vcc, 0, {a[1]}, vcc','valu',a[1].regs()+['vcc'],a[1].regs()+['vcc']),
      I(f'global_load_dword {vPF}, {a}, off','vld',a.regs(),vPF.regs(),tag='pf'), raw('s_mov_b64 exec, -1','salu'))

GR=[V(38,4),V(42,4)]; MEAN=[V(46),V(47)]
def var_ops(tt):
    d=GR[tt]; t=vT[4]; b=d[0]
    e(valu('v_and_b32',t,1,vL), valu('v_cmp_eq_u32','vcc',0,t), valu('v_and_b32',t,2,vL), valu('v_cndmask_b32',d[0],d[1],d[0]), valu('v_cndmask_b32',d[2],d[3],d[2]),
      valu('v_cmp_eq_u32','vcc',0,t), valu('v_bfe_u32',t,vL,2,2), valu('v_cndmask_b32',d[0],d[2],d[0]), valu('v_lshrrev_b32',d[1],4,vL), valu('v_cmp_eq_u32','vcc',t,d[1]),
      valu('v_cndmask_b32',b,0,b))
    for op in ('v_permlane16_swap_b32','v_permlane32_swap_b32'): e(valu('v_mov_b32',d[1],b), swap(op,b,d[1]), valu('v_add_f32',b,b,d[1]))
    e(valu('v_mul_f32',b,f32(1/576),b), valu('v_fma_f32',b,'-'+str(MEAN[tt]),MEAN[tt],b), valu('v_max_f32',b,0,b), valu('v_cvt_pk_bf16_f32',b,b,b), valu('v_lshlrev_b32',b,16,b),
      valu('v_add_f32',b,f32(1e-5),b), valu('v_cvt_pk_bf16_f32',b,b,b), valu('v_lshlrev_b32',b,16,b),
      valu('v_sqrt_f32',b,b), valu('v_cvt_pk_bf16_f32',b,b,b), valu('v_lshlrev_b32',b,16,b), valu('v_rcp_f32',vR[tt],b))
def centre_ops(f,tt):
    o=[]; t=V(252)
    for d in range(4):
        x=f[d]
        o+=[valu('v_lshlrev_b32',t,16,x), valu('v_and_b32',x,0xffff0000,x), valu('v_sub_f32',t,t,vM[tt]), valu('v_sub_f32',x,x,vM[tt]), valu('v_cvt_pk_bf16_f32',x,t,x)]
    return o
def to_acc(s): return [valu('v_accvgpr_write_b32',XC0[4*s+d],X0[s][d]) for d in range(4)]

class Item:
    def __init__(s,name,n,mk): s.name=name; s.n=n; s.mk=mk; s.addr=None; s.first=None; s.last=None; s.pushed=False
    def blks(s): return list(range(s.addr//4096,s.addr//4096+s.n))
def blk_item(name,voff,srd,soff,buf=False,c=80):
    def mk(it):
        o=[salu('s_add_u32','m0',sW1K,it.addr)]
        if buf: return o+[salu('s_mov_b32',sSO,soff), cost(dma(voff,srd,sSO,tag=it.name,dst=it.blks()),c)]
        return o+base_add(sBD,srd,soff)+[cost(gdma(voff,sBD,tag=it.name,dst=it.blks()),c)]
    return Item(name,1,mk)
def qkv_item(a):
    def mk(it):
        o=[salu('s_mov_b32',sSO,a*128*3456)] if a==4 else base_add(sBD,sWQ,a*128*3456)
        for q in range(7):
            if q%4==0: o.append(salu('s_add_u32','m0',sW7K,it.addr+q*1024))
            if a==4: o.append(dma(vQK[q],sWQ,sSO,(q%4)*1024,tag=it.name,dst=it.blks()))
            else: o.append(cost(gdma(vQK[q],sBD,(q%4)*1024,tag=it.name,dst=it.blks()),120))
        return o
    return Item(('q',a),7,mk)
def kv_item(sg):
    def mk(it):
        o=[]
        for q in range(5):
            if q%4==0: o+=[salu('s_add_u32','m0',sW5K,it.addr+q*1024)]+base_add(sBD,sWS,WS_QKV+sg*10240+q*1024)
            o.append(gdma(vKV,sBD,(q%4)*1024,flags='sc1',tag=it.name,dst=it.blks())); o[-1].rd.append('ok_f1')
        return o
    return Item(('kv',sg),5,mk)

class Group:
    def __init__(s): s.m=[]; s.rd=[]; s.bar=False; s.fr=[]
frp=[0]
def newfrag():
    pl=[FR[4*n:4*n+4] for n in range(16)]+[A(216+4*n,4) for n in range(OPT['frx'])]
    f=pl[frp[0]]; frp[0]=(frp[0]+1)%len(pl); return f
def tr_read(f,u,it,seg):
    return dsr('ds_read_b64_tr_b16',f[2*u:2*u+2],vTR[seg][it.addr>>16],(it.addr&0xffff)+u*2048,src=(it.name,it.blks()))
def xc(tt,s): return (XC0 if tt==0 else XC1)[4*s:4*s+4]
def hfrag(k,tt): return HH[8*k+4*tt:8*k+4*tt+4]

items=[]; groups=[]; events=[]
def chain_mm(g,ks,accs,bfun):
    t0=len(groups)&1 if OPT['snake'] else 0
    for z in range(2):
        tt=t0^z; o=list(zip(ks,g.fr))
        if z and OPT['snake']: o.reverse()
        for n,(k,f) in enumerate(o): g.m.append(m16(accs[tt],f,bfun(k,tt),0 if (ks[0]==0 and n==0) else accs[tt]))
def mm_group(srcs,accs,bfun,bar=False):
    g=Group(); g.bar=bar
    for it,seg,k in srcs:
        f=newfrag(); g.fr.append(f)
        for u in range(2): g.rd.append((it,lambda it,f=f,u=u,seg=seg: tr_read(f,u,it,seg)))
    chain_mm(g,[k for _,_,k in srcs],accs,bfun)
    groups.append(g); return len(groups)-1

def h_epilogue(bank,q,kout,half):
    gt=[bank[16*q+4*tt:16*q+4*tt+4] for tt in range(2)]; up=[bank[16*q+8+4*tt:16*q+12+4*tt] for tt in range(2)]
    o=[]
    for tt in range(2):
        for r in range(4): o.append(valu('v_max_f32',gt[tt][r],0,gt[tt][r]))
    for tt in range(2):
        for r in range(4): o.append(valu('v_mul_f32',up[tt][r],gt[tt][r],up[tt][r]))
        for d in range(2): o.append(valu('v_cvt_pk_bf16_f32',gt[tt][d],up[tt][2*d],up[tt][2*d+1]))
        for d in range(2): o.append(valu('v_accvgpr_write_b32',hfrag(kout,tt)[2*half+d],gt[tt][d]))
    return o
NV0=15
X0=[V(192+4*s,4) for s in range(NV0)]+[V(128+4*s,4) for s in range(18-NV0)]
def build_chunk(c,bank):
    xf=lambda k,tt: X0[k] if (c==0 and tt==0 and k<NV0) else xc(tt,k)
    cuts=list(range(0,19,OPT['chain']))
    if c==0: cuts=list(range(0,19,3)) if OPT['c0ch']==3 else [0,3,6,12,15,18]
    for st,(k0,k1) in enumerate(zip(cuts,cuts[1:])):
        G=[blk_item(('g',c,k),vGF,sWG,k*32*9216+c*128) for k in range(k0,k1)]
        U=[blk_item(('u',c,k),vGF,sWU,k*32*9216+c*128) for k in range(k0,k1)]
        flip=OPT['flip'] and (len(cuts)-2-st)%2==1
        items.extend(U+G if flip else G+U)
        for z,(M,o) in enumerate(((U,8),(G,0)) if flip else ((G,0),(U,8))):
            for n,q in enumerate(range(3,-1,-1) if flip else range(4)):
                b=(n==0) if z==0 else (n==0 and ((k1-k0>3 and str(c) not in str(OPT['aint'])) or OPT['bartr'] or (c==0 and st<OPT.get('bar0',2))))
                gi=mm_group([(M[k-k0],q,k) for k in range(k0,k1)],[bank[16*q+o+4*tt:16*q+o+4+4*tt] for tt in range(2)],xf,bar=b)
                if k1==18 and z: events.append((gi,h_epilogue(bank,q,2*c+(q>>1),q&1)))
def build_half(bank):
    for st in range(3):
        G=[blk_item(('gh',3*st+n),vGH,sWG,(3*st+n)*64*9216,c=150) for n in range(3)]
        U=[blk_item(('uh',3*st+n),vGH,sWU,(3*st+n)*64*9216,c=150) for n in range(3)]
        items.extend(G+U)
        seq=[(G,0,0),(G,0,1),(U,8,0),(U,8,1)] if st<2 else [(G,0,0),(U,8,0),(G,0,1),(U,8,1)]
        for z,(M,o,q) in enumerate(seq):
            ch=min(6,OPT['chain'])
            for hh in range(6//ch):
                ks=[6*st+ch*hh+n for n in range(ch)]
                gi=mm_group([(M[(k-6*st)>>1],2*(k&1)+q,k) for k in ks],[bank[16*q+o+4*tt:16*q+o+4+4*tt] for tt in range(2)],lambda k,tt:xc(tt,k),bar=(hh==0 and (z==0 or (z==2 and st<2 and OPT['bartr']))))
            if st==2 and o==8: events.append((gi,h_epilogue(bank,q,8,q)))
def build_qkv(bank):
    for a in range(5):
        it=qkv_item(a); items.append(it)
        first=True
        qc=OPT['qch'] if a<4 else 2
        for k0 in range(0,4 if a<4 else 2,qc):
            for t in (range(6,-1,-1) if OPT['flip'] and a%2 else range(7)):
                g=Group(); g.bar=first; first=False
                for kk in range(k0,k0+qc):
                    f=newfrag(); g.fr.append(f)
                    for u in range(2):
                        def rd(it,f=f,u=u,kk=kk,t=t):
                            ad=it.addr+kk*7168+u*3584+(0 if t==6 else 72*(t>>1)+40*(t&1))
                            return dsr('ds_read_b64_tr_b16',f[2*u:2*u+2],(vQE if t==6 else vQM)[ad>>16],ad&0xffff,src=(it.name,it.blks()))
                        g.rd.append((it,rd))
                chain_mm(g,[4*a+kk for kk in range(k0,k0+qc)],[bank[8*t+4*tt:8*t+4*tt+4] for tt in range(2)],lambda k,tt:xc(tt,k))
                groups.append(g)
                if a==4: events.append((len(groups)-1,qkv_epilogue(bank,t)))
def st_pair(o,data,voff,soff,tag,x=None):
    a=salu('s_mov_b32',sSO2,soff) if x is None else salu('s_add_u32',sSO2,x,soff); b=bstore(data,voff,sWS,sSO2,flags='sc1',tag=tag)
    dep=[x for x in o if x.kind=='valu'][-1]
    a.meta['q']='st'; b.meta['q']='st'; b.meta['dep']=dep
    o+=[a,b]
def qkv_epilogue(bank,t):
    o=[]
    sc=[bank[56],bank[57]]
    if t==6: o+=[valu('v_mul_f32',sc[tt],vSCX,vR[tt]) for tt in range(2)]
    elif t%2==0: o+=[valu('v_mul_f32',sc[tt],sSC[t>>1],vR[tt]) for tt in range(2)]
    a=bank[8*t:8*t+8]
    for tt in range(2):
        for r in range(4): o.append(valu('v_mul_f32',a[4*tt+r],sc[tt],a[4*tt+r]))
    if t<6:
        o+=[valu('v_cvt_pk_bf16_f32',a[0],a[0],a[1]), valu('v_cvt_pk_bf16_f32',a[1],a[2],a[3]), valu('v_cvt_pk_bf16_f32',a[2],a[4],a[5]), valu('v_cvt_pk_bf16_f32',a[3],a[6],a[7]),
            swap('v_permlane16_swap_b32',a[0],a[2]), swap('v_permlane16_swap_b32',a[1],a[3])]
        st_pair(o,a[0:4],vSM,WS_QKV+t*SL,'qkvst')
    else:
        o+=[valu('v_cvt_pk_bf16_f32',a[0],a[0],a[1]), valu('v_cvt_pk_bf16_f32',a[2],a[2],a[3]), valu('v_cvt_pk_bf16_f32',a[4],a[4],a[5]), valu('v_cvt_pk_bf16_f32',a[6],a[6],a[7])]
        o+=[valu('v_mov_b32',a[n],sONES) for n in (1,3,5,7)]
        o+=[swap('v_permlane16_swap_b32',a[0],a[4]), swap('v_permlane16_swap_b32',a[2],a[6])]
        for n,(vo,sl) in enumerate(((vSE0,0),(vSE0,1),(vSE1,2),(vSE1,3))):
            st_pair(o,a[2*n:2*n+2],vo,WS_QKV+sl*SL,'qkvst')
    return o
pool=[0]
def build_down():
    ntr=0
    if OPT['chain']==3: seq=[(c,3*tr,3*tr+3) for c,tr in [(0,0),(0,1),(1,0),(1,1),(0,2),(1,2)]+[(c,tr) for c in range(2,9) for tr in range(3)]]
    else:
        seq=[(0,0,6),(1,0,6),(0,6,9),(1,6,9)]
        for c in range(2,9): seq+=[(c,0,9)] if OPT['chain']==9 and c<8 else ([(c,0,6),(c,6,9)] if c%2==0 else [(c,0,3),(c,3,9)])
    for c,k0,k1 in seq:
        acc=V(192 if c==0 else 128+32*((c+1)%2),32)
        tr=2 if k1==9 else 0
        if True:
            B=[blk_item(('d',c,k),vDF if k<8 else vDH,sWD,(k*32*1152 if k<8 else 0)+c*128) for k in range(k0,k1)]
            items.extend(B)
            for n,q in enumerate(range(3,-1,-1) if OPT['flip'] and k1<9 and c>1 else range(4)):
                gi=mm_group([(B[k-k0],q,k) for k in range(k0,k1)],[acc[16*tt+4*q:16*tt+4*q+4] for tt in range(2)],hfrag,bar=(n==0 and (ntr%OPT['bint']==0 or ntr==26 or (ntr>=OPT['bl'] and ntr%2==0) or k1-k0==9 or OPT['bartr'])))
                if tr==2 and q%2==1:
                    o=[]
                    for tt in range(2):
                        a=acc[16*tt+4*(q-1):16*tt+4*(q-1)+8]
                        pl=[XC1[4*n:4*n+4] for n in range(18)]; pa=([A(212+4*n,4) for n in range(7)]+[A(24+4*n,4) for n in range(4)]+[A(60+4*n,4) for n in range(3)])[:OPT['apool']]
                        n=pool[0]; pool[0]+=1; a0_=OPT['ap0']
                        if a0_<=n<a0_+len(pa):
                            d4=pa[n-a0_]
                            o+=[valu('v_cvt_pk_bf16_f32',a[d],a[2*d],a[2*d+1]) for d in range(4)]+[valu('v_accvgpr_write_b32',d4[d],a[d]) for d in range(4)]
                        else:
                            d4=pl[(n if n<a0_ else n-len(pa))%18]
                            o+=[valu('v_cvt_pk_bf16_f32',d4[d],a[2*d],a[2*d+1]) for d in range(4)]
                        if c<8: st_pair(o,d4,vPS,WS_P+c*CS+(q>>1)*16384,'pst',sXX if tt else sXP)
                        else:
                            for z in range(2): st_pair(o,d4[2*z:2*z+2],vPX,WS_PX+(q-1+z)*ES,'pst',sXX if tt else sXP)
                    events.append((gi,o))
            ntr+=(k1-k0)//3

marks={}
def build_ffn():
    marks['c0']=len(groups); build_chunk(0,BANK[0])
    marks['c1']=len(groups); build_chunk(1,BANK[1])
    marks['qkv']=len(groups); build_qkv(BANK[0])
    marks['c2']=len(groups); build_chunk(2,BANK[1])
    marks['c3']=len(groups); build_chunk(3,BANK[0])
    marks['half']=len(groups); build_half(V(224,32))
    marks['down']=len(groups); build_down()

NB=39 if OPT['split'] else 40; LATE=10**9
SIG=13 if OPT['split'] else 1
vCA,vCV=V(54),vT[7]
def plan():
    L=OPT['look']
    n=0; bars=[]
    for g in groups:
        g.start=n
        if g.bar: bars.append(n-L-(1 if n and OPT['balone']==2 else 0))
        for k,(it,_) in enumerate(g.rd):
            if it.first is None: it.first=n+k-L
            it.last=n-1+(0 if len(g.fr)<=3 else ((k//4)*2 if not OPT['w3'] else (k//6)*3))
        n+=len(g.m)
    free={b:(-3000 if b>=36 else (-2000 if b<18 else -L)) for b in range(NB)}
    ptr=36
    for it in items:
        if ptr+it.n>NB: ptr=0
        it.addr=ptr*4096
        it.early=max(free[b] for b in it.blks())
        assert it.early<LATE
        it.bar=max(b for b in bars if b<=it.first)
        nxt=[b for b in bars if b-SIG>=it.last]
        for b in it.blks(): free[b]=nxt[0] if nxt else LATE
        ptr=(ptr+it.n)%NB
    return n,bars,free

VM=('dma','vld','vst')
SC=('salu','waitfor','misc','label')
lastvm=dict(any=-100,st=-100)
def head(nm,gap):
    q=fifo[nm]
    if not q or q[0][0]>gap: return None
    x=q[0][1]
    if 'lag' in x.meta and x.meta['lag'][0].meta.get('at',LATE)+x.meta['lag'][1]>gap: return None
    sq=x.meta['seq']; rd=set(x.rd)-{'carry'}; wr=set(x.wr)-{'carry'}
    for n2,q2 in fifo.items():
        if n2==nm: continue
        for _,y in q2:
            if y.meta['seq']>sq: break
            if rd&set(y.wr) or wr&set(y.rd) or wr&set(y.wr): return None
    return x
pipe=[0,16]
def vm_ready(gap,mingap,stgap,order=('st','ld','low','dma')):
    if gap-lastvm['any']<mingap: return None
    if pipe[0]-gap*pipe[1]>OPT['back']: return None
    for nm in order:
        x=head(nm,gap)
        if x is None or x.kind not in VM: continue
        if nm=='st':
            d=x.meta.get('dep')
            if gap-lastvm['st']<stgap or (d is not None and d.meta.get('at',LATE)>gap-2): continue
        return nm
    return None
def take(nm,gap):
    x=fifo[nm].pop(0)[1]
    if x.kind in VM:
        lastvm['any']=gap
        pipe[0]=max(pipe[0],gap*pipe[1])+x.meta.get('cost',80)
        if nm=='st': lastvm['st']=gap
    e(x)
    nx=[y for _,y in fifo[nm][:6] if 'vcc' in y.rd or 'vcc' in y.wr]
    if nx and 'vcc' in nx[0].rd: vcc_open[0]=nm
    elif vcc_open[0]==nm: vcc_open[0]=None
    while x.meta.get('glue'):
        x=fifo[nm].pop(0)[1]; e(x)
    return x
vcc_lock=[LATE]; vcc_open=[None]
def pull(gap,scalar):
    order=('arr','st','ld','dma','ctr','epi','low') if scalar and OPT['sprio'] else ('arr','dma','st','ctr','epi','ld','low')
    if scalar:
        for nm in order:
            x=head(nm,gap)
            if x is not None and 'carry' in x.rd: take(nm,gap); return True
    elif vcc_open[0]: order=(vcc_open[0],)+order
    for nm in order:
        x=head(nm,gap)
        if x is None or x.kind in VM: continue
        if (x.kind in SC)!=scalar: continue
        if 'vcc' in x.wr and not x.meta.get('glue') and vcc_lock[0]<OPT.get('vlock',22): continue
        take(nm,gap); return True
    return False

bar_extra={}; PH={}
def emit_backbone(bars,gapstamps):
    L=OPT['look']
    reads=[(it,f,g.start-0.5) for g in groups for it,f in g.rd]
    ev={}
    for gi,ops in events: ev.setdefault(gi,[]).append(ops)
    bar_items={}
    for it in items: bar_items.setdefault(it.bar,[]).append(it.name)
    barset=set(bars); issue={}
    fixed={}; fixT={}
    nb=len([b for b in bars if b>=SIG and OPT['split']]); kb=0
    for gi,g in enumerate(groups):
        for k in range(len(g.m)):
            gap=g.start+k; fx=[]
            w_lg=list(groups[gi+1].fr) if (k==len(g.m)-1 and gi+1<len(groups)) else []
            if len(w_lg)>3: w_lg=w_lg[:3 if OPT['w3'] else 2]
            if len(g.fr)>3 and not OPT['w3'] and k in (1,3): w_lg=g.fr[k+1:k+3]
            if len(g.fr)>3 and OPT['w3'] and k in (2,5) and k+1<len(g.fr): w_lg=g.fr[k+1:k+4]
            if len(g.fr)>6 and k in (9,13): w_lg=groups[gi+1].fr[:1+(k-9)//2] if gi+1<len(groups) else []
            w_vm=[]
            for d in (1,SIG):
                b=gap+d
                if b in barset and d==(SIG if b>=SIG else 1): w_vm=bar_items.get(b,[])+bar_extra.get(b,[])
            if OPT['split']:
                if gap+SIG in barset: x=dsw('ds_sub_u32',vCA,vONE); x.meta['signal']=True; fixT[gap]=x
                if gap+7 in barset and gap+7>=SIG: assert gap not in fixT; fixT[gap]=dsr('ds_read_b32',vCV,vCA)
                if gap+1 in barset and gap+1>=SIG:
                    kb+=1; assert gap not in fixT
                    fixT[gap]=valu('v_cmp_lt_u32','vcc',4*(nb-kb),vCV); w_lg.append(vCV)
                    OUT.extend([f'L_sb{kb}:', f'ds_read_b32 {vCV}, {vCA}', 's_waitcnt lgkmcnt(0)', fixT[gap].text, 's_nop 0', f's_cbranch_vccnz L_sb{kb}', f's_branch L_sr{kb}'])
            if gap in barset:
                if OPT['split'] and gap>=SIG: fx.append([raw(f's_cbranch_vccnz L_sb{kb}','misc',['vcc'],check=True,glue=True), label(f'L_sr{kb}')])
                else: fx.append([barrier()])
            if w_lg or w_vm: fx.append([waitfor(lg=w_lg,vmtags=w_vm)])
            fixed[gap]=fx
    def stgap_at(gap):
        dn=gap>=groups[marks['down']].start
        iv=len([b for b in bars if b<=gap])
        if iv%OPT['stper' if dn else 'qstper']: return LATE
        if any(-1<=g-gap<OPT['atd']*3//4 for g in extra): return LATE
        return OPT['stgap' if dn else 'qstgap']
    ri=[L]
    def rd():
        it,f,lg=reads[ri[0]]; ri[0]+=1; e(setseq(f(it),lg))
    planned=None
    for gi,g in enumerate(groups):
        for k,m in enumerate(g.m):
            gap=g.start+k
            if gap-1 in extra:
                cur[0]=gap-0.7
                e(*extra[gap-1])
                x=head('st',gap); n=extra[gap-1][-1].passes-3
                if x is not None and x.kind=='vst' and x.meta['dep'].meta.get('at',LATE)<gap-2: take('st',gap); n=0
                for _ in range(n): pull(gap-1,False)
            cur[0]=gap
            e(m)
            if gap in gapstamps: stamp(gapstamps[gap])
            if gap in PH: note(PH[gap])
            if 'gst' in OPT and gap in range(*map(int,OPT['gst'].split(':'))): stamp(f'gap{gap}',True)
            if planned:
                x=take(planned,gap); planned=None; assert x.kind in VM
                if x.kind=='dma': issue[x.meta['tag']]=gap
                continue
            fx=fixed[gap]
            nosc=OPT['nosc'] and P[-2].kind=='valu' and any(r=='vcc' or r[0]=='s' for r in P[-2].wr)
            if fx: e(*fx.pop(0))
            elif not nosc and not pull(gap,True) and OPT['snop']: e(raw('s_nop 0','misc'))
            if gap in barset and OPT['balone']==3 and not fx: continue
            if ri[0]<len(reads) and ri[0]<=gap+L: rd()
            elif ri[0]>=len(reads) and tail_reads: e(tail_reads.pop(0))
            used=False
            if gap in barset and OPT['balone'] and not fx: continue
            if gap+1 in barset and OPT['balone']==2 and not fx and len(fixed[gap+1])==1 and ri[0]<len(reads) and reads[ri[0]][0].bar<=gap: rd(); continue
            if fx: e(*fx.pop(0)); used=True
            if gap in fixT:
                e(fixT[gap]); used=True
                if fixT[gap].kind=='valu': continue
            lag=ri[0]<len(reads) and ri[0]<=gap+L
            if lag:
                if not used: rd()
                continue
            if gap+1 in fixed and not fixed[gap+1] and gap+1 not in fixT: planned=vm_ready(gap+1,OPT['dmagap'],stgap_at(gap+1))
            if used: continue
            if planned:
                if OPT['vmpat']==0 and ri[0]<len(reads) and reads[ri[0]][0].bar<=gap: rd()
                if OPT['vmpat']==2: pull(gap,False)
                continue
            vcc_lock[0]=min([b for b in bars if b>gap]+[LATE])-gap if OPT['split'] else LATE
            if not pull(gap,False) and not nosc: pull(gap,True)
        for ops in ev.get(gi,[]):
            for o in ops: push(o.meta.get('q','epi'),gap+4,[o])
    vcc_lock[0]=LATE
    sl=[(it.bar-SIG-issue[it.name],it.name) for it in items if it.name in issue]
    sl.sort(); print('min dma slack (gaps):',sl[:6])
    print('left after backbone:',{k:len(v) for k,v in fifo.items()})

OUT=[]
HOT=[]
def spin(name,load,expect,sleep=8,cmp='v_cmp_gt_u32',pre=[]):
    a=valu(cmp,'vcc',expect,vPOLL); a.meta['glue']=True
    b=raw(f's_cbranch_vccnz L_spin_{name}','misc',['vcc']); b.meta['glue']=True
    c=label(f'L_back_{name}')
    cnt=vT[6]
    OUT.extend([f'L_spin_{name}:', f'v_mov_b32 {cnt}, 0x40000', f'L_spinl_{name}:', *pre, load.text, 's_waitcnt vmcnt(0)', f'{cmp} vcc, {fmt(expect)}, {vPOLL}', 's_nop 1',
        f's_cbranch_vccz L_back_{name}', f'v_subrev_u32 {cnt}, 1, {cnt}', f'v_cmp_ne_u32 vcc, 0, {cnt}', f's_sleep {sleep}', f's_cbranch_vccnz L_spinl_{name}', f's_branch L_back_{name}'])
    a.wr.append(cnt.regs()[0]); a.wr.append('ok_'+name)
    return [a,b,c]

def addr_att(WB):
    t,u,key,hf,p,rp=vT[0],vT[1],vT[2],vT[3],vT[4],vT[5]
    e(valu('v_and_b32',key,31,vL), valu('v_lshrrev_b32',hf,5,vL), valu('v_lshlrev_b32',t,2,hf), valu('v_xor_b32',t,t,vL), valu('v_lshlrev_b32',vKM,4,t))
    extpos(u,key,t)
    e(valu('v_lshlrev_b32',vKE,3,u), valu('v_add_u32',vKE,1024,vKE))
    e(salu('s_lshr_b32',sT0,sW,1), salu('s_lshl_b32',sT0,sT0,5), salu('s_add_u32',sT0,sT0,sH), salu('s_add_u32',sT0,sT0,32), salu('s_mul_i32',sT0,sT0,SL),
      salu('s_and_b32',sT1,sW,1), salu('s_mul_i32',sT1,sT1,5120), salu('s_add_u32',sT0,sT0,sT1), valu('v_lshl_add_u32',vKV,vL,4,sT0))
def addr_z(): e(valu('v_and_b32',vZ,1,vL), valu('v_lshlrev_b32',vZ,7,vZ))
def qk_loads(WB):
    t,u,hf=vT[0],vT[1],vT[3]
    e(salu('s_mov_b32',sSO3,WS_R2), cost(bload(vR2,vR2,sWS,sSO3,flags='sc1'),40))
    e(valu('v_lshrrev_b32',hf,5,vL), valu('v_mul_u32_u24',u,1280,hf), valu('v_add_u32',u,u,vKE))
    e(salu('s_lshl_b32',sT0,sM8,2), salu('s_add_u32',sT0,sT0,sW), salu('s_mul_i32',sT0,sT0,2560), salu('s_mul_i32',sT1,sH,SL), salu('s_add_u32',sSO3,sT0,sT1))
    for x in range(2): e(bload(QM[x],vKM,sWS,sSO3,x*1280,flags='sc1'))
    e(cost(bload(QE[0],u,sWS,sSO3,0,flags='sc1'),40))
    e(salu('s_add_u32',sSO3,sT1,32*SL))
    for x in range(2): e(bload(KM[x],vKM,sWS,sSO3,x*1280,flags='sc1'), cost(bload(KE[x],vKE,sWS,sSO3,x*1280,flags='sc1'),40))
    e(valu('v_add_u32',vKM,WB,vKM), valu('v_add_u32',vKE,WB,vKE), valu('v_mov_b32',QE[1],0), valu('v_mov_b32',vIDX,0xdddd))
def zero_o():
    for x in range(2):
        for r in range(16): e(valu('v_mov_b32',OO[x][r],0))
def extra_zero(ngaps):
    with collect() as o: zero_o()
    push('ctr',ngaps-66,o,ngaps-66)
def addr_lds(WB):
    t,hf=vT[0],vT[3]
    e(valu('v_lshrrev_b32',hf,5,vL))
    c,r,k,x=vT[4],vT[5],vT[6],vT[1]
    e(valu('v_and_b32',c,3,vL), valu('v_bfe_u32',r,vL,2,2), valu('v_lshl_add_u32',r,hf,3,r))
    for n in range(4):
        uu,y=n>>1,n&1
        e(valu('v_add_u32',k,16*uu+4*y,r))
        extpos(x,k,t)
        e(valu('v_lshlrev_b32',x,3,x), valu('v_min_u32',t,1,c), valu('v_mul_u32_u24',t,LDS_OOB+64,t), valu('v_xor_b32',x,x,t), valu('v_add_u32',x,1024,x))
        e(valu('v_lshrrev_b32',t,1,c), valu('v_mul_u32_u24',t,36,t), valu('v_xor_b32',k,k,t), valu('v_lshlrev_b32',k,4,k), valu('v_and_b32',t,1,c), valu('v_lshl_add_u32',k,t,3,k))
        e(valu('v_and_b32',t,16,vL), valu('v_cmp_eq_u32','vcc',0,t), valu('v_cndmask_b32',k,x,k), valu('v_add_u32',vVA[n],WB,k))
vOP,vSH,vINC=V(55),V(16),V(17)
def addr_op():
    t,u,g=vT[2],vT[4],vT[5]
    e(salu('s_lshl_b32',sT0,sXC,2), valu('v_lshlrev_b32',vINC,sT0,vONE), salu('s_mov_b32',sPV,0), valu('v_add_u32',vKE1,1280,vKE))
    if OPT['vp']: e(valu('v_min_u32',vOP,1,vL), valu('v_lshl_add_u32',vOP,vOP,31,sF3))
    if OPT['warm']: e(salu('s_and_b32',sT0,sIDX,7), salu('s_lshl_b32',sT0,sT0,2), salu('s_add_u32',sT0,sT0,sW),
      salu('s_lshl_b32',sT1,sXC,2), salu('s_lshr_b32',sT2,sIDX,3), salu('s_add_u32',sT1,sT1,sT2),
      salu('s_lshr_b32',sT2,sT0,4), salu('s_lshl_b32',sT2,sT2,15), salu('s_and_b32',sT3,sT0,15), salu('s_lshl_b32',sT3,sT3,8), salu('s_add_u32',sT2,sT2,sT3),
      salu('s_lshl_b32',sT3,sT1,16), salu('s_add_u32',sT2,sT2,sT3), salu('s_add_u32',sT2,sT2,WS_O),
      valu('v_lshrrev_b32',g,1,vL), valu('v_lshl_add_u32',t,g,12,sT2), valu('v_and_b32',u,1,vL), valu('v_lshl_add_u32',t,u,7,t),
      salu('s_bfe_u32',sT2,sT0,0x10002), salu('s_lshl_b32',sT2,sT2,12), salu('s_and_b32',sT3,sT0,3), salu('s_lshl_b32',sT3,sT3,7), salu('s_add_u32',sT2,sT2,sT3),
      salu('s_lshl_b32',sT3,sT1,13), salu('s_add_u32',sT2,sT2,sT3), salu('s_add_u32',sT2,sT2,WS_OX),
      valu('v_and_b32',u,7,vL), valu('v_lshl_add_u32',vOP,u,9,sT2), valu('v_cmp_gt_u32','vcc',16,vL), valu('v_cndmask_b32',vOP,vOP,t), valu('v_cndmask_b32',g,u,g),
      valu('v_lshl_add_u32',g,g,2,2), valu('v_cmp_gt_u32','vcc',24,vL), valu('v_cndmask_b32',vSH,3,g))
def x_loads(): return [cost(bload(XR[2*q:2*q+2],vXO,sX,0,32*q),260) for q in range(4)]+[cost(bload(XR[8:10],vXOX,sX,0),200)]
def addr_fin():
    t,u,p,rp,a,b=vT[0],vT[1],vT[4],vT[5],vT[6],vT[3]
    lane_rp(rp,p,t)
    e(salu('s_and_b32',sT0,sW,1), salu('s_lshr_b32',sT1,sW,1), salu('s_mul_i32',sT2,sT0,20), salu('s_lshl_b32',sT3,sT1,3), salu('s_add_u32',sT2,sT2,sT3), valu('v_add_u32',a,sT2,rp),
      salu('s_mul_i32',sT2,sT0,288), salu('s_mul_i32',sT3,sT1,36), salu('s_add_u32',sT2,sT2,sT3), salu('s_add_u32',sT2,sT2,16),
      valu('v_lshrrev_b32',t,2,rp), valu('v_mul_u32_u24',t,144,t), valu('v_and_b32',b,3,rp), valu('v_add3_u32',b,b,t,sT2))
    e(salu('s_and_b32',sT0,sIDX,7), salu('s_lshl_b32',sT1,sT0,7), valu('v_lshl_add_u32',u,p,4,sT1),
      valu('v_mul_u32_u24',t,1152,a), valu('v_add_u32',vWO,t,u), valu('v_mul_u32_u24',t,1152,b), valu('v_add_u32',vWOE,t,u))
    e(salu('s_lshr_b32',sT2,sT0,1), salu('s_lshl_b32',sT2,sT2,5), salu('s_add_u32',sT2,sT2,1024), valu('v_and_b32',u,1,p), valu('v_lshl_add_u32',u,u,4,sT2), valu('v_lshrrev_b32',p,1,p),
      valu('v_mul_u32_u24',t,36,p), valu('v_add_u32',t,t,a), valu('v_mul_u32_u24',t,1152,t), valu('v_add_u32',vWX,t,u),
      valu('v_mul_u32_u24',t,p,p), valu('v_mul_u32_u24',t,t,p), valu('v_mul_u32_u24',t,72,t), valu('v_add_u32',t,t,b), valu('v_mul_u32_u24',t,1152,t), valu('v_add_u32',vWXE,t,u))
    e(*grp_ops(sT3,sSO3), salu('s_lshl_b32',sT3,sT3,2), salu('s_add_u32',sT3,sT3,sW))
    tk,g=vT[4],vT[5]
    e(valu('v_and_b32',tk,15,vL), valu('v_lshrrev_b32',g,4,vL))
    e(salu('s_mul_i32',sSC[2],sT3,TS), salu('s_mul_i32',sSO3,sT0,CS), salu('s_add_u32',sSO3,sSO3,sSC[2]), valu('v_lshl_add_u32',vPL,vL,4,sSO3))
    e(salu('s_xor_b32',sSC[0],sW,sT0), salu('s_lshl_b32',sSC[0],sSC[0],31))
    e(salu('s_lshr_b32',sSO3,sT0,1), salu('s_mul_i32',sSO3,sSO3,ES), salu('s_add_u32',sSO3,sSO3,sSC[2]), salu('s_or_b32',sSO3,sSO3,sSC[0]), valu('v_lshl_add_u32',vPLX,vL,3,sSO3))
    e(salu('s_lshl_b32',sSO3,sT3,4), valu('v_add_u32',a,sSO3,tk), valu('v_lshlrev_b32',vR2,2,a), valu('v_mul_u32_u24',a,1152,a), valu('v_lshl_add_u32',a,g,3,a),
      valu('v_add_u32',vXO,sT1,a), salu('s_or_b32',sT2,sT2,sSC[0]), valu('v_add_u32',vXOX,sT2,a))
    if not OPT['xat']: e(*x_loads())
    e(salu('s_and_b32',sSO3,sT3,1), salu('s_lshl_b32',sSO3,sSO3,4), valu('v_add_u32',a,sSO3,tk), salu('s_lshr_b32',sSC[1],sT3,1),
      salu('s_mul_i32',sSO3,sSC[1],OS), valu('v_lshl_add_u32',t,a,4,sSO3), valu('v_lshl_add_u32',vOL,g,9,t),
      salu('s_mul_i32',sSO3,sSC[1],XS), valu('v_lshl_add_u32',t,a,2,sSO3), valu('v_lshl_add_u32',vOLX,g,10,t))
    e(valu('v_and_b32',t,31,vL))
    for n in range(4): e(*base_add(sOB[n],sWS,WS_O+8192*n+4096))
    e(*base_add(S(88,2),sWS,WS_O), *base_add(S(90,2),sWS,WS_O+OS))
    e(salu('s_lshr_b32',sSO3,sT3,1), salu('s_lshl_b32',sSO3,sSO3,11), salu('s_add_u32',sSO3,sSO3,WS_F2), salu('s_and_b32',sSC[1],sIDX,3), salu('s_lshl_b32',sSC[1],sSC[1],9), salu('s_add_u32',sSO3,sSO3,sSC[1]),
      valu('v_min_u32',vPG,1,vL), valu('v_lshl_add_u32',vPG,vPG,31,sSO3))
    e(salu('s_lshl_b32',sT0,sM8,2), salu('s_add_u32',sT0,sT0,sW), salu('s_mul_i32',sT1,sT0,2*OS), salu('s_lshl_b32',sT2,sH,10), salu('s_add_u32',sT1,sT1,sT2),
      valu('v_lshl_add_u32',vOS,vL,4,sT1),
      salu('s_mul_i32',sT1,sT0,2*XS), salu('s_lshl_b32',sT2,sH,7), salu('s_add_u32',sT1,sT1,sT2), salu('s_add_u32',sT1,sT1,WS_OX),
      valu('v_lshl_add_u32',t,t,2,sT1), valu('v_lshrrev_b32',u,5,vL), valu('v_mul_u32_u24',u,XS,u), valu('v_add_u32',vOSX,u,t))

def max_ops(srcs,m,first=True):
    o=[]
    regs=[s[r] for s in srcs for r in range(16)]
    if first: o.append(valu('v_max3_f32',m,regs[0],regs[1],regs[2])); rest=regs[3:]
    else: rest=regs
    while len(rest)>=2: o.append(valu('v_max3_f32',m,m,rest[0],rest[1])); rest=rest[2:]
    if rest: o.append(valu('v_max_f32',m,m,rest[0]))
    return o
def set_shift(mx,margin):
    m,t=mx
    return [swap('v_permlane32_swap_b32',m,t), valu('v_max_f32',m,m,t), valu('v_sub_f32',m,f32(-margin) if margin else 0,m),
            valu('v_cvt_pk_bf16_f32',t,m,m), valu('v_lshlrev_b32',t,16,t), valu('v_sub_f32',t,m,t), valu('v_cvt_pk_bf16_f32',QE[1],m,t)]
def Bx(tau,buf=None): return m2b(buf or SBB[tau%3],KE[tau%4],QE,0)
def Mx(tau,x,buf=None): b=(buf or SBB[tau%3])[16*x:16*x+16]; return m32(b,KM[tau%3],QM[x],b)
def PV(tau,x,h,buf=None): return smf(OO[x],VV[tau&1][4*h:4*h+4],(buf or SBB[tau%3])[16*x+8*h:16*x+8*h+8],vIDX)
def vread(kv,WB,tau,n):
    it=kv[tau>>3]; off=it.addr-WB+10240+(tau&7)*1280
    return dsr('ds_read_b64_tr_b16',VV[tau&1][2*n:2*n+2],vVA[n],off,src=(it.name,it.blks()))
extra={}
def att_setup(ngaps,kv,WB):
    g=ngaps-OPT['at0']; d=OPT['atd']
    for k,m in enumerate((Bx(0),Bx(1),Mx(0,0),Mx(1,0),Mx(0,1),Mx(1,1))): extra[g+k*d]=[m]
    extra[g].insert(0,waitfor(vm=QM+KM[:2]+KE[:2]+[QE[0]]))
    mx=[vT[0],vT[1]]
    for x in range(2): push('ctr',g+(3+2*x)*d+7,max_ops([SBB[0][16*x:16*x+16],SBB[1][16*x:16*x+16]],mx[x]),g+(3+2*x)*d+2)
    push('ctr',g+5*d+7,set_shift(mx,MARGIN),g+5*d+2)
    for k,m in enumerate((Bx(0),Mx(0,0),Mx(0,1))): extra[g+(7+k)*d]=[m]
    assert g+9*d<ngaps-8
    tail_reads.extend(vread(kv,WB,0,n) for n in range(4))
tail_reads=[]

def attention(g0,kv,WB,wo_items):
    base=g0+100
    pipe[0]=0; pipe[1]=44
    def kread(tau):
        it=kv[tau>>3]; off=it.addr-WB+(tau&7)*1280; src=(it.name,it.blks())
        if tau<4 or not OPT['ke2']: ke=dsr('ds_read_b64',KE[tau%4],vKE,off,src=src)
        elif tau&2: ke=None
        else:
            o=(off-1280*(tau&1))//512; d=A(KE[tau&1].b,4); a=vKE1 if tau&1 else vKE
            ke=I(f'ds_read2st64_b64 {d}, {a} offset0:{o} offset1:{o+5}','dsr',a.regs(),d.regs(),src=src,private=False)
        return [dsr('ds_read_b128',KM[tau%3],vKM,off,src=src), ke]
    def flush(n,names=('ctr','epi','low','dma','ld')):
        k=0
        while k<n:
            for nm in names:
                x=head(nm,cur[0])
                if x is not None: take(nm,cur[0]); break
            else: return
            k+=1
    cur[0]=g0
    assert not fifo['ctr'] and not fifo['low'] and not fifo['ld']
    stamp('att'); note('---- attention')
    barx={7:[it.name for it in wo_items]}; f2done=[False]; wcut=[int(x) for x in OPT['wcut'].split(',')]
    for tau in range(64):
        n=2*tau; nx=tau<63; S=SBB[tau%3]
        if 'ast' in OPT and n in range(*map(int,OPT['ast'].split(':'))): stamp(f'slot{n}',True)
        ms=[Bx(tau+1) if nx else None, PV(tau-1,1,1) if tau else None, PV(tau,0,0), Mx(tau+1,0) if nx else None, PV(tau,0,1), Mx(tau+1,1) if nx else None, PV(tau,1,0)]
        if OPT['aord']:
            h=OPT['aord']&1
            ms=[ms[0], PV(tau-1,1,h) if tau else None, PV(tau-1,1,1-h) if tau else None, ms[3], ms[5], PV(tau,0,0), PV(tau,0,1)]
            if not nx: ms[3:]=[PV(tau,0,0), PV(tau,0,1), None, PV(tau,1,0)]
        km,ke=kread(tau+2) if tau+2<64 else (None,None)
        v=[vread(kv,WB,tau+1,z) if nx else None for z in range(4)]
        rds=[None,ke,v[0],v[1],km,v[2],v[3]]
        sg=(tau+3)//8 if (tau+3)%8==0 and tau+3<64 else None
        for k in range(7):
            gap=base+8*tau+(k+1 if k else 0); cur[0]=gap
            if tau==0 and k==1: flush(1000,('epi',)); e(waitfor(lg=[VV[0]]))
            if ms[k] is not None: e(ms[k])
            nsc=(0,2,2,1,2,1,2)[k] if not OPT['aord'] else (0,2,2,1,1,2,2)[k]; kb=5 if OPT['aord'] else 4
            fx=k in (2,6) or (k==kb and sg is not None)
            vmn=vm_ready(gap,1,OPT['astgap'],('st','dma','ld','low')) if (not fx and k>0 and ms[k] is not None) else None
            if vmn: take(vmn,gap)
            else:
                if k==2: e(waitfor(lg=[VV[tau&1][4:8],KM[(tau+1)%3]])); nsc-=1
                if k==2 and tau==63 and OPT['warm']: e(*poll())
                if k==6: e(waitfor(lg=[VV[(tau+1)&1][0:4],KE[(tau+2)%4]])); nsc-=1
                if k==kb and sg is not None:
                    e(waitfor(vmtags=[kv[sg].name]+barx.get(sg,[])), barrier()); nsc-=2
                    if sg+1<8 and not kv[sg+1].pushed: push('dma',gap,kv[sg+1].mk(kv[sg+1]))
                    for it in [x for x in wo_items if not x.pushed][wcut[sg-1]:wcut[sg]]: push('dma',gap,it.mk(it))
                while nsc>0 and pull(gap,True): nsc-=1
            if rds[k] is not None: e(rds[k])
            x=head('ld',gap)
            if x is not None and x.kind=='valu': take('ld',gap)
            for r in (range(8) if k==0 else range(4*k+4,4*k+8)): e(valu(OPT['exp'],S[r],S[r]))
        if n==OPT['tatt']: push('arr',gap,touch())
        if n==2 and OPT['xat']: push('ld',gap,x_loads())
        if not fifo['st'] and not f2done[0]:
            f2done[0]=True; print('partial stores end at slot',n)
            push('st',gap+4*OPT['f2lag'],[waitfor(vmtags=['pst']), batomic(vONE,vF1,sWS,0,op='sub')])
        if n==OPT['f2poll']:
            ld=I(f'buffer_atomic_add {vPOLL}, {vPG}, {sWS}, 0 offen sc0','vld',vPOLL.regs()+vPG.regs(),vPOLL.regs(),tag=None)
            e(valu('v_mov_b32',vPOLL,0)); push('st',gap,[ld])
            t0=base+4*OPT['f2chk']
            w_=waitfor(vm=[vPOLL]); w_.meta['lag']=(ld,4*(OPT['f2chk']-OPT['f2poll']))
            push('ld',t0,[w_]+spin('f2',ld,0,OPT['f2sl'],'v_cmp_ne_u32',[f'v_mov_b32 {vPOLL}, 0']))
            ops=[]
            for k in range(32):
                if k%8==0: ops+=base_add(sBL,sWS,WS_P+k*1024+4096)
                ops.append(gload(PART[k],vPL,sBL,(k%8)*1024-4096,flags='sc1'))
                if k%2==1:
                    z=k>>1
                    if z%8==0: ops.append(salu('s_mov_b32',sSO3,WS_PX+z*512))
                    ops.append(bload(PARTX[z],vPLX,sWS,sSO3,(z%8)*512,flags='sc1'))
            nl=0; prev=None
            for o in ops:
                if o.kind=='vld':
                    if prev is not None: o.meta['lag']=(prev,OPT['ldmin'])
                    prev=o
                push('ld',t0+int(nl*OPT['ldgap']),[o])
                if o.kind=='vld': nl+=1
    cur[0]=base+600
    e(PV(63,1,1))
    print('att vmem slots:',' '.join(f"{'kv' if i.meta.get('tag') and i.meta['tag'][0]=='kv' else i.kind[1]}{(i.meta['at']-base)//4}" for i in P if i.kind in VM and i.meta['at']>=base))
    print('left after attention:',{k:len(v) for k,v in fifo.items()})
    assert not any(fifo.values()), 'work left after attention'

def fallback(kv,WB):
    global P
    save=P; P=[]
    pb=kv[5].addr
    a=[V(192+n) for n in range(6)]; vo=V(198); mx=[V(199),V(200)]; S=SBB[2]
    e(label('L_fb'), raw('s_waitcnt vmcnt(0) lgkmcnt(0)','misc'), raw('s_nop 15','misc'))
    for d,s in zip(a,[vKM,vKE]+vVA): e(valu('v_add_u32',d,sW5K,s))
    e(valu('v_lshlrev_b32',vo,4,vL), valu('v_mov_b32',QE[1],0), valu('v_mov_b32',mx[0],0xff800000), valu('v_mov_b32',mx[1],0xff800000))
    off=pb-WB
    for ps in range(2):
        e(salu('s_add_u32',sT0,sH,32), salu('s_mul_i32',sT0,sT0,SL), salu('s_add_u32',sT1,sT0,32*SL), salu('s_mov_b32',sT2,64), label(f'L_fbl{ps}'))
        e(salu('s_add_u32','m0',sW5K,pb), dma(vo,sWS,sT0,0,flags='sc1'), dma(vo,sWS,sT0,1024,flags='sc1'))
        if ps: e(salu('s_add_u32','m0',sW5K,pb+2560), dma(vo,sWS,sT1,0,flags='sc1'), dma(vo,sWS,sT1,1024,flags='sc1'))
        e(waitfor(vmall=True), dsr('ds_read_b128',KM[0],a[0],off), dsr('ds_read_b64',KE[0],a[1],off))
        if ps:
            for n in range(4): e(dsr('ds_read_b64_tr_b16',VV[0][2*n:2*n+2],a[2+n],off+2560))
        e(waitfor(lgall=True))
        e(Bx(0,S), Mx(0,0,S), Mx(0,1,S))
        for x in range(2):
            if ps==0: e(*max_ops([S[16*x:16*x+16]],mx[x],first=False))
            else:
                for r in range(16): e(valu('v_exp_f32',S[16*x+r],S[16*x+r]))
                for h in range(2): e(PV(0,x,h,S))
        e(raw('s_nop 15','misc'), salu('s_add_u32',sT0,sT0,1280), salu('s_add_u32',sT1,sT1,1280), salu('s_sub_u32',sT2,sT2,1), salu('s_cmp_lg_u32',sT2,0), raw(f's_cbranch_scc1 L_fbl{ps}','misc'))
        if ps==0:
            e(*set_shift(mx,0.0)); zero_o()
    e(*norm_store(0,V(116,2)), *norm_store(1,V(116,2)), waitfor(vmall=True))
    e(raw('s_nop 3','misc'), raw('s_branch L_fb_ret','misc'))
    OUT.extend(i.text for i in finalize(P,verbose=0,name='fb'))
    P=save

TT=[V(224,16),V(240,16)]
FLAG_LDS=[0]
def norm_store(x,t):
    O,T=OO[x],TT[x]
    o=[valu('v_rcp_f32',t[0],O[10]), valu('v_mov_b32',t[1],t[0]), swap('v_permlane32_swap_b32',t[0],t[1])]
    o+=[valu('v_mul_f32',T[r],t[0],O[r]) for r in range(10)]
    o+=[valu('v_cvt_pk_bf16_f32',T[d],T[2*d],T[2*d+1]) for d in range(4)]
    o+=[gstore(T[0:4],vOS,S(88+2*x,2),flags='sc1',tag='ost'), valu('v_cvt_pk_bf16_f32',T[8],T[8],T[9])]
    if x: o+=[swap('v_permlane32_swap_b32',TT[0][8],TT[1][8]), gstore(TT[0][8],vOSX,sWS[0:2],flags='sc1',tag='ost')]
    return o
def poll(r=sPV): return [raw(f's_atomic_umax {r}, {sWS[0:2]}, {sF3} glc')]
def final(g0,wo_main,wo_x):
    cur[0]=g0
    SA=V(56,20); DN=V(76,20); XF=V(96,20); tmp=V(116,12)
    e(*norm_store(0,tmp[0:2]), *norm_store(1,tmp[6:8]))
    stamp('o stored')
    fill=[]
    for x in range(2):
        s=tmp[2+x]
        fill.append(valu('v_add_f32_e64',s,f'|{OO[x][0]}|',f'|{OO[x][1]}|'))
        for r in range(2,10): fill.append(valu('v_add_f32_e64',s,s,f'|{OO[x][r]}|'))
    fill+=[valu('v_min_f32',tmp[4],tmp[2],tmp[3]), valu('v_add_f32',tmp[2],tmp[2],tmp[3]), valu('v_add_f32',tmp[3],OO[0][10],OO[1][10]), valu('v_add_f32',tmp[2],tmp[2],tmp[3]),
           valu('v_max_f32',tmp[0],tmp[0],tmp[6]), valu('v_fmac_f32',tmp[2],f32(2.0**(124-MARGIN)),tmp[0],rmw=True)]
    chk=[valu('v_cmp_nle_f32','vcc',f32(2.0**-103),tmp[4]), raw('s_cbranch_vccnz L_fb','misc',['vcc']),
      valu('v_cmp_nge_f32','vcc',f32(2.0**126) if not OPT['forcefb'] else f32(-1.0),tmp[2]), raw('s_cbranch_vccnz L_fb','misc',['vcc']), label('L_fb_ret')]
    pool_=[V(128+4*n,4) for n in range(32)]+[A(212+4*n,4) for n in range(7)]+[A(72+4*n,4) for n in range(34)]
    frs=[]; rds=[]
    order=[0,1,4,5,8,9,12,13,16,2,3,6,7,10,11,14,15,17]
    for s in order:
        for q in range(5):
            f=pool_[len(frs)%len(pool_)]; frs.append(f)
            for u in range(2): rds.append(tr_read(f,u,wo_main[s],q) if q<4 else tr_read(f,u,wo_x[s>>2],s&3))
    red=[]
    for j in range(16):
        for q in range(5):
            d=DN[4*q:4*q+4]
            red.append(m4(d,SELA,PART[16*(q>>1)+j][2*(q&1):2*(q&1)+2] if q<4 else PARTX[j],0 if j==0 else d))
    red+=[m4(XF[4*q:4*q+4],SELA,XR[2*q:2*q+2],0) for q in range(5)]
    e(waitfor(vm=PART+PARTX+[XR,vR2]))
    ri=0
    test=lambda: [waitfor(lgall=True,lgforce=True), salu('s_cmp_eq_u32',sPV,0x44444444)]
    def warm(r=sPV,tracked=False):
        if not OPT['warm']: return []
        t=vT[0]; ld=bload(vPF,t,sWS,0,flags='sc1',tag='pf')
        return [valu('v_lshrrev_b32',t,vSH,r), valu('v_not_b32',t,t), valu('v_lshl_add_u32',t,t,31,vOP), ld if tracked else raw(ld.text)]
    g,c2,ir=tmp[8],tmp[9],tmp[10]
    late_=[valu('v_mul_f32',c2,f32(-1.4426950408889634),vR2), valu('v_rcp_f32',ir,vR2),
           valu('v_bfe_u32',g,vL,4,1), valu('v_mul_u32_u24',g,24,g), valu('v_add_u32',vXO,vXO,g)]
    for k,mm in enumerate(red):
        e(mm)
        if k in (OPT['pollat'],OPT['pollat2'],OPT['pollat3']): e(*poll())
        if fill:
            e(fill.pop(0))
            if not fill: e(*chk, waitfor(lgall=True,lgforce=OPT['warm']), *warm(tracked=True), *base_add(sBL,sWS,WS_OX))
            continue
        if k==OPT['hat']: e(waitfor(vmtags=['ost']), batomic(vINC,vF3,sWS,0)); stamp('flag'); continue
        if k>=80: e(late_.pop(0)); continue
        if k%4==3: e(waitfor(lg=frs[:max(0,ri//2-4)]))
        e(rds[ri]); ri+=1
    assert ri<=2*39
    stamp('ready')
    EX=[V(30+n) for n in range(13)]+[V(45+n) for n in range(5)]+[V(14),V(15)]
    fill=[]
    for f in (lambda r:valu('v_mul_f32',EX[r],c2,DN[r]), lambda r:valu('v_exp_f32',EX[r],EX[r]), lambda r:valu('v_fma_f32',EX[r],EX[r],ir,ir),
              lambda r:valu('v_rcp_f32',EX[r],EX[r]), lambda r:valu('v_mul_f32',DN[r],EX[r],DN[r])):
        fill+=[(0,[f(r)]) for r in range(20)]
    OF=[A(4*s,4) for s in range(18)]
    def gate(name,mask):
        one=bin(mask).count('1')==1
        t=lambda: [salu('s_bitcmp1_b32',sPV,mask.bit_length()-1)] if one else [salu('s_and_b32',sT1,sPV,mask), salu('s_cmp_eq_u32',sT1,mask)]
        if OPT['vp']:
            n=OPT['vp']; PL=[vT[z] for z in range(n)]
            vp=lambda z: raw(f'buffer_atomic_umax {PL[z]}, {vOP}, {sWS}, 0 offen sc0')
            y=[label(f'L_w{name}'), vp(0), raw('s_waitcnt lgkmcnt(0)')]+t()+[raw(f's_cbranch_scc1 L_g{name}')]
            for z in range(1,n): y+=[raw(f's_sleep {OPT["psleep"]}'), vp(z)]
            y+=[label(f'L_wl{name}')]
            for z in range(n): y+=[raw(f's_waitcnt vmcnt({n-1})'), valu('v_readfirstlane_b32',sPV,PL[z])]+t()+[raw(f's_cbranch_scc1 L_g{name}'), vp(z)]
        else: y=[label(f'L_w{name}')]+(poll() if OPT['pfirst'] else [])+[label(f'L_wl{name}'), raw('s_waitcnt lgkmcnt(0)')]+t()+[raw(f's_cbranch_scc1 L_g{name}')]+poll()
        y+=[salu('s_addk_i32',sT0,-1), salu('s_cmp_gt_i32',sT0,0), raw(f's_cbranch_scc1 L_wl{name}'), raw(f's_branch L_g{name}')]
        if OPT['inl']: return t()+[raw(f's_cbranch_scc1 L_g{name}')]+y[:-1]+[label(f'L_g{name}')]
        HOT.extend(finalize(y,verbose=0))
        return t()+[raw(f's_cbranch_scc0 L_w{name}',glue=True), label(f'L_g{name}')]
    ge=gate('e',0x04040404)
    ol=[]
    for n,s in enumerate(order):
        if s<16: ol.append((gate(s,4<<(2*s)) if n>8 and s%2==0 else [], gload(OF[n],vOL,sOB[s>>2],(s&3)*2048-4096,flags='sc1')))
        else: ol+=[([],gload(OF[n][r],vOLX,sBL,(s-16)*512+r*128,flags='sc1')) for r in range(4)]
    for z in range(OPT['vp']): e(valu('v_mov_b32',vT[z],0))
    e(salu('s_mov_b32',sT0,0x80000), *ge)
    stamp('ok')
    lg_=[int(x) for x in str(OPT['lgrp']).split(',')]; assert sum(lg_)==12
    for _ in range(lg_.pop(0)): e(ol.pop(0)[1])
    if OPT['rp']&1: e(*poll())
    while ri<OPT['wopre']:
        if ri%4==0: e(waitfor(lg=frs[:max(0,ri//2-4)]))
        e(rds[ri]); ri+=1
    nf=len(fill)
    while len(fill)>OPT['fillmm']:
        e(*fill.pop(0)[1])
        if (nf-len(fill)) in (OPT['lc1'],OPT['lc2']) and lg_:
            for _ in range(lg_.pop(0)): e(ol.pop(0)[1])
            if OPT['rp']&(4>>len(lg_)): e(*poll())
    assert not lg_
    stamp('seen'); note('---- o @ wo, gate, residual')
    def epi(q):
        o=[valu('v_fmac_f32',XF[r],SA[r],DN[r],rmw=True) for r in range(4*q,4*q+4)]
        o+=[valu('v_cvt_pk_bf16_f32',tmp[2*q+d],XF[4*q+2*d],XF[4*q+2*d+1]) for d in range(2)]
        return o
    def put(b): return [swap('v_permlane16_swap_b32',tmp[b],tmp[b+2]), swap('v_permlane16_swap_b32',tmp[b+1],tmp[b+3]), bstore(tmp[b:b+4],vXO,sOUT,0,16*b,flags=OPT['ofl'])]
    k=0; nt=OPT['ntail']
    for s in range(18-nt):
        assert ri>=10*s+10
        e(waitfor(vm=[OF[s]],lg=frs[5*s:max(5*s+5,ri//2-3)]))
        for q in range(5):
            e(m16(SA[4*q:4*q+4],frs[k],OF[s],0 if s==0 else SA[4*q:4*q+4])); k+=1
            if q==0 and ol and s>=OPT['ldel'] and ol[0][0]:
                e(*ol[0][0])
                if OPT.get('mst'): stamp(f'g{s}')
                continue
            if q==0 and s in (9,12) and OPT.get('mst'): stamp(f's{s}')
            if q==1 and ol and s>=OPT['ldel']: e(ol.pop(0)[1]); continue
            if q==3 and str(s) in str(OPT['mpoll']): e(*poll())
            n=0
            while n<(1 if ri>=min(180,OPT['rlead']+int(k*OPT['rrate']/100)) else 2) and ri<len(rds) and ri//2-len(pool_)<k-1: e(rds[ri]); ri+=1; n+=1
            while n<2 and fill: e(*fill.pop(0)[1]); n+=1
    assert not fill and not ol and ri==len(rds),(ri,len(fill))
    ep=[]
    for z,q in enumerate((4,0,1,2,3)):
        for s in range(18-nt,18):
            e(waitfor(vm=[OF[s]],lg=[frs[5*s+q]]), m16(SA[4*q:4*q+4],frs[5*s+q],OF[s],SA[4*q:4*q+4])); k+=1
            n=0
            while ep and n<2 and ep[0][0]<=k:
                o=ep.pop(0)[1]; e(o); n+=1 if o.kind!='vst' else 2
        o=epi(q)+([bstore(tmp[8:10],vXOX,sOUT,0,flags=OPT['ofl'])] if q==4 else put(2*q-2) if q&1 else [])
        ep+=[(k+3,x) for x in o]
    stamp('mm done')
    for _,o in ep: e(o)

def name_regs():
    for k,v in list(globals().items()):
        if k[0]=='v' and k not in ('vT','vL','vPF','vST','vCV'):
            def nm(x,n):
                if isinstance(x,R): x.name=n
                elif isinstance(x,list):
                    for z,y in enumerate(x): nm(y,f'{n}{z}')
            nm(v,k)
def main():
    name_regs()
    build_ffn()
    ngaps,bars,free=plan()
    L=OPT['look']
    best=None
    for a0 in range(0,NB-14):
        fr=sorted((max(free[b] for b in range(a0+5*k,a0+5*k+5)),k) for k in range(3))
        key=(fr[0][0],fr[1][0])
        if best is None or key<best[0]: best=(key,a0,[k for _,k in fr])
    _,a0,order=best; WB=a0*4096
    print('attention window',best,'ngaps',ngaps,{k:groups[v].start for k,v in marks.items()})
    kv=[kv_item(s) for s in range(8)]
    for s,it in enumerate(kv): it.addr=(a0+5*order[s%3])*4096
    rest=sorted([b for b in range(NB) if not a0<=b<a0+15],key=lambda b:free[b])
    print('free',[free[b] for b in range(NB)])
    wo_main=[blk_item(('wo',s),vWO if s<16 else vWOE,sWO,36*s*1152 if s<16 else 72*(s-16)*1152) for s in range(18)]
    wo_x=[blk_item(('wx',n),vWX if n<4 else vWXE,sWO,144*n*1152 if n<4 else 0,buf=(n==4),c=320) for n in range(5)]
    for it,b in zip(wo_main+wo_x,rest): it.addr=b*4096
    FLAG_LDS[0]=rest[23]*4096

    def pst(name):
        if 'pst' in OPT: stamp(name,True)
    prologue(); pst('karg')
    pre0=[it for it in items if it.early==-3000]; pre1=[it for it in items if it.early==-2000]
    dq=[xdma(tt,l) for tt in range(2) for l in range(9)]+[it.mk(it) for it in pre0+pre1]
    for _ in range(OPT['x0n']): e(*dq.pop(0))
    pst('x0 issued')
    xr=[vM[0],vR[1]]; t,u=vT[2],vT[3]
    DT=[V(140+8*n,8) for n in range(3)]+[V(180,8)]; CM=V(164,4); SUM=V(172,4); ONE4=V(176,4)
    prologue2()
    e(valu('v_and_b32',t,15,vL), valu('v_lshrrev_b32',u,1,t), valu('v_lshlrev_b32',t,7,t), valu('v_add_u32',t,sW18K,t),
      valu('v_lshrrev_b32',xr[0],4,vL), valu('v_xor_b32',xr[0],xr[0],u), valu('v_xor_b32',xr[1],4,xr[0]),
      valu('v_lshl_add_u32',xr[0],xr[0],4,t), valu('v_lshl_add_u32',xr[1],xr[1],4,t))
    for d in range(4): e(valu('v_mov_b32',ONE4[d],sONES))
    with collect() as ao:
        e(*sel_ops(t,u))
        addr_pf(); addr_early(); addr_qk()
        e(valu('v_mov_b32',vONE,1))
        if OPT['split']:
            e(valu('v_min_u32',vCA,1,vL), valu('v_mul_u32_u24',vCA,LDS_OOB-39*4096,vCA), valu('v_add_u32',vCA,39*4096,vCA), valu('v_mov_b32',t,4*len([b for b in bars if b>=SIG])), dsw('ds_write_b32',vCA,t))
    for _ in range(OPT['apre']): e(ao.pop(0))
    pst('pre')
    for _ in range(OPT['x1n']): e(*dq.pop(0))
    nx=len([o for o in dq if o[-1].meta['tag'][0]=='x'])
    if OPT['pf']:
        o=pf_gu(0)+(pf_gu(1) if OPT['pfn']>1 else [])+(pf_q() if OPT['pfn']>2 else [])
        k=nx+OPT['pfpos']
        if OPT['pfpos']<0: dq[k-1]=dq[k-1][:-1]+o+dq[k-1][-1:]
        else: dq.insert(k,o)
    e(raw('s_waitcnt lgkmcnt(0)','misc'))
    pst('addr')
    R0=[XC0[4*s_:4*s_+4] for s_ in range(18)]; X1=[XC1[4*s_:4*s_+4] for s_ in range(18)]
    def xread(tt,dst,l):
        return [waitfor(vmtags=[('x',tt,l)])]+[dsr('ds_read_b128',dst[s],xr[s&1],l*2048,src=(('x',tt,l),list(range(18*tt,18*tt+18))),private=True) for s in (2*l,2*l+1)]
    cq=[]; nm=[0]; nblk=[0]; pre_=[]
    def mm(m,extra=()):
        e(m); nm[0]+=1
        if pre_: e(pre_.pop(0))
        if extra: e(*extra); return
        k=0
        while cq and k<2 and cq[0][0]<=nm[0]-OPT['cage']: e(cq.pop(0)[1]); k+=1
        while ao and k<2: e(ao.pop(0)); k+=1
    def stats(tt,fr,l,nvm,lim=99):
        ms=[]
        for s_ in (2*l,2*l+1): ms+=[m16(SUM,ONE4,fr[s_],0 if s_==0 else SUM), m16(GR[tt],fr[s_],fr[s_],0 if s_==0 else GR[tt])]
        for h in range(2):
            o=[]
            if dq and h<nvm and nblk[0]<min(lim,OPT['nblk']):
                o=dq.pop(0)
                if o[-1].meta['tag'][0] not in 'xp': nblk[0]+=1
            mm(ms[2*h],[x for x in o if x.kind=='salu']); mm(ms[2*h+1],[x for x in o if x.kind!='salu'])
    nc=[0]
    def centre(src,dst,after=(),ex=((),())):
        d=DT[nc[0]%4]; nc[0]+=1
        while any(set(c.rd)&set(d.regs()) for _,c in cq): e(cq.pop(0)[1])
        for h in range(2):
            mm(m4(d[4*h:4*h+4],SELA,src[2*h:2*h+2],CM),ex[h])
            for z in range(2): cq.append((nm[0],valu('v_cvt_pk_bf16_f32',dst[2*h+z],d[4*h+2*z],d[4*h+2*z+1])))
        for x in after: cq.append((nm[0],x))
    def mean(tt):
        dst=vM[1] if tt else t
        e(valu('v_mul_f32',MEAN[tt],f32(1/576),SUM[0]), valu('v_cvt_pk_bf16_f32',dst,MEAN[tt],MEAN[tt]), valu('v_lshlrev_b32',dst,16,dst))
        for d in range(4): e(valu('v_xor_b32',CM[d],0x80000000,dst))
    for l in range(10):
        if l<9: e(*xread(0,R0,l))
        if l==0: e(*dq.pop(0))
        for _ in range(OPT['afill'] if l<9 else 999):
            if ao: e(ao.pop(0))
        if l>0:
            e(waitfor(lg=R0[2*l-2:2*l])); stats(0,R0,l-1,int(str(OPT.get('w1','x111111111'))[l]),len(pre0))
        if str(l) in str(OPT.get('tch','x0246')): e(*touch())
        if l==OPT['brl']: e(raw('s_branch L_main','misc'), label('L_exit'), raw('s_endpgm'), I('.p2align 12','comment'), label('L_main'))
        pst(f'x0 rd {l}')
    stamp('x0 read')
    e(valu('v_add_u32',xr[0],73728,xr[0]), valu('v_add_u32',xr[1],73728,xr[1]))
    e(*xread(1,X1,0)); mean(0); pst('stat0')
    for l in range(9):
        for s_ in (2*l,2*l+1): centre(R0[s_],X0[s_],to_acc(s_) if s_>=NV0 else ())
        if l<8: e(*xread(1,X1,l+1))
        if l==OPT['barl']: e(barrier())
        e(waitfor(lg=X1[2*l:2*l+2])); stats(1,X1,l,int(str(OPT.get('w2','x111122222'))[l+1]),99 if l>=OPT['barl'] else len(pre0))
        pst(f'x1 rd {l}')
    while cq: e(cq.pop(0)[1])
    mean(1)
    reads=[f(it) for g in groups[:4] for it,f in g.rd][:L]; nb_=(L+1)//2+1
    n0=OPT['n0']
    for s_ in range(n0):
        ex=((),())
        if s_==n0-nb_: ex=((waitfor(vmtags=[it.name for it in items if it.bar==-L]), barrier()),()); stamp('x1 read'); pst('bar1')
        if s_>n0-nb_: pre_[:]=[reads.pop(0) for z in range(2) if reads]
        centre(X1[s_],X1[s_],ex=ex)
    assert not reads
    while cq: e(cq.pop(0)[1])
    e(waitfor(lg=groups[0].fr)); pst('go')
    for s_ in range(n0,18): push('ctr',0,centre_ops(X1[s_],1))
    for s_ in range(NV0): push('ctr',0,to_acc(s_))
    for o in dq: push('dma',-1,o)
    mx_=-1
    for it in items:
        mx_=max(mx_,it.early)
        if it.early>-2000: push('dma',it.early,it.mk(it),mx_)
    st=lambda k:groups[marks[k]].start
    def low(gap,f,*a):
        with collect() as o: f(*a)
        push('low',gap,o,gap)
    low(st('c0')+200,var_ops,0); low(st('c0')+200,var_ops,1)
    TCH=[(int(g_),touch()) for g_ in str(OPT['tat']).split(',') if int(g_)>=0]
    low(st('c1'),addr_mid); low(st('c1'),addr_mid2); low(st('qkv'),addr_pfd)
    low(st('c2')+200,addr_att,WB); low(st('c2')+200,addr_lds,WB)
    pt=[int(x) for x in OPT['pft'].split(',')]
    for k,(g_,o) in enumerate(zip(pt,[pf_gu(1) if OPT['pfn']<2 else [],pf_q() if OPT['pfn']<3 else [],pf_gu(2),pf_gu(3),pf_gu(4),pf_d(0),pf_d(1),pf_d(2)])):
        if o and (k==7 or pt[k+1]!=g_): o[-1].meta['cost']+=OPT['pfx']
        push('ld',g_,o,g_)
    low(st('c3'),pf_o)
    b1=[b for b in bars if b>st('c3')+60][0]
    bar_extra[b1]=['qkvst']
    ar=[salu('s_and_b32',sJH,S(2),1), salu('s_lshl_b32',sJH,sJH,7), salu('s_mov_b32',sJ128,1), salu('s_cmp_lg_u32',sW,0), raw('s_cbranch_scc1 L_arr','misc'),
        raw(f's_atomic_add {sJ128}, {sDBG[0:2]}, {sJH}','misc',sJ128.regs()+sJH.regs()), label('L_arr')]
    for x in ar[3:6]: x.meta['glue']=True
    for g_,o in sorted(TCH+[(b1,ar)],key=lambda z:z[0]): push('arr',g_,o,g_)
    ARR.append(ar[5])
    if OPT['stop']!='down':
        d0=st('down')
        att_setup(ngaps,kv,WB); bar_extra[bars[-1]]=[kv[0].name]
        low(b1,addr_z); low(b1,addr_fin); low(max(d0+400,mx_+1),addr_op); extra_zero(ngaps)
        ld=bload(vPOLL,vZ,sDBG,0,flags='sc1')
        push('ld',d0+OPT['f1poll'],[ld],d0+OPT['f1poll'])
        with collect() as o: qk_loads(WB)
        w_=waitfor(vm=[vPOLL]); w_.meta['lag']=(ld,100)
        push('ld',d0+OPT['f1poll'],[w_]+spin('f1',ld,128,40)+o,d0+OPT['f1poll'])
        for it in kv[:3]+(wo_main+wo_x)[:OPT['wob']]:
            early=max(free[b] for b in it.blks())
            assert early>d0+300
            if early<LATE: push('dma',early,it.mk(it),ngaps-1); it.pushed=True
    for k_,t_ in (('c0','gate/up columns 0..63'),('c1','gate/up columns 64..127'),('qkv','q, k, v'),('c2','gate/up columns 128..191'),('c3','gate/up columns 192..255'),('half','gate/up last 32 columns'),('down','down projection')): PH[st(k_)]='---- '+t_
    emit_backbone(bars,{groups[v].start:k for k,v in marks.items() if k in ('c0','qkv','down')})
    qs=[i.meta['at'] for i in P if i.meta.get('tag')=='qkvst']; assert len(qs)==12 and max(qs)<b1-SIG,(qs,b1)
    print('arrival at',ARR[0].meta['at'],'poll at',ld.meta['at'])
    stamp('down end')
    if OPT['stop']=='down':
        for nm in ('epi','st','low','dma'):
            for af,o in fifo[nm]: e(o)
    else:
        attention(ngaps,kv,WB,wo_main+wo_x)
        stamp('att end')
        final(ngaps+1000,wo_main,wo_x)
        fallback(kv,WB)
    finish()

def sizes(lines):
    import subprocess, re
    uniq=sorted(set(lines))
    src='.amdgcn_target "amdgcn-amd-amdhsa--gfx950"\n.text\nLX:\n'+'\n'.join(re.sub(r'L_codeend-L_pc-4','0x12345',re.sub(r'(s_branch|s_cbranch\w+) \w+',r'\1 0',u)) for u in uniq)+'\n'
    open('_sz.s','w').write(src)
    r=subprocess.run(['llvm-mc','-triple=amdgcn-amd-amdhsa','-mcpu=gfx950','-show-encoding','_sz.s'],capture_output=True,text=True)
    assert r.returncode==0,r.stderr[:2000]
    enc=re.findall(r'encoding: \[([^\]]*)\]',r.stdout)
    assert len(enc)==len(uniq),(len(enc),len(uniq))
    return {u:len(x.split(',')) for u,x in zip(uniq,enc)}
PGAT=[]
def page_stubs(out):
    sz=sizes([i.text for i in out if i.kind not in ('label','comment')])
    k0=[k for k,i in enumerate(out) if i.text=='L_main:'][0]
    print('entry part bytes',sum(sz.get(i.text,0) for i in out[:k0]))
    res=out[:k0+1]; off=0; pg=0; prev=None; forced=False
    npg=4*ntouch[0]
    for k in range(k0+1,len(out)):
        i=out[k]
        if pg<npg and off>=4096*pg and not (prev is not None and prev.meta.get('glue')):
            good=prev is not None and prev.kind=='mfma' and i.kind in ('dsr','valu','trans')
            if good or off-4096*pg>=40 or pg==0 or forced:
                res+=[label(f'L_pg{pg}'), raw(f's_cbranch_execz L_tr{pg//4}')]; off+=4; PGAT.append((pg,i.meta.get('at'))); pg+=1
        res.append(i); off+=sz.get(i.text,0)
        if i.text=='.p2align 12': off=-(-off//4096)*4096; forced=True; continue
        if i.kind not in ('label','comment'): prev=i
    print('main part bytes',off,'pages touched',pg,'of',-(-off//4096))
    print('page starts',PGAT)
    while pg<npg: OUT.extend([f'L_pg{pg}:',f's_branch L_tr{pg//4}']); pg+=1
    return res
DOC=""";
; out = x + (MHA(LN(x)) @ wo) * silu(ReGLU(LN(x)))      one persistent launch, one workgroup (4 waves, 512 registers) per CU
; The instruction stream is written out in full by a generator script; every wave runs the same stream.
;
; 1. LayerNorm: 128 rows per workgroup, 32 per wave, kept in registers as MFMA B operands. Row sums and sums of squares come
;    from MFMAs; the rows are centred, 1/sd is applied later (q,k,v when they are written, down before the gate).
; 2. gate/up (288 columns of F per workgroup), q,k,v (108 columns) and down (K = those 288 columns): weights stream through an
;    LDS ring (LDS-DMA, transposing reads). h = relu(gate)*up stays in registers; q,k,v and the bf16 partial sums of down go
;    to d_ws with write-through stores.
; 3. attention: one head x 256 queries per workgroup. S^T = K Q^T with the softmax shift folded in as two extra K slots;
;    P = exp2(S^T); O^T and the row sums accumulate through the sparse MFMA, which picks the upper halves of the fp32 P.
;    Shift = (maximum over the first 64 keys) + 90. Softmax does not depend on the shift unless something over- or
;    underflows, so the result is checked (row sum in [2^-92, 2^126], O finite and above 2^-103); a wave that fails the check
;    repeats its rows with the true maximum over all keys (L_fb).
; Hand-offs between workgroups: stores are drained (vmcnt) before a counter is touched; the counters in d_ws are reset by this
; launch before the d_debug counter that everyone passes first. Every wait is bounded.
"""
def finish():
    cur[0]=10**7
    if OPT['stamps']:
        e(raw('s_waitcnt lgkmcnt(0)','misc'), waitfor(vmall=True))
        stamp('drained'); e(raw('s_waitcnt lgkmcnt(0)','misc'))
        n=nstamp[0]
        for k in range(max(0,n-7),n): e(raw(f'v_writelane_b32 v13, s{64+2*(k%7)}, {k}','misc'))
        if 'padto' in OPT:
            e(raw('s_nop 1','misc'), raw(f'v_readlane_b32 s46, v13, {OPT["padto"]}','misc'), raw('s_nop 3','misc'))
            e(salu('s_add_u32',sT0,sT0,10000), label('L_pad'), raw('s_memrealtime s[98:99]','misc'), raw('s_waitcnt lgkmcnt(0)','misc'), salu('s_sub_u32',sT1,S(98),sT0), salu('s_cmp_lt_i32',sT1,0), raw('s_cbranch_scc1 L_pad','misc'))
        else:
            e(salu('s_lshl_b32',sT0,S(2),2), salu('s_add_u32',sT0,sT0,sW), salu('s_lshl_b32',sT0,sT0,8), salu('s_add_u32',sT0,sT0,WS_STAMP))
            e(valu('v_lshlrev_b32',V(1),2,vL), bstore(vST,V(1),sWS,sT0))
    check_order(P); check_roles(P)
    out=finalize(P,verbose=OPT['v'],name='main')
    out=page_stubs(out+[raw('s_endpgm'),I('.p2align 12','comment')]+HOT)
    hdr=open('recurrent_scan__mha_block__glu_gated_reglu__prompt.s.ref').read().split('; Override launch')[0]
    txt=hdr+'; @launch grid=(256,1,1) block=(256,1,1) lds=163840\n'+DOC+'.amdgcn_target "amdgcn-amd-amdhsa--gfx950"\n.text\n'
    txt+=f'.globl {NAME}\n.p2align 12\n.p2align 8\n.type {NAME},@function\n{NAME}:\n'
    txt+='\n'.join(i.text for i in out)+'\n'+'\n'.join(OUT)+'\ns_endpgm\nL_codeend:\n'
    txt+=f'''.section .rodata,"a"
.p2align 6
.amdhsa_kernel {NAME}
  .amdhsa_next_free_vgpr 512
  .amdhsa_next_free_sgpr 102
  .amdhsa_accum_offset 256
  .amdhsa_group_segment_fixed_size 0
  .amdhsa_kernarg_size 80
  .amdhsa_user_sgpr_count 2
  .amdhsa_user_sgpr_kernarg_segment_ptr 1
  .amdhsa_system_sgpr_workgroup_id_x 1
  .amdhsa_float_denorm_mode_32 {OPT.get('dn',3)}
.end_amdhsa_kernel
'''
    open(sys.argv[1],'w').write(txt)
    print('bytes',len(txt))
main()
```

```python
import sys, struct, contextlib
from asmlib import *

OPT=dict(stop='', stamps=0, pf=1, dmagap=3, look=14, split=0, stper=1, qstper=1, xat=1, stgap=29, n0=14, v=1, forcefb=0, astgap=6, f2lag=10, f2poll=58, f2chk=64, ldgap=4, dbgout=0, wsp=48, nob1=1, aback=100, bat=0, bl=22, cs=256, es=64, ts=2304, os=264, xs=33, sl=640, par=0, cage=3, exp='v_exp_f32', aord=0, flip=1, snake=1, balone=2, nosc=1, lc1=36, lc2=64, vp=0, f2sl=2, pfe=0, aint='x', ke2=1, bint=4, apool=0, ap0=10, tatt=50, pfn=1, barl=4, brl=8, lgm=1, pfirst=0, rp=7, inl=0, pollat3=-1, mpoll='x', np2_=1, lgrp='6,3,3', ntail=3, ldel=0, warm=0, np2=1, xsh=9, gst_=4096, pfl='sc1', ffl='sc1', pevery=2, lookb=16, nlook=2, npc=2, pollat2=-1, frx=0, sprio=1, w3=1, snop=0, vmpat=0, hat=60, chk0=0, px=0, wcut='0,0,3,8,13,18,23,23', wob=23, ldmin=4, at0=290, atd=29, tat=-1, flagat=60, pollat=10, forceredo=0, lp1=20, lp2=70, nol=10, fsh=2, npoll=2, psleep=1, wopre=100, fillmm=20, rlead=100, rrate=120, ofl='', apre=90, x1n=2, afill=14, tlb=0, pfpos=6, pft='100,190,280,700,800,1060,1110,1112', swp=1, pfx=300, chain=6, qch=4, c0ch=3, touch=1, x0n=3, nblk=14, f1poll=40, qstgap=24, back=80, pfc=1, bartr=0)
for a in sys.argv[2:]:
    k,v=a.split('='); OPT[k]=int(v) if v.lstrip('-').isdigit() else v
NAME='recurrent_scan__mha_block__glu_gated_reglu__prompt_kernel'

WS_QKV=0; SL=OPT['sl']*128
CS=OPT['cs']*128; TS=OPT['ts']*128; ES=OPT['es']*128; assert CS>=32768 and ES>=8192 and TS>=8*CS+4*ES
WS_P=OPT['wsp']<<20; WS_PX=WS_P+8*CS; WS_O=0x2C80000 if OPT['wsp']==8 else 0x2800000; WS_OX=0x2C00000; OS=OPT['os']*128; XS=OPT['xs']*128; WS_F3=0x2EA0000; WS_R2=0x2EC0000; WS_F2=0x2ED0000; WS_STAMP=0x2F00000
assert OPT['wsp']!=8 or (WS_P+128*TS<=WS_OX and WS_OX+64*XS<=WS_O and WS_O+64*OS<=WS_F3)
OOB=0x80000000
LDS_OOB=0x30000
def f32(x): return struct.unpack('<I',struct.pack('<f',x))[0]
QSCALE=18**-0.5*1.4426950408889634
MARGIN=float(OPT.get('margin',90))

sX,sWQ,sWO,sWG,sWU,sWD,sOUT,sDBG,sWS=[S(4+4*n,4) for n in range(9)]
sW,sW1K,sI,sJ,sH,sIDX,sT0,sT1,sSO,sSO2=[S(40+n) for n in range(10)]
sLO,sHI,sONES,sW7K,sW5K=[S(50+n) for n in range(5)]
sSC=[S(55),S(56),S(57)]
sW18K,sJ1,sXC,sM8,sT2,sT3=[S(58+n) for n in range(6)]
sJ128,sJH=S(3),S(94); sSO3=S(95); sXP,sXX=S(92),S(93); sF3,sPV,sPV2=S(79),S(78),S(53)
sBD,sBL,sPC=S(96,2),S(98,2),S(100,2)
nstamp=[0]
def stamp(name,fine=False):
    if not OPT['stamps']: return
    if OPT.get('few') and name not in ('start','c0','down','down end','att end','drained'): return
    if ('gst' in OPT or 'ast' in OPT or 'pst' in OPT) and not fine and name!='start': return
    n=nstamp[0]; nstamp[0]+=1
    assert n<64
    r=64+2*(n%7)
    if n>=7: e(raw(f'v_writelane_b32 v13, s{r}, {n-7}','misc'))
    e(raw(f'{"s_memrealtime" if OPT["stamps"]==1 else "s_memtime"} s[{r}:{r+1}]','misc'))
    print('stamp',n,name)

vL=V(0)
vT=[V(1+n) for n in range(8)]
vR=[V(9),V(10)]
vM=[V(11),V(12)]
vPF=A(255)
vST=V(13)
vGF,vGH,vDF,vDH=[V(14+n) for n in range(4)]
vTR=[[V(18+3*q+n) for n in range(3)] for q in range(4)]
vQK=[V(30+n) for n in range(7)]
vQM=[V(37+n) for n in range(3)]; vQE=[V(40+n) for n in range(3)]
vSM,vSE0,vSE1,vSCX=[V(43+n) for n in range(4)]
vPS,vPX=V(47),V(48)
vF1,vONE=V(49),V(50)
vPG,vF3,vPOLL=V(51),V(52),V(53)
vX=[V(168+n) for n in range(4)]
XC1=V(56,72)
BANK=[V(128,64),V(192,64)]
XC0=A(0,72); HH=A(72,72); FR=A(144,64)
vKM,vKE=V(30),V(31); vVA=[V(32+n) for n in range(4)]
vKV,vWO,vWOE,vWX,vWXE=[V(36+n) for n in range(5)]
vPL,vPLX,vOL,vOLX,vOS,vOSX=[V(41+n) for n in range(6)]
vIDX,vF3L=V(54),V(55)
vXO,vXOX,vR2,vZ=V(11),V(12),V(9),V(10)
QE=V(14,2)
QM=[A(0,4),A(4,4)]
OO=[V(128,16),V(144,16)]
sOB=[S(80+2*n,2) for n in range(4)]
KM=[A(40+4*n,4) for n in range(3)]; KE=[A(52,2),A(56,2),A(54,2),A(58,2)]; vKE1=V(16)
VV=[A(8,8),A(16,8)]
XR=A(240,10)
PART=[A(60+4*n,4) for n in range(32)]
PARTX=[A(188+2*n,2) for n in range(10)]+[A(24+2*n,2) for n in range(6)]
SBB=[V(192,32),V(224,32),V(160,32)]

P=[]
cur=[-10**6,0]
sink=[None]
def setseq(i,gap=None):
    if 'seq' not in i.meta:
        cur[1]+=1; i.meta['seq']=(cur[0] if gap is None else gap,cur[1])
    return i
def e(*x):
    for i in x:
        if sink[0] is not None: sink[0].append(i)
        else: P.append(setseq(i)); i.meta['at']=cur[0]
@contextlib.contextmanager
def collect():
    o=[]; old=sink[0]; sink[0]=o
    yield o
    sink[0]=old
ARR=[]
fifo=dict(arr=[],dma=[],st=[],ld=[],ctr=[],epi=[],low=[])
def push(q,after,ops,logical=None):
    for o in ops: fifo[q].append((after,setseq(o,logical)))
def note(*t):
    for x in t: e(I('; '+x,'comment'))
def masked(dst,val,cmpop,a,b,tmp):
    e(valu(cmpop,'vcc',a,b), valu('v_mov_b32',tmp,OOB), valu('v_cndmask_b32',dst,tmp,val))

def prologue():
    e(raw(f's_load_dwordx2 {sX[0:2]}, s[0:1], 0','misc'), salu('s_cmp_ge_u32',S(2),256), raw('s_cbranch_scc1 L_exit','misc'))
    stamp('start')
    e(valu('v_lshrrev_b32',vT[0],6,V(0)), valu('v_and_b32',vL,63,V(0)))
    e(salu('s_and_b32',sXC,S(2),7), salu('s_lshr_b32',sIDX,S(2),3))
    pf_code()
    e(valu('v_readfirstlane_b32',sW,vT[0]))
    lg=OPT['lgm']
    e(salu('s_lshr_b32',sM8,sIDX,2), salu('s_lshr_b32',sI,sIDX,lg+1), salu('s_lshl_b32',sI,sI,lg), salu('s_and_b32',sT2,sXC,(1<<lg)-1), salu('s_add_u32',sI,sI,sT2))
    e(salu('s_mul_i32',sW18K,sW,18432))
    vx0,vx1,row,t=vX[0],vX[1],vT[2],vT[3]
    e(salu('s_lshl_b32',sT2,sI,2), salu('s_add_u32',sT2,sT2,sW), salu('s_lshl_b32',sT2,sT2,5))
    e(valu('v_lshrrev_b32',row,3,vL), valu('v_lshrrev_b32',t,4,vL), valu('v_and_b32',vx0,7,vL), valu('v_xor_b32',vx0,vx0,t),
      valu('v_xor_b32',vx1,4,vx0), valu('v_add_u32',t,sT2,row), valu('v_mul_u32_u24',t,1152,t),
      valu('v_lshl_add_u32',vX[2],vx0,4,t), valu('v_lshl_add_u32',vX[3],vx1,4,t), valu('v_add_u32',vX[3],8*1152-1024,vX[3]),
      valu('v_add_u32',vx0,1920,vX[2]), valu('v_add_u32',vx1,1920,vX[3]))
    e(salu('s_lshr_b32',sJ,sXC,lg), salu('s_lshl_b32',sJ,sJ,lg+1), salu('s_and_b32',sT3,sIDX,(2<<lg)-1), salu('s_add_u32',sJ,sJ,sT3), salu('s_and_b32',sJ1,sJ,1))
    e(salu('s_mul_i32',sSO2,sJ1,18432*OPT['swp']))
    if OPT['px']:
        n=OPT['px']
        e(salu('s_mul_i32',sT0,sT2,1152), salu('s_and_b32',sT1,sJ,288//n-1), salu('s_mul_i32',sT1,sT1,n*128), salu('s_add_u32',sT0,sT0,sT1), valu('v_lshl_add_u32',vT[4],vL,7,sT0))
    e(raw('s_waitcnt lgkmcnt(0)','misc'))
    if OPT['px']:
        n=OPT['px']
        m=(1<<min(n,36))-1
        e(raw(f's_mov_b32 exec_lo, {hex(m&0xffffffff)}','salu'), raw(f's_mov_b32 exec_hi, {m>>32}','salu'), gload(vPF,vT[4],sX[0:2],tag='pf'))
        if n==72: e(valu('v_add_u32',vT[4],36*128,vT[4]), gload(vPF,vT[4],sX[0:2],tag='pf'))
        e(raw('s_mov_b64 exec, -1','salu'))
    e(salu('s_sub_u32',sBL[0],sX[0],1920), salu('s_subb_u32',sBL[1],sX[1],0), salu('s_add_u32',sBD[0],sBL[0],sSO2), salu('s_addc_u32',sBD[1],sBL[1],0))
def prologue2():
    for srd,off in ((sWG,32),(sWU,40),(sWQ,8),(sWO,16),(sWD,48),(sOUT,56),(sDBG,64),(sWS,72)): e(raw(f's_load_dwordx2 {srd[0:2]}, s[0:1], {off}','misc'))
    if OPT['tlb']:
        e(salu('s_mov_b32',sT0,2<<20), salu('s_mov_b32',sT1,4<<20))
        for srd,n in ((sWG,3),(sWU,3),(sWQ,1),(sWD,3),(sWO,1),(sWS,1),(sOUT,2)):
            for k in range(n): e(raw(f's_load_dword s80, {srd[0:2]}, {["0",sT0,sT1][k]}','misc'))
    e(salu('s_sub_u32',sSO2,18432,sSO2), salu('s_add_u32',sBL[0],sBL[0],sSO2), salu('s_addc_u32',sBL[1],sBL[1],0))
    e(salu('s_mul_i32',sXP,sJ1,OPT['swp']*TS), salu('s_sub_u32',sXX,TS,sXP))
    e(salu('s_lshl_b32',sH,sXC,2), salu('s_and_b32',sT3,sIDX,3), salu('s_add_u32',sH,sH,sT3))
    e(salu('s_lshl_b32',sW1K,sW,10), salu('s_mul_i32',sW7K,sW,7168), salu('s_mul_i32',sW5K,sW,5120))
    for srd,n in ((sX,2048*1152),(sWQ,576*3456),(sWO,576*1152),(sWG,576*9216),(sWU,576*9216),(sWD,4608*1152),(sOUT,2048*1152),(sDBG,256),(sWS,0x10000000)):
        e(salu('s_mov_b32',srd[2],n), salu('s_mov_b32',srd[3],0x20000))
    e(salu('s_mov_b32',sLO,0x3f80), salu('s_mov_b32',sHI,0x3f800000), salu('s_mov_b32',sONES,0x3f803f80))
def pf_lane(t):
    if not OPT['pfe']: return vL
    e(salu('s_and_b32',sT1,sXC,1), salu('s_xor_b32',sT1,sT1,OPT['pfe']-1), salu('s_lshl_b32',sT1,sT1,6), valu('v_add_u32',t,sT1,vL)); return t
def addr_pf():
    row,t=vT[2],vT[3]; z=2 if OPT['pfe'] else 1; si=sM8 if OPT['pfe'] else sI
    ln=pf_lane(vT[4])
    e(salu('s_lshl_b32',sJ128,sJ1,7), salu('s_lshl_b32',sJH,sJ1,9), salu('s_sub_u32',sJH,512,sJH))
    e(salu('s_lshl_b32',sT0,si,2), salu('s_add_u32',sT0,sT0,sW), salu('s_mul_i32',sT0,sT0,z*9*9216), salu('s_mul_i32',sT1,sJ,576), salu('s_and_b32',sT1,sT1,-128), salu('s_add_u32',sT0,sT0,sT1),
      valu('v_mul_u32_u24',t,9216,vL), valu('v_add_u32',t,sT0,t))
    masked(vPG,t,'v_cmp_gt_u32',z*9,ln,row)
    u=row
    e(valu('v_mul_u32_u24',t,7282//z,vL), valu('v_lshrrev_b32',t,16,t), valu('v_mul_u32_u24',u,z*9,t), valu('v_sub_u32',u,vL,u), valu('v_mul_u32_u24',u,3456,u), valu('v_lshl_add_u32',u,t,7,u),
      salu('s_lshl_b32',sT0,si,2), salu('s_add_u32',sT0,sT0,sW), salu('s_mul_i32',sT0,sT0,z*9*3456), salu('s_mul_i32',sT1,sJ,216), salu('s_and_b32',sT1,sT1,-128), salu('s_add_u32',sT0,sT0,sT1),
      valu('v_add_u32',u,sT0,u))
    masked(vPOLL,u,'v_cmp_gt_u32',z*27,ln,t)
def pf_gu(c):
    if not OPT['pf']: return []
    return [cost(bload(vPF,vPG,s,sJ128 if c<4 else sJH,c*128 if c<4 else 0,tag='pf'),90) for s in (sWG,sWU)]
def pf_q(): return [cost(bload(vPF,vPOLL,sWQ,0,tag='pf'),270)] if OPT['pf'] else []
def addr_pfd():
    t,u=vPOLL,vT[7]; z=2 if OPT['pfe'] else 1; si=sM8 if OPT['pfe'] else sI
    ln=pf_lane(vT[4])
    e(salu('s_lshl_b32',sT0,si,2), salu('s_add_u32',sT0,sT0,sW), salu('s_mul_i32',sT0,sT0,z*81*64), salu('s_and_b32',sT0,sT0,-128), salu('s_mul_i32',sT1,sJ,288*1152), salu('s_add_u32',sT0,sT0,sT1),
      valu('v_mul_u32_u24',t,384,vL), valu('v_add_u32',t,sT0,t))
    masked(vPOLL,t,'v_cmp_gt_u32',14*z,ln,u)
def pf_d(k): return [cost(bload(vPF,vPOLL,sWD,0,k*128,tag='pf'),140)] if OPT['pf'] else []
def pf_o():
    if not OPT['pf']: return
    t,u=vT[4],vT[5]
    e(salu('s_lshl_b32',sT0,S(2),2), salu('s_add_u32',sT0,sT0,sW), salu('s_mul_i32',sT0,sT0,6*128), valu('v_lshl_add_u32',t,vL,7,sT0))
    masked(t,t,'v_cmp_gt_u32',6,vL,u)
    e(cost(bload(vPF,t,sWO,0,tag='pf'),60))
def cost(i,c): i.meta['cost']=c; return i
def xdma(tt,l):
    base=sBD if tt==0 else sBL
    o=[salu('s_add_u32','m0',sW18K,tt*73728+l*1920)] if l%2==0 else []
    for z in range(2): o.append(gdma(vX[2*(l&1)+z],base,(l&~1)*128+(2*(l&1)+z)*1024,tag=('x',tt,l),private=True))
    return o
SELA=A(208,2)
def sel_ops(m,g):
    return [valu('v_and_b32',m,1,vL), valu('v_lshlrev_b32',m,4,m), valu('v_lshlrev_b32',m,m,sLO), valu('v_bfe_u32',g,vL,1,1), valu('v_mul_lo_u32',g,g,m), valu('v_sub_u32',m,m,g),
      valu('v_accvgpr_write_b32',SELA[0],m), valu('v_accvgpr_write_b32',SELA[1],g)]
ntouch=[0]
def touch():
    if not OPT['touch']: return []
    k=ntouch[0]; ntouch[0]+=1
    o=[raw('s_mov_b64 exec, 0','salu')]
    for w in range(3): o+=[salu('s_cmp_eq_u32',sW,w), raw(f's_cbranch_scc1 L_pg{4*k+w}','misc')]
    o+=[raw(f's_branch L_pg{4*k+3}','misc'), label(f'L_tr{k}'), raw('s_mov_b64 exec, -1','salu')]
    for x in o[:-1]: x.meta['glue']=True
    return o

def lane_rp(rp,p,t):
    e(valu('v_lshrrev_b32',rp,3,vL), valu('v_and_b32',t,6,rp), valu('v_and_b32',p,7,vL), valu('v_xor_b32',p,p,t))
def addr_early():
    rp,p,t,u,kA=vT[2],vT[3],vT[4],vT[5],vT[6]
    lane_rp(rp,p,t)
    e(salu('s_and_b32',sT0,sW,1), salu('s_lshl_b32',sT0,sT0,4), salu('s_lshr_b32',sT1,sW,1), salu('s_lshl_b32',sT1,sT1,2), salu('s_add_u32',sT0,sT0,sT1))
    e(valu('v_and_b32',t,4,rp), valu('v_add_u32',kA,rp,t), valu('v_add_u32',kA,sT0,kA))
    e(salu('s_mul_i32',sT1,sJ,288), salu('s_lshl_b32',sT2,sJ1,5), salu('s_add_u32',sT2,sT2,sT1))
    e(salu('s_lshl_b32',sT3,sJ1,8), salu('s_sub_u32',sT3,256,sT3), salu('s_add_u32',sT3,sT3,sT1))
    e(salu('s_lshl_b32',sT0,sT2,1), valu('v_mul_u32_u24',t,9216,kA), valu('v_lshl_add_u32',t,p,4,t), valu('v_add_u32',vGF,sT0,t))
    e(salu('s_lshl_b32',sT0,sT3,1), valu('v_lshrrev_b32',t,2,p), valu('v_lshl_add_u32',t,t,5,kA), valu('v_mul_u32_u24',t,9216,t),
      valu('v_and_b32',u,3,p), valu('v_lshl_add_u32',t,u,4,t), valu('v_add_u32',vGH,sT0,t))
    e(salu('s_lshl_b32',sT0,sW,3), valu('v_add_u32',t,sT0,rp), valu('v_add_u32',u,sT2,t), valu('v_mul_u32_u24',u,1152,u), valu('v_lshl_add_u32',vDF,p,4,u),
      valu('v_add_u32',u,sT3,t), valu('v_mul_u32_u24',u,1152,u), valu('v_lshl_add_u32',vDH,p,4,u))
    g,r4,c,b=vT[2],vT[3],vT[6],vT[7]
    e(valu('v_bfe_u32',r4,vL,2,3), valu('v_and_b32',c,3,vL), valu('v_lshrrev_b32',g,5,vL),
      valu('v_lshlrev_b32',b,10,g), valu('v_lshl_add_u32',b,r4,7,b), valu('v_lshl_add_u32',b,c,3,b), valu('v_lshrrev_b32',t,1,r4))
    for q in range(4):
        e(valu('v_xor_b32',u,q,t), valu('v_lshl_add_u32',vTR[q][0],u,5,b), valu('v_add_u32',vTR[q][1],0x10000,vTR[q][0]), valu('v_add_u32',vTR[q][2],0x20000,vTR[q][0]))
def addr_qk():
    t=vT[4]
    e(salu('s_mul_i32',sT0,sJ,216), salu('s_and_b32',sT0,sT0,-16), salu('s_mul_i32',sT1,sW,32*3456), salu('s_add_u32',sT0,sT0,sT1))
    for q in range(7):
        pp,rr,k=vT[2],vT[3],vT[6]
        e(valu('v_add_u32',pp,64*q,vL), valu('v_mul_u32_u24',rr,4682,pp), valu('v_lshrrev_b32',rr,16,rr),
          valu('v_mul_u32_u24',t,14,rr), valu('v_sub_u32',pp,pp,t),
          valu('v_and_b32',t,12,rr), valu('v_and_b32',k,3,rr), valu('v_lshl_add_u32',k,t,1,k), valu('v_lshrrev_b32',t,4,rr), valu('v_lshl_add_u32',k,t,2,k),
          valu('v_mul_u32_u24',k,3456,k), valu('v_lshl_add_u32',k,pp,4,k), valu('v_add_u32',vQK[q],sT0,k))
        if q%4: e(valu('v_subrev_u32',vQK[q],1024*(q%4),vQK[q]))
def extpos(dst,key,t):
    e(valu('v_and_b32',dst,7,key), valu('v_bfe_u32',t,key,4,1), valu('v_lshl_add_u32',dst,t,3,dst),
      valu('v_bfe_u32',t,key,3,1), valu('v_xor_b32',t,1,t), valu('v_lshl_add_u32',dst,t,4,dst))
def addr_mid():
    t,u,c=vT[4],vT[5],vT[6]
    e(valu('v_and_b32',c,3,vL), salu('s_lshl_b32',sT0,sJ1,3), valu('v_lshrrev_b32',t,2,vL), valu('v_mul_u32_u24',t,224,t), valu('v_add_u32',t,sT0,t),
      valu('v_lshl_add_u32',vQM[0],c,3,t), valu('v_mul_u32_u24',u,72,c), valu('v_add3_u32',vQE[0],t,u,32))
    for n in (1,2): e(valu('v_add_u32',vQM[n],n*0x10000,vQM[0]), valu('v_add_u32',vQE[n],n*0x10000,vQE[0]))
def grp_ops(d,t):
    if not OPT['par']: return [salu('s_lshl_b32',d,sXC,2), salu('s_lshr_b32',t,sIDX,3), salu('s_add_u32',d,d,t)]
    return [salu('s_and_b32',d,sXC,6), salu('s_lshr_b32',t,sIDX,4), salu('s_add_u32',d,d,t), salu('s_lshl_b32',d,d,1), salu('s_and_b32',t,sXC,1), salu('s_xor_b32',t,t,OPT['par']-1), salu('s_add_u32',d,d,t),
            salu('s_lshl_b32',d,d,1), salu('s_bfe_u32',t,sIDX,0x10003), salu('s_add_u32',d,d,t)]
def addr_mid2():
    t,u,key,hf=vT[4],vT[5],vT[2],vT[3]
    e(salu('s_lshl_b32',sT0,sI,2), salu('s_add_u32',sT0,sT0,sW), salu('s_mul_i32',sT0,sT0,1280), salu('s_mul_i32',sT1,sJ,6*SL), salu('s_add_u32',sT0,sT0,sT1))
    e(salu('s_mul_i32',sT1,sJ1,16*OPT['swp']), valu('v_xor_b32',u,sT1,vL), valu('v_and_b32',key,31,u), valu('v_lshrrev_b32',hf,5,vL), valu('v_lshlrev_b32',t,2,hf), valu('v_xor_b32',t,t,u), valu('v_lshlrev_b32',t,4,t), valu('v_add_u32',vSM,sT0,t))
    extpos(u,key,t)
    e(valu('v_lshlrev_b32',u,3,u), valu('v_add_u32',u,sT0,u), valu('v_add_u32',u,1024,u), valu('v_mul_u32_u24',t,4*SL,hf), valu('v_add_u32',vSE0,u,t),
      valu('v_lshl_add_u32',vSE1,hf,31,u))
    e(salu('s_mul_i32',sT0,sJ,6), valu('v_lshrrev_b32',t,4,vL), valu('v_lshl_add_u32',t,t,1,sT0), valu('v_mov_b32',u,f32(QSCALE)), valu('v_cmp_gt_u32','vcc',32,t), valu('v_cndmask_b32',vSCX,1.0,u))
    for p_ in range(3): e(valu('v_readlane_b32',sSC[p_],vSCX,16*p_))
    e(salu('s_lshl_b32',sT0,sI,2), salu('s_add_u32',sT0,sT0,sW), salu('s_mul_i32',sT2,sT0,2*TS), salu('s_lshl_b32',sT1,sJ,10), salu('s_add_u32',sT1,sT1,sT2),
      valu('v_lshl_add_u32',vPS,vL,4,sT1),
      salu('s_lshl_b32',sT1,sJ,9), salu('s_add_u32',sT1,sT1,sT2), valu('v_lshl_add_u32',vPX,vL,3,sT1))
    e(salu('s_lshl_b32',sT1,sT0,11), salu('s_add_u32',sT1,sT1,WS_F2), valu('v_lshl_add_u32',t,vL,9,sT1), salu('s_and_b32',sT3,sJ,3), salu('s_lshl_b32',sT3,sT3,9), salu('s_add_u32',sT3,sT3,sT1))
    masked(vF1,t,'v_cmp_gt_u32',4,vL,u)
    e(salu('s_lshl_b32',sT1,sM8,2), salu('s_add_u32',sT1,sT1,sW), salu('s_lshl_b32',sT1,sT1,12), salu('s_add_u32',sT1,sT1,WS_F3), valu('v_lshl_add_u32',t,vL,9,sT1))
    masked(vF3,t,'v_cmp_gt_u32',8,vL,u)
    e(*grp_ops(sT1,sT2), salu('s_lshl_b32',sT1,sT1,1), salu('s_and_b32',sT2,sIDX,1), salu('s_add_u32',sT1,sT1,sT2),
      salu('s_lshl_b32',sT1,sT1,2), salu('s_add_u32',sT1,sT1,sW), salu('s_lshl_b32',sT1,sT1,9), salu('s_add_u32',sF3,sT1,WS_F3))
    e(raw(f'v_writelane_b32 {u}, {sT3}, 0','valu',u.regs()+sT3.regs(),u.regs()), raw(f'v_writelane_b32 {u}, {sF3}, 1','valu',u.regs()+sF3.regs(),u.regs()),
      valu('v_sub_u32',t,1,vL), valu('v_lshlrev_b32',t,4,t), cost(bstore(t,u,sWS,0,flags='sc1',tag='qkvst'),30))
    e(valu('v_and_b32',key,16,vL), valu('v_cmp_eq_u32','vcc',0,key), valu('v_cndmask_b32',hf,vR[1],vR[0]), valu('v_mul_f32',hf,hf,hf),
      salu('s_lshl_b32',sT0,sT0,7), salu('s_add_u32',sT0,sT0,WS_R2), valu('v_lshl_add_u32',key,vL,2,sT0), salu('s_lshl_b32',sT1,sJ,6), valu('v_add_u32',t,sT1,vL))
    masked(key,key,'v_cmp_gt_u32',32,t,u)
    e(bstore(hf,key,sWS,0,flags='sc1',tag='qkvst'))
def pf_code():
    if not OPT['pfc']: return
    t=vT[4]; a=V(6,2)
    e(raw('s_getpc_b64 s[100:101]','salu',[],['s100','s101']), label('L_pc'),
      salu('s_lshl_b32',sT0,sIDX,2), valu('v_add_u32',t,sT0,vT[0]), valu('v_lshl_add_u32',t,vL,7,t), valu('v_lshlrev_b32',t,7,t),
      raw(f'v_min_u32 {t}, L_codeend-L_pc-4, {t}','valu',t.regs(),t.regs()),
      raw(f'v_add_co_u32 {a[0]}, vcc, {sPC[0]}, {t}','valu',t.regs()+['s100'],a[0].regs()+['vcc']), valu('v_mov_b32',a[1],sPC[1]), raw('s_mov_b64 exec, 63','salu'),
      raw(f'v_addc_co_u32 {a[1]}, vcc, 0, {a[1]}, vcc','valu',a[1].regs()+['vcc'],a[1].regs()+['vcc']),
      I(f'global_load_dword {vPF}, {a}, off','vld',a.regs(),vPF.regs(),tag='pf'), raw('s_mov_b64 exec, -1','salu'))

GR=[V(38,4),V(42,4)]; MEAN=[V(46),V(47)]
def var_ops(tt):
    d=GR[tt]; t=vT[4]; b=d[0]
    e(valu('v_and_b32',t,1,vL), valu('v_cmp_eq_u32','vcc',0,t), valu('v_and_b32',t,2,vL), valu('v_cndmask_b32',d[0],d[1],d[0]), valu('v_cndmask_b32',d[2],d[3],d[2]),
      valu('v_cmp_eq_u32','vcc',0,t), valu('v_bfe_u32',t,vL,2,2), valu('v_cndmask_b32',d[0],d[2],d[0]), valu('v_lshrrev_b32',d[1],4,vL), valu('v_cmp_eq_u32','vcc',t,d[1]),
      valu('v_cndmask_b32',b,0,b))
    for op in ('v_permlane16_swap_b32','v_permlane32_swap_b32'): e(valu('v_mov_b32',d[1],b), swap(op,b,d[1]), valu('v_add_f32',b,b,d[1]))
    e(valu('v_mul_f32',b,f32(1/576),b), valu('v_fma_f32',b,'-'+str(MEAN[tt]),MEAN[tt],b), valu('v_max_f32',b,0,b), valu('v_cvt_pk_bf16_f32',b,b,b), valu('v_lshlrev_b32',b,16,b),
      valu('v_add_f32',b,f32(1e-5),b), valu('v_cvt_pk_bf16_f32',b,b,b), valu('v_lshlrev_b32',b,16,b),
      valu('v_sqrt_f32',b,b), valu('v_cvt_pk_bf16_f32',b,b,b), valu('v_lshlrev_b32',b,16,b), valu('v_rcp_f32',vR[tt],b))
def centre_ops(f,tt):
    o=[]; t=V(252)
    for d in range(4):
        x=f[d]
        o+=[valu('v_lshlrev_b32',t,16,x), valu('v_and_b32',x,0xffff0000,x), valu('v_sub_f32',t,t,vM[tt]), valu('v_sub_f32',x,x,vM[tt]), valu('v_cvt_pk_bf16_f32',x,t,x)]
    return o
def to_acc(s): return [valu('v_accvgpr_write_b32',XC0[4*s+d],X0[s][d]) for d in range(4)]

class Item:
    def __init__(s,name,n,mk): s.name=name; s.n=n; s.mk=mk; s.addr=None; s.first=None; s.last=None; s.pushed=False
    def blks(s): return list(range(s.addr//4096,s.addr//4096+s.n))
def blk_item(name,voff,srd,soff,buf=False,c=80):
    def mk(it):
        o=[salu('s_add_u32','m0',sW1K,it.addr)]
        if buf: return o+[salu('s_mov_b32',sSO,soff), cost(dma(voff,srd,sSO,tag=it.name,dst=it.blks()),c)]
        return o+base_add(sBD,srd,soff)+[cost(gdma(voff,sBD,tag=it.name,dst=it.blks()),c)]
    return Item(name,1,mk)
def qkv_item(a):
    def mk(it):
        o=[salu('s_mov_b32',sSO,a*128*3456)] if a==4 else base_add(sBD,sWQ,a*128*3456)
        for q in range(7):
            if q%4==0: o.append(salu('s_add_u32','m0',sW7K,it.addr+q*1024))
            if a==4: o.append(dma(vQK[q],sWQ,sSO,(q%4)*1024,tag=it.name,dst=it.blks()))
            else: o.append(cost(gdma(vQK[q],sBD,(q%4)*1024,tag=it.name,dst=it.blks()),120))
        return o
    return Item(('q',a),7,mk)
def kv_item(sg):
    def mk(it):
        o=[salu('s_add_u32','m0',sW5K,it.addr+2048)]+base_add(sBD,sWS,WS_QKV+sg*10240+2048)
        for q in range(5):
            o.append(gdma(vKV,sBD,q*1024-2048,flags='sc1',tag=it.name,dst=it.blks())); o[-1].rd.append('ok_f1'); o[-1].meta['bat']=q>0
        return o
    return Item(('kv',sg),5,mk)

class Group:
    def __init__(s): s.m=[]; s.rd=[]; s.bar=False; s.fr=[]
frp=[0]
def newfrag():
    pl=[FR[4*n:4*n+4] for n in range(16)]+[A(216+4*n,4) for n in range(OPT['frx'])]
    f=pl[frp[0]]; frp[0]=(frp[0]+1)%len(pl); return f
def tr_read(f,u,it,seg):
    return dsr('ds_read_b64_tr_b16',f[2*u:2*u+2],vTR[seg][it.addr>>16],(it.addr&0xffff)+u*2048,src=(it.name,it.blks()))
def xc(tt,s): return (XC0 if tt==0 else XC1)[4*s:4*s+4]
def hfrag(k,tt): return HH[8*k+4*tt:8*k+4*tt+4]

items=[]; groups=[]; events=[]
def chain_mm(g,ks,accs,bfun):
    t0=len(groups)&1 if OPT['snake'] else 0
    for z in range(2):
        tt=t0^z; o=list(zip(ks,g.fr))
        if z and OPT['snake']: o.reverse()
        for n,(k,f) in enumerate(o): g.m.append(m16(accs[tt],f,bfun(k,tt),0 if (ks[0]==0 and n==0) else accs[tt]))
def mm_group(srcs,accs,bfun,bar=False):
    g=Group(); g.bar=bar
    for it,seg,k in srcs:
        f=newfrag(); g.fr.append(f)
        for u in range(2): g.rd.append((it,lambda it,f=f,u=u,seg=seg: tr_read(f,u,it,seg)))
    chain_mm(g,[k for _,_,k in srcs],accs,bfun)
    groups.append(g); return len(groups)-1

def h_epilogue(bank,q,kout,half):
    gt=[bank[16*q+4*tt:16*q+4*tt+4] for tt in range(2)]; up=[bank[16*q+8+4*tt:16*q+12+4*tt] for tt in range(2)]
    o=[]
    for tt in range(2):
        for r in range(4): o.append(valu('v_max_f32',gt[tt][r],0,gt[tt][r]))
    for tt in range(2):
        for r in range(4): o.append(valu('v_mul_f32',up[tt][r],gt[tt][r],up[tt][r]))
        for d in range(2): o.append(valu('v_cvt_pk_bf16_f32',gt[tt][d],up[tt][2*d],up[tt][2*d+1]))
        for d in range(2): o.append(valu('v_accvgpr_write_b32',hfrag(kout,tt)[2*half+d],gt[tt][d]))
    return o
NV0=15
X0=[V(192+4*s,4) for s in range(NV0)]+[V(128+4*s,4) for s in range(18-NV0)]
def build_chunk(c,bank):
    xf=lambda k,tt: X0[k] if (c==0 and tt==0 and k<NV0) else xc(tt,k)
    cuts=list(range(0,19,OPT['chain']))
    if c==0: cuts=list(range(0,19,3)) if OPT['c0ch']==3 else [0,3,6,12,15,18]
    for st,(k0,k1) in enumerate(zip(cuts,cuts[1:])):
        G=[blk_item(('g',c,k),vGF,sWG,k*32*9216+c*128) for k in range(k0,k1)]
        U=[blk_item(('u',c,k),vGF,sWU,k*32*9216+c*128) for k in range(k0,k1)]
        flip=OPT['flip'] and (len(cuts)-2-st)%2==1
        items.extend(U+G if flip else G+U)
        for z,(M,o) in enumerate(((U,8),(G,0)) if flip else ((G,0),(U,8))):
            for n,q in enumerate(range(3,-1,-1) if flip else range(4)):
                b=(n==0) if z==0 else (n==0 and ((k1-k0>3 and str(c) not in str(OPT['aint'])) or OPT['bartr'] or (c==0 and st<OPT.get('bar0',2))))
                gi=mm_group([(M[k-k0],q,k) for k in range(k0,k1)],[bank[16*q+o+4*tt:16*q+o+4+4*tt] for tt in range(2)],xf,bar=b)
                if k1==18 and z: events.append((gi,h_epilogue(bank,q,2*c+(q>>1),q&1)))
def build_half(bank):
    for st in range(3):
        G=[blk_item(('gh',3*st+n),vGH,sWG,(3*st+n)*64*9216,c=150) for n in range(3)]
        U=[blk_item(('uh',3*st+n),vGH,sWU,(3*st+n)*64*9216,c=150) for n in range(3)]
        items.extend(G+U)
        seq=[(G,0,0),(G,0,1),(U,8,0),(U,8,1)] if st<2 else [(G,0,0),(U,8,0),(G,0,1),(U,8,1)]
        for z,(M,o,q) in enumerate(seq):
            ch=min(6,OPT['chain'])
            for hh in range(6//ch):
                ks=[6*st+ch*hh+n for n in range(ch)]
                gi=mm_group([(M[(k-6*st)>>1],2*(k&1)+q,k) for k in ks],[bank[16*q+o+4*tt:16*q+o+4+4*tt] for tt in range(2)],lambda k,tt:xc(tt,k),bar=(hh==0 and (z==0 or (z==2 and st<2 and OPT['bartr']))))
            if st==2 and o==8: events.append((gi,h_epilogue(bank,q,8,q)))
def build_qkv(bank):
    for a in range(5):
        it=qkv_item(a); items.append(it)
        first=True
        qc=OPT['qch'] if a<4 else 2
        for k0 in range(0,4 if a<4 else 2,qc):
            for t in (range(6,-1,-1) if OPT['flip'] and a%2 else range(7)):
                g=Group(); g.bar=first; first=False
                for kk in range(k0,k0+qc):
                    f=newfrag(); g.fr.append(f)
                    for u in range(2):
                        def rd(it,f=f,u=u,kk=kk,t=t):
                            ad=it.addr+kk*7168+u*3584+(0 if t==6 else 72*(t>>1)+40*(t&1))
                            return dsr('ds_read_b64_tr_b16',f[2*u:2*u+2],(vQE if t==6 else vQM)[ad>>16],ad&0xffff,src=(it.name,it.blks()))
                        g.rd.append((it,rd))
                chain_mm(g,[4*a+kk for kk in range(k0,k0+qc)],[bank[8*t+4*tt:8*t+4*tt+4] for tt in range(2)],lambda k,tt:xc(tt,k))
                groups.append(g)
                if a==4: events.append((len(groups)-1,qkv_epilogue(bank,t)))
def st_pair(o,data,voff,soff,tag,x=None):
    a=salu('s_mov_b32',sSO2,soff) if x is None else salu('s_add_u32',sSO2,x,soff); b=bstore(data,voff,sWS,sSO2,flags='sc1',tag=tag)
    dep=[x for x in o if x.kind=='valu'][-1]
    a.meta['q']='st'; b.meta['q']='st'; b.meta['dep']=dep
    o+=[a,b]
def qkv_epilogue(bank,t):
    o=[]
    sc=[bank[56],bank[57]]
    if t==6: o+=[valu('v_mul_f32',sc[tt],vSCX,vR[tt]) for tt in range(2)]
    elif t%2==0: o+=[valu('v_mul_f32',sc[tt],sSC[t>>1],vR[tt]) for tt in range(2)]
    a=bank[8*t:8*t+8]
    for tt in range(2):
        for r in range(4): o.append(valu('v_mul_f32',a[4*tt+r],sc[tt],a[4*tt+r]))
    if t<6:
        o+=[valu('v_cvt_pk_bf16_f32',a[0],a[0],a[1]), valu('v_cvt_pk_bf16_f32',a[1],a[2],a[3]), valu('v_cvt_pk_bf16_f32',a[2],a[4],a[5]), valu('v_cvt_pk_bf16_f32',a[3],a[6],a[7]),
            swap('v_permlane16_swap_b32',a[0],a[2]), swap('v_permlane16_swap_b32',a[1],a[3])]
        st_pair(o,a[0:4],vSM,WS_QKV+t*SL,'qkvst')
    else:
        o+=[valu('v_cvt_pk_bf16_f32',a[0],a[0],a[1]), valu('v_cvt_pk_bf16_f32',a[2],a[2],a[3]), valu('v_cvt_pk_bf16_f32',a[4],a[4],a[5]), valu('v_cvt_pk_bf16_f32',a[6],a[6],a[7])]
        o+=[valu('v_mov_b32',a[n],sONES) for n in (1,3,5,7)]
        o+=[swap('v_permlane16_swap_b32',a[0],a[4]), swap('v_permlane16_swap_b32',a[2],a[6])]
        for n,(vo,sl) in enumerate(((vSE0,0),(vSE0,1),(vSE1,2),(vSE1,3))):
            st_pair(o,a[2*n:2*n+2],vo,WS_QKV+sl*SL,'qkvst')
    return o
pool=[0]
def build_down():
    ntr=0
    if OPT['chain']==3: seq=[(c,3*tr,3*tr+3) for c,tr in [(0,0),(0,1),(1,0),(1,1),(0,2),(1,2)]+[(c,tr) for c in range(2,9) for tr in range(3)]]
    else:
        seq=[(0,0,6),(1,0,6),(0,6,9),(1,6,9)]
        for c in range(2,9): seq+=[(c,0,9)] if OPT['chain']==9 and c<8 else ([(c,0,6),(c,6,9)] if c%2==0 else [(c,0,3),(c,3,9)])
    for c,k0,k1 in seq:
        acc=V(192 if c==0 else 128+32*((c+1)%2),32)
        tr=2 if k1==9 else 0
        if True:
            B=[blk_item(('d',c,k),vDF if k<8 else vDH,sWD,(k*32*1152 if k<8 else 0)+c*128) for k in range(k0,k1)]
            items.extend(B)
            for n,q in enumerate(range(3,-1,-1) if OPT['flip'] and k1<9 and c>1 else range(4)):
                gi=mm_group([(B[k-k0],q,k) for k in range(k0,k1)],[acc[16*tt+4*q:16*tt+4*q+4] for tt in range(2)],hfrag,bar=(n==0 and (ntr%OPT['bint']==0 or ntr==26 or (ntr>=OPT['bl'] and ntr%2==0) or k1-k0==9 or OPT['bartr'])))
                if tr==2 and q%2==1:
                    o=[]
                    for tt in range(2):
                        a=acc[16*tt+4*(q-1):16*tt+4*(q-1)+8]
                        pl=[XC1[4*n:4*n+4] for n in range(18)]; pa=([A(212+4*n,4) for n in range(7)]+[A(24+4*n,4) for n in range(4)]+[A(60+4*n,4) for n in range(3)])[:OPT['apool']]
                        n=pool[0]; pool[0]+=1; a0_=OPT['ap0']
                        if a0_<=n<a0_+len(pa):
                            d4=pa[n-a0_]
                            o+=[valu('v_cvt_pk_bf16_f32',a[d],a[2*d],a[2*d+1]) for d in range(4)]+[valu('v_accvgpr_write_b32',d4[d],a[d]) for d in range(4)]
                        else:
                            d4=pl[(n if n<a0_ else n-len(pa))%18]
                            o+=[valu('v_cvt_pk_bf16_f32',d4[d],a[2*d],a[2*d+1]) for d in range(4)]
                        if c<8: st_pair(o,d4,vPS,WS_P+c*CS+(q>>1)*16384,'pst',sXX if tt else sXP)
                        else:
                            for z in range(2): st_pair(o,d4[2*z:2*z+2],vPX,WS_PX+(q-1+z)*ES,'pst',sXX if tt else sXP)
                    events.append((gi,o))
            ntr+=(k1-k0)//3

marks={}
def build_ffn():
    marks['c0']=len(groups); build_chunk(0,BANK[0])
    marks['c1']=len(groups); build_chunk(1,BANK[1])
    marks['qkv']=len(groups); build_qkv(BANK[0])
    marks['c2']=len(groups); build_chunk(2,BANK[1])
    marks['c3']=len(groups); build_chunk(3,BANK[0])
    marks['half']=len(groups); build_half(V(224,32))
    marks['down']=len(groups); build_down()

NB=39 if OPT['split'] else 40; LATE=10**9
SIG=13 if OPT['split'] else 1
vCA,vCV=V(54),vT[7]
def plan():
    L=OPT['look']
    n=0; bars=[]
    for g in groups:
        g.start=n
        if g.bar: bars.append(n-L-(1 if n and OPT['balone']==2 else 0))
        for k,(it,_) in enumerate(g.rd):
            if it.first is None: it.first=n+k-L
            it.last=n-1+(0 if len(g.fr)<=3 else ((k//4)*2 if not OPT['w3'] else (k//6)*3))
        n+=len(g.m)
    free={b:(-3000 if b>=36 else (-2000 if b<18 else -L)) for b in range(NB)}
    ptr=36
    for it in items:
        if ptr+it.n>NB: ptr=0
        it.addr=ptr*4096
        it.early=max(free[b] for b in it.blks())
        assert it.early<LATE
        it.bar=max(b for b in bars if b<=it.first)
        nxt=[b for b in bars if b-SIG>=it.last]
        for b in it.blks(): free[b]=nxt[0] if nxt else LATE
        ptr=(ptr+it.n)%NB
    return n,bars,free

VM=('dma','vld','vst')
SC=('salu','waitfor','misc','label')
lastvm=dict(any=-100,st=-100)
def head(nm,gap):
    q=fifo[nm]
    if not q or q[0][0]>gap: return None
    x=q[0][1]
    if 'lag' in x.meta and x.meta['lag'][0].meta.get('at',LATE)+x.meta['lag'][1]>gap: return None
    sq=x.meta['seq']; rd=set(x.rd)-{'carry'}; wr=set(x.wr)-{'carry'}
    for n2,q2 in fifo.items():
        if n2==nm: continue
        for _,y in q2:
            if y.meta['seq']>sq: break
            if rd&set(y.wr) or wr&set(y.rd) or wr&set(y.wr): return None
    return x
pipe=[0,16]
def vm_ready(gap,mingap,stgap,order=('st','ld','low','dma')):
    if gap-lastvm['any']<mingap: return None
    if pipe[0]-gap*pipe[1]>OPT['back']: return None
    for nm in order:
        x=head(nm,gap)
        if x is None or x.kind not in VM: continue
        if nm=='st':
            d=x.meta.get('dep')
            if gap-lastvm['st']<stgap or (d is not None and d.meta.get('at',LATE)>gap-2): continue
        return nm
    return None
def take(nm,gap):
    x=fifo[nm].pop(0)[1]
    if x.kind in VM:
        lastvm['any']=gap
        pipe[0]=max(pipe[0],gap*pipe[1])+x.meta.get('cost',80)
        if nm=='st': lastvm['st']=gap
    e(x)
    nx=[y for _,y in fifo[nm][:6] if 'vcc' in y.rd or 'vcc' in y.wr]
    if nx and 'vcc' in nx[0].rd: vcc_open[0]=nm
    elif vcc_open[0]==nm: vcc_open[0]=None
    while x.meta.get('glue'):
        x=fifo[nm].pop(0)[1]; e(x)
    return x
vcc_lock=[LATE]; vcc_open=[None]
def pull(gap,scalar):
    order=('arr','st','ld','dma','ctr','epi','low') if scalar and OPT['sprio'] else ('arr','dma','st','ctr','epi','ld','low')
    if scalar:
        for nm in order:
            x=head(nm,gap)
            if x is not None and 'carry' in x.rd: take(nm,gap); return True
    elif vcc_open[0]: order=(vcc_open[0],)+order
    for nm in order:
        x=head(nm,gap)
        if x is None or x.kind in VM: continue
        if (x.kind in SC)!=scalar: continue
        if 'vcc' in x.wr and not x.meta.get('glue') and vcc_lock[0]<OPT.get('vlock',22): continue
        take(nm,gap); return True
    return False

bar_extra={}; PH={}
def emit_backbone(bars,gapstamps):
    L=OPT['look']
    reads=[(it,f,g.start-0.5) for g in groups for it,f in g.rd]
    ev={}
    for gi,ops in events: ev.setdefault(gi,[]).append(ops)
    bar_items={}
    for it in items: bar_items.setdefault(it.bar,[]).append(it.name)
    barset=set(bars); issue={}
    fixed={}; fixT={}
    nb=len([b for b in bars if b>=SIG and OPT['split']]); kb=0
    for gi,g in enumerate(groups):
        for k in range(len(g.m)):
            gap=g.start+k; fx=[]
            w_lg=list(groups[gi+1].fr) if (k==len(g.m)-1 and gi+1<len(groups)) else []
            if len(w_lg)>3: w_lg=w_lg[:3 if OPT['w3'] else 2]
            if len(g.fr)>3 and not OPT['w3'] and k in (1,3): w_lg=g.fr[k+1:k+3]
            if len(g.fr)>3 and OPT['w3'] and k in (2,5) and k+1<len(g.fr): w_lg=g.fr[k+1:k+4]
            if len(g.fr)>6 and k in (9,13): w_lg=groups[gi+1].fr[:1+(k-9)//2] if gi+1<len(groups) else []
            w_vm=[]
            for d in (1,SIG):
                b=gap+d
                if b in barset and d==(SIG if b>=SIG else 1): w_vm=bar_items.get(b,[])+bar_extra.get(b,[])
            if OPT['split']:
                if gap+SIG in barset: x=dsw('ds_sub_u32',vCA,vONE); x.meta['signal']=True; fixT[gap]=x
                if gap+7 in barset and gap+7>=SIG: assert gap not in fixT; fixT[gap]=dsr('ds_read_b32',vCV,vCA)
                if gap+1 in barset and gap+1>=SIG:
                    kb+=1; assert gap not in fixT
                    fixT[gap]=valu('v_cmp_lt_u32','vcc',4*(nb-kb),vCV); w_lg.append(vCV)
                    OUT.extend([f'L_sb{kb}:', f'ds_read_b32 {vCV}, {vCA}', 's_waitcnt lgkmcnt(0)', fixT[gap].text, 's_nop 0', f's_cbranch_vccnz L_sb{kb}', f's_branch L_sr{kb}'])
            if gap in barset:
                if OPT['split'] and gap>=SIG: fx.append([raw(f's_cbranch_vccnz L_sb{kb}','misc',['vcc'],check=True,glue=True), label(f'L_sr{kb}')])
                else: fx.append([barrier()])
            if w_lg or w_vm: fx.append([waitfor(lg=w_lg,vmtags=w_vm)])
            fixed[gap]=fx
    def stgap_at(gap):
        dn=gap>=groups[marks['down']].start
        iv=len([b for b in bars if b<=gap])
        if iv%OPT['stper' if dn else 'qstper']: return LATE
        if any(-1<=g-gap<OPT['atd']*3//4 for g in extra): return LATE
        return OPT['stgap' if dn else 'qstgap']
    ri=[L]
    def rd():
        it,f,lg=reads[ri[0]]; ri[0]+=1; e(setseq(f(it),lg))
    planned=None
    for gi,g in enumerate(groups):
        for k,m in enumerate(g.m):
            gap=g.start+k
            if gap-1 in extra:
                cur[0]=gap-0.7
                e(*extra[gap-1])
                x=head('st',gap); n=extra[gap-1][-1].passes-3
                if x is not None and x.kind=='vst' and x.meta['dep'].meta.get('at',LATE)<gap-2: take('st',gap); n=0
                for _ in range(n): pull(gap-1,False)
            cur[0]=gap
            e(m)
            if gap in gapstamps: stamp(gapstamps[gap])
            if gap in PH: note(PH[gap])
            if 'gst' in OPT and gap in range(*map(int,OPT['gst'].split(':'))): stamp(f'gap{gap}',True)
            if planned:
                x=take(planned,gap); planned=None; assert x.kind in VM
                if x.kind=='dma': issue[x.meta['tag']]=gap
                continue
            fx=fixed[gap]
            nosc=OPT['nosc'] and P[-2].kind=='valu' and any(r=='vcc' or r[0]=='s' for r in P[-2].wr)
            if fx: e(*fx.pop(0))
            elif not nosc and not pull(gap,True) and OPT['snop']: e(raw('s_nop 0','misc'))
            if gap in barset and OPT['balone']==3 and not fx: continue
            if ri[0]<len(reads) and ri[0]<=gap+L: rd()
            elif ri[0]>=len(reads) and tail_reads: e(tail_reads.pop(0))
            used=False
            if gap in barset and OPT['balone'] and not fx: continue
            if gap+1 in barset and OPT['balone']==2 and not fx and len(fixed[gap+1])==1 and ri[0]<len(reads) and reads[ri[0]][0].bar<=gap: rd(); continue
            if fx: e(*fx.pop(0)); used=True
            if gap in fixT:
                e(fixT[gap]); used=True
                if fixT[gap].kind=='valu': continue
            lag=ri[0]<len(reads) and ri[0]<=gap+L
            if lag:
                if not used: rd()
                continue
            if gap+1 in fixed and not fixed[gap+1] and gap+1 not in fixT: planned=vm_ready(gap+1,OPT['dmagap'],stgap_at(gap+1))
            if used: continue
            if planned:
                if OPT['vmpat']==0 and ri[0]<len(reads) and reads[ri[0]][0].bar<=gap: rd()
                if OPT['vmpat']==2: pull(gap,False)
                continue
            vcc_lock[0]=min([b for b in bars if b>gap]+[LATE])-gap if OPT['split'] else LATE
            if not pull(gap,False) and not nosc: pull(gap,True)
        for ops in ev.get(gi,[]):
            for o in ops: push(o.meta.get('q','epi'),gap+4,[o])
    vcc_lock[0]=LATE
    sl=[(it.bar-SIG-issue[it.name],it.name) for it in items if it.name in issue]
    sl.sort(); print('min dma slack (gaps):',sl[:6])
    print('left after backbone:',{k:len(v) for k,v in fifo.items()})

OUT=[]
HOT=[]
def spin(name,load,expect,sleep=8,cmp='v_cmp_gt_u32',pre=[]):
    a=valu(cmp,'vcc',expect,vPOLL); a.meta['glue']=True
    b=raw(f's_cbranch_vccnz L_spin_{name}','misc',['vcc']); b.meta['glue']=True
    c=label(f'L_back_{name}')
    cnt=vT[6]
    OUT.extend([f'L_spin_{name}:', f'v_mov_b32 {cnt}, 0x40000', f'L_spinl_{name}:', *pre, load.text, 's_waitcnt vmcnt(0)', f'{cmp} vcc, {fmt(expect)}, {vPOLL}', 's_nop 1',
        f's_cbranch_vccz L_back_{name}', f'v_subrev_u32 {cnt}, 1, {cnt}', f'v_cmp_ne_u32 vcc, 0, {cnt}', f's_sleep {sleep}', f's_cbranch_vccnz L_spinl_{name}', f's_branch L_back_{name}'])
    a.wr.append(cnt.regs()[0]); a.wr.append('ok_'+name)
    return [a,b,c]

def addr_att(WB):
    t,u,key,hf,p,rp=vT[0],vT[1],vT[2],vT[3],vT[4],vT[5]
    e(valu('v_and_b32',key,31,vL), valu('v_lshrrev_b32',hf,5,vL), valu('v_lshlrev_b32',t,2,hf), valu('v_xor_b32',t,t,vL), valu('v_lshlrev_b32',vKM,4,t))
    extpos(u,key,t)
    e(valu('v_lshlrev_b32',vKE,3,u), valu('v_add_u32',vKE,1024,vKE))
    e(salu('s_lshr_b32',sT0,sW,1), salu('s_lshl_b32',sT0,sT0,5), salu('s_add_u32',sT0,sT0,sH), salu('s_add_u32',sT0,sT0,32), salu('s_mul_i32',sT0,sT0,SL),
      salu('s_and_b32',sT1,sW,1), salu('s_mul_i32',sT1,sT1,5120), salu('s_add_u32',sT0,sT0,sT1), valu('v_lshl_add_u32',vKV,vL,4,sT0))
def addr_z(): e(valu('v_and_b32',vZ,1,vL), valu('v_lshlrev_b32',vZ,7,vZ))
def qk_loads(WB):
    t,u,hf=vT[0],vT[1],vT[3]
    e(salu('s_mov_b32',sSO3,WS_R2), cost(bload(vR2,vR2,sWS,sSO3,flags='sc1'),40))
    e(valu('v_lshrrev_b32',hf,5,vL), valu('v_mul_u32_u24',u,1280,hf), valu('v_add_u32',u,u,vKE))
    e(salu('s_lshl_b32',sT0,sM8,2), salu('s_add_u32',sT0,sT0,sW), salu('s_mul_i32',sT0,sT0,2560), salu('s_mul_i32',sT1,sH,SL), salu('s_add_u32',sSO3,sT0,sT1))
    for x in range(2): e(bload(QM[x],vKM,sWS,sSO3,x*1280,flags='sc1'))
    e(cost(bload(QE[0],u,sWS,sSO3,0,flags='sc1'),40))
    e(salu('s_add_u32',sSO3,sT1,32*SL))
    for x in range(2): e(bload(KM[x],vKM,sWS,sSO3,x*1280,flags='sc1'), cost(bload(KE[x],vKE,sWS,sSO3,x*1280,flags='sc1'),40))
    e(valu('v_add_u32',vKM,WB,vKM), valu('v_add_u32',vKE,WB,vKE), valu('v_mov_b32',QE[1],0), valu('v_mov_b32',vIDX,0xdddd))
def zero_o():
    for x in range(2):
        for r in range(16): e(valu('v_mov_b32',OO[x][r],0))
def extra_zero(ngaps):
    with collect() as o: zero_o()
    push('ctr',ngaps-66,o,ngaps-66)
def addr_lds(WB):
    t,hf=vT[0],vT[3]
    e(valu('v_lshrrev_b32',hf,5,vL))
    c,r,k,x=vT[4],vT[5],vT[6],vT[1]
    e(valu('v_and_b32',c,3,vL), valu('v_bfe_u32',r,vL,2,2), valu('v_lshl_add_u32',r,hf,3,r))
    for n in range(4):
        uu,y=n>>1,n&1
        e(valu('v_add_u32',k,16*uu+4*y,r))
        extpos(x,k,t)
        e(valu('v_lshlrev_b32',x,3,x), valu('v_min_u32',t,1,c), valu('v_mul_u32_u24',t,LDS_OOB+64,t), valu('v_xor_b32',x,x,t), valu('v_add_u32',x,1024,x))
        e(valu('v_lshrrev_b32',t,1,c), valu('v_mul_u32_u24',t,36,t), valu('v_xor_b32',k,k,t), valu('v_lshlrev_b32',k,4,k), valu('v_and_b32',t,1,c), valu('v_lshl_add_u32',k,t,3,k))
        e(valu('v_and_b32',t,16,vL), valu('v_cmp_eq_u32','vcc',0,t), valu('v_cndmask_b32',k,x,k), valu('v_add_u32',vVA[n],WB,k))
vOP,vSH,vINC=V(55),V(16),V(17)
def addr_op():
    t,u,g=vT[2],vT[4],vT[5]
    e(salu('s_lshl_b32',sT0,sXC,2), valu('v_lshlrev_b32',vINC,sT0,vONE), salu('s_mov_b32',sPV,0), valu('v_add_u32',vKE1,1280,vKE))
    if OPT['vp']: e(valu('v_min_u32',vOP,1,vL), valu('v_lshl_add_u32',vOP,vOP,31,sF3))
    if OPT['warm']: e(salu('s_and_b32',sT0,sIDX,7), salu('s_lshl_b32',sT0,sT0,2), salu('s_add_u32',sT0,sT0,sW),
      salu('s_lshl_b32',sT1,sXC,2), salu('s_lshr_b32',sT2,sIDX,3), salu('s_add_u32',sT1,sT1,sT2),
      salu('s_lshr_b32',sT2,sT0,4), salu('s_lshl_b32',sT2,sT2,15), salu('s_and_b32',sT3,sT0,15), salu('s_lshl_b32',sT3,sT3,8), salu('s_add_u32',sT2,sT2,sT3),
      salu('s_lshl_b32',sT3,sT1,16), salu('s_add_u32',sT2,sT2,sT3), salu('s_add_u32',sT2,sT2,WS_O),
      valu('v_lshrrev_b32',g,1,vL), valu('v_lshl_add_u32',t,g,12,sT2), valu('v_and_b32',u,1,vL), valu('v_lshl_add_u32',t,u,7,t),
      salu('s_bfe_u32',sT2,sT0,0x10002), salu('s_lshl_b32',sT2,sT2,12), salu('s_and_b32',sT3,sT0,3), salu('s_lshl_b32',sT3,sT3,7), salu('s_add_u32',sT2,sT2,sT3),
      salu('s_lshl_b32',sT3,sT1,13), salu('s_add_u32',sT2,sT2,sT3), salu('s_add_u32',sT2,sT2,WS_OX),
      valu('v_and_b32',u,7,vL), valu('v_lshl_add_u32',vOP,u,9,sT2), valu('v_cmp_gt_u32','vcc',16,vL), valu('v_cndmask_b32',vOP,vOP,t), valu('v_cndmask_b32',g,u,g),
      valu('v_lshl_add_u32',g,g,2,2), valu('v_cmp_gt_u32','vcc',24,vL), valu('v_cndmask_b32',vSH,3,g))
def x_loads():
    o=[cost(gload(XR[2*q:2*q+2],vXO,sX[0:2],32*q),260) for q in range(4)]+[cost(bload(XR[8:10],vXOX,sX,0),200)]
    for q in (1,3,4): o[q].meta['bat']=True
    return o
def addr_fin():
    t,u,p,rp,a,b=vT[0],vT[1],vT[4],vT[5],vT[6],vT[3]
    lane_rp(rp,p,t)
    e(salu('s_and_b32',sT0,sW,1), salu('s_lshr_b32',sT1,sW,1), salu('s_mul_i32',sT2,sT0,20), salu('s_lshl_b32',sT3,sT1,3), salu('s_add_u32',sT2,sT2,sT3), valu('v_add_u32',a,sT2,rp),
      salu('s_mul_i32',sT2,sT0,288), salu('s_mul_i32',sT3,sT1,36), salu('s_add_u32',sT2,sT2,sT3), salu('s_add_u32',sT2,sT2,16),
      valu('v_lshrrev_b32',t,2,rp), valu('v_mul_u32_u24',t,144,t), valu('v_and_b32',b,3,rp), valu('v_add3_u32',b,b,t,sT2))
    e(salu('s_and_b32',sT0,sIDX,7), salu('s_lshl_b32',sT1,sT0,7), valu('v_lshl_add_u32',u,p,4,sT1),
      valu('v_mul_u32_u24',t,1152,a), valu('v_add_u32',vWO,t,u), valu('v_mul_u32_u24',t,1152,b), valu('v_add_u32',vWOE,t,u))
    e(salu('s_lshr_b32',sT2,sT0,1), salu('s_lshl_b32',sT2,sT2,5), salu('s_add_u32',sT2,sT2,1024), valu('v_and_b32',u,1,p), valu('v_lshl_add_u32',u,u,4,sT2), valu('v_lshrrev_b32',p,1,p),
      valu('v_mul_u32_u24',t,36,p), valu('v_add_u32',t,t,a), valu('v_mul_u32_u24',t,1152,t), valu('v_add_u32',vWX,t,u),
      valu('v_mul_u32_u24',t,p,p), valu('v_mul_u32_u24',t,t,p), valu('v_mul_u32_u24',t,72,t), valu('v_add_u32',t,t,b), valu('v_mul_u32_u24',t,1152,t), valu('v_add_u32',vWXE,t,u))
    e(*grp_ops(sT3,sSO3), salu('s_lshl_b32',sT3,sT3,2), salu('s_add_u32',sT3,sT3,sW))
    tk,g=vT[4],vT[5]
    e(valu('v_and_b32',tk,15,vL), valu('v_lshrrev_b32',g,4,vL))
    e(salu('s_mul_i32',sSC[2],sT3,TS), salu('s_mul_i32',sSO3,sT0,CS), salu('s_add_u32',sSO3,sSO3,sSC[2]), valu('v_lshl_add_u32',vPL,vL,4,sSO3))
    e(salu('s_xor_b32',sSC[0],sW,sT0), salu('s_lshl_b32',sSC[0],sSC[0],31))
    e(salu('s_lshr_b32',sSO3,sT0,1), salu('s_mul_i32',sSO3,sSO3,ES), salu('s_add_u32',sSO3,sSO3,sSC[2]), salu('s_ashr_i32',sSC[1],sSC[0],31), salu('s_andn2_b32',sSC[1],0x1f8,sSC[1]), valu('v_lshlrev_b32',t,3,vL), valu('v_and_b32',t,sSC[1],t), valu('v_add_u32',vPLX,sSO3,t))
    e(salu('s_lshl_b32',sSO3,sT3,4), valu('v_add_u32',a,sSO3,tk), valu('v_lshlrev_b32',vR2,2,a), valu('v_mul_u32_u24',a,1152,a), valu('v_lshl_add_u32',a,g,3,a),
      valu('v_add_u32',vXO,sT1,a), salu('s_or_b32',sT2,sT2,sSC[0]), valu('v_add_u32',vXOX,sT2,a))
    if not OPT['xat']: e(*x_loads())
    e(salu('s_and_b32',sSO3,sT3,1), salu('s_lshl_b32',sSO3,sSO3,4), valu('v_add_u32',a,sSO3,tk), salu('s_lshr_b32',sSC[1],sT3,1),
      salu('s_mul_i32',sSO3,sSC[1],OS), valu('v_lshl_add_u32',t,a,4,sSO3), valu('v_lshl_add_u32',vOL,g,9,t),
      salu('s_mul_i32',sSO3,sSC[1],XS), valu('v_lshl_add_u32',t,a,2,sSO3), valu('v_lshl_add_u32',vOLX,g,10,t))
    e(valu('v_and_b32',t,31,vL))
    for n in range(4): e(*base_add(sOB[n],sWS,WS_O+8192*n+4096))
    e(*base_add(S(88,2),sWS,WS_O), *base_add(S(90,2),sWS,WS_O+OS))
    e(salu('s_lshr_b32',sSO3,sT3,1), salu('s_lshl_b32',sSO3,sSO3,11), salu('s_add_u32',sSO3,sSO3,WS_F2), salu('s_and_b32',sSC[1],sIDX,3), salu('s_lshl_b32',sSC[1],sSC[1],9), salu('s_add_u32',sSO3,sSO3,sSC[1]),
      valu('v_min_u32',vPG,1,vL), valu('v_lshl_add_u32',vPG,vPG,31,sSO3))
    e(salu('s_lshl_b32',sT0,sM8,2), salu('s_add_u32',sT0,sT0,sW), salu('s_mul_i32',sT1,sT0,2*OS), salu('s_lshl_b32',sT2,sH,10), salu('s_add_u32',sT1,sT1,sT2),
      valu('v_lshl_add_u32',vOS,vL,4,sT1),
      salu('s_mul_i32',sT1,sT0,2*XS), salu('s_lshl_b32',sT2,sH,7), salu('s_add_u32',sT1,sT1,sT2), salu('s_add_u32',sT1,sT1,WS_OX),
      valu('v_lshl_add_u32',t,t,2,sT1), valu('v_lshrrev_b32',u,5,vL), valu('v_mul_u32_u24',u,XS,u), valu('v_add_u32',vOSX,u,t))

def max_ops(srcs,m,first=True):
    o=[]
    regs=[s[r] for s in srcs for r in range(16)]
    if first: o.append(valu('v_max3_f32',m,regs[0],regs[1],regs[2])); rest=regs[3:]
    else: rest=regs
    while len(rest)>=2: o.append(valu('v_max3_f32',m,m,rest[0],rest[1])); rest=rest[2:]
    if rest: o.append(valu('v_max_f32',m,m,rest[0]))
    return o
def set_shift(mx,margin):
    m,t=mx
    return [swap('v_permlane32_swap_b32',m,t), valu('v_max_f32',m,m,t), valu('v_sub_f32',m,f32(-margin) if margin else 0,m),
            valu('v_cvt_pk_bf16_f32',t,m,m), valu('v_lshlrev_b32',t,16,t), valu('v_sub_f32',t,m,t), valu('v_cvt_pk_bf16_f32',QE[1],m,t)]
def Bx(tau,buf=None): return m2b(buf or SBB[tau%3],KE[tau%4],QE,0)
def Mx(tau,x,buf=None): b=(buf or SBB[tau%3])[16*x:16*x+16]; return m32(b,KM[tau%3],QM[x],b)
def PV(tau,x,h,buf=None): return smf(OO[x],VV[tau&1][4*h:4*h+4],(buf or SBB[tau%3])[16*x+8*h:16*x+8*h+8],vIDX)
def vread(kv,WB,tau,n):
    it=kv[tau>>3]; off=it.addr-WB+10240+(tau&7)*1280
    return dsr('ds_read_b64_tr_b16',VV[tau&1][2*n:2*n+2],vVA[n],off,src=(it.name,it.blks()))
extra={}
def att_setup(ngaps,kv,WB):
    g=ngaps-OPT['at0']; d=OPT['atd']
    for k,m in enumerate((Bx(0),Bx(1),Mx(0,0),Mx(1,0),Mx(0,1),Mx(1,1))): extra[g+k*d]=[m]
    extra[g].insert(0,waitfor(vm=QM+KM[:2]+KE[:2]+[QE[0]]))
    mx=[vT[0],vT[1]]
    for x in range(2): push('ctr',g+(3+2*x)*d+7,max_ops([SBB[0][16*x:16*x+16],SBB[1][16*x:16*x+16]],mx[x]),g+(3+2*x)*d+2)
    push('ctr',g+5*d+7,set_shift(mx,MARGIN),g+5*d+2)
    for k,m in enumerate((Bx(0),Mx(0,0),Mx(0,1))): extra[g+(7+k)*d]=[m]
    assert g+9*d<ngaps-8
    tail_reads.extend(vread(kv,WB,0,n) for n in range(4))
tail_reads=[]

def attention(g0,kv,WB,wo_items):
    base=g0+100
    pipe[0]=0; pipe[1]=44
    def kread(tau):
        it=kv[tau>>3]; off=it.addr-WB+(tau&7)*1280; src=(it.name,it.blks())
        if tau<4 or not OPT['ke2']: ke=dsr('ds_read_b64',KE[tau%4],vKE,off,src=src)
        elif tau&2: ke=None
        else:
            o=(off-1280*(tau&1))//512; d=A(KE[tau&1].b,4); a=vKE1 if tau&1 else vKE
            ke=I(f'ds_read2st64_b64 {d}, {a} offset0:{o} offset1:{o+5}','dsr',a.regs(),d.regs(),src=src,private=False)
        return [dsr('ds_read_b128',KM[tau%3],vKM,off,src=src), ke]
    def flush(n,names=('ctr','epi','low','dma','ld')):
        k=0
        while k<n:
            for nm in names:
                x=head(nm,cur[0])
                if x is not None: take(nm,cur[0]); break
            else: return
            k+=1
    cur[0]=g0
    assert not fifo['ctr'] and not fifo['low'] and not fifo['ld']
    stamp('att'); note('---- attention')
    barx={7:[it.name for it in wo_items]}; f2done=[False]; wcut=[int(x) for x in OPT['wcut'].split(',')]
    vmk=(1,4) if OPT['bat'] else (1,3,4,5)
    for tau in range(64):
        n=2*tau; nx=tau<63; S=SBB[tau%3]
        if 'ast' in OPT and n in range(*map(int,OPT['ast'].split(':'))): stamp(f'slot{n}',True)
        ms=[Bx(tau+1) if nx else None, PV(tau-1,1,1) if tau else None, PV(tau,0,0), Mx(tau+1,0) if nx else None, PV(tau,0,1), Mx(tau+1,1) if nx else None, PV(tau,1,0)]
        if OPT['aord']:
            h=OPT['aord']&1
            ms=[ms[0], PV(tau-1,1,h) if tau else None, PV(tau-1,1,1-h) if tau else None, ms[3], ms[5], PV(tau,0,0), PV(tau,0,1)]
            if not nx: ms[3:]=[PV(tau,0,0), PV(tau,0,1), None, PV(tau,1,0)]
        km,ke=kread(tau+2) if tau+2<64 else (None,None)
        v=[vread(kv,WB,tau+1,z) if nx else None for z in range(4)]
        rds=[None,ke,v[0],v[1],km,v[2],v[3]]
        sg=(tau+3)//8 if (tau+3)%8==0 and tau+3<64 else None
        if sg==1 and OPT['nob1']: assert kv[2].pushed and wcut[1]==0; sg=None
        for k in range(7):
            gap=base+8*tau+(k+1 if k else 0); cur[0]=gap
            if tau==0 and k==1: flush(1000,('epi',)); e(waitfor(lg=[VV[0]]))
            if ms[k] is not None: e(ms[k])
            nsc=(0,2,2,1,2,1,2)[k] if not OPT['aord'] else (0,2,2,1,1,2,2)[k]; kb=5 if OPT['aord'] else 4
            fx=k in (2,6) or (k==kb and sg is not None)
            vmn=vm_ready(gap,1,OPT['astgap'],('st','dma','ld','low')) if (not fx and k in vmk and ms[k] is not None) else None
            if OPT['bat'] and not fx and k in vmk and ms[k] is not None:
                sv=pipe[0]; pipe[0]=0; a_=vm_ready(gap,1,1,('st',)) if (k==1 or tau==0) else None; pipe[0]=sv-OPT['aback']
                vmn=a_ or vm_ready(gap,1,1,('dma','ld','low')); pipe[0]=sv
            if vmn:
                take(vmn,gap)
                while OPT['bat'] and fifo[vmn] and fifo[vmn][0][1].meta.get('bat'): take(vmn,gap)
            else:
                if k==2: e(waitfor(lg=[VV[tau&1][4:8],KM[(tau+1)%3]])); nsc-=1
                if k==2 and tau==63 and OPT['warm']: e(*poll())
                if k==6: e(waitfor(lg=[VV[(tau+1)&1][0:4],KE[(tau+2)%4]])); nsc-=1
                if k==kb and sg is not None:
                    e(waitfor(vmtags=[kv[sg].name]+barx.get(sg,[])), barrier()); nsc-=2
                    if sg+1<8 and not kv[sg+1].pushed: push('dma',gap,kv[sg+1].mk(kv[sg+1]))
                    for it in [x for x in wo_items if not x.pushed][wcut[sg-1]:wcut[sg]]: push('dma',gap,it.mk(it))
                while nsc>0 and pull(gap,True): nsc-=1
            if rds[k] is not None: e(rds[k])
            x=head('ld',gap)
            if x is not None and x.kind=='valu': take('ld',gap)
            for r in (range(8) if k==0 else range(4*k+4,4*k+8)): e(valu(OPT['exp'],S[r],S[r]))
        if n==OPT['tatt']: push('arr',gap,touch())
        if n==2 and OPT['xat']: push('ld',gap,x_loads())
        if not fifo['st'] and not f2done[0]:
            f2done[0]=True; print('partial stores end at slot',n)
            push('st',gap+4*OPT['f2lag'],[waitfor(vmtags=['pst']), batomic(vONE,vF1,sWS,0,op='sub')])
        if n==OPT['f2poll']:
            ld=I(f'buffer_atomic_add {vPOLL}, {vPG}, {sWS}, 0 offen sc0','vld',vPOLL.regs()+vPG.regs(),vPOLL.regs(),tag=None)
            e(valu('v_mov_b32',vPOLL,0)); push('st',gap,[ld])
            t0=base+4*OPT['f2chk']
            w_=waitfor(vm=[vPOLL]); w_.meta['lag']=(ld,4*(OPT['f2chk']-OPT['f2poll']))
            push('ld',t0,[w_]+spin('f2',ld,0,OPT['f2sl'],'v_cmp_ne_u32',[f'v_mov_b32 {vPOLL}, 0']))
            ops=base_add(sPC,sWS,WS_PX+4096); nb=OPT['bat'] or 1
            for k in range(32):
                if k%8==0: ops+=base_add(sBL,sWS,WS_P+k*1024+4096)
                ops.append(gload(PART[k],vPL,sBL,(k%8)*1024-4096,flags='sc1')); ops[-1].meta['bat']=k%nb>0
                if k%2==1: ops.append(cost(gload(PARTX[k>>1],vPLX,sPC,(k>>1)*512-4096,flags='sc1'),40)); ops[-1].meta['bat']=True
            nl=0; prev=None
            for o in ops:
                if o.kind=='vld' and not (o.meta['bat'] and OPT['bat']):
                    if prev is not None: o.meta['lag']=(prev,OPT['ldmin'])
                    prev=o
                push('ld',t0+int(nl*OPT['ldgap']),[o])
                if o.kind=='vld': nl+=1
    cur[0]=base+600
    e(PV(63,1,1))
    print('att vmem slots:',' '.join(f"{'kv' if i.meta.get('tag') and i.meta['tag'][0]=='kv' else i.kind[1]}{(i.meta['at']-base)//4}" for i in P if i.kind in VM and i.meta['at']>=base))
    print('left after attention:',{k:len(v) for k,v in fifo.items()})
    assert not any(fifo.values()), 'work left after attention'

def fallback(kv,WB):
    global P
    save=P; P=[]
    pb=kv[5].addr
    a=[V(192+n) for n in range(6)]; vo=V(198); mx=[V(199),V(200)]; S=SBB[2]
    e(label('L_fb'), raw('s_waitcnt vmcnt(0) lgkmcnt(0)','misc'), raw('s_nop 15','misc'))
    for d,s in zip(a,[vKM,vKE]+vVA): e(valu('v_add_u32',d,sW5K,s))
    e(valu('v_lshlrev_b32',vo,4,vL), valu('v_mov_b32',QE[1],0), valu('v_mov_b32',mx[0],0xff800000), valu('v_mov_b32',mx[1],0xff800000))
    off=pb-WB
    for ps in range(2):
        e(salu('s_add_u32',sT0,sH,32), salu('s_mul_i32',sT0,sT0,SL), salu('s_add_u32',sT1,sT0,32*SL), salu('s_mov_b32',sT2,64), label(f'L_fbl{ps}'))
        e(salu('s_add_u32','m0',sW5K,pb), dma(vo,sWS,sT0,0,flags='sc1'), dma(vo,sWS,sT0,1024,flags='sc1'))
        if ps: e(salu('s_add_u32','m0',sW5K,pb+2560), dma(vo,sWS,sT1,0,flags='sc1'), dma(vo,sWS,sT1,1024,flags='sc1'))
        e(waitfor(vmall=True), dsr('ds_read_b128',KM[0],a[0],off), dsr('ds_read_b64',KE[0],a[1],off))
        if ps:
            for n in range(4): e(dsr('ds_read_b64_tr_b16',VV[0][2*n:2*n+2],a[2+n],off+2560))
        e(waitfor(lgall=True))
        e(Bx(0,S), Mx(0,0,S), Mx(0,1,S))
        for x in range(2):
            if ps==0: e(*max_ops([S[16*x:16*x+16]],mx[x],first=False))
            else:
                for r in range(16): e(valu('v_exp_f32',S[16*x+r],S[16*x+r]))
                for h in range(2): e(PV(0,x,h,S))
        e(raw('s_nop 15','misc'), salu('s_add_u32',sT0,sT0,1280), salu('s_add_u32',sT1,sT1,1280), salu('s_sub_u32',sT2,sT2,1), salu('s_cmp_lg_u32',sT2,0), raw(f's_cbranch_scc1 L_fbl{ps}','misc'))
        if ps==0:
            e(*set_shift(mx,0.0)); zero_o()
    e(*norm_store(0,V(116,2)), *norm_store(1,V(116,2)), waitfor(vmall=True))
    e(raw('s_nop 3','misc'), raw('s_branch L_fb_ret','misc'))
    OUT.extend(i.text for i in finalize(P,verbose=0,name='fb'))
    P=save

TT=[V(224,16),V(240,16)]
FLAG_LDS=[0]
def norm_store(x,t):
    O,T=OO[x],TT[x]
    o=[valu('v_rcp_f32',t[0],O[10]), valu('v_mov_b32',t[1],t[0]), swap('v_permlane32_swap_b32',t[0],t[1])]
    o+=[valu('v_mul_f32',T[r],t[0],O[r]) for r in range(10)]
    o+=[valu('v_cvt_pk_bf16_f32',T[d],T[2*d],T[2*d+1]) for d in range(4)]
    o+=[gstore(T[0:4],vOS,S(88+2*x,2),flags='sc1',tag='ost'), valu('v_cvt_pk_bf16_f32',T[8],T[8],T[9])]
    if x: o+=[swap('v_permlane32_swap_b32',TT[0][8],TT[1][8]), gstore(TT[0][8],vOSX,sWS[0:2],flags='sc1',tag='ost')]
    return o
def poll(r=sPV): return [raw(f's_atomic_umax {r}, {sWS[0:2]}, {sF3} glc')]
def final(g0,wo_main,wo_x):
    cur[0]=g0
    SA=V(56,20); DN=V(76,20); XF=V(96,20); tmp=V(116,12)
    e(*norm_store(0,tmp[0:2]), *norm_store(1,tmp[6:8]))
    stamp('o stored')
    fill=[]
    for x in range(2):
        s=tmp[2+x]
        fill.append(valu('v_add_f32_e64',s,f'|{OO[x][0]}|',f'|{OO[x][1]}|'))
        for r in range(2,10): fill.append(valu('v_add_f32_e64',s,s,f'|{OO[x][r]}|'))
    fill+=[valu('v_min_f32',tmp[4],tmp[2],tmp[3]), valu('v_add_f32',tmp[2],tmp[2],tmp[3]), valu('v_add_f32',tmp[3],OO[0][10],OO[1][10]), valu('v_add_f32',tmp[2],tmp[2],tmp[3]),
           valu('v_max_f32',tmp[0],tmp[0],tmp[6]), valu('v_fmac_f32',tmp[2],f32(2.0**(124-MARGIN)),tmp[0],rmw=True)]
    chk=[valu('v_cmp_nle_f32','vcc',f32(2.0**-103),tmp[4]), raw('s_cbranch_vccnz L_fb','misc',['vcc']),
      valu('v_cmp_nge_f32','vcc',f32(2.0**126) if not OPT['forcefb'] else f32(-1.0),tmp[2]), raw('s_cbranch_vccnz L_fb','misc',['vcc']), label('L_fb_ret')]
    pool_=[V(128+4*n,4) for n in range(32)]+[A(212+4*n,4) for n in range(7)]+[A(72+4*n,4) for n in range(34)]
    frs=[]; rds=[]
    order=[0,1,4,5,8,9,12,13,16,2,3,6,7,10,11,14,15,17]
    for s in order:
        for q in range(5):
            f=pool_[len(frs)%len(pool_)]; frs.append(f)
            for u in range(2): rds.append(tr_read(f,u,wo_main[s],q) if q<4 else tr_read(f,u,wo_x[s>>2],s&3))
    red=[]
    for j in range(16):
        for q in range(5):
            d=DN[4*q:4*q+4]
            red.append(m4(d,SELA,PART[16*(q>>1)+j][2*(q&1):2*(q&1)+2] if q<4 else PARTX[j],0 if j==0 else d))
    red+=[m4(XF[4*q:4*q+4],SELA,XR[2*q:2*q+2],0) for q in range(5)]
    e(waitfor(vm=PART+PARTX+[XR,vR2]))
    ri=0
    test=lambda: [waitfor(lgall=True,lgforce=True), salu('s_cmp_eq_u32',sPV,0x44444444)]
    def warm(r=sPV,tracked=False):
        if not OPT['warm']: return []
        t=vT[0]; ld=bload(vPF,t,sWS,0,flags='sc1',tag='pf')
        return [valu('v_lshrrev_b32',t,vSH,r), valu('v_not_b32',t,t), valu('v_lshl_add_u32',t,t,31,vOP), ld if tracked else raw(ld.text)]
    g,c2,ir=tmp[8],tmp[9],tmp[10]
    late_=[valu('v_mul_f32',c2,f32(-1.4426950408889634),vR2), valu('v_rcp_f32',ir,vR2),
           valu('v_bfe_u32',g,vL,4,1), valu('v_mul_u32_u24',g,24,g), valu('v_add_u32',vXO,vXO,g)]
    for k,mm in enumerate(red):
        e(mm)
        if k in (OPT['pollat'],OPT['pollat2'],OPT['pollat3']): e(*poll())
        if fill:
            e(fill.pop(0))
            if not fill: e(*chk, waitfor(lgall=True,lgforce=OPT['warm']), *warm(tracked=True), *base_add(sBL,sWS,WS_OX))
            continue
        if k==OPT['hat']: e(waitfor(vmtags=['ost']), batomic(vINC,vF3,sWS,0)); stamp('flag'); continue
        if k>=80: e(late_.pop(0)); continue
        if k%4==3: e(waitfor(lg=frs[:max(0,ri//2-4)]))
        e(rds[ri]); ri+=1
    assert ri<=2*39
    stamp('ready')
    EX=[V(30+n) for n in range(13)]+[V(45+n) for n in range(5)]+[V(14),V(15)]
    fill=[]
    for f in (lambda r:valu('v_mul_f32',EX[r],c2,DN[r]), lambda r:valu('v_exp_f32',EX[r],EX[r]), lambda r:valu('v_fma_f32',EX[r],EX[r],ir,ir),
              lambda r:valu('v_rcp_f32',EX[r],EX[r]), lambda r:valu('v_mul_f32',DN[r],EX[r],DN[r])):
        fill+=[(0,[f(r)]) for r in range(20)]
    OF=[A(4*s,4) for s in range(18)]
    def gate(name,mask):
        one=bin(mask).count('1')==1
        t=lambda: [salu('s_bitcmp1_b32',sPV,mask.bit_length()-1)] if one else [salu('s_and_b32',sT1,sPV,mask), salu('s_cmp_eq_u32',sT1,mask)]
        if OPT['vp']:
            n=OPT['vp']; PL=[vT[z] for z in range(n)]
            vp=lambda z: raw(f'buffer_atomic_umax {PL[z]}, {vOP}, {sWS}, 0 offen sc0')
            y=[label(f'L_w{name}'), vp(0), raw('s_waitcnt lgkmcnt(0)')]+t()+[raw(f's_cbranch_scc1 L_g{name}')]
            for z in range(1,n): y+=[raw(f's_sleep {OPT["psleep"]}'), vp(z)]
            y+=[label(f'L_wl{name}')]
            for z in range(n): y+=[raw(f's_waitcnt vmcnt({n-1})'), valu('v_readfirstlane_b32',sPV,PL[z])]+t()+[raw(f's_cbranch_scc1 L_g{name}'), vp(z)]
        else: y=[label(f'L_w{name}')]+(poll() if OPT['pfirst'] else [])+[label(f'L_wl{name}'), raw('s_waitcnt lgkmcnt(0)')]+t()+[raw(f's_cbranch_scc1 L_g{name}')]+poll()
        y+=[salu('s_addk_i32',sT0,-1), salu('s_cmp_gt_i32',sT0,0), raw(f's_cbranch_scc1 L_wl{name}'), raw(f's_branch L_g{name}')]
        if OPT['inl']: return t()+[raw(f's_cbranch_scc1 L_g{name}')]+y[:-1]+[label(f'L_g{name}')]
        HOT.extend(finalize(y,verbose=0))
        return t()+[raw(f's_cbranch_scc0 L_w{name}',glue=True), label(f'L_g{name}')]
    ge=gate('e',0x04040404)
    ol=[]
    for n,s in enumerate(order):
        if s<16: ol.append((gate(s,4<<(2*s)) if n>8 and s%2==0 else [], gload(OF[n],vOL,sOB[s>>2],(s&3)*2048-4096,flags='sc1')))
        else: ol+=[([],gload(OF[n][r],vOLX,sBL,(s-16)*512+r*128,flags='sc1')) for r in range(4)]
    for z in range(OPT['vp']): e(valu('v_mov_b32',vT[z],0))
    e(salu('s_mov_b32',sT0,0x80000), *ge)
    stamp('ok')
    lg_=[int(x) for x in str(OPT['lgrp']).split(',')]; assert sum(lg_)==12
    for _ in range(lg_.pop(0)): e(ol.pop(0)[1])
    if OPT['rp']&1: e(*poll())
    while ri<OPT['wopre']:
        if ri%4==0: e(waitfor(lg=frs[:max(0,ri//2-4)]))
        e(rds[ri]); ri+=1
    nf=len(fill)
    while len(fill)>OPT['fillmm']:
        e(*fill.pop(0)[1])
        if (nf-len(fill)) in (OPT['lc1'],OPT['lc2']) and lg_:
            for _ in range(lg_.pop(0)): e(ol.pop(0)[1])
            if OPT['rp']&(4>>len(lg_)): e(*poll())
    assert not lg_
    stamp('seen'); note('---- o @ wo, gate, residual')
    def epi(q):
        o=[valu('v_fmac_f32',XF[r],SA[r],DN[r],rmw=True) for r in range(4*q,4*q+4)]
        o+=[valu('v_cvt_pk_bf16_f32',tmp[2*q+d],XF[4*q+2*d],XF[4*q+2*d+1]) for d in range(2)]
        return o
    def put(b): return [swap('v_permlane16_swap_b32',tmp[b],tmp[b+2]), swap('v_permlane16_swap_b32',tmp[b+1],tmp[b+3]), bstore(tmp[b:b+4],vXO,sOUT,0,16*b,flags=OPT['ofl'])]
    k=0; nt=OPT['ntail']
    for s in range(18-nt):
        assert ri>=10*s+10
        e(waitfor(vm=[OF[s]],lg=frs[5*s:max(5*s+5,ri//2-3)]))
        for q in range(5):
            e(m16(SA[4*q:4*q+4],frs[k],OF[s],0 if s==0 else SA[4*q:4*q+4])); k+=1
            if q==0 and ol and s>=OPT['ldel'] and ol[0][0]:
                e(*ol[0][0])
                if OPT.get('mst'): stamp(f'g{s}')
                continue
            if q==0 and s in (9,12) and OPT.get('mst'): stamp(f's{s}')
            if q==1 and ol and s>=OPT['ldel']: e(ol.pop(0)[1]); continue
            if q==3 and str(s) in str(OPT['mpoll']): e(*poll())
            n=0
            while n<(1 if ri>=min(180,OPT['rlead']+int(k*OPT['rrate']/100)) else 2) and ri<len(rds) and ri//2-len(pool_)<k-1: e(rds[ri]); ri+=1; n+=1
            while n<2 and fill: e(*fill.pop(0)[1]); n+=1
    assert not fill and not ol and ri==len(rds),(ri,len(fill))
    ep=[]
    for z,q in enumerate((4,0,1,2,3)):
        for s in range(18-nt,18):
            e(waitfor(vm=[OF[s]],lg=[frs[5*s+q]]), m16(SA[4*q:4*q+4],frs[5*s+q],OF[s],SA[4*q:4*q+4])); k+=1
            n=0
            while ep and n<2 and ep[0][0]<=k:
                o=ep.pop(0)[1]; e(o); n+=1 if o.kind!='vst' else 2
        o=epi(q)+([bstore(tmp[8:10],vXOX,sOUT,0,flags=OPT['ofl'])] if q==4 else put(2*q-2) if q&1 else [])
        ep+=[(k+3,x) for x in o]
    stamp('mm done')
    for _,o in ep: e(o)

def name_regs():
    for k,v in list(globals().items()):
        if k[0]=='v' and k not in ('vT','vL','vPF','vST','vCV'):
            def nm(x,n):
                if isinstance(x,R): x.name=n
                elif isinstance(x,list):
                    for z,y in enumerate(x): nm(y,f'{n}{z}')
            nm(v,k)
def main():
    name_regs()
    build_ffn()
    ngaps,bars,free=plan()
    L=OPT['look']
    best=None
    for a0 in range(0,NB-14):
        fr=sorted((max(free[b] for b in range(a0+5*k,a0+5*k+5)),k) for k in range(3))
        key=(fr[0][0],fr[1][0])
        if best is None or key<best[0]: best=(key,a0,[k for _,k in fr])
    _,a0,order=best; WB=a0*4096
    print('attention window',best,'ngaps',ngaps,{k:groups[v].start for k,v in marks.items()})
    kv=[kv_item(s) for s in range(8)]
    for s,it in enumerate(kv): it.addr=(a0+5*order[s%3])*4096
    rest=sorted([b for b in range(NB) if not a0<=b<a0+15],key=lambda b:free[b])
    print('free',[free[b] for b in range(NB)])
    wo_main=[blk_item(('wo',s),vWO if s<16 else vWOE,sWO,36*s*1152 if s<16 else 72*(s-16)*1152) for s in range(18)]
    wo_x=[blk_item(('wx',n),vWX if n<4 else vWXE,sWO,144*n*1152 if n<4 else 0,buf=(n==4),c=320) for n in range(5)]
    for it,b in zip(wo_main+wo_x,rest): it.addr=b*4096
    FLAG_LDS[0]=rest[23]*4096

    def pst(name):
        if 'pst' in OPT: stamp(name,True)
    prologue(); pst('karg')
    pre0=[it for it in items if it.early==-3000]; pre1=[it for it in items if it.early==-2000]
    dq=[xdma(tt,l) for tt in range(2) for l in range(9)]+[it.mk(it) for it in pre0+pre1]
    for _ in range(OPT['x0n']): e(*dq.pop(0))
    pst('x0 issued')
    xr=[vM[0],vR[1]]; t,u=vT[2],vT[3]
    DT=[V(140+8*n,8) for n in range(3)]+[V(180,8)]; CM=V(164,4); SUM=V(172,4); ONE4=V(176,4)
    prologue2()
    e(valu('v_and_b32',t,15,vL), valu('v_lshrrev_b32',u,1,t), valu('v_lshlrev_b32',t,7,t), valu('v_add_u32',t,sW18K,t),
      valu('v_lshrrev_b32',xr[0],4,vL), valu('v_xor_b32',xr[0],xr[0],u), valu('v_xor_b32',xr[1],4,xr[0]),
      valu('v_lshl_add_u32',xr[0],xr[0],4,t), valu('v_lshl_add_u32',xr[1],xr[1],4,t))
    for d in range(4): e(valu('v_mov_b32',ONE4[d],sONES))
    with collect() as ao:
        e(*sel_ops(t,u))
        addr_pf(); addr_early(); addr_qk()
        e(valu('v_mov_b32',vONE,1))
        if OPT['split']:
            e(valu('v_min_u32',vCA,1,vL), valu('v_mul_u32_u24',vCA,LDS_OOB-39*4096,vCA), valu('v_add_u32',vCA,39*4096,vCA), valu('v_mov_b32',t,4*len([b for b in bars if b>=SIG])), dsw('ds_write_b32',vCA,t))
    for _ in range(OPT['apre']): e(ao.pop(0))
    pst('pre')
    for _ in range(OPT['x1n']): e(*dq.pop(0))
    nx=len([o for o in dq if o[-1].meta['tag'][0]=='x'])
    if OPT['pf']:
        o=pf_gu(0)+(pf_gu(1) if OPT['pfn']>1 else [])+(pf_q() if OPT['pfn']>2 else [])
        k=nx+OPT['pfpos']
        if OPT['pfpos']<0: dq[k-1]=dq[k-1][:-1]+o+dq[k-1][-1:]
        else: dq.insert(k,o)
    e(raw('s_waitcnt lgkmcnt(0)','misc'))
    pst('addr')
    R0=[XC0[4*s_:4*s_+4] for s_ in range(18)]; X1=[XC1[4*s_:4*s_+4] for s_ in range(18)]
    def xread(tt,dst,l):
        return [waitfor(vmtags=[('x',tt,l)])]+[dsr('ds_read_b128',dst[s],xr[s&1],l*2048,src=(('x',tt,l),list(range(18*tt,18*tt+18))),private=True) for s in (2*l,2*l+1)]
    cq=[]; nm=[0]; nblk=[0]; pre_=[]
    def mm(m,extra=()):
        e(m); nm[0]+=1
        if pre_: e(pre_.pop(0))
        if extra: e(*extra); return
        k=0
        while cq and k<2 and cq[0][0]<=nm[0]-OPT['cage']: e(cq.pop(0)[1]); k+=1
        while ao and k<2: e(ao.pop(0)); k+=1
    def stats(tt,fr,l,nvm,lim=99):
        ms=[]
        for s_ in (2*l,2*l+1): ms+=[m16(SUM,ONE4,fr[s_],0 if s_==0 else SUM), m16(GR[tt],fr[s_],fr[s_],0 if s_==0 else GR[tt])]
        for h in range(2):
            o=[]
            if dq and h<nvm and nblk[0]<min(lim,OPT['nblk']):
                o=dq.pop(0)
                if o[-1].meta['tag'][0] not in 'xp': nblk[0]+=1
            mm(ms[2*h],[x for x in o if x.kind=='salu']); mm(ms[2*h+1],[x for x in o if x.kind!='salu'])
    nc=[0]
    def centre(src,dst,after=(),ex=((),())):
        d=DT[nc[0]%4]; nc[0]+=1
        while any(set(c.rd)&set(d.regs()) for _,c in cq): e(cq.pop(0)[1])
        for h in range(2):
            mm(m4(d[4*h:4*h+4],SELA,src[2*h:2*h+2],CM),ex[h])
            for z in range(2): cq.append((nm[0],valu('v_cvt_pk_bf16_f32',dst[2*h+z],d[4*h+2*z],d[4*h+2*z+1])))
        for x in after: cq.append((nm[0],x))
    def mean(tt):
        dst=vM[1] if tt else t
        e(valu('v_mul_f32',MEAN[tt],f32(1/576),SUM[0]), valu('v_cvt_pk_bf16_f32',dst,MEAN[tt],MEAN[tt]), valu('v_lshlrev_b32',dst,16,dst))
        for d in range(4): e(valu('v_xor_b32',CM[d],0x80000000,dst))
    for l in range(10):
        if l<9: e(*xread(0,R0,l))
        if l==0: e(*dq.pop(0))
        for _ in range(OPT['afill'] if l<9 else 999):
            if ao: e(ao.pop(0))
        if l>0:
            e(waitfor(lg=R0[2*l-2:2*l])); stats(0,R0,l-1,int(str(OPT.get('w1','x111111111'))[l]),len(pre0))
        if str(l) in str(OPT.get('tch','x0246')): e(*touch())
        if l==OPT['brl']: e(raw('s_branch L_main','misc'), label('L_exit'), raw('s_endpgm'), I('.p2align 12','comment'), label('L_main'))
        pst(f'x0 rd {l}')
    stamp('x0 read')
    e(valu('v_add_u32',xr[0],73728,xr[0]), valu('v_add_u32',xr[1],73728,xr[1]))
    e(*xread(1,X1,0)); mean(0); pst('stat0')
    for l in range(9):
        for s_ in (2*l,2*l+1): centre(R0[s_],X0[s_],to_acc(s_) if s_>=NV0 else ())
        if l<8: e(*xread(1,X1,l+1))
        if l==OPT['barl']: e(barrier())
        e(waitfor(lg=X1[2*l:2*l+2])); stats(1,X1,l,int(str(OPT.get('w2','x111122222'))[l+1]),99 if l>=OPT['barl'] else len(pre0))
        pst(f'x1 rd {l}')
    while cq: e(cq.pop(0)[1])
    mean(1)
    reads=[f(it) for g in groups[:4] for it,f in g.rd][:L]; nb_=(L+1)//2+1
    n0=OPT['n0']
    for s_ in range(n0):
        ex=((),())
        if s_==n0-nb_: ex=((waitfor(vmtags=[it.name for it in items if it.bar==-L]), barrier()),()); stamp('x1 read'); pst('bar1')
        if s_>n0-nb_: pre_[:]=[reads.pop(0) for z in range(2) if reads]
        centre(X1[s_],X1[s_],ex=ex)
    assert not reads
    while cq: e(cq.pop(0)[1])
    e(waitfor(lg=groups[0].fr)); pst('go')
    for s_ in range(n0,18): push('ctr',0,centre_ops(X1[s_],1))
    for s_ in range(NV0): push('ctr',0,to_acc(s_))
    for o in dq: push('dma',-1,o)
    mx_=-1
    for it in items:
        mx_=max(mx_,it.early)
        if it.early>-2000: push('dma',it.early,it.mk(it),mx_)
    st=lambda k:groups[marks[k]].start
    def low(gap,f,*a):
        with collect() as o: f(*a)
        push('low',gap,o,gap)
    low(st('c0')+200,var_ops,0); low(st('c0')+200,var_ops,1)
    TCH=[(int(g_),touch()) for g_ in str(OPT['tat']).split(',') if int(g_)>=0]
    low(st('c1'),addr_mid); low(st('c1'),addr_mid2); low(st('qkv'),addr_pfd)
    low(st('c2')+200,addr_att,WB); low(st('c2')+200,addr_lds,WB)
    pt=[int(x) for x in OPT['pft'].split(',')]
    for k,(g_,o) in enumerate(zip(pt,[pf_gu(1) if OPT['pfn']<2 else [],pf_q() if OPT['pfn']<3 else [],pf_gu(2),pf_gu(3),pf_gu(4),pf_d(0),pf_d(1),pf_d(2)])):
        if o and (k==7 or pt[k+1]!=g_): o[-1].meta['cost']+=OPT['pfx']
        push('ld',g_,o,g_)
    low(st('c3'),pf_o)
    b1=[b for b in bars if b>st('c3')+60][0]
    bar_extra[b1]=['qkvst']
    ar=[salu('s_and_b32',sJH,S(2),1), salu('s_lshl_b32',sJH,sJH,7), salu('s_mov_b32',sJ128,1), salu('s_cmp_lg_u32',sW,0), raw('s_cbranch_scc1 L_arr','misc'),
        raw(f's_atomic_add {sJ128}, {sDBG[0:2]}, {sJH}','misc',sJ128.regs()+sJH.regs()), label('L_arr')]
    for x in ar[3:6]: x.meta['glue']=True
    for g_,o in sorted(TCH+[(b1,ar)],key=lambda z:z[0]): push('arr',g_,o,g_)
    ARR.append(ar[5])
    if OPT['stop']!='down':
        d0=st('down')
        att_setup(ngaps,kv,WB); bar_extra[bars[-1]]=[kv[0].name]+([kv[1].name] if OPT['nob1'] else [])
        low(b1,addr_z); low(b1,addr_fin); low(max(d0+400,mx_+1),addr_op); extra_zero(ngaps)
        ld=bload(vPOLL,vZ,sDBG,0,flags='sc1')
        push('ld',d0+OPT['f1poll'],[ld],d0+OPT['f1poll'])
        with collect() as o: qk_loads(WB)
        w_=waitfor(vm=[vPOLL]); w_.meta['lag']=(ld,100)
        push('ld',d0+OPT['f1poll'],[w_]+spin('f1',ld,128,40)+o,d0+OPT['f1poll'])
        for it in kv[:3]+(wo_main+wo_x)[:OPT['wob']]:
            early=max(free[b] for b in it.blks())
            assert early>d0+300
            if early<LATE: push('dma',early,it.mk(it),ngaps-1); it.pushed=True
    for k_,t_ in (('c0','gate/up columns 0..63'),('c1','gate/up columns 64..127'),('qkv','q, k, v'),('c2','gate/up columns 128..191'),('c3','gate/up columns 192..255'),('half','gate/up last 32 columns'),('down','down projection')): PH[st(k_)]='---- '+t_
    emit_backbone(bars,{groups[v].start:k for k,v in marks.items() if k in ('c0','qkv','down')})
    qs=[i.meta['at'] for i in P if i.meta.get('tag')=='qkvst']; assert len(qs)==12 and max(qs)<b1-SIG,(qs,b1)
    print('arrival at',ARR[0].meta['at'],'poll at',ld.meta['at'])
    stamp('down end')
    if OPT['stop']=='down':
        for nm in ('epi','st','low','dma'):
            for af,o in fifo[nm]: e(o)
    else:
        attention(ngaps,kv,WB,wo_main+wo_x)
        stamp('att end')
        final(ngaps+1000,wo_main,wo_x)
        fallback(kv,WB)
    finish()

def sizes(lines):
    import subprocess, re
    uniq=sorted(set(lines))
    src='.amdgcn_target "amdgcn-amd-amdhsa--gfx950"\n.text\nLX:\n'+'\n'.join(re.sub(r'L_codeend-L_pc-4','0x12345',re.sub(r'(s_branch|s_cbranch\w+) \w+',r'\1 0',u)) for u in uniq)+'\n'
    open('_sz.s','w').write(src)
    r=subprocess.run(['llvm-mc','-triple=amdgcn-amd-amdhsa','-mcpu=gfx950','-show-encoding','_sz.s'],capture_output=True,text=True)
    assert r.returncode==0,r.stderr[:2000]
    enc=re.findall(r'encoding: \[([^\]]*)\]',r.stdout)
    assert len(enc)==len(uniq),(len(enc),len(uniq))
    return {u:len(x.split(',')) for u,x in zip(uniq,enc)}
PGAT=[]
def page_stubs(out):
    sz=sizes([i.text for i in out if i.kind not in ('label','comment')])
    k0=[k for k,i in enumerate(out) if i.text=='L_main:'][0]
    print('entry part bytes',sum(sz.get(i.text,0) for i in out[:k0]))
    res=out[:k0+1]; off=0; pg=0; prev=None; forced=False
    npg=4*ntouch[0]
    for k in range(k0+1,len(out)):
        i=out[k]
        if pg<npg and off>=4096*pg and not (prev is not None and prev.meta.get('glue')):
            good=prev is not None and prev.kind=='mfma' and i.kind in ('dsr','valu','trans')
            if good or off-4096*pg>=40 or pg==0 or forced:
                res+=[label(f'L_pg{pg}'), raw(f's_cbranch_execz L_tr{pg//4}')]; off+=4; PGAT.append((pg,i.meta.get('at'))); pg+=1
        res.append(i); off+=sz.get(i.text,0)
        if i.text=='.p2align 12': off=-(-off//4096)*4096; forced=True; continue
        if i.kind not in ('label','comment'): prev=i
    print('main part bytes',off,'pages touched',pg,'of',-(-off//4096))
    print('page starts',PGAT)
    while pg<npg: OUT.extend([f'L_pg{pg}:',f's_branch L_tr{pg//4}']); pg+=1
    return res
DOC=""";
; out = x + (MHA(LN(x)) @ wo) * silu(ReGLU(LN(x)))      one persistent launch, one workgroup (4 waves, 512 registers) per CU
; The instruction stream is written out in full by a generator script; every wave runs the same stream.
;
; 1. LayerNorm: 128 rows per workgroup, 32 per wave, kept in registers as MFMA B operands. Row sums and sums of squares come
;    from MFMAs; the rows are centred, 1/sd is applied later (q,k,v when they are written, down before the gate).
; 2. gate/up (288 columns of F per workgroup), q,k,v (108 columns) and down (K = those 288 columns): weights stream through an
;    LDS ring (LDS-DMA, transposing reads). h = relu(gate)*up stays in registers; q,k,v and the bf16 partial sums of down go
;    to d_ws with write-through stores.
; 3. attention: one head x 256 queries per workgroup. S^T = K Q^T with the softmax shift folded in as two extra K slots;
;    P = exp2(S^T); O^T and the row sums accumulate through the sparse MFMA, which picks the upper halves of the fp32 P.
;    Shift = (maximum over the first 64 keys) + 90. Softmax does not depend on the shift unless something over- or
;    underflows, so the result is checked (row sum in [2^-92, 2^126], O finite and above 2^-103); a wave that fails the check
;    repeats its rows with the true maximum over all keys (L_fb).
; Hand-offs between workgroups: stores are drained (vmcnt) before a counter is touched; the counters in d_ws are reset by this
; launch before the d_debug counter that everyone passes first. Every wait is bounded.
"""
def finish():
    cur[0]=10**7
    if OPT['stamps']:
        e(raw('s_waitcnt lgkmcnt(0)','misc'), waitfor(vmall=True))
        stamp('drained'); e(raw('s_waitcnt lgkmcnt(0)','misc'))
        n=nstamp[0]
        for k in range(max(0,n-7),n): e(raw(f'v_writelane_b32 v13, s{64+2*(k%7)}, {k}','misc'))
        if 'padto' in OPT:
            e(raw('s_nop 1','misc'), raw(f'v_readlane_b32 s46, v13, {OPT["padto"]}','misc'), raw('s_nop 3','misc'))
            e(salu('s_add_u32',sT0,sT0,10000), label('L_pad'), raw('s_memrealtime s[98:99]','misc'), raw('s_waitcnt lgkmcnt(0)','misc'), salu('s_sub_u32',sT1,S(98),sT0), salu('s_cmp_lt_i32',sT1,0), raw('s_cbranch_scc1 L_pad','misc'))
        else:
            e(salu('s_lshl_b32',sT0,S(2),2), salu('s_add_u32',sT0,sT0,sW), salu('s_lshl_b32',sT0,sT0,8), salu('s_add_u32',sT0,sT0,WS_STAMP))
            e(valu('v_lshlrev_b32',V(1),2,vL), bstore(vST,V(1),sWS,sT0))
    check_order(P); check_roles(P)
    out=finalize(P,verbose=OPT['v'],name='main')
    out=page_stubs(out+[raw('s_endpgm'),I('.p2align 12','comment')]+HOT)
    hdr=open('recurrent_scan__mha_block__glu_gated_reglu__prompt.s.ref').read().split('; Override launch')[0]
    txt=hdr+'; @launch grid=(256,1,1) block=(256,1,1) lds=163840\n'+DOC+'.amdgcn_target "amdgcn-amd-amdhsa--gfx950"\n.text\n'
    txt+=f'.globl {NAME}\n.p2align 12\n.p2align 8\n.type {NAME},@function\n{NAME}:\n'
    txt+='\n'.join(i.text for i in out)+'\n'+'\n'.join(OUT)+'\ns_endpgm\nL_codeend:\n'
    txt+=f'''.section .rodata,"a"
.p2align 6
.amdhsa_kernel {NAME}
  .amdhsa_next_free_vgpr 512
  .amdhsa_next_free_sgpr 102
  .amdhsa_accum_offset 256
  .amdhsa_group_segment_fixed_size 0
  .amdhsa_kernarg_size 80
  .amdhsa_user_sgpr_count 2
  .amdhsa_user_sgpr_kernarg_segment_ptr 1
  .amdhsa_system_sgpr_workgroup_id_x 1
  .amdhsa_float_denorm_mode_32 {OPT.get('dn',3)}
.end_amdhsa_kernel
'''
    open(sys.argv[1],'w').write(txt)
    print('bytes',len(txt))
main()
```

```python
import sys, struct, contextlib
from asmlib import *

OPT=dict(stop='', stamps=0, pf=1, dmagap=3, look=14, split=0, stper=1, qstper=1, xat=1, stgap=29, n0=14, v=1, forcefb=0, astgap=6, f2lag=10, f2poll=58, f2chk=64, ldgap=4, dbgout=0, wsp=8, nob1=1, aback=100, bat=0, bl=22, cs=256, es=64, ts=2304, os=264, xs=33, sl=640, par=0, cage=3, exp='v_exp_f32', aord=0, flip=1, snake=1, balone=2, nosc=1, lc1=36, lc2=64, vp=0, f2sl=2, pfe=0, aint='x', ke2=1, bint=4, apool=0, ap0=10, tatt=50, pfn=1, barl=4, brl=8, lgm=1, pfirst=0, rp=7, inl=0, pollat3=-1, mpoll='x', np2_=1, lgrp='6,3,3', ntail=3, ldel=0, warm=0, np2=1, xsh=9, gst_=4096, pfl='sc1', ffl='sc1', pevery=2, lookb=16, nlook=2, npc=2, pollat2=-1, frx=0, sprio=1, w3=1, snop=0, vmpat=0, hat=60, chk0=0, px=0, wcut='0,0,3,8,13,18,23,23', wob=23, ldmin=4, at0=290, atd=29, tat=-1, flagat=60, pollat=10, forceredo=0, lp1=20, lp2=70, nol=10, fsh=2, npoll=2, psleep=1, wopre=100, fillmm=20, rlead=100, rrate=120, ofl='', apre=90, x1n=2, afill=14, tlb=0, pfpos=6, pft='100,190,280,700,800,1060,1110,1112', swp=1, pfx=300, chain=6, qch=4, c0ch=3, touch=1, x0n=3, nblk=14, f1poll=40, qstgap=24, back=80, pfc=1, bartr=0)
for a in sys.argv[2:]:
    k,v=a.split('='); OPT[k]=int(v) if v.lstrip('-').isdigit() else v
NAME='recurrent_scan__mha_block__glu_gated_reglu__prompt_kernel'

WS_QKV=0; SL=OPT['sl']*128
CS=OPT['cs']*128; TS=OPT['ts']*128; ES=OPT['es']*128; assert CS>=32768 and ES>=8192 and TS>=8*CS+4*ES
WS_P=OPT['wsp']<<20; WS_PX=WS_P+8*CS; WS_O=0x2C80000 if OPT['wsp']==8 else 0x2800000; WS_OX=0x2C00000; OS=OPT['os']*128; XS=OPT['xs']*128; WS_F3=0x2EA0000; WS_R2=0x2EC0000; WS_F2=0x2ED0000; WS_STAMP=0x2F00000
assert OPT['wsp']!=8 or (WS_P+128*TS<=WS_OX and WS_OX+64*XS<=WS_O and WS_O+64*OS<=WS_F3)
OOB=0x80000000
LDS_OOB=0x30000
def f32(x): return struct.unpack('<I',struct.pack('<f',x))[0]
QSCALE=18**-0.5*1.4426950408889634
MARGIN=float(OPT.get('margin',90))

sX,sWQ,sWO,sWG,sWU,sWD,sOUT,sDBG,sWS=[S(4+4*n,4) for n in range(9)]
sW,sW1K,sI,sJ,sH,sIDX,sT0,sT1,sSO,sSO2=[S(40+n) for n in range(10)]
sLO,sHI,sONES,sW7K,sW5K=[S(50+n) for n in range(5)]
sSC=[S(55),S(56),S(57)]
sW18K,sJ1,sXC,sM8,sT2,sT3=[S(58+n) for n in range(6)]
sJ128,sJH=S(3),S(94); sSO3=S(95); sXP,sXX=S(92),S(93); sF3,sPV,sPV2=S(79),S(78),S(53)
sBD,sBL,sPC=S(96,2),S(98,2),S(100,2)
nstamp=[0]
def stamp(name,fine=False):
    if not OPT['stamps']: return
    if OPT.get('few') and name not in ('start','c0','down','down end','att end','drained'): return
    if ('gst' in OPT or 'ast' in OPT or 'pst' in OPT) and not fine and name!='start': return
    n=nstamp[0]; nstamp[0]+=1
    assert n<64
    r=64+2*(n%7)
    if n>=7: e(raw(f'v_writelane_b32 v13, s{r}, {n-7}','misc'))
    e(raw(f'{"s_memrealtime" if OPT["stamps"]==1 else "s_memtime"} s[{r}:{r+1}]','misc'))
    print('stamp',n,name)

vL=V(0)
vT=[V(1+n) for n in range(8)]
vR=[V(9),V(10)]
vM=[V(11),V(12)]
vPF=A(255)
vST=V(13)
vGF,vGH,vDF,vDH=[V(14+n) for n in range(4)]
vTR=[[V(18+3*q+n) for n in range(3)] for q in range(4)]
vQK=[V(30+n) for n in range(7)]
vQM=[V(37+n) for n in range(3)]; vQE=[V(40+n) for n in range(3)]
vSM,vSE0,vSE1,vSCX=[V(43+n) for n in range(4)]
vPS,vPX=V(47),V(48)
vF1,vONE=V(49),V(50)
vPG,vF3,vPOLL=V(51),V(52),V(53)
vX=[V(168+n) for n in range(4)]
XC1=V(56,72)
BANK=[V(128,64),V(192,64)]
XC0=A(0,72); HH=A(72,72); FR=A(144,64)
vKM,vKE=V(30),V(31); vVA=[V(32+n) for n in range(4)]
vKV,vWO,vWOE,vWX,vWXE=[V(36+n) for n in range(5)]
vPL,vPLX,vOL,vOLX,vOS,vOSX=[V(41+n) for n in range(6)]
vIDX,vF3L=V(54),V(55)
vXO,vXOX,vR2,vZ=V(11),V(12),V(9),V(10)
QE=V(14,2)
QM=[A(0,4),A(4,4)]
OO=[V(128,16),V(144,16)]
sOB=[S(80+2*n,2) for n in range(4)]
KM=[A(40+4*n,4) for n in range(3)]; KE=[A(52,2),A(56,2),A(54,2),A(58,2)]; vKE1=V(16)
VV=[A(8,8),A(16,8)]
XR=A(240,10)
PART=[A(60+4*n,4) for n in range(32)]
PARTX=[A(188+2*n,2) for n in range(10)]+[A(24+2*n,2) for n in range(6)]
SBB=[V(192,32),V(224,32),V(160,32)]

P=[]
cur=[-10**6,0]
sink=[None]
def setseq(i,gap=None):
    if 'seq' not in i.meta:
        cur[1]+=1; i.meta['seq']=(cur[0] if gap is None else gap,cur[1])
    return i
def e(*x):
    for i in x:
        if sink[0] is not None: sink[0].append(i)
        else: P.append(setseq(i)); i.meta['at']=cur[0]
@contextlib.contextmanager
def collect():
    o=[]; old=sink[0]; sink[0]=o
    yield o
    sink[0]=old
ARR=[]
fifo=dict(arr=[],dma=[],st=[],ld=[],ctr=[],epi=[],low=[])
def push(q,after,ops,logical=None):
    for o in ops: fifo[q].append((after,setseq(o,logical)))
def note(*t):
    for x in t: e(I('; '+x,'comment'))
def masked(dst,val,cmpop,a,b,tmp):
    e(valu(cmpop,'vcc',a,b), valu('v_mov_b32',tmp,OOB), valu('v_cndmask_b32',dst,tmp,val))

def prologue():
    e(raw(f's_load_dwordx2 {sX[0:2]}, s[0:1], 0','misc'), salu('s_cmp_ge_u32',S(2),256), raw('s_cbranch_scc1 L_exit','misc'))
    stamp('start')
    e(valu('v_lshrrev_b32',vT[0],6,V(0)), valu('v_and_b32',vL,63,V(0)))
    e(salu('s_and_b32',sXC,S(2),7), salu('s_lshr_b32',sIDX,S(2),3))
    pf_code()
    e(valu('v_readfirstlane_b32',sW,vT[0]))
    lg=OPT['lgm']
    e(salu('s_lshr_b32',sM8,sIDX,2), salu('s_lshr_b32',sI,sIDX,lg+1), salu('s_lshl_b32',sI,sI,lg), salu('s_and_b32',sT2,sXC,(1<<lg)-1), salu('s_add_u32',sI,sI,sT2))
    if OPT['tlb']:
        a,b=S(82),S(83)
        e(salu('s_and_b32',a,sIDX,3), salu('s_lshl_b32',b,a,3), salu('s_lshr_b32',b,0x48381008,b), salu('s_and_b32',b,b,0xff), salu('s_min_u32',a,a,2), salu('s_lshl_b32',a,a,21),
          salu('s_lshl_b32',sT0,sW,3), salu('s_add_u32',sT0,sT0,32), salu('s_cmp_eq_u32',sW,3), raw('s_cselect_b32 s83, s83, s46','salu'), raw('s_cselect_b32 s82, 0, s82','salu'),
          raw('s_load_dwordx2 s[80:81], s[0:1], s83','misc'), salu('s_lshl_b32',sT0,S(2),7), salu('s_add_u32',a,a,sT0))
    e(salu('s_mul_i32',sW18K,sW,18432))
    vx0,vx1,row,t=vX[0],vX[1],vT[2],vT[3]
    e(salu('s_lshl_b32',sT2,sI,2), salu('s_add_u32',sT2,sT2,sW), salu('s_lshl_b32',sT2,sT2,5))
    e(valu('v_lshrrev_b32',row,3,vL), valu('v_lshrrev_b32',t,4,vL), valu('v_and_b32',vx0,7,vL), valu('v_xor_b32',vx0,vx0,t),
      valu('v_xor_b32',vx1,4,vx0), valu('v_add_u32',t,sT2,row), valu('v_mul_u32_u24',t,1152,t),
      valu('v_lshl_add_u32',vX[2],vx0,4,t), valu('v_lshl_add_u32',vX[3],vx1,4,t), valu('v_add_u32',vX[3],8*1152-1024,vX[3]),
      valu('v_add_u32',vx0,1920,vX[2]), valu('v_add_u32',vx1,1920,vX[3]))
    e(salu('s_lshr_b32',sJ,sXC,lg), salu('s_lshl_b32',sJ,sJ,lg+1), salu('s_and_b32',sT3,sIDX,(2<<lg)-1), salu('s_add_u32',sJ,sJ,sT3), salu('s_and_b32',sJ1,sJ,1))
    e(salu('s_mul_i32',sSO2,sJ1,18432*OPT['swp']))
    if OPT['px']:
        n=OPT['px']
        e(salu('s_mul_i32',sT0,sT2,1152), salu('s_and_b32',sT1,sJ,288//n-1), salu('s_mul_i32',sT1,sT1,n*128), salu('s_add_u32',sT0,sT0,sT1), valu('v_lshl_add_u32',vT[4],vL,7,sT0))
    e(raw('s_waitcnt lgkmcnt(0)','misc'))
    if OPT['px']:
        n=OPT['px']
        m=(1<<min(n,36))-1
        e(raw(f's_mov_b32 exec_lo, {hex(m&0xffffffff)}','salu'), raw(f's_mov_b32 exec_hi, {m>>32}','salu'), gload(vPF,vT[4],sX[0:2],tag='pf'))
        if n==72: e(valu('v_add_u32',vT[4],36*128,vT[4]), gload(vPF,vT[4],sX[0:2],tag='pf'))
        e(raw('s_mov_b64 exec, -1','salu'))
    e(salu('s_sub_u32',sBL[0],sX[0],1920), salu('s_subb_u32',sBL[1],sX[1],0), salu('s_add_u32',sBD[0],sBL[0],sSO2), salu('s_addc_u32',sBD[1],sBL[1],0))
def prologue2():
    for srd,off in ((sWG,32),(sWU,40),(sWQ,8),(sWO,16),(sWD,48),(sOUT,56),(sDBG,64),(sWS,72)): e(raw(f's_load_dwordx2 {srd[0:2]}, s[0:1], {off}','misc'))
    if OPT['tlb']: e(raw('s_load_dword s83, s[80:81], s82','misc'))
    e(salu('s_sub_u32',sSO2,18432,sSO2), salu('s_add_u32',sBL[0],sBL[0],sSO2), salu('s_addc_u32',sBL[1],sBL[1],0))
    e(salu('s_mul_i32',sXP,sJ1,OPT['swp']*TS), salu('s_sub_u32',sXX,TS,sXP))
    e(salu('s_lshl_b32',sH,sXC,2), salu('s_and_b32',sT3,sIDX,3), salu('s_add_u32',sH,sH,sT3))
    e(salu('s_lshl_b32',sW1K,sW,10), salu('s_mul_i32',sW7K,sW,7168), salu('s_mul_i32',sW5K,sW,5120))
    for srd,n in ((sX,2048*1152),(sWQ,576*3456),(sWO,576*1152),(sWG,576*9216),(sWU,576*9216),(sWD,4608*1152),(sOUT,2048*1152),(sDBG,256),(sWS,0x10000000)):
        e(salu('s_mov_b32',srd[2],n), salu('s_mov_b32',srd[3],0x20000))
    e(salu('s_mov_b32',sLO,0x3f80), salu('s_mov_b32',sHI,0x3f800000), salu('s_mov_b32',sONES,0x3f803f80))
def pf_lane(t):
    if not OPT['pfe']: return vL
    e(salu('s_and_b32',sT1,sXC,1), salu('s_xor_b32',sT1,sT1,OPT['pfe']-1), salu('s_lshl_b32',sT1,sT1,6), valu('v_add_u32',t,sT1,vL)); return t
def addr_pf():
    row,t=vT[2],vT[3]; z=2 if OPT['pfe'] else 1; si=sM8 if OPT['pfe'] else sI
    ln=pf_lane(vT[4])
    e(salu('s_lshl_b32',sJ128,sJ1,7), salu('s_lshl_b32',sJH,sJ1,9), salu('s_sub_u32',sJH,512,sJH))
    e(salu('s_lshl_b32',sT0,si,2), salu('s_add_u32',sT0,sT0,sW), salu('s_mul_i32',sT0,sT0,z*9*9216), salu('s_mul_i32',sT1,sJ,576), salu('s_and_b32',sT1,sT1,-128), salu('s_add_u32',sT0,sT0,sT1),
      valu('v_mul_u32_u24',t,9216,vL), valu('v_add_u32',t,sT0,t))
    masked(vPG,t,'v_cmp_gt_u32',z*9,ln,row)
    u=row
    e(valu('v_mul_u32_u24',t,7282//z,vL), valu('v_lshrrev_b32',t,16,t), valu('v_mul_u32_u24',u,z*9,t), valu('v_sub_u32',u,vL,u), valu('v_mul_u32_u24',u,3456,u), valu('v_lshl_add_u32',u,t,7,u),
      salu('s_lshl_b32',sT0,si,2), salu('s_add_u32',sT0,sT0,sW), salu('s_mul_i32',sT0,sT0,z*9*3456), salu('s_mul_i32',sT1,sJ,216), salu('s_and_b32',sT1,sT1,-128), salu('s_add_u32',sT0,sT0,sT1),
      valu('v_add_u32',u,sT0,u))
    masked(vPOLL,u,'v_cmp_gt_u32',z*27,ln,t)
def pf_gu(c):
    if not OPT['pf']: return []
    return [cost(bload(vPF,vPG,s,sJ128 if c<4 else sJH,c*128 if c<4 else 0,tag='pf'),90) for s in (sWG,sWU)]
def pf_q(): return [cost(bload(vPF,vPOLL,sWQ,0,tag='pf'),270)] if OPT['pf'] else []
def addr_pfd():
    t,u=vPOLL,vT[7]; z=2 if OPT['pfe'] else 1; si=sM8 if OPT['pfe'] else sI
    ln=pf_lane(vT[4])
    e(salu('s_lshl_b32',sT0,si,2), salu('s_add_u32',sT0,sT0,sW), salu('s_mul_i32',sT0,sT0,z*81*64), salu('s_and_b32',sT0,sT0,-128), salu('s_mul_i32',sT1,sJ,288*1152), salu('s_add_u32',sT0,sT0,sT1),
      valu('v_mul_u32_u24',t,384,vL), valu('v_add_u32',t,sT0,t))
    masked(vPOLL,t,'v_cmp_gt_u32',14*z,ln,u)
def pf_d(k): return [cost(bload(vPF,vPOLL,sWD,0,k*128,tag='pf'),140)] if OPT['pf'] else []
def pf_o():
    if not OPT['pf']: return
    t,u=vT[4],vT[5]
    e(salu('s_lshl_b32',sT0,S(2),2), salu('s_add_u32',sT0,sT0,sW), salu('s_mul_i32',sT0,sT0,6*128), valu('v_lshl_add_u32',t,vL,7,sT0))
    masked(t,t,'v_cmp_gt_u32',6,vL,u)
    e(cost(bload(vPF,t,sWO,0,tag='pf'),60))
def cost(i,c): i.meta['cost']=c; return i
def xdma(tt,l):
    base=sBD if tt==0 else sBL
    o=[salu('s_add_u32','m0',sW18K,tt*73728+l*1920)] if l%2==0 else []
    for z in range(2): o.append(gdma(vX[2*(l&1)+z],base,(l&~1)*128+(2*(l&1)+z)*1024,tag=('x',tt,l),private=True))
    return o
SELA=A(208,2)
def sel_ops(m,g):
    return [valu('v_and_b32',m,1,vL), valu('v_lshlrev_b32',m,4,m), valu('v_lshlrev_b32',m,m,sLO), valu('v_bfe_u32',g,vL,1,1), valu('v_mul_lo_u32',g,g,m), valu('v_sub_u32',m,m,g),
      valu('v_accvgpr_write_b32',SELA[0],m), valu('v_accvgpr_write_b32',SELA[1],g)]
ntouch=[0]
def touch():
    if not OPT['touch']: return []
    k=ntouch[0]; ntouch[0]+=1
    o=[raw('s_mov_b64 exec, 0','salu')]
    for w in range(3): o+=[salu('s_cmp_eq_u32',sW,w), raw(f's_cbranch_scc1 L_pg{4*k+w}','misc')]
    o+=[raw(f's_branch L_pg{4*k+3}','misc'), label(f'L_tr{k}'), raw('s_mov_b64 exec, -1','salu')]
    for x in o[:-1]: x.meta['glue']=True
    return o

def lane_rp(rp,p,t):
    e(valu('v_lshrrev_b32',rp,3,vL), valu('v_and_b32',t,6,rp), valu('v_and_b32',p,7,vL), valu('v_xor_b32',p,p,t))
def addr_early():
    rp,p,t,u,kA=vT[2],vT[3],vT[4],vT[5],vT[6]
    lane_rp(rp,p,t)
    e(salu('s_and_b32',sT0,sW,1), salu('s_lshl_b32',sT0,sT0,4), salu('s_lshr_b32',sT1,sW,1), salu('s_lshl_b32',sT1,sT1,2), salu('s_add_u32',sT0,sT0,sT1))
    e(valu('v_and_b32',t,4,rp), valu('v_add_u32',kA,rp,t), valu('v_add_u32',kA,sT0,kA))
    e(salu('s_mul_i32',sT1,sJ,288), salu('s_lshl_b32',sT2,sJ1,5), salu('s_add_u32',sT2,sT2,sT1))
    e(salu('s_lshl_b32',sT3,sJ1,8), salu('s_sub_u32',sT3,256,sT3), salu('s_add_u32',sT3,sT3,sT1))
    e(salu('s_lshl_b32',sT0,sT2,1), valu('v_mul_u32_u24',t,9216,kA), valu('v_lshl_add_u32',t,p,4,t), valu('v_add_u32',vGF,sT0,t))
    e(salu('s_lshl_b32',sT0,sT3,1), valu('v_lshrrev_b32',t,2,p), valu('v_lshl_add_u32',t,t,5,kA), valu('v_mul_u32_u24',t,9216,t),
      valu('v_and_b32',u,3,p), valu('v_lshl_add_u32',t,u,4,t), valu('v_add_u32',vGH,sT0,t))
    e(salu('s_lshl_b32',sT0,sW,3), valu('v_add_u32',t,sT0,rp), valu('v_add_u32',u,sT2,t), valu('v_mul_u32_u24',u,1152,u), valu('v_lshl_add_u32',vDF,p,4,u),
      valu('v_add_u32',u,sT3,t), valu('v_mul_u32_u24',u,1152,u), valu('v_lshl_add_u32',vDH,p,4,u))
    g,r4,c,b=vT[2],vT[3],vT[6],vT[7]
    e(valu('v_bfe_u32',r4,vL,2,3), valu('v_and_b32',c,3,vL), valu('v_lshrrev_b32',g,5,vL),
      valu('v_lshlrev_b32',b,10,g), valu('v_lshl_add_u32',b,r4,7,b), valu('v_lshl_add_u32',b,c,3,b), valu('v_lshrrev_b32',t,1,r4))
    for q in range(4):
        e(valu('v_xor_b32',u,q,t), valu('v_lshl_add_u32',vTR[q][0],u,5,b), valu('v_add_u32',vTR[q][1],0x10000,vTR[q][0]), valu('v_add_u32',vTR[q][2],0x20000,vTR[q][0]))
def addr_qk():
    t=vT[4]
    e(salu('s_mul_i32',sT0,sJ,216), salu('s_and_b32',sT0,sT0,-16), salu('s_mul_i32',sT1,sW,32*3456), salu('s_add_u32',sT0,sT0,sT1))
    for q in range(7):
        pp,rr,k=vT[2],vT[3],vT[6]
        e(valu('v_add_u32',pp,64*q,vL), valu('v_mul_u32_u24',rr,4682,pp), valu('v_lshrrev_b32',rr,16,rr),
          valu('v_mul_u32_u24',t,14,rr), valu('v_sub_u32',pp,pp,t),
          valu('v_and_b32',t,12,rr), valu('v_and_b32',k,3,rr), valu('v_lshl_add_u32',k,t,1,k), valu('v_lshrrev_b32',t,4,rr), valu('v_lshl_add_u32',k,t,2,k),
          valu('v_mul_u32_u24',k,3456,k), valu('v_lshl_add_u32',k,pp,4,k), valu('v_add_u32',vQK[q],sT0,k))
        if q%4: e(valu('v_subrev_u32',vQK[q],1024*(q%4),vQK[q]))
def extpos(dst,key,t):
    e(valu('v_and_b32',dst,7,key), valu('v_bfe_u32',t,key,4,1), valu('v_lshl_add_u32',dst,t,3,dst),
      valu('v_bfe_u32',t,key,3,1), valu('v_xor_b32',t,1,t), valu('v_lshl_add_u32',dst,t,4,dst))
def addr_mid():
    t,u,c=vT[4],vT[5],vT[6]
    e(valu('v_and_b32',c,3,vL), salu('s_lshl_b32',sT0,sJ1,3), valu('v_lshrrev_b32',t,2,vL), valu('v_mul_u32_u24',t,224,t), valu('v_add_u32',t,sT0,t),
      valu('v_lshl_add_u32',vQM[0],c,3,t), valu('v_mul_u32_u24',u,72,c), valu('v_add3_u32',vQE[0],t,u,32))
    for n in (1,2): e(valu('v_add_u32',vQM[n],n*0x10000,vQM[0]), valu('v_add_u32',vQE[n],n*0x10000,vQE[0]))
def grp_ops(d,t):
    if not OPT['par']: return [salu('s_lshl_b32',d,sXC,2), salu('s_lshr_b32',t,sIDX,3), salu('s_add_u32',d,d,t)]
    return [salu('s_and_b32',d,sXC,6), salu('s_lshr_b32',t,sIDX,4), salu('s_add_u32',d,d,t), salu('s_lshl_b32',d,d,1), salu('s_and_b32',t,sXC,1), salu('s_xor_b32',t,t,OPT['par']-1), salu('s_add_u32',d,d,t),
            salu('s_lshl_b32',d,d,1), salu('s_bfe_u32',t,sIDX,0x10003), salu('s_add_u32',d,d,t)]
def addr_mid2():
    t,u,key,hf=vT[4],vT[5],vT[2],vT[3]
    e(salu('s_lshl_b32',sT0,sI,2), salu('s_add_u32',sT0,sT0,sW), salu('s_mul_i32',sT0,sT0,1280), salu('s_mul_i32',sT1,sJ,6*SL), salu('s_add_u32',sT0,sT0,sT1))
    e(salu('s_mul_i32',sT1,sJ1,16*OPT['swp']), valu('v_xor_b32',u,sT1,vL), valu('v_and_b32',key,31,u), valu('v_lshrrev_b32',hf,5,vL), valu('v_lshlrev_b32',t,2,hf), valu('v_xor_b32',t,t,u), valu('v_lshlrev_b32',t,4,t), valu('v_add_u32',vSM,sT0,t))
    extpos(u,key,t)
    e(valu('v_lshlrev_b32',u,3,u), valu('v_add_u32',u,sT0,u), valu('v_add_u32',u,1024,u), valu('v_mul_u32_u24',t,4*SL,hf), valu('v_add_u32',vSE0,u,t),
      valu('v_lshl_add_u32',vSE1,hf,31,u))
    e(salu('s_mul_i32',sT0,sJ,6), valu('v_lshrrev_b32',t,4,vL), valu('v_lshl_add_u32',t,t,1,sT0), valu('v_mov_b32',u,f32(QSCALE)), valu('v_cmp_gt_u32','vcc',32,t), valu('v_cndmask_b32',vSCX,1.0,u))
    for p_ in range(3): e(valu('v_readlane_b32',sSC[p_],vSCX,16*p_))
    e(salu('s_lshl_b32',sT0,sI,2), salu('s_add_u32',sT0,sT0,sW), salu('s_mul_i32',sT2,sT0,2*TS), salu('s_lshl_b32',sT1,sJ,10), salu('s_add_u32',sT1,sT1,sT2),
      valu('v_lshl_add_u32',vPS,vL,4,sT1),
      salu('s_lshl_b32',sT1,sJ,9), salu('s_add_u32',sT1,sT1,sT2), valu('v_lshl_add_u32',vPX,vL,3,sT1))
    e(salu('s_lshl_b32',sT1,sT0,11), salu('s_add_u32',sT1,sT1,WS_F2), valu('v_lshl_add_u32',t,vL,9,sT1), salu('s_and_b32',sT3,sJ,3), salu('s_lshl_b32',sT3,sT3,9), salu('s_add_u32',sT3,sT3,sT1))
    masked(vF1,t,'v_cmp_gt_u32',4,vL,u)
    e(salu('s_lshl_b32',sT1,sM8,2), salu('s_add_u32',sT1,sT1,sW), salu('s_lshl_b32',sT1,sT1,12), salu('s_add_u32',sT1,sT1,WS_F3), valu('v_lshl_add_u32',t,vL,9,sT1))
    masked(vF3,t,'v_cmp_gt_u32',8,vL,u)
    e(*grp_ops(sT1,sT2), salu('s_lshl_b32',sT1,sT1,1), salu('s_and_b32',sT2,sIDX,1), salu('s_add_u32',sT1,sT1,sT2),
      salu('s_lshl_b32',sT1,sT1,2), salu('s_add_u32',sT1,sT1,sW), salu('s_lshl_b32',sT1,sT1,9), salu('s_add_u32',sF3,sT1,WS_F3))
    e(raw(f'v_writelane_b32 {u}, {sT3}, 0','valu',u.regs()+sT3.regs(),u.regs()), raw(f'v_writelane_b32 {u}, {sF3}, 1','valu',u.regs()+sF3.regs(),u.regs()),
      valu('v_sub_u32',t,1,vL), valu('v_lshlrev_b32',t,4,t), cost(bstore(t,u,sWS,0,flags='sc1',tag='qkvst'),30))
    e(valu('v_and_b32',key,16,vL), valu('v_cmp_eq_u32','vcc',0,key), valu('v_cndmask_b32',hf,vR[1],vR[0]), valu('v_mul_f32',hf,hf,hf),
      salu('s_lshl_b32',sT0,sT0,7), salu('s_add_u32',sT0,sT0,WS_R2), valu('v_lshl_add_u32',key,vL,2,sT0), salu('s_lshl_b32',sT1,sJ,6), valu('v_add_u32',t,sT1,vL))
    masked(key,key,'v_cmp_gt_u32',32,t,u)
    e(bstore(hf,key,sWS,0,flags='sc1',tag='qkvst'))
def pf_code():
    if not OPT['pfc']: return
    t=vT[4]; a=V(6,2)
    e(raw('s_getpc_b64 s[100:101]','salu',[],['s100','s101']), label('L_pc'),
      salu('s_lshl_b32',sT0,sIDX,2), valu('v_add_u32',t,sT0,vT[0]), valu('v_lshl_add_u32',t,vL,7,t), valu('v_lshlrev_b32',t,7,t),
      raw(f'v_min_u32 {t}, L_codeend-L_pc-4, {t}','valu',t.regs(),t.regs()),
      raw(f'v_add_co_u32 {a[0]}, vcc, {sPC[0]}, {t}','valu',t.regs()+['s100'],a[0].regs()+['vcc']), valu('v_mov_b32',a[1],sPC[1]), raw('s_mov_b64 exec, 63','salu'),
      raw(f'v_addc_co_u32 {a[1]}, vcc, 0, {a[1]}, vcc','valu',a[1].regs()+['vcc'],a[1].regs()+['vcc']),
      I(f'global_load_dword {vPF}, {a}, off','vld',a.regs(),vPF.regs(),tag='pf'), raw('s_mov_b64 exec, -1','salu'))

GR=[V(38,4),V(42,4)]; MEAN=[V(46),V(47)]
def var_ops(tt):
    d=GR[tt]; t=vT[4]; b=d[0]
    e(valu('v_and_b32',t,1,vL), valu('v_cmp_eq_u32','vcc',0,t), valu('v_and_b32',t,2,vL), valu('v_cndmask_b32',d[0],d[1],d[0]), valu('v_cndmask_b32',d[2],d[3],d[2]),
      valu('v_cmp_eq_u32','vcc',0,t), valu('v_bfe_u32',t,vL,2,2), valu('v_cndmask_b32',d[0],d[2],d[0]), valu('v_lshrrev_b32',d[1],4,vL), valu('v_cmp_eq_u32','vcc',t,d[1]),
      valu('v_cndmask_b32',b,0,b))
    for op in ('v_permlane16_swap_b32','v_permlane32_swap_b32'): e(valu('v_mov_b32',d[1],b), swap(op,b,d[1]), valu('v_add_f32',b,b,d[1]))
    e(valu('v_mul_f32',b,f32(1/576),b), valu('v_fma_f32',b,'-'+str(MEAN[tt]),MEAN[tt],b), valu('v_max_f32',b,0,b), valu('v_cvt_pk_bf16_f32',b,b,b), valu('v_lshlrev_b32',b,16,b),
      valu('v_add_f32',b,f32(1e-5),b), valu('v_cvt_pk_bf16_f32',b,b,b), valu('v_lshlrev_b32',b,16,b),
      valu('v_sqrt_f32',b,b), valu('v_cvt_pk_bf16_f32',b,b,b), valu('v_lshlrev_b32',b,16,b), valu('v_rcp_f32',vR[tt],b))
def centre_ops(f,tt):
    o=[]; t=V(252)
    for d in range(4):
        x=f[d]
        o+=[valu('v_lshlrev_b32',t,16,x), valu('v_and_b32',x,0xffff0000,x), valu('v_sub_f32',t,t,vM[tt]), valu('v_sub_f32',x,x,vM[tt]), valu('v_cvt_pk_bf16_f32',x,t,x)]
    return o
def to_acc(s): return [valu('v_accvgpr_write_b32',XC0[4*s+d],X0[s][d]) for d in range(4)]

class Item:
    def __init__(s,name,n,mk): s.name=name; s.n=n; s.mk=mk; s.addr=None; s.first=None; s.last=None; s.pushed=False
    def blks(s): return list(range(s.addr//4096,s.addr//4096+s.n))
def blk_item(name,voff,srd,soff,buf=False,c=80):
    def mk(it):
        o=[salu('s_add_u32','m0',sW1K,it.addr)]
        if buf: return o+[salu('s_mov_b32',sSO,soff), cost(dma(voff,srd,sSO,tag=it.name,dst=it.blks()),c)]
        return o+base_add(sBD,srd,soff)+[cost(gdma(voff,sBD,tag=it.name,dst=it.blks()),c)]
    return Item(name,1,mk)
def qkv_item(a):
    def mk(it):
        o=[salu('s_mov_b32',sSO,a*128*3456)] if a==4 else base_add(sBD,sWQ,a*128*3456)
        for q in range(7):
            if q%4==0: o.append(salu('s_add_u32','m0',sW7K,it.addr+q*1024))
            if a==4: o.append(dma(vQK[q],sWQ,sSO,(q%4)*1024,tag=it.name,dst=it.blks()))
            else: o.append(cost(gdma(vQK[q],sBD,(q%4)*1024,tag=it.name,dst=it.blks()),120))
        return o
    return Item(('q',a),7,mk)
def kv_item(sg):
    def mk(it):
        o=[salu('s_add_u32','m0',sW5K,it.addr+2048)]+base_add(sBD,sWS,WS_QKV+sg*10240+2048)
        for q in range(5):
            o.append(gdma(vKV,sBD,q*1024-2048,flags='sc1',tag=it.name,dst=it.blks())); o[-1].rd.append('ok_f1'); o[-1].meta['bat']=q>0
        return o
    return Item(('kv',sg),5,mk)

class Group:
    def __init__(s): s.m=[]; s.rd=[]; s.bar=False; s.fr=[]
frp=[0]
def newfrag():
    pl=[FR[4*n:4*n+4] for n in range(16)]+[A(216+4*n,4) for n in range(OPT['frx'])]
    f=pl[frp[0]]; frp[0]=(frp[0]+1)%len(pl); return f
def tr_read(f,u,it,seg):
    return dsr('ds_read_b64_tr_b16',f[2*u:2*u+2],vTR[seg][it.addr>>16],(it.addr&0xffff)+u*2048,src=(it.name,it.blks()))
def xc(tt,s): return (XC0 if tt==0 else XC1)[4*s:4*s+4]
def hfrag(k,tt): return HH[8*k+4*tt:8*k+4*tt+4]

items=[]; groups=[]; events=[]
def chain_mm(g,ks,accs,bfun):
    t0=len(groups)&1 if OPT['snake'] else 0
    for z in range(2):
        tt=t0^z; o=list(zip(ks,g.fr))
        if z and OPT['snake']: o.reverse()
        for n,(k,f) in enumerate(o): g.m.append(m16(accs[tt],f,bfun(k,tt),0 if (ks[0]==0 and n==0) else accs[tt]))
def mm_group(srcs,accs,bfun,bar=False):
    g=Group(); g.bar=bar
    for it,seg,k in srcs:
        f=newfrag(); g.fr.append(f)
        for u in range(2): g.rd.append((it,lambda it,f=f,u=u,seg=seg: tr_read(f,u,it,seg)))
    chain_mm(g,[k for _,_,k in srcs],accs,bfun)
    groups.append(g); return len(groups)-1

def h_epilogue(bank,q,kout,half):
    gt=[bank[16*q+4*tt:16*q+4*tt+4] for tt in range(2)]; up=[bank[16*q+8+4*tt:16*q+12+4*tt] for tt in range(2)]
    o=[]
    for tt in range(2):
        for r in range(4): o.append(valu('v_max_f32',gt[tt][r],0,gt[tt][r]))
    for tt in range(2):
        for r in range(4): o.append(valu('v_mul_f32',up[tt][r],gt[tt][r],up[tt][r]))
        for d in range(2): o.append(valu('v_cvt_pk_bf16_f32',gt[tt][d],up[tt][2*d],up[tt][2*d+1]))
        for d in range(2): o.append(valu('v_accvgpr_write_b32',hfrag(kout,tt)[2*half+d],gt[tt][d]))
    return o
NV0=15
X0=[V(192+4*s,4) for s in range(NV0)]+[V(128+4*s,4) for s in range(18-NV0)]
def build_chunk(c,bank):
    xf=lambda k,tt: X0[k] if (c==0 and tt==0 and k<NV0) else xc(tt,k)
    cuts=list(range(0,19,OPT['chain']))
    if c==0: cuts=list(range(0,19,3)) if OPT['c0ch']==3 else [0,3,6,12,15,18]
    for st,(k0,k1) in enumerate(zip(cuts,cuts[1:])):
        G=[blk_item(('g',c,k),vGF,sWG,k*32*9216+c*128) for k in range(k0,k1)]
        U=[blk_item(('u',c,k),vGF,sWU,k*32*9216+c*128) for k in range(k0,k1)]
        flip=OPT['flip'] and (len(cuts)-2-st)%2==1
        items.extend(U+G if flip else G+U)
        for z,(M,o) in enumerate(((U,8),(G,0)) if flip else ((G,0),(U,8))):
            for n,q in enumerate(range(3,-1,-1) if flip else range(4)):
                b=(n==0) if z==0 else (n==0 and ((k1-k0>3 and str(c) not in str(OPT['aint'])) or OPT['bartr'] or (c==0 and st<OPT.get('bar0',2))))
                gi=mm_group([(M[k-k0],q,k) for k in range(k0,k1)],[bank[16*q+o+4*tt:16*q+o+4+4*tt] for tt in range(2)],xf,bar=b)
                if k1==18 and z: events.append((gi,h_epilogue(bank,q,2*c+(q>>1),q&1)))
def build_half(bank):
    for st in range(3):
        G=[blk_item(('gh',3*st+n),vGH,sWG,(3*st+n)*64*9216,c=150) for n in range(3)]
        U=[blk_item(('uh',3*st+n),vGH,sWU,(3*st+n)*64*9216,c=150) for n in range(3)]
        items.extend(G+U)
        seq=[(G,0,0),(G,0,1),(U,8,0),(U,8,1)] if st<2 else [(G,0,0),(U,8,0),(G,0,1),(U,8,1)]
        for z,(M,o,q) in enumerate(seq):
            ch=min(6,OPT['chain'])
            for hh in range(6//ch):
                ks=[6*st+ch*hh+n for n in range(ch)]
                gi=mm_group([(M[(k-6*st)>>1],2*(k&1)+q,k) for k in ks],[bank[16*q+o+4*tt:16*q+o+4+4*tt] for tt in range(2)],lambda k,tt:xc(tt,k),bar=(hh==0 and (z==0 or (z==2 and st<2 and OPT['bartr']))))
            if st==2 and o==8: events.append((gi,h_epilogue(bank,q,8,q)))
def build_qkv(bank):
    for a in range(5):
        it=qkv_item(a); items.append(it)
        first=True
        qc=OPT['qch'] if a<4 else 2
        for k0 in range(0,4 if a<4 else 2,qc):
            for t in (range(6,-1,-1) if OPT['flip'] and a%2 else range(7)):
                g=Group(); g.bar=first; first=False
                for kk in range(k0,k0+qc):
                    f=newfrag(); g.fr.append(f)
                    for u in range(2):
                        def rd(it,f=f,u=u,kk=kk,t=t):
                            ad=it.addr+kk*7168+u*3584+(0 if t==6 else 72*(t>>1)+40*(t&1))
                            return dsr('ds_read_b64_tr_b16',f[2*u:2*u+2],(vQE if t==6 else vQM)[ad>>16],ad&0xffff,src=(it.name,it.blks()))
                        g.rd.append((it,rd))
                chain_mm(g,[4*a+kk for kk in range(k0,k0+qc)],[bank[8*t+4*tt:8*t+4*tt+4] for tt in range(2)],lambda k,tt:xc(tt,k))
                groups.append(g)
                if a==4: events.append((len(groups)-1,qkv_epilogue(bank,t)))
def st_pair(o,data,voff,soff,tag,x=None):
    a=salu('s_mov_b32',sSO2,soff) if x is None else salu('s_add_u32',sSO2,x,soff); b=bstore(data,voff,sWS,sSO2,flags='sc1',tag=tag)
    dep=[x for x in o if x.kind=='valu'][-1]
    a.meta['q']='st'; b.meta['q']='st'; b.meta['dep']=dep
    o+=[a,b]
def qkv_epilogue(bank,t):
    o=[]
    sc=[bank[56],bank[57]]
    if t==6: o+=[valu('v_mul_f32',sc[tt],vSCX,vR[tt]) for tt in range(2)]
    elif t%2==0: o+=[valu('v_mul_f32',sc[tt],sSC[t>>1],vR[tt]) for tt in range(2)]
    a=bank[8*t:8*t+8]
    for tt in range(2):
        for r in range(4): o.append(valu('v_mul_f32',a[4*tt+r],sc[tt],a[4*tt+r]))
    if t<6:
        o+=[valu('v_cvt_pk_bf16_f32',a[0],a[0],a[1]), valu('v_cvt_pk_bf16_f32',a[1],a[2],a[3]), valu('v_cvt_pk_bf16_f32',a[2],a[4],a[5]), valu('v_cvt_pk_bf16_f32',a[3],a[6],a[7]),
            swap('v_permlane16_swap_b32',a[0],a[2]), swap('v_permlane16_swap_b32',a[1],a[3])]
        st_pair(o,a[0:4],vSM,WS_QKV+t*SL,'qkvst')
    else:
        o+=[valu('v_cvt_pk_bf16_f32',a[0],a[0],a[1]), valu('v_cvt_pk_bf16_f32',a[2],a[2],a[3]), valu('v_cvt_pk_bf16_f32',a[4],a[4],a[5]), valu('v_cvt_pk_bf16_f32',a[6],a[6],a[7])]
        o+=[valu('v_mov_b32',a[n],sONES) for n in (1,3,5,7)]
        o+=[swap('v_permlane16_swap_b32',a[0],a[4]), swap('v_permlane16_swap_b32',a[2],a[6])]
        for n,(vo,sl) in enumerate(((vSE0,0),(vSE0,1),(vSE1,2),(vSE1,3))):
            st_pair(o,a[2*n:2*n+2],vo,WS_QKV+sl*SL,'qkvst')
    return o
pool=[0]
def build_down():
    ntr=0
    if OPT['chain']==3: seq=[(c,3*tr,3*tr+3) for c,tr in [(0,0),(0,1),(1,0),(1,1),(0,2),(1,2)]+[(c,tr) for c in range(2,9) for tr in range(3)]]
    else:
        seq=[(0,0,6),(1,0,6),(0,6,9),(1,6,9)]
        for c in range(2,9): seq+=[(c,0,9)] if OPT['chain']==9 and c<8 else ([(c,0,6),(c,6,9)] if c%2==0 else [(c,0,3),(c,3,9)])
    for c,k0,k1 in seq:
        acc=V(192 if c==0 else 128+32*((c+1)%2),32)
        tr=2 if k1==9 else 0
        if True:
            B=[blk_item(('d',c,k),vDF if k<8 else vDH,sWD,(k*32*1152 if k<8 else 0)+c*128) for k in range(k0,k1)]
            items.extend(B)
            for n,q in enumerate(range(3,-1,-1) if OPT['flip'] and k1<9 and c>1 else range(4)):
                gi=mm_group([(B[k-k0],q,k) for k in range(k0,k1)],[acc[16*tt+4*q:16*tt+4*q+4] for tt in range(2)],hfrag,bar=(n==0 and (ntr%OPT['bint']==0 or ntr==26 or (ntr>=OPT['bl'] and ntr%2==0) or k1-k0==9 or OPT['bartr'])))
                if tr==2 and q%2==1:
                    o=[]
                    for tt in range(2):
                        a=acc[16*tt+4*(q-1):16*tt+4*(q-1)+8]
                        pl=[XC1[4*n:4*n+4] for n in range(18)]; pa=([A(212+4*n,4) for n in range(7)]+[A(24+4*n,4) for n in range(4)]+[A(60+4*n,4) for n in range(3)])[:OPT['apool']]
                        n=pool[0]; pool[0]+=1; a0_=OPT['ap0']
                        if a0_<=n<a0_+len(pa):
                            d4=pa[n-a0_]
                            o+=[valu('v_cvt_pk_bf16_f32',a[d],a[2*d],a[2*d+1]) for d in range(4)]+[valu('v_accvgpr_write_b32',d4[d],a[d]) for d in range(4)]
                        else:
                            d4=pl[(n if n<a0_ else n-len(pa))%18]
                            o+=[valu('v_cvt_pk_bf16_f32',d4[d],a[2*d],a[2*d+1]) for d in range(4)]
                        if c<8: st_pair(o,d4,vPS,WS_P+c*CS+(q>>1)*16384,'pst',sXX if tt else sXP)
                        else:
                            for z in range(2): st_pair(o,d4[2*z:2*z+2],vPX,WS_PX+(q-1+z)*ES,'pst',sXX if tt else sXP)
                    events.append((gi,o))
            ntr+=(k1-k0)//3

marks={}
def build_ffn():
    marks['c0']=len(groups); build_chunk(0,BANK[0])
    marks['c1']=len(groups); build_chunk(1,BANK[1])
    marks['qkv']=len(groups); build_qkv(BANK[0])
    marks['c2']=len(groups); build_chunk(2,BANK[1])
    marks['c3']=len(groups); build_chunk(3,BANK[0])
    marks['half']=len(groups); build_half(V(224,32))
    marks['down']=len(groups); build_down()

NB=39 if OPT['split'] else 40; LATE=10**9
SIG=13 if OPT['split'] else 1
vCA,vCV=V(54),vT[7]
def plan():
    L=OPT['look']
    n=0; bars=[]
    for g in groups:
        g.start=n
        if g.bar: bars.append(n-L-(1 if n and OPT['balone']==2 else 0))
        for k,(it,_) in enumerate(g.rd):
            if it.first is None: it.first=n+k-L
            it.last=n-1+(0 if len(g.fr)<=3 else ((k//4)*2 if not OPT['w3'] else (k//6)*3))
        n+=len(g.m)
    free={b:(-3000 if b>=36 else (-2000 if b<18 else -L)) for b in range(NB)}
    ptr=36
    for it in items:
        if ptr+it.n>NB: ptr=0
        it.addr=ptr*4096
        it.early=max(free[b] for b in it.blks())
        assert it.early<LATE
        it.bar=max(b for b in bars if b<=it.first)
        nxt=[b for b in bars if b-SIG>=it.last]
        for b in it.blks(): free[b]=nxt[0] if nxt else LATE
        ptr=(ptr+it.n)%NB
    return n,bars,free

VM=('dma','vld','vst')
SC=('salu','waitfor','misc','label')
lastvm=dict(any=-100,st=-100)
def head(nm,gap):
    q=fifo[nm]
    if not q or q[0][0]>gap: return None
    x=q[0][1]
    if 'lag' in x.meta and x.meta['lag'][0].meta.get('at',LATE)+x.meta['lag'][1]>gap: return None
    sq=x.meta['seq']; rd=set(x.rd)-{'carry'}; wr=set(x.wr)-{'carry'}
    for n2,q2 in fifo.items():
        if n2==nm: continue
        for _,y in q2:
            if y.meta['seq']>sq: break
            if rd&set(y.wr) or wr&set(y.rd) or wr&set(y.wr): return None
    return x
pipe=[0,16]
def vm_ready(gap,mingap,stgap,order=('st','ld','low','dma')):
    if gap-lastvm['any']<mingap: return None
    if pipe[0]-gap*pipe[1]>OPT['back']: return None
    for nm in order:
        x=head(nm,gap)
        if x is None or x.kind not in VM: continue
        if nm=='st':
            d=x.meta.get('dep')
            if gap-lastvm['st']<stgap or (d is not None and d.meta.get('at',LATE)>gap-2): continue
        return nm
    return None
def take(nm,gap):
    x=fifo[nm].pop(0)[1]
    if x.kind in VM:
        lastvm['any']=gap
        pipe[0]=max(pipe[0],gap*pipe[1])+x.meta.get('cost',80)
        if nm=='st': lastvm['st']=gap
    e(x)
    nx=[y for _,y in fifo[nm][:6] if 'vcc' in y.rd or 'vcc' in y.wr]
    if nx and 'vcc' in nx[0].rd: vcc_open[0]=nm
    elif vcc_open[0]==nm: vcc_open[0]=None
    while x.meta.get('glue'):
        x=fifo[nm].pop(0)[1]; e(x)
    return x
vcc_lock=[LATE]; vcc_open=[None]
def pull(gap,scalar):
    order=('arr','st','ld','dma','ctr','epi','low') if scalar and OPT['sprio'] else ('arr','dma','st','ctr','epi','ld','low')
    if scalar:
        for nm in order:
            x=head(nm,gap)
            if x is not None and 'carry' in x.rd: take(nm,gap); return True
    elif vcc_open[0]: order=(vcc_open[0],)+order
    for nm in order:
        x=head(nm,gap)
        if x is None or x.kind in VM: continue
        if (x.kind in SC)!=scalar: continue
        if 'vcc' in x.wr and not x.meta.get('glue') and vcc_lock[0]<OPT.get('vlock',22): continue
        take(nm,gap); return True
    return False

bar_extra={}; PH={}
def emit_backbone(bars,gapstamps):
    L=OPT['look']
    reads=[(it,f,g.start-0.5) for g in groups for it,f in g.rd]
    ev={}
    for gi,ops in events: ev.setdefault(gi,[]).append(ops)
    bar_items={}
    for it in items: bar_items.setdefault(it.bar,[]).append(it.name)
    barset=set(bars); issue={}
    fixed={}; fixT={}
    nb=len([b for b in bars if b>=SIG and OPT['split']]); kb=0
    for gi,g in enumerate(groups):
        for k in range(len(g.m)):
            gap=g.start+k; fx=[]
            w_lg=list(groups[gi+1].fr) if (k==len(g.m)-1 and gi+1<len(groups)) else []
            if len(w_lg)>3: w_lg=w_lg[:3 if OPT['w3'] else 2]
            if len(g.fr)>3 and not OPT['w3'] and k in (1,3): w_lg=g.fr[k+1:k+3]
            if len(g.fr)>3 and OPT['w3'] and k in (2,5) and k+1<len(g.fr): w_lg=g.fr[k+1:k+4]
            if len(g.fr)>6 and k in (9,13): w_lg=groups[gi+1].fr[:1+(k-9)//2] if gi+1<len(groups) else []
            w_vm=[]
            for d in (1,SIG):
                b=gap+d
                if b in barset and d==(SIG if b>=SIG else 1): w_vm=bar_items.get(b,[])+bar_extra.get(b,[])
            if OPT['split']:
                if gap+SIG in barset: x=dsw('ds_sub_u32',vCA,vONE); x.meta['signal']=True; fixT[gap]=x
                if gap+7 in barset and gap+7>=SIG: assert gap not in fixT; fixT[gap]=dsr('ds_read_b32',vCV,vCA)
                if gap+1 in barset and gap+1>=SIG:
                    kb+=1; assert gap not in fixT
                    fixT[gap]=valu('v_cmp_lt_u32','vcc',4*(nb-kb),vCV); w_lg.append(vCV)
                    OUT.extend([f'L_sb{kb}:', f'ds_read_b32 {vCV}, {vCA}', 's_waitcnt lgkmcnt(0)', fixT[gap].text, 's_nop 0', f's_cbranch_vccnz L_sb{kb}', f's_branch L_sr{kb}'])
            if gap in barset:
                if OPT['split'] and gap>=SIG: fx.append([raw(f's_cbranch_vccnz L_sb{kb}','misc',['vcc'],check=True,glue=True), label(f'L_sr{kb}')])
                else: fx.append([barrier()])
            if w_lg or w_vm: fx.append([waitfor(lg=w_lg,vmtags=w_vm)])
            fixed[gap]=fx
    def stgap_at(gap):
        dn=gap>=groups[marks['down']].start
        iv=len([b for b in bars if b<=gap])
        if iv%OPT['stper' if dn else 'qstper']: return LATE
        if any(-1<=g-gap<OPT['atd']*3//4 for g in extra): return LATE
        return OPT['stgap' if dn else 'qstgap']
    ri=[L]
    def rd():
        it,f,lg=reads[ri[0]]; ri[0]+=1; e(setseq(f(it),lg))
    planned=None
    for gi,g in enumerate(groups):
        for k,m in enumerate(g.m):
            gap=g.start+k
            if gap-1 in extra:
                cur[0]=gap-0.7
                e(*extra[gap-1])
                x=head('st',gap); n=extra[gap-1][-1].passes-3
                if x is not None and x.kind=='vst' and x.meta['dep'].meta.get('at',LATE)<gap-2: take('st',gap); n=0
                for _ in range(n): pull(gap-1,False)
            cur[0]=gap
            e(m)
            if gap in gapstamps: stamp(gapstamps[gap])
            if gap in PH: note(PH[gap])
            if 'gst' in OPT and gap in range(*map(int,OPT['gst'].split(':'))): stamp(f'gap{gap}',True)
            if planned:
                x=take(planned,gap); planned=None; assert x.kind in VM
                if x.kind=='dma': issue[x.meta['tag']]=gap
                continue
            fx=fixed[gap]
            nosc=OPT['nosc'] and P[-2].kind=='valu' and any(r=='vcc' or r[0]=='s' for r in P[-2].wr)
            if fx: e(*fx.pop(0))
            elif not nosc and not pull(gap,True) and OPT['snop']: e(raw('s_nop 0','misc'))
            if gap in barset and OPT['balone']==3 and not fx: continue
            if ri[0]<len(reads) and ri[0]<=gap+L: rd()
            elif ri[0]>=len(reads) and tail_reads: e(tail_reads.pop(0))
            used=False
            if gap in barset and OPT['balone'] and not fx: continue
            if gap+1 in barset and OPT['balone']==2 and not fx and len(fixed[gap+1])==1 and ri[0]<len(reads) and reads[ri[0]][0].bar<=gap: rd(); continue
            if fx: e(*fx.pop(0)); used=True
            if gap in fixT:
                e(fixT[gap]); used=True
                if fixT[gap].kind=='valu': continue
            lag=ri[0]<len(reads) and ri[0]<=gap+L
            if lag:
                if not used: rd()
                continue
            if gap+1 in fixed and not fixed[gap+1] and gap+1 not in fixT: planned=vm_ready(gap+1,OPT['dmagap'],stgap_at(gap+1))
            if used: continue
            if planned:
                if OPT['vmpat']==0 and ri[0]<len(reads) and reads[ri[0]][0].bar<=gap: rd()
                if OPT['vmpat']==2: pull(gap,False)
                continue
            vcc_lock[0]=min([b for b in bars if b>gap]+[LATE])-gap if OPT['split'] else LATE
            if not pull(gap,False) and not nosc: pull(gap,True)
        for ops in ev.get(gi,[]):
            for o in ops: push(o.meta.get('q','epi'),gap+4,[o])
    vcc_lock[0]=LATE
    sl=[(it.bar-SIG-issue[it.name],it.name) for it in items if it.name in issue]
    sl.sort(); print('min dma slack (gaps):',sl[:6])
    print('left after backbone:',{k:len(v) for k,v in fifo.items()})

OUT=[]
HOT=[]
def spin(name,load,expect,sleep=8,cmp='v_cmp_gt_u32',pre=[]):
    a=valu(cmp,'vcc',expect,vPOLL); a.meta['glue']=True
    b=raw(f's_cbranch_vccnz L_spin_{name}','misc',['vcc']); b.meta['glue']=True
    c=label(f'L_back_{name}')
    cnt=vT[6]
    OUT.extend([f'L_spin_{name}:', f'v_mov_b32 {cnt}, 0x40000', f'L_spinl_{name}:', *pre, load.text, 's_waitcnt vmcnt(0)', f'{cmp} vcc, {fmt(expect)}, {vPOLL}', 's_nop 1',
        f's_cbranch_vccz L_back_{name}', f'v_subrev_u32 {cnt}, 1, {cnt}', f'v_cmp_ne_u32 vcc, 0, {cnt}', f's_sleep {sleep}', f's_cbranch_vccnz L_spinl_{name}', f's_branch L_back_{name}'])
    a.wr.append(cnt.regs()[0]); a.wr.append('ok_'+name)
    return [a,b,c]

def addr_att(WB):
    t,u,key,hf,p,rp=vT[0],vT[1],vT[2],vT[3],vT[4],vT[5]
    e(valu('v_and_b32',key,31,vL), valu('v_lshrrev_b32',hf,5,vL), valu('v_lshlrev_b32',t,2,hf), valu('v_xor_b32',t,t,vL), valu('v_lshlrev_b32',vKM,4,t))
    extpos(u,key,t)
    e(valu('v_lshlrev_b32',vKE,3,u), valu('v_add_u32',vKE,1024,vKE))
    e(salu('s_lshr_b32',sT0,sW,1), salu('s_lshl_b32',sT0,sT0,5), salu('s_add_u32',sT0,sT0,sH), salu('s_add_u32',sT0,sT0,32), salu('s_mul_i32',sT0,sT0,SL),
      salu('s_and_b32',sT1,sW,1), salu('s_mul_i32',sT1,sT1,5120), salu('s_add_u32',sT0,sT0,sT1), valu('v_lshl_add_u32',vKV,vL,4,sT0))
def addr_z(): e(valu('v_and_b32',vZ,1,vL), valu('v_lshlrev_b32',vZ,7,vZ))
def qk_loads(WB):
    t,u,hf=vT[0],vT[1],vT[3]
    e(salu('s_mov_b32',sSO3,WS_R2), cost(bload(vR2,vR2,sWS,sSO3,flags='sc1'),40))
    e(valu('v_lshrrev_b32',hf,5,vL), valu('v_mul_u32_u24',u,1280,hf), valu('v_add_u32',u,u,vKE))
    e(salu('s_lshl_b32',sT0,sM8,2), salu('s_add_u32',sT0,sT0,sW), salu('s_mul_i32',sT0,sT0,2560), salu('s_mul_i32',sT1,sH,SL), salu('s_add_u32',sSO3,sT0,sT1))
    for x in range(2): e(bload(QM[x],vKM,sWS,sSO3,x*1280,flags='sc1'))
    e(cost(bload(QE[0],u,sWS,sSO3,0,flags='sc1'),40))
    e(salu('s_add_u32',sSO3,sT1,32*SL))
    for x in range(2): e(bload(KM[x],vKM,sWS,sSO3,x*1280,flags='sc1'), cost(bload(KE[x],vKE,sWS,sSO3,x*1280,flags='sc1'),40))
    e(valu('v_add_u32',vKM,WB,vKM), valu('v_add_u32',vKE,WB,vKE), valu('v_mov_b32',QE[1],0), valu('v_mov_b32',vIDX,0xdddd))
def zero_o():
    for x in range(2):
        for r in range(16): e(valu('v_mov_b32',OO[x][r],0))
def extra_zero(ngaps):
    with collect() as o: zero_o()
    push('ctr',ngaps-66,o,ngaps-66)
def addr_lds(WB):
    t,hf=vT[0],vT[3]
    e(valu('v_lshrrev_b32',hf,5,vL))
    c,r,k,x=vT[4],vT[5],vT[6],vT[1]
    e(valu('v_and_b32',c,3,vL), valu('v_bfe_u32',r,vL,2,2), valu('v_lshl_add_u32',r,hf,3,r))
    for n in range(4):
        uu,y=n>>1,n&1
        e(valu('v_add_u32',k,16*uu+4*y,r))
        extpos(x,k,t)
        e(valu('v_lshlrev_b32',x,3,x), valu('v_min_u32',t,1,c), valu('v_mul_u32_u24',t,LDS_OOB+64,t), valu('v_xor_b32',x,x,t), valu('v_add_u32',x,1024,x))
        e(valu('v_lshrrev_b32',t,1,c), valu('v_mul_u32_u24',t,36,t), valu('v_xor_b32',k,k,t), valu('v_lshlrev_b32',k,4,k), valu('v_and_b32',t,1,c), valu('v_lshl_add_u32',k,t,3,k))
        e(valu('v_and_b32',t,16,vL), valu('v_cmp_eq_u32','vcc',0,t), valu('v_cndmask_b32',k,x,k), valu('v_add_u32',vVA[n],WB,k))
vOP,vSH,vINC=V(55),V(16),V(17)
def addr_op():
    t,u,g=vT[2],vT[4],vT[5]
    e(salu('s_lshl_b32',sT0,sXC,2), valu('v_lshlrev_b32',vINC,sT0,vONE), salu('s_mov_b32',sPV,0), valu('v_add_u32',vKE1,1280,vKE))
    if OPT['vp']: e(valu('v_min_u32',vOP,1,vL), valu('v_lshl_add_u32',vOP,vOP,31,sF3))
    if OPT['warm']: e(salu('s_and_b32',sT0,sIDX,7), salu('s_lshl_b32',sT0,sT0,2), salu('s_add_u32',sT0,sT0,sW),
      salu('s_lshl_b32',sT1,sXC,2), salu('s_lshr_b32',sT2,sIDX,3), salu('s_add_u32',sT1,sT1,sT2),
      salu('s_lshr_b32',sT2,sT0,4), salu('s_lshl_b32',sT2,sT2,15), salu('s_and_b32',sT3,sT0,15), salu('s_lshl_b32',sT3,sT3,8), salu('s_add_u32',sT2,sT2,sT3),
      salu('s_lshl_b32',sT3,sT1,16), salu('s_add_u32',sT2,sT2,sT3), salu('s_add_u32',sT2,sT2,WS_O),
      valu('v_lshrrev_b32',g,1,vL), valu('v_lshl_add_u32',t,g,12,sT2), valu('v_and_b32',u,1,vL), valu('v_lshl_add_u32',t,u,7,t),
      salu('s_bfe_u32',sT2,sT0,0x10002), salu('s_lshl_b32',sT2,sT2,12), salu('s_and_b32',sT3,sT0,3), salu('s_lshl_b32',sT3,sT3,7), salu('s_add_u32',sT2,sT2,sT3),
      salu('s_lshl_b32',sT3,sT1,13), salu('s_add_u32',sT2,sT2,sT3), salu('s_add_u32',sT2,sT2,WS_OX),
      valu('v_and_b32',u,7,vL), valu('v_lshl_add_u32',vOP,u,9,sT2), valu('v_cmp_gt_u32','vcc',16,vL), valu('v_cndmask_b32',vOP,vOP,t), valu('v_cndmask_b32',g,u,g),
      valu('v_lshl_add_u32',g,g,2,2), valu('v_cmp_gt_u32','vcc',24,vL), valu('v_cndmask_b32',vSH,3,g))
def x_loads():
    o=[cost(gload(XR[2*q:2*q+2],vXO,sX[0:2],32*q),260) for q in range(4)]+[cost(bload(XR[8:10],vXOX,sX,0),200)]
    for q in (1,3,4): o[q].meta['bat']=True
    return o
def addr_fin():
    t,u,p,rp,a,b=vT[0],vT[1],vT[4],vT[5],vT[6],vT[3]
    lane_rp(rp,p,t)
    e(salu('s_and_b32',sT0,sW,1), salu('s_lshr_b32',sT1,sW,1), salu('s_mul_i32',sT2,sT0,20), salu('s_lshl_b32',sT3,sT1,3), salu('s_add_u32',sT2,sT2,sT3), valu('v_add_u32',a,sT2,rp),
      salu('s_mul_i32',sT2,sT0,288), salu('s_mul_i32',sT3,sT1,36), salu('s_add_u32',sT2,sT2,sT3), salu('s_add_u32',sT2,sT2,16),
      valu('v_lshrrev_b32',t,2,rp), valu('v_mul_u32_u24',t,144,t), valu('v_and_b32',b,3,rp), valu('v_add3_u32',b,b,t,sT2))
    e(salu('s_and_b32',sT0,sIDX,7), salu('s_lshl_b32',sT1,sT0,7), valu('v_lshl_add_u32',u,p,4,sT1),
      valu('v_mul_u32_u24',t,1152,a), valu('v_add_u32',vWO,t,u), valu('v_mul_u32_u24',t,1152,b), valu('v_add_u32',vWOE,t,u))
    e(salu('s_lshr_b32',sT2,sT0,1), salu('s_lshl_b32',sT2,sT2,5), salu('s_add_u32',sT2,sT2,1024), valu('v_and_b32',u,1,p), valu('v_lshl_add_u32',u,u,4,sT2), valu('v_lshrrev_b32',p,1,p),
      valu('v_mul_u32_u24',t,36,p), valu('v_add_u32',t,t,a), valu('v_mul_u32_u24',t,1152,t), valu('v_add_u32',vWX,t,u),
      valu('v_mul_u32_u24',t,p,p), valu('v_mul_u32_u24',t,t,p), valu('v_mul_u32_u24',t,72,t), valu('v_add_u32',t,t,b), valu('v_mul_u32_u24',t,1152,t), valu('v_add_u32',vWXE,t,u))
    e(*grp_ops(sT3,sSO3), salu('s_lshl_b32',sT3,sT3,2), salu('s_add_u32',sT3,sT3,sW))
    tk,g=vT[4],vT[5]
    e(valu('v_and_b32',tk,15,vL), valu('v_lshrrev_b32',g,4,vL))
    e(salu('s_mul_i32',sSC[2],sT3,TS), salu('s_mul_i32',sSO3,sT0,CS), salu('s_add_u32',sSO3,sSO3,sSC[2]), valu('v_lshl_add_u32',vPL,vL,4,sSO3))
    e(salu('s_xor_b32',sSC[0],sW,sT0), salu('s_lshl_b32',sSC[0],sSC[0],31))
    e(salu('s_lshr_b32',sSO3,sT0,1), salu('s_mul_i32',sSO3,sSO3,ES), salu('s_add_u32',sSO3,sSO3,sSC[2]), salu('s_ashr_i32',sSC[1],sSC[0],31), salu('s_andn2_b32',sSC[1],0x1f8,sSC[1]), valu('v_lshlrev_b32',t,3,vL), valu('v_and_b32',t,sSC[1],t), valu('v_add_u32',vPLX,sSO3,t))
    e(salu('s_lshl_b32',sSO3,sT3,4), valu('v_add_u32',a,sSO3,tk), valu('v_lshlrev_b32',vR2,2,a), valu('v_mul_u32_u24',a,1152,a), valu('v_lshl_add_u32',a,g,3,a),
      valu('v_add_u32',vXO,sT1,a), salu('s_or_b32',sT2,sT2,sSC[0]), valu('v_add_u32',vXOX,sT2,a))
    if not OPT['xat']: e(*x_loads())
    e(salu('s_and_b32',sSO3,sT3,1), salu('s_lshl_b32',sSO3,sSO3,4), valu('v_add_u32',a,sSO3,tk), salu('s_lshr_b32',sSC[1],sT3,1),
      salu('s_mul_i32',sSO3,sSC[1],OS), valu('v_lshl_add_u32',t,a,4,sSO3), valu('v_lshl_add_u32',vOL,g,9,t),
      salu('s_mul_i32',sSO3,sSC[1],XS), valu('v_lshl_add_u32',t,a,2,sSO3), valu('v_lshl_add_u32',vOLX,g,10,t))
    e(valu('v_and_b32',t,31,vL))
    for n in range(4): e(*base_add(sOB[n],sWS,WS_O+8192*n+4096))
    e(*base_add(S(88,2),sWS,WS_O), *base_add(S(90,2),sWS,WS_O+OS))
    e(salu('s_lshr_b32',sSO3,sT3,1), salu('s_lshl_b32',sSO3,sSO3,11), salu('s_add_u32',sSO3,sSO3,WS_F2), salu('s_and_b32',sSC[1],sIDX,3), salu('s_lshl_b32',sSC[1],sSC[1],9), salu('s_add_u32',sSO3,sSO3,sSC[1]),
      valu('v_min_u32',vPG,1,vL), valu('v_lshl_add_u32',vPG,vPG,31,sSO3))
    e(salu('s_lshl_b32',sT0,sM8,2), salu('s_add_u32',sT0,sT0,sW), salu('s_mul_i32',sT1,sT0,2*OS), salu('s_lshl_b32',sT2,sH,10), salu('s_add_u32',sT1,sT1,sT2),
      valu('v_lshl_add_u32',vOS,vL,4,sT1),
      salu('s_mul_i32',sT1,sT0,2*XS), salu('s_lshl_b32',sT2,sH,7), salu('s_add_u32',sT1,sT1,sT2), salu('s_add_u32',sT1,sT1,WS_OX),
      valu('v_lshl_add_u32',t,t,2,sT1), valu('v_lshrrev_b32',u,5,vL), valu('v_mul_u32_u24',u,XS,u), valu('v_add_u32',vOSX,u,t))

def max_ops(srcs,m,first=True):
    o=[]
    regs=[s[r] for s in srcs for r in range(16)]
    if first: o.append(valu('v_max3_f32',m,regs[0],regs[1],regs[2])); rest=regs[3:]
    else: rest=regs
    while len(rest)>=2: o.append(valu('v_max3_f32',m,m,rest[0],rest[1])); rest=rest[2:]
    if rest: o.append(valu('v_max_f32',m,m,rest[0]))
    return o
def set_shift(mx,margin):
    m,t=mx
    return [swap('v_permlane32_swap_b32',m,t), valu('v_max_f32',m,m,t), valu('v_sub_f32',m,f32(-margin) if margin else 0,m),
            valu('v_cvt_pk_bf16_f32',t,m,m), valu('v_lshlrev_b32',t,16,t), valu('v_sub_f32',t,m,t), valu('v_cvt_pk_bf16_f32',QE[1],m,t)]
def Bx(tau,buf=None): return m2b(buf or SBB[tau%3],KE[tau%4],QE,0)
def Mx(tau,x,buf=None): b=(buf or SBB[tau%3])[16*x:16*x+16]; return m32(b,KM[tau%3],QM[x],b)
def PV(tau,x,h,buf=None): return smf(OO[x],VV[tau&1][4*h:4*h+4],(buf or SBB[tau%3])[16*x+8*h:16*x+8*h+8],vIDX)
def vread(kv,WB,tau,n):
    it=kv[tau>>3]; off=it.addr-WB+10240+(tau&7)*1280
    return dsr('ds_read_b64_tr_b16',VV[tau&1][2*n:2*n+2],vVA[n],off,src=(it.name,it.blks()))
extra={}
def att_setup(ngaps,kv,WB):
    g=ngaps-OPT['at0']; d=OPT['atd']
    for k,m in enumerate((Bx(0),Bx(1),Mx(0,0),Mx(1,0),Mx(0,1),Mx(1,1))): extra[g+k*d]=[m]
    extra[g].insert(0,waitfor(vm=QM+KM[:2]+KE[:2]+[QE[0]]))
    mx=[vT[0],vT[1]]
    for x in range(2): push('ctr',g+(3+2*x)*d+7,max_ops([SBB[0][16*x:16*x+16],SBB[1][16*x:16*x+16]],mx[x]),g+(3+2*x)*d+2)
    push('ctr',g+5*d+7,set_shift(mx,MARGIN),g+5*d+2)
    for k,m in enumerate((Bx(0),Mx(0,0),Mx(0,1))): extra[g+(7+k)*d]=[m]
    assert g+9*d<ngaps-8
    tail_reads.extend(vread(kv,WB,0,n) for n in range(4))
tail_reads=[]

def attention(g0,kv,WB,wo_items):
    base=g0+100
    pipe[0]=0; pipe[1]=44
    def kread(tau):
        it=kv[tau>>3]; off=it.addr-WB+(tau&7)*1280; src=(it.name,it.blks())
        if tau<4 or not OPT['ke2']: ke=dsr('ds_read_b64',KE[tau%4],vKE,off,src=src)
        elif tau&2: ke=None
        else:
            o=(off-1280*(tau&1))//512; d=A(KE[tau&1].b,4); a=vKE1 if tau&1 else vKE
            ke=I(f'ds_read2st64_b64 {d}, {a} offset0:{o} offset1:{o+5}','dsr',a.regs(),d.regs(),src=src,private=False)
        return [dsr('ds_read_b128',KM[tau%3],vKM,off,src=src), ke]
    def flush(n,names=('ctr','epi','low','dma','ld')):
        k=0
        while k<n:
            for nm in names:
                x=head(nm,cur[0])
                if x is not None: take(nm,cur[0]); break
            else: return
            k+=1
    cur[0]=g0
    assert not fifo['ctr'] and not fifo['low'] and not fifo['ld']
    stamp('att'); note('---- attention')
    barx={7:[it.name for it in wo_items]}; f2done=[False]; wcut=[int(x) for x in OPT['wcut'].split(',')]
    vmk=(1,4) if OPT['bat'] else (1,3,4,5)
    for tau in range(64):
        n=2*tau; nx=tau<63; S=SBB[tau%3]
        if 'ast' in OPT and n in range(*map(int,OPT['ast'].split(':'))): stamp(f'slot{n}',True)
        ms=[Bx(tau+1) if nx else None, PV(tau-1,1,1) if tau else None, PV(tau,0,0), Mx(tau+1,0) if nx else None, PV(tau,0,1), Mx(tau+1,1) if nx else None, PV(tau,1,0)]
        if OPT['aord']:
            h=OPT['aord']&1
            ms=[ms[0], PV(tau-1,1,h) if tau else None, PV(tau-1,1,1-h) if tau else None, ms[3], ms[5], PV(tau,0,0), PV(tau,0,1)]
            if not nx: ms[3:]=[PV(tau,0,0), PV(tau,0,1), None, PV(tau,1,0)]
        km,ke=kread(tau+2) if tau+2<64 else (None,None)
        v=[vread(kv,WB,tau+1,z) if nx else None for z in range(4)]
        rds=[None,ke,v[0],v[1],km,v[2],v[3]]
        sg=(tau+3)//8 if (tau+3)%8==0 and tau+3<64 else None
        if sg==1 and OPT['nob1']: assert kv[2].pushed and wcut[1]==0; sg=None
        for k in range(7):
            gap=base+8*tau+(k+1 if k else 0); cur[0]=gap
            if tau==0 and k==1: flush(1000,('epi',)); e(waitfor(lg=[VV[0]]))
            if ms[k] is not None: e(ms[k])
            nsc=(0,2,2,1,2,1,2)[k] if not OPT['aord'] else (0,2,2,1,1,2,2)[k]; kb=5 if OPT['aord'] else 4
            fx=k in (2,6) or (k==kb and sg is not None)
            vmn=vm_ready(gap,1,OPT['astgap'],('st','dma','ld','low')) if (not fx and k in vmk and ms[k] is not None) else None
            if OPT['bat'] and not fx and k in vmk and ms[k] is not None:
                sv=pipe[0]; pipe[0]=0; a_=vm_ready(gap,1,1,('st',)) if (k==1 or tau==0) else None; pipe[0]=sv-OPT['aback']
                vmn=a_ or vm_ready(gap,1,1,('dma','ld','low')); pipe[0]=sv
            if vmn:
                take(vmn,gap)
                while OPT['bat'] and fifo[vmn] and fifo[vmn][0][1].meta.get('bat'): take(vmn,gap)
            else:
                if k==2: e(waitfor(lg=[VV[tau&1][4:8],KM[(tau+1)%3]])); nsc-=1
                if k==2 and tau==63 and OPT['warm']: e(*poll())
                if k==6: e(waitfor(lg=[VV[(tau+1)&1][0:4],KE[(tau+2)%4]])); nsc-=1
                if k==kb and sg is not None:
                    e(waitfor(vmtags=[kv[sg].name]+barx.get(sg,[])), barrier()); nsc-=2
                    if sg+1<8 and not kv[sg+1].pushed: push('dma',gap,kv[sg+1].mk(kv[sg+1]))
                    for it in [x for x in wo_items if not x.pushed][wcut[sg-1]:wcut[sg]]: push('dma',gap,it.mk(it))
                while nsc>0 and pull(gap,True): nsc-=1
            if rds[k] is not None: e(rds[k])
            x=head('ld',gap)
            if x is not None and x.kind=='valu': take('ld',gap)
            for r in (range(8) if k==0 else range(4*k+4,4*k+8)): e(valu(OPT['exp'],S[r],S[r]))
        if n==OPT['tatt']: push('arr',gap,touch())
        if n==2 and OPT['xat']: push('ld',gap,x_loads())
        if not fifo['st'] and not f2done[0]:
            f2done[0]=True; print('partial stores end at slot',n)
            push('st',gap+4*OPT['f2lag'],[waitfor(vmtags=['pst']), batomic(vONE,vF1,sWS,0,op='sub')])
        if n==OPT['f2poll']:
            ld=I(f'buffer_atomic_add {vPOLL}, {vPG}, {sWS}, 0 offen sc0','vld',vPOLL.regs()+vPG.regs(),vPOLL.regs(),tag=None)
            e(valu('v_mov_b32',vPOLL,0)); push('st',gap,[ld])
            t0=base+4*OPT['f2chk']
            w_=waitfor(vm=[vPOLL]); w_.meta['lag']=(ld,4*(OPT['f2chk']-OPT['f2poll']))
            push('ld',t0,[w_]+spin('f2',ld,0,OPT['f2sl'],'v_cmp_ne_u32',[f'v_mov_b32 {vPOLL}, 0']))
            ops=base_add(sPC,sWS,WS_PX+4096); nb=OPT['bat'] or 1
            for k in range(32):
                if k%8==0: ops+=base_add(sBL,sWS,WS_P+k*1024+4096)
                ops.append(gload(PART[k],vPL,sBL,(k%8)*1024-4096,flags='sc1')); ops[-1].meta['bat']=k%nb>0
                if k%2==1: ops.append(cost(gload(PARTX[k>>1],vPLX,sPC,(k>>1)*512-4096,flags='sc1'),40)); ops[-1].meta['bat']=True
            nl=0; prev=None
            for o in ops:
                if o.kind=='vld' and not (o.meta['bat'] and OPT['bat']):
                    if prev is not None: o.meta['lag']=(prev,OPT['ldmin'])
                    prev=o
                push('ld',t0+int(nl*OPT['ldgap']),[o])
                if o.kind=='vld': nl+=1
    cur[0]=base+600
    e(PV(63,1,1))
    print('att vmem slots:',' '.join(f"{'kv' if i.meta.get('tag') and i.meta['tag'][0]=='kv' else i.kind[1]}{(i.meta['at']-base)//4}" for i in P if i.kind in VM and i.meta['at']>=base))
    print('left after attention:',{k:len(v) for k,v in fifo.items()})
    assert not any(fifo.values()), 'work left after attention'

def fallback(kv,WB):
    global P
    save=P; P=[]
    pb=kv[5].addr
    a=[V(192+n) for n in range(6)]; vo=V(198); mx=[V(199),V(200)]; S=SBB[2]
    e(label('L_fb'), raw('s_waitcnt vmcnt(0) lgkmcnt(0)','misc'), raw('s_nop 15','misc'))
    for d,s in zip(a,[vKM,vKE]+vVA): e(valu('v_add_u32',d,sW5K,s))
    e(valu('v_lshlrev_b32',vo,4,vL), valu('v_mov_b32',QE[1],0), valu('v_mov_b32',mx[0],0xff800000), valu('v_mov_b32',mx[1],0xff800000))
    off=pb-WB
    for ps in range(2):
        e(salu('s_add_u32',sT0,sH,32), salu('s_mul_i32',sT0,sT0,SL), salu('s_add_u32',sT1,sT0,32*SL), salu('s_mov_b32',sT2,64), label(f'L_fbl{ps}'))
        e(salu('s_add_u32','m0',sW5K,pb), dma(vo,sWS,sT0,0,flags='sc1'), dma(vo,sWS,sT0,1024,flags='sc1'))
        if ps: e(salu('s_add_u32','m0',sW5K,pb+2560), dma(vo,sWS,sT1,0,flags='sc1'), dma(vo,sWS,sT1,1024,flags='sc1'))
        e(waitfor(vmall=True), dsr('ds_read_b128',KM[0],a[0],off), dsr('ds_read_b64',KE[0],a[1],off))
        if ps:
            for n in range(4): e(dsr('ds_read_b64_tr_b16',VV[0][2*n:2*n+2],a[2+n],off+2560))
        e(waitfor(lgall=True))
        e(Bx(0,S), Mx(0,0,S), Mx(0,1,S))
        for x in range(2):
            if ps==0: e(*max_ops([S[16*x:16*x+16]],mx[x],first=False))
            else:
                for r in range(16): e(valu('v_exp_f32',S[16*x+r],S[16*x+r]))
                for h in range(2): e(PV(0,x,h,S))
        e(raw('s_nop 15','misc'), salu('s_add_u32',sT0,sT0,1280), salu('s_add_u32',sT1,sT1,1280), salu('s_sub_u32',sT2,sT2,1), salu('s_cmp_lg_u32',sT2,0), raw(f's_cbranch_scc1 L_fbl{ps}','misc'))
        if ps==0:
            e(*set_shift(mx,0.0)); zero_o()
    e(*norm_store(0,V(116,2)), *norm_store(1,V(116,2)), waitfor(vmall=True))
    e(raw('s_nop 3','misc'), raw('s_branch L_fb_ret','misc'))
    OUT.extend(i.text for i in finalize(P,verbose=0,name='fb'))
    P=save

TT=[V(224,16),V(240,16)]
FLAG_LDS=[0]
def norm_store(x,t):
    O,T=OO[x],TT[x]
    o=[valu('v_rcp_f32',t[0],O[10]), valu('v_mov_b32',t[1],t[0]), swap('v_permlane32_swap_b32',t[0],t[1])]
    o+=[valu('v_mul_f32',T[r],t[0],O[r]) for r in range(10)]
    o+=[valu('v_cvt_pk_bf16_f32',T[d],T[2*d],T[2*d+1]) for d in range(4)]
    o+=[gstore(T[0:4],vOS,S(88+2*x,2),flags='sc1',tag='ost'), valu('v_cvt_pk_bf16_f32',T[8],T[8],T[9])]
    if x: o+=[swap('v_permlane32_swap_b32',TT[0][8],TT[1][8]), gstore(TT[0][8],vOSX,sWS[0:2],flags='sc1',tag='ost')]
    return o
def poll(r=sPV): return [raw(f's_atomic_umax {r}, {sWS[0:2]}, {sF3} glc')]
def final(g0,wo_main,wo_x):
    cur[0]=g0
    SA=V(56,20); DN=V(76,20); XF=V(96,20); tmp=V(116,12)
    e(*norm_store(0,tmp[0:2]), *norm_store(1,tmp[6:8]))
    stamp('o stored')
    fill=[]
    for x in range(2):
        s=tmp[2+x]
        fill.append(valu('v_add_f32_e64',s,f'|{OO[x][0]}|',f'|{OO[x][1]}|'))
        for r in range(2,10): fill.append(valu('v_add_f32_e64',s,s,f'|{OO[x][r]}|'))
    fill+=[valu('v_min_f32',tmp[4],tmp[2],tmp[3]), valu('v_add_f32',tmp[2],tmp[2],tmp[3]), valu('v_add_f32',tmp[3],OO[0][10],OO[1][10]), valu('v_add_f32',tmp[2],tmp[2],tmp[3]),
           valu('v_max_f32',tmp[0],tmp[0],tmp[6]), valu('v_fmac_f32',tmp[2],f32(2.0**(124-MARGIN)),tmp[0],rmw=True)]
    chk=[valu('v_cmp_nle_f32','vcc',f32(2.0**-103),tmp[4]), raw('s_cbranch_vccnz L_fb','misc',['vcc']),
      valu('v_cmp_nge_f32','vcc',f32(2.0**126) if not OPT['forcefb'] else f32(-1.0),tmp[2]), raw('s_cbranch_vccnz L_fb','misc',['vcc']), label('L_fb_ret')]
    pool_=[V(128+4*n,4) for n in range(32)]+[A(212+4*n,4) for n in range(7)]+[A(72+4*n,4) for n in range(34)]
    frs=[]; rds=[]
    order=[0,1,4,5,8,9,12,13,16,2,3,6,7,10,11,14,15,17]
    for s in order:
        for q in range(5):
            f=pool_[len(frs)%len(pool_)]; frs.append(f)
            for u in range(2): rds.append(tr_read(f,u,wo_main[s],q) if q<4 else tr_read(f,u,wo_x[s>>2],s&3))
    red=[]
    for j in range(16):
        for q in range(5):
            d=DN[4*q:4*q+4]
            red.append(m4(d,SELA,PART[16*(q>>1)+j][2*(q&1):2*(q&1)+2] if q<4 else PARTX[j],0 if j==0 else d))
    red+=[m4(XF[4*q:4*q+4],SELA,XR[2*q:2*q+2],0) for q in range(5)]
    e(waitfor(vm=PART+PARTX+[XR,vR2]))
    ri=0
    test=lambda: [waitfor(lgall=True,lgforce=True), salu('s_cmp_eq_u32',sPV,0x44444444)]
    def warm(r=sPV,tracked=False):
        if not OPT['warm']: return []
        t=vT[0]; ld=bload(vPF,t,sWS,0,flags='sc1',tag='pf')
        return [valu('v_lshrrev_b32',t,vSH,r), valu('v_not_b32',t,t), valu('v_lshl_add_u32',t,t,31,vOP), ld if tracked else raw(ld.text)]
    g,c2,ir=tmp[8],tmp[9],tmp[10]
    late_=[valu('v_mul_f32',c2,f32(-1.4426950408889634),vR2), valu('v_rcp_f32',ir,vR2),
           valu('v_bfe_u32',g,vL,4,1), valu('v_mul_u32_u24',g,24,g), valu('v_add_u32',vXO,vXO,g)]
    for k,mm in enumerate(red):
        e(mm)
        if k in (OPT['pollat'],OPT['pollat2'],OPT['pollat3']): e(*poll())
        if fill:
            e(fill.pop(0))
            if not fill: e(*chk, waitfor(lgall=True,lgforce=OPT['warm']), *warm(tracked=True), *base_add(sBL,sWS,WS_OX))
            continue
        if k==OPT['hat']: e(waitfor(vmtags=['ost']), batomic(vINC,vF3,sWS,0)); stamp('flag'); continue
        if k>=80: e(late_.pop(0)); continue
        if k%4==3: e(waitfor(lg=frs[:max(0,ri//2-4)]))
        e(rds[ri]); ri+=1
    assert ri<=2*39
    stamp('ready')
    EX=[V(30+n) for n in range(13)]+[V(45+n) for n in range(5)]+[V(14),V(15)]
    fill=[]
    for f in (lambda r:valu('v_mul_f32',EX[r],c2,DN[r]), lambda r:valu('v_exp_f32',EX[r],EX[r]), lambda r:valu('v_fma_f32',EX[r],EX[r],ir,ir),
              lambda r:valu('v_rcp_f32',EX[r],EX[r]), lambda r:valu('v_mul_f32',DN[r],EX[r],DN[r])):
        fill+=[(0,[f(r)]) for r in range(20)]
    OF=[A(4*s,4) for s in range(18)]
    def gate(name,mask):
        one=bin(mask).count('1')==1
        t=lambda: [salu('s_bitcmp1_b32',sPV,mask.bit_length()-1)] if one else [salu('s_and_b32',sT1,sPV,mask), salu('s_cmp_eq_u32',sT1,mask)]
        if OPT['vp']:
            n=OPT['vp']; PL=[vT[z] for z in range(n)]
            vp=lambda z: raw(f'buffer_atomic_umax {PL[z]}, {vOP}, {sWS}, 0 offen sc0')
            y=[label(f'L_w{name}'), vp(0), raw('s_waitcnt lgkmcnt(0)')]+t()+[raw(f's_cbranch_scc1 L_g{name}')]
            for z in range(1,n): y+=[raw(f's_sleep {OPT["psleep"]}'), vp(z)]
            y+=[label(f'L_wl{name}')]
            for z in range(n): y+=[raw(f's_waitcnt vmcnt({n-1})'), valu('v_readfirstlane_b32',sPV,PL[z])]+t()+[raw(f's_cbranch_scc1 L_g{name}'), vp(z)]
        else: y=[label(f'L_w{name}')]+(poll() if OPT['pfirst'] else [])+[label(f'L_wl{name}'), raw('s_waitcnt lgkmcnt(0)')]+t()+[raw(f's_cbranch_scc1 L_g{name}')]+poll()
        y+=[salu('s_addk_i32',sT0,-1), salu('s_cmp_gt_i32',sT0,0), raw(f's_cbranch_scc1 L_wl{name}'), raw(f's_branch L_g{name}')]
        if OPT['inl']: return t()+[raw(f's_cbranch_scc1 L_g{name}')]+y[:-1]+[label(f'L_g{name}')]
        HOT.extend(finalize(y,verbose=0))
        return t()+[raw(f's_cbranch_scc0 L_w{name}',glue=True), label(f'L_g{name}')]
    ge=gate('e',0x04040404)
    ol=[]
    for n,s in enumerate(order):
        if s<16: ol.append((gate(s,4<<(2*s)) if n>8 and s%2==0 else [], gload(OF[n],vOL,sOB[s>>2],(s&3)*2048-4096,flags='sc1')))
        else: ol+=[([],gload(OF[n][r],vOLX,sBL,(s-16)*512+r*128,flags='sc1')) for r in range(4)]
    for z in range(OPT['vp']): e(valu('v_mov_b32',vT[z],0))
    e(salu('s_mov_b32',sT0,0x80000), *ge)
    stamp('ok')
    lg_=[int(x) for x in str(OPT['lgrp']).split(',')]; assert sum(lg_)==12
    for _ in range(lg_.pop(0)): e(ol.pop(0)[1])
    if OPT['rp']&1: e(*poll())
    while ri<OPT['wopre']:
        if ri%4==0: e(waitfor(lg=frs[:max(0,ri//2-4)]))
        e(rds[ri]); ri+=1
    nf=len(fill)
    while len(fill)>OPT['fillmm']:
        e(*fill.pop(0)[1])
        if (nf-len(fill)) in (OPT['lc1'],OPT['lc2']) and lg_:
            for _ in range(lg_.pop(0)): e(ol.pop(0)[1])
            if OPT['rp']&(4>>len(lg_)): e(*poll())
    assert not lg_
    stamp('seen'); note('---- o @ wo, gate, residual')
    def epi(q):
        o=[valu('v_fmac_f32',XF[r],SA[r],DN[r],rmw=True) for r in range(4*q,4*q+4)]
        o+=[valu('v_cvt_pk_bf16_f32',tmp[2*q+d],XF[4*q+2*d],XF[4*q+2*d+1]) for d in range(2)]
        return o
    def put(b): return [swap('v_permlane16_swap_b32',tmp[b],tmp[b+2]), swap('v_permlane16_swap_b32',tmp[b+1],tmp[b+3]), bstore(tmp[b:b+4],vXO,sOUT,0,16*b,flags=OPT['ofl'])]
    k=0; nt=OPT['ntail']
    for s in range(18-nt):
        assert ri>=10*s+10
        e(waitfor(vm=[OF[s]],lg=frs[5*s:max(5*s+5,ri//2-3)]))
        for q in range(5):
            e(m16(SA[4*q:4*q+4],frs[k],OF[s],0 if s==0 else SA[4*q:4*q+4])); k+=1
            if q==0 and ol and s>=OPT['ldel'] and ol[0][0]:
                e(*ol[0][0])
                if OPT.get('mst'): stamp(f'g{s}')
                continue
            if q==0 and s in (9,12) and OPT.get('mst'): stamp(f's{s}')
            if q==1 and ol and s>=OPT['ldel']: e(ol.pop(0)[1]); continue
            if q==3 and str(s) in str(OPT['mpoll']): e(*poll())
            n=0
            while n<(1 if ri>=min(180,OPT['rlead']+int(k*OPT['rrate']/100)) else 2) and ri<len(rds) and ri//2-len(pool_)<k-1: e(rds[ri]); ri+=1; n+=1
            while n<2 and fill: e(*fill.pop(0)[1]); n+=1
    assert not fill and not ol and ri==len(rds),(ri,len(fill))
    ep=[]
    for z,q in enumerate((4,0,1,2,3)):
        for s in range(18-nt,18):
            e(waitfor(vm=[OF[s]],lg=[frs[5*s+q]]), m16(SA[4*q:4*q+4],frs[5*s+q],OF[s],SA[4*q:4*q+4])); k+=1
            n=0
            while ep and n<2 and ep[0][0]<=k:
                o=ep.pop(0)[1]; e(o); n+=1 if o.kind!='vst' else 2
        o=epi(q)+([bstore(tmp[8:10],vXOX,sOUT,0,flags=OPT['ofl'])] if q==4 else put(2*q-2) if q&1 else [])
        ep+=[(k+3,x) for x in o]
    stamp('mm done')
    for _,o in ep: e(o)

def name_regs():
    for k,v in list(globals().items()):
        if k[0]=='v' and k not in ('vT','vL','vPF','vST','vCV'):
            def nm(x,n):
                if isinstance(x,R): x.name=n
                elif isinstance(x,list):
                    for z,y in enumerate(x): nm(y,f'{n}{z}')
            nm(v,k)
def main():
    name_regs()
    build_ffn()
    ngaps,bars,free=plan()
    L=OPT['look']
    best=None
    for a0 in range(0,NB-14):
        fr=sorted((max(free[b] for b in range(a0+5*k,a0+5*k+5)),k) for k in range(3))
        key=(fr[0][0],fr[1][0])
        if best is None or key<best[0]: best=(key,a0,[k for _,k in fr])
    _,a0,order=best; WB=a0*4096
    print('attention window',best,'ngaps',ngaps,{k:groups[v].start for k,v in marks.items()})
    kv=[kv_item(s) for s in range(8)]
    for s,it in enumerate(kv): it.addr=(a0+5*order[s%3])*4096
    rest=sorted([b for b in range(NB) if not a0<=b<a0+15],key=lambda b:free[b])
    print('free',[free[b] for b in range(NB)])
    wo_main=[blk_item(('wo',s),vWO if s<16 else vWOE,sWO,36*s*1152 if s<16 else 72*(s-16)*1152) for s in range(18)]
    wo_x=[blk_item(('wx',n),vWX if n<4 else vWXE,sWO,144*n*1152 if n<4 else 0,buf=(n==4),c=320) for n in range(5)]
    for it,b in zip(wo_main+wo_x,rest): it.addr=b*4096
    FLAG_LDS[0]=rest[23]*4096

    def pst(name):
        if 'pst' in OPT: stamp(name,True)
    prologue(); pst('karg')
    pre0=[it for it in items if it.early==-3000]; pre1=[it for it in items if it.early==-2000]
    dq=[xdma(tt,l) for tt in range(2) for l in range(9)]+[it.mk(it) for it in pre0+pre1]
    for _ in range(OPT['x0n']): e(*dq.pop(0))
    pst('x0 issued')
    xr=[vM[0],vR[1]]; t,u=vT[2],vT[3]
    DT=[V(140+8*n,8) for n in range(3)]+[V(180,8)]; CM=V(164,4); SUM=V(172,4); ONE4=V(176,4)
    prologue2()
    e(valu('v_and_b32',t,15,vL), valu('v_lshrrev_b32',u,1,t), valu('v_lshlrev_b32',t,7,t), valu('v_add_u32',t,sW18K,t),
      valu('v_lshrrev_b32',xr[0],4,vL), valu('v_xor_b32',xr[0],xr[0],u), valu('v_xor_b32',xr[1],4,xr[0]),
      valu('v_lshl_add_u32',xr[0],xr[0],4,t), valu('v_lshl_add_u32',xr[1],xr[1],4,t))
    for d in range(4): e(valu('v_mov_b32',ONE4[d],sONES))
    with collect() as ao:
        e(*sel_ops(t,u))
        addr_pf(); addr_early(); addr_qk()
        e(valu('v_mov_b32',vONE,1))
        if OPT['split']:
            e(valu('v_min_u32',vCA,1,vL), valu('v_mul_u32_u24',vCA,LDS_OOB-39*4096,vCA), valu('v_add_u32',vCA,39*4096,vCA), valu('v_mov_b32',t,4*len([b for b in bars if b>=SIG])), dsw('ds_write_b32',vCA,t))
    for _ in range(OPT['apre']): e(ao.pop(0))
    pst('pre')
    for _ in range(OPT['x1n']): e(*dq.pop(0))
    nx=len([o for o in dq if o[-1].meta['tag'][0]=='x'])
    if OPT['pf']:
        o=pf_gu(0)+(pf_gu(1) if OPT['pfn']>1 else [])+(pf_q() if OPT['pfn']>2 else [])
        k=nx+OPT['pfpos']
        if OPT['pfpos']<0: dq[k-1]=dq[k-1][:-1]+o+dq[k-1][-1:]
        else: dq.insert(k,o)
    e(raw('s_waitcnt lgkmcnt(0)','misc'))
    pst('addr')
    R0=[XC0[4*s_:4*s_+4] for s_ in range(18)]; X1=[XC1[4*s_:4*s_+4] for s_ in range(18)]
    def xread(tt,dst,l):
        return [waitfor(vmtags=[('x',tt,l)])]+[dsr('ds_read_b128',dst[s],xr[s&1],l*2048,src=(('x',tt,l),list(range(18*tt,18*tt+18))),private=True) for s in (2*l,2*l+1)]
    cq=[]; nm=[0]; nblk=[0]; pre_=[]
    def mm(m,extra=()):
        e(m); nm[0]+=1
        if pre_: e(pre_.pop(0))
        if extra: e(*extra); return
        k=0
        while cq and k<2 and cq[0][0]<=nm[0]-OPT['cage']: e(cq.pop(0)[1]); k+=1
        while ao and k<2: e(ao.pop(0)); k+=1
    def stats(tt,fr,l,nvm,lim=99):
        ms=[]
        for s_ in (2*l,2*l+1): ms+=[m16(SUM,ONE4,fr[s_],0 if s_==0 else SUM), m16(GR[tt],fr[s_],fr[s_],0 if s_==0 else GR[tt])]
        for h in range(2):
            o=[]
            if dq and h<nvm and nblk[0]<min(lim,OPT['nblk']):
                o=dq.pop(0)
                if o[-1].meta['tag'][0] not in 'xp': nblk[0]+=1
            mm(ms[2*h],[x for x in o if x.kind=='salu']); mm(ms[2*h+1],[x for x in o if x.kind!='salu'])
    nc=[0]
    def centre(src,dst,after=(),ex=((),())):
        d=DT[nc[0]%4]; nc[0]+=1
        while any(set(c.rd)&set(d.regs()) for _,c in cq): e(cq.pop(0)[1])
        for h in range(2):
            mm(m4(d[4*h:4*h+4],SELA,src[2*h:2*h+2],CM),ex[h])
            for z in range(2): cq.append((nm[0],valu('v_cvt_pk_bf16_f32',dst[2*h+z],d[4*h+2*z],d[4*h+2*z+1])))
        for x in after: cq.append((nm[0],x))
    def mean(tt):
        dst=vM[1] if tt else t
        e(valu('v_mul_f32',MEAN[tt],f32(1/576),SUM[0]), valu('v_cvt_pk_bf16_f32',dst,MEAN[tt],MEAN[tt]), valu('v_lshlrev_b32',dst,16,dst))
        for d in range(4): e(valu('v_xor_b32',CM[d],0x80000000,dst))
    for l in range(10):
        if l<9: e(*xread(0,R0,l))
        if l==0: e(*dq.pop(0))
        for _ in range(OPT['afill'] if l<9 else 999):
            if ao: e(ao.pop(0))
        if l>0:
            e(waitfor(lg=R0[2*l-2:2*l])); stats(0,R0,l-1,int(str(OPT.get('w1','x111111111'))[l]),len(pre0))
        if str(l) in str(OPT.get('tch','x0246')): e(*touch())
        if l==OPT['brl']: e(raw('s_branch L_main','misc'), label('L_exit'), raw('s_endpgm'), I('.p2align 12','comment'), label('L_main'))
        pst(f'x0 rd {l}')
    stamp('x0 read')
    e(valu('v_add_u32',xr[0],73728,xr[0]), valu('v_add_u32',xr[1],73728,xr[1]))
    e(*xread(1,X1,0)); mean(0); pst('stat0')
    for l in range(9):
        for s_ in (2*l,2*l+1): centre(R0[s_],X0[s_],to_acc(s_) if s_>=NV0 else ())
        if l<8: e(*xread(1,X1,l+1))
        if l==OPT['barl']: e(barrier())
        e(waitfor(lg=X1[2*l:2*l+2])); stats(1,X1,l,int(str(OPT.get('w2','x111122222'))[l+1]),99 if l>=OPT['barl'] else len(pre0))
        pst(f'x1 rd {l}')
    while cq: e(cq.pop(0)[1])
    mean(1)
    reads=[f(it) for g in groups[:4] for it,f in g.rd][:L]; nb_=(L+1)//2+1
    n0=OPT['n0']
    for s_ in range(n0):
        ex=((),())
        if s_==n0-nb_: ex=((waitfor(vmtags=[it.name for it in items if it.bar==-L]), barrier()),()); stamp('x1 read'); pst('bar1')
        if s_>n0-nb_: pre_[:]=[reads.pop(0) for z in range(2) if reads]
        centre(X1[s_],X1[s_],ex=ex)
    assert not reads
    while cq: e(cq.pop(0)[1])
    e(waitfor(lg=groups[0].fr)); pst('go')
    for s_ in range(n0,18): push('ctr',0,centre_ops(X1[s_],1))
    for s_ in range(NV0): push('ctr',0,to_acc(s_))
    for o in dq: push('dma',-1,o)
    mx_=-1
    for it in items:
        mx_=max(mx_,it.early)
        if it.early>-2000: push('dma',it.early,it.mk(it),mx_)
    st=lambda k:groups[marks[k]].start
    def low(gap,f,*a):
        with collect() as o: f(*a)
        push('low',gap,o,gap)
    low(st('c0')+200,var_ops,0); low(st('c0')+200,var_ops,1)
    TCH=[(int(g_),touch()) for g_ in str(OPT['tat']).split(',') if int(g_)>=0]
    low(st('c1'),addr_mid); low(st('c1'),addr_mid2); low(st('qkv'),addr_pfd)
    low(st('c2')+200,addr_att,WB); low(st('c2')+200,addr_lds,WB)
    pt=[int(x) for x in OPT['pft'].split(',')]
    for k,(g_,o) in enumerate(zip(pt,[pf_gu(1) if OPT['pfn']<2 else [],pf_q() if OPT['pfn']<3 else [],pf_gu(2),pf_gu(3),pf_gu(4),pf_d(0),pf_d(1),pf_d(2)])):
        if o and (k==7 or pt[k+1]!=g_): o[-1].meta['cost']+=OPT['pfx']
        push('ld',g_,o,g_)
    low(st('c3'),pf_o)
    b1=[b for b in bars if b>st('c3')+60][0]
    bar_extra[b1]=['qkvst']
    ar=[salu('s_and_b32',sJH,S(2),1), salu('s_lshl_b32',sJH,sJH,7), salu('s_mov_b32',sJ128,1), salu('s_cmp_lg_u32',sW,0), raw('s_cbranch_scc1 L_arr','misc'),
        raw(f's_atomic_add {sJ128}, {sDBG[0:2]}, {sJH}','misc',sJ128.regs()+sJH.regs()), label('L_arr')]
    for x in ar[3:6]: x.meta['glue']=True
    for g_,o in sorted(TCH+[(b1,ar)],key=lambda z:z[0]): push('arr',g_,o,g_)
    ARR.append(ar[5])
    if OPT['stop']!='down':
        d0=st('down')
        att_setup(ngaps,kv,WB); bar_extra[bars[-1]]=[kv[0].name]+([kv[1].name] if OPT['nob1'] else [])
        low(b1,addr_z); low(b1,addr_fin); low(max(d0+400,mx_+1),addr_op); extra_zero(ngaps)
        ld=bload(vPOLL,vZ,sDBG,0,flags='sc1')
        push('ld',d0+OPT['f1poll'],[ld],d0+OPT['f1poll'])
        with collect() as o: qk_loads(WB)
        w_=waitfor(vm=[vPOLL]); w_.meta['lag']=(ld,100)
        push('ld',d0+OPT['f1poll'],[w_]+spin('f1',ld,128,40)+o,d0+OPT['f1poll'])
        for it in kv[:3]+(wo_main+wo_x)[:OPT['wob']]:
            early=max(free[b] for b in it.blks())
            assert early>d0+300
            if early<LATE: push('dma',early,it.mk(it),ngaps-1); it.pushed=True
    for k_,t_ in (('c0','gate/up columns 0..63'),('c1','gate/up columns 64..127'),('qkv','q, k, v'),('c2','gate/up columns 128..191'),('c3','gate/up columns 192..255'),('half','gate/up last 32 columns'),('down','down projection')): PH[st(k_)]='---- '+t_
    emit_backbone(bars,{groups[v].start:k for k,v in marks.items() if k in ('c0','qkv','down')})
    qs=[i.meta['at'] for i in P if i.meta.get('tag')=='qkvst']; assert len(qs)==12 and max(qs)<b1-SIG,(qs,b1)
    print('arrival at',ARR[0].meta['at'],'poll at',ld.meta['at'])
    stamp('down end')
    if OPT['stop']=='down':
        for nm in ('epi','st','low','dma'):
            for af,o in fifo[nm]: e(o)
    else:
        attention(ngaps,kv,WB,wo_main+wo_x)
        stamp('att end')
        final(ngaps+1000,wo_main,wo_x)
        fallback(kv,WB)
    finish()

def sizes(lines):
    import subprocess, re
    uniq=sorted(set(lines))
    src='.amdgcn_target "amdgcn-amd-amdhsa--gfx950"\n.text\nLX:\n'+'\n'.join(re.sub(r'L_codeend-L_pc-4','0x12345',re.sub(r'(s_branch|s_cbranch\w+) \w+',r'\1 0',u)) for u in uniq)+'\n'
    open('_sz.s','w').write(src)
    r=subprocess.run(['llvm-mc','-triple=amdgcn-amd-amdhsa','-mcpu=gfx950','-show-encoding','_sz.s'],capture_output=True,text=True)
    assert r.returncode==0,r.stderr[:2000]
    enc=re.findall(r'encoding: \[([^\]]*)\]',r.stdout)
    assert len(enc)==len(uniq),(len(enc),len(uniq))
    return {u:len(x.split(',')) for u,x in zip(uniq,enc)}
PGAT=[]
def page_stubs(out):
    sz=sizes([i.text for i in out if i.kind not in ('label','comment')])
    k0=[k for k,i in enumerate(out) if i.text=='L_main:'][0]
    print('entry part bytes',sum(sz.get(i.text,0) for i in out[:k0]))
    res=out[:k0+1]; off=0; pg=0; prev=None; forced=False
    npg=4*ntouch[0]
    for k in range(k0+1,len(out)):
        i=out[k]
        if pg<npg and off>=4096*pg and not (prev is not None and prev.meta.get('glue')):
            good=prev is not None and prev.kind=='mfma' and i.kind in ('dsr','valu','trans')
            if good or off-4096*pg>=40 or pg==0 or forced:
                res+=[label(f'L_pg{pg}'), raw(f's_cbranch_execz L_tr{pg//4}')]; off+=4; PGAT.append((pg,i.meta.get('at'))); pg+=1
        res.append(i); off+=sz.get(i.text,0)
        if i.text=='.p2align 12': off=-(-off//4096)*4096; forced=True; continue
        if i.kind not in ('label','comment'): prev=i
    print('main part bytes',off,'pages touched',pg,'of',-(-off//4096))
    print('page starts',PGAT)
    while pg<npg: OUT.extend([f'L_pg{pg}:',f's_branch L_tr{pg//4}']); pg+=1
    return res
DOC=""";
; out = x + (MHA(LN(x)) @ wo) * silu(ReGLU(LN(x)))      one persistent launch, one workgroup (4 waves, 512 registers) per CU
; The instruction stream is written out in full by a generator script; every wave runs the same stream.
;
; 1. LayerNorm: 128 rows per workgroup, 32 per wave, kept in registers as MFMA B operands. Row sums and sums of squares come
;    from MFMAs; the rows are centred, 1/sd is applied later (q,k,v when they are written, down before the gate).
; 2. gate/up (288 columns of F per workgroup), q,k,v (108 columns) and down (K = those 288 columns): weights stream through an
;    LDS ring (LDS-DMA, transposing reads). h = relu(gate)*up stays in registers; q,k,v and the bf16 partial sums of down go
;    to d_ws with write-through stores.
; 3. attention: one head x 256 queries per workgroup. S^T = K Q^T with the softmax shift folded in as two extra K slots;
;    P = exp2(S^T); O^T and the row sums accumulate through the sparse MFMA, which picks the upper halves of the fp32 P.
;    Shift = (maximum over the first 64 keys) + 90. Softmax does not depend on the shift unless something over- or
;    underflows, so the result is checked (row sum in [2^-92, 2^126], O finite and above 2^-103); a wave that fails the check
;    repeats its rows with the true maximum over all keys (L_fb).
; Hand-offs between workgroups: stores are drained (vmcnt) before a counter is touched; the counters in d_ws are reset by this
; launch before the d_debug counter that everyone passes first. Every wait is bounded.
"""
def finish():
    cur[0]=10**7
    if OPT['stamps']:
        e(raw('s_waitcnt lgkmcnt(0)','misc'), waitfor(vmall=True))
        stamp('drained'); e(raw('s_waitcnt lgkmcnt(0)','misc'))
        n=nstamp[0]
        for k in range(max(0,n-7),n): e(raw(f'v_writelane_b32 v13, s{64+2*(k%7)}, {k}','misc'))
        if 'padto' in OPT:
            e(raw('s_nop 1','misc'), raw(f'v_readlane_b32 s46, v13, {OPT["padto"]}','misc'), raw('s_nop 3','misc'))
            e(salu('s_add_u32',sT0,sT0,10000), label('L_pad'), raw('s_memrealtime s[98:99]','misc'), raw('s_waitcnt lgkmcnt(0)','misc'), salu('s_sub_u32',sT1,S(98),sT0), salu('s_cmp_lt_i32',sT1,0), raw('s_cbranch_scc1 L_pad','misc'))
        else:
            e(salu('s_lshl_b32',sT0,S(2),2), salu('s_add_u32',sT0,sT0,sW), salu('s_lshl_b32',sT0,sT0,8), salu('s_add_u32',sT0,sT0,WS_STAMP))
            e(valu('v_lshlrev_b32',V(1),2,vL), bstore(vST,V(1),sWS,sT0))
    check_order(P); check_roles(P)
    out=finalize(P,verbose=OPT['v'],name='main')
    out=page_stubs(out+[raw('s_endpgm'),I('.p2align 12','comment')]+HOT)
    hdr=open('recurrent_scan__mha_block__glu_gated_reglu__prompt.s.ref').read().split('; Override launch')[0]
    txt=hdr+'; @launch grid=(256,1,1) block=(256,1,1) lds=163840\n'+DOC+'.amdgcn_target "amdgcn-amd-amdhsa--gfx950"\n.text\n'
    txt+=f'.globl {NAME}\n.p2align 12\n.p2align 8\n.type {NAME},@function\n{NAME}:\n'
    txt+='\n'.join(i.text for i in out)+'\n'+'\n'.join(OUT)+'\ns_endpgm\nL_codeend:\n'
    txt+=f'''.section .rodata,"a"
.p2align 6
.amdhsa_kernel {NAME}
  .amdhsa_next_free_vgpr 512
  .amdhsa_next_free_sgpr 102
  .amdhsa_accum_offset 256
  .amdhsa_group_segment_fixed_size 0
  .amdhsa_kernarg_size 80
  .amdhsa_user_sgpr_count 2
  .amdhsa_user_sgpr_kernarg_segment_ptr 1
  .amdhsa_system_sgpr_workgroup_id_x 1
  .amdhsa_float_denorm_mode_32 {OPT.get('dn',3)}
.end_amdhsa_kernel
'''
    open(sys.argv[1],'w').write(txt)
    print('bytes',len(txt))
main()
```

```python
import sys, struct, contextlib
from asmlib import *

OPT=dict(stop='', stamps=0, pf=1, dmagap=3, look=14, split=0, stper=1, qstper=1, xat=1, stgap=29, n0=14, v=1, forcefb=0, astgap=6, f2lag=10, f2poll=58, f2chk=64, ldgap=4, dbgout=0, amid=60, xmn=2, tpre=1, tlate=0, wsp=8, nob1=1, aback=100, bat=0, bl=22, cs=256, es=64, ts=2304, os=264, xs=33, sl=640, par=0, cage=3, exp='v_exp_f32', aord=0, flip=1, snake=1, balone=2, nosc=1, lc1=36, lc2=64, vp=0, f2sl=2, pfe=0, aint='x', ke2=1, bint=4, apool=0, ap0=10, tatt=50, pfn=1, barl=4, brl=8, lgm=1, pfirst=0, rp=7, inl=0, pollat3=-1, mpoll='x', np2_=1, lgrp='6,3,3', ntail=3, ldel=0, warm=0, np2=1, xsh=9, gst_=4096, pfl='sc1', ffl='sc1', pevery=2, lookb=16, nlook=2, npc=2, pollat2=-1, frx=0, sprio=1, w3=1, snop=0, vmpat=0, hat=60, chk0=0, px=0, wcut='0,0,3,8,13,18,23,23', wob=23, ldmin=4, at0=290, atd=29, tat=-1, flagat=60, pollat=10, forceredo=0, lp1=20, lp2=70, nol=10, fsh=2, npoll=2, psleep=1, wopre=100, fillmm=20, rlead=100, rrate=120, ofl='', apre=130, x1n=1, afill=10, tlb=1, pfpos=6, pft='100,190,280,700,800,1060,1110,1112', swp=1, pfx=300, chain=6, qch=4, c0ch=3, touch=1, x0n=2, nblk=14, f1poll=40, qstgap=24, back=80, pfc=1, bartr=0)
for a in sys.argv[2:]:
    k,v=a.split('='); OPT[k]=int(v) if v.lstrip('-').isdigit() else v
NAME='recurrent_scan__mha_block__glu_gated_reglu__prompt_kernel'

WS_QKV=0; SL=OPT['sl']*128
CS=OPT['cs']*128; TS=OPT['ts']*128; ES=OPT['es']*128; assert CS>=32768 and ES>=8192 and TS>=8*CS+4*ES
WS_P=OPT['wsp']<<20; WS_PX=WS_P+8*CS; WS_O=0x2C80000 if OPT['wsp']==8 else 0x2800000; WS_OX=0x2C00000; OS=OPT['os']*128; XS=OPT['xs']*128; WS_F3=0x2EA0000; WS_R2=0x2EC0000; WS_F2=0x2ED0000; WS_STAMP=0x2F00000
assert OPT['wsp']!=8 or (WS_P+128*TS<=WS_OX and WS_OX+64*XS<=WS_O and WS_O+64*OS<=WS_F3)
OOB=0x80000000
LDS_OOB=0x30000
def f32(x): return struct.unpack('<I',struct.pack('<f',x))[0]
QSCALE=18**-0.5*1.4426950408889634
MARGIN=float(OPT.get('margin',90))

sX,sWQ,sWO,sWG,sWU,sWD,sOUT,sDBG,sWS=[S(4+4*n,4) for n in range(9)]
sW,sW1K,sI,sJ,sH,sIDX,sT0,sT1,sSO,sSO2=[S(40+n) for n in range(10)]
sLO,sHI,sONES,sW7K,sW5K=[S(50+n) for n in range(5)]
sSC=[S(55),S(56),S(57)]
sW18K,sJ1,sXC,sM8,sT2,sT3=[S(58+n) for n in range(6)]
sJ128,sJH=S(3),S(94); sSO3=S(95); sXP,sXX=S(92),S(93); sF3,sPV,sPV2=S(79),S(78),S(53)
sBD,sBL,sPC=S(96,2),S(98,2),S(100,2)
nstamp=[0]
def stamp(name,fine=False):
    if not OPT['stamps']: return
    if OPT.get('few') and name not in ('start','c0','down','down end','att end','drained'): return
    if ('gst' in OPT or 'ast' in OPT or 'pst' in OPT) and not fine and name!='start': return
    n=nstamp[0]; nstamp[0]+=1
    assert n<64
    r=64+2*(n%7)
    if n>=7: e(raw(f'v_writelane_b32 v13, s{r}, {n-7}','misc'))
    e(raw(f'{"s_memrealtime" if OPT["stamps"]==1 else "s_memtime"} s[{r}:{r+1}]','misc'))
    print('stamp',n,name)

vL=V(0)
vT=[V(1+n) for n in range(8)]
vR=[V(9),V(10)]
vM=[V(11),V(12)]
vPF=A(255)
vST=V(13)
vGF,vGH,vDF,vDH=[V(14+n) for n in range(4)]
vTR=[[V(18+3*q+n) for n in range(3)] for q in range(4)]
vQK=[V(30+n) for n in range(7)]
vQM=[V(37+n) for n in range(3)]; vQE=[V(40+n) for n in range(3)]
vSM,vSE0,vSE1,vSCX=[V(43+n) for n in range(4)]
vPS,vPX=V(47),V(48)
vF1,vONE=V(49),V(50)
vPG,vF3,vPOLL=V(51),V(52),V(53)
vX=[V(168+n) for n in range(4)]
XC1=V(56,72)
BANK=[V(128,64),V(192,64)]
XC0=A(0,72); HH=A(72,72); FR=A(144,64)
vKM,vKE=V(30),V(31); vVA=[V(32+n) for n in range(4)]
vKV,vWO,vWOE,vWX,vWXE=[V(36+n) for n in range(5)]
vPL,vPLX,vOL,vOLX,vOS,vOSX=[V(41+n) for n in range(6)]
vIDX,vF3L=V(54),V(55)
vXO,vXOX,vR2,vZ=V(11),V(12),V(9),V(10)
QE=V(14,2)
QM=[A(0,4),A(4,4)]
OO=[V(128,16),V(144,16)]
sOB=[S(80+2*n,2) for n in range(4)]
KM=[A(40+4*n,4) for n in range(3)]; KE=[A(52,2),A(56,2),A(54,2),A(58,2)]; vKE1=V(16)
VV=[A(8,8),A(16,8)]
XR=A(240,10)
PART=[A(60+4*n,4) for n in range(32)]
PARTX=[A(188+2*n,2) for n in range(10)]+[A(24+2*n,2) for n in range(6)]
SBB=[V(192,32),V(224,32),V(160,32)]

P=[]
cur=[-10**6,0]
sink=[None]
def setseq(i,gap=None):
    if 'seq' not in i.meta:
        cur[1]+=1; i.meta['seq']=(cur[0] if gap is None else gap,cur[1])
    return i
def e(*x):
    for i in x:
        if sink[0] is not None: sink[0].append(i)
        else: P.append(setseq(i)); i.meta['at']=cur[0]
@contextlib.contextmanager
def collect():
    o=[]; old=sink[0]; sink[0]=o
    yield o
    sink[0]=old
ARR=[]
fifo=dict(arr=[],dma=[],st=[],ld=[],ctr=[],epi=[],low=[])
def push(q,after,ops,logical=None):
    for o in ops: fifo[q].append((after,setseq(o,logical)))
def note(*t):
    for x in t: e(I('; '+x,'comment'))
def masked(dst,val,cmpop,a,b,tmp):
    e(valu(cmpop,'vcc',a,b), valu('v_mov_b32',tmp,OOB), valu('v_cndmask_b32',dst,tmp,val))

def prologue():
    e(raw(f's_load_dwordx2 {sX[0:2]}, s[0:1], 0','misc'), salu('s_cmp_ge_u32',S(2),256), raw('s_cbranch_scc1 L_exit','misc'))
    stamp('start')
    e(valu('v_lshrrev_b32',vT[0],6,V(0)), valu('v_and_b32',vL,63,V(0)))
    e(salu('s_and_b32',sXC,S(2),7), salu('s_lshr_b32',sIDX,S(2),3))
    pf_code()
    e(valu('v_readfirstlane_b32',sW,vT[0]))
    lg=OPT['lgm']
    e(salu('s_lshr_b32',sM8,sIDX,2), salu('s_lshr_b32',sI,sIDX,lg+1), salu('s_lshl_b32',sI,sI,lg), salu('s_and_b32',sT2,sXC,(1<<lg)-1), salu('s_add_u32',sI,sI,sT2))
    if OPT['tlb']:
        a,b=S(82),S(83)
        e(salu('s_and_b32',a,sIDX,3), salu('s_lshl_b32',sT1,a,3), salu('s_bitcmp1_b32',sIDX,2), raw('s_cselect_b32 s83, 0, 0x10103840','salu'), raw('s_cselect_b32 s46, 0x16100800, 0','salu'),
          salu('s_add_u32',sT0,sT0,0x01000000), salu('s_lshr_b32',b,b,sT1), salu('s_and_b32',b,b,0xff), salu('s_sub_u32',b,72,b), salu('s_lshr_b32',sT1,sT0,sT1), salu('s_and_b32',sT1,sT1,0xff))
        e(salu('s_min_u32',a,a,2), salu('s_lshl_b32',sT0,sW,3), salu('s_add_u32',sT0,sT0,32), salu('s_cmp_eq_u32',sW,3), raw('s_cselect_b32 s83, s83, s46','salu'), raw('s_cselect_b32 s82, s47, s82','salu'),
          raw('s_load_dwordx2 s[80:81], s[0:1], s83','misc'), salu('s_lshl_b32',a,a,21), salu('s_lshl_b32',sT0,S(2),7), salu('s_add_u32',a,a,sT0))
    e(salu('s_mul_i32',sW18K,sW,18432))
    vx0,vx1,row,t=vX[0],vX[1],vT[2],vT[3]
    e(salu('s_lshl_b32',sT2,sI,2), salu('s_add_u32',sT2,sT2,sW), salu('s_lshl_b32',sT2,sT2,5))
    e(valu('v_lshrrev_b32',row,3,vL), valu('v_lshrrev_b32',t,4,vL), valu('v_and_b32',vx0,7,vL), valu('v_xor_b32',vx0,vx0,t),
      valu('v_xor_b32',vx1,4,vx0), valu('v_add_u32',t,sT2,row), valu('v_mul_u32_u24',t,1152,t),
      valu('v_lshl_add_u32',vX[2],vx0,4,t), valu('v_lshl_add_u32',vX[3],vx1,4,t), valu('v_add_u32',vX[3],8*1152-1024,vX[3]),
      valu('v_add_u32',vx0,1920,vX[2]), valu('v_add_u32',vx1,1920,vX[3]))
    e(salu('s_lshr_b32',sJ,sXC,lg), salu('s_lshl_b32',sJ,sJ,lg+1), salu('s_and_b32',sT3,sIDX,(2<<lg)-1), salu('s_add_u32',sJ,sJ,sT3), salu('s_and_b32',sJ1,sJ,1))
    e(salu('s_mul_i32',sSO2,sJ1,18432*OPT['swp']))
    if OPT['px']:
        n=OPT['px']
        e(salu('s_mul_i32',sT0,sT2,1152), salu('s_and_b32',sT1,sJ,288//n-1), salu('s_mul_i32',sT1,sT1,n*128), salu('s_add_u32',sT0,sT0,sT1), valu('v_lshl_add_u32',vT[4],vL,7,sT0))
    e(raw('s_waitcnt lgkmcnt(0)','misc'))
    if OPT['px']:
        n=OPT['px']
        m=(1<<min(n,36))-1
        e(raw(f's_mov_b32 exec_lo, {hex(m&0xffffffff)}','salu'), raw(f's_mov_b32 exec_hi, {m>>32}','salu'), gload(vPF,vT[4],sX[0:2],tag='pf'))
        if n==72: e(valu('v_add_u32',vT[4],36*128,vT[4]), gload(vPF,vT[4],sX[0:2],tag='pf'))
        e(raw('s_mov_b64 exec, -1','salu'))
    e(salu('s_sub_u32',sBL[0],sX[0],1920), salu('s_subb_u32',sBL[1],sX[1],0), salu('s_add_u32',sBD[0],sBL[0],sSO2), salu('s_addc_u32',sBD[1],sBL[1],0))
def prologue2():
    for srd,off in ((sWG,32),(sWU,40),(sWQ,8),(sWO,16),(sWD,48),(sOUT,56),(sDBG,64),(sWS,72)): e(raw(f's_load_dwordx2 {srd[0:2]}, s[0:1], {off}','misc'))
    if OPT['tlb'] and not OPT['tlate']: e(raw('s_load_dword s83, s[80:81], s82','misc'))
    e(salu('s_sub_u32',sSO2,18432,sSO2), salu('s_add_u32',sBL[0],sBL[0],sSO2), salu('s_addc_u32',sBL[1],sBL[1],0))
    e(salu('s_mul_i32',sXP,sJ1,OPT['swp']*TS), salu('s_sub_u32',sXX,TS,sXP))
    e(salu('s_lshl_b32',sH,sXC,2), salu('s_and_b32',sT3,sIDX,3), salu('s_add_u32',sH,sH,sT3))
    e(salu('s_lshl_b32',sW1K,sW,10), salu('s_mul_i32',sW7K,sW,7168), salu('s_mul_i32',sW5K,sW,5120))
    for srd,n in ((sX,2048*1152),(sWQ,576*3456),(sWO,576*1152),(sWG,576*9216),(sWU,576*9216),(sWD,4608*1152),(sOUT,2048*1152),(sDBG,256),(sWS,0x10000000)):
        e(salu('s_mov_b32',srd[2],n), salu('s_mov_b32',srd[3],0x20000))
    e(salu('s_mov_b32',sLO,0x3f80), salu('s_mov_b32',sHI,0x3f800000), salu('s_mov_b32',sONES,0x3f803f80))
def pf_lane(t):
    if not OPT['pfe']: return vL
    e(salu('s_and_b32',sT1,sXC,1), salu('s_xor_b32',sT1,sT1,OPT['pfe']-1), salu('s_lshl_b32',sT1,sT1,6), valu('v_add_u32',t,sT1,vL)); return t
def addr_pf():
    row,t=vT[2],vT[3]; z=2 if OPT['pfe'] else 1; si=sM8 if OPT['pfe'] else sI
    ln=pf_lane(vT[4])
    e(salu('s_lshl_b32',sJ128,sJ1,7), salu('s_lshl_b32',sJH,sJ1,9), salu('s_sub_u32',sJH,512,sJH))
    e(salu('s_lshl_b32',sT0,si,2), salu('s_add_u32',sT0,sT0,sW), salu('s_mul_i32',sT0,sT0,z*9*9216), salu('s_mul_i32',sT1,sJ,576), salu('s_and_b32',sT1,sT1,-128), salu('s_add_u32',sT0,sT0,sT1),
      valu('v_mul_u32_u24',t,9216,vL), valu('v_add_u32',t,sT0,t))
    masked(vPG,t,'v_cmp_gt_u32',z*9,ln,row)
    u=row
    e(valu('v_mul_u32_u24',t,7282//z,vL), valu('v_lshrrev_b32',t,16,t), valu('v_mul_u32_u24',u,z*9,t), valu('v_sub_u32',u,vL,u), valu('v_mul_u32_u24',u,3456,u), valu('v_lshl_add_u32',u,t,7,u),
      salu('s_lshl_b32',sT0,si,2), salu('s_add_u32',sT0,sT0,sW), salu('s_mul_i32',sT0,sT0,z*9*3456), salu('s_mul_i32',sT1,sJ,216), salu('s_and_b32',sT1,sT1,-128), salu('s_add_u32',sT0,sT0,sT1),
      valu('v_add_u32',u,sT0,u))
    masked(vPOLL,u,'v_cmp_gt_u32',z*27,ln,t)
def pf_gu(c):
    if not OPT['pf']: return []
    return [cost(bload(vPF,vPG,s,sJ128 if c<4 else sJH,c*128 if c<4 else 0,tag='pf'),90) for s in (sWG,sWU)]
def pf_q(): return [cost(bload(vPF,vPOLL,sWQ,0,tag='pf'),270)] if OPT['pf'] else []
def addr_pfd():
    t,u=vPOLL,vT[7]; z=2 if OPT['pfe'] else 1; si=sM8 if OPT['pfe'] else sI
    ln=pf_lane(vT[4])
    e(salu('s_lshl_b32',sT0,si,2), salu('s_add_u32',sT0,sT0,sW), salu('s_mul_i32',sT0,sT0,z*81*64), salu('s_and_b32',sT0,sT0,-128), salu('s_mul_i32',sT1,sJ,288*1152), salu('s_add_u32',sT0,sT0,sT1),
      valu('v_mul_u32_u24',t,384,vL), valu('v_add_u32',t,sT0,t))
    masked(vPOLL,t,'v_cmp_gt_u32',14*z,ln,u)
def pf_d(k): return [cost(bload(vPF,vPOLL,sWD,0,k*128,tag='pf'),140)] if OPT['pf'] else []
def pf_o():
    if not OPT['pf']: return
    t,u=vT[4],vT[5]
    e(salu('s_lshl_b32',sT0,S(2),2), salu('s_add_u32',sT0,sT0,sW), salu('s_mul_i32',sT0,sT0,6*128), valu('v_lshl_add_u32',t,vL,7,sT0))
    masked(t,t,'v_cmp_gt_u32',6,vL,u)
    e(cost(bload(vPF,t,sWO,0,tag='pf'),60))
def cost(i,c): i.meta['cost']=c; return i
def xdma(tt,l):
    base=sBD if tt==0 else sBL
    o=[salu('s_add_u32','m0',sW18K,tt*73728+l*1920)] if l%2==0 else []
    for z in range(2): o.append(gdma(vX[2*(l&1)+z],base,(l&~1)*128+(2*(l&1)+z)*1024,tag=('x',tt,l),private=True))
    return o
SELA=A(208,2)
def sel_ops(m,g):
    return [valu('v_and_b32',m,1,vL), valu('v_lshlrev_b32',m,4,m), valu('v_lshlrev_b32',m,m,sLO), valu('v_bfe_u32',g,vL,1,1), valu('v_mul_lo_u32',g,g,m), valu('v_sub_u32',m,m,g),
      valu('v_accvgpr_write_b32',SELA[0],m), valu('v_accvgpr_write_b32',SELA[1],g)]
ntouch=[0]
def touch():
    if not OPT['touch']: return []
    k=ntouch[0]; ntouch[0]+=1
    o=[raw('s_mov_b64 exec, 0','salu')]
    for w in range(3): o+=[salu('s_cmp_eq_u32',sW,w), raw(f's_cbranch_scc1 L_pg{4*k+w}','misc')]
    o+=[raw(f's_branch L_pg{4*k+3}','misc'), label(f'L_tr{k}'), raw('s_mov_b64 exec, -1','salu')]
    for x in o[:-1]: x.meta['glue']=True
    return o

def lane_rp(rp,p,t):
    e(valu('v_lshrrev_b32',rp,3,vL), valu('v_and_b32',t,6,rp), valu('v_and_b32',p,7,vL), valu('v_xor_b32',p,p,t))
def addr_early():
    rp,p,t,u,kA=vT[2],vT[3],vT[4],vT[5],vT[6]
    lane_rp(rp,p,t)
    e(salu('s_and_b32',sT0,sW,1), salu('s_lshl_b32',sT0,sT0,4), salu('s_lshr_b32',sT1,sW,1), salu('s_lshl_b32',sT1,sT1,2), salu('s_add_u32',sT0,sT0,sT1))
    e(valu('v_and_b32',t,4,rp), valu('v_add_u32',kA,rp,t), valu('v_add_u32',kA,sT0,kA))
    e(salu('s_mul_i32',sT1,sJ,288), salu('s_lshl_b32',sT2,sJ1,5), salu('s_add_u32',sT2,sT2,sT1))
    e(salu('s_lshl_b32',sT3,sJ1,8), salu('s_sub_u32',sT3,256,sT3), salu('s_add_u32',sT3,sT3,sT1))
    e(salu('s_lshl_b32',sT0,sT2,1), valu('v_mul_u32_u24',t,9216,kA), valu('v_lshl_add_u32',t,p,4,t), valu('v_add_u32',vGF,sT0,t))
    e(salu('s_lshl_b32',sT0,sT3,1), valu('v_lshrrev_b32',t,2,p), valu('v_lshl_add_u32',t,t,5,kA), valu('v_mul_u32_u24',t,9216,t),
      valu('v_and_b32',u,3,p), valu('v_lshl_add_u32',t,u,4,t), valu('v_add_u32',vGH,sT0,t))
    e(salu('s_lshl_b32',sT0,sW,3), valu('v_add_u32',t,sT0,rp), valu('v_add_u32',u,sT2,t), valu('v_mul_u32_u24',u,1152,u), valu('v_lshl_add_u32',vDF,p,4,u),
      valu('v_add_u32',u,sT3,t), valu('v_mul_u32_u24',u,1152,u), valu('v_lshl_add_u32',vDH,p,4,u))
    g,r4,c,b=vT[2],vT[3],vT[6],vT[7]
    e(valu('v_bfe_u32',r4,vL,2,3), valu('v_and_b32',c,3,vL), valu('v_lshrrev_b32',g,5,vL),
      valu('v_lshlrev_b32',b,10,g), valu('v_lshl_add_u32',b,r4,7,b), valu('v_lshl_add_u32',b,c,3,b), valu('v_lshrrev_b32',t,1,r4))
    for q in range(4):
        e(valu('v_xor_b32',u,q,t), valu('v_lshl_add_u32',vTR[q][0],u,5,b), valu('v_add_u32',vTR[q][1],0x10000,vTR[q][0]), valu('v_add_u32',vTR[q][2],0x20000,vTR[q][0]))
def addr_qk():
    t=vT[4]
    e(salu('s_mul_i32',sT0,sJ,216), salu('s_and_b32',sT0,sT0,-16), salu('s_mul_i32',sT1,sW,32*3456), salu('s_add_u32',sT0,sT0,sT1))
    for q in range(7):
        pp,rr,k=vT[2],vT[3],vT[6]
        e(valu('v_add_u32',pp,64*q,vL), valu('v_mul_u32_u24',rr,4682,pp), valu('v_lshrrev_b32',rr,16,rr),
          valu('v_mul_u32_u24',t,14,rr), valu('v_sub_u32',pp,pp,t),
          valu('v_and_b32',t,12,rr), valu('v_and_b32',k,3,rr), valu('v_lshl_add_u32',k,t,1,k), valu('v_lshrrev_b32',t,4,rr), valu('v_lshl_add_u32',k,t,2,k),
          valu('v_mul_u32_u24',k,3456,k), valu('v_lshl_add_u32',k,pp,4,k), valu('v_add_u32',vQK[q],sT0,k))
        if q%4: e(valu('v_subrev_u32',vQK[q],1024*(q%4),vQK[q]))
def extpos(dst,key,t):
    e(valu('v_and_b32',dst,7,key), valu('v_bfe_u32',t,key,4,1), valu('v_lshl_add_u32',dst,t,3,dst),
      valu('v_bfe_u32',t,key,3,1), valu('v_xor_b32',t,1,t), valu('v_lshl_add_u32',dst,t,4,dst))
def addr_mid():
    t,u,c=vT[4],vT[5],vT[6]
    e(valu('v_and_b32',c,3,vL), salu('s_lshl_b32',sT0,sJ1,3), valu('v_lshrrev_b32',t,2,vL), valu('v_mul_u32_u24',t,224,t), valu('v_add_u32',t,sT0,t),
      valu('v_lshl_add_u32',vQM[0],c,3,t), valu('v_mul_u32_u24',u,72,c), valu('v_add3_u32',vQE[0],t,u,32))
    for n in (1,2): e(valu('v_add_u32',vQM[n],n*0x10000,vQM[0]), valu('v_add_u32',vQE[n],n*0x10000,vQE[0]))
def grp_ops(d,t):
    if not OPT['par']: return [salu('s_lshl_b32',d,sXC,2), salu('s_lshr_b32',t,sIDX,3), salu('s_add_u32',d,d,t)]
    return [salu('s_and_b32',d,sXC,6), salu('s_lshr_b32',t,sIDX,4), salu('s_add_u32',d,d,t), salu('s_lshl_b32',d,d,1), salu('s_and_b32',t,sXC,1), salu('s_xor_b32',t,t,OPT['par']-1), salu('s_add_u32',d,d,t),
            salu('s_lshl_b32',d,d,1), salu('s_bfe_u32',t,sIDX,0x10003), salu('s_add_u32',d,d,t)]
def addr_mid2():
    t,u,key,hf=vT[4],vT[5],vT[2],vT[3]
    e(salu('s_lshl_b32',sT0,sI,2), salu('s_add_u32',sT0,sT0,sW), salu('s_mul_i32',sT0,sT0,1280), salu('s_mul_i32',sT1,sJ,6*SL), salu('s_add_u32',sT0,sT0,sT1))
    e(salu('s_mul_i32',sT1,sJ1,16*OPT['swp']), valu('v_xor_b32',u,sT1,vL), valu('v_and_b32',key,31,u), valu('v_lshrrev_b32',hf,5,vL), valu('v_lshlrev_b32',t,2,hf), valu('v_xor_b32',t,t,u), valu('v_lshlrev_b32',t,4,t), valu('v_add_u32',vSM,sT0,t))
    extpos(u,key,t)
    e(valu('v_lshlrev_b32',u,3,u), valu('v_add_u32',u,sT0,u), valu('v_add_u32',u,1024,u), valu('v_mul_u32_u24',t,4*SL,hf), valu('v_add_u32',vSE0,u,t),
      valu('v_lshl_add_u32',vSE1,hf,31,u))
    e(salu('s_mul_i32',sT0,sJ,6), valu('v_lshrrev_b32',t,4,vL), valu('v_lshl_add_u32',t,t,1,sT0), valu('v_mov_b32',u,f32(QSCALE)), valu('v_cmp_gt_u32','vcc',32,t), valu('v_cndmask_b32',vSCX,1.0,u))
    for p_ in range(3): e(valu('v_readlane_b32',sSC[p_],vSCX,16*p_))
    e(salu('s_lshl_b32',sT0,sI,2), salu('s_add_u32',sT0,sT0,sW), salu('s_mul_i32',sT2,sT0,2*TS), salu('s_lshl_b32',sT1,sJ,10), salu('s_add_u32',sT1,sT1,sT2),
      valu('v_lshl_add_u32',vPS,vL,4,sT1),
      salu('s_lshl_b32',sT1,sJ,9), salu('s_add_u32',sT1,sT1,sT2), valu('v_lshl_add_u32',vPX,vL,3,sT1))
    e(salu('s_lshl_b32',sT1,sT0,11), salu('s_add_u32',sT1,sT1,WS_F2), valu('v_lshl_add_u32',t,vL,9,sT1), salu('s_and_b32',sT3,sJ,3), salu('s_lshl_b32',sT3,sT3,9), salu('s_add_u32',sT3,sT3,sT1))
    masked(vF1,t,'v_cmp_gt_u32',4,vL,u)
    e(salu('s_lshl_b32',sT1,sM8,2), salu('s_add_u32',sT1,sT1,sW), salu('s_lshl_b32',sT1,sT1,12), salu('s_add_u32',sT1,sT1,WS_F3), valu('v_lshl_add_u32',t,vL,9,sT1))
    masked(vF3,t,'v_cmp_gt_u32',8,vL,u)
    e(*grp_ops(sT1,sT2), salu('s_lshl_b32',sT1,sT1,1), salu('s_and_b32',sT2,sIDX,1), salu('s_add_u32',sT1,sT1,sT2),
      salu('s_lshl_b32',sT1,sT1,2), salu('s_add_u32',sT1,sT1,sW), salu('s_lshl_b32',sT1,sT1,9), salu('s_add_u32',sF3,sT1,WS_F3))
    e(raw(f'v_writelane_b32 {u}, {sT3}, 0','valu',u.regs()+sT3.regs(),u.regs()), raw(f'v_writelane_b32 {u}, {sF3}, 1','valu',u.regs()+sF3.regs(),u.regs()),
      valu('v_sub_u32',t,1,vL), valu('v_lshlrev_b32',t,4,t), cost(bstore(t,u,sWS,0,flags='sc1',tag='qkvst'),30))
    e(valu('v_and_b32',key,16,vL), valu('v_cmp_eq_u32','vcc',0,key), valu('v_cndmask_b32',hf,vR[1],vR[0]), valu('v_mul_f32',hf,hf,hf),
      salu('s_lshl_b32',sT0,sT0,7), salu('s_add_u32',sT0,sT0,WS_R2), valu('v_lshl_add_u32',key,vL,2,sT0), salu('s_lshl_b32',sT1,sJ,6), valu('v_add_u32',t,sT1,vL))
    masked(key,key,'v_cmp_gt_u32',32,t,u)
    e(bstore(hf,key,sWS,0,flags='sc1',tag='qkvst'))
def pf_code():
    if not OPT['pfc']: return
    t=vT[4]; a=V(6,2)
    e(raw('s_getpc_b64 s[100:101]','salu',[],['s100','s101']), label('L_pc'),
      salu('s_lshl_b32',sT0,sIDX,2), valu('v_add_u32',t,sT0,vT[0]), valu('v_lshl_add_u32',t,vL,7,t), valu('v_lshlrev_b32',t,7,t),
      raw(f'v_min_u32 {t}, L_codeend-L_pc-4, {t}','valu',t.regs(),t.regs()),
      raw(f'v_add_co_u32 {a[0]}, vcc, {sPC[0]}, {t}','valu',t.regs()+['s100'],a[0].regs()+['vcc']), valu('v_mov_b32',a[1],sPC[1]), raw('s_mov_b64 exec, 63','salu'),
      raw(f'v_addc_co_u32 {a[1]}, vcc, 0, {a[1]}, vcc','valu',a[1].regs()+['vcc'],a[1].regs()+['vcc']),
      I(f'global_load_dword {vPF}, {a}, off','vld',a.regs(),vPF.regs(),tag='pf'), raw('s_mov_b64 exec, -1','salu'))

GR=[V(38,4),V(42,4)]; MEAN=[V(46),V(47)]
def var_ops(tt):
    d=GR[tt]; t=vT[4]; b=d[0]
    e(valu('v_and_b32',t,1,vL), valu('v_cmp_eq_u32','vcc',0,t), valu('v_and_b32',t,2,vL), valu('v_cndmask_b32',d[0],d[1],d[0]), valu('v_cndmask_b32',d[2],d[3],d[2]),
      valu('v_cmp_eq_u32','vcc',0,t), valu('v_bfe_u32',t,vL,2,2), valu('v_cndmask_b32',d[0],d[2],d[0]), valu('v_lshrrev_b32',d[1],4,vL), valu('v_cmp_eq_u32','vcc',t,d[1]),
      valu('v_cndmask_b32',b,0,b))
    for op in ('v_permlane16_swap_b32','v_permlane32_swap_b32'): e(valu('v_mov_b32',d[1],b), swap(op,b,d[1]), valu('v_add_f32',b,b,d[1]))
    e(valu('v_mul_f32',b,f32(1/576),b), valu('v_fma_f32',b,'-'+str(MEAN[tt]),MEAN[tt],b), valu('v_max_f32',b,0,b), valu('v_cvt_pk_bf16_f32',b,b,b), valu('v_lshlrev_b32',b,16,b),
      valu('v_add_f32',b,f32(1e-5),b), valu('v_cvt_pk_bf16_f32',b,b,b), valu('v_lshlrev_b32',b,16,b),
      valu('v_sqrt_f32',b,b), valu('v_cvt_pk_bf16_f32',b,b,b), valu('v_lshlrev_b32',b,16,b), valu('v_rcp_f32',vR[tt],b))
def centre_ops(f,tt):
    o=[]; t=V(252)
    for d in range(4):
        x=f[d]
        o+=[valu('v_lshlrev_b32',t,16,x), valu('v_and_b32',x,0xffff0000,x), valu('v_sub_f32',t,t,vM[tt]), valu('v_sub_f32',x,x,vM[tt]), valu('v_cvt_pk_bf16_f32',x,t,x)]
    return o
def to_acc(s): return [valu('v_accvgpr_write_b32',XC0[4*s+d],X0[s][d]) for d in range(4)]

class Item:
    def __init__(s,name,n,mk): s.name=name; s.n=n; s.mk=mk; s.addr=None; s.first=None; s.last=None; s.pushed=False
    def blks(s): return list(range(s.addr//4096,s.addr//4096+s.n))
def blk_item(name,voff,srd,soff,buf=False,c=80):
    def mk(it):
        o=[salu('s_add_u32','m0',sW1K,it.addr)]
        if buf: return o+[salu('s_mov_b32',sSO,soff), cost(dma(voff,srd,sSO,tag=it.name,dst=it.blks()),c)]
        return o+base_add(sBD,srd,soff)+[cost(gdma(voff,sBD,tag=it.name,dst=it.blks()),c)]
    return Item(name,1,mk)
def qkv_item(a):
    def mk(it):
        o=[salu('s_mov_b32',sSO,a*128*3456)] if a==4 else base_add(sBD,sWQ,a*128*3456)
        for q in range(7):
            if q%4==0: o.append(salu('s_add_u32','m0',sW7K,it.addr+q*1024))
            if a==4: o.append(dma(vQK[q],sWQ,sSO,(q%4)*1024,tag=it.name,dst=it.blks()))
            else: o.append(cost(gdma(vQK[q],sBD,(q%4)*1024,tag=it.name,dst=it.blks()),120))
        return o
    return Item(('q',a),7,mk)
def kv_item(sg):
    def mk(it):
        o=[salu('s_add_u32','m0',sW5K,it.addr+2048)]+base_add(sBD,sWS,WS_QKV+sg*10240+2048)
        for q in range(5):
            o.append(gdma(vKV,sBD,q*1024-2048,flags='sc1',tag=it.name,dst=it.blks())); o[-1].rd.append('ok_f1'); o[-1].meta['bat']=q>0
        return o
    return Item(('kv',sg),5,mk)

class Group:
    def __init__(s): s.m=[]; s.rd=[]; s.bar=False; s.fr=[]
frp=[0]
def newfrag():
    pl=[FR[4*n:4*n+4] for n in range(16)]+[A(216+4*n,4) for n in range(OPT['frx'])]
    f=pl[frp[0]]; frp[0]=(frp[0]+1)%len(pl); return f
def tr_read(f,u,it,seg):
    return dsr('ds_read_b64_tr_b16',f[2*u:2*u+2],vTR[seg][it.addr>>16],(it.addr&0xffff)+u*2048,src=(it.name,it.blks()))
def xc(tt,s): return (XC0 if tt==0 else XC1)[4*s:4*s+4]
def hfrag(k,tt): return HH[8*k+4*tt:8*k+4*tt+4]

items=[]; groups=[]; events=[]
def chain_mm(g,ks,accs,bfun):
    t0=len(groups)&1 if OPT['snake'] else 0
    for z in range(2):
        tt=t0^z; o=list(zip(ks,g.fr))
        if z and OPT['snake']: o.reverse()
        for n,(k,f) in enumerate(o): g.m.append(m16(accs[tt],f,bfun(k,tt),0 if (ks[0]==0 and n==0) else accs[tt]))
def mm_group(srcs,accs,bfun,bar=False):
    g=Group(); g.bar=bar
    for it,seg,k in srcs:
        f=newfrag(); g.fr.append(f)
        for u in range(2): g.rd.append((it,lambda it,f=f,u=u,seg=seg: tr_read(f,u,it,seg)))
    chain_mm(g,[k for _,_,k in srcs],accs,bfun)
    groups.append(g); return len(groups)-1

def h_epilogue(bank,q,kout,half):
    gt=[bank[16*q+4*tt:16*q+4*tt+4] for tt in range(2)]; up=[bank[16*q+8+4*tt:16*q+12+4*tt] for tt in range(2)]
    o=[]
    for tt in range(2):
        for r in range(4): o.append(valu('v_max_f32',gt[tt][r],0,gt[tt][r]))
    for tt in range(2):
        for r in range(4): o.append(valu('v_mul_f32',up[tt][r],gt[tt][r],up[tt][r]))
        for d in range(2): o.append(valu('v_cvt_pk_bf16_f32',gt[tt][d],up[tt][2*d],up[tt][2*d+1]))
        for d in range(2): o.append(valu('v_accvgpr_write_b32',hfrag(kout,tt)[2*half+d],gt[tt][d]))
    return o
NV0=15
X0=[V(192+4*s,4) for s in range(NV0)]+[V(128+4*s,4) for s in range(18-NV0)]
def build_chunk(c,bank):
    xf=lambda k,tt: X0[k] if (c==0 and tt==0 and k<NV0) else xc(tt,k)
    cuts=list(range(0,19,OPT['chain']))
    if c==0: cuts=list(range(0,19,3)) if OPT['c0ch']==3 else [0,3,6,12,15,18]
    for st,(k0,k1) in enumerate(zip(cuts,cuts[1:])):
        G=[blk_item(('g',c,k),vGF,sWG,k*32*9216+c*128) for k in range(k0,k1)]
        U=[blk_item(('u',c,k),vGF,sWU,k*32*9216+c*128) for k in range(k0,k1)]
        flip=OPT['flip'] and (len(cuts)-2-st)%2==1
        items.extend(U+G if flip else G+U)
        for z,(M,o) in enumerate(((U,8),(G,0)) if flip else ((G,0),(U,8))):
            for n,q in enumerate(range(3,-1,-1) if flip else range(4)):
                b=(n==0) if z==0 else (n==0 and ((k1-k0>3 and str(c) not in str(OPT['aint'])) or OPT['bartr'] or (c==0 and st<OPT.get('bar0',2))))
                gi=mm_group([(M[k-k0],q,k) for k in range(k0,k1)],[bank[16*q+o+4*tt:16*q+o+4+4*tt] for tt in range(2)],xf,bar=b)
                if k1==18 and z: events.append((gi,h_epilogue(bank,q,2*c+(q>>1),q&1)))
def build_half(bank):
    for st in range(3):
        G=[blk_item(('gh',3*st+n),vGH,sWG,(3*st+n)*64*9216,c=150) for n in range(3)]
        U=[blk_item(('uh',3*st+n),vGH,sWU,(3*st+n)*64*9216,c=150) for n in range(3)]
        items.extend(G+U)
        seq=[(G,0,0),(G,0,1),(U,8,0),(U,8,1)] if st<2 else [(G,0,0),(U,8,0),(G,0,1),(U,8,1)]
        for z,(M,o,q) in enumerate(seq):
            ch=min(6,OPT['chain'])
            for hh in range(6//ch):
                ks=[6*st+ch*hh+n for n in range(ch)]
                gi=mm_group([(M[(k-6*st)>>1],2*(k&1)+q,k) for k in ks],[bank[16*q+o+4*tt:16*q+o+4+4*tt] for tt in range(2)],lambda k,tt:xc(tt,k),bar=(hh==0 and (z==0 or (z==2 and st<2 and OPT['bartr']))))
            if st==2 and o==8: events.append((gi,h_epilogue(bank,q,8,q)))
def build_qkv(bank):
    for a in range(5):
        it=qkv_item(a); items.append(it)
        first=True
        qc=OPT['qch'] if a<4 else 2
        for k0 in range(0,4 if a<4 else 2,qc):
            for t in (range(6,-1,-1) if OPT['flip'] and a%2 else range(7)):
                g=Group(); g.bar=first; first=False
                for kk in range(k0,k0+qc):
                    f=newfrag(); g.fr.append(f)
                    for u in range(2):
                        def rd(it,f=f,u=u,kk=kk,t=t):
                            ad=it.addr+kk*7168+u*3584+(0 if t==6 else 72*(t>>1)+40*(t&1))
                            return dsr('ds_read_b64_tr_b16',f[2*u:2*u+2],(vQE if t==6 else vQM)[ad>>16],ad&0xffff,src=(it.name,it.blks()))
                        g.rd.append((it,rd))
                chain_mm(g,[4*a+kk for kk in range(k0,k0+qc)],[bank[8*t+4*tt:8*t+4*tt+4] for tt in range(2)],lambda k,tt:xc(tt,k))
                groups.append(g)
                if a==4: events.append((len(groups)-1,qkv_epilogue(bank,t)))
def st_pair(o,data,voff,soff,tag,x=None):
    a=salu('s_mov_b32',sSO2,soff) if x is None else salu('s_add_u32',sSO2,x,soff); b=bstore(data,voff,sWS,sSO2,flags='sc1',tag=tag)
    dep=[x for x in o if x.kind=='valu'][-1]
    a.meta['q']='st'; b.meta['q']='st'; b.meta['dep']=dep
    o+=[a,b]
def qkv_epilogue(bank,t):
    o=[]
    sc=[bank[56],bank[57]]
    if t==6: o+=[valu('v_mul_f32',sc[tt],vSCX,vR[tt]) for tt in range(2)]
    elif t%2==0: o+=[valu('v_mul_f32',sc[tt],sSC[t>>1],vR[tt]) for tt in range(2)]
    a=bank[8*t:8*t+8]
    for tt in range(2):
        for r in range(4): o.append(valu('v_mul_f32',a[4*tt+r],sc[tt],a[4*tt+r]))
    if t<6:
        o+=[valu('v_cvt_pk_bf16_f32',a[0],a[0],a[1]), valu('v_cvt_pk_bf16_f32',a[1],a[2],a[3]), valu('v_cvt_pk_bf16_f32',a[2],a[4],a[5]), valu('v_cvt_pk_bf16_f32',a[3],a[6],a[7]),
            swap('v_permlane16_swap_b32',a[0],a[2]), swap('v_permlane16_swap_b32',a[1],a[3])]
        st_pair(o,a[0:4],vSM,WS_QKV+t*SL,'qkvst')
    else:
        o+=[valu('v_cvt_pk_bf16_f32',a[0],a[0],a[1]), valu('v_cvt_pk_bf16_f32',a[2],a[2],a[3]), valu('v_cvt_pk_bf16_f32',a[4],a[4],a[5]), valu('v_cvt_pk_bf16_f32',a[6],a[6],a[7])]
        o+=[valu('v_mov_b32',a[n],sONES) for n in (1,3,5,7)]
        o+=[swap('v_permlane16_swap_b32',a[0],a[4]), swap('v_permlane16_swap_b32',a[2],a[6])]
        for n,(vo,sl) in enumerate(((vSE0,0),(vSE0,1),(vSE1,2),(vSE1,3))):
            st_pair(o,a[2*n:2*n+2],vo,WS_QKV+sl*SL,'qkvst')
    return o
pool=[0]
def build_down():
    ntr=0
    if OPT['chain']==3: seq=[(c,3*tr,3*tr+3) for c,tr in [(0,0),(0,1),(1,0),(1,1),(0,2),(1,2)]+[(c,tr) for c in range(2,9) for tr in range(3)]]
    else:
        seq=[(0,0,6),(1,0,6),(0,6,9),(1,6,9)]
        for c in range(2,9): seq+=[(c,0,9)] if OPT['chain']==9 and c<8 else ([(c,0,6),(c,6,9)] if c%2==0 else [(c,0,3),(c,3,9)])
    for c,k0,k1 in seq:
        acc=V(192 if c==0 else 128+32*((c+1)%2),32)
        tr=2 if k1==9 else 0
        if True:
            B=[blk_item(('d',c,k),vDF if k<8 else vDH,sWD,(k*32*1152 if k<8 else 0)+c*128) for k in range(k0,k1)]
            items.extend(B)
            for n,q in enumerate(range(3,-1,-1) if OPT['flip'] and k1<9 and c>1 else range(4)):
                gi=mm_group([(B[k-k0],q,k) for k in range(k0,k1)],[acc[16*tt+4*q:16*tt+4*q+4] for tt in range(2)],hfrag,bar=(n==0 and (ntr%OPT['bint']==0 or ntr==26 or (ntr>=OPT['bl'] and ntr%2==0) or k1-k0==9 or OPT['bartr'])))
                if tr==2 and q%2==1:
                    o=[]
                    for tt in range(2):
                        a=acc[16*tt+4*(q-1):16*tt+4*(q-1)+8]
                        pl=[XC1[4*n:4*n+4] for n in range(18)]; pa=([A(212+4*n,4) for n in range(7)]+[A(24+4*n,4) for n in range(4)]+[A(60+4*n,4) for n in range(3)])[:OPT['apool']]
                        n=pool[0]; pool[0]+=1; a0_=OPT['ap0']
                        if a0_<=n<a0_+len(pa):
                            d4=pa[n-a0_]
                            o+=[valu('v_cvt_pk_bf16_f32',a[d],a[2*d],a[2*d+1]) for d in range(4)]+[valu('v_accvgpr_write_b32',d4[d],a[d]) for d in range(4)]
                        else:
                            d4=pl[(n if n<a0_ else n-len(pa))%18]
                            o+=[valu('v_cvt_pk_bf16_f32',d4[d],a[2*d],a[2*d+1]) for d in range(4)]
                        if c<8: st_pair(o,d4,vPS,WS_P+c*CS+(q>>1)*16384,'pst',sXX if tt else sXP)
                        else:
                            for z in range(2): st_pair(o,d4[2*z:2*z+2],vPX,WS_PX+(q-1+z)*ES,'pst',sXX if tt else sXP)
                    events.append((gi,o))
            ntr+=(k1-k0)//3

marks={}
def build_ffn():
    marks['c0']=len(groups); build_chunk(0,BANK[0])
    marks['c1']=len(groups); build_chunk(1,BANK[1])
    marks['qkv']=len(groups); build_qkv(BANK[0])
    marks['c2']=len(groups); build_chunk(2,BANK[1])
    marks['c3']=len(groups); build_chunk(3,BANK[0])
    marks['half']=len(groups); build_half(V(224,32))
    marks['down']=len(groups); build_down()

NB=39 if OPT['split'] else 40; LATE=10**9
SIG=13 if OPT['split'] else 1
vCA,vCV=V(54),vT[7]
def plan():
    L=OPT['look']
    n=0; bars=[]
    for g in groups:
        g.start=n
        if g.bar: bars.append(n-L-(1 if n and OPT['balone']==2 else 0))
        for k,(it,_) in enumerate(g.rd):
            if it.first is None: it.first=n+k-L
            it.last=n-1+(0 if len(g.fr)<=3 else ((k//4)*2 if not OPT['w3'] else (k//6)*3))
        n+=len(g.m)
    free={b:(-3000 if b>=36 else (-2000 if b<18 else -L)) for b in range(NB)}
    ptr=36
    for it in items:
        if ptr+it.n>NB: ptr=0
        it.addr=ptr*4096
        it.early=max(free[b] for b in it.blks())
        assert it.early<LATE
        it.bar=max(b for b in bars if b<=it.first)
        nxt=[b for b in bars if b-SIG>=it.last]
        for b in it.blks(): free[b]=nxt[0] if nxt else LATE
        ptr=(ptr+it.n)%NB
    return n,bars,free

VM=('dma','vld','vst')
SC=('salu','waitfor','misc','label')
lastvm=dict(any=-100,st=-100)
def head(nm,gap):
    q=fifo[nm]
    if not q or q[0][0]>gap: return None
    x=q[0][1]
    if 'lag' in x.meta and x.meta['lag'][0].meta.get('at',LATE)+x.meta['lag'][1]>gap: return None
    sq=x.meta['seq']; rd=set(x.rd)-{'carry'}; wr=set(x.wr)-{'carry'}
    for n2,q2 in fifo.items():
        if n2==nm: continue
        for _,y in q2:
            if y.meta['seq']>sq: break
            if rd&set(y.wr) or wr&set(y.rd) or wr&set(y.wr): return None
    return x
pipe=[0,16]
def vm_ready(gap,mingap,stgap,order=('st','ld','low','dma')):
    if gap-lastvm['any']<mingap: return None
    if pipe[0]-gap*pipe[1]>OPT['back']: return None
    for nm in order:
        x=head(nm,gap)
        if x is None or x.kind not in VM: continue
        if nm=='st':
            d=x.meta.get('dep')
            if gap-lastvm['st']<stgap or (d is not None and d.meta.get('at',LATE)>gap-2): continue
        return nm
    return None
def take(nm,gap):
    x=fifo[nm].pop(0)[1]
    if x.kind in VM:
        lastvm['any']=gap
        pipe[0]=max(pipe[0],gap*pipe[1])+x.meta.get('cost',80)
        if nm=='st': lastvm['st']=gap
    e(x)
    nx=[y for _,y in fifo[nm][:6] if 'vcc' in y.rd or 'vcc' in y.wr]
    if nx and 'vcc' in nx[0].rd: vcc_open[0]=nm
    elif vcc_open[0]==nm: vcc_open[0]=None
    while x.meta.get('glue'):
        x=fifo[nm].pop(0)[1]; e(x)
    return x
vcc_lock=[LATE]; vcc_open=[None]
def pull(gap,scalar):
    order=('arr','st','ld','dma','ctr','epi','low') if scalar and OPT['sprio'] else ('arr','dma','st','ctr','epi','ld','low')
    if scalar:
        for nm in order:
            x=head(nm,gap)
            if x is not None and 'carry' in x.rd: take(nm,gap); return True
    elif vcc_open[0]: order=(vcc_open[0],)+order
    for nm in order:
        x=head(nm,gap)
        if x is None or x.kind in VM: continue
        if (x.kind in SC)!=scalar: continue
        if 'vcc' in x.wr and not x.meta.get('glue') and vcc_lock[0]<OPT.get('vlock',22): continue
        take(nm,gap); return True
    return False

bar_extra={}; PH={}
def emit_backbone(bars,gapstamps):
    L=OPT['look']
    reads=[(it,f,g.start-0.5) for g in groups for it,f in g.rd]
    ev={}
    for gi,ops in events: ev.setdefault(gi,[]).append(ops)
    bar_items={}
    for it in items: bar_items.setdefault(it.bar,[]).append(it.name)
    barset=set(bars); issue={}
    fixed={}; fixT={}
    nb=len([b for b in bars if b>=SIG and OPT['split']]); kb=0
    for gi,g in enumerate(groups):
        for k in range(len(g.m)):
            gap=g.start+k; fx=[]
            w_lg=list(groups[gi+1].fr) if (k==len(g.m)-1 and gi+1<len(groups)) else []
            if len(w_lg)>3: w_lg=w_lg[:3 if OPT['w3'] else 2]
            if len(g.fr)>3 and not OPT['w3'] and k in (1,3): w_lg=g.fr[k+1:k+3]
            if len(g.fr)>3 and OPT['w3'] and k in (2,5) and k+1<len(g.fr): w_lg=g.fr[k+1:k+4]
            if len(g.fr)>6 and k in (9,13): w_lg=groups[gi+1].fr[:1+(k-9)//2] if gi+1<len(groups) else []
            w_vm=[]
            for d in (1,SIG):
                b=gap+d
                if b in barset and d==(SIG if b>=SIG else 1): w_vm=bar_items.get(b,[])+bar_extra.get(b,[])
            if OPT['split']:
                if gap+SIG in barset: x=dsw('ds_sub_u32',vCA,vONE); x.meta['signal']=True; fixT[gap]=x
                if gap+7 in barset and gap+7>=SIG: assert gap not in fixT; fixT[gap]=dsr('ds_read_b32',vCV,vCA)
                if gap+1 in barset and gap+1>=SIG:
                    kb+=1; assert gap not in fixT
                    fixT[gap]=valu('v_cmp_lt_u32','vcc',4*(nb-kb),vCV); w_lg.append(vCV)
                    OUT.extend([f'L_sb{kb}:', f'ds_read_b32 {vCV}, {vCA}', 's_waitcnt lgkmcnt(0)', fixT[gap].text, 's_nop 0', f's_cbranch_vccnz L_sb{kb}', f's_branch L_sr{kb}'])
            if gap in barset:
                if OPT['split'] and gap>=SIG: fx.append([raw(f's_cbranch_vccnz L_sb{kb}','misc',['vcc'],check=True,glue=True), label(f'L_sr{kb}')])
                else: fx.append([barrier()])
            if w_lg or w_vm: fx.append([waitfor(lg=w_lg,vmtags=w_vm)])
            fixed[gap]=fx
    def stgap_at(gap):
        dn=gap>=groups[marks['down']].start
        iv=len([b for b in bars if b<=gap])
        if iv%OPT['stper' if dn else 'qstper']: return LATE
        if any(-1<=g-gap<OPT['atd']*3//4 for g in extra): return LATE
        return OPT['stgap' if dn else 'qstgap']
    ri=[L]
    def rd():
        it,f,lg=reads[ri[0]]; ri[0]+=1; e(setseq(f(it),lg))
    planned=None
    for gi,g in enumerate(groups):
        for k,m in enumerate(g.m):
            gap=g.start+k
            if gap-1 in extra:
                cur[0]=gap-0.7
                e(*extra[gap-1])
                x=head('st',gap); n=extra[gap-1][-1].passes-3
                if x is not None and x.kind=='vst' and x.meta['dep'].meta.get('at',LATE)<gap-2: take('st',gap); n=0
                for _ in range(n): pull(gap-1,False)
            cur[0]=gap
            e(m)
            if gap in gapstamps: stamp(gapstamps[gap])
            if gap in PH: note(PH[gap])
            if 'gst' in OPT and gap in range(*map(int,OPT['gst'].split(':'))): stamp(f'gap{gap}',True)
            if planned:
                x=take(planned,gap); planned=None; assert x.kind in VM
                if x.kind=='dma': issue[x.meta['tag']]=gap
                continue
            fx=fixed[gap]
            nosc=OPT['nosc'] and P[-2].kind=='valu' and any(r=='vcc' or r[0]=='s' for r in P[-2].wr)
            if fx: e(*fx.pop(0))
            elif not nosc and not pull(gap,True) and OPT['snop']: e(raw('s_nop 0','misc'))
            if gap in barset and OPT['balone']==3 and not fx: continue
            if ri[0]<len(reads) and ri[0]<=gap+L: rd()
            elif ri[0]>=len(reads) and tail_reads: e(tail_reads.pop(0))
            used=False
            if gap in barset and OPT['balone'] and not fx: continue
            if gap+1 in barset and OPT['balone']==2 and not fx and len(fixed[gap+1])==1 and ri[0]<len(reads) and reads[ri[0]][0].bar<=gap: rd(); continue
            if fx: e(*fx.pop(0)); used=True
            if gap in fixT:
                e(fixT[gap]); used=True
                if fixT[gap].kind=='valu': continue
            lag=ri[0]<len(reads) and ri[0]<=gap+L
            if lag:
                if not used: rd()
                continue
            if gap+1 in fixed and not fixed[gap+1] and gap+1 not in fixT: planned=vm_ready(gap+1,OPT['dmagap'],stgap_at(gap+1))
            if used: continue
            if planned:
                if OPT['vmpat']==0 and ri[0]<len(reads) and reads[ri[0]][0].bar<=gap: rd()
                if OPT['vmpat']==2: pull(gap,False)
                continue
            vcc_lock[0]=min([b for b in bars if b>gap]+[LATE])-gap if OPT['split'] else LATE
            if not pull(gap,False) and not nosc: pull(gap,True)
        for ops in ev.get(gi,[]):
            for o in ops: push(o.meta.get('q','epi'),gap+4,[o])
    vcc_lock[0]=LATE
    sl=[(it.bar-SIG-issue[it.name],it.name) for it in items if it.name in issue]
    sl.sort(); print('min dma slack (gaps):',sl[:6])
    print('left after backbone:',{k:len(v) for k,v in fifo.items()})

OUT=[]
HOT=[]
def spin(name,load,expect,sleep=8,cmp='v_cmp_gt_u32',pre=[]):
    a=valu(cmp,'vcc',expect,vPOLL); a.meta['glue']=True
    b=raw(f's_cbranch_vccnz L_spin_{name}','misc',['vcc']); b.meta['glue']=True
    c=label(f'L_back_{name}')
    cnt=vT[6]
    OUT.extend([f'L_spin_{name}:', f'v_mov_b32 {cnt}, 0x40000', f'L_spinl_{name}:', *pre, load.text, 's_waitcnt vmcnt(0)', f'{cmp} vcc, {fmt(expect)}, {vPOLL}', 's_nop 1',
        f's_cbranch_vccz L_back_{name}', f'v_subrev_u32 {cnt}, 1, {cnt}', f'v_cmp_ne_u32 vcc, 0, {cnt}', f's_sleep {sleep}', f's_cbranch_vccnz L_spinl_{name}', f's_branch L_back_{name}'])
    a.wr.append(cnt.regs()[0]); a.wr.append('ok_'+name)
    return [a,b,c]

def addr_att(WB):
    t,u,key,hf,p,rp=vT[0],vT[1],vT[2],vT[3],vT[4],vT[5]
    e(valu('v_and_b32',key,31,vL), valu('v_lshrrev_b32',hf,5,vL), valu('v_lshlrev_b32',t,2,hf), valu('v_xor_b32',t,t,vL), valu('v_lshlrev_b32',vKM,4,t))
    extpos(u,key,t)
    e(valu('v_lshlrev_b32',vKE,3,u), valu('v_add_u32',vKE,1024,vKE))
    e(salu('s_lshr_b32',sT0,sW,1), salu('s_lshl_b32',sT0,sT0,5), salu('s_add_u32',sT0,sT0,sH), salu('s_add_u32',sT0,sT0,32), salu('s_mul_i32',sT0,sT0,SL),
      salu('s_and_b32',sT1,sW,1), salu('s_mul_i32',sT1,sT1,5120), salu('s_add_u32',sT0,sT0,sT1), valu('v_lshl_add_u32',vKV,vL,4,sT0))
def addr_z(): e(valu('v_and_b32',vZ,1,vL), valu('v_lshlrev_b32',vZ,7,vZ))
def qk_loads(WB):
    t,u,hf=vT[0],vT[1],vT[3]
    e(salu('s_mov_b32',sSO3,WS_R2), cost(bload(vR2,vR2,sWS,sSO3,flags='sc1'),40))
    e(valu('v_lshrrev_b32',hf,5,vL), valu('v_mul_u32_u24',u,1280,hf), valu('v_add_u32',u,u,vKE))
    e(salu('s_lshl_b32',sT0,sM8,2), salu('s_add_u32',sT0,sT0,sW), salu('s_mul_i32',sT0,sT0,2560), salu('s_mul_i32',sT1,sH,SL), salu('s_add_u32',sSO3,sT0,sT1))
    for x in range(2): e(bload(QM[x],vKM,sWS,sSO3,x*1280,flags='sc1'))
    e(cost(bload(QE[0],u,sWS,sSO3,0,flags='sc1'),40))
    e(salu('s_add_u32',sSO3,sT1,32*SL))
    for x in range(2): e(bload(KM[x],vKM,sWS,sSO3,x*1280,flags='sc1'), cost(bload(KE[x],vKE,sWS,sSO3,x*1280,flags='sc1'),40))
    e(valu('v_add_u32',vKM,WB,vKM), valu('v_add_u32',vKE,WB,vKE), valu('v_mov_b32',QE[1],0), valu('v_mov_b32',vIDX,0xdddd))
def zero_o():
    for x in range(2):
        for r in range(16): e(valu('v_mov_b32',OO[x][r],0))
def extra_zero(ngaps):
    with collect() as o: zero_o()
    push('ctr',ngaps-66,o,ngaps-66)
def addr_lds(WB):
    t,hf=vT[0],vT[3]
    e(valu('v_lshrrev_b32',hf,5,vL))
    c,r,k,x=vT[4],vT[5],vT[6],vT[1]
    e(valu('v_and_b32',c,3,vL), valu('v_bfe_u32',r,vL,2,2), valu('v_lshl_add_u32',r,hf,3,r))
    for n in range(4):
        uu,y=n>>1,n&1
        e(valu('v_add_u32',k,16*uu+4*y,r))
        extpos(x,k,t)
        e(valu('v_lshlrev_b32',x,3,x), valu('v_min_u32',t,1,c), valu('v_mul_u32_u24',t,LDS_OOB+64,t), valu('v_xor_b32',x,x,t), valu('v_add_u32',x,1024,x))
        e(valu('v_lshrrev_b32',t,1,c), valu('v_mul_u32_u24',t,36,t), valu('v_xor_b32',k,k,t), valu('v_lshlrev_b32',k,4,k), valu('v_and_b32',t,1,c), valu('v_lshl_add_u32',k,t,3,k))
        e(valu('v_and_b32',t,16,vL), valu('v_cmp_eq_u32','vcc',0,t), valu('v_cndmask_b32',k,x,k), valu('v_add_u32',vVA[n],WB,k))
vOP,vSH,vINC=V(55),V(16),V(17)
def addr_op():
    t,u,g=vT[2],vT[4],vT[5]
    e(salu('s_lshl_b32',sT0,sXC,2), valu('v_lshlrev_b32',vINC,sT0,vONE), salu('s_mov_b32',sPV,0), valu('v_add_u32',vKE1,1280,vKE))
    if OPT['vp']: e(valu('v_min_u32',vOP,1,vL), valu('v_lshl_add_u32',vOP,vOP,31,sF3))
    if OPT['warm']: e(salu('s_and_b32',sT0,sIDX,7), salu('s_lshl_b32',sT0,sT0,2), salu('s_add_u32',sT0,sT0,sW),
      salu('s_lshl_b32',sT1,sXC,2), salu('s_lshr_b32',sT2,sIDX,3), salu('s_add_u32',sT1,sT1,sT2),
      salu('s_lshr_b32',sT2,sT0,4), salu('s_lshl_b32',sT2,sT2,15), salu('s_and_b32',sT3,sT0,15), salu('s_lshl_b32',sT3,sT3,8), salu('s_add_u32',sT2,sT2,sT3),
      salu('s_lshl_b32',sT3,sT1,16), salu('s_add_u32',sT2,sT2,sT3), salu('s_add_u32',sT2,sT2,WS_O),
      valu('v_lshrrev_b32',g,1,vL), valu('v_lshl_add_u32',t,g,12,sT2), valu('v_and_b32',u,1,vL), valu('v_lshl_add_u32',t,u,7,t),
      salu('s_bfe_u32',sT2,sT0,0x10002), salu('s_lshl_b32',sT2,sT2,12), salu('s_and_b32',sT3,sT0,3), salu('s_lshl_b32',sT3,sT3,7), salu('s_add_u32',sT2,sT2,sT3),
      salu('s_lshl_b32',sT3,sT1,13), salu('s_add_u32',sT2,sT2,sT3), salu('s_add_u32',sT2,sT2,WS_OX),
      valu('v_and_b32',u,7,vL), valu('v_lshl_add_u32',vOP,u,9,sT2), valu('v_cmp_gt_u32','vcc',16,vL), valu('v_cndmask_b32',vOP,vOP,t), valu('v_cndmask_b32',g,u,g),
      valu('v_lshl_add_u32',g,g,2,2), valu('v_cmp_gt_u32','vcc',24,vL), valu('v_cndmask_b32',vSH,3,g))
def x_loads():
    o=[cost(gload(XR[2*q:2*q+2],vXO,sX[0:2],32*q),260) for q in range(4)]+[cost(bload(XR[8:10],vXOX,sX,0),200)]
    for q in (1,3,4): o[q].meta['bat']=True
    return o
def addr_fin():
    t,u,p,rp,a,b=vT[0],vT[1],vT[4],vT[5],vT[6],vT[3]
    lane_rp(rp,p,t)
    e(salu('s_and_b32',sT0,sW,1), salu('s_lshr_b32',sT1,sW,1), salu('s_mul_i32',sT2,sT0,20), salu('s_lshl_b32',sT3,sT1,3), salu('s_add_u32',sT2,sT2,sT3), valu('v_add_u32',a,sT2,rp),
      salu('s_mul_i32',sT2,sT0,288), salu('s_mul_i32',sT3,sT1,36), salu('s_add_u32',sT2,sT2,sT3), salu('s_add_u32',sT2,sT2,16),
      valu('v_lshrrev_b32',t,2,rp), valu('v_mul_u32_u24',t,144,t), valu('v_and_b32',b,3,rp), valu('v_add3_u32',b,b,t,sT2))
    e(salu('s_and_b32',sT0,sIDX,7), salu('s_lshl_b32',sT1,sT0,7), valu('v_lshl_add_u32',u,p,4,sT1),
      valu('v_mul_u32_u24',t,1152,a), valu('v_add_u32',vWO,t,u), valu('v_mul_u32_u24',t,1152,b), valu('v_add_u32',vWOE,t,u))
    e(salu('s_lshr_b32',sT2,sT0,1), salu('s_lshl_b32',sT2,sT2,5), salu('s_add_u32',sT2,sT2,1024), valu('v_and_b32',u,1,p), valu('v_lshl_add_u32',u,u,4,sT2), valu('v_lshrrev_b32',p,1,p),
      valu('v_mul_u32_u24',t,36,p), valu('v_add_u32',t,t,a), valu('v_mul_u32_u24',t,1152,t), valu('v_add_u32',vWX,t,u),
      valu('v_mul_u32_u24',t,p,p), valu('v_mul_u32_u24',t,t,p), valu('v_mul_u32_u24',t,72,t), valu('v_add_u32',t,t,b), valu('v_mul_u32_u24',t,1152,t), valu('v_add_u32',vWXE,t,u))
    e(*grp_ops(sT3,sSO3), salu('s_lshl_b32',sT3,sT3,2), salu('s_add_u32',sT3,sT3,sW))
    tk,g=vT[4],vT[5]
    e(valu('v_and_b32',tk,15,vL), valu('v_lshrrev_b32',g,4,vL))
    e(salu('s_mul_i32',sSC[2],sT3,TS), salu('s_mul_i32',sSO3,sT0,CS), salu('s_add_u32',sSO3,sSO3,sSC[2]), valu('v_lshl_add_u32',vPL,vL,4,sSO3))
    e(salu('s_xor_b32',sSC[0],sW,sT0), salu('s_lshl_b32',sSC[0],sSC[0],31))
    e(salu('s_lshr_b32',sSO3,sT0,1), salu('s_mul_i32',sSO3,sSO3,ES), salu('s_add_u32',sSO3,sSO3,sSC[2]), salu('s_ashr_i32',sSC[1],sSC[0],31), salu('s_andn2_b32',sSC[1],0x1f8,sSC[1]), valu('v_lshlrev_b32',t,3,vL), valu('v_and_b32',t,sSC[1],t), valu('v_add_u32',vPLX,sSO3,t))
    e(salu('s_lshl_b32',sSO3,sT3,4), valu('v_add_u32',a,sSO3,tk), valu('v_lshlrev_b32',vR2,2,a), valu('v_mul_u32_u24',a,1152,a), valu('v_lshl_add_u32',a,g,3,a),
      valu('v_add_u32',vXO,sT1,a), salu('s_or_b32',sT2,sT2,sSC[0]), valu('v_add_u32',vXOX,sT2,a))
    if not OPT['xat']: e(*x_loads())
    e(salu('s_and_b32',sSO3,sT3,1), salu('s_lshl_b32',sSO3,sSO3,4), valu('v_add_u32',a,sSO3,tk), salu('s_lshr_b32',sSC[1],sT3,1),
      salu('s_mul_i32',sSO3,sSC[1],OS), valu('v_lshl_add_u32',t,a,4,sSO3), valu('v_lshl_add_u32',vOL,g,9,t),
      salu('s_mul_i32',sSO3,sSC[1],XS), valu('v_lshl_add_u32',t,a,2,sSO3), valu('v_lshl_add_u32',vOLX,g,10,t))
    e(valu('v_and_b32',t,31,vL))
    for n in range(4): e(*base_add(sOB[n],sWS,WS_O+8192*n+4096))
    e(*base_add(S(88,2),sWS,WS_O), *base_add(S(90,2),sWS,WS_O+OS))
    e(salu('s_lshr_b32',sSO3,sT3,1), salu('s_lshl_b32',sSO3,sSO3,11), salu('s_add_u32',sSO3,sSO3,WS_F2), salu('s_and_b32',sSC[1],sIDX,3), salu('s_lshl_b32',sSC[1],sSC[1],9), salu('s_add_u32',sSO3,sSO3,sSC[1]),
      valu('v_min_u32',vPG,1,vL), valu('v_lshl_add_u32',vPG,vPG,31,sSO3))
    e(salu('s_lshl_b32',sT0,sM8,2), salu('s_add_u32',sT0,sT0,sW), salu('s_mul_i32',sT1,sT0,2*OS), salu('s_lshl_b32',sT2,sH,10), salu('s_add_u32',sT1,sT1,sT2),
      valu('v_lshl_add_u32',vOS,vL,4,sT1),
      salu('s_mul_i32',sT1,sT0,2*XS), salu('s_lshl_b32',sT2,sH,7), salu('s_add_u32',sT1,sT1,sT2), salu('s_add_u32',sT1,sT1,WS_OX),
      valu('v_lshl_add_u32',t,t,2,sT1), valu('v_lshrrev_b32',u,5,vL), valu('v_mul_u32_u24',u,XS,u), valu('v_add_u32',vOSX,u,t))

def max_ops(srcs,m,first=True):
    o=[]
    regs=[s[r] for s in srcs for r in range(16)]
    if first: o.append(valu('v_max3_f32',m,regs[0],regs[1],regs[2])); rest=regs[3:]
    else: rest=regs
    while len(rest)>=2: o.append(valu('v_max3_f32',m,m,rest[0],rest[1])); rest=rest[2:]
    if rest: o.append(valu('v_max_f32',m,m,rest[0]))
    return o
def set_shift(mx,margin):
    m,t=mx
    return [swap('v_permlane32_swap_b32',m,t), valu('v_max_f32',m,m,t), valu('v_sub_f32',m,f32(-margin) if margin else 0,m),
            valu('v_cvt_pk_bf16_f32',t,m,m), valu('v_lshlrev_b32',t,16,t), valu('v_sub_f32',t,m,t), valu('v_cvt_pk_bf16_f32',QE[1],m,t)]
def Bx(tau,buf=None): return m2b(buf or SBB[tau%3],KE[tau%4],QE,0)
def Mx(tau,x,buf=None): b=(buf or SBB[tau%3])[16*x:16*x+16]; return m32(b,KM[tau%3],QM[x],b)
def PV(tau,x,h,buf=None): return smf(OO[x],VV[tau&1][4*h:4*h+4],(buf or SBB[tau%3])[16*x+8*h:16*x+8*h+8],vIDX)
def vread(kv,WB,tau,n):
    it=kv[tau>>3]; off=it.addr-WB+10240+(tau&7)*1280
    return dsr('ds_read_b64_tr_b16',VV[tau&1][2*n:2*n+2],vVA[n],off,src=(it.name,it.blks()))
extra={}
def att_setup(ngaps,kv,WB):
    g=ngaps-OPT['at0']; d=OPT['atd']
    for k,m in enumerate((Bx(0),Bx(1),Mx(0,0),Mx(1,0),Mx(0,1),Mx(1,1))): extra[g+k*d]=[m]
    extra[g].insert(0,waitfor(vm=QM+KM[:2]+KE[:2]+[QE[0]]))
    mx=[vT[0],vT[1]]
    for x in range(2): push('ctr',g+(3+2*x)*d+7,max_ops([SBB[0][16*x:16*x+16],SBB[1][16*x:16*x+16]],mx[x]),g+(3+2*x)*d+2)
    push('ctr',g+5*d+7,set_shift(mx,MARGIN),g+5*d+2)
    for k,m in enumerate((Bx(0),Mx(0,0),Mx(0,1))): extra[g+(7+k)*d]=[m]
    assert g+9*d<ngaps-8
    tail_reads.extend(vread(kv,WB,0,n) for n in range(4))
tail_reads=[]

def attention(g0,kv,WB,wo_items):
    base=g0+100
    pipe[0]=0; pipe[1]=44
    def kread(tau):
        it=kv[tau>>3]; off=it.addr-WB+(tau&7)*1280; src=(it.name,it.blks())
        if tau<4 or not OPT['ke2']: ke=dsr('ds_read_b64',KE[tau%4],vKE,off,src=src)
        elif tau&2: ke=None
        else:
            o=(off-1280*(tau&1))//512; d=A(KE[tau&1].b,4); a=vKE1 if tau&1 else vKE
            ke=I(f'ds_read2st64_b64 {d}, {a} offset0:{o} offset1:{o+5}','dsr',a.regs(),d.regs(),src=src,private=False)
        return [dsr('ds_read_b128',KM[tau%3],vKM,off,src=src), ke]
    def flush(n,names=('ctr','epi','low','dma','ld')):
        k=0
        while k<n:
            for nm in names:
                x=head(nm,cur[0])
                if x is not None: take(nm,cur[0]); break
            else: return
            k+=1
    cur[0]=g0
    assert not fifo['ctr'] and not fifo['low'] and not fifo['ld']
    stamp('att'); note('---- attention')
    barx={7:[it.name for it in wo_items]}; f2done=[False]; wcut=[int(x) for x in OPT['wcut'].split(',')]
    vmk=(1,4) if OPT['bat'] else (1,3,4,5)
    for tau in range(64):
        n=2*tau; nx=tau<63; S=SBB[tau%3]
        if 'ast' in OPT and n in range(*map(int,OPT['ast'].split(':'))): stamp(f'slot{n}',True)
        ms=[Bx(tau+1) if nx else None, PV(tau-1,1,1) if tau else None, PV(tau,0,0), Mx(tau+1,0) if nx else None, PV(tau,0,1), Mx(tau+1,1) if nx else None, PV(tau,1,0)]
        if OPT['aord']:
            h=OPT['aord']&1
            ms=[ms[0], PV(tau-1,1,h) if tau else None, PV(tau-1,1,1-h) if tau else None, ms[3], ms[5], PV(tau,0,0), PV(tau,0,1)]
            if not nx: ms[3:]=[PV(tau,0,0), PV(tau,0,1), None, PV(tau,1,0)]
        km,ke=kread(tau+2) if tau+2<64 else (None,None)
        v=[vread(kv,WB,tau+1,z) if nx else None for z in range(4)]
        rds=[None,ke,v[0],v[1],km,v[2],v[3]]
        sg=(tau+3)//8 if (tau+3)%8==0 and tau+3<64 else None
        if sg==1 and OPT['nob1']: assert kv[2].pushed and wcut[1]==0; sg=None
        for k in range(7):
            gap=base+8*tau+(k+1 if k else 0); cur[0]=gap
            if tau==0 and k==1: flush(1000,('epi',)); e(waitfor(lg=[VV[0]]))
            if ms[k] is not None: e(ms[k])
            nsc=(0,2,2,1,2,1,2)[k] if not OPT['aord'] else (0,2,2,1,1,2,2)[k]; kb=5 if OPT['aord'] else 4
            fx=k in (2,6) or (k==kb and sg is not None)
            vmn=vm_ready(gap,1,OPT['astgap'],('st','dma','ld','low')) if (not fx and k in vmk and ms[k] is not None) else None
            if OPT['bat'] and not fx and k in vmk and ms[k] is not None:
                sv=pipe[0]; pipe[0]=0; a_=vm_ready(gap,1,1,('st',)) if (k==1 or tau==0) else None; pipe[0]=sv-OPT['aback']
                vmn=a_ or vm_ready(gap,1,1,('dma','ld','low')); pipe[0]=sv
            if vmn:
                take(vmn,gap)
                while OPT['bat'] and fifo[vmn] and fifo[vmn][0][1].meta.get('bat'): take(vmn,gap)
            else:
                if k==2: e(waitfor(lg=[VV[tau&1][4:8],KM[(tau+1)%3]])); nsc-=1
                if k==2 and tau==63 and OPT['warm']: e(*poll())
                if k==6: e(waitfor(lg=[VV[(tau+1)&1][0:4],KE[(tau+2)%4]])); nsc-=1
                if k==kb and sg is not None:
                    e(waitfor(vmtags=[kv[sg].name]+barx.get(sg,[])), barrier()); nsc-=2
                    if sg+1<8 and not kv[sg+1].pushed: push('dma',gap,kv[sg+1].mk(kv[sg+1]))
                    for it in [x for x in wo_items if not x.pushed][wcut[sg-1]:wcut[sg]]: push('dma',gap,it.mk(it))
                while nsc>0 and pull(gap,True): nsc-=1
            if rds[k] is not None: e(rds[k])
            x=head('ld',gap)
            if x is not None and x.kind=='valu': take('ld',gap)
            for r in (range(8) if k==0 else range(4*k+4,4*k+8)): e(valu(OPT['exp'],S[r],S[r]))
        if n==OPT['tatt']: push('arr',gap,touch())
        if n==2 and OPT['xat']: push('ld',gap,x_loads())
        if not fifo['st'] and not f2done[0]:
            f2done[0]=True; print('partial stores end at slot',n)
            push('st',gap+4*OPT['f2lag'],[waitfor(vmtags=['pst']), batomic(vONE,vF1,sWS,0,op='sub')])
        if n==OPT['f2poll']:
            ld=I(f'buffer_atomic_add {vPOLL}, {vPG}, {sWS}, 0 offen sc0','vld',vPOLL.regs()+vPG.regs(),vPOLL.regs(),tag=None)
            e(valu('v_mov_b32',vPOLL,0)); push('st',gap,[ld])
            t0=base+4*OPT['f2chk']
            w_=waitfor(vm=[vPOLL]); w_.meta['lag']=(ld,4*(OPT['f2chk']-OPT['f2poll']))
            push('ld',t0,[w_]+spin('f2',ld,0,OPT['f2sl'],'v_cmp_ne_u32',[f'v_mov_b32 {vPOLL}, 0']))
            ops=base_add(sPC,sWS,WS_PX+4096); nb=OPT['bat'] or 1
            for k in range(32):
                if k%8==0: ops+=base_add(sBL,sWS,WS_P+k*1024+4096)
                ops.append(gload(PART[k],vPL,sBL,(k%8)*1024-4096,flags='sc1')); ops[-1].meta['bat']=k%nb>0
                if k%2==1: ops.append(cost(gload(PARTX[k>>1],vPLX,sPC,(k>>1)*512-4096,flags='sc1'),40)); ops[-1].meta['bat']=True
            nl=0; prev=None
            for o in ops:
                if o.kind=='vld' and not (o.meta['bat'] and OPT['bat']):
                    if prev is not None: o.meta['lag']=(prev,OPT['ldmin'])
                    prev=o
                push('ld',t0+int(nl*OPT['ldgap']),[o])
                if o.kind=='vld': nl+=1
    cur[0]=base+600
    e(PV(63,1,1))
    print('att vmem slots:',' '.join(f"{'kv' if i.meta.get('tag') and i.meta['tag'][0]=='kv' else i.kind[1]}{(i.meta['at']-base)//4}" for i in P if i.kind in VM and i.meta['at']>=base))
    print('left after attention:',{k:len(v) for k,v in fifo.items()})
    assert not any(fifo.values()), 'work left after attention'

def fallback(kv,WB):
    global P
    save=P; P=[]
    pb=kv[5].addr
    a=[V(192+n) for n in range(6)]; vo=V(198); mx=[V(199),V(200)]; S=SBB[2]
    e(label('L_fb'), raw('s_waitcnt vmcnt(0) lgkmcnt(0)','misc'), raw('s_nop 15','misc'))
    for d,s in zip(a,[vKM,vKE]+vVA): e(valu('v_add_u32',d,sW5K,s))
    e(valu('v_lshlrev_b32',vo,4,vL), valu('v_mov_b32',QE[1],0), valu('v_mov_b32',mx[0],0xff800000), valu('v_mov_b32',mx[1],0xff800000))
    off=pb-WB
    for ps in range(2):
        e(salu('s_add_u32',sT0,sH,32), salu('s_mul_i32',sT0,sT0,SL), salu('s_add_u32',sT1,sT0,32*SL), salu('s_mov_b32',sT2,64), label(f'L_fbl{ps}'))
        e(salu('s_add_u32','m0',sW5K,pb), dma(vo,sWS,sT0,0,flags='sc1'), dma(vo,sWS,sT0,1024,flags='sc1'))
        if ps: e(salu('s_add_u32','m0',sW5K,pb+2560), dma(vo,sWS,sT1,0,flags='sc1'), dma(vo,sWS,sT1,1024,flags='sc1'))
        e(waitfor(vmall=True), dsr('ds_read_b128',KM[0],a[0],off), dsr('ds_read_b64',KE[0],a[1],off))
        if ps:
            for n in range(4): e(dsr('ds_read_b64_tr_b16',VV[0][2*n:2*n+2],a[2+n],off+2560))
        e(waitfor(lgall=True))
        e(Bx(0,S), Mx(0,0,S), Mx(0,1,S))
        for x in range(2):
            if ps==0: e(*max_ops([S[16*x:16*x+16]],mx[x],first=False))
            else:
                for r in range(16): e(valu('v_exp_f32',S[16*x+r],S[16*x+r]))
                for h in range(2): e(PV(0,x,h,S))
        e(raw('s_nop 15','misc'), salu('s_add_u32',sT0,sT0,1280), salu('s_add_u32',sT1,sT1,1280), salu('s_sub_u32',sT2,sT2,1), salu('s_cmp_lg_u32',sT2,0), raw(f's_cbranch_scc1 L_fbl{ps}','misc'))
        if ps==0:
            e(*set_shift(mx,0.0)); zero_o()
    e(*norm_store(0,V(116,2)), *norm_store(1,V(116,2)), waitfor(vmall=True))
    e(raw('s_nop 3','misc'), raw('s_branch L_fb_ret','misc'))
    OUT.extend(i.text for i in finalize(P,verbose=0,name='fb'))
    P=save

TT=[V(224,16),V(240,16)]
FLAG_LDS=[0]
def norm_store(x,t):
    O,T=OO[x],TT[x]
    o=[valu('v_rcp_f32',t[0],O[10]), valu('v_mov_b32',t[1],t[0]), swap('v_permlane32_swap_b32',t[0],t[1])]
    o+=[valu('v_mul_f32',T[r],t[0],O[r]) for r in range(10)]
    o+=[valu('v_cvt_pk_bf16_f32',T[d],T[2*d],T[2*d+1]) for d in range(4)]
    o+=[gstore(T[0:4],vOS,S(88+2*x,2),flags='sc1',tag='ost'), valu('v_cvt_pk_bf16_f32',T[8],T[8],T[9])]
    if x: o+=[swap('v_permlane32_swap_b32',TT[0][8],TT[1][8]), gstore(TT[0][8],vOSX,sWS[0:2],flags='sc1',tag='ost')]
    return o
def poll(r=sPV): return [raw(f's_atomic_umax {r}, {sWS[0:2]}, {sF3} glc')]
def final(g0,wo_main,wo_x):
    cur[0]=g0
    SA=V(56,20); DN=V(76,20); XF=V(96,20); tmp=V(116,12)
    e(*norm_store(0,tmp[0:2]), *norm_store(1,tmp[6:8]))
    stamp('o stored')
    fill=[]
    for x in range(2):
        s=tmp[2+x]
        fill.append(valu('v_add_f32_e64',s,f'|{OO[x][0]}|',f'|{OO[x][1]}|'))
        for r in range(2,10): fill.append(valu('v_add_f32_e64',s,s,f'|{OO[x][r]}|'))
    fill+=[valu('v_min_f32',tmp[4],tmp[2],tmp[3]), valu('v_add_f32',tmp[2],tmp[2],tmp[3]), valu('v_add_f32',tmp[3],OO[0][10],OO[1][10]), valu('v_add_f32',tmp[2],tmp[2],tmp[3]),
           valu('v_max_f32',tmp[0],tmp[0],tmp[6]), valu('v_fmac_f32',tmp[2],f32(2.0**(124-MARGIN)),tmp[0],rmw=True)]
    chk=[valu('v_cmp_nle_f32','vcc',f32(2.0**-103),tmp[4]), raw('s_cbranch_vccnz L_fb','misc',['vcc']),
      valu('v_cmp_nge_f32','vcc',f32(2.0**126) if not OPT['forcefb'] else f32(-1.0),tmp[2]), raw('s_cbranch_vccnz L_fb','misc',['vcc']), label('L_fb_ret')]
    pool_=[V(128+4*n,4) for n in range(32)]+[A(212+4*n,4) for n in range(7)]+[A(72+4*n,4) for n in range(34)]
    frs=[]; rds=[]
    order=[0,1,4,5,8,9,12,13,16,2,3,6,7,10,11,14,15,17]
    for s in order:
        for q in range(5):
            f=pool_[len(frs)%len(pool_)]; frs.append(f)
            for u in range(2): rds.append(tr_read(f,u,wo_main[s],q) if q<4 else tr_read(f,u,wo_x[s>>2],s&3))
    red=[]
    for j in range(16):
        for q in range(5):
            d=DN[4*q:4*q+4]
            red.append(m4(d,SELA,PART[16*(q>>1)+j][2*(q&1):2*(q&1)+2] if q<4 else PARTX[j],0 if j==0 else d))
    red+=[m4(XF[4*q:4*q+4],SELA,XR[2*q:2*q+2],0) for q in range(5)]
    e(waitfor(vm=PART+PARTX+[XR,vR2]))
    ri=0
    test=lambda: [waitfor(lgall=True,lgforce=True), salu('s_cmp_eq_u32',sPV,0x44444444)]
    def warm(r=sPV,tracked=False):
        if not OPT['warm']: return []
        t=vT[0]; ld=bload(vPF,t,sWS,0,flags='sc1',tag='pf')
        return [valu('v_lshrrev_b32',t,vSH,r), valu('v_not_b32',t,t), valu('v_lshl_add_u32',t,t,31,vOP), ld if tracked else raw(ld.text)]
    g,c2,ir=tmp[8],tmp[9],tmp[10]
    late_=[valu('v_mul_f32',c2,f32(-1.4426950408889634),vR2), valu('v_rcp_f32',ir,vR2),
           valu('v_bfe_u32',g,vL,4,1), valu('v_mul_u32_u24',g,24,g), valu('v_add_u32',vXO,vXO,g)]
    for k,mm in enumerate(red):
        e(mm)
        if k in (OPT['pollat'],OPT['pollat2'],OPT['pollat3']): e(*poll())
        if fill:
            e(fill.pop(0))
            if not fill: e(*chk, waitfor(lgall=True,lgforce=OPT['warm']), *warm(tracked=True), *base_add(sBL,sWS,WS_OX))
            continue
        if k==OPT['hat']: e(waitfor(vmtags=['ost']), batomic(vINC,vF3,sWS,0)); stamp('flag'); continue
        if k>=80: e(late_.pop(0)); continue
        if k%4==3: e(waitfor(lg=frs[:max(0,ri//2-4)]))
        e(rds[ri]); ri+=1
    assert ri<=2*39
    stamp('ready')
    EX=[V(30+n) for n in range(13)]+[V(45+n) for n in range(5)]+[V(14),V(15)]
    fill=[]
    for f in (lambda r:valu('v_mul_f32',EX[r],c2,DN[r]), lambda r:valu('v_exp_f32',EX[r],EX[r]), lambda r:valu('v_fma_f32',EX[r],EX[r],ir,ir),
              lambda r:valu('v_rcp_f32',EX[r],EX[r]), lambda r:valu('v_mul_f32',DN[r],EX[r],DN[r])):
        fill+=[(0,[f(r)]) for r in range(20)]
    OF=[A(4*s,4) for s in range(18)]
    def gate(name,mask):
        one=bin(mask).count('1')==1
        t=lambda: [salu('s_bitcmp1_b32',sPV,mask.bit_length()-1)] if one else [salu('s_and_b32',sT1,sPV,mask), salu('s_cmp_eq_u32',sT1,mask)]
        if OPT['vp']:
            n=OPT['vp']; PL=[vT[z] for z in range(n)]
            vp=lambda z: raw(f'buffer_atomic_umax {PL[z]}, {vOP}, {sWS}, 0 offen sc0')
            y=[label(f'L_w{name}'), vp(0), raw('s_waitcnt lgkmcnt(0)')]+t()+[raw(f's_cbranch_scc1 L_g{name}')]
            for z in range(1,n): y+=[raw(f's_sleep {OPT["psleep"]}'), vp(z)]
            y+=[label(f'L_wl{name}')]
            for z in range(n): y+=[raw(f's_waitcnt vmcnt({n-1})'), valu('v_readfirstlane_b32',sPV,PL[z])]+t()+[raw(f's_cbranch_scc1 L_g{name}'), vp(z)]
        else: y=[label(f'L_w{name}')]+(poll() if OPT['pfirst'] else [])+[label(f'L_wl{name}'), raw('s_waitcnt lgkmcnt(0)')]+t()+[raw(f's_cbranch_scc1 L_g{name}')]+poll()
        y+=[salu('s_addk_i32',sT0,-1), salu('s_cmp_gt_i32',sT0,0), raw(f's_cbranch_scc1 L_wl{name}'), raw(f's_branch L_g{name}')]
        if OPT['inl']: return t()+[raw(f's_cbranch_scc1 L_g{name}')]+y[:-1]+[label(f'L_g{name}')]
        HOT.extend(finalize(y,verbose=0))
        return t()+[raw(f's_cbranch_scc0 L_w{name}',glue=True), label(f'L_g{name}')]
    ge=gate('e',0x04040404)
    ol=[]
    for n,s in enumerate(order):
        if s<16: ol.append((gate(s,4<<(2*s)) if n>8 and s%2==0 else [], gload(OF[n],vOL,sOB[s>>2],(s&3)*2048-4096,flags='sc1')))
        else: ol+=[([],gload(OF[n][r],vOLX,sBL,(s-16)*512+r*128,flags='sc1')) for r in range(4)]
    for z in range(OPT['vp']): e(valu('v_mov_b32',vT[z],0))
    e(salu('s_mov_b32',sT0,0x80000), *ge)
    stamp('ok')
    lg_=[int(x) for x in str(OPT['lgrp']).split(',')]; assert sum(lg_)==12
    for _ in range(lg_.pop(0)): e(ol.pop(0)[1])
    if OPT['rp']&1: e(*poll())
    while ri<OPT['wopre']:
        if ri%4==0: e(waitfor(lg=frs[:max(0,ri//2-4)]))
        e(rds[ri]); ri+=1
    nf=len(fill)
    while len(fill)>OPT['fillmm']:
        e(*fill.pop(0)[1])
        if (nf-len(fill)) in (OPT['lc1'],OPT['lc2']) and lg_:
            for _ in range(lg_.pop(0)): e(ol.pop(0)[1])
            if OPT['rp']&(4>>len(lg_)): e(*poll())
    assert not lg_
    stamp('seen'); note('---- o @ wo, gate, residual')
    def epi(q):
        o=[valu('v_fmac_f32',XF[r],SA[r],DN[r],rmw=True) for r in range(4*q,4*q+4)]
        o+=[valu('v_cvt_pk_bf16_f32',tmp[2*q+d],XF[4*q+2*d],XF[4*q+2*d+1]) for d in range(2)]
        return o
    def put(b): return [swap('v_permlane16_swap_b32',tmp[b],tmp[b+2]), swap('v_permlane16_swap_b32',tmp[b+1],tmp[b+3]), bstore(tmp[b:b+4],vXO,sOUT,0,16*b,flags=OPT['ofl'])]
    k=0; nt=OPT['ntail']
    for s in range(18-nt):
        assert ri>=10*s+10
        e(waitfor(vm=[OF[s]],lg=frs[5*s:max(5*s+5,ri//2-3)]))
        for q in range(5):
            e(m16(SA[4*q:4*q+4],frs[k],OF[s],0 if s==0 else SA[4*q:4*q+4])); k+=1
            if q==0 and ol and s>=OPT['ldel'] and ol[0][0]:
                e(*ol[0][0])
                if OPT.get('mst'): stamp(f'g{s}')
                continue
            if q==0 and s in (9,12) and OPT.get('mst'): stamp(f's{s}')
            if q==1 and ol and s>=OPT['ldel']: e(ol.pop(0)[1]); continue
            if q==3 and str(s) in str(OPT['mpoll']): e(*poll())
            n=0
            while n<(1 if ri>=min(180,OPT['rlead']+int(k*OPT['rrate']/100)) else 2) and ri<len(rds) and ri//2-len(pool_)<k-1: e(rds[ri]); ri+=1; n+=1
            while n<2 and fill: e(*fill.pop(0)[1]); n+=1
    assert not fill and not ol and ri==len(rds),(ri,len(fill))
    ep=[]
    for z,q in enumerate((4,0,1,2,3)):
        for s in range(18-nt,18):
            e(waitfor(vm=[OF[s]],lg=[frs[5*s+q]]), m16(SA[4*q:4*q+4],frs[5*s+q],OF[s],SA[4*q:4*q+4])); k+=1
            n=0
            while ep and n<2 and ep[0][0]<=k:
                o=ep.pop(0)[1]; e(o); n+=1 if o.kind!='vst' else 2
        o=epi(q)+([bstore(tmp[8:10],vXOX,sOUT,0,flags=OPT['ofl'])] if q==4 else put(2*q-2) if q&1 else [])
        ep+=[(k+3,x) for x in o]
    stamp('mm done')
    for _,o in ep: e(o)

def name_regs():
    for k,v in list(globals().items()):
        if k[0]=='v' and k not in ('vT','vL','vPF','vST','vCV'):
            def nm(x,n):
                if isinstance(x,R): x.name=n
                elif isinstance(x,list):
                    for z,y in enumerate(x): nm(y,f'{n}{z}')
            nm(v,k)
def main():
    name_regs()
    build_ffn()
    ngaps,bars,free=plan()
    L=OPT['look']
    best=None
    for a0 in range(0,NB-14):
        fr=sorted((max(free[b] for b in range(a0+5*k,a0+5*k+5)),k) for k in range(3))
        key=(fr[0][0],fr[1][0])
        if best is None or key<best[0]: best=(key,a0,[k for _,k in fr])
    _,a0,order=best; WB=a0*4096
    print('attention window',best,'ngaps',ngaps,{k:groups[v].start for k,v in marks.items()})
    kv=[kv_item(s) for s in range(8)]
    for s,it in enumerate(kv): it.addr=(a0+5*order[s%3])*4096
    rest=sorted([b for b in range(NB) if not a0<=b<a0+15],key=lambda b:free[b])
    print('free',[free[b] for b in range(NB)])
    wo_main=[blk_item(('wo',s),vWO if s<16 else vWOE,sWO,36*s*1152 if s<16 else 72*(s-16)*1152) for s in range(18)]
    wo_x=[blk_item(('wx',n),vWX if n<4 else vWXE,sWO,144*n*1152 if n<4 else 0,buf=(n==4),c=320) for n in range(5)]
    for it,b in zip(wo_main+wo_x,rest): it.addr=b*4096
    FLAG_LDS[0]=rest[23]*4096

    def pst(name):
        if 'pst' in OPT: stamp(name,True)
    prologue(); pst('karg')
    pre0=[it for it in items if it.early==-3000]; pre1=[it for it in items if it.early==-2000]
    dq=[xdma(tt,l) for tt in range(2) for l in range(9)]+[it.mk(it) for it in pre0+pre1]
    for _ in range(OPT['x0n']): e(*dq.pop(0))
    pst('x0 issued')
    xr=[vM[0],vR[1]]; t,u=vT[2],vT[3]
    DT=[V(140+8*n,8) for n in range(3)]+[V(180,8)]; CM=V(164,4); SUM=V(172,4); ONE4=V(176,4)
    prologue2()
    e(valu('v_and_b32',t,15,vL), valu('v_lshrrev_b32',u,1,t), valu('v_lshlrev_b32',t,7,t), valu('v_add_u32',t,sW18K,t),
      valu('v_lshrrev_b32',xr[0],4,vL), valu('v_xor_b32',xr[0],xr[0],u), valu('v_xor_b32',xr[1],4,xr[0]),
      valu('v_lshl_add_u32',xr[0],xr[0],4,t), valu('v_lshl_add_u32',xr[1],xr[1],4,t))
    for d in range(4): e(valu('v_mov_b32',ONE4[d],sONES))
    with collect() as ao:
        e(*sel_ops(t,u))
        addr_pf(); addr_early(); addr_qk()
        e(valu('v_mov_b32',vONE,1))
        if OPT['split']:
            e(valu('v_min_u32',vCA,1,vL), valu('v_mul_u32_u24',vCA,LDS_OOB-39*4096,vCA), valu('v_add_u32',vCA,39*4096,vCA), valu('v_mov_b32',t,4*len([b for b in bars if b>=SIG])), dsw('ds_write_b32',vCA,t))
    for z in range(OPT['apre']):
        if z==OPT['amid']:
            for _ in range(OPT['xmn']): e(*dq.pop(0))
        e(ao.pop(0))
    pst('pre')
    for _ in range(OPT['x1n']): e(*dq.pop(0))
    for _ in range(OPT['tpre']): e(*touch())
    nx=len([o for o in dq if o[-1].meta['tag'][0]=='x'])
    if OPT['pf']:
        o=pf_gu(0)+(pf_gu(1) if OPT['pfn']>1 else [])+(pf_q() if OPT['pfn']>2 else [])
        k=nx+OPT['pfpos']
        if OPT['pfpos']<0: dq[k-1]=dq[k-1][:-1]+o+dq[k-1][-1:]
        else: dq.insert(k,o)
    e(raw('s_waitcnt lgkmcnt(0)','misc'))
    if OPT['tlb'] and OPT['tlate']: e(raw('s_load_dword s83, s[80:81], s82','misc'))
    pst('addr')
    R0=[XC0[4*s_:4*s_+4] for s_ in range(18)]; X1=[XC1[4*s_:4*s_+4] for s_ in range(18)]
    def xread(tt,dst,l):
        return [waitfor(vmtags=[('x',tt,l)])]+[dsr('ds_read_b128',dst[s],xr[s&1],l*2048,src=(('x',tt,l),list(range(18*tt,18*tt+18))),private=True) for s in (2*l,2*l+1)]
    cq=[]; nm=[0]; nblk=[0]; pre_=[]
    def mm(m,extra=()):
        e(m); nm[0]+=1
        if pre_: e(pre_.pop(0))
        if extra: e(*extra); return
        k=0
        while cq and k<2 and cq[0][0]<=nm[0]-OPT['cage']: e(cq.pop(0)[1]); k+=1
        while ao and k<2: e(ao.pop(0)); k+=1
    def stats(tt,fr,l,nvm,lim=99):
        ms=[]
        for s_ in (2*l,2*l+1): ms+=[m16(SUM,ONE4,fr[s_],0 if s_==0 else SUM), m16(GR[tt],fr[s_],fr[s_],0 if s_==0 else GR[tt])]
        for h in range(2):
            o=[]
            if dq and h<nvm and nblk[0]<min(lim,OPT['nblk']):
                o=dq.pop(0)
                if o[-1].meta['tag'][0] not in 'xp': nblk[0]+=1
            mm(ms[2*h],[x for x in o if x.kind=='salu']); mm(ms[2*h+1],[x for x in o if x.kind!='salu'])
    nc=[0]
    def centre(src,dst,after=(),ex=((),())):
        d=DT[nc[0]%4]; nc[0]+=1
        while any(set(c.rd)&set(d.regs()) for _,c in cq): e(cq.pop(0)[1])
        for h in range(2):
            mm(m4(d[4*h:4*h+4],SELA,src[2*h:2*h+2],CM),ex[h])
            for z in range(2): cq.append((nm[0],valu('v_cvt_pk_bf16_f32',dst[2*h+z],d[4*h+2*z],d[4*h+2*z+1])))
        for x in after: cq.append((nm[0],x))
    def mean(tt):
        dst=vM[1] if tt else t
        e(valu('v_mul_f32',MEAN[tt],f32(1/576),SUM[0]), valu('v_cvt_pk_bf16_f32',dst,MEAN[tt],MEAN[tt]), valu('v_lshlrev_b32',dst,16,dst))
        for d in range(4): e(valu('v_xor_b32',CM[d],0x80000000,dst))
    for l in range(10):
        if l<9: e(*xread(0,R0,l))
        if l==0: e(*dq.pop(0))
        for _ in range(OPT['afill'] if l<9 else 999):
            if ao: e(ao.pop(0))
        if l>0:
            e(waitfor(lg=R0[2*l-2:2*l])); stats(0,R0,l-1,int(str(OPT.get('w1','x111111111'))[l]),len(pre0))
        if str(l) in str(OPT.get('tch','x135')): e(*touch())
        if l==OPT['brl']: e(raw('s_branch L_main','misc'), label('L_exit'), raw('s_endpgm'), I('.p2align 12','comment'), label('L_main'))
        pst(f'x0 rd {l}')
    stamp('x0 read')
    e(valu('v_add_u32',xr[0],73728,xr[0]), valu('v_add_u32',xr[1],73728,xr[1]))
    e(*xread(1,X1,0)); mean(0); pst('stat0')
    for l in range(9):
        for s_ in (2*l,2*l+1): centre(R0[s_],X0[s_],to_acc(s_) if s_>=NV0 else ())
        if l<8: e(*xread(1,X1,l+1))
        if l==OPT['barl']: e(barrier())
        e(waitfor(lg=X1[2*l:2*l+2])); stats(1,X1,l,int(str(OPT.get('w2','x111122222'))[l+1]),99 if l>=OPT['barl'] else len(pre0))
        pst(f'x1 rd {l}')
    while cq: e(cq.pop(0)[1])
    mean(1)
    reads=[f(it) for g in groups[:4] for it,f in g.rd][:L]; nb_=(L+1)//2+1
    n0=OPT['n0']
    for s_ in range(n0):
        ex=((),())
        if s_==n0-nb_: ex=((waitfor(vmtags=[it.name for it in items if it.bar==-L]), barrier()),()); stamp('x1 read'); pst('bar1')
        if s_>n0-nb_: pre_[:]=[reads.pop(0) for z in range(2) if reads]
        centre(X1[s_],X1[s_],ex=ex)
    assert not reads
    while cq: e(cq.pop(0)[1])
    e(waitfor(lg=groups[0].fr)); pst('go')
    for s_ in range(n0,18): push('ctr',0,centre_ops(X1[s_],1))
    for s_ in range(NV0): push('ctr',0,to_acc(s_))
    for o in dq: push('dma',-1,o)
    mx_=-1
    for it in items:
        mx_=max(mx_,it.early)
        if it.early>-2000: push('dma',it.early,it.mk(it),mx_)
    st=lambda k:groups[marks[k]].start
    def low(gap,f,*a):
        with collect() as o: f(*a)
        push('low',gap,o,gap)
    low(st('c0')+200,var_ops,0); low(st('c0')+200,var_ops,1)
    TCH=[(int(g_),touch()) for g_ in str(OPT['tat']).split(',') if int(g_)>=0]
    low(st('c1'),addr_mid); low(st('c1'),addr_mid2); low(st('qkv'),addr_pfd)
    low(st('c2')+200,addr_att,WB); low(st('c2')+200,addr_lds,WB)
    pt=[int(x) for x in OPT['pft'].split(',')]
    for k,(g_,o) in enumerate(zip(pt,[pf_gu(1) if OPT['pfn']<2 else [],pf_q() if OPT['pfn']<3 else [],pf_gu(2),pf_gu(3),pf_gu(4),pf_d(0),pf_d(1),pf_d(2)])):
        if o and (k==7 or pt[k+1]!=g_): o[-1].meta['cost']+=OPT['pfx']
        push('ld',g_,o,g_)
    low(st('c3'),pf_o)
    b1=[b for b in bars if b>st('c3')+60][0]
    bar_extra[b1]=['qkvst']
    ar=[salu('s_and_b32',sJH,S(2),1), salu('s_lshl_b32',sJH,sJH,7), salu('s_mov_b32',sJ128,1), salu('s_cmp_lg_u32',sW,0), raw('s_cbranch_scc1 L_arr','misc'),
        raw(f's_atomic_add {sJ128}, {sDBG[0:2]}, {sJH}','misc',sJ128.regs()+sJH.regs()), label('L_arr')]
    for x in ar[3:6]: x.meta['glue']=True
    for g_,o in sorted(TCH+[(b1,ar)],key=lambda z:z[0]): push('arr',g_,o,g_)
    ARR.append(ar[5])
    if OPT['stop']!='down':
        d0=st('down')
        att_setup(ngaps,kv,WB); bar_extra[bars[-1]]=[kv[0].name]+([kv[1].name] if OPT['nob1'] else [])
        low(b1,addr_z); low(b1,addr_fin); low(max(d0+400,mx_+1),addr_op); extra_zero(ngaps)
        ld=bload(vPOLL,vZ,sDBG,0,flags='sc1')
        push('ld',d0+OPT['f1poll'],[ld],d0+OPT['f1poll'])
        with collect() as o: qk_loads(WB)
        w_=waitfor(vm=[vPOLL]); w_.meta['lag']=(ld,100)
        push('ld',d0+OPT['f1poll'],[w_]+spin('f1',ld,128,40)+o,d0+OPT['f1poll'])
        for it in kv[:3]+(wo_main+wo_x)[:OPT['wob']]:
            early=max(free[b] for b in it.blks())
            assert early>d0+300
            if early<LATE: push('dma',early,it.mk(it),ngaps-1); it.pushed=True
    for k_,t_ in (('c0','gate/up columns 0..63'),('c1','gate/up columns 64..127'),('qkv','q, k, v'),('c2','gate/up columns 128..191'),('c3','gate/up columns 192..255'),('half','gate/up last 32 columns'),('down','down projection')): PH[st(k_)]='---- '+t_
    emit_backbone(bars,{groups[v].start:k for k,v in marks.items() if k in ('c0','qkv','down')})
    qs=[i.meta['at'] for i in P if i.meta.get('tag')=='qkvst']; assert len(qs)==12 and max(qs)<b1-SIG,(qs,b1)
    print('arrival at',ARR[0].meta['at'],'poll at',ld.meta['at'])
    stamp('down end')
    if OPT['stop']=='down':
        for nm in ('epi','st','low','dma'):
            for af,o in fifo[nm]: e(o)
    else:
        attention(ngaps,kv,WB,wo_main+wo_x)
        stamp('att end')
        final(ngaps+1000,wo_main,wo_x)
        fallback(kv,WB)
    finish()

def sizes(lines):
    import subprocess, re
    uniq=sorted(set(lines))
    src='.amdgcn_target "amdgcn-amd-amdhsa--gfx950"\n.text\nLX:\n'+'\n'.join(re.sub(r'L_codeend-L_pc-4','0x12345',re.sub(r'(s_branch|s_cbranch\w+) \w+',r'\1 0',u)) for u in uniq)+'\n'
    open('_sz.s','w').write(src)
    r=subprocess.run(['llvm-mc','-triple=amdgcn-amd-amdhsa','-mcpu=gfx950','-show-encoding','_sz.s'],capture_output=True,text=True)
    assert r.returncode==0,r.stderr[:2000]
    enc=re.findall(r'encoding: \[([^\]]*)\]',r.stdout)
    assert len(enc)==len(uniq),(len(enc),len(uniq))
    return {u:len(x.split(',')) for u,x in zip(uniq,enc)}
PGAT=[]
def page_stubs(out):
    sz=sizes([i.text for i in out if i.kind not in ('label','comment')])
    k0=[k for k,i in enumerate(out) if i.text=='L_main:'][0]
    print('entry part bytes',sum(sz.get(i.text,0) for i in out[:k0]))
    res=out[:k0+1]; off=0; pg=0; prev=None; forced=False
    npg=4*ntouch[0]
    for k in range(k0+1,len(out)):
        i=out[k]
        if pg<npg and off>=4096*pg and not (prev is not None and prev.meta.get('glue')):
            good=prev is not None and prev.kind=='mfma' and i.kind in ('dsr','valu','trans')
            if good or off-4096*pg>=40 or pg==0 or forced:
                res+=[label(f'L_pg{pg}'), raw(f's_cbranch_execz L_tr{pg//4}')]; off+=4; PGAT.append((pg,i.meta.get('at'))); pg+=1
        res.append(i); off+=sz.get(i.text,0)
        if i.text=='.p2align 12': off=-(-off//4096)*4096; forced=True; continue
        if i.kind not in ('label','comment'): prev=i
    print('main part bytes',off,'pages touched',pg,'of',-(-off//4096))
    print('page starts',PGAT)
    while pg<npg: OUT.extend([f'L_pg{pg}:',f's_branch L_tr{pg//4}']); pg+=1
    return res
DOC=""";
; out = x + (MHA(LN(x)) @ wo) * silu(ReGLU(LN(x)))      one persistent launch, one workgroup (4 waves, 512 registers) per CU
; The instruction stream is written out in full by a generator script; every wave runs the same stream.
;
; 1. LayerNorm: 128 rows per workgroup, 32 per wave, kept in registers as MFMA B operands. Row sums and sums of squares come
;    from MFMAs; the rows are centred, 1/sd is applied later (q,k,v when they are written, down before the gate).
; 2. gate/up (288 columns of F per workgroup), q,k,v (108 columns) and down (K = those 288 columns): weights stream through an
;    LDS ring (LDS-DMA, transposing reads). h = relu(gate)*up stays in registers; q,k,v and the bf16 partial sums of down go
;    to d_ws with write-through stores.
; 3. attention: one head x 256 queries per workgroup. S^T = K Q^T with the softmax shift folded in as two extra K slots;
;    P = exp2(S^T); O^T and the row sums accumulate through the sparse MFMA, which picks the upper halves of the fp32 P.
;    Shift = (maximum over the first 64 keys) + 90. Softmax does not depend on the shift unless something over- or
;    underflows, so the result is checked (row sum in [2^-92, 2^126], O finite and above 2^-103); a wave that fails the check
;    repeats its rows with the true maximum over all keys (L_fb).
; Loads into a255 are prefetches. The EXEC=0 hops to the L_pg labels only pull the first line of a code page into the I-cache.
; Hand-offs between workgroups: stores are drained (vmcnt) before a counter is touched; the counters in d_ws are reset by this
; launch before the d_debug counter that everyone passes first. Every wait is bounded.
"""
def finish():
    cur[0]=10**7
    if OPT['stamps']:
        e(raw('s_waitcnt lgkmcnt(0)','misc'), waitfor(vmall=True))
        stamp('drained'); e(raw('s_waitcnt lgkmcnt(0)','misc'))
        n=nstamp[0]
        for k in range(max(0,n-7),n): e(raw(f'v_writelane_b32 v13, s{64+2*(k%7)}, {k}','misc'))
        if 'padto' in OPT:
            e(raw('s_nop 1','misc'), raw(f'v_readlane_b32 s46, v13, {OPT["padto"]}','misc'), raw('s_nop 3','misc'))
            e(salu('s_add_u32',sT0,sT0,10000), label('L_pad'), raw('s_memrealtime s[98:99]','misc'), raw('s_waitcnt lgkmcnt(0)','misc'), salu('s_sub_u32',sT1,S(98),sT0), salu('s_cmp_lt_i32',sT1,0), raw('s_cbranch_scc1 L_pad','misc'))
        else:
            e(salu('s_lshl_b32',sT0,S(2),2), salu('s_add_u32',sT0,sT0,sW), salu('s_lshl_b32',sT0,sT0,8), salu('s_add_u32',sT0,sT0,WS_STAMP))
            e(valu('v_lshlrev_b32',V(1),2,vL), bstore(vST,V(1),sWS,sT0))
    check_order(P); check_roles(P)
    out=finalize(P,verbose=OPT['v'],name='main')
    out=page_stubs(out+[raw('s_endpgm'),I('.p2align 12','comment')]+HOT)
    hdr=open('recurrent_scan__mha_block__glu_gated_reglu__prompt.s.ref').read().split('; Override launch')[0]
    txt=hdr+'; @launch grid=(256,1,1) block=(256,1,1) lds=163840\n'+DOC+'.amdgcn_target "amdgcn-amd-amdhsa--gfx950"\n.text\n'
    txt+=f'.globl {NAME}\n.p2align 12\n.p2align 8\n.type {NAME},@function\n{NAME}:\n'
    txt+='\n'.join(i.text for i in out)+'\n'+'\n'.join(OUT)+'\ns_endpgm\nL_codeend:\n'
    txt+=f'''.section .rodata,"a"
.p2align 6
.amdhsa_kernel {NAME}
  .amdhsa_next_free_vgpr 512
  .amdhsa_next_free_sgpr 102
  .amdhsa_accum_offset 256
  .amdhsa_group_segment_fixed_size 0
  .amdhsa_kernarg_size 80
  .amdhsa_user_sgpr_count 2
  .amdhsa_user_sgpr_kernarg_segment_ptr 1
  .amdhsa_system_sgpr_workgroup_id_x 1
  .amdhsa_float_denorm_mode_32 {OPT.get('dn',3)}
.end_amdhsa_kernel
'''
    open(sys.argv[1],'w').write(txt)
    print('bytes',len(txt))
main()
```

```python
import re

class R:
    __slots__=('k','b','n','name')
    def __init__(s,k,b,n=1): s.k=k; s.b=b; s.n=n; s.name=None
    def __str__(s): return f'{s.k}{s.b}' if s.n==1 else f'{s.k}[{s.b}:{s.b+s.n-1}]'
    __repr__=__str__
    def regs(s): return [f'{s.k}{i}' for i in range(s.b,s.b+s.n)]
    def __getitem__(s,i):
        if isinstance(i,slice):
            a=i.start or 0; e=s.n if i.stop is None else i.stop
            assert 0<=a<e<=s.n,(s,i)
            return R(s.k,s.b+a,e-a)
        assert 0<=i<s.n,(s,i)
        return R(s.k,s.b+i,1)
def V(b,n=1): return R('v',b,n)
def A(b,n=1): return R('a',b,n)
def S(b,n=1): return R('s',b,n)

def regs_of(*ops):
    out=[]
    for o in ops:
        if isinstance(o,R): out+=o.regs()
        elif isinstance(o,str):
            m=o.strip('-|')
            if m in ('vcc','m0','exec','scc'): out.append(m)
            else:
                mm=re.fullmatch(r'([vas])(\d+)',m)
                if mm: out.append(m)
    return out

class I:
    __slots__=('text','kind','rd','wr','passes','meta')
    def __init__(s,text,kind,rd=(),wr=(),passes=0,**meta):
        s.text=text; s.kind=kind; s.rd=list(rd); s.wr=list(wr); s.passes=passes; s.meta=meta
    def __repr__(s): return s.text

def fmt(o):
    if isinstance(o,float): return repr(o)
    if isinstance(o,int): return str(o) if -16<=o<=64 else hex(o&0xffffffff)
    return str(o)

TRANS=('v_exp_f32','v_exp_legacy_f32','v_rcp_f32','v_rsq_f32','v_sqrt_f32','v_log_f32')
def valu(op,dst,*src,mods='',rmw=False):
    kind='trans' if op.replace('_e64','') in TRANS else ('dot' if op.startswith('v_dot') else 'valu')
    rd=regs_of(*src); wr=regs_of(dst)
    if rmw: rd+=wr
    if op.startswith('v_cndmask') and len(src)==2: rd.append('vcc'); src=src+('vcc',)
    t=f'{op} {fmt(dst)}, '+', '.join(fmt(x) for x in src)+(' '+mods if mods else '')
    m={'dname':getattr(dst,'name',None),'snames':[(str(x),x.name) for x in src if getattr(x,'name',None)]}
    if kind=='dot': m['dotc']=regs_of(src[2]); m['op']=op
    if op.startswith('v_readfirstlane') or op.startswith('v_readlane'): m['lane_read']=True
    return I(t,kind,rd,wr,**m)
def swap(op,a,b): return I(f'{op} {a}, {b}','valu',regs_of(a,b),regs_of(a,b),perm=True)
def salu(op,dst,*src):
    wr=regs_of(dst)
    if op.startswith('s_cmp') or op.startswith('s_bitcmp'):
        return I(f'{op} {fmt(dst)}, '+', '.join(fmt(x) for x in src),'salu',regs_of(dst,*src),['carry'],scc=True)
    i=I(f'{op} {fmt(dst)}, '+', '.join(fmt(x) for x in src),'salu',regs_of(*src),wr)
    i.meta['scc']=not (op.startswith('s_mov') or op.startswith('s_mul_i32') or op.startswith('s_cselect'))
    return i
def raw(text,kind='misc',rd=(),wr=(),**m): return I(text,kind,rd,wr,**m)
def label(n): return I(n+':','label')
def mfma(op,d,a,b,c,passes):
    return I(f'{op} {d}, {a}, {b}, {fmt(c)}','mfma',regs_of(a,b,c),regs_of(d),passes,ab=regs_of(a,b),c=regs_of(c),d=str(d),cstr=str(c))
def m16(d,a,b,c): return mfma('v_mfma_f32_16x16x32_bf16',d,a,b,c,4)
def m32(d,a,b,c): return mfma('v_mfma_f32_32x32x16_bf16',d,a,b,c,8)
def m32x8(d,a,b,c): return mfma('v_mfma_f32_32x32x8_bf16',d,a,b,c,8)
def m2b(d,a,b,c): return mfma('v_mfma_f32_32x32x4_2b_bf16',d,a,b,c,16)
def m4(d,a,b,c): return mfma('v_mfma_f32_4x4x4_16b_bf16',d,a,b,c,2)
def smf(d,a,b,idx):
    return I(f'v_smfmac_f32_32x32x32_bf16 {d}, {a}, {b}, {idx}','mfma',regs_of(a,b,idx,d),regs_of(d),8,ab=regs_of(a,b,idx),c=regs_of(d),d=str(d),cstr=str(d))
def dsr(op,d,addr,off=0,src=None,private=False):
    assert 0<=off<65536,off
    return I(f'{op} {d}, {addr}'+(f' offset:{off}' if off else ''),'dsr',regs_of(addr),regs_of(d),src=src,private=private)
def dsw(op,addr,data,off=0):
    return I(f'{op} {addr}, {data}'+(f' offset:{off}' if off else ''),'dsw',regs_of(addr,data),[])
def bload(d,voff,srd,soff,off=0,flags='',tag=None):
    n=d.n; op={1:'buffer_load_dword',2:'buffer_load_dwordx2',4:'buffer_load_dwordx4'}[n]
    assert 0<=off<4096
    return I(f'{op} {d}, {voff}, {srd}, {fmt(soff)} offen'+(f' offset:{off}' if off else '')+(' '+flags if flags else ''),'vld',regs_of(voff,srd,soff),regs_of(d),tag=tag)
def bstore(d,voff,srd,soff,off=0,flags='',tag=None):
    n=d.n; op={1:'buffer_store_dword',2:'buffer_store_dwordx2',4:'buffer_store_dwordx4'}[n]
    assert 0<=off<4096
    return I(f'{op} {d}, {voff}, {srd}, {fmt(soff)} offen'+(f' offset:{off}' if off else '')+(' '+flags if flags else ''),'vst',regs_of(d,voff,srd,soff),[],tag=tag,wide=regs_of(d) if n>2 else [])
def batomic(d,voff,srd,soff,off=0,op='add'):
    return I(f'buffer_atomic_{op} {d}, {voff}, {srd}, {fmt(soff)} offen'+(f' offset:{off}' if off else ''),'vst',regs_of(d,voff,srd,soff),[],tag=None,wide=[])
def dma(voff,srd,soff,off=0,flags='',tag=None,dst=None,private=False):
    assert 0<=off<4096
    return I(f'buffer_load_dwordx4 {voff}, {srd}, {fmt(soff)} offen'+(f' offset:{off}' if off else '')+(' '+flags if flags else '')+' lds','dma',regs_of(voff,srd,soff,'m0'),[],tag=tag,dst=dst,private=private)
def gdma(voff,base,off=0,flags='',tag=None,dst=None,private=False):
    assert -4096<=off<4096
    return I(f'global_load_lds_dwordx4 {voff}, {base}'+(f' offset:{off}' if off else '')+(' '+flags if flags else ''),'dma',regs_of(voff,base,'m0'),[],tag=tag,dst=dst,private=private)
def gload(d,voff,base,off=0,flags='',tag=None):
    op={1:'global_load_dword',2:'global_load_dwordx2',4:'global_load_dwordx4'}[d.n]
    assert -4096<=off<4096
    return I(f'{op} {d}, {voff}, {base}'+(f' offset:{off}' if off else '')+(' '+flags if flags else ''),'vld',regs_of(voff,base),regs_of(d),tag=tag)
def gstore(d,voff,base,off=0,flags='',tag=None):
    op={1:'global_store_dword',2:'global_store_dwordx2',4:'global_store_dwordx4'}[d.n]
    assert -4096<=off<4096
    return I(f'{op} {voff}, {d}, {base}'+(f' offset:{off}' if off else '')+(' '+flags if flags else ''),'vst',regs_of(d,voff,base),[],tag=tag,wide=regs_of(d) if d.n>2 else [])
def base_add(dst,src,off):
    a=salu('s_add_u32',dst[0],src[0],off); b=salu('s_addc_u32',dst[1],src[1],0)
    b.rd.append('carry'); a.wr.append('carry')
    return [a,b]
def waitfor(lg=(),lgall=False,vm=(),vmtags=(),vmall=False,lgforce=False):
    return I('WAIT','waitfor',lg=set(regs_of(*lg)),lgall=lgall,vm=set(regs_of(*vm)),vmtags=set(vmtags),vmall=vmall,lgforce=lgforce)
def barrier(): return I('s_barrier','barrier')

VALUK=('valu','trans','dot')
def finalize(ins, verbose=True, name=''):
    out=[]; lgq=[]; vmq=[]
    lastw={}
    lastc={}
    lastst={}
    stats=dict(auto_wait=0,nops=0,nopstates=0,maxvm=0,maxlg=0)
    pos=0
    nbar=0; nsig=0
    blk_read={}
    dma_done={}
    tag_pending={}
    blk_owner={}
    lastscc=[None]
    def emit(i,states=1):
        nonlocal pos
        out.append(i); pos+=states
    def do_wait(nlg,nvm):
        parts=[]
        if nvm is not None:
            assert nvm<=63
            parts.append(f'vmcnt({nvm})')
            while vmq and len([x for x in vmq[1:] if not x.meta.get('skip')])>=nvm:
                e=vmq.pop(0); t=e.meta.get('tag')
                if e.kind=='dma' and t is not None:
                    tag_pending[t]-=1
                    if tag_pending[t]==0: dma_done[t]=nsig
        if nlg is not None:
            nlg=min(nlg,15)
            parts.append(f'lgkmcnt({nlg})')
            while len(lgq)>nlg:
                e=lgq.pop(0); e.meta['done']=nsig
        if parts: emit(I('s_waitcnt '+' '.join(parts),'wait'))
    def need(q,pred):
        last=-1
        for k,e in enumerate(q):
            if pred(e): last=k
        return None if last<0 else len([e for e in q[last+1:] if not e.meta.get('skip')])
    for i in ins:
        k=i.kind
        if k=='label' or k=='comment': out.append(i); continue
        if k=='reset':
            continue
        if k=='waitfor':
            m=i.meta
            nlg=need(lgq,lambda e:m['lgall'] or any(r in m['lg'] for r in e.wr))
            nvm=need(vmq,lambda e:m['vmall'] or any(r in m['vm'] for r in e.wr) or (e.meta.get('tag') in m['vmtags']))
            if m['lgforce']: nlg=0
            do_wait(nlg,nvm); continue
        touched=set(i.rd)|set(i.wr)
        nlg=need(lgq,lambda e:any(r in touched for r in e.wr))
        nvm=need(vmq,lambda e:any((r in touched) and not (i.meta.get('tag')=='pf' and e.meta.get('tag')=='pf') for r in e.wr))
        if nlg is not None or nvm is not None:
            stats['auto_wait']+=1
            if verbose: print(f'[{name}] auto wait lg={nlg} vm={nvm} before: {i.text}')
            do_wait(nlg,nvm)
        if k in ('dsr','dsw') and len(lgq)>=15:
            stats['lgfull']=stats.get('lgfull',0)+1
            do_wait(11,None)
        if k in ('vld','vst','dma') and len(vmq)>=62:
            stats['vmfull']=stats.get('vmfull',0)+1
            do_wait(None,36)
        req=0; why=None
        def chk(ppos,n,w):
            nonlocal req,why
            d=n-(pos-ppos-1)
            if d>req: req=d; why=w
        isv=k in VALUK
        for r in i.rd:
            if r not in lastw: continue
            p,w=lastw[r]
            if w.kind=='mfma':
                big={2:5,4:8,8:12,16:20}[w.passes]
                if k=='mfma':
                    if r in i.meta['ab']: chk(p,big,'mfma->ab')
                    elif i.meta['cstr']==w.meta['d'] and i.passes==w.passes: chk(p,2 if w.passes==2 else 0,'chain')
                    else: chk(p,w.passes+2,'mfma->c')
                else: chk(p,big,'mfma->rd')
            elif w.kind in VALUK:
                if k=='mfma': chk(p,2,'valu->mfma')
                if w.kind=='trans' and isv and k!='trans': chk(p,1,'trans')
                if w.kind=='dot':
                    if k=='dot' and i.meta['op']==w.meta['op'] and r in i.meta['dotc'] and i.rd.count(r)==1: pass
                    else: chk(p,3,'dot')
                if i.meta.get('perm'): chk(p,2,'perm')
                if i.meta.get('lane_read') and r[0]=='v' and r!='vcc': chk(p,1,'readlane')
                if r[0]=='s' or r=='vcc':
                    if isv: chk(p,2,'vsgpr->valu')
                    elif k in ('vld','vst','dma'): chk(p,5,'vsgpr->vmem')
                    else: chk(p,1,'vsgpr->salu')
            elif w.kind=='salu' and r=='m0' and k=='dma': chk(p,1,'m0')
        for r in i.wr:
            if r in lastw:
                p,w=lastw[r]
                if w.kind=='mfma':
                    if k=='mfma':
                        if not (i.meta['d']==w.meta['d'] and i.passes==w.passes): chk(p,w.passes+2,'mfma waw')
                    else: chk(p,{2:5,4:8,8:12,16:20}[w.passes],'mfma->wr')
                elif w.kind=='dot' and not (k=='dot' and i.meta['op']==w.meta['op']): chk(p,3,'dot waw')
            if r in lastc and isv: chk(lastc[r][0],lastc[r][1]-1,'c war')
            if r in lastst: chk(lastst[r],2,'store war')
        if req>0:
            stats['nops']+=1; stats['nopstates']+=req
            if verbose>1: print(f'[{name}] nop {req} ({why}) before: {i.text}')
            while req>0:
                n=min(req,16); emit(I(f's_nop {n-1}','nop'),n); req-=n
        if k=='dsr' and i.meta.get('src') is not None:
            tag,blks=i.meta['src']
            assert tag in dma_done and tag_pending[tag]==0, f'read of unfinished {tag}: {i.text}'
            if not i.meta.get('private'): assert dma_done[tag]<nbar, f'read of {tag} without barrier: {i.text}'
            for b in blks:
                assert blk_owner.get(b)==tag or i.meta.get('private'), f'block {b} owner {blk_owner.get(b)} != {tag}'
                blk_read.setdefault(b,[]).append(i)
        if k=='dma':
            t=i.meta.get('tag')
            if t is not None: tag_pending[t]=tag_pending.get(t,0)+1
            for b in (i.meta.get('dst') or ()):
                if blk_owner.get(b)!=t:
                    for e in blk_read.get(b,()):
                        assert 'done' in e.meta and (e.meta['done']<nbar or i.meta.get('private')), f'dma {t} overwrites block {b} still read: {e.text}'
                    blk_read[b]=[]
                    blk_owner[b]=t
        if 'carry' in i.rd: assert lastscc[0] is lastw['carry'][1], f'scc clobbered before {i.text} by {lastscc[0]}'
        if i.meta.get('scc'): lastscc[0]=i
        ppos=pos
        emit(i,0 if i.meta.get('skip') else 1)
        if k=='barrier':
            assert nsig==nbar; nbar+=1; nsig+=1
        if i.meta.get('signal'): nsig+=1
        if i.meta.get('check'):
            nbar+=1; assert nbar==nsig
        if k in ('dsr','dsw'):
            lgq.append(i); stats['maxlg']=max(stats['maxlg'],len(lgq))
        if k in ('vld','vst','dma'):
            vmq.append(i); stats['maxvm']=max(stats['maxvm'],len(vmq))
            assert len(vmq)<=63, 'vmcnt overflow'
        for r in i.wr:
            lastw[r]=(ppos,i); lastc.pop(r,None)
        if k=='mfma':
            for r in i.meta['c']: lastc[r]=(ppos,i.passes)
        if k=='vst':
            for r in i.meta['wide']: lastst[r]=ppos
    if verbose: print(f'[{name}]',stats,'ninstr',len(out))
    return out

def check_order(ins):
    def deps(lst):
        lw={}; d={}
        for i in lst:
            d[id(i)]=(tuple(lw.get(r) for r in i.rd if r!='carry'),tuple(lw.get(r) for r in i.wr if r not in ('carry','vcc')))
            for r in i.wr: lw[r]=id(i)
        return d
    a=deps(ins); b=deps(sorted(ins,key=lambda i:i.meta['seq']))
    byid={id(i):i for i in ins}
    bad=0
    for i in ins:
        if a[id(i)]!=b[id(i)]:
            bad+=1
            if bad<10:
                print('ORDER VIOLATION',i.meta['seq'],i.text)
                for x,y in zip(a[id(i)][0]+a[id(i)][1],b[id(i)][0]+b[id(i)][1]):
                    if x!=y: print('    got',byid.get(x),'want',byid.get(y)); break
    assert bad==0, f'{bad} order violations'

def _wrap(fn,pos):
    def f(*a,**k):
        i=fn(*a,**k); r=a[pos]
        if getattr(r,'name',None): i.meta['snames']=[(str(r),r.name)]
        if fn.__name__ in ('bload','gload') : i.meta['dname']=getattr(a[0],'name',None)
        return i
    return f
dsr=_wrap(dsr,1); dsw=_wrap(dsw,1); bload=_wrap(bload,1); bstore=_wrap(bstore,1); batomic=_wrap(batomic,1); dma=_wrap(dma,0); gdma=_wrap(gdma,0); gload=_wrap(gload,1); gstore=_wrap(gstore,1)
def check_roles(ins):
    role={}
    for i in ins:
        for r,n in i.meta.get('snames',()):
            assert role.get(r)==n, f'{i.text}: {r} read as {n} holds {role.get(r)}'
        for r in i.wr:
            if 'dname' in i.meta or r not in i.rd: role[r]=i.meta.get('dname')

def check_init(ins,live):
    w=set(live); bad=set()
    for i in ins:
        for r in i.rd:
            if r not in w and r not in bad: bad.add(r); print('UNINIT',r,i.text)
        w|=set(i.wr)
    assert not bad
```

```python
import sys, struct, contextlib
from asmlib import *

OPT=dict(stop='', stamps=0, pf=1, dmagap=3, look=14, split=0, stper=1, qstper=2, xat=1, stgap=29, n0=14, v=1, forcefb=0, astgap=6, f2lag=10, f2poll=58, f2chk=64, ldgap=4, dbgout=0, al8=0, aln=0, r1w=4, r1l=4, amid=60, xmn=2, tpre=1, tlate=0, wsp=8, nob1=1, aback=100, bat=0, bl=22, cs=256, es=64, ts=2304, os=264, xs=33, sl=640, par=0, cage=3, exp='v_exp_f32', aord=0, flip=1, snake=1, balone=2, nosc=1, lc1=36, lc2=64, vp=0, f2sl=2, pfe=0, aint='x2', ke2=1, bint=4, apool=0, ap0=10, tatt=50, pfn=1, barl=4, brl=8, lgm=1, pfirst=0, rp=7, inl=0, pollat3=-1, mpoll='x', np2_=1, lgrp='6,3,3', ntail=3, ldel=0, warm=0, np2=1, xsh=9, gst_=4096, pfl='sc1', ffl='sc1', pevery=2, lookb=16, nlook=2, npc=2, pollat2=-1, frx=0, sprio=1, w3=1, snop=0, vmpat=0, hat=60, chk0=0, px=0, wcut='0,0,3,8,13,18,23,23', wob=23, ldmin=4, at0=290, atd=29, tat=-1, flagat=60, pollat=10, forceredo=0, lp1=20, lp2=70, nol=10, fsh=2, npoll=2, psleep=1, wopre=100, fillmm=20, rlead=100, rrate=120, ofl='', apre=130, x1n=1, afill=10, tlb=1, pfpos=6, pft='100,190,280,700,800,1060,1110,1112', swp=1, pfx=300, chain=6, qch=4, c0ch=3, touch=1, x0n=2, nblk=14, f1poll=40, qstgap=8, back=80, pfc=1, bartr=0)
for a in sys.argv[2:]:
    k,v=a.split('='); OPT[k]=int(v) if v.lstrip('-').isdigit() else v
NAME='recurrent_scan__mha_block__glu_gated_reglu__prompt_kernel'

WS_QKV=0; SL=OPT['sl']*128
CS=OPT['cs']*128; TS=OPT['ts']*128; ES=OPT['es']*128; assert CS>=32768 and ES>=8192 and TS>=8*CS+4*ES
WS_P=OPT['wsp']<<20; WS_PX=WS_P+8*CS; WS_O=0x2C80000 if OPT['wsp']==8 else 0x2800000; WS_OX=0x2C00000; OS=OPT['os']*128; XS=OPT['xs']*128; WS_F3=0x2EA0000; WS_R2=0x2EC0000; WS_F2=0x2ED0000; WS_STAMP=0x2F00000
assert OPT['wsp']!=8 or (WS_P+128*TS<=WS_OX and WS_OX+64*XS<=WS_O and WS_O+64*OS<=WS_F3)
OOB=0x80000000
LDS_OOB=0x30000
def f32(x): return struct.unpack('<I',struct.pack('<f',x))[0]
QSCALE=18**-0.5*1.4426950408889634
MARGIN=float(OPT.get('margin',90))

sX,sWQ,sWO,sWG,sWU,sWD,sOUT,sDBG,sWS=[S(4+4*n,4) for n in range(9)]
sW,sW1K,sI,sJ,sH,sIDX,sT0,sT1,sSO,sSO2=[S(40+n) for n in range(10)]
sLO,sHI,sONES,sW7K,sW5K=[S(50+n) for n in range(5)]
sSC=[S(55),S(56),S(57)]
sW18K,sJ1,sXC,sM8,sT2,sT3=[S(58+n) for n in range(6)]
sJ128,sJH=S(3),S(94); sSO3=S(95); sXP,sXX=S(92),S(93); sF3,sPV,sPV2=S(79),S(78),S(53)
sBD,sBL,sPC=S(96,2),S(98,2),S(100,2)
nstamp=[0]
def stamp(name,fine=False):
    if not OPT['stamps']: return
    if OPT.get('few') and name not in ('start','c0','down','down end','att end','drained'): return
    if ('gst' in OPT or 'ast' in OPT or 'pst' in OPT) and not fine and name!='start': return
    n=nstamp[0]; nstamp[0]+=1
    assert n<64
    r=64+2*(n%7)
    if n>=7: e(raw(f'v_writelane_b32 v13, s{r}, {n-7}','misc'))
    e(raw(f'{"s_memrealtime" if OPT["stamps"]==1 else "s_memtime"} s[{r}:{r+1}]','misc'))
    print('stamp',n,name)

vL=V(0)
vT=[V(1+n) for n in range(8)]
vR=[V(9),V(10)]
vM=[V(11),V(12)]
vPF=A(255)
vST=V(13)
vGF,vGH,vDF,vDH=[V(14+n) for n in range(4)]
vTR=[[V(18+3*q+n) for n in range(3)] for q in range(4)]
vQK=[V(30+n) for n in range(7)]
vQM=[V(37+n) for n in range(3)]; vQE=[V(40+n) for n in range(3)]
vSM,vSE0,vSE1,vSCX=[V(43+n) for n in range(4)]
vPS,vPX=V(47),V(48)
vF1,vONE=V(49),V(50)
vPG,vF3,vPOLL=V(51),V(52),V(53)
vX=[V(168+n) for n in range(4)]
XC1=V(56,72)
BANK=[V(128,64),V(192,64)]
XC0=A(0,72); HH=A(72,72); FR=A(144,64)
vKM,vKE=V(30),V(31); vVA=[V(32+n) for n in range(4)]
vKV,vWO,vWOE,vWX,vWXE=[V(36+n) for n in range(5)]
vPL,vPLX,vOL,vOLX,vOS,vOSX=[V(41+n) for n in range(6)]
vIDX,vF3L=V(54),V(55)
vXO,vXOX,vR2,vZ=V(11),V(12),V(9),V(10)
QE=V(14,2)
QM=[A(0,4),A(4,4)]
OO=[V(128,16),V(144,16)]
sOB=[S(80+2*n,2) for n in range(4)]
KM=[A(40+4*n,4) for n in range(3)]; KE=[A(52,2),A(56,2),A(54,2),A(58,2)]; vKE1=V(16)
VV=[A(8,8),A(16,8)]
XR=A(240,10)
PART=[A(60+4*n,4) for n in range(32)]
PARTX=[A(188+2*n,2) for n in range(10)]+[A(24+2*n,2) for n in range(6)]
SBB=[V(192,32),V(224,32),V(160,32)]

P=[]
cur=[-10**6,0]
sink=[None]
def setseq(i,gap=None):
    if 'seq' not in i.meta:
        cur[1]+=1; i.meta['seq']=(cur[0] if gap is None else gap,cur[1])
    return i
def e(*x):
    for i in x:
        if sink[0] is not None: sink[0].append(i)
        else: P.append(setseq(i)); i.meta['at']=cur[0]
@contextlib.contextmanager
def collect():
    o=[]; old=sink[0]; sink[0]=o
    yield o
    sink[0]=old
ARR=[]
fifo=dict(arr=[],dma=[],st=[],ld=[],ctr=[],epi=[],low=[])
def push(q,after,ops,logical=None):
    for o in ops: fifo[q].append((after,setseq(o,logical)))
def note(*t):
    for x in t: e(I('; '+x,'comment'))
def masked(dst,val,cmpop,a,b,tmp):
    e(valu(cmpop,'vcc',a,b), valu('v_mov_b32',tmp,OOB), valu('v_cndmask_b32',dst,tmp,val))

def prologue():
    e(raw(f's_load_dwordx2 {sX[0:2]}, s[0:1], 0','misc'), salu('s_cmp_ge_u32',S(2),256), raw('s_cbranch_scc1 L_exit','misc'))
    stamp('start')
    e(valu('v_lshrrev_b32',vT[0],6,V(0)), valu('v_and_b32',vL,63,V(0)))
    e(salu('s_and_b32',sXC,S(2),7), salu('s_lshr_b32',sIDX,S(2),3))
    pf_code()
    e(valu('v_readfirstlane_b32',sW,vT[0]))
    lg=OPT['lgm']
    e(salu('s_lshr_b32',sM8,sIDX,2), salu('s_lshr_b32',sI,sIDX,lg+1), salu('s_lshl_b32',sI,sI,lg), salu('s_and_b32',sT2,sXC,(1<<lg)-1), salu('s_add_u32',sI,sI,sT2))
    if OPT['tlb']:
        a,b=S(82),S(83)
        e(salu('s_and_b32',a,sIDX,3), salu('s_lshl_b32',sT1,a,3), salu('s_bitcmp1_b32',sIDX,2), raw('s_cselect_b32 s83, 0, 0x10103840','salu'), raw('s_cselect_b32 s46, 0x16100800, 0','salu'),
          salu('s_add_u32',sT0,sT0,0x01000000), salu('s_lshr_b32',b,b,sT1), salu('s_and_b32',b,b,0xff), salu('s_sub_u32',b,72,b), salu('s_lshr_b32',sT1,sT0,sT1), salu('s_and_b32',sT1,sT1,0xff))
        e(salu('s_min_u32',a,a,2), salu('s_lshl_b32',sT0,sW,3), salu('s_add_u32',sT0,sT0,32), salu('s_cmp_eq_u32',sW,3), raw('s_cselect_b32 s83, s83, s46','salu'), raw('s_cselect_b32 s82, s47, s82','salu'),
          raw('s_load_dwordx2 s[80:81], s[0:1], s83','misc'), salu('s_lshl_b32',a,a,21), salu('s_lshl_b32',sT0,S(2),7), salu('s_add_u32',a,a,sT0))
    e(salu('s_mul_i32',sW18K,sW,18432))
    vx0,vx1,row,t=vX[0],vX[1],vT[2],vT[3]
    e(salu('s_lshl_b32',sT2,sI,2), salu('s_add_u32',sT2,sT2,sW), salu('s_lshl_b32',sT2,sT2,5))
    e(valu('v_lshrrev_b32',row,3,vL), valu('v_lshrrev_b32',t,4,vL), valu('v_and_b32',vx0,7,vL), valu('v_xor_b32',vx0,vx0,t),
      valu('v_xor_b32',vx1,4,vx0), valu('v_add_u32',t,sT2,row), valu('v_mul_u32_u24',t,1152,t),
      valu('v_lshl_add_u32',vX[2],vx0,4,t), valu('v_lshl_add_u32',vX[3],vx1,4,t), valu('v_add_u32',vX[3],8*1152-1024,vX[3]),
      valu('v_add_u32',vx0,1920,vX[2]), valu('v_add_u32',vx1,1920,vX[3]))
    e(salu('s_lshr_b32',sJ,sXC,lg), salu('s_lshl_b32',sJ,sJ,lg+1), salu('s_and_b32',sT3,sIDX,(2<<lg)-1), salu('s_add_u32',sJ,sJ,sT3), salu('s_and_b32',sJ1,sJ,1))
    e(salu('s_mul_i32',sSO2,sJ1,18432*OPT['swp']))
    if OPT['px']:
        n=OPT['px']
        e(salu('s_mul_i32',sT0,sT2,1152), salu('s_and_b32',sT1,sJ,288//n-1), salu('s_mul_i32',sT1,sT1,n*128), salu('s_add_u32',sT0,sT0,sT1), valu('v_lshl_add_u32',vT[4],vL,7,sT0))
    e(raw('s_waitcnt lgkmcnt(0)','misc'))
    if OPT['px']:
        n=OPT['px']
        m=(1<<min(n,36))-1
        e(raw(f's_mov_b32 exec_lo, {hex(m&0xffffffff)}','salu'), raw(f's_mov_b32 exec_hi, {m>>32}','salu'), gload(vPF,vT[4],sX[0:2],tag='pf'))
        if n==72: e(valu('v_add_u32',vT[4],36*128,vT[4]), gload(vPF,vT[4],sX[0:2],tag='pf'))
        e(raw('s_mov_b64 exec, -1','salu'))
    e(salu('s_sub_u32',sBL[0],sX[0],1920), salu('s_subb_u32',sBL[1],sX[1],0), salu('s_add_u32',sBD[0],sBL[0],sSO2), salu('s_addc_u32',sBD[1],sBL[1],0))
def prologue2():
    for srd,off in ((sWG,32),(sWU,40),(sWQ,8),(sWO,16),(sWD,48),(sOUT,56),(sDBG,64),(sWS,72)): e(raw(f's_load_dwordx2 {srd[0:2]}, s[0:1], {off}','misc'))
    if OPT['tlb'] and not OPT['tlate']: e(raw('s_load_dword s83, s[80:81], s82','misc'))
    e(salu('s_sub_u32',sSO2,18432,sSO2), salu('s_add_u32',sBL[0],sBL[0],sSO2), salu('s_addc_u32',sBL[1],sBL[1],0))
    e(salu('s_mul_i32',sXP,sJ1,OPT['swp']*TS), salu('s_sub_u32',sXX,TS,sXP))
    e(salu('s_lshl_b32',sH,sXC,2), salu('s_and_b32',sT3,sIDX,3), salu('s_add_u32',sH,sH,sT3))
    e(salu('s_lshl_b32',sW1K,sW,10), salu('s_mul_i32',sW7K,sW,7168), salu('s_mul_i32',sW5K,sW,5120))
    for srd,n in ((sX,2048*1152),(sWQ,576*3456),(sWO,576*1152),(sWG,576*9216),(sWU,576*9216),(sWD,4608*1152),(sOUT,2048*1152),(sDBG,256),(sWS,0x10000000)):
        e(salu('s_mov_b32',srd[2],n), salu('s_mov_b32',srd[3],0x20000))
    e(salu('s_mov_b32',sLO,0x3f80), salu('s_mov_b32',sHI,0x3f800000), salu('s_mov_b32',sONES,0x3f803f80))
def pf_lane(t):
    if not OPT['pfe']: return vL
    e(salu('s_and_b32',sT1,sXC,1), salu('s_xor_b32',sT1,sT1,OPT['pfe']-1), salu('s_lshl_b32',sT1,sT1,6), valu('v_add_u32',t,sT1,vL)); return t
def addr_pf():
    row,t=vT[2],vT[3]; z=2 if OPT['pfe'] else 1; si=sM8 if OPT['pfe'] else sI
    ln=pf_lane(vT[4])
    e(salu('s_lshl_b32',sJ128,sJ1,7), salu('s_lshl_b32',sJH,sJ1,9), salu('s_sub_u32',sJH,512,sJH))
    e(salu('s_lshl_b32',sT0,si,2), salu('s_add_u32',sT0,sT0,sW), salu('s_mul_i32',sT0,sT0,z*9*9216), salu('s_mul_i32',sT1,sJ,576), salu('s_and_b32',sT1,sT1,-128), salu('s_add_u32',sT0,sT0,sT1),
      valu('v_mul_u32_u24',t,9216,vL), valu('v_add_u32',t,sT0,t))
    masked(vPG,t,'v_cmp_gt_u32',z*9,ln,row)
    u=row
    e(valu('v_mul_u32_u24',t,7282//z,vL), valu('v_lshrrev_b32',t,16,t), valu('v_mul_u32_u24',u,z*9,t), valu('v_sub_u32',u,vL,u), valu('v_mul_u32_u24',u,3456,u), valu('v_lshl_add_u32',u,t,7,u),
      salu('s_lshl_b32',sT0,si,2), salu('s_add_u32',sT0,sT0,sW), salu('s_mul_i32',sT0,sT0,z*9*3456), salu('s_mul_i32',sT1,sJ,216), salu('s_and_b32',sT1,sT1,-128), salu('s_add_u32',sT0,sT0,sT1),
      valu('v_add_u32',u,sT0,u))
    masked(vPOLL,u,'v_cmp_gt_u32',z*27,ln,t)
def pf_gu(c):
    if not OPT['pf']: return []
    return [cost(bload(vPF,vPG,s,sJ128 if c<4 else sJH,c*128 if c<4 else 0,tag='pf'),90) for s in (sWG,sWU)]
def pf_q(): return [cost(bload(vPF,vPOLL,sWQ,0,tag='pf'),270)] if OPT['pf'] else []
def addr_pfd():
    t,u=vPOLL,vT[7]; z=2 if OPT['pfe'] else 1; si=sM8 if OPT['pfe'] else sI
    ln=pf_lane(vT[4])
    e(salu('s_lshl_b32',sT0,si,2), salu('s_add_u32',sT0,sT0,sW), salu('s_mul_i32',sT0,sT0,z*81*64), salu('s_and_b32',sT0,sT0,-128), salu('s_mul_i32',sT1,sJ,288*1152), salu('s_add_u32',sT0,sT0,sT1),
      valu('v_mul_u32_u24',t,384,vL), valu('v_add_u32',t,sT0,t))
    masked(vPOLL,t,'v_cmp_gt_u32',14*z,ln,u)
def pf_d(k): return [cost(bload(vPF,vPOLL,sWD,0,k*128,tag='pf'),140)] if OPT['pf'] else []
def pf_o():
    if not OPT['pf']: return
    t,u=vT[4],vT[5]
    e(salu('s_lshl_b32',sT0,S(2),2), salu('s_add_u32',sT0,sT0,sW), salu('s_mul_i32',sT0,sT0,6*128), valu('v_lshl_add_u32',t,vL,7,sT0))
    masked(t,t,'v_cmp_gt_u32',6,vL,u)
    e(cost(bload(vPF,t,sWO,0,tag='pf'),60))
def cost(i,c): i.meta['cost']=c; return i
def xdma(tt,l):
    base=sBD if tt==0 else sBL
    o=[salu('s_add_u32','m0',sW18K,tt*73728+l*1920)] if l%2==0 else []
    for z in range(2): o.append(gdma(vX[2*(l&1)+z],base,(l&~1)*128+(2*(l&1)+z)*1024,tag=('x',tt,l),private=True))
    return o
SELA=A(208,2)
def sel_ops(m,g):
    return [valu('v_and_b32',m,1,vL), valu('v_lshlrev_b32',m,4,m), valu('v_lshlrev_b32',m,m,sLO), valu('v_bfe_u32',g,vL,1,1), valu('v_mul_lo_u32',g,g,m), valu('v_sub_u32',m,m,g),
      valu('v_accvgpr_write_b32',SELA[0],m), valu('v_accvgpr_write_b32',SELA[1],g)]
ntouch=[0]
def touch():
    if not OPT['touch']: return []
    k=ntouch[0]; ntouch[0]+=1
    o=[raw('s_mov_b64 exec, 0','salu')]
    for w in range(3): o+=[salu('s_cmp_eq_u32',sW,w), raw(f's_cbranch_scc1 L_pg{4*k+w}','misc')]
    o+=[raw(f's_branch L_pg{4*k+3}','misc'), label(f'L_tr{k}'), raw('s_mov_b64 exec, -1','salu')]
    for x in o[:-1]: x.meta['glue']=True
    return o

def lane_rp(rp,p,t):
    e(valu('v_lshrrev_b32',rp,3,vL), valu('v_and_b32',t,6,rp), valu('v_and_b32',p,7,vL), valu('v_xor_b32',p,p,t))
def addr_early():
    rp,p,t,u,kA=vT[2],vT[3],vT[4],vT[5],vT[6]
    lane_rp(rp,p,t)
    e(salu('s_and_b32',sT0,sW,1), salu('s_lshl_b32',sT0,sT0,4), salu('s_lshr_b32',sT1,sW,1), salu('s_lshl_b32',sT1,sT1,2), salu('s_add_u32',sT0,sT0,sT1))
    e(valu('v_and_b32',t,4,rp), valu('v_add_u32',kA,rp,t), valu('v_add_u32',kA,sT0,kA))
    e(salu('s_mul_i32',sT1,sJ,288), salu('s_lshl_b32',sT2,sJ1,5), salu('s_add_u32',sT2,sT2,sT1))
    e(salu('s_lshl_b32',sT3,sJ1,8), salu('s_sub_u32',sT3,256,sT3), salu('s_add_u32',sT3,sT3,sT1))
    e(salu('s_lshl_b32',sT0,sT2,1), valu('v_mul_u32_u24',t,9216,kA), valu('v_lshl_add_u32',t,p,4,t), valu('v_add_u32',vGF,sT0,t))
    e(salu('s_lshl_b32',sT0,sT3,1), valu('v_lshrrev_b32',t,2,p), valu('v_lshl_add_u32',t,t,5,kA), valu('v_mul_u32_u24',t,9216,t),
      valu('v_and_b32',u,3,p), valu('v_lshl_add_u32',t,u,4,t), valu('v_add_u32',vGH,sT0,t))
    e(salu('s_lshl_b32',sT0,sW,3), valu('v_add_u32',t,sT0,rp), valu('v_add_u32',u,sT2,t), valu('v_mul_u32_u24',u,1152,u), valu('v_lshl_add_u32',vDF,p,4,u),
      valu('v_add_u32',u,sT3,t), valu('v_mul_u32_u24',u,1152,u), valu('v_lshl_add_u32',vDH,p,4,u))
    g,r4,c,b=vT[2],vT[3],vT[6],vT[7]
    e(valu('v_bfe_u32',r4,vL,2,3), valu('v_and_b32',c,3,vL), valu('v_lshrrev_b32',g,5,vL),
      valu('v_lshlrev_b32',b,10,g), valu('v_lshl_add_u32',b,r4,7,b), valu('v_lshl_add_u32',b,c,3,b), valu('v_lshrrev_b32',t,1,r4))
    for q in range(4):
        e(valu('v_xor_b32',u,q,t), valu('v_lshl_add_u32',vTR[q][0],u,5,b), valu('v_add_u32',vTR[q][1],0x10000,vTR[q][0]), valu('v_add_u32',vTR[q][2],0x20000,vTR[q][0]))
def addr_qk():
    t=vT[4]
    e(salu('s_mul_i32',sT0,sJ,216), salu('s_and_b32',sT0,sT0,-16), salu('s_mul_i32',sT1,sW,32*3456), salu('s_add_u32',sT0,sT0,sT1))
    for q in range(7):
        pp,rr,k=vT[2],vT[3],vT[6]
        e(valu('v_add_u32',pp,64*q,vL), valu('v_mul_u32_u24',rr,4682,pp), valu('v_lshrrev_b32',rr,16,rr),
          valu('v_mul_u32_u24',t,14,rr), valu('v_sub_u32',pp,pp,t),
          valu('v_and_b32',t,12,rr), valu('v_and_b32',k,3,rr), valu('v_lshl_add_u32',k,t,1,k), valu('v_lshrrev_b32',t,4,rr), valu('v_lshl_add_u32',k,t,2,k),
          valu('v_mul_u32_u24',k,3456,k), valu('v_lshl_add_u32',k,pp,4,k), valu('v_add_u32',vQK[q],sT0,k))
        if q%4: e(valu('v_subrev_u32',vQK[q],1024*(q%4),vQK[q]))
def extpos(dst,key,t):
    e(valu('v_and_b32',dst,7,key), valu('v_bfe_u32',t,key,4,1), valu('v_lshl_add_u32',dst,t,3,dst),
      valu('v_bfe_u32',t,key,3,1), valu('v_xor_b32',t,1,t), valu('v_lshl_add_u32',dst,t,4,dst))
def addr_mid():
    t,u,c=vT[4],vT[5],vT[6]
    e(valu('v_and_b32',c,3,vL), salu('s_lshl_b32',sT0,sJ1,3), valu('v_lshrrev_b32',t,2,vL), valu('v_mul_u32_u24',t,224,t), valu('v_add_u32',t,sT0,t),
      valu('v_lshl_add_u32',vQM[0],c,3,t), valu('v_mul_u32_u24',u,72,c), valu('v_add3_u32',vQE[0],t,u,32))
    for n in (1,2): e(valu('v_add_u32',vQM[n],n*0x10000,vQM[0]), valu('v_add_u32',vQE[n],n*0x10000,vQE[0]))
def grp_ops(d,t):
    if not OPT['par']: return [salu('s_lshl_b32',d,sXC,2), salu('s_lshr_b32',t,sIDX,3), salu('s_add_u32',d,d,t)]
    return [salu('s_and_b32',d,sXC,6), salu('s_lshr_b32',t,sIDX,4), salu('s_add_u32',d,d,t), salu('s_lshl_b32',d,d,1), salu('s_and_b32',t,sXC,1), salu('s_xor_b32',t,t,OPT['par']-1), salu('s_add_u32',d,d,t),
            salu('s_lshl_b32',d,d,1), salu('s_bfe_u32',t,sIDX,0x10003), salu('s_add_u32',d,d,t)]
def addr_mid2():
    t,u,key,hf=vT[4],vT[5],vT[2],vT[3]
    e(salu('s_lshl_b32',sT0,sI,2), salu('s_add_u32',sT0,sT0,sW), salu('s_mul_i32',sT0,sT0,1280), salu('s_mul_i32',sT1,sJ,6*SL), salu('s_add_u32',sT0,sT0,sT1))
    e(salu('s_mul_i32',sT1,sJ1,16*OPT['swp']), valu('v_xor_b32',u,sT1,vL), valu('v_and_b32',key,31,u), valu('v_lshrrev_b32',hf,5,vL), valu('v_lshlrev_b32',t,2,hf), valu('v_xor_b32',t,t,u), valu('v_lshlrev_b32',t,4,t), valu('v_add_u32',vSM,sT0,t))
    extpos(u,key,t)
    e(valu('v_lshlrev_b32',u,3,u), valu('v_add_u32',u,sT0,u), valu('v_add_u32',u,1024,u), valu('v_mul_u32_u24',t,4*SL,hf), valu('v_add_u32',vSE0,u,t),
      valu('v_lshl_add_u32',vSE1,hf,31,u))
    e(salu('s_mul_i32',sT0,sJ,6), valu('v_lshrrev_b32',t,4,vL), valu('v_lshl_add_u32',t,t,1,sT0), valu('v_mov_b32',u,f32(QSCALE)), valu('v_cmp_gt_u32','vcc',32,t), valu('v_cndmask_b32',vSCX,1.0,u))
    for p_ in range(3): e(valu('v_readlane_b32',sSC[p_],vSCX,16*p_))
    e(salu('s_lshl_b32',sT0,sI,2), salu('s_add_u32',sT0,sT0,sW), salu('s_mul_i32',sT2,sT0,2*TS), salu('s_lshl_b32',sT1,sJ,10), salu('s_add_u32',sT1,sT1,sT2),
      valu('v_lshl_add_u32',vPS,vL,4,sT1),
      salu('s_lshl_b32',sT1,sJ,9), salu('s_add_u32',sT1,sT1,sT2), valu('v_lshl_add_u32',vPX,vL,3,sT1))
    e(salu('s_lshl_b32',sT1,sT0,11), salu('s_add_u32',sT1,sT1,WS_F2), valu('v_lshl_add_u32',t,vL,9,sT1), salu('s_and_b32',sT3,sJ,3), salu('s_lshl_b32',sT3,sT3,9), salu('s_add_u32',sT3,sT3,sT1))
    masked(vF1,t,'v_cmp_gt_u32',4,vL,u)
    e(salu('s_lshl_b32',sT1,sM8,2), salu('s_add_u32',sT1,sT1,sW), salu('s_lshl_b32',sT1,sT1,12), salu('s_add_u32',sT1,sT1,WS_F3), valu('v_lshl_add_u32',t,vL,9,sT1))
    masked(vF3,t,'v_cmp_gt_u32',8,vL,u)
    e(*grp_ops(sT1,sT2), salu('s_lshl_b32',sT1,sT1,1), salu('s_and_b32',sT2,sIDX,1), salu('s_add_u32',sT1,sT1,sT2),
      salu('s_lshl_b32',sT1,sT1,2), salu('s_add_u32',sT1,sT1,sW), salu('s_lshl_b32',sT1,sT1,9), salu('s_add_u32',sF3,sT1,WS_F3))
    e(raw(f'v_writelane_b32 {u}, {sT3}, 0','valu',u.regs()+sT3.regs(),u.regs()), raw(f'v_writelane_b32 {u}, {sF3}, 1','valu',u.regs()+sF3.regs(),u.regs()),
      valu('v_sub_u32',t,1,vL), valu('v_lshlrev_b32',t,4,t), cost(bstore(t,u,sWS,0,flags='sc1',tag='qkvst'),30))
    e(valu('v_and_b32',key,16,vL), valu('v_cmp_eq_u32','vcc',0,key), valu('v_cndmask_b32',hf,vR[1],vR[0]), valu('v_mul_f32',hf,hf,hf),
      salu('s_lshl_b32',sT0,sT0,7), salu('s_add_u32',sT0,sT0,WS_R2), valu('v_lshl_add_u32',key,vL,2,sT0), salu('s_lshl_b32',sT1,sJ,6), valu('v_add_u32',t,sT1,vL))
    masked(key,key,'v_cmp_gt_u32',32,t,u)
    e(bstore(hf,key,sWS,0,flags='sc1',tag='qkvst'))
def pf_code():
    if not OPT['pfc']: return
    t=vT[4]; a=V(6,2)
    e(raw('s_getpc_b64 s[100:101]','salu',[],['s100','s101']), label('L_pc'),
      salu('s_lshl_b32',sT0,sIDX,2), valu('v_add_u32',t,sT0,vT[0]), valu('v_lshl_add_u32',t,vL,7,t), valu('v_lshlrev_b32',t,7,t),
      raw(f'v_min_u32 {t}, L_codeend-L_pc-4, {t}','valu',t.regs(),t.regs()),
      raw(f'v_add_co_u32 {a[0]}, vcc, {sPC[0]}, {t}','valu',t.regs()+['s100'],a[0].regs()+['vcc']), valu('v_mov_b32',a[1],sPC[1]), raw('s_mov_b64 exec, 63','salu'),
      raw(f'v_addc_co_u32 {a[1]}, vcc, 0, {a[1]}, vcc','valu',a[1].regs()+['vcc'],a[1].regs()+['vcc']),
      I(f'global_load_dword {vPF}, {a}, off','vld',a.regs(),vPF.regs(),tag='pf'), raw('s_mov_b64 exec, -1','salu'))

GR=[V(38,4),V(42,4)]; MEAN=[V(46),V(47)]
def var_ops(tt):
    d=GR[tt]; t=vT[4]; b=d[0]
    e(valu('v_and_b32',t,1,vL), valu('v_cmp_eq_u32','vcc',0,t), valu('v_and_b32',t,2,vL), valu('v_cndmask_b32',d[0],d[1],d[0]), valu('v_cndmask_b32',d[2],d[3],d[2]),
      valu('v_cmp_eq_u32','vcc',0,t), valu('v_bfe_u32',t,vL,2,2), valu('v_cndmask_b32',d[0],d[2],d[0]), valu('v_lshrrev_b32',d[1],4,vL), valu('v_cmp_eq_u32','vcc',t,d[1]),
      valu('v_cndmask_b32',b,0,b))
    for op in ('v_permlane16_swap_b32','v_permlane32_swap_b32'): e(valu('v_mov_b32',d[1],b), swap(op,b,d[1]), valu('v_add_f32',b,b,d[1]))
    e(valu('v_mul_f32',b,f32(1/576),b), valu('v_fma_f32',b,'-'+str(MEAN[tt]),MEAN[tt],b), valu('v_max_f32',b,0,b), valu('v_cvt_pk_bf16_f32',b,b,b), valu('v_lshlrev_b32',b,16,b),
      valu('v_add_f32',b,f32(1e-5),b), valu('v_cvt_pk_bf16_f32',b,b,b), valu('v_lshlrev_b32',b,16,b),
      valu('v_sqrt_f32',b,b), valu('v_cvt_pk_bf16_f32',b,b,b), valu('v_lshlrev_b32',b,16,b), valu('v_rcp_f32',vR[tt],b))
def centre_ops(f,tt):
    o=[]; t=V(252)
    for d in range(4):
        x=f[d]
        o+=[valu('v_lshlrev_b32',t,16,x), valu('v_and_b32',x,0xffff0000,x), valu('v_sub_f32',t,t,vM[tt]), valu('v_sub_f32',x,x,vM[tt]), valu('v_cvt_pk_bf16_f32',x,t,x)]
    return o
def to_acc(s): return [valu('v_accvgpr_write_b32',XC0[4*s+d],X0[s][d]) for d in range(4)]

class Item:
    def __init__(s,name,n,mk): s.name=name; s.n=n; s.mk=mk; s.addr=None; s.first=None; s.last=None; s.pushed=False
    def blks(s): return list(range(s.addr//4096,s.addr//4096+s.n))
def blk_item(name,voff,srd,soff,buf=False,c=80):
    def mk(it):
        o=[salu('s_add_u32','m0',sW1K,it.addr)]
        if buf: return o+[salu('s_mov_b32',sSO,soff), cost(dma(voff,srd,sSO,tag=it.name,dst=it.blks()),c)]
        return o+base_add(sBD,srd,soff)+[cost(gdma(voff,sBD,tag=it.name,dst=it.blks()),c)]
    return Item(name,1,mk)
def qkv_item(a):
    def mk(it):
        o=[salu('s_mov_b32',sSO,a*128*3456)] if a==4 else base_add(sBD,sWQ,a*128*3456)
        for q in range(7):
            if q%4==0: o.append(salu('s_add_u32','m0',sW7K,it.addr+q*1024))
            if a==4: o.append(dma(vQK[q],sWQ,sSO,(q%4)*1024,tag=it.name,dst=it.blks()))
            else: o.append(cost(gdma(vQK[q],sBD,(q%4)*1024,tag=it.name,dst=it.blks()),120))
        return o
    return Item(('q',a),7,mk)
def kv_item(sg):
    def mk(it):
        o=[salu('s_add_u32','m0',sW5K,it.addr+2048)]+base_add(sBD,sWS,WS_QKV+sg*10240+2048)
        for q in range(5):
            o.append(gdma(vKV,sBD,q*1024-2048,flags='sc1',tag=it.name,dst=it.blks())); o[-1].rd.append('ok_f1'); o[-1].meta['bat']=q>0
        return o
    return Item(('kv',sg),5,mk)

class Group:
    def __init__(s): s.m=[]; s.rd=[]; s.bar=False; s.fr=[]
frp=[0]
def newfrag():
    pl=[FR[4*n:4*n+4] for n in range(16)]+[A(216+4*n,4) for n in range(OPT['frx'])]
    f=pl[frp[0]]; frp[0]=(frp[0]+1)%len(pl); return f
def tr_read(f,u,it,seg):
    return dsr('ds_read_b64_tr_b16',f[2*u:2*u+2],vTR[seg][it.addr>>16],(it.addr&0xffff)+u*2048,src=(it.name,it.blks()))
def xc(tt,s): return (XC0 if tt==0 else XC1)[4*s:4*s+4]
def hfrag(k,tt): return HH[8*k+4*tt:8*k+4*tt+4]

items=[]; groups=[]; events=[]
def chain_mm(g,ks,accs,bfun):
    t0=len(groups)&1 if OPT['snake'] else 0
    for z in range(2):
        tt=t0^z; o=list(zip(ks,g.fr))
        if z and OPT['snake']: o.reverse()
        for n,(k,f) in enumerate(o): g.m.append(m16(accs[tt],f,bfun(k,tt),0 if (ks[0]==0 and n==0) else accs[tt]))
def mm_group(srcs,accs,bfun,bar=False):
    g=Group(); g.bar=bar
    for it,seg,k in srcs:
        f=newfrag(); g.fr.append(f)
        for u in range(2): g.rd.append((it,lambda it,f=f,u=u,seg=seg: tr_read(f,u,it,seg)))
    chain_mm(g,[k for _,_,k in srcs],accs,bfun)
    groups.append(g); return len(groups)-1

def h_epilogue(bank,q,kout,half):
    gt=[bank[16*q+4*tt:16*q+4*tt+4] for tt in range(2)]; up=[bank[16*q+8+4*tt:16*q+12+4*tt] for tt in range(2)]
    o=[]
    for tt in range(2):
        for r in range(4): o.append(valu('v_max_f32',gt[tt][r],0,gt[tt][r]))
    for tt in range(2):
        for r in range(4): o.append(valu('v_mul_f32',up[tt][r],gt[tt][r],up[tt][r]))
        for d in range(2): o.append(valu('v_cvt_pk_bf16_f32',gt[tt][d],up[tt][2*d],up[tt][2*d+1]))
        for d in range(2): o.append(valu('v_accvgpr_write_b32',hfrag(kout,tt)[2*half+d],gt[tt][d]))
    return o
NV0=15
X0=[V(192+4*s,4) for s in range(NV0)]+[V(128+4*s,4) for s in range(18-NV0)]
def build_chunk(c,bank):
    xf=lambda k,tt: X0[k] if (c==0 and tt==0 and k<NV0) else xc(tt,k)
    cuts=list(range(0,19,OPT['chain']))
    if c==0: cuts=list(range(0,19,3)) if OPT['c0ch']==3 else [0,3,6,12,15,18]
    for st,(k0,k1) in enumerate(zip(cuts,cuts[1:])):
        G=[blk_item(('g',c,k),vGF,sWG,k*32*9216+c*128) for k in range(k0,k1)]
        U=[blk_item(('u',c,k),vGF,sWU,k*32*9216+c*128) for k in range(k0,k1)]
        flip=OPT['flip'] and (len(cuts)-2-st)%2==1
        items.extend(U+G if flip else G+U)
        for z,(M,o) in enumerate(((U,8),(G,0)) if flip else ((G,0),(U,8))):
            for n,q in enumerate(range(3,-1,-1) if flip else range(4)):
                b=(n==0) if z==0 else (n==0 and ((k1-k0>3 and str(c) not in str(OPT['aint'])) or OPT['bartr'] or (c==0 and st<OPT.get('bar0',2))))
                gi=mm_group([(M[k-k0],q,k) for k in range(k0,k1)],[bank[16*q+o+4*tt:16*q+o+4+4*tt] for tt in range(2)],xf,bar=b)
                if k1==18 and z: events.append((gi,h_epilogue(bank,q,2*c+(q>>1),q&1)))
def build_half(bank):
    for st in range(3):
        G=[blk_item(('gh',3*st+n),vGH,sWG,(3*st+n)*64*9216,c=150) for n in range(3)]
        U=[blk_item(('uh',3*st+n),vGH,sWU,(3*st+n)*64*9216,c=150) for n in range(3)]
        items.extend(G+U)
        seq=[(G,0,0),(G,0,1),(U,8,0),(U,8,1)] if st<2 else [(G,0,0),(U,8,0),(G,0,1),(U,8,1)]
        for z,(M,o,q) in enumerate(seq):
            ch=min(6,OPT['chain'])
            for hh in range(6//ch):
                ks=[6*st+ch*hh+n for n in range(ch)]
                gi=mm_group([(M[(k-6*st)>>1],2*(k&1)+q,k) for k in ks],[bank[16*q+o+4*tt:16*q+o+4+4*tt] for tt in range(2)],lambda k,tt:xc(tt,k),bar=(hh==0 and (z==0 or (z==2 and st<2 and OPT['bartr']))))
            if st==2 and o==8: events.append((gi,h_epilogue(bank,q,8,q)))
def build_qkv(bank):
    for a in range(5):
        it=qkv_item(a); items.append(it)
        first=True
        qc=OPT['qch'] if a<4 else 2
        for k0 in range(0,4 if a<4 else 2,qc):
            for t in (range(6,-1,-1) if OPT['flip'] and a%2 else range(7)):
                g=Group(); g.bar=first; first=False
                for kk in range(k0,k0+qc):
                    f=newfrag(); g.fr.append(f)
                    for u in range(2):
                        def rd(it,f=f,u=u,kk=kk,t=t):
                            ad=it.addr+kk*7168+u*3584+(0 if t==6 else 72*(t>>1)+40*(t&1))
                            return dsr('ds_read_b64_tr_b16',f[2*u:2*u+2],(vQE if t==6 else vQM)[ad>>16],ad&0xffff,src=(it.name,it.blks()))
                        g.rd.append((it,rd))
                chain_mm(g,[4*a+kk for kk in range(k0,k0+qc)],[bank[8*t+4*tt:8*t+4*tt+4] for tt in range(2)],lambda k,tt:xc(tt,k))
                groups.append(g)
                if a==4: events.append((len(groups)-1,qkv_epilogue(bank,t)))
def st_pair(o,data,voff,soff,tag,x=None):
    a=salu('s_mov_b32',sSO2,soff) if x is None else salu('s_add_u32',sSO2,x,soff); b=bstore(data,voff,sWS,sSO2,flags='sc1',tag=tag)
    dep=[x for x in o if x.kind=='valu'][-1]
    a.meta['q']='st'; b.meta['q']='st'; b.meta['dep']=dep
    o+=[a,b]
def qkv_epilogue(bank,t):
    o=[]
    sc=[bank[56],bank[57]]
    if t==6: o+=[valu('v_mul_f32',sc[tt],vSCX,vR[tt]) for tt in range(2)]
    elif t%2==0: o+=[valu('v_mul_f32',sc[tt],sSC[t>>1],vR[tt]) for tt in range(2)]
    a=bank[8*t:8*t+8]
    for tt in range(2):
        for r in range(4): o.append(valu('v_mul_f32',a[4*tt+r],sc[tt],a[4*tt+r]))
    if t<6:
        o+=[valu('v_cvt_pk_bf16_f32',a[0],a[0],a[1]), valu('v_cvt_pk_bf16_f32',a[1],a[2],a[3]), valu('v_cvt_pk_bf16_f32',a[2],a[4],a[5]), valu('v_cvt_pk_bf16_f32',a[3],a[6],a[7]),
            swap('v_permlane16_swap_b32',a[0],a[2]), swap('v_permlane16_swap_b32',a[1],a[3])]
        st_pair(o,a[0:4],vSM,WS_QKV+t*SL,'qkvst')
    else:
        o+=[valu('v_cvt_pk_bf16_f32',a[0],a[0],a[1]), valu('v_cvt_pk_bf16_f32',a[2],a[2],a[3]), valu('v_cvt_pk_bf16_f32',a[4],a[4],a[5]), valu('v_cvt_pk_bf16_f32',a[6],a[6],a[7])]
        o+=[valu('v_mov_b32',a[n],sONES) for n in (1,3,5,7)]
        o+=[swap('v_permlane16_swap_b32',a[0],a[4]), swap('v_permlane16_swap_b32',a[2],a[6])]
        for n,(vo,sl) in enumerate(((vSE0,0),(vSE0,1),(vSE1,2),(vSE1,3))):
            st_pair(o,a[2*n:2*n+2],vo,WS_QKV+sl*SL,'qkvst')
    return o
pool=[0]
def build_down():
    ntr=0
    if OPT['chain']==3: seq=[(c,3*tr,3*tr+3) for c,tr in [(0,0),(0,1),(1,0),(1,1),(0,2),(1,2)]+[(c,tr) for c in range(2,9) for tr in range(3)]]
    else:
        seq=[(0,0,6),(1,0,6),(0,6,9),(1,6,9)]
        for c in range(2,9): seq+=[(c,0,9)] if OPT['chain']==9 and c<8 else ([(c,0,6),(c,6,9)] if c%2==0 else [(c,0,3),(c,3,9)])
    for c,k0,k1 in seq:
        acc=V(192 if c==0 else 128+32*((c+1)%2),32)
        tr=2 if k1==9 else 0
        if True:
            B=[blk_item(('d',c,k),vDF if k<8 else vDH,sWD,(k*32*1152 if k<8 else 0)+c*128) for k in range(k0,k1)]
            items.extend(B)
            for n,q in enumerate(range(3,-1,-1) if OPT['flip'] and k1<9 and c>1 else range(4)):
                gi=mm_group([(B[k-k0],q,k) for k in range(k0,k1)],[acc[16*tt+4*q:16*tt+4*q+4] for tt in range(2)],hfrag,bar=(n==0 and (ntr%OPT['bint']==0 or ntr==26 or (ntr>=OPT['bl'] and ntr%2==0) or k1-k0==9 or OPT['bartr'])))
                if tr==2 and q%2==1:
                    o=[]
                    for tt in range(2):
                        a=acc[16*tt+4*(q-1):16*tt+4*(q-1)+8]
                        pl=[XC1[4*n:4*n+4] for n in range(18)]; pa=([A(212+4*n,4) for n in range(7)]+[A(24+4*n,4) for n in range(4)]+[A(60+4*n,4) for n in range(3)])[:OPT['apool']]
                        n=pool[0]; pool[0]+=1; a0_=OPT['ap0']
                        if a0_<=n<a0_+len(pa):
                            d4=pa[n-a0_]
                            o+=[valu('v_cvt_pk_bf16_f32',a[d],a[2*d],a[2*d+1]) for d in range(4)]+[valu('v_accvgpr_write_b32',d4[d],a[d]) for d in range(4)]
                        else:
                            d4=pl[(n if n<a0_ else n-len(pa))%18]
                            o+=[valu('v_cvt_pk_bf16_f32',d4[d],a[2*d],a[2*d+1]) for d in range(4)]
                        if c<8: st_pair(o,d4,vPS,WS_P+c*CS+(q>>1)*16384,'pst',sXX if tt else sXP)
                        else:
                            for z in range(2): st_pair(o,d4[2*z:2*z+2],vPX,WS_PX+(q-1+z)*ES,'pst',sXX if tt else sXP)
                    events.append((gi,o))
            ntr+=(k1-k0)//3

marks={}
def build_ffn():
    marks['c0']=len(groups); build_chunk(0,BANK[0])
    marks['c1']=len(groups); build_chunk(1,BANK[1])
    marks['qkv']=len(groups); build_qkv(BANK[0])
    marks['c2']=len(groups); build_chunk(2,BANK[1])
    marks['c3']=len(groups); build_chunk(3,BANK[0])
    marks['half']=len(groups); build_half(V(224,32))
    marks['down']=len(groups); build_down()

NB=39 if OPT['split'] else 40; LATE=10**9
SIG=13 if OPT['split'] else 1
vCA,vCV=V(54),vT[7]
def plan():
    L=OPT['look']
    n=0; bars=[]
    for g in groups:
        g.start=n
        if g.bar: bars.append(n-L-(1 if n and OPT['balone']==2 else 0))
        for k,(it,_) in enumerate(g.rd):
            if it.first is None: it.first=n+k-L
            it.last=n-1+(0 if len(g.fr)<=3 else ((k//4)*2 if not OPT['w3'] else (k//6)*3))
        n+=len(g.m)
    free={b:(-3000 if b>=36 else (-2000 if b<18 else -L)) for b in range(NB)}
    ptr=36
    for it in items:
        if ptr+it.n>NB: ptr=0
        it.addr=ptr*4096
        it.early=max(free[b] for b in it.blks())
        assert it.early<LATE
        it.bar=max(b for b in bars if b<=it.first)
        nxt=[b for b in bars if b-SIG>=it.last]
        for b in it.blks(): free[b]=nxt[0] if nxt else LATE
        ptr=(ptr+it.n)%NB
    return n,bars,free

VM=('dma','vld','vst')
SC=('salu','waitfor','misc','label')
lastvm=dict(any=-100,st=-100)
def head(nm,gap):
    q=fifo[nm]
    if not q or q[0][0]>gap: return None
    x=q[0][1]
    if 'lag' in x.meta and x.meta['lag'][0].meta.get('at',LATE)+x.meta['lag'][1]>gap: return None
    sq=x.meta['seq']; rd=set(x.rd)-{'carry'}; wr=set(x.wr)-{'carry'}
    for n2,q2 in fifo.items():
        if n2==nm: continue
        for _,y in q2:
            if y.meta['seq']>sq: break
            if rd&set(y.wr) or wr&set(y.rd) or wr&set(y.wr): return None
    return x
pipe=[0,16]
def vm_ready(gap,mingap,stgap,order=('st','ld','low','dma')):
    if gap-lastvm['any']<mingap: return None
    if pipe[0]-gap*pipe[1]>OPT['back']: return None
    for nm in order:
        x=head(nm,gap)
        if x is None or x.kind not in VM: continue
        if nm=='st':
            d=x.meta.get('dep')
            if gap-lastvm['st']<stgap or (d is not None and d.meta.get('at',LATE)>gap-2): continue
        return nm
    return None
def take(nm,gap):
    x=fifo[nm].pop(0)[1]
    if x.kind in VM:
        lastvm['any']=gap
        pipe[0]=max(pipe[0],gap*pipe[1])+x.meta.get('cost',80)
        if nm=='st': lastvm['st']=gap
    e(x)
    nx=[y for _,y in fifo[nm][:6] if 'vcc' in y.rd or 'vcc' in y.wr]
    if nx and 'vcc' in nx[0].rd: vcc_open[0]=nm
    elif vcc_open[0]==nm: vcc_open[0]=None
    while x.meta.get('glue'):
        x=fifo[nm].pop(0)[1]; e(x)
    return x
vcc_lock=[LATE]; vcc_open=[None]
def pull(gap,scalar):
    order=('arr','st','ld','dma','ctr','epi','low') if scalar and OPT['sprio'] else ('arr','dma','st','ctr','epi','ld','low')
    if scalar:
        for nm in order:
            x=head(nm,gap)
            if x is not None and 'carry' in x.rd: take(nm,gap); return True
    elif vcc_open[0]: order=(vcc_open[0],)+order
    for nm in order:
        x=head(nm,gap)
        if x is None or x.kind in VM: continue
        if (x.kind in SC)!=scalar: continue
        if 'vcc' in x.wr and not x.meta.get('glue') and vcc_lock[0]<OPT.get('vlock',22): continue
        take(nm,gap); return True
    return False

bar_extra={}; PH={}
def emit_backbone(bars,gapstamps):
    L=OPT['look']
    reads=[(it,f,g.start-0.5) for g in groups for it,f in g.rd]
    ev={}
    for gi,ops in events: ev.setdefault(gi,[]).append(ops)
    bar_items={}
    for it in items: bar_items.setdefault(it.bar,[]).append(it.name)
    barset=set(bars); issue={}
    fixed={}; fixT={}
    nb=len([b for b in bars if b>=SIG and OPT['split']]); kb=0
    for gi,g in enumerate(groups):
        for k in range(len(g.m)):
            gap=g.start+k; fx=[]
            w_lg=list(groups[gi+1].fr) if (k==len(g.m)-1 and gi+1<len(groups)) else []
            if len(w_lg)>3: w_lg=w_lg[:3 if OPT['w3'] else 2]
            if len(g.fr)>3 and not OPT['w3'] and k in (1,3): w_lg=g.fr[k+1:k+3]
            if len(g.fr)>3 and OPT['w3'] and k in (2,5) and k+1<len(g.fr): w_lg=g.fr[k+1:k+4]
            if len(g.fr)>6 and k in (9,13): w_lg=groups[gi+1].fr[:1+(k-9)//2] if gi+1<len(groups) else []
            w_vm=[]
            for d in (1,SIG):
                b=gap+d
                if b in barset and d==(SIG if b>=SIG else 1): w_vm=bar_items.get(b,[])+bar_extra.get(b,[])
            if OPT['split']:
                if gap+SIG in barset: x=dsw('ds_sub_u32',vCA,vONE); x.meta['signal']=True; fixT[gap]=x
                if gap+7 in barset and gap+7>=SIG: assert gap not in fixT; fixT[gap]=dsr('ds_read_b32',vCV,vCA)
                if gap+1 in barset and gap+1>=SIG:
                    kb+=1; assert gap not in fixT
                    fixT[gap]=valu('v_cmp_lt_u32','vcc',4*(nb-kb),vCV); w_lg.append(vCV)
                    OUT.extend([f'L_sb{kb}:', f'ds_read_b32 {vCV}, {vCA}', 's_waitcnt lgkmcnt(0)', fixT[gap].text, 's_nop 0', f's_cbranch_vccnz L_sb{kb}', f's_branch L_sr{kb}'])
            if gap in barset:
                if OPT['split'] and gap>=SIG: fx.append([raw(f's_cbranch_vccnz L_sb{kb}','misc',['vcc'],check=True,glue=True), label(f'L_sr{kb}')])
                else: fx.append([barrier()])
            if w_lg or w_vm: fx.append([waitfor(lg=w_lg,vmtags=w_vm)])
            fixed[gap]=fx
    def stgap_at(gap):
        dn=gap>=groups[marks['down']].start
        iv=len([b for b in bars if b<=gap])
        if iv%OPT['stper' if dn else 'qstper']: return LATE
        if any(-1<=g-gap<OPT['atd']*3//4 for g in extra): return LATE
        return OPT['stgap' if dn else 'qstgap']
    ri=[L]
    def rd():
        it,f,lg=reads[ri[0]]; ri[0]+=1; e(setseq(f(it),lg))
    planned=None
    for gi,g in enumerate(groups):
        for k,m in enumerate(g.m):
            gap=g.start+k
            if gap-1 in extra:
                cur[0]=gap-0.7
                e(*extra[gap-1])
                x=head('st',gap); n=extra[gap-1][-1].passes-3
                if x is not None and x.kind=='vst' and x.meta['dep'].meta.get('at',LATE)<gap-2: take('st',gap); n=0
                for _ in range(n): pull(gap-1,False)
            cur[0]=gap
            e(m)
            if gap in gapstamps: stamp(gapstamps[gap])
            if gap in PH: note(PH[gap])
            if 'gst' in OPT and gap in range(*map(int,OPT['gst'].split(':'))): stamp(f'gap{gap}',True)
            if planned:
                x=take(planned,gap); planned=None; assert x.kind in VM
                if x.kind=='dma': issue[x.meta['tag']]=gap
                continue
            fx=fixed[gap]
            nosc=OPT['nosc'] and P[-2].kind=='valu' and any(r=='vcc' or r[0]=='s' for r in P[-2].wr)
            if fx: e(*fx.pop(0))
            elif not nosc and not pull(gap,True) and OPT['snop']: e(raw('s_nop 0','misc'))
            if gap in barset and OPT['balone']==3 and not fx: continue
            if ri[0]<len(reads) and ri[0]<=gap+L: rd()
            elif ri[0]>=len(reads) and tail_reads: e(tail_reads.pop(0))
            used=False
            if gap in barset and OPT['balone'] and not fx: continue
            if gap+1 in barset and OPT['balone']==2 and not fx and len(fixed[gap+1])==1 and ri[0]<len(reads) and reads[ri[0]][0].bar<=gap: rd(); continue
            if fx: e(*fx.pop(0)); used=True
            if gap in fixT:
                e(fixT[gap]); used=True
                if fixT[gap].kind=='valu': continue
            lag=ri[0]<len(reads) and ri[0]<=gap+L
            if lag:
                if not used: rd()
                continue
            if gap+1 in fixed and not fixed[gap+1] and gap+1 not in fixT: planned=vm_ready(gap+1,OPT['dmagap'],stgap_at(gap+1))
            if used: continue
            if planned:
                if OPT['vmpat']==0 and ri[0]<len(reads) and reads[ri[0]][0].bar<=gap: rd()
                if OPT['vmpat']==2: pull(gap,False)
                continue
            vcc_lock[0]=min([b for b in bars if b>gap]+[LATE])-gap if OPT['split'] else LATE
            if not pull(gap,False) and not nosc: pull(gap,True)
        for ops in ev.get(gi,[]):
            for o in ops: push(o.meta.get('q','epi'),gap+4,[o])
    vcc_lock[0]=LATE
    sl=[(it.bar-SIG-issue[it.name],it.name) for it in items if it.name in issue]
    sl.sort(); print('min dma slack (gaps):',sl[:6])
    print('left after backbone:',{k:len(v) for k,v in fifo.items()})

OUT=[]
HOT=[]
def spin(name,load,expect,sleep=8,cmp='v_cmp_gt_u32',pre=[]):
    a=valu(cmp,'vcc',expect,vPOLL); a.meta['glue']=True
    b=raw(f's_cbranch_vccnz L_spin_{name}','misc',['vcc']); b.meta['glue']=True
    c=label(f'L_back_{name}')
    cnt=vT[6]
    OUT.extend([f'L_spin_{name}:', f'v_mov_b32 {cnt}, 0x40000', f'L_spinl_{name}:', *pre, load.text, 's_waitcnt vmcnt(0)', f'{cmp} vcc, {fmt(expect)}, {vPOLL}', 's_nop 1',
        f's_cbranch_vccz L_back_{name}', f'v_subrev_u32 {cnt}, 1, {cnt}', f'v_cmp_ne_u32 vcc, 0, {cnt}', f's_sleep {sleep}', f's_cbranch_vccnz L_spinl_{name}', f's_branch L_back_{name}'])
    a.wr.append(cnt.regs()[0]); a.wr.append('ok_'+name)
    return [a,b,c]

def addr_att(WB):
    t,u,key,hf,p,rp=vT[0],vT[1],vT[2],vT[3],vT[4],vT[5]
    e(valu('v_and_b32',key,31,vL), valu('v_lshrrev_b32',hf,5,vL), valu('v_lshlrev_b32',t,2,hf), valu('v_xor_b32',t,t,vL), valu('v_lshlrev_b32',vKM,4,t))
    extpos(u,key,t)
    e(valu('v_lshlrev_b32',vKE,3,u), valu('v_add_u32',vKE,1024,vKE))
    e(salu('s_lshr_b32',sT0,sW,1), salu('s_lshl_b32',sT0,sT0,5), salu('s_add_u32',sT0,sT0,sH), salu('s_add_u32',sT0,sT0,32), salu('s_mul_i32',sT0,sT0,SL),
      salu('s_and_b32',sT1,sW,1), salu('s_mul_i32',sT1,sT1,5120), salu('s_add_u32',sT0,sT0,sT1), valu('v_lshl_add_u32',vKV,vL,4,sT0))
def addr_z(): e(valu('v_and_b32',vZ,1,vL), valu('v_lshlrev_b32',vZ,7,vZ))
def qk_loads(WB):
    t,u,hf=vT[0],vT[1],vT[3]
    e(salu('s_mov_b32',sSO3,WS_R2), cost(bload(vR2,vR2,sWS,sSO3,flags='sc1'),40))
    e(valu('v_lshrrev_b32',hf,5,vL), valu('v_mul_u32_u24',u,1280,hf), valu('v_add_u32',u,u,vKE))
    e(salu('s_lshl_b32',sT0,sM8,2), salu('s_add_u32',sT0,sT0,sW), salu('s_mul_i32',sT0,sT0,2560), salu('s_mul_i32',sT1,sH,SL), salu('s_add_u32',sSO3,sT0,sT1))
    for x in range(2): e(bload(QM[x],vKM,sWS,sSO3,x*1280,flags='sc1'))
    e(cost(bload(QE[0],u,sWS,sSO3,0,flags='sc1'),40))
    e(salu('s_add_u32',sSO3,sT1,32*SL))
    for x in range(2): e(bload(KM[x],vKM,sWS,sSO3,x*1280,flags='sc1'), cost(bload(KE[x],vKE,sWS,sSO3,x*1280,flags='sc1'),40))
    e(valu('v_add_u32',vKM,WB,vKM), valu('v_add_u32',vKE,WB,vKE), valu('v_mov_b32',QE[1],0), valu('v_mov_b32',vIDX,0xdddd))
def zero_o():
    for x in range(2):
        for r in range(16): e(valu('v_mov_b32',OO[x][r],0))
def extra_zero(ngaps):
    with collect() as o: zero_o()
    push('ctr',ngaps-66,o,ngaps-66)
def addr_lds(WB):
    t,hf=vT[0],vT[3]
    e(valu('v_lshrrev_b32',hf,5,vL))
    c,r,k,x=vT[4],vT[5],vT[6],vT[1]
    e(valu('v_and_b32',c,3,vL), valu('v_bfe_u32',r,vL,2,2), valu('v_lshl_add_u32',r,hf,3,r))
    for n in range(4):
        uu,y=n>>1,n&1
        e(valu('v_add_u32',k,16*uu+4*y,r))
        extpos(x,k,t)
        e(valu('v_lshlrev_b32',x,3,x), valu('v_min_u32',t,1,c), valu('v_mul_u32_u24',t,LDS_OOB+64,t), valu('v_xor_b32',x,x,t), valu('v_add_u32',x,1024,x))
        e(valu('v_lshrrev_b32',t,1,c), valu('v_mul_u32_u24',t,36,t), valu('v_xor_b32',k,k,t), valu('v_lshlrev_b32',k,4,k), valu('v_and_b32',t,1,c), valu('v_lshl_add_u32',k,t,3,k))
        e(valu('v_and_b32',t,16,vL), valu('v_cmp_eq_u32','vcc',0,t), valu('v_cndmask_b32',k,x,k), valu('v_add_u32',vVA[n],WB,k))
vOP,vSH,vINC=V(55),V(16),V(17)
def addr_op():
    t,u,g=vT[2],vT[4],vT[5]
    e(salu('s_lshl_b32',sT0,sXC,2), valu('v_lshlrev_b32',vINC,sT0,vONE), salu('s_mov_b32',sPV,0), valu('v_add_u32',vKE1,1280,vKE))
    if OPT['vp']: e(valu('v_min_u32',vOP,1,vL), valu('v_lshl_add_u32',vOP,vOP,31,sF3))
    if OPT['warm']: e(salu('s_and_b32',sT0,sIDX,7), salu('s_lshl_b32',sT0,sT0,2), salu('s_add_u32',sT0,sT0,sW),
      salu('s_lshl_b32',sT1,sXC,2), salu('s_lshr_b32',sT2,sIDX,3), salu('s_add_u32',sT1,sT1,sT2),
      salu('s_lshr_b32',sT2,sT0,4), salu('s_lshl_b32',sT2,sT2,15), salu('s_and_b32',sT3,sT0,15), salu('s_lshl_b32',sT3,sT3,8), salu('s_add_u32',sT2,sT2,sT3),
      salu('s_lshl_b32',sT3,sT1,16), salu('s_add_u32',sT2,sT2,sT3), salu('s_add_u32',sT2,sT2,WS_O),
      valu('v_lshrrev_b32',g,1,vL), valu('v_lshl_add_u32',t,g,12,sT2), valu('v_and_b32',u,1,vL), valu('v_lshl_add_u32',t,u,7,t),
      salu('s_bfe_u32',sT2,sT0,0x10002), salu('s_lshl_b32',sT2,sT2,12), salu('s_and_b32',sT3,sT0,3), salu('s_lshl_b32',sT3,sT3,7), salu('s_add_u32',sT2,sT2,sT3),
      salu('s_lshl_b32',sT3,sT1,13), salu('s_add_u32',sT2,sT2,sT3), salu('s_add_u32',sT2,sT2,WS_OX),
      valu('v_and_b32',u,7,vL), valu('v_lshl_add_u32',vOP,u,9,sT2), valu('v_cmp_gt_u32','vcc',16,vL), valu('v_cndmask_b32',vOP,vOP,t), valu('v_cndmask_b32',g,u,g),
      valu('v_lshl_add_u32',g,g,2,2), valu('v_cmp_gt_u32','vcc',24,vL), valu('v_cndmask_b32',vSH,3,g))
def x_loads():
    o=[cost(gload(XR[2*q:2*q+2],vXO,sX[0:2],32*q),260) for q in range(4)]+[cost(bload(XR[8:10],vXOX,sX,0),200)]
    for q in (1,3,4): o[q].meta['bat']=True
    return o
def addr_fin():
    t,u,p,rp,a,b=vT[0],vT[1],vT[4],vT[5],vT[6],vT[3]
    lane_rp(rp,p,t)
    e(salu('s_and_b32',sT0,sW,1), salu('s_lshr_b32',sT1,sW,1), salu('s_mul_i32',sT2,sT0,20), salu('s_lshl_b32',sT3,sT1,3), salu('s_add_u32',sT2,sT2,sT3), valu('v_add_u32',a,sT2,rp),
      salu('s_mul_i32',sT2,sT0,288), salu('s_mul_i32',sT3,sT1,36), salu('s_add_u32',sT2,sT2,sT3), salu('s_add_u32',sT2,sT2,16),
      valu('v_lshrrev_b32',t,2,rp), valu('v_mul_u32_u24',t,144,t), valu('v_and_b32',b,3,rp), valu('v_add3_u32',b,b,t,sT2))
    e(salu('s_and_b32',sT0,sIDX,7), salu('s_lshl_b32',sT1,sT0,7), valu('v_lshl_add_u32',u,p,4,sT1),
      valu('v_mul_u32_u24',t,1152,a), valu('v_add_u32',vWO,t,u), valu('v_mul_u32_u24',t,1152,b), valu('v_add_u32',vWOE,t,u))
    e(salu('s_lshr_b32',sT2,sT0,1), salu('s_lshl_b32',sT2,sT2,5), salu('s_add_u32',sT2,sT2,1024), valu('v_and_b32',u,1,p), valu('v_lshl_add_u32',u,u,4,sT2), valu('v_lshrrev_b32',p,1,p),
      valu('v_mul_u32_u24',t,36,p), valu('v_add_u32',t,t,a), valu('v_mul_u32_u24',t,1152,t), valu('v_add_u32',vWX,t,u),
      valu('v_mul_u32_u24',t,p,p), valu('v_mul_u32_u24',t,t,p), valu('v_mul_u32_u24',t,72,t), valu('v_add_u32',t,t,b), valu('v_mul_u32_u24',t,1152,t), valu('v_add_u32',vWXE,t,u))
    e(*grp_ops(sT3,sSO3), salu('s_lshl_b32',sT3,sT3,2), salu('s_add_u32',sT3,sT3,sW))
    tk,g=vT[4],vT[5]
    e(valu('v_and_b32',tk,15,vL), valu('v_lshrrev_b32',g,4,vL))
    e(salu('s_mul_i32',sSC[2],sT3,TS), salu('s_mul_i32',sSO3,sT0,CS), salu('s_add_u32',sSO3,sSO3,sSC[2]), valu('v_lshl_add_u32',vPL,vL,4,sSO3))
    e(salu('s_xor_b32',sSC[0],sW,sT0), salu('s_lshl_b32',sSC[0],sSC[0],31))
    e(salu('s_lshr_b32',sSO3,sT0,1), salu('s_mul_i32',sSO3,sSO3,ES), salu('s_add_u32',sSO3,sSO3,sSC[2]), salu('s_ashr_i32',sSC[1],sSC[0],31), salu('s_andn2_b32',sSC[1],0x1f8,sSC[1]), valu('v_lshlrev_b32',t,3,vL), valu('v_and_b32',t,sSC[1],t), valu('v_add_u32',vPLX,sSO3,t))
    e(salu('s_lshl_b32',sSO3,sT3,4), valu('v_add_u32',a,sSO3,tk), valu('v_lshlrev_b32',vR2,2,a), valu('v_mul_u32_u24',a,1152,a), valu('v_lshl_add_u32',a,g,3,a),
      valu('v_add_u32',vXO,sT1,a), salu('s_or_b32',sT2,sT2,sSC[0]), valu('v_add_u32',vXOX,sT2,a))
    if not OPT['xat']: e(*x_loads())
    e(salu('s_and_b32',sSO3,sT3,1), salu('s_lshl_b32',sSO3,sSO3,4), valu('v_add_u32',a,sSO3,tk), salu('s_lshr_b32',sSC[1],sT3,1),
      salu('s_mul_i32',sSO3,sSC[1],OS), valu('v_lshl_add_u32',t,a,4,sSO3), valu('v_lshl_add_u32',vOL,g,9,t),
      salu('s_mul_i32',sSO3,sSC[1],XS), valu('v_lshl_add_u32',t,a,2,sSO3), valu('v_lshl_add_u32',vOLX,g,10,t))
    e(valu('v_and_b32',t,31,vL))
    for n in range(4): e(*base_add(sOB[n],sWS,WS_O+8192*n+4096))
    e(*base_add(S(88,2),sWS,WS_O), *base_add(S(90,2),sWS,WS_O+OS))
    e(salu('s_lshr_b32',sSO3,sT3,1), salu('s_lshl_b32',sSO3,sSO3,11), salu('s_add_u32',sSO3,sSO3,WS_F2), salu('s_and_b32',sSC[1],sIDX,3), salu('s_lshl_b32',sSC[1],sSC[1],9), salu('s_add_u32',sSO3,sSO3,sSC[1]),
      valu('v_min_u32',vPG,1,vL), valu('v_lshl_add_u32',vPG,vPG,31,sSO3))
    e(salu('s_lshl_b32',sT0,sM8,2), salu('s_add_u32',sT0,sT0,sW), salu('s_mul_i32',sT1,sT0,2*OS), salu('s_lshl_b32',sT2,sH,10), salu('s_add_u32',sT1,sT1,sT2),
      valu('v_lshl_add_u32',vOS,vL,4,sT1),
      salu('s_mul_i32',sT1,sT0,2*XS), salu('s_lshl_b32',sT2,sH,7), salu('s_add_u32',sT1,sT1,sT2), salu('s_add_u32',sT1,sT1,WS_OX),
      valu('v_lshl_add_u32',t,t,2,sT1), valu('v_lshrrev_b32',u,5,vL), valu('v_mul_u32_u24',u,XS,u), valu('v_add_u32',vOSX,u,t))

def max_ops(srcs,m,first=True):
    o=[]
    regs=[s[r] for s in srcs for r in range(16)]
    if first: o.append(valu('v_max3_f32',m,regs[0],regs[1],regs[2])); rest=regs[3:]
    else: rest=regs
    while len(rest)>=2: o.append(valu('v_max3_f32',m,m,rest[0],rest[1])); rest=rest[2:]
    if rest: o.append(valu('v_max_f32',m,m,rest[0]))
    return o
def set_shift(mx,margin):
    m,t=mx
    return [swap('v_permlane32_swap_b32',m,t), valu('v_max_f32',m,m,t), valu('v_sub_f32',m,f32(-margin) if margin else 0,m),
            valu('v_cvt_pk_bf16_f32',t,m,m), valu('v_lshlrev_b32',t,16,t), valu('v_sub_f32',t,m,t), valu('v_cvt_pk_bf16_f32',QE[1],m,t)]
def Bx(tau,buf=None): return m2b(buf or SBB[tau%3],KE[tau%4],QE,0)
def Mx(tau,x,buf=None): b=(buf or SBB[tau%3])[16*x:16*x+16]; return m32(b,KM[tau%3],QM[x],b)
def PV(tau,x,h,buf=None): return smf(OO[x],VV[tau&1][4*h:4*h+4],(buf or SBB[tau%3])[16*x+8*h:16*x+8*h+8],vIDX)
def vread(kv,WB,tau,n):
    it=kv[tau>>3]; off=it.addr-WB+10240+(tau&7)*1280
    return dsr('ds_read_b64_tr_b16',VV[tau&1][2*n:2*n+2],vVA[n],off,src=(it.name,it.blks()))
extra={}
def att_setup(ngaps,kv,WB):
    g=ngaps-OPT['at0']; d=OPT['atd']
    for k,m in enumerate((Bx(0),Bx(1),Mx(0,0),Mx(1,0),Mx(0,1),Mx(1,1))): extra[g+k*d]=[m]
    extra[g].insert(0,waitfor(vm=QM+KM[:2]+KE[:2]+[QE[0]]))
    mx=[vT[0],vT[1]]
    for x in range(2): push('ctr',g+(3+2*x)*d+7,max_ops([SBB[0][16*x:16*x+16],SBB[1][16*x:16*x+16]],mx[x]),g+(3+2*x)*d+2)
    push('ctr',g+5*d+7,set_shift(mx,MARGIN),g+5*d+2)
    for k,m in enumerate((Bx(0),Mx(0,0),Mx(0,1))): extra[g+(7+k)*d]=[m]
    assert g+9*d<ngaps-8
    tail_reads.extend(vread(kv,WB,0,n) for n in range(4))
tail_reads=[]

def attention(g0,kv,WB,wo_items):
    base=g0+100
    pipe[0]=0; pipe[1]=44
    def kread(tau):
        it=kv[tau>>3]; off=it.addr-WB+(tau&7)*1280; src=(it.name,it.blks())
        if tau<4 or not OPT['ke2']: ke=dsr('ds_read_b64',KE[tau%4],vKE,off,src=src)
        elif tau&2: ke=None
        else:
            o=(off-1280*(tau&1))//512; d=A(KE[tau&1].b,4); a=vKE1 if tau&1 else vKE
            ke=I(f'ds_read2st64_b64 {d}, {a} offset0:{o} offset1:{o+5}','dsr',a.regs(),d.regs(),src=src,private=False)
        return [dsr('ds_read_b128',KM[tau%3],vKM,off,src=src), ke]
    def flush(n,names=('ctr','epi','low','dma','ld')):
        k=0
        while k<n:
            for nm in names:
                x=head(nm,cur[0])
                if x is not None: take(nm,cur[0]); break
            else: return
            k+=1
    cur[0]=g0
    assert not fifo['ctr'] and not fifo['low'] and not fifo['ld']
    stamp('att'); note('---- attention')
    barx={7:[it.name for it in wo_items]}; f2done=[False]; wcut=[int(x) for x in OPT['wcut'].split(',')]
    vmk=(1,4) if OPT['bat'] else (1,3,4,5)
    for tau in range(64):
        n=2*tau; nx=tau<63; S=SBB[tau%3]
        if 'ast' in OPT and n in range(*map(int,OPT['ast'].split(':'))): stamp(f'slot{n}',True)
        ms=[Bx(tau+1) if nx else None, PV(tau-1,1,1) if tau else None, PV(tau,0,0), Mx(tau+1,0) if nx else None, PV(tau,0,1), Mx(tau+1,1) if nx else None, PV(tau,1,0)]
        if OPT['aord']:
            h=OPT['aord']&1
            ms=[ms[0], PV(tau-1,1,h) if tau else None, PV(tau-1,1,1-h) if tau else None, ms[3], ms[5], PV(tau,0,0), PV(tau,0,1)]
            if not nx: ms[3:]=[PV(tau,0,0), PV(tau,0,1), None, PV(tau,1,0)]
        km,ke=kread(tau+2) if tau+2<64 else (None,None)
        v=[vread(kv,WB,tau+1,z) if nx else None for z in range(4)]
        rds=[None,ke,v[0],v[1],km,v[2],v[3]]
        sg=(tau+3)//8 if (tau+3)%8==0 and tau+3<64 else None
        if sg==1 and OPT['nob1']: assert kv[2].pushed and wcut[1]==0; sg=None
        for k in range(7):
            gap=base+8*tau+(k+1 if k else 0); cur[0]=gap
            if tau==0 and k==1: flush(1000,('epi',)); e(waitfor(lg=[VV[0]]))
            if ms[k] is not None: e(ms[k])
            nsc=(0,2,2,1,2,1,2)[k] if not OPT['aord'] else (0,2,2,1,1,2,2)[k]; kb=5 if OPT['aord'] else 4
            fx=k in (2,6) or (k==kb and sg is not None)
            vmn=vm_ready(gap,1,OPT['astgap'],('st','dma','ld','low')) if (not fx and k in vmk and ms[k] is not None) else None
            if OPT['bat'] and not fx and k in vmk and ms[k] is not None:
                sv=pipe[0]; pipe[0]=0; a_=vm_ready(gap,1,1,('st',)) if (k==1 or tau==0) else None; pipe[0]=sv-OPT['aback']
                vmn=a_ or vm_ready(gap,1,1,('dma','ld','low')); pipe[0]=sv
            if vmn:
                take(vmn,gap)
                while OPT['bat'] and fifo[vmn] and fifo[vmn][0][1].meta.get('bat'): take(vmn,gap)
            else:
                if k==2: e(waitfor(lg=[VV[tau&1][4:8],KM[(tau+1)%3]])); nsc-=1
                if k==2 and tau==63 and OPT['warm']: e(*poll())
                if k==6: e(waitfor(lg=[VV[(tau+1)&1][0:4],KE[(tau+2)%4]])); nsc-=1
                if k==kb and sg is not None:
                    e(waitfor(vmtags=[kv[sg].name]+barx.get(sg,[])), barrier()); nsc-=2
                    if sg+1<8 and not kv[sg+1].pushed: push('dma',gap,kv[sg+1].mk(kv[sg+1]))
                    for it in [x for x in wo_items if not x.pushed][wcut[sg-1]:wcut[sg]]: push('dma',gap,it.mk(it))
                while nsc>0 and pull(gap,True): nsc-=1
            if rds[k] is not None: e(rds[k])
            x=head('ld',gap)
            if x is not None and x.kind=='valu': take('ld',gap)
            for r in (range(8) if k==0 else range(4*k+4,4*k+8)): e(valu(OPT['exp'],S[r],S[r]))
        if n==OPT['tatt']: push('arr',gap,touch())
        if n==2 and OPT['xat']: push('ld',gap,x_loads())
        if not fifo['st'] and not f2done[0]:
            f2done[0]=True; print('partial stores end at slot',n)
            push('st',gap+4*OPT['f2lag'],[waitfor(vmtags=['pst']), batomic(vONE,vF1,sWS,0,op='sub')])
        if n==OPT['f2poll']:
            ld=I(f'buffer_atomic_add {vPOLL}, {vPG}, {sWS}, 0 offen sc0','vld',vPOLL.regs()+vPG.regs(),vPOLL.regs(),tag=None)
            e(valu('v_mov_b32',vPOLL,0)); push('st',gap,[ld])
            t0=base+4*OPT['f2chk']
            w_=waitfor(vm=[vPOLL]); w_.meta['lag']=(ld,4*(OPT['f2chk']-OPT['f2poll']))
            push('ld',t0,[w_]+spin('f2',ld,0,OPT['f2sl'],'v_cmp_ne_u32',[f'v_mov_b32 {vPOLL}, 0']))
            ops=base_add(sPC,sWS,WS_PX+4096); nb=OPT['bat'] or 1
            for k in range(32):
                if k%8==0: ops+=base_add(sBL,sWS,WS_P+k*1024+4096)
                ops.append(gload(PART[k],vPL,sBL,(k%8)*1024-4096,flags='sc1')); ops[-1].meta['bat']=k%nb>0
                if k%2==1: ops.append(cost(gload(PARTX[k>>1],vPLX,sPC,(k>>1)*512-4096,flags='sc1'),40)); ops[-1].meta['bat']=True
            nl=0; prev=None
            for o in ops:
                if o.kind=='vld' and not (o.meta['bat'] and OPT['bat']):
                    if prev is not None: o.meta['lag']=(prev,OPT['ldmin'])
                    prev=o
                push('ld',t0+int(nl*OPT['ldgap']),[o])
                if o.kind=='vld': nl+=1
    cur[0]=base+600
    e(PV(63,1,1))
    print('att vmem slots:',' '.join(f"{'kv' if i.meta.get('tag') and i.meta['tag'][0]=='kv' else i.kind[1]}{(i.meta['at']-base)//4}" for i in P if i.kind in VM and i.meta['at']>=base))
    print('left after attention:',{k:len(v) for k,v in fifo.items()})
    assert not any(fifo.values()), 'work left after attention'

def fallback(kv,WB):
    global P
    save=P; P=[]
    pb=kv[5].addr
    a=[V(192+n) for n in range(6)]; vo=V(198); mx=[V(199),V(200)]; S=SBB[2]
    e(label('L_fb'), raw('s_waitcnt vmcnt(0) lgkmcnt(0)','misc'), raw('s_nop 15','misc'))
    for d,s in zip(a,[vKM,vKE]+vVA): e(valu('v_add_u32',d,sW5K,s))
    e(valu('v_lshlrev_b32',vo,4,vL), valu('v_mov_b32',QE[1],0), valu('v_mov_b32',mx[0],0xff800000), valu('v_mov_b32',mx[1],0xff800000))
    off=pb-WB
    for ps in range(2):
        e(salu('s_add_u32',sT0,sH,32), salu('s_mul_i32',sT0,sT0,SL), salu('s_add_u32',sT1,sT0,32*SL), salu('s_mov_b32',sT2,64), label(f'L_fbl{ps}'))
        e(salu('s_add_u32','m0',sW5K,pb), dma(vo,sWS,sT0,0,flags='sc1'), dma(vo,sWS,sT0,1024,flags='sc1'))
        if ps: e(salu('s_add_u32','m0',sW5K,pb+2560), dma(vo,sWS,sT1,0,flags='sc1'), dma(vo,sWS,sT1,1024,flags='sc1'))
        e(waitfor(vmall=True), dsr('ds_read_b128',KM[0],a[0],off), dsr('ds_read_b64',KE[0],a[1],off))
        if ps:
            for n in range(4): e(dsr('ds_read_b64_tr_b16',VV[0][2*n:2*n+2],a[2+n],off+2560))
        e(waitfor(lgall=True))
        e(Bx(0,S), Mx(0,0,S), Mx(0,1,S))
        for x in range(2):
            if ps==0: e(*max_ops([S[16*x:16*x+16]],mx[x],first=False))
            else:
                for r in range(16): e(valu('v_exp_f32',S[16*x+r],S[16*x+r]))
                for h in range(2): e(PV(0,x,h,S))
        e(raw('s_nop 15','misc'), salu('s_add_u32',sT0,sT0,1280), salu('s_add_u32',sT1,sT1,1280), salu('s_sub_u32',sT2,sT2,1), salu('s_cmp_lg_u32',sT2,0), raw(f's_cbranch_scc1 L_fbl{ps}','misc'))
        if ps==0:
            e(*set_shift(mx,0.0)); zero_o()
    e(*norm_store(0,V(116,2)), *norm_store(1,V(116,2)), waitfor(vmall=True))
    e(raw('s_nop 3','misc'), raw('s_branch L_fb_ret','misc'))
    OUT.extend(i.text for i in finalize(P,verbose=0,name='fb'))
    P=save

TT=[V(224,16),V(240,16)]
FLAG_LDS=[0]
def norm_store(x,t):
    O,T=OO[x],TT[x]
    o=[valu('v_rcp_f32',t[0],O[10]), valu('v_mov_b32',t[1],t[0]), swap('v_permlane32_swap_b32',t[0],t[1])]
    o+=[valu('v_mul_f32',T[r],t[0],O[r]) for r in range(10)]
    o+=[valu('v_cvt_pk_bf16_f32',T[d],T[2*d],T[2*d+1]) for d in range(4)]
    o+=[gstore(T[0:4],vOS,S(88+2*x,2),flags='sc1',tag='ost'), valu('v_cvt_pk_bf16_f32',T[8],T[8],T[9])]
    if x: o+=[swap('v_permlane32_swap_b32',TT[0][8],TT[1][8]), gstore(TT[0][8],vOSX,sWS[0:2],flags='sc1',tag='ost')]
    return o
def poll(r=sPV): return [raw(f's_atomic_umax {r}, {sWS[0:2]}, {sF3} glc')]
def final(g0,wo_main,wo_x):
    cur[0]=g0
    SA=V(56,20); DN=V(76,20); XF=V(96,20); tmp=V(116,12)
    e(*norm_store(0,tmp[0:2]), *norm_store(1,tmp[6:8]))
    stamp('o stored')
    fill=[]
    for x in range(2):
        s=tmp[2+x]
        fill.append(valu('v_add_f32_e64',s,f'|{OO[x][0]}|',f'|{OO[x][1]}|'))
        for r in range(2,10): fill.append(valu('v_add_f32_e64',s,s,f'|{OO[x][r]}|'))
    fill+=[valu('v_min_f32',tmp[4],tmp[2],tmp[3]), valu('v_add_f32',tmp[2],tmp[2],tmp[3]), valu('v_add_f32',tmp[3],OO[0][10],OO[1][10]), valu('v_add_f32',tmp[2],tmp[2],tmp[3]),
           valu('v_max_f32',tmp[0],tmp[0],tmp[6]), valu('v_fmac_f32',tmp[2],f32(2.0**(124-MARGIN)),tmp[0],rmw=True)]
    chk=[valu('v_cmp_nle_f32','vcc',f32(2.0**-103),tmp[4]), raw('s_cbranch_vccnz L_fb','misc',['vcc']),
      valu('v_cmp_nge_f32','vcc',f32(2.0**126) if not OPT['forcefb'] else f32(-1.0),tmp[2]), raw('s_cbranch_vccnz L_fb','misc',['vcc']), label('L_fb_ret')]
    pool_=[V(128+4*n,4) for n in range(32)]+[A(212+4*n,4) for n in range(7)]+[A(72+4*n,4) for n in range(34)]
    frs=[]; rds=[]
    order=[0,1,4,5,8,9,12,13,16,2,3,6,7,10,11,14,15,17]
    for s in order:
        for q in range(5):
            f=pool_[len(frs)%len(pool_)]; frs.append(f)
            for u in range(2): rds.append(tr_read(f,u,wo_main[s],q) if q<4 else tr_read(f,u,wo_x[s>>2],s&3))
    red=[]
    for j in range(16):
        for q in range(5):
            d=DN[4*q:4*q+4]
            red.append(m4(d,SELA,PART[16*(q>>1)+j][2*(q&1):2*(q&1)+2] if q<4 else PARTX[j],0 if j==0 else d))
    red+=[m4(XF[4*q:4*q+4],SELA,XR[2*q:2*q+2],0) for q in range(5)]
    e(waitfor(vm=PART+PARTX+[XR,vR2]))
    ri=0
    test=lambda: [waitfor(lgall=True,lgforce=True), salu('s_cmp_eq_u32',sPV,0x44444444)]
    def warm(r=sPV,tracked=False):
        if not OPT['warm']: return []
        t=vT[0]; ld=bload(vPF,t,sWS,0,flags='sc1',tag='pf')
        return [valu('v_lshrrev_b32',t,vSH,r), valu('v_not_b32',t,t), valu('v_lshl_add_u32',t,t,31,vOP), ld if tracked else raw(ld.text)]
    g,c2,ir=tmp[8],tmp[9],tmp[10]
    late_=[valu('v_mul_f32',c2,f32(-1.4426950408889634),vR2), valu('v_rcp_f32',ir,vR2),
           valu('v_bfe_u32',g,vL,4,1), valu('v_mul_u32_u24',g,24,g), valu('v_add_u32',vXO,vXO,g)]
    for k,mm in enumerate(red):
        e(mm)
        if k in (OPT['pollat'],OPT['pollat2'],OPT['pollat3']): e(*poll())
        if fill:
            e(fill.pop(0))
            if not fill: e(*chk, waitfor(lgall=True,lgforce=OPT['warm']), *warm(tracked=True), *base_add(sBL,sWS,WS_OX))
            continue
        if k==OPT['hat']: e(waitfor(vmtags=['ost']), batomic(vINC,vF3,sWS,0)); stamp('flag'); continue
        if k>=80: e(late_.pop(0)); continue
        if k%OPT['r1w']==OPT['r1w']-1: e(waitfor(lg=frs[:max(0,ri//2-OPT['r1l'])]))
        e(rds[ri]); ri+=1
    assert ri<=2*39
    stamp('ready')
    EX=[V(30+n) for n in range(13)]+[V(45+n) for n in range(5)]+[V(14),V(15)]
    fill=[]
    for f in (lambda r:valu('v_mul_f32',EX[r],c2,DN[r]), lambda r:valu('v_exp_f32',EX[r],EX[r]), lambda r:valu('v_fma_f32',EX[r],EX[r],ir,ir),
              lambda r:valu('v_rcp_f32',EX[r],EX[r]), lambda r:valu('v_mul_f32',DN[r],EX[r],DN[r])):
        fill+=[(0,[f(r)]) for r in range(20)]
    OF=[A(4*s,4) for s in range(18)]
    def gate(name,mask):
        one=bin(mask).count('1')==1
        t=lambda: [salu('s_bitcmp1_b32',sPV,mask.bit_length()-1)] if one else [salu('s_and_b32',sT1,sPV,mask), salu('s_cmp_eq_u32',sT1,mask)]
        if OPT['vp']:
            n=OPT['vp']; PL=[vT[z] for z in range(n)]
            vp=lambda z: raw(f'buffer_atomic_umax {PL[z]}, {vOP}, {sWS}, 0 offen sc0')
            y=[label(f'L_w{name}'), vp(0), raw('s_waitcnt lgkmcnt(0)')]+t()+[raw(f's_cbranch_scc1 L_g{name}')]
            for z in range(1,n): y+=[raw(f's_sleep {OPT["psleep"]}'), vp(z)]
            y+=[label(f'L_wl{name}')]
            for z in range(n): y+=[raw(f's_waitcnt vmcnt({n-1})'), valu('v_readfirstlane_b32',sPV,PL[z])]+t()+[raw(f's_cbranch_scc1 L_g{name}'), vp(z)]
        else: y=[label(f'L_w{name}')]+(poll() if OPT['pfirst'] else [])+[label(f'L_wl{name}'), raw('s_waitcnt lgkmcnt(0)')]+t()+[raw(f's_cbranch_scc1 L_g{name}')]+poll()
        y+=[salu('s_addk_i32',sT0,-1), salu('s_cmp_gt_i32',sT0,0), raw(f's_cbranch_scc1 L_wl{name}'), raw(f's_branch L_g{name}')]
        if OPT['inl']: return t()+[raw(f's_cbranch_scc1 L_g{name}')]+y[:-1]+[label(f'L_g{name}')]
        HOT.extend(finalize(y,verbose=0))
        return t()+[raw(f's_cbranch_scc0 L_w{name}',glue=True), label(f'L_g{name}')]
    ge=gate('e',0x04040404)
    ol=[]
    for n,s in enumerate(order):
        if s<16: ol.append((gate(s,4<<(2*s)) if n>8 and s%2==0 else [], gload(OF[n],vOL,sOB[s>>2],(s&3)*2048-4096,flags='sc1')))
        else: ol+=[([],gload(OF[n][r],vOLX,sBL,(s-16)*512+r*128,flags='sc1')) for r in range(4)]
    for z in range(OPT['vp']): e(valu('v_mov_b32',vT[z],0))
    e(salu('s_mov_b32',sT0,0x80000), *ge)
    stamp('ok')
    lg_=[int(x) for x in str(OPT['lgrp']).split(',')]; assert sum(lg_)==12
    for _ in range(lg_.pop(0)): e(ol.pop(0)[1])
    if OPT['rp']&1: e(*poll())
    while ri<OPT['wopre']:
        if ri%4==0: e(waitfor(lg=frs[:max(0,ri//2-4)]))
        e(rds[ri]); ri+=1
    nf=len(fill)
    while len(fill)>OPT['fillmm']:
        e(*fill.pop(0)[1])
        if (nf-len(fill)) in (OPT['lc1'],OPT['lc2']) and lg_:
            for _ in range(lg_.pop(0)): e(ol.pop(0)[1])
            if OPT['rp']&(4>>len(lg_)): e(*poll())
    assert not lg_
    stamp('seen'); note('---- o @ wo, gate, residual')
    def epi(q):
        o=[valu('v_fmac_f32',XF[r],SA[r],DN[r],rmw=True) for r in range(4*q,4*q+4)]
        o+=[valu('v_cvt_pk_bf16_f32',tmp[2*q+d],XF[4*q+2*d],XF[4*q+2*d+1]) for d in range(2)]
        return o
    def put(b): return [swap('v_permlane16_swap_b32',tmp[b],tmp[b+2]), swap('v_permlane16_swap_b32',tmp[b+1],tmp[b+3]), bstore(tmp[b:b+4],vXO,sOUT,0,16*b,flags=OPT['ofl'])]
    k=0; nt=OPT['ntail']
    for s in range(18-nt):
        assert ri>=10*s+10
        e(waitfor(vm=[OF[s]],lg=frs[5*s:max(5*s+5,ri//2-3)]))
        for q in range(5):
            e(m16(SA[4*q:4*q+4],frs[k],OF[s],0 if s==0 else SA[4*q:4*q+4])); k+=1
            if q==0 and ol and s>=OPT['ldel'] and ol[0][0]:
                e(*ol[0][0])
                if OPT.get('mst'): stamp(f'g{s}')
                continue
            if q==0 and s in (9,12) and OPT.get('mst'): stamp(f's{s}')
            if q==1 and ol and s>=OPT['ldel']: e(ol.pop(0)[1]); continue
            if q==3 and str(s) in str(OPT['mpoll']): e(*poll())
            n=0
            while n<(1 if ri>=min(180,OPT['rlead']+int(k*OPT['rrate']/100)) else 2) and ri<len(rds) and ri//2-len(pool_)<k-1: e(rds[ri]); ri+=1; n+=1
            while n<2 and fill: e(*fill.pop(0)[1]); n+=1
    assert not fill and not ol and ri==len(rds),(ri,len(fill))
    ep=[]
    for z,q in enumerate((4,0,1,2,3)):
        for s in range(18-nt,18):
            e(waitfor(vm=[OF[s]],lg=[frs[5*s+q]]), m16(SA[4*q:4*q+4],frs[5*s+q],OF[s],SA[4*q:4*q+4])); k+=1
            n=0
            while ep and n<2 and ep[0][0]<=k:
                o=ep.pop(0)[1]; e(o); n+=1 if o.kind!='vst' else 2
        o=epi(q)+([bstore(tmp[8:10],vXOX,sOUT,0,flags=OPT['ofl'])] if q==4 else put(2*q-2) if q&1 else [])
        ep+=[(k+3,x) for x in o]
    stamp('mm done')
    for _,o in ep: e(o)

def name_regs():
    for k,v in list(globals().items()):
        if k[0]=='v' and k not in ('vT','vL','vPF','vST','vCV'):
            def nm(x,n):
                if isinstance(x,R): x.name=n
                elif isinstance(x,list):
                    for z,y in enumerate(x): nm(y,f'{n}{z}')
            nm(v,k)
def main():
    name_regs()
    build_ffn()
    ngaps,bars,free=plan()
    L=OPT['look']
    best=None
    for a0 in range(0,NB-14):
        fr=sorted((max(free[b] for b in range(a0+5*k,a0+5*k+5)),k) for k in range(3))
        key=(fr[0][0],fr[1][0])
        if best is None or key<best[0]: best=(key,a0,[k for _,k in fr])
    _,a0,order=best; WB=a0*4096
    print('attention window',best,'ngaps',ngaps,{k:groups[v].start for k,v in marks.items()})
    kv=[kv_item(s) for s in range(8)]
    for s,it in enumerate(kv): it.addr=(a0+5*order[s%3])*4096
    rest=sorted([b for b in range(NB) if not a0<=b<a0+15],key=lambda b:free[b])
    print('free',[free[b] for b in range(NB)])
    wo_main=[blk_item(('wo',s),vWO if s<16 else vWOE,sWO,36*s*1152 if s<16 else 72*(s-16)*1152) for s in range(18)]
    wo_x=[blk_item(('wx',n),vWX if n<4 else vWXE,sWO,144*n*1152 if n<4 else 0,buf=(n==4),c=320) for n in range(5)]
    for it,b in zip(wo_main+wo_x,rest): it.addr=b*4096
    FLAG_LDS[0]=rest[23]*4096

    def pst(name):
        if 'pst' in OPT: stamp(name,True)
    prologue(); pst('karg')
    pre0=[it for it in items if it.early==-3000]; pre1=[it for it in items if it.early==-2000]
    dq=[xdma(tt,l) for tt in range(2) for l in range(9)]+[it.mk(it) for it in pre0+pre1]
    for _ in range(OPT['x0n']): e(*dq.pop(0))
    pst('x0 issued')
    xr=[vM[0],vR[1]]; t,u=vT[2],vT[3]
    DT=[V(140+8*n,8) for n in range(3)]+[V(180,8)]; CM=V(164,4); SUM=V(172,4); ONE4=V(176,4)
    prologue2()
    e(valu('v_and_b32',t,15,vL), valu('v_lshrrev_b32',u,1,t), valu('v_lshlrev_b32',t,7,t), valu('v_add_u32',t,sW18K,t),
      valu('v_lshrrev_b32',xr[0],4,vL), valu('v_xor_b32',xr[0],xr[0],u), valu('v_xor_b32',xr[1],4,xr[0]),
      valu('v_lshl_add_u32',xr[0],xr[0],4,t), valu('v_lshl_add_u32',xr[1],xr[1],4,t))
    for d in range(4): e(valu('v_mov_b32',ONE4[d],sONES))
    with collect() as ao:
        e(*sel_ops(t,u))
        addr_pf(); addr_early(); addr_qk()
        e(valu('v_mov_b32',vONE,1))
        if OPT['split']:
            e(valu('v_min_u32',vCA,1,vL), valu('v_mul_u32_u24',vCA,LDS_OOB-39*4096,vCA), valu('v_add_u32',vCA,39*4096,vCA), valu('v_mov_b32',t,4*len([b for b in bars if b>=SIG])), dsw('ds_write_b32',vCA,t))
    for z in range(OPT['apre']):
        if z==OPT['amid']:
            for _ in range(OPT['xmn']): e(*dq.pop(0))
        e(ao.pop(0))
    pst('pre')
    for _ in range(OPT['x1n']): e(*dq.pop(0))
    for _ in range(OPT['tpre']): e(*touch())
    nx=len([o for o in dq if o[-1].meta['tag'][0]=='x'])
    if OPT['pf']:
        o=pf_gu(0)+(pf_gu(1) if OPT['pfn']>1 else [])+(pf_q() if OPT['pfn']>2 else [])
        k=nx+OPT['pfpos']
        if OPT['pfpos']<0: dq[k-1]=dq[k-1][:-1]+o+dq[k-1][-1:]
        else: dq.insert(k,o)
    e(raw('s_waitcnt lgkmcnt(0)','misc'))
    if OPT['tlb'] and OPT['tlate']: e(raw('s_load_dword s83, s[80:81], s82','misc'))
    pst('addr')
    R0=[XC0[4*s_:4*s_+4] for s_ in range(18)]; X1=[XC1[4*s_:4*s_+4] for s_ in range(18)]
    def xread(tt,dst,l):
        return [waitfor(vmtags=[('x',tt,l)])]+[dsr('ds_read_b128',dst[s],xr[s&1],l*2048,src=(('x',tt,l),list(range(18*tt,18*tt+18))),private=True) for s in (2*l,2*l+1)]
    cq=[]; nm=[0]; nblk=[0]; pre_=[]
    def mm(m,extra=()):
        e(m); nm[0]+=1
        if pre_: e(pre_.pop(0))
        if extra: e(*extra); return
        k=0
        while cq and k<2 and cq[0][0]<=nm[0]-OPT['cage']: e(cq.pop(0)[1]); k+=1
        while ao and k<2: e(ao.pop(0)); k+=1
    def stats(tt,fr,l,nvm,lim=99):
        ms=[]
        for s_ in (2*l,2*l+1): ms+=[m16(SUM,ONE4,fr[s_],0 if s_==0 else SUM), m16(GR[tt],fr[s_],fr[s_],0 if s_==0 else GR[tt])]
        for h in range(2):
            o=[]
            if dq and h<nvm and nblk[0]<min(lim,OPT['nblk']):
                o=dq.pop(0)
                if o[-1].meta['tag'][0] not in 'xp': nblk[0]+=1
            mm(ms[2*h],[x for x in o if x.kind=='salu']); mm(ms[2*h+1],[x for x in o if x.kind!='salu'])
    nc=[0]
    def centre(src,dst,after=(),ex=((),())):
        d=DT[nc[0]%4]; nc[0]+=1
        while any(set(c.rd)&set(d.regs()) for _,c in cq): e(cq.pop(0)[1])
        for h in range(2):
            mm(m4(d[4*h:4*h+4],SELA,src[2*h:2*h+2],CM),ex[h])
            for z in range(2): cq.append((nm[0],valu('v_cvt_pk_bf16_f32',dst[2*h+z],d[4*h+2*z],d[4*h+2*z+1])))
        for x in after: cq.append((nm[0],x))
    def mean(tt):
        dst=vM[1] if tt else t
        e(valu('v_mul_f32',MEAN[tt],f32(1/576),SUM[0]), valu('v_cvt_pk_bf16_f32',dst,MEAN[tt],MEAN[tt]), valu('v_lshlrev_b32',dst,16,dst))
        for d in range(4): e(valu('v_xor_b32',CM[d],0x80000000,dst))
    for l in range(10):
        if l<9: e(*xread(0,R0,l))
        if l==0: e(*dq.pop(0))
        for _ in range(OPT['afill'] if l<9 else 999):
            if ao: e(ao.pop(0))
        if l>0:
            e(waitfor(lg=R0[2*l-2:2*l])); stats(0,R0,l-1,int(str(OPT.get('w1','x111111111'))[l]),len(pre0))
        if str(l) in str(OPT.get('tch','x135')): e(*touch())
        if l==OPT['brl']: e(raw('s_branch L_main','misc'), label('L_exit'), raw('s_endpgm'), I('.p2align 12','comment'), label('L_main'))
        pst(f'x0 rd {l}')
    stamp('x0 read')
    e(valu('v_add_u32',xr[0],73728,xr[0]), valu('v_add_u32',xr[1],73728,xr[1]))
    e(*xread(1,X1,0)); mean(0); pst('stat0')
    for l in range(9):
        for s_ in (2*l,2*l+1): centre(R0[s_],X0[s_],to_acc(s_) if s_>=NV0 else ())
        if l<8: e(*xread(1,X1,l+1))
        if l==OPT['barl']: e(barrier())
        e(waitfor(lg=X1[2*l:2*l+2])); stats(1,X1,l,int(str(OPT.get('w2','x111122222'))[l+1]),99 if l>=OPT['barl'] else len(pre0))
        pst(f'x1 rd {l}')
    while cq: e(cq.pop(0)[1])
    mean(1)
    reads=[f(it) for g in groups[:4] for it,f in g.rd][:L]; nb_=(L+1)//2+1
    n0=OPT['n0']
    for s_ in range(n0):
        ex=((),())
        if s_==n0-nb_: ex=((waitfor(vmtags=[it.name for it in items if it.bar==-L]), barrier()),()); stamp('x1 read'); pst('bar1')
        if s_>n0-nb_: pre_[:]=[reads.pop(0) for z in range(2) if reads]
        centre(X1[s_],X1[s_],ex=ex)
    assert not reads
    while cq: e(cq.pop(0)[1])
    e(waitfor(lg=groups[0].fr)); pst('go')
    for s_ in range(n0,18): push('ctr',0,centre_ops(X1[s_],1))
    for s_ in range(NV0): push('ctr',0,to_acc(s_))
    for o in dq: push('dma',-1,o)
    mx_=-1
    for it in items:
        mx_=max(mx_,it.early)
        if it.early>-2000: push('dma',it.early,it.mk(it),mx_)
    st=lambda k:groups[marks[k]].start
    def low(gap,f,*a):
        with collect() as o: f(*a)
        push('low',gap,o,gap)
    low(st('c0')+200,var_ops,0); low(st('c0')+200,var_ops,1)
    TCH=[(int(g_),touch()) for g_ in str(OPT['tat']).split(',') if int(g_)>=0]
    low(st('c1'),addr_mid); low(st('c1'),addr_mid2); low(st('qkv'),addr_pfd)
    low(st('c2')+200,addr_att,WB); low(st('c2')+200,addr_lds,WB)
    pt=[int(x) for x in OPT['pft'].split(',')]
    for k,(g_,o) in enumerate(zip(pt,[pf_gu(1) if OPT['pfn']<2 else [],pf_q() if OPT['pfn']<3 else [],pf_gu(2),pf_gu(3),pf_gu(4),pf_d(0),pf_d(1),pf_d(2)])):
        if o and (k==7 or pt[k+1]!=g_): o[-1].meta['cost']+=OPT['pfx']
        push('ld',g_,o,g_)
    low(st('c3'),pf_o)
    b1=[b for b in bars if b>st('c3')+60][0]
    bar_extra[b1]=['qkvst']
    ar=[salu('s_and_b32',sJH,S(2),1), salu('s_lshl_b32',sJH,sJH,7), salu('s_mov_b32',sJ128,1), salu('s_cmp_lg_u32',sW,0), raw('s_cbranch_scc1 L_arr','misc'),
        raw(f's_atomic_add {sJ128}, {sDBG[0:2]}, {sJH}','misc',sJ128.regs()+sJH.regs()), label('L_arr')]
    for x in ar[3:6]: x.meta['glue']=True
    for g_,o in sorted(TCH+[(b1,ar)],key=lambda z:z[0]): push('arr',g_,o,g_)
    ARR.append(ar[5])
    if OPT['stop']!='down':
        d0=st('down')
        att_setup(ngaps,kv,WB); bar_extra[bars[-1]]=[kv[0].name]+([kv[1].name] if OPT['nob1'] else [])
        low(b1,addr_z); low(b1,addr_fin); low(max(d0+400,mx_+1),addr_op); extra_zero(ngaps)
        ld=bload(vPOLL,vZ,sDBG,0,flags='sc1')
        push('ld',d0+OPT['f1poll'],[ld],d0+OPT['f1poll'])
        with collect() as o: qk_loads(WB)
        w_=waitfor(vm=[vPOLL]); w_.meta['lag']=(ld,100)
        push('ld',d0+OPT['f1poll'],[w_]+spin('f1',ld,128,40)+o,d0+OPT['f1poll'])
        for it in kv[:3]+(wo_main+wo_x)[:OPT['wob']]:
            early=max(free[b] for b in it.blks())
            assert early>d0+300
            if early<LATE: push('dma',early,it.mk(it),ngaps-1); it.pushed=True
    for k_,t_ in (('c0','gate/up columns 0..63'),('c1','gate/up columns 64..127'),('qkv','q, k, v'),('c2','gate/up columns 128..191'),('c3','gate/up columns 192..255'),('half','gate/up last 32 columns'),('down','down projection')): PH[st(k_)]='---- '+t_
    emit_backbone(bars,{groups[v].start:k for k,v in marks.items() if k in ('c0','qkv','down')})
    qs=[i.meta['at'] for i in P if i.meta.get('tag')=='qkvst']; assert len(qs)==12 and max(qs)<b1-SIG,(qs,b1)
    print('arrival at',ARR[0].meta['at'],'poll at',ld.meta['at'])
    stamp('down end')
    if OPT['stop']=='down':
        for nm in ('epi','st','low','dma'):
            for af,o in fifo[nm]: e(o)
    else:
        attention(ngaps,kv,WB,wo_main+wo_x)
        stamp('att end')
        final(ngaps+1000,wo_main,wo_x)
        fallback(kv,WB)
    finish()

def sizes(lines):
    import subprocess, re
    uniq=sorted(set(lines))
    src='.amdgcn_target "amdgcn-amd-amdhsa--gfx950"\n.text\nLX:\n'+'\n'.join(re.sub(r'L_codeend-L_pc-4','0x12345',re.sub(r'(s_branch|s_cbranch\w+) \w+',r'\1 0',u)) for u in uniq)+'\n'
    open('_sz.s','w').write(src)
    r=subprocess.run(['llvm-mc','-triple=amdgcn-amd-amdhsa','-mcpu=gfx950','-show-encoding','_sz.s'],capture_output=True,text=True)
    assert r.returncode==0,r.stderr[:2000]
    enc=re.findall(r'encoding: \[([^\]]*)\]',r.stdout)
    assert len(enc)==len(uniq),(len(enc),len(uniq))
    return {u:len(x.split(',')) for u,x in zip(uniq,enc)}
PGAT=[]; NAL=[0,0]
def page_stubs(out):
    sz=sizes([i.text for i in out if i.kind not in ('label','comment')])
    k0=[k for k,i in enumerate(out) if i.text=='L_main:'][0]
    print('entry part bytes',sum(sz.get(i.text,0) for i in out[:k0]))
    res=out[:k0+1]; off=0; pg=0; prev=None; forced=False
    npg=4*ntouch[0]
    for k in range(k0+1,len(out)):
        i=out[k]
        if pg<npg and off>=4096*pg and not (prev is not None and prev.meta.get('glue')):
            good=prev is not None and prev.kind=='mfma' and i.kind in ('dsr','valu','trans')
            if good or off-4096*pg>=40 or pg==0 or forced:
                res+=[label(f'L_pg{pg}'), raw(f's_cbranch_execz L_tr{pg//4}')]; off+=4; PGAT.append((pg,i.meta.get('at'))); pg+=1
        if OPT['al8'] and off%8==4 and sz.get(i.text,0)==8 and res[-1] is prev and sz.get(prev.text,0)==4:
            run=0
            for j in out[k:]:
                if j.kind in ('label','comment'): continue
                if sz.get(j.text,0)!=8: break
                run+=1
            at=i.meta.get('at',0); dense=at<0 or at>=3000
            op=prev.text.split()[0]
            if run>=OPT['al8'] and prev.kind in ('valu','trans') and op in ('v_mul_f32','v_max_f32','v_add_f32','v_sub_f32','v_mov_b32','v_lshlrev_b32','v_exp_f32','v_rcp_f32','v_add_u32','v_and_b32','v_xor_b32','v_min_f32','v_fmac_f32','v_lshrrev_b32'):
                res[-1]=I(prev.text.replace(op,op+'_e64',1),prev.kind); off+=4; NAL[0]+=1
            elif run>=8 and dense and OPT['aln'] and not prev.meta.get('glue'): res.append(raw('s_nop 0')); off+=4; NAL[1]+=1
        res.append(i); off+=sz.get(i.text,0)
        if i.text=='.p2align 12': off=-(-off//4096)*4096; forced=True; continue
        if i.kind not in ('label','comment'): prev=i
    print('main part bytes',off,'pages touched',pg,'of',-(-off//4096))
    print('page starts',PGAT,'aligned',NAL)
    while pg<npg: OUT.extend([f'L_pg{pg}:',f's_branch L_tr{pg//4}']); pg+=1
    return res
DOC=""";
; out = x + (MHA(LN(x)) @ wo) * silu(ReGLU(LN(x)))      one persistent launch, one workgroup (4 waves, 512 registers) per CU
; The instruction stream is written out in full by a generator script; every wave runs the same stream.
;
; 1. LayerNorm: 128 rows per workgroup, 32 per wave, kept in registers as MFMA B operands. Row sums and sums of squares come
;    from MFMAs; the rows are centred, 1/sd is applied later (q,k,v when they are written, down before the gate).
; 2. gate/up (288 columns of F per workgroup), q,k,v (108 columns) and down (K = those 288 columns): weights stream through an
;    LDS ring (LDS-DMA, transposing reads). h = relu(gate)*up stays in registers; q,k,v and the bf16 partial sums of down go
;    to d_ws with write-through stores.
; 3. attention: one head x 256 queries per workgroup. S^T = K Q^T with the softmax shift folded in as two extra K slots;
;    P = exp2(S^T); O^T and the row sums accumulate through the sparse MFMA, which picks the upper halves of the fp32 P.
;    Shift = (maximum over the first 64 keys) + 90. Softmax does not depend on the shift unless something over- or
;    underflows, so the result is checked (row sum in [2^-92, 2^126], O finite and above 2^-103); a wave that fails the check
;    repeats its rows with the true maximum over all keys (L_fb).
; Loads into a255 are prefetches. The EXEC=0 hops to the L_pg labels only pull the first line of a code page into the I-cache.
; Hand-offs between workgroups: stores are drained (vmcnt) before a counter is touched; the counters in d_ws are reset by this
; launch before the d_debug counter that everyone passes first. Every wait is bounded.
"""
def finish():
    cur[0]=10**7
    if OPT['stamps']:
        e(raw('s_waitcnt lgkmcnt(0)','misc'), waitfor(vmall=True))
        stamp('drained'); e(raw('s_waitcnt lgkmcnt(0)','misc'))
        n=nstamp[0]
        for k in range(max(0,n-7),n): e(raw(f'v_writelane_b32 v13, s{64+2*(k%7)}, {k}','misc'))
        if 'padto' in OPT:
            e(raw('s_nop 1','misc'), raw(f'v_readlane_b32 s46, v13, {OPT["padto"]}','misc'), raw('s_nop 3','misc'))
            e(salu('s_add_u32',sT0,sT0,10000), label('L_pad'), raw('s_memrealtime s[98:99]','misc'), raw('s_waitcnt lgkmcnt(0)','misc'), salu('s_sub_u32',sT1,S(98),sT0), salu('s_cmp_lt_i32',sT1,0), raw('s_cbranch_scc1 L_pad','misc'))
        else:
            e(salu('s_lshl_b32',sT0,S(2),2), salu('s_add_u32',sT0,sT0,sW), salu('s_lshl_b32',sT0,sT0,8), salu('s_add_u32',sT0,sT0,WS_STAMP))
            e(valu('v_lshlrev_b32',V(1),2,vL), bstore(vST,V(1),sWS,sT0))
    check_order(P); check_roles(P)
    check_init(P,['v0','v13','s2','s46','s47','s82','s83']+[r for x in (sX,sWQ,sWO,sWG,sWU,sWD,sOUT,sDBG,sWS) for r in x[0:2].regs()])
    out=finalize(P,verbose=OPT['v'],name='main')
    out=page_stubs(out+[raw('s_endpgm'),I('.p2align 12','comment')]+HOT)
    hdr=open('recurrent_scan__mha_block__glu_gated_reglu__prompt.s.ref').read().split('; Override launch')[0]
    txt=hdr+'; @launch grid=(256,1,1) block=(256,1,1) lds=163840\n'+DOC+'.amdgcn_target "amdgcn-amd-amdhsa--gfx950"\n.text\n'
    txt+=f'.globl {NAME}\n.p2align 12\n.p2align 8\n.type {NAME},@function\n{NAME}:\n'
    txt+='\n'.join(i.text for i in out)+'\n'+'\n'.join(OUT)+'\ns_endpgm\nL_codeend:\n'
    txt+=f'''.section .rodata,"a"
.p2align 6
.amdhsa_kernel {NAME}
  .amdhsa_next_free_vgpr 512
  .amdhsa_next_free_sgpr 102
  .amdhsa_accum_offset 256
  .amdhsa_group_segment_fixed_size 0
  .amdhsa_kernarg_size 80
  .amdhsa_user_sgpr_count 2
  .amdhsa_user_sgpr_kernarg_segment_ptr 1
  .amdhsa_system_sgpr_workgroup_id_x 1
  .amdhsa_float_denorm_mode_32 {OPT.get('dn',3)}
.end_amdhsa_kernel
'''
    open(sys.argv[1],'w').write(txt)
    print('bytes',len(txt))
main()
```

```python
import sys, struct, contextlib
from asmlib import *

OPT=dict(stop='', stamps=0, pf=1, dmagap=3, look=14, split=0, stper=1, qstper=2, xat=1, stgap=29, n0=14, v=1, forcefb=0, astgap=6, f2lag=10, f2poll=58, f2chk=64, ldgap=4, dbgout=0, opf=-1, ot=1, ofx='', al8=0, aln=0, r1w=4, r1l=4, amid=60, xmn=2, tpre=1, tlate=0, wsp=8, nob1=1, aback=100, bat=0, bl=22, cs=256, es=64, ts=2304, os=264, xs=33, sl=640, par=0, cage=3, exp='v_exp_f32', aord=0, flip=1, snake=1, balone=2, nosc=1, lc1=36, lc2=64, vp=0, f2sl=2, pfe=0, aint='x2', ke2=1, bint=4, apool=0, ap0=10, tatt=50, pfn=1, barl=4, brl=8, lgm=1, pfirst=0, rp=7, inl=0, pollat3=-1, mpoll='x', np2_=1, lgrp='6,3,3', ntail=3, ldel=0, warm=0, np2=1, xsh=9, gst_=4096, pfl='sc1', ffl='sc1', pevery=2, lookb=16, nlook=2, npc=2, pollat2=-1, frx=0, sprio=1, w3=1, snop=0, vmpat=0, hat=60, chk0=0, px=0, wcut='0,0,3,8,13,18,23,23', wob=23, ldmin=4, at0=290, atd=29, tat=-1, flagat=60, pollat=10, forceredo=0, lp1=20, lp2=70, nol=10, fsh=2, npoll=2, psleep=1, wopre=100, fillmm=20, rlead=100, rrate=120, ofl='sc1', apre=130, x1n=1, afill=10, tlb=1, pfpos=6, pft='100,190,280,700,800,1060,1110,1112', swp=1, pfx=300, chain=6, qch=4, c0ch=3, touch=1, x0n=2, nblk=14, f1poll=40, qstgap=8, back=80, pfc=1, bartr=0)
for a in sys.argv[2:]:
    k,v=a.split('='); OPT[k]=int(v) if v.lstrip('-').isdigit() else v
NAME='recurrent_scan__mha_block__glu_gated_reglu__prompt_kernel'

WS_QKV=0; SL=OPT['sl']*128
CS=OPT['cs']*128; TS=OPT['ts']*128; ES=OPT['es']*128; assert CS>=32768 and ES>=8192 and TS>=8*CS+4*ES
WS_P=OPT['wsp']<<20; WS_PX=WS_P+8*CS; WS_O=0x2C80000 if OPT['wsp']==8 else 0x2800000; WS_OX=0x2C00000; OS=OPT['os']*128; XS=OPT['xs']*128; WS_F3=0x2EA0000; WS_R2=0x2EC0000; WS_F2=0x2ED0000; WS_STAMP=0x2F00000
assert OPT['wsp']!=8 or (WS_P+128*TS<=WS_OX and WS_OX+64*XS<=WS_O and WS_O+64*OS<=WS_F3)
OOB=0x80000000
LDS_OOB=0x30000
def f32(x): return struct.unpack('<I',struct.pack('<f',x))[0]
QSCALE=18**-0.5*1.4426950408889634
MARGIN=float(OPT.get('margin',90))

sX,sWQ,sWO,sWG,sWU,sWD,sOUT,sDBG,sWS=[S(4+4*n,4) for n in range(9)]
sW,sW1K,sI,sJ,sH,sIDX,sT0,sT1,sSO,sSO2=[S(40+n) for n in range(10)]
sLO,sHI,sONES,sW7K,sW5K=[S(50+n) for n in range(5)]
sSC=[S(55),S(56),S(57)]
sW18K,sJ1,sXC,sM8,sT2,sT3=[S(58+n) for n in range(6)]
sJ128,sJH=S(3),S(94); sSO3=S(95); sXP,sXX=S(92),S(93); sF3,sPV,sPV2=S(79),S(78),S(53)
sBD,sBL,sPC=S(96,2),S(98,2),S(100,2)
nstamp=[0]
def stamp(name,fine=False):
    if not OPT['stamps']: return
    if OPT.get('few') and name not in ('start','c0','down','down end','att end','drained'): return
    if ('gst' in OPT or 'ast' in OPT or 'pst' in OPT) and not fine and name!='start': return
    n=nstamp[0]; nstamp[0]+=1
    assert n<64
    r=64+2*(n%7)
    if n>=7: e(raw(f'v_writelane_b32 v13, s{r}, {n-7}','misc'))
    e(raw(f'{"s_memrealtime" if OPT["stamps"]==1 else "s_memtime"} s[{r}:{r+1}]','misc'))
    print('stamp',n,name)

vL=V(0)
vT=[V(1+n) for n in range(8)]
vR=[V(9),V(10)]
vM=[V(11),V(12)]
vPF=A(255)
vST=V(13)
vGF,vGH,vDF,vDH=[V(14+n) for n in range(4)]
vTR=[[V(18+3*q+n) for n in range(3)] for q in range(4)]
vQK=[V(30+n) for n in range(7)]
vQM=[V(37+n) for n in range(3)]; vQE=[V(40+n) for n in range(3)]
vSM,vSE0,vSE1,vSCX=[V(43+n) for n in range(4)]
vPS,vPX=V(47),V(48)
vF1,vONE=V(49),V(50)
vPG,vF3,vPOLL=V(51),V(52),V(53)
vX=[V(168+n) for n in range(4)]
XC1=V(56,72)
BANK=[V(128,64),V(192,64)]
XC0=A(0,72); HH=A(72,72); FR=A(144,64)
vKM,vKE=V(30),V(31); vVA=[V(32+n) for n in range(4)]
vKV,vWO,vWOE,vWX,vWXE=[V(36+n) for n in range(5)]
vPL,vPLX,vOL,vOLX,vOS,vOSX=[V(41+n) for n in range(6)]
vIDX,vF3L=V(54),V(55)
vXO,vXOX,vR2,vZ=V(11),V(12),V(9),V(10)
QE=V(14,2)
QM=[A(0,4),A(4,4)]
OO=[V(128,16),V(144,16)]
sOB=[S(80+2*n,2) for n in range(4)]
KM=[A(40+4*n,4) for n in range(3)]; KE=[A(52,2),A(56,2),A(54,2),A(58,2)]; vKE1=V(16)
VV=[A(8,8),A(16,8)]
XR=A(240,10)
PART=[A(60+4*n,4) for n in range(32)]
PARTX=[A(188+2*n,2) for n in range(10)]+[A(24+2*n,2) for n in range(6)]
SBB=[V(192,32),V(224,32),V(160,32)]

P=[]
cur=[-10**6,0]
sink=[None]
def setseq(i,gap=None):
    if 'seq' not in i.meta:
        cur[1]+=1; i.meta['seq']=(cur[0] if gap is None else gap,cur[1])
    return i
def e(*x):
    for i in x:
        if sink[0] is not None: sink[0].append(i)
        else: P.append(setseq(i)); i.meta['at']=cur[0]
@contextlib.contextmanager
def collect():
    o=[]; old=sink[0]; sink[0]=o
    yield o
    sink[0]=old
ARR=[]
fifo=dict(arr=[],dma=[],st=[],ld=[],ctr=[],epi=[],low=[])
def push(q,after,ops,logical=None):
    for o in ops: fifo[q].append((after,setseq(o,logical)))
def note(*t):
    for x in t: e(I('; '+x,'comment'))
def masked(dst,val,cmpop,a,b,tmp):
    e(valu(cmpop,'vcc',a,b), valu('v_mov_b32',tmp,OOB), valu('v_cndmask_b32',dst,tmp,val))

def prologue():
    e(raw(f's_load_dwordx2 {sX[0:2]}, s[0:1], 0','misc'), salu('s_cmp_ge_u32',S(2),256), raw('s_cbranch_scc1 L_exit','misc'))
    stamp('start')
    e(valu('v_lshrrev_b32',vT[0],6,V(0)), valu('v_and_b32',vL,63,V(0)))
    e(salu('s_and_b32',sXC,S(2),7), salu('s_lshr_b32',sIDX,S(2),3))
    pf_code()
    e(valu('v_readfirstlane_b32',sW,vT[0]))
    lg=OPT['lgm']
    e(salu('s_lshr_b32',sM8,sIDX,2), salu('s_lshr_b32',sI,sIDX,lg+1), salu('s_lshl_b32',sI,sI,lg), salu('s_and_b32',sT2,sXC,(1<<lg)-1), salu('s_add_u32',sI,sI,sT2))
    if OPT['tlb']:
        a,b=S(82),S(83)
        e(salu('s_and_b32',a,sIDX,3), salu('s_lshl_b32',sT1,a,3), salu('s_bitcmp1_b32',sIDX,2), raw('s_cselect_b32 s83, 0, 0x10103840','salu'), raw('s_cselect_b32 s46, 0x16100800, 0','salu'),
          salu('s_add_u32',sT0,sT0,0x01000000), salu('s_lshr_b32',b,b,sT1), salu('s_and_b32',b,b,0xff), salu('s_sub_u32',b,72,b), salu('s_lshr_b32',sT1,sT0,sT1), salu('s_and_b32',sT1,sT1,0xff))
        e(salu('s_min_u32',a,a,2), salu('s_lshl_b32',sT0,sW,3), salu('s_add_u32',sT0,sT0,32), salu('s_cmp_eq_u32',sW,3), raw('s_cselect_b32 s83, s83, s46','salu'), raw('s_cselect_b32 s82, s47, s82','salu'),
          raw('s_load_dwordx2 s[80:81], s[0:1], s83','misc'), salu('s_lshl_b32',a,a,21), salu('s_lshl_b32',sT0,S(2),7), salu('s_add_u32',a,a,sT0))
    e(salu('s_mul_i32',sW18K,sW,18432))
    vx0,vx1,row,t=vX[0],vX[1],vT[2],vT[3]
    e(salu('s_lshl_b32',sT2,sI,2), salu('s_add_u32',sT2,sT2,sW), salu('s_lshl_b32',sT2,sT2,5))
    e(valu('v_lshrrev_b32',row,3,vL), valu('v_lshrrev_b32',t,4,vL), valu('v_and_b32',vx0,7,vL), valu('v_xor_b32',vx0,vx0,t),
      valu('v_xor_b32',vx1,4,vx0), valu('v_add_u32',t,sT2,row), valu('v_mul_u32_u24',t,1152,t),
      valu('v_lshl_add_u32',vX[2],vx0,4,t), valu('v_lshl_add_u32',vX[3],vx1,4,t), valu('v_add_u32',vX[3],8*1152-1024,vX[3]),
      valu('v_add_u32',vx0,1920,vX[2]), valu('v_add_u32',vx1,1920,vX[3]))
    e(salu('s_lshr_b32',sJ,sXC,lg), salu('s_lshl_b32',sJ,sJ,lg+1), salu('s_and_b32',sT3,sIDX,(2<<lg)-1), salu('s_add_u32',sJ,sJ,sT3), salu('s_and_b32',sJ1,sJ,1))
    e(salu('s_mul_i32',sSO2,sJ1,18432*OPT['swp']))
    if OPT['px']:
        n=OPT['px']
        e(salu('s_mul_i32',sT0,sT2,1152), salu('s_and_b32',sT1,sJ,288//n-1), salu('s_mul_i32',sT1,sT1,n*128), salu('s_add_u32',sT0,sT0,sT1), valu('v_lshl_add_u32',vT[4],vL,7,sT0))
    e(raw('s_waitcnt lgkmcnt(0)','misc'))
    if OPT['px']:
        n=OPT['px']
        m=(1<<min(n,36))-1
        e(raw(f's_mov_b32 exec_lo, {hex(m&0xffffffff)}','salu'), raw(f's_mov_b32 exec_hi, {m>>32}','salu'), gload(vPF,vT[4],sX[0:2],tag='pf'))
        if n==72: e(valu('v_add_u32',vT[4],36*128,vT[4]), gload(vPF,vT[4],sX[0:2],tag='pf'))
        e(raw('s_mov_b64 exec, -1','salu'))
    e(salu('s_sub_u32',sBL[0],sX[0],1920), salu('s_subb_u32',sBL[1],sX[1],0), salu('s_add_u32',sBD[0],sBL[0],sSO2), salu('s_addc_u32',sBD[1],sBL[1],0))
def prologue2():
    for srd,off in ((sWG,32),(sWU,40),(sWQ,8),(sWO,16),(sWD,48),(sOUT,56),(sDBG,64),(sWS,72)): e(raw(f's_load_dwordx2 {srd[0:2]}, s[0:1], {off}','misc'))
    if OPT['tlb'] and not OPT['tlate']: e(raw('s_load_dword s83, s[80:81], s82','misc'))
    e(salu('s_sub_u32',sSO2,18432,sSO2), salu('s_add_u32',sBL[0],sBL[0],sSO2), salu('s_addc_u32',sBL[1],sBL[1],0))
    e(salu('s_mul_i32',sXP,sJ1,OPT['swp']*TS), salu('s_sub_u32',sXX,TS,sXP))
    e(salu('s_lshl_b32',sH,sXC,2), salu('s_and_b32',sT3,sIDX,3), salu('s_add_u32',sH,sH,sT3))
    e(salu('s_lshl_b32',sW1K,sW,10), salu('s_mul_i32',sW7K,sW,7168), salu('s_mul_i32',sW5K,sW,5120))
    for srd,n in ((sX,2048*1152),(sWQ,576*3456),(sWO,576*1152),(sWG,576*9216),(sWU,576*9216),(sWD,4608*1152),(sOUT,2048*1152),(sDBG,256),(sWS,0x10000000)):
        e(salu('s_mov_b32',srd[2],n), salu('s_mov_b32',srd[3],0x20000))
    e(salu('s_mov_b32',sLO,0x3f80), salu('s_mov_b32',sHI,0x3f800000), salu('s_mov_b32',sONES,0x3f803f80))
def pf_lane(t):
    if not OPT['pfe']: return vL
    e(salu('s_and_b32',sT1,sXC,1), salu('s_xor_b32',sT1,sT1,OPT['pfe']-1), salu('s_lshl_b32',sT1,sT1,6), valu('v_add_u32',t,sT1,vL)); return t
def addr_pf():
    row,t=vT[2],vT[3]; z=2 if OPT['pfe'] else 1; si=sM8 if OPT['pfe'] else sI
    ln=pf_lane(vT[4])
    e(salu('s_lshl_b32',sJ128,sJ1,7), salu('s_lshl_b32',sJH,sJ1,9), salu('s_sub_u32',sJH,512,sJH))
    e(salu('s_lshl_b32',sT0,si,2), salu('s_add_u32',sT0,sT0,sW), salu('s_mul_i32',sT0,sT0,z*9*9216), salu('s_mul_i32',sT1,sJ,576), salu('s_and_b32',sT1,sT1,-128), salu('s_add_u32',sT0,sT0,sT1),
      valu('v_mul_u32_u24',t,9216,vL), valu('v_add_u32',t,sT0,t))
    masked(vPG,t,'v_cmp_gt_u32',z*9,ln,row)
    u=row
    e(valu('v_mul_u32_u24',t,7282//z,vL), valu('v_lshrrev_b32',t,16,t), valu('v_mul_u32_u24',u,z*9,t), valu('v_sub_u32',u,vL,u), valu('v_mul_u32_u24',u,3456,u), valu('v_lshl_add_u32',u,t,7,u),
      salu('s_lshl_b32',sT0,si,2), salu('s_add_u32',sT0,sT0,sW), salu('s_mul_i32',sT0,sT0,z*9*3456), salu('s_mul_i32',sT1,sJ,216), salu('s_and_b32',sT1,sT1,-128), salu('s_add_u32',sT0,sT0,sT1),
      valu('v_add_u32',u,sT0,u))
    masked(vPOLL,u,'v_cmp_gt_u32',z*27,ln,t)
def pf_gu(c):
    if not OPT['pf']: return []
    return [cost(bload(vPF,vPG,s,sJ128 if c<4 else sJH,c*128 if c<4 else 0,tag='pf'),90) for s in (sWG,sWU)]
def pf_q(): return [cost(bload(vPF,vPOLL,sWQ,0,tag='pf'),270)] if OPT['pf'] else []
def addr_pfd():
    t,u=vPOLL,vT[7]; z=2 if OPT['pfe'] else 1; si=sM8 if OPT['pfe'] else sI
    ln=pf_lane(vT[4])
    e(salu('s_lshl_b32',sT0,si,2), salu('s_add_u32',sT0,sT0,sW), salu('s_mul_i32',sT0,sT0,z*81*64), salu('s_and_b32',sT0,sT0,-128), salu('s_mul_i32',sT1,sJ,288*1152), salu('s_add_u32',sT0,sT0,sT1),
      valu('v_mul_u32_u24',t,384,vL), valu('v_add_u32',t,sT0,t))
    masked(vPOLL,t,'v_cmp_gt_u32',14*z,ln,u)
def pf_d(k): return [cost(bload(vPF,vPOLL,sWD,0,k*128,tag='pf'),140)] if OPT['pf'] else []
def pf_o():
    if not OPT['pf']: return
    t,u=vT[4],vT[5]
    e(salu('s_lshl_b32',sT0,S(2),2), salu('s_add_u32',sT0,sT0,sW), salu('s_mul_i32',sT0,sT0,6*128), valu('v_lshl_add_u32',t,vL,7,sT0))
    masked(t,t,'v_cmp_gt_u32',6,vL,u)
    e(cost(bload(vPF,t,sWO,0,tag='pf'),60))
def cost(i,c): i.meta['cost']=c; return i
def xdma(tt,l):
    base=sBD if tt==0 else sBL
    o=[salu('s_add_u32','m0',sW18K,tt*73728+l*1920)] if l%2==0 else []
    for z in range(2): o.append(gdma(vX[2*(l&1)+z],base,(l&~1)*128+(2*(l&1)+z)*1024,tag=('x',tt,l),private=True))
    return o
SELA=A(208,2)
def sel_ops(m,g):
    return [valu('v_and_b32',m,1,vL), valu('v_lshlrev_b32',m,4,m), valu('v_lshlrev_b32',m,m,sLO), valu('v_bfe_u32',g,vL,1,1), valu('v_mul_lo_u32',g,g,m), valu('v_sub_u32',m,m,g),
      valu('v_accvgpr_write_b32',SELA[0],m), valu('v_accvgpr_write_b32',SELA[1],g)]
ntouch=[0]
def touch():
    if not OPT['touch']: return []
    k=ntouch[0]; ntouch[0]+=1
    o=[raw('s_mov_b64 exec, 0','salu')]
    for w in range(3): o+=[salu('s_cmp_eq_u32',sW,w), raw(f's_cbranch_scc1 L_pg{4*k+w}','misc')]
    o+=[raw(f's_branch L_pg{4*k+3}','misc'), label(f'L_tr{k}'), raw('s_mov_b64 exec, -1','salu')]
    for x in o[:-1]: x.meta['glue']=True
    return o

def lane_rp(rp,p,t):
    e(valu('v_lshrrev_b32',rp,3,vL), valu('v_and_b32',t,6,rp), valu('v_and_b32',p,7,vL), valu('v_xor_b32',p,p,t))
def addr_early():
    rp,p,t,u,kA=vT[2],vT[3],vT[4],vT[5],vT[6]
    lane_rp(rp,p,t)
    e(salu('s_and_b32',sT0,sW,1), salu('s_lshl_b32',sT0,sT0,4), salu('s_lshr_b32',sT1,sW,1), salu('s_lshl_b32',sT1,sT1,2), salu('s_add_u32',sT0,sT0,sT1))
    e(valu('v_and_b32',t,4,rp), valu('v_add_u32',kA,rp,t), valu('v_add_u32',kA,sT0,kA))
    e(salu('s_mul_i32',sT1,sJ,288), salu('s_lshl_b32',sT2,sJ1,5), salu('s_add_u32',sT2,sT2,sT1))
    e(salu('s_lshl_b32',sT3,sJ1,8), salu('s_sub_u32',sT3,256,sT3), salu('s_add_u32',sT3,sT3,sT1))
    e(salu('s_lshl_b32',sT0,sT2,1), valu('v_mul_u32_u24',t,9216,kA), valu('v_lshl_add_u32',t,p,4,t), valu('v_add_u32',vGF,sT0,t))
    e(salu('s_lshl_b32',sT0,sT3,1), valu('v_lshrrev_b32',t,2,p), valu('v_lshl_add_u32',t,t,5,kA), valu('v_mul_u32_u24',t,9216,t),
      valu('v_and_b32',u,3,p), valu('v_lshl_add_u32',t,u,4,t), valu('v_add_u32',vGH,sT0,t))
    e(salu('s_lshl_b32',sT0,sW,3), valu('v_add_u32',t,sT0,rp), valu('v_add_u32',u,sT2,t), valu('v_mul_u32_u24',u,1152,u), valu('v_lshl_add_u32',vDF,p,4,u),
      valu('v_add_u32',u,sT3,t), valu('v_mul_u32_u24',u,1152,u), valu('v_lshl_add_u32',vDH,p,4,u))
    g,r4,c,b=vT[2],vT[3],vT[6],vT[7]
    e(valu('v_bfe_u32',r4,vL,2,3), valu('v_and_b32',c,3,vL), valu('v_lshrrev_b32',g,5,vL),
      valu('v_lshlrev_b32',b,10,g), valu('v_lshl_add_u32',b,r4,7,b), valu('v_lshl_add_u32',b,c,3,b), valu('v_lshrrev_b32',t,1,r4))
    for q in range(4):
        e(valu('v_xor_b32',u,q,t), valu('v_lshl_add_u32',vTR[q][0],u,5,b), valu('v_add_u32',vTR[q][1],0x10000,vTR[q][0]), valu('v_add_u32',vTR[q][2],0x20000,vTR[q][0]))
def addr_qk():
    t=vT[4]
    e(salu('s_mul_i32',sT0,sJ,216), salu('s_and_b32',sT0,sT0,-16), salu('s_mul_i32',sT1,sW,32*3456), salu('s_add_u32',sT0,sT0,sT1))
    for q in range(7):
        pp,rr,k=vT[2],vT[3],vT[6]
        e(valu('v_add_u32',pp,64*q,vL), valu('v_mul_u32_u24',rr,4682,pp), valu('v_lshrrev_b32',rr,16,rr),
          valu('v_mul_u32_u24',t,14,rr), valu('v_sub_u32',pp,pp,t),
          valu('v_and_b32',t,12,rr), valu('v_and_b32',k,3,rr), valu('v_lshl_add_u32',k,t,1,k), valu('v_lshrrev_b32',t,4,rr), valu('v_lshl_add_u32',k,t,2,k),
          valu('v_mul_u32_u24',k,3456,k), valu('v_lshl_add_u32',k,pp,4,k), valu('v_add_u32',vQK[q],sT0,k))
        if q%4: e(valu('v_subrev_u32',vQK[q],1024*(q%4),vQK[q]))
def extpos(dst,key,t):
    e(valu('v_and_b32',dst,7,key), valu('v_bfe_u32',t,key,4,1), valu('v_lshl_add_u32',dst,t,3,dst),
      valu('v_bfe_u32',t,key,3,1), valu('v_xor_b32',t,1,t), valu('v_lshl_add_u32',dst,t,4,dst))
def addr_mid():
    t,u,c=vT[4],vT[5],vT[6]
    e(valu('v_and_b32',c,3,vL), salu('s_lshl_b32',sT0,sJ1,3), valu('v_lshrrev_b32',t,2,vL), valu('v_mul_u32_u24',t,224,t), valu('v_add_u32',t,sT0,t),
      valu('v_lshl_add_u32',vQM[0],c,3,t), valu('v_mul_u32_u24',u,72,c), valu('v_add3_u32',vQE[0],t,u,32))
    for n in (1,2): e(valu('v_add_u32',vQM[n],n*0x10000,vQM[0]), valu('v_add_u32',vQE[n],n*0x10000,vQE[0]))
def grp_ops(d,t):
    if not OPT['par']: return [salu('s_lshl_b32',d,sXC,2), salu('s_lshr_b32',t,sIDX,3), salu('s_add_u32',d,d,t)]
    return [salu('s_and_b32',d,sXC,6), salu('s_lshr_b32',t,sIDX,4), salu('s_add_u32',d,d,t), salu('s_lshl_b32',d,d,1), salu('s_and_b32',t,sXC,1), salu('s_xor_b32',t,t,OPT['par']-1), salu('s_add_u32',d,d,t),
            salu('s_lshl_b32',d,d,1), salu('s_bfe_u32',t,sIDX,0x10003), salu('s_add_u32',d,d,t)]
def addr_mid2():
    t,u,key,hf=vT[4],vT[5],vT[2],vT[3]
    e(salu('s_lshl_b32',sT0,sI,2), salu('s_add_u32',sT0,sT0,sW), salu('s_mul_i32',sT0,sT0,1280), salu('s_mul_i32',sT1,sJ,6*SL), salu('s_add_u32',sT0,sT0,sT1))
    e(salu('s_mul_i32',sT1,sJ1,16*OPT['swp']), valu('v_xor_b32',u,sT1,vL), valu('v_and_b32',key,31,u), valu('v_lshrrev_b32',hf,5,vL), valu('v_lshlrev_b32',t,2,hf), valu('v_xor_b32',t,t,u), valu('v_lshlrev_b32',t,4,t), valu('v_add_u32',vSM,sT0,t))
    extpos(u,key,t)
    e(valu('v_lshlrev_b32',u,3,u), valu('v_add_u32',u,sT0,u), valu('v_add_u32',u,1024,u), valu('v_mul_u32_u24',t,4*SL,hf), valu('v_add_u32',vSE0,u,t),
      valu('v_lshl_add_u32',vSE1,hf,31,u))
    e(salu('s_mul_i32',sT0,sJ,6), valu('v_lshrrev_b32',t,4,vL), valu('v_lshl_add_u32',t,t,1,sT0), valu('v_mov_b32',u,f32(QSCALE)), valu('v_cmp_gt_u32','vcc',32,t), valu('v_cndmask_b32',vSCX,1.0,u))
    for p_ in range(3): e(valu('v_readlane_b32',sSC[p_],vSCX,16*p_))
    e(salu('s_lshl_b32',sT0,sI,2), salu('s_add_u32',sT0,sT0,sW), salu('s_mul_i32',sT2,sT0,2*TS), salu('s_lshl_b32',sT1,sJ,10), salu('s_add_u32',sT1,sT1,sT2),
      valu('v_lshl_add_u32',vPS,vL,4,sT1),
      salu('s_lshl_b32',sT1,sJ,9), salu('s_add_u32',sT1,sT1,sT2), valu('v_lshl_add_u32',vPX,vL,3,sT1))
    e(salu('s_lshl_b32',sT1,sT0,11), salu('s_add_u32',sT1,sT1,WS_F2), valu('v_lshl_add_u32',t,vL,9,sT1), salu('s_and_b32',sT3,sJ,3), salu('s_lshl_b32',sT3,sT3,9), salu('s_add_u32',sT3,sT3,sT1))
    masked(vF1,t,'v_cmp_gt_u32',4,vL,u)
    e(salu('s_lshl_b32',sT1,sM8,2), salu('s_add_u32',sT1,sT1,sW), salu('s_lshl_b32',sT1,sT1,12), salu('s_add_u32',sT1,sT1,WS_F3), valu('v_lshl_add_u32',t,vL,9,sT1))
    masked(vF3,t,'v_cmp_gt_u32',8,vL,u)
    e(*grp_ops(sT1,sT2), salu('s_lshl_b32',sT1,sT1,1), salu('s_and_b32',sT2,sIDX,1), salu('s_add_u32',sT1,sT1,sT2),
      salu('s_lshl_b32',sT1,sT1,2), salu('s_add_u32',sT1,sT1,sW), salu('s_lshl_b32',sT1,sT1,9), salu('s_add_u32',sF3,sT1,WS_F3))
    e(raw(f'v_writelane_b32 {u}, {sT3}, 0','valu',u.regs()+sT3.regs(),u.regs()), raw(f'v_writelane_b32 {u}, {sF3}, 1','valu',u.regs()+sF3.regs(),u.regs()),
      valu('v_sub_u32',t,1,vL), valu('v_lshlrev_b32',t,4,t), cost(bstore(t,u,sWS,0,flags='sc1',tag='qkvst'),30))
    e(valu('v_and_b32',key,16,vL), valu('v_cmp_eq_u32','vcc',0,key), valu('v_cndmask_b32',hf,vR[1],vR[0]), valu('v_mul_f32',hf,hf,hf),
      salu('s_lshl_b32',sT0,sT0,7), salu('s_add_u32',sT0,sT0,WS_R2), valu('v_lshl_add_u32',key,vL,2,sT0), salu('s_lshl_b32',sT1,sJ,6), valu('v_add_u32',t,sT1,vL))
    masked(key,key,'v_cmp_gt_u32',32,t,u)
    e(bstore(hf,key,sWS,0,flags='sc1',tag='qkvst'))
def pf_code():
    if not OPT['pfc']: return
    t=vT[4]; a=V(6,2)
    e(raw('s_getpc_b64 s[100:101]','salu',[],['s100','s101']), label('L_pc'),
      salu('s_lshl_b32',sT0,sIDX,2), valu('v_add_u32',t,sT0,vT[0]), valu('v_lshl_add_u32',t,vL,7,t), valu('v_lshlrev_b32',t,7,t),
      raw(f'v_min_u32 {t}, L_codeend-L_pc-4, {t}','valu',t.regs(),t.regs()),
      raw(f'v_add_co_u32 {a[0]}, vcc, {sPC[0]}, {t}','valu',t.regs()+['s100'],a[0].regs()+['vcc']), valu('v_mov_b32',a[1],sPC[1]), raw('s_mov_b64 exec, 63','salu'),
      raw(f'v_addc_co_u32 {a[1]}, vcc, 0, {a[1]}, vcc','valu',a[1].regs()+['vcc'],a[1].regs()+['vcc']),
      I(f'global_load_dword {vPF}, {a}, off','vld',a.regs(),vPF.regs(),tag='pf'), raw('s_mov_b64 exec, -1','salu'))

GR=[V(38,4),V(42,4)]; MEAN=[V(46),V(47)]
def var_ops(tt):
    d=GR[tt]; t=vT[4]; b=d[0]
    e(valu('v_and_b32',t,1,vL), valu('v_cmp_eq_u32','vcc',0,t), valu('v_and_b32',t,2,vL), valu('v_cndmask_b32',d[0],d[1],d[0]), valu('v_cndmask_b32',d[2],d[3],d[2]),
      valu('v_cmp_eq_u32','vcc',0,t), valu('v_bfe_u32',t,vL,2,2), valu('v_cndmask_b32',d[0],d[2],d[0]), valu('v_lshrrev_b32',d[1],4,vL), valu('v_cmp_eq_u32','vcc',t,d[1]),
      valu('v_cndmask_b32',b,0,b))
    for op in ('v_permlane16_swap_b32','v_permlane32_swap_b32'): e(valu('v_mov_b32',d[1],b), swap(op,b,d[1]), valu('v_add_f32',b,b,d[1]))
    e(valu('v_mul_f32',b,f32(1/576),b), valu('v_fma_f32',b,'-'+str(MEAN[tt]),MEAN[tt],b), valu('v_max_f32',b,0,b), valu('v_cvt_pk_bf16_f32',b,b,b), valu('v_lshlrev_b32',b,16,b),
      valu('v_add_f32',b,f32(1e-5),b), valu('v_cvt_pk_bf16_f32',b,b,b), valu('v_lshlrev_b32',b,16,b),
      valu('v_sqrt_f32',b,b), valu('v_cvt_pk_bf16_f32',b,b,b), valu('v_lshlrev_b32',b,16,b), valu('v_rcp_f32',vR[tt],b))
def centre_ops(f,tt):
    o=[]; t=V(252)
    for d in range(4):
        x=f[d]
        o+=[valu('v_lshlrev_b32',t,16,x), valu('v_and_b32',x,0xffff0000,x), valu('v_sub_f32',t,t,vM[tt]), valu('v_sub_f32',x,x,vM[tt]), valu('v_cvt_pk_bf16_f32',x,t,x)]
    return o
def to_acc(s): return [valu('v_accvgpr_write_b32',XC0[4*s+d],X0[s][d]) for d in range(4)]

class Item:
    def __init__(s,name,n,mk): s.name=name; s.n=n; s.mk=mk; s.addr=None; s.first=None; s.last=None; s.pushed=False
    def blks(s): return list(range(s.addr//4096,s.addr//4096+s.n))
def blk_item(name,voff,srd,soff,buf=False,c=80):
    def mk(it):
        o=[salu('s_add_u32','m0',sW1K,it.addr)]
        if buf: return o+[salu('s_mov_b32',sSO,soff), cost(dma(voff,srd,sSO,tag=it.name,dst=it.blks()),c)]
        return o+base_add(sBD,srd,soff)+[cost(gdma(voff,sBD,tag=it.name,dst=it.blks()),c)]
    return Item(name,1,mk)
def qkv_item(a):
    def mk(it):
        o=[salu('s_mov_b32',sSO,a*128*3456)] if a==4 else base_add(sBD,sWQ,a*128*3456)
        for q in range(7):
            if q%4==0: o.append(salu('s_add_u32','m0',sW7K,it.addr+q*1024))
            if a==4: o.append(dma(vQK[q],sWQ,sSO,(q%4)*1024,tag=it.name,dst=it.blks()))
            else: o.append(cost(gdma(vQK[q],sBD,(q%4)*1024,tag=it.name,dst=it.blks()),120))
        return o
    return Item(('q',a),7,mk)
def kv_item(sg):
    def mk(it):
        o=[salu('s_add_u32','m0',sW5K,it.addr+2048)]+base_add(sBD,sWS,WS_QKV+sg*10240+2048)
        for q in range(5):
            o.append(gdma(vKV,sBD,q*1024-2048,flags='sc1',tag=it.name,dst=it.blks())); o[-1].rd.append('ok_f1'); o[-1].meta['bat']=q>0
        return o
    return Item(('kv',sg),5,mk)

class Group:
    def __init__(s): s.m=[]; s.rd=[]; s.bar=False; s.fr=[]
frp=[0]
def newfrag():
    pl=[FR[4*n:4*n+4] for n in range(16)]+[A(216+4*n,4) for n in range(OPT['frx'])]
    f=pl[frp[0]]; frp[0]=(frp[0]+1)%len(pl); return f
def tr_read(f,u,it,seg):
    return dsr('ds_read_b64_tr_b16',f[2*u:2*u+2],vTR[seg][it.addr>>16],(it.addr&0xffff)+u*2048,src=(it.name,it.blks()))
def xc(tt,s): return (XC0 if tt==0 else XC1)[4*s:4*s+4]
def hfrag(k,tt): return HH[8*k+4*tt:8*k+4*tt+4]

items=[]; groups=[]; events=[]
def chain_mm(g,ks,accs,bfun):
    t0=len(groups)&1 if OPT['snake'] else 0
    for z in range(2):
        tt=t0^z; o=list(zip(ks,g.fr))
        if z and OPT['snake']: o.reverse()
        for n,(k,f) in enumerate(o): g.m.append(m16(accs[tt],f,bfun(k,tt),0 if (ks[0]==0 and n==0) else accs[tt]))
def mm_group(srcs,accs,bfun,bar=False):
    g=Group(); g.bar=bar
    for it,seg,k in srcs:
        f=newfrag(); g.fr.append(f)
        for u in range(2): g.rd.append((it,lambda it,f=f,u=u,seg=seg: tr_read(f,u,it,seg)))
    chain_mm(g,[k for _,_,k in srcs],accs,bfun)
    groups.append(g); return len(groups)-1

def h_epilogue(bank,q,kout,half):
    gt=[bank[16*q+4*tt:16*q+4*tt+4] for tt in range(2)]; up=[bank[16*q+8+4*tt:16*q+12+4*tt] for tt in range(2)]
    o=[]
    for tt in range(2):
        for r in range(4): o.append(valu('v_max_f32',gt[tt][r],0,gt[tt][r]))
    for tt in range(2):
        for r in range(4): o.append(valu('v_mul_f32',up[tt][r],gt[tt][r],up[tt][r]))
        for d in range(2): o.append(valu('v_cvt_pk_bf16_f32',gt[tt][d],up[tt][2*d],up[tt][2*d+1]))
        for d in range(2): o.append(valu('v_accvgpr_write_b32',hfrag(kout,tt)[2*half+d],gt[tt][d]))
    return o
NV0=15
X0=[V(192+4*s,4) for s in range(NV0)]+[V(128+4*s,4) for s in range(18-NV0)]
def build_chunk(c,bank):
    xf=lambda k,tt: X0[k] if (c==0 and tt==0 and k<NV0) else xc(tt,k)
    cuts=list(range(0,19,OPT['chain']))
    if c==0: cuts=list(range(0,19,3)) if OPT['c0ch']==3 else [0,3,6,12,15,18]
    for st,(k0,k1) in enumerate(zip(cuts,cuts[1:])):
        G=[blk_item(('g',c,k),vGF,sWG,k*32*9216+c*128) for k in range(k0,k1)]
        U=[blk_item(('u',c,k),vGF,sWU,k*32*9216+c*128) for k in range(k0,k1)]
        flip=OPT['flip'] and (len(cuts)-2-st)%2==1
        items.extend(U+G if flip else G+U)
        for z,(M,o) in enumerate(((U,8),(G,0)) if flip else ((G,0),(U,8))):
            for n,q in enumerate(range(3,-1,-1) if flip else range(4)):
                b=(n==0) if z==0 else (n==0 and ((k1-k0>3 and str(c) not in str(OPT['aint'])) or OPT['bartr'] or (c==0 and st<OPT.get('bar0',2))))
                gi=mm_group([(M[k-k0],q,k) for k in range(k0,k1)],[bank[16*q+o+4*tt:16*q+o+4+4*tt] for tt in range(2)],xf,bar=b)
                if k1==18 and z: events.append((gi,h_epilogue(bank,q,2*c+(q>>1),q&1)))
def build_half(bank):
    for st in range(3):
        G=[blk_item(('gh',3*st+n),vGH,sWG,(3*st+n)*64*9216,c=150) for n in range(3)]
        U=[blk_item(('uh',3*st+n),vGH,sWU,(3*st+n)*64*9216,c=150) for n in range(3)]
        items.extend(G+U)
        seq=[(G,0,0),(G,0,1),(U,8,0),(U,8,1)] if st<2 else [(G,0,0),(U,8,0),(G,0,1),(U,8,1)]
        for z,(M,o,q) in enumerate(seq):
            ch=min(6,OPT['chain'])
            for hh in range(6//ch):
                ks=[6*st+ch*hh+n for n in range(ch)]
                gi=mm_group([(M[(k-6*st)>>1],2*(k&1)+q,k) for k in ks],[bank[16*q+o+4*tt:16*q+o+4+4*tt] for tt in range(2)],lambda k,tt:xc(tt,k),bar=(hh==0 and (z==0 or (z==2 and st<2 and OPT['bartr']))))
            if st==2 and o==8: events.append((gi,h_epilogue(bank,q,8,q)))
def build_qkv(bank):
    for a in range(5):
        it=qkv_item(a); items.append(it)
        first=True
        qc=OPT['qch'] if a<4 else 2
        for k0 in range(0,4 if a<4 else 2,qc):
            for t in (range(6,-1,-1) if OPT['flip'] and a%2 else range(7)):
                g=Group(); g.bar=first; first=False
                for kk in range(k0,k0+qc):
                    f=newfrag(); g.fr.append(f)
                    for u in range(2):
                        def rd(it,f=f,u=u,kk=kk,t=t):
                            ad=it.addr+kk*7168+u*3584+(0 if t==6 else 72*(t>>1)+40*(t&1))
                            return dsr('ds_read_b64_tr_b16',f[2*u:2*u+2],(vQE if t==6 else vQM)[ad>>16],ad&0xffff,src=(it.name,it.blks()))
                        g.rd.append((it,rd))
                chain_mm(g,[4*a+kk for kk in range(k0,k0+qc)],[bank[8*t+4*tt:8*t+4*tt+4] for tt in range(2)],lambda k,tt:xc(tt,k))
                groups.append(g)
                if a==4: events.append((len(groups)-1,qkv_epilogue(bank,t)))
def st_pair(o,data,voff,soff,tag,x=None):
    a=salu('s_mov_b32',sSO2,soff) if x is None else salu('s_add_u32',sSO2,x,soff); b=bstore(data,voff,sWS,sSO2,flags='sc1',tag=tag)
    dep=[x for x in o if x.kind=='valu'][-1]
    a.meta['q']='st'; b.meta['q']='st'; b.meta['dep']=dep
    o+=[a,b]
def qkv_epilogue(bank,t):
    o=[]
    sc=[bank[56],bank[57]]
    if t==6: o+=[valu('v_mul_f32',sc[tt],vSCX,vR[tt]) for tt in range(2)]
    elif t%2==0: o+=[valu('v_mul_f32',sc[tt],sSC[t>>1],vR[tt]) for tt in range(2)]
    a=bank[8*t:8*t+8]
    for tt in range(2):
        for r in range(4): o.append(valu('v_mul_f32',a[4*tt+r],sc[tt],a[4*tt+r]))
    if t<6:
        o+=[valu('v_cvt_pk_bf16_f32',a[0],a[0],a[1]), valu('v_cvt_pk_bf16_f32',a[1],a[2],a[3]), valu('v_cvt_pk_bf16_f32',a[2],a[4],a[5]), valu('v_cvt_pk_bf16_f32',a[3],a[6],a[7]),
            swap('v_permlane16_swap_b32',a[0],a[2]), swap('v_permlane16_swap_b32',a[1],a[3])]
        st_pair(o,a[0:4],vSM,WS_QKV+t*SL,'qkvst')
    else:
        o+=[valu('v_cvt_pk_bf16_f32',a[0],a[0],a[1]), valu('v_cvt_pk_bf16_f32',a[2],a[2],a[3]), valu('v_cvt_pk_bf16_f32',a[4],a[4],a[5]), valu('v_cvt_pk_bf16_f32',a[6],a[6],a[7])]
        o+=[valu('v_mov_b32',a[n],sONES) for n in (1,3,5,7)]
        o+=[swap('v_permlane16_swap_b32',a[0],a[4]), swap('v_permlane16_swap_b32',a[2],a[6])]
        for n,(vo,sl) in enumerate(((vSE0,0),(vSE0,1),(vSE1,2),(vSE1,3))):
            st_pair(o,a[2*n:2*n+2],vo,WS_QKV+sl*SL,'qkvst')
    return o
pool=[0]
def build_down():
    ntr=0
    if OPT['chain']==3: seq=[(c,3*tr,3*tr+3) for c,tr in [(0,0),(0,1),(1,0),(1,1),(0,2),(1,2)]+[(c,tr) for c in range(2,9) for tr in range(3)]]
    else:
        seq=[(0,0,6),(1,0,6),(0,6,9),(1,6,9)]
        for c in range(2,9): seq+=[(c,0,9)] if OPT['chain']==9 and c<8 else ([(c,0,6),(c,6,9)] if c%2==0 else [(c,0,3),(c,3,9)])
    for c,k0,k1 in seq:
        acc=V(192 if c==0 else 128+32*((c+1)%2),32)
        tr=2 if k1==9 else 0
        if True:
            B=[blk_item(('d',c,k),vDF if k<8 else vDH,sWD,(k*32*1152 if k<8 else 0)+c*128) for k in range(k0,k1)]
            items.extend(B)
            for n,q in enumerate(range(3,-1,-1) if OPT['flip'] and k1<9 and c>1 else range(4)):
                gi=mm_group([(B[k-k0],q,k) for k in range(k0,k1)],[acc[16*tt+4*q:16*tt+4*q+4] for tt in range(2)],hfrag,bar=(n==0 and (ntr%OPT['bint']==0 or ntr==26 or (ntr>=OPT['bl'] and ntr%2==0) or k1-k0==9 or OPT['bartr'])))
                if tr==2 and q%2==1:
                    o=[]
                    for tt in range(2):
                        a=acc[16*tt+4*(q-1):16*tt+4*(q-1)+8]
                        pl=[XC1[4*n:4*n+4] for n in range(18)]; pa=([A(212+4*n,4) for n in range(7)]+[A(24+4*n,4) for n in range(4)]+[A(60+4*n,4) for n in range(3)])[:OPT['apool']]
                        n=pool[0]; pool[0]+=1; a0_=OPT['ap0']
                        if a0_<=n<a0_+len(pa):
                            d4=pa[n-a0_]
                            o+=[valu('v_cvt_pk_bf16_f32',a[d],a[2*d],a[2*d+1]) for d in range(4)]+[valu('v_accvgpr_write_b32',d4[d],a[d]) for d in range(4)]
                        else:
                            d4=pl[(n if n<a0_ else n-len(pa))%18]
                            o+=[valu('v_cvt_pk_bf16_f32',d4[d],a[2*d],a[2*d+1]) for d in range(4)]
                        if c<8: st_pair(o,d4,vPS,WS_P+c*CS+(q>>1)*16384,'pst',sXX if tt else sXP)
                        else:
                            for z in range(2): st_pair(o,d4[2*z:2*z+2],vPX,WS_PX+(q-1+z)*ES,'pst',sXX if tt else sXP)
                    events.append((gi,o))
            ntr+=(k1-k0)//3

marks={}
def build_ffn():
    marks['c0']=len(groups); build_chunk(0,BANK[0])
    marks['c1']=len(groups); build_chunk(1,BANK[1])
    marks['qkv']=len(groups); build_qkv(BANK[0])
    marks['c2']=len(groups); build_chunk(2,BANK[1])
    marks['c3']=len(groups); build_chunk(3,BANK[0])
    marks['half']=len(groups); build_half(V(224,32))
    marks['down']=len(groups); build_down()

NB=39 if OPT['split'] else 40; LATE=10**9
SIG=13 if OPT['split'] else 1
vCA,vCV=V(54),vT[7]
def plan():
    L=OPT['look']
    n=0; bars=[]
    for g in groups:
        g.start=n
        if g.bar: bars.append(n-L-(1 if n and OPT['balone']==2 else 0))
        for k,(it,_) in enumerate(g.rd):
            if it.first is None: it.first=n+k-L
            it.last=n-1+(0 if len(g.fr)<=3 else ((k//4)*2 if not OPT['w3'] else (k//6)*3))
        n+=len(g.m)
    free={b:(-3000 if b>=36 else (-2000 if b<18 else -L)) for b in range(NB)}
    ptr=36
    for it in items:
        if ptr+it.n>NB: ptr=0
        it.addr=ptr*4096
        it.early=max(free[b] for b in it.blks())
        assert it.early<LATE
        it.bar=max(b for b in bars if b<=it.first)
        nxt=[b for b in bars if b-SIG>=it.last]
        for b in it.blks(): free[b]=nxt[0] if nxt else LATE
        ptr=(ptr+it.n)%NB
    return n,bars,free

VM=('dma','vld','vst')
SC=('salu','waitfor','misc','label')
lastvm=dict(any=-100,st=-100)
def head(nm,gap):
    q=fifo[nm]
    if not q or q[0][0]>gap: return None
    x=q[0][1]
    if 'lag' in x.meta and x.meta['lag'][0].meta.get('at',LATE)+x.meta['lag'][1]>gap: return None
    sq=x.meta['seq']; rd=set(x.rd)-{'carry'}; wr=set(x.wr)-{'carry'}
    for n2,q2 in fifo.items():
        if n2==nm: continue
        for _,y in q2:
            if y.meta['seq']>sq: break
            if rd&set(y.wr) or wr&set(y.rd) or wr&set(y.wr): return None
    return x
pipe=[0,16]
def vm_ready(gap,mingap,stgap,order=('st','ld','low','dma')):
    if gap-lastvm['any']<mingap: return None
    if pipe[0]-gap*pipe[1]>OPT['back']: return None
    for nm in order:
        x=head(nm,gap)
        if x is None or x.kind not in VM: continue
        if nm=='st':
            d=x.meta.get('dep')
            if gap-lastvm['st']<stgap or (d is not None and d.meta.get('at',LATE)>gap-2): continue
        return nm
    return None
def take(nm,gap):
    x=fifo[nm].pop(0)[1]
    if x.kind in VM:
        lastvm['any']=gap
        pipe[0]=max(pipe[0],gap*pipe[1])+x.meta.get('cost',80)
        if nm=='st': lastvm['st']=gap
    e(x)
    nx=[y for _,y in fifo[nm][:6] if 'vcc' in y.rd or 'vcc' in y.wr]
    if nx and 'vcc' in nx[0].rd: vcc_open[0]=nm
    elif vcc_open[0]==nm: vcc_open[0]=None
    while x.meta.get('glue'):
        x=fifo[nm].pop(0)[1]; e(x)
    return x
vcc_lock=[LATE]; vcc_open=[None]
def pull(gap,scalar):
    order=('arr','st','ld','dma','ctr','epi','low') if scalar and OPT['sprio'] else ('arr','dma','st','ctr','epi','ld','low')
    if scalar:
        for nm in order:
            x=head(nm,gap)
            if x is not None and 'carry' in x.rd: take(nm,gap); return True
    elif vcc_open[0]: order=(vcc_open[0],)+order
    for nm in order:
        x=head(nm,gap)
        if x is None or x.kind in VM: continue
        if (x.kind in SC)!=scalar: continue
        if 'vcc' in x.wr and not x.meta.get('glue') and vcc_lock[0]<OPT.get('vlock',22): continue
        take(nm,gap); return True
    return False

bar_extra={}; PH={}
def emit_backbone(bars,gapstamps):
    L=OPT['look']
    reads=[(it,f,g.start-0.5) for g in groups for it,f in g.rd]
    ev={}
    for gi,ops in events: ev.setdefault(gi,[]).append(ops)
    bar_items={}
    for it in items: bar_items.setdefault(it.bar,[]).append(it.name)
    barset=set(bars); issue={}
    fixed={}; fixT={}
    nb=len([b for b in bars if b>=SIG and OPT['split']]); kb=0
    for gi,g in enumerate(groups):
        for k in range(len(g.m)):
            gap=g.start+k; fx=[]
            w_lg=list(groups[gi+1].fr) if (k==len(g.m)-1 and gi+1<len(groups)) else []
            if len(w_lg)>3: w_lg=w_lg[:3 if OPT['w3'] else 2]
            if len(g.fr)>3 and not OPT['w3'] and k in (1,3): w_lg=g.fr[k+1:k+3]
            if len(g.fr)>3 and OPT['w3'] and k in (2,5) and k+1<len(g.fr): w_lg=g.fr[k+1:k+4]
            if len(g.fr)>6 and k in (9,13): w_lg=groups[gi+1].fr[:1+(k-9)//2] if gi+1<len(groups) else []
            w_vm=[]
            for d in (1,SIG):
                b=gap+d
                if b in barset and d==(SIG if b>=SIG else 1): w_vm=bar_items.get(b,[])+bar_extra.get(b,[])
            if OPT['split']:
                if gap+SIG in barset: x=dsw('ds_sub_u32',vCA,vONE); x.meta['signal']=True; fixT[gap]=x
                if gap+7 in barset and gap+7>=SIG: assert gap not in fixT; fixT[gap]=dsr('ds_read_b32',vCV,vCA)
                if gap+1 in barset and gap+1>=SIG:
                    kb+=1; assert gap not in fixT
                    fixT[gap]=valu('v_cmp_lt_u32','vcc',4*(nb-kb),vCV); w_lg.append(vCV)
                    OUT.extend([f'L_sb{kb}:', f'ds_read_b32 {vCV}, {vCA}', 's_waitcnt lgkmcnt(0)', fixT[gap].text, 's_nop 0', f's_cbranch_vccnz L_sb{kb}', f's_branch L_sr{kb}'])
            if gap in barset:
                if OPT['split'] and gap>=SIG: fx.append([raw(f's_cbranch_vccnz L_sb{kb}','misc',['vcc'],check=True,glue=True), label(f'L_sr{kb}')])
                else: fx.append([barrier()])
            if w_lg or w_vm: fx.append([waitfor(lg=w_lg,vmtags=w_vm)])
            fixed[gap]=fx
    def stgap_at(gap):
        dn=gap>=groups[marks['down']].start
        iv=len([b for b in bars if b<=gap])
        if iv%OPT['stper' if dn else 'qstper']: return LATE
        if any(-1<=g-gap<OPT['atd']*3//4 for g in extra): return LATE
        return OPT['stgap' if dn else 'qstgap']
    ri=[L]
    def rd():
        it,f,lg=reads[ri[0]]; ri[0]+=1; e(setseq(f(it),lg))
    planned=None
    for gi,g in enumerate(groups):
        for k,m in enumerate(g.m):
            gap=g.start+k
            if gap-1 in extra:
                cur[0]=gap-0.7
                e(*extra[gap-1])
                x=head('st',gap); n=extra[gap-1][-1].passes-3
                if x is not None and x.kind=='vst' and x.meta['dep'].meta.get('at',LATE)<gap-2: take('st',gap); n=0
                for _ in range(n): pull(gap-1,False)
            cur[0]=gap
            e(m)
            if gap in gapstamps: stamp(gapstamps[gap])
            if gap in PH: note(PH[gap])
            if 'gst' in OPT and gap in range(*map(int,OPT['gst'].split(':'))): stamp(f'gap{gap}',True)
            if planned:
                x=take(planned,gap); planned=None; assert x.kind in VM
                if x.kind=='dma': issue[x.meta['tag']]=gap
                continue
            fx=fixed[gap]
            nosc=OPT['nosc'] and P[-2].kind=='valu' and any(r=='vcc' or r[0]=='s' for r in P[-2].wr)
            if fx: e(*fx.pop(0))
            elif not nosc and not pull(gap,True) and OPT['snop']: e(raw('s_nop 0','misc'))
            if gap in barset and OPT['balone']==3 and not fx: continue
            if ri[0]<len(reads) and ri[0]<=gap+L: rd()
            elif ri[0]>=len(reads) and tail_reads: e(tail_reads.pop(0))
            used=False
            if gap in barset and OPT['balone'] and not fx: continue
            if gap+1 in barset and OPT['balone']==2 and not fx and len(fixed[gap+1])==1 and ri[0]<len(reads) and reads[ri[0]][0].bar<=gap: rd(); continue
            if fx: e(*fx.pop(0)); used=True
            if gap in fixT:
                e(fixT[gap]); used=True
                if fixT[gap].kind=='valu': continue
            lag=ri[0]<len(reads) and ri[0]<=gap+L
            if lag:
                if not used: rd()
                continue
            if gap+1 in fixed and not fixed[gap+1] and gap+1 not in fixT: planned=vm_ready(gap+1,OPT['dmagap'],stgap_at(gap+1))
            if used: continue
            if planned:
                if OPT['vmpat']==0 and ri[0]<len(reads) and reads[ri[0]][0].bar<=gap: rd()
                if OPT['vmpat']==2: pull(gap,False)
                continue
            vcc_lock[0]=min([b for b in bars if b>gap]+[LATE])-gap if OPT['split'] else LATE
            if not pull(gap,False) and not nosc: pull(gap,True)
        for ops in ev.get(gi,[]):
            for o in ops: push(o.meta.get('q','epi'),gap+4,[o])
    vcc_lock[0]=LATE
    sl=[(it.bar-SIG-issue[it.name],it.name) for it in items if it.name in issue]
    sl.sort(); print('min dma slack (gaps):',sl[:6])
    print('left after backbone:',{k:len(v) for k,v in fifo.items()})

OUT=[]
HOT=[]
def spin(name,load,expect,sleep=8,cmp='v_cmp_gt_u32',pre=[]):
    a=valu(cmp,'vcc',expect,vPOLL); a.meta['glue']=True
    b=raw(f's_cbranch_vccnz L_spin_{name}','misc',['vcc']); b.meta['glue']=True
    c=label(f'L_back_{name}')
    cnt=vT[6]
    OUT.extend([f'L_spin_{name}:', f'v_mov_b32 {cnt}, 0x40000', f'L_spinl_{name}:', *pre, load.text, 's_waitcnt vmcnt(0)', f'{cmp} vcc, {fmt(expect)}, {vPOLL}', 's_nop 1',
        f's_cbranch_vccz L_back_{name}', f'v_subrev_u32 {cnt}, 1, {cnt}', f'v_cmp_ne_u32 vcc, 0, {cnt}', f's_sleep {sleep}', f's_cbranch_vccnz L_spinl_{name}', f's_branch L_back_{name}'])
    a.wr.append(cnt.regs()[0]); a.wr.append('ok_'+name)
    return [a,b,c]

def addr_att(WB):
    t,u,key,hf,p,rp=vT[0],vT[1],vT[2],vT[3],vT[4],vT[5]
    e(valu('v_and_b32',key,31,vL), valu('v_lshrrev_b32',hf,5,vL), valu('v_lshlrev_b32',t,2,hf), valu('v_xor_b32',t,t,vL), valu('v_lshlrev_b32',vKM,4,t))
    extpos(u,key,t)
    e(valu('v_lshlrev_b32',vKE,3,u), valu('v_add_u32',vKE,1024,vKE))
    e(salu('s_lshr_b32',sT0,sW,1), salu('s_lshl_b32',sT0,sT0,5), salu('s_add_u32',sT0,sT0,sH), salu('s_add_u32',sT0,sT0,32), salu('s_mul_i32',sT0,sT0,SL),
      salu('s_and_b32',sT1,sW,1), salu('s_mul_i32',sT1,sT1,5120), salu('s_add_u32',sT0,sT0,sT1), valu('v_lshl_add_u32',vKV,vL,4,sT0))
def addr_z(): e(valu('v_and_b32',vZ,1,vL), valu('v_lshlrev_b32',vZ,7,vZ))
def qk_loads(WB):
    t,u,hf=vT[0],vT[1],vT[3]
    e(salu('s_mov_b32',sSO3,WS_R2), cost(bload(vR2,vR2,sWS,sSO3,flags='sc1'),40))
    e(valu('v_lshrrev_b32',hf,5,vL), valu('v_mul_u32_u24',u,1280,hf), valu('v_add_u32',u,u,vKE))
    e(salu('s_lshl_b32',sT0,sM8,2), salu('s_add_u32',sT0,sT0,sW), salu('s_mul_i32',sT0,sT0,2560), salu('s_mul_i32',sT1,sH,SL), salu('s_add_u32',sSO3,sT0,sT1))
    for x in range(2): e(bload(QM[x],vKM,sWS,sSO3,x*1280,flags='sc1'))
    e(cost(bload(QE[0],u,sWS,sSO3,0,flags='sc1'),40))
    e(salu('s_add_u32',sSO3,sT1,32*SL))
    for x in range(2): e(bload(KM[x],vKM,sWS,sSO3,x*1280,flags='sc1'), cost(bload(KE[x],vKE,sWS,sSO3,x*1280,flags='sc1'),40))
    e(valu('v_add_u32',vKM,WB,vKM), valu('v_add_u32',vKE,WB,vKE), valu('v_mov_b32',QE[1],0), valu('v_mov_b32',vIDX,0xdddd))
def zero_o():
    for x in range(2):
        for r in range(16): e(valu('v_mov_b32',OO[x][r],0))
def extra_zero(ngaps):
    with collect() as o: zero_o()
    push('ctr',ngaps-66,o,ngaps-66)
def addr_lds(WB):
    t,hf=vT[0],vT[3]
    e(valu('v_lshrrev_b32',hf,5,vL))
    c,r,k,x=vT[4],vT[5],vT[6],vT[1]
    e(valu('v_and_b32',c,3,vL), valu('v_bfe_u32',r,vL,2,2), valu('v_lshl_add_u32',r,hf,3,r))
    for n in range(4):
        uu,y=n>>1,n&1
        e(valu('v_add_u32',k,16*uu+4*y,r))
        extpos(x,k,t)
        e(valu('v_lshlrev_b32',x,3,x), valu('v_min_u32',t,1,c), valu('v_mul_u32_u24',t,LDS_OOB+64,t), valu('v_xor_b32',x,x,t), valu('v_add_u32',x,1024,x))
        e(valu('v_lshrrev_b32',t,1,c), valu('v_mul_u32_u24',t,36,t), valu('v_xor_b32',k,k,t), valu('v_lshlrev_b32',k,4,k), valu('v_and_b32',t,1,c), valu('v_lshl_add_u32',k,t,3,k))
        e(valu('v_and_b32',t,16,vL), valu('v_cmp_eq_u32','vcc',0,t), valu('v_cndmask_b32',k,x,k), valu('v_add_u32',vVA[n],WB,k))
vOP,vSH,vINC=V(55),V(16),V(17)
vTW,vTRD,vOW=V(55),V(10),V(3)
def addr_op():
    t,u,g=vT[2],vT[4],vT[5]
    e(salu('s_lshl_b32',sT0,sXC,2), valu('v_lshlrev_b32',vINC,sT0,vONE), salu('s_mov_b32',sPV,0), valu('v_add_u32',vKE1,1280,vKE))
    if OPT['ot']:
        e(salu('s_add_u32',sT0,sW5K,FLAG_LDS[0]), valu('v_and_b32',u,15,vL), valu('v_mul_u32_u24',u,144,u), valu('v_lshrrev_b32',g,4,vL), valu('v_lshl_add_u32',u,g,3,u), valu('v_add_u32',vTW,sT0,u),
          valu('v_lshrrev_b32',g,3,vL), valu('v_and_b32',u,7,vL), valu('v_lshlrev_b32',u,4,u), valu('v_mul_u32_u24',vTRD,144,g), valu('v_add3_u32',vTRD,vTRD,u,sT0),
          valu('v_readfirstlane_b32',sT1,vXO), valu('v_mul_u32_u24',g,1152,g), valu('v_add3_u32',vOW,g,u,sT1))
    if OPT['vp']: e(valu('v_min_u32',vOP,1,vL), valu('v_lshl_add_u32',vOP,vOP,31,sF3))
    if OPT['warm']: e(salu('s_and_b32',sT0,sIDX,7), salu('s_lshl_b32',sT0,sT0,2), salu('s_add_u32',sT0,sT0,sW),
      salu('s_lshl_b32',sT1,sXC,2), salu('s_lshr_b32',sT2,sIDX,3), salu('s_add_u32',sT1,sT1,sT2),
      salu('s_lshr_b32',sT2,sT0,4), salu('s_lshl_b32',sT2,sT2,15), salu('s_and_b32',sT3,sT0,15), salu('s_lshl_b32',sT3,sT3,8), salu('s_add_u32',sT2,sT2,sT3),
      salu('s_lshl_b32',sT3,sT1,16), salu('s_add_u32',sT2,sT2,sT3), salu('s_add_u32',sT2,sT2,WS_O),
      valu('v_lshrrev_b32',g,1,vL), valu('v_lshl_add_u32',t,g,12,sT2), valu('v_and_b32',u,1,vL), valu('v_lshl_add_u32',t,u,7,t),
      salu('s_bfe_u32',sT2,sT0,0x10002), salu('s_lshl_b32',sT2,sT2,12), salu('s_and_b32',sT3,sT0,3), salu('s_lshl_b32',sT3,sT3,7), salu('s_add_u32',sT2,sT2,sT3),
      salu('s_lshl_b32',sT3,sT1,13), salu('s_add_u32',sT2,sT2,sT3), salu('s_add_u32',sT2,sT2,WS_OX),
      valu('v_and_b32',u,7,vL), valu('v_lshl_add_u32',vOP,u,9,sT2), valu('v_cmp_gt_u32','vcc',16,vL), valu('v_cndmask_b32',vOP,vOP,t), valu('v_cndmask_b32',g,u,g),
      valu('v_lshl_add_u32',g,g,2,2), valu('v_cmp_gt_u32','vcc',24,vL), valu('v_cndmask_b32',vSH,3,g))
def x_loads():
    o=[cost(gload(XR[2*q:2*q+2],vXO,sX[0:2],32*q),260) for q in range(4)]+[cost(bload(XR[8:10],vXOX,sX,0),200)]
    for q in (1,3,4): o[q].meta['bat']=True
    return o
def addr_fin():
    t,u,p,rp,a,b=vT[0],vT[1],vT[4],vT[5],vT[6],vT[3]
    lane_rp(rp,p,t)
    e(salu('s_and_b32',sT0,sW,1), salu('s_lshr_b32',sT1,sW,1), salu('s_mul_i32',sT2,sT0,20), salu('s_lshl_b32',sT3,sT1,3), salu('s_add_u32',sT2,sT2,sT3), valu('v_add_u32',a,sT2,rp),
      salu('s_mul_i32',sT2,sT0,288), salu('s_mul_i32',sT3,sT1,36), salu('s_add_u32',sT2,sT2,sT3), salu('s_add_u32',sT2,sT2,16),
      valu('v_lshrrev_b32',t,2,rp), valu('v_mul_u32_u24',t,144,t), valu('v_and_b32',b,3,rp), valu('v_add3_u32',b,b,t,sT2))
    e(salu('s_and_b32',sT0,sIDX,7), salu('s_lshl_b32',sT1,sT0,7), valu('v_lshl_add_u32',u,p,4,sT1),
      valu('v_mul_u32_u24',t,1152,a), valu('v_add_u32',vWO,t,u), valu('v_mul_u32_u24',t,1152,b), valu('v_add_u32',vWOE,t,u))
    e(salu('s_lshr_b32',sT2,sT0,1), salu('s_lshl_b32',sT2,sT2,5), salu('s_add_u32',sT2,sT2,1024), valu('v_and_b32',u,1,p), valu('v_lshl_add_u32',u,u,4,sT2), valu('v_lshrrev_b32',p,1,p),
      valu('v_mul_u32_u24',t,36,p), valu('v_add_u32',t,t,a), valu('v_mul_u32_u24',t,1152,t), valu('v_add_u32',vWX,t,u),
      valu('v_mul_u32_u24',t,p,p), valu('v_mul_u32_u24',t,t,p), valu('v_mul_u32_u24',t,72,t), valu('v_add_u32',t,t,b), valu('v_mul_u32_u24',t,1152,t), valu('v_add_u32',vWXE,t,u))
    e(*grp_ops(sT3,sSO3), salu('s_lshl_b32',sT3,sT3,2), salu('s_add_u32',sT3,sT3,sW))
    tk,g=vT[4],vT[5]
    e(valu('v_and_b32',tk,15,vL), valu('v_lshrrev_b32',g,4,vL))
    e(salu('s_mul_i32',sSC[2],sT3,TS), salu('s_mul_i32',sSO3,sT0,CS), salu('s_add_u32',sSO3,sSO3,sSC[2]), valu('v_lshl_add_u32',vPL,vL,4,sSO3))
    e(salu('s_xor_b32',sSC[0],sW,sT0), salu('s_lshl_b32',sSC[0],sSC[0],31))
    e(salu('s_lshr_b32',sSO3,sT0,1), salu('s_mul_i32',sSO3,sSO3,ES), salu('s_add_u32',sSO3,sSO3,sSC[2]), salu('s_ashr_i32',sSC[1],sSC[0],31), salu('s_andn2_b32',sSC[1],0x1f8,sSC[1]), valu('v_lshlrev_b32',t,3,vL), valu('v_and_b32',t,sSC[1],t), valu('v_add_u32',vPLX,sSO3,t))
    e(salu('s_lshl_b32',sSO3,sT3,4), valu('v_add_u32',a,sSO3,tk), valu('v_lshlrev_b32',vR2,2,a), valu('v_mul_u32_u24',a,1152,a), valu('v_lshl_add_u32',a,g,3,a),
      valu('v_add_u32',vXO,sT1,a), salu('s_or_b32',sT2,sT2,sSC[0]), valu('v_add_u32',vXOX,sT2,a))
    if not OPT['xat']: e(*x_loads())
    e(salu('s_and_b32',sSO3,sT3,1), salu('s_lshl_b32',sSO3,sSO3,4), valu('v_add_u32',a,sSO3,tk), salu('s_lshr_b32',sSC[1],sT3,1),
      salu('s_mul_i32',sSO3,sSC[1],OS), valu('v_lshl_add_u32',t,a,4,sSO3), valu('v_lshl_add_u32',vOL,g,9,t),
      salu('s_mul_i32',sSO3,sSC[1],XS), valu('v_lshl_add_u32',t,a,2,sSO3), valu('v_lshl_add_u32',vOLX,g,10,t))
    e(valu('v_and_b32',t,31,vL))
    for n in range(4): e(*base_add(sOB[n],sWS,WS_O+8192*n+4096))
    e(*base_add(S(88,2),sWS,WS_O), *base_add(S(90,2),sWS,WS_O+OS))
    e(salu('s_lshr_b32',sSO3,sT3,1), salu('s_lshl_b32',sSO3,sSO3,11), salu('s_add_u32',sSO3,sSO3,WS_F2), salu('s_and_b32',sSC[1],sIDX,3), salu('s_lshl_b32',sSC[1],sSC[1],9), salu('s_add_u32',sSO3,sSO3,sSC[1]),
      valu('v_min_u32',vPG,1,vL), valu('v_lshl_add_u32',vPG,vPG,31,sSO3))
    e(salu('s_lshl_b32',sT0,sM8,2), salu('s_add_u32',sT0,sT0,sW), salu('s_mul_i32',sT1,sT0,2*OS), salu('s_lshl_b32',sT2,sH,10), salu('s_add_u32',sT1,sT1,sT2),
      valu('v_lshl_add_u32',vOS,vL,4,sT1),
      salu('s_mul_i32',sT1,sT0,2*XS), salu('s_lshl_b32',sT2,sH,7), salu('s_add_u32',sT1,sT1,sT2), salu('s_add_u32',sT1,sT1,WS_OX),
      valu('v_lshl_add_u32',t,t,2,sT1), valu('v_lshrrev_b32',u,5,vL), valu('v_mul_u32_u24',u,XS,u), valu('v_add_u32',vOSX,u,t))

def max_ops(srcs,m,first=True):
    o=[]
    regs=[s[r] for s in srcs for r in range(16)]
    if first: o.append(valu('v_max3_f32',m,regs[0],regs[1],regs[2])); rest=regs[3:]
    else: rest=regs
    while len(rest)>=2: o.append(valu('v_max3_f32',m,m,rest[0],rest[1])); rest=rest[2:]
    if rest: o.append(valu('v_max_f32',m,m,rest[0]))
    return o
def set_shift(mx,margin):
    m,t=mx
    return [swap('v_permlane32_swap_b32',m,t), valu('v_max_f32',m,m,t), valu('v_sub_f32',m,f32(-margin) if margin else 0,m),
            valu('v_cvt_pk_bf16_f32',t,m,m), valu('v_lshlrev_b32',t,16,t), valu('v_sub_f32',t,m,t), valu('v_cvt_pk_bf16_f32',QE[1],m,t)]
def Bx(tau,buf=None): return m2b(buf or SBB[tau%3],KE[tau%4],QE,0)
def Mx(tau,x,buf=None): b=(buf or SBB[tau%3])[16*x:16*x+16]; return m32(b,KM[tau%3],QM[x],b)
def PV(tau,x,h,buf=None): return smf(OO[x],VV[tau&1][4*h:4*h+4],(buf or SBB[tau%3])[16*x+8*h:16*x+8*h+8],vIDX)
def vread(kv,WB,tau,n):
    it=kv[tau>>3]; off=it.addr-WB+10240+(tau&7)*1280
    return dsr('ds_read_b64_tr_b16',VV[tau&1][2*n:2*n+2],vVA[n],off,src=(it.name,it.blks()))
extra={}
def att_setup(ngaps,kv,WB):
    g=ngaps-OPT['at0']; d=OPT['atd']
    for k,m in enumerate((Bx(0),Bx(1),Mx(0,0),Mx(1,0),Mx(0,1),Mx(1,1))): extra[g+k*d]=[m]
    extra[g].insert(0,waitfor(vm=QM+KM[:2]+KE[:2]+[QE[0]]))
    mx=[vT[0],vT[1]]
    for x in range(2): push('ctr',g+(3+2*x)*d+7,max_ops([SBB[0][16*x:16*x+16],SBB[1][16*x:16*x+16]],mx[x]),g+(3+2*x)*d+2)
    push('ctr',g+5*d+7,set_shift(mx,MARGIN),g+5*d+2)
    for k,m in enumerate((Bx(0),Mx(0,0),Mx(0,1))): extra[g+(7+k)*d]=[m]
    assert g+9*d<ngaps-8
    tail_reads.extend(vread(kv,WB,0,n) for n in range(4))
tail_reads=[]

def attention(g0,kv,WB,wo_items):
    base=g0+100
    pipe[0]=0; pipe[1]=44
    def kread(tau):
        it=kv[tau>>3]; off=it.addr-WB+(tau&7)*1280; src=(it.name,it.blks())
        if tau<4 or not OPT['ke2']: ke=dsr('ds_read_b64',KE[tau%4],vKE,off,src=src)
        elif tau&2: ke=None
        else:
            o=(off-1280*(tau&1))//512; d=A(KE[tau&1].b,4); a=vKE1 if tau&1 else vKE
            ke=I(f'ds_read2st64_b64 {d}, {a} offset0:{o} offset1:{o+5}','dsr',a.regs(),d.regs(),src=src,private=False)
        return [dsr('ds_read_b128',KM[tau%3],vKM,off,src=src), ke]
    def flush(n,names=('ctr','epi','low','dma','ld')):
        k=0
        while k<n:
            for nm in names:
                x=head(nm,cur[0])
                if x is not None: take(nm,cur[0]); break
            else: return
            k+=1
    cur[0]=g0
    assert not fifo['ctr'] and not fifo['low'] and not fifo['ld']
    stamp('att'); note('---- attention')
    barx={7:[it.name for it in wo_items]}; f2done=[False]; wcut=[int(x) for x in OPT['wcut'].split(',')]
    vmk=(1,4) if OPT['bat'] else (1,3,4,5)
    for tau in range(64):
        n=2*tau; nx=tau<63; S=SBB[tau%3]
        if 'ast' in OPT and n in range(*map(int,OPT['ast'].split(':'))): stamp(f'slot{n}',True)
        ms=[Bx(tau+1) if nx else None, PV(tau-1,1,1) if tau else None, PV(tau,0,0), Mx(tau+1,0) if nx else None, PV(tau,0,1), Mx(tau+1,1) if nx else None, PV(tau,1,0)]
        if OPT['aord']:
            h=OPT['aord']&1
            ms=[ms[0], PV(tau-1,1,h) if tau else None, PV(tau-1,1,1-h) if tau else None, ms[3], ms[5], PV(tau,0,0), PV(tau,0,1)]
            if not nx: ms[3:]=[PV(tau,0,0), PV(tau,0,1), None, PV(tau,1,0)]
        km,ke=kread(tau+2) if tau+2<64 else (None,None)
        v=[vread(kv,WB,tau+1,z) if nx else None for z in range(4)]
        rds=[None,ke,v[0],v[1],km,v[2],v[3]]
        sg=(tau+3)//8 if (tau+3)%8==0 and tau+3<64 else None
        if sg==1 and OPT['nob1']: assert kv[2].pushed and wcut[1]==0; sg=None
        for k in range(7):
            gap=base+8*tau+(k+1 if k else 0); cur[0]=gap
            if tau==0 and k==1: flush(1000,('epi',)); e(waitfor(lg=[VV[0]]))
            if ms[k] is not None: e(ms[k])
            nsc=(0,2,2,1,2,1,2)[k] if not OPT['aord'] else (0,2,2,1,1,2,2)[k]; kb=5 if OPT['aord'] else 4
            fx=k in (2,6) or (k==kb and sg is not None)
            vmn=vm_ready(gap,1,OPT['astgap'],('st','dma','ld','low')) if (not fx and k in vmk and ms[k] is not None) else None
            if OPT['bat'] and not fx and k in vmk and ms[k] is not None:
                sv=pipe[0]; pipe[0]=0; a_=vm_ready(gap,1,1,('st',)) if (k==1 or tau==0) else None; pipe[0]=sv-OPT['aback']
                vmn=a_ or vm_ready(gap,1,1,('dma','ld','low')); pipe[0]=sv
            if vmn:
                take(vmn,gap)
                while OPT['bat'] and fifo[vmn] and fifo[vmn][0][1].meta.get('bat'): take(vmn,gap)
            else:
                if k==2: e(waitfor(lg=[VV[tau&1][4:8],KM[(tau+1)%3]])); nsc-=1
                if k==2 and tau==63 and OPT['warm']: e(*poll())
                if k==6: e(waitfor(lg=[VV[(tau+1)&1][0:4],KE[(tau+2)%4]])); nsc-=1
                if k==kb and sg is not None:
                    e(waitfor(vmtags=[kv[sg].name]+barx.get(sg,[])), barrier()); nsc-=2
                    if sg+1<8 and not kv[sg+1].pushed: push('dma',gap,kv[sg+1].mk(kv[sg+1]))
                    for it in [x for x in wo_items if not x.pushed][wcut[sg-1]:wcut[sg]]: push('dma',gap,it.mk(it))
                while nsc>0 and pull(gap,True): nsc-=1
            if rds[k] is not None: e(rds[k])
            x=head('ld',gap)
            if x is not None and x.kind=='valu': take('ld',gap)
            for r in (range(8) if k==0 else range(4*k+4,4*k+8)): e(valu(OPT['exp'],S[r],S[r]))
        if n==OPT['opf']: push('low',gap,[cost(bload(vPF,vXOX,sOUT,0,tag='pf'),200)])
        if n==OPT['tatt']: push('arr',gap,touch())
        if n==2 and OPT['xat']: push('ld',gap,x_loads())
        if not fifo['st'] and not f2done[0]:
            f2done[0]=True; print('partial stores end at slot',n)
            push('st',gap+4*OPT['f2lag'],[waitfor(vmtags=['pst']), batomic(vONE,vF1,sWS,0,op='sub')])
        if n==OPT['f2poll']:
            ld=I(f'buffer_atomic_add {vPOLL}, {vPG}, {sWS}, 0 offen sc0','vld',vPOLL.regs()+vPG.regs(),vPOLL.regs(),tag=None)
            e(valu('v_mov_b32',vPOLL,0)); push('st',gap,[ld])
            t0=base+4*OPT['f2chk']
            w_=waitfor(vm=[vPOLL]); w_.meta['lag']=(ld,4*(OPT['f2chk']-OPT['f2poll']))
            push('ld',t0,[w_]+spin('f2',ld,0,OPT['f2sl'],'v_cmp_ne_u32',[f'v_mov_b32 {vPOLL}, 0']))
            ops=base_add(sPC,sWS,WS_PX+4096); nb=OPT['bat'] or 1
            for k in range(32):
                if k%8==0: ops+=base_add(sBL,sWS,WS_P+k*1024+4096)
                ops.append(gload(PART[k],vPL,sBL,(k%8)*1024-4096,flags='sc1')); ops[-1].meta['bat']=k%nb>0
                if k%2==1: ops.append(cost(gload(PARTX[k>>1],vPLX,sPC,(k>>1)*512-4096,flags='sc1'),40)); ops[-1].meta['bat']=True
            nl=0; prev=None
            for o in ops:
                if o.kind=='vld' and not (o.meta['bat'] and OPT['bat']):
                    if prev is not None: o.meta['lag']=(prev,OPT['ldmin'])
                    prev=o
                push('ld',t0+int(nl*OPT['ldgap']),[o])
                if o.kind=='vld': nl+=1
    cur[0]=base+600
    e(PV(63,1,1))
    print('att vmem slots:',' '.join(f"{'kv' if i.meta.get('tag') and i.meta['tag'][0]=='kv' else i.kind[1]}{(i.meta['at']-base)//4}" for i in P if i.kind in VM and i.meta['at']>=base))
    print('left after attention:',{k:len(v) for k,v in fifo.items()})
    assert not any(fifo.values()), 'work left after attention'

def fallback(kv,WB):
    global P
    save=P; P=[]
    pb=kv[5].addr
    a=[V(192+n) for n in range(6)]; vo=V(198); mx=[V(199),V(200)]; S=SBB[2]
    e(label('L_fb'), raw('s_waitcnt vmcnt(0) lgkmcnt(0)','misc'), raw('s_nop 15','misc'))
    for d,s in zip(a,[vKM,vKE]+vVA): e(valu('v_add_u32',d,sW5K,s))
    e(valu('v_lshlrev_b32',vo,4,vL), valu('v_mov_b32',QE[1],0), valu('v_mov_b32',mx[0],0xff800000), valu('v_mov_b32',mx[1],0xff800000))
    off=pb-WB
    for ps in range(2):
        e(salu('s_add_u32',sT0,sH,32), salu('s_mul_i32',sT0,sT0,SL), salu('s_add_u32',sT1,sT0,32*SL), salu('s_mov_b32',sT2,64), label(f'L_fbl{ps}'))
        e(salu('s_add_u32','m0',sW5K,pb), dma(vo,sWS,sT0,0,flags='sc1'), dma(vo,sWS,sT0,1024,flags='sc1'))
        if ps: e(salu('s_add_u32','m0',sW5K,pb+2560), dma(vo,sWS,sT1,0,flags='sc1'), dma(vo,sWS,sT1,1024,flags='sc1'))
        e(waitfor(vmall=True), dsr('ds_read_b128',KM[0],a[0],off), dsr('ds_read_b64',KE[0],a[1],off))
        if ps:
            for n in range(4): e(dsr('ds_read_b64_tr_b16',VV[0][2*n:2*n+2],a[2+n],off+2560))
        e(waitfor(lgall=True))
        e(Bx(0,S), Mx(0,0,S), Mx(0,1,S))
        for x in range(2):
            if ps==0: e(*max_ops([S[16*x:16*x+16]],mx[x],first=False))
            else:
                for r in range(16): e(valu('v_exp_f32',S[16*x+r],S[16*x+r]))
                for h in range(2): e(PV(0,x,h,S))
        e(raw('s_nop 15','misc'), salu('s_add_u32',sT0,sT0,1280), salu('s_add_u32',sT1,sT1,1280), salu('s_sub_u32',sT2,sT2,1), salu('s_cmp_lg_u32',sT2,0), raw(f's_cbranch_scc1 L_fbl{ps}','misc'))
        if ps==0:
            e(*set_shift(mx,0.0)); zero_o()
    e(*norm_store(0,V(116,2)), *norm_store(1,V(116,2)), waitfor(vmall=True))
    e(raw('s_nop 3','misc'), raw('s_branch L_fb_ret','misc'))
    OUT.extend(i.text for i in finalize(P,verbose=0,name='fb'))
    P=save

TT=[V(224,16),V(240,16)]
FLAG_LDS=[0]
def norm_store(x,t):
    O,T=OO[x],TT[x]
    o=[valu('v_rcp_f32',t[0],O[10]), valu('v_mov_b32',t[1],t[0]), swap('v_permlane32_swap_b32',t[0],t[1])]
    o+=[valu('v_mul_f32',T[r],t[0],O[r]) for r in range(10)]
    o+=[valu('v_cvt_pk_bf16_f32',T[d],T[2*d],T[2*d+1]) for d in range(4)]
    o+=[gstore(T[0:4],vOS,S(88+2*x,2),flags='sc1',tag='ost'), valu('v_cvt_pk_bf16_f32',T[8],T[8],T[9])]
    if x: o+=[swap('v_permlane32_swap_b32',TT[0][8],TT[1][8]), gstore(TT[0][8],vOSX,sWS[0:2],flags='sc1',tag='ost')]
    return o
def poll(r=sPV): return [raw(f's_atomic_umax {r}, {sWS[0:2]}, {sF3} glc')]
def final(g0,wo_main,wo_x):
    cur[0]=g0
    SA=V(56,20); DN=V(76,20); XF=V(96,20); tmp=V(116,12)
    e(*norm_store(0,tmp[0:2]), *norm_store(1,tmp[6:8]))
    stamp('o stored')
    fill=[]
    for x in range(2):
        s=tmp[2+x]
        fill.append(valu('v_add_f32_e64',s,f'|{OO[x][0]}|',f'|{OO[x][1]}|'))
        for r in range(2,10): fill.append(valu('v_add_f32_e64',s,s,f'|{OO[x][r]}|'))
    fill+=[valu('v_min_f32',tmp[4],tmp[2],tmp[3]), valu('v_add_f32',tmp[2],tmp[2],tmp[3]), valu('v_add_f32',tmp[3],OO[0][10],OO[1][10]), valu('v_add_f32',tmp[2],tmp[2],tmp[3]),
           valu('v_max_f32',tmp[0],tmp[0],tmp[6]), valu('v_fmac_f32',tmp[2],f32(2.0**(124-MARGIN)),tmp[0],rmw=True)]
    chk=[valu('v_cmp_nle_f32','vcc',f32(2.0**-103),tmp[4]), raw('s_cbranch_vccnz L_fb','misc',['vcc']),
      valu('v_cmp_nge_f32','vcc',f32(2.0**126) if not OPT['forcefb'] else f32(-1.0),tmp[2]), raw('s_cbranch_vccnz L_fb','misc',['vcc']), label('L_fb_ret')]
    pool_=[V(128+4*n,4) for n in range(32)]+[A(212+4*n,4) for n in range(7)]+[A(72+4*n,4) for n in range(34)]
    frs=[]; rds=[]
    order=[0,1,4,5,8,9,12,13,16,2,3,6,7,10,11,14,15,17]
    for s in order:
        for q in range(5):
            f=pool_[len(frs)%len(pool_)]; frs.append(f)
            for u in range(2): rds.append(tr_read(f,u,wo_main[s],q) if q<4 else tr_read(f,u,wo_x[s>>2],s&3))
    red=[]
    for j in range(16):
        for q in range(5):
            d=DN[4*q:4*q+4]
            red.append(m4(d,SELA,PART[16*(q>>1)+j][2*(q&1):2*(q&1)+2] if q<4 else PARTX[j],0 if j==0 else d))
    red+=[m4(XF[4*q:4*q+4],SELA,XR[2*q:2*q+2],0) for q in range(5)]
    e(waitfor(vm=PART+PARTX+[XR,vR2]))
    ri=0
    test=lambda: [waitfor(lgall=True,lgforce=True), salu('s_cmp_eq_u32',sPV,0x44444444)]
    def warm(r=sPV,tracked=False):
        if not OPT['warm']: return []
        t=vT[0]; ld=bload(vPF,t,sWS,0,flags='sc1',tag='pf')
        return [valu('v_lshrrev_b32',t,vSH,r), valu('v_not_b32',t,t), valu('v_lshl_add_u32',t,t,31,vOP), ld if tracked else raw(ld.text)]
    g,c2,ir=tmp[8],tmp[9],tmp[10]
    late_=[valu('v_mul_f32',c2,f32(-1.4426950408889634),vR2), valu('v_rcp_f32',ir,vR2),
           valu('v_bfe_u32',g,vL,4,1), valu('v_mul_u32_u24',g,24,g), valu('v_add_u32',vXO,vXO,g)]
    if OPT['ot']: late_=late_[:2]
    for k,mm in enumerate(red):
        e(mm)
        if k in (OPT['pollat'],OPT['pollat2'],OPT['pollat3']): e(*poll())
        if fill:
            e(fill.pop(0))
            if not fill: e(*chk, waitfor(lgall=True,lgforce=OPT['warm']), *warm(tracked=True), *base_add(sBL,sWS,WS_OX))
            continue
        if k==OPT['hat']: e(waitfor(vmtags=['ost']), batomic(vINC,vF3,sWS,0)); stamp('flag'); continue
        if k>=80:
            if late_: e(late_.pop(0))
            continue
        if k%OPT['r1w']==OPT['r1w']-1: e(waitfor(lg=frs[:max(0,ri//2-OPT['r1l'])]))
        e(rds[ri]); ri+=1
    assert ri<=2*39
    stamp('ready')
    EX=[V(30+n) for n in range(13)]+[V(45+n) for n in range(5)]+[V(14),V(15)]
    fill=[]
    for f in (lambda r:valu('v_mul_f32',EX[r],c2,DN[r]), lambda r:valu('v_exp_f32',EX[r],EX[r]), lambda r:valu('v_fma_f32',EX[r],EX[r],ir,ir),
              lambda r:valu('v_rcp_f32',EX[r],EX[r]), lambda r:valu('v_mul_f32',DN[r],EX[r],DN[r])):
        fill+=[(0,[f(r)]) for r in range(20)]
    OF=[A(4*s,4) for s in range(18)]
    def gate(name,mask):
        one=bin(mask).count('1')==1
        t=lambda: [salu('s_bitcmp1_b32',sPV,mask.bit_length()-1)] if one else [salu('s_and_b32',sT1,sPV,mask), salu('s_cmp_eq_u32',sT1,mask)]
        if OPT['vp']:
            n=OPT['vp']; PL=[vT[z] for z in range(n)]
            vp=lambda z: raw(f'buffer_atomic_umax {PL[z]}, {vOP}, {sWS}, 0 offen sc0')
            y=[label(f'L_w{name}'), vp(0), raw('s_waitcnt lgkmcnt(0)')]+t()+[raw(f's_cbranch_scc1 L_g{name}')]
            for z in range(1,n): y+=[raw(f's_sleep {OPT["psleep"]}'), vp(z)]
            y+=[label(f'L_wl{name}')]
            for z in range(n): y+=[raw(f's_waitcnt vmcnt({n-1})'), valu('v_readfirstlane_b32',sPV,PL[z])]+t()+[raw(f's_cbranch_scc1 L_g{name}'), vp(z)]
        else: y=[label(f'L_w{name}')]+(poll() if OPT['pfirst'] else [])+[label(f'L_wl{name}'), raw('s_waitcnt lgkmcnt(0)')]+t()+[raw(f's_cbranch_scc1 L_g{name}')]+poll()
        y+=[salu('s_addk_i32',sT0,-1), salu('s_cmp_gt_i32',sT0,0), raw(f's_cbranch_scc1 L_wl{name}'), raw(f's_branch L_g{name}')]
        if OPT['inl']: return t()+[raw(f's_cbranch_scc1 L_g{name}')]+y[:-1]+[label(f'L_g{name}')]
        HOT.extend(finalize(y,verbose=0))
        return t()+[raw(f's_cbranch_scc0 L_w{name}',glue=True), label(f'L_g{name}')]
    ge=gate('e',0x04040404)
    ol=[]
    for n,s in enumerate(order):
        if s<16: ol.append((gate(s,4<<(2*s)) if n>8 and s%2==0 else [], gload(OF[n],vOL,sOB[s>>2],(s&3)*2048-4096,flags='sc1')))
        else: ol+=[([],gload(OF[n][r],vOLX,sBL,(s-16)*512+r*128,flags='sc1')) for r in range(4)]
    for z in range(OPT['vp']): e(valu('v_mov_b32',vT[z],0))
    e(salu('s_mov_b32',sT0,0x80000), *ge)
    stamp('ok')
    lg_=[int(x) for x in str(OPT['lgrp']).split(',')]; assert sum(lg_)==12
    for _ in range(lg_.pop(0)): e(ol.pop(0)[1])
    if OPT['rp']&1: e(*poll())
    while ri<OPT['wopre']:
        if ri%4==0: e(waitfor(lg=frs[:max(0,ri//2-4)]))
        e(rds[ri]); ri+=1
    nf=len(fill)
    while len(fill)>OPT['fillmm']:
        e(*fill.pop(0)[1])
        if (nf-len(fill)) in (OPT['lc1'],OPT['lc2']) and lg_:
            for _ in range(lg_.pop(0)): e(ol.pop(0)[1])
            if OPT['rp']&(4>>len(lg_)): e(*poll())
    assert not lg_
    stamp('seen'); note('---- o @ wo, gate, residual')
    def epi(q):
        o=[valu('v_fmac_f32',XF[r],SA[r],DN[r],rmw=True) for r in range(4*q,4*q+4)]
        o+=[valu('v_cvt_pk_bf16_f32',tmp[2*q+d],XF[4*q+2*d],XF[4*q+2*d+1]) for d in range(2)]
        return o
    def put(b): return [swap('v_permlane16_swap_b32',tmp[b],tmp[b+2]), swap('v_permlane16_swap_b32',tmp[b+1],tmp[b+3]), bstore(tmp[b:b+4],vXO,sOUT,0,16*b,flags=OPT['ofl'])]
    k=0; nt=OPT['ntail']
    for s in range(18-nt):
        assert ri>=10*s+10
        e(waitfor(vm=[OF[s]],lg=frs[5*s:max(5*s+5,ri//2-3)]))
        for q in range(5):
            e(m16(SA[4*q:4*q+4],frs[k],OF[s],0 if s==0 else SA[4*q:4*q+4])); k+=1
            if q==0 and ol and s>=OPT['ldel'] and ol[0][0]:
                e(*ol[0][0])
                if OPT.get('mst'): stamp(f'g{s}')
                continue
            if q==0 and s in (9,12) and OPT.get('mst'): stamp(f's{s}')
            if q==1 and ol and s>=OPT['ldel']: e(ol.pop(0)[1]); continue
            if q==3 and str(s) in str(OPT['mpoll']): e(*poll())
            n=0
            while n<(1 if ri>=min(180,OPT['rlead']+int(k*OPT['rrate']/100)) else 2) and ri<len(rds) and ri//2-len(pool_)<k-1: e(rds[ri]); ri+=1; n+=1
            while n<2 and fill: e(*fill.pop(0)[1]); n+=1
    assert not fill and not ol and ri==len(rds),(ri,len(fill))
    ep=[]
    for z,q in enumerate((4,0,1,2,3)):
        for s in range(18-nt,18):
            e(waitfor(vm=[OF[s]],lg=[frs[5*s+q]]), m16(SA[4*q:4*q+4],frs[5*s+q],OF[s],SA[4*q:4*q+4])); k+=1
            n=0
            while ep and n<2 and ep[0][0]<=k:
                o=ep.pop(0)[1]; e(o); n+=1 if o.kind not in ('vst','dsw') else 2
        o=epi(q)+([bstore(tmp[8:10],vXOX,sOUT,0,flags=OPT['ofx'])] if q==4 else [dsw('ds_write_b64',vTW,tmp[2*q:2*q+2],32*q)] if OPT['ot'] else put(2*q-2) if q&1 else [])
        ep+=[(k+3,x) for x in o]
    stamp('mm done')
    for _,o in ep: e(o)
    if OPT['ot']:
        e(dsr('ds_read_b128',XF[0:4],vTRD), dsr('ds_read_b128',XF[4:8],vTRD,8*144), salu('s_mov_b32',sT1,8*1152))
        e(waitfor(lg=[XF[0:4]]), bstore(XF[0:4],vOW,sOUT,0,flags=OPT['ofl']), waitfor(lg=[XF[4:8]]), bstore(XF[4:8],vOW,sOUT,sT1,flags=OPT['ofl']))

def name_regs():
    for k,v in list(globals().items()):
        if k[0]=='v' and k not in ('vT','vL','vPF','vST','vCV'):
            def nm(x,n):
                if isinstance(x,R): x.name=n
                elif isinstance(x,list):
                    for z,y in enumerate(x): nm(y,f'{n}{z}')
            nm(v,k)
def main():
    name_regs(); assert not (OPT['ot'] and (OPT['vp'] or OPT['warm']))
    build_ffn()
    ngaps,bars,free=plan()
    L=OPT['look']
    best=None
    for a0 in range(0,NB-14):
        fr=sorted((max(free[b] for b in range(a0+5*k,a0+5*k+5)),k) for k in range(3))
        key=(fr[0][0],fr[1][0])
        if best is None or key<best[0]: best=(key,a0,[k for _,k in fr])
    _,a0,order=best; WB=a0*4096
    print('attention window',best,'ngaps',ngaps,{k:groups[v].start for k,v in marks.items()})
    kv=[kv_item(s) for s in range(8)]
    for s,it in enumerate(kv): it.addr=(a0+5*order[s%3])*4096
    rest=sorted([b for b in range(NB) if not a0<=b<a0+15],key=lambda b:free[b])
    print('free',[free[b] for b in range(NB)])
    wo_main=[blk_item(('wo',s),vWO if s<16 else vWOE,sWO,36*s*1152 if s<16 else 72*(s-16)*1152) for s in range(18)]
    wo_x=[blk_item(('wx',n),vWX if n<4 else vWXE,sWO,144*n*1152 if n<4 else 0,buf=(n==4),c=320) for n in range(5)]
    for it,b in zip(wo_main+wo_x,rest): it.addr=b*4096
    FLAG_LDS[0]=kv[5].addr

    def pst(name):
        if 'pst' in OPT: stamp(name,True)
    prologue(); pst('karg')
    pre0=[it for it in items if it.early==-3000]; pre1=[it for it in items if it.early==-2000]
    dq=[xdma(tt,l) for tt in range(2) for l in range(9)]+[it.mk(it) for it in pre0+pre1]
    for _ in range(OPT['x0n']): e(*dq.pop(0))
    pst('x0 issued')
    xr=[vM[0],vR[1]]; t,u=vT[2],vT[3]
    DT=[V(140+8*n,8) for n in range(3)]+[V(180,8)]; CM=V(164,4); SUM=V(172,4); ONE4=V(176,4)
    prologue2()
    e(valu('v_and_b32',t,15,vL), valu('v_lshrrev_b32',u,1,t), valu('v_lshlrev_b32',t,7,t), valu('v_add_u32',t,sW18K,t),
      valu('v_lshrrev_b32',xr[0],4,vL), valu('v_xor_b32',xr[0],xr[0],u), valu('v_xor_b32',xr[1],4,xr[0]),
      valu('v_lshl_add_u32',xr[0],xr[0],4,t), valu('v_lshl_add_u32',xr[1],xr[1],4,t))
    for d in range(4): e(valu('v_mov_b32',ONE4[d],sONES))
    with collect() as ao:
        e(*sel_ops(t,u))
        addr_pf(); addr_early(); addr_qk()
        e(valu('v_mov_b32',vONE,1))
        if OPT['split']:
            e(valu('v_min_u32',vCA,1,vL), valu('v_mul_u32_u24',vCA,LDS_OOB-39*4096,vCA), valu('v_add_u32',vCA,39*4096,vCA), valu('v_mov_b32',t,4*len([b for b in bars if b>=SIG])), dsw('ds_write_b32',vCA,t))
    for z in range(OPT['apre']):
        if z==OPT['amid']:
            for _ in range(OPT['xmn']): e(*dq.pop(0))
        e(ao.pop(0))
    pst('pre')
    for _ in range(OPT['x1n']): e(*dq.pop(0))
    for _ in range(OPT['tpre']): e(*touch())
    nx=len([o for o in dq if o[-1].meta['tag'][0]=='x'])
    if OPT['pf']:
        o=pf_gu(0)+(pf_gu(1) if OPT['pfn']>1 else [])+(pf_q() if OPT['pfn']>2 else [])
        k=nx+OPT['pfpos']
        if OPT['pfpos']<0: dq[k-1]=dq[k-1][:-1]+o+dq[k-1][-1:]
        else: dq.insert(k,o)
    e(raw('s_waitcnt lgkmcnt(0)','misc'))
    if OPT['tlb'] and OPT['tlate']: e(raw('s_load_dword s83, s[80:81], s82','misc'))
    pst('addr')
    R0=[XC0[4*s_:4*s_+4] for s_ in range(18)]; X1=[XC1[4*s_:4*s_+4] for s_ in range(18)]
    def xread(tt,dst,l):
        return [waitfor(vmtags=[('x',tt,l)])]+[dsr('ds_read_b128',dst[s],xr[s&1],l*2048,src=(('x',tt,l),list(range(18*tt,18*tt+18))),private=True) for s in (2*l,2*l+1)]
    cq=[]; nm=[0]; nblk=[0]; pre_=[]
    def mm(m,extra=()):
        e(m); nm[0]+=1
        if pre_: e(pre_.pop(0))
        if extra: e(*extra); return
        k=0
        while cq and k<2 and cq[0][0]<=nm[0]-OPT['cage']: e(cq.pop(0)[1]); k+=1
        while ao and k<2: e(ao.pop(0)); k+=1
    def stats(tt,fr,l,nvm,lim=99):
        ms=[]
        for s_ in (2*l,2*l+1): ms+=[m16(SUM,ONE4,fr[s_],0 if s_==0 else SUM), m16(GR[tt],fr[s_],fr[s_],0 if s_==0 else GR[tt])]
        for h in range(2):
            o=[]
            if dq and h<nvm and nblk[0]<min(lim,OPT['nblk']):
                o=dq.pop(0)
                if o[-1].meta['tag'][0] not in 'xp': nblk[0]+=1
            mm(ms[2*h],[x for x in o if x.kind=='salu']); mm(ms[2*h+1],[x for x in o if x.kind!='salu'])
    nc=[0]
    def centre(src,dst,after=(),ex=((),())):
        d=DT[nc[0]%4]; nc[0]+=1
        while any(set(c.rd)&set(d.regs()) for _,c in cq): e(cq.pop(0)[1])
        for h in range(2):
            mm(m4(d[4*h:4*h+4],SELA,src[2*h:2*h+2],CM),ex[h])
            for z in range(2): cq.append((nm[0],valu('v_cvt_pk_bf16_f32',dst[2*h+z],d[4*h+2*z],d[4*h+2*z+1])))
        for x in after: cq.append((nm[0],x))
    def mean(tt):
        dst=vM[1] if tt else t
        e(valu('v_mul_f32',MEAN[tt],f32(1/576),SUM[0]), valu('v_cvt_pk_bf16_f32',dst,MEAN[tt],MEAN[tt]), valu('v_lshlrev_b32',dst,16,dst))
        for d in range(4): e(valu('v_xor_b32',CM[d],0x80000000,dst))
    for l in range(10):
        if l<9: e(*xread(0,R0,l))
        if l==0: e(*dq.pop(0))
        for _ in range(OPT['afill'] if l<9 else 999):
            if ao: e(ao.pop(0))
        if l>0:
            e(waitfor(lg=R0[2*l-2:2*l])); stats(0,R0,l-1,int(str(OPT.get('w1','x111111111'))[l]),len(pre0))
        if str(l) in str(OPT.get('tch','x135')): e(*touch())
        if l==OPT['brl']: e(raw('s_branch L_main','misc'), label('L_exit'), raw('s_endpgm'), I('.p2align 12','comment'), label('L_main'))
        pst(f'x0 rd {l}')
    stamp('x0 read')
    e(valu('v_add_u32',xr[0],73728,xr[0]), valu('v_add_u32',xr[1],73728,xr[1]))
    e(*xread(1,X1,0)); mean(0); pst('stat0')
    for l in range(9):
        for s_ in (2*l,2*l+1): centre(R0[s_],X0[s_],to_acc(s_) if s_>=NV0 else ())
        if l<8: e(*xread(1,X1,l+1))
        if l==OPT['barl']: e(barrier())
        e(waitfor(lg=X1[2*l:2*l+2])); stats(1,X1,l,int(str(OPT.get('w2','x111122222'))[l+1]),99 if l>=OPT['barl'] else len(pre0))
        pst(f'x1 rd {l}')
    while cq: e(cq.pop(0)[1])
    mean(1)
    reads=[f(it) for g in groups[:4] for it,f in g.rd][:L]; nb_=(L+1)//2+1
    n0=OPT['n0']
    for s_ in range(n0):
        ex=((),())
        if s_==n0-nb_: ex=((waitfor(vmtags=[it.name for it in items if it.bar==-L]), barrier()),()); stamp('x1 read'); pst('bar1')
        if s_>n0-nb_: pre_[:]=[reads.pop(0) for z in range(2) if reads]
        centre(X1[s_],X1[s_],ex=ex)
    assert not reads
    while cq: e(cq.pop(0)[1])
    e(waitfor(lg=groups[0].fr)); pst('go')
    for s_ in range(n0,18): push('ctr',0,centre_ops(X1[s_],1))
    for s_ in range(NV0): push('ctr',0,to_acc(s_))
    for o in dq: push('dma',-1,o)
    mx_=-1
    for it in items:
        mx_=max(mx_,it.early)
        if it.early>-2000: push('dma',it.early,it.mk(it),mx_)
    st=lambda k:groups[marks[k]].start
    def low(gap,f,*a):
        with collect() as o: f(*a)
        push('low',gap,o,gap)
    low(st('c0')+200,var_ops,0); low(st('c0')+200,var_ops,1)
    TCH=[(int(g_),touch()) for g_ in str(OPT['tat']).split(',') if int(g_)>=0]
    low(st('c1'),addr_mid); low(st('c1'),addr_mid2); low(st('qkv'),addr_pfd)
    low(st('c2')+200,addr_att,WB); low(st('c2')+200,addr_lds,WB)
    pt=[int(x) for x in OPT['pft'].split(',')]
    for k,(g_,o) in enumerate(zip(pt,[pf_gu(1) if OPT['pfn']<2 else [],pf_q() if OPT['pfn']<3 else [],pf_gu(2),pf_gu(3),pf_gu(4),pf_d(0),pf_d(1),pf_d(2)])):
        if o and (k==7 or pt[k+1]!=g_): o[-1].meta['cost']+=OPT['pfx']
        push('ld',g_,o,g_)
    low(st('c3'),pf_o)
    b1=[b for b in bars if b>st('c3')+60][0]
    bar_extra[b1]=['qkvst']
    ar=[salu('s_and_b32',sJH,S(2),1), salu('s_lshl_b32',sJH,sJH,7), salu('s_mov_b32',sJ128,1), salu('s_cmp_lg_u32',sW,0), raw('s_cbranch_scc1 L_arr','misc'),
        raw(f's_atomic_add {sJ128}, {sDBG[0:2]}, {sJH}','misc',sJ128.regs()+sJH.regs()), label('L_arr')]
    for x in ar[3:6]: x.meta['glue']=True
    for g_,o in sorted(TCH+[(b1,ar)],key=lambda z:z[0]): push('arr',g_,o,g_)
    ARR.append(ar[5])
    if OPT['stop']!='down':
        d0=st('down')
        att_setup(ngaps,kv,WB); bar_extra[bars[-1]]=[kv[0].name]+([kv[1].name] if OPT['nob1'] else [])
        low(b1,addr_z); low(b1,addr_fin); low(max(d0+400,mx_+1),addr_op); extra_zero(ngaps)
        ld=bload(vPOLL,vZ,sDBG,0,flags='sc1')
        push('ld',d0+OPT['f1poll'],[ld],d0+OPT['f1poll'])
        with collect() as o: qk_loads(WB)
        w_=waitfor(vm=[vPOLL]); w_.meta['lag']=(ld,100)
        push('ld',d0+OPT['f1poll'],[w_]+spin('f1',ld,128,40)+o,d0+OPT['f1poll'])
        for it in kv[:3]+(wo_main+wo_x)[:OPT['wob']]:
            early=max(free[b] for b in it.blks())
            assert early>d0+300
            if early<LATE: push('dma',early,it.mk(it),ngaps-1); it.pushed=True
    for k_,t_ in (('c0','gate/up columns 0..63'),('c1','gate/up columns 64..127'),('qkv','q, k, v'),('c2','gate/up columns 128..191'),('c3','gate/up columns 192..255'),('half','gate/up last 32 columns'),('down','down projection')): PH[st(k_)]='---- '+t_
    emit_backbone(bars,{groups[v].start:k for k,v in marks.items() if k in ('c0','qkv','down')})
    qs=[i.meta['at'] for i in P if i.meta.get('tag')=='qkvst']; assert len(qs)==12 and max(qs)<b1-SIG,(qs,b1)
    print('arrival at',ARR[0].meta['at'],'poll at',ld.meta['at'])
    stamp('down end')
    if OPT['stop']=='down':
        for nm in ('epi','st','low','dma'):
            for af,o in fifo[nm]: e(o)
    else:
        attention(ngaps,kv,WB,wo_main+wo_x)
        stamp('att end')
        final(ngaps+1000,wo_main,wo_x)
        fallback(kv,WB)
    finish()

def sizes(lines):
    import subprocess, re
    uniq=sorted(set(lines))
    src='.amdgcn_target "amdgcn-amd-amdhsa--gfx950"\n.text\nLX:\n'+'\n'.join(re.sub(r'L_codeend-L_pc-4','0x12345',re.sub(r'(s_branch|s_cbranch\w+) \w+',r'\1 0',u)) for u in uniq)+'\n'
    open('_sz.s','w').write(src)
    r=subprocess.run(['llvm-mc','-triple=amdgcn-amd-amdhsa','-mcpu=gfx950','-show-encoding','_sz.s'],capture_output=True,text=True)
    assert r.returncode==0,r.stderr[:2000]
    enc=re.findall(r'encoding: \[([^\]]*)\]',r.stdout)
    assert len(enc)==len(uniq),(len(enc),len(uniq))
    return {u:len(x.split(',')) for u,x in zip(uniq,enc)}
PGAT=[]; NAL=[0,0]
def page_stubs(out):
    sz=sizes([i.text for i in out if i.kind not in ('label','comment')])
    k0=[k for k,i in enumerate(out) if i.text=='L_main:'][0]
    print('entry part bytes',sum(sz.get(i.text,0) for i in out[:k0]))
    res=out[:k0+1]; off=0; pg=0; prev=None; forced=False
    npg=4*ntouch[0]
    for k in range(k0+1,len(out)):
        i=out[k]
        if pg<npg and off>=4096*pg and not (prev is not None and prev.meta.get('glue')):
            good=prev is not None and prev.kind=='mfma' and i.kind in ('dsr','valu','trans')
            if good or off-4096*pg>=40 or pg==0 or forced:
                res+=[label(f'L_pg{pg}'), raw(f's_cbranch_execz L_tr{pg//4}')]; off+=4; PGAT.append((pg,i.meta.get('at'))); pg+=1
        if OPT['al8'] and off%8==4 and sz.get(i.text,0)==8 and res[-1] is prev and sz.get(prev.text,0)==4:
            run=0
            for j in out[k:]:
                if j.kind in ('label','comment'): continue
                if sz.get(j.text,0)!=8: break
                run+=1
            at=i.meta.get('at',0); dense=at<0 or at>=3000
            op=prev.text.split()[0]
            if run>=OPT['al8'] and prev.kind in ('valu','trans') and op in ('v_mul_f32','v_max_f32','v_add_f32','v_sub_f32','v_mov_b32','v_lshlrev_b32','v_exp_f32','v_rcp_f32','v_add_u32','v_and_b32','v_xor_b32','v_min_f32','v_fmac_f32','v_lshrrev_b32'):
                res[-1]=I(prev.text.replace(op,op+'_e64',1),prev.kind); off+=4; NAL[0]+=1
            elif run>=8 and dense and OPT['aln'] and not prev.meta.get('glue'): res.append(raw('s_nop 0')); off+=4; NAL[1]+=1
        res.append(i); off+=sz.get(i.text,0)
        if i.text=='.p2align 12': off=-(-off//4096)*4096; forced=True; continue
        if i.kind not in ('label','comment'): prev=i
    print('main part bytes',off,'pages touched',pg,'of',-(-off//4096))
    print('page starts',PGAT,'aligned',NAL)
    while pg<npg: OUT.extend([f'L_pg{pg}:',f's_branch L_tr{pg//4}']); pg+=1
    return res
DOC=""";
; out = x + (MHA(LN(x)) @ wo) * silu(ReGLU(LN(x)))      one persistent launch, one workgroup (4 waves, 512 registers) per CU
; The instruction stream is written out in full by a generator script; every wave runs the same stream.
;
; 1. LayerNorm: 128 rows per workgroup, 32 per wave, kept in registers as MFMA B operands. Row sums and sums of squares come
;    from MFMAs; the rows are centred, 1/sd is applied later (q,k,v when they are written, down before the gate).
; 2. gate/up (288 columns of F per workgroup), q,k,v (108 columns) and down (K = those 288 columns): weights stream through an
;    LDS ring (LDS-DMA, transposing reads). h = relu(gate)*up stays in registers; q,k,v and the bf16 partial sums of down go
;    to d_ws with write-through stores.
; 3. attention: one head x 256 queries per workgroup. S^T = K Q^T with the softmax shift folded in as two extra K slots;
;    P = exp2(S^T); O^T and the row sums accumulate through the sparse MFMA, which picks the upper halves of the fp32 P.
;    Shift = (maximum over the first 64 keys) + 90. Softmax does not depend on the shift unless something over- or
;    underflows, so the result is checked (row sum in [2^-92, 2^126], O finite and above 2^-103); a wave that fails the check
;    repeats its rows with the true maximum over all keys (L_fb).
; Loads into a255 are prefetches. The EXEC=0 hops to the L_pg labels only pull the first line of a code page into the I-cache.
; Hand-offs between workgroups: stores are drained (vmcnt) before a counter is touched; the counters in d_ws are reset by this
; launch before the d_debug counter that everyone passes first. Every wait is bounded.
"""
def finish():
    cur[0]=10**7
    if OPT['stamps']:
        e(raw('s_waitcnt lgkmcnt(0)','misc'), waitfor(vmall=not OPT.get('nodrain')))
        stamp('drained'); e(raw('s_waitcnt lgkmcnt(0)','misc'))
        n=nstamp[0]
        for k in range(max(0,n-7),n): e(raw(f'v_writelane_b32 v13, s{64+2*(k%7)}, {k}','misc'))
        if 'padto' in OPT:
            e(raw('s_nop 1','misc'), raw(f'v_readlane_b32 s46, v13, {OPT["padto"]}','misc'), raw('s_nop 3','misc'))
            e(salu('s_add_u32',sT0,sT0,10000), label('L_pad'), raw('s_memrealtime s[98:99]','misc'), raw('s_waitcnt lgkmcnt(0)','misc'), salu('s_sub_u32',sT1,S(98),sT0), salu('s_cmp_lt_i32',sT1,0), raw('s_cbranch_scc1 L_pad','misc'))
        else:
            e(salu('s_lshl_b32',sT0,S(2),2), salu('s_add_u32',sT0,sT0,sW), salu('s_lshl_b32',sT0,sT0,8), salu('s_add_u32',sT0,sT0,WS_STAMP))
            e(valu('v_lshlrev_b32',V(1),2,vL), bstore(vST,V(1),sWS,sT0))
    check_order(P); check_roles(P)
    check_init(P,['v0','v13','s2','s46','s47','s82','s83']+[r for x in (sX,sWQ,sWO,sWG,sWU,sWD,sOUT,sDBG,sWS) for r in x[0:2].regs()])
    out=finalize(P,verbose=OPT['v'],name='main')
    out=page_stubs(out+[raw('s_endpgm'),I('.p2align 12','comment')]+HOT)
    hdr=open('recurrent_scan__mha_block__glu_gated_reglu__prompt.s.ref').read().split('; Override launch')[0]
    txt=hdr+'; @launch grid=(256,1,1) block=(256,1,1) lds=163840\n'+DOC+'.amdgcn_target "amdgcn-amd-amdhsa--gfx950"\n.text\n'
    txt+=f'.globl {NAME}\n.p2align 12\n.p2align 8\n.type {NAME},@function\n{NAME}:\n'
    txt+='\n'.join(i.text for i in out)+'\n'+'\n'.join(OUT)+'\ns_endpgm\nL_codeend:\n'
    txt+=f'''.section .rodata,"a"
.p2align 6
.amdhsa_kernel {NAME}
  .amdhsa_next_free_vgpr 512
  .amdhsa_next_free_sgpr 102
  .amdhsa_accum_offset 256
  .amdhsa_group_segment_fixed_size 0
  .amdhsa_kernarg_size 80
  .amdhsa_user_sgpr_count 2
  .amdhsa_user_sgpr_kernarg_segment_ptr 1
  .amdhsa_system_sgpr_workgroup_id_x 1
  .amdhsa_float_denorm_mode_32 {OPT.get('dn',3)}
.end_amdhsa_kernel
'''
    open(sys.argv[1],'w').write(txt)
    print('bytes',len(txt))
main()
```
